```python
import torch

def _softmax(x, axis=-1):
    return torch.softmax(x, dim=axis)

def _gelu(x):
    return torch.nn.functional.gelu(x, approximate='tanh')

def _silu(x):
    return torch.nn.functional.silu(x)

def _sigmoid(x):
    return torch.sigmoid(x)

def _layernorm(x, axis=-1, eps=1e-05):
    m = x.mean(dim=axis, keepdim=True)
    v = x.var(dim=axis, keepdim=True, unbiased=False)
    return (x - m) / torch.sqrt(v + eps)

def _scatter_add(tgt, idx, src, axis=0):
    return tgt.clone().index_add_(axis, idx, src)

def _segment_sum(src, seg, n):
    out = torch.zeros((n,) + src.shape[1:], dtype=src.dtype)
    return out.index_add_(0, seg, src)

def _pad(x, pw):
    flat = tuple((v for pair in reversed(pw) for v in pair))
    return torch.nn.functional.pad(x, flat)
kernel_name = 'gated_mix__grouped_kv_mqa__mixer_gmlp__prompt'

def setup_inputs():

    _w = lambda a: (lambda t: t.to(torch.bfloat16) if t.is_floating_point() else t)(torch.as_tensor(a))

    def _A_setup():
        B, S, D, H = (1, 2048, 576, 32)
        Dh = D // H
        return {'x': _w((lambda *s: torch.randn(*s, dtype=torch.bfloat16) * 0.05)(B, S, D)), 'wq': _w((lambda *s: torch.randn(*s, dtype=torch.bfloat16) * 3.2)(D, H * Dh)), 'wk': _w((lambda *s: torch.randn(*s, dtype=torch.bfloat16) * 3.2)(D, Dh)), 'wv': _w((lambda *s: torch.randn(*s, dtype=torch.bfloat16) * 0.4)(D, Dh)), 'wo': _w((lambda *s: torch.randn(*s, dtype=torch.bfloat16) * 0.4)(H * Dh, D))}
    _A_in = _A_setup()

    def _B_setup():
        B, S, D, F = (1, 2048, 576, 4608)
        Fh = F // 2
        return {'x': _w((lambda *s: torch.randn(*s, dtype=torch.bfloat16) * 0.05)(B, S, D)), 'w_in': _w((lambda *s: torch.randn(*s, dtype=torch.bfloat16) * 1.6)(D, 2 * Fh)), 'w_sp': _w(0.01 * (lambda *s: torch.randn(*s, dtype=torch.bfloat16) * 1.6)(S, S)), 'b_sp': _w(1.0 + 0.01 * (lambda *s: torch.randn(*s, dtype=torch.bfloat16) * 0.1)(S)), 'w_out': _w((lambda *s: torch.randn(*s, dtype=torch.bfloat16) * 0.1)(Fh, D))}
    _B_in = _B_setup()
    return {'A_x': _A_in['x'], 'A_wq': _A_in['wq'], 'A_wk': _A_in['wk'], 'A_wv': _A_in['wv'], 'A_wo': _A_in['wo'], 'B_x': _B_in['x'], 'B_w_in': _B_in['w_in'], 'B_w_sp': _B_in['w_sp'], 'B_b_sp': _B_in['b_sp'], 'B_w_out': _B_in['w_out'], 'gate_w': _w((lambda *s: torch.randn(*s, dtype=torch.bfloat16) * 0.1)(576) * 16.0)}

def reference(A_x, A_wq, A_wk, A_wv, A_wo, B_x, B_w_in, B_w_sp, B_b_sp, B_w_out, gate_w):

    def _A_ref(x, wq, wk, wv, wo):
        B, S, D = x.shape
        H = 32
        Dh = D // H
        q = (lambda x, *d: x.permute(*d))((x @ wq).reshape(B, S, H, Dh), 0, 2, 1, 3)
        k = x @ wk
        v = x @ wv
        scores = torch.einsum('bhqd,bkd->bhqk', q, k) * Dh ** (-0.5)
        p = _softmax(scores, axis=-1)
        o = torch.einsum('bhqk,bkd->bhqd', p, v)
        return (lambda x, *d: x.permute(*d))(o, 0, 2, 1, 3).reshape(B, S, H * Dh) @ wo

    def _B_ref(x, w_in, w_sp, b_sp, w_out):
        B, S, D = x.shape
        F = w_in.shape[-1]
        Fh = F // 2
        z = _gelu(torch.einsum('bsd,df->bsf', x, w_in))
        z1 = z[..., :Fh].clone()
        z2 = _layernorm(z[..., Fh:], axis=-1)
        g = torch.einsum('ts,bsf->btf', w_sp, z2) + b_sp[None, :, None]
        return torch.einsum('bsf,fd->bsd', z1 * g, w_out)
    x = A_x
    g = _sigmoid((x * gate_w).sum(-1, keepdims=True))
    a = _A_ref(x, A_wq, A_wk, A_wv, A_wo)
    b = _B_ref(x, B_w_in, B_w_sp, B_b_sp, B_w_out)
    return g * a + (1 - g) * b
```

```python
import re

TRANS = ('v_exp_f32', 'v_log_f32', 'v_rcp_f32', 'v_rsq_f32', 'v_sqrt_f32', 'v_sin_f32', 'v_cos_f32')


def parse_regs(tok):
    tok = tok.strip()
    tok = tok.lstrip('-')
    m = re.match(r'^abs\((.*)\)$', tok)
    if m:
        tok = m.group(1)
    tok = tok.strip('|')
    m = re.match(r'^([vsa])(\d+)$', tok)
    if m:
        return {(m.group(1), int(m.group(2)))}
    m = re.match(r'^([vsa])\[(\d+):(\d+)\]$', tok)
    if m:
        return {(m.group(1), i) for i in range(int(m.group(2)), int(m.group(3)) + 1)}
    if tok in ('vcc', 'vcc_lo', 'vcc_hi'):
        return {('vcc', 0)}
    if tok == 'm0':
        return {('m0', 0)}
    if tok in ('exec', 'exec_lo', 'exec_hi'):
        return {('exec', 0)}
    return set()


class Ins:
    __slots__ = ('text', 'op', 'ops', 'kind', 'wr', 'rd', 'passes', 'srcc', 'dpp', 'data')

    def __init__(self, text):
        self.text = text
        t = text.split(';')[0].strip()
        self.op = ''
        self.ops = []
        self.kind = 'other'
        self.wr = set()
        self.rd = set()
        self.passes = 0
        self.srcc = set()
        self.dpp = False
        self.data = set()
        if not t or t.endswith(':') or t.startswith('.'):
            self.kind = 'label' if t.endswith(':') else 'none'
            return
        parts = t.split(None, 1)
        op = parts[0]
        self.op = op
        rest = parts[1] if len(parts) > 1 else ''
        rest_main = re.split(r'\s+(?=(?:offen|idxen|offset|offset0|offset1|lds|sc0|sc1|nt|op_sel|op_sel_hi|neg_lo|neg_hi|quad_perm|row_shr|row_shl|row_ror|row_bcast|row_mirror|row_half_mirror|row_mask|bank_mask|bound_ctrl|clamp|mul|div|dst_sel|dst_unused|src0_sel|src1_sel|bitop3|cbsz|abid|blgp)\b)', rest, maxsplit=1)
        mods = rest_main[1] if len(rest_main) > 1 else ''
        ops = [o.strip() for o in rest_main[0].split(',')] if rest_main[0].strip() else []
        self.ops = ops
        R = [parse_regs(o) for o in ops]
        if op.startswith('v_mfma'):
            self.kind = 'mfma'
            self.passes = 8 if '32x32' in op else 4
            self.wr = R[0]
            self.rd = R[1] | R[2] | R[3]
            self.srcc = R[3]
        elif op.startswith('v_'):
            self.kind = 'valu'
            if 'dpp' in op or 'quad_perm' in mods or 'row_' in mods:
                self.dpp = True
            if op.startswith('v_cmp'):
                self.wr = R[0]
                for r in R[1:]:
                    self.rd |= r
            elif op.startswith('v_permlane') and 'swap' in op:
                self.wr = R[0] | R[1]
                self.rd = R[0] | R[1]
            elif op.startswith(('v_add_co', 'v_sub_co', 'v_addc_co', 'v_subb_co', 'v_subrev_co')):
                self.wr = R[0] | R[1]
                for r in R[2:]:
                    self.rd |= r
            else:
                self.wr = R[0] if R else set()
                for r in R[1:]:
                    self.rd |= r
                if op.startswith(('v_fmac', 'v_pk_fmac', 'v_dot2c', 'v_writelane')) or self.dpp:
                    self.rd |= R[0]
        elif op.startswith('s_'):
            self.kind = 'salu'
            if op.startswith(('s_load', 's_buffer_load', 's_memtime', 's_memrealtime')):
                self.kind = 'smem'
                self.wr = R[0]
                for r in R[1:]:
                    self.rd |= r
            elif op.startswith(('s_cmp', 's_waitcnt', 's_nop', 's_barrier', 's_branch', 's_cbranch', 's_endpgm', 's_sleep', 's_setprio', 's_bitcmp')):
                for r in R:
                    self.rd |= r
            else:
                self.wr = R[0] if R else set()
                for r in R[1:]:
                    self.rd |= r
                if 'saveexec' in op:
                    self.wr |= {('exec', 0)}
        elif op.startswith(('buffer_', 'global_', 'flat_')):
            self.kind = 'vmem'
            is_lds = bool(re.search(r'\blds\b', mods)) or '_lds_' in op
            if is_lds:
                self.kind = 'dma'
                for r in R:
                    self.rd |= r
                self.rd |= {('m0', 0)}
            elif op in ('buffer_wbl2', 'buffer_inv'):
                pass
            elif '_load' in op:
                self.wr = R[0]
                for r in R[1:]:
                    self.rd |= r
            elif '_store' in op:
                for r in R:
                    self.rd |= r
                d = R[0] if op.startswith('buffer_') else R[1]
                if 'x4' in op or 'x3' in op:
                    self.data = d
            elif 'atomic' in op:
                for r in R:
                    self.rd |= r
                if 'sc0' in mods:
                    self.wr = R[0]
        elif op.startswith('ds_'):
            self.kind = 'ds'
            if op.startswith(('ds_read', 'ds_bpermute', 'ds_permute', 'ds_swizzle')):
                self.wr = R[0]
                for r in R[1:]:
                    self.rd |= r
            else:
                for r in R:
                    self.rd |= r

    def states(self):
        if self.kind in ('label', 'none'):
            return 0
        if self.op == 's_nop':
            return int(self.ops[0], 0) + 1
        return 1


def isv(regs):
    return {r for r in regs if r[0] in 'va' and r[0] != 'vcc'}


def iss(regs):
    return {r for r in regs if r[0] == 's' or r[0] == 'vcc'}


def need_states(p, c):
    n = 0
    if p.kind == 'valu':
        pw = isv(p.wr)
        if c.kind == 'mfma' and pw & c.rd:
            n = max(n, 2)
        if c.kind == 'valu':
            if p.op.replace('_e32', '').replace('_e64', '') in TRANS and (pw & c.rd) and c.op.replace('_e32', '').replace('_e64', '') not in TRANS:
                n = max(n, 1)
            if c.op.startswith(('v_readlane', 'v_readfirstlane')) and pw & c.rd:
                n = max(n, 1)
            if c.op.startswith('v_permlane') and pw & c.rd:
                n = max(n, 2)
            if c.dpp and pw & c.rd:
                n = max(n, 2)
            if ('sdwa' in p.op or 'op_sel' in p.text) and not p.op.startswith('v_pk_') and pw & c.rd:
                n = max(n, 1)
        ps = iss(p.wr)
        if ps:
            if c.kind == 'valu' and ps & c.rd:
                n = max(n, 4 if c.op.startswith(('v_readlane', 'v_writelane')) else 2)
            if c.kind in ('vmem', 'dma') and ps & c.rd:
                n = max(n, 5)
            if c.kind in ('salu', 'smem') and ps & c.rd:
                n = max(n, 2)
            if c.op in ('s_cbranch_vccz', 's_cbranch_vccnz') and ('vcc', 0) in ps:
                n = max(n, 5)
    if p.kind == 'salu':
        if ('m0', 0) in p.wr and c.kind == 'dma':
            n = max(n, 1)
    if p.kind == 'mfma':
        big = p.passes == 8
        if c.kind == 'mfma':
            ab = c.rd - c.srcc
            if p.wr & ab:
                n = max(n, 12 if big else 8)
            if p.wr & c.srcc and not (p.wr == c.srcc and p.passes == c.passes):
                n = max(n, 10 if big else 6)
            if p.wr & c.wr and not (p.wr == c.wr and p.passes == c.passes) and not (p.wr & c.srcc):
                n = max(n, 12 if big else 8)
        elif c.kind in ('valu', 'vmem', 'dma', 'ds'):
            if p.wr & (c.rd | c.wr):
                n = max(n, 12 if big else 8)
            if c.kind == 'valu' and p.srcc & c.wr:
                n = max(n, 7 if big else 3)
    if p.kind == 'vmem' and p.data:
        if p.data & c.wr:
            n = max(n, 2 if c.kind in ('valu', 'mfma') else 1)
    return n


class Asm:
    def __init__(self):
        self.ins = []
        self.vmq = []
        self.lgq = []
        self.nlabel = 0

    def e(self, text):
        for line in text.split('\n'):
            line = line.strip()
            if line:
                self.ins.append(Ins(line))

    def label(self, name):
        self.ins.append(Ins(name + ':'))

    def newlabel(self, base='L'):
        self.nlabel += 1
        return f'{base}_{self.nlabel}'

    def vm(self, text, tag=None):
        self.e(text)
        self.vmq.append(tag)

    def lg(self, text, tag=None):
        self.e(text)
        self.lgq.append(tag)

    def _cnt(self, q, tag):
        idx = [i for i, t in enumerate(q) if t == tag]
        if not idx:
            return None
        return len(q) - 1 - idx[-1]

    def wait_vm(self, tag):
        n = self._cnt(self.vmq, tag)
        if n is None:
            return
        n = min(n, 63)
        self.e(f's_waitcnt vmcnt({n})')
        self.vmq = self.vmq[len(self.vmq) - n:] if n else []

    def wait_lg(self, tag):
        n = self._cnt(self.lgq, tag)
        if n is None:
            return
        n = min(n, 15)
        self.e(f's_waitcnt lgkmcnt({n})')
        self.lgq = self.lgq[len(self.lgq) - n:] if n else []

    def wait_vm0(self):
        self.e('s_waitcnt vmcnt(0)')
        self.vmq = []

    def wait_lg0(self):
        self.e('s_waitcnt lgkmcnt(0)')
        self.lgq = []

    def wait_all(self):
        self.e('s_waitcnt vmcnt(0) lgkmcnt(0)')
        self.vmq = []
        self.lgq = []

    def fix_hazards(self, window=24):
        out = []
        for c in self.ins:
            if c.kind in ('label', 'none'):
                out.append(c)
                continue
            need = 0
            dist = 0
            for p in reversed(out):
                if dist >= window:
                    break
                if p.op in ('s_branch', 's_endpgm'):
                    break
                n = need_states(p, c)
                if n > dist:
                    need = max(need, n - dist)
                dist += p.states()
            while need > 0:
                k = min(need, 16)
                out.append(Ins(f's_nop {k - 1}'))
                need -= k
            out.append(c)
        self.ins = out
        self.check_branches(window)

    def check_branches(self, window=24):
        labels = {}
        for i, c in enumerate(self.ins):
            if c.kind == 'label':
                labels[c.text.split(':')[0].strip()] = i
        for i, b in enumerate(self.ins):
            if b.op.startswith(('s_cbranch', 's_branch')):
                tgt = b.ops[0]
                if tgt not in labels:
                    continue
                tail = []
                d = 0
                j = i
                while j >= 0 and d < window:
                    if j != i and self.ins[j].op in ('s_branch', 's_endpgm'):
                        break
                    tail.append(self.ins[j])
                    d += self.ins[j].states()
                    j -= 1
                d0 = 0
                j = labels[tgt]
                while j < len(self.ins) and d0 < window:
                    c = self.ins[j]
                    if c.kind not in ('label', 'none'):
                        dist = d0
                        for p in tail:
                            n = need_states(p, c)
                            if n > dist:
                                raise RuntimeError(f'hazard across branch {b.text}: {p.text} -> {c.text} needs {n} has {dist}')
                            dist += p.states()
                        d0 += c.states()
                        if c.op in ('s_branch', 's_endpgm'):
                            break
                    j += 1

    def text(self):
        o = []
        for c in self.ins:
            o.append(c.text if c.kind == 'label' else '  ' + c.text)
        return '\n'.join(o) + '\n'

    def max_regs(self):
        mv = ms = ma = -1
        for c in self.ins:
            for k, n in c.wr | c.rd:
                if k == 'v':
                    mv = max(mv, n)
                elif k == 's':
                    ms = max(ms, n)
                elif k == 'a':
                    ma = max(ma, n)
        return mv + 1, ms + 1, ma + 1
```

```python
import sys, struct
from asmlib import Asm

NAME = 'gated_mix__grouped_kv_mqa__mixer_gmlp__prompt'

Z2_OFF = 0x10000
UF_OFF = Z2_OFF + 9437184
W3_OFF = UF_OFF + 11796480
KV_OFF = W3_OFF + 3317760
KV_TILE = 2496
GATE_OFF = KV_OFF + 160 * 1024
STATS_OFF = GATE_OFF + 8192
FLAG_OFF = STATS_OFF + 524288
WS_SIZE = 0x1a00000
assert FLAG_OFF + 65536 <= 0x1900000
STAMP_OFF = 0x1900000

A_X, A_WQ, A_WK, A_WV, A_WO, A_BX, A_WIN, A_WSP, A_BSP, A_WOUT, A_GW, A_OUT, A_DBG, A_WS = [8 * i for i in range(14)]

STAMP = False
ABL = set()


def f2u(f):
    return struct.unpack('<I', struct.pack('<f', f))[0]


def hx(f):
    return '0x%08x' % f2u(f)


def srd(a, d, size):
    a.e(f's_mov_b32 s{d + 2}, {size}')
    a.e(f's_mov_b32 s{d + 3}, 0x00020000')


def vr(b, n):
    return f'v[{b}:{b + n - 1}]'


def stamp(a, idx):
    if not STAMP:
        return
    a.wait_lg0()
    a.e('s_memrealtime s[78:79]')
    a.e('s_waitcnt lgkmcnt(0)')
    a.e(f's_mov_b32 s{80 + idx}, s78')


def stamp_flush(a, kidx):
    if not STAMP:
        return
    a.e('s_waitcnt vmcnt(0) lgkmcnt(0)')
    a.e('s_memrealtime s[78:79]')
    a.e(f's_load_dwordx2 s[76:77], s[0:1], {A_WS}')
    a.e('s_waitcnt lgkmcnt(0)')
    a.e('s_mov_b32 s87, s78')
    a.e('v_lshrrev_b32 v1, 6, v0')
    a.e('v_lshlrev_b32 v1, 5, v1')
    a.e('s_lshl_b32 s78, s2, 7')
    a.e(f's_add_u32 s78, s78, {STAMP_OFF + kidx * 65536}')
    a.e('v_add_u32 v1, s78, v1')
    for i in range(8):
        a.e(f'v_mov_b32 v{4 + i}, s{80 + i}')
    a.e('global_store_dwordx4 v1, v[4:7], s[76:77]')
    a.e('global_store_dwordx4 v1, v[8:11], s[76:77] offset:16')


GELU_C0 = -2.0 * 1.4426950408889634 * 0.7978845608028654
GELU_C1 = GELU_C0 * 0.044715


def gelu_group(a, regs, T, sC1, vC0):
    n = len(regs)
    for i, r in enumerate(regs):
        a.e(f'v_pk_mul_f32 {vr(T + 2 * i, 2)}, {vr(r, 2)}, {vr(r, 2)}')
    for i, r in enumerate(regs):
        a.e(f'v_pk_fma_f32 {vr(T + 2 * i, 2)}, {vr(T + 2 * i, 2)}, s[{sC1}:{sC1 + 1}], {vr(vC0, 2)}')
    for i, r in enumerate(regs):
        a.e(f'v_pk_mul_f32 {vr(T + 2 * i, 2)}, {vr(T + 2 * i, 2)}, {vr(r, 2)}')
    for i in range(2 * n):
        a.e(f'v_exp_f32 v{T + i}, v{T + i}')
    for i, r in enumerate(regs):
        a.e(f'v_pk_add_f32 {vr(T + 2 * i, 2)}, {vr(T + 2 * i, 2)}, 1.0 op_sel_hi:[1,0]')
    for i in range(2 * n):
        a.e(f'v_rcp_f32 v{T + i}, v{T + i}')
    for i, r in enumerate(regs):
        a.e(f'v_pk_mul_f32 {vr(r, 2)}, {vr(T + 2 * i, 2)}, {vr(r, 2)}')


SPIN_MAX = 300000


class GW:
    R = 5
    SLOT = 9216
    BBASE = 5 * 9216
    SCR = 5 * 9216 + 32768
    AF = 32
    BF = 68
    ACC0 = 100
    ACC1 = 172

    def __init__(self, a, segs):
        self.a = a
        self.segs = segs
        self.units = []
        for s in segs:
            n = 64 if s == 'sp' else 18
            self.units += [(s, i) for i in range(n)]
        self.stages = self.units[::2]
        self.nextA = 0
        self.nextB = 0
        self.limitA = len(self.units)

    def setup(self):
        a = self.a
        a.e(f's_load_dwordx2 s[4:5], s[0:1], {A_X}')
        a.e(f's_load_dwordx2 s[8:9], s[0:1], {A_WIN}')
        a.e(f's_load_dwordx4 s[16:19], s[0:1], {A_DBG}')
        a.e(f's_load_dwordx4 s[52:55], s[0:1], {A_WSP}')
        a.e('v_lshrrev_b32 v1, 6, v0')
        a.e('v_readfirstlane_b32 s20, v1')
        a.e('v_and_b32 v1, 63, v0')
        a.e('s_and_b32 s30, s2, 7')
        a.e('s_lshr_b32 s31, s2, 3')
        a.e('s_and_b32 s32, s30, 1')
        a.e('s_lshr_b32 s33, s30, 1')
        a.e('s_and_b32 s34, s31, 7')
        a.e('s_lshl_b32 s21, s32, 3')
        a.e('s_add_u32 s21, s21, s34')
        a.e('s_lshr_b32 s35, s31, 3')
        a.e('s_lshl_b32 s22, s33, 2')
        a.e('s_add_u32 s22, s22, s35')
        a.e('s_and_b32 s36, s22, 1')
        a.e('s_lshl_b32 s23, s21, 2')
        a.e('s_add_u32 s23, s23, s20')
        a.e('s_lshl_b32 s39, s35, 1')
        a.e('s_add_u32 s39, s39, s34')
        a.e('s_cmp_ge_u32 s39, 9')
        a.e('s_cselect_b32 s40, 9, 0')
        a.e('s_sub_u32 s39, s39, s40')
        a.e('s_mul_i32 s24, s39, %d' % (64 * 9216))
        if self.segs[0] == 'z2':
            a.e('s_add_u32 s24, s24, 4608')
        a.e('s_lshl_b32 s25, s39, 7')
        a.e('s_mul_i32 s26, s20, 2304')
        a.e('s_lshl_b32 s27, s20, 12')
        a.e(f's_add_u32 s27, s27, {self.BBASE}')
        a.e('s_mul_i32 s41, s22, 288')
        a.e('s_lshl_b32 s42, s36, 5')
        a.e('s_add_u32 s42, s42, s41')
        a.e('s_mul_i32 s43, s20, %d' % (8 * 9216))
        a.e('s_add_u32 s42, s42, s43')
        a.e('v_bfe_u32 v2, v1, 2, 2')
        a.e('v_mul_u32_u24 v2, 9216, v2')
        a.e('v_lshrrev_b32 v3, 4, v1')
        a.e('v_lshl_add_u32 v2, v3, 6, v2')
        a.e('s_and_b32 s44, s20, 1')
        a.e('s_lshl_b32 s44, s44, 1')
        a.e('v_and_b32 v3, 3, v1')
        a.e('v_xor_b32 v3, s44, v3')
        a.e('v_lshl_add_u32 v2, v3, 4, v2')
        a.e('v_add_u32 v2, s42, v2')
        a.e(f'v_add_u32 v3, {4 * 9216 - 1024}, v2')
        a.e('s_cmp_eq_u32 s36, 0')
        a.e('s_cselect_b32 s44, 256, 0')
        a.e('s_add_u32 s44, s44, s41')
        a.e('s_add_u32 s44, s44, s43')
        a.e('v_lshrrev_b32 v4, 3, v1')
        a.e('v_mul_u32_u24 v4, 9216, v4')
        a.e('v_and_b32 v23, 7, v1')
        a.e('v_lshl_add_u32 v4, v23, 2, v4')
        a.e('v_add_u32 v4, s44, v4')
        a.e('v_lshrrev_b32 v24, 5, v1')
        a.e('v_lshlrev_b32 v24, 3, v24')
        a.e('v_bfe_u32 v25, v1, 3, 2')
        a.e('v_add_u32 v24, v24, v25')
        a.e('s_lshl_b32 s44, s23, 5')
        a.e('v_add_u32 v24, s44, v24')
        a.e('v_lshrrev_b32 v25, 4, v1')
        a.e('v_xor_b32 v25, v25, v23')
        a.e('v_lshlrev_b32 v25, 4, v25')
        a.e('v_xor_b32 v26, 64, v25')
        a.e('v_mul_u32_u24 v27, 1152, v24')
        a.e('v_add_u32 v5, v27, v25')
        a.e('v_add_u32 v6, v27, v26')
        a.e(f'v_add_u32 v6, {16 * 1152 - 1024}, v6')
        a.e(f'v_add_u32 v7, {4 * 1152 - 2048}, v5')
        a.e(f'v_add_u32 v8, {4 * 1152 - 2048}, v6')
        a.e('s_waitcnt lgkmcnt(0)')
        srd(a, 4, 2359296)
        srd(a, 8, 576 * 9216)
        a.e('s_mov_b32 s12, s18')
        a.e('s_mov_b32 s13, s19')
        srd(a, 12, WS_SIZE)
        a.e('s_mov_b32 s56, s54')
        a.e('s_mov_b32 s57, s55')
        srd(a, 52, 2048 * 4096)

    def setup2(self):
        a = self.a
        if 'sp' in self.segs:
            a.e('v_lshlrev_b32 v27, 12, v24')
            a.e('v_add_u32 v12, v27, v25')
            a.e('v_add_u32 v13, v27, v26')
            a.e(f'v_add_u32 v13, {16 * 4096 - 1024}, v13')
            a.e(f'v_add_u32 v14, {4 * 4096 - 2048}, v12')
            a.e(f'v_add_u32 v15, {4 * 4096 - 2048}, v13')
            a.e('s_mul_i32 s44, s22, 9')
            a.e('s_add_u32 s45, s44, s36')
            a.e('s_lshl_b32 s45, s45, 10')
            a.e('s_lshl_b32 s46, s20, 11')
            a.e('s_add_u32 s45, s45, s46')
            a.e('v_lshlrev_b32 v19, 4, v1')
            a.e('v_add_u32 v9, s45, v19')
            a.e('s_cmp_eq_u32 s36, 0')
            a.e('s_cselect_b32 s45, 8, 0')
            a.e('s_add_u32 s45, s45, s44')
            a.e('s_lshl_b32 s45, s45, 10')
            a.e('s_lshl_b32 s46, s20, 8')
            a.e('s_add_u32 s45, s45, s46')
            a.e('v_lshlrev_b32 v10, 2, v1')
            a.e('v_add_u32 v10, s45, v10')
            a.e('v_lshrrev_b32 v20, 4, v1')
            a.e('v_mul_u32_u24 v20, 2304, v20')
            a.e('v_and_b32 v27, 15, v1')
            a.e('v_lshl_add_u32 v20, v27, 4, v20')
        a.e('v_lshrrev_b32 v27, 4, v1')
        a.e('v_mul_u32_u24 v28, 2304, v27')
        a.e('v_and_b32 v29, 3, v1')
        a.e('v_lshl_add_u32 v28, v29, 3, v28')
        a.e('v_bfe_u32 v29, v1, 2, 2')
        a.e('v_lshl_add_u32 v18, v29, 5, v28')
        a.e('v_lshl_add_u32 v28, v29, 6, v28')
        a.e('v_and_b32 v29, 1, v27')
        a.e('v_lshl_add_u32 v16, v29, 5, v28')
        a.e('v_xor_b32 v17, 32, v16')
        a.e('v_and_b32 v28, 15, v1')
        a.e('v_bfe_u32 v29, v1, 1, 3')
        a.e('v_xor_b32 v29, v29, v27')
        a.e('v_lshlrev_b32 v28, 7, v28')
        a.e('v_lshl_add_u32 v28, v29, 4, v28')
        a.e('v_add_u32 v21, s27, v28')
        a.e('v_xor_b32 v28, 64, v28')
        a.e('v_add_u32 v22, s27, v28')

    def issueA(self):
        a = self.a
        u = self.nextA
        if u >= self.limitA:
            return []
        self.nextA += 1
        seg, i = self.units[u]
        slot = (u % self.R) * self.SLOT
        tag = ('A', u)
        if seg == 'sp':
            def f0():
                if i == 0:
                    a.e(f's_mov_b32 s24, {Z2_OFF}')
                    a.e(f's_mov_b32 s28, {Z2_OFF - 2048}')
                a.e(f's_add_u32 m0, s26, {slot}')
                a.vm(f'buffer_load_dwordx4 v9, s[12:15], s24 offen lds', tag)

            def f1():
                a.vm(f'buffer_load_dwordx4 v9, s[12:15], s24 offen offset:1024 lds', tag)
                a.e('s_add_u32 s24, s24, 147456')

            def f2():
                a.vm(f'buffer_load_dword v10, s[12:15], s28 offen offset:2048 lds', tag)
                a.e('s_add_u32 s28, s28, 147456')
        else:
            def f0():
                if i == 0 and u > 0:
                    a.e('s_sub_u32 s24, s24, 4608')
                a.e(f's_add_u32 m0, s26, {slot}')
                a.vm('buffer_load_dwordx4 v2, s[8:11], s24 offen lds', tag)

            def f1():
                a.vm('buffer_load_dwordx4 v3, s[8:11], s24 offen offset:1024 lds', tag)
                a.e(f's_add_u32 m0, s26, {slot + 2048}')

            def f2():
                a.vm('buffer_load_dword v4, s[8:11], s24 offen lds', tag)
                a.e(f's_add_u32 s24, s24, {32 * 9216}')
                if i % 2 == 1:
                    a.e(f's_cmp_ge_u32 s24, {576 * 9216}')
                    a.e(f's_cselect_b32 s29, {576 * 9216}, 0')
                    a.e('s_sub_u32 s24, s24, s29')
        return [f0, f1, f2]

    def issueB(self):
        a = self.a
        s = self.nextB
        if s >= len(self.stages):
            return []
        self.nextB += 1
        seg, i = self.stages[s]
        tag = ('B', s)
        sp = seg == 'sp'
        vb = 12 if sp else 5
        sr = 's[52:55]' if sp else 's[4:7]'

        def mk(k):
            def f():
                if k == 0 and sp and i == 0:
                    a.e('s_mov_b32 s25, 0')
                a.e(f's_add_u32 m0, s27, {(s % 2) * 16384}')
                for j in (2 * k, 2 * k + 1):
                    a.vm(f'buffer_load_dwordx4 v{vb + j}, {sr}, s25 offen offset:{1024 * j} lds', tag)
                if k == 1:
                    a.e('s_add_u32 s25, s25, 128')
                    if not sp:
                        a.e('s_cmp_eq_u32 s25, 1152')
                        a.e('s_cselect_b32 s25, 0, s25')
            return f
        return [mk(0), mk(1)]

    def readA(self, u, F, part):
        a = self.a
        seg, i = self.units[u]
        slot = (u % self.R) * self.SLOT
        tag = ('AR', u, F)
        if seg == 'sp':
            if part == 0:
                if F < 8:
                    a.lg(f'ds_read_b128 {vr(self.AF + 4 * F, 4)}, v19 offset:{slot + (F // 2) * 2304 + (F % 2) * 1024}', tag)
                else:
                    a.lg(f'ds_read_b128 {vr(self.AF + 4 * F, 4)}, v20 offset:{slot + 2048}', tag)
        else:
            j = part
            if F < 8:
                a.lg(f'ds_read_b64_tr_b16 {vr(self.AF + 4 * F + 2 * j, 2)}, v{16 + F % 2} offset:{slot + j * 1024 + (F // 2) * 256}', tag)
            else:
                a.lg(f'ds_read_b64_tr_b16 {vr(self.AF + 4 * F + 2 * j, 2)}, v18 offset:{slot + 2048 + j * 128}', tag)

    def readB(self, s, jj):
        a = self.a
        if jj == 0:
            a.wait_vm(('B', s))
        for e in range(2):
            a.lg(f'ds_read_b128 {vr(self.BF + 16 * (s % 2) + 8 * jj + 4 * e, 4)}, v{21 + jj} offset:{(s % 2) * 16384 + e * 2048}', ('BR', s))

    def prologue_issue(self):
        for f in self.issueB():
            f()
        for f in self.issueA():
            f()
        for f in self.issueA():
            f()
        for f in self.issueB():
            f()
        for _ in range(self.R - 3):
            for f in self.issueA():
                f()

    def run_segment(self, u0, n, acc):
        a = self.a
        seg = self.units[u0][0]
        s0 = u0 // 2
        self.readB(s0, 0)
        self.readB(s0, 1)
        a.wait_vm(('A', u0))
        a.e('s_barrier')
        for F in range(9):
            self.readA(u0, F, 0)
            self.readA(u0, F, 1)
        for u in range(u0, u0 + n):
            last = u == u0 + n - 1
            s = u // 2
            if not last:
                a.wait_vm(('A', u + 1))
            a.e('s_barrier')
            fill = list(self.issueA()) if self.nextA <= u + self.R - 1 else []
            if u % 2 == 0 and self.nextB <= s + 2:
                fb = self.issueB()
                if fb:
                    f0 = fb[0]

                    def g0(f0=f0, s=s):
                        a.wait_lg(('BR', s))
                        f0()
                    fill += [g0, fb[1]]
            for F in range(9):
                a.wait_lg(('AR', u, F))
                if F == 0 and u % 2 == 0:
                    a.wait_lg(('BR', s))
                for e in range(2):
                    d = vr(acc + 8 * F + 4 * e, 4)
                    c = '0' if u == u0 else d
                    af = vr(self.AF + 4 * F, 4)
                    bf = vr(self.BF + 16 * (s % 2) + 8 * (u % 2) + 4 * e, 4)
                    if seg == 'z2':
                        a.e(f'v_mfma_f32_16x16x32_bf16 {d}, {bf}, {af}, {c}')
                    else:
                        a.e(f'v_mfma_f32_16x16x32_bf16 {d}, {af}, {bf}, {c}')
                    if e == 0:
                        if not last and F > 0:
                            self.readA(u + 1, F - 1, 1)
                        if fill and (seg == 'sp' or F % 2 == 1):
                            fill.pop(0)()
                    else:
                        if not last:
                            self.readA(u + 1, F, 0)
                            if F == 8:
                                self.readA(u + 1, F, 1)
                if not last and u % 2 == 1 and F in (4, 6):
                    self.readB(s + 1, (F - 4) // 2)
            for f in fill:
                f()

    def gelu_consts(self):
        a = self.a
        a.e(f's_mov_b32 s60, {hx(GELU_C1)}')
        a.e(f's_mov_b32 s61, {hx(GELU_C1)}')
        a.e(f'v_mov_b32 v30, {hx(GELU_C0)}')
        a.e(f'v_mov_b32 v31, {hx(GELU_C0)}')

    def z1_gelu(self):
        a = self.a
        T = self.AF
        self.gelu_consts()
        for F in range(9):
            base = self.ACC1 + 8 * F
            gelu_group(a, [base + 2 * i for i in range(4)], T + 8 * (F % 2), 60, 30)

    def z2_gelu_publish(self):
        a = self.a
        T = self.AF
        S = self.BF
        self.gelu_consts()
        a.e('v_mov_b32 v23, 0')
        a.vm('global_load_dword v24, v23, s[16:17] sc0 sc1', 'nonce')
        for F in range(9):
            base = self.ACC0 + 8 * F
            gelu_group(a, [base + 2 * i for i in range(4)], T + 8 * (F % 2), 60, 30)
            for i in range(4):
                y = vr(base + 2 * i, 2)
                if F == 0:
                    a.e(f'v_pk_add_f32 {vr(S + 2 * i, 2)}, {y}, 0 op_sel_hi:[1,0]')
                    a.e(f'v_pk_mul_f32 {vr(S + 8 + 2 * i, 2)}, {y}, {y}')
                else:
                    a.e(f'v_pk_add_f32 {vr(S + 2 * i, 2)}, {vr(S + 2 * i, 2)}, {y}')
                    a.e(f'v_pk_fma_f32 {vr(S + 8 + 2 * i, 2)}, {y}, {y}, {vr(S + 8 + 2 * i, 2)}')
        for b in (S, S + 8):
            for r in range(4):
                a.e(f'v_add_f32_dpp v{b + r}, v{b + r}, v{b + r} row_ror:8 row_mask:0xf bank_mask:0x3')
            for r in range(4):
                a.e(f'v_add_f32_dpp v{b + r}, v{b + r + 4}, v{b + r + 4} row_ror:8 row_mask:0xf bank_mask:0xc')
        for b in (S, S + 8):
            for r in range(2):
                a.e(f'v_add_f32_dpp v{b + r}, v{b + r}, v{b + r} row_shl:4 row_mask:0xf bank_mask:0x5')
            for r in range(2):
                a.e(f'v_add_f32_dpp v{b + r}, v{b + r + 2}, v{b + r + 2} row_shr:4 row_mask:0xf bank_mask:0xa')
        for qp in ('[1,0,3,2]', '[2,3,0,1]'):
            for r in (S, S + 1, S + 8, S + 9):
                a.e(f'v_add_f32_dpp v{r}, v{r}, v{r} quad_perm:{qp} row_mask:0xf bank_mask:0xf')
        a.e('v_and_b32 v25, 1, v1')
        a.e('v_cmp_eq_u32 vcc, 1, v25')
        G0 = S + 16
        a.e(f'v_cndmask_b32 v{G0}, v{S}, v{S + 1}, vcc')
        a.e(f'v_cndmask_b32 v{G0 + 1}, v{S + 8}, v{S + 9}, vcc')
        a.e('v_lshrrev_b32 v26, 2, v1')
        a.e('v_lshl_add_u32 v26, v26, 1, v25')
        a.e('v_lshlrev_b32 v26, 4, v26')
        a.e('s_lshl_b32 s48, s23, 13')
        a.e(f's_add_u32 s48, s48, {STATS_OFF}')
        a.e('s_lshl_b32 s49, s22, 9')
        a.e('s_add_u32 s49, s49, s48')
        self.get_nonce()
        a.e(f'v_mov_b32 v{G0 + 2}, s62')
        a.e(f'v_mov_b32 v{G0 + 3}, s62')
        a.vm(f'buffer_store_dwordx4 {vr(G0, 4)}, v26, s[12:15], s49 offen sc0 sc1', 'st')

    def get_nonce(self):
        a = self.a
        lp = a.newlabel('NONCE')
        lg = a.newlabel('NONCE_OK')
        a.wait_vm('nonce')
        a.e(f's_mov_b32 s51, {SPIN_MAX}')
        a.label(lp)
        a.e('v_readfirstlane_b32 s62, v24')
        a.e('s_cmp_lg_u32 s62, 0')
        a.e(f's_cbranch_scc1 {lg}')
        a.e('s_sleep 2')
        a.e('global_load_dword v24, v23, s[16:17] sc0 sc1')
        a.e('s_waitcnt vmcnt(0)')
        a.e('s_sub_u32 s51, s51, 1')
        a.e('s_cmp_lg_u32 s51, 0')
        a.e(f's_cbranch_scc1 {lp}')
        a.label(lg)

    def z2_gather_norm_store(self, flags=''):
        a = self.a
        G = self.AF
        lp = a.newlabel('STAT')
        lg = a.newlabel('STAT_OK')
        a.e('v_lshlrev_b32 v26, 4, v1')
        a.e('s_add_u32 s49, s48, 4096')
        a.e(f's_mov_b32 s51, {SPIN_MAX}')
        a.label(lp)
        for i in range(8):
            a.e(f'buffer_load_dwordx4 {vr(G + 4 * i, 4)}, v26, s[12:15], {"s48" if i < 4 else "s49"} offen offset:{1024 * (i % 4)} sc0 sc1')
        a.wait_vm0()
        a.e(f'v_xor_b32 v27, s62, v{G + 2}')
        for i in range(1, 8):
            a.e(f'v_xor_b32 v28, s62, v{G + 4 * i + 2}')
            a.e('v_or_b32 v27, v27, v28')
        a.e('v_cmp_ne_u32 vcc, 0, v27')
        a.e(f's_cbranch_vccz {lg}')
        a.e('s_sleep 1')
        a.e('s_sub_u32 s51, s51, 1')
        a.e('s_cmp_lg_u32 s51, 0')
        a.e(f's_cbranch_scc1 {lp}')
        a.label(lg)
        for i in (0, 2, 4, 6):
            a.e(f'v_pk_add_f32 {vr(G + 4 * i, 2)}, {vr(G + 4 * i, 2)}, {vr(G + 4 * i + 4, 2)}')
        a.e(f'v_pk_add_f32 {vr(G, 2)}, {vr(G, 2)}, {vr(G + 8, 2)}')
        a.e(f'v_pk_add_f32 {vr(G + 16, 2)}, {vr(G + 16, 2)}, {vr(G + 24, 2)}')
        a.e(f'v_pk_add_f32 {vr(G, 2)}, {vr(G, 2)}, {vr(G + 16, 2)}')
        a.e(f'v_mov_b32 v{G + 2}, v{G}')
        a.e(f'v_mov_b32 v{G + 3}, v{G + 1}')
        a.e(f'v_permlane32_swap_b32 v{G}, v{G + 2}')
        a.e(f'v_permlane32_swap_b32 v{G + 1}, v{G + 3}')
        a.e(f'v_pk_add_f32 {vr(G, 2)}, {vr(G, 2)}, {vr(G + 2, 2)}')
        a.e(f'v_mul_f32 v{G}, {hx(1.0 / 2304)}, v{G}')
        a.e(f'v_mul_f32 v{G + 1}, {hx(1.0 / 2304)}, v{G + 1}')
        a.e(f'v_fma_f32 v{G + 1}, -v{G}, v{G}, v{G + 1}')
        a.e(f'v_max_f32 v{G + 1}, 0, v{G + 1}')
        a.e(f'v_add_f32 v{G + 1}, {hx(1e-5)}, v{G + 1}')
        a.e(f'v_rsq_f32 v{G + 1}, v{G + 1}')
        a.e(f'v_mul_f32 v{G}, v{G}, v{G + 1}')
        a.e(f'v_sub_f32 v{G}, 0, v{G}')
        a.e('s_lshl_b32 s44, s20, 8')
        a.e(f's_add_u32 s44, s44, {self.SCR}')
        a.e('v_and_b32 v27, 31, v1')
        a.e('v_lshlrev_b32 v27, 2, v27')
        a.e('v_add_u32 v27, s44, v27')
        a.lg(f'ds_write_b32 v27, v{G + 1}', 'w')
        a.lg(f'ds_write_b32 v27, v{G} offset:128', 'w')
        a.e('v_lshrrev_b32 v28, 4, v1')
        a.e('v_lshlrev_b32 v28, 5, v28')
        a.e('v_add_u32 v28, s44, v28')
        RS = self.BF
        a.lg(f'ds_read_b128 {vr(RS, 4)}, v28', 'r')
        a.lg(f'ds_read_b128 {vr(RS + 4, 4)}, v28 offset:16', 'r')
        a.lg(f'ds_read_b128 {vr(RS + 8, 4)}, v28 offset:128', 'r')
        a.lg(f'ds_read_b128 {vr(RS + 12, 4)}, v28 offset:144', 'r')
        a.e('s_mul_i32 s44, s23, 144')
        a.e('s_mul_i32 s45, s22, 9')
        a.e('s_add_u32 s44, s44, s45')
        a.e('s_add_u32 s45, s44, s36')
        a.e('s_lshl_b32 s45, s45, 10')
        a.e(f's_add_u32 s45, s45, {Z2_OFF}')
        a.e('s_add_u32 s47, s45, 4096')
        a.e('s_cmp_eq_u32 s36, 0')
        a.e('s_cselect_b32 s46, 8, 0')
        a.e('s_add_u32 s46, s46, s44')
        a.e('s_lshl_b32 s46, s46, 10')
        a.e(f's_add_u32 s46, s46, {Z2_OFF}')
        a.wait_lg0()
        for F in range(9):
            base = self.ACC0 + 8 * F
            pk = G + 4 * F
            for i in range(4):
                a.e(f'v_pk_fma_f32 {vr(base + 2 * i, 2)}, {vr(base + 2 * i, 2)}, {vr(RS + 2 * i, 2)}, {vr(RS + 8 + 2 * i, 2)}')
            for i in range(4):
                a.e(f'v_cvt_pk_bf16_f32 v{pk + i}, v{base + 2 * i}, v{base + 2 * i + 1}')
            so = 's46' if F == 8 else ('s45' if F < 4 else 's47')
            a.vm(f'buffer_store_dwordx4 {vr(pk, 4)}, v26, s[12:15], {so} offen offset:{1024 * (F % 4)} {flags}', 'st')

    def sp_pre(self):
        a = self.a
        a.e('v_bfe_u32 v27, v1, 2, 2')
        a.e('v_lshlrev_b32 v27, 3, v27')
        a.e('v_and_b32 v28, 3, v1')
        a.e('v_add_u32 v27, v27, v28')
        a.e('s_lshl_b32 s44, s23, 5')
        a.e('v_add_u32 v27, s44, v27')
        a.e('v_lshlrev_b32 v28, 1, v27')
        a.e('v_lshlrev_b32 v27, 2, v27')
        a.vm('global_load_ushort v244, v28, s[56:57]', 'pre')
        a.vm('global_load_ushort v245, v28, s[56:57] offset:8', 'pre')
        a.e(f's_mov_b32 s44, {GATE_OFF}')
        a.vm('buffer_load_dword v246, v27, s[12:15], s44 offen', 'pre')
        a.vm('buffer_load_dword v247, v27, s[12:15], s44 offen offset:16', 'pre')

    def sp_epilogue(self, flags=''):
        a = self.a
        a.wait_vm('pre')
        for e in range(2):
            a.e(f'v_sub_f32 v{248 + 2 * e}, 1.0, v{246 + e}')
            a.e(f'v_lshlrev_b32 v{244 + e}, 16, v{244 + e}')
            a.e(f'v_mul_f32 v{252 + 2 * e}, v{244 + e}, v{248 + 2 * e}')
        a.e('v_lshlrev_b32 v26, 4, v1')
        a.e('s_mul_i32 s44, s23, 180')
        a.e('s_mul_i32 s45, s22, 9')
        a.e('s_add_u32 s46, s45, s36')
        a.e('s_lshr_b32 s46, s46, 1')
        a.e('s_add_u32 s46, s46, s44')
        a.e('s_lshl_b32 s46, s46, 10')
        a.e(f's_add_u32 s46, s46, {UF_OFF + 18 * 1024}')
        a.e(f's_add_u32 s47, s46, {90 * 1024}')
        a.e('s_cmp_eq_u32 s36, 0')
        a.e('s_cselect_b32 s48, 8, 0')
        a.e('s_add_u32 s48, s48, s45')
        a.e('s_lshr_b32 s48, s48, 1')
        a.e('s_add_u32 s48, s48, s44')
        a.e('s_lshl_b32 s48, s48, 10')
        a.e(f's_add_u32 s48, s48, {UF_OFF + 18 * 1024}')
        a.e('s_lshl_b32 s49, s36, 3')
        a.e('s_add_u32 s48, s48, s49')
        a.e(f's_add_u32 s49, s48, {90 * 1024}')
        idx = 0
        for m in range(5):
            for e in range(2):
                pk = self.AF + 4 * idx
                idx += 1
                Fs = (2 * m, 2 * m + 1) if m < 4 else (8,)
                prs = [(self.ACC0 + 8 * F + 4 * e + 2 * i, self.ACC1 + 8 * F + 4 * e + 2 * i) for F in Fs for i in range(2)]
                for g, z in prs:
                    a.e(f'v_pk_fma_f32 {vr(g, 2)}, {vr(g, 2)}, {vr(248 + 2 * e, 2)}, {vr(252 + 2 * e, 2)} op_sel_hi:[1,0,0]')
                for g, z in prs:
                    a.e(f'v_pk_mul_f32 {vr(g, 2)}, {vr(g, 2)}, {vr(z, 2)}')
                for i, (g, z) in enumerate(prs):
                    a.e(f'v_cvt_pk_bf16_f32 v{pk + i}, v{g}, v{g + 1}')
                if m < 4:
                    a.vm(f'buffer_store_dwordx4 {vr(pk, 4)}, v26, s[12:15], s{46 + e} offen offset:{1024 * m} {flags}', 'st')
                else:
                    a.vm(f'buffer_store_dwordx2 {vr(pk, 2)}, v26, s[12:15], s{48 + e} offen {flags}', 'st')


def write_nonce(a):
    l = a.newlabel('NOW')
    a.e('s_or_b32 s44, s2, s20')
    a.e('s_cmp_lg_u32 s44, 0')
    a.e(f's_cbranch_scc1 {l}')
    a.e('s_memrealtime s[44:45]')
    a.e('s_waitcnt lgkmcnt(0)')
    a.e('s_or_b32 s44, s44, 1')
    a.e('v_mov_b32 v28, 0')
    a.e('v_mov_b32 v29, s44')
    a.e('global_store_dword v28, v29, s[16:17] sc0 sc1')
    a.label(l)


def load_x_frags(a, XF, stt, vtmp):
    a.e(f's_lshr_b32 s44, s{stt}, 1')
    a.e('s_lshl_b32 s44, s44, 5')
    a.e(f's_and_b32 s45, s{stt}, 1')
    a.e('s_lshl_b32 s45, s45, 2')
    a.e('s_add_u32 s44, s44, s45')
    a.e(f'v_bfe_u32 v{vtmp}, v1, 2, 2')
    a.e(f'v_lshlrev_b32 v{vtmp}, 3, v{vtmp}')
    a.e(f'v_and_b32 v{vtmp + 1}, 3, v1')
    a.e(f'v_add3_u32 v{vtmp + 1}, v{vtmp}, v{vtmp + 1}, s44')
    a.e(f'v_mul_u32_u24 v{vtmp}, 1152, v{vtmp + 1}')
    a.e(f'v_and_b32 v{XF}, 48, v1')
    a.e(f'v_add_u32 v{vtmp}, v{vtmp}, v{XF}')
    for ks in range(18):
        a.vm(f'buffer_load_dwordx4 {vr(XF + 4 * ks, 4)}, v{vtmp}, s[4:7], 0 offen offset:{64 * ks}', ('X', ks))


def aux_kv(a, which_s, XF, flags=''):
    a.e('v_lshrrev_b32 v2, 2, v1')
    a.e('v_mul_u32_u24 v2, 36, v2')
    a.e('v_and_b32 v3, 3, v1')
    a.e('v_min_u32 v3, 2, v3')
    a.e('v_lshl_add_u32 v2, v3, 4, v2')
    a.e('s_mul_i32 s44, s20, %d' % (9 * 576))
    a.e('s_mul_i32 s45, s20, %d' % (9 * 1024))
    for i in range(9):
        a.e(f's_add_u32 m0, s45, {1024 * i}')
        a.vm('buffer_load_dwordx4 v2, s[40:43], s44 offen lds', 'W')
        a.e('s_add_u32 s44, s44, 576')
    a.e('v_lshrrev_b32 v3, 4, v1')
    a.e('v_lshlrev_b32 v3, 9, v3')
    a.e('v_bfe_u32 v4, v1, 2, 2')
    a.e('v_lshl_add_u32 v3, v4, 6, v3')
    a.e('v_add_u32 v4, 32, v3')
    a.e('v_and_b32 v5, 3, v1')
    a.e('v_lshl_add_u32 v3, v5, 3, v3')
    a.wait_vm0()
    a.e('s_barrier')
    WF = 8
    D = 24

    def rd(ks):
        b = WF + 8 * (ks % 2)
        for j in range(2):
            a.lg(f'ds_read_b64_tr_b16 {vr(b + 2 * j, 2)}, v3 offset:{2048 * ks + 256 * j}', ('w', ks))
            a.lg(f'ds_read_b64_tr_b16 {vr(b + 4 + 2 * j, 2)}, v4 offset:{2048 * ks + 256 * j}', ('w', ks))
    rd(0)
    for ks in range(18):
        if ks + 1 < 18:
            rd(ks + 1)
        a.wait_lg(('w', ks))
        b = WF + 8 * (ks % 2)
        a.e(f'v_mfma_f32_16x16x32_bf16 {vr(D, 4)}, {vr(b, 4)}, {vr(XF + 4 * ks, 4)}, {"0" if ks == 0 else vr(D, 4)}')
        a.e(f'v_mfma_f32_16x16x32_bf16 {vr(D + 4, 4)}, {vr(b + 4, 4)}, {vr(XF + 4 * ks, 4)}, {"0" if ks == 0 else vr(D + 4, 4)}')
    a.e('s_lshr_b32 s44, s23, 1')
    a.e(f's_mul_i32 s44, s44, {KV_TILE}')
    a.e(f's_add_u32 s44, s44, {KV_OFF}')
    a.e('s_and_b32 s45, s23, 1')
    a.e('s_lshl_b32 s45, s45, 4')
    a.e('v_and_b32 v2, 15, v1')
    a.e('v_add_u32 v2, s45, v2')
    a.e('v_lshrrev_b32 v3, 4, v1')
    a.e(f'v_cvt_pk_bf16_f32 v8, v{D}, v{D + 1}')
    a.e(f'v_cvt_pk_bf16_f32 v9, v{D + 2}, v{D + 3}')
    a.e(f'v_cvt_pk_bf16_f32 v10, v{D + 4}, v{D + 5}')
    lv = a.newlabel('KV_V')
    le = a.newlabel('KV_E')
    a.e(f's_cmp_lg_u32 s{which_s}, 0')
    a.e(f's_cbranch_scc1 {lv}')
    a.e('v_lshrrev_b32 v4, 1, v3')
    a.e('v_lshl_add_u32 v4, v4, 5, v2')
    a.e('v_lshlrev_b32 v4, 4, v4')
    a.e('v_and_b32 v5, 1, v3')
    a.e('v_lshl_add_u32 v4, v5, 3, v4')
    a.e(f'buffer_store_dwordx2 v[8:9], v4, s[12:15], s44 offen {flags}')
    a.e('v_lshlrev_b32 v5, 2, v2')
    a.e(f'buffer_store_dword v10, v5, s[12:15], s44 offen offset:1024 {flags}')
    a.e(f's_branch {le}')
    a.label(lv)
    a.e('v_lshrrev_b32 v4, 2, v2')
    a.e('v_mul_u32_u24 v4, 168, v4')
    a.e('v_and_b32 v5, 3, v2')
    a.e('v_lshl_add_u32 v6, v5, 5, v4')
    a.e('v_lshl_add_u32 v6, v3, 3, v6')
    a.e(f'buffer_store_dwordx2 v[8:9], v6, s[12:15], s44 offen offset:1152 {flags}')
    a.e('v_lshl_add_u32 v6, v5, 3, v4')
    a.e('v_add_u32 v7, 32, v4')
    a.e('v_mov_b32 v11, 0x3f80')
    a.e('v_cmp_eq_u32 vcc, 0, v3')
    a.e('v_cndmask_b32 v6, v7, v6, vcc')
    a.e('v_cndmask_b32 v10, 0, v10, vcc')
    a.e('v_cndmask_b32 v11, 0, v11, vcc')
    a.e(f'buffer_store_dwordx2 v[10:11], v6, s[12:15], s44 offen offset:{1152 + 128} {flags}')
    a.label(le)


def aux_gate(a, XF, GF, vt, flags=''):
    a.e('v_and_b32 v2, 48, v1')
    for ks in range(18):
        a.vm(f'global_load_dwordx4 {vr(GF + 4 * ks, 4)}, v2, s[40:41] offset:{64 * ks}', 'g')
    a.wait_vm0()
    for ks in range(18):
        a.e(f'v_mfma_f32_16x16x32_bf16 v[8:11], {vr(GF + 4 * ks, 4)}, {vr(XF + 4 * ks, 4)}, {"0" if ks == 0 else "v[8:11]"}')
    a.e(f'v_mul_f32 v8, {hx(-1.4426950408889634)}, v8')
    a.e('v_exp_f32 v8, v8')
    a.e('v_add_f32 v8, 1.0, v8')
    a.e('v_rcp_f32 v8, v8')
    a.e(f'v_lshlrev_b32 v3, 2, v{vt}')
    a.e(f's_mov_b32 s44, {GATE_OFF}')
    a.e(f'buffer_store_dword v8, v3, s[12:15], s44 offen {flags}')


def aux_retile(a, sks, flags=''):
    a.e(f's_cmp_lt_u32 s{sks}, 18')
    a.e('s_cselect_b32 s64, s40, s42')
    a.e('s_cselect_b32 s65, s41, s43')
    a.e(f's_mov_b32 s66, {2304 * 1152}')
    a.e(f's_cselect_b32 s66, {576 * 1152}, s66')
    a.e('s_mov_b32 s67, 0x00020000')
    a.e(f's_sub_u32 s44, s{sks}, 18')
    a.e('s_lshl_b32 s44, s44, 5')
    a.e('s_lshl_b32 s45, s20, 2')
    a.e('s_add_u32 s44, s44, s45')
    a.e('s_mov_b32 s46, 16')
    a.e('s_mov_b32 s47, 2')
    a.e(f's_sub_u32 s48, s{sks}, 16')
    a.e('s_lshl_b32 s48, s48, 4')
    a.e('s_add_u32 s48, s48, s45')
    a.e('s_mul_i32 s48, s48, 18')
    a.e('s_add_u32 s48, s48, 16')
    a.e(f's_cmp_lt_u32 s{sks}, 18')
    a.e('s_cselect_b32 s44, s48, s44')
    a.e('s_cselect_b32 s46, 36, s46')
    a.e('s_cselect_b32 s47, 18, s47')
    a.e(f's_lshl_b32 s48, s{sks}, 1')
    a.e('s_and_b32 s49, s20, 1')
    a.e('s_add_u32 s48, s48, s49')
    a.e('s_mul_i32 s48, s48, 18')
    a.e('s_lshr_b32 s49, s20, 1')
    a.e('s_lshl_b32 s49, s49, 2')
    a.e('s_add_u32 s48, s48, s49')
    a.e(f's_cmp_lt_u32 s{sks}, 16')
    a.e('s_cselect_b32 s44, s48, s44')
    a.e('s_cselect_b32 s46, 8, s46')
    a.e('s_cselect_b32 s47, 2, s47')
    a.e('s_mul_i32 s44, s44, 1152')
    a.e('s_mul_i32 s46, s46, 1152')
    a.e('s_mul_i32 s47, s47, 1152')
    a.e('v_lshlrev_b32 v2, 4, v1')
    a.e('s_mul_i32 s45, s20, %d' % (8 * 1152))
    for j in range(8):
        a.e(f's_add_u32 s{68 + j}, s44, {1152 * (j & 1)}')
        if j & 2:
            a.e(f's_add_u32 s{68 + j}, s{68 + j}, s47')
        if j & 4:
            a.e(f's_add_u32 s{68 + j}, s{68 + j}, s46')
        a.e(f's_add_u32 m0, s45, {1152 * j}')
        a.vm(f'buffer_load_dwordx4 v2, s[64:67], s{68 + j} offen lds', 'W')
    a.e('s_mov_b64 exec, 0xff')
    for j in range(8):
        a.e(f's_add_u32 m0, s45, {1152 * j}')
        a.vm(f'buffer_load_dwordx4 v2, s[64:67], s{68 + j} offen offset:1024 lds', 'W')
    a.e('s_mov_b64 exec, -1')
    a.e('v_lshrrev_b32 v3, 4, v1')
    a.e('v_lshlrev_b32 v3, 3, v3')
    a.e('v_bfe_u32 v4, v1, 2, 2')
    a.e('v_add_u32 v3, v3, v4')
    a.e('v_mul_u32_u24 v3, 1152, v3')
    a.e('s_mul_i32 s45, s20, 288')
    a.e('v_add_u32 v3, s45, v3')
    a.e('v_and_b32 v5, 3, v1')
    a.e('v_lshl_add_u32 v4, v5, 3, v3')
    a.e('v_lshl_add_u32 v3, v5, 4, v3')
    a.e('v_lshrrev_b32 v6, 4, v1')
    a.e('v_lshlrev_b32 v6, 3, v6')
    a.e('v_and_b32 v7, 7, v1')
    a.e('v_add_u32 v6, v6, v7')
    a.e('v_lshlrev_b32 v6, 4, v6')
    a.e('v_add_u32 v6, 4096, v6')
    a.wait_vm0()
    a.e('s_barrier')
    for n2 in range(2):
        for nt in range(5):
            b = 8 + 4 * (5 * n2 + nt)
            for j in range(2):
                if nt < 4:
                    off = 144 * n2 + 64 * (nt // 2) + 8 * (nt % 2) + 4608 * j
                    a.lg(f'ds_read_b64_tr_b16 {vr(b + 2 * j, 2)}, v3 offset:{off}', 'r')
                else:
                    a.lg(f'ds_read_b64_tr_b16 {vr(b + 2 * j, 2)}, v4 offset:{144 * n2 + 128 + 4608 * j}', 'r')
    a.e('s_mul_i32 s44, s20, 180')
    a.e(f's_add_u32 s44, s44, s{sks}')
    a.e('s_mul_i32 s44, s44, 4608')
    a.e(f's_add_u32 s44, s44, {W3_OFF}')
    a.e(f's_add_u32 s45, s44, {90 * 4608}')
    a.wait_lg0()
    for n2 in range(2):
        for nt in range(4):
            a.e(f'buffer_store_dwordx4 {vr(8 + 4 * (5 * n2 + nt), 4)}, v2, s[12:15], s{44 + n2} offen offset:{1024 * nt} {flags}')
    a.e('s_mov_b32 exec_lo, 0x00ff00ff')
    a.e('s_mov_b32 exec_hi, 0x00ff00ff')
    for n2 in range(2):
        a.e(f'buffer_store_dwordx4 {vr(8 + 4 * (5 * n2 + 4), 4)}, v6, s[12:15], s{44 + n2} offen {flags}')
    a.e('s_mov_b64 exec, -1')


def k1_aux(a, end):
    a.e(f's_load_dwordx2 s[4:5], s[0:1], {A_X}')
    a.e(f's_load_dwordx2 s[12:13], s[0:1], {A_WS}')
    a.e(f's_load_dwordx4 s[32:35], s[0:1], {A_WK}')
    a.e(f's_load_dwordx2 s[36:37], s[0:1], {A_WO}')
    a.e(f's_load_dwordx4 s[28:31], s[0:1], {A_WOUT}')
    a.e('v_lshrrev_b32 v1, 6, v0')
    a.e('v_readfirstlane_b32 s20, v1')
    a.e('v_and_b32 v1, 63, v0')
    a.e('s_sub_u32 s21, s2, 256')
    a.e('s_waitcnt lgkmcnt(0)')
    srd(a, 4, 2359296)
    srd(a, 12, WS_SIZE)
    lr = a.newlabel('AUX_RT')
    lg = a.newlabel('AUX_G')
    a.e('s_cmp_ge_u32 s21, 96')
    a.e(f's_cbranch_scc1 {lr}')
    a.e('s_lshr_b32 s22, s21, 5')
    a.e('s_and_b32 s23, s21, 31')
    a.e('s_lshl_b32 s23, s23, 2')
    a.e('s_add_u32 s23, s23, s20')
    load_x_frags(a, 40, 23, 32)
    a.e('s_cmp_eq_u32 s22, 2')
    a.e(f's_cbranch_scc1 {lg}')
    a.e('s_cmp_eq_u32 s22, 0')
    a.e('s_cselect_b32 s40, s32, s34')
    a.e('s_cselect_b32 s41, s33, s35')
    srd(a, 40, 576 * 36)
    aux_kv(a, 22, 40)
    a.e(f's_branch {end}')
    a.label(lg)
    a.e('s_mov_b32 s40, s30')
    a.e('s_mov_b32 s41, s31')
    aux_gate(a, 40, 112, 33)
    a.e(f's_branch {end}')
    a.label(lr)
    a.vmq = []
    a.e('s_sub_u32 s22, s21, 96')
    a.e('s_mov_b32 s40, s36')
    a.e('s_mov_b32 s41, s37')
    a.e('s_mov_b32 s42, s28')
    a.e('s_mov_b32 s43, s29')
    aux_retile(a, 22)
    a.e(f's_branch {end}')


QSCALE = 18 ** -0.5 * 1.4426950408889634
KVBUF = 40960
M_OFFSET = 64.0


class ATT:
    SB = 16
    OB = 48
    QF = 80
    KF = 96
    VF = 112
    PF = 128
    XF = 136
    WF = 208

    def __init__(self, a):
        self.a = a

    def setup(self, sid):
        a = self.a
        a.e(f's_load_dwordx4 s[4:7], s[0:1], {A_X}')
        a.e(f's_load_dwordx4 s[16:19], s[0:1], {A_DBG}')
        a.e('v_lshrrev_b32 v1, 6, v0')
        a.e('v_readfirstlane_b32 s20, v1')
        a.e('v_and_b32 v1, 63, v0')
        a.e(f's_and_b32 s21, s{sid}, 7')
        a.e('s_lshl_b32 s21, s21, 2')
        a.e(f's_lshr_b32 s22, s{sid}, 3')
        a.e('s_and_b32 s23, s22, 3')
        a.e('s_add_u32 s21, s21, s23')
        a.e('s_lshr_b32 s22, s22, 2')
        a.e('s_lshl_b32 s23, s21, 2')
        a.e('s_add_u32 s23, s23, s20')
        a.e('s_waitcnt lgkmcnt(0)')
        a.e('s_mov_b32 s8, s6')
        a.e('s_mov_b32 s9, s7')
        srd(a, 8, 576 * 1152)
        srd(a, 4, 2359296)
        a.e('s_mov_b32 s12, s18')
        a.e('s_mov_b32 s13, s19')
        srd(a, 12, WS_SIZE)

    def wq_addr(self):
        a = self.a
        a.e('s_mul_i32 s44, s22, 144')
        for i in range(3):
            a.e(f'v_add_u32 v10, {64 * i}, v1')
            a.e('v_mul_u32_u24 v11, 43691, v10')
            a.e('v_lshrrev_b32 v11, 19, v11')
            a.e('v_mul_u32_u24 v12, 12, v11')
            a.e('v_sub_u32 v10, v10, v12')
            a.e('v_lshrrev_b32 v12, 2, v10')
            a.e('v_and_b32 v13, 1, v10')
            a.e('v_lshl_add_u32 v13, v12, 1, v13')
            a.e('v_mul_u32_u24 v13, 36, v13')
            a.e('v_bfe_u32 v14, v10, 1, 1')
            a.e('v_lshl_add_u32 v13, v14, 4, v13')
            a.e('v_and_b32 v14, 3, v10')
            a.e('v_mul_u32_u24 v14, 36, v14')
            a.e('v_add_u32 v14, 32, v14')
            a.e('v_cmp_eq_u32 vcc, 2, v12')
            a.e('v_cndmask_b32 v13, v13, v14, vcc')
            a.e('v_mul_u32_u24 v11, 1152, v11')
            a.e(f'v_add3_u32 v{5 + i}, v11, v13, s44')
            if i:
                a.e(f'v_subrev_u32 v{5 + i}, {1024 * i}, v{5 + i}')
        a.e('v_lshrrev_b32 v10, 4, v1')
        a.e('v_lshlrev_b32 v10, 3, v10')
        a.e('v_bfe_u32 v11, v1, 2, 2')
        a.e('v_add_u32 v10, v10, v11')
        a.e('v_mul_u32_u24 v10, 192, v10')
        a.e('v_and_b32 v11, 3, v1')
        a.e('v_lshl_add_u32 v8, v11, 4, v10')
        a.e(f'v_add_u32 v9, {KVBUF}, v8')

    def issue_wq(self, c):
        a = self.a
        a.e('s_mul_i32 s44, s20, %d' % (48 * 1152))
        a.e(f's_add_u32 s44, s44, {c * 192 * 1152}')
        a.e('s_mul_i32 s45, s20, 9216')
        for g in range(3):
            a.e(f's_add_u32 m0, s45, {(c % 2) * KVBUF + 3072 * g}')
            for i in range(3):
                a.vm(f'buffer_load_dwordx4 v{5 + i}, s[8:11], s44 offen offset:{1024 * i} lds', ('wq', c))
            a.e(f's_add_u32 s44, s44, {16 * 1152}')

    def issue_kv(self, buf_s=None, buf=None, flags=''):
        a = self.a
        for g in range(3):
            if buf_s is not None:
                a.e(f's_add_u32 m0, s{buf_s}, {4096 * g}')
            else:
                a.e(f's_add_u32 m0, s31, {buf * KVBUF + 4096 * g}')
            for i in range(4 if g < 2 else 2):
                a.vm(f'buffer_load_dwordx4 v15, s[12:15], s30 offen offset:{1024 * i} {flags} lds', 'kv')
            a.e('s_add_u32 s30, s30, 4096')
        a.e(f's_add_u32 s30, s30, {16 * KV_TILE - 3 * 4096}')

    def q_phase(self, kv_ready=None):
        a = self.a
        D = self.SB
        self.wq_addr()
        self.issue_wq(0)
        load_x_frags(a, self.XF, 23, 2)
        self.issue_wq(1)
        a.e('s_mul_i32 s31, s20, 10240')
        a.e('v_lshlrev_b32 v15, 4, v1')
        a.e('v_add_u32 v15, s31, v15')
        a.e(f's_mov_b32 s30, {KV_OFF}')

        def rd(ks):
            c, k = ks // 6, ks % 6
            b = self.WF + 20 * (ks % 2)
            va = 8 + c % 2
            for t in range(5):
                for j in range(2):
                    off = 6144 * k + 768 * j + (64 * (t // 2) + 8 * (t % 2) if t < 4 else 128)
                    a.lg(f'ds_read_b64_tr_b16 {vr(b + 4 * t + 2 * j, 2)}, v{va} offset:{off}', ('w', ks))
        for c in range(3):
            a.wait_vm(('wq', c))
            a.e('s_barrier')
            if c == 1:
                self.issue_wq(2)
            if c == 2:
                if kv_ready:
                    kv_ready()
                self.issue_kv(buf=1)
            rd(6 * c)
            for k in range(6):
                ks = 6 * c + k
                if k < 5:
                    rd(ks + 1)
                a.wait_lg(('w', ks))
                a.wait_vm(('X', ks))
                b = self.WF + 20 * (ks % 2)
                for t in range(5):
                    d = vr(D + 4 * t, 4)
                    a.e(f'v_mfma_f32_16x16x32_bf16 {d}, {vr(b + 4 * t, 4)}, {vr(self.XF + 4 * ks, 4)}, {"0" if ks == 0 else d}')
        a.e('s_barrier')
        self.issue_kv(buf=0)
        a.e('v_lshlrev_b32 v2, 2, v3')
        a.e(f's_mov_b32 s44, {GATE_OFF}')
        a.vm('buffer_load_dword v14, v2, s[12:15], s44 offen', 'gate')
        a.e(f's_mov_b32 s44, {hx(QSCALE)}')
        a.e(f's_mov_b32 s45, {hx(QSCALE)}')
        for i in range(9):
            a.e(f'v_pk_mul_f32 {vr(D + 2 * i, 2)}, {vr(D + 2 * i, 2)}, s[44:45]')
        for p in range(2):
            for i in range(4):
                a.e(f'v_cvt_pk_bf16_f32 v{self.QF + 8 * p + i}, v{D + 8 * p + 2 * i}, v{D + 8 * p + 2 * i + 1}')
        a.e(f'v_cvt_pk_bf16_f32 v2, v{D + 16}, v{D + 17}')
        a.e('v_cmp_gt_u32 vcc, 32, v1')
        a.e(f'v_cndmask_b32 v{self.QF + 4}, 0, v2, vcc')
        a.e(f'v_cndmask_b32 v{self.QF + 12}, v2, 0, vcc')
        for p in range(2):
            for i in (5, 6, 7):
                a.e(f'v_mov_b32 v{self.QF + 8 * p + i}, 0')
            a.e(f'v_mov_b32 v{self.KF + 8 * p + 5}, 0x3f803f80')
            a.e(f'v_mov_b32 v{self.KF + 8 * p + 6}, 0x3f80')
            a.e(f'v_mov_b32 v{self.KF + 8 * p + 7}, 0')
        a.e('v_lshlrev_b32 v10, 4, v1')
        a.e('v_and_b32 v11, 31, v1')
        a.e('v_lshlrev_b32 v11, 2, v11')
        a.e('v_add_u32 v11, 1024, v11')
        a.e('v_bfe_u32 v2, v1, 2, 2')
        a.e('v_and_b32 v4, 3, v1')
        a.e('v_lshlrev_b32 v12, 5, v2')
        a.e('v_lshl_add_u32 v12, v4, 3, v12')
        a.e('v_lshlrev_b32 v2, 3, v2')
        a.e('v_add_u32 v2, 128, v2')
        a.e('v_mov_b32 v13, 160')
        a.e('v_cmp_eq_u32 vcc, 0, v4')
        a.e('v_cndmask_b32 v2, v13, v2, vcc')
        a.e('v_and_b32 v4, 16, v1')
        a.e('v_cmp_eq_u32 vcc, 0, v4')
        a.e('v_cndmask_b32 v12, v2, v12, vcc')
        a.e('v_lshrrev_b32 v2, 5, v1')
        a.e('v_mul_u32_u24 v2, 168, v2')
        a.e('v_add_u32 v12, v12, v2')
        a.e('v_add_u32 v12, 1152, v12')

    def readK(self, j):
        a = self.a
        b = self.KF + 8 * (j % 2)
        off = (j % 16) * KV_TILE
        a.lg(f'ds_read_b128 {vr(b, 4)}, v5 offset:{off}', ('K', j))
        a.lg(f'ds_read_b32 v{b + 4}, v6 offset:{off}', ('K', j))

    def readV(self, j, m):
        a = self.a
        b = self.VF + 8 * (j % 2)
        off = (j % 16) * KV_TILE
        for jj in range(2):
            a.lg(f'ds_read_b64_tr_b16 {vr(b + 4 * m + 2 * jj, 2)}, v7 offset:{off + (4 * m + 2 * jj) * 168}', ('V', j))

    def S(self, n, part):
        j, qt = n // 2, n % 2
        d = vr(self.SB + 16 * (n % 2), 16)
        k = self.KF + 8 * (j % 2) + 4 * part
        q = self.QF + 8 * qt + 4 * part
        self.a.e(f'v_mfma_f32_32x32x16_bf16 {d}, {vr(k, 4)}, {vr(q, 4)}, {"0" if part == 0 else d}')

    def PV(self, n, m):
        j, qt = n // 2, n % 2
        d = vr(self.OB + 16 * qt, 16)
        self.a.e(f'v_mfma_f32_32x32x16_bf16 {d}, {vr(self.VF + 8 * (j % 2) + 4 * m, 4)}, {vr(self.PF + 4 * m, 4)}, {d}')

    def set_m(self, qt, vm, add):
        a = self.a
        q = self.QF + 8 * qt
        a.e(f'v_sub_f32 v2, {hx(-add)}, v{vm}')
        a.e('v_and_b32 v4, 0xffff0000, v2')
        a.e('v_sub_f32 v2, v2, v4')
        a.e('v_and_b32 v13, 0xffff0000, v2')
        a.e('v_sub_f32 v2, v2, v13')
        a.e('v_lshrrev_b32 v4, 16, v4')
        a.e('v_or_b32 v4, v4, v13')
        a.e('v_lshrrev_b32 v2, 16, v2')
        a.e('v_cmp_gt_u32 vcc, 32, v1')
        if qt == 0:
            a.e(f'v_cndmask_b32 v{q + 5}, 0, v4, vcc')
            a.e(f'v_cndmask_b32 v{q + 6}, 0, v2, vcc')
        else:
            a.e(f'v_cndmask_b32 v{q + 5}, v4, 0, vcc')
            a.e(f'v_cndmask_b32 v{q + 6}, v2, 0, vcc')

    def max16(self, b, dst, first):
        a = self.a
        if first:
            a.e(f'v_max3_f32 v{dst}, v{b}, v{b + 1}, v{b + 2}')
            a.e(f'v_max_f32 v{dst}, v{dst}, v{b + 3}')
            r = range(4, 16, 2)
        else:
            r = range(0, 16, 2)
        for i in r:
            a.e(f'v_max3_f32 v{dst}, v{b + i}, v{b + i + 1}, v{dst}')

    def halves_max(self, r):
        a = self.a
        a.e(f'v_mov_b32 v2, v{r}')
        a.e(f'v_permlane32_swap_b32 v{r}, v2')
        a.e(f'v_max_f32 v{r}, v{r}, v2')

    def main(self, flags=''):
        a = self.a
        L_PASS = a.newlabel('ATT_PASS')
        L_LOOP = a.newlabel('ATT_LOOP')
        L_NOKV = a.newlabel('ATT_NOKV')
        L_FIN = a.newlabel('ATT_FIN')
        a.e('s_mov_b32 s33, 0')
        for i in range(3):
            a.e(f'v_add_u32 v{5 + i}, {KVBUF}, v{10 + i}')
        a.e('s_waitcnt vmcnt(11)')
        a.vmq = a.vmq[-11:]
        a.e('s_barrier')
        self.readK(0)
        a.wait_lg0()
        for qt in range(2):
            self.S(qt, 0)
            self.S(qt, 1)
        for qt in range(2):
            self.max16(self.SB + 16 * qt, 8 + qt, True)
            self.halves_max(8 + qt)
            self.set_m(qt, 8 + qt, M_OFFSET)
        a.label(L_PASS)
        self.readK(0)
        self.readK(1)
        self.readV(0, 0)
        self.readV(0, 1)
        for i in range(32):
            a.e(f'v_mov_b32 v{self.OB + i}, 0')
        for i in range(4):
            a.e(f'v_mov_b32 v{self.PF + 4 + i}, 0')
            a.e(f'v_mov_b32 v{self.VF + 12 + i}, 0')
        a.e('s_mov_b32 s34, 0')
        a.e(f's_add_u32 s35, s31, {KVBUF}')
        a.e(f's_mov_b32 s37, {-KVBUF & 0xffffffff}')
        a.wait_lg0()
        self.S(0, 0)
        self.S(0, 1)
        a.e('s_nop 7')
        a.label(L_LOOP)
        a.wait_lg0()
        for n in range(32):
            j, qt = n // 2, n % 2
            sb = self.SB + 16 * (n % 2)
            if n == 29:
                a.e('s_waitcnt vmcnt(0) lgkmcnt(0)')
                a.vmq = []
                a.lgq = []
                a.e('s_barrier')
                for i in range(3):
                    a.e(f'v_add_u32 v{5 + i}, s37, v{5 + i}')
                a.e('s_cmp_ge_u32 s34, 2')
                a.e(f's_cbranch_scc1 {L_NOKV}')
                self.issue_kv(buf_s=35, flags=flags)
                a.label(L_NOKV)
                a.e('s_add_u32 s35, s35, s37')
                a.e('s_sub_u32 s37, 0, s37')
            if qt == 1:
                a.wait_lg(('K', j + 1))
            self.S(n + 1, 0)
            for i in range(0, 4):
                a.e(f'v_exp_f32 v{sb + i}, v{sb + i}')
            self.PV(n - 1, 1)
            if qt == 0:
                self.readV(j + 1, 0)
            else:
                self.readK(j + 2)
            for i in range(4, 8):
                a.e(f'v_exp_f32 v{sb + i}, v{sb + i}')
            self.S(n + 1, 1)
            for i in range(4):
                a.e(f'v_cvt_pk_bf16_f32 v{self.PF + i}, v{sb + 2 * i}, v{sb + 2 * i + 1}')
            for i in range(8, 12):
                a.e(f'v_exp_f32 v{sb + i}, v{sb + i}')
            if qt == 0:
                a.wait_lg(('V', j))
            self.PV(n, 0)
            if qt == 0:
                self.readV(j + 1, 1)
            for i in range(12, 16):
                a.e(f'v_exp_f32 v{sb + i}, v{sb + i}')
            for i in range(4, 8):
                a.e(f'v_cvt_pk_bf16_f32 v{self.PF + i}, v{sb + 2 * i}, v{sb + 2 * i + 1}')
        a.e('s_add_u32 s34, s34, 1')
        a.e('s_cmp_lt_u32 s34, 4')
        a.e(f's_cbranch_scc1 {L_LOOP}')
        self.PV(31, 1)
        a.wait_all()
        a.e('s_cmp_lg_u32 s33, 0')
        a.e(f's_cbranch_scc1 {L_FIN}')
        a.e(f'v_max3_f32 v2, |v{self.OB}|, |v{self.OB + 1}|, |v{self.OB + 2}|')
        regs = [self.OB + i for i in range(3, 11)] + [self.OB + 16 + i for i in range(11)] + [self.OB + 16]
        for i in range(0, len(regs), 2):
            a.e(f'v_max3_f32 v2, |v{regs[i]}|, |v{regs[i + 1]}|, v2')
        a.e(f's_mov_b32 s44, {hx(2.0 ** 110)}')
        a.e('v_cmp_nlt_f32 vcc, v2, s44') if False else a.e('v_cmp_ngt_f32 vcc, s44, v2')
        a.e(f'v_add_f32 v4, v{self.OB + 10}, v{self.OB + 26}')
        a.e('v_cmp_u_f32 s[46:47], v4, v4')
        a.e('s_or_b64 vcc, vcc, s[46:47]')
        a.e('s_cmp_lg_u64 vcc, 0')
        a.e('s_cselect_b32 s44, 1, 0')
        a.e('v_mov_b32 v2, s44')
        a.e('s_lshl_b32 s45, s20, 2')
        a.e(f's_add_u32 s45, s45, {16 * KV_TILE}')
        a.e('v_mov_b32 v4, s45')
        a.e('ds_write_b32 v4, v2')
        a.e(f'v_mov_b32 v4, {16 * KV_TILE}')
        a.e('s_waitcnt lgkmcnt(0)')
        a.e('s_barrier')
        a.e(f'ds_read_b128 {vr(self.PF, 4)}, v4')
        a.e('s_waitcnt lgkmcnt(0)')
        a.e(f'v_or3_b32 v2, v{self.PF}, v{self.PF + 1}, v{self.PF + 2}')
        a.e(f'v_or_b32 v2, v2, v{self.PF + 3}')
        a.e('v_readfirstlane_b32 s44, v2')
        a.e('s_cmp_eq_u32 s44, 0')
        a.e(f's_cbranch_scc1 {L_FIN}')
        L_MC = a.newlabel('ATT_MC')
        L_MT = a.newlabel('ATT_MT')
        a.e('s_mov_b32 s33, 1')
        for p in range(2):
            a.e(f'v_mov_b32 v{self.QF + 8 * p + 5}, 0')
            a.e(f'v_mov_b32 v{self.QF + 8 * p + 6}, 0')
            a.e(f'v_mov_b32 v{8 + p}, 0xff7fffff')
        a.e(f's_mov_b32 s30, {KV_OFF}')
        a.e('s_mov_b32 s34, 0')
        a.label(L_MC)
        a.e('s_barrier')
        self.issue_kv(buf=0, flags=flags)
        a.e('v_mov_b32 v5, v10')
        a.e('v_mov_b32 v6, v11')
        a.e('s_mov_b32 s36, 0')
        a.wait_vm0()
        a.e('s_barrier')
        a.label(L_MT)
        self.readK(0)
        a.wait_lg0()
        for qt in range(2):
            self.S(qt, 0)
            self.S(qt, 1)
        a.e(f'v_add_u32 v5, {KV_TILE}, v5')
        a.e(f'v_add_u32 v6, {KV_TILE}, v6')
        for qt in range(2):
            self.max16(self.SB + 16 * qt, 8 + qt, False)
        a.e('s_add_u32 s36, s36, 1')
        a.e('s_cmp_lt_u32 s36, 16')
        a.e(f's_cbranch_scc1 {L_MT}')
        a.e('s_add_u32 s34, s34, 1')
        a.e('s_cmp_lt_u32 s34, 4')
        a.e(f's_cbranch_scc1 {L_MC}')
        for qt in range(2):
            self.halves_max(8 + qt)
            self.set_m(qt, 8 + qt, 0.0)
        a.e('s_barrier')
        a.e(f's_mov_b32 s30, {KV_OFF}')
        self.issue_kv(buf=1, flags=flags)
        self.issue_kv(buf=0, flags=flags)
        for i in range(3):
            a.e(f'v_add_u32 v{5 + i}, {KVBUF}, v{10 + i}')
        a.e('s_waitcnt vmcnt(10)')
        a.e('s_barrier')
        a.e(f's_branch {L_PASS}')
        a.label(L_FIN)
        a.vmq = []
        a.lgq = []

    def epilogue(self, flags=''):
        a = self.a
        a.e('s_mul_i32 s44, s23, 90')
        a.e('s_lshl_b32 s45, s22, 1')
        a.e('s_add_u32 s45, s45, s44')
        a.e('s_lshl_b32 s45, s45, 10')
        a.e(f's_add_u32 s45, s45, {UF_OFF}')
        a.e('s_lshr_b32 s46, s22, 2')
        a.e('s_add_u32 s46, s46, s44')
        a.e('s_lshl_b32 s46, s46, 10')
        a.e('s_and_b32 s47, s22, 3')
        a.e('s_lshl_b32 s47, s47, 8')
        a.e('s_add_u32 s46, s46, s47')
        a.e(f's_add_u32 s46, s46, {UF_OFF + 16 * 1024}')
        a.e('v_and_b32 v4, 15, v1')
        a.e('v_lshlrev_b32 v4, 4, v4')
        a.e('v_bfe_u32 v5, v1, 4, 1')
        a.e('v_lshl_add_u32 v4, v5, 2, v4')
        for qt in range(2):
            o = self.OB + 16 * qt
            a.e(f'v_mov_b32 v2, v{o + 10}')
            a.e(f'v_permlane32_swap_b32 v{o + 10}, v2')
            a.e(f'v_rcp_f32 v6, v{o + 10}')
            a.e('v_mul_f32 v6, v6, v14')
            for i in range(5):
                a.e(f'v_pk_mul_f32 {vr(o + 2 * i, 2)}, {vr(o + 2 * i, 2)}, v[6:7] op_sel_hi:[1,0]')
            pk = self.SB + 8 * qt
            for i in range(5):
                a.e(f'v_cvt_pk_bf16_f32 v{pk + i}, v{o + 2 * i}, v{o + 2 * i + 1}')
            a.e(f'buffer_store_dwordx4 {vr(pk, 4)}, v10, s[12:15], s45 offen offset:{1024 * qt} {flags}')
            a.e('s_mov_b32 exec_hi, 0')
            a.e(f'buffer_store_dword v{pk + 4}, v4, s[12:15], s46 offen offset:{8 * qt} {flags}')
            a.e('s_mov_b64 exec, -1')


def p3(a):
    a.e(f's_load_dwordx2 s[12:13], s[0:1], {A_WS}')
    a.e(f's_load_dwordx2 s[8:9], s[0:1], {A_OUT}')
    a.e('v_lshrrev_b32 v1, 6, v0')
    a.e('v_readfirstlane_b32 s20, v1')
    a.e('v_and_b32 v1, 63, v0')
    a.e('s_and_b32 s30, s2, 7')
    a.e('s_lshr_b32 s31, s2, 3')
    a.e('s_and_b32 s32, s30, 3')
    a.e('s_lshl_b32 s21, s32, 3')
    a.e('s_and_b32 s33, s31, 7')
    a.e('s_add_u32 s21, s21, s33')
    a.e('s_lshr_b32 s22, s30, 2')
    a.e('s_lshl_b32 s22, s22, 2')
    a.e('s_lshr_b32 s33, s31, 3')
    a.e('s_add_u32 s22, s22, s33')
    a.e('s_mul_i32 s23, s20, 23')
    a.e('s_cmp_eq_u32 s20, 3')
    a.e('s_cselect_b32 s33, 1, 0')
    a.e('s_sub_u32 s23, s23, s33')
    a.e('s_mul_i32 s24, s21, 360')
    a.e('s_add_u32 s24, s24, s23')
    a.e('s_lshl_b32 s24, s24, 10')
    a.e(f's_add_u32 s24, s24, {UF_OFF}')
    a.e('s_mul_i32 s25, s22, 90')
    a.e('s_add_u32 s25, s25, s23')
    a.e('s_mul_i32 s25, s25, 4608')
    a.e(f's_add_u32 s25, s25, {W3_OFF}')
    a.e('v_lshlrev_b32 v2, 4, v1')
    for i in range(1, 4):
        a.e(f'v_add_u32 v{2 + i}, {92160 * i}, v2')
    a.e('v_lshrrev_b32 v6, 4, v1')
    a.e('v_lshlrev_b32 v6, 3, v6')
    a.e('v_and_b32 v7, 7, v1')
    a.e('v_add_u32 v6, v6, v7')
    a.e('v_lshlrev_b32 v6, 4, v6')
    a.e('v_add_u32 v6, 4096, v6')
    a.e('s_waitcnt lgkmcnt(0)')
    srd(a, 12, WS_SIZE)
    srd(a, 8, 2048 * 1152)
    ACC = 16
    FR = 96
    DEPTH = 4
    NS = 23

    def loads(k):
        b = FR + 36 * (k % DEPTH)
        out = []
        if k == NS - 1:
            def f():
                a.e('s_cmp_ge_u32 s20, 2')
                a.e(f's_cselect_b32 s24, {WS_SIZE}, s24')
                a.e(f's_cselect_b32 s25, {WS_SIZE}, s25')
            out.append(f)
        for nt in range(5):
            def f(nt=nt):
                if nt < 4:
                    a.vm(f'buffer_load_dwordx4 {vr(b + 4 * nt, 4)}, v2, s[12:15], s25 offen offset:{1024 * nt}', ('W', k, nt))
                else:
                    a.vm(f'buffer_load_dwordx4 {vr(b + 4 * nt, 4)}, v6, s[12:15], s25 offen', ('W', k, nt))
                    a.e('s_add_u32 s25, s25, 4608')
            out.append(f)
        for i in range(4):
            def f(i=i):
                a.vm(f'buffer_load_dwordx4 {vr(b + 20 + 4 * i, 4)}, v{2 + i}, s[12:15], s24 offen', ('F', k))
                if i == 3:
                    a.e('s_add_u32 s24, s24, 1024')
            out.append(f)
        return out
    for k in range(DEPTH):
        for f in loads(k):
            f()
    stamp(a, 1)
    for k in range(NS):
        b = FR + 36 * (k % DEPTH)
        a.wait_vm(('F', k))
        for i in range(4):
            for nt in range(5):
                d = vr(ACC + 16 * nt + 4 * i, 4)
                a.e(f'v_mfma_f32_16x16x32_bf16 {d}, {vr(b + 4 * nt, 4)}, {vr(b + 20 + 4 * i, 4)}, {"0" if k == 0 else d}')
        if k + DEPTH < NS:
            for f in loads(k + DEPTH):
                f()
    stamp(a, 2)
    a.e('s_mul_i32 s26, s20, 20480')
    a.e('v_add_u32 v8, s26, v2')
    for i in range(4):
        for nt in range(5):
            a.lg(f'ds_write_b128 v8, {vr(ACC + 16 * nt + 4 * i, 4)} offset:{5120 * i + 1024 * nt}', 'w')
    a.e('s_mul_i32 s26, s20, 5120')
    a.e('v_add_u32 v9, s26, v2')
    a.e('v_add_u32 v10, 40960, v9')
    a.e('s_lshl_b32 s27, s21, 6')
    a.e('s_lshr_b32 s28, s20, 1')
    a.e('s_lshl_b32 s28, s28, 5')
    a.e('s_add_u32 s27, s27, s28')
    a.e('s_and_b32 s28, s20, 1')
    a.e('s_lshl_b32 s28, s28, 2')
    a.e('s_add_u32 s27, s27, s28')
    a.e('v_bfe_u32 v11, v1, 2, 2')
    a.e('v_lshlrev_b32 v11, 3, v11')
    a.e('v_and_b32 v12, 3, v1')
    a.e('v_add3_u32 v11, v11, v12, s27')
    a.e('v_mul_u32_u24 v11, 1152, v11')
    a.e('v_lshrrev_b32 v12, 4, v1')
    a.e('v_lshl_add_u32 v13, v12, 3, v11')
    a.e('v_lshl_add_u32 v11, v12, 4, v11')
    a.e('s_mul_i32 s27, s22, 144')
    a.wait_lg0()
    a.e('s_barrier')
    for nt in range(5):
        for w in range(4):
            a.lg(f'ds_read_b128 {vr(FR + 16 * nt + 4 * w, 4)}, v{9 + w // 2} offset:{20480 * (w % 2) + 1024 * nt}', ('r', nt))
    for nt in range(5):
        a.wait_lg(('r', nt))
        b = FR + 16 * nt
        for h in range(2):
            a.e(f'v_pk_add_f32 {vr(b + 2 * h, 2)}, {vr(b + 2 * h, 2)}, {vr(b + 4 + 2 * h, 2)}')
            a.e(f'v_pk_add_f32 {vr(b + 8 + 2 * h, 2)}, {vr(b + 8 + 2 * h, 2)}, {vr(b + 12 + 2 * h, 2)}')
        for h in range(2):
            a.e(f'v_pk_add_f32 {vr(b + 2 * h, 2)}, {vr(b + 2 * h, 2)}, {vr(b + 8 + 2 * h, 2)}')
        for h in range(2):
            a.e(f'v_cvt_pk_bf16_f32 v{ACC + 2 * nt + h}, v{b + 2 * h}, v{b + 2 * h + 1}')
        if nt in (1, 3):
            a.e(f'buffer_store_dwordx4 {vr(ACC + 2 * nt - 2, 4)}, v11, s[8:11], s27 offen offset:{64 * (nt // 2)}')
        if nt == 4:
            a.e('s_mov_b32 exec_hi, 0')
            a.e(f'buffer_store_dwordx2 {vr(ACC + 8, 2)}, v13, s[8:11], s27 offen offset:128')
            a.e('s_mov_b64 exec, -1')


def kernel_text(name, a, vgpr=256, sgpr=96):
    a.fix_hazards()
    mv, ms, ma = a.max_regs()
    assert mv <= vgpr and ms <= sgpr and ma == 0, (mv, ms, ma)
    body = f'.globl {name}\n.p2align 8\n.type {name},@function\n{name}:\n' + a.text()
    desc = f""".p2align 6
.amdhsa_kernel {name}
  .amdhsa_next_free_vgpr {vgpr}
  .amdhsa_next_free_sgpr {sgpr}
  .amdhsa_accum_offset {(vgpr + 3) // 4 * 4}
  .amdhsa_group_segment_fixed_size 0
  .amdhsa_kernarg_size 112
  .amdhsa_user_sgpr_count 2
  .amdhsa_user_sgpr_kernarg_segment_ptr 1
  .amdhsa_system_sgpr_workgroup_id_x 1
.end_amdhsa_kernel
"""
    return body, desc


def build_file(kernels):
    hdr = open('cdna_kernels/' + NAME + '.s.ref').read().split('\n')
    head = [l for l in hdr if l.startswith(';') and '@launch' not in l and 'Override' not in l and 'grid=ceil' not in l]
    head = head[:15]
    out = '\n'.join(head) + '\n'
    for name, a, grid, block, lds, vgpr in kernels:
        out += f'; @launch kernel={name} grid=({grid},1,1) block=({block},1,1) lds={lds}\n'
    out += '.amdgcn_target "amdgcn-amd-amdhsa--gfx950"\n.text\n'
    descs = ''
    for name, a, grid, block, lds, vgpr in kernels:
        b, d = kernel_text(name, a, vgpr)
        out += b
        descs += d
    out += '.section .rodata,"a"\n' + descs
    return out


def k1():
    a = Asm()
    a.nlabel = 1000
    a.e('s_cmp_ge_u32 s2, 442')
    a.e('s_cbranch_scc1 K1_END')
    stamp(a, 0)
    a.e('s_cmp_lt_u32 s2, 256')
    a.e('s_cbranch_scc1 K1_GEMM')
    k1_aux(a, 'K1_DONE')
    a.label('K1_GEMM')
    a.vmq = []
    a.lgq = []
    g = GW(a, ['z2'])
    g.setup()
    write_nonce(a)
    g.prologue_issue()
    g.setup2()
    stamp(a, 1)
    g.run_segment(0, 18, g.ACC0)
    stamp(a, 2)
    g.z2_gelu_publish()
    stamp(a, 3)
    g.z2_gather_norm_store()
    a.label('K1_DONE')
    stamp_flush(a, 0)
    a.label('K1_END')
    a.e('s_endpgm')
    return ('k1_kernel', a, 442, 256, 81920, 256)


def k2():
    a = Asm()
    a.nlabel = 2000
    a.e('s_cmp_ge_u32 s2, 512')
    a.e('s_cbranch_scc1 K2_END')
    stamp(a, 0)
    a.e('s_cmp_lt_u32 s2, 256')
    a.e('s_cbranch_scc1 K2_GEMM')
    if 'noatt' in ABL:
        a.e('s_branch K2_DONE')
    a.e('s_sub_u32 s3, s2, 256')
    if 'attprio' in ABL:
        a.e('s_setprio 2')
    t = ATT(a)
    t.setup(3)
    t.q_phase()
    stamp(a, 1)
    t.main()
    stamp(a, 2)
    t.epilogue()
    a.e('s_branch K2_DONE')
    a.label('K2_GEMM')
    if 'nogemm' in ABL:
        a.e('s_branch K2_DONE')
    if 'gemmprio' in ABL:
        a.e('s_setprio 2')
    a.vmq = []
    a.lgq = []
    g = GW(a, ['z1', 'sp'])
    g.setup()
    g.prologue_issue()
    g.setup2()
    g.sp_pre()
    stamp(a, 1)
    g.run_segment(0, 18, g.ACC1)
    stamp(a, 2)
    g.z1_gelu()
    stamp(a, 3)
    g.run_segment(18, 64, g.ACC0)
    stamp(a, 4)
    g.sp_epilogue()
    a.label('K2_DONE')
    stamp_flush(a, 1)
    a.label('K2_END')
    a.e('s_endpgm')
    return ('k2_kernel', a, 512, 256, 81920, 256)


def k3():
    a = Asm()
    a.nlabel = 3000
    a.e('s_cmp_ge_u32 s2, 256')
    a.e('s_cbranch_scc1 K3_END')
    stamp(a, 0)
    p3(a)
    stamp_flush(a, 2)
    a.label('K3_END')
    a.e('s_endpgm')
    return ('k3_kernel', a, 256, 256, 81920, 256)


if __name__ == '__main__':
    if '--stamp' in sys.argv:
        STAMP = True
        sys.argv.remove('--stamp')
    for x in list(sys.argv):
        if x.startswith('--abl='):
            ABL.update(x[6:].split(','))
            sys.argv.remove(x)
    out = sys.argv[1] if len(sys.argv) > 1 else 'out.s'
    open(out, 'w').write(build_file([k1(), k2(), k3()]))
    print('wrote', out)
```

```python
import sys, struct
from asmlib import Asm

NAME = 'gated_mix__grouped_kv_mqa__mixer_gmlp__prompt'

Z2_OFF = 0x10000
UF_OFF = Z2_OFF + 9437184
W3_OFF = UF_OFF + 11796480
KV_OFF = W3_OFF + 3317760
KV_TILE = 2496
GATE_OFF = KV_OFF + 160 * 1024
STATS_OFF = GATE_OFF + 16384
FLAG_OFF = STATS_OFF + 524288
FKV_OFF = FLAG_OFF
FW3_OFF = FLAG_OFF + 1024
FZ_OFF = FLAG_OFF + 4096
F3_OFF = FLAG_OFF + 8192
SC = 'sc0 sc1'
SCL = 'sc1'
WS_SIZE = 0x1a00000
assert FLAG_OFF + 65536 <= 0x1900000
STAMP_OFF = 0x1900000

A_X, A_WQ, A_WK, A_WV, A_WO, A_BX, A_WIN, A_WSP, A_BSP, A_WOUT, A_GW, A_OUT, A_DBG, A_WS = [8 * i for i in range(14)]

STAMP = False
ABL = set()


def f2u(f):
    return struct.unpack('<I', struct.pack('<f', f))[0]


def hx(f):
    return '0x%08x' % f2u(f)


def srd(a, d, size):
    a.e(f's_mov_b32 s{d + 2}, {size}')
    a.e(f's_mov_b32 s{d + 3}, 0x00020000')


def vr(b, n):
    return f'v[{b}:{b + n - 1}]'


def stamp(a, idx):
    if not STAMP:
        return
    a.wait_lg0()
    a.e('s_memrealtime s[78:79]')
    a.e('s_memtime s[76:77]')
    a.e('s_waitcnt lgkmcnt(0)')
    a.e(f's_mov_b32 s{80 + idx}, s78')
    a.e(f's_mov_b32 s{88 + idx}, s76')


def stamp_flush(a, kidx):
    if not STAMP:
        return
    a.e('s_waitcnt vmcnt(0) lgkmcnt(0)')
    stamp(a, 7)
    a.e(f's_load_dwordx2 s[74:75], s[0:1], {A_WS}')
    a.e('s_waitcnt lgkmcnt(0)')
    a.e('v_lshrrev_b32 v1, 6, v0')
    a.e('v_lshlrev_b32 v1, 6, v1')
    a.e('s_lshl_b32 s78, s2, 8')
    a.e(f's_add_u32 s78, s78, {STAMP_OFF + kidx * 131072}')
    a.e('v_add_u32 v1, s78, v1')
    for i in range(16):
        a.e(f'v_mov_b32 v{4 + i}, s{80 + i}')
    for i in range(4):
        a.e(f'global_store_dwordx4 v1, v[{4 + 4 * i}:{7 + 4 * i}], s[74:75] offset:{16 * i}')


GELU_C0 = -2.0 * 1.4426950408889634 * 0.7978845608028654
GELU_C1 = GELU_C0 * 0.044715


def gelu_group(a, regs, T, sC1, vC0):
    n = len(regs)
    for i, r in enumerate(regs):
        a.e(f'v_pk_mul_f32 {vr(T + 2 * i, 2)}, {vr(r, 2)}, {vr(r, 2)}')
    for i, r in enumerate(regs):
        a.e(f'v_pk_fma_f32 {vr(T + 2 * i, 2)}, {vr(T + 2 * i, 2)}, s[{sC1}:{sC1 + 1}], {vr(vC0, 2)}')
    for i, r in enumerate(regs):
        a.e(f'v_pk_mul_f32 {vr(T + 2 * i, 2)}, {vr(T + 2 * i, 2)}, {vr(r, 2)}')
    for i in range(2 * n):
        a.e(f'v_exp_f32 v{T + i}, v{T + i}')
    for i, r in enumerate(regs):
        a.e(f'v_pk_add_f32 {vr(T + 2 * i, 2)}, {vr(T + 2 * i, 2)}, 1.0 op_sel_hi:[1,0]')
    for i in range(2 * n):
        a.e(f'v_rcp_f32 v{T + i}, v{T + i}')
    for i, r in enumerate(regs):
        a.e(f'v_pk_mul_f32 {vr(r, 2)}, {vr(T + 2 * i, 2)}, {vr(r, 2)}')


SPIN_MAX = 300000


def poll(a, loads, regs, t0, first_done=False, sleep=1):
    lp = a.newlabel('POLL')
    lc = a.newlabel('POLLC')
    lg = a.newlabel('POLLOK')
    a.e(f's_mov_b32 s51, {SPIN_MAX}')
    if first_done:
        a.e(f's_branch {lc}')
    a.label(lp)
    loads()
    a.e('s_waitcnt vmcnt(0)')
    a.label(lc)
    a.e(f'v_xor_b32 v{t0}, s62, v{regs[0]}')
    for r in regs[1:]:
        a.e(f'v_xor_b32 v{t0 + 1}, s62, v{r}')
        a.e(f'v_or_b32 v{t0}, v{t0}, v{t0 + 1}')
    a.e(f'v_cmp_ne_u32 vcc, 0, v{t0}')
    a.e(f's_cbranch_vccz {lg}')
    a.e(f's_sleep {sleep}')
    a.e('s_sub_u32 s51, s51, 1')
    a.e('s_cmp_lg_u32 s51, 0')
    a.e(f's_cbranch_scc1 {lp}')
    a.label(lg)
    if not first_done:
        a.vmq = []


def get_nonce(a, vz, vn):
    lp = a.newlabel('NONCE')
    lg = a.newlabel('NONCE_OK')
    a.e(f's_mov_b32 s51, {SPIN_MAX}')
    a.label(lp)
    a.e(f'v_readfirstlane_b32 s62, v{vn}')
    a.e('s_cmp_lg_u32 s62, 0')
    a.e(f's_cbranch_scc1 {lg}')
    a.e('s_sleep 2')
    a.e(f'global_load_dword v{vn}, v{vz}, s[16:17] {SC}')
    a.e('s_waitcnt vmcnt(0)')
    a.e('s_sub_u32 s51, s51, 1')
    a.e('s_cmp_lg_u32 s51, 0')
    a.e(f's_cbranch_scc1 {lp}')
    a.label(lg)


def set_flag(a, soff, t0):
    a.e(f'v_mov_b32 v{t0}, 0')
    a.e(f'v_mov_b32 v{t0 + 1}, s62')
    a.e('s_mov_b64 exec, 1')
    a.vm(f'buffer_store_dword v{t0 + 1}, v{t0}, s[12:15], s{soff} offen {SC}', 'flag')
    a.e('s_mov_b64 exec, -1')


class GW:
    R = 5
    SLOT = 9216
    BBASE = 5 * 9216
    SCR = 5 * 9216 + 32768
    AF = 32
    BF = 68
    ACC0 = 100
    ACC1 = 172

    def __init__(self, a, segs):
        self.a = a
        self.segs = segs
        self.units = []
        self.ustage = []
        self.stages = []
        for k in range(18):
            if k % 2 == 0:
                self.stages.append(('x', k // 2))
            for sg in ('z2', 'z1'):
                self.units.append((sg, k))
                self.ustage.append((len(self.stages) - 1, k % 2))
        for k in range(64):
            if k % 2 == 0:
                self.stages.append(('sp', k // 2))
            self.units.append(('sp', k))
            self.ustage.append((len(self.stages) - 1, k % 2))
        self.nextA = 0
        self.nextB = 0
        self.limitA = len(self.units)

    def setup(self):
        a = self.a
        a.e(f's_load_dwordx2 s[4:5], s[0:1], {A_X}')
        a.e(f's_load_dwordx2 s[8:9], s[0:1], {A_WIN}')
        a.e(f's_load_dwordx4 s[16:19], s[0:1], {A_DBG}')
        a.e(f's_load_dwordx4 s[52:55], s[0:1], {A_WSP}')
        a.e(f's_load_dwordx2 s[64:65], s[0:1], {A_OUT}')
        a.e('v_lshrrev_b32 v1, 6, v0')
        a.e('v_readfirstlane_b32 s20, v1')
        a.e('v_and_b32 v1, 63, v0')
        a.e('s_and_b32 s30, s2, 7')
        a.e('s_lshr_b32 s31, s2, 3')
        a.e('s_and_b32 s32, s30, 3')
        a.e('s_lshr_b32 s33, s30, 2')
        a.e('s_and_b32 s34, s31, 3')
        a.e('s_lshl_b32 s21, s32, 2')
        a.e('s_add_u32 s21, s21, s34')
        a.e('s_lshr_b32 s35, s31, 2')
        a.e('s_lshl_b32 s22, s33, 3')
        a.e('s_add_u32 s22, s22, s35')
        a.e('s_and_b32 s36, s22, 1')
        a.e('s_lshl_b32 s23, s21, 2')
        a.e('s_add_u32 s23, s23, s20')
        a.e('s_lshl_b32 s39, s34, 1')
        a.e('s_add_u32 s39, s39, s35')
        a.e('s_cmp_ge_u32 s39, 9')
        a.e('s_cselect_b32 s40, 9, 0')
        a.e('s_sub_u32 s39, s39, s40')
        if 'norot' in ABL:
            a.e('s_mov_b32 s39, 0')
        a.e('s_mul_i32 s24, s39, %d' % (64 * 9216))
        a.e('s_add_u32 s28, s24, 4608')
        a.e('s_lshl_b32 s25, s39, 7')
        a.e('s_mul_i32 s26, s20, 2304')
        a.e('s_lshl_b32 s27, s20, 12')
        a.e(f's_add_u32 s27, s27, {self.BBASE}')
        a.e('s_mul_i32 s41, s22, 288')
        a.e('s_lshl_b32 s42, s36, 5')
        a.e('s_add_u32 s42, s42, s41')
        a.e('s_mul_i32 s43, s20, %d' % (8 * 9216))
        a.e('s_add_u32 s42, s42, s43')
        a.e('v_bfe_u32 v2, v1, 2, 2')
        a.e('v_mul_u32_u24 v2, 9216, v2')
        a.e('v_lshrrev_b32 v3, 4, v1')
        a.e('v_lshl_add_u32 v2, v3, 6, v2')
        a.e('s_and_b32 s44, s20, 1')
        a.e('s_lshl_b32 s44, s44, 1')
        a.e('v_and_b32 v3, 3, v1')
        a.e('v_xor_b32 v3, s44, v3')
        a.e('v_lshl_add_u32 v2, v3, 4, v2')
        a.e('v_add_u32 v2, s42, v2')
        a.e(f'v_add_u32 v3, {4 * 9216 - 1024}, v2')
        a.e('s_cmp_eq_u32 s36, 0')
        a.e('s_cselect_b32 s44, 256, 0')
        a.e('s_add_u32 s44, s44, s41')
        a.e('s_add_u32 s44, s44, s43')
        a.e('v_lshrrev_b32 v4, 3, v1')
        a.e('v_mul_u32_u24 v4, 9216, v4')
        a.e('v_and_b32 v23, 7, v1')
        a.e('v_lshl_add_u32 v4, v23, 2, v4')
        a.e('v_add_u32 v4, s44, v4')
        a.e('v_lshrrev_b32 v24, 5, v1')
        a.e('v_lshlrev_b32 v24, 3, v24')
        a.e('v_bfe_u32 v25, v1, 3, 2')
        a.e('v_add_u32 v24, v24, v25')
        a.e('s_lshl_b32 s44, s23, 5')
        a.e('v_add_u32 v24, s44, v24')
        a.e('v_lshrrev_b32 v25, 4, v1')
        a.e('v_xor_b32 v25, v25, v23')
        a.e('v_lshlrev_b32 v25, 4, v25')
        a.e('v_xor_b32 v26, 64, v25')
        a.e('v_mul_u32_u24 v27, 1152, v24')
        a.e('v_add_u32 v5, v27, v25')
        a.e('v_add_u32 v6, v27, v26')
        a.e(f'v_add_u32 v6, {16 * 1152 - 1024}, v6')
        a.e(f'v_add_u32 v7, {4 * 1152 - 2048}, v5')
        a.e(f'v_add_u32 v8, {4 * 1152 - 2048}, v6')
        a.e('s_waitcnt lgkmcnt(0)')
        srd(a, 4, 2359296)
        srd(a, 8, 576 * 9216)
        a.e('s_mov_b32 s12, s18')
        a.e('s_mov_b32 s13, s19')
        srd(a, 12, WS_SIZE)
        a.e('s_mov_b32 s56, s54')
        a.e('s_mov_b32 s57, s55')
        srd(a, 52, 2048 * 4096)

    def setup2(self):
        a = self.a
        if 'sp' in self.segs:
            a.e('v_lshlrev_b32 v27, 12, v24')
            a.e('v_add_u32 v12, v27, v25')
            a.e('v_add_u32 v13, v27, v26')
            a.e(f'v_add_u32 v13, {16 * 4096 - 1024}, v13')
            a.e(f'v_add_u32 v14, {4 * 4096 - 2048}, v12')
            a.e(f'v_add_u32 v15, {4 * 4096 - 2048}, v13')
            a.e('s_mul_i32 s44, s22, 9')
            a.e('s_add_u32 s45, s44, s36')
            a.e('s_lshl_b32 s45, s45, 10')
            a.e('s_lshl_b32 s46, s20, 11')
            a.e('s_add_u32 s45, s45, s46')
            a.e('v_lshlrev_b32 v19, 4, v1')
            a.e('v_add_u32 v9, s45, v19')
            a.e('s_cmp_eq_u32 s36, 0')
            a.e('s_cselect_b32 s45, 8, 0')
            a.e('s_add_u32 s45, s45, s44')
            a.e('s_lshl_b32 s45, s45, 10')
            a.e('s_lshl_b32 s46, s20, 8')
            a.e('s_add_u32 s45, s45, s46')
            a.e('v_lshlrev_b32 v10, 2, v1')
            a.e('v_add_u32 v10, s45, v10')
            a.e('v_lshrrev_b32 v20, 4, v1')
            a.e('v_mul_u32_u24 v20, 2304, v20')
            a.e('v_and_b32 v27, 15, v1')
            a.e('v_lshl_add_u32 v20, v27, 4, v20')
        a.e('v_lshrrev_b32 v27, 4, v1')
        a.e('v_mul_u32_u24 v28, 2304, v27')
        a.e('v_and_b32 v29, 3, v1')
        a.e('v_lshl_add_u32 v28, v29, 3, v28')
        a.e('v_bfe_u32 v29, v1, 2, 2')
        a.e('v_lshl_add_u32 v18, v29, 5, v28')
        a.e('v_lshl_add_u32 v28, v29, 6, v28')
        a.e('v_and_b32 v29, 1, v27')
        a.e('v_lshl_add_u32 v16, v29, 5, v28')
        a.e('v_xor_b32 v17, 32, v16')
        a.e('v_and_b32 v28, 15, v1')
        a.e('v_bfe_u32 v29, v1, 1, 3')
        a.e('v_xor_b32 v29, v29, v27')
        a.e('v_lshlrev_b32 v28, 7, v28')
        a.e('v_lshl_add_u32 v28, v29, 4, v28')
        a.e('v_add_u32 v21, s27, v28')
        a.e('v_xor_b32 v28, 64, v28')
        a.e('v_add_u32 v22, s27, v28')

    def issueA(self):
        a = self.a
        u = self.nextA
        if u >= self.limitA:
            return []
        self.nextA += 1
        seg, i = self.units[u]
        slot = (u % self.R) * self.SLOT
        tag = ('A', u)
        if seg == 'sp':
            def f0():
                if i == 0:
                    a.e(f's_mov_b32 s24, {Z2_OFF}')
                    a.e(f's_mov_b32 s28, {Z2_OFF - 2048}')
                a.e(f's_add_u32 m0, s26, {slot}')
                a.vm(f'buffer_load_dwordx4 v9, s[12:15], s24 offen {SCL} lds', tag)

            def f1():
                a.vm(f'buffer_load_dwordx4 v9, s[12:15], s24 offen offset:1024 {SCL} lds', tag)
                a.e('s_add_u32 s24, s24, 147456')

            def f2():
                a.vm(f'buffer_load_dword v10, s[12:15], s28 offen offset:2048 {SCL} lds', tag)
                a.e('s_add_u32 s28, s28, 147456')
        else:
            so = 's28' if seg == 'z2' else 's24'

            def f0():
                a.e(f's_add_u32 m0, s26, {slot}')
                a.vm(f'buffer_load_dwordx4 v2, s[8:11], {so} offen lds', tag)

            def f1():
                a.vm(f'buffer_load_dwordx4 v3, s[8:11], {so} offen offset:1024 lds', tag)
                a.e(f's_add_u32 m0, s26, {slot + 2048}')

            def f2():
                a.vm(f'buffer_load_dword v4, s[8:11], {so} offen lds', tag)
                if seg == 'z1':
                    a.e(f's_add_u32 s24, s24, {32 * 9216}')
                    if i % 2 == 1:
                        a.e(f's_cmp_eq_u32 s24, {576 * 9216}')
                        a.e('s_cselect_b32 s24, 0, s24')
                    a.e('s_add_u32 s28, s24, 4608')
        return [f0, f1, f2]

    def issueB(self):
        a = self.a
        s = self.nextB
        if s >= len(self.stages):
            return []
        self.nextB += 1
        seg, i = self.stages[s]
        tag = ('B', s)
        sp = seg == 'sp'
        vb = 12 if sp else 5
        sr = 's[52:55]' if sp else 's[4:7]'

        def mk(k):
            def f():
                if k == 0 and sp and i == 0:
                    a.e('s_mov_b32 s25, 0')
                a.e(f's_add_u32 m0, s27, {(s % 2) * 16384}')
                for j in (2 * k, 2 * k + 1):
                    a.vm(f'buffer_load_dwordx4 v{vb + j}, {sr}, s25 offen offset:{1024 * j} lds', tag)
                if k == 1:
                    a.e('s_add_u32 s25, s25, 128')
                    if not sp:
                        a.e('s_cmp_eq_u32 s25, 1152')
                        a.e('s_cselect_b32 s25, 0, s25')
            return f
        return [mk(0), mk(1)]

    def readA(self, u, F, part):
        a = self.a
        seg, i = self.units[u]
        slot = (u % self.R) * self.SLOT
        tag = ('AR', u, F)
        if seg == 'sp':
            if part == 0:
                if F < 8:
                    a.lg(f'ds_read_b128 {vr(self.AF + 4 * F, 4)}, v19 offset:{slot + (F // 2) * 2304 + (F % 2) * 1024}', tag)
                else:
                    a.lg(f'ds_read_b128 {vr(self.AF + 4 * F, 4)}, v20 offset:{slot + 2048}', tag)
        else:
            j = part
            if F < 8:
                a.lg(f'ds_read_b64_tr_b16 {vr(self.AF + 4 * F + 2 * j, 2)}, v{16 + F % 2} offset:{slot + j * 1024 + (F // 2) * 256}', tag)
            else:
                a.lg(f'ds_read_b64_tr_b16 {vr(self.AF + 4 * F + 2 * j, 2)}, v18 offset:{slot + 2048 + j * 128}', tag)

    def readB(self, s, jj):
        a = self.a
        if jj == 0:
            a.wait_vm(('B', s))
        for e in range(2):
            a.lg(f'ds_read_b128 {vr(self.BF + 16 * (s % 2) + 8 * jj + 4 * e, 4)}, v{21 + jj} offset:{(s % 2) * 16384 + e * 2048}', ('BR', s))

    def prologue_issue(self):
        for f in self.issueB():
            f()
        for f in self.issueA():
            f()
        for f in self.issueA():
            f()
        for f in self.issueB():
            f()
        for _ in range(self.R - 3):
            for f in self.issueA():
                f()

    def run_segment(self, u0, n):
        a = self.a
        s0 = self.ustage[u0][0]
        self.readB(s0, 0)
        self.readB(s0, 1)
        a.wait_vm(('A', u0))
        a.e('s_barrier')
        for F in range(9):
            self.readA(u0, F, 0)
            self.readA(u0, F, 1)
        for u in range(u0, u0 + n):
            last = u == u0 + n - 1
            seg, kk = self.units[u]
            s, jj = self.ustage[u]
            sfirst = u == u0 or self.ustage[u - 1][0] != s
            slast = last or self.ustage[u + 1][0] != s
            acc = self.ACC1 if seg == 'z1' else self.ACC0
            if 'g1fine' in ABL and u in (0, 6, 12, 18, 24, 30):
                stamp(a, 1 + u // 6)
            if not last:
                a.wait_vm(('A', u + 1))
            a.e('s_barrier')
            fill = list(self.issueA()) if self.nextA <= u + self.R - 1 else []
            if sfirst and self.nextB <= s + 2:
                fb = self.issueB()
                if fb:
                    f0 = fb[0]

                    def g0(f0=f0, s=s):
                        a.wait_lg(('BR', s))
                        f0()
                    fill += [g0, fb[1]]
            for F in range(9):
                a.wait_lg(('AR', u, F))
                if F == 0 and sfirst:
                    a.wait_lg(('BR', s))
                for e in range(2):
                    d = vr(acc + 8 * F + 4 * e, 4)
                    c = '0' if kk == 0 else d
                    af = vr(self.AF + 4 * F, 4)
                    bf = vr(self.BF + 16 * (s % 2) + 8 * jj + 4 * e, 4)
                    if seg == 'z2':
                        a.e(f'v_mfma_f32_16x16x32_bf16 {d}, {bf}, {af}, {c}')
                    else:
                        a.e(f'v_mfma_f32_16x16x32_bf16 {d}, {af}, {bf}, {c}')
                    if e == 0:
                        if not last and F > 0:
                            self.readA(u + 1, F - 1, 1)
                        if fill and (seg == 'sp' or F % 2 == 1):
                            fill.pop(0)()
                    else:
                        if not last:
                            self.readA(u + 1, F, 0)
                            if F == 8:
                                self.readA(u + 1, F, 1)
                if not last and slast and F in (4, 6):
                    self.readB(s + 1, (F - 4) // 2)
            for f in fill:
                f()

    def gelu_consts(self):
        a = self.a
        a.e(f's_mov_b32 s60, {hx(GELU_C1)}')
        a.e(f's_mov_b32 s61, {hx(GELU_C1)}')
        a.e(f'v_mov_b32 v30, {hx(GELU_C0)}')
        a.e(f'v_mov_b32 v31, {hx(GELU_C0)}')

    def z1_gelu(self, Fs=range(9)):
        a = self.a
        T = self.BF + 16
        for F in Fs:
            base = self.ACC1 + 8 * F
            gelu_group(a, [base + 2 * i for i in range(4)], T + 8 * (F % 2), 60, 30)

    def z2_gelu_publish(self):
        a = self.a
        T = self.AF
        S = self.BF
        self.gelu_consts()
        a.e('v_mov_b32 v23, 0')
        a.vm('global_load_dword v24, v23, s[16:17] sc0 sc1', 'nonce')
        for F in range(9):
            base = self.ACC0 + 8 * F
            gelu_group(a, [base + 2 * i for i in range(4)], T + 8 * (F % 2), 60, 30)
            for i in range(4):
                y = vr(base + 2 * i, 2)
                if F == 0:
                    a.e(f'v_pk_add_f32 {vr(S + 2 * i, 2)}, {y}, 0 op_sel_hi:[1,0]')
                    a.e(f'v_pk_mul_f32 {vr(S + 8 + 2 * i, 2)}, {y}, {y}')
                else:
                    a.e(f'v_pk_add_f32 {vr(S + 2 * i, 2)}, {vr(S + 2 * i, 2)}, {y}')
                    a.e(f'v_pk_fma_f32 {vr(S + 8 + 2 * i, 2)}, {y}, {y}, {vr(S + 8 + 2 * i, 2)}')
        for b in (S, S + 8):
            for r in range(4):
                a.e(f'v_add_f32_dpp v{b + r}, v{b + r}, v{b + r} row_ror:8 row_mask:0xf bank_mask:0x3')
            for r in range(4):
                a.e(f'v_add_f32_dpp v{b + r}, v{b + r + 4}, v{b + r + 4} row_ror:8 row_mask:0xf bank_mask:0xc')
        for b in (S, S + 8):
            for r in range(2):
                a.e(f'v_add_f32_dpp v{b + r}, v{b + r}, v{b + r} row_shl:4 row_mask:0xf bank_mask:0x5')
            for r in range(2):
                a.e(f'v_add_f32_dpp v{b + r}, v{b + r + 2}, v{b + r + 2} row_shr:4 row_mask:0xf bank_mask:0xa')
        for qp in ('[1,0,3,2]', '[2,3,0,1]'):
            for r in (S, S + 1, S + 8, S + 9):
                a.e(f'v_add_f32_dpp v{r}, v{r}, v{r} quad_perm:{qp} row_mask:0xf bank_mask:0xf')
        a.e('v_and_b32 v25, 1, v1')
        a.e('v_cmp_eq_u32 vcc, 1, v25')
        G0 = S + 16
        a.e(f'v_cndmask_b32 v{G0}, v{S}, v{S + 1}, vcc')
        a.e(f'v_cndmask_b32 v{G0 + 1}, v{S + 8}, v{S + 9}, vcc')
        a.e('v_lshrrev_b32 v26, 2, v1')
        a.e('v_lshl_add_u32 v26, v26, 1, v25')
        a.e('v_lshlrev_b32 v26, 4, v26')
        a.e('s_lshl_b32 s48, s23, 13')
        a.e(f's_add_u32 s48, s48, {STATS_OFF}')
        a.e('s_lshl_b32 s49, s22, 9')
        a.e('s_add_u32 s49, s49, s48')
        a.wait_vm('nonce')
        get_nonce(a, 23, 24)
        a.e(f'v_mov_b32 v{G0 + 2}, s62')
        a.e(f'v_mov_b32 v{G0 + 3}, s62')
        a.vm(f'buffer_store_dwordx4 {vr(G0, 4)}, v26, s[12:15], s49 offen {SC}', 'st')

    def z2_gather_norm_store(self, flags=''):
        a = self.a
        G = self.AF
        a.e('v_lshlrev_b32 v26, 4, v1')
        a.e('s_add_u32 s49, s48, 4096')

        def ld():
            for i in range(8):
                a.e(f'buffer_load_dwordx4 {vr(G + 4 * i, 4)}, v26, s[12:15], {"s48" if i < 4 else "s49"} offen offset:{1024 * (i % 4)} {SC}')
        poll(a, ld, [G + 4 * i + 2 for i in range(8)], 27)
        for i in (0, 2, 4, 6):
            a.e(f'v_pk_add_f32 {vr(G + 4 * i, 2)}, {vr(G + 4 * i, 2)}, {vr(G + 4 * i + 4, 2)}')
        a.e(f'v_pk_add_f32 {vr(G, 2)}, {vr(G, 2)}, {vr(G + 8, 2)}')
        a.e(f'v_pk_add_f32 {vr(G + 16, 2)}, {vr(G + 16, 2)}, {vr(G + 24, 2)}')
        a.e(f'v_pk_add_f32 {vr(G, 2)}, {vr(G, 2)}, {vr(G + 16, 2)}')
        a.e(f'v_mov_b32 v{G + 2}, v{G}')
        a.e(f'v_mov_b32 v{G + 3}, v{G + 1}')
        a.e(f'v_permlane32_swap_b32 v{G}, v{G + 2}')
        a.e(f'v_permlane32_swap_b32 v{G + 1}, v{G + 3}')
        a.e(f'v_pk_add_f32 {vr(G, 2)}, {vr(G, 2)}, {vr(G + 2, 2)}')
        a.e(f'v_mul_f32 v{G}, {hx(1.0 / 2304)}, v{G}')
        a.e(f'v_mul_f32 v{G + 1}, {hx(1.0 / 2304)}, v{G + 1}')
        a.e(f'v_fma_f32 v{G + 1}, -v{G}, v{G}, v{G + 1}')
        a.e(f'v_max_f32 v{G + 1}, 0, v{G + 1}')
        a.e(f'v_add_f32 v{G + 1}, {hx(1e-5)}, v{G + 1}')
        a.e(f'v_rsq_f32 v{G + 1}, v{G + 1}')
        a.e(f'v_mul_f32 v{G}, v{G}, v{G + 1}')
        a.e(f'v_sub_f32 v{G}, 0, v{G}')
        a.e('s_lshl_b32 s44, s20, 8')
        a.e(f's_add_u32 s44, s44, {self.SCR}')
        a.e('v_and_b32 v27, 31, v1')
        a.e('v_lshlrev_b32 v27, 2, v27')
        a.e('v_add_u32 v27, s44, v27')
        a.lg(f'ds_write_b32 v27, v{G + 1}', 'w')
        a.lg(f'ds_write_b32 v27, v{G} offset:128', 'w')
        a.e('v_lshrrev_b32 v28, 4, v1')
        a.e('v_lshlrev_b32 v28, 5, v28')
        a.e('v_add_u32 v28, s44, v28')
        RS = self.BF
        a.lg(f'ds_read_b128 {vr(RS, 4)}, v28', 'r')
        a.lg(f'ds_read_b128 {vr(RS + 4, 4)}, v28 offset:16', 'r')
        a.lg(f'ds_read_b128 {vr(RS + 8, 4)}, v28 offset:128', 'r')
        a.lg(f'ds_read_b128 {vr(RS + 12, 4)}, v28 offset:144', 'r')
        a.e('s_mul_i32 s44, s23, 144')
        a.e('s_mul_i32 s45, s22, 9')
        a.e('s_add_u32 s44, s44, s45')
        a.e('s_add_u32 s45, s44, s36')
        a.e('s_lshl_b32 s45, s45, 10')
        a.e(f's_add_u32 s45, s45, {Z2_OFF}')
        a.e('s_add_u32 s47, s45, 4096')
        a.e('s_cmp_eq_u32 s36, 0')
        a.e('s_cselect_b32 s46, 8, 0')
        a.e('s_add_u32 s46, s46, s44')
        a.e('s_lshl_b32 s46, s46, 10')
        a.e(f's_add_u32 s46, s46, {Z2_OFF}')
        a.wait_lg0()
        for F in range(9):
            base = self.ACC0 + 8 * F
            pk = G + 4 * F
            for i in range(4):
                a.e(f'v_pk_fma_f32 {vr(base + 2 * i, 2)}, {vr(base + 2 * i, 2)}, {vr(RS + 2 * i, 2)}, {vr(RS + 8 + 2 * i, 2)}')
            for i in range(4):
                a.e(f'v_cvt_pk_bf16_f32 v{pk + i}, v{base + 2 * i}, v{base + 2 * i + 1}')
            so = 's46' if F == 8 else ('s45' if F < 4 else 's47')
            a.vm(f'buffer_store_dwordx4 {vr(pk, 4)}, v26, s[12:15], {so} offen offset:{1024 * (F % 4)} {flags}', 'st')

    def sp_pre(self):
        a = self.a
        a.e('v_bfe_u32 v27, v1, 2, 2')
        a.e('v_lshlrev_b32 v27, 3, v27')
        a.e('v_and_b32 v28, 3, v1')
        a.e('v_add_u32 v27, v27, v28')
        a.e('s_lshl_b32 s44, s23, 5')
        a.e('v_add_u32 v27, s44, v27')
        a.e('v_lshlrev_b32 v28, 1, v27')
        a.e('v_lshlrev_b32 v11, 3, v27')
        a.vm('global_load_ushort v244, v28, s[56:57]', 'pre')
        a.vm('global_load_ushort v245, v28, s[56:57] offset:8', 'pre')
        self.gate_loads(True)

    def gate_loads(self, track=False):
        a = self.a
        a.e(f's_mov_b32 s44, {GATE_OFF}')
        for e in range(2):
            t = f'buffer_load_dwordx2 {vr(246 + 2 * e, 2)}, v11, s[12:15], s44 offen offset:{32 * e} {SC}'
            a.vm(t, 'pre') if track else a.e(t)

    def sp_epilogue(self, flags=''):
        a = self.a
        a.wait_vm('pre')
        poll(a, self.gate_loads, [247, 249], 27, first_done=True)
        for e in range(2):
            a.e(f'v_sub_f32 v{246 + 2 * e}, 1.0, v{246 + 2 * e}')
            a.e(f'v_lshlrev_b32 v{244 + e}, 16, v{244 + e}')
            a.e(f'v_mul_f32 v{250 + 2 * e}, v{244 + e}, v{246 + 2 * e}')
        a.e('v_lshlrev_b32 v26, 4, v1')
        a.e('s_mul_i32 s44, s23, 180')
        a.e('s_mul_i32 s45, s22, 9')
        a.e('s_add_u32 s46, s45, s36')
        a.e('s_lshr_b32 s46, s46, 1')
        a.e('s_add_u32 s46, s46, s44')
        a.e('s_lshl_b32 s46, s46, 10')
        a.e(f's_add_u32 s46, s46, {UF_OFF + 18 * 1024}')
        a.e(f's_add_u32 s47, s46, {90 * 1024}')
        a.e('s_cmp_eq_u32 s36, 0')
        a.e('s_cselect_b32 s48, 8, 0')
        a.e('s_add_u32 s48, s48, s45')
        a.e('s_lshr_b32 s48, s48, 1')
        a.e('s_add_u32 s48, s48, s44')
        a.e('s_lshl_b32 s48, s48, 10')
        a.e(f's_add_u32 s48, s48, {UF_OFF + 18 * 1024}')
        a.e('s_lshl_b32 s49, s36, 3')
        a.e('s_add_u32 s48, s48, s49')
        a.e(f's_add_u32 s49, s48, {90 * 1024}')
        idx = 0
        for m in range(5):
            for e in range(2):
                pk = self.AF + 4 * idx
                idx += 1
                Fs = (2 * m, 2 * m + 1) if m < 4 else (8,)
                prs = [(self.ACC0 + 8 * F + 4 * e + 2 * i, self.ACC1 + 8 * F + 4 * e + 2 * i) for F in Fs for i in range(2)]
                for g, z in prs:
                    a.e(f'v_pk_fma_f32 {vr(g, 2)}, {vr(g, 2)}, {vr(246 + 2 * e, 2)}, {vr(250 + 2 * e, 2)} op_sel_hi:[1,0,0]')
                for g, z in prs:
                    a.e(f'v_pk_mul_f32 {vr(g, 2)}, {vr(g, 2)}, {vr(z, 2)}')
                for i, (g, z) in enumerate(prs):
                    a.e(f'v_cvt_pk_bf16_f32 v{pk + i}, v{g}, v{g + 1}')
                if m < 4:
                    a.vm(f'buffer_store_dwordx4 {vr(pk, 4)}, v26, s[12:15], s{46 + e} offen offset:{1024 * m} {flags}', 'st')
                else:
                    a.vm(f'buffer_store_dwordx2 {vr(pk, 2)}, v26, s[12:15], s{48 + e} offen {flags}', 'st')


def write_nonce(a):
    l = a.newlabel('NOW')
    a.e('s_or_b32 s44, s2, s20')
    a.e('s_cmp_lg_u32 s44, 0')
    a.e(f's_cbranch_scc1 {l}')
    a.e('s_memrealtime s[44:45]')
    a.e('s_waitcnt lgkmcnt(0)')
    a.e('s_or_b32 s44, s44, 1')
    a.e('v_mov_b32 v28, 0')
    a.e('v_mov_b32 v29, s44')
    a.e('global_store_dword v28, v29, s[16:17] sc0 sc1')
    a.label(l)


def kv_issue(a, LB):
    a.e('v_lshrrev_b32 v2, 2, v1')
    a.e('v_mul_u32_u24 v2, 36, v2')
    a.e('v_and_b32 v4, 3, v1')
    a.e('v_min_u32 v4, 2, v4')
    a.e('v_lshl_add_u32 v2, v4, 4, v2')
    a.e('s_mul_i32 s44, s20, %d' % (9 * 576))
    a.e('s_mul_i32 s45, s20, %d' % (9 * 1024))
    for i in range(9):
        a.e(f's_add_u32 m0, s45, {LB + 1024 * i}')
        a.e('buffer_load_dwordx4 v2, s[40:43], s44 offen lds')
        a.e('s_add_u32 s44, s44, 576')


def kv_compute(a, which_s, XF, LB, R0):
    A0, A1, T = R0, R0 + 1, R0 + 2
    WF = R0 + 8
    D = R0 + 24
    a.e(f'v_lshrrev_b32 v{A0}, 4, v1')
    a.e(f'v_lshlrev_b32 v{A0}, 9, v{A0}')
    a.e(f'v_bfe_u32 v{A1}, v1, 2, 2')
    a.e(f'v_lshl_add_u32 v{A0}, v{A1}, 6, v{A0}')
    a.e(f'v_add_u32 v{A0}, {LB}, v{A0}')
    a.e(f'v_add_u32 v{A1}, 32, v{A0}')
    a.e(f'v_and_b32 v{T}, 3, v1')
    a.e(f'v_lshl_add_u32 v{A0}, v{T}, 3, v{A0}')

    def rd(ks):
        b = WF + 8 * (ks % 2)
        for j in range(2):
            a.lg(f'ds_read_b64_tr_b16 {vr(b + 2 * j, 2)}, v{A0} offset:{2048 * ks + 256 * j}', ('w', ks))
            a.lg(f'ds_read_b64_tr_b16 {vr(b + 4 + 2 * j, 2)}, v{A1} offset:{2048 * ks + 256 * j}', ('w', ks))
    rd(0)
    for ks in range(18):
        if ks + 1 < 18:
            rd(ks + 1)
        a.wait_lg(('w', ks))
        b = WF + 8 * (ks % 2)
        a.e(f'v_mfma_f32_16x16x32_bf16 {vr(D, 4)}, {vr(b, 4)}, {vr(XF + 4 * ks, 4)}, {"0" if ks == 0 else vr(D, 4)}')
        a.e(f'v_mfma_f32_16x16x32_bf16 {vr(D + 4, 4)}, {vr(b + 4, 4)}, {vr(XF + 4 * ks, 4)}, {"0" if ks == 0 else vr(D + 4, 4)}')
    K32, G, U0, U1, U2, U3 = R0, R0 + 1, R0 + 2, R0 + 3, R0 + 4, R0 + 5
    P = WF
    a.e('s_lshr_b32 s44, s23, 1')
    a.e(f's_mul_i32 s44, s44, {KV_TILE}')
    a.e(f's_add_u32 s44, s44, {KV_OFF}')
    a.e('s_and_b32 s45, s23, 1')
    a.e('s_lshl_b32 s45, s45, 4')
    a.e(f'v_and_b32 v{K32}, 15, v1')
    a.e(f'v_add_u32 v{K32}, s45, v{K32}')
    a.e(f'v_lshrrev_b32 v{G}, 4, v1')
    a.e(f'v_cvt_pk_bf16_f32 v{P}, v{D}, v{D + 1}')
    a.e(f'v_cvt_pk_bf16_f32 v{P + 1}, v{D + 2}, v{D + 3}')
    a.e(f'v_cvt_pk_bf16_f32 v{P + 2}, v{D + 4}, v{D + 5}')
    lv = a.newlabel('KV_V')
    le = a.newlabel('KV_E')
    a.e(f's_cmp_lg_u32 s{which_s}, 0')
    a.e(f's_cbranch_scc1 {lv}')
    a.e(f'v_lshrrev_b32 v{U0}, 1, v{G}')
    a.e(f'v_lshl_add_u32 v{U0}, v{U0}, 5, v{K32}')
    a.e(f'v_lshlrev_b32 v{U0}, 4, v{U0}')
    a.e(f'v_and_b32 v{U1}, 1, v{G}')
    a.e(f'v_lshl_add_u32 v{U0}, v{U1}, 3, v{U0}')
    a.e(f'buffer_store_dwordx2 {vr(P, 2)}, v{U0}, s[12:15], s44 offen {SC}')
    a.e(f'v_lshlrev_b32 v{U1}, 2, v{K32}')
    a.e('s_mov_b64 exec, 0xffff')
    a.e(f'buffer_store_dword v{P + 2}, v{U1}, s[12:15], s44 offen offset:1024 {SC}')
    a.e('s_mov_b64 exec, -1')
    a.e(f's_branch {le}')
    a.label(lv)
    a.e(f'v_lshrrev_b32 v{U0}, 2, v{K32}')
    a.e(f'v_mul_u32_u24 v{U0}, 168, v{U0}')
    a.e(f'v_and_b32 v{U1}, 3, v{K32}')
    a.e(f'v_lshl_add_u32 v{U2}, v{U1}, 5, v{U0}')
    a.e(f'v_lshl_add_u32 v{U2}, v{G}, 3, v{U2}')
    a.e(f'buffer_store_dwordx2 {vr(P, 2)}, v{U2}, s[12:15], s44 offen offset:1152 {SC}')
    a.e(f'v_lshl_add_u32 v{U2}, v{U1}, 3, v{U0}')
    a.e(f'v_add_u32 v{U3}, 32, v{U0}')
    a.e(f'v_mov_b32 v{P + 3}, 0x3f80')
    a.e(f'v_cmp_eq_u32 vcc, 0, v{G}')
    a.e(f'v_cndmask_b32 v{U2}, v{U3}, v{U2}, vcc')
    a.e(f'v_cndmask_b32 v{P + 2}, 0, v{P + 2}, vcc')
    a.e(f'v_cndmask_b32 v{P + 3}, 0, v{P + 3}, vcc')
    a.e('s_mov_b32 exec_hi, 0')
    a.e(f'buffer_store_dwordx2 {vr(P + 2, 2)}, v{U2}, s[12:15], s44 offen offset:{1152 + 128} {SC}')
    a.e('s_mov_b64 exec, -1')
    a.label(le)
    a.e(f's_lshl_b32 s44, s{which_s}, 7')
    a.e('s_add_u32 s44, s44, s23')
    a.e('s_lshl_b32 s44, s44, 2')
    a.e(f's_add_u32 s44, s44, {FKV_OFF}')
    a.wait_vm0()
    set_flag(a, 44, R0)


def gate_issue(a, LB):
    a.e('v_lshlrev_b32 v2, 4, v1')
    a.e('s_lshl_b32 s45, s20, 11')
    a.e(f's_add_u32 m0, s45, {LB}')
    a.e('buffer_load_dwordx4 v2, s[40:43], 0 offen lds')
    a.e('buffer_load_dwordx4 v2, s[40:43], 0 offen offset:1024 lds')


def gate_compute(a, XF, LB, R0, vt):
    a.e('s_lshl_b32 s45, s20, 11')
    a.e(f's_add_u32 s45, s45, {LB}')
    a.e(f'v_and_b32 v{R0}, 48, v1')
    a.e(f'v_add_u32 v{R0}, s45, v{R0}')
    D = R0 + 4
    WF = R0 + 8
    for k0 in range(0, 18, 6):
        for i in range(6):
            a.lg(f'ds_read_b128 {vr(WF + 4 * i, 4)}, v{R0} offset:{64 * (k0 + i)}', 'g')
        a.wait_lg0()
        for i in range(6):
            ks = k0 + i
            a.e(f'v_mfma_f32_16x16x32_bf16 {vr(D, 4)}, {vr(WF + 4 * i, 4)}, {vr(XF + 4 * ks, 4)}, {"0" if ks == 0 else vr(D, 4)}')
    a.e(f'v_mul_f32 v{D}, {hx(-1.4426950408889634)}, v{D}')
    a.e(f'v_exp_f32 v{D}, v{D}')
    a.e(f'v_add_f32 v{D}, 1.0, v{D}')
    a.e(f'v_rcp_f32 v{D}, v{D}')
    a.e(f'v_mov_b32 v{D + 1}, s62')
    a.e(f'v_lshlrev_b32 v{R0}, 3, v{vt}')
    a.e(f's_mov_b32 s44, {GATE_OFF}')
    a.e('s_mov_b64 exec, 0xffff')
    a.e(f'buffer_store_dwordx2 {vr(D, 2)}, v{R0}, s[12:15], s44 offen {SC}')
    a.e('s_mov_b64 exec, -1')


def retile_issue(a, sks, LB):
    a.e(f's_cmp_lt_u32 s{sks}, 18')
    a.e('s_cselect_b32 s40, s36, s28')
    a.e('s_cselect_b32 s41, s37, s29')
    a.e(f's_mov_b32 s42, {2304 * 1152}')
    a.e(f's_cselect_b32 s42, {576 * 1152}, s42')
    a.e('s_mov_b32 s43, 0x00020000')
    a.e(f's_sub_u32 s44, s{sks}, 18')
    a.e('s_lshl_b32 s44, s44, 5')
    a.e('s_lshl_b32 s45, s20, 2')
    a.e('s_add_u32 s44, s44, s45')
    a.e('s_mov_b32 s46, 16')
    a.e('s_mov_b32 s47, 2')
    a.e(f's_sub_u32 s48, s{sks}, 16')
    a.e('s_lshl_b32 s48, s48, 4')
    a.e('s_add_u32 s48, s48, s45')
    a.e('s_mul_i32 s48, s48, 18')
    a.e('s_add_u32 s48, s48, 16')
    a.e(f's_cmp_lt_u32 s{sks}, 18')
    a.e('s_cselect_b32 s44, s48, s44')
    a.e('s_cselect_b32 s46, 36, s46')
    a.e('s_cselect_b32 s47, 18, s47')
    a.e(f's_lshl_b32 s48, s{sks}, 1')
    a.e('s_and_b32 s49, s20, 1')
    a.e('s_add_u32 s48, s48, s49')
    a.e('s_mul_i32 s48, s48, 18')
    a.e('s_lshr_b32 s49, s20, 1')
    a.e('s_lshl_b32 s49, s49, 2')
    a.e('s_add_u32 s48, s48, s49')
    a.e(f's_cmp_lt_u32 s{sks}, 16')
    a.e('s_cselect_b32 s44, s48, s44')
    a.e('s_cselect_b32 s46, 8, s46')
    a.e('s_cselect_b32 s47, 2, s47')
    a.e('s_mul_i32 s44, s44, 1152')
    a.e('s_mul_i32 s46, s46, 1152')
    a.e('s_mul_i32 s47, s47, 1152')
    a.e('v_lshlrev_b32 v2, 4, v1')
    a.e('s_mul_i32 s45, s20, %d' % (8 * 1152))
    for j in range(8):
        a.e(f's_add_u32 s{64 + j}, s44, {1152 * (j & 1)}')
        if j & 2:
            a.e(f's_add_u32 s{64 + j}, s{64 + j}, s47')
        if j & 4:
            a.e(f's_add_u32 s{64 + j}, s{64 + j}, s46')
        a.e(f's_add_u32 m0, s45, {LB + 1152 * j}')
        a.e(f'buffer_load_dwordx4 v2, s[40:43], s{64 + j} offen lds')
    a.e('s_mov_b64 exec, 0xff')
    for j in range(8):
        a.e(f's_add_u32 m0, s45, {LB + 1152 * j}')
        a.e(f'buffer_load_dwordx4 v2, s[40:43], s{64 + j} offen offset:1024 lds')
    a.e('s_mov_b64 exec, -1')


def retile_compute(a, sks, LB, R0):
    A0, A1, T, O0, O1 = R0, R0 + 1, R0 + 2, R0 + 3, R0 + 4
    F = R0 + 8
    a.e(f'v_lshrrev_b32 v{A0}, 4, v1')
    a.e(f'v_lshlrev_b32 v{A0}, 3, v{A0}')
    a.e(f'v_and_b32 v{T}, 7, v1')
    a.e(f'v_add_u32 v{O1}, v{A0}, v{T}')
    a.e(f'v_lshlrev_b32 v{O1}, 4, v{O1}')
    a.e(f'v_add_u32 v{O1}, 4096, v{O1}')
    a.e(f'v_bfe_u32 v{A1}, v1, 2, 2')
    a.e(f'v_add_u32 v{A0}, v{A0}, v{A1}')
    a.e(f'v_mul_u32_u24 v{A0}, 1152, v{A0}')
    a.e('s_mul_i32 s45, s20, 288')
    a.e(f's_add_u32 s45, s45, {LB}')
    a.e(f'v_add_u32 v{A0}, s45, v{A0}')
    a.e(f'v_and_b32 v{T}, 3, v1')
    a.e(f'v_lshl_add_u32 v{A1}, v{T}, 3, v{A0}')
    a.e(f'v_lshl_add_u32 v{A0}, v{T}, 4, v{A0}')
    a.e(f'v_lshlrev_b32 v{O0}, 4, v1')
    for n2 in range(2):
        for nt in range(5):
            b = F + 4 * (5 * n2 + nt)
            for j in range(2):
                if nt < 4:
                    off = 144 * n2 + 64 * (nt // 2) + 8 * (nt % 2) + 4608 * j
                    a.lg(f'ds_read_b64_tr_b16 {vr(b + 2 * j, 2)}, v{A0} offset:{off}', 'r')
                else:
                    a.lg(f'ds_read_b64_tr_b16 {vr(b + 2 * j, 2)}, v{A1} offset:{144 * n2 + 128 + 4608 * j}', 'r')
    a.e('s_mul_i32 s44, s20, 180')
    a.e(f's_add_u32 s44, s44, s{sks}')
    a.e('s_mul_i32 s44, s44, 4608')
    a.e(f's_add_u32 s44, s44, {W3_OFF}')
    a.e(f's_add_u32 s45, s44, {90 * 4608}')
    a.wait_lg0()
    for n2 in range(2):
        for nt in range(4):
            a.e(f'buffer_store_dwordx4 {vr(F + 4 * (5 * n2 + nt), 4)}, v{O0}, s[12:15], s{44 + n2} offen offset:{1024 * nt} {SC}')
    a.e('s_mov_b32 exec_lo, 0x00ff00ff')
    a.e('s_mov_b32 exec_hi, 0x00ff00ff')
    for n2 in range(2):
        a.e(f'buffer_store_dwordx4 {vr(F + 4 * (5 * n2 + 4), 4)}, v{O1}, s[12:15], s{44 + n2} offen {SC}')
    a.e('s_mov_b64 exec, -1')
    a.e(f's_lshl_b32 s44, s{sks}, 2')
    a.e('s_add_u32 s44, s44, s20')
    a.e('s_lshl_b32 s44, s44, 2')
    a.e(f's_add_u32 s44, s44, {FW3_OFF}')
    a.wait_vm0()
    set_flag(a, 44, R0)


QSCALE = 18 ** -0.5 * 1.4426950408889634
KVBUF = 40960
M_OFFSET = 64.0


class ATT:
    SB = 16
    OB = 48
    QF = 80
    KF = 96
    VF = 112
    PF = 128
    XF = 136
    WF = 208

    def __init__(self, a):
        self.a = a

    def setup(self, sid):
        a = self.a
        a.e(f's_load_dwordx4 s[4:7], s[0:1], {A_X}')
        a.e(f's_load_dwordx4 s[16:19], s[0:1], {A_DBG}')
        a.e(f's_load_dwordx4 s[32:35], s[0:1], {A_WK}')
        a.e(f's_load_dwordx2 s[36:37], s[0:1], {A_WO}')
        a.e(f's_load_dwordx4 s[28:31], s[0:1], {A_WOUT}')
        a.e(f's_load_dwordx4 s[52:55], s[0:1], {A_WIN}')
        a.e('v_lshrrev_b32 v1, 6, v0')
        a.e('v_readfirstlane_b32 s20, v1')
        a.e('v_and_b32 v1, 63, v0')
        a.e(f's_and_b32 s24, s{sid}, 3')
        a.e(f's_lshr_b32 s25, s{sid}, 3')
        a.e('s_lshl_b32 s21, s24, 3')
        a.e('s_and_b32 s23, s25, 7')
        a.e('s_add_u32 s21, s21, s23')
        a.e(f's_and_b32 s22, s{sid}, 4')
        a.e('s_lshr_b32 s23, s25, 3')
        a.e('s_add_u32 s22, s22, s23')
        a.e('s_lshl_b32 s23, s21, 2')
        a.e('s_add_u32 s23, s23, s20')
        a.e('s_lshr_b32 s44, s23, 1')
        a.e('s_lshl_b32 s44, s44, 5')
        a.e('s_and_b32 s45, s23, 1')
        a.e('s_lshl_b32 s45, s45, 2')
        a.e('s_add_u32 s44, s44, s45')
        a.e('v_lshrrev_b32 v8, 5, v1')
        a.e('v_lshlrev_b32 v8, 3, v8')
        a.e('v_bfe_u32 v9, v1, 3, 2')
        a.e('v_add3_u32 v8, v8, v9, s44')
        a.e('v_mul_u32_u24 v8, 1152, v8')
        a.e('v_lshrrev_b32 v9, 4, v1')
        a.e('v_and_b32 v10, 7, v1')
        a.e('v_xor_b32 v9, v9, v10')
        a.e('v_lshlrev_b32 v9, 4, v9')
        a.e('v_xor_b32 v10, 64, v9')
        a.e('v_add_u32 v10, v10, v8')
        a.e('v_add_u32 v8, v9, v8')
        a.e(f'v_add_u32 v9, {16 * 1152 - 1024}, v10')
        a.e('v_bfe_u32 v3, v1, 2, 2')
        a.e('v_lshlrev_b32 v3, 3, v3')
        a.e('v_and_b32 v10, 3, v1')
        a.e('v_add3_u32 v3, v3, v10, s44')
        a.e('s_mul_i32 s26, s20, 10240')
        a.e('s_waitcnt lgkmcnt(0)')
        a.e('s_mov_b32 s8, s6')
        a.e('s_mov_b32 s9, s7')
        srd(a, 8, 576 * 1152)
        srd(a, 4, 2359296)
        a.e('s_mov_b32 s12, s18')
        a.e('s_mov_b32 s13, s19')
        srd(a, 12, WS_SIZE)

    def issue_x(self, segs):
        a = self.a
        for i, sg in enumerate(segs):
            a.e(f's_add_u32 m0, s26, {2048 * i}')
            a.e(f's_movk_i32 s44, {128 * sg}')
            a.vm('buffer_load_dwordx4 v8, s[4:7], s44 offen lds', 'x')
            a.vm('buffer_load_dwordx4 v9, s[4:7], s44 offen offset:1024 lds', 'x')

    def read_x(self, segs):
        a = self.a
        for i, sg in enumerate(segs):
            for jj in range(2):
                a.lg(f'ds_read_b128 {vr(self.XF + 4 * (2 * sg + jj), 4)}, v{10 + jj} offset:{2048 * i}', 'xr')

    def roles(self, fk, fg, fr):
        a = self.a
        lg = a.newlabel('RG')
        lr = a.newlabel('RR')
        le = a.newlabel('RE')
        a.e('s_cmp_ge_u32 s27, 2')
        a.e(f's_cbranch_scc1 {lg}')
        if fk:
            fk()
        a.e(f's_branch {le}')
        a.label(lg)
        a.e('s_cmp_lg_u32 s27, 2')
        a.e(f's_cbranch_scc1 {lr}')
        if fg:
            fg()
        a.e(f's_branch {le}')
        a.label(lr)
        a.e('s_cmp_lg_u32 s27, 3')
        a.e(f's_cbranch_scc1 {le}')
        if fr:
            fr()
        a.label(le)

    def front(self):
        a = self.a
        self.issue_x(range(5))
        a.e('s_mov_b32 s27, 4')
        a.e('s_sub_u32 s38, s22, 2')
        a.e('s_cmp_eq_u32 s22, 5')
        a.e('s_cselect_b32 s38, 2, s38')
        a.e('s_cmp_eq_u32 s22, 4')
        a.e('s_cselect_b32 s38, 7, s38')
        a.e('s_and_b32 s38, s38, 7')
        a.e('s_lshl_b32 s38, s38, 5')
        a.e('s_add_u32 s38, s38, s21')
        a.e('s_cmp_lt_u32 s38, 90')
        a.e('s_cselect_b32 s27, 3, s27')
        a.e('s_cmp_eq_u32 s22, 0')
        a.e('s_cselect_b32 s27, 0, s27')
        a.e('s_cmp_eq_u32 s22, 4')
        a.e('s_cselect_b32 s27, 1, s27')
        a.e('s_cmp_eq_u32 s22, 1')
        a.e('s_cselect_b32 s27, 2, s27')

        def fk():
            a.e('s_cmp_eq_u32 s27, 0')
            a.e('s_cselect_b32 s40, s32, s34')
            a.e('s_cselect_b32 s41, s33, s35')
            srd(a, 40, 576 * 36)
            kv_issue(a, KVBUF)

        def fg():
            a.e('s_mov_b32 s40, s30')
            a.e('s_mov_b32 s41, s31')
            srd(a, 40, 1152)
            gate_issue(a, KVBUF)
        self.roles(fk, fg, lambda: retile_issue(a, 38, KVBUF))
        a.e('v_mov_b32 v12, 0')
        a.e(f'global_load_dword v13, v12, s[16:17] {SC}')
        a.e('s_and_b32 s44, s21, 7')
        a.e('s_lshl_b32 s44, s44, 2')
        a.e('s_add_u32 s44, s44, s20')
        a.e('s_mul_i32 s44, s44, %d' % (18 * 1152))
        a.e('s_mul_i32 s45, s22, 144')
        a.e('s_add_u32 s44, s44, s45')
        a.e('v_lshrrev_b32 v2, 1, v1')
        a.e('v_min_u32 v2, 17, v2')
        a.e('v_mul_u32_u24 v2, 1152, v2')
        a.e('v_and_b32 v4, 1, v1')
        a.e('v_mul_u32_u24 v4, 140, v4')
        a.e('v_add_u32 v2, v2, v4')
        a.e('buffer_load_dword v14, v2, s[8:11], s44 offen')
        a.e('v_and_b32 v10, 15, v1')
        a.e('v_bfe_u32 v11, v1, 1, 3')
        a.e('v_lshrrev_b32 v2, 4, v1')
        a.e('v_xor_b32 v11, v11, v2')
        a.e('v_lshlrev_b32 v10, 7, v10')
        a.e('v_lshl_add_u32 v10, v11, 4, v10')
        a.e('v_xor_b32 v11, 64, v10')
        a.e('v_add_u32 v10, s26, v10')
        a.e('v_add_u32 v11, s26, v11')
        a.wait_vm0()
        stamp(a, 4)
        self.read_x(range(5))
        get_nonce(a, 12, 13)
        a.wait_lg0()
        self.issue_x(range(5, 9))
        a.e('s_barrier')
        self.roles(None, None, lambda: retile_compute(a, 38, KVBUF, 16))
        a.wait_vm0()
        self.read_x(range(5, 9))
        a.wait_lg0()

    def wq_addr(self):
        a = self.a
        a.e('s_mul_i32 s44, s22, 144')
        for i in range(3):
            a.e(f'v_add_u32 v10, {64 * i}, v1')
            a.e('v_mul_u32_u24 v11, 43691, v10')
            a.e('v_lshrrev_b32 v11, 19, v11')
            a.e('v_mul_u32_u24 v12, 12, v11')
            a.e('v_sub_u32 v10, v10, v12')
            a.e('v_lshrrev_b32 v12, 2, v10')
            a.e('v_and_b32 v13, 1, v10')
            a.e('v_lshl_add_u32 v13, v12, 1, v13')
            a.e('v_mul_u32_u24 v13, 36, v13')
            a.e('v_bfe_u32 v14, v10, 1, 1')
            a.e('v_lshl_add_u32 v13, v14, 4, v13')
            a.e('v_and_b32 v14, 3, v10')
            a.e('v_mul_u32_u24 v14, 36, v14')
            a.e('v_add_u32 v14, 32, v14')
            a.e('v_cmp_eq_u32 vcc, 2, v12')
            a.e('v_cndmask_b32 v13, v13, v14, vcc')
            a.e('v_mul_u32_u24 v11, 1152, v11')
            a.e(f'v_add3_u32 v{5 + i}, v11, v13, s44')
            if i:
                a.e(f'v_subrev_u32 v{5 + i}, {1024 * i}, v{5 + i}')
        a.e('v_lshrrev_b32 v10, 4, v1')
        a.e('v_lshlrev_b32 v10, 3, v10')
        a.e('v_bfe_u32 v11, v1, 2, 2')
        a.e('v_add_u32 v10, v10, v11')
        a.e('v_mul_u32_u24 v10, 192, v10')
        a.e('v_and_b32 v11, 3, v1')
        a.e('v_lshl_add_u32 v8, v11, 4, v10')
        a.e(f'v_add_u32 v9, {KVBUF}, v8')

    def issue_wq(self, c):
        a = self.a
        a.e('s_mul_i32 s44, s20, %d' % (48 * 1152))
        a.e(f's_add_u32 s44, s44, {c * 192 * 1152}')
        a.e('s_mul_i32 s45, s20, 9216')
        for g in range(3):
            a.e(f's_add_u32 m0, s45, {(c % 2) * KVBUF + 3072 * g}')
            for i in range(3):
                a.vm(f'buffer_load_dwordx4 v{5 + i}, s[8:11], s44 offen offset:{1024 * i} lds', ('wq', c))
            a.e(f's_add_u32 s44, s44, {16 * 1152}')

    def issue_kv(self, buf_s=None, buf=None, flags=''):
        a = self.a
        for g in range(3):
            if buf_s is not None:
                a.e(f's_add_u32 m0, s{buf_s}, {4096 * g}')
            else:
                a.e(f's_add_u32 m0, s31, {buf * KVBUF + 4096 * g}')
            for i in range(4 if g < 2 else 2):
                a.vm(f'buffer_load_dwordx4 v15, s[12:15], s30 offen offset:{1024 * i} {flags} lds', 'kv')
            a.e('s_add_u32 s30, s30, 4096')
        a.e(f's_add_u32 s30, s30, {16 * KV_TILE - 3 * 4096}')

    def kv_ready(self):
        a = self.a
        a.e(f's_mov_b32 s44, {FKV_OFF}')
        a.e('v_lshlrev_b32 v2, 4, v1')
        poll(a, lambda: a.e(f'buffer_load_dwordx4 {vr(self.OB, 4)}, v2, s[12:15], s44 offen {SC}'), [self.OB + i for i in range(4)], self.OB + 4)

    def q_phase(self):
        a = self.a
        D = self.SB
        self.wq_addr()
        a.e('s_barrier')
        self.issue_wq(0)
        self.roles(lambda: kv_compute(a, 27, self.XF, KVBUF, 16), lambda: gate_compute(a, self.XF, KVBUF, 16, 3), None)
        a.vmq = [('wq', 0)] * 9 + [None]
        a.lgq = []
        stamp(a, 5)
        a.e('s_barrier')
        self.issue_wq(1)
        a.vmq = [('wq', 0)] * 9 + [('wq', 1)] * 9
        a.e('s_mov_b32 s31, s26')
        a.e('v_lshlrev_b32 v15, 4, v1')
        a.e('v_add_u32 v15, s31, v15')
        a.e(f's_mov_b32 s30, {KV_OFF}')

        def rd(ks):
            c, k = ks // 6, ks % 6
            b = self.WF + 20 * (ks % 2)
            va = 8 + c % 2
            for t in range(5):
                for j in range(2):
                    off = 6144 * k + 768 * j + (64 * (t // 2) + 8 * (t % 2) if t < 4 else 128)
                    a.lg(f'ds_read_b64_tr_b16 {vr(b + 4 * t + 2 * j, 2)}, v{va} offset:{off}', ('w', ks))
        for c in range(3):
            a.wait_vm(('wq', c))
            a.e('s_barrier')
            if c == 1:
                self.issue_wq(2)
            if c == 2:
                pass
            rd(6 * c)
            for k in range(6):
                ks = 6 * c + k
                if k < 5:
                    rd(ks + 1)
                a.wait_lg(('w', ks))
                b = self.WF + 20 * (ks % 2)
                for t in range(5):
                    d = vr(D + 4 * t, 4)
                    a.e(f'v_mfma_f32_16x16x32_bf16 {d}, {vr(b + 4 * t, 4)}, {vr(self.XF + 4 * ks, 4)}, {"0" if ks == 0 else d}')
        stamp(a, 6)
        self.kv_ready()
        self.issue_kv(buf=1, flags=SCL)
        a.e('s_barrier')
        self.issue_kv(buf=0, flags=SCL)
        a.e('s_lshl_b32 s44, s24, 5')
        a.e('s_add_u32 s44, s44, s25')
        a.e('s_lshl_b32 s44, s44, 2')
        a.e('s_add_u32 s44, s44, s20')
        a.e('s_lshl_b32 s44, s44, 14')
        a.e('v_lshlrev_b32 v2, 7, v1')
        a.e('v_add_u32 v2, s44, v2')
        a.vm('global_load_dword v14, v2, s[54:55]', 'pf')
        a.e('v_add_u32 v2, 8192, v2')
        a.vm('global_load_dword v14, v2, s[54:55]', 'pf')
        a.e(f's_mov_b32 s44, {hx(QSCALE)}')
        a.e(f's_mov_b32 s45, {hx(QSCALE)}')
        for i in range(9):
            a.e(f'v_pk_mul_f32 {vr(D + 2 * i, 2)}, {vr(D + 2 * i, 2)}, s[44:45]')
        for p in range(2):
            for i in range(4):
                a.e(f'v_cvt_pk_bf16_f32 v{self.QF + 8 * p + i}, v{D + 8 * p + 2 * i}, v{D + 8 * p + 2 * i + 1}')
        a.e(f'v_cvt_pk_bf16_f32 v2, v{D + 16}, v{D + 17}')
        a.e('v_cmp_gt_u32 vcc, 32, v1')
        a.e(f'v_cndmask_b32 v{self.QF + 4}, 0, v2, vcc')
        a.e(f'v_cndmask_b32 v{self.QF + 12}, v2, 0, vcc')
        for p in range(2):
            for i in (5, 6, 7):
                a.e(f'v_mov_b32 v{self.QF + 8 * p + i}, 0')
            a.e(f'v_mov_b32 v{self.KF + 8 * p + 5}, 0x3f803f80')
            a.e(f'v_mov_b32 v{self.KF + 8 * p + 6}, 0x3f80')
            a.e(f'v_mov_b32 v{self.KF + 8 * p + 7}, 0')
        a.e('v_lshlrev_b32 v10, 4, v1')
        a.e('v_and_b32 v11, 31, v1')
        a.e('v_lshlrev_b32 v11, 2, v11')
        a.e('v_add_u32 v11, 1024, v11')
        a.e('v_bfe_u32 v2, v1, 2, 2')
        a.e('v_and_b32 v4, 3, v1')
        a.e('v_lshlrev_b32 v12, 5, v2')
        a.e('v_lshl_add_u32 v12, v4, 3, v12')
        a.e('v_lshlrev_b32 v2, 3, v2')
        a.e('v_add_u32 v2, 128, v2')
        a.e('v_mov_b32 v13, 160')
        a.e('v_cmp_eq_u32 vcc, 0, v4')
        a.e('v_cndmask_b32 v2, v13, v2, vcc')
        a.e('v_and_b32 v4, 16, v1')
        a.e('v_cmp_eq_u32 vcc, 0, v4')
        a.e('v_cndmask_b32 v12, v2, v12, vcc')
        a.e('v_lshrrev_b32 v2, 5, v1')
        a.e('v_mul_u32_u24 v2, 168, v2')
        a.e('v_add_u32 v12, v12, v2')
        a.e('v_add_u32 v12, 1152, v12')

    def readK(self, j):
        a = self.a
        b = self.KF + 8 * (j % 2)
        off = (j % 16) * KV_TILE
        a.lg(f'ds_read_b128 {vr(b, 4)}, v5 offset:{off}', ('K', j))
        a.lg(f'ds_read_b32 v{b + 4}, v6 offset:{off}', ('K', j))

    def readV(self, j, m):
        a = self.a
        b = self.VF + 8 * (j % 2)
        off = (j % 16) * KV_TILE
        for jj in range(2):
            a.lg(f'ds_read_b64_tr_b16 {vr(b + 4 * m + 2 * jj, 2)}, v7 offset:{off + (4 * m + 2 * jj) * 168}', ('V', j))

    def S(self, n, part):
        j, qt = n // 2, n % 2
        d = vr(self.SB + 16 * (n % 2), 16)
        k = self.KF + 8 * (j % 2) + 4 * part
        q = self.QF + 8 * qt + 4 * part
        self.a.e(f'v_mfma_f32_32x32x16_bf16 {d}, {vr(k, 4)}, {vr(q, 4)}, {"0" if part == 0 else d}')

    def PV(self, n, m):
        j, qt = n // 2, n % 2
        d = vr(self.OB + 16 * qt, 16)
        self.a.e(f'v_mfma_f32_32x32x16_bf16 {d}, {vr(self.VF + 8 * (j % 2) + 4 * m, 4)}, {vr(self.PF + 4 * m, 4)}, {d}')

    def set_m(self, qt, vm, add):
        a = self.a
        q = self.QF + 8 * qt
        a.e(f'v_sub_f32 v2, {hx(-add)}, v{vm}')
        a.e('v_and_b32 v4, 0xffff0000, v2')
        a.e('v_sub_f32 v2, v2, v4')
        a.e('v_and_b32 v13, 0xffff0000, v2')
        a.e('v_sub_f32 v2, v2, v13')
        a.e('v_lshrrev_b32 v4, 16, v4')
        a.e('v_or_b32 v4, v4, v13')
        a.e('v_lshrrev_b32 v2, 16, v2')
        a.e('v_cmp_gt_u32 vcc, 32, v1')
        if qt == 0:
            a.e(f'v_cndmask_b32 v{q + 5}, 0, v4, vcc')
            a.e(f'v_cndmask_b32 v{q + 6}, 0, v2, vcc')
        else:
            a.e(f'v_cndmask_b32 v{q + 5}, v4, 0, vcc')
            a.e(f'v_cndmask_b32 v{q + 6}, v2, 0, vcc')

    def max16(self, b, dst, first):
        a = self.a
        if first:
            a.e(f'v_max3_f32 v{dst}, v{b}, v{b + 1}, v{b + 2}')
            a.e(f'v_max_f32 v{dst}, v{dst}, v{b + 3}')
            r = range(4, 16, 2)
        else:
            r = range(0, 16, 2)
        for i in r:
            a.e(f'v_max3_f32 v{dst}, v{b + i}, v{b + i + 1}, v{dst}')

    def halves_max(self, r):
        a = self.a
        a.e(f'v_mov_b32 v2, v{r}')
        a.e(f'v_permlane32_swap_b32 v{r}, v2')
        a.e(f'v_max_f32 v{r}, v{r}, v2')

    def main(self, flags=''):
        a = self.a
        L_PASS = a.newlabel('ATT_PASS')
        L_LOOP = a.newlabel('ATT_LOOP')
        L_NOKV = a.newlabel('ATT_NOKV')
        L_FIN = a.newlabel('ATT_FIN')
        a.e('s_mov_b32 s33, 0')
        a.e('v_lshlrev_b32 v3, 3, v3')
        for i in range(3):
            a.e(f'v_add_u32 v{5 + i}, {KVBUF}, v{10 + i}')
        a.e('s_waitcnt vmcnt(12)')
        a.vmq = a.vmq[-12:]
        a.e('s_barrier')
        self.readK(0)
        a.wait_lg0()
        for qt in range(2):
            self.S(qt, 0)
            self.S(qt, 1)
        for qt in range(2):
            self.max16(self.SB + 16 * qt, 8 + qt, True)
            self.halves_max(8 + qt)
            self.set_m(qt, 8 + qt, M_OFFSET)
        a.label(L_PASS)
        self.readK(0)
        self.readK(1)
        self.readV(0, 0)
        self.readV(0, 1)
        for i in range(32):
            a.e(f'v_mov_b32 v{self.OB + i}, 0')
        for i in range(4):
            a.e(f'v_mov_b32 v{self.PF + 4 + i}, 0')
            a.e(f'v_mov_b32 v{self.VF + 12 + i}, 0')
        a.e('s_mov_b32 s34, 0')
        a.e(f's_add_u32 s35, s31, {KVBUF}')
        a.e(f's_mov_b32 s37, {-KVBUF & 0xffffffff}')
        a.wait_lg0()
        self.S(0, 0)
        self.S(0, 1)
        a.e('s_nop 7')
        a.label(L_LOOP)
        a.wait_lg0()
        for n in range(32):
            j, qt = n // 2, n % 2
            sb = self.SB + 16 * (n % 2)
            if n == 29:
                a.e('s_waitcnt vmcnt(0) lgkmcnt(0)')
                a.vmq = []
                a.lgq = []
                a.e('s_barrier')
                for i in range(3):
                    a.e(f'v_add_u32 v{5 + i}, s37, v{5 + i}')
                a.e('s_cmp_ge_u32 s34, 2')
                a.e(f's_cbranch_scc1 {L_NOKV}')
                self.issue_kv(buf_s=35, flags=flags)
                a.label(L_NOKV)
                self.gate_load()
                a.e('s_add_u32 s35, s35, s37')
                a.e('s_sub_u32 s37, 0, s37')
            if qt == 1:
                a.wait_lg(('K', j + 1))
            self.S(n + 1, 0)
            for i in range(0, 4):
                a.e(f'v_exp_f32 v{sb + i}, v{sb + i}')
            self.PV(n - 1, 1)
            if qt == 0:
                self.readV(j + 1, 0)
            else:
                self.readK(j + 2)
            for i in range(4, 8):
                a.e(f'v_exp_f32 v{sb + i}, v{sb + i}')
            self.S(n + 1, 1)
            for i in range(4):
                a.e(f'v_cvt_pk_bf16_f32 v{self.PF + i}, v{sb + 2 * i}, v{sb + 2 * i + 1}')
            for i in range(8, 12):
                a.e(f'v_exp_f32 v{sb + i}, v{sb + i}')
            if qt == 0:
                a.wait_lg(('V', j))
            self.PV(n, 0)
            if qt == 0:
                self.readV(j + 1, 1)
            for i in range(12, 16):
                a.e(f'v_exp_f32 v{sb + i}, v{sb + i}')
            for i in range(4, 8):
                a.e(f'v_cvt_pk_bf16_f32 v{self.PF + i}, v{sb + 2 * i}, v{sb + 2 * i + 1}')
        a.e('s_add_u32 s34, s34, 1')
        a.e('s_cmp_lt_u32 s34, 4')
        a.e(f's_cbranch_scc1 {L_LOOP}')
        self.PV(31, 1)
        a.wait_all()
        a.e('s_cmp_lg_u32 s33, 0')
        a.e(f's_cbranch_scc1 {L_FIN}')
        a.e(f'v_max3_f32 v2, |v{self.OB}|, |v{self.OB + 1}|, |v{self.OB + 2}|')
        regs = [self.OB + i for i in range(3, 11)] + [self.OB + 16 + i for i in range(11)] + [self.OB + 16]
        for i in range(0, len(regs), 2):
            a.e(f'v_max3_f32 v2, |v{regs[i]}|, |v{regs[i + 1]}|, v2')
        a.e(f's_mov_b32 s44, {hx(2.0 ** 110)}')
        a.e('v_cmp_nlt_f32 vcc, v2, s44') if False else a.e('v_cmp_ngt_f32 vcc, s44, v2')
        a.e(f'v_add_f32 v4, v{self.OB + 10}, v{self.OB + 26}')
        a.e('v_cmp_u_f32 s[46:47], v4, v4')
        a.e('s_or_b64 vcc, vcc, s[46:47]')
        a.e('s_cmp_lg_u64 vcc, 0')
        a.e('s_cselect_b32 s44, 1, 0')
        a.e('v_mov_b32 v2, s44')
        a.e('s_lshl_b32 s45, s20, 2')
        a.e(f's_add_u32 s45, s45, {16 * KV_TILE}')
        a.e('v_mov_b32 v4, s45')
        a.e('ds_write_b32 v4, v2')
        a.e(f'v_mov_b32 v4, {16 * KV_TILE}')
        a.e('s_waitcnt lgkmcnt(0)')
        a.e('s_barrier')
        a.e(f'ds_read_b128 {vr(self.PF, 4)}, v4')
        a.e('s_waitcnt lgkmcnt(0)')
        a.e(f'v_or3_b32 v2, v{self.PF}, v{self.PF + 1}, v{self.PF + 2}')
        a.e(f'v_or_b32 v2, v2, v{self.PF + 3}')
        a.e('v_readfirstlane_b32 s44, v2')
        a.e('s_cmp_eq_u32 s44, 0')
        a.e(f's_cbranch_scc1 {L_FIN}')
        L_MC = a.newlabel('ATT_MC')
        L_MT = a.newlabel('ATT_MT')
        a.e('s_mov_b32 s33, 1')
        for p in range(2):
            a.e(f'v_mov_b32 v{self.QF + 8 * p + 5}, 0')
            a.e(f'v_mov_b32 v{self.QF + 8 * p + 6}, 0')
            a.e(f'v_mov_b32 v{8 + p}, 0xff7fffff')
        a.e(f's_mov_b32 s30, {KV_OFF}')
        a.e('s_mov_b32 s34, 0')
        a.label(L_MC)
        a.e('s_barrier')
        self.issue_kv(buf=0, flags=flags)
        a.e('v_mov_b32 v5, v10')
        a.e('v_mov_b32 v6, v11')
        a.e('s_mov_b32 s36, 0')
        a.wait_vm0()
        a.e('s_barrier')
        a.label(L_MT)
        self.readK(0)
        a.wait_lg0()
        for qt in range(2):
            self.S(qt, 0)
            self.S(qt, 1)
        a.e(f'v_add_u32 v5, {KV_TILE}, v5')
        a.e(f'v_add_u32 v6, {KV_TILE}, v6')
        for qt in range(2):
            self.max16(self.SB + 16 * qt, 8 + qt, False)
        a.e('s_add_u32 s36, s36, 1')
        a.e('s_cmp_lt_u32 s36, 16')
        a.e(f's_cbranch_scc1 {L_MT}')
        a.e('s_add_u32 s34, s34, 1')
        a.e('s_cmp_lt_u32 s34, 4')
        a.e(f's_cbranch_scc1 {L_MC}')
        for qt in range(2):
            self.halves_max(8 + qt)
            self.set_m(qt, 8 + qt, 0.0)
        a.e('s_barrier')
        a.e(f's_mov_b32 s30, {KV_OFF}')
        self.issue_kv(buf=1, flags=flags)
        self.issue_kv(buf=0, flags=flags)
        for i in range(3):
            a.e(f'v_add_u32 v{5 + i}, {KVBUF}, v{10 + i}')
        a.e('s_waitcnt vmcnt(10)')
        a.e('s_barrier')
        a.e(f's_branch {L_PASS}')
        a.label(L_FIN)
        a.vmq = []
        a.lgq = []

    def epilogue(self, flags=''):
        a = self.a
        a.e('s_mul_i32 s44, s23, 90')
        a.e('s_lshl_b32 s45, s22, 1')
        a.e('s_add_u32 s45, s45, s44')
        a.e('s_lshl_b32 s45, s45, 10')
        a.e(f's_add_u32 s45, s45, {UF_OFF}')
        a.e('s_lshr_b32 s46, s22, 2')
        a.e('s_add_u32 s46, s46, s44')
        a.e('s_lshl_b32 s46, s46, 10')
        a.e('s_and_b32 s47, s22, 3')
        a.e('s_lshl_b32 s47, s47, 8')
        a.e('s_add_u32 s46, s46, s47')
        a.e(f's_add_u32 s46, s46, {UF_OFF + 16 * 1024}')
        a.e('v_and_b32 v4, 15, v1')
        a.e('v_lshlrev_b32 v4, 4, v4')
        a.e('v_bfe_u32 v5, v1, 4, 1')
        a.e('v_lshl_add_u32 v4, v5, 2, v4')
        poll(a, self.gate_load, [self.XF + 1], 8, first_done=True)
        for qt in range(2):
            o = self.OB + 16 * qt
            a.e(f'v_mov_b32 v2, v{o + 10}')
            a.e(f'v_permlane32_swap_b32 v{o + 10}, v2')
            a.e(f'v_rcp_f32 v6, v{o + 10}')
            a.e(f'v_mul_f32 v6, v6, v{self.XF}')
            for i in range(5):
                a.e(f'v_pk_mul_f32 {vr(o + 2 * i, 2)}, {vr(o + 2 * i, 2)}, v[6:7] op_sel_hi:[1,0]')
            pk = self.SB + 8 * qt
            for i in range(5):
                a.e(f'v_cvt_pk_bf16_f32 v{pk + i}, v{o + 2 * i}, v{o + 2 * i + 1}')
            a.e(f'buffer_store_dwordx4 {vr(pk, 4)}, v10, s[12:15], s45 offen offset:{1024 * qt} {flags}')
            a.e('s_mov_b32 exec_hi, 0')
            a.e(f'buffer_store_dword v{pk + 4}, v4, s[12:15], s46 offen offset:{8 * qt} {flags}')
            a.e('s_mov_b64 exec, -1')
        a.e('s_lshl_b32 s44, s21, 6')
        a.e('s_lshl_b32 s45, s20, 3')
        a.e('s_add_u32 s44, s44, s45')
        a.e('s_add_u32 s44, s44, s22')
        a.e('s_lshl_b32 s44, s44, 2')
        a.e(f's_add_u32 s44, s44, {F3_OFF + 128}')
        a.wait_vm0()
        set_flag(a, 44, 8)

    def gate_load(self):
        a = self.a
        a.e(f's_mov_b32 s38, {GATE_OFF}')
        a.e(f'buffer_load_dwordx2 {vr(self.XF, 2)}, v3, s[12:15], s38 offen {SC}')


def p3(a):
    ACC = 16
    FR = 96
    DEPTH = 4
    NS = 23
    a.e('s_lshr_b32 s44, s23, 1')
    a.e('s_lshl_b32 s44, s44, 6')
    a.e('s_and_b32 s45, s23, 1')
    a.e('s_lshl_b32 s45, s45, 4')
    a.e('s_add_u32 s44, s44, s45')
    a.e('s_add_u32 s44, s44, s22')
    a.e('s_lshl_b32 s44, s44, 2')
    a.e(f's_add_u32 s44, s44, {F3_OFF}')
    a.e('s_lshl_b32 s21, s21, 1')
    a.e('s_add_u32 s21, s21, s36')
    a.e('s_lshr_b32 s22, s22, 1')
    a.e('s_mov_b32 s8, s64')
    a.e('s_mov_b32 s9, s65')
    srd(a, 8, 2048 * 1152)
    a.e('s_mul_i32 s23, s20, 18')
    a.e('s_add_u32 s23, s23, 18')
    a.e('s_mul_i32 s30, s21, 360')
    a.e('s_add_u32 s24, s30, s23')
    a.e('s_lshl_b32 s24, s24, 10')
    a.e(f's_add_u32 s24, s24, {UF_OFF}')
    a.e('s_mul_i32 s31, s22, 90')
    a.e('s_add_u32 s25, s31, s23')
    a.e('s_mul_i32 s25, s25, 4608')
    a.e(f's_add_u32 s25, s25, {W3_OFF}')
    a.e('s_mul_i32 s23, s20, 5')
    a.e('s_cmp_eq_u32 s20, 3')
    a.e('s_cselect_b32 s33, 1, 0')
    a.e('s_sub_u32 s23, s23, s33')
    a.e('s_add_u32 s30, s30, s23')
    a.e('s_lshl_b32 s30, s30, 10')
    a.e(f's_add_u32 s30, s30, {UF_OFF}')
    a.e('s_add_u32 s31, s31, s23')
    a.e('s_mul_i32 s31, s31, 4608')
    a.e(f's_add_u32 s31, s31, {W3_OFF}')
    a.e('s_lshl_b32 s34, s21, 8')
    a.e(f's_add_u32 s34, s34, {F3_OFF}')
    a.e('s_mov_b32 s38, 0x00ff00ff')
    a.e('s_mov_b32 s39, 0x00ff00ff')
    a.e('s_mov_b64 s[40:41], -1')
    a.e('v_lshlrev_b32 v2, 4, v1')
    for i in range(1, 4):
        a.e(f'v_add_u32 v{2 + i}, {92160 * i}, v2')
    a.e('v_lshrrev_b32 v6, 4, v1')
    a.e('v_lshlrev_b32 v6, 3, v6')
    a.e('v_and_b32 v7, 7, v1')
    a.e('v_add_u32 v6, v6, v7')
    a.e('v_lshlrev_b32 v6, 4, v6')
    a.e('v_add_u32 v6, 4096, v6')
    a.e('v_and_b32 v7, 31, v1')
    a.e('v_lshlrev_b32 v7, 2, v7')
    a.e('v_min_u32 v8, 25, v1')
    a.e('v_lshlrev_b32 v8, 4, v8')
    a.e(f's_mov_b32 s45, {FW3_OFF}')

    def w3flags():
        a.e(f'buffer_load_dwordx4 v[244:247], v2, s[12:15], s45 offen {SC}')
        a.e(f'buffer_load_dwordx4 v[248:251], v8, s[12:15], s45 offen offset:1024 {SC}')
    w3flags()
    a.wait_vm0()
    set_flag(a, 44, 10)
    poll(a, w3flags, list(range(244, 252)), 10, first_done=True)
    for k in range(DEPTH):
        for i in range(4):
            a.e(f'v_mov_b32 v{FR + 36 * k + 16 + i}, 0')

    def loadW(k):
        b = FR + 36 * (k % DEPTH)
        if k == 18:
            a.e('s_mov_b32 s25, s31')
        if k == NS - 1:
            a.e('s_cmp_ge_u32 s20, 2')
            a.e('s_cselect_b64 s[40:41], 1, s[40:41]')
            a.e('s_cselect_b64 s[38:39], 1, s[38:39]')
            a.e('s_mov_b64 exec, s[40:41]')
        for nt in range(4):
            a.vm(f'buffer_load_dwordx4 {vr(b + 4 * nt, 4)}, v2, s[12:15], s25 offen offset:{1024 * nt} {SCL}', ('W', k))
        a.e('s_mov_b64 exec, s[38:39]')
        a.vm(f'buffer_load_dwordx4 {vr(b + 16, 4)}, v6, s[12:15], s25 offen {SCL}', ('W', k))
        a.e('s_mov_b64 exec, -1')
        a.e('s_add_u32 s25, s25, 4608')

    def loadF(k):
        b = FR + 36 * (k % DEPTH)
        if k == 18:
            a.e('s_mov_b32 s24, s30')
        if k == NS - 1:
            a.e('s_mov_b64 exec, s[40:41]')
        for i in range(4):
            a.vm(f'buffer_load_dwordx4 {vr(b + 20 + 4 * i, 4)}, v{2 + i}, s[12:15], s24 offen {SCL}', ('F', k))
        if k == NS - 1:
            a.e('s_mov_b64 exec, -1')
        a.e('s_add_u32 s24, s24, 1024')
    for k in range(DEPTH):
        loadW(k)
    stamp(a, 5)
    poll(a, lambda: a.e(f'buffer_load_dword v9, v7, s[12:15], s34 offen {SC}'), [9], 10)
    stamp(a, 6)
    for k in range(DEPTH):
        loadF(k)

    def oflags():
        a.e(f'buffer_load_dword v9, v7, s[12:15], s34 offen offset:128 {SC}')
    lskip = a.newlabel('P3_SKIP')
    for k in range(NS):
        b = FR + 36 * (k % DEPTH)
        a.wait_vm(('F', k))
        if k == NS - 1:
            a.e('s_cmp_ge_u32 s20, 2')
            a.e(f's_cbranch_scc1 {lskip}')
        for i in range(4):
            for nt in range(5):
                d = vr(ACC + 16 * nt + 4 * i, 4)
                a.e(f'v_mfma_f32_16x16x32_bf16 {d}, {vr(b + 4 * nt, 4)}, {vr(b + 20 + 4 * i, 4)}, {"0" if k == 0 else d}')
        if k == 12:
            oflags()
            a.vmq.append('fo')
        if k + DEPTH < NS:
            loadW(k + DEPTH)
            if k + DEPTH == 18:
                a.wait_vm('fo')
                poll(a, oflags, [9], 10, first_done=True)
            loadF(k + DEPTH)
    a.label(lskip)
    a.e('s_nop 7')
    a.e('s_mul_i32 s26, s20, 20480')
    a.e('v_add_u32 v8, s26, v2')
    for i in range(4):
        for nt in range(5):
            a.lg(f'ds_write_b128 v8, {vr(ACC + 16 * nt + 4 * i, 4)} offset:{5120 * i + 1024 * nt}', 'w')
    a.e('s_mul_i32 s26, s20, 5120')
    a.e('v_add_u32 v9, s26, v2')
    a.e('v_add_u32 v10, 40960, v9')
    a.e('s_lshl_b32 s27, s21, 6')
    a.e('s_lshr_b32 s28, s20, 1')
    a.e('s_lshl_b32 s28, s28, 5')
    a.e('s_add_u32 s27, s27, s28')
    a.e('s_and_b32 s28, s20, 1')
    a.e('s_lshl_b32 s28, s28, 2')
    a.e('s_add_u32 s27, s27, s28')
    a.e('v_bfe_u32 v11, v1, 2, 2')
    a.e('v_lshlrev_b32 v11, 3, v11')
    a.e('v_and_b32 v12, 3, v1')
    a.e('v_add3_u32 v11, v11, v12, s27')
    a.e('v_mul_u32_u24 v11, 1152, v11')
    a.e('v_lshrrev_b32 v12, 4, v1')
    a.e('v_lshl_add_u32 v13, v12, 3, v11')
    a.e('v_lshl_add_u32 v11, v12, 4, v11')
    a.e('s_mul_i32 s27, s22, 144')
    a.wait_lg0()
    a.e('s_barrier')
    for nt in range(5):
        for w in range(4):
            a.lg(f'ds_read_b128 {vr(FR + 16 * nt + 4 * w, 4)}, v{9 + w // 2} offset:{20480 * (w % 2) + 1024 * nt}', ('r', nt))
    for nt in range(5):
        a.wait_lg(('r', nt))
        b = FR + 16 * nt
        for h in range(2):
            a.e(f'v_pk_add_f32 {vr(b + 2 * h, 2)}, {vr(b + 2 * h, 2)}, {vr(b + 4 + 2 * h, 2)}')
            a.e(f'v_pk_add_f32 {vr(b + 8 + 2 * h, 2)}, {vr(b + 8 + 2 * h, 2)}, {vr(b + 12 + 2 * h, 2)}')
        for h in range(2):
            a.e(f'v_pk_add_f32 {vr(b + 2 * h, 2)}, {vr(b + 2 * h, 2)}, {vr(b + 8 + 2 * h, 2)}')
        for h in range(2):
            a.e(f'v_cvt_pk_bf16_f32 v{ACC + 2 * nt + h}, v{b + 2 * h}, v{b + 2 * h + 1}')
        if nt in (1, 3):
            a.e(f'buffer_store_dwordx4 {vr(ACC + 2 * nt - 2, 4)}, v11, s[8:11], s27 offen offset:{64 * (nt // 2)}')
        if nt == 4:
            a.e('s_mov_b32 exec_hi, 0')
            a.e(f'buffer_store_dwordx2 {vr(ACC + 8, 2)}, v13, s[8:11], s27 offen offset:128')
            a.e('s_mov_b64 exec, -1')


def kernel_text(name, a, vgpr=256, sgpr=96):
    a.fix_hazards()
    mv, ms, ma = a.max_regs()
    assert mv <= vgpr and ms <= sgpr and ma == 0, (mv, ms, ma)
    body = f'.globl {name}\n.p2align 8\n.type {name},@function\n{name}:\n' + a.text()
    desc = f""".p2align 6
.amdhsa_kernel {name}
  .amdhsa_next_free_vgpr {vgpr}
  .amdhsa_next_free_sgpr {sgpr}
  .amdhsa_accum_offset {(vgpr + 3) // 4 * 4}
  .amdhsa_group_segment_fixed_size 0
  .amdhsa_kernarg_size 112
  .amdhsa_user_sgpr_count 2
  .amdhsa_user_sgpr_kernarg_segment_ptr 1
  .amdhsa_system_sgpr_workgroup_id_x 1
.end_amdhsa_kernel
"""
    return body, desc


def build_file(kernels):
    hdr = open('cdna_kernels/' + NAME + '.s.ref').read().split('\n')
    head = [l for l in hdr if l.startswith(';') and '@launch' not in l and 'Override' not in l and 'grid=ceil' not in l]
    head = head[:15]
    out = '\n'.join(head) + '\n'
    for name, a, grid, block, lds, vgpr in kernels:
        kn = f'kernel={name} ' if (len(kernels) > 1 or LIST) else ''
        out += f'; @launch {kn}grid=({grid},1,1) block=({block},1,1) lds={lds}\n'
    out += '.amdgcn_target "amdgcn-amd-amdhsa--gfx950"\n.text\n'
    descs = ''
    for name, a, grid, block, lds, vgpr in kernels:
        b, d = kernel_text(name, a, vgpr)
        out += b
        descs += d
    out += '.section .rodata,"a"\n' + descs
    return out


NG1, NG2 = 4, 7


def mega():
    a = Asm()
    a.e('s_cmp_ge_u32 s2, 512')
    a.e('s_cbranch_scc1 K_END')
    stamp(a, 0)
    a.e('s_cmp_lt_u32 s2, 256')
    a.e('s_cbranch_scc1 K_GEMM')
    a.e('s_sub_u32 s3, s2, 256')
    if 'g1only' in ABL:
        a.e('s_branch K_DONE')
    if 'attprio' in ABL:
        a.e('s_setprio 3')
    t = ATT(a)
    t.setup(3)
    t.front()
    stamp(a, 1)
    t.q_phase()
    stamp(a, 2)
    if 'attprio' in ABL:
        a.e('s_setprio 0')
    t.main(flags=SCL)
    stamp(a, 3)
    t.epilogue(flags=SC)
    a.e('s_branch K_DONE')
    a.label('K_GEMM')
    a.vmq = []
    a.lgq = []
    if 'gemmprio' in ABL:
        a.e('s_setprio 2')
    g = GW(a, ['z2', 'z1', 'sp'])
    g.limitA = 36
    g.setup()
    write_nonce(a)
    if 'attonly' in ABL:
        a.e('s_branch K_DONE')
    g.prologue_issue()
    g.setup2()
    g.run_segment(0, 36)
    if 'g1fine' in ABL:
        a.e('s_branch K_DONE')
    stamp(a, 1)
    g.z2_gelu_publish()
    g.z1_gelu(range(0, NG1))
    stamp(a, 2)
    g.z2_gather_norm_store(flags=SC)
    if 'g1only' in ABL:
        stamp(a, 4)
    g.z1_gelu(range(NG1, NG2))
    a.e('s_lshl_b32 s44, s22, 6')
    a.e('s_add_u32 s45, s44, s23')
    a.e('s_lshl_b32 s45, s45, 2')
    a.e(f's_add_u32 s45, s45, {FZ_OFF}')
    if 'g1only' in ABL:
        stamp(a, 5)
    a.wait_vm0()
    if 'g1only' in ABL:
        stamp(a, 6)
    set_flag(a, 45, 27)
    g.z1_gelu(range(NG2, 9))
    a.e('s_lshl_b32 s45, s44, 2')
    a.e(f's_add_u32 s45, s45, {FZ_OFF}')
    a.e('v_lshlrev_b32 v29, 2, v1')
    poll(a, lambda: a.e(f'buffer_load_dword v26, v29, s[12:15], s45 offen {SC}'), [26], 27)
    stamp(a, 3)
    if 'g1only' in ABL:
        a.e('s_branch K_DONE')
    g.limitA = len(g.units)
    a.e('s_barrier')
    for _ in range(g.R - 1):
        for f in g.issueA():
            f()
    g.sp_pre()
    g.run_segment(36, 64)
    stamp(a, 4)
    g.sp_epilogue(flags=SC)
    p3(a)
    a.label('K_DONE')
    stamp_flush(a, 0)
    a.label('K_END')
    a.e('s_endpgm')
    return (NAME + '_kernel', a, 512, 256, 81920, 256)


LIST = False
if __name__ == '__main__':
    if '--stamp' in sys.argv:
        STAMP = True
        sys.argv.remove('--stamp')
    if '--list' in sys.argv:
        LIST = True
        sys.argv.remove('--list')
    for x in list(sys.argv):
        if x.startswith('--abl='):
            ABL.update(x[6:].split(','))
            sys.argv.remove(x)
    out = sys.argv[1] if len(sys.argv) > 1 else 'out.s'
    open(out, 'w').write(build_file([mega()]))
    print('wrote', out)
```

```python
import sys, struct
from asmlib import Asm

NAME = 'gated_mix__grouped_kv_mqa__mixer_gmlp__prompt'

Z2_OFF = 0x10000
UF_OFF = Z2_OFF + 9437184
W3_OFF = UF_OFF + 11796480
KV_OFF = W3_OFF + 3317760
KV_TILE = 2496
GATE_OFF = KV_OFF + 160 * 1024
STATS_OFF = GATE_OFF + 16384
FLAG_OFF = STATS_OFF + 524288
FKV_OFF = FLAG_OFF
FW3_OFF = FLAG_OFF + 49152
FZ_OFF = FLAG_OFF + 4096
F3_OFF = FLAG_OFF + 65536
PROG_OFF = FLAG_OFF + 16384
GO_OFF = FLAG_OFF + 98304
SC = 'sc1' if 'sconly1' in ' '.join(sys.argv) else 'sc0 sc1'
SCL = '' if '--abl' in ' '.join(sys.argv) and 'noscl' in ' '.join(sys.argv) else 'sc1'
WS_SIZE = 0x1a00000
assert FLAG_OFF + 131072 <= 0x1900000
STAMP_OFF = 0x1900000

A_X, A_WQ, A_WK, A_WV, A_WO, A_BX, A_WIN, A_WSP, A_BSP, A_WOUT, A_GW, A_OUT, A_DBG, A_WS = [8 * i for i in range(14)]

STAMP = False
ABL = set()


def opt(name, default=None):
    for x in ABL:
        if x.startswith(name + ':'):
            return [int(v) for v in x.split(':')[1:]]
    return default


def f2u(f):
    return struct.unpack('<I', struct.pack('<f', f))[0]


def hx(f):
    return '0x%08x' % f2u(f)


def srd(a, d, size):
    a.e(f's_mov_b32 s{d + 2}, {size}')
    a.e(f's_mov_b32 s{d + 3}, 0x00020000')


def vr(b, n):
    return f'v[{b}:{b + n - 1}]'


def stamp(a, idx):
    if not STAMP:
        return
    a.wait_lg0()
    a.e('s_memrealtime s[78:79]')
    a.e('s_memtime s[76:77]')
    a.e('s_waitcnt lgkmcnt(0)')
    a.e(f's_mov_b32 s{80 + idx}, s78')
    a.e(f's_mov_b32 s{88 + idx}, s76')


def stamp_flush(a, kidx):
    if not STAMP:
        return
    a.e('s_waitcnt vmcnt(0) lgkmcnt(0)')
    stamp(a, 7)
    a.e(f's_load_dwordx2 s[74:75], s[0:1], {A_WS}')
    a.e('s_waitcnt lgkmcnt(0)')
    a.e('v_lshrrev_b32 v1, 6, v0')
    a.e('v_lshlrev_b32 v1, 6, v1')
    a.e('s_lshl_b32 s78, s2, 8')
    a.e(f's_add_u32 s78, s78, {STAMP_OFF + kidx * 131072}')
    a.e('v_add_u32 v1, s78, v1')
    for i in range(16):
        a.e(f'v_mov_b32 v{4 + i}, s{80 + i}')
    for i in range(4):
        a.e(f'global_store_dwordx4 v1, v[{4 + 4 * i}:{7 + 4 * i}], s[74:75] offset:{16 * i}')


GELU_C0 = -2.0 * 1.4426950408889634 * 0.7978845608028654
GELU_C1 = GELU_C0 * 0.044715


def gelu_group(a, regs, T, sC1, vC0):
    n = len(regs)
    for i, r in enumerate(regs):
        a.e(f'v_pk_mul_f32 {vr(T + 2 * i, 2)}, {vr(r, 2)}, {vr(r, 2)}')
    for i, r in enumerate(regs):
        a.e(f'v_pk_fma_f32 {vr(T + 2 * i, 2)}, {vr(T + 2 * i, 2)}, s[{sC1}:{sC1 + 1}], {vr(vC0, 2)}')
    for i, r in enumerate(regs):
        a.e(f'v_pk_mul_f32 {vr(T + 2 * i, 2)}, {vr(T + 2 * i, 2)}, {vr(r, 2)}')
    for i in range(2 * n):
        a.e(f'v_exp_f32 v{T + i}, v{T + i}')
    for i, r in enumerate(regs):
        a.e(f'v_pk_add_f32 {vr(T + 2 * i, 2)}, {vr(T + 2 * i, 2)}, 1.0 op_sel_hi:[1,0]')
    for i in range(2 * n):
        a.e(f'v_rcp_f32 v{T + i}, v{T + i}')
    for i, r in enumerate(regs):
        a.e(f'v_pk_mul_f32 {vr(r, 2)}, {vr(T + 2 * i, 2)}, {vr(r, 2)}')


SPIN_MAX = 300000


def poll(a, loads, regs, t0, first_done=False, sleep=1):
    lp = a.newlabel('POLL')
    lc = a.newlabel('POLLC')
    lg = a.newlabel('POLLOK')
    a.e(f's_mov_b32 s51, {SPIN_MAX}')
    if first_done:
        a.e(f's_branch {lc}')
    a.label(lp)
    loads()
    a.e('s_waitcnt vmcnt(0)')
    a.label(lc)
    a.e(f'v_xor_b32 v{t0}, s62, v{regs[0]}')
    for r in regs[1:]:
        a.e(f'v_xor_b32 v{t0 + 1}, s62, v{r}')
        a.e(f'v_or_b32 v{t0}, v{t0}, v{t0 + 1}')
    a.e(f'v_cmp_ne_u32 vcc, 0, v{t0}')
    a.e(f's_cbranch_vccz {lg}')
    a.e(f's_sleep {sleep}')
    a.e('s_sub_u32 s51, s51, 1')
    a.e('s_cmp_lg_u32 s51, 0')
    a.e(f's_cbranch_scc1 {lp}')
    a.label(lg)
    if not first_done:
        a.vmq = []


def get_nonce(a, vz, vn):
    lp = a.newlabel('NONCE')
    lg = a.newlabel('NONCE_OK')
    a.e(f's_mov_b32 s51, {SPIN_MAX}')
    a.label(lp)
    a.e(f'v_readfirstlane_b32 s62, v{vn}')
    a.e('s_cmp_lg_u32 s62, 0')
    a.e(f's_cbranch_scc1 {lg}')
    a.e('s_sleep 2')
    a.e(f'global_load_dword v{vn}, v{vz}, s[16:17] {SC}')
    a.e('s_waitcnt vmcnt(0)')
    a.e('s_sub_u32 s51, s51, 1')
    a.e('s_cmp_lg_u32 s51, 0')
    a.e(f's_cbranch_scc1 {lp}')
    a.label(lg)


def set_flag(a, soff, t0):
    a.e(f'v_mov_b32 v{t0}, 0')
    a.e(f'v_mov_b32 v{t0 + 1}, s62')
    a.e('s_mov_b64 exec, 1')
    a.vm(f'buffer_store_dword v{t0 + 1}, v{t0}, s[12:15], s{soff} offen {SC}', 'flag')
    a.e('s_mov_b64 exec, -1')


class GW:
    R = 5
    SLOT = 8192
    SGL = 40960
    BBASE = 49152
    AF = 32
    BF = 68
    ACC0 = 100
    ACC1 = 172

    def __init__(self, a):
        self.a = a
        self.units = []
        self.ustage = []
        self.stages = []
        for k in range(18):
            if k % 2 == 0:
                self.stages.append(('x', k // 2))
            for sg in ('z2', 'z1'):
                self.units.append((sg, k))
                self.ustage.append((len(self.stages) - 1, k % 2))
        for k in range(64):
            if k % 2 == 0:
                self.stages.append(('sp', k // 2))
            self.units.append(('sp', k))
            self.ustage.append((len(self.stages) - 1, k % 2))
        self.nextA = 0
        self.nextB = 0
        self.limitA = len(self.units)
        self.pendB = []
        self.hooks = {}

    def setup(self):
        a = self.a
        a.e(f's_load_dwordx2 s[4:5], s[0:1], {A_X}')
        a.e(f's_load_dwordx2 s[8:9], s[0:1], {A_WIN}')
        a.e(f's_load_dwordx4 s[16:19], s[0:1], {A_DBG}')
        a.e(f's_load_dwordx4 s[52:55], s[0:1], {A_WSP}')
        a.e(f's_load_dwordx2 s[64:65], s[0:1], {A_OUT}')
        a.e(f's_load_dwordx2 s[66:67], s[0:1], {A_WO}')
        a.e(f's_load_dwordx2 s[68:69], s[0:1], {A_WOUT}')
        a.e('v_lshrrev_b32 v1, 6, v0')
        a.e('v_readfirstlane_b32 s20, v1')
        a.e('v_and_b32 v1, 63, v0')
        a.e('s_lshr_b32 s31, s2, 3')
        a.e('s_and_b32 s32, s2, 3')
        a.e('s_and_b32 s34, s31, 3')
        a.e('s_lshl_b32 s21, s32, 2')
        a.e('s_add_u32 s21, s21, s34')
        a.e('s_lshr_b32 s35, s31, 2')
        a.e('s_and_b32 s22, s2, 4')
        a.e('s_lshl_b32 s22, s22, 1')
        a.e('s_add_u32 s22, s22, s35')
        a.e('s_lshl_b32 s23, s21, 2')
        a.e('s_add_u32 s23, s23, s20')
        a.e('s_lshl_b32 s39, s34, 1')
        a.e('s_add_u32 s39, s39, s35')
        a.e('s_cmp_ge_u32 s39, 9')
        a.e('s_cselect_b32 s40, 9, 0')
        a.e('s_sub_u32 s39, s39, s40')
        a.e('s_mul_i32 s24, s39, %d' % (64 * 9216))
        a.e('s_add_u32 s28, s24, 4608')
        a.e('s_lshl_b32 s25, s39, 7')
        a.e('s_lshl_b32 s26, s20, 11')
        a.e('s_lshl_b32 s27, s20, 12')
        a.e(f's_add_u32 s27, s27, {self.BBASE}')
        a.e('s_lshl_b32 s30, s20, 10')
        a.e(f's_add_u32 s30, s30, {self.SGL}')
        a.e('v_and_b32 v23, 7, v1')
        a.e('v_lshrrev_b32 v24, 5, v1')
        a.e('v_lshlrev_b32 v24, 3, v24')
        a.e('v_bfe_u32 v25, v1, 3, 2')
        a.e('s_lshl_b32 s44, s23, 5')
        a.e('v_add3_u32 v24, v24, v25, s44')
        a.e('v_lshrrev_b32 v25, 4, v1')
        a.e('v_xor_b32 v25, v25, v23')
        a.e('v_lshlrev_b32 v25, 4, v25')
        a.e('v_xor_b32 v26, 64, v25')
        a.e('v_mul_u32_u24 v27, 1152, v24')
        a.e('v_add_u32 v5, v27, v25')
        a.e('v_add_u32 v6, v27, v26')
        a.e(f'v_add_u32 v6, {16 * 1152 - 1024}, v6')
        a.e(f'v_add_u32 v7, {4 * 1152 - 2048}, v5')
        a.e(f'v_add_u32 v8, {4 * 1152 - 2048}, v6')
        a.e('s_lshl_b32 s42, s22, 8')
        a.e('s_mul_i32 s43, s20, %d' % (8 * 9216))
        a.e('s_add_u32 s42, s42, s43')
        a.e('v_bfe_u32 v2, v1, 2, 2')
        a.e('v_mul_u32_u24 v2, 9216, v2')
        a.e('v_lshrrev_b32 v3, 4, v1')
        a.e('v_lshl_add_u32 v2, v3, 6, v2')
        a.e('s_and_b32 s44, s20, 1')
        a.e('s_lshl_b32 s45, s44, 1')
        a.e('v_and_b32 v3, 3, v1')
        a.e('v_xor_b32 v3, s45, v3')
        a.e('v_lshl_add_u32 v2, v3, 4, v2')
        a.e('v_add_u32 v2, s42, v2')
        a.e(f'v_add_u32 v3, {4 * 9216 - 1024}, v2')
        a.e('v_lshrrev_b32 v4, 1, v1')
        a.e('v_and_b32 v27, 19, v4')
        a.e('v_bfe_u32 v28, v4, 2, 1')
        a.e('v_lshl_add_u32 v27, v28, 3, v27')
        a.e('v_bfe_u32 v28, v4, 3, 1')
        a.e('v_lshl_add_u32 v27, v28, 2, v27')
        a.e('v_mul_u32_u24 v4, 9216, v27')
        a.e('v_and_b32 v27, 1, v1')
        a.e('v_lshl_add_u32 v4, v27, 4, v4')
        a.e('s_lshr_b32 s45, s20, 1')
        a.e('s_mul_i32 s45, s45, %d' % (32 * 9216))
        a.e('s_lshl_b32 s46, s22, 5')
        a.e('s_add_u32 s45, s45, s46')
        a.e('s_cmp_eq_u32 s44, 0')
        a.e('s_cselect_b32 s46, 4608, 0')
        a.e('s_add_u32 s45, s45, s46')
        a.e('s_add_u32 s45, s45, 4096')
        a.e('v_add_u32 v4, s45, v4')
        a.e('s_waitcnt lgkmcnt(0)')
        srd(a, 4, 2359296)
        srd(a, 8, 576 * 9216)
        a.e('s_mov_b32 s12, s18')
        a.e('s_mov_b32 s13, s19')
        srd(a, 12, WS_SIZE)
        a.e('s_mov_b32 s56, s54')
        a.e('s_mov_b32 s57, s55')
        srd(a, 52, 2048 * 4096)

    def setup2(self):
        a = self.a
        a.e('v_lshlrev_b32 v27, 12, v24')
        a.e('v_add_u32 v12, v27, v25')
        a.e('v_add_u32 v13, v27, v26')
        a.e(f'v_add_u32 v13, {16 * 4096 - 1024}, v13')
        a.e(f'v_add_u32 v14, {4 * 4096 - 2048}, v12')
        a.e(f'v_add_u32 v15, {4 * 4096 - 2048}, v13')
        a.e('s_lshl_b32 s37, s21, 8')
        a.e('s_lshl_b32 s45, s22, 13')
        a.e('s_add_u32 s45, s45, s26')
        a.e('v_lshlrev_b32 v19, 4, v1')
        a.e('v_add_u32 v9, s45, v19')
        a.e('s_lshl_b32 s45, s22, 10')
        a.e('s_mul_i32 s46, s20, 147456')
        a.e('s_add_u32 s45, s45, s46')
        a.e(f's_add_u32 s45, s45, {128 * 1024}')
        a.e('v_add_u32 v10, s45, v19')
        a.e('v_lshrrev_b32 v27, 4, v1')
        a.e('v_and_b32 v29, 3, v1')
        a.e('v_lshlrev_b32 v28, 3, v29')
        a.e('v_bfe_u32 v29, v1, 2, 3')
        a.e('v_lshl_add_u32 v18, v29, 5, v28')
        a.e('v_lshrrev_b32 v29, 5, v1')
        a.e('v_lshl_add_u32 v18, v29, 9, v18')
        a.e('v_lshl_add_u32 v28, v27, 11, v28')
        a.e('v_bfe_u32 v29, v1, 2, 2')
        a.e('v_lshl_add_u32 v28, v29, 6, v28')
        a.e('v_and_b32 v29, 1, v27')
        a.e('v_lshl_add_u32 v16, v29, 5, v28')
        a.e('v_xor_b32 v17, 32, v16')
        a.e('v_and_b32 v28, 15, v1')
        a.e('v_bfe_u32 v29, v1, 1, 3')
        a.e('v_xor_b32 v29, v29, v27')
        a.e('v_lshlrev_b32 v28, 7, v28')
        a.e('v_lshl_add_u32 v28, v29, 4, v28')
        a.e('v_add_u32 v21, s27, v28')
        a.e('v_xor_b32 v28, 64, v28')
        a.e('v_add_u32 v22, s27, v28')
        a.e('s_lshl_b32 s38, s2, 2')
        a.e('s_add_u32 s38, s38, s20')
        a.e('s_and_b32 s33, s38, 7')
        a.e('s_lshr_b32 s38, s38, 3')
        a.e('s_cmp_lt_u32 s38, 18')
        a.e('s_cselect_b32 s40, s66, s68')
        a.e('s_cselect_b32 s41, s67, s69')
        a.e(f's_mov_b32 s42, {2304 * 1152}')
        a.e(f's_cselect_b32 s42, {576 * 1152}, s42')
        a.e('s_mov_b32 s43, 0x00020000')
        a.e('s_sub_u32 s44, s38, 18')
        a.e('s_mul_i32 s45, s44, 57')
        a.e('s_lshr_b32 s45, s45, 10')
        a.e('s_mul_i32 s46, s45, 18')
        a.e('s_sub_u32 s44, s44, s46')
        a.e('s_lshl_b32 s46, s45, 9')
        a.e('s_lshl_b32 s47, s45, 6')
        a.e(f's_add_u32 s47, s47, {2048 - 512}')
        a.e('s_cmp_lt_u32 s44, 16')
        a.e('s_cselect_b32 s46, s46, s47')
        a.e('s_lshl_b32 s44, s44, 5')
        a.e('s_add_u32 s44, s44, s46')
        a.e('s_mov_b32 s45, 4')
        a.e('s_mov_b32 s46, 8')
        a.e('s_mov_b32 s47, 16')
        a.e('s_mov_b32 s48, 2')
        a.e('s_sub_u32 s49, s38, 16')
        a.e('s_mul_i32 s49, s49, 288')
        a.e('s_add_u32 s49, s49, 16')
        a.e('s_cmp_lt_u32 s38, 18')
        a.e('s_cselect_b32 s44, s49, s44')
        a.e('s_cselect_b32 s45, 72, s45')
        a.e('s_cselect_b32 s46, 144, s46')
        a.e('s_cselect_b32 s47, 36, s47')
        a.e('s_cselect_b32 s48, 18, s48')
        a.e('s_mul_i32 s49, s38, 36')
        a.e('s_cmp_lt_u32 s38, 16')
        a.e('s_cselect_b32 s44, s49, s44')
        a.e('s_cselect_b32 s45, 18, s45')
        a.e('s_cselect_b32 s46, 4, s46')
        a.e('s_cselect_b32 s47, 8, s47')
        a.e('s_cselect_b32 s48, 2, s48')
        for r in (44, 45, 46, 47):
            a.e(f's_mul_i32 s{r}, s{r}, 1152')
        a.e('s_mul_i32 s49, s33, 144')
        a.e('s_add_u32 s66, s44, s49')
        a.e('s_add_u32 s67, s66, s47')
        for i in range(2):
            a.e(f's_add_u32 s{68 + i}, s{66 + i}, s45')
        for i in range(4):
            a.e(f's_add_u32 s{70 + i}, s{66 + i}, s46')
        a.e('v_lshrrev_b32 v27, 5, v1')
        a.e('v_mul_lo_u32 v27, v27, s48')
        a.e('v_bfe_u32 v28, v1, 4, 1')
        a.e('v_add_u32 v27, v27, v28')
        a.e('v_mul_u32_u24 v27, 1152, v27')
        a.e('v_and_b32 v28, 15, v1')
        a.e('v_min_u32 v28, 8, v28')
        a.e('v_lshl_add_u32 v20, v28, 4, v27')
        a.e('s_lshl_b32 s36, s20, 13')
        a.e('s_add_u32 s36, s36, 8192')

    def issueA(self):
        a = self.a
        u = self.nextA
        if u >= self.limitA:
            return []
        self.nextA += 1
        seg, i = self.units[u]
        slot = (u % self.R) * self.SLOT
        sgl = ((u // 4) % 2) * 4096
        tag = ('A', u)
        out = []
        if seg == 'sp':
            def f0():
                if i % 4 == 0:
                    a.e(f's_xor_b32 s24, s21, {0 if "hotA" in ABL else i // 4}')
                    if 'noxor' in ABL:
                        a.e(f's_mov_b32 s24, {i // 4}')
                    a.e('s_mul_i32 s24, s24, 589824')
                    a.e(f's_add_u32 s24, s24, {Z2_OFF}')
                a.e(f's_add_u32 m0, s26, {slot}')
                a.vm(f'buffer_load_dwordx4 v9, s[12:15], s24 offen {SCL} lds', tag)

            def f1():
                a.vm(f'buffer_load_dwordx4 v9, s[12:15], s24 offen offset:1024 {SCL} lds', tag)
                if i % 4 in (1, 2):
                    a.e('s_add_u32 s24, s24, 147456')

            def f2():
                a.e(f's_add_u32 m0, s30, {sgl}')
                a.vm(f'buffer_load_dwordx4 v10, s[12:15], s24 offen {SCL} lds', tag)
                a.e('s_add_u32 s24, s24, 147456')
        else:
            so = 's28' if seg == 'z2' else 's24'
            nt = 'nt ' if 'ntW' in ABL else ''

            def f0():
                a.e(f's_add_u32 m0, s26, {slot}')
                a.vm(f'buffer_load_dwordx4 v2, s[8:11], {so} offen {nt}lds', tag)

            def f1():
                a.vm(f'buffer_load_dwordx4 v3, s[8:11], {so} offen offset:1024 {nt}lds', tag)
                if seg == 'z1':
                    a.e(f's_add_u32 s24, s24, {32 * 9216}')
                    if i % 2 == 1:
                        a.e(f's_cmp_eq_u32 s24, {576 * 9216}')
                        a.e('s_cselect_b32 s24, 0, s24')
                    a.e('s_add_u32 s28, s24, 4608')

            def f2():
                a.e(f's_add_u32 m0, s30, {sgl}')
                a.vm(f'buffer_load_dwordx4 v4, s[8:11], s24 offen {nt}lds', tag)
        return [f0, f1, f2] if u % 4 == 0 else [f0, f1]

    def issueB(self):
        a = self.a
        s = self.nextB
        if s >= len(self.stages):
            return []
        self.nextB += 1
        seg, i = self.stages[s]
        tag = ('B', s)
        sp = seg == 'sp'
        vb = 12 if sp else 5
        sr = 's[52:55]' if sp else 's[4:7]'

        def mk(j):
            def f():
                if j == 0 and sp:
                    a.e(f's_xor_b32 s25, s37, {128 * (i % 2 if "hotB" in ABL else i)}')
                a.e(f's_add_u32 m0, s27, {(s % 2) * 16384}')
                nt = 'nt ' if (sp and 'ntB' in ABL) or (not sp and 'ntX' in ABL) else ''
                a.vm(f'buffer_load_dwordx4 v{vb + j}, {sr}, s25 offen offset:{1024 * j} {nt}lds', tag)
                if j == 3 and not sp:
                    a.e('s_add_u32 s25, s25, 128')
                    a.e('s_cmp_eq_u32 s25, 1152')
                    a.e('s_cselect_b32 s25, 0, s25')
            return f
        return [mk(j) for j in range(4)]

    def readA(self, u, F, part):
        a = self.a
        seg, i = self.units[u]
        slot = (u % self.R) * self.SLOT
        sgl = self.SGL + ((u // 4) % 2) * 4096 + (u % 4) * 1024
        tag = ('AR', u, F)
        if seg == 'sp':
            if part == 0:
                a.lg(f'ds_read_b128 {vr(self.AF + 4 * F, 4)}, v19 offset:{slot + F * 1024 if F < 8 else sgl}', tag)
        else:
            j = part
            if F < 8:
                a.lg(f'ds_read_b64_tr_b16 {vr(self.AF + 4 * F + 2 * j, 2)}, v{16 + F % 2} offset:{slot + j * 1024 + (F // 2) * 256}', tag)
            else:
                a.lg(f'ds_read_b64_tr_b16 {vr(self.AF + 4 * F + 2 * j, 2)}, v18 offset:{sgl + j * 256}', tag)

    def readB(self, s, jj):
        a = self.a
        if jj == 0:
            a.wait_vm(('B', s))
        for e in range(2):
            a.lg(f'ds_read_b128 {vr(self.BF + 16 * (s % 2) + 8 * jj + 4 * e, 4)}, v{21 + jj} offset:{(s % 2) * 16384 + e * 2048}', ('BR', s))

    def prologue_issue(self):
        for f in self.issueB() + self.issueA() + self.issueA() + self.issueB() + self.issueA() + self.issueA():
            f()

    def run_segment(self, u0, n, own=False):
        a = self.a
        if opt('pg'):
            a.e(f's_setprio {opt("pg")[0]}')
        s0 = self.ustage[u0][0]
        self.readB(s0, 0)
        self.readB(s0, 1)
        a.wait_vm(('A', u0))
        a.wait_lg('own')
        a.e('s_barrier')
        for F in range(9):
            self.readA(u0, F, 0)
            self.readA(u0, F, 1)
        for u in range(u0, u0 + n):
            last = u == u0 + n - 1
            seg, kk = self.units[u]
            s, jj = self.ustage[u]
            sfirst = u == u0 or self.ustage[u - 1][0] != s
            slast = last or self.ustage[u + 1][0] != s
            acc = self.ACC1 if seg == 'z1' else self.ACC0
            if 'g1fine' in ABL and u in (0, 6, 12, 18, 24, 30):
                stamp(a, 1 + u // 6)
            if 'p2fine' in ABL and u in (40, 52, 64, 76, 88):
                stamp(a, 1 + (u - 40) // 12)
            will_issue = self.nextA <= u + self.R - 1 and self.nextA < self.limitA
            if not last:
                a.wait_vm(('A', u + 1))
            if (will_issue or (not last and not own)) and not ('nobar' in ABL and seg == 'sp') and not ('halfbar' in ABL and seg == 'sp' and u % 2):
                a.e('s_barrier')
            if u in self.hooks:
                self.hooks[u]()
            fill = list(self.issueA()) if self.nextA <= u + self.R - 1 else []
            if sfirst and self.nextB <= s + 2:
                fb = self.issueB()
                if fb:
                    f0 = fb[0]

                    def g0(f0=f0, s=s):
                        a.wait_lg(('BR', s))
                        f0()
                    self.pendB = [g0] + fb[1:]
            nb_now = len(self.pendB) if (slast or 'bnow' in ABL) else (2 if seg == 'sp' else 1)
            fill += self.pendB[:nb_now]
            self.pendB = self.pendB[nb_now:]
            if 'nodma' in ABL and seg == 'sp':
                fill = []
            slots = {1: [4], 2: [2, 6], 3: [1, 4, 7], 4: [1, 3, 5, 7], 5: [0, 2, 4, 6, 8], 6: [0, 2, 3, 5, 6, 8], 7: [0, 1, 2, 4, 5, 7, 8]}.get(len(fill), [])
            for F in range(9):
                a.wait_lg(('AR', u, F))
                if F == 0 and sfirst:
                    a.wait_lg(('BR', s))
                for e in range(2):
                    d = vr(acc + 8 * F + 4 * e, 4)
                    c = '0' if kk == 0 else d
                    af = vr(self.AF + 4 * F, 4)
                    bf = vr(self.BF + 16 * (s % 2) + 8 * jj + 4 * e, 4)
                    if seg == 'z2':
                        a.e(f'v_mfma_f32_16x16x32_bf16 {d}, {bf}, {af}, {c}')
                    else:
                        a.e(f'v_mfma_f32_16x16x32_bf16 {d}, {af}, {bf}, {c}')
                    if e == 0:
                        if not last and F > 0:
                            self.readA(u + 1, F - 1, 1)
                        if fill and F in slots:
                            fill.pop(0)()
                    else:
                        if not last:
                            self.readA(u + 1, F, 0)
                            if F == 8:
                                self.readA(u + 1, F, 1)
                if not last and slast and F in (4, 6):
                    self.readB(s + 1, (F - 4) // 2)
            for f in fill:
                f()
        if opt('pg'):
            a.e(f's_setprio {opt("pg")[1]}')

    def gelu_consts(self):
        a = self.a
        a.e(f's_mov_b32 s60, {hx(GELU_C1)}')
        a.e(f's_mov_b32 s61, {hx(GELU_C1)}')
        a.e(f'v_mov_b32 v30, {hx(GELU_C0)}')
        a.e(f'v_mov_b32 v31, {hx(GELU_C0)}')

    def z1_gelu(self, Fs=range(9)):
        a = self.a
        T = self.BF + 16
        for F in Fs:
            base = self.ACC1 + 8 * F
            gelu_group(a, [base + 2 * i for i in range(4)], T + 8 * (F % 2), 60, 30)

    def side_issue(self):
        a = self.a
        a.wait_vm('nonce')
        get_nonce(a, 23, 24)
        a.e('s_barrier')
        l = a.newlabel('RT0')
        a.e('s_cmp_ge_u32 s2, 180')
        a.e(f's_cbranch_scc1 {l}')
        for i in range(8):
            a.e(f's_add_u32 m0, s36, {1024 * i}')
            a.e(f'buffer_load_dwordx4 v20, s[40:43], s{66 + i} offen lds')
        a.label(l)

    def retile_compute(self):
        a = self.a
        l = a.newlabel('RT1')
        a.e('s_cmp_ge_u32 s2, 180')
        a.e(f's_cbranch_scc1 {l}')
        F = self.AF
        a.e('s_waitcnt vmcnt(1)')
        a.e('v_lshrrev_b32 v25, 4, v1')
        a.e('v_bfe_u32 v26, v1, 2, 2')
        a.e('v_lshlrev_b32 v27, 11, v25')
        a.e('v_lshl_add_u32 v27, v26, 8, v27')
        a.e('v_add_u32 v27, s36, v27')
        a.e('v_and_b32 v26, 3, v1')
        a.e('v_lshl_add_u32 v28, v26, 3, v27')
        a.e('v_lshl_add_u32 v27, v26, 4, v27')
        for nt in range(5):
            for j in range(2):
                if nt < 4:
                    a.lg(f'ds_read_b64_tr_b16 {vr(F + 4 * nt + 2 * j, 2)}, v27 offset:{64 * (nt // 2) + 8 * (nt % 2) + 1024 * j}', 'r')
                else:
                    a.lg(f'ds_read_b64_tr_b16 {vr(F + 4 * nt + 2 * j, 2)}, v28 offset:{128 + 1024 * j}', 'r')
        a.e('v_and_b32 v26, 7, v1')
        a.e('v_lshl_add_u32 v25, v25, 3, v26')
        a.e('v_lshlrev_b32 v25, 4, v25')
        a.e('v_add_u32 v25, 4096, v25')
        a.e('s_mul_i32 s44, s33, 90')
        a.e('s_add_u32 s44, s44, s38')
        a.e('s_mul_i32 s44, s44, 4608')
        a.e(f's_add_u32 s44, s44, {W3_OFF}')
        a.wait_lg0()
        for nt in range(4):
            a.e(f'buffer_store_dwordx4 {vr(F + 4 * nt, 4)}, v19, s[12:15], s44 offen offset:{1024 * nt} {SC}')
        a.e('s_mov_b32 exec_lo, 0x00ff00ff')
        a.e('s_mov_b32 exec_hi, 0x00ff00ff')
        a.e(f'buffer_store_dwordx4 {vr(F + 16, 4)}, v25, s[12:15], s44 offen {SC}')
        a.e('s_mov_b64 exec, -1')
        a.label(l)

    def retile_flag(self):
        a = self.a
        l = a.newlabel('RT2')
        a.e('s_cmp_ge_u32 s2, 180')
        a.e(f's_cbranch_scc1 {l}')
        a.e('s_lshl_b32 s44, s33, 7')
        a.e('s_add_u32 s44, s44, s38')
        a.e('s_lshl_b32 s44, s44, 2')
        a.e(f's_add_u32 s44, s44, {FW3_OFF}')
        set_flag(a, 44, 27)
        a.vmq.pop()
        a.label(l)

    def z2_gelu_publish(self):
        a = self.a
        T = self.AF
        S = self.BF
        self.gelu_consts()
        for F in range(9):
            base = self.ACC0 + 8 * F
            gelu_group(a, [base + 2 * i for i in range(4)], T + 8 * (F % 2), 60, 30)
            for i in range(4):
                y = vr(base + 2 * i, 2)
                if F == 0:
                    a.e(f'v_pk_add_f32 {vr(S + 2 * i, 2)}, {y}, 0 op_sel_hi:[1,0]')
                    a.e(f'v_pk_mul_f32 {vr(S + 8 + 2 * i, 2)}, {y}, {y}')
                else:
                    a.e(f'v_pk_add_f32 {vr(S + 2 * i, 2)}, {vr(S + 2 * i, 2)}, {y}')
                    a.e(f'v_pk_fma_f32 {vr(S + 8 + 2 * i, 2)}, {y}, {y}, {vr(S + 8 + 2 * i, 2)}')
        for b in (S, S + 8):
            for r in range(4):
                a.e(f'v_add_f32_dpp v{b + r}, v{b + r}, v{b + r} row_ror:8 row_mask:0xf bank_mask:0x3')
            for r in range(4):
                a.e(f'v_add_f32_dpp v{b + r}, v{b + r + 4}, v{b + r + 4} row_ror:8 row_mask:0xf bank_mask:0xc')
        for b in (S, S + 8):
            for r in range(2):
                a.e(f'v_add_f32_dpp v{b + r}, v{b + r}, v{b + r} row_shl:4 row_mask:0xf bank_mask:0x5')
            for r in range(2):
                a.e(f'v_add_f32_dpp v{b + r}, v{b + r + 2}, v{b + r + 2} row_shr:4 row_mask:0xf bank_mask:0xa')
        for qp in ('[1,0,3,2]', '[2,3,0,1]'):
            for r in (S, S + 1, S + 8, S + 9):
                a.e(f'v_add_f32_dpp v{r}, v{r}, v{r} quad_perm:{qp} row_mask:0xf bank_mask:0xf')
        a.e('v_and_b32 v25, 1, v1')
        a.e('v_cmp_eq_u32 vcc, 1, v25')
        G0 = S + 12
        a.e(f'v_cndmask_b32 v{G0}, v{S}, v{S + 1}, vcc')
        a.e(f'v_cndmask_b32 v{G0 + 1}, v{S + 8}, v{S + 9}, vcc')
        a.e('v_lshrrev_b32 v27, 2, v1')
        a.e('v_lshl_add_u32 v27, v27, 1, v25')
        a.e('v_lshlrev_b32 v27, 4, v27')
        a.e('s_lshl_b32 s48, s23, 13')
        a.e(f's_add_u32 s48, s48, {STATS_OFF}')
        a.e('s_lshl_b32 s49, s22, 9')
        a.e('s_add_u32 s49, s49, s48')
        a.e(f'v_mov_b32 v{G0 + 2}, s62')
        a.e(f'v_mov_b32 v{G0 + 3}, s62')
        a.e('s_mov_b32 exec_lo, 0x33333333')
        a.e('s_mov_b32 exec_hi, 0x33333333')
        a.vm(f'buffer_store_dwordx4 {vr(G0, 4)}, v27, s[12:15], s49 offen {SC}', 'st')
        a.e('s_mov_b64 exec, -1')

    def z2_gather_norm_store(self):
        a = self.a
        G = self.AF
        a.e('s_add_u32 s49, s48, 4096')

        def ld():
            for i in range(8):
                a.e(f'buffer_load_dwordx4 {vr(G + 4 * i, 4)}, v19, s[12:15], {"s48" if i < 4 else "s49"} offen offset:{1024 * (i % 4)} {SC}')
        poll(a, ld, [G + 4 * i + 2 for i in range(8)], 27)
        for i in (0, 2, 4, 6):
            a.e(f'v_pk_add_f32 {vr(G + 4 * i, 2)}, {vr(G + 4 * i, 2)}, {vr(G + 4 * i + 4, 2)}')
        a.e(f'v_pk_add_f32 {vr(G, 2)}, {vr(G, 2)}, {vr(G + 8, 2)}')
        a.e(f'v_pk_add_f32 {vr(G + 16, 2)}, {vr(G + 16, 2)}, {vr(G + 24, 2)}')
        a.e(f'v_pk_add_f32 {vr(G, 2)}, {vr(G, 2)}, {vr(G + 16, 2)}')
        a.e(f'v_mov_b32 v{G + 2}, v{G}')
        a.e(f'v_mov_b32 v{G + 3}, v{G + 1}')
        a.e(f'v_permlane32_swap_b32 v{G}, v{G + 2}')
        a.e(f'v_permlane32_swap_b32 v{G + 1}, v{G + 3}')
        a.e(f'v_pk_add_f32 {vr(G, 2)}, {vr(G, 2)}, {vr(G + 2, 2)}')
        a.e(f'v_mul_f32 v{G}, {hx(1.0 / 2304)}, v{G}')
        a.e(f'v_mul_f32 v{G + 1}, {hx(1.0 / 2304)}, v{G + 1}')
        a.e(f'v_fma_f32 v{G + 1}, -v{G}, v{G}, v{G + 1}')
        a.e(f'v_max_f32 v{G + 1}, 0, v{G + 1}')
        a.e(f'v_add_f32 v{G + 1}, {hx(1e-5)}, v{G + 1}')
        a.e(f'v_rsq_f32 v{G + 1}, v{G + 1}')
        a.e(f'v_mul_f32 v{G}, v{G}, v{G + 1}')
        a.e(f'v_sub_f32 v{G}, 0, v{G}')
        a.e('s_lshl_b32 s44, s20, 8')
        a.e('v_and_b32 v27, 31, v1')
        a.e('v_lshlrev_b32 v27, 2, v27')
        a.e('v_add_u32 v27, s44, v27')
        a.lg(f'ds_write_b32 v27, v{G + 1}', 'w')
        a.lg(f'ds_write_b32 v27, v{G} offset:128', 'w')
        a.e('v_lshrrev_b32 v28, 4, v1')
        a.e('v_lshlrev_b32 v28, 5, v28')
        a.e('v_add_u32 v28, s44, v28')
        RS = self.BF
        a.lg(f'ds_read_b128 {vr(RS, 4)}, v28', 'r')
        a.lg(f'ds_read_b128 {vr(RS + 4, 4)}, v28 offset:16', 'r')
        a.lg(f'ds_read_b128 {vr(RS + 8, 4)}, v28 offset:128', 'r')
        a.lg(f'ds_read_b128 {vr(RS + 12, 4)}, v28 offset:144', 'r')
        self.retile_flag()
        a.e('s_mul_i32 s44, s23, 147456')
        a.e(f's_add_u32 s44, s44, {Z2_OFF}')
        a.e('s_lshl_b32 s45, s22, 13')
        a.e('s_add_u32 s45, s45, s44')
        a.e('s_add_u32 s47, s45, 4096')
        a.e('s_lshl_b32 s46, s22, 10')
        a.e('s_add_u32 s46, s46, s44')
        a.e(f's_add_u32 s46, s46, {128 * 1024}')
        a.e('v_add_u32 v27, s36, v19')
        a.e('v_add_u32 v28, s30, v19')
        a.wait_lg0()
        for F in range(9):
            base = self.ACC0 + 8 * F
            pk = G + 4 * F
            for i in range(4):
                a.e(f'v_pk_fma_f32 {vr(base + 2 * i, 2)}, {vr(base + 2 * i, 2)}, {vr(RS + 2 * i, 2)}, {vr(RS + 8 + 2 * i, 2)}')
            for i in range(4):
                a.e(f'v_cvt_pk_bf16_f32 v{pk + i}, v{base + 2 * i}, v{base + 2 * i + 1}')
            so = 's46' if F == 8 else ('s45' if F < 4 else 's47')
            a.vm(f'buffer_store_dwordx4 {vr(pk, 4)}, v19, s[12:15], {so} offen offset:{1024 * (F % 4)} {SC}', 'st')
            if F < 8:
                a.lg(f'ds_write_b128 v27, {vr(pk, 4)} offset:{1024 * F}', 'own')
            else:
                a.lg(f'ds_write_b128 v28, {vr(pk, 4)} offset:4096', 'own')

    def sp_pre(self):
        a = self.a
        a.e('v_bfe_u32 v27, v1, 2, 2')
        a.e('v_lshlrev_b32 v27, 3, v27')
        a.e('v_and_b32 v28, 3, v1')
        a.e('s_lshl_b32 s44, s23, 5')
        a.e('v_add3_u32 v27, v27, v28, s44')
        a.e('v_lshlrev_b32 v28, 1, v27')
        a.e('v_lshlrev_b32 v11, 3, v27')
        a.vm('global_load_ushort v244, v28, s[56:57]', 'pre')
        a.vm('global_load_ushort v245, v28, s[56:57] offset:8', 'pre')
        self.gate_loads(True)

    def gate_loads(self, track=False):
        a = self.a
        a.e(f's_mov_b32 s44, {GATE_OFF}')
        for e in range(2):
            t = f'buffer_load_dwordx2 {vr(246 + 2 * e, 2)}, v11, s[12:15], s44 offen offset:{32 * e} {SC}'
            a.vm(t, 'pre') if track else a.e(t)

    def sp_epilogue(self):
        a = self.a
        a.wait_vm('pre')
        poll(a, self.gate_loads, [247, 249], 27, first_done=True)
        for e in range(2):
            a.e(f'v_sub_f32 v{246 + 2 * e}, 1.0, v{246 + 2 * e}')
            a.e(f'v_lshlrev_b32 v{244 + e}, 16, v{244 + e}')
            a.e(f'v_mul_f32 v{250 + 2 * e}, v{244 + e}, v{246 + 2 * e}')
        a.e('s_mul_i32 s44, s23, 180')
        a.e('s_lshr_b32 s45, s22, 2')
        a.e('s_mul_i32 s45, s45, 18')
        a.e('s_add_u32 s44, s44, s45')
        a.e('s_lshl_b32 s44, s44, 10')
        a.e(f's_add_u32 s44, s44, {UF_OFF + 18 * 1024}')
        a.e('s_and_b32 s45, s22, 3')
        a.e('s_lshl_b32 s46, s45, 12')
        a.e('s_add_u32 s46, s46, s44')
        a.e(f's_add_u32 s47, s46, {90 * 1024}')
        a.e('s_lshr_b32 s48, s45, 1')
        a.e('s_lshl_b32 s48, s48, 10')
        a.e('s_add_u32 s48, s48, s44')
        a.e('s_and_b32 s49, s45, 1')
        a.e('s_lshl_b32 s49, s49, 3')
        a.e('s_add_u32 s48, s48, s49')
        a.e(f's_add_u32 s48, s48, {16 * 1024}')
        a.e(f's_add_u32 s49, s48, {90 * 1024}')
        idx = 0
        for m in range(5):
            for e in range(2):
                pk = self.AF + 4 * idx
                idx += 1
                Fs = (2 * m, 2 * m + 1) if m < 4 else (8,)
                prs = [(self.ACC0 + 8 * F + 4 * e + 2 * i, self.ACC1 + 8 * F + 4 * e + 2 * i) for F in Fs for i in range(2)]
                for g, z in prs:
                    a.e(f'v_pk_fma_f32 {vr(g, 2)}, {vr(g, 2)}, {vr(246 + 2 * e, 2)}, {vr(250 + 2 * e, 2)} op_sel_hi:[1,0,0]')
                for g, z in prs:
                    a.e(f'v_pk_mul_f32 {vr(g, 2)}, {vr(g, 2)}, {vr(z, 2)}')
                for i, (g, z) in enumerate(prs):
                    a.e(f'v_cvt_pk_bf16_f32 v{pk + i}, v{g}, v{g + 1}')
                if m < 4:
                    a.vm(f'buffer_store_dwordx4 {vr(pk, 4)}, v19, s[12:15], s{46 + e} offen offset:{1024 * m} {SC}', 'st')
                else:
                    a.vm(f'buffer_store_dwordx2 {vr(pk, 2)}, v19, s[12:15], s{48 + e} offen {SC}', 'st')


def write_nonce(a):
    l = a.newlabel('NOW')
    a.e('s_or_b32 s44, s3, s20')
    a.e('s_cmp_lg_u32 s44, 0')
    a.e(f's_cbranch_scc1 {l}')
    a.e('s_memrealtime s[44:45]')
    a.e('s_waitcnt lgkmcnt(0)')
    a.e('s_or_b32 s44, s44, 1')
    a.e('v_mov_b32 v28, 0')
    a.e('v_mov_b32 v29, s44')
    a.e('global_store_dword v28, v29, s[16:17] sc0 sc1')
    a.label(l)


def kv_issue(a, R0):
    a.e('v_lshrrev_b32 v2, 2, v1')
    a.e('v_mul_u32_u24 v2, 36, v2')
    a.e('v_and_b32 v4, 3, v1')
    a.e('v_min_u32 v4, 2, v4')
    a.e('v_lshl_add_u32 v2, v4, 4, v2')
    a.e('s_mul_i32 s44, s20, %d' % (9 * 576))
    a.e('s_add_u32 s45, s44, %d' % (5 * 576))
    for i in range(9):
        a.e(f'buffer_load_dwordx4 {vr(R0 + 4 * i, 4)}, v2, s[40:43], s{44 + i // 5} offen offset:{576 * (i % 5)}')


def kv_compute(a, which_s, XF, LB, R0):
    A0, A1, T = R0, R0 + 1, R0 + 2
    WF = R0 + 8
    D = R0 + 24
    a.e(f'v_lshrrev_b32 v{A0}, 4, v1')
    a.e(f'v_lshlrev_b32 v{A0}, 9, v{A0}')
    a.e(f'v_bfe_u32 v{A1}, v1, 2, 2')
    a.e(f'v_lshl_add_u32 v{A0}, v{A1}, 6, v{A0}')
    a.e(f'v_add_u32 v{A0}, {LB}, v{A0}')
    a.e(f'v_add_u32 v{A1}, 32, v{A0}')
    a.e(f'v_and_b32 v{T}, 3, v1')
    a.e(f'v_lshl_add_u32 v{A0}, v{T}, 3, v{A0}')

    def rd(ks):
        b = WF + 8 * (ks % 2)
        for j in range(2):
            a.lg(f'ds_read_b64_tr_b16 {vr(b + 2 * j, 2)}, v{A0} offset:{2048 * ks + 256 * j}', ('w', ks))
            a.lg(f'ds_read_b64_tr_b16 {vr(b + 4 + 2 * j, 2)}, v{A1} offset:{2048 * ks + 256 * j}', ('w', ks))
    rd(0)
    for ks in range(18):
        if ks + 1 < 18:
            rd(ks + 1)
        a.wait_lg(('w', ks))
        b = WF + 8 * (ks % 2)
        a.e(f'v_mfma_f32_16x16x32_bf16 {vr(D, 4)}, {vr(b, 4)}, {vr(XF + 4 * ks, 4)}, {"0" if ks == 0 else vr(D, 4)}')
        a.e(f'v_mfma_f32_16x16x32_bf16 {vr(D + 4, 4)}, {vr(b + 4, 4)}, {vr(XF + 4 * ks, 4)}, {"0" if ks == 0 else vr(D + 4, 4)}')
    K32, G, U0, U1, U2, U3 = R0, R0 + 1, R0 + 2, R0 + 3, R0 + 4, R0 + 5
    P = WF
    a.e('s_lshr_b32 s44, s23, 1')
    a.e(f's_mul_i32 s44, s44, {KV_TILE}')
    a.e(f's_add_u32 s44, s44, {KV_OFF}')
    a.e('s_and_b32 s45, s23, 1')
    a.e('s_lshl_b32 s45, s45, 4')
    a.e(f'v_and_b32 v{K32}, 15, v1')
    a.e(f'v_add_u32 v{K32}, s45, v{K32}')
    a.e(f'v_lshrrev_b32 v{G}, 4, v1')
    a.e(f'v_cvt_pk_bf16_f32 v{P}, v{D}, v{D + 1}')
    a.e(f'v_cvt_pk_bf16_f32 v{P + 1}, v{D + 2}, v{D + 3}')
    a.e(f'v_cvt_pk_bf16_f32 v{P + 2}, v{D + 4}, v{D + 5}')
    lv = a.newlabel('KV_V')
    le = a.newlabel('KV_E')
    a.e(f's_cmp_lg_u32 s{which_s}, 0')
    a.e(f's_cbranch_scc1 {lv}')
    a.e(f'v_lshrrev_b32 v{U0}, 1, v{G}')
    a.e(f'v_lshl_add_u32 v{U0}, v{U0}, 5, v{K32}')
    a.e(f'v_lshlrev_b32 v{U0}, 4, v{U0}')
    a.e(f'v_and_b32 v{U1}, 1, v{G}')
    a.e(f'v_lshl_add_u32 v{U0}, v{U1}, 3, v{U0}')
    a.e(f'buffer_store_dwordx2 {vr(P, 2)}, v{U0}, s[12:15], s44 offen {SC}')
    a.e(f'v_lshlrev_b32 v{U1}, 2, v{K32}')
    a.e('s_mov_b64 exec, 0xffff')
    a.e(f'buffer_store_dword v{P + 2}, v{U1}, s[12:15], s44 offen offset:1024 {SC}')
    a.e('s_mov_b64 exec, -1')
    a.e(f's_branch {le}')
    a.label(lv)
    a.e(f'v_lshrrev_b32 v{U0}, 2, v{K32}')
    a.e(f'v_mul_u32_u24 v{U0}, 168, v{U0}')
    a.e(f'v_and_b32 v{U1}, 3, v{K32}')
    a.e(f'v_lshl_add_u32 v{U2}, v{U1}, 5, v{U0}')
    a.e(f'v_lshl_add_u32 v{U2}, v{G}, 3, v{U2}')
    a.e(f'buffer_store_dwordx2 {vr(P, 2)}, v{U2}, s[12:15], s44 offen offset:1152 {SC}')
    a.e(f'v_lshl_add_u32 v{U2}, v{U1}, 3, v{U0}')
    a.e(f'v_add_u32 v{U3}, 32, v{U0}')
    a.e(f'v_mov_b32 v{P + 3}, 0x3f80')
    a.e(f'v_cmp_eq_u32 vcc, 0, v{G}')
    a.e(f'v_cndmask_b32 v{U2}, v{U3}, v{U2}, vcc')
    a.e(f'v_cndmask_b32 v{P + 2}, 0, v{P + 2}, vcc')
    a.e(f'v_cndmask_b32 v{P + 3}, 0, v{P + 3}, vcc')
    a.e('s_mov_b32 exec_hi, 0')
    a.e(f'buffer_store_dwordx2 {vr(P + 2, 2)}, v{U2}, s[12:15], s44 offen offset:{1152 + 128} {SC}')
    a.e('s_mov_b64 exec, -1')
    a.label(le)
    a.wait_vm0()
    a.e('s_barrier')
    lf = a.newlabel('KV_F')
    a.e('s_cmp_lg_u32 s20, 0')
    a.e(f's_cbranch_scc1 {lf}')
    a.e(f'v_mov_b32 v{R0}, 128')
    a.e(f'v_mov_b32 v{R0 + 1}, 1')
    a.e('s_mov_b64 exec, 1')
    a.e(f'global_atomic_add v{R0 + 2}, v{R0}, v{R0 + 1}, s[16:17] sc0 sc1')
    a.e('s_mov_b64 exec, -1')
    a.e(f'v_lshlrev_b32 v{R0}, 9, v1')
    a.e(f'v_mov_b32 v{R0 + 1}, s62')
    a.e(f's_mov_b32 s44, {GO_OFF}')
    a.e('s_waitcnt vmcnt(0)')
    a.e(f'v_readfirstlane_b32 s45, v{R0 + 2}')
    a.e('s_cmp_lg_u32 s45, 63')
    a.e(f's_cbranch_scc1 {lf}')
    for i in range(4):
        a.e(f'buffer_store_dword v{R0 + 1}, v{R0}, s[12:15], s44 offen offset:{128 * i} {SC}')
    a.label(lf)


def gate_issue(a, LB):
    a.e('v_lshlrev_b32 v2, 4, v1')
    a.e('s_lshl_b32 s45, s20, 11')
    a.e(f's_add_u32 m0, s45, {LB}')
    a.e('buffer_load_dwordx4 v2, s[40:43], 0 offen lds')
    a.e('buffer_load_dwordx4 v2, s[40:43], 0 offen offset:1024 lds')


def gate_compute(a, XF, LB, R0, vt):
    a.e('s_lshl_b32 s45, s20, 11')
    a.e(f's_add_u32 s45, s45, {LB}')
    a.e(f'v_and_b32 v{R0}, 48, v1')
    a.e(f'v_add_u32 v{R0}, s45, v{R0}')
    D = R0 + 4
    WF = R0 + 8
    for k0 in range(0, 18, 6):
        for i in range(6):
            a.lg(f'ds_read_b128 {vr(WF + 4 * i, 4)}, v{R0} offset:{64 * (k0 + i)}', 'g')
        a.wait_lg0()
        for i in range(6):
            ks = k0 + i
            a.e(f'v_mfma_f32_16x16x32_bf16 {vr(D, 4)}, {vr(WF + 4 * i, 4)}, {vr(XF + 4 * ks, 4)}, {"0" if ks == 0 else vr(D, 4)}')
    a.e(f'v_mul_f32 v{D}, {hx(-1.4426950408889634)}, v{D}')
    a.e(f'v_exp_f32 v{D}, v{D}')
    a.e(f'v_add_f32 v{D}, 1.0, v{D}')
    a.e(f'v_rcp_f32 v{D}, v{D}')
    a.e(f'v_mov_b32 v{D + 1}, s62')
    a.e(f'v_lshlrev_b32 v{R0}, 3, v{vt}')
    a.e(f's_mov_b32 s44, {GATE_OFF}')
    a.e('s_mov_b64 exec, 0xffff')
    a.e(f'buffer_store_dwordx2 {vr(D, 2)}, v{R0}, s[12:15], s44 offen {SC}')
    a.e('s_mov_b64 exec, -1')


QSCALE = 18 ** -0.5 * 1.4426950408889634
KVBUF = 40960
M_OFFSET = 64.0


class ATT:
    SB = 16
    OB = 48
    QF = 80
    KF = 96
    VF = 112
    PF = 128
    XF = 136
    WF = 208
    WQS = 16

    def __init__(self, a):
        self.a = a

    def setup(self, sid):
        a = self.a
        a.e(f's_load_dwordx4 s[4:7], s[0:1], {A_X}')
        a.e(f's_load_dwordx4 s[16:19], s[0:1], {A_DBG}')
        a.e(f's_load_dwordx4 s[32:35], s[0:1], {A_WK}')
        a.e(f's_load_dwordx4 s[28:31], s[0:1], {A_WOUT}')
        a.e(f's_load_dwordx2 s[36:37], s[0:1], {A_WO}')
        a.e(f's_load_dwordx2 s[54:55], s[0:1], {A_WSP}')
        a.e('v_lshrrev_b32 v1, 6, v0')
        a.e('v_readfirstlane_b32 s20, v1')
        a.e('v_and_b32 v1, 63, v0')
        a.e(f's_and_b32 s24, s{sid}, 3')
        a.e(f's_lshr_b32 s25, s{sid}, 3')
        a.e('s_lshl_b32 s21, s24, 3')
        a.e('s_and_b32 s23, s25, 7')
        a.e('s_add_u32 s21, s21, s23')
        a.e(f's_and_b32 s22, s{sid}, 4')
        a.e('s_lshr_b32 s23, s25, 3')
        a.e('s_add_u32 s22, s22, s23')
        a.e('s_lshl_b32 s23, s21, 2')
        a.e('s_add_u32 s23, s23, s20')
        a.e('s_lshr_b32 s44, s23, 1')
        a.e('s_lshl_b32 s44, s44, 5')
        a.e('s_and_b32 s45, s23, 1')
        a.e('s_lshl_b32 s45, s45, 2')
        a.e('s_add_u32 s44, s44, s45')
        a.e('v_lshrrev_b32 v8, 5, v1')
        a.e('v_lshlrev_b32 v8, 3, v8')
        a.e('v_bfe_u32 v9, v1, 3, 2')
        a.e('v_add3_u32 v8, v8, v9, s44')
        a.e('v_mul_u32_u24 v8, 1152, v8')
        a.e('v_lshrrev_b32 v9, 4, v1')
        a.e('v_and_b32 v10, 7, v1')
        a.e('v_xor_b32 v9, v9, v10')
        a.e('v_lshlrev_b32 v9, 4, v9')
        a.e('v_xor_b32 v10, 64, v9')
        a.e('v_add_u32 v10, v10, v8')
        a.e('v_add_u32 v8, v9, v8')
        a.e(f'v_add_u32 v9, {16 * 1152 - 1024}, v10')
        a.e('v_bfe_u32 v3, v1, 2, 2')
        a.e('v_lshlrev_b32 v3, 3, v3')
        a.e('v_and_b32 v10, 3, v1')
        a.e('v_add3_u32 v3, v3, v10, s44')
        a.e('s_mul_i32 s26, s20, 10240')
        if 'nocodepf' not in ABL:
            a.e('s_getpc_b64 s[46:47]')
            a.e('s_and_b32 s46, s46, 0xffffff00')
            a.e('s_lshl_b32 s45, s25, 2')
            a.e('s_add_u32 s45, s45, s20')
            a.e('s_mul_i32 s45, s45, 5')
            a.e('v_min_u32 v10, 4, v1')
            a.e('v_add_u32 v10, s45, v10')
            a.e('v_min_u32 v10, CODE_LINES, v10')
            a.e('v_lshlrev_b32 v10, 7, v10')
            a.e('global_load_dword v255, v10, s[46:47]')
        a.e('s_waitcnt lgkmcnt(0)')
        a.e('s_mov_b32 s8, s6')
        a.e('s_mov_b32 s9, s7')
        srd(a, 8, 576 * 1152)
        srd(a, 4, 2359296)
        a.e('s_mov_b32 s12, s18')
        a.e('s_mov_b32 s13, s19')
        srd(a, 12, WS_SIZE)

    def roles(self, fk, fg, fn=None):
        a = self.a
        lg = a.newlabel('RG')
        lr = a.newlabel('RR')
        le = a.newlabel('RE')
        a.e('s_cmp_ge_u32 s27, 2')
        a.e(f's_cbranch_scc1 {lg}')
        if fk:
            fk()
        a.e(f's_branch {le}')
        a.label(lg)
        a.e('s_cmp_lg_u32 s27, 2')
        a.e(f's_cbranch_scc1 {lr}')
        if fg:
            fg()
        a.label(lr)
        if fn:
            fn()
        a.label(le)

    def front(self):
        a = self.a
        a.e('s_mul_i32 s38, s20, 18432')
        for sg in range(9):
            a.e(f's_add_u32 m0, s38, {2048 * sg}')
            a.e(f's_movk_i32 s44, {128 * sg}')
            a.vm('buffer_load_dwordx4 v8, s[4:7], s44 offen lds', 'x')
            a.vm('buffer_load_dwordx4 v9, s[4:7], s44 offen offset:1024 lds', 'x')
        a.e('s_mov_b32 s27, 3')
        a.e('s_cmp_eq_u32 s22, 0')
        a.e('s_cselect_b32 s27, 0, s27')
        a.e('s_cmp_eq_u32 s22, 4')
        a.e('s_cselect_b32 s27, 1, s27')
        a.e('s_cmp_eq_u32 s22, 1')
        a.e('s_cselect_b32 s27, 2, s27')
        a.e('s_cmp_eq_u32 s27, 0')
        a.e('s_cselect_b32 s40, s32, s34')
        a.e('s_cselect_b32 s41, s33, s35')
        a.e(f's_movk_i32 s42, {576 * 36}')
        a.e('s_cmp_eq_u32 s27, 2')
        a.e('s_cselect_b32 s40, s30, s40')
        a.e('s_cselect_b32 s41, s31, s41')
        a.e('s_cselect_b32 s42, 1152, s42')
        a.e('s_mov_b32 s43, 0x00020000')
        self.roles(lambda: kv_issue(a, self.WF), lambda: gate_issue(a, 73728))
        a.e('v_mov_b32 v2, 0')
        a.e(f'global_load_dword v4, v2, s[16:17] {SC}')
        self.wq_addr()
        a.vmq = []
        a.e('s_mul_i32 s44, s20, %d' % (48 * 1152))
        for c in range(3):
            for g in range(3):
                for i in range(3):
                    a.vm(f'buffer_load_dwordx4 {vr(self.WQS + 36 * c + 12 * g + 4 * i, 4)}, v{5 + i}, s[8:11], s44 offen', ('wq', c))
                a.e(f's_add_u32 s44, s44, {16 * 1152 if g < 2 else 160 * 1152}')
        a.e('v_and_b32 v10, 15, v1')
        a.e('v_bfe_u32 v11, v1, 1, 3')
        a.e('v_lshrrev_b32 v12, 4, v1')
        a.e('v_xor_b32 v11, v11, v12')
        a.e('v_lshlrev_b32 v10, 7, v10')
        a.e('v_lshl_add_u32 v10, v11, 4, v10')
        a.e('v_xor_b32 v11, 64, v10')
        a.e('v_add_u32 v10, s38, v10')
        a.e('v_add_u32 v11, s38, v11')
        a.e('s_mul_i32 s44, s20, 9216')
        a.e('v_lshlrev_b32 v15, 4, v1')
        a.e('v_add_u32 v14, s44, v15')
        a.e(f's_setprio {opt("pa", [0, 0, 0, 0])[1]}')
        a.e('s_waitcnt vmcnt(27)')
        stamp(a, 4)
        for sg in range(9):
            for jj in range(2):
                a.lg(f'ds_read_b128 {vr(self.XF + 4 * (2 * sg + jj), 4)}, v{10 + jj} offset:{2048 * sg}', 'xr')
        get_nonce(a, 2, 4)
        a.wait_lg0()
        self.roles(None, lambda: gate_compute(a, self.XF, 73728, self.WF, 3))
        a.lgq = []

    def stage(self, R0, buf):
        for i in range(9):
            self.a.lg(f'ds_write_b128 v14, {vr(R0 + 4 * i, 4)} offset:{buf * KVBUF + 1024 * i}', 'sw')

    def wq_addr(self):
        a = self.a
        a.e('s_mul_i32 s44, s22, 144')
        for i in range(3):
            a.e(f'v_add_u32 v10, {64 * i}, v1')
            a.e('v_mul_u32_u24 v11, 43691, v10')
            a.e('v_lshrrev_b32 v11, 19, v11')
            a.e('v_mul_u32_u24 v12, 12, v11')
            a.e('v_sub_u32 v10, v10, v12')
            a.e('v_lshrrev_b32 v12, 2, v10')
            a.e('v_and_b32 v13, 1, v10')
            a.e('v_lshl_add_u32 v13, v12, 1, v13')
            a.e('v_mul_u32_u24 v13, 36, v13')
            a.e('v_bfe_u32 v14, v10, 1, 1')
            a.e('v_lshl_add_u32 v13, v14, 4, v13')
            a.e('v_and_b32 v14, 3, v10')
            a.e('v_mul_u32_u24 v14, 36, v14')
            a.e('v_add_u32 v14, 32, v14')
            a.e('v_cmp_eq_u32 vcc, 2, v12')
            a.e('v_cndmask_b32 v13, v13, v14, vcc')
            a.e('v_mul_u32_u24 v11, 1152, v11')
            a.e(f'v_add3_u32 v{5 + i}, v11, v13, s44')
        a.e('v_lshrrev_b32 v10, 4, v1')
        a.e('v_lshlrev_b32 v10, 3, v10')
        a.e('v_bfe_u32 v11, v1, 2, 2')
        a.e('v_add_u32 v10, v10, v11')
        a.e('v_mul_u32_u24 v10, 192, v10')
        a.e('v_and_b32 v11, 3, v1')
        a.e('v_lshl_add_u32 v8, v11, 4, v10')
        a.e(f'v_add_u32 v9, {KVBUF}, v8')

    def issue_kv(self, buf_s=None, buf=None, flags=''):
        a = self.a
        for g in range(3):
            if buf_s is not None:
                a.e(f's_add_u32 m0, s{buf_s}, {4096 * g}')
            else:
                a.e(f's_add_u32 m0, s31, {buf * KVBUF + 4096 * g}')
            for i in range(4 if g < 2 else 2):
                a.vm(f'buffer_load_dwordx4 v15, s[12:15], s30 offen offset:{1024 * i} {flags} lds', 'kv')
            a.e('s_add_u32 s30, s30, 4096')
        a.e(f's_add_u32 s30, s30, {16 * KV_TILE - 3 * 4096}')

    def kv_ready(self):
        a = self.a
        l = a.newlabel('KVR')
        a.e('s_cmp_lg_u32 s20, 0')
        a.e(f's_cbranch_scc1 {l}')
        a.e('s_lshl_b32 s44, s3, 7')
        a.e(f's_add_u32 s44, s44, {GO_OFF}')
        a.e('v_mov_b32 v2, 0')
        q = list(a.vmq)
        poll(a, lambda: a.e(f'buffer_load_dword v40, v2, s[12:15], s44 offen {SC}'), [40], 42, sleep=4)
        a.vmq = q
        a.label(l)

    def q_phase(self):
        a = self.a
        D = 16
        a.e('s_barrier')

        def fk():
            self.stage(self.WF, 1)
            a.wait_lg0()
            a.e('s_barrier')
            kv_compute(a, 27, self.XF, KVBUF, self.WF)
        self.roles(fk, None)
        a.lgq = []
        stamp(a, 5)
        a.e(f's_setprio {opt("pa", [0, 0, 0, 0])[2]}')
        a.e('s_waitcnt vmcnt(9)')
        self.stage(self.WQS, 0)
        self.stage(self.WQS + 36, 1)
        a.e('s_mov_b32 s31, s26')
        a.e('v_add_u32 v15, s31, v15')
        a.e(f's_mov_b32 s30, {KV_OFF}')

        def rd(ks):
            c, k = ks // 6, ks % 6
            b = self.WF + 20 * (ks % 2)
            va = 8 + c % 2
            for t in range(5):
                for j in range(2):
                    off = 6144 * k + 768 * j + (64 * (t // 2) + 8 * (t % 2) if t < 4 else 128)
                    a.lg(f'ds_read_b64_tr_b16 {vr(b + 4 * t + 2 * j, 2)}, v{va} offset:{off}', ('w', ks))
        for c in range(3):
            a.wait_lg0()
            if c == 2:
                stamp(a, 6)
                self.kv_ready()
            a.e('s_barrier')
            if c == 1:
                a.wait_vm0()
                self.stage(self.WQS + 72, 0)
                a.e('s_lshl_b32 s44, s3, 2')
                a.e('s_add_u32 s44, s44, s20')
                a.e('s_mul_i32 s45, s44, 21')
                a.e('s_mul_i32 s44, s44, 6')
                a.e('v_min_u32 v2, 20, v1')
                a.e('v_add_u32 v2, s45, v2')
                a.e('v_min_u32 v2, 20735, v2')
                a.e('v_lshlrev_b32 v2, 7, v2')
                a.vm('global_load_dword v255, v2, s[28:29]', 'pf')
                a.e('v_min_u32 v2, 5, v1')
                a.e('v_add_u32 v2, s44, v2')
                a.e('v_min_u32 v2, 5183, v2')
                a.e('v_lshlrev_b32 v2, 7, v2')
                a.vm('global_load_dword v255, v2, s[36:37]', 'pf')
            if c == 2:
                self.issue_kv(buf=1, flags=SCL)
            rd(6 * c)
            for k in range(6):
                ks = 6 * c + k
                if k < 5:
                    rd(ks + 1)
                a.wait_lg(('w', ks))
                b = self.WF + 20 * (ks % 2)
                for t in range(5):
                    d = vr(D + 4 * t, 4)
                    a.e(f'v_mfma_f32_16x16x32_bf16 {d}, {vr(b + 4 * t, 4)}, {vr(self.XF + 4 * ks, 4)}, {"0" if ks == 0 else d}')
        a.e('s_barrier')
        self.issue_kv(buf=0, flags=SCL)
        a.e('s_lshl_b32 s44, s24, 5')
        a.e('s_add_u32 s44, s44, s25')
        a.e('s_lshl_b32 s44, s44, 2')
        a.e('s_add_u32 s44, s44, s20')
        a.e('s_lshl_b32 s44, s44, 14')
        a.e('v_lshlrev_b32 v2, 7, v1')
        a.e('v_add_u32 v2, s44, v2')
        if 'notouch' in ABL:
            a.e('v_mov_b32 v2, 0')
        a.vm('global_load_dword v255, v2, s[54:55]', 'pf')
        a.e('v_add_u32 v2, 8192, v2')
        a.vm('global_load_dword v255, v2, s[54:55]', 'pf')
        a.e(f's_mov_b32 s44, {hx(QSCALE)}')
        a.e(f's_mov_b32 s45, {hx(QSCALE)}')
        for i in range(9):
            a.e(f'v_pk_mul_f32 {vr(D + 2 * i, 2)}, {vr(D + 2 * i, 2)}, s[44:45]')
        for p in range(2):
            for i in range(4):
                a.e(f'v_cvt_pk_bf16_f32 v{self.QF + 8 * p + i}, v{D + 8 * p + 2 * i}, v{D + 8 * p + 2 * i + 1}')
        a.e(f'v_cvt_pk_bf16_f32 v2, v{D + 16}, v{D + 17}')
        a.e('v_cmp_gt_u32 vcc, 32, v1')
        a.e(f'v_cndmask_b32 v{self.QF + 4}, 0, v2, vcc')
        a.e(f'v_cndmask_b32 v{self.QF + 12}, v2, 0, vcc')
        for p in range(2):
            for i in (5, 6, 7):
                a.e(f'v_mov_b32 v{self.QF + 8 * p + i}, 0')
            a.e(f'v_mov_b32 v{self.KF + 8 * p + 5}, 0x3f803f80')
            a.e(f'v_mov_b32 v{self.KF + 8 * p + 6}, 0x3f80')
            a.e(f'v_mov_b32 v{self.KF + 8 * p + 7}, 0')
        a.e('v_lshlrev_b32 v10, 4, v1')
        a.e('v_and_b32 v11, 31, v1')
        a.e('v_lshlrev_b32 v11, 2, v11')
        a.e('v_add_u32 v11, 1024, v11')
        a.e('v_bfe_u32 v2, v1, 2, 2')
        a.e('v_and_b32 v4, 3, v1')
        a.e('v_lshlrev_b32 v12, 5, v2')
        a.e('v_lshl_add_u32 v12, v4, 3, v12')
        a.e('v_lshlrev_b32 v2, 3, v2')
        a.e('v_add_u32 v2, 128, v2')
        a.e('v_mov_b32 v13, 160')
        a.e('v_cmp_eq_u32 vcc, 0, v4')
        a.e('v_cndmask_b32 v2, v13, v2, vcc')
        a.e('v_and_b32 v4, 16, v1')
        a.e('v_cmp_eq_u32 vcc, 0, v4')
        a.e('v_cndmask_b32 v12, v2, v12, vcc')
        a.e('v_lshrrev_b32 v2, 5, v1')
        a.e('v_mul_u32_u24 v2, 168, v2')
        a.e('v_add_u32 v12, v12, v2')
        a.e('v_add_u32 v12, 1152, v12')

    def readK(self, j):
        a = self.a
        b = self.KF + 8 * (j % 2)
        off = (j % 16) * KV_TILE
        a.lg(f'ds_read_b128 {vr(b, 4)}, v5 offset:{off}', ('K', j))
        a.lg(f'ds_read_b32 v{b + 4}, v6 offset:{off}', ('K', j))

    def readV(self, j, m):
        a = self.a
        b = self.VF + 8 * (j % 2)
        off = (j % 16) * KV_TILE
        for jj in range(2):
            a.lg(f'ds_read_b64_tr_b16 {vr(b + 4 * m + 2 * jj, 2)}, v7 offset:{off + (4 * m + 2 * jj) * 168}', ('V', j))

    def S(self, n, part):
        j, qt = n // 2, n % 2
        d = vr(self.SB + 16 * (n % 2), 16)
        k = self.KF + 8 * (j % 2) + 4 * part
        q = self.QF + 8 * qt + 4 * part
        self.a.e(f'v_mfma_f32_32x32x16_bf16 {d}, {vr(k, 4)}, {vr(q, 4)}, {"0" if part == 0 else d}')

    def PV(self, n, m):
        j, qt = n // 2, n % 2
        d = vr(self.OB + 16 * qt, 16)
        self.a.e(f'v_mfma_f32_32x32x16_bf16 {d}, {vr(self.VF + 8 * (j % 2) + 4 * m, 4)}, {vr(self.PF + 4 * m, 4)}, {d}')

    def set_m(self, qt, vm, add):
        a = self.a
        q = self.QF + 8 * qt
        a.e(f'v_sub_f32 v2, {hx(-add)}, v{vm}')
        a.e('v_and_b32 v4, 0xffff0000, v2')
        a.e('v_sub_f32 v2, v2, v4')
        a.e('v_and_b32 v13, 0xffff0000, v2')
        a.e('v_sub_f32 v2, v2, v13')
        a.e('v_lshrrev_b32 v4, 16, v4')
        a.e('v_or_b32 v4, v4, v13')
        a.e('v_lshrrev_b32 v2, 16, v2')
        a.e('v_cmp_gt_u32 vcc, 32, v1')
        if qt == 0:
            a.e(f'v_cndmask_b32 v{q + 5}, 0, v4, vcc')
            a.e(f'v_cndmask_b32 v{q + 6}, 0, v2, vcc')
        else:
            a.e(f'v_cndmask_b32 v{q + 5}, v4, 0, vcc')
            a.e(f'v_cndmask_b32 v{q + 6}, v2, 0, vcc')

    def max16(self, b, dst, first):
        a = self.a
        if first:
            a.e(f'v_max3_f32 v{dst}, v{b}, v{b + 1}, v{b + 2}')
            a.e(f'v_max_f32 v{dst}, v{dst}, v{b + 3}')
            r = range(4, 16, 2)
        else:
            r = range(0, 16, 2)
        for i in r:
            a.e(f'v_max3_f32 v{dst}, v{b + i}, v{b + i + 1}, v{dst}')

    def halves_max(self, r):
        a = self.a
        a.e(f'v_mov_b32 v2, v{r}')
        a.e(f'v_permlane32_swap_b32 v{r}, v2')
        a.e(f'v_max_f32 v{r}, v{r}, v2')

    def main(self, flags=''):
        a = self.a
        L_PASS = a.newlabel('ATT_PASS')
        L_LOOP = a.newlabel('ATT_LOOP')
        L_NOKV = a.newlabel('ATT_NOKV')
        L_FIN = a.newlabel('ATT_FIN')
        a.e('s_mov_b32 s33, 0')
        a.e('v_lshlrev_b32 v3, 3, v3')
        for i in range(3):
            a.e(f'v_add_u32 v{5 + i}, {KVBUF}, v{10 + i}')
        a.e('s_waitcnt vmcnt(12)')
        a.vmq = a.vmq[-12:]
        a.e('s_barrier')
        self.readK(0)
        a.wait_lg0()
        for qt in range(2):
            self.S(qt, 0)
            self.S(qt, 1)
        for qt in range(2):
            self.max16(self.SB + 16 * qt, 8 + qt, True)
            self.halves_max(8 + qt)
            self.set_m(qt, 8 + qt, M_OFFSET)
        a.label(L_PASS)
        self.readK(0)
        self.readK(1)
        self.readV(0, 0)
        self.readV(0, 1)
        for i in range(32):
            a.e(f'v_mov_b32 v{self.OB + i}, 0')
        for i in range(4):
            a.e(f'v_mov_b32 v{self.PF + 4 + i}, 0')
            a.e(f'v_mov_b32 v{self.VF + 12 + i}, 0')
        a.e('s_mov_b32 s34, 0')
        a.e(f's_add_u32 s35, s31, {KVBUF}')
        a.e(f's_mov_b32 s37, {-KVBUF & 0xffffffff}')
        a.wait_lg0()
        self.S(0, 0)
        self.S(0, 1)
        a.e('s_nop 7')
        a.label(L_LOOP)
        a.wait_lg0()
        if opt('gate'):
            lng = a.newlabel('ATT_NG')
            a.e(f's_cmp_lg_u32 s34, {opt("gate")[0]}')
            a.e(f's_cbranch_scc1 {lng}')
            a.e('s_lshl_b32 s44, s3, 7')
            a.e(f's_add_u32 s44, s44, {PROG_OFF}')
            a.e('v_mov_b32 v2, 0')
            poll(a, lambda: a.e(f'buffer_load_dword v4, v2, s[12:15], s44 offen {SC}'), [4], 8, sleep=8)
            if 'gateprio' in ABL:
                a.e('s_setprio 1')
            a.label(lng)
        for n in range(32):
            j, qt = n // 2, n % 2
            sb = self.SB + 16 * (n % 2)
            if n == 29:
                a.e('s_waitcnt vmcnt(0) lgkmcnt(0)')
                a.vmq = []
                a.lgq = []
                a.e('s_barrier')
                for i in range(3):
                    a.e(f'v_add_u32 v{5 + i}, s37, v{5 + i}')
                a.e('s_cmp_ge_u32 s34, 2')
                a.e(f's_cbranch_scc1 {L_NOKV}')
                self.issue_kv(buf_s=35, flags=flags)
                a.label(L_NOKV)
                self.gate_load()
                a.e('s_add_u32 s35, s35, s37')
                a.e('s_sub_u32 s37, 0, s37')
            if qt == 1:
                a.wait_lg(('K', j + 1))
            self.S(n + 1, 0)
            for i in range(0, 4):
                a.e(f'v_exp_f32 v{sb + i}, v{sb + i}')
            self.PV(n - 1, 1)
            if qt == 0:
                self.readV(j + 1, 0)
            else:
                self.readK(j + 2)
            for i in range(4, 8):
                a.e(f'v_exp_f32 v{sb + i}, v{sb + i}')
            self.S(n + 1, 1)
            for i in range(4):
                a.e(f'v_cvt_pk_bf16_f32 v{self.PF + i}, v{sb + 2 * i}, v{sb + 2 * i + 1}')
            for i in range(8, 12):
                a.e(f'v_exp_f32 v{sb + i}, v{sb + i}')
            if qt == 0:
                a.wait_lg(('V', j))
            self.PV(n, 0)
            if qt == 0:
                self.readV(j + 1, 1)
            for i in range(12, 16):
                a.e(f'v_exp_f32 v{sb + i}, v{sb + i}')
            for i in range(4, 8):
                a.e(f'v_cvt_pk_bf16_f32 v{self.PF + i}, v{sb + 2 * i}, v{sb + 2 * i + 1}')
        a.e('s_add_u32 s34, s34, 1')
        a.e('s_cmp_lt_u32 s34, 4')
        a.e(f's_cbranch_scc1 {L_LOOP}')
        self.PV(31, 1)
        a.wait_all()
        a.e('s_cmp_lg_u32 s33, 0')
        a.e(f's_cbranch_scc1 {L_FIN}')
        a.e(f'v_max3_f32 v2, |v{self.OB}|, |v{self.OB + 1}|, |v{self.OB + 2}|')
        regs = [self.OB + i for i in range(3, 11)] + [self.OB + 16 + i for i in range(11)] + [self.OB + 16]
        for i in range(0, len(regs), 2):
            a.e(f'v_max3_f32 v2, |v{regs[i]}|, |v{regs[i + 1]}|, v2')
        a.e(f's_mov_b32 s44, {hx(2.0 ** 110)}')
        a.e('v_cmp_nlt_f32 vcc, v2, s44') if False else a.e('v_cmp_ngt_f32 vcc, s44, v2')
        a.e(f'v_add_f32 v4, v{self.OB + 10}, v{self.OB + 26}')
        a.e('v_cmp_u_f32 s[46:47], v4, v4')
        a.e('s_or_b64 vcc, vcc, s[46:47]')
        a.e('s_cmp_lg_u64 vcc, 0')
        a.e('s_cselect_b32 s44, 1, 0')
        a.e('v_mov_b32 v2, s44')
        a.e('s_lshl_b32 s45, s20, 2')
        a.e(f's_add_u32 s45, s45, {16 * KV_TILE}')
        a.e('v_mov_b32 v4, s45')
        a.e('ds_write_b32 v4, v2')
        a.e(f'v_mov_b32 v4, {16 * KV_TILE}')
        a.e('s_waitcnt lgkmcnt(0)')
        a.e('s_barrier')
        a.e(f'ds_read_b128 {vr(self.PF, 4)}, v4')
        a.e('s_waitcnt lgkmcnt(0)')
        a.e(f'v_or3_b32 v2, v{self.PF}, v{self.PF + 1}, v{self.PF + 2}')
        a.e(f'v_or_b32 v2, v2, v{self.PF + 3}')
        a.e('v_readfirstlane_b32 s44, v2')
        a.e('s_cmp_eq_u32 s44, 0')
        a.e(f's_cbranch_scc1 {L_FIN}')
        L_MC = a.newlabel('ATT_MC')
        L_MT = a.newlabel('ATT_MT')
        a.e('s_mov_b32 s33, 1')
        for p in range(2):
            a.e(f'v_mov_b32 v{self.QF + 8 * p + 5}, 0')
            a.e(f'v_mov_b32 v{self.QF + 8 * p + 6}, 0')
            a.e(f'v_mov_b32 v{8 + p}, 0xff7fffff')
        a.e(f's_mov_b32 s30, {KV_OFF}')
        a.e('s_mov_b32 s34, 0')
        a.label(L_MC)
        a.e('s_barrier')
        self.issue_kv(buf=0, flags=flags)
        a.e('v_mov_b32 v5, v10')
        a.e('v_mov_b32 v6, v11')
        a.e('s_mov_b32 s36, 0')
        a.wait_vm0()
        a.e('s_barrier')
        a.label(L_MT)
        self.readK(0)
        a.wait_lg0()
        for qt in range(2):
            self.S(qt, 0)
            self.S(qt, 1)
        a.e(f'v_add_u32 v5, {KV_TILE}, v5')
        a.e(f'v_add_u32 v6, {KV_TILE}, v6')
        for qt in range(2):
            self.max16(self.SB + 16 * qt, 8 + qt, False)
        a.e('s_add_u32 s36, s36, 1')
        a.e('s_cmp_lt_u32 s36, 16')
        a.e(f's_cbranch_scc1 {L_MT}')
        a.e('s_add_u32 s34, s34, 1')
        a.e('s_cmp_lt_u32 s34, 4')
        a.e(f's_cbranch_scc1 {L_MC}')
        for qt in range(2):
            self.halves_max(8 + qt)
            self.set_m(qt, 8 + qt, 0.0)
        a.e('s_barrier')
        a.e(f's_mov_b32 s30, {KV_OFF}')
        self.issue_kv(buf=1, flags=flags)
        self.issue_kv(buf=0, flags=flags)
        for i in range(3):
            a.e(f'v_add_u32 v{5 + i}, {KVBUF}, v{10 + i}')
        a.e('s_waitcnt vmcnt(10)')
        a.e('s_barrier')
        a.e(f's_branch {L_PASS}')
        a.label(L_FIN)
        a.vmq = []
        a.lgq = []

    def epilogue(self, flags=''):
        a = self.a
        a.e('s_mul_i32 s44, s23, 90')
        a.e('s_lshl_b32 s45, s22, 1')
        a.e('s_add_u32 s45, s45, s44')
        a.e('s_lshl_b32 s45, s45, 10')
        a.e(f's_add_u32 s45, s45, {UF_OFF}')
        a.e('s_lshr_b32 s46, s22, 2')
        a.e('s_add_u32 s46, s46, s44')
        a.e('s_lshl_b32 s46, s46, 10')
        a.e('s_and_b32 s47, s22, 3')
        a.e('s_lshl_b32 s47, s47, 8')
        a.e('s_add_u32 s46, s46, s47')
        a.e(f's_add_u32 s46, s46, {UF_OFF + 16 * 1024}')
        a.e('v_and_b32 v4, 15, v1')
        a.e('v_lshlrev_b32 v4, 4, v4')
        a.e('v_bfe_u32 v5, v1, 4, 1')
        a.e('v_lshl_add_u32 v4, v5, 2, v4')
        poll(a, self.gate_load, [self.XF + 1], 8, first_done=True)
        for qt in range(2):
            o = self.OB + 16 * qt
            a.e(f'v_mov_b32 v2, v{o + 10}')
            a.e(f'v_permlane32_swap_b32 v{o + 10}, v2')
            a.e(f'v_rcp_f32 v6, v{o + 10}')
            a.e(f'v_mul_f32 v6, v6, v{self.XF}')
            for i in range(5):
                a.e(f'v_pk_mul_f32 {vr(o + 2 * i, 2)}, {vr(o + 2 * i, 2)}, v[6:7] op_sel_hi:[1,0]')
            pk = self.SB + 8 * qt
            for i in range(5):
                a.e(f'v_cvt_pk_bf16_f32 v{pk + i}, v{o + 2 * i}, v{o + 2 * i + 1}')
            a.e(f'buffer_store_dwordx4 {vr(pk, 4)}, v10, s[12:15], s45 offen offset:{1024 * qt} {flags}')
            a.e('s_mov_b32 exec_hi, 0')
            a.e(f'buffer_store_dword v{pk + 4}, v4, s[12:15], s46 offen offset:{8 * qt} {flags}')
            a.e('s_mov_b64 exec, -1')
        a.e('s_lshl_b32 s44, s21, 8')
        a.e('s_lshl_b32 s45, s20, 3')
        a.e('s_add_u32 s44, s44, s45')
        a.e('s_add_u32 s44, s44, s22')
        a.e('s_lshl_b32 s44, s44, 2')
        a.e(f's_add_u32 s44, s44, {F3_OFF + 512}')
        a.wait_vm0()
        set_flag(a, 44, 8)

    def gate_load(self):
        a = self.a
        a.e(f's_mov_b32 s38, {GATE_OFF}')
        a.e(f'buffer_load_dwordx2 {vr(self.XF, 2)}, v3, s[12:15], s38 offen {SC}')


def p3_pre(a):
    a.e('s_and_b32 s44, s22, 1')
    a.e('s_lshl_b32 s66, s21, 1')
    a.e('s_add_u32 s66, s66, s44')
    a.e('s_lshr_b32 s67, s22, 1')
    a.e('s_lshl_b32 s68, s66, 10')
    a.e(f's_add_u32 s68, s68, {F3_OFF}')
    a.e('s_lshr_b32 s72, s23, 1')
    a.e('s_lshl_b32 s72, s72, 10')
    a.e('s_lshr_b32 s44, s22, 2')
    a.e('s_lshl_b32 s44, s44, 7')
    a.e('s_add_u32 s72, s72, s44')
    a.e('s_and_b32 s44, s23, 1')
    a.e('s_lshl_b32 s44, s44, 4')
    a.e('s_add_u32 s72, s72, s44')
    a.e('s_and_b32 s44, s22, 3')
    a.e('s_lshl_b32 s44, s44, 2')
    a.e('s_add_u32 s72, s72, s44')
    a.e(f's_add_u32 s72, s72, {F3_OFF}')
    a.e('s_lshl_b32 s69, s67, 9')
    a.e(f's_add_u32 s69, s69, {FW3_OFF}')
    a.e('v_and_b32 v7, 31, v1')
    a.e('v_lshlrev_b32 v7, 2, v7')
    a.e('v_add_u32 v7, 512, v7')
    a.e('v_min_u32 v8, 44, v1')
    a.e('v_lshlrev_b32 v8, 3, v8')
    a.vm(f'buffer_load_dword v4, v7, s[12:15], s68 offen {SC}', 'pre')
    a.vm(f'buffer_load_dwordx2 v[2:3], v8, s[12:15], s69 offen {SC}', 'pre')


def p3(a):
    ACC = 16
    FR = 96
    DEPTH = 4
    NS = 23
    poll(a, lambda: a.e(f'buffer_load_dwordx2 v[2:3], v8, s[12:15], s69 offen {SC}'), [2, 3], 10, first_done=True)
    a.e('s_mul_i32 s44, s20, 18')
    a.e('s_add_u32 s44, s44, 18')
    a.e('s_mul_i32 s45, s20, 5')
    a.e('s_cmp_eq_u32 s20, 3')
    a.e('s_cselect_b32 s46, 1, 0')
    a.e('s_sub_u32 s45, s45, s46')
    a.e('s_cmp_ge_u32 s20, 2')
    a.e('s_cselect_b32 s46, 4, 5')
    a.e('v_and_b32 v8, 7, v1')
    a.e('s_lshl_b32 s47, s20, 7')
    a.e('v_lshl_add_u32 v8, v8, 2, s47')
    a.e('v_cmp_ne_u32 vcc, s62, v4')
    a.e('s_cmp_eq_u64 vcc, 0')
    if 'ufirst' in ABL:
        a.e('s_cmp_eq_u32 s20, 77')
    a.e('s_cselect_b32 s70, 1, 0')
    a.e('s_cselect_b32 s71, s46, 18')
    a.e('s_cselect_b32 s24, s45, s44')
    a.e('s_cselect_b32 s30, s44, s45')
    a.e('s_cselect_b64 vcc, -1, 0')
    a.e('s_mul_i32 s44, s67, 90')
    a.e('s_add_u32 s25, s24, s44')
    a.e('s_mul_i32 s25, s25, 4608')
    a.e(f's_add_u32 s25, s25, {W3_OFF}')
    a.e('s_add_u32 s31, s30, s44')
    a.e('s_mul_i32 s31, s31, 4608')
    a.e(f's_add_u32 s31, s31, {W3_OFF}')
    a.e('v_cndmask_b32 v7, v7, v8, vcc')
    a.e('v_lshrrev_b32 v6, 4, v1')
    a.e('v_lshlrev_b32 v6, 3, v6')
    a.e('v_and_b32 v9, 7, v1')
    a.e('v_add_u32 v6, v6, v9')
    a.e('v_lshlrev_b32 v6, 4, v6')
    a.e('v_add_u32 v6, 4096, v6')
    a.e('v_mov_b32 v12, v19')

    def loadW(k):
        b = FR + 36 * (k % DEPTH)
        for nt in range(4):
            a.vm(f'buffer_load_dwordx4 {vr(b + 4 * nt, 4)}, v12, s[12:15], s25 offen offset:{1024 * nt} {SCL}', ('W', k))
        a.vm(f'buffer_load_dwordx4 {vr(b + 16, 4)}, v6, s[12:15], s25 offen {SCL}', ('W', k))
        a.e('s_add_u32 s25, s25, 4608')

    def loadF(k):
        b = FR + 36 * (k % DEPTH)
        for i in range(4):
            a.vm(f'buffer_load_dwordx4 {vr(b + 20 + 4 * i, 4)}, v{2 + i}, s[12:15], s24 offen {SCL}', ('F', k))
        a.e('s_add_u32 s24, s24, 1024')
    a.e('s_mul_i32 s44, s66, 360')
    a.e('s_add_u32 s24, s24, s44')
    a.e('s_lshl_b32 s24, s24, 10')
    a.e(f's_add_u32 s24, s24, {UF_OFF}')
    a.e('s_add_u32 s30, s30, s44')
    a.e('s_lshl_b32 s30, s30, 10')
    a.e(f's_add_u32 s30, s30, {UF_OFF}')
    for i in range(4):
        a.e(f's_add_u32 s44, s20, {i}')
        a.e('s_and_b32 s44, s44, 3')
        a.e('s_mul_i32 s44, s44, 92160')
        a.e(f'v_add_u32 v{2 + i}, s44, v12')
    a.e('s_mov_b32 s8, s64')
    a.e('s_mov_b32 s9, s65')
    srd(a, 8, 2048 * 1152)
    if 'trfine' in ABL:
        stamp(a, 3)
    a.wait_vm('st')
    if 'trfine' in ABL:
        stamp(a, 4)
    set_flag(a, 72, 10)
    for k in range(DEPTH):
        loadW(k)
    lj = a.newlabel('P3_J')
    a.e('s_cmp_lg_u32 s70, 0')
    a.e(f's_cbranch_scc1 {lj}')
    q0 = list(a.vmq)
    if 'now3t' not in ABL:
        a.e('s_lshr_b32 s44, s2, 3')
        a.e('s_lshl_b32 s44, s44, 2')
        a.e('s_add_u32 s44, s44, s20')
        a.e('s_mul_i32 s44, s44, %d' % (102 * 128))
        a.e('s_and_b32 s45, s2, 4')
        a.e('s_mul_i32 s45, s45, %d' % (90 * 4608))
        a.e('s_add_u32 s44, s44, s45')
        a.e(f's_add_u32 s44, s44, {W3_OFF}')
        a.e('v_min_u32 v10, 50, v1')
        a.e('v_lshlrev_b32 v10, 8, v10')
        a.e('buffer_load_dword v255, v10, s[12:15], s44 offen')
        a.e('buffer_load_dword v255, v10, s[12:15], s44 offen offset:128')
    poll(a, lambda: a.e(f'buffer_load_dword v9, v8, s[12:15], s68 offen {SC}'), [9], 10, sleep=opt('psl', [2])[0])
    a.vmq = q0
    if 'trfine' in ABL:
        stamp(a, 5)
    a.label(lj)
    for k in range(DEPTH):
        loadF(k)
    stamp(a, 6 if 'trfine' in ABL else 3 if 'p3fine' in ABL else 5)

    if opt('pg'):
        a.e(f's_setprio {opt("pg")[2]}')

    def flags2():
        a.e(f'buffer_load_dword v9, v7, s[12:15], s68 offen {SC}')
    lskip = a.newlabel('P3_SKIP')
    for k in range(NS):
        b = FR + 36 * (k % DEPTH)
        if k == NS - 1:
            a.e('s_cmp_ge_u32 s20, 2')
            a.e(f's_cbranch_scc1 {lskip}')
            a.wait_vm0()
        a.wait_vm(('F', k))
        for i in range(4):
            for nt in range(5):
                d = vr(ACC + 16 * nt + 4 * i, 4)
                a.e(f'v_mfma_f32_16x16x32_bf16 {d}, {vr(b + 4 * nt, 4)}, {vr(b + 20 + 4 * i, 4)}, {"0" if k == 0 else d}')
        kn = k + DEPTH
        if 'p3fine' in ABL and k in (2, 12) and not (k == 2 and 'drainfirst' in ABL) and 'trfine' not in ABL:
            stamp(a, 4 if k == 2 else 5)
        if kn == NS - 1:
            ls = a.newlabel('P3_NL')
            a.e('s_cmp_ge_u32 s20, 2')
            a.e(f's_cbranch_scc1 {ls}')
            q1 = list(a.vmq)
            loadW(kn)
            loadF(kn)
            a.vmq = q1
            a.label(ls)
        elif kn < NS:
            if kn in (4, 5, 18):
                a.e(f's_cmp_eq_u32 s71, {kn}')
                a.e('s_cselect_b32 s25, s31, s25')
            loadW(kn)
            if kn in (4, 5, 18):
                ls = a.newlabel('P3_NS')
                a.e(f's_cmp_lg_u32 s71, {kn}')
                a.e(f's_cbranch_scc1 {ls}')
                a.e('s_mov_b32 s24, s30')
                q1 = list(a.vmq)
                poll(a, flags2, [9], 10)
                a.vmq = q1
                a.label(ls)
            loadF(kn)
    a.label(lskip)
    if 'trfine' not in ABL:
        stamp(a, 6)
    else:
        a.e('s_nop 7')
    for i in range(1, 4):
        a.e(f's_add_u32 s44, s20, {i}')
        a.e('s_and_b32 s44, s44, 3')
        a.e('s_mul_i32 s44, s44, 15360')
        a.e(f'v_add_u32 v{8 + i}, s44, v12')
        for nt in range(5):
            a.lg(f'ds_write_b128 v{8 + i}, {vr(ACC + 16 * nt + 4 * i, 4)} offset:{5120 * (i - 1) + 1024 * nt}', 'w')
    a.e('s_mul_i32 s26, s20, 15360')
    a.e('v_add_u32 v8, s26, v12')
    a.e('s_lshl_b32 s27, s66, 6')
    a.e('s_lshr_b32 s28, s20, 1')
    a.e('s_lshl_b32 s28, s28, 5')
    a.e('s_add_u32 s27, s27, s28')
    a.e('s_and_b32 s28, s20, 1')
    a.e('s_lshl_b32 s28, s28, 2')
    a.e('s_add_u32 s27, s27, s28')
    a.e('v_bfe_u32 v13, v1, 2, 2')
    a.e('v_lshlrev_b32 v13, 3, v13')
    a.e('v_and_b32 v14, 3, v1')
    a.e('v_add3_u32 v13, v13, v14, s27')
    a.e('v_mul_u32_u24 v13, 1152, v13')
    a.e('v_lshrrev_b32 v14, 4, v1')
    a.e('v_lshl_add_u32 v15, v14, 3, v13')
    a.e('v_lshl_add_u32 v13, v14, 4, v13')
    a.e('s_mul_i32 s27, s67, 144')
    a.wait_all()
    a.e('s_barrier')
    for nt in range(5):
        for i in range(3):
            a.lg(f'ds_read_b128 {vr(FR + 12 * nt + 4 * i, 4)}, v8 offset:{5120 * i + 1024 * nt}', ('r', nt))
    PKB = FR + 64
    for nt in range(5):
        a.wait_lg(('r', nt))
        b = FR + 12 * nt
        o = ACC + 16 * nt
        for h in range(2):
            a.e(f'v_pk_add_f32 {vr(b + 2 * h, 2)}, {vr(b + 2 * h, 2)}, {vr(b + 4 + 2 * h, 2)}')
            a.e(f'v_pk_add_f32 {vr(o + 2 * h, 2)}, {vr(o + 2 * h, 2)}, {vr(b + 8 + 2 * h, 2)}')
        for h in range(2):
            a.e(f'v_pk_add_f32 {vr(b + 2 * h, 2)}, {vr(b + 2 * h, 2)}, {vr(o + 2 * h, 2)}')
        for h in range(2):
            a.e(f'v_cvt_pk_bf16_f32 v{PKB + 2 * nt + h}, v{b + 2 * h}, v{b + 2 * h + 1}')
        if nt in (1, 3):
            a.e(f'buffer_store_dwordx4 {vr(PKB + 2 * nt - 2, 4)}, v13, s[8:11], s27 offen offset:{64 * (nt // 2)}')
        if nt == 4:
            a.e('s_mov_b32 exec_hi, 0')
            a.e(f'buffer_store_dwordx2 {vr(PKB + 8, 2)}, v15, s[8:11], s27 offen offset:128')
            a.e('s_mov_b64 exec, -1')


def kernel_text(name, a, vgpr=256, sgpr=96):
    a.fix_hazards()
    mv, ms, ma = a.max_regs()
    assert mv <= vgpr and ms <= sgpr and ma == 0, (mv, ms, ma)
    body = f'.globl {name}\n.p2align 8\n.type {name},@function\n{name}:\n' + a.text()
    desc = f""".p2align 6
.amdhsa_kernel {name}
  .amdhsa_next_free_vgpr {vgpr}
  .amdhsa_next_free_sgpr {sgpr}
  .amdhsa_accum_offset {(vgpr + 3) // 4 * 4}
  .amdhsa_group_segment_fixed_size 0
  .amdhsa_kernarg_size 112
  .amdhsa_user_sgpr_count 2
  .amdhsa_user_sgpr_kernarg_segment_ptr 1
  .amdhsa_system_sgpr_workgroup_id_x 1
.end_amdhsa_kernel
"""
    return body, desc


def build_file(kernels):
    hdr = open('cdna_kernels/' + NAME + '.s.ref').read().split('\n')
    head = [l for l in hdr if l.startswith(';') and '@launch' not in l and 'Override' not in l and 'grid=ceil' not in l]
    head = head[:15]
    out = '\n'.join(head) + '\n'
    for name, a, grid, block, lds, vgpr in kernels:
        kn = f'kernel={name} ' if (len(kernels) > 1 or LIST) else ''
        out += f'; @launch {kn}grid=({grid},1,1) block=({block},1,1) lds={lds}\n'
    out += '.amdgcn_target "amdgcn-amd-amdhsa--gfx950"\n.text\n'
    out += f'.set CODE_LINES, (K_END - {NAME}_kernel) / 128 - 4\n'
    descs = ''
    for name, a, grid, block, lds, vgpr in kernels:
        b, d = kernel_text(name, a, vgpr)
        out += b
        descs += d
    out += '.section .rodata,"a"\n' + descs
    return out


NG1, NG2 = 3, 6


def mega():
    a = Asm()
    a.e('s_cmp_ge_u32 s2, 512')
    a.e('s_cbranch_scc1 K_END')
    stamp(a, 0)
    a.e('s_cmp_lt_u32 s2, 256')
    a.e('s_cbranch_scc1 K_GEMM')
    a.e('s_sub_u32 s3, s2, 256')
    if 'g1only' in ABL:
        a.e('s_branch K_DONE')
    P = opt('pa', [0, 0, 0, 0])
    if P[0]:
        a.e(f's_setprio {P[0]}')
    t = ATT(a)
    t.setup(3)
    write_nonce(a)
    t.front()
    stamp(a, 1)
    t.q_phase()
    stamp(a, 2)
    a.e(f's_setprio {P[3]}')
    if 'noattmain' in ABL:
        a.e('v_lshlrev_b32 v3, 3, v3')
        t.gate_load()
        a.wait_all()
    else:
        t.main(flags=SCL)
    stamp(a, 3)
    if 'epiprio' in ABL:
        a.e('s_setprio 3')
    t.epilogue(flags=SC)
    a.e('s_branch K_DONE')
    a.label('K_GEMM')
    a.vmq = []
    a.lgq = []
    if 'gemmprio' in ABL:
        a.e('s_setprio 1')
    g = GW(a)
    g.limitA = 36
    g.setup()
    if 'attonly' in ABL:
        a.e('s_branch K_DONE')
    g.prologue_issue()
    g.setup2()
    def nonce_ld():
        a.e('v_mov_b32 v23, 0')
        a.vm(f'global_load_dword v24, v23, s[16:17] {SC}', 'nonce')
    g.hooks[30] = nonce_ld
    g.run_segment(0, 36)
    if 'g1fine' in ABL:
        a.e('s_branch K_DONE')
    stamp(a, 1)
    n1, n2 = opt('ng', [NG1, NG2])
    g.side_issue()
    g.z2_gelu_publish()
    g.retile_compute()
    g.z1_gelu(range(0, n1))
    g.z2_gather_norm_store()
    stamp(a, 2)
    a.e('s_lshl_b32 s49, s22, 8')
    a.e(f's_add_u32 s49, s49, {FZ_OFF}')
    a.e('s_lshl_b32 s48, s23, 2')
    a.e('s_add_u32 s48, s48, s49')
    a.e('s_lshl_b32 s44, s32, 6')
    a.e('v_and_b32 v29, 15, v1')
    a.e('v_lshl_add_u32 v29, v29, 2, s44')
    a.e('v_lshlrev_b32 v23, 2, v1')

    def zflag():
        a.wait_vm('st')
        set_flag(a, 48, 27)
    g.hooks[38] = zflag
    g.nextA = 40
    g.run_segment(36, 4, own=True)
    g.z1_gelu(range(n1, n2))
    poll(a, lambda: a.e(f'buffer_load_dword v26, v29, s[12:15], s49 offen {SC}'), [26], 27)
    stamp(a, 3)
    g.limitA = len(g.units)
    a.e('s_barrier')
    for _ in range(g.R - 1):
        for f in g.issueA():
            f()
    g.sp_pre()
    g.z1_gelu(range(n2, 9))

    def zall():
        a.e(f'buffer_load_dword v26, v23, s[12:15], s49 offen {SC}')

    def zall0():
        zall()
        a.vmq.append('zf')

    def zall1():
        a.wait_vm('zf')
        poll(a, zall, [26], 27, first_done=True)
    g.hooks[44] = zall0
    g.hooks[48] = zall1
    g.hooks[97] = lambda: p3_pre(a)

    if opt('gate'):
        def prog():
            a.e('s_lshl_b32 s44, s2, 7')
            a.e(f's_add_u32 s44, s44, {PROG_OFF}')
            set_flag(a, 44, 27)
        g.hooks[36 + opt('gate')[1]] = prog
    g.run_segment(40, 60)
    if 'p2fine' in ABL:
        stamp(a, 6)
        a.e('s_branch K_DONE')
    stamp(a, 4)
    if 'p3fine' in ABL:
        stamp(a, 1)
    g.sp_epilogue()
    if 'p3fine' in ABL:
        stamp(a, 2)
    p3(a)
    a.label('K_DONE')
    stamp_flush(a, 0)
    a.label('K_END')
    a.e('s_endpgm')
    return (NAME + '_kernel', a, 512, 256, 81920, 256)


LIST = False
if __name__ == '__main__':
    if '--stamp' in sys.argv:
        STAMP = True
        sys.argv.remove('--stamp')
    if '--list' in sys.argv:
        LIST = True
        sys.argv.remove('--list')
    for x in list(sys.argv):
        if x.startswith('--abl='):
            ABL.update(x[6:].split(','))
            sys.argv.remove(x)
    out = sys.argv[1] if len(sys.argv) > 1 else 'out.s'
    open(out, 'w').write(build_file([mega()]))
    print('wrote', out)
```

```python
import sys, struct
from asmlib import Asm

NAME = 'gated_mix__grouped_kv_mqa__mixer_gmlp__prompt'

Z2_OFF = 0x10000
UF_OFF = Z2_OFF + 9437184
W3_OFF = UF_OFF + 11796480
KV_OFF = W3_OFF + 3317760
KV_TILE = 2496
GATE_OFF = KV_OFF + 160 * 1024
STATS_OFF = GATE_OFF + 16384
FLAG_OFF = STATS_OFF + 524288
FKV_OFF = FLAG_OFF
FW3_OFF = FLAG_OFF + 49152
FZ_OFF = FLAG_OFF + 4096
F3_OFF = FLAG_OFF + 65536
PROG_OFF = FLAG_OFF + 16384
GO_OFF = FLAG_OFF + 98304
SC = 'sc1' if 'sconly1' in ' '.join(sys.argv) else 'sc0 sc1'
SCL = '' if '--abl' in ' '.join(sys.argv) and 'noscl' in ' '.join(sys.argv) else 'sc1'
WS_SIZE = 0x1a00000
assert FLAG_OFF + 131072 <= 0x1900000
STAMP_OFF = 0x1900000

A_X, A_WQ, A_WK, A_WV, A_WO, A_BX, A_WIN, A_WSP, A_BSP, A_WOUT, A_GW, A_OUT, A_DBG, A_WS = [8 * i for i in range(14)]

STAMP = False
ABL = set()


def opt(name, default=None):
    for x in ABL:
        if x.startswith(name + ':'):
            return [int(v) for v in x.split(':')[1:]]
    return default


def f2u(f):
    return struct.unpack('<I', struct.pack('<f', f))[0]


def hx(f):
    return '0x%08x' % f2u(f)


def srd(a, d, size):
    a.e(f's_mov_b32 s{d + 2}, {size}')
    a.e(f's_mov_b32 s{d + 3}, 0x00020000')


def vr(b, n):
    return f'v[{b}:{b + n - 1}]'


def stamp(a, idx):
    if not STAMP:
        return
    a.wait_lg0()
    a.e('s_memrealtime s[78:79]')
    a.e('s_memtime s[76:77]')
    a.e('s_waitcnt lgkmcnt(0)')
    a.e(f's_mov_b32 s{80 + idx}, s78')
    a.e(f's_mov_b32 s{88 + idx}, s76')


def stamp_flush(a, kidx):
    if not STAMP:
        return
    a.e('s_waitcnt vmcnt(0) lgkmcnt(0)')
    stamp(a, 7)
    a.e(f's_load_dwordx2 s[74:75], s[0:1], {A_WS}')
    a.e('s_waitcnt lgkmcnt(0)')
    a.e('v_lshrrev_b32 v1, 6, v0')
    a.e('v_lshlrev_b32 v1, 6, v1')
    a.e('s_lshl_b32 s78, s2, 8')
    a.e(f's_add_u32 s78, s78, {STAMP_OFF + kidx * 131072}')
    a.e('v_add_u32 v1, s78, v1')
    for i in range(16):
        a.e(f'v_mov_b32 v{4 + i}, s{80 + i}')
    for i in range(4):
        a.e(f'global_store_dwordx4 v1, v[{4 + 4 * i}:{7 + 4 * i}], s[74:75] offset:{16 * i}')
    if 'dbgstamp' in ABL:
        a.e('s_cmp_lt_u32 s2, 256')
        a.e('s_cselect_b32 s78, 4, 36')
        a.e('v_mov_b32 v1, s78')
        a.e('s_mov_b64 exec, 1')
        for i in range(1, 8):
            a.e(f'v_subrev_u32 v{4 + i}, s62, v{4 + i}')
            a.e(f'global_atomic_umax v1, v{4 + i}, s[16:17] offset:{4 * (i - 1)} sc1')
        a.e('v_sub_u32 v4, s62, v4')
        a.e('v_add_u32 v4, 1000, v4')
        a.e('v_mov_b32 v1, 32')
        a.e('global_atomic_umax v1, v4, s[16:17] sc1')
        a.e('s_mov_b64 exec, -1')


GELU_C0 = -2.0 * 1.4426950408889634 * 0.7978845608028654
GELU_C1 = GELU_C0 * 0.044715


def gelu_group(a, regs, T, sC1, vC0):
    n = len(regs)
    for i, r in enumerate(regs):
        a.e(f'v_pk_mul_f32 {vr(T + 2 * i, 2)}, {vr(r, 2)}, {vr(r, 2)}')
    for i, r in enumerate(regs):
        a.e(f'v_pk_fma_f32 {vr(T + 2 * i, 2)}, {vr(T + 2 * i, 2)}, s[{sC1}:{sC1 + 1}], {vr(vC0, 2)}')
    for i, r in enumerate(regs):
        a.e(f'v_pk_mul_f32 {vr(T + 2 * i, 2)}, {vr(T + 2 * i, 2)}, {vr(r, 2)}')
    for i in range(2 * n):
        a.e(f'v_exp_f32 v{T + i}, v{T + i}')
    for i, r in enumerate(regs):
        a.e(f'v_pk_add_f32 {vr(T + 2 * i, 2)}, {vr(T + 2 * i, 2)}, 1.0 op_sel_hi:[1,0]')
    for i in range(2 * n):
        a.e(f'v_rcp_f32 v{T + i}, v{T + i}')
    for i, r in enumerate(regs):
        a.e(f'v_pk_mul_f32 {vr(r, 2)}, {vr(T + 2 * i, 2)}, {vr(r, 2)}')


SPIN_MAX = 300000


def poll(a, loads, regs, t0, first_done=False, sleep=1):
    lp = a.newlabel('POLL')
    lc = a.newlabel('POLLC')
    lg = a.newlabel('POLLOK')
    a.e(f's_mov_b32 s51, {SPIN_MAX}')
    if first_done:
        a.e(f's_branch {lc}')
    a.label(lp)
    loads()
    a.e('s_waitcnt vmcnt(0)')
    a.label(lc)
    a.e(f'v_xor_b32 v{t0}, s62, v{regs[0]}')
    for r in regs[1:]:
        a.e(f'v_xor_b32 v{t0 + 1}, s62, v{r}')
        a.e(f'v_or_b32 v{t0}, v{t0}, v{t0 + 1}')
    a.e(f'v_cmp_ne_u32 vcc, 0, v{t0}')
    a.e(f's_cbranch_vccz {lg}')
    a.e(f's_sleep {sleep}')
    a.e('s_sub_u32 s51, s51, 1')
    a.e('s_cmp_lg_u32 s51, 0')
    a.e(f's_cbranch_scc1 {lp}')
    a.label(lg)
    if not first_done:
        a.vmq = []


def get_nonce(a, vz, vn):
    lp = a.newlabel('NONCE')
    lg = a.newlabel('NONCE_OK')
    a.e(f's_mov_b32 s51, {SPIN_MAX}')
    a.label(lp)
    a.e(f'v_readfirstlane_b32 s62, v{vn}')
    a.e('s_cmp_lg_u32 s62, 0')
    a.e(f's_cbranch_scc1 {lg}')
    a.e('s_sleep 2')
    a.e(f'global_load_dword v{vn}, v{vz}, s[16:17] {SC}')
    a.e('s_waitcnt vmcnt(0)')
    a.e('s_sub_u32 s51, s51, 1')
    a.e('s_cmp_lg_u32 s51, 0')
    a.e(f's_cbranch_scc1 {lp}')
    a.label(lg)


def set_flag(a, soff, t0):
    a.e(f'v_mov_b32 v{t0}, 0')
    a.e(f'v_mov_b32 v{t0 + 1}, s62')
    a.e('s_mov_b64 exec, 1')
    a.vm(f'buffer_store_dword v{t0 + 1}, v{t0}, s[12:15], s{soff} offen {SC}', 'flag')
    a.e('s_mov_b64 exec, -1')


class GW:
    R = 5
    SLOT = 8192
    SGL = 40960
    BBASE = 49152
    AF = 32
    BF = 68
    ACC0 = 100
    ACC1 = 172

    def __init__(self, a):
        self.a = a
        self.units = []
        self.ustage = []
        self.stages = []
        for k in range(18):
            if k % 2 == 0:
                self.stages.append(('x', k // 2))
            for sg in ('z2', 'z1'):
                self.units.append((sg, k))
                self.ustage.append((len(self.stages) - 1, k % 2))
        for k in range(64):
            if k % 2 == 0:
                self.stages.append(('sp', k // 2))
            self.units.append(('sp', k))
            self.ustage.append((len(self.stages) - 1, k % 2))
        self.nextA = 0
        self.nextB = 0
        self.limitA = len(self.units)
        self.pendB = []
        self.hooks = {}

    def setup(self):
        a = self.a
        a.e(f's_load_dwordx2 s[4:5], s[0:1], {A_X}')
        a.e(f's_load_dwordx2 s[8:9], s[0:1], {A_WIN}')
        a.e(f's_load_dwordx4 s[16:19], s[0:1], {A_DBG}')
        a.e(f's_load_dwordx4 s[52:55], s[0:1], {A_WSP}')
        a.e(f's_load_dwordx2 s[64:65], s[0:1], {A_OUT}')
        a.e(f's_load_dwordx2 s[66:67], s[0:1], {A_WO}')
        a.e(f's_load_dwordx2 s[68:69], s[0:1], {A_WOUT}')
        a.e('v_lshrrev_b32 v1, 6, v0')
        a.e('v_readfirstlane_b32 s20, v1')
        a.e('v_and_b32 v1, 63, v0')
        a.e('s_lshr_b32 s31, s2, 3')
        a.e('s_and_b32 s32, s2, 3')
        a.e('s_and_b32 s34, s31, 3')
        a.e('s_lshl_b32 s21, s32, 2')
        a.e('s_add_u32 s21, s21, s34')
        a.e('s_lshr_b32 s35, s31, 2')
        a.e('s_and_b32 s22, s2, 4')
        a.e('s_lshl_b32 s22, s22, 1')
        a.e('s_add_u32 s22, s22, s35')
        a.e('s_lshl_b32 s23, s21, 2')
        a.e('s_add_u32 s23, s23, s20')
        a.e('s_lshl_b32 s39, s34, 1')
        a.e('s_add_u32 s39, s39, s35')
        a.e('s_cmp_ge_u32 s39, 9')
        a.e('s_cselect_b32 s40, 9, 0')
        a.e('s_sub_u32 s39, s39, s40')
        a.e('s_mul_i32 s24, s39, %d' % (64 * 9216))
        a.e('s_add_u32 s28, s24, 4608')
        a.e('s_lshl_b32 s25, s39, 7')
        a.e('s_lshl_b32 s26, s20, 11')
        a.e('s_lshl_b32 s27, s20, 12')
        a.e(f's_add_u32 s27, s27, {self.BBASE}')
        a.e('s_lshl_b32 s30, s20, 10')
        a.e(f's_add_u32 s30, s30, {self.SGL}')
        a.e('v_and_b32 v23, 7, v1')
        a.e('v_lshrrev_b32 v24, 5, v1')
        a.e('v_lshlrev_b32 v24, 3, v24')
        a.e('v_bfe_u32 v25, v1, 3, 2')
        a.e('s_lshl_b32 s44, s23, 5')
        a.e('v_add3_u32 v24, v24, v25, s44')
        a.e('v_lshrrev_b32 v25, 4, v1')
        a.e('v_xor_b32 v25, v25, v23')
        a.e('v_lshlrev_b32 v25, 4, v25')
        a.e('v_xor_b32 v26, 64, v25')
        a.e('v_mul_u32_u24 v27, 1152, v24')
        a.e('v_add_u32 v5, v27, v25')
        a.e('v_add_u32 v6, v27, v26')
        a.e(f'v_add_u32 v6, {16 * 1152 - 1024}, v6')
        a.e(f'v_add_u32 v7, {4 * 1152 - 2048}, v5')
        a.e(f'v_add_u32 v8, {4 * 1152 - 2048}, v6')
        a.e('s_lshl_b32 s42, s22, 8')
        a.e('s_mul_i32 s43, s20, %d' % (8 * 9216))
        a.e('s_add_u32 s42, s42, s43')
        a.e('v_bfe_u32 v2, v1, 2, 2')
        a.e('v_mul_u32_u24 v2, 9216, v2')
        a.e('v_lshrrev_b32 v3, 4, v1')
        a.e('v_lshl_add_u32 v2, v3, 6, v2')
        a.e('s_and_b32 s44, s20, 1')
        a.e('s_lshl_b32 s45, s44, 1')
        a.e('v_and_b32 v3, 3, v1')
        a.e('v_xor_b32 v3, s45, v3')
        a.e('v_lshl_add_u32 v2, v3, 4, v2')
        a.e('v_add_u32 v2, s42, v2')
        a.e(f'v_add_u32 v3, {4 * 9216 - 1024}, v2')
        a.e('v_lshrrev_b32 v4, 1, v1')
        a.e('v_and_b32 v27, 19, v4')
        a.e('v_bfe_u32 v28, v4, 2, 1')
        a.e('v_lshl_add_u32 v27, v28, 3, v27')
        a.e('v_bfe_u32 v28, v4, 3, 1')
        a.e('v_lshl_add_u32 v27, v28, 2, v27')
        a.e('v_mul_u32_u24 v4, 9216, v27')
        a.e('v_and_b32 v27, 1, v1')
        a.e('v_lshl_add_u32 v4, v27, 4, v4')
        a.e('s_lshr_b32 s45, s20, 1')
        a.e('s_mul_i32 s45, s45, %d' % (32 * 9216))
        a.e('s_lshl_b32 s46, s22, 5')
        a.e('s_add_u32 s45, s45, s46')
        a.e('s_cmp_eq_u32 s44, 0')
        a.e('s_cselect_b32 s46, 4608, 0')
        a.e('s_add_u32 s45, s45, s46')
        a.e('s_add_u32 s45, s45, 4096')
        a.e('v_add_u32 v4, s45, v4')
        a.e('s_waitcnt lgkmcnt(0)')
        srd(a, 4, 2359296)
        srd(a, 8, 576 * 9216)
        a.e('s_mov_b32 s12, s18')
        a.e('s_mov_b32 s13, s19')
        srd(a, 12, WS_SIZE)
        a.e('s_mov_b32 s56, s54')
        a.e('s_mov_b32 s57, s55')
        srd(a, 52, 2048 * 4096)

    def setup2(self):
        a = self.a
        a.e('v_lshlrev_b32 v27, 12, v24')
        a.e('v_add_u32 v12, v27, v25')
        a.e('v_add_u32 v13, v27, v26')
        a.e(f'v_add_u32 v13, {16 * 4096 - 1024}, v13')
        a.e(f'v_add_u32 v14, {4 * 4096 - 2048}, v12')
        a.e(f'v_add_u32 v15, {4 * 4096 - 2048}, v13')
        a.e('s_lshl_b32 s37, s21, 8')
        a.e('s_lshl_b32 s45, s22, 13')
        a.e('s_add_u32 s45, s45, s26')
        a.e('v_lshlrev_b32 v19, 4, v1')
        a.e('v_add_u32 v9, s45, v19')
        a.e('s_lshl_b32 s45, s22, 10')
        a.e('s_mul_i32 s46, s20, 147456')
        a.e('s_add_u32 s45, s45, s46')
        a.e(f's_add_u32 s45, s45, {128 * 1024}')
        a.e('v_add_u32 v10, s45, v19')
        a.e('v_lshrrev_b32 v27, 4, v1')
        a.e('v_and_b32 v29, 3, v1')
        a.e('v_lshlrev_b32 v28, 3, v29')
        a.e('v_bfe_u32 v29, v1, 2, 3')
        a.e('v_lshl_add_u32 v18, v29, 5, v28')
        a.e('v_lshrrev_b32 v29, 5, v1')
        a.e('v_lshl_add_u32 v18, v29, 9, v18')
        a.e('v_lshl_add_u32 v28, v27, 11, v28')
        a.e('v_bfe_u32 v29, v1, 2, 2')
        a.e('v_lshl_add_u32 v28, v29, 6, v28')
        a.e('v_and_b32 v29, 1, v27')
        a.e('v_lshl_add_u32 v16, v29, 5, v28')
        a.e('v_xor_b32 v17, 32, v16')
        a.e('v_and_b32 v28, 15, v1')
        a.e('v_bfe_u32 v29, v1, 1, 3')
        a.e('v_xor_b32 v29, v29, v27')
        a.e('v_lshlrev_b32 v28, 7, v28')
        a.e('v_lshl_add_u32 v28, v29, 4, v28')
        a.e('v_add_u32 v21, s27, v28')
        a.e('v_xor_b32 v28, 64, v28')
        a.e('v_add_u32 v22, s27, v28')
        a.e('s_lshl_b32 s38, s2, 2')
        a.e('s_add_u32 s38, s38, s20')
        a.e('s_and_b32 s33, s38, 7')
        a.e('s_lshr_b32 s38, s38, 3')
        a.e('s_cmp_lt_u32 s38, 18')
        a.e('s_cselect_b32 s40, s66, s68')
        a.e('s_cselect_b32 s41, s67, s69')
        a.e(f's_mov_b32 s42, {2304 * 1152}')
        a.e(f's_cselect_b32 s42, {576 * 1152}, s42')
        a.e('s_mov_b32 s43, 0x00020000')
        a.e('s_sub_u32 s44, s38, 18')
        a.e('s_mul_i32 s45, s44, 57')
        a.e('s_lshr_b32 s45, s45, 10')
        a.e('s_mul_i32 s46, s45, 18')
        a.e('s_sub_u32 s44, s44, s46')
        a.e('s_lshl_b32 s46, s45, 9')
        a.e('s_lshl_b32 s47, s45, 6')
        a.e(f's_add_u32 s47, s47, {2048 - 512}')
        a.e('s_cmp_lt_u32 s44, 16')
        a.e('s_cselect_b32 s46, s46, s47')
        a.e('s_lshl_b32 s44, s44, 5')
        a.e('s_add_u32 s44, s44, s46')
        a.e('s_mov_b32 s45, 4')
        a.e('s_mov_b32 s46, 8')
        a.e('s_mov_b32 s47, 16')
        a.e('s_mov_b32 s48, 2')
        a.e('s_sub_u32 s49, s38, 16')
        a.e('s_mul_i32 s49, s49, 288')
        a.e('s_add_u32 s49, s49, 16')
        a.e('s_cmp_lt_u32 s38, 18')
        a.e('s_cselect_b32 s44, s49, s44')
        a.e('s_cselect_b32 s45, 72, s45')
        a.e('s_cselect_b32 s46, 144, s46')
        a.e('s_cselect_b32 s47, 36, s47')
        a.e('s_cselect_b32 s48, 18, s48')
        a.e('s_mul_i32 s49, s38, 36')
        a.e('s_cmp_lt_u32 s38, 16')
        a.e('s_cselect_b32 s44, s49, s44')
        a.e('s_cselect_b32 s45, 18, s45')
        a.e('s_cselect_b32 s46, 4, s46')
        a.e('s_cselect_b32 s47, 8, s47')
        a.e('s_cselect_b32 s48, 2, s48')
        for r in (44, 45, 46, 47):
            a.e(f's_mul_i32 s{r}, s{r}, 1152')
        a.e('s_mul_i32 s49, s33, 144')
        a.e('s_add_u32 s66, s44, s49')
        a.e('s_add_u32 s67, s66, s47')
        for i in range(2):
            a.e(f's_add_u32 s{68 + i}, s{66 + i}, s45')
        for i in range(4):
            a.e(f's_add_u32 s{70 + i}, s{66 + i}, s46')
        a.e('v_lshrrev_b32 v27, 5, v1')
        a.e('v_mul_lo_u32 v27, v27, s48')
        a.e('v_bfe_u32 v28, v1, 4, 1')
        a.e('v_add_u32 v27, v27, v28')
        a.e('v_mul_u32_u24 v27, 1152, v27')
        a.e('v_and_b32 v28, 15, v1')
        a.e('v_min_u32 v28, 8, v28')
        a.e('v_lshl_add_u32 v20, v28, 4, v27')
        a.e('s_lshl_b32 s36, s20, 13')
        a.e('s_add_u32 s36, s36, 8192')

    def issueA(self):
        a = self.a
        u = self.nextA
        if u >= self.limitA:
            return []
        self.nextA += 1
        seg, i = self.units[u]
        slot = (u % self.R) * self.SLOT
        sgl = ((u // 4) % 2) * 4096
        tag = ('A', u)
        out = []
        if seg == 'sp':
            def f0():
                if i % 4 == 0:
                    a.e(f's_xor_b32 s24, s21, {0 if "hotA" in ABL else i // 4}')
                    if 'noxor' in ABL:
                        a.e(f's_mov_b32 s24, {i // 4}')
                    a.e('s_mul_i32 s24, s24, 589824')
                    a.e(f's_add_u32 s24, s24, {Z2_OFF}')
                a.e(f's_add_u32 m0, s26, {slot}')
                a.vm(f'buffer_load_dwordx4 v9, s[12:15], s24 offen {SCL} lds', tag)

            def f1():
                a.vm(f'buffer_load_dwordx4 v9, s[12:15], s24 offen offset:1024 {SCL} lds', tag)
                if i % 4 in (1, 2):
                    a.e('s_add_u32 s24, s24, 147456')

            def f2():
                a.e(f's_add_u32 m0, s30, {sgl}')
                a.vm(f'buffer_load_dwordx4 v10, s[12:15], s24 offen {SCL} lds', tag)
                a.e('s_add_u32 s24, s24, 147456')
        else:
            so = 's28' if seg == 'z2' else 's24'
            nt = 'nt ' if 'ntW' in ABL else ''

            def f0():
                a.e(f's_add_u32 m0, s26, {slot}')
                a.vm(f'buffer_load_dwordx4 v2, s[8:11], {so} offen {nt}lds', tag)

            def f1():
                a.vm(f'buffer_load_dwordx4 v3, s[8:11], {so} offen offset:1024 {nt}lds', tag)
                if seg == 'z1':
                    a.e(f's_add_u32 s24, s24, {32 * 9216}')
                    if i % 2 == 1:
                        a.e(f's_cmp_eq_u32 s24, {576 * 9216}')
                        a.e('s_cselect_b32 s24, 0, s24')
                    a.e('s_add_u32 s28, s24, 4608')

            def f2():
                a.e(f's_add_u32 m0, s30, {sgl}')
                a.vm(f'buffer_load_dwordx4 v4, s[8:11], s24 offen {nt}lds', tag)
        return [f0, f1, f2] if u % 4 == 0 else [f0, f1]

    def issueB(self):
        a = self.a
        s = self.nextB
        if s >= len(self.stages):
            return []
        self.nextB += 1
        seg, i = self.stages[s]
        tag = ('B', s)
        sp = seg == 'sp'
        vb = 12 if sp else 5
        sr = 's[52:55]' if sp else 's[4:7]'

        def mk(j):
            def f():
                if j == 0 and sp:
                    a.e(f's_xor_b32 s25, s37, {128 * (i % 2 if "hotB" in ABL else i)}')
                a.e(f's_add_u32 m0, s27, {(s % 2) * 16384}')
                nt = 'nt ' if (sp and 'ntB' in ABL) or (not sp and 'ntX' in ABL) else ''
                a.vm(f'buffer_load_dwordx4 v{vb + j}, {sr}, s25 offen offset:{1024 * j} {nt}lds', tag)
                if j == 3 and not sp:
                    a.e('s_add_u32 s25, s25, 128')
                    a.e('s_cmp_eq_u32 s25, 1152')
                    a.e('s_cselect_b32 s25, 0, s25')
            return f
        return [mk(j) for j in range(4)]

    def readA(self, u, F, part):
        a = self.a
        seg, i = self.units[u]
        slot = (u % self.R) * self.SLOT
        sgl = self.SGL + ((u // 4) % 2) * 4096 + (u % 4) * 1024
        tag = ('AR', u, F)
        if seg == 'sp':
            if part == 0:
                a.lg(f'ds_read_b128 {vr(self.AF + 4 * F, 4)}, v19 offset:{slot + F * 1024 if F < 8 else sgl}', tag)
        else:
            j = part
            if F < 8:
                a.lg(f'ds_read_b64_tr_b16 {vr(self.AF + 4 * F + 2 * j, 2)}, v{16 + F % 2} offset:{slot + j * 1024 + (F // 2) * 256}', tag)
            else:
                a.lg(f'ds_read_b64_tr_b16 {vr(self.AF + 4 * F + 2 * j, 2)}, v18 offset:{sgl + j * 256}', tag)

    def readB(self, s, jj):
        a = self.a
        if jj == 0:
            a.wait_vm(('B', s))
        for e in range(2):
            a.lg(f'ds_read_b128 {vr(self.BF + 16 * (s % 2) + 8 * jj + 4 * e, 4)}, v{21 + jj} offset:{(s % 2) * 16384 + e * 2048}', ('BR', s))

    def prologue_issue(self):
        for f in self.issueB() + self.issueA() + self.issueA() + self.issueB() + self.issueA() + self.issueA():
            f()

    def run_segment(self, u0, n, own=False):
        a = self.a
        if opt('pg'):
            a.e(f's_setprio {opt("pg")[0]}')
        s0 = self.ustage[u0][0]
        self.readB(s0, 0)
        self.readB(s0, 1)
        a.wait_vm(('A', u0))
        a.wait_lg('own')
        a.e('s_barrier')
        for F in range(9):
            self.readA(u0, F, 0)
            self.readA(u0, F, 1)
        for u in range(u0, u0 + n):
            last = u == u0 + n - 1
            seg, kk = self.units[u]
            s, jj = self.ustage[u]
            sfirst = u == u0 or self.ustage[u - 1][0] != s
            slast = last or self.ustage[u + 1][0] != s
            acc = self.ACC1 if seg == 'z1' else self.ACC0
            if 'g1fine' in ABL and u in (0, 6, 12, 18, 24, 30):
                stamp(a, 1 + u // 6)
            if 'p2fine' in ABL and u in (40, 52, 64, 76, 88):
                stamp(a, 1 + (u - 40) // 12)
            will_issue = self.nextA <= u + self.R - 1 and self.nextA < self.limitA
            if not last:
                a.wait_vm(('A', u + 1))
            if (will_issue or (not last and not own)) and not ('nobar' in ABL and seg == 'sp') and not ('halfbar' in ABL and seg == 'sp' and u % 2):
                a.e('s_barrier')
            if u in self.hooks:
                self.hooks[u]()
            fill = list(self.issueA()) if self.nextA <= u + self.R - 1 else []
            if sfirst and self.nextB <= s + 2:
                fb = self.issueB()
                if fb:
                    f0 = fb[0]

                    def g0(f0=f0, s=s):
                        a.wait_lg(('BR', s))
                        f0()
                    self.pendB = [g0] + fb[1:]
            nb_now = len(self.pendB) if (slast or 'bnow' in ABL) else (2 if seg == 'sp' else 1)
            fill += self.pendB[:nb_now]
            self.pendB = self.pendB[nb_now:]
            if 'nodma' in ABL and seg == 'sp':
                fill = []
            slots = {1: [4], 2: [2, 6], 3: [1, 4, 7], 4: [1, 3, 5, 7], 5: [0, 2, 4, 6, 8], 6: [0, 2, 3, 5, 6, 8], 7: [0, 1, 2, 4, 5, 7, 8]}.get(len(fill), [])
            for F in range(9):
                a.wait_lg(('AR', u, F))
                if F == 0 and sfirst:
                    a.wait_lg(('BR', s))
                for e in range(2):
                    d = vr(acc + 8 * F + 4 * e, 4)
                    c = '0' if kk == 0 else d
                    af = vr(self.AF + 4 * F, 4)
                    bf = vr(self.BF + 16 * (s % 2) + 8 * jj + 4 * e, 4)
                    if seg == 'z2':
                        a.e(f'v_mfma_f32_16x16x32_bf16 {d}, {bf}, {af}, {c}')
                    else:
                        a.e(f'v_mfma_f32_16x16x32_bf16 {d}, {af}, {bf}, {c}')
                    if e == 0:
                        if not last and F > 0:
                            self.readA(u + 1, F - 1, 1)
                        if fill and F in slots:
                            fill.pop(0)()
                    else:
                        if not last:
                            self.readA(u + 1, F, 0)
                            if F == 8:
                                self.readA(u + 1, F, 1)
                if not last and slast and F in (4, 6):
                    self.readB(s + 1, (F - 4) // 2)
            for f in fill:
                f()
        if opt('pg'):
            a.e(f's_setprio {opt("pg")[1]}')

    def gelu_consts(self):
        a = self.a
        a.e(f's_mov_b32 s60, {hx(GELU_C1)}')
        a.e(f's_mov_b32 s61, {hx(GELU_C1)}')
        a.e(f'v_mov_b32 v30, {hx(GELU_C0)}')
        a.e(f'v_mov_b32 v31, {hx(GELU_C0)}')

    def z1_gelu(self, Fs=range(9)):
        a = self.a
        T = self.BF + 16
        for F in Fs:
            base = self.ACC1 + 8 * F
            gelu_group(a, [base + 2 * i for i in range(4)], T + 8 * (F % 2), 60, 30)

    def side_issue(self):
        a = self.a
        a.wait_vm('nonce')
        get_nonce(a, 23, 24)
        a.e('s_barrier')
        l = a.newlabel('RT0')
        a.e('s_cmp_ge_u32 s2, 180')
        a.e(f's_cbranch_scc1 {l}')
        for i in range(8):
            a.e(f's_add_u32 m0, s36, {1024 * i}')
            a.e(f'buffer_load_dwordx4 v20, s[40:43], s{66 + i} offen lds')
        a.label(l)

    def retile_compute(self):
        a = self.a
        l = a.newlabel('RT1')
        a.e('s_cmp_ge_u32 s2, 180')
        a.e(f's_cbranch_scc1 {l}')
        F = self.AF
        a.e('s_waitcnt vmcnt(1)')
        a.e('v_lshrrev_b32 v25, 4, v1')
        a.e('v_bfe_u32 v26, v1, 2, 2')
        a.e('v_lshlrev_b32 v27, 11, v25')
        a.e('v_lshl_add_u32 v27, v26, 8, v27')
        a.e('v_add_u32 v27, s36, v27')
        a.e('v_and_b32 v26, 3, v1')
        a.e('v_lshl_add_u32 v28, v26, 3, v27')
        a.e('v_lshl_add_u32 v27, v26, 4, v27')
        for nt in range(5):
            for j in range(2):
                if nt < 4:
                    a.lg(f'ds_read_b64_tr_b16 {vr(F + 4 * nt + 2 * j, 2)}, v27 offset:{64 * (nt // 2) + 8 * (nt % 2) + 1024 * j}', 'r')
                else:
                    a.lg(f'ds_read_b64_tr_b16 {vr(F + 4 * nt + 2 * j, 2)}, v28 offset:{128 + 1024 * j}', 'r')
        a.e('v_and_b32 v26, 7, v1')
        a.e('v_lshl_add_u32 v25, v25, 3, v26')
        a.e('v_lshlrev_b32 v25, 4, v25')
        a.e('v_add_u32 v25, 4096, v25')
        a.e('s_mul_i32 s44, s33, 90')
        a.e('s_add_u32 s44, s44, s38')
        a.e('s_mul_i32 s44, s44, 4608')
        a.e(f's_add_u32 s44, s44, {W3_OFF}')
        a.wait_lg0()
        for nt in range(4):
            a.e(f'buffer_store_dwordx4 {vr(F + 4 * nt, 4)}, v19, s[12:15], s44 offen offset:{1024 * nt} {SC}')
        a.e('s_mov_b32 exec_lo, 0x00ff00ff')
        a.e('s_mov_b32 exec_hi, 0x00ff00ff')
        a.e(f'buffer_store_dwordx4 {vr(F + 16, 4)}, v25, s[12:15], s44 offen {SC}')
        a.e('s_mov_b64 exec, -1')
        a.label(l)

    def retile_flag(self):
        a = self.a
        l = a.newlabel('RT2')
        a.e('s_cmp_ge_u32 s2, 180')
        a.e(f's_cbranch_scc1 {l}')
        a.e('s_lshl_b32 s44, s33, 7')
        a.e('s_add_u32 s44, s44, s38')
        a.e('s_lshl_b32 s44, s44, 2')
        a.e(f's_add_u32 s44, s44, {FW3_OFF}')
        set_flag(a, 44, 27)
        a.vmq.pop()
        a.label(l)

    def z2_gelu_publish(self):
        a = self.a
        T = self.AF
        S = self.BF
        self.gelu_consts()
        for F in range(9):
            base = self.ACC0 + 8 * F
            gelu_group(a, [base + 2 * i for i in range(4)], T + 8 * (F % 2), 60, 30)
            for i in range(4):
                y = vr(base + 2 * i, 2)
                if F == 0:
                    a.e(f'v_pk_add_f32 {vr(S + 2 * i, 2)}, {y}, 0 op_sel_hi:[1,0]')
                    a.e(f'v_pk_mul_f32 {vr(S + 8 + 2 * i, 2)}, {y}, {y}')
                else:
                    a.e(f'v_pk_add_f32 {vr(S + 2 * i, 2)}, {vr(S + 2 * i, 2)}, {y}')
                    a.e(f'v_pk_fma_f32 {vr(S + 8 + 2 * i, 2)}, {y}, {y}, {vr(S + 8 + 2 * i, 2)}')
        for b in (S, S + 8):
            for r in range(4):
                a.e(f'v_add_f32_dpp v{b + r}, v{b + r}, v{b + r} row_ror:8 row_mask:0xf bank_mask:0x3')
            for r in range(4):
                a.e(f'v_add_f32_dpp v{b + r}, v{b + r + 4}, v{b + r + 4} row_ror:8 row_mask:0xf bank_mask:0xc')
        for b in (S, S + 8):
            for r in range(2):
                a.e(f'v_add_f32_dpp v{b + r}, v{b + r}, v{b + r} row_shl:4 row_mask:0xf bank_mask:0x5')
            for r in range(2):
                a.e(f'v_add_f32_dpp v{b + r}, v{b + r + 2}, v{b + r + 2} row_shr:4 row_mask:0xf bank_mask:0xa')
        for qp in ('[1,0,3,2]', '[2,3,0,1]'):
            for r in (S, S + 1, S + 8, S + 9):
                a.e(f'v_add_f32_dpp v{r}, v{r}, v{r} quad_perm:{qp} row_mask:0xf bank_mask:0xf')
        a.e('v_and_b32 v25, 1, v1')
        a.e('v_cmp_eq_u32 vcc, 1, v25')
        G0 = S + 12
        a.e(f'v_cndmask_b32 v{G0}, v{S}, v{S + 1}, vcc')
        a.e(f'v_cndmask_b32 v{G0 + 1}, v{S + 8}, v{S + 9}, vcc')
        a.e('v_lshrrev_b32 v27, 2, v1')
        a.e('v_lshl_add_u32 v27, v27, 1, v25')
        a.e('v_lshlrev_b32 v27, 4, v27')
        a.e('s_lshl_b32 s48, s23, 13')
        a.e(f's_add_u32 s48, s48, {STATS_OFF}')
        a.e('s_lshl_b32 s49, s22, 9')
        a.e('s_add_u32 s49, s49, s48')
        a.e(f'v_mov_b32 v{G0 + 2}, s62')
        a.e(f'v_mov_b32 v{G0 + 3}, s62')
        a.e('s_mov_b32 exec_lo, 0x33333333')
        a.e('s_mov_b32 exec_hi, 0x33333333')
        a.vm(f'buffer_store_dwordx4 {vr(G0, 4)}, v27, s[12:15], s49 offen {SC}', 'st')
        a.e('s_mov_b64 exec, -1')

    def z2_gather_norm_store(self):
        a = self.a
        G = self.AF
        a.e('s_add_u32 s49, s48, 4096')

        def ld():
            for i in range(8):
                a.e(f'buffer_load_dwordx4 {vr(G + 4 * i, 4)}, v19, s[12:15], {"s48" if i < 4 else "s49"} offen offset:{1024 * (i % 4)} {SC}')
        poll(a, ld, [G + 4 * i + 2 for i in range(8)], 27)
        for i in (0, 2, 4, 6):
            a.e(f'v_pk_add_f32 {vr(G + 4 * i, 2)}, {vr(G + 4 * i, 2)}, {vr(G + 4 * i + 4, 2)}')
        a.e(f'v_pk_add_f32 {vr(G, 2)}, {vr(G, 2)}, {vr(G + 8, 2)}')
        a.e(f'v_pk_add_f32 {vr(G + 16, 2)}, {vr(G + 16, 2)}, {vr(G + 24, 2)}')
        a.e(f'v_pk_add_f32 {vr(G, 2)}, {vr(G, 2)}, {vr(G + 16, 2)}')
        a.e(f'v_mov_b32 v{G + 2}, v{G}')
        a.e(f'v_mov_b32 v{G + 3}, v{G + 1}')
        a.e(f'v_permlane32_swap_b32 v{G}, v{G + 2}')
        a.e(f'v_permlane32_swap_b32 v{G + 1}, v{G + 3}')
        a.e(f'v_pk_add_f32 {vr(G, 2)}, {vr(G, 2)}, {vr(G + 2, 2)}')
        a.e(f'v_mul_f32 v{G}, {hx(1.0 / 2304)}, v{G}')
        a.e(f'v_mul_f32 v{G + 1}, {hx(1.0 / 2304)}, v{G + 1}')
        a.e(f'v_fma_f32 v{G + 1}, -v{G}, v{G}, v{G + 1}')
        a.e(f'v_max_f32 v{G + 1}, 0, v{G + 1}')
        a.e(f'v_add_f32 v{G + 1}, {hx(1e-5)}, v{G + 1}')
        a.e(f'v_rsq_f32 v{G + 1}, v{G + 1}')
        a.e(f'v_mul_f32 v{G}, v{G}, v{G + 1}')
        a.e(f'v_sub_f32 v{G}, 0, v{G}')
        a.e('s_lshl_b32 s44, s20, 8')
        a.e('v_and_b32 v27, 31, v1')
        a.e('v_lshlrev_b32 v27, 2, v27')
        a.e('v_add_u32 v27, s44, v27')
        a.lg(f'ds_write_b32 v27, v{G + 1}', 'w')
        a.lg(f'ds_write_b32 v27, v{G} offset:128', 'w')
        a.e('v_lshrrev_b32 v28, 4, v1')
        a.e('v_lshlrev_b32 v28, 5, v28')
        a.e('v_add_u32 v28, s44, v28')
        RS = self.BF
        a.lg(f'ds_read_b128 {vr(RS, 4)}, v28', 'r')
        a.lg(f'ds_read_b128 {vr(RS + 4, 4)}, v28 offset:16', 'r')
        a.lg(f'ds_read_b128 {vr(RS + 8, 4)}, v28 offset:128', 'r')
        a.lg(f'ds_read_b128 {vr(RS + 12, 4)}, v28 offset:144', 'r')
        self.retile_flag()
        a.e('s_mul_i32 s44, s23, 147456')
        a.e(f's_add_u32 s44, s44, {Z2_OFF}')
        a.e('s_lshl_b32 s45, s22, 13')
        a.e('s_add_u32 s45, s45, s44')
        a.e('s_add_u32 s47, s45, 4096')
        a.e('s_lshl_b32 s46, s22, 10')
        a.e('s_add_u32 s46, s46, s44')
        a.e(f's_add_u32 s46, s46, {128 * 1024}')
        a.e('v_add_u32 v27, s36, v19')
        a.e('v_add_u32 v28, s30, v19')
        a.wait_lg0()
        for F in range(9):
            base = self.ACC0 + 8 * F
            pk = G + 4 * F
            for i in range(4):
                a.e(f'v_pk_fma_f32 {vr(base + 2 * i, 2)}, {vr(base + 2 * i, 2)}, {vr(RS + 2 * i, 2)}, {vr(RS + 8 + 2 * i, 2)}')
            for i in range(4):
                a.e(f'v_cvt_pk_bf16_f32 v{pk + i}, v{base + 2 * i}, v{base + 2 * i + 1}')
            so = 's46' if F == 8 else ('s45' if F < 4 else 's47')
            a.vm(f'buffer_store_dwordx4 {vr(pk, 4)}, v19, s[12:15], {so} offen offset:{1024 * (F % 4)} {SC}', 'st')
            if F < 8:
                a.lg(f'ds_write_b128 v27, {vr(pk, 4)} offset:{1024 * F}', 'own')
            else:
                a.lg(f'ds_write_b128 v28, {vr(pk, 4)} offset:4096', 'own')

    def sp_pre(self):
        a = self.a
        a.e('v_bfe_u32 v27, v1, 2, 2')
        a.e('v_lshlrev_b32 v27, 3, v27')
        a.e('v_and_b32 v28, 3, v1')
        a.e('s_lshl_b32 s44, s23, 5')
        a.e('v_add3_u32 v27, v27, v28, s44')
        a.e('v_lshlrev_b32 v28, 1, v27')
        a.e('v_lshlrev_b32 v11, 3, v27')
        a.vm('global_load_ushort v244, v28, s[56:57]', 'pre')
        a.vm('global_load_ushort v245, v28, s[56:57] offset:8', 'pre')
        self.gate_loads(True)

    def gate_loads(self, track=False):
        a = self.a
        a.e(f's_mov_b32 s44, {GATE_OFF}')
        for e in range(2):
            t = f'buffer_load_dwordx2 {vr(246 + 2 * e, 2)}, v11, s[12:15], s44 offen offset:{32 * e} {SC}'
            a.vm(t, 'pre') if track else a.e(t)

    def sp_epilogue(self):
        a = self.a
        a.wait_vm('pre')
        poll(a, self.gate_loads, [247, 249], 27, first_done=True)
        for e in range(2):
            a.e(f'v_sub_f32 v{246 + 2 * e}, 1.0, v{246 + 2 * e}')
            a.e(f'v_lshlrev_b32 v{244 + e}, 16, v{244 + e}')
            a.e(f'v_mul_f32 v{250 + 2 * e}, v{244 + e}, v{246 + 2 * e}')
        a.e('s_mul_i32 s44, s23, 180')
        a.e('s_lshr_b32 s45, s22, 2')
        a.e('s_mul_i32 s45, s45, 18')
        a.e('s_add_u32 s44, s44, s45')
        a.e('s_lshl_b32 s44, s44, 10')
        a.e(f's_add_u32 s44, s44, {UF_OFF + 18 * 1024}')
        a.e('s_and_b32 s45, s22, 3')
        a.e('s_lshl_b32 s46, s45, 12')
        a.e('s_add_u32 s46, s46, s44')
        a.e(f's_add_u32 s47, s46, {90 * 1024}')
        a.e('s_lshr_b32 s48, s45, 1')
        a.e('s_lshl_b32 s48, s48, 10')
        a.e('s_add_u32 s48, s48, s44')
        a.e('s_and_b32 s49, s45, 1')
        a.e('s_lshl_b32 s49, s49, 3')
        a.e('s_add_u32 s48, s48, s49')
        a.e(f's_add_u32 s48, s48, {16 * 1024}')
        a.e(f's_add_u32 s49, s48, {90 * 1024}')
        idx = 0
        for m in range(5):
            for e in range(2):
                pk = self.AF + 4 * idx
                idx += 1
                Fs = (2 * m, 2 * m + 1) if m < 4 else (8,)
                prs = [(self.ACC0 + 8 * F + 4 * e + 2 * i, self.ACC1 + 8 * F + 4 * e + 2 * i) for F in Fs for i in range(2)]
                for g, z in prs:
                    a.e(f'v_pk_fma_f32 {vr(g, 2)}, {vr(g, 2)}, {vr(246 + 2 * e, 2)}, {vr(250 + 2 * e, 2)} op_sel_hi:[1,0,0]')
                for g, z in prs:
                    a.e(f'v_pk_mul_f32 {vr(g, 2)}, {vr(g, 2)}, {vr(z, 2)}')
                for i, (g, z) in enumerate(prs):
                    a.e(f'v_cvt_pk_bf16_f32 v{pk + i}, v{g}, v{g + 1}')
                if m < 4:
                    a.vm(f'buffer_store_dwordx4 {vr(pk, 4)}, v19, s[12:15], s{46 + e} offen offset:{1024 * m} {SC}', 'st')
                else:
                    a.vm(f'buffer_store_dwordx2 {vr(pk, 2)}, v19, s[12:15], s{48 + e} offen {SC}', 'st')


def write_nonce(a):
    l = a.newlabel('NOW')
    a.e('s_or_b32 s44, s3, s20')
    a.e('s_cmp_lg_u32 s44, 0')
    a.e(f's_cbranch_scc1 {l}')
    a.e('s_memrealtime s[44:45]')
    a.e('s_waitcnt lgkmcnt(0)')
    a.e('s_or_b32 s44, s44, 1')
    a.e('v_mov_b32 v28, 0')
    a.e('v_mov_b32 v29, s44')
    a.e('global_store_dword v28, v29, s[16:17] sc0 sc1')
    a.label(l)


def kv_issue(a, R0):
    a.e('v_lshrrev_b32 v2, 2, v1')
    a.e('v_mul_u32_u24 v2, 36, v2')
    a.e('v_and_b32 v4, 3, v1')
    a.e('v_min_u32 v4, 2, v4')
    a.e('v_lshl_add_u32 v2, v4, 4, v2')
    a.e('s_mul_i32 s44, s20, %d' % (9 * 576))
    a.e('s_add_u32 s45, s44, %d' % (5 * 576))
    for i in range(9):
        a.e(f'buffer_load_dwordx4 {vr(R0 + 4 * i, 4)}, v2, s[40:43], s{44 + i // 5} offen offset:{576 * (i % 5)}')


def kv_compute(a, which_s, XF, LB, R0):
    A0, A1, T = R0, R0 + 1, R0 + 2
    WF = R0 + 8
    D = R0 + 24
    a.e(f'v_lshrrev_b32 v{A0}, 4, v1')
    a.e(f'v_lshlrev_b32 v{A0}, 9, v{A0}')
    a.e(f'v_bfe_u32 v{A1}, v1, 2, 2')
    a.e(f'v_lshl_add_u32 v{A0}, v{A1}, 6, v{A0}')
    a.e(f'v_add_u32 v{A0}, {LB}, v{A0}')
    a.e(f'v_add_u32 v{A1}, 32, v{A0}')
    a.e(f'v_and_b32 v{T}, 3, v1')
    a.e(f'v_lshl_add_u32 v{A0}, v{T}, 3, v{A0}')

    def rd(ks):
        b = WF + 8 * (ks % 2)
        for j in range(2):
            a.lg(f'ds_read_b64_tr_b16 {vr(b + 2 * j, 2)}, v{A0} offset:{2048 * ks + 256 * j}', ('w', ks))
            a.lg(f'ds_read_b64_tr_b16 {vr(b + 4 + 2 * j, 2)}, v{A1} offset:{2048 * ks + 256 * j}', ('w', ks))
    rd(0)
    for ks in range(18):
        if ks + 1 < 18:
            rd(ks + 1)
        a.wait_lg(('w', ks))
        b = WF + 8 * (ks % 2)
        a.e(f'v_mfma_f32_16x16x32_bf16 {vr(D, 4)}, {vr(b, 4)}, {vr(XF + 4 * ks, 4)}, {"0" if ks == 0 else vr(D, 4)}')
        a.e(f'v_mfma_f32_16x16x32_bf16 {vr(D + 4, 4)}, {vr(b + 4, 4)}, {vr(XF + 4 * ks, 4)}, {"0" if ks == 0 else vr(D + 4, 4)}')
    K32, G, U0, U1, U2, U3 = R0, R0 + 1, R0 + 2, R0 + 3, R0 + 4, R0 + 5
    P = WF
    a.e('s_lshr_b32 s44, s23, 1')
    a.e(f's_mul_i32 s44, s44, {KV_TILE}')
    a.e(f's_add_u32 s44, s44, {KV_OFF}')
    a.e('s_and_b32 s45, s23, 1')
    a.e('s_lshl_b32 s45, s45, 4')
    a.e(f'v_and_b32 v{K32}, 15, v1')
    a.e(f'v_add_u32 v{K32}, s45, v{K32}')
    a.e(f'v_lshrrev_b32 v{G}, 4, v1')
    a.e(f'v_cvt_pk_bf16_f32 v{P}, v{D}, v{D + 1}')
    a.e(f'v_cvt_pk_bf16_f32 v{P + 1}, v{D + 2}, v{D + 3}')
    a.e(f'v_cvt_pk_bf16_f32 v{P + 2}, v{D + 4}, v{D + 5}')
    lv = a.newlabel('KV_V')
    le = a.newlabel('KV_E')
    a.e(f's_cmp_lg_u32 s{which_s}, 0')
    a.e(f's_cbranch_scc1 {lv}')
    a.e(f'v_lshrrev_b32 v{U0}, 1, v{G}')
    a.e(f'v_lshl_add_u32 v{U0}, v{U0}, 5, v{K32}')
    a.e(f'v_lshlrev_b32 v{U0}, 4, v{U0}')
    a.e(f'v_and_b32 v{U1}, 1, v{G}')
    a.e(f'v_lshl_add_u32 v{U0}, v{U1}, 3, v{U0}')
    a.e(f'buffer_store_dwordx2 {vr(P, 2)}, v{U0}, s[12:15], s44 offen {SC}')
    a.e(f'v_lshlrev_b32 v{U1}, 2, v{K32}')
    a.e('s_mov_b64 exec, 0xffff')
    a.e(f'buffer_store_dword v{P + 2}, v{U1}, s[12:15], s44 offen offset:1024 {SC}')
    a.e('s_mov_b64 exec, -1')
    a.e(f's_branch {le}')
    a.label(lv)
    a.e(f'v_lshrrev_b32 v{U0}, 2, v{K32}')
    a.e(f'v_mul_u32_u24 v{U0}, 168, v{U0}')
    a.e(f'v_and_b32 v{U1}, 3, v{K32}')
    a.e(f'v_lshl_add_u32 v{U2}, v{U1}, 5, v{U0}')
    a.e(f'v_lshl_add_u32 v{U2}, v{G}, 3, v{U2}')
    a.e(f'buffer_store_dwordx2 {vr(P, 2)}, v{U2}, s[12:15], s44 offen offset:1152 {SC}')
    a.e(f'v_lshl_add_u32 v{U2}, v{U1}, 3, v{U0}')
    a.e(f'v_add_u32 v{U3}, 32, v{U0}')
    a.e(f'v_mov_b32 v{P + 3}, 0x3f80')
    a.e(f'v_cmp_eq_u32 vcc, 0, v{G}')
    a.e(f'v_cndmask_b32 v{U2}, v{U3}, v{U2}, vcc')
    a.e(f'v_cndmask_b32 v{P + 2}, 0, v{P + 2}, vcc')
    a.e(f'v_cndmask_b32 v{P + 3}, 0, v{P + 3}, vcc')
    a.e('s_mov_b32 exec_hi, 0')
    a.e(f'buffer_store_dwordx2 {vr(P + 2, 2)}, v{U2}, s[12:15], s44 offen offset:{1152 + 128} {SC}')
    a.e('s_mov_b64 exec, -1')
    a.label(le)
    a.wait_vm0()
    a.e('s_barrier')
    lf = a.newlabel('KV_F')
    a.e('s_cmp_lg_u32 s20, 0')
    a.e(f's_cbranch_scc1 {lf}')
    a.e(f'v_mov_b32 v{R0}, 128')
    a.e(f'v_mov_b32 v{R0 + 1}, 1')
    a.e('s_mov_b64 exec, 1')
    a.e(f'global_atomic_add v{R0 + 2}, v{R0}, v{R0 + 1}, s[16:17] sc0 sc1')
    a.e('s_mov_b64 exec, -1')
    a.e(f'v_lshlrev_b32 v{R0}, 9, v1')
    a.e(f'v_mov_b32 v{R0 + 1}, s62')
    a.e(f's_mov_b32 s44, {GO_OFF}')
    a.e('s_waitcnt vmcnt(0)')
    a.e(f'v_readfirstlane_b32 s45, v{R0 + 2}')
    a.e('s_and_b32 s45, s45, 63')
    a.e('s_cmp_lg_u32 s45, 63')
    a.e(f's_cbranch_scc1 {lf}')
    for i in range(4):
        a.e(f'buffer_store_dword v{R0 + 1}, v{R0}, s[12:15], s44 offen offset:{128 * i} {SC}')
    a.label(lf)


def gate_issue(a, LB):
    a.e('v_lshlrev_b32 v2, 4, v1')
    a.e('s_lshl_b32 s45, s20, 11')
    a.e(f's_add_u32 m0, s45, {LB}')
    a.e('buffer_load_dwordx4 v2, s[40:43], 0 offen lds')
    a.e('buffer_load_dwordx4 v2, s[40:43], 0 offen offset:1024 lds')


def gate_compute(a, XF, LB, R0, vt):
    a.e('s_lshl_b32 s45, s20, 11')
    a.e(f's_add_u32 s45, s45, {LB}')
    a.e(f'v_and_b32 v{R0}, 48, v1')
    a.e(f'v_add_u32 v{R0}, s45, v{R0}')
    D = R0 + 4
    WF = R0 + 8
    for k0 in range(0, 18, 6):
        for i in range(6):
            a.lg(f'ds_read_b128 {vr(WF + 4 * i, 4)}, v{R0} offset:{64 * (k0 + i)}', 'g')
        a.wait_lg0()
        for i in range(6):
            ks = k0 + i
            a.e(f'v_mfma_f32_16x16x32_bf16 {vr(D, 4)}, {vr(WF + 4 * i, 4)}, {vr(XF + 4 * ks, 4)}, {"0" if ks == 0 else vr(D, 4)}')
    a.e(f'v_mul_f32 v{D}, {hx(-1.4426950408889634)}, v{D}')
    a.e(f'v_exp_f32 v{D}, v{D}')
    a.e(f'v_add_f32 v{D}, 1.0, v{D}')
    a.e(f'v_rcp_f32 v{D}, v{D}')
    a.e(f'v_mov_b32 v{D + 1}, s62')
    a.e(f'v_lshlrev_b32 v{R0}, 3, v{vt}')
    a.e(f's_mov_b32 s44, {GATE_OFF}')
    a.e('s_mov_b64 exec, 0xffff')
    a.e(f'buffer_store_dwordx2 {vr(D, 2)}, v{R0}, s[12:15], s44 offen {SC}')
    a.e('s_mov_b64 exec, -1')


QSCALE = 18 ** -0.5 * 1.4426950408889634
KVBUF = 40960
M_OFFSET = 64.0


class ATT:
    SB = 16
    OB = 48
    QF = 80
    KF = 96
    VF = 112
    PF = 128
    XF = 136
    WF = 208
    WQS = 16

    def __init__(self, a):
        self.a = a

    def setup(self, sid):
        a = self.a
        a.e(f's_load_dwordx4 s[4:7], s[0:1], {A_X}')
        a.e(f's_load_dwordx4 s[16:19], s[0:1], {A_DBG}')
        a.e(f's_load_dwordx4 s[32:35], s[0:1], {A_WK}')
        a.e(f's_load_dwordx4 s[28:31], s[0:1], {A_WOUT}')
        a.e(f's_load_dwordx2 s[36:37], s[0:1], {A_WO}')
        a.e(f's_load_dwordx2 s[54:55], s[0:1], {A_WSP}')
        a.e('v_lshrrev_b32 v1, 6, v0')
        a.e('v_readfirstlane_b32 s20, v1')
        a.e('v_and_b32 v1, 63, v0')
        a.e(f's_and_b32 s24, s{sid}, 3')
        a.e(f's_lshr_b32 s25, s{sid}, 3')
        a.e('s_lshl_b32 s21, s24, 3')
        a.e('s_and_b32 s23, s25, 7')
        a.e('s_add_u32 s21, s21, s23')
        a.e(f's_and_b32 s22, s{sid}, 4')
        a.e('s_lshr_b32 s23, s25, 3')
        a.e('s_add_u32 s22, s22, s23')
        a.e('s_lshl_b32 s23, s21, 2')
        a.e('s_add_u32 s23, s23, s20')
        a.e('s_lshr_b32 s44, s23, 1')
        a.e('s_lshl_b32 s44, s44, 5')
        a.e('s_and_b32 s45, s23, 1')
        a.e('s_lshl_b32 s45, s45, 2')
        a.e('s_add_u32 s44, s44, s45')
        a.e('v_lshrrev_b32 v8, 5, v1')
        a.e('v_lshlrev_b32 v8, 3, v8')
        a.e('v_bfe_u32 v9, v1, 3, 2')
        a.e('v_add3_u32 v8, v8, v9, s44')
        a.e('v_mul_u32_u24 v8, 1152, v8')
        a.e('v_lshrrev_b32 v9, 4, v1')
        a.e('v_and_b32 v10, 7, v1')
        a.e('v_xor_b32 v9, v9, v10')
        a.e('v_lshlrev_b32 v9, 4, v9')
        a.e('v_xor_b32 v10, 64, v9')
        a.e('v_add_u32 v10, v10, v8')
        a.e('v_add_u32 v8, v9, v8')
        a.e(f'v_add_u32 v9, {16 * 1152 - 1024}, v10')
        a.e('v_bfe_u32 v3, v1, 2, 2')
        a.e('v_lshlrev_b32 v3, 3, v3')
        a.e('v_and_b32 v10, 3, v1')
        a.e('v_add3_u32 v3, v3, v10, s44')
        a.e('s_mul_i32 s26, s20, 10240')
        if 'nocodepf' not in ABL:
            a.e('s_getpc_b64 s[46:47]')
            a.e('s_and_b32 s46, s46, 0xffffff00')
            a.e('s_lshl_b32 s45, s25, 2')
            a.e('s_add_u32 s45, s45, s20')
            a.e('s_mul_i32 s45, s45, 5')
            a.e('v_min_u32 v10, 4, v1')
            a.e('v_add_u32 v10, s45, v10')
            a.e('v_min_u32 v10, CODE_LINES, v10')
            a.e('v_lshlrev_b32 v10, 7, v10')
            a.e('global_load_dword v255, v10, s[46:47]')
        a.e('s_waitcnt lgkmcnt(0)')
        a.e('s_mov_b32 s8, s6')
        a.e('s_mov_b32 s9, s7')
        srd(a, 8, 576 * 1152)
        srd(a, 4, 2359296)
        a.e('s_mov_b32 s12, s18')
        a.e('s_mov_b32 s13, s19')
        srd(a, 12, WS_SIZE)

    def roles(self, fk, fg, fn=None):
        a = self.a
        lg = a.newlabel('RG')
        lr = a.newlabel('RR')
        le = a.newlabel('RE')
        a.e('s_cmp_ge_u32 s27, 2')
        a.e(f's_cbranch_scc1 {lg}')
        if fk:
            fk()
        a.e(f's_branch {le}')
        a.label(lg)
        a.e('s_cmp_lg_u32 s27, 2')
        a.e(f's_cbranch_scc1 {lr}')
        if fg:
            fg()
        a.label(lr)
        if fn:
            fn()
        a.label(le)

    def front(self):
        a = self.a
        a.e('s_mul_i32 s38, s20, 18432')
        for sg in range(9):
            a.e(f's_add_u32 m0, s38, {2048 * sg}')
            a.e(f's_movk_i32 s44, {128 * sg}')
            a.vm('buffer_load_dwordx4 v8, s[4:7], s44 offen lds', 'x')
            a.vm('buffer_load_dwordx4 v9, s[4:7], s44 offen offset:1024 lds', 'x')
        a.e('s_mov_b32 s27, 3')
        a.e('s_cmp_eq_u32 s22, 0')
        a.e('s_cselect_b32 s27, 0, s27')
        a.e('s_cmp_eq_u32 s22, 4')
        a.e('s_cselect_b32 s27, 1, s27')
        a.e('s_cmp_eq_u32 s22, 1')
        a.e('s_cselect_b32 s27, 2, s27')
        a.e('s_cmp_eq_u32 s27, 0')
        a.e('s_cselect_b32 s40, s32, s34')
        a.e('s_cselect_b32 s41, s33, s35')
        a.e(f's_movk_i32 s42, {576 * 36}')
        a.e('s_cmp_eq_u32 s27, 2')
        a.e('s_cselect_b32 s40, s30, s40')
        a.e('s_cselect_b32 s41, s31, s41')
        a.e('s_cselect_b32 s42, 1152, s42')
        a.e('s_mov_b32 s43, 0x00020000')
        self.roles(lambda: kv_issue(a, self.WF), lambda: gate_issue(a, 73728))
        a.e('v_mov_b32 v2, 0')
        a.e(f'global_load_dword v4, v2, s[16:17] {SC}')
        self.wq_addr()
        a.vmq = []
        a.e('s_mul_i32 s44, s20, %d' % (48 * 1152))
        for c in range(3):
            for g in range(3):
                for i in range(3):
                    a.vm(f'buffer_load_dwordx4 {vr(self.WQS + 36 * c + 12 * g + 4 * i, 4)}, v{5 + i}, s[8:11], s44 offen', ('wq', c))
                a.e(f's_add_u32 s44, s44, {16 * 1152 if g < 2 else 160 * 1152}')
        a.e('v_and_b32 v10, 15, v1')
        a.e('v_bfe_u32 v11, v1, 1, 3')
        a.e('v_lshrrev_b32 v12, 4, v1')
        a.e('v_xor_b32 v11, v11, v12')
        a.e('v_lshlrev_b32 v10, 7, v10')
        a.e('v_lshl_add_u32 v10, v11, 4, v10')
        a.e('v_xor_b32 v11, 64, v10')
        a.e('v_add_u32 v10, s38, v10')
        a.e('v_add_u32 v11, s38, v11')
        a.e('s_mul_i32 s44, s20, 9216')
        a.e('v_lshlrev_b32 v15, 4, v1')
        a.e('v_add_u32 v14, s44, v15')
        a.e(f's_setprio {opt("pa", [0, 0, 0, 0])[1]}')
        a.e('s_waitcnt vmcnt(27)')
        stamp(a, 4)
        for sg in range(9):
            for jj in range(2):
                a.lg(f'ds_read_b128 {vr(self.XF + 4 * (2 * sg + jj), 4)}, v{10 + jj} offset:{2048 * sg}', 'xr')
        get_nonce(a, 2, 4)
        a.wait_lg0()
        self.roles(None, lambda: gate_compute(a, self.XF, 73728, self.WF, 3))
        a.lgq = []

    def stage(self, R0, buf):
        for i in range(9):
            self.a.lg(f'ds_write_b128 v14, {vr(R0 + 4 * i, 4)} offset:{buf * KVBUF + 1024 * i}', 'sw')

    def wq_addr(self):
        a = self.a
        a.e('s_mul_i32 s44, s22, 144')
        for i in range(3):
            a.e(f'v_add_u32 v10, {64 * i}, v1')
            a.e('v_mul_u32_u24 v11, 43691, v10')
            a.e('v_lshrrev_b32 v11, 19, v11')
            a.e('v_mul_u32_u24 v12, 12, v11')
            a.e('v_sub_u32 v10, v10, v12')
            a.e('v_lshrrev_b32 v12, 2, v10')
            a.e('v_and_b32 v13, 1, v10')
            a.e('v_lshl_add_u32 v13, v12, 1, v13')
            a.e('v_mul_u32_u24 v13, 36, v13')
            a.e('v_bfe_u32 v14, v10, 1, 1')
            a.e('v_lshl_add_u32 v13, v14, 4, v13')
            a.e('v_and_b32 v14, 3, v10')
            a.e('v_mul_u32_u24 v14, 36, v14')
            a.e('v_add_u32 v14, 32, v14')
            a.e('v_cmp_eq_u32 vcc, 2, v12')
            a.e('v_cndmask_b32 v13, v13, v14, vcc')
            a.e('v_mul_u32_u24 v11, 1152, v11')
            a.e(f'v_add3_u32 v{5 + i}, v11, v13, s44')
        a.e('v_lshrrev_b32 v10, 4, v1')
        a.e('v_lshlrev_b32 v10, 3, v10')
        a.e('v_bfe_u32 v11, v1, 2, 2')
        a.e('v_add_u32 v10, v10, v11')
        a.e('v_mul_u32_u24 v10, 192, v10')
        a.e('v_and_b32 v11, 3, v1')
        a.e('v_lshl_add_u32 v8, v11, 4, v10')
        a.e(f'v_add_u32 v9, {KVBUF}, v8')

    def issue_kv(self, buf_s=None, buf=None, flags=''):
        a = self.a
        for g in range(3):
            if buf_s is not None:
                a.e(f's_add_u32 m0, s{buf_s}, {4096 * g}')
            else:
                a.e(f's_add_u32 m0, s31, {buf * KVBUF + 4096 * g}')
            for i in range(4 if g < 2 else 2):
                a.vm(f'buffer_load_dwordx4 v15, s[12:15], s30 offen offset:{1024 * i} {flags} lds', 'kv')
            a.e('s_add_u32 s30, s30, 4096')
        a.e(f's_add_u32 s30, s30, {16 * KV_TILE - 3 * 4096}')

    def kv_ready(self):
        a = self.a
        l = a.newlabel('KVR')
        a.e('s_cmp_lg_u32 s20, 0')
        a.e(f's_cbranch_scc1 {l}')
        a.e('s_lshl_b32 s44, s3, 7')
        a.e(f's_add_u32 s44, s44, {GO_OFF}')
        a.e('v_mov_b32 v2, 0')
        q = list(a.vmq)
        poll(a, lambda: a.e(f'buffer_load_dword v40, v2, s[12:15], s44 offen {SC}'), [40], 42, sleep=4)
        a.vmq = q
        a.label(l)

    def q_phase(self):
        a = self.a
        D = 16
        a.e('s_barrier')

        def fk():
            self.stage(self.WF, 1)
            a.wait_lg0()
            a.e('s_barrier')
            kv_compute(a, 27, self.XF, KVBUF, self.WF)
        self.roles(fk, None)
        a.lgq = []
        stamp(a, 5)
        a.e(f's_setprio {opt("pa", [0, 0, 0, 0])[2]}')
        a.e('s_waitcnt vmcnt(9)')
        self.stage(self.WQS, 0)
        self.stage(self.WQS + 36, 1)
        a.e('s_mov_b32 s31, s26')
        a.e('v_add_u32 v15, s31, v15')
        a.e(f's_mov_b32 s30, {KV_OFF}')

        def rd(ks):
            c, k = ks // 6, ks % 6
            b = self.WF + 20 * (ks % 2)
            va = 8 + c % 2
            for t in range(5):
                for j in range(2):
                    off = 6144 * k + 768 * j + (64 * (t // 2) + 8 * (t % 2) if t < 4 else 128)
                    a.lg(f'ds_read_b64_tr_b16 {vr(b + 4 * t + 2 * j, 2)}, v{va} offset:{off}', ('w', ks))
        for c in range(3):
            a.wait_lg0()
            if c == 2:
                stamp(a, 6)
                self.kv_ready()
            a.e('s_barrier')
            if c == 1:
                a.wait_vm0()
                self.stage(self.WQS + 72, 0)
                a.e('s_lshl_b32 s44, s3, 2')
                a.e('s_add_u32 s44, s44, s20')
                a.e('s_mul_i32 s45, s44, 21')
                a.e('s_mul_i32 s44, s44, 6')
                a.e('v_min_u32 v2, 20, v1')
                a.e('v_add_u32 v2, s45, v2')
                a.e('v_min_u32 v2, 20735, v2')
                a.e('v_lshlrev_b32 v2, 7, v2')
                a.vm('global_load_dword v255, v2, s[28:29]', 'pf')
                a.e('v_min_u32 v2, 5, v1')
                a.e('v_add_u32 v2, s44, v2')
                a.e('v_min_u32 v2, 5183, v2')
                a.e('v_lshlrev_b32 v2, 7, v2')
                a.vm('global_load_dword v255, v2, s[36:37]', 'pf')
            if c == 2:
                self.issue_kv(buf=1, flags=SCL)
            rd(6 * c)
            for k in range(6):
                ks = 6 * c + k
                if k < 5:
                    rd(ks + 1)
                a.wait_lg(('w', ks))
                b = self.WF + 20 * (ks % 2)
                for t in range(5):
                    d = vr(D + 4 * t, 4)
                    a.e(f'v_mfma_f32_16x16x32_bf16 {d}, {vr(b + 4 * t, 4)}, {vr(self.XF + 4 * ks, 4)}, {"0" if ks == 0 else d}')
        a.e('s_barrier')
        self.issue_kv(buf=0, flags=SCL)
        a.e('s_lshl_b32 s44, s24, 5')
        a.e('s_add_u32 s44, s44, s25')
        a.e('s_lshl_b32 s44, s44, 2')
        a.e('s_add_u32 s44, s44, s20')
        a.e('s_lshl_b32 s44, s44, 14')
        a.e('v_lshlrev_b32 v2, 7, v1')
        a.e('v_add_u32 v2, s44, v2')
        if 'notouch' in ABL:
            a.e('v_mov_b32 v2, 0')
        a.vm('global_load_dword v255, v2, s[54:55]', 'pf')
        a.e('v_add_u32 v2, 8192, v2')
        a.vm('global_load_dword v255, v2, s[54:55]', 'pf')
        a.e(f's_mov_b32 s44, {hx(QSCALE)}')
        a.e(f's_mov_b32 s45, {hx(QSCALE)}')
        for i in range(9):
            a.e(f'v_pk_mul_f32 {vr(D + 2 * i, 2)}, {vr(D + 2 * i, 2)}, s[44:45]')
        for p in range(2):
            for i in range(4):
                a.e(f'v_cvt_pk_bf16_f32 v{self.QF + 8 * p + i}, v{D + 8 * p + 2 * i}, v{D + 8 * p + 2 * i + 1}')
        a.e(f'v_cvt_pk_bf16_f32 v2, v{D + 16}, v{D + 17}')
        a.e('v_cmp_gt_u32 vcc, 32, v1')
        a.e(f'v_cndmask_b32 v{self.QF + 4}, 0, v2, vcc')
        a.e(f'v_cndmask_b32 v{self.QF + 12}, v2, 0, vcc')
        for p in range(2):
            for i in (5, 6, 7):
                a.e(f'v_mov_b32 v{self.QF + 8 * p + i}, 0')
            a.e(f'v_mov_b32 v{self.KF + 8 * p + 5}, 0x3f803f80')
            a.e(f'v_mov_b32 v{self.KF + 8 * p + 6}, 0x3f80')
            a.e(f'v_mov_b32 v{self.KF + 8 * p + 7}, 0')
        a.e('v_lshlrev_b32 v10, 4, v1')
        a.e('v_and_b32 v11, 31, v1')
        a.e('v_lshlrev_b32 v11, 2, v11')
        a.e('v_add_u32 v11, 1024, v11')
        a.e('v_bfe_u32 v2, v1, 2, 2')
        a.e('v_and_b32 v4, 3, v1')
        a.e('v_lshlrev_b32 v12, 5, v2')
        a.e('v_lshl_add_u32 v12, v4, 3, v12')
        a.e('v_lshlrev_b32 v2, 3, v2')
        a.e('v_add_u32 v2, 128, v2')
        a.e('v_mov_b32 v13, 160')
        a.e('v_cmp_eq_u32 vcc, 0, v4')
        a.e('v_cndmask_b32 v2, v13, v2, vcc')
        a.e('v_and_b32 v4, 16, v1')
        a.e('v_cmp_eq_u32 vcc, 0, v4')
        a.e('v_cndmask_b32 v12, v2, v12, vcc')
        a.e('v_lshrrev_b32 v2, 5, v1')
        a.e('v_mul_u32_u24 v2, 168, v2')
        a.e('v_add_u32 v12, v12, v2')
        a.e('v_add_u32 v12, 1152, v12')

    def readK(self, j):
        a = self.a
        b = self.KF + 8 * (j % 2)
        off = (j % 16) * KV_TILE
        a.lg(f'ds_read_b128 {vr(b, 4)}, v5 offset:{off}', ('K', j))
        a.lg(f'ds_read_b32 v{b + 4}, v6 offset:{off}', ('K', j))

    def readV(self, j, m):
        a = self.a
        b = self.VF + 8 * (j % 2)
        off = (j % 16) * KV_TILE
        for jj in range(2):
            a.lg(f'ds_read_b64_tr_b16 {vr(b + 4 * m + 2 * jj, 2)}, v7 offset:{off + (4 * m + 2 * jj) * 168}', ('V', j))

    def S(self, n, part):
        j, qt = n // 2, n % 2
        d = vr(self.SB + 16 * (n % 2), 16)
        k = self.KF + 8 * (j % 2) + 4 * part
        q = self.QF + 8 * qt + 4 * part
        self.a.e(f'v_mfma_f32_32x32x16_bf16 {d}, {vr(k, 4)}, {vr(q, 4)}, {"0" if part == 0 else d}')

    def PV(self, n, m):
        j, qt = n // 2, n % 2
        d = vr(self.OB + 16 * qt, 16)
        self.a.e(f'v_mfma_f32_32x32x16_bf16 {d}, {vr(self.VF + 8 * (j % 2) + 4 * m, 4)}, {vr(self.PF + 4 * m, 4)}, {d}')

    def set_m(self, qt, vm, add):
        a = self.a
        q = self.QF + 8 * qt
        a.e(f'v_sub_f32 v2, {hx(-add)}, v{vm}')
        a.e('v_and_b32 v4, 0xffff0000, v2')
        a.e('v_sub_f32 v2, v2, v4')
        a.e('v_and_b32 v13, 0xffff0000, v2')
        a.e('v_sub_f32 v2, v2, v13')
        a.e('v_lshrrev_b32 v4, 16, v4')
        a.e('v_or_b32 v4, v4, v13')
        a.e('v_lshrrev_b32 v2, 16, v2')
        a.e('v_cmp_gt_u32 vcc, 32, v1')
        if qt == 0:
            a.e(f'v_cndmask_b32 v{q + 5}, 0, v4, vcc')
            a.e(f'v_cndmask_b32 v{q + 6}, 0, v2, vcc')
        else:
            a.e(f'v_cndmask_b32 v{q + 5}, v4, 0, vcc')
            a.e(f'v_cndmask_b32 v{q + 6}, v2, 0, vcc')

    def max16(self, b, dst, first):
        a = self.a
        if first:
            a.e(f'v_max3_f32 v{dst}, v{b}, v{b + 1}, v{b + 2}')
            a.e(f'v_max_f32 v{dst}, v{dst}, v{b + 3}')
            r = range(4, 16, 2)
        else:
            r = range(0, 16, 2)
        for i in r:
            a.e(f'v_max3_f32 v{dst}, v{b + i}, v{b + i + 1}, v{dst}')

    def halves_max(self, r):
        a = self.a
        a.e(f'v_mov_b32 v2, v{r}')
        a.e(f'v_permlane32_swap_b32 v{r}, v2')
        a.e(f'v_max_f32 v{r}, v{r}, v2')

    def main(self, flags=''):
        a = self.a
        L_PASS = a.newlabel('ATT_PASS')
        L_LOOP = a.newlabel('ATT_LOOP')
        L_NOKV = a.newlabel('ATT_NOKV')
        L_FIN = a.newlabel('ATT_FIN')
        a.e('s_mov_b32 s33, 0')
        a.e('v_lshlrev_b32 v3, 3, v3')
        for i in range(3):
            a.e(f'v_add_u32 v{5 + i}, {KVBUF}, v{10 + i}')
        a.e('s_waitcnt vmcnt(12)')
        a.vmq = a.vmq[-12:]
        a.e('s_barrier')
        self.readK(0)
        a.wait_lg0()
        for qt in range(2):
            self.S(qt, 0)
            self.S(qt, 1)
        for qt in range(2):
            self.max16(self.SB + 16 * qt, 8 + qt, True)
            self.halves_max(8 + qt)
            self.set_m(qt, 8 + qt, M_OFFSET)
        a.label(L_PASS)
        self.readK(0)
        self.readK(1)
        self.readV(0, 0)
        self.readV(0, 1)
        for i in range(32):
            a.e(f'v_mov_b32 v{self.OB + i}, 0')
        for i in range(4):
            a.e(f'v_mov_b32 v{self.PF + 4 + i}, 0')
            a.e(f'v_mov_b32 v{self.VF + 12 + i}, 0')
        a.e('s_mov_b32 s34, 0')
        a.e(f's_add_u32 s35, s31, {KVBUF}')
        a.e(f's_mov_b32 s37, {-KVBUF & 0xffffffff}')
        a.wait_lg0()
        self.S(0, 0)
        self.S(0, 1)
        a.e('s_nop 7')
        a.label(L_LOOP)
        a.wait_lg0()
        if opt('gate'):
            lng = a.newlabel('ATT_NG')
            a.e(f's_cmp_lg_u32 s34, {opt("gate")[0]}')
            a.e(f's_cbranch_scc1 {lng}')
            a.e('s_lshl_b32 s44, s3, 7')
            a.e(f's_add_u32 s44, s44, {PROG_OFF}')
            a.e('v_mov_b32 v2, 0')
            poll(a, lambda: a.e(f'buffer_load_dword v4, v2, s[12:15], s44 offen {SC}'), [4], 8, sleep=8)
            if 'gateprio' in ABL:
                a.e('s_setprio 1')
            a.label(lng)
        for n in range(32):
            j, qt = n // 2, n % 2
            sb = self.SB + 16 * (n % 2)
            if n == 29:
                a.e('s_waitcnt vmcnt(0) lgkmcnt(0)')
                a.vmq = []
                a.lgq = []
                a.e('s_barrier')
                for i in range(3):
                    a.e(f'v_add_u32 v{5 + i}, s37, v{5 + i}')
                a.e('s_cmp_ge_u32 s34, 2')
                a.e(f's_cbranch_scc1 {L_NOKV}')
                self.issue_kv(buf_s=35, flags=flags)
                a.label(L_NOKV)
                self.gate_load()
                a.e('s_add_u32 s35, s35, s37')
                a.e('s_sub_u32 s37, 0, s37')
            if qt == 1:
                a.wait_lg(('K', j + 1))
            self.S(n + 1, 0)
            for i in range(0, 4):
                a.e(f'v_exp_f32 v{sb + i}, v{sb + i}')
            self.PV(n - 1, 1)
            if qt == 0:
                self.readV(j + 1, 0)
            else:
                self.readK(j + 2)
            for i in range(4, 8):
                a.e(f'v_exp_f32 v{sb + i}, v{sb + i}')
            self.S(n + 1, 1)
            for i in range(4):
                a.e(f'v_cvt_pk_bf16_f32 v{self.PF + i}, v{sb + 2 * i}, v{sb + 2 * i + 1}')
            for i in range(8, 12):
                a.e(f'v_exp_f32 v{sb + i}, v{sb + i}')
            if qt == 0:
                a.wait_lg(('V', j))
            self.PV(n, 0)
            if qt == 0:
                self.readV(j + 1, 1)
            for i in range(12, 16):
                a.e(f'v_exp_f32 v{sb + i}, v{sb + i}')
            for i in range(4, 8):
                a.e(f'v_cvt_pk_bf16_f32 v{self.PF + i}, v{sb + 2 * i}, v{sb + 2 * i + 1}')
        a.e('s_add_u32 s34, s34, 1')
        a.e('s_cmp_lt_u32 s34, 4')
        a.e(f's_cbranch_scc1 {L_LOOP}')
        self.PV(31, 1)
        a.wait_all()
        a.e('s_cmp_lg_u32 s33, 0')
        a.e(f's_cbranch_scc1 {L_FIN}')
        a.e(f'v_max3_f32 v2, |v{self.OB}|, |v{self.OB + 1}|, |v{self.OB + 2}|')
        regs = [self.OB + i for i in range(3, 11)] + [self.OB + 16 + i for i in range(11)] + [self.OB + 16]
        for i in range(0, len(regs), 2):
            a.e(f'v_max3_f32 v2, |v{regs[i]}|, |v{regs[i + 1]}|, v2')
        a.e(f's_mov_b32 s44, {hx(2.0 ** 110)}')
        a.e('v_cmp_nlt_f32 vcc, v2, s44') if False else a.e('v_cmp_ngt_f32 vcc, s44, v2')
        a.e(f'v_add_f32 v4, v{self.OB + 10}, v{self.OB + 26}')
        a.e('v_cmp_u_f32 s[46:47], v4, v4')
        a.e('s_or_b64 vcc, vcc, s[46:47]')
        a.e('s_cmp_lg_u64 vcc, 0')
        a.e('s_cselect_b32 s44, 1, 0')
        a.e('v_mov_b32 v2, s44')
        a.e('s_lshl_b32 s45, s20, 2')
        a.e(f's_add_u32 s45, s45, {16 * KV_TILE}')
        a.e('v_mov_b32 v4, s45')
        a.e('ds_write_b32 v4, v2')
        a.e(f'v_mov_b32 v4, {16 * KV_TILE}')
        a.e('s_waitcnt lgkmcnt(0)')
        a.e('s_barrier')
        a.e(f'ds_read_b128 {vr(self.PF, 4)}, v4')
        a.e('s_waitcnt lgkmcnt(0)')
        a.e(f'v_or3_b32 v2, v{self.PF}, v{self.PF + 1}, v{self.PF + 2}')
        a.e(f'v_or_b32 v2, v2, v{self.PF + 3}')
        a.e('v_readfirstlane_b32 s44, v2')
        a.e('s_cmp_eq_u32 s44, 0')
        a.e(f's_cbranch_scc1 {L_FIN}')
        L_MC = a.newlabel('ATT_MC')
        L_MT = a.newlabel('ATT_MT')
        a.e('s_mov_b32 s33, 1')
        for p in range(2):
            a.e(f'v_mov_b32 v{self.QF + 8 * p + 5}, 0')
            a.e(f'v_mov_b32 v{self.QF + 8 * p + 6}, 0')
            a.e(f'v_mov_b32 v{8 + p}, 0xff7fffff')
        a.e(f's_mov_b32 s30, {KV_OFF}')
        a.e('s_mov_b32 s34, 0')
        a.label(L_MC)
        a.e('s_barrier')
        self.issue_kv(buf=0, flags=flags)
        a.e('v_mov_b32 v5, v10')
        a.e('v_mov_b32 v6, v11')
        a.e('s_mov_b32 s36, 0')
        a.wait_vm0()
        a.e('s_barrier')
        a.label(L_MT)
        self.readK(0)
        a.wait_lg0()
        for qt in range(2):
            self.S(qt, 0)
            self.S(qt, 1)
        a.e(f'v_add_u32 v5, {KV_TILE}, v5')
        a.e(f'v_add_u32 v6, {KV_TILE}, v6')
        for qt in range(2):
            self.max16(self.SB + 16 * qt, 8 + qt, False)
        a.e('s_add_u32 s36, s36, 1')
        a.e('s_cmp_lt_u32 s36, 16')
        a.e(f's_cbranch_scc1 {L_MT}')
        a.e('s_add_u32 s34, s34, 1')
        a.e('s_cmp_lt_u32 s34, 4')
        a.e(f's_cbranch_scc1 {L_MC}')
        for qt in range(2):
            self.halves_max(8 + qt)
            self.set_m(qt, 8 + qt, 0.0)
        a.e('s_barrier')
        a.e(f's_mov_b32 s30, {KV_OFF}')
        self.issue_kv(buf=1, flags=flags)
        self.issue_kv(buf=0, flags=flags)
        for i in range(3):
            a.e(f'v_add_u32 v{5 + i}, {KVBUF}, v{10 + i}')
        a.e('s_waitcnt vmcnt(10)')
        a.e('s_barrier')
        a.e(f's_branch {L_PASS}')
        a.label(L_FIN)
        a.vmq = []
        a.lgq = []

    def epilogue(self, flags=''):
        a = self.a
        a.e('s_mul_i32 s44, s23, 90')
        a.e('s_lshl_b32 s45, s22, 1')
        a.e('s_add_u32 s45, s45, s44')
        a.e('s_lshl_b32 s45, s45, 10')
        a.e(f's_add_u32 s45, s45, {UF_OFF}')
        a.e('s_lshr_b32 s46, s22, 2')
        a.e('s_add_u32 s46, s46, s44')
        a.e('s_lshl_b32 s46, s46, 10')
        a.e('s_and_b32 s47, s22, 3')
        a.e('s_lshl_b32 s47, s47, 8')
        a.e('s_add_u32 s46, s46, s47')
        a.e(f's_add_u32 s46, s46, {UF_OFF + 16 * 1024}')
        a.e('v_and_b32 v4, 15, v1')
        a.e('v_lshlrev_b32 v4, 4, v4')
        a.e('v_bfe_u32 v5, v1, 4, 1')
        a.e('v_lshl_add_u32 v4, v5, 2, v4')
        poll(a, self.gate_load, [self.XF + 1], 8, first_done=True)
        for qt in range(2):
            o = self.OB + 16 * qt
            a.e(f'v_mov_b32 v2, v{o + 10}')
            a.e(f'v_permlane32_swap_b32 v{o + 10}, v2')
            a.e(f'v_rcp_f32 v6, v{o + 10}')
            a.e(f'v_mul_f32 v6, v6, v{self.XF}')
            for i in range(5):
                a.e(f'v_pk_mul_f32 {vr(o + 2 * i, 2)}, {vr(o + 2 * i, 2)}, v[6:7] op_sel_hi:[1,0]')
            pk = self.SB + 8 * qt
            for i in range(5):
                a.e(f'v_cvt_pk_bf16_f32 v{pk + i}, v{o + 2 * i}, v{o + 2 * i + 1}')
            a.e(f'buffer_store_dwordx4 {vr(pk, 4)}, v10, s[12:15], s45 offen offset:{1024 * qt} {flags}')
            a.e('s_mov_b32 exec_hi, 0')
            a.e(f'buffer_store_dword v{pk + 4}, v4, s[12:15], s46 offen offset:{8 * qt} {flags}')
            a.e('s_mov_b64 exec, -1')
        a.e('s_lshl_b32 s44, s21, 8')
        a.e('s_lshl_b32 s45, s20, 3')
        a.e('s_add_u32 s44, s44, s45')
        a.e('s_add_u32 s44, s44, s22')
        a.e('s_lshl_b32 s44, s44, 2')
        a.e(f's_add_u32 s44, s44, {F3_OFF + 512}')
        a.wait_vm0()
        set_flag(a, 44, 8)

    def gate_load(self):
        a = self.a
        a.e(f's_mov_b32 s38, {GATE_OFF}')
        a.e(f'buffer_load_dwordx2 {vr(self.XF, 2)}, v3, s[12:15], s38 offen {SC}')


def p3_pre(a):
    a.e('s_and_b32 s44, s22, 1')
    a.e('s_lshl_b32 s66, s21, 1')
    a.e('s_add_u32 s66, s66, s44')
    a.e('s_lshr_b32 s67, s22, 1')
    a.e('s_lshl_b32 s68, s66, 10')
    a.e(f's_add_u32 s68, s68, {F3_OFF}')
    a.e('s_lshr_b32 s72, s23, 1')
    a.e('s_lshl_b32 s72, s72, 10')
    a.e('s_lshr_b32 s44, s22, 2')
    a.e('s_lshl_b32 s44, s44, 7')
    a.e('s_add_u32 s72, s72, s44')
    a.e('s_and_b32 s44, s23, 1')
    a.e('s_lshl_b32 s44, s44, 4')
    a.e('s_add_u32 s72, s72, s44')
    a.e('s_and_b32 s44, s22, 3')
    a.e('s_lshl_b32 s44, s44, 2')
    a.e('s_add_u32 s72, s72, s44')
    a.e(f's_add_u32 s72, s72, {F3_OFF}')
    a.e('s_lshl_b32 s69, s67, 9')
    a.e(f's_add_u32 s69, s69, {FW3_OFF}')
    a.e('v_and_b32 v7, 31, v1')
    a.e('v_lshlrev_b32 v7, 2, v7')
    a.e('v_add_u32 v7, 512, v7')
    a.e('v_min_u32 v8, 44, v1')
    a.e('v_lshlrev_b32 v8, 3, v8')
    a.vm(f'buffer_load_dword v4, v7, s[12:15], s68 offen {SC}', 'pre')
    a.vm(f'buffer_load_dwordx2 v[2:3], v8, s[12:15], s69 offen {SC}', 'pre')


def p3(a):
    ACC = 16
    FR = 96
    DEPTH = 4
    NS = 23
    poll(a, lambda: a.e(f'buffer_load_dwordx2 v[2:3], v8, s[12:15], s69 offen {SC}'), [2, 3], 10, first_done=True)
    a.e('s_mul_i32 s44, s20, 18')
    a.e('s_add_u32 s44, s44, 18')
    a.e('s_mul_i32 s45, s20, 5')
    a.e('s_cmp_eq_u32 s20, 3')
    a.e('s_cselect_b32 s46, 1, 0')
    a.e('s_sub_u32 s45, s45, s46')
    a.e('s_cmp_ge_u32 s20, 2')
    a.e('s_cselect_b32 s46, 4, 5')
    a.e('v_and_b32 v8, 7, v1')
    a.e('s_lshl_b32 s47, s20, 7')
    a.e('v_lshl_add_u32 v8, v8, 2, s47')
    a.e('v_cmp_ne_u32 vcc, s62, v4')
    a.e('s_cmp_eq_u64 vcc, 0')
    if 'ufirst' in ABL:
        a.e('s_cmp_eq_u32 s20, 77')
    a.e('s_cselect_b32 s70, 1, 0')
    a.e('s_cselect_b32 s71, s46, 18')
    a.e('s_cselect_b32 s24, s45, s44')
    a.e('s_cselect_b32 s30, s44, s45')
    a.e('s_cselect_b64 vcc, -1, 0')
    a.e('s_mul_i32 s44, s67, 90')
    a.e('s_add_u32 s25, s24, s44')
    a.e('s_mul_i32 s25, s25, 4608')
    a.e(f's_add_u32 s25, s25, {W3_OFF}')
    a.e('s_add_u32 s31, s30, s44')
    a.e('s_mul_i32 s31, s31, 4608')
    a.e(f's_add_u32 s31, s31, {W3_OFF}')
    a.e('v_cndmask_b32 v7, v7, v8, vcc')
    a.e('v_lshrrev_b32 v6, 4, v1')
    a.e('v_lshlrev_b32 v6, 3, v6')
    a.e('v_and_b32 v9, 7, v1')
    a.e('v_add_u32 v6, v6, v9')
    a.e('v_lshlrev_b32 v6, 4, v6')
    a.e('v_add_u32 v6, 4096, v6')
    a.e('v_mov_b32 v12, v19')

    def loadW(k):
        b = FR + 36 * (k % DEPTH)
        for nt in range(4):
            a.vm(f'buffer_load_dwordx4 {vr(b + 4 * nt, 4)}, v12, s[12:15], s25 offen offset:{1024 * nt} {SCL}', ('W', k))
        a.vm(f'buffer_load_dwordx4 {vr(b + 16, 4)}, v6, s[12:15], s25 offen {SCL}', ('W', k))
        a.e('s_add_u32 s25, s25, 4608')

    def loadF(k):
        b = FR + 36 * (k % DEPTH)
        for i in range(4):
            a.vm(f'buffer_load_dwordx4 {vr(b + 20 + 4 * i, 4)}, v{2 + i}, s[12:15], s24 offen {SCL}', ('F', k))
        a.e('s_add_u32 s24, s24, 1024')
    a.e('s_mul_i32 s44, s66, 360')
    a.e('s_add_u32 s24, s24, s44')
    a.e('s_lshl_b32 s24, s24, 10')
    a.e(f's_add_u32 s24, s24, {UF_OFF}')
    a.e('s_add_u32 s30, s30, s44')
    a.e('s_lshl_b32 s30, s30, 10')
    a.e(f's_add_u32 s30, s30, {UF_OFF}')
    for i in range(4):
        a.e(f's_add_u32 s44, s20, {i}')
        a.e('s_and_b32 s44, s44, 3')
        a.e('s_mul_i32 s44, s44, 92160')
        a.e(f'v_add_u32 v{2 + i}, s44, v12')
    a.e('s_mov_b32 s8, s64')
    a.e('s_mov_b32 s9, s65')
    srd(a, 8, 2048 * 1152)
    if 'trfine' in ABL:
        stamp(a, 3)
    a.wait_vm('st')
    if 'trfine' in ABL:
        stamp(a, 4)
    set_flag(a, 72, 10)
    for k in range(DEPTH):
        loadW(k)
    lj = a.newlabel('P3_J')
    a.e('s_cmp_lg_u32 s70, 0')
    a.e(f's_cbranch_scc1 {lj}')
    q0 = list(a.vmq)
    if 'now3t' not in ABL:
        a.e('s_lshr_b32 s44, s2, 3')
        a.e('s_lshl_b32 s44, s44, 2')
        a.e('s_add_u32 s44, s44, s20')
        a.e('s_mul_i32 s44, s44, %d' % (102 * 128))
        a.e('s_and_b32 s45, s2, 4')
        a.e('s_mul_i32 s45, s45, %d' % (90 * 4608))
        a.e('s_add_u32 s44, s44, s45')
        a.e(f's_add_u32 s44, s44, {W3_OFF}')
        a.e('v_min_u32 v10, 50, v1')
        a.e('v_lshlrev_b32 v10, 8, v10')
        a.e('buffer_load_dword v255, v10, s[12:15], s44 offen')
        a.e('buffer_load_dword v255, v10, s[12:15], s44 offen offset:128')
    poll(a, lambda: a.e(f'buffer_load_dword v9, v8, s[12:15], s68 offen {SC}'), [9], 10, sleep=opt('psl', [2])[0])
    a.vmq = q0
    if 'trfine' in ABL:
        stamp(a, 5)
    a.label(lj)
    for k in range(DEPTH):
        loadF(k)
    stamp(a, 6 if 'trfine' in ABL else 3 if 'p3fine' in ABL else 5)

    if opt('pg'):
        a.e(f's_setprio {opt("pg")[2]}')

    def flags2():
        a.e(f'buffer_load_dword v9, v7, s[12:15], s68 offen {SC}')
    lskip = a.newlabel('P3_SKIP')
    for k in range(NS):
        b = FR + 36 * (k % DEPTH)
        if k == NS - 1:
            a.e('s_cmp_ge_u32 s20, 2')
            a.e(f's_cbranch_scc1 {lskip}')
            a.wait_vm0()
        a.wait_vm(('F', k))
        for i in range(4):
            for nt in range(5):
                d = vr(ACC + 16 * nt + 4 * i, 4)
                a.e(f'v_mfma_f32_16x16x32_bf16 {d}, {vr(b + 4 * nt, 4)}, {vr(b + 20 + 4 * i, 4)}, {"0" if k == 0 else d}')
        kn = k + DEPTH
        if 'p3fine' in ABL and k in (2, 12) and not (k == 2 and 'drainfirst' in ABL) and 'trfine' not in ABL:
            stamp(a, 4 if k == 2 else 5)
        if kn == NS - 1:
            ls = a.newlabel('P3_NL')
            a.e('s_cmp_ge_u32 s20, 2')
            a.e(f's_cbranch_scc1 {ls}')
            q1 = list(a.vmq)
            loadW(kn)
            loadF(kn)
            a.vmq = q1
            a.label(ls)
        elif kn < NS:
            if kn in (4, 5, 18):
                a.e(f's_cmp_eq_u32 s71, {kn}')
                a.e('s_cselect_b32 s25, s31, s25')
            loadW(kn)
            if kn in (4, 5, 18):
                ls = a.newlabel('P3_NS')
                a.e(f's_cmp_lg_u32 s71, {kn}')
                a.e(f's_cbranch_scc1 {ls}')
                a.e('s_mov_b32 s24, s30')
                q1 = list(a.vmq)
                poll(a, flags2, [9], 10)
                a.vmq = q1
                a.label(ls)
            loadF(kn)
    a.label(lskip)
    if 'trfine' not in ABL:
        stamp(a, 6)
    else:
        a.e('s_nop 7')
    for i in range(1, 4):
        a.e(f's_add_u32 s44, s20, {i}')
        a.e('s_and_b32 s44, s44, 3')
        a.e('s_mul_i32 s44, s44, 15360')
        a.e(f'v_add_u32 v{8 + i}, s44, v12')
        for nt in range(5):
            a.lg(f'ds_write_b128 v{8 + i}, {vr(ACC + 16 * nt + 4 * i, 4)} offset:{5120 * (i - 1) + 1024 * nt}', 'w')
    a.e('s_mul_i32 s26, s20, 15360')
    a.e('v_add_u32 v8, s26, v12')
    a.e('s_lshl_b32 s27, s66, 6')
    a.e('s_lshr_b32 s28, s20, 1')
    a.e('s_lshl_b32 s28, s28, 5')
    a.e('s_add_u32 s27, s27, s28')
    a.e('s_and_b32 s28, s20, 1')
    a.e('s_lshl_b32 s28, s28, 2')
    a.e('s_add_u32 s27, s27, s28')
    a.e('v_bfe_u32 v13, v1, 2, 2')
    a.e('v_lshlrev_b32 v13, 3, v13')
    a.e('v_and_b32 v14, 3, v1')
    a.e('v_add3_u32 v13, v13, v14, s27')
    a.e('v_mul_u32_u24 v13, 1152, v13')
    a.e('v_lshrrev_b32 v14, 4, v1')
    a.e('v_lshl_add_u32 v15, v14, 3, v13')
    a.e('v_lshl_add_u32 v13, v14, 4, v13')
    a.e('s_mul_i32 s27, s67, 144')
    a.wait_all()
    a.e('s_barrier')
    for nt in range(5):
        for i in range(3):
            a.lg(f'ds_read_b128 {vr(FR + 12 * nt + 4 * i, 4)}, v8 offset:{5120 * i + 1024 * nt}', ('r', nt))
    PKB = FR + 64
    for nt in range(5):
        a.wait_lg(('r', nt))
        b = FR + 12 * nt
        o = ACC + 16 * nt
        for h in range(2):
            a.e(f'v_pk_add_f32 {vr(b + 2 * h, 2)}, {vr(b + 2 * h, 2)}, {vr(b + 4 + 2 * h, 2)}')
            a.e(f'v_pk_add_f32 {vr(o + 2 * h, 2)}, {vr(o + 2 * h, 2)}, {vr(b + 8 + 2 * h, 2)}')
        for h in range(2):
            a.e(f'v_pk_add_f32 {vr(b + 2 * h, 2)}, {vr(b + 2 * h, 2)}, {vr(o + 2 * h, 2)}')
        for h in range(2):
            a.e(f'v_cvt_pk_bf16_f32 v{PKB + 2 * nt + h}, v{b + 2 * h}, v{b + 2 * h + 1}')
        if nt in (1, 3):
            a.e(f'buffer_store_dwordx4 {vr(PKB + 2 * nt - 2, 4)}, v13, s[8:11], s27 offen offset:{64 * (nt // 2)}')
        if nt == 4:
            a.e('s_mov_b32 exec_hi, 0')
            a.e(f'buffer_store_dwordx2 {vr(PKB + 8, 2)}, v15, s[8:11], s27 offen offset:128')
            a.e('s_mov_b64 exec, -1')


def kernel_text(name, a, vgpr=256, sgpr=96):
    a.fix_hazards()
    mv, ms, ma = a.max_regs()
    assert mv <= vgpr and ms <= sgpr and ma == 0, (mv, ms, ma)
    body = f'.globl {name}\n.p2align 8\n.type {name},@function\n{name}:\n' + a.text()
    desc = f""".p2align 6
.amdhsa_kernel {name}
  .amdhsa_next_free_vgpr {vgpr}
  .amdhsa_next_free_sgpr {sgpr}
  .amdhsa_accum_offset {(vgpr + 3) // 4 * 4}
  .amdhsa_group_segment_fixed_size 0
  .amdhsa_kernarg_size 112
  .amdhsa_user_sgpr_count 2
  .amdhsa_user_sgpr_kernarg_segment_ptr 1
  .amdhsa_system_sgpr_workgroup_id_x 1
.end_amdhsa_kernel
"""
    return body, desc


def build_file(kernels):
    hdr = open('cdna_kernels/' + NAME + '.s.ref').read().split('\n')
    head = [l for l in hdr if l.startswith(';') and '@launch' not in l and 'Override' not in l and 'grid=ceil' not in l]
    head = head[:15]
    out = '\n'.join(head) + '\n'
    for name, a, grid, block, lds, vgpr in kernels:
        kn = f'kernel={name} ' if (len(kernels) > 1 or LIST) else ''
        out += f'; @launch {kn}grid=({grid},1,1) block=({block},1,1) lds={lds}\n'
    out += '.amdgcn_target "amdgcn-amd-amdhsa--gfx950"\n.text\n'
    out += f'.set CODE_LINES, (K_END - {NAME}_kernel) / 128 - 4\n'
    descs = ''
    for name, a, grid, block, lds, vgpr in kernels:
        b, d = kernel_text(name, a, vgpr)
        out += b
        descs += d
    out += '.section .rodata,"a"\n' + descs
    return out


NG1, NG2 = 3, 6


def mega():
    a = Asm()
    a.e('s_cmp_ge_u32 s2, 512')
    a.e('s_cbranch_scc1 K_END')
    stamp(a, 0)
    a.e('s_cmp_lt_u32 s2, 256')
    a.e('s_cbranch_scc1 K_GEMM')
    a.e('s_sub_u32 s3, s2, 256')
    if 'g1only' in ABL:
        a.e('s_branch K_DONE')
    P = opt('pa', [0, 0, 0, 0])
    if P[0]:
        a.e(f's_setprio {P[0]}')
    t = ATT(a)
    t.setup(3)
    write_nonce(a)
    t.front()
    stamp(a, 1)
    t.q_phase()
    stamp(a, 2)
    a.e(f's_setprio {P[3]}')
    if 'noattmain' in ABL:
        a.e('v_lshlrev_b32 v3, 3, v3')
        t.gate_load()
        a.wait_all()
    else:
        t.main(flags=SCL)
    stamp(a, 3)
    if 'epiprio' in ABL:
        a.e('s_setprio 3')
    t.epilogue(flags=SC)
    a.e('s_branch K_DONE')
    a.label('K_GEMM')
    a.vmq = []
    a.lgq = []
    if 'gemmprio' in ABL:
        a.e('s_setprio 1')
    g = GW(a)
    g.limitA = 36
    g.setup()
    if 'attonly' in ABL:
        a.e('s_branch K_DONE')
    g.prologue_issue()
    g.setup2()
    def nonce_ld():
        a.e('v_mov_b32 v23, 0')
        a.vm(f'global_load_dword v24, v23, s[16:17] {SC}', 'nonce')
    g.hooks[30] = nonce_ld
    g.run_segment(0, 36)
    if 'g1fine' in ABL:
        a.e('s_branch K_DONE')
    stamp(a, 1)
    n1, n2 = opt('ng', [NG1, NG2])
    g.side_issue()
    g.z2_gelu_publish()
    g.retile_compute()
    g.z1_gelu(range(0, n1))
    g.z2_gather_norm_store()
    stamp(a, 2)
    a.e('s_lshl_b32 s49, s22, 8')
    a.e(f's_add_u32 s49, s49, {FZ_OFF}')
    a.e('s_lshl_b32 s48, s23, 2')
    a.e('s_add_u32 s48, s48, s49')
    a.e('s_lshl_b32 s44, s32, 6')
    a.e('v_and_b32 v29, 15, v1')
    a.e('v_lshl_add_u32 v29, v29, 2, s44')
    a.e('v_lshlrev_b32 v23, 2, v1')

    def zflag():
        a.wait_vm('st')
        set_flag(a, 48, 27)
    g.hooks[38] = zflag
    g.nextA = 40
    g.run_segment(36, 4, own=True)
    g.z1_gelu(range(n1, n2))
    poll(a, lambda: a.e(f'buffer_load_dword v26, v29, s[12:15], s49 offen {SC}'), [26], 27)
    stamp(a, 3)
    g.limitA = len(g.units)
    a.e('s_barrier')
    for _ in range(g.R - 1):
        for f in g.issueA():
            f()
    g.sp_pre()
    g.z1_gelu(range(n2, 9))

    def zall():
        a.e(f'buffer_load_dword v26, v23, s[12:15], s49 offen {SC}')

    def zall0():
        zall()
        a.vmq.append('zf')

    def zall1():
        a.wait_vm('zf')
        poll(a, zall, [26], 27, first_done=True)
    g.hooks[44] = zall0
    g.hooks[48] = zall1
    g.hooks[97] = lambda: p3_pre(a)

    if opt('gate'):
        def prog():
            a.e('s_lshl_b32 s44, s2, 7')
            a.e(f's_add_u32 s44, s44, {PROG_OFF}')
            set_flag(a, 44, 27)
        g.hooks[36 + opt('gate')[1]] = prog
    g.run_segment(40, 60)
    if 'p2fine' in ABL:
        stamp(a, 6)
        a.e('s_branch K_DONE')
    stamp(a, 4)
    if 'p3fine' in ABL:
        stamp(a, 1)
    g.sp_epilogue()
    if 'p3fine' in ABL:
        stamp(a, 2)
    p3(a)
    a.label('K_DONE')
    stamp_flush(a, 0)
    a.label('K_END')
    a.e('s_endpgm')
    return (NAME + '_kernel', a, 512, 256, 81920, 256)


LIST = False
if __name__ == '__main__':
    if '--stamp' in sys.argv:
        STAMP = True
        sys.argv.remove('--stamp')
    if '--list' in sys.argv:
        LIST = True
        sys.argv.remove('--list')
    for x in list(sys.argv):
        if x.startswith('--abl='):
            ABL.update(x[6:].split(','))
            sys.argv.remove(x)
    out = sys.argv[1] if len(sys.argv) > 1 else 'out.s'
    open(out, 'w').write(build_file([mega()]))
    print('wrote', out)
```

```python
import sys, struct
from asmlib import Asm

NAME = 'gated_mix__grouped_kv_mqa__mixer_gmlp__prompt'

Z2_OFF = 0x10000
UF_OFF = Z2_OFF + 9437184
W3_OFF = UF_OFF + 11796480
KV_OFF = W3_OFF + 3317760
KV_TILE = 2496
GATE_OFF = KV_OFF + 160 * 1024
STATS_OFF = GATE_OFF + 16384
FLAG_OFF = STATS_OFF + 524288
FKV_OFF = FLAG_OFF
FW3_OFF = FLAG_OFF + 49152
FZ_OFF = FLAG_OFF + 4096
F3_OFF = FLAG_OFF + 65536
PROG_OFF = FLAG_OFF + 16384
GO_OFF = FLAG_OFF + 98304
KVF_OFF = FLAG_OFF
QF_OFF = FLAG_OFF + 131072
SC = 'sc1' if 'sconly1' in ' '.join(sys.argv) else 'sc0 sc1'
SCL = '' if '--abl' in ' '.join(sys.argv) and 'noscl' in ' '.join(sys.argv) else 'sc1'
WS_SIZE = 0x1c00000
assert QF_OFF + 128 * 16 * 1152 <= 0x1b00000
STAMP_OFF = 0x1b00000

A_X, A_WQ, A_WK, A_WV, A_WO, A_BX, A_WIN, A_WSP, A_BSP, A_WOUT, A_GW, A_OUT, A_DBG, A_WS = [8 * i for i in range(14)]

STAMP = False
ABL = set()


def opt(name, default=None):
    for x in ABL:
        if x.startswith(name + ':'):
            return [int(v) for v in x.split(':')[1:]]
    return default


def f2u(f):
    return struct.unpack('<I', struct.pack('<f', f))[0]


def hx(f):
    return '0x%08x' % f2u(f)


def srd(a, d, size):
    a.e(f's_mov_b32 s{d + 2}, {size}')
    a.e(f's_mov_b32 s{d + 3}, 0x00020000')


def vr(b, n):
    return f'v[{b}:{b + n - 1}]'


def stamp(a, idx):
    if not STAMP:
        return
    a.wait_lg0()
    a.e('s_memrealtime s[78:79]')
    a.e('s_memtime s[76:77]')
    a.e('s_waitcnt lgkmcnt(0)')
    a.e(f's_mov_b32 s{80 + idx}, s78')
    a.e(f's_mov_b32 s{88 + idx}, s76')


def stamp_flush(a, kidx):
    if not STAMP:
        return
    a.e('s_waitcnt vmcnt(0) lgkmcnt(0)')
    stamp(a, 7)
    a.e(f's_load_dwordx2 s[74:75], s[0:1], {A_WS}')
    a.e('s_waitcnt lgkmcnt(0)')
    a.e('v_lshrrev_b32 v1, 6, v0')
    a.e('v_lshlrev_b32 v1, 6, v1')
    a.e('s_lshl_b32 s78, s2, 8')
    a.e(f's_add_u32 s78, s78, {STAMP_OFF + kidx * 131072}')
    a.e('v_add_u32 v1, s78, v1')
    for i in range(16):
        a.e(f'v_mov_b32 v{4 + i}, s{80 + i}')
    for i in range(4):
        a.e(f'global_store_dwordx4 v1, v[{4 + 4 * i}:{7 + 4 * i}], s[74:75] offset:{16 * i}')
    if 'dbgstamp' in ABL:
        a.e('s_cmp_lt_u32 s2, 256')
        a.e('s_cselect_b32 s78, 4, 36')
        a.e('v_mov_b32 v1, s78')
        a.e('s_mov_b64 exec, 1')
        for i in range(1, 8):
            a.e(f'v_subrev_u32 v{4 + i}, s62, v{4 + i}')
            a.e(f'global_atomic_umax v1, v{4 + i}, s[16:17] offset:{4 * (i - 1)} sc1')
        a.e('v_sub_u32 v4, s62, v4')
        a.e('v_add_u32 v4, 1000, v4')
        a.e('v_mov_b32 v1, 32')
        a.e('global_atomic_umax v1, v4, s[16:17] sc1')
        a.e('s_mov_b64 exec, -1')


QSCALE = 18 ** -0.5 * 1.4426950408889634
GELU_C0 = -2.0 * 1.4426950408889634 * 0.7978845608028654
GELU_C1 = GELU_C0 * 0.044715


def gelu_group(a, regs, T, sC1, vC0):
    n = len(regs)
    for i, r in enumerate(regs):
        a.e(f'v_pk_mul_f32 {vr(T + 2 * i, 2)}, {vr(r, 2)}, {vr(r, 2)}')
    for i, r in enumerate(regs):
        a.e(f'v_pk_fma_f32 {vr(T + 2 * i, 2)}, {vr(T + 2 * i, 2)}, s[{sC1}:{sC1 + 1}], {vr(vC0, 2)}')
    for i, r in enumerate(regs):
        a.e(f'v_pk_mul_f32 {vr(T + 2 * i, 2)}, {vr(T + 2 * i, 2)}, {vr(r, 2)}')
    for i in range(2 * n):
        a.e(f'v_exp_f32 v{T + i}, v{T + i}')
    for i, r in enumerate(regs):
        a.e(f'v_pk_add_f32 {vr(T + 2 * i, 2)}, {vr(T + 2 * i, 2)}, 1.0 op_sel_hi:[1,0]')
    for i in range(2 * n):
        a.e(f'v_rcp_f32 v{T + i}, v{T + i}')
    for i, r in enumerate(regs):
        a.e(f'v_pk_mul_f32 {vr(r, 2)}, {vr(T + 2 * i, 2)}, {vr(r, 2)}')


SPIN_MAX = 300000
PG = [0, 2, 0]


def poll(a, loads, regs, t0, first_done=False, sleep=1):
    lp = a.newlabel('POLL')
    lc = a.newlabel('POLLC')
    lg = a.newlabel('POLLOK')
    a.e(f's_mov_b32 s51, {SPIN_MAX}')
    if first_done:
        a.e(f's_branch {lc}')
    a.label(lp)
    loads()
    a.e('s_waitcnt vmcnt(0)')
    a.label(lc)
    a.e(f'v_xor_b32 v{t0}, s62, v{regs[0]}')
    for r in regs[1:]:
        a.e(f'v_xor_b32 v{t0 + 1}, s62, v{r}')
        a.e(f'v_or_b32 v{t0}, v{t0}, v{t0 + 1}')
    a.e(f'v_cmp_ne_u32 vcc, 0, v{t0}')
    a.e(f's_cbranch_vccz {lg}')
    a.e(f's_sleep {sleep}')
    a.e('s_sub_u32 s51, s51, 1')
    a.e('s_cmp_lg_u32 s51, 0')
    a.e(f's_cbranch_scc1 {lp}')
    a.label(lg)
    if not first_done:
        a.vmq = []


def get_nonce(a, vz, vn):
    lp = a.newlabel('NONCE')
    lg = a.newlabel('NONCE_OK')
    a.e(f's_mov_b32 s51, {SPIN_MAX}')
    a.label(lp)
    a.e(f'v_readfirstlane_b32 s62, v{vn}')
    a.e('s_cmp_lg_u32 s62, 0')
    a.e(f's_cbranch_scc1 {lg}')
    a.e('s_sleep 16')
    a.e(f'global_load_dword v{vn}, v{vz}, s[16:17] {SC}')
    a.e('s_waitcnt vmcnt(0)')
    a.e('s_sub_u32 s51, s51, 1')
    a.e('s_cmp_lg_u32 s51, 0')
    a.e(f's_cbranch_scc1 {lp}')
    a.label(lg)


def set_flag(a, soff, t0):
    a.e(f'v_mov_b32 v{t0}, 0')
    a.e(f'v_mov_b32 v{t0 + 1}, s62')
    a.e('s_mov_b64 exec, 1')
    a.vm(f'buffer_store_dword v{t0 + 1}, v{t0}, s[12:15], s{soff} offen {SC}', 'flag')
    a.e('s_mov_b64 exec, -1')


class GW:
    R = 5
    SLOT = 8192
    SGL = 40960
    BBASE = 49152
    AF = 32
    BF = 68
    ACC0 = 100
    ACC1 = 172
    UB = 27
    UP = 45

    def __init__(self, a):
        self.a = a
        self.units = []
        self.stages = []
        for st in range(9):
            self.stages.append(('x', st))
            self.units += [('z2', 2 * st, st, 0, 2 * st), ('z2', 2 * st + 1, st, 1, 2 * st + 1), ('E', st, st, 0, None)]
        for k in range(18):
            if k % 2 == 0:
                self.stages.append(('x', k // 2))
            self.units.append(('z1', k, 9 + k // 2, k % 2, 18 + k))
        for k in range(64):
            if k % 2 == 0:
                self.stages.append(('sp', k // 2))
            self.units.append(('sp', k, 18 + k // 2, k % 2, 36 + k))
        self.nextA = 0
        self.nextB = 0
        self.limitA = len(self.units)
        self.pendB = []
        self.hooks = {}

    def setup(self):
        a = self.a
        a.e(f's_load_dwordx4 s[4:7], s[0:1], {A_X}')
        a.e(f's_load_dwordx2 s[8:9], s[0:1], {A_WIN}')
        a.e(f's_load_dwordx4 s[16:19], s[0:1], {A_DBG}')
        a.e(f's_load_dwordx4 s[52:55], s[0:1], {A_WSP}')
        a.e(f's_load_dwordx2 s[64:65], s[0:1], {A_OUT}')
        a.e(f's_load_dwordx4 s[68:71], s[0:1], {A_WK}')
        a.e('v_lshrrev_b32 v1, 6, v0')
        a.e('v_readfirstlane_b32 s20, v1')
        a.e('v_and_b32 v1, 63, v0')
        a.e('s_lshr_b32 s31, s2, 3')
        a.e('s_and_b32 s32, s2, 3')
        a.e('s_and_b32 s34, s31, 3')
        a.e('s_lshl_b32 s21, s32, 2')
        a.e('s_add_u32 s21, s21, s34')
        a.e('s_lshr_b32 s35, s31, 2')
        a.e('s_and_b32 s22, s2, 4')
        a.e('s_lshl_b32 s22, s22, 1')
        a.e('s_add_u32 s22, s22, s35')
        a.e('s_lshl_b32 s23, s21, 2')
        a.e('s_add_u32 s23, s23, s20')
        a.e('s_lshl_b32 s39, s34, 1')
        a.e('s_add_u32 s39, s39, s35')
        a.e('s_cmp_ge_u32 s39, 9')
        a.e('s_cselect_b32 s40, 9, 0')
        a.e('s_sub_u32 s39, s39, s40')
        if 'norot' in ABL:
            a.e('s_mov_b32 s39, 0')
        a.e('s_mul_i32 s24, s39, %d' % (64 * 9216))
        a.e('s_add_u32 s24, s24, 4608')
        a.e('s_lshl_b32 s25, s39, 7')
        a.e('s_lshl_b32 s28, s39, 1')
        a.e('s_add_u32 s28, s28, s20')
        a.e('s_cmp_ge_u32 s28, 18')
        a.e('s_cselect_b32 s29, 18, 0')
        a.e('s_sub_u32 s28, s28, s29')
        a.e('s_lshl_b32 s26, s20, 11')
        a.e('s_lshl_b32 s27, s20, 12')
        a.e(f's_add_u32 s27, s27, {self.BBASE}')
        a.e('s_lshl_b32 s30, s20, 10')
        a.e(f's_add_u32 s30, s30, {self.SGL}')
        a.e('v_and_b32 v23, 7, v1')
        a.e('v_lshrrev_b32 v24, 5, v1')
        a.e('v_lshlrev_b32 v24, 3, v24')
        a.e('v_bfe_u32 v25, v1, 3, 2')
        a.e('s_lshl_b32 s44, s23, 5')
        a.e('v_add3_u32 v24, v24, v25, s44')
        a.e('v_lshrrev_b32 v25, 4, v1')
        a.e('v_xor_b32 v25, v25, v23')
        a.e('v_lshlrev_b32 v25, 4, v25')
        a.e('v_xor_b32 v26, 64, v25')
        a.e('v_mul_u32_u24 v27, 1152, v24')
        a.e('v_add_u32 v5, v27, v25')
        a.e('v_add_u32 v6, v27, v26')
        a.e(f'v_add_u32 v6, {16 * 1152 - 1024}, v6')
        a.e(f'v_add_u32 v7, {4 * 1152 - 2048}, v5')
        a.e(f'v_add_u32 v8, {4 * 1152 - 2048}, v6')
        a.e('s_lshl_b32 s42, s22, 8')
        a.e('s_mul_i32 s43, s20, %d' % (8 * 9216))
        a.e('s_add_u32 s42, s42, s43')
        a.e('v_bfe_u32 v2, v1, 2, 2')
        a.e('v_mul_u32_u24 v2, 9216, v2')
        a.e('v_lshrrev_b32 v3, 4, v1')
        a.e('v_lshl_add_u32 v2, v3, 6, v2')
        a.e('s_and_b32 s44, s20, 1')
        a.e('s_lshl_b32 s45, s44, 1')
        a.e('v_and_b32 v3, 3, v1')
        a.e('v_xor_b32 v3, s45, v3')
        a.e('v_lshl_add_u32 v2, v3, 4, v2')
        a.e('v_add_u32 v2, s42, v2')
        a.e(f'v_add_u32 v3, {4 * 9216 - 1024}, v2')
        a.e('v_lshrrev_b32 v29, 1, v1')
        a.e('v_and_b32 v27, 19, v29')
        a.e('v_bfe_u32 v28, v29, 2, 1')
        a.e('v_lshl_add_u32 v27, v28, 3, v27')
        a.e('v_bfe_u32 v28, v29, 3, 1')
        a.e('v_lshl_add_u32 v27, v28, 2, v27')
        a.e('v_mul_u32_u24 v4, 9216, v27')
        a.e('v_and_b32 v27, 1, v1')
        a.e('v_lshl_add_u32 v4, v27, 4, v4')
        a.e('s_lshl_b32 s45, s22, 5')
        a.e('s_add_u32 s45, s45, 4096')
        a.e('v_add_u32 v4, s45, v4')
        a.e('v_mul_u32_u24 v27, 36, v27')
        a.e('v_lshrrev_b32 v20, 2, v1')
        a.e('v_mul_u32_u24 v20, 1152, v20')
        a.e('v_bfe_u32 v28, v1, 1, 1')
        a.e('v_lshl_add_u32 v20, v28, 4, v20')
        a.e('v_add_u32 v20, v20, v27')
        a.e('v_mul_u32_u24 v28, 1152, v29')
        a.e('v_add3_u32 v28, v28, v27, 32')
        a.e('s_cmp_eq_u32 s20, 2')
        a.e('s_cselect_b64 vcc, -1, 0')
        a.e('v_cndmask_b32 v20, v20, v28, vcc')
        a.e('v_mul_u32_u24 v28, 36, v29')
        a.e('s_cmp_eq_u32 s20, 3')
        a.e('s_cselect_b64 vcc, -1, 0')
        a.e('v_cndmask_b32 v20, v20, v28, vcc')
        a.e('s_mul_i32 s44, s22, 72')
        a.e('s_cmp_eq_u32 s20, 1')
        a.e(f's_cselect_b32 s45, {16 * 1152}, 0')
        a.e('s_add_u32 s44, s44, s45')
        a.e('s_and_b32 s45, s22, 1')
        a.e('s_lshl_b32 s45, s45, 4')
        a.e('s_cmp_ge_u32 s22, 4')
        a.e('s_cselect_b32 s45, 32, s45')
        a.e('s_cmp_eq_u32 s20, 3')
        a.e('s_cselect_b32 s44, s45, s44')
        a.e(f's_movk_i32 s58, 1152')
        a.e('s_cselect_b32 s58, 36, s58')
        a.e('v_add_u32 v20, s44, v20')
        a.e('s_lshl_b32 s44, s58, 5')
        a.e('s_sub_u32 s44, s44, 1024')
        a.e('v_add_u32 v244, s44, v20')
        a.e('s_mul_i32 s42, s58, 576')
        a.e('s_lshl_b32 s58, s58, 6')
        a.e('s_mul_i32 s59, s58, s39')
        a.e('s_lshr_b32 s44, 0x2c, s22')
        a.e('s_and_b32 s44, s44, 1')
        a.e('s_waitcnt lgkmcnt(0)')
        a.e('s_cmp_eq_u32 s44, 1')
        a.e('s_cselect_b32 s40, s70, s68')
        a.e('s_cselect_b32 s41, s71, s69')
        a.e('s_cmp_eq_u32 s20, 3')
        a.e('s_cselect_b32 s40, s40, s6')
        a.e('s_cselect_b32 s41, s41, s7')
        a.e('s_mov_b32 s43, 0x00020000')
        srd(a, 4, 2359296)
        srd(a, 8, 576 * 9216)
        a.e('s_mov_b32 s12, s18')
        a.e('s_mov_b32 s13, s19')
        srd(a, 12, WS_SIZE)
        a.e('s_mov_b32 s56, s54')
        a.e('s_mov_b32 s57, s55')
        srd(a, 52, 2048 * 4096)

    def setup2(self):
        a = self.a
        a.e('v_lshlrev_b32 v27, 12, v24')
        a.e('v_add_u32 v12, v27, v25')
        a.e('v_add_u32 v13, v27, v26')
        a.e(f'v_add_u32 v13, {16 * 4096 - 1024}, v13')
        a.e(f'v_add_u32 v14, {4 * 4096 - 2048}, v12')
        a.e(f'v_add_u32 v15, {4 * 4096 - 2048}, v13')
        a.e('s_xor_b32 s37, s21, s35')
        a.e('s_lshl_b32 s45, s22, 13')
        a.e('s_add_u32 s45, s45, s26')
        a.e('v_lshlrev_b32 v19, 4, v1')
        a.e('v_add_u32 v9, s45, v19')
        a.e('s_lshl_b32 s45, s22, 10')
        a.e('s_mul_i32 s46, s20, 147456')
        a.e('s_add_u32 s45, s45, s46')
        a.e(f's_add_u32 s45, s45, {128 * 1024}')
        a.e('v_add_u32 v10, s45, v19')
        a.e('v_lshrrev_b32 v27, 4, v1')
        a.e('v_and_b32 v29, 3, v1')
        a.e('v_lshlrev_b32 v28, 3, v29')
        a.e('v_bfe_u32 v29, v1, 2, 3')
        a.e('v_lshl_add_u32 v18, v29, 5, v28')
        a.e('v_lshrrev_b32 v29, 5, v1')
        a.e('v_lshl_add_u32 v18, v29, 9, v18')
        a.e('v_lshl_add_u32 v28, v27, 11, v28')
        a.e('v_bfe_u32 v29, v1, 2, 2')
        a.e('v_lshl_add_u32 v28, v29, 6, v28')
        a.e('v_and_b32 v29, 1, v27')
        a.e('v_lshl_add_u32 v16, v29, 5, v28')
        a.e('v_xor_b32 v17, 32, v16')
        a.e('v_and_b32 v28, 15, v1')
        a.e('v_lshlrev_b32 v245, 4, v28')
        a.e('v_lshl_add_u32 v245, v29, 9, v245')
        a.e('v_lshrrev_b32 v29, 5, v1')
        a.e('v_lshl_add_u32 v245, v29, 11, v245')
        a.e('v_bfe_u32 v29, v1, 2, 2')
        a.e('v_lshl_add_u32 v29, v27, 3, v29')
        a.e('v_lshlrev_b32 v246, 5, v29')
        a.e('v_and_b32 v29, 1, v1')
        a.e('v_lshlrev_b32 v23, 4, v29')
        a.e('v_add_u32 v23, 4096, v23')
        a.e('v_lshlrev_b32 v29, 3, v29')
        a.e('v_add_u32 v29, 6144, v29')
        a.e('v_and_b32 v24, 2, v1')
        a.e('v_cmp_eq_u32 vcc, 0, v24')
        a.e('v_cndmask_b32 v29, v29, v23, vcc')
        a.e('v_add_u32 v246, v246, v29')
        a.e('v_bfe_u32 v29, v1, 1, 3')
        a.e('v_xor_b32 v29, v29, v27')
        a.e('v_lshlrev_b32 v28, 7, v28')
        a.e('v_lshl_add_u32 v28, v29, 4, v28')
        a.e('v_add_u32 v21, s27, v28')
        a.e('v_xor_b32 v28, 64, v28')
        a.e('v_add_u32 v22, s27, v28')
        self.gelu_consts()

    def grp(self, g, d):
        a = self.a
        if g == 0 or 'noperm' in ABL:
            a.e(f's_xor_b32 s{d}, s21, {g}')
        elif g < 8:
            a.e(f's_add_u32 s{d}, s35, {g}')
            a.e(f's_cmp_ge_u32 s{d}, 8')
            a.e(f's_cselect_b32 s29, 7, 0')
            a.e(f's_sub_u32 s{d}, s{d}, s29')
            a.e(f's_xor_b32 s{d}, s{d}, s21')
        else:
            a.e(f's_xor_b32 s{d}, s37, {g}')

    def issueA(self):
        a = self.a
        u = self.nextA
        if u >= self.limitA:
            return []
        self.nextA += 1
        seg, i, _, _, si = self.units[u]
        slot = (u % self.R) * self.SLOT
        tag = ('A', u)
        if seg == 'E':
            def e0():
                a.e(f's_add_u32 m0, s26, {slot}')
                a.vm('buffer_load_dwordx4 v20, s[40:43], s59 offen lds', tag)

            def e1():
                a.vm('buffer_load_dwordx4 v244, s[40:43], s59 offen offset:1024 lds', tag)
                a.e('s_add_u32 s59, s59, s58')
                a.e('s_cmp_eq_u32 s59, s42')
                a.e('s_cselect_b32 s59, 0, s59')
            return [e0, e1]
        sgl = ((si // 4) % 2) * 4096
        if seg == 'sp':
            def f0():
                if i % 4 == 0:
                    self.grp(i // 4, 24)
                    a.e('s_mul_i32 s24, s24, 589824')
                    a.e(f's_add_u32 s24, s24, {Z2_OFF}')
                a.e(f's_add_u32 m0, s26, {slot}')
                a.vm(f'buffer_load_dwordx4 v9, s[12:15], s24 offen {SCL} lds', tag)

            def f1():
                a.vm(f'buffer_load_dwordx4 v9, s[12:15], s24 offen offset:1024 {SCL} lds', tag)
                if i % 4 in (1, 2):
                    a.e('s_add_u32 s24, s24, 147456')

            def f2():
                a.e(f's_add_u32 m0, s30, {sgl}')
                a.vm(f'buffer_load_dwordx4 v10, s[12:15], s24 offen {SCL} lds', tag)
                a.e('s_add_u32 s24, s24, 147456')
        else:
            def f0():
                if seg == 'z1' and i == 0:
                    a.e('s_sub_u32 s24, s24, 4608')
                a.e(f's_add_u32 m0, s26, {slot}')
                a.vm('buffer_load_dwordx4 v2, s[8:11], s24 offen lds', tag)

            def f1():
                a.vm('buffer_load_dwordx4 v3, s[8:11], s24 offen offset:1024 lds', tag)
                a.e(f's_add_u32 s24, s24, {32 * 9216}')
                if i % 2 == 1:
                    a.e(f's_cmp_ge_u32 s24, {576 * 9216}')
                    a.e(f's_cselect_b32 s29, {576 * 9216}, 0')
                    a.e('s_sub_u32 s24, s24, s29')

            def f2():
                a.e(f's_mul_i32 s29, s28, {32 * 9216}')
                if si < 16:
                    a.e('s_add_u32 s29, s29, 4608')
                elif si == 16:
                    a.e('s_cmp_lt_u32 s20, 2')
                    a.e('s_cselect_b32 s44, 4608, 0')
                    a.e('s_add_u32 s29, s29, s44')
                a.e(f's_add_u32 m0, s30, {sgl}')
                a.e('s_add_u32 s28, s28, 4')
                a.vm('buffer_load_dwordx4 v4, s[8:11], s29 offen lds', tag)
                a.e('s_cmp_ge_u32 s28, 18')
                a.e('s_cselect_b32 s29, 18, 0')
                a.e('s_sub_u32 s28, s28, s29')
        return [f0, f1, f2] if si % 4 == 0 else [f0, f1]

    def issueB(self):
        a = self.a
        s = self.nextB
        if s >= len(self.stages):
            return []
        self.nextB += 1
        seg, i = self.stages[s]
        tag = ('B', s)
        sp = seg == 'sp'
        vb = 12 if sp else 5
        sr = 's[52:55]' if sp else 's[4:7]'

        def mk(j):
            def f():
                if j == 0 and sp:
                    if i % 2 == 0:
                        self.grp(i // 2, 25)
                        a.e('s_lshl_b32 s25, s25, 8')
                    else:
                        a.e('s_add_u32 s25, s25, 128')
                a.e(f's_add_u32 m0, s27, {(s % 2) * 16384}')
                a.vm(f'buffer_load_dwordx4 v{vb + j}, {sr}, s25 offen offset:{1024 * j} lds', tag)
                if j == 3 and not sp:
                    a.e('s_add_u32 s25, s25, 128')
                    a.e('s_cmp_eq_u32 s25, 1152')
                    a.e('s_cselect_b32 s25, 0, s25')
            return f
        return [mk(j) for j in range(4)]

    def nfr(self, u):
        return 6 if self.units[u][0] == 'E' else 9

    def readA(self, u, F, part):
        a = self.a
        seg, i, _, _, si = self.units[u]
        if F >= self.nfr(u):
            return
        slot = (u % self.R) * self.SLOT
        tag = ('AR', u, F)
        j = part
        d2 = vr(self.AF + 4 * F + 2 * j, 2)
        if seg == 'E':
            kk, t = F // 3, F % 3
            if t < 2:
                a.lg(f'ds_read_b64_tr_b16 {d2}, v245 offset:{slot + kk * 1024 + j * 256 + t * 8}', tag)
            else:
                a.lg(f'ds_read_b64_tr_b16 {d2}, v246 offset:{slot + kk * 1024 + j * 128}', tag)
            return
        sgl = self.SGL + ((si // 4) % 2) * 4096 + (si % 4) * 1024
        if seg == 'sp':
            if part == 0:
                a.lg(f'ds_read_b128 {vr(self.AF + 4 * F, 4)}, v19 offset:{slot + F * 1024 if F < 8 else sgl}', tag)
        elif F < 8:
            a.lg(f'ds_read_b64_tr_b16 {d2}, v{16 + F % 2} offset:{slot + j * 1024 + (F // 2) * 256}', tag)
        else:
            a.lg(f'ds_read_b64_tr_b16 {d2}, v18 offset:{sgl + j * 256}', tag)

    def readB(self, s, jj):
        a = self.a
        if jj == 0:
            a.wait_vm(('B', s))
        for e in range(2):
            a.lg(f'ds_read_b128 {vr(self.BF + 16 * (s % 2) + 8 * jj + 4 * e, 4)}, v{21 + jj} offset:{(s % 2) * 16384 + e * 2048}', ('BR', s))

    def prologue_issue(self):
        for f in self.issueB() + self.issueA() + self.issueA() + self.issueA() + self.issueB() + self.issueA():
            f()

    def run_segment(self, u0, n, own=False):
        a = self.a
        a.e(f's_setprio {opt("pg", PG)[0]}')
        s0 = self.units[u0][2]
        self.readB(s0, 0)
        self.readB(s0, 1)
        a.wait_vm(('A', u0))
        a.wait_lg('own')
        a.e('s_barrier')
        for F in range(9):
            self.readA(u0, F, 0)
            self.readA(u0, F, 1)
        for u in range(u0, u0 + n):
            last = u == u0 + n - 1
            seg, kk, s, jj, _ = self.units[u]
            sfirst = u == u0 or self.units[u - 1][2] != s
            slast = last or self.units[u + 1][2] != s
            nf = self.nfr(u)
            will_issue = self.nextA <= u + self.R - 1 and self.nextA < self.limitA
            if not last:
                a.wait_vm(('A', u + 1))
            if will_issue or (not last and not own):
                a.e('s_barrier')
            if u in self.hooks:
                self.hooks[u]()
            fill = list(self.issueA()) if self.nextA <= u + self.R - 1 else []
            if sfirst and self.nextB <= s + 2:
                fb = self.issueB()
                if fb:
                    f0 = fb[0]

                    def g0(f0=f0, s=s):
                        a.wait_lg(('BR', s))
                        f0()
                    self.pendB = [g0] + fb[1:]
            nb_now = len(self.pendB) if slast else 2
            fill += self.pendB[:nb_now]
            self.pendB = self.pendB[nb_now:]
            if nf == 9:
                slots = {1: [4], 2: [2, 6], 3: [1, 4, 7], 4: [1, 3, 5, 7], 5: [0, 2, 4, 6, 8], 6: [0, 2, 3, 5, 6, 8], 7: [0, 1, 2, 4, 5, 7, 8]}.get(len(fill), [])
            else:
                slots = {1: [3], 2: [1, 4], 3: [1, 3, 5]}.get(len(fill), [0, 1, 2, 3, 4, 5])
            for F in range(nf):
                a.wait_lg(('AR', u, F))
                if F == 0 and sfirst:
                    a.wait_lg(('BR', s))
                for e in range(2):
                    af = vr(self.AF + 4 * F, 4)
                    if seg == 'E':
                        d = vr(self.ACC1 + 8 * (F % 3) + 4 * e, 4)
                        c = '0' if (kk == 0 and F < 3) else d
                        bf = vr(self.BF + 16 * (s % 2) + 8 * (F // 3) + 4 * e, 4)
                    else:
                        d = vr((self.ACC1 if seg == 'z1' else self.ACC0) + 8 * F + 4 * e, 4)
                        c = '0' if kk == 0 else d
                        bf = vr(self.BF + 16 * (s % 2) + 8 * jj + 4 * e, 4)
                    if seg == 'z2':
                        a.e(f'v_mfma_f32_16x16x32_bf16 {d}, {bf}, {af}, {c}')
                    else:
                        a.e(f'v_mfma_f32_16x16x32_bf16 {d}, {af}, {bf}, {c}')
                    if e == 0:
                        if not last and F > 0:
                            self.readA(u + 1, F - 1, 1)
                        if fill and F in slots:
                            fill.pop(0)()
                    elif not last:
                        self.readA(u + 1, F, 0)
                        if F == nf - 1:
                            self.readA(u + 1, F, 1)
                        if nf == 6:
                            self.readA(u + 1, 6 + F // 2, F % 2)
                if not last and slast and F in ((4, 6) if nf == 9 else (1, 3)):
                    self.readB(s + 1, 0 if F in (4, 1) else 1)
            for f in fill:
                f()
        a.e(f's_setprio {opt("pg", PG)[1]}')

    def proj_store(self):
        a = self.a
        E = self.ACC1
        P = self.AF
        a.e(f's_mov_b32 s44, {hx(QSCALE)}')
        a.e(f's_mov_b32 s45, {hx(QSCALE)}')
        a.e('v_mov_b32 v24, s44')
        a.e('v_cmp_gt_u32 vcc, 32, v1')
        a.e('v_cndmask_b32 v24, 1.0, v24, vcc')
        a.e('s_lshl_b32 s46, s23, 5')
        a.e('s_add_u32 s46, s46, s22')
        a.e('s_mul_i32 s46, s46, 1152')
        a.e(f's_add_u32 s46, s46, {QF_OFF}')
        a.e(f's_add_u32 s47, s46, {16 * 1152}')
        a.e('v_lshlrev_b32 v25, 2, v1')
        for e in range(2):
            for t in range(2):
                for h in range(2):
                    r = E + 8 * t + 4 * e + 2 * h
                    a.e(f'v_pk_mul_f32 {vr(r, 2)}, {vr(r, 2)}, s[44:45]')
            r = E + 16 + 4 * e
            a.e(f'v_pk_mul_f32 {vr(r, 2)}, {vr(r, 2)}, v[24:25] op_sel_hi:[1,0]')
            for t in range(3):
                for h in range(2):
                    r = E + 8 * t + 4 * e + 2 * h
                    a.e(f'v_cvt_pk_bf16_f32 v{P + 8 * e + 2 * t + h}, v{r}, v{r + 1}')
            a.vm(f'buffer_store_dwordx4 {vr(P + 8 * e, 4)}, v19, s[12:15], s{46 + e} offen {SC}', 'pst')
        a.e('s_mov_b32 exec_hi, 0')
        for e in range(2):
            a.vm(f'buffer_store_dword v{P + 8 * e + 4}, v25, s[12:15], s{46 + e} offen offset:1024 {SC}', 'pst')
        a.e('s_mov_b64 exec, -1')
        le = a.newlabel('PJ_E')
        lv = a.newlabel('PJ_V')
        lt = a.newlabel('PJ_T')
        ls = a.newlabel('PJ_S')
        a.e('s_cmp_ge_u32 s22, 6')
        a.e(f's_cbranch_scc1 {le}')
        a.e(f's_mul_i32 s44, s23, {KV_TILE}')
        a.e(f's_add_u32 s44, s44, {KV_OFF}')
        a.e('v_and_b32 v24, 15, v1')
        a.e('v_bfe_u32 v25, v1, 4, 1')
        a.e('v_lshrrev_b32 v26, 2, v24')
        a.e('v_mul_u32_u24 v26, 168, v26')
        a.e('v_add_u32 v26, 1152, v26')
        a.e('v_and_b32 v27, 3, v1')
        a.e('s_mov_b32 exec_lo, 0')
        a.e('s_cmp_ge_u32 s22, 4')
        a.e(f's_cbranch_scc1 {lt}')
        a.e('s_cmp_ge_u32 s22, 2')
        a.e(f's_cbranch_scc1 {lv}')
        a.e('v_lshlrev_b32 v28, 4, v24')
        a.e('v_lshl_add_u32 v28, v25, 3, v28')
        a.e('s_lshl_b32 s45, s22, 9')
        a.e('s_add_u32 s44, s44, s45')
        a.e('s_add_u32 s45, s44, 256')
        a.e(f's_branch {ls}')
        a.label(lv)
        a.e('v_lshl_add_u32 v28, v27, 5, v26')
        a.e('v_lshl_add_u32 v28, v25, 3, v28')
        a.e('s_and_b32 s45, s22, 1')
        a.e('s_lshl_b32 s45, s45, 4')
        a.e('s_add_u32 s44, s44, s45')
        a.e(f's_add_u32 s45, s44, {4 * 168}')
        a.e(f's_branch {ls}')
        a.label(lt)
        lvt = a.newlabel('PJ_VT')
        a.e('s_cmp_eq_u32 s22, 5')
        a.e(f's_cbranch_scc1 {lvt}')
        a.e('v_lshlrev_b32 v28, 2, v24')
        a.e('s_mov_b32 exec_hi, 0xffff')
        for e in range(2):
            a.e(f'buffer_store_dword v{P + 8 * e + 4}, v28, s[12:15], s44 offen offset:{1024 + 64 * e} {SC}')
        a.e(f's_branch {le}')
        a.label(lvt)
        a.e('v_lshl_add_u32 v28, v27, 3, v26')
        a.e('v_add_u32 v28, 128, v28')
        a.e('v_add_u32 v29, 160, v26')
        a.e('v_cmp_eq_u32 vcc, 0, v25')
        a.e('v_cndmask_b32 v28, v29, v28, vcc')
        a.e('v_mov_b32 v29, 0x3f80')
        for e in range(2):
            a.e(f'v_cndmask_b32 v{P + 8 * e + 4}, 0, v{P + 8 * e + 4}, vcc')
            a.e(f'v_cndmask_b32 v{P + 8 * e + 5}, 0, v29, vcc')
        a.e(f's_add_u32 s45, s44, {4 * 168}')
        a.label(ls)
        for e in range(2):
            a.e(f'buffer_store_dwordx2 {vr(P + 8 * e + 4, 2)}, v28, s[12:15], s{44 + e} offen {SC}')
        a.label(le)
        a.e('s_mov_b64 exec, -1')

    def proj_signal(self):
        a = self.a
        a.wait_vm('pst')
        a.e('s_bfe_u32 s44, s22, 0x20001')
        a.e('s_lshl_b32 s44, s44, 3')
        a.e('s_bfe_u32 s45, s23, 0x30001')
        a.e('s_add_u32 s44, s44, s45')
        a.e('s_lshl_b32 s44, s44, 3')
        a.e('s_and_b32 s45, s2, 7')
        a.e('s_add_u32 s44, s44, s45')
        a.e('s_lshl_b32 s44, s44, 5')
        a.e('s_and_b32 s45, s23, 1')
        a.e('s_lshl_b32 s45, s45, 1')
        a.e('s_add_u32 s44, s44, s45')
        a.e('s_and_b32 s45, s22, 1')
        a.e('s_add_u32 s44, s44, s45')
        a.e('s_lshl_b32 s44, s44, 2')
        a.e(f's_add_u32 s44, s44, {GO_OFF}')
        set_flag(a, 44, 27)
        a.e('s_barrier')
        l = a.newlabel('PS')
        a.e('s_cmp_ge_u32 s22, 6')
        a.e(f's_cbranch_scc1 {l}')
        a.e('s_cmp_lg_u32 s20, 0')
        a.e(f's_cbranch_scc1 {l}')
        a.e('s_mul_i32 s44, s21, 6')
        a.e('s_add_u32 s44, s44, s22')
        a.e('s_lshl_b32 s44, s44, 2')
        a.e(f's_add_u32 s44, s44, {KVF_OFF}')
        a.e('v_lshlrev_b32 v27, 9, v1')
        a.e('s_mov_b64 exec, 0xff')
        a.e(f'buffer_store_dword v28, v27, s[12:15], s44 offen {SC}')
        a.e('s_mov_b64 exec, -1')
        a.label(l)

    def gelu_consts(self):
        a = self.a
        a.e(f's_mov_b32 s60, {hx(GELU_C1)}')
        a.e(f's_mov_b32 s61, {hx(GELU_C1)}')
        a.e(f'v_mov_b32 v30, {hx(GELU_C0)}')
        a.e(f'v_mov_b32 v31, {hx(GELU_C0)}')

    def z1_gelu(self, Fs=range(9)):
        a = self.a
        T = self.BF + 16
        for F in Fs:
            base = self.ACC1 + 8 * F
            gelu_group(a, [base + 2 * i for i in range(4)], T + 8 * (F % 2), 60, 30)

    def z2_gelu_publish(self):
        a = self.a
        T = self.AF + 16
        S = self.BF
        for F in range(9):
            if F == opt('psig', [5])[0]:
                self.proj_signal()
            base = self.ACC0 + 8 * F
            gelu_group(a, [base + 2 * i for i in range(4)], T + 8 * (F % 2), 60, 30)
            for i in range(4):
                y = vr(base + 2 * i, 2)
                if F == 0:
                    a.e(f'v_pk_add_f32 {vr(S + 2 * i, 2)}, {y}, 0 op_sel_hi:[1,0]')
                    a.e(f'v_pk_mul_f32 {vr(S + 8 + 2 * i, 2)}, {y}, {y}')
                else:
                    a.e(f'v_pk_add_f32 {vr(S + 2 * i, 2)}, {vr(S + 2 * i, 2)}, {y}')
                    a.e(f'v_pk_fma_f32 {vr(S + 8 + 2 * i, 2)}, {y}, {y}, {vr(S + 8 + 2 * i, 2)}')
        for b in (S, S + 8):
            for r in range(4):
                a.e(f'v_add_f32_dpp v{b + r}, v{b + r}, v{b + r} row_ror:8 row_mask:0xf bank_mask:0x3')
            for r in range(4):
                a.e(f'v_add_f32_dpp v{b + r}, v{b + r + 4}, v{b + r + 4} row_ror:8 row_mask:0xf bank_mask:0xc')
        for b in (S, S + 8):
            for r in range(2):
                a.e(f'v_add_f32_dpp v{b + r}, v{b + r}, v{b + r} row_shl:4 row_mask:0xf bank_mask:0x5')
            for r in range(2):
                a.e(f'v_add_f32_dpp v{b + r}, v{b + r + 2}, v{b + r + 2} row_shr:4 row_mask:0xf bank_mask:0xa')
        for qp in ('[1,0,3,2]', '[2,3,0,1]'):
            for r in (S, S + 1, S + 8, S + 9):
                a.e(f'v_add_f32_dpp v{r}, v{r}, v{r} quad_perm:{qp} row_mask:0xf bank_mask:0xf')
        a.e('v_and_b32 v25, 1, v1')
        a.e('v_cmp_eq_u32 vcc, 1, v25')
        G0 = S + 12
        a.e(f'v_cndmask_b32 v{G0}, v{S}, v{S + 1}, vcc')
        a.e(f'v_cndmask_b32 v{G0 + 1}, v{S + 8}, v{S + 9}, vcc')
        a.e('v_lshrrev_b32 v27, 2, v1')
        a.e('v_lshl_add_u32 v27, v27, 1, v25')
        a.e('v_lshlrev_b32 v27, 4, v27')
        a.e('s_lshl_b32 s48, s23, 13')
        a.e(f's_add_u32 s48, s48, {STATS_OFF}')
        a.e('s_lshl_b32 s49, s22, 9')
        a.e('s_add_u32 s49, s49, s48')
        a.e(f'v_mov_b32 v{G0 + 2}, s62')
        a.e(f'v_mov_b32 v{G0 + 3}, s62')
        a.e('s_mov_b32 exec_lo, 0x33333333')
        a.e('s_mov_b32 exec_hi, 0x33333333')
        a.vm(f'buffer_store_dwordx4 {vr(G0, 4)}, v27, s[12:15], s49 offen {SC}', 'st')
        a.e('s_mov_b64 exec, -1')

    def z2_gather_norm_store(self):
        a = self.a
        G = self.AF
        a.e('s_add_u32 s49, s48, 4096')

        def ld():
            for i in range(8):
                a.e(f'buffer_load_dwordx4 {vr(G + 4 * i, 4)}, v19, s[12:15], {"s48" if i < 4 else "s49"} offen offset:{1024 * (i % 4)} {SC}')
        poll(a, ld, [G + 4 * i + 2 for i in range(8)], 27)
        for i in (0, 2, 4, 6):
            a.e(f'v_pk_add_f32 {vr(G + 4 * i, 2)}, {vr(G + 4 * i, 2)}, {vr(G + 4 * i + 4, 2)}')
        a.e(f'v_pk_add_f32 {vr(G, 2)}, {vr(G, 2)}, {vr(G + 8, 2)}')
        a.e(f'v_pk_add_f32 {vr(G + 16, 2)}, {vr(G + 16, 2)}, {vr(G + 24, 2)}')
        a.e(f'v_pk_add_f32 {vr(G, 2)}, {vr(G, 2)}, {vr(G + 16, 2)}')
        a.e(f'v_mov_b32 v{G + 2}, v{G}')
        a.e(f'v_mov_b32 v{G + 3}, v{G + 1}')
        a.e(f'v_permlane32_swap_b32 v{G}, v{G + 2}')
        a.e(f'v_permlane32_swap_b32 v{G + 1}, v{G + 3}')
        a.e(f'v_pk_add_f32 {vr(G, 2)}, {vr(G, 2)}, {vr(G + 2, 2)}')
        a.e(f'v_mul_f32 v{G}, {hx(1.0 / 2304)}, v{G}')
        a.e(f'v_mul_f32 v{G + 1}, {hx(1.0 / 2304)}, v{G + 1}')
        a.e(f'v_fma_f32 v{G + 1}, -v{G}, v{G}, v{G + 1}')
        a.e(f'v_max_f32 v{G + 1}, 0, v{G + 1}')
        a.e(f'v_add_f32 v{G + 1}, {hx(1e-5)}, v{G + 1}')
        a.e(f'v_rsq_f32 v{G + 1}, v{G + 1}')
        a.e(f'v_mul_f32 v{G}, v{G}, v{G + 1}')
        a.e(f'v_sub_f32 v{G}, 0, v{G}')
        a.e('v_lshrrev_b32 v28, 4, v1')
        a.e('v_lshlrev_b32 v28, 5, v28')
        RS = self.BF
        for i in range(8):
            a.lg(f'ds_bpermute_b32 v{RS + i}, v28, v{G + 1} offset:{4 * i}', 'r')
            a.lg(f'ds_bpermute_b32 v{RS + 8 + i}, v28, v{G} offset:{4 * i}', 'r')
        a.e('s_mul_i32 s44, s23, 147456')
        a.e(f's_add_u32 s44, s44, {Z2_OFF}')
        a.e('s_lshl_b32 s45, s22, 13')
        a.e('s_add_u32 s45, s45, s44')
        a.e('s_add_u32 s47, s45, 4096')
        a.e('s_lshl_b32 s46, s22, 10')
        a.e('s_add_u32 s46, s46, s44')
        a.e(f's_add_u32 s46, s46, {128 * 1024}')
        a.wait_lg0()
        for F in range(9):
            base = self.ACC0 + 8 * F
            pk = self.ACC0 + 4 * F
            for i in range(4):
                a.e(f'v_pk_fma_f32 {vr(base + 2 * i, 2)}, {vr(base + 2 * i, 2)}, {vr(RS + 2 * i, 2)}, {vr(RS + 8 + 2 * i, 2)}')
            for i in range(4):
                a.e(f'v_cvt_pk_bf16_f32 v{pk + i}, v{base + 2 * i}, v{base + 2 * i + 1}')
            so = 's46' if F == 8 else ('s45' if F < 4 else 's47')
            a.vm(f'buffer_store_dwordx4 {vr(pk, 4)}, v19, s[12:15], {so} offen offset:{1024 * (F % 4)} {SC}', 'st')

    def own_write(self):
        a = self.a
        a.e('s_lshl_b32 s44, s20, 13')
        a.e('v_add_u32 v27, s44, v19')
        a.e('v_add_u32 v28, s30, v19')
        a.e('s_barrier')
        for F in range(9):
            pk = self.ACC0 + 4 * F
            if F < 8:
                a.lg(f'ds_write_b128 v27, {vr(pk, 4)} offset:{1024 * F}', 'own')
            else:
                a.lg(f'ds_write_b128 v28, {vr(pk, 4)} offset:4096', 'own')

    def sp_pre(self):
        a = self.a
        a.e('v_bfe_u32 v27, v1, 2, 2')
        a.e('v_lshlrev_b32 v27, 3, v27')
        a.e('v_and_b32 v28, 3, v1')
        a.e('s_lshl_b32 s44, s23, 5')
        a.e('v_add3_u32 v27, v27, v28, s44')
        a.e('v_lshlrev_b32 v28, 1, v27')
        a.e('v_lshlrev_b32 v11, 3, v27')
        a.vm('global_load_ushort v244, v28, s[56:57]', 'pre')
        a.vm('global_load_ushort v245, v28, s[56:57] offset:8', 'pre')
        self.gate_loads(True)

    def gate_loads(self, track=False):
        a = self.a
        a.e(f's_mov_b32 s44, {GATE_OFF}')
        for e in range(2):
            t = f'buffer_load_dwordx2 {vr(246 + 2 * e, 2)}, v11, s[12:15], s44 offen offset:{32 * e} {SC}'
            a.vm(t, 'pre') if track else a.e(t)

    def sp_epilogue(self):
        a = self.a
        a.wait_vm('pre')
        poll(a, self.gate_loads, [247, 249], 27, first_done=True)
        for e in range(2):
            a.e(f'v_sub_f32 v{246 + 2 * e}, 1.0, v{246 + 2 * e}')
            a.e(f'v_lshlrev_b32 v{244 + e}, 16, v{244 + e}')
            a.e(f'v_mul_f32 v{250 + 2 * e}, v{244 + e}, v{246 + 2 * e}')
        a.e('s_mul_i32 s44, s23, 180')
        a.e('s_lshr_b32 s45, s22, 2')
        a.e('s_mul_i32 s45, s45, 18')
        a.e('s_add_u32 s44, s44, s45')
        a.e('s_lshl_b32 s44, s44, 10')
        a.e(f's_add_u32 s44, s44, {UF_OFF + 18 * 1024}')
        a.e('s_and_b32 s45, s22, 3')
        a.e('s_lshl_b32 s46, s45, 12')
        a.e('s_add_u32 s46, s46, s44')
        a.e(f's_add_u32 s47, s46, {90 * 1024}')
        a.e('s_lshr_b32 s48, s45, 1')
        a.e('s_lshl_b32 s48, s48, 10')
        a.e('s_add_u32 s48, s48, s44')
        a.e('s_and_b32 s49, s45, 1')
        a.e('s_lshl_b32 s49, s49, 3')
        a.e('s_add_u32 s48, s48, s49')
        a.e(f's_add_u32 s48, s48, {16 * 1024}')
        a.e(f's_add_u32 s49, s48, {90 * 1024}')
        idx = 0
        for m in range(5):
            for e in range(2):
                pk = self.AF + 4 * idx
                idx += 1
                Fs = (2 * m, 2 * m + 1) if m < 4 else (8,)
                prs = [(self.ACC0 + 8 * F + 4 * e + 2 * i, self.ACC1 + 8 * F + 4 * e + 2 * i) for F in Fs for i in range(2)]
                for g, z in prs:
                    a.e(f'v_pk_fma_f32 {vr(g, 2)}, {vr(g, 2)}, {vr(246 + 2 * e, 2)}, {vr(250 + 2 * e, 2)} op_sel_hi:[1,0,0]')
                for g, z in prs:
                    a.e(f'v_pk_mul_f32 {vr(g, 2)}, {vr(g, 2)}, {vr(z, 2)}')
                for i, (g, z) in enumerate(prs):
                    a.e(f'v_cvt_pk_bf16_f32 v{pk + i}, v{g}, v{g + 1}')
                if m < 4:
                    a.vm(f'buffer_store_dwordx4 {vr(pk, 4)}, v19, s[12:15], s{46 + e} offen offset:{1024 * m} {SC}', 'st')
                else:
                    a.vm(f'buffer_store_dwordx2 {vr(pk, 2)}, v19, s[12:15], s{48 + e} offen {SC}', 'st')


def write_nonce(a):
    l = a.newlabel('NOW')
    a.e('s_or_b32 s44, s3, s20')
    a.e('s_cmp_lg_u32 s44, 0')
    a.e(f's_cbranch_scc1 {l}')
    a.e('s_memrealtime s[44:45]')
    a.e('v_mov_b32 v29, 0')
    a.e('s_waitcnt lgkmcnt(0)')
    a.e('s_or_b32 s44, s44, 1')
    a.e('v_mov_b32 v28, s44')
    a.e(f'global_store_dword v29, v28, s[16:17] {SC}')
    a.label(l)


KVBUF = 40960
M_OFFSET = 64.0


class ATT:
    SB = 16
    OB = 48
    QF = 80
    KF = 96
    VF = 112
    PF = 128
    XF = 136
    WF = 208
    WQS = 16

    def __init__(self, a):
        self.a = a

    def setup(self, sid):
        a = self.a
        a.e(f's_load_dwordx2 s[4:5], s[0:1], {A_X}')
        a.e(f's_load_dwordx4 s[16:19], s[0:1], {A_DBG}')
        a.e(f's_load_dwordx4 s[56:59], s[0:1], {A_WOUT}')
        a.e(f's_load_dwordx2 s[36:37], s[0:1], {A_WO}')
        a.e('v_lshrrev_b32 v1, 6, v0')
        a.e('v_readfirstlane_b32 s20, v1')
        a.e('v_and_b32 v1, 63, v0')
        a.e(f's_and_b32 s24, s{sid}, 3')
        a.e(f's_lshr_b32 s25, s{sid}, 3')
        a.e('s_lshl_b32 s21, s24, 3')
        a.e('s_and_b32 s23, s25, 7')
        a.e('s_add_u32 s21, s21, s23')
        a.e(f's_and_b32 s22, s{sid}, 4')
        a.e('s_lshr_b32 s23, s25, 3')
        a.e('s_add_u32 s22, s22, s23')
        a.e('s_lshl_b32 s23, s21, 2')
        a.e('s_add_u32 s23, s23, s20')
        a.e('s_lshr_b32 s44, s23, 1')
        a.e('s_lshl_b32 s44, s44, 5')
        a.e('s_and_b32 s45, s23, 1')
        a.e('s_lshl_b32 s45, s45, 2')
        a.e('s_add_u32 s44, s44, s45')
        a.e('v_bfe_u32 v3, v1, 2, 2')
        a.e('v_lshlrev_b32 v3, 3, v3')
        a.e('v_and_b32 v10, 3, v1')
        a.e('v_add3_u32 v3, v3, v10, s44')
        a.e('v_lshlrev_b32 v3, 3, v3')
        a.e('s_mul_i32 s26, s20, 10240')
        a.e('s_lshl_b32 s27, s25, 2')
        a.e('s_add_u32 s27, s27, s20')
        if 'nocodepf' not in ABL:
            a.e('s_getpc_b64 s[46:47]')
            a.e('s_and_b32 s46, s46, 0xffffff00')
            a.e('s_mul_i32 s45, s27, 5')
            a.e('v_min_u32 v10, 4, v1')
            a.e('v_add_u32 v10, s45, v10')
            a.e('v_min_u32 v10, CODE_LINES, v10')
            a.e('v_lshlrev_b32 v10, 7, v10')
            a.e('global_load_dword v255, v10, s[46:47]')
        a.e('v_lshlrev_b32 v10, 4, v1')
        a.e('s_waitcnt lgkmcnt(0)')
        a.e('s_mov_b32 s12, s18')
        a.e('s_mov_b32 s13, s19')
        srd(a, 12, WS_SIZE)

    def nonce(self):
        a = self.a
        a.e('s_waitcnt vmcnt(0)')
        a.e('v_mov_b32 v2, 0')
        a.e(f'global_load_dword v4, v2, s[16:17] {SC}')
        a.e('s_waitcnt vmcnt(0)')
        get_nonce(a, 2, 4)

    SV = 140

    def side(self, part):
        a = self.a
        lg = a.newlabel('SJ_G')
        le = a.newlabel('SJ_E')
        a.e('s_cmp_eq_u32 s20, 3')
        a.e(f's_cbranch_scc1 {lg}')
        a.e('s_cmp_ge_u32 s63, 720')
        a.e(f's_cbranch_scc1 {le}')
        self.retile(part)
        a.e(f's_branch {le}')
        a.label(lg)
        self.gate(part)
        a.label(le)

    def gate(self, part):
        a = self.a
        V = self.SV
        X, W = V + 8, V + 44
        if part == 0:
            a.e(f'v_lshrrev_b32 v{V}, 3, v1')
            a.e('s_lshl_b32 s44, s3, 3')
            a.e(f'v_add_u32 v{V}, s44, v{V}')
            a.e(f'v_and_b32 v{V + 1}, 7, v1')
            a.e(f'v_lshlrev_b32 v{V + 1}, 4, v{V + 1}')
            a.e(f'v_mul_u32_u24 v{V + 2}, 1152, v{V}')
            a.e(f'v_add_u32 v{V + 2}, v{V + 2}, v{V + 1}')
            for i in range(9):
                a.e(f'global_load_dwordx4 {vr(X + 4 * i, 4)}, v{V + 2}, s[4:5] offset:{128 * i}')
                a.e(f'global_load_dwordx4 {vr(W + 4 * i, 4)}, v{V + 1}, s[58:59] offset:{128 * i}')
        elif part == 1:
            A0, A1, T0, T1 = V + 4, V + 5, V + 6, V + 7
            a.e(f'v_mov_b32 v{A0}, 0')
            a.e(f'v_mov_b32 v{A1}, 0')
            for i in range(36):
                a.e(f'v_lshlrev_b32 v{T0}, 16, v{X + i}')
                a.e(f'v_lshlrev_b32 v{T1}, 16, v{W + i}')
                a.e(f'v_and_b32 v{X + i}, 0xffff0000, v{X + i}')
                a.e(f'v_and_b32 v{W + i}, 0xffff0000, v{W + i}')
                a.e(f'v_fmac_f32 v{A0}, v{T0}, v{T1}')
                a.e(f'v_fmac_f32 v{A1}, v{X + i}, v{W + i}')
            a.e(f'v_add_f32 v{A0}, v{A0}, v{A1}')
            for m in ('quad_perm:[1,0,3,2]', 'quad_perm:[2,3,0,1]', 'row_half_mirror'):
                a.e(f'v_add_f32_dpp v{A0}, v{A0}, v{A0} {m} row_mask:0xf bank_mask:0xf')
            a.e(f'v_mul_f32 v{A0}, {hx(-1.4426950408889634)}, v{A0}')
            a.e(f'v_exp_f32 v{A0}, v{A0}')
            a.e(f'v_add_f32 v{A0}, 1.0, v{A0}')
            a.e(f'v_rcp_f32 v{A0}, v{A0}')
            a.e(f'v_mov_b32 v{A1}, s62')
            a.e(f'v_lshlrev_b32 v{V}, 3, v{V}')
            a.e(f's_mov_b32 s44, {GATE_OFF}')
            a.e('s_mov_b32 exec_lo, 0x01010101')
            a.e('s_mov_b32 exec_hi, 0x01010101')
            a.e(f'buffer_store_dwordx2 {vr(A0, 2)}, v{V}, s[12:15], s44 offen {SC}')
            a.e('s_mov_b64 exec, -1')

    def retile_setup(self):
        a = self.a
        V = self.SV
        a.e('s_mul_i32 s63, s3, 3')
        a.e('s_add_u32 s63, s63, s20')
        a.e('s_and_b32 s64, s63, 7')
        a.e('s_lshr_b32 s65, s63, 3')
        a.e('s_cmp_lt_u32 s65, 18')
        a.e('s_cselect_b32 s40, s36, s56')
        a.e('s_cselect_b32 s41, s37, s57')
        a.e(f's_mov_b32 s42, {2304 * 1152}')
        a.e(f's_cselect_b32 s42, {576 * 1152}, s42')
        a.e('s_mov_b32 s43, 0x00020000')
        a.e('s_sub_u32 s44, s65, 18')
        a.e('s_mul_i32 s45, s44, 57')
        a.e('s_lshr_b32 s45, s45, 10')
        a.e('s_mul_i32 s46, s45, 18')
        a.e('s_sub_u32 s44, s44, s46')
        a.e('s_lshl_b32 s46, s45, 9')
        a.e('s_lshl_b32 s47, s45, 6')
        a.e(f's_add_u32 s47, s47, {2048 - 512}')
        a.e('s_cmp_lt_u32 s44, 16')
        a.e('s_cselect_b32 s46, s46, s47')
        a.e('s_lshl_b32 s44, s44, 5')
        a.e('s_add_u32 s44, s44, s46')
        a.e('s_mov_b32 s45, 4')
        a.e('s_mov_b32 s46, 8')
        a.e('s_mov_b32 s47, 16')
        a.e('s_mov_b32 s48, 2')
        a.e('s_sub_u32 s49, s65, 16')
        a.e('s_mul_i32 s49, s49, 288')
        a.e('s_add_u32 s49, s49, 16')
        a.e('s_cmp_lt_u32 s65, 18')
        a.e('s_cselect_b32 s44, s49, s44')
        a.e('s_cselect_b32 s45, 72, s45')
        a.e('s_cselect_b32 s46, 144, s46')
        a.e('s_cselect_b32 s47, 36, s47')
        a.e('s_cselect_b32 s48, 18, s48')
        a.e('s_mul_i32 s49, s65, 36')
        a.e('s_cmp_lt_u32 s65, 16')
        a.e('s_cselect_b32 s44, s49, s44')
        a.e('s_cselect_b32 s45, 18, s45')
        a.e('s_cselect_b32 s46, 4, s46')
        a.e('s_cselect_b32 s47, 8, s47')
        a.e('s_cselect_b32 s48, 2, s48')
        for r in (44, 45, 46, 47):
            a.e(f's_mul_i32 s{r}, s{r}, 1152')
        a.e('s_mul_i32 s49, s64, 144')
        a.e('s_add_u32 s66, s44, s49')
        a.e('s_add_u32 s67, s66, s47')
        for i in range(2):
            a.e(f's_add_u32 s{68 + i}, s{66 + i}, s45')
        for i in range(4):
            a.e(f's_add_u32 s{70 + i}, s{66 + i}, s46')
        a.e(f'v_lshrrev_b32 v{V}, 5, v1')
        a.e(f'v_mul_lo_u32 v{V}, v{V}, s48')
        a.e('v_bfe_u32 v5, v1, 4, 1')
        a.e(f'v_add_u32 v{V}, v{V}, v5')
        a.e(f'v_mul_u32_u24 v{V}, 1152, v{V}')
        a.e('v_and_b32 v5, 15, v1')
        a.e('v_min_u32 v5, 8, v5')
        a.e(f'v_lshl_add_u32 v{V}, v5, 4, v{V}')
        a.e('v_lshrrev_b32 v5, 4, v1')
        a.e('v_bfe_u32 v6, v1, 2, 2')
        a.e('v_lshlrev_b32 v7, 11, v5')
        a.e('v_lshl_add_u32 v7, v6, 8, v7')
        a.e(f's_add_u32 s44, s26, {KVBUF}')
        a.e('v_add_u32 v7, s44, v7')
        a.e('v_and_b32 v6, 3, v1')
        a.e(f'v_lshl_add_u32 v{V + 2}, v6, 3, v7')
        a.e(f'v_lshl_add_u32 v{V + 1}, v6, 4, v7')
        a.e('v_and_b32 v6, 7, v1')
        a.e('v_lshl_add_u32 v5, v5, 3, v6')
        a.e('v_lshlrev_b32 v5, 4, v5')
        a.e(f'v_add_u32 v{V + 3}, 4096, v5')

    def retile(self, part):
        a = self.a
        V = self.SV
        F = V + 8
        if part == 0:
            for i in range(8):
                a.e(f's_add_u32 m0, s26, {KVBUF + 1024 * i}')
                a.e(f'buffer_load_dwordx4 v{V}, s[40:43], s{66 + i} offen lds')
        elif part == 1:
            for nt in range(5):
                for j in range(2):
                    if nt < 4:
                        a.e(f'ds_read_b64_tr_b16 {vr(F + 4 * nt + 2 * j, 2)}, v{V + 1} offset:{64 * (nt // 2) + 8 * (nt % 2) + 1024 * j}')
                    else:
                        a.e(f'ds_read_b64_tr_b16 {vr(F + 4 * nt + 2 * j, 2)}, v{V + 2} offset:{128 + 1024 * j}')
            a.e('s_mul_i32 s44, s64, 90')
            a.e('s_add_u32 s44, s44, s65')
            a.e('s_mul_i32 s44, s44, 4608')
            a.e(f's_add_u32 s44, s44, {W3_OFF}')
            a.e('s_waitcnt lgkmcnt(0)')
            for nt in range(4):
                a.e(f'buffer_store_dwordx4 {vr(F + 4 * nt, 4)}, v10, s[12:15], s44 offen offset:{1024 * nt} {SC}')
            a.e('s_mov_b32 exec_lo, 0x00ff00ff')
            a.e('s_mov_b32 exec_hi, 0x00ff00ff')
            a.e(f'buffer_store_dwordx4 {vr(F + 16, 4)}, v{V + 3}, s[12:15], s44 offen {SC}')
            a.e('s_mov_b64 exec, -1')
        else:
            a.e('s_lshl_b32 s44, s64, 7')
            a.e('s_add_u32 s44, s44, s65')
            a.e('s_lshl_b32 s44, s44, 2')
            a.e(f's_add_u32 s44, s44, {FW3_OFF}')
            set_flag(a, 44, V + 4)

    def issue_kv(self, buf_s=None, buf=None, flags=''):
        a = self.a
        for g in range(3):
            if buf_s is not None:
                a.e(f's_add_u32 m0, s{buf_s}, {4096 * g}')
            else:
                a.e(f's_add_u32 m0, s31, {buf * KVBUF + 4096 * g}')
            for i in range(4 if g < 2 else 2):
                a.vm(f'buffer_load_dwordx4 v15, s[12:15], s30 offen offset:{1024 * i} {flags} lds', 'kv')
            a.e('s_add_u32 s30, s30, 4096')
        a.e(f's_add_u32 s30, s30, {16 * KV_TILE - 3 * 4096}')

    def q_phase(self):
        a = self.a
        a.e('s_mov_b32 s31, s26')
        a.e('v_add_u32 v15, s31, v10')
        a.e(f's_mov_b32 s30, {KV_OFF}')
        l = a.newlabel('KVR')
        a.e('s_cmp_lg_u32 s20, 0')
        a.e(f's_cbranch_scc1 {l}')
        a.e('s_lshl_b32 s44, s3, 7')
        a.e(f's_add_u32 s44, s44, {GO_OFF}')
        a.e('v_and_b32 v2, 3, v1')
        a.e('v_lshlrev_b32 v2, 2, v2')
        poll(a, lambda: a.e(f'buffer_load_dword v40, v2, s[12:15], s44 offen {SC}'), [40], 42, sleep=8)
        a.e('s_and_b32 s44, s3, 7')
        a.e('s_lshl_b32 s44, s44, 9')
        a.e(f's_add_u32 s44, s44, {KVF_OFF}')
        a.e('v_min_u32 v2, 47, v1')
        a.e('v_lshlrev_b32 v2, 3, v2')
        poll(a, lambda: a.e(f'buffer_load_dwordx2 v[40:41], v2, s[12:15], s44 offen {SC}'), [40, 41], 42, sleep=opt('ksl', [6])[0])
        a.label(l)
        a.e('s_barrier')
        stamp(a, 6)
        a.vmq = []
        a.e('s_lshl_b32 s44, s23, 3')
        a.e('s_add_u32 s44, s44, s22')
        a.e('s_mul_i32 s44, s44, 2304')
        a.e(f's_add_u32 s44, s44, {QF_OFF}')
        a.e('v_and_b32 v11, 31, v1')
        a.e('v_lshlrev_b32 v11, 2, v11')
        a.e('v_add_u32 v11, 1024, v11')
        for p in range(2):
            a.vm(f'buffer_load_dwordx4 {vr(self.QF + 8 * p, 4)}, v10, s[12:15], s44 offen offset:{1152 * p} {SCL}', 'q')
            a.vm(f'buffer_load_dword v{self.PF + p}, v11, s[12:15], s44 offen offset:{1152 * p} {SCL}', 'q')
        self.issue_kv(buf=1, flags=SCL)
        self.issue_kv(buf=0, flags=SCL)
        for p in range(2):
            for i in (5, 6, 7):
                a.e(f'v_mov_b32 v{self.QF + 8 * p + i}, 0')
            a.e(f'v_mov_b32 v{self.KF + 8 * p + 5}, 0x3f803f80')
            a.e(f'v_mov_b32 v{self.KF + 8 * p + 6}, 0x3f80')
            a.e(f'v_mov_b32 v{self.KF + 8 * p + 7}, 0')
        a.e('v_bfe_u32 v2, v1, 2, 2')
        a.e('v_and_b32 v4, 3, v1')
        a.e('v_lshlrev_b32 v12, 5, v2')
        a.e('v_lshl_add_u32 v12, v4, 3, v12')
        a.e('v_lshlrev_b32 v2, 3, v2')
        a.e('v_add_u32 v2, 128, v2')
        a.e('v_mov_b32 v13, 160')
        a.e('v_cmp_eq_u32 vcc, 0, v4')
        a.e('v_cndmask_b32 v2, v13, v2, vcc')
        a.e('v_and_b32 v4, 16, v1')
        a.e('v_cmp_eq_u32 vcc, 0, v4')
        a.e('v_cndmask_b32 v12, v2, v12, vcc')
        a.e('v_lshrrev_b32 v2, 5, v1')
        a.e('v_mul_u32_u24 v2, 168, v2')
        a.e('v_add_u32 v12, v12, v2')
        a.e('v_add_u32 v12, 1152, v12')
        a.wait_vm('q')
        a.e('v_cmp_gt_u32 vcc, 32, v1')
        for p in range(2):
            a.e(f'v_cndmask_b32 v{self.QF + 8 * p + 4}, 0, v{self.PF + p}, vcc')

    def readK(self, j):
        a = self.a
        b = self.KF + 8 * (j % 2)
        off = (j % 16) * KV_TILE
        a.lg(f'ds_read_b128 {vr(b, 4)}, v5 offset:{off}', ('K', j))
        a.lg(f'ds_read_b32 v{b + 4}, v6 offset:{off}', ('K', j))

    def readV(self, j, m):
        a = self.a
        b = self.VF + 8 * (j % 2)
        off = (j % 16) * KV_TILE
        for jj in range(2):
            a.lg(f'ds_read_b64_tr_b16 {vr(b + 4 * m + 2 * jj, 2)}, v7 offset:{off + (4 * m + 2 * jj) * 168}', ('V', j))

    def S(self, n, part):
        j, qt = n // 2, n % 2
        d = vr(self.SB + 16 * (n % 2), 16)
        k = self.KF + 8 * (j % 2) + 4 * part
        q = self.QF + 8 * qt + 4 * part
        self.a.e(f'v_mfma_f32_32x32x16_bf16 {d}, {vr(k, 4)}, {vr(q, 4)}, {"0" if part == 0 else d}')

    def PV(self, n, m):
        j, qt = n // 2, n % 2
        d = vr(self.OB + 16 * qt, 16)
        self.a.e(f'v_mfma_f32_32x32x16_bf16 {d}, {vr(self.VF + 8 * (j % 2) + 4 * m, 4)}, {vr(self.PF + 4 * m, 4)}, {d}')

    def set_m(self, qt, vm, add):
        a = self.a
        q = self.QF + 8 * qt
        a.e(f'v_sub_f32 v2, {hx(-add)}, v{vm}')
        a.e('v_and_b32 v4, 0xffff0000, v2')
        a.e('v_sub_f32 v2, v2, v4')
        a.e('v_and_b32 v13, 0xffff0000, v2')
        a.e('v_sub_f32 v2, v2, v13')
        a.e('v_lshrrev_b32 v4, 16, v4')
        a.e('v_or_b32 v4, v4, v13')
        a.e('v_lshrrev_b32 v2, 16, v2')
        a.e('v_cmp_gt_u32 vcc, 32, v1')
        a.e(f'v_cndmask_b32 v{q + 5}, 0, v4, vcc')
        a.e(f'v_cndmask_b32 v{q + 6}, 0, v2, vcc')

    def max16(self, b, dst, first):
        a = self.a
        if first:
            a.e(f'v_max3_f32 v{dst}, v{b}, v{b + 1}, v{b + 2}')
            a.e(f'v_max_f32 v{dst}, v{dst}, v{b + 3}')
            r = range(4, 16, 2)
        else:
            r = range(0, 16, 2)
        for i in r:
            a.e(f'v_max3_f32 v{dst}, v{b + i}, v{b + i + 1}, v{dst}')

    def halves_max(self, r):
        a = self.a
        a.e(f'v_mov_b32 v2, v{r}')
        a.e(f'v_permlane32_swap_b32 v{r}, v2')
        a.e(f'v_max_f32 v{r}, v{r}, v2')

    def main(self, flags=''):
        a = self.a
        L_PASS = a.newlabel('ATT_PASS')
        L_LOOP = a.newlabel('ATT_LOOP')
        L_NOKV = a.newlabel('ATT_NOKV')
        L_FIN = a.newlabel('ATT_FIN')
        a.e('s_mov_b32 s33, 0')
        a.e('s_mov_b32 s39, 0')
        for i in range(3):
            a.e(f'v_add_u32 v{5 + i}, {KVBUF}, v{10 + i}')
        a.e('s_waitcnt vmcnt(10)')
        a.vmq = a.vmq[-10:]
        a.e('s_barrier')
        self.readK(0)
        a.wait_lg0()
        for qt in range(2):
            self.S(qt, 0)
            self.S(qt, 1)
        for qt in range(2):
            self.max16(self.SB + 16 * qt, 8 + qt, True)
            self.halves_max(8 + qt)
            self.set_m(qt, 8 + qt, M_OFFSET)
        a.label(L_PASS)
        self.readK(0)
        self.readK(1)
        self.readV(0, 0)
        self.readV(0, 1)
        for i in range(32):
            a.e(f'v_mov_b32 v{self.OB + i}, 0')
        for i in range(4):
            a.e(f'v_mov_b32 v{self.PF + 4 + i}, 0')
            a.e(f'v_mov_b32 v{self.VF + 12 + i}, 0')
        a.e('s_mov_b32 s34, 0')
        a.e(f's_add_u32 s35, s31, {KVBUF}')
        a.e(f's_mov_b32 s37, {-KVBUF & 0xffffffff}')
        a.wait_lg0()
        self.S(0, 0)
        self.S(0, 1)
        a.e('s_nop 7')
        a.label(L_LOOP)
        a.wait_lg0()
        if opt('gate'):
            lng = a.newlabel('ATT_NG')
            a.e(f's_cmp_lg_u32 s34, {opt("gate")[0]}')
            a.e(f's_cbranch_scc1 {lng}')
            a.e('s_lshl_b32 s44, s3, 7')
            a.e(f's_add_u32 s44, s44, {PROG_OFF}')
            a.e('v_mov_b32 v2, 0')
            poll(a, lambda: a.e(f'buffer_load_dword v4, v2, s[12:15], s44 offen {SC}'), [4], 8, sleep=8)
            if 'gateprio' in ABL:
                a.e('s_setprio 1')
            a.label(lng)
        for n in range(32):
            j, qt = n // 2, n % 2
            sb = self.SB + 16 * (n % 2)
            if n == 29:
                a.e('s_waitcnt vmcnt(0) lgkmcnt(0)')
                a.vmq = []
                a.lgq = []
                a.e('s_barrier')
                for i in range(3):
                    a.e(f'v_add_u32 v{5 + i}, s37, v{5 + i}')
                a.e('s_cmp_ge_u32 s34, 2')
                a.e(f's_cbranch_scc1 {L_NOKV}')
                ls0 = a.newlabel('ATT_S0')
                ls2 = a.newlabel('ATT_S2')
                a.e('s_cmp_eq_u32 s39, 0')
                a.e(f's_cbranch_scc1 {ls0}')
                self.issue_kv(buf_s=35, flags=flags)
                a.e('s_cmp_lg_u32 s39, 2')
                a.e(f's_cbranch_scc1 {L_NOKV}')
                self.side(2)
                a.e('s_mov_b32 s39, 3')
                a.e(f's_branch {L_NOKV}')
                a.label(ls0)
                self.side(0)
                a.e('s_mov_b32 s39, 1')
                a.label(L_NOKV)
                self.gate_load()
                a.e('s_add_u32 s35, s35, s37')
                a.e('s_sub_u32 s37, 0, s37')
            if n == 8:
                ls1 = a.newlabel('ATT_S1')
                a.e('s_cmp_lg_u32 s39, 1')
                a.e(f's_cbranch_scc1 {ls1}')
                a.e('s_waitcnt vmcnt(0)')
                self.side(1)
                self.issue_kv(buf=1, flags=flags)
                a.e('s_mov_b32 s39, 2')
                a.label(ls1)
            if qt == 1:
                a.wait_lg(('K', j + 1))
            self.S(n + 1, 0)
            for i in range(0, 4):
                a.e(f'v_exp_f32 v{sb + i}, v{sb + i}')
            self.PV(n - 1, 1)
            if qt == 0:
                self.readV(j + 1, 0)
            else:
                self.readK(j + 2)
            for i in range(4, 8):
                a.e(f'v_exp_f32 v{sb + i}, v{sb + i}')
            self.S(n + 1, 1)
            for i in range(4):
                a.e(f'v_cvt_pk_bf16_f32 v{self.PF + i}, v{sb + 2 * i}, v{sb + 2 * i + 1}')
            for i in range(8, 12):
                a.e(f'v_exp_f32 v{sb + i}, v{sb + i}')
            if qt == 0:
                a.wait_lg(('V', j))
            self.PV(n, 0)
            if qt == 0:
                self.readV(j + 1, 1)
            for i in range(12, 16):
                a.e(f'v_exp_f32 v{sb + i}, v{sb + i}')
            for i in range(4, 8):
                a.e(f'v_cvt_pk_bf16_f32 v{self.PF + i}, v{sb + 2 * i}, v{sb + 2 * i + 1}')
        a.e('s_add_u32 s34, s34, 1')
        a.e('s_cmp_lt_u32 s34, 4')
        a.e(f's_cbranch_scc1 {L_LOOP}')
        self.PV(31, 1)
        a.wait_all()
        a.e('s_cmp_lg_u32 s33, 0')
        a.e(f's_cbranch_scc1 {L_FIN}')
        a.e(f'v_max3_f32 v2, |v{self.OB}|, |v{self.OB + 1}|, |v{self.OB + 2}|')
        regs = [self.OB + i for i in range(3, 11)] + [self.OB + 16 + i for i in range(11)] + [self.OB + 16]
        for i in range(0, len(regs), 2):
            a.e(f'v_max3_f32 v2, |v{regs[i]}|, |v{regs[i + 1]}|, v2')
        a.e(f's_mov_b32 s44, {hx(2.0 ** 110)}')
        a.e('v_cmp_nlt_f32 vcc, v2, s44') if False else a.e('v_cmp_ngt_f32 vcc, s44, v2')
        a.e(f'v_add_f32 v4, v{self.OB + 10}, v{self.OB + 26}')
        a.e('v_cmp_u_f32 s[46:47], v4, v4')
        a.e('s_or_b64 vcc, vcc, s[46:47]')
        a.e('s_cmp_lg_u64 vcc, 0')
        a.e('s_cselect_b32 s44, 1, 0')
        a.e('v_mov_b32 v2, s44')
        a.e('s_lshl_b32 s45, s20, 2')
        a.e(f's_add_u32 s45, s45, {16 * KV_TILE}')
        a.e('v_mov_b32 v4, s45')
        a.e('ds_write_b32 v4, v2')
        a.e(f'v_mov_b32 v4, {16 * KV_TILE}')
        a.e('s_waitcnt lgkmcnt(0)')
        a.e('s_barrier')
        a.e(f'ds_read_b128 {vr(self.PF, 4)}, v4')
        a.e('s_waitcnt lgkmcnt(0)')
        a.e(f'v_or3_b32 v2, v{self.PF}, v{self.PF + 1}, v{self.PF + 2}')
        a.e(f'v_or_b32 v2, v2, v{self.PF + 3}')
        a.e('v_readfirstlane_b32 s44, v2')
        a.e('s_cmp_eq_u32 s44, 0')
        a.e(f's_cbranch_scc1 {L_FIN}')
        L_MC = a.newlabel('ATT_MC')
        L_MT = a.newlabel('ATT_MT')
        a.e('s_mov_b32 s33, 1')
        for p in range(2):
            a.e(f'v_mov_b32 v{self.QF + 8 * p + 5}, 0')
            a.e(f'v_mov_b32 v{self.QF + 8 * p + 6}, 0')
            a.e(f'v_mov_b32 v{8 + p}, 0xff7fffff')
        a.e(f's_mov_b32 s30, {KV_OFF}')
        a.e('s_mov_b32 s34, 0')
        a.label(L_MC)
        a.e('s_barrier')
        self.issue_kv(buf=0, flags=flags)
        a.e('v_mov_b32 v5, v10')
        a.e('v_mov_b32 v6, v11')
        a.e('s_mov_b32 s36, 0')
        a.wait_vm0()
        a.e('s_barrier')
        a.label(L_MT)
        self.readK(0)
        a.wait_lg0()
        for qt in range(2):
            self.S(qt, 0)
            self.S(qt, 1)
        a.e(f'v_add_u32 v5, {KV_TILE}, v5')
        a.e(f'v_add_u32 v6, {KV_TILE}, v6')
        for qt in range(2):
            self.max16(self.SB + 16 * qt, 8 + qt, False)
        a.e('s_add_u32 s36, s36, 1')
        a.e('s_cmp_lt_u32 s36, 16')
        a.e(f's_cbranch_scc1 {L_MT}')
        a.e('s_add_u32 s34, s34, 1')
        a.e('s_cmp_lt_u32 s34, 4')
        a.e(f's_cbranch_scc1 {L_MC}')
        for qt in range(2):
            self.halves_max(8 + qt)
            self.set_m(qt, 8 + qt, 0.0)
        a.e('s_barrier')
        a.e(f's_mov_b32 s30, {KV_OFF}')
        self.issue_kv(buf=1, flags=flags)
        self.issue_kv(buf=0, flags=flags)
        for i in range(3):
            a.e(f'v_add_u32 v{5 + i}, {KVBUF}, v{10 + i}')
        a.e('s_waitcnt vmcnt(10)')
        a.e('s_barrier')
        a.e(f's_branch {L_PASS}')
        a.label(L_FIN)
        a.vmq = []
        a.lgq = []

    def epilogue(self, flags=''):
        a = self.a
        a.e('s_mul_i32 s44, s23, 90')
        a.e('s_lshl_b32 s45, s22, 1')
        a.e('s_add_u32 s45, s45, s44')
        a.e('s_lshl_b32 s45, s45, 10')
        a.e(f's_add_u32 s45, s45, {UF_OFF}')
        a.e('s_lshr_b32 s46, s22, 2')
        a.e('s_add_u32 s46, s46, s44')
        a.e('s_lshl_b32 s46, s46, 10')
        a.e('s_and_b32 s47, s22, 3')
        a.e('s_lshl_b32 s47, s47, 8')
        a.e('s_add_u32 s46, s46, s47')
        a.e(f's_add_u32 s46, s46, {UF_OFF + 16 * 1024}')
        a.e('v_and_b32 v4, 15, v1')
        a.e('v_lshlrev_b32 v4, 4, v4')
        a.e('v_bfe_u32 v5, v1, 4, 1')
        a.e('v_lshl_add_u32 v4, v5, 2, v4')
        poll(a, self.gate_load, [self.XF + 1], 8, first_done=True)
        for qt in range(2):
            o = self.OB + 16 * qt
            a.e(f'v_mov_b32 v2, v{o + 10}')
            a.e(f'v_permlane32_swap_b32 v{o + 10}, v2')
            a.e(f'v_rcp_f32 v6, v{o + 10}')
            a.e(f'v_mul_f32 v6, v6, v{self.XF}')
            for i in range(5):
                a.e(f'v_pk_mul_f32 {vr(o + 2 * i, 2)}, {vr(o + 2 * i, 2)}, v[6:7] op_sel_hi:[1,0]')
            pk = self.SB + 8 * qt
            for i in range(5):
                a.e(f'v_cvt_pk_bf16_f32 v{pk + i}, v{o + 2 * i}, v{o + 2 * i + 1}')
            a.e(f'buffer_store_dwordx4 {vr(pk, 4)}, v10, s[12:15], s45 offen offset:{1024 * qt} {flags}')
            a.e('s_mov_b32 exec_hi, 0')
            a.e(f'buffer_store_dword v{pk + 4}, v4, s[12:15], s46 offen offset:{8 * qt} {flags}')
            a.e('s_mov_b64 exec, -1')
        a.e('s_lshl_b32 s44, s21, 8')
        a.e('s_lshl_b32 s45, s20, 3')
        a.e('s_add_u32 s44, s44, s45')
        a.e('s_add_u32 s44, s44, s22')
        a.e('s_lshl_b32 s44, s44, 2')
        a.e(f's_add_u32 s44, s44, {F3_OFF + 512}')
        a.wait_vm0()
        set_flag(a, 44, 8)

    def gate_load(self):
        a = self.a
        a.e(f's_mov_b32 s38, {GATE_OFF}')
        a.e(f'buffer_load_dwordx2 {vr(self.XF, 2)}, v3, s[12:15], s38 offen {SC}')


def p3_pre(a):
    a.e('s_and_b32 s44, s22, 1')
    a.e('s_lshl_b32 s66, s21, 1')
    a.e('s_add_u32 s66, s66, s44')
    a.e('s_lshr_b32 s67, s22, 1')
    a.e('s_lshl_b32 s68, s66, 10')
    a.e(f's_add_u32 s68, s68, {F3_OFF}')
    a.e('s_lshr_b32 s72, s23, 1')
    a.e('s_lshl_b32 s72, s72, 10')
    a.e('s_lshr_b32 s44, s22, 2')
    a.e('s_lshl_b32 s44, s44, 7')
    a.e('s_add_u32 s72, s72, s44')
    a.e('s_and_b32 s44, s23, 1')
    a.e('s_lshl_b32 s44, s44, 4')
    a.e('s_add_u32 s72, s72, s44')
    a.e('s_and_b32 s44, s22, 3')
    a.e('s_lshl_b32 s44, s44, 2')
    a.e('s_add_u32 s72, s72, s44')
    a.e(f's_add_u32 s72, s72, {F3_OFF}')
    a.e('s_lshl_b32 s69, s67, 9')
    a.e(f's_add_u32 s69, s69, {FW3_OFF}')
    a.e('v_and_b32 v7, 31, v1')
    a.e('v_lshlrev_b32 v7, 2, v7')
    a.e('v_add_u32 v7, 512, v7')
    a.e('v_min_u32 v8, 44, v1')
    a.e('v_lshlrev_b32 v8, 3, v8')
    a.vm(f'buffer_load_dword v4, v7, s[12:15], s68 offen {SC}', 'pre')
    a.vm(f'buffer_load_dwordx2 v[2:3], v8, s[12:15], s69 offen {SC}', 'pre')


def p3(a):
    ACC = 16
    FR = 96
    DEPTH = 4
    NS = 23
    poll(a, lambda: a.e(f'buffer_load_dwordx2 v[2:3], v8, s[12:15], s69 offen {SC}'), [2, 3], 10, first_done=True)
    a.e('s_mul_i32 s44, s20, 18')
    a.e('s_add_u32 s44, s44, 18')
    a.e('s_mul_i32 s45, s20, 5')
    a.e('s_cmp_eq_u32 s20, 3')
    a.e('s_cselect_b32 s46, 1, 0')
    a.e('s_sub_u32 s45, s45, s46')
    a.e('s_cmp_ge_u32 s20, 2')
    a.e('s_cselect_b32 s46, 4, 5')
    a.e('v_and_b32 v8, 7, v1')
    a.e('s_lshl_b32 s47, s20, 7')
    a.e('v_lshl_add_u32 v8, v8, 2, s47')
    a.e('v_cmp_ne_u32 vcc, s62, v4')
    a.e('s_cmp_eq_u64 vcc, 0')
    if 'ufirst' in ABL:
        a.e('s_cmp_eq_u32 s20, 77')
    a.e('s_cselect_b32 s70, 1, 0')
    a.e('s_cselect_b32 s71, s46, 18')
    a.e('s_cselect_b32 s24, s45, s44')
    a.e('s_cselect_b32 s30, s44, s45')
    a.e('s_cselect_b64 vcc, -1, 0')
    a.e('s_mul_i32 s44, s67, 90')
    a.e('s_add_u32 s25, s24, s44')
    a.e('s_mul_i32 s25, s25, 4608')
    a.e(f's_add_u32 s25, s25, {W3_OFF}')
    a.e('s_add_u32 s31, s30, s44')
    a.e('s_mul_i32 s31, s31, 4608')
    a.e(f's_add_u32 s31, s31, {W3_OFF}')
    a.e('v_cndmask_b32 v7, v7, v8, vcc')
    a.e('v_lshrrev_b32 v6, 4, v1')
    a.e('v_lshlrev_b32 v6, 3, v6')
    a.e('v_and_b32 v9, 7, v1')
    a.e('v_add_u32 v6, v6, v9')
    a.e('v_lshlrev_b32 v6, 4, v6')
    a.e('v_add_u32 v6, 4096, v6')
    a.e('v_mov_b32 v12, v19')

    def loadW(k):
        b = FR + 36 * (k % DEPTH)
        for nt in range(4):
            a.vm(f'buffer_load_dwordx4 {vr(b + 4 * nt, 4)}, v12, s[12:15], s25 offen offset:{1024 * nt} {SCL}', ('W', k))
        a.vm(f'buffer_load_dwordx4 {vr(b + 16, 4)}, v6, s[12:15], s25 offen {SCL}', ('W', k))
        a.e('s_add_u32 s25, s25, 4608')

    def loadF(k):
        b = FR + 36 * (k % DEPTH)
        for i in range(4):
            a.vm(f'buffer_load_dwordx4 {vr(b + 20 + 4 * i, 4)}, v{2 + i}, s[12:15], s24 offen {SCL}', ('F', k))
        a.e('s_add_u32 s24, s24, 1024')
    a.e('s_mul_i32 s44, s66, 360')
    a.e('s_add_u32 s24, s24, s44')
    a.e('s_lshl_b32 s24, s24, 10')
    a.e(f's_add_u32 s24, s24, {UF_OFF}')
    a.e('s_add_u32 s30, s30, s44')
    a.e('s_lshl_b32 s30, s30, 10')
    a.e(f's_add_u32 s30, s30, {UF_OFF}')
    for i in range(4):
        a.e(f's_add_u32 s44, s20, {i}')
        a.e('s_and_b32 s44, s44, 3')
        a.e('s_mul_i32 s44, s44, 92160')
        a.e(f'v_add_u32 v{2 + i}, s44, v12')
    a.e('s_mov_b32 s8, s64')
    a.e('s_mov_b32 s9, s65')
    srd(a, 8, 2048 * 1152)
    if 'trfine' in ABL:
        stamp(a, 3)
    a.wait_vm('st')
    if 'trfine' in ABL:
        stamp(a, 4)
    set_flag(a, 72, 10)
    for k in range(DEPTH):
        loadW(k)
    lj = a.newlabel('P3_J')
    a.e('s_cmp_lg_u32 s70, 0')
    a.e(f's_cbranch_scc1 {lj}')
    q0 = list(a.vmq)
    if 'now3t' not in ABL:
        a.e('s_lshr_b32 s44, s2, 3')
        a.e('s_lshl_b32 s44, s44, 2')
        a.e('s_add_u32 s44, s44, s20')
        a.e('s_mul_i32 s44, s44, %d' % (102 * 128))
        a.e('s_and_b32 s45, s2, 4')
        a.e('s_mul_i32 s45, s45, %d' % (90 * 4608))
        a.e('s_add_u32 s44, s44, s45')
        a.e(f's_add_u32 s44, s44, {W3_OFF}')
        a.e('v_min_u32 v10, 50, v1')
        a.e('v_lshlrev_b32 v10, 8, v10')
        a.e('buffer_load_dword v255, v10, s[12:15], s44 offen')
        a.e('buffer_load_dword v255, v10, s[12:15], s44 offen offset:128')
    poll(a, lambda: a.e(f'buffer_load_dword v9, v8, s[12:15], s68 offen {SC}'), [9], 10, sleep=opt('psl', [2])[0])
    a.vmq = q0
    if 'trfine' in ABL:
        stamp(a, 5)
    a.label(lj)
    for k in range(DEPTH):
        loadF(k)
    stamp(a, 6 if 'trfine' in ABL else 3 if 'p3fine' in ABL else 5)

    a.e(f's_setprio {opt("pg", PG)[2]}')

    def flags2():
        a.e(f'buffer_load_dword v9, v7, s[12:15], s68 offen {SC}')
    lskip = a.newlabel('P3_SKIP')
    for k in range(NS):
        b = FR + 36 * (k % DEPTH)
        if k == NS - 1:
            a.e('s_cmp_ge_u32 s20, 2')
            a.e(f's_cbranch_scc1 {lskip}')
            a.wait_vm0()
        a.wait_vm(('F', k))
        for i in range(4):
            for nt in range(5):
                d = vr(ACC + 16 * nt + 4 * i, 4)
                a.e(f'v_mfma_f32_16x16x32_bf16 {d}, {vr(b + 4 * nt, 4)}, {vr(b + 20 + 4 * i, 4)}, {"0" if k == 0 else d}')
        kn = k + DEPTH
        if 'p3fine' in ABL and k in (2, 12) and not (k == 2 and 'drainfirst' in ABL) and 'trfine' not in ABL:
            stamp(a, 4 if k == 2 else 5)
        if kn == NS - 1:
            ls = a.newlabel('P3_NL')
            a.e('s_cmp_ge_u32 s20, 2')
            a.e(f's_cbranch_scc1 {ls}')
            q1 = list(a.vmq)
            loadW(kn)
            loadF(kn)
            a.vmq = q1
            a.label(ls)
        elif kn < NS:
            if kn in (4, 5, 18):
                a.e(f's_cmp_eq_u32 s71, {kn}')
                a.e('s_cselect_b32 s25, s31, s25')
            loadW(kn)
            if kn in (4, 5, 18):
                ls = a.newlabel('P3_NS')
                a.e(f's_cmp_lg_u32 s71, {kn}')
                a.e(f's_cbranch_scc1 {ls}')
                a.e('s_mov_b32 s24, s30')
                q1 = list(a.vmq)
                poll(a, flags2, [9], 10)
                a.vmq = q1
                a.label(ls)
            loadF(kn)
    a.label(lskip)
    if 'trfine' not in ABL:
        stamp(a, 6)
    else:
        a.e('s_nop 7')
    for i in range(1, 4):
        a.e(f's_add_u32 s44, s20, {i}')
        a.e('s_and_b32 s44, s44, 3')
        a.e('s_mul_i32 s44, s44, 15360')
        a.e(f'v_add_u32 v{8 + i}, s44, v12')
        for nt in range(5):
            a.lg(f'ds_write_b128 v{8 + i}, {vr(ACC + 16 * nt + 4 * i, 4)} offset:{5120 * (i - 1) + 1024 * nt}', 'w')
    a.e('s_mul_i32 s26, s20, 15360')
    a.e('v_add_u32 v8, s26, v12')
    a.e('s_lshl_b32 s27, s66, 6')
    a.e('s_lshr_b32 s28, s20, 1')
    a.e('s_lshl_b32 s28, s28, 5')
    a.e('s_add_u32 s27, s27, s28')
    a.e('s_and_b32 s28, s20, 1')
    a.e('s_lshl_b32 s28, s28, 2')
    a.e('s_add_u32 s27, s27, s28')
    a.e('v_bfe_u32 v13, v1, 2, 2')
    a.e('v_lshlrev_b32 v13, 3, v13')
    a.e('v_and_b32 v14, 3, v1')
    a.e('v_add3_u32 v13, v13, v14, s27')
    a.e('v_mul_u32_u24 v13, 1152, v13')
    a.e('v_lshrrev_b32 v14, 4, v1')
    a.e('v_lshl_add_u32 v15, v14, 3, v13')
    a.e('v_lshl_add_u32 v13, v14, 4, v13')
    a.e('s_mul_i32 s27, s67, 144')
    a.wait_all()
    a.e('s_barrier')
    for nt in range(5):
        for i in range(3):
            a.lg(f'ds_read_b128 {vr(FR + 12 * nt + 4 * i, 4)}, v8 offset:{5120 * i + 1024 * nt}', ('r', nt))
    PKB = FR + 64
    for nt in range(5):
        a.wait_lg(('r', nt))
        b = FR + 12 * nt
        o = ACC + 16 * nt
        for h in range(2):
            a.e(f'v_pk_add_f32 {vr(b + 2 * h, 2)}, {vr(b + 2 * h, 2)}, {vr(b + 4 + 2 * h, 2)}')
            a.e(f'v_pk_add_f32 {vr(o + 2 * h, 2)}, {vr(o + 2 * h, 2)}, {vr(b + 8 + 2 * h, 2)}')
        for h in range(2):
            a.e(f'v_pk_add_f32 {vr(b + 2 * h, 2)}, {vr(b + 2 * h, 2)}, {vr(o + 2 * h, 2)}')
        for h in range(2):
            a.e(f'v_cvt_pk_bf16_f32 v{PKB + 2 * nt + h}, v{b + 2 * h}, v{b + 2 * h + 1}')
        if nt in (1, 3):
            a.e(f'buffer_store_dwordx4 {vr(PKB + 2 * nt - 2, 4)}, v13, s[8:11], s27 offen offset:{64 * (nt // 2)}')
        if nt == 4:
            a.e('s_mov_b32 exec_hi, 0')
            a.e(f'buffer_store_dwordx2 {vr(PKB + 8, 2)}, v15, s[8:11], s27 offen offset:128')
            a.e('s_mov_b64 exec, -1')


def kernel_text(name, a, vgpr=256, sgpr=96):
    a.fix_hazards()
    mv, ms, ma = a.max_regs()
    assert mv <= vgpr and ms <= sgpr and ma == 0, (mv, ms, ma)
    body = f'.globl {name}\n.p2align 8\n.type {name},@function\n{name}:\n' + a.text()
    desc = f""".p2align 6
.amdhsa_kernel {name}
  .amdhsa_next_free_vgpr {vgpr}
  .amdhsa_next_free_sgpr {sgpr}
  .amdhsa_accum_offset {(vgpr + 3) // 4 * 4}
  .amdhsa_group_segment_fixed_size 0
  .amdhsa_kernarg_size 112
  .amdhsa_user_sgpr_count 2
  .amdhsa_user_sgpr_kernarg_segment_ptr 1
  .amdhsa_system_sgpr_workgroup_id_x 1
.end_amdhsa_kernel
"""
    return body, desc


def build_file(kernels):
    hdr = open('cdna_kernels/' + NAME + '.s.ref').read().split('\n')
    head = [l for l in hdr if l.startswith(';') and '@launch' not in l and 'Override' not in l and 'grid=ceil' not in l]
    head = head[:15]
    out = '\n'.join(head) + '\n'
    for name, a, grid, block, lds, vgpr in kernels:
        kn = f'kernel={name} ' if (len(kernels) > 1 or LIST) else ''
        out += f'; @launch {kn}grid=({grid},1,1) block=({block},1,1) lds={lds}\n'
    out += '.amdgcn_target "amdgcn-amd-amdhsa--gfx950"\n.text\n'
    out += f'.set CODE_LINES, (K_END - {NAME}_kernel) / 128 - 4\n'
    descs = ''
    for name, a, grid, block, lds, vgpr in kernels:
        b, d = kernel_text(name, a, vgpr)
        out += b
        descs += d
    out += '.section .rodata,"a"\n' + descs
    return out


NG1, NG2 = 1, 3


def mega():
    a = Asm()
    a.e('s_cmp_ge_u32 s2, 512')
    a.e('s_cbranch_scc1 K_END')
    stamp(a, 0)
    a.e('s_cmp_lt_u32 s2, 256')
    a.e('s_cbranch_scc1 K_GEMM')
    a.e('s_sub_u32 s3, s2, 256')
    if 'g1only' in ABL:
        a.e('s_branch K_DONE')
    P = opt('pa', [0, 0])
    t = ATT(a)
    t.setup(3)
    write_nonce(a)
    t.retile_setup()
    t.nonce()
    stamp(a, 1)
    a.e(f's_setprio {P[0]}')
    t.q_phase()
    stamp(a, 2)
    a.e(f's_setprio {P[1]}')
    if 'noattmain' in ABL:
        for p in range(3):
            a.wait_all()
            t.side(p)
        t.gate_load()
        a.wait_all()
    else:
        t.main(flags=SCL)
    stamp(a, 3)
    if 'epiprio' in ABL:
        a.e('s_setprio 3')
    t.epilogue(flags=SC)
    a.e('s_branch K_DONE')
    a.label('K_GEMM')
    a.vmq = []
    a.lgq = []
    g = GW(a)
    UB, UP = g.UB, g.UP
    g.limitA = UB
    g.setup()
    g.prologue_issue()
    g.setup2()

    def nonce_ld():
        a.e('v_mov_b32 v23, 0')
        a.vm(f'global_load_dword v24, v23, s[16:17] {SC}', 'nonce')
    g.hooks[21] = nonce_ld
    g.run_segment(0, UB)
    stamp(a, 1)
    n1, n2 = opt('ng', [NG1, NG2])
    nb1 = opt('nb1', [8])[0]
    a.wait_vm('nonce')
    get_nonce(a, 23, 24)
    g.proj_store()
    g.limitA = UP
    a.vmq.append('pst')
    a.vmq.append('pst')
    a.e('s_barrier')
    for _ in range(g.R - 1):
        for f in g.issueA():
            f()
    g.z2_gelu_publish()

    LF = 'lnfine' in ABL
    if LF:
        stamp(a, 2)
    g.run_segment(UB, nb1)
    if LF:
        stamp(a, 3)
    g.z2_gather_norm_store()
    stamp(a, 4 if LF else 2)
    a.e('s_lshl_b32 s49, s22, 9')
    a.e(f's_add_u32 s49, s49, {FZ_OFF}')
    a.e('s_lshl_b32 s48, s32, 7')
    a.e('s_add_u32 s48, s48, s49')
    a.e('s_and_b32 s50, s23, 15')
    a.e('s_lshl_b32 s50, s50, 2')
    a.e('s_add_u32 s48, s48, s50')
    a.e('s_and_b32 s50, s32, 2')
    a.e('s_lshl_b32 s50, s50, 7')
    a.e('s_add_u32 s50, s50, s49')
    a.e('v_and_b32 v29, 15, v1')
    a.e('v_lshlrev_b32 v29, 2, v29')
    a.e('v_lshrrev_b32 v23, 4, v1')
    a.e('v_lshl_add_u32 v23, v23, 7, v29')
    a.e('v_and_b32 v29, 0xff, v23')

    def zflag():
        a.wait_vm('st')
        set_flag(a, 48, 27)
    g.hooks[UB + nb1 + opt('zf', [4])[0]] = zflag
    g.run_segment(UB + nb1, 18 - nb1)
    if LF:
        stamp(a, 5)
    g.own_write()
    g.z1_gelu(range(0, n1))
    g.nextA = UP + 4
    g.run_segment(UP, 4, own=True)
    g.z1_gelu(range(n1, n2))
    if LF:
        stamp(a, 6)
    poll(a, lambda: a.e(f'buffer_load_dword v26, v29, s[12:15], s50 offen {SC}'), [26], 27)
    if LF:
        a.e('s_branch K_DONE')
    stamp(a, 3)
    g.limitA = len(g.units)
    a.e('s_barrier')
    for _ in range(g.R - 1):
        for f in g.issueA():
            f()
    g.z1_gelu(range(n2, 9))
    g.hooks[UP + 58] = g.sp_pre

    def zall():
        a.e(f'buffer_load_dword v26, v23, s[12:15], s49 offen {SC}')

    def zall0():
        zall()
        a.vmq.append('zf')

    def zall1():
        a.wait_vm('zf')
        poll(a, zall, [26], 27, first_done=True)
    g.hooks[UP + 22] = zall0
    g.hooks[UP + 27] = zall1
    g.hooks[UP + 61] = lambda: p3_pre(a)

    if opt('gate'):
        def prog():
            a.e('s_lshl_b32 s44, s2, 7')
            a.e(f's_add_u32 s44, s44, {PROG_OFF}')
            set_flag(a, 44, 27)
        g.hooks[UP + opt('gate')[1]] = prog
    g.run_segment(UP + 4, 60)
    if 'p2fine' in ABL:
        stamp(a, 6)
        a.e('s_branch K_DONE')
    stamp(a, 4)
    if 'p3fine' in ABL:
        stamp(a, 1)
    g.sp_epilogue()
    if 'p3fine' in ABL:
        stamp(a, 2)
    p3(a)
    a.label('K_DONE')
    stamp_flush(a, 0)
    a.label('K_END')
    a.e('s_endpgm')
    return (NAME + '_kernel', a, 512, 256, 81920, 256)


LIST = False
if __name__ == '__main__':
    if '--stamp' in sys.argv:
        STAMP = True
        sys.argv.remove('--stamp')
    if '--list' in sys.argv:
        LIST = True
        sys.argv.remove('--list')
    for x in list(sys.argv):
        if x.startswith('--abl='):
            ABL.update(x[6:].split(','))
            sys.argv.remove(x)
    out = sys.argv[1] if len(sys.argv) > 1 else 'out.s'
    open(out, 'w').write(build_file([mega()]))
    print('wrote', out)
```

```python
import sys, struct
from asmlib import Asm

NAME = 'gated_mix__grouped_kv_mqa__mixer_gmlp__prompt'

Z2_OFF = 0x10000
UF_OFF = Z2_OFF + 9437184
W3_OFF = UF_OFF + 11796480
KV_OFF = W3_OFF + 3317760
KV_TILE = 2496
GATE_OFF = KV_OFF + 160 * 1024
STATS_OFF = GATE_OFF + 16384
FLAG_OFF = STATS_OFF + 524288
FKV_OFF = FLAG_OFF
FW3_OFF = FLAG_OFF + 49152
FZ_OFF = FLAG_OFF + 4096
F3_OFF = FLAG_OFF + 65536
PROG_OFF = FLAG_OFF + 16384
GO_OFF = FLAG_OFF + 98304
KVF_OFF = FLAG_OFF
QF_OFF = FLAG_OFF + 131072
SC = 'sc1' if 'sconly1' in ' '.join(sys.argv) else 'sc0 sc1'
SCL = '' if '--abl' in ' '.join(sys.argv) and 'noscl' in ' '.join(sys.argv) else 'sc1'
WS_SIZE = 0x1c00000
assert QF_OFF + 128 * 16 * 1152 <= 0x1b00000
STAMP_OFF = 0x1b00000

A_X, A_WQ, A_WK, A_WV, A_WO, A_BX, A_WIN, A_WSP, A_BSP, A_WOUT, A_GW, A_OUT, A_DBG, A_WS = [8 * i for i in range(14)]

STAMP = False
ABL = set()


def opt(name, default=None):
    for x in ABL:
        if x.startswith(name + ':'):
            return [int(v) for v in x.split(':')[1:]]
    return default


def f2u(f):
    return struct.unpack('<I', struct.pack('<f', f))[0]


def hx(f):
    return '0x%08x' % f2u(f)


def srd(a, d, size):
    a.e(f's_mov_b32 s{d + 2}, {size}')
    a.e(f's_mov_b32 s{d + 3}, 0x00020000')


def vr(b, n):
    return f'v[{b}:{b + n - 1}]'


def stamp(a, idx):
    if not STAMP:
        return
    a.wait_lg0()
    a.e('s_memrealtime s[78:79]')
    a.e('s_memtime s[76:77]')
    a.e('s_waitcnt lgkmcnt(0)')
    a.e(f's_mov_b32 s{80 + idx}, s78')
    a.e(f's_mov_b32 s{88 + idx}, s76')


def stamp_flush(a, kidx):
    if not STAMP:
        return
    a.e('s_waitcnt vmcnt(0) lgkmcnt(0)')
    stamp(a, 7)
    a.e(f's_load_dwordx2 s[74:75], s[0:1], {A_WS}')
    a.e('s_waitcnt lgkmcnt(0)')
    a.e('v_lshrrev_b32 v1, 6, v0')
    a.e('v_lshlrev_b32 v1, 6, v1')
    a.e('s_lshl_b32 s78, s2, 8')
    a.e(f's_add_u32 s78, s78, {STAMP_OFF + kidx * 131072}')
    a.e('v_add_u32 v1, s78, v1')
    for i in range(16):
        a.e(f'v_mov_b32 v{4 + i}, s{80 + i}')
    for i in range(4):
        a.e(f'global_store_dwordx4 v1, v[{4 + 4 * i}:{7 + 4 * i}], s[74:75] offset:{16 * i}')
    if 'dbgstamp' in ABL:
        a.e('s_cmp_lt_u32 s2, 256')
        a.e('s_cselect_b32 s78, 4, 36')
        a.e('v_mov_b32 v1, s78')
        a.e('s_mov_b64 exec, 1')
        for i in range(1, 8):
            a.e(f'v_subrev_u32 v{4 + i}, s62, v{4 + i}')
            a.e(f'global_atomic_umax v1, v{4 + i}, s[16:17] offset:{4 * (i - 1)} sc1')
        a.e('v_sub_u32 v4, s62, v4')
        a.e('v_add_u32 v4, 1000, v4')
        a.e('v_mov_b32 v1, 32')
        a.e('global_atomic_umax v1, v4, s[16:17] sc1')
        a.e('s_mov_b64 exec, -1')


QSCALE = 18 ** -0.5 * 1.4426950408889634
GELU_C0 = -2.0 * 1.4426950408889634 * 0.7978845608028654
GELU_C1 = GELU_C0 * 0.044715


def gelu_group(a, regs, T, sC1, vC0):
    n = len(regs)
    for i, r in enumerate(regs):
        a.e(f'v_pk_mul_f32 {vr(T + 2 * i, 2)}, {vr(r, 2)}, {vr(r, 2)}')
    for i, r in enumerate(regs):
        a.e(f'v_pk_fma_f32 {vr(T + 2 * i, 2)}, {vr(T + 2 * i, 2)}, s[{sC1}:{sC1 + 1}], {vr(vC0, 2)}')
    for i, r in enumerate(regs):
        a.e(f'v_pk_mul_f32 {vr(T + 2 * i, 2)}, {vr(T + 2 * i, 2)}, {vr(r, 2)}')
    for i in range(2 * n):
        a.e(f'v_exp_f32 v{T + i}, v{T + i}')
    for i, r in enumerate(regs):
        a.e(f'v_pk_add_f32 {vr(T + 2 * i, 2)}, {vr(T + 2 * i, 2)}, 1.0 op_sel_hi:[1,0]')
    for i in range(2 * n):
        a.e(f'v_rcp_f32 v{T + i}, v{T + i}')
    for i, r in enumerate(regs):
        a.e(f'v_pk_mul_f32 {vr(r, 2)}, {vr(T + 2 * i, 2)}, {vr(r, 2)}')


SPIN_MAX = 300000
PG = [0, 2, 0]


def poll(a, loads, regs, t0, first_done=False, sleep=1):
    lp = a.newlabel('POLL')
    lc = a.newlabel('POLLC')
    lg = a.newlabel('POLLOK')
    a.e(f's_mov_b32 s51, {SPIN_MAX}')
    if first_done:
        a.e(f's_branch {lc}')
    a.label(lp)
    loads()
    a.e('s_waitcnt vmcnt(0)')
    a.label(lc)
    a.e(f'v_xor_b32 v{t0}, s62, v{regs[0]}')
    for r in regs[1:]:
        a.e(f'v_xor_b32 v{t0 + 1}, s62, v{r}')
        a.e(f'v_or_b32 v{t0}, v{t0}, v{t0 + 1}')
    a.e(f'v_cmp_ne_u32 vcc, 0, v{t0}')
    a.e(f's_cbranch_vccz {lg}')
    a.e(f's_sleep {sleep}')
    a.e('s_sub_u32 s51, s51, 1')
    a.e('s_cmp_lg_u32 s51, 0')
    a.e(f's_cbranch_scc1 {lp}')
    a.label(lg)
    if not first_done:
        a.vmq = []


def get_nonce(a, vz, vn):
    lp = a.newlabel('NONCE')
    lg = a.newlabel('NONCE_OK')
    a.e(f's_mov_b32 s51, {SPIN_MAX}')
    a.label(lp)
    a.e(f'v_readfirstlane_b32 s62, v{vn}')
    a.e('s_cmp_lg_u32 s62, 0')
    a.e(f's_cbranch_scc1 {lg}')
    a.e('s_sleep 32')
    a.e(f'global_load_dword v{vn}, v{vz}, s[16:17] {SC}')
    a.e('s_waitcnt vmcnt(0)')
    a.e('s_sub_u32 s51, s51, 1')
    a.e('s_cmp_lg_u32 s51, 0')
    a.e(f's_cbranch_scc1 {lp}')
    a.label(lg)


def set_flag(a, soff, t0):
    a.e(f'v_mov_b32 v{t0}, 0')
    a.e(f'v_mov_b32 v{t0 + 1}, s62')
    a.e('s_mov_b64 exec, 1')
    a.vm(f'buffer_store_dword v{t0 + 1}, v{t0}, s[12:15], s{soff} offen {SC}', 'flag')
    a.e('s_mov_b64 exec, -1')


class GW:
    R = 5
    SLOT = 8192
    SGL = 40960
    BBASE = 49152
    AF = 32
    BF = 68
    ACC0 = 100
    ACC1 = 172
    UB = 27
    UP = 45

    def __init__(self, a):
        self.a = a
        self.units = []
        self.stages = []
        for st in range(9):
            self.stages.append(('x', st))
            self.units += [('z2', 2 * st, st, 0, 2 * st), ('z2', 2 * st + 1, st, 1, 2 * st + 1), ('E', st, st, 0, None)]
        for k in range(18):
            if k % 2 == 0:
                self.stages.append(('x', k // 2))
            self.units.append(('z1', k, 9 + k // 2, k % 2, 18 + k))
        for k in range(64):
            if k % 2 == 0:
                self.stages.append(('sp', k // 2))
            self.units.append(('sp', k, 18 + k // 2, k % 2, 36 + k))
        self.nextA = 0
        self.nextB = 0
        self.limitA = len(self.units)
        self.pendB = []
        self.hooks = {}

    def setup(self):
        a = self.a
        a.e(f's_load_dwordx4 s[4:7], s[0:1], {A_X}')
        a.e(f's_load_dwordx2 s[8:9], s[0:1], {A_WIN}')
        a.e(f's_load_dwordx4 s[16:19], s[0:1], {A_DBG}')
        a.e(f's_load_dwordx4 s[52:55], s[0:1], {A_WSP}')
        a.e(f's_load_dwordx2 s[64:65], s[0:1], {A_OUT}')
        a.e(f's_load_dwordx4 s[68:71], s[0:1], {A_WK}')
        a.e('v_lshrrev_b32 v1, 6, v0')
        a.e('v_readfirstlane_b32 s20, v1')
        a.e('v_and_b32 v1, 63, v0')
        a.e('s_lshr_b32 s31, s2, 3')
        a.e('s_and_b32 s32, s2, 3')
        a.e('s_and_b32 s34, s31, 3')
        a.e('s_lshl_b32 s21, s32, 2')
        a.e('s_add_u32 s21, s21, s34')
        a.e('s_lshr_b32 s35, s31, 2')
        a.e('s_and_b32 s22, s2, 4')
        a.e('s_lshl_b32 s22, s22, 1')
        a.e('s_add_u32 s22, s22, s35')
        a.e('s_lshl_b32 s23, s21, 2')
        a.e('s_add_u32 s23, s23, s20')
        a.e('s_lshl_b32 s39, s34, 1')
        a.e('s_add_u32 s39, s39, s35')
        a.e('s_cmp_ge_u32 s39, 9')
        a.e('s_cselect_b32 s40, 9, 0')
        a.e('s_sub_u32 s39, s39, s40')
        if 'norot' in ABL:
            a.e('s_mov_b32 s39, 0')
        a.e('s_mul_i32 s24, s39, %d' % (64 * 9216))
        a.e('s_add_u32 s24, s24, 4608')
        a.e('s_lshl_b32 s25, s39, 7')
        a.e('s_lshl_b32 s28, s39, 1')
        a.e('s_add_u32 s28, s28, s20')
        a.e('s_cmp_ge_u32 s28, 18')
        a.e('s_cselect_b32 s29, 18, 0')
        a.e('s_sub_u32 s28, s28, s29')
        a.e('s_lshl_b32 s26, s20, 11')
        a.e('s_lshl_b32 s27, s20, 12')
        a.e(f's_add_u32 s27, s27, {self.BBASE}')
        a.e('s_lshl_b32 s30, s20, 10')
        a.e(f's_add_u32 s30, s30, {self.SGL}')
        a.e('v_and_b32 v23, 7, v1')
        a.e('v_lshrrev_b32 v24, 5, v1')
        a.e('v_lshlrev_b32 v24, 3, v24')
        a.e('v_bfe_u32 v25, v1, 3, 2')
        a.e('s_lshl_b32 s44, s23, 5')
        a.e('v_add3_u32 v24, v24, v25, s44')
        a.e('v_lshrrev_b32 v25, 4, v1')
        a.e('v_xor_b32 v25, v25, v23')
        a.e('v_lshlrev_b32 v25, 4, v25')
        a.e('v_xor_b32 v26, 64, v25')
        a.e('v_mul_u32_u24 v27, 1152, v24')
        a.e('v_add_u32 v5, v27, v25')
        a.e('v_add_u32 v6, v27, v26')
        a.e(f'v_add_u32 v6, {16 * 1152 - 1024}, v6')
        a.e(f'v_add_u32 v7, {4 * 1152 - 2048}, v5')
        a.e(f'v_add_u32 v8, {4 * 1152 - 2048}, v6')
        a.e('s_lshl_b32 s42, s22, 8')
        a.e('s_mul_i32 s43, s20, %d' % (8 * 9216))
        a.e('s_add_u32 s42, s42, s43')
        a.e('v_bfe_u32 v2, v1, 2, 2')
        a.e('v_mul_u32_u24 v2, 9216, v2')
        a.e('v_lshrrev_b32 v3, 4, v1')
        a.e('v_lshl_add_u32 v2, v3, 6, v2')
        a.e('s_and_b32 s44, s20, 1')
        a.e('s_lshl_b32 s45, s44, 1')
        a.e('v_and_b32 v3, 3, v1')
        a.e('v_xor_b32 v3, s45, v3')
        a.e('v_lshl_add_u32 v2, v3, 4, v2')
        a.e('v_add_u32 v2, s42, v2')
        a.e(f'v_add_u32 v3, {4 * 9216 - 1024}, v2')
        a.e('v_lshrrev_b32 v29, 1, v1')
        a.e('v_and_b32 v27, 19, v29')
        a.e('v_bfe_u32 v28, v29, 2, 1')
        a.e('v_lshl_add_u32 v27, v28, 3, v27')
        a.e('v_bfe_u32 v28, v29, 3, 1')
        a.e('v_lshl_add_u32 v27, v28, 2, v27')
        a.e('v_mul_u32_u24 v4, 9216, v27')
        a.e('v_and_b32 v27, 1, v1')
        a.e('v_lshl_add_u32 v4, v27, 4, v4')
        a.e('s_lshl_b32 s45, s22, 5')
        a.e('s_add_u32 s45, s45, 4096')
        a.e('v_add_u32 v4, s45, v4')
        a.e('v_mul_u32_u24 v27, 36, v27')
        a.e('v_lshrrev_b32 v20, 2, v1')
        a.e('v_mul_u32_u24 v20, 1152, v20')
        a.e('v_bfe_u32 v28, v1, 1, 1')
        a.e('v_lshl_add_u32 v20, v28, 4, v20')
        a.e('v_add_u32 v20, v20, v27')
        a.e('v_mul_u32_u24 v28, 1152, v29')
        a.e('v_add3_u32 v28, v28, v27, 32')
        a.e('s_cmp_eq_u32 s20, 2')
        a.e('s_cselect_b64 vcc, -1, 0')
        a.e('v_cndmask_b32 v20, v20, v28, vcc')
        a.e('v_mul_u32_u24 v28, 36, v29')
        a.e('s_cmp_eq_u32 s20, 3')
        a.e('s_cselect_b64 vcc, -1, 0')
        a.e('v_cndmask_b32 v20, v20, v28, vcc')
        a.e('s_mul_i32 s44, s22, 72')
        a.e('s_cmp_eq_u32 s20, 1')
        a.e(f's_cselect_b32 s45, {16 * 1152}, 0')
        a.e('s_add_u32 s44, s44, s45')
        a.e('s_and_b32 s45, s22, 1')
        a.e('s_lshl_b32 s45, s45, 4')
        a.e('s_cmp_ge_u32 s22, 4')
        a.e('s_cselect_b32 s45, 32, s45')
        a.e('s_cmp_eq_u32 s20, 3')
        a.e('s_cselect_b32 s44, s45, s44')
        a.e(f's_movk_i32 s58, 1152')
        a.e('s_cselect_b32 s58, 36, s58')
        a.e('v_add_u32 v20, s44, v20')
        a.e('s_lshl_b32 s44, s58, 5')
        a.e('s_sub_u32 s44, s44, 1024')
        a.e('v_add_u32 v244, s44, v20')
        a.e('s_mul_i32 s42, s58, 576')
        a.e('s_lshl_b32 s58, s58, 6')
        a.e('s_mul_i32 s59, s58, s39')
        a.e('s_lshr_b32 s44, 0x2c, s22')
        a.e('s_and_b32 s44, s44, 1')
        a.e('s_waitcnt lgkmcnt(0)')
        a.e('s_cmp_eq_u32 s44, 1')
        a.e('s_cselect_b32 s40, s70, s68')
        a.e('s_cselect_b32 s41, s71, s69')
        a.e('s_cmp_eq_u32 s20, 3')
        a.e('s_cselect_b32 s40, s40, s6')
        a.e('s_cselect_b32 s41, s41, s7')
        a.e('s_mov_b32 s43, 0x00020000')
        srd(a, 4, 2359296)
        srd(a, 8, 576 * 9216)
        a.e('s_mov_b32 s12, s18')
        a.e('s_mov_b32 s13, s19')
        srd(a, 12, WS_SIZE)
        a.e('s_mov_b32 s56, s54')
        a.e('s_mov_b32 s57, s55')
        srd(a, 52, 2048 * 4096)

    def setup2(self):
        a = self.a
        a.e('v_lshlrev_b32 v27, 12, v24')
        a.e('v_add_u32 v12, v27, v25')
        a.e('v_add_u32 v13, v27, v26')
        a.e(f'v_add_u32 v13, {16 * 4096 - 1024}, v13')
        a.e(f'v_add_u32 v14, {4 * 4096 - 2048}, v12')
        a.e(f'v_add_u32 v15, {4 * 4096 - 2048}, v13')
        a.e('s_xor_b32 s37, s21, s35')
        a.e('s_lshl_b32 s45, s22, 13')
        a.e('s_add_u32 s45, s45, s26')
        a.e('v_lshlrev_b32 v19, 4, v1')
        a.e('v_add_u32 v9, s45, v19')
        a.e('s_lshl_b32 s45, s22, 10')
        a.e('s_mul_i32 s46, s20, 147456')
        a.e('s_add_u32 s45, s45, s46')
        a.e(f's_add_u32 s45, s45, {128 * 1024}')
        a.e('v_add_u32 v10, s45, v19')
        a.e('v_lshrrev_b32 v27, 4, v1')
        a.e('v_and_b32 v29, 3, v1')
        a.e('v_lshlrev_b32 v28, 3, v29')
        a.e('v_bfe_u32 v29, v1, 2, 3')
        a.e('v_lshl_add_u32 v18, v29, 5, v28')
        a.e('v_lshrrev_b32 v29, 5, v1')
        a.e('v_lshl_add_u32 v18, v29, 9, v18')
        a.e('v_lshl_add_u32 v28, v27, 11, v28')
        a.e('v_bfe_u32 v29, v1, 2, 2')
        a.e('v_lshl_add_u32 v28, v29, 6, v28')
        a.e('v_and_b32 v29, 1, v27')
        a.e('v_lshl_add_u32 v16, v29, 5, v28')
        a.e('v_xor_b32 v17, 32, v16')
        a.e('v_and_b32 v28, 15, v1')
        a.e('v_lshlrev_b32 v245, 4, v28')
        a.e('v_lshl_add_u32 v245, v29, 9, v245')
        a.e('v_lshrrev_b32 v29, 5, v1')
        a.e('v_lshl_add_u32 v245, v29, 11, v245')
        a.e('v_bfe_u32 v29, v1, 2, 2')
        a.e('v_lshl_add_u32 v29, v27, 3, v29')
        a.e('v_lshlrev_b32 v246, 5, v29')
        a.e('v_and_b32 v29, 1, v1')
        a.e('v_lshlrev_b32 v23, 4, v29')
        a.e('v_add_u32 v23, 4096, v23')
        a.e('v_lshlrev_b32 v29, 3, v29')
        a.e('v_add_u32 v29, 6144, v29')
        a.e('v_and_b32 v24, 2, v1')
        a.e('v_cmp_eq_u32 vcc, 0, v24')
        a.e('v_cndmask_b32 v29, v29, v23, vcc')
        a.e('v_add_u32 v246, v246, v29')
        a.e('v_bfe_u32 v29, v1, 1, 3')
        a.e('v_xor_b32 v29, v29, v27')
        a.e('v_lshlrev_b32 v28, 7, v28')
        a.e('v_lshl_add_u32 v28, v29, 4, v28')
        a.e('v_add_u32 v21, s27, v28')
        a.e('v_xor_b32 v28, 64, v28')
        a.e('v_add_u32 v22, s27, v28')
        self.gelu_consts()

    def grp(self, g, d):
        a = self.a
        if g == 0 or 'noperm' in ABL:
            a.e(f's_xor_b32 s{d}, s21, {g}')
        elif g < 8:
            a.e(f's_add_u32 s{d}, s35, {g}')
            a.e(f's_cmp_ge_u32 s{d}, 8')
            a.e(f's_cselect_b32 s29, 7, 0')
            a.e(f's_sub_u32 s{d}, s{d}, s29')
            a.e(f's_xor_b32 s{d}, s{d}, s21')
        else:
            a.e(f's_xor_b32 s{d}, s37, {g}')

    def issueA(self):
        a = self.a
        u = self.nextA
        if u >= self.limitA:
            return []
        self.nextA += 1
        seg, i, _, _, si = self.units[u]
        slot = (u % self.R) * self.SLOT
        tag = ('A', u)
        if seg == 'E':
            def e0():
                a.e(f's_add_u32 m0, s26, {slot}')
                a.vm('buffer_load_dwordx4 v20, s[40:43], s59 offen lds', tag)

            def e1():
                a.vm('buffer_load_dwordx4 v244, s[40:43], s59 offen offset:1024 lds', tag)
                a.e('s_add_u32 s59, s59, s58')
                a.e('s_cmp_eq_u32 s59, s42')
                a.e('s_cselect_b32 s59, 0, s59')
            return [e0, e1]
        sgl = ((si // 4) % 2) * 4096
        if seg == 'sp':
            def f0():
                if i % 4 == 0:
                    self.grp(i // 4, 24)
                    a.e('s_mul_i32 s24, s24, 589824')
                    a.e(f's_add_u32 s24, s24, {Z2_OFF}')
                a.e(f's_add_u32 m0, s26, {slot}')
                a.vm(f'buffer_load_dwordx4 v9, s[12:15], s24 offen {SCL} lds', tag)

            def f1():
                a.vm(f'buffer_load_dwordx4 v9, s[12:15], s24 offen offset:1024 {SCL} lds', tag)
                if i % 4 in (1, 2):
                    a.e('s_add_u32 s24, s24, 147456')

            def f2():
                a.e(f's_add_u32 m0, s30, {sgl}')
                a.vm(f'buffer_load_dwordx4 v10, s[12:15], s24 offen {SCL} lds', tag)
                a.e('s_add_u32 s24, s24, 147456')
        else:
            def f0():
                if seg == 'z1' and i == 0:
                    a.e('s_sub_u32 s24, s24, 4608')
                a.e(f's_add_u32 m0, s26, {slot}')
                a.vm('buffer_load_dwordx4 v2, s[8:11], s24 offen lds', tag)

            def f1():
                a.vm('buffer_load_dwordx4 v3, s[8:11], s24 offen offset:1024 lds', tag)
                a.e(f's_add_u32 s24, s24, {32 * 9216}')
                if i % 2 == 1:
                    a.e(f's_cmp_ge_u32 s24, {576 * 9216}')
                    a.e(f's_cselect_b32 s29, {576 * 9216}, 0')
                    a.e('s_sub_u32 s24, s24, s29')

            def f2():
                a.e(f's_mul_i32 s29, s28, {32 * 9216}')
                if si < 16:
                    a.e('s_add_u32 s29, s29, 4608')
                elif si == 16:
                    a.e('s_cmp_lt_u32 s20, 2')
                    a.e('s_cselect_b32 s44, 4608, 0')
                    a.e('s_add_u32 s29, s29, s44')
                a.e(f's_add_u32 m0, s30, {sgl}')
                a.e('s_add_u32 s28, s28, 4')
                a.vm('buffer_load_dwordx4 v4, s[8:11], s29 offen lds', tag)
                a.e('s_cmp_ge_u32 s28, 18')
                a.e('s_cselect_b32 s29, 18, 0')
                a.e('s_sub_u32 s28, s28, s29')
        return [f0, f1, f2] if si % 4 == 0 else [f0, f1]

    def issueB(self):
        a = self.a
        s = self.nextB
        if s >= len(self.stages):
            return []
        self.nextB += 1
        seg, i = self.stages[s]
        tag = ('B', s)
        sp = seg == 'sp'
        vb = 12 if sp else 5
        sr = 's[52:55]' if sp else 's[4:7]'

        def mk(j):
            def f():
                if j == 0 and sp:
                    if i % 2 == 0:
                        self.grp(i // 2, 25)
                        a.e('s_lshl_b32 s25, s25, 8')
                    else:
                        a.e('s_add_u32 s25, s25, 128')
                a.e(f's_add_u32 m0, s27, {(s % 2) * 16384}')
                a.vm(f'buffer_load_dwordx4 v{vb + j}, {sr}, s25 offen offset:{1024 * j} lds', tag)
                if j == 3 and not sp:
                    a.e('s_add_u32 s25, s25, 128')
                    a.e('s_cmp_eq_u32 s25, 1152')
                    a.e('s_cselect_b32 s25, 0, s25')
            return f
        return [mk(j) for j in range(4)]

    def nfr(self, u):
        return 6 if self.units[u][0] == 'E' else 9

    def readA(self, u, F, part):
        a = self.a
        seg, i, _, _, si = self.units[u]
        if F >= self.nfr(u):
            return
        slot = (u % self.R) * self.SLOT
        tag = ('AR', u, F)
        j = part
        d2 = vr(self.AF + 4 * F + 2 * j, 2)
        if seg == 'E':
            kk, t = F // 3, F % 3
            if t < 2:
                a.lg(f'ds_read_b64_tr_b16 {d2}, v245 offset:{slot + kk * 1024 + j * 256 + t * 8}', tag)
            else:
                a.lg(f'ds_read_b64_tr_b16 {d2}, v246 offset:{slot + kk * 1024 + j * 128}', tag)
            return
        sgl = self.SGL + ((si // 4) % 2) * 4096 + (si % 4) * 1024
        if seg == 'sp':
            if part == 0:
                a.lg(f'ds_read_b128 {vr(self.AF + 4 * F, 4)}, v19 offset:{slot + F * 1024 if F < 8 else sgl}', tag)
        elif F < 8:
            a.lg(f'ds_read_b64_tr_b16 {d2}, v{16 + F % 2} offset:{slot + j * 1024 + (F // 2) * 256}', tag)
        else:
            a.lg(f'ds_read_b64_tr_b16 {d2}, v18 offset:{sgl + j * 256}', tag)

    def readB(self, s, jj):
        a = self.a
        if jj == 0:
            a.wait_vm(('B', s))
        for e in range(2):
            a.lg(f'ds_read_b128 {vr(self.BF + 16 * (s % 2) + 8 * jj + 4 * e, 4)}, v{21 + jj} offset:{(s % 2) * 16384 + e * 2048}', ('BR', s))

    def prologue_issue(self):
        for f in self.issueB() + self.issueA() + self.issueA() + self.issueA() + self.issueB() + self.issueA():
            f()

    def run_segment(self, u0, n, own=False):
        a = self.a
        a.e(f's_setprio {opt("pg", PG)[0]}')
        s0 = self.units[u0][2]
        self.readB(s0, 0)
        self.readB(s0, 1)
        a.wait_vm(('A', u0))
        a.wait_lg('own')
        a.e('s_barrier')
        for F in range(9):
            self.readA(u0, F, 0)
            self.readA(u0, F, 1)
        for u in range(u0, u0 + n):
            last = u == u0 + n - 1
            seg, kk, s, jj, _ = self.units[u]
            sfirst = u == u0 or self.units[u - 1][2] != s
            slast = last or self.units[u + 1][2] != s
            nf = self.nfr(u)
            will_issue = self.nextA <= u + self.R - 1 and self.nextA < self.limitA
            if not last:
                a.wait_vm(('A', u + 1))
            if will_issue or (not last and not own):
                a.e('s_barrier')
            if u in self.hooks:
                self.hooks[u]()
            fill = list(self.issueA()) if self.nextA <= u + self.R - 1 else []
            if sfirst and self.nextB <= s + 2:
                fb = self.issueB()
                if fb:
                    f0 = fb[0]

                    def g0(f0=f0, s=s):
                        a.wait_lg(('BR', s))
                        f0()
                    self.pendB = [g0] + fb[1:]
            nb_now = len(self.pendB) if slast else 2
            fill += self.pendB[:nb_now]
            self.pendB = self.pendB[nb_now:]
            if nf == 9:
                slots = {1: [4], 2: [2, 6], 3: [1, 4, 7], 4: [1, 3, 5, 7], 5: [0, 2, 4, 6, 8], 6: [0, 2, 3, 5, 6, 8], 7: [0, 1, 2, 4, 5, 7, 8]}.get(len(fill), [])
            else:
                slots = {1: [3], 2: [1, 4], 3: [1, 3, 5]}.get(len(fill), [0, 1, 2, 3, 4, 5])
            for F in range(nf):
                a.wait_lg(('AR', u, F))
                if F == 0 and sfirst:
                    a.wait_lg(('BR', s))
                for e in range(2):
                    af = vr(self.AF + 4 * F, 4)
                    if seg == 'E':
                        d = vr(self.ACC1 + 8 * (F % 3) + 4 * e, 4)
                        c = '0' if (kk == 0 and F < 3) else d
                        bf = vr(self.BF + 16 * (s % 2) + 8 * (F // 3) + 4 * e, 4)
                    else:
                        d = vr((self.ACC1 if seg == 'z1' else self.ACC0) + 8 * F + 4 * e, 4)
                        c = '0' if kk == 0 else d
                        bf = vr(self.BF + 16 * (s % 2) + 8 * jj + 4 * e, 4)
                    if seg == 'z2':
                        a.e(f'v_mfma_f32_16x16x32_bf16 {d}, {bf}, {af}, {c}')
                    else:
                        a.e(f'v_mfma_f32_16x16x32_bf16 {d}, {af}, {bf}, {c}')
                    if e == 0:
                        if not last and F > 0:
                            self.readA(u + 1, F - 1, 1)
                        if fill and F in slots:
                            fill.pop(0)()
                    elif not last:
                        self.readA(u + 1, F, 0)
                        if F == nf - 1:
                            self.readA(u + 1, F, 1)
                        if nf == 6:
                            self.readA(u + 1, 6 + F // 2, F % 2)
                if not last and slast and F in ((4, 6) if nf == 9 else (1, 3)):
                    self.readB(s + 1, 0 if F in (4, 1) else 1)
            for f in fill:
                f()
        a.e(f's_setprio {opt("pg", PG)[1]}')

    def proj_store(self):
        a = self.a
        E = self.ACC1
        P = self.AF
        a.e(f's_mov_b32 s44, {hx(QSCALE)}')
        a.e(f's_mov_b32 s45, {hx(QSCALE)}')
        a.e('v_mov_b32 v24, s44')
        a.e('v_cmp_gt_u32 vcc, 32, v1')
        a.e('v_cndmask_b32 v24, 1.0, v24, vcc')
        a.e('s_lshl_b32 s46, s23, 5')
        a.e('s_add_u32 s46, s46, s22')
        a.e('s_mul_i32 s46, s46, 1152')
        a.e(f's_add_u32 s46, s46, {QF_OFF}')
        a.e(f's_add_u32 s47, s46, {16 * 1152}')
        a.e('v_lshlrev_b32 v25, 2, v1')
        for e in range(2):
            for t in range(2):
                for h in range(2):
                    r = E + 8 * t + 4 * e + 2 * h
                    a.e(f'v_pk_mul_f32 {vr(r, 2)}, {vr(r, 2)}, s[44:45]')
            r = E + 16 + 4 * e
            a.e(f'v_pk_mul_f32 {vr(r, 2)}, {vr(r, 2)}, v[24:25] op_sel_hi:[1,0]')
            for t in range(3):
                for h in range(2):
                    r = E + 8 * t + 4 * e + 2 * h
                    a.e(f'v_cvt_pk_bf16_f32 v{P + 8 * e + 2 * t + h}, v{r}, v{r + 1}')
            a.vm(f'buffer_store_dwordx4 {vr(P + 8 * e, 4)}, v19, s[12:15], s{46 + e} offen {SC}', 'pst')
        a.e('s_mov_b32 exec_hi, 0')
        for e in range(2):
            a.vm(f'buffer_store_dword v{P + 8 * e + 4}, v25, s[12:15], s{46 + e} offen offset:1024 {SC}', 'pst')
        a.e('s_mov_b64 exec, -1')
        le = a.newlabel('PJ_E')
        lv = a.newlabel('PJ_V')
        lt = a.newlabel('PJ_T')
        ls = a.newlabel('PJ_S')
        a.e('s_cmp_ge_u32 s22, 6')
        a.e(f's_cbranch_scc1 {le}')
        a.e(f's_mul_i32 s44, s23, {KV_TILE}')
        a.e(f's_add_u32 s44, s44, {KV_OFF}')
        a.e('v_and_b32 v24, 15, v1')
        a.e('v_bfe_u32 v25, v1, 4, 1')
        a.e('v_lshrrev_b32 v26, 2, v24')
        a.e('v_mul_u32_u24 v26, 168, v26')
        a.e('v_add_u32 v26, 1152, v26')
        a.e('v_and_b32 v27, 3, v1')
        a.e('s_mov_b32 exec_lo, 0')
        a.e('s_cmp_ge_u32 s22, 4')
        a.e(f's_cbranch_scc1 {lt}')
        a.e('s_cmp_ge_u32 s22, 2')
        a.e(f's_cbranch_scc1 {lv}')
        a.e('v_lshlrev_b32 v28, 4, v24')
        a.e('v_lshl_add_u32 v28, v25, 3, v28')
        a.e('s_lshl_b32 s45, s22, 9')
        a.e('s_add_u32 s44, s44, s45')
        a.e('s_add_u32 s45, s44, 256')
        a.e(f's_branch {ls}')
        a.label(lv)
        a.e('v_lshl_add_u32 v28, v27, 5, v26')
        a.e('v_lshl_add_u32 v28, v25, 3, v28')
        a.e('s_and_b32 s45, s22, 1')
        a.e('s_lshl_b32 s45, s45, 4')
        a.e('s_add_u32 s44, s44, s45')
        a.e(f's_add_u32 s45, s44, {4 * 168}')
        a.e(f's_branch {ls}')
        a.label(lt)
        lvt = a.newlabel('PJ_VT')
        a.e('s_cmp_eq_u32 s22, 5')
        a.e(f's_cbranch_scc1 {lvt}')
        a.e('v_lshlrev_b32 v28, 2, v24')
        a.e('s_mov_b32 exec_hi, 0xffff')
        for e in range(2):
            a.e(f'buffer_store_dword v{P + 8 * e + 4}, v28, s[12:15], s44 offen offset:{1024 + 64 * e} {SC}')
        a.e(f's_branch {le}')
        a.label(lvt)
        a.e('v_lshl_add_u32 v28, v27, 3, v26')
        a.e('v_add_u32 v28, 128, v28')
        a.e('v_add_u32 v29, 160, v26')
        a.e('v_cmp_eq_u32 vcc, 0, v25')
        a.e('v_cndmask_b32 v28, v29, v28, vcc')
        a.e('v_mov_b32 v29, 0x3f80')
        for e in range(2):
            a.e(f'v_cndmask_b32 v{P + 8 * e + 4}, 0, v{P + 8 * e + 4}, vcc')
            a.e(f'v_cndmask_b32 v{P + 8 * e + 5}, 0, v29, vcc')
        a.e(f's_add_u32 s45, s44, {4 * 168}')
        a.label(ls)
        for e in range(2):
            a.e(f'buffer_store_dwordx2 {vr(P + 8 * e + 4, 2)}, v28, s[12:15], s{44 + e} offen {SC}')
        a.label(le)
        a.e('s_mov_b64 exec, -1')

    def proj_signal(self):
        a = self.a
        a.wait_vm('pst')
        a.e('s_bfe_u32 s44, s22, 0x20001')
        a.e('s_lshl_b32 s44, s44, 3')
        a.e('s_bfe_u32 s45, s23, 0x30001')
        a.e('s_add_u32 s44, s44, s45')
        a.e('s_lshl_b32 s44, s44, 3')
        a.e('s_and_b32 s45, s2, 7')
        a.e('s_add_u32 s44, s44, s45')
        a.e('s_lshl_b32 s44, s44, 5')
        a.e('s_and_b32 s45, s23, 1')
        a.e('s_lshl_b32 s45, s45, 1')
        a.e('s_add_u32 s44, s44, s45')
        a.e('s_and_b32 s45, s22, 1')
        a.e('s_add_u32 s44, s44, s45')
        a.e('s_lshl_b32 s44, s44, 2')
        a.e(f's_add_u32 s44, s44, {GO_OFF}')
        set_flag(a, 44, 27)
        a.e('s_barrier')
        l = a.newlabel('PS')
        a.e('s_cmp_ge_u32 s22, 6')
        a.e(f's_cbranch_scc1 {l}')
        a.e('s_cmp_lg_u32 s20, 0')
        a.e(f's_cbranch_scc1 {l}')
        a.e('s_mul_i32 s44, s21, 6')
        a.e('s_add_u32 s44, s44, s22')
        a.e('s_lshl_b32 s44, s44, 2')
        a.e(f's_add_u32 s44, s44, {KVF_OFF}')
        a.e('v_lshlrev_b32 v27, 9, v1')
        a.e('s_mov_b64 exec, 0xff')
        a.e(f'buffer_store_dword v28, v27, s[12:15], s44 offen {SC}')
        a.e('s_mov_b64 exec, -1')
        a.label(l)

    def gelu_consts(self):
        a = self.a
        a.e(f's_mov_b32 s60, {hx(GELU_C1)}')
        a.e(f's_mov_b32 s61, {hx(GELU_C1)}')
        a.e(f'v_mov_b32 v30, {hx(GELU_C0)}')
        a.e(f'v_mov_b32 v31, {hx(GELU_C0)}')

    def z1_gelu(self, Fs=range(9)):
        a = self.a
        T = self.BF + 16
        for F in Fs:
            base = self.ACC1 + 8 * F
            gelu_group(a, [base + 2 * i for i in range(4)], T + 8 * (F % 2), 60, 30)

    def z2_gelu_publish(self):
        a = self.a
        T = self.AF + 16
        S = self.BF
        for F in range(9):
            if F == opt('psig', [5])[0]:
                self.proj_signal()
            base = self.ACC0 + 8 * F
            gelu_group(a, [base + 2 * i for i in range(4)], T + 8 * (F % 2), 60, 30)
            for i in range(4):
                y = vr(base + 2 * i, 2)
                if F == 0:
                    a.e(f'v_pk_add_f32 {vr(S + 2 * i, 2)}, {y}, 0 op_sel_hi:[1,0]')
                    a.e(f'v_pk_mul_f32 {vr(S + 8 + 2 * i, 2)}, {y}, {y}')
                else:
                    a.e(f'v_pk_add_f32 {vr(S + 2 * i, 2)}, {vr(S + 2 * i, 2)}, {y}')
                    a.e(f'v_pk_fma_f32 {vr(S + 8 + 2 * i, 2)}, {y}, {y}, {vr(S + 8 + 2 * i, 2)}')
        for b in (S, S + 8):
            for r in range(4):
                a.e(f'v_add_f32_dpp v{b + r}, v{b + r}, v{b + r} row_ror:8 row_mask:0xf bank_mask:0x3')
            for r in range(4):
                a.e(f'v_add_f32_dpp v{b + r}, v{b + r + 4}, v{b + r + 4} row_ror:8 row_mask:0xf bank_mask:0xc')
        for b in (S, S + 8):
            for r in range(2):
                a.e(f'v_add_f32_dpp v{b + r}, v{b + r}, v{b + r} row_shl:4 row_mask:0xf bank_mask:0x5')
            for r in range(2):
                a.e(f'v_add_f32_dpp v{b + r}, v{b + r + 2}, v{b + r + 2} row_shr:4 row_mask:0xf bank_mask:0xa')
        for qp in ('[1,0,3,2]', '[2,3,0,1]'):
            for r in (S, S + 1, S + 8, S + 9):
                a.e(f'v_add_f32_dpp v{r}, v{r}, v{r} quad_perm:{qp} row_mask:0xf bank_mask:0xf')
        a.e('v_and_b32 v25, 1, v1')
        a.e('v_cmp_eq_u32 vcc, 1, v25')
        G0 = S + 12
        a.e(f'v_cndmask_b32 v{G0}, v{S}, v{S + 1}, vcc')
        a.e(f'v_cndmask_b32 v{G0 + 1}, v{S + 8}, v{S + 9}, vcc')
        a.e('v_lshrrev_b32 v27, 2, v1')
        a.e('v_lshl_add_u32 v27, v27, 1, v25')
        a.e('v_lshlrev_b32 v27, 4, v27')
        a.e('s_lshl_b32 s48, s23, 13')
        a.e(f's_add_u32 s48, s48, {STATS_OFF}')
        a.e('s_lshl_b32 s49, s22, 9')
        a.e('s_add_u32 s49, s49, s48')
        a.e(f'v_mov_b32 v{G0 + 2}, s62')
        a.e(f'v_mov_b32 v{G0 + 3}, s62')
        a.e('s_mov_b32 exec_lo, 0x33333333')
        a.e('s_mov_b32 exec_hi, 0x33333333')
        a.vm(f'buffer_store_dwordx4 {vr(G0, 4)}, v27, s[12:15], s49 offen {SC}', 'st')
        a.e('s_mov_b64 exec, -1')

    def z2_gather_norm_store(self):
        a = self.a
        G = self.AF
        a.e('s_add_u32 s49, s48, 4096')

        def ld():
            for i in range(8):
                a.e(f'buffer_load_dwordx4 {vr(G + 4 * i, 4)}, v19, s[12:15], {"s48" if i < 4 else "s49"} offen offset:{1024 * (i % 4)} {SC}')
        poll(a, ld, [G + 4 * i + 2 for i in range(8)], 27)
        for i in (0, 2, 4, 6):
            a.e(f'v_pk_add_f32 {vr(G + 4 * i, 2)}, {vr(G + 4 * i, 2)}, {vr(G + 4 * i + 4, 2)}')
        a.e(f'v_pk_add_f32 {vr(G, 2)}, {vr(G, 2)}, {vr(G + 8, 2)}')
        a.e(f'v_pk_add_f32 {vr(G + 16, 2)}, {vr(G + 16, 2)}, {vr(G + 24, 2)}')
        a.e(f'v_pk_add_f32 {vr(G, 2)}, {vr(G, 2)}, {vr(G + 16, 2)}')
        a.e(f'v_mov_b32 v{G + 2}, v{G}')
        a.e(f'v_mov_b32 v{G + 3}, v{G + 1}')
        a.e(f'v_permlane32_swap_b32 v{G}, v{G + 2}')
        a.e(f'v_permlane32_swap_b32 v{G + 1}, v{G + 3}')
        a.e(f'v_pk_add_f32 {vr(G, 2)}, {vr(G, 2)}, {vr(G + 2, 2)}')
        a.e(f'v_mul_f32 v{G}, {hx(1.0 / 2304)}, v{G}')
        a.e(f'v_mul_f32 v{G + 1}, {hx(1.0 / 2304)}, v{G + 1}')
        a.e(f'v_fma_f32 v{G + 1}, -v{G}, v{G}, v{G + 1}')
        a.e(f'v_max_f32 v{G + 1}, 0, v{G + 1}')
        a.e(f'v_add_f32 v{G + 1}, {hx(1e-5)}, v{G + 1}')
        a.e(f'v_rsq_f32 v{G + 1}, v{G + 1}')
        a.e(f'v_mul_f32 v{G}, v{G}, v{G + 1}')
        a.e(f'v_sub_f32 v{G}, 0, v{G}')
        a.e('v_lshrrev_b32 v28, 4, v1')
        a.e('v_lshlrev_b32 v28, 5, v28')
        RS = self.BF
        for i in range(8):
            a.lg(f'ds_bpermute_b32 v{RS + i}, v28, v{G + 1} offset:{4 * i}', 'r')
            a.lg(f'ds_bpermute_b32 v{RS + 8 + i}, v28, v{G} offset:{4 * i}', 'r')
        a.e('s_mul_i32 s44, s23, 147456')
        a.e(f's_add_u32 s44, s44, {Z2_OFF}')
        a.e('s_lshl_b32 s45, s22, 13')
        a.e('s_add_u32 s45, s45, s44')
        a.e('s_add_u32 s47, s45, 4096')
        a.e('s_lshl_b32 s46, s22, 10')
        a.e('s_add_u32 s46, s46, s44')
        a.e(f's_add_u32 s46, s46, {128 * 1024}')
        a.wait_lg0()
        for F in range(9):
            base = self.ACC0 + 8 * F
            pk = self.ACC0 + 4 * F
            for i in range(4):
                a.e(f'v_pk_fma_f32 {vr(base + 2 * i, 2)}, {vr(base + 2 * i, 2)}, {vr(RS + 2 * i, 2)}, {vr(RS + 8 + 2 * i, 2)}')
            for i in range(4):
                a.e(f'v_cvt_pk_bf16_f32 v{pk + i}, v{base + 2 * i}, v{base + 2 * i + 1}')
            so = 's46' if F == 8 else ('s45' if F < 4 else 's47')
            a.vm(f'buffer_store_dwordx4 {vr(pk, 4)}, v19, s[12:15], {so} offen offset:{1024 * (F % 4)} {SC}', 'st')

    def own_write(self):
        a = self.a
        a.e('s_lshl_b32 s44, s20, 13')
        a.e('v_add_u32 v27, s44, v19')
        a.e('v_add_u32 v28, s30, v19')
        a.e('s_barrier')
        for F in range(9):
            pk = self.ACC0 + 4 * F
            if F < 8:
                a.lg(f'ds_write_b128 v27, {vr(pk, 4)} offset:{1024 * F}', 'own')
            else:
                a.lg(f'ds_write_b128 v28, {vr(pk, 4)} offset:4096', 'own')

    def sp_pre(self):
        a = self.a
        a.e('v_bfe_u32 v27, v1, 2, 2')
        a.e('v_lshlrev_b32 v27, 3, v27')
        a.e('v_and_b32 v28, 3, v1')
        a.e('s_lshl_b32 s44, s23, 5')
        a.e('v_add3_u32 v27, v27, v28, s44')
        a.e('v_lshlrev_b32 v28, 1, v27')
        a.e('v_lshlrev_b32 v11, 3, v27')
        a.vm('global_load_ushort v244, v28, s[56:57]', 'pre')
        a.vm('global_load_ushort v245, v28, s[56:57] offset:8', 'pre')
        self.gate_loads(True)

    def gate_loads(self, track=False):
        a = self.a
        a.e(f's_mov_b32 s44, {GATE_OFF}')
        for e in range(2):
            t = f'buffer_load_dwordx2 {vr(246 + 2 * e, 2)}, v11, s[12:15], s44 offen offset:{32 * e} {SC}'
            a.vm(t, 'pre') if track else a.e(t)

    def sp_epilogue(self):
        a = self.a
        a.wait_vm('pre')
        poll(a, self.gate_loads, [247, 249], 27, first_done=True)
        for e in range(2):
            a.e(f'v_sub_f32 v{246 + 2 * e}, 1.0, v{246 + 2 * e}')
            a.e(f'v_lshlrev_b32 v{244 + e}, 16, v{244 + e}')
            a.e(f'v_mul_f32 v{250 + 2 * e}, v{244 + e}, v{246 + 2 * e}')
        a.e('s_mul_i32 s44, s23, 180')
        a.e('s_lshr_b32 s45, s22, 2')
        a.e('s_mul_i32 s45, s45, 18')
        a.e('s_add_u32 s44, s44, s45')
        a.e('s_lshl_b32 s44, s44, 10')
        a.e(f's_add_u32 s44, s44, {UF_OFF + 18 * 1024}')
        a.e('s_and_b32 s45, s22, 3')
        a.e('s_lshl_b32 s46, s45, 12')
        a.e('s_add_u32 s46, s46, s44')
        a.e(f's_add_u32 s47, s46, {90 * 1024}')
        a.e('s_lshr_b32 s48, s45, 1')
        a.e('s_lshl_b32 s48, s48, 10')
        a.e('s_add_u32 s48, s48, s44')
        a.e('s_and_b32 s49, s45, 1')
        a.e('s_lshl_b32 s49, s49, 3')
        a.e('s_add_u32 s48, s48, s49')
        a.e(f's_add_u32 s48, s48, {16 * 1024}')
        a.e(f's_add_u32 s49, s48, {90 * 1024}')
        idx = 0
        for m in range(5):
            for e in range(2):
                pk = self.AF + 4 * idx
                idx += 1
                Fs = (2 * m, 2 * m + 1) if m < 4 else (8,)
                prs = [(self.ACC0 + 8 * F + 4 * e + 2 * i, self.ACC1 + 8 * F + 4 * e + 2 * i) for F in Fs for i in range(2)]
                for g, z in prs:
                    a.e(f'v_pk_fma_f32 {vr(g, 2)}, {vr(g, 2)}, {vr(246 + 2 * e, 2)}, {vr(250 + 2 * e, 2)} op_sel_hi:[1,0,0]')
                for g, z in prs:
                    a.e(f'v_pk_mul_f32 {vr(g, 2)}, {vr(g, 2)}, {vr(z, 2)}')
                for i, (g, z) in enumerate(prs):
                    a.e(f'v_cvt_pk_bf16_f32 v{pk + i}, v{g}, v{g + 1}')
                if m < 4:
                    a.vm(f'buffer_store_dwordx4 {vr(pk, 4)}, v19, s[12:15], s{46 + e} offen offset:{1024 * m} {SC}', 'st')
                else:
                    a.vm(f'buffer_store_dwordx2 {vr(pk, 2)}, v19, s[12:15], s{48 + e} offen {SC}', 'st')


def write_nonce(a):
    l = a.newlabel('NOW')
    a.e('s_or_b32 s44, s3, s20')
    a.e('s_cmp_lg_u32 s44, 0')
    a.e(f's_cbranch_scc1 {l}')
    a.e('s_memrealtime s[44:45]')
    a.e('v_mov_b32 v29, 0')
    a.e('s_waitcnt lgkmcnt(0)')
    a.e('s_or_b32 s44, s44, 1')
    a.e('v_mov_b32 v28, s44')
    a.e(f'global_store_dword v29, v28, s[16:17] {SC}')
    a.label(l)


KVBUF = 40960
M_OFFSET = 64.0


class ATT:
    SB = 16
    OB = 48
    QF = 80
    KF = 96
    VF = 112
    PF = 128
    XF = 136
    WF = 208
    WQS = 16

    def __init__(self, a):
        self.a = a

    def setup(self, sid):
        a = self.a
        a.e(f's_load_dwordx2 s[4:5], s[0:1], {A_X}')
        a.e(f's_load_dwordx4 s[16:19], s[0:1], {A_DBG}')
        a.e(f's_load_dwordx4 s[56:59], s[0:1], {A_WOUT}')
        a.e(f's_load_dwordx2 s[36:37], s[0:1], {A_WO}')
        a.e('v_lshrrev_b32 v1, 6, v0')
        a.e('v_readfirstlane_b32 s20, v1')
        a.e('v_and_b32 v1, 63, v0')
        a.e(f's_and_b32 s24, s{sid}, 3')
        a.e(f's_lshr_b32 s25, s{sid}, 3')
        a.e('s_lshl_b32 s21, s24, 3')
        a.e('s_and_b32 s23, s25, 7')
        a.e('s_add_u32 s21, s21, s23')
        a.e(f's_and_b32 s22, s{sid}, 4')
        a.e('s_lshr_b32 s23, s25, 3')
        a.e('s_add_u32 s22, s22, s23')
        a.e('s_lshl_b32 s23, s21, 2')
        a.e('s_add_u32 s23, s23, s20')
        a.e('s_lshr_b32 s44, s23, 1')
        a.e('s_lshl_b32 s44, s44, 5')
        a.e('s_and_b32 s45, s23, 1')
        a.e('s_lshl_b32 s45, s45, 2')
        a.e('s_add_u32 s44, s44, s45')
        a.e('v_bfe_u32 v3, v1, 2, 2')
        a.e('v_lshlrev_b32 v3, 3, v3')
        a.e('v_and_b32 v10, 3, v1')
        a.e('v_add3_u32 v3, v3, v10, s44')
        a.e('v_lshlrev_b32 v3, 3, v3')
        a.e('s_mul_i32 s26, s20, 10240')
        a.e('s_lshl_b32 s27, s25, 2')
        a.e('s_add_u32 s27, s27, s20')
        if 'nocodepf' not in ABL:
            a.e('s_getpc_b64 s[46:47]')
            a.e('s_and_b32 s46, s46, 0xffffff00')
            a.e('s_mul_i32 s45, s27, 5')
            a.e('v_min_u32 v10, 4, v1')
            a.e('v_add_u32 v10, s45, v10')
            a.e('v_min_u32 v10, CODE_LINES, v10')
            a.e('v_lshlrev_b32 v10, 7, v10')
            a.e('global_load_dword v255, v10, s[46:47]')
        a.e('v_lshlrev_b32 v10, 4, v1')
        a.e('s_waitcnt lgkmcnt(0)')
        a.e('s_mov_b32 s12, s18')
        a.e('s_mov_b32 s13, s19')
        srd(a, 12, WS_SIZE)

    def nonce(self):
        a = self.a
        a.e('s_waitcnt vmcnt(0)')
        a.e('v_mov_b32 v2, 0')
        a.e(f'global_load_dword v4, v2, s[16:17] {SC}')
        a.e('s_waitcnt vmcnt(0)')
        get_nonce(a, 2, 4)

    def page_touch(self):
        a = self.a
        l = a.newlabel('PT')
        a.e('s_cmp_lg_u32 s20, 1')
        a.e(f's_cbranch_scc1 {l}')
        a.e(f's_load_dwordx2 s[44:45], s[0:1], {A_WSP}')
        a.e(f's_load_dwordx2 s[46:47], s[0:1], {A_OUT}')
        a.e('v_lshlrev_b32 v2, 19, v1')
        a.e('buffer_load_dword v255, v2, s[12:15], 0 offen')
        a.e('v_min_u32 v4, 15, v1')
        a.e('v_lshlrev_b32 v4, 19, v4')
        a.e('v_min_u32 v5, 4, v1')
        a.e('v_lshlrev_b32 v5, 19, v5')
        a.e('s_waitcnt lgkmcnt(0)')
        a.e('global_load_dword v255, v4, s[44:45]')
        a.e('global_load_dword v255, v5, s[46:47]')
        a.e('global_load_dword v255, v5, s[56:57]')
        a.label(l)

    SV = 140

    def side(self, part):
        a = self.a
        lg = a.newlabel('SJ_G')
        le = a.newlabel('SJ_E')
        a.e('s_cmp_eq_u32 s20, 3')
        a.e(f's_cbranch_scc1 {lg}')
        a.e('s_cmp_ge_u32 s63, 720')
        a.e(f's_cbranch_scc1 {le}')
        self.retile(part)
        a.e(f's_branch {le}')
        a.label(lg)
        self.gate(part)
        a.label(le)

    def gate(self, part):
        a = self.a
        V = self.SV
        X, W = V + 8, V + 44
        if part == 0:
            a.e(f'v_lshrrev_b32 v{V}, 3, v1')
            a.e('s_lshl_b32 s44, s3, 3')
            a.e(f'v_add_u32 v{V}, s44, v{V}')
            a.e(f'v_and_b32 v{V + 1}, 7, v1')
            a.e(f'v_lshlrev_b32 v{V + 1}, 4, v{V + 1}')
            a.e(f'v_mul_u32_u24 v{V + 2}, 1152, v{V}')
            a.e(f'v_add_u32 v{V + 2}, v{V + 2}, v{V + 1}')
            for i in range(9):
                a.e(f'global_load_dwordx4 {vr(X + 4 * i, 4)}, v{V + 2}, s[4:5] offset:{128 * i}')
                a.e(f'global_load_dwordx4 {vr(W + 4 * i, 4)}, v{V + 1}, s[58:59] offset:{128 * i}')
        elif part == 1:
            A0, A1, T0, T1 = V + 4, V + 5, V + 6, V + 7
            a.e(f'v_mov_b32 v{A0}, 0')
            a.e(f'v_mov_b32 v{A1}, 0')
            for i in range(36):
                a.e(f'v_lshlrev_b32 v{T0}, 16, v{X + i}')
                a.e(f'v_lshlrev_b32 v{T1}, 16, v{W + i}')
                a.e(f'v_and_b32 v{X + i}, 0xffff0000, v{X + i}')
                a.e(f'v_and_b32 v{W + i}, 0xffff0000, v{W + i}')
                a.e(f'v_fmac_f32 v{A0}, v{T0}, v{T1}')
                a.e(f'v_fmac_f32 v{A1}, v{X + i}, v{W + i}')
            a.e(f'v_add_f32 v{A0}, v{A0}, v{A1}')
            for m in ('quad_perm:[1,0,3,2]', 'quad_perm:[2,3,0,1]', 'row_half_mirror'):
                a.e(f'v_add_f32_dpp v{A0}, v{A0}, v{A0} {m} row_mask:0xf bank_mask:0xf')
            a.e(f'v_mul_f32 v{A0}, {hx(-1.4426950408889634)}, v{A0}')
            a.e(f'v_exp_f32 v{A0}, v{A0}')
            a.e(f'v_add_f32 v{A0}, 1.0, v{A0}')
            a.e(f'v_rcp_f32 v{A0}, v{A0}')
            a.e(f'v_mov_b32 v{A1}, s62')
            a.e(f'v_lshlrev_b32 v{V}, 3, v{V}')
            a.e(f's_mov_b32 s44, {GATE_OFF}')
            a.e('s_mov_b32 exec_lo, 0x01010101')
            a.e('s_mov_b32 exec_hi, 0x01010101')
            a.e(f'buffer_store_dwordx2 {vr(A0, 2)}, v{V}, s[12:15], s44 offen {SC}')
            a.e('s_mov_b64 exec, -1')

    def retile_setup(self):
        a = self.a
        V = self.SV
        a.e('s_mul_i32 s63, s3, 3')
        a.e('s_add_u32 s63, s63, s20')
        a.e('s_and_b32 s64, s63, 7')
        a.e('s_lshr_b32 s65, s63, 3')
        a.e('s_cmp_lt_u32 s65, 18')
        a.e('s_cselect_b32 s40, s36, s56')
        a.e('s_cselect_b32 s41, s37, s57')
        a.e(f's_mov_b32 s42, {2304 * 1152}')
        a.e(f's_cselect_b32 s42, {576 * 1152}, s42')
        a.e('s_mov_b32 s43, 0x00020000')
        a.e('s_sub_u32 s44, s65, 18')
        a.e('s_mul_i32 s45, s44, 57')
        a.e('s_lshr_b32 s45, s45, 10')
        a.e('s_mul_i32 s46, s45, 18')
        a.e('s_sub_u32 s44, s44, s46')
        a.e('s_lshl_b32 s46, s45, 9')
        a.e('s_lshl_b32 s47, s45, 6')
        a.e(f's_add_u32 s47, s47, {2048 - 512}')
        a.e('s_cmp_lt_u32 s44, 16')
        a.e('s_cselect_b32 s46, s46, s47')
        a.e('s_lshl_b32 s44, s44, 5')
        a.e('s_add_u32 s44, s44, s46')
        a.e('s_mov_b32 s45, 4')
        a.e('s_mov_b32 s46, 8')
        a.e('s_mov_b32 s47, 16')
        a.e('s_mov_b32 s48, 2')
        a.e('s_sub_u32 s49, s65, 16')
        a.e('s_mul_i32 s49, s49, 288')
        a.e('s_add_u32 s49, s49, 16')
        a.e('s_cmp_lt_u32 s65, 18')
        a.e('s_cselect_b32 s44, s49, s44')
        a.e('s_cselect_b32 s45, 72, s45')
        a.e('s_cselect_b32 s46, 144, s46')
        a.e('s_cselect_b32 s47, 36, s47')
        a.e('s_cselect_b32 s48, 18, s48')
        a.e('s_mul_i32 s49, s65, 36')
        a.e('s_cmp_lt_u32 s65, 16')
        a.e('s_cselect_b32 s44, s49, s44')
        a.e('s_cselect_b32 s45, 18, s45')
        a.e('s_cselect_b32 s46, 4, s46')
        a.e('s_cselect_b32 s47, 8, s47')
        a.e('s_cselect_b32 s48, 2, s48')
        for r in (44, 45, 46, 47):
            a.e(f's_mul_i32 s{r}, s{r}, 1152')
        a.e('s_mul_i32 s49, s64, 144')
        a.e('s_add_u32 s66, s44, s49')
        a.e('s_add_u32 s67, s66, s47')
        for i in range(2):
            a.e(f's_add_u32 s{68 + i}, s{66 + i}, s45')
        for i in range(4):
            a.e(f's_add_u32 s{70 + i}, s{66 + i}, s46')
        a.e(f'v_lshrrev_b32 v{V}, 5, v1')
        a.e(f'v_mul_lo_u32 v{V}, v{V}, s48')
        a.e('v_bfe_u32 v5, v1, 4, 1')
        a.e(f'v_add_u32 v{V}, v{V}, v5')
        a.e(f'v_mul_u32_u24 v{V}, 1152, v{V}')
        a.e('v_and_b32 v5, 15, v1')
        a.e('v_min_u32 v5, 8, v5')
        a.e(f'v_lshl_add_u32 v{V}, v5, 4, v{V}')
        a.e('v_lshrrev_b32 v5, 4, v1')
        a.e('v_bfe_u32 v6, v1, 2, 2')
        a.e('v_lshlrev_b32 v7, 11, v5')
        a.e('v_lshl_add_u32 v7, v6, 8, v7')
        a.e(f's_add_u32 s44, s26, {KVBUF}')
        a.e('v_add_u32 v7, s44, v7')
        a.e('v_and_b32 v6, 3, v1')
        a.e(f'v_lshl_add_u32 v{V + 2}, v6, 3, v7')
        a.e(f'v_lshl_add_u32 v{V + 1}, v6, 4, v7')
        a.e('v_and_b32 v6, 7, v1')
        a.e('v_lshl_add_u32 v5, v5, 3, v6')
        a.e('v_lshlrev_b32 v5, 4, v5')
        a.e(f'v_add_u32 v{V + 3}, 4096, v5')

    def retile(self, part):
        a = self.a
        V = self.SV
        F = V + 8
        if part == 0:
            for i in range(8):
                a.e(f's_add_u32 m0, s26, {KVBUF + 1024 * i}')
                a.e(f'buffer_load_dwordx4 v{V}, s[40:43], s{66 + i} offen lds')
        elif part == 1:
            for nt in range(5):
                for j in range(2):
                    if nt < 4:
                        a.e(f'ds_read_b64_tr_b16 {vr(F + 4 * nt + 2 * j, 2)}, v{V + 1} offset:{64 * (nt // 2) + 8 * (nt % 2) + 1024 * j}')
                    else:
                        a.e(f'ds_read_b64_tr_b16 {vr(F + 4 * nt + 2 * j, 2)}, v{V + 2} offset:{128 + 1024 * j}')
            a.e('s_mul_i32 s44, s64, 90')
            a.e('s_add_u32 s44, s44, s65')
            a.e('s_mul_i32 s44, s44, 4608')
            a.e(f's_add_u32 s44, s44, {W3_OFF}')
            a.e('s_waitcnt lgkmcnt(0)')
            for nt in range(4):
                a.e(f'buffer_store_dwordx4 {vr(F + 4 * nt, 4)}, v10, s[12:15], s44 offen offset:{1024 * nt} {SC}')
            a.e('s_mov_b32 exec_lo, 0x00ff00ff')
            a.e('s_mov_b32 exec_hi, 0x00ff00ff')
            a.e(f'buffer_store_dwordx4 {vr(F + 16, 4)}, v{V + 3}, s[12:15], s44 offen {SC}')
            a.e('s_mov_b64 exec, -1')
        else:
            a.e('s_lshl_b32 s44, s64, 7')
            a.e('s_add_u32 s44, s44, s65')
            a.e('s_lshl_b32 s44, s44, 2')
            a.e(f's_add_u32 s44, s44, {FW3_OFF}')
            set_flag(a, 44, V + 4)

    def issue_kv(self, buf_s=None, buf=None, flags=''):
        a = self.a
        for g in range(3):
            if buf_s is not None:
                a.e(f's_add_u32 m0, s{buf_s}, {4096 * g}')
            else:
                a.e(f's_add_u32 m0, s31, {buf * KVBUF + 4096 * g}')
            for i in range(4 if g < 2 else 2):
                a.vm(f'buffer_load_dwordx4 v15, s[12:15], s30 offen offset:{1024 * i} {flags} lds', 'kv')
            a.e('s_add_u32 s30, s30, 4096')
        a.e(f's_add_u32 s30, s30, {16 * KV_TILE - 3 * 4096}')

    def q_phase(self):
        a = self.a
        a.e('s_mov_b32 s31, s26')
        a.e('v_add_u32 v15, s31, v10')
        a.e(f's_mov_b32 s30, {KV_OFF}')
        l = a.newlabel('KVR')
        a.e('s_cmp_lg_u32 s20, 0')
        a.e(f's_cbranch_scc1 {l}')
        self.nonce()
        a.e('v_mov_b32 v4, s62')
        a.e('ds_write_b32 v2, v4')
        a.e('s_lshl_b32 s44, s3, 7')
        a.e(f's_add_u32 s44, s44, {GO_OFF}')
        a.e('v_and_b32 v2, 3, v1')
        a.e('v_lshlrev_b32 v2, 2, v2')
        poll(a, lambda: a.e(f'buffer_load_dword v40, v2, s[12:15], s44 offen {SC}'), [40], 42, sleep=8)
        a.e('s_and_b32 s44, s3, 7')
        a.e('s_lshl_b32 s44, s44, 9')
        a.e(f's_add_u32 s44, s44, {KVF_OFF}')
        a.e('v_min_u32 v2, 47, v1')
        a.e('v_lshlrev_b32 v2, 3, v2')
        poll(a, lambda: a.e(f'buffer_load_dwordx2 v[40:41], v2, s[12:15], s44 offen {SC}'), [40, 41], 42, sleep=opt('ksl', [6])[0])
        a.e('s_waitcnt lgkmcnt(0)')
        a.label(l)
        a.e('s_barrier')
        a.e('v_mov_b32 v2, 0')
        a.e('ds_read_b32 v4, v2')
        a.e('s_waitcnt lgkmcnt(0)')
        a.e('v_readfirstlane_b32 s62, v4')
        a.e('s_barrier')
        stamp(a, 6)
        a.vmq = []
        a.e('s_lshl_b32 s44, s23, 3')
        a.e('s_add_u32 s44, s44, s22')
        a.e('s_mul_i32 s44, s44, 2304')
        a.e(f's_add_u32 s44, s44, {QF_OFF}')
        a.e('v_and_b32 v11, 31, v1')
        a.e('v_lshlrev_b32 v11, 2, v11')
        a.e('v_add_u32 v11, 1024, v11')
        for p in range(2):
            a.vm(f'buffer_load_dwordx4 {vr(self.QF + 8 * p, 4)}, v10, s[12:15], s44 offen offset:{1152 * p} {SCL}', 'q')
            a.vm(f'buffer_load_dword v{self.PF + p}, v11, s[12:15], s44 offen offset:{1152 * p} {SCL}', 'q')
        self.issue_kv(buf=1, flags=SCL)
        self.issue_kv(buf=0, flags=SCL)
        for p in range(2):
            for i in (5, 6, 7):
                a.e(f'v_mov_b32 v{self.QF + 8 * p + i}, 0')
            a.e(f'v_mov_b32 v{self.KF + 8 * p + 5}, 0x3f803f80')
            a.e(f'v_mov_b32 v{self.KF + 8 * p + 6}, 0x3f80')
            a.e(f'v_mov_b32 v{self.KF + 8 * p + 7}, 0')
        a.e('v_bfe_u32 v2, v1, 2, 2')
        a.e('v_and_b32 v4, 3, v1')
        a.e('v_lshlrev_b32 v12, 5, v2')
        a.e('v_lshl_add_u32 v12, v4, 3, v12')
        a.e('v_lshlrev_b32 v2, 3, v2')
        a.e('v_add_u32 v2, 128, v2')
        a.e('v_mov_b32 v13, 160')
        a.e('v_cmp_eq_u32 vcc, 0, v4')
        a.e('v_cndmask_b32 v2, v13, v2, vcc')
        a.e('v_and_b32 v4, 16, v1')
        a.e('v_cmp_eq_u32 vcc, 0, v4')
        a.e('v_cndmask_b32 v12, v2, v12, vcc')
        a.e('v_lshrrev_b32 v2, 5, v1')
        a.e('v_mul_u32_u24 v2, 168, v2')
        a.e('v_add_u32 v12, v12, v2')
        a.e('v_add_u32 v12, 1152, v12')
        a.wait_vm('q')
        a.e('v_cmp_gt_u32 vcc, 32, v1')
        for p in range(2):
            a.e(f'v_cndmask_b32 v{self.QF + 8 * p + 4}, 0, v{self.PF + p}, vcc')

    def readK(self, j):
        a = self.a
        b = self.KF + 8 * (j % 2)
        off = (j % 16) * KV_TILE
        a.lg(f'ds_read_b128 {vr(b, 4)}, v5 offset:{off}', ('K', j))
        a.lg(f'ds_read_b32 v{b + 4}, v6 offset:{off}', ('K', j))

    def readV(self, j, m):
        a = self.a
        b = self.VF + 8 * (j % 2)
        off = (j % 16) * KV_TILE
        for jj in range(2):
            a.lg(f'ds_read_b64_tr_b16 {vr(b + 4 * m + 2 * jj, 2)}, v7 offset:{off + (4 * m + 2 * jj) * 168}', ('V', j))

    def S(self, n, part):
        j, qt = n // 2, n % 2
        d = vr(self.SB + 16 * (n % 2), 16)
        k = self.KF + 8 * (j % 2) + 4 * part
        q = self.QF + 8 * qt + 4 * part
        self.a.e(f'v_mfma_f32_32x32x16_bf16 {d}, {vr(k, 4)}, {vr(q, 4)}, {"0" if part == 0 else d}')

    def PV(self, n, m):
        j, qt = n // 2, n % 2
        d = vr(self.OB + 16 * qt, 16)
        self.a.e(f'v_mfma_f32_32x32x16_bf16 {d}, {vr(self.VF + 8 * (j % 2) + 4 * m, 4)}, {vr(self.PF + 4 * m, 4)}, {d}')

    def set_m(self, qt, vm, add):
        a = self.a
        q = self.QF + 8 * qt
        a.e(f'v_sub_f32 v2, {hx(-add)}, v{vm}')
        a.e('v_and_b32 v4, 0xffff0000, v2')
        a.e('v_sub_f32 v2, v2, v4')
        a.e('v_and_b32 v13, 0xffff0000, v2')
        a.e('v_sub_f32 v2, v2, v13')
        a.e('v_lshrrev_b32 v4, 16, v4')
        a.e('v_or_b32 v4, v4, v13')
        a.e('v_lshrrev_b32 v2, 16, v2')
        a.e('v_cmp_gt_u32 vcc, 32, v1')
        a.e(f'v_cndmask_b32 v{q + 5}, 0, v4, vcc')
        a.e(f'v_cndmask_b32 v{q + 6}, 0, v2, vcc')

    def max16(self, b, dst, first):
        a = self.a
        if first:
            a.e(f'v_max3_f32 v{dst}, v{b}, v{b + 1}, v{b + 2}')
            a.e(f'v_max_f32 v{dst}, v{dst}, v{b + 3}')
            r = range(4, 16, 2)
        else:
            r = range(0, 16, 2)
        for i in r:
            a.e(f'v_max3_f32 v{dst}, v{b + i}, v{b + i + 1}, v{dst}')

    def halves_max(self, r):
        a = self.a
        a.e(f'v_mov_b32 v2, v{r}')
        a.e(f'v_permlane32_swap_b32 v{r}, v2')
        a.e(f'v_max_f32 v{r}, v{r}, v2')

    def main(self, flags=''):
        a = self.a
        L_PASS = a.newlabel('ATT_PASS')
        L_LOOP = a.newlabel('ATT_LOOP')
        L_NOKV = a.newlabel('ATT_NOKV')
        L_FIN = a.newlabel('ATT_FIN')
        a.e('s_mov_b32 s33, 0')
        a.e('s_mov_b32 s39, 0')
        for i in range(3):
            a.e(f'v_add_u32 v{5 + i}, {KVBUF}, v{10 + i}')
        a.e('s_waitcnt vmcnt(10)')
        a.vmq = a.vmq[-10:]
        a.e('s_barrier')
        self.readK(0)
        a.wait_lg0()
        for qt in range(2):
            self.S(qt, 0)
            self.S(qt, 1)
        for qt in range(2):
            self.max16(self.SB + 16 * qt, 8 + qt, True)
            self.halves_max(8 + qt)
            self.set_m(qt, 8 + qt, M_OFFSET)
        a.label(L_PASS)
        self.readK(0)
        self.readK(1)
        self.readV(0, 0)
        self.readV(0, 1)
        for i in range(32):
            a.e(f'v_mov_b32 v{self.OB + i}, 0')
        for i in range(4):
            a.e(f'v_mov_b32 v{self.PF + 4 + i}, 0')
            a.e(f'v_mov_b32 v{self.VF + 12 + i}, 0')
        a.e('s_mov_b32 s34, 0')
        a.e(f's_add_u32 s35, s31, {KVBUF}')
        a.e(f's_mov_b32 s37, {-KVBUF & 0xffffffff}')
        a.wait_lg0()
        self.S(0, 0)
        self.S(0, 1)
        a.e('s_nop 7')
        a.label(L_LOOP)
        a.wait_lg0()
        if opt('gate'):
            lng = a.newlabel('ATT_NG')
            a.e(f's_cmp_lg_u32 s34, {opt("gate")[0]}')
            a.e(f's_cbranch_scc1 {lng}')
            a.e('s_lshl_b32 s44, s3, 7')
            a.e(f's_add_u32 s44, s44, {PROG_OFF}')
            a.e('v_mov_b32 v2, 0')
            poll(a, lambda: a.e(f'buffer_load_dword v4, v2, s[12:15], s44 offen {SC}'), [4], 8, sleep=8)
            if 'gateprio' in ABL:
                a.e('s_setprio 1')
            a.label(lng)
        for n in range(32):
            j, qt = n // 2, n % 2
            sb = self.SB + 16 * (n % 2)
            if n == 29:
                a.e('s_waitcnt vmcnt(0) lgkmcnt(0)')
                a.vmq = []
                a.lgq = []
                a.e('s_barrier')
                for i in range(3):
                    a.e(f'v_add_u32 v{5 + i}, s37, v{5 + i}')
                a.e('s_cmp_ge_u32 s34, 2')
                a.e(f's_cbranch_scc1 {L_NOKV}')
                ls0 = a.newlabel('ATT_S0')
                ls2 = a.newlabel('ATT_S2')
                a.e('s_cmp_eq_u32 s39, 0')
                a.e(f's_cbranch_scc1 {ls0}')
                self.issue_kv(buf_s=35, flags=flags)
                a.e('s_cmp_lg_u32 s39, 2')
                a.e(f's_cbranch_scc1 {L_NOKV}')
                self.side(2)
                a.e('s_mov_b32 s39, 3')
                a.e(f's_branch {L_NOKV}')
                a.label(ls0)
                self.side(0)
                a.e('s_mov_b32 s39, 1')
                a.label(L_NOKV)
                self.gate_load()
                a.e('s_add_u32 s35, s35, s37')
                a.e('s_sub_u32 s37, 0, s37')
            if n == 8:
                ls1 = a.newlabel('ATT_S1')
                a.e('s_cmp_lg_u32 s39, 1')
                a.e(f's_cbranch_scc1 {ls1}')
                a.e('s_waitcnt vmcnt(0)')
                self.side(1)
                self.issue_kv(buf=1, flags=flags)
                a.e('s_mov_b32 s39, 2')
                a.label(ls1)
            if qt == 1:
                a.wait_lg(('K', j + 1))
            self.S(n + 1, 0)
            for i in range(0, 4):
                a.e(f'v_exp_f32 v{sb + i}, v{sb + i}')
            self.PV(n - 1, 1)
            if qt == 0:
                self.readV(j + 1, 0)
            else:
                self.readK(j + 2)
            for i in range(4, 8):
                a.e(f'v_exp_f32 v{sb + i}, v{sb + i}')
            self.S(n + 1, 1)
            for i in range(4):
                a.e(f'v_cvt_pk_bf16_f32 v{self.PF + i}, v{sb + 2 * i}, v{sb + 2 * i + 1}')
            for i in range(8, 12):
                a.e(f'v_exp_f32 v{sb + i}, v{sb + i}')
            if qt == 0:
                a.wait_lg(('V', j))
            self.PV(n, 0)
            if qt == 0:
                self.readV(j + 1, 1)
            for i in range(12, 16):
                a.e(f'v_exp_f32 v{sb + i}, v{sb + i}')
            for i in range(4, 8):
                a.e(f'v_cvt_pk_bf16_f32 v{self.PF + i}, v{sb + 2 * i}, v{sb + 2 * i + 1}')
        a.e('s_add_u32 s34, s34, 1')
        a.e('s_cmp_lt_u32 s34, 4')
        a.e(f's_cbranch_scc1 {L_LOOP}')
        self.PV(31, 1)
        a.wait_all()
        a.e('s_cmp_lg_u32 s33, 0')
        a.e(f's_cbranch_scc1 {L_FIN}')
        a.e(f'v_max3_f32 v2, |v{self.OB}|, |v{self.OB + 1}|, |v{self.OB + 2}|')
        regs = [self.OB + i for i in range(3, 11)] + [self.OB + 16 + i for i in range(11)] + [self.OB + 16]
        for i in range(0, len(regs), 2):
            a.e(f'v_max3_f32 v2, |v{regs[i]}|, |v{regs[i + 1]}|, v2')
        a.e(f's_mov_b32 s44, {hx(2.0 ** 110)}')
        a.e('v_cmp_nlt_f32 vcc, v2, s44') if False else a.e('v_cmp_ngt_f32 vcc, s44, v2')
        a.e(f'v_add_f32 v4, v{self.OB + 10}, v{self.OB + 26}')
        a.e('v_cmp_u_f32 s[46:47], v4, v4')
        a.e('s_or_b64 vcc, vcc, s[46:47]')
        a.e('s_cmp_lg_u64 vcc, 0')
        a.e('s_cselect_b32 s44, 1, 0')
        a.e('v_mov_b32 v2, s44')
        a.e('s_lshl_b32 s45, s20, 2')
        a.e(f's_add_u32 s45, s45, {16 * KV_TILE}')
        a.e('v_mov_b32 v4, s45')
        a.e('ds_write_b32 v4, v2')
        a.e(f'v_mov_b32 v4, {16 * KV_TILE}')
        a.e('s_waitcnt lgkmcnt(0)')
        a.e('s_barrier')
        a.e(f'ds_read_b128 {vr(self.PF, 4)}, v4')
        a.e('s_waitcnt lgkmcnt(0)')
        a.e(f'v_or3_b32 v2, v{self.PF}, v{self.PF + 1}, v{self.PF + 2}')
        a.e(f'v_or_b32 v2, v2, v{self.PF + 3}')
        a.e('v_readfirstlane_b32 s44, v2')
        a.e('s_cmp_eq_u32 s44, 0')
        a.e(f's_cbranch_scc1 {L_FIN}')
        L_MC = a.newlabel('ATT_MC')
        L_MT = a.newlabel('ATT_MT')
        a.e('s_mov_b32 s33, 1')
        for p in range(2):
            a.e(f'v_mov_b32 v{self.QF + 8 * p + 5}, 0')
            a.e(f'v_mov_b32 v{self.QF + 8 * p + 6}, 0')
            a.e(f'v_mov_b32 v{8 + p}, 0xff7fffff')
        a.e(f's_mov_b32 s30, {KV_OFF}')
        a.e('s_mov_b32 s34, 0')
        a.label(L_MC)
        a.e('s_barrier')
        self.issue_kv(buf=0, flags=flags)
        a.e('v_mov_b32 v5, v10')
        a.e('v_mov_b32 v6, v11')
        a.e('s_mov_b32 s36, 0')
        a.wait_vm0()
        a.e('s_barrier')
        a.label(L_MT)
        self.readK(0)
        a.wait_lg0()
        for qt in range(2):
            self.S(qt, 0)
            self.S(qt, 1)
        a.e(f'v_add_u32 v5, {KV_TILE}, v5')
        a.e(f'v_add_u32 v6, {KV_TILE}, v6')
        for qt in range(2):
            self.max16(self.SB + 16 * qt, 8 + qt, False)
        a.e('s_add_u32 s36, s36, 1')
        a.e('s_cmp_lt_u32 s36, 16')
        a.e(f's_cbranch_scc1 {L_MT}')
        a.e('s_add_u32 s34, s34, 1')
        a.e('s_cmp_lt_u32 s34, 4')
        a.e(f's_cbranch_scc1 {L_MC}')
        for qt in range(2):
            self.halves_max(8 + qt)
            self.set_m(qt, 8 + qt, 0.0)
        a.e('s_barrier')
        a.e(f's_mov_b32 s30, {KV_OFF}')
        self.issue_kv(buf=1, flags=flags)
        self.issue_kv(buf=0, flags=flags)
        for i in range(3):
            a.e(f'v_add_u32 v{5 + i}, {KVBUF}, v{10 + i}')
        a.e('s_waitcnt vmcnt(10)')
        a.e('s_barrier')
        a.e(f's_branch {L_PASS}')
        a.label(L_FIN)
        a.vmq = []
        a.lgq = []

    def epilogue(self, flags=''):
        a = self.a
        a.e('s_mul_i32 s44, s23, 90')
        a.e('s_lshl_b32 s45, s22, 1')
        a.e('s_add_u32 s45, s45, s44')
        a.e('s_lshl_b32 s45, s45, 10')
        a.e(f's_add_u32 s45, s45, {UF_OFF}')
        a.e('s_lshr_b32 s46, s22, 2')
        a.e('s_add_u32 s46, s46, s44')
        a.e('s_lshl_b32 s46, s46, 10')
        a.e('s_and_b32 s47, s22, 3')
        a.e('s_lshl_b32 s47, s47, 8')
        a.e('s_add_u32 s46, s46, s47')
        a.e(f's_add_u32 s46, s46, {UF_OFF + 16 * 1024}')
        a.e('v_and_b32 v4, 15, v1')
        a.e('v_lshlrev_b32 v4, 4, v4')
        a.e('v_bfe_u32 v5, v1, 4, 1')
        a.e('v_lshl_add_u32 v4, v5, 2, v4')
        poll(a, self.gate_load, [self.XF + 1], 8, first_done=True)
        for qt in range(2):
            o = self.OB + 16 * qt
            a.e(f'v_mov_b32 v2, v{o + 10}')
            a.e(f'v_permlane32_swap_b32 v{o + 10}, v2')
            a.e(f'v_rcp_f32 v6, v{o + 10}')
            a.e(f'v_mul_f32 v6, v6, v{self.XF}')
            for i in range(5):
                a.e(f'v_pk_mul_f32 {vr(o + 2 * i, 2)}, {vr(o + 2 * i, 2)}, v[6:7] op_sel_hi:[1,0]')
            pk = self.SB + 8 * qt
            for i in range(5):
                a.e(f'v_cvt_pk_bf16_f32 v{pk + i}, v{o + 2 * i}, v{o + 2 * i + 1}')
            a.e(f'buffer_store_dwordx4 {vr(pk, 4)}, v10, s[12:15], s45 offen offset:{1024 * qt} {flags}')
            a.e('s_mov_b32 exec_hi, 0')
            a.e(f'buffer_store_dword v{pk + 4}, v4, s[12:15], s46 offen offset:{8 * qt} {flags}')
            a.e('s_mov_b64 exec, -1')
        a.e('s_lshl_b32 s44, s21, 8')
        a.e('s_lshl_b32 s45, s20, 3')
        a.e('s_add_u32 s44, s44, s45')
        a.e('s_add_u32 s44, s44, s22')
        a.e('s_lshl_b32 s44, s44, 2')
        a.e(f's_add_u32 s44, s44, {F3_OFF + 512}')
        a.wait_vm0()
        set_flag(a, 44, 8)

    def gate_load(self):
        a = self.a
        a.e(f's_mov_b32 s38, {GATE_OFF}')
        a.e(f'buffer_load_dwordx2 {vr(self.XF, 2)}, v3, s[12:15], s38 offen {SC}')


def p3_pre(a):
    a.e('s_and_b32 s44, s22, 1')
    a.e('s_lshl_b32 s66, s21, 1')
    a.e('s_add_u32 s66, s66, s44')
    a.e('s_lshr_b32 s67, s22, 1')
    a.e('s_lshl_b32 s68, s66, 10')
    a.e(f's_add_u32 s68, s68, {F3_OFF}')
    a.e('s_lshr_b32 s72, s23, 1')
    a.e('s_lshl_b32 s72, s72, 10')
    a.e('s_lshr_b32 s44, s22, 2')
    a.e('s_lshl_b32 s44, s44, 7')
    a.e('s_add_u32 s72, s72, s44')
    a.e('s_and_b32 s44, s23, 1')
    a.e('s_lshl_b32 s44, s44, 4')
    a.e('s_add_u32 s72, s72, s44')
    a.e('s_and_b32 s44, s22, 3')
    a.e('s_lshl_b32 s44, s44, 2')
    a.e('s_add_u32 s72, s72, s44')
    a.e(f's_add_u32 s72, s72, {F3_OFF}')
    a.e('s_lshl_b32 s69, s67, 9')
    a.e(f's_add_u32 s69, s69, {FW3_OFF}')
    a.e('v_and_b32 v7, 31, v1')
    a.e('v_lshlrev_b32 v7, 2, v7')
    a.e('v_add_u32 v7, 512, v7')
    a.e('v_min_u32 v8, 44, v1')
    a.e('v_lshlrev_b32 v8, 3, v8')
    a.vm(f'buffer_load_dword v4, v7, s[12:15], s68 offen {SC}', 'pre')
    a.vm(f'buffer_load_dwordx2 v[2:3], v8, s[12:15], s69 offen {SC}', 'pre')


def p3(a):
    ACC = 16
    FR = 96
    DEPTH = 4
    NS = 23
    poll(a, lambda: a.e(f'buffer_load_dwordx2 v[2:3], v8, s[12:15], s69 offen {SC}'), [2, 3], 10, first_done=True)
    a.e('s_mul_i32 s44, s20, 18')
    a.e('s_add_u32 s44, s44, 18')
    a.e('s_mul_i32 s45, s20, 5')
    a.e('s_cmp_eq_u32 s20, 3')
    a.e('s_cselect_b32 s46, 1, 0')
    a.e('s_sub_u32 s45, s45, s46')
    a.e('s_cmp_ge_u32 s20, 2')
    a.e('s_cselect_b32 s46, 4, 5')
    a.e('v_and_b32 v8, 7, v1')
    a.e('s_lshl_b32 s47, s20, 7')
    a.e('v_lshl_add_u32 v8, v8, 2, s47')
    a.e('v_cmp_ne_u32 vcc, s62, v4')
    a.e('s_cmp_eq_u64 vcc, 0')
    if 'ufirst' in ABL:
        a.e('s_cmp_eq_u32 s20, 77')
    a.e('s_cselect_b32 s70, 1, 0')
    a.e('s_cselect_b32 s71, s46, 18')
    a.e('s_cselect_b32 s24, s45, s44')
    a.e('s_cselect_b32 s30, s44, s45')
    a.e('s_cselect_b64 vcc, -1, 0')
    a.e('s_mul_i32 s44, s67, 90')
    a.e('s_add_u32 s25, s24, s44')
    a.e('s_mul_i32 s25, s25, 4608')
    a.e(f's_add_u32 s25, s25, {W3_OFF}')
    a.e('s_add_u32 s31, s30, s44')
    a.e('s_mul_i32 s31, s31, 4608')
    a.e(f's_add_u32 s31, s31, {W3_OFF}')
    a.e('v_cndmask_b32 v7, v7, v8, vcc')
    a.e('v_lshrrev_b32 v6, 4, v1')
    a.e('v_lshlrev_b32 v6, 3, v6')
    a.e('v_and_b32 v9, 7, v1')
    a.e('v_add_u32 v6, v6, v9')
    a.e('v_lshlrev_b32 v6, 4, v6')
    a.e('v_add_u32 v6, 4096, v6')
    a.e('v_mov_b32 v12, v19')

    def loadW(k):
        b = FR + 36 * (k % DEPTH)
        for nt in range(4):
            a.vm(f'buffer_load_dwordx4 {vr(b + 4 * nt, 4)}, v12, s[12:15], s25 offen offset:{1024 * nt} {SCL}', ('W', k))
        a.vm(f'buffer_load_dwordx4 {vr(b + 16, 4)}, v6, s[12:15], s25 offen {SCL}', ('W', k))
        a.e('s_add_u32 s25, s25, 4608')

    def loadF(k):
        b = FR + 36 * (k % DEPTH)
        for i in range(4):
            a.vm(f'buffer_load_dwordx4 {vr(b + 20 + 4 * i, 4)}, v{2 + i}, s[12:15], s24 offen {SCL}', ('F', k))
        a.e('s_add_u32 s24, s24, 1024')
    a.e('s_mul_i32 s44, s66, 360')
    a.e('s_add_u32 s24, s24, s44')
    a.e('s_lshl_b32 s24, s24, 10')
    a.e(f's_add_u32 s24, s24, {UF_OFF}')
    a.e('s_add_u32 s30, s30, s44')
    a.e('s_lshl_b32 s30, s30, 10')
    a.e(f's_add_u32 s30, s30, {UF_OFF}')
    for i in range(4):
        a.e(f's_add_u32 s44, s20, {i}')
        a.e('s_and_b32 s44, s44, 3')
        a.e('s_mul_i32 s44, s44, 92160')
        a.e(f'v_add_u32 v{2 + i}, s44, v12')
    a.e('s_mov_b32 s8, s64')
    a.e('s_mov_b32 s9, s65')
    srd(a, 8, 2048 * 1152)
    if 'trfine' in ABL:
        stamp(a, 3)
    a.wait_vm('st')
    if 'trfine' in ABL:
        stamp(a, 4)
    set_flag(a, 72, 10)
    for k in range(DEPTH):
        loadW(k)
    lj = a.newlabel('P3_J')
    a.e('s_cmp_lg_u32 s70, 0')
    a.e(f's_cbranch_scc1 {lj}')
    q0 = list(a.vmq)
    if 'now3t' not in ABL:
        a.e('s_lshr_b32 s44, s2, 3')
        a.e('s_lshl_b32 s44, s44, 2')
        a.e('s_add_u32 s44, s44, s20')
        a.e('s_mul_i32 s44, s44, %d' % (102 * 128))
        a.e('s_and_b32 s45, s2, 4')
        a.e('s_mul_i32 s45, s45, %d' % (90 * 4608))
        a.e('s_add_u32 s44, s44, s45')
        a.e(f's_add_u32 s44, s44, {W3_OFF}')
        a.e('v_min_u32 v10, 50, v1')
        a.e('v_lshlrev_b32 v10, 8, v10')
        a.e('buffer_load_dword v255, v10, s[12:15], s44 offen')
        a.e('buffer_load_dword v255, v10, s[12:15], s44 offen offset:128')
    poll(a, lambda: a.e(f'buffer_load_dword v9, v8, s[12:15], s68 offen {SC}'), [9], 10, sleep=opt('psl', [2])[0])
    a.vmq = q0
    if 'trfine' in ABL:
        stamp(a, 5)
    a.label(lj)
    for k in range(DEPTH):
        loadF(k)
    stamp(a, 6 if 'trfine' in ABL else 3 if 'p3fine' in ABL else 5)

    a.e(f's_setprio {opt("pg", PG)[2]}')

    def flags2():
        a.e(f'buffer_load_dword v9, v7, s[12:15], s68 offen {SC}')
    lskip = a.newlabel('P3_SKIP')
    for k in range(NS):
        b = FR + 36 * (k % DEPTH)
        if k == NS - 1:
            a.e('s_cmp_ge_u32 s20, 2')
            a.e(f's_cbranch_scc1 {lskip}')
            a.wait_vm0()
        a.wait_vm(('F', k))
        for i in range(4):
            for nt in range(5):
                d = vr(ACC + 16 * nt + 4 * i, 4)
                a.e(f'v_mfma_f32_16x16x32_bf16 {d}, {vr(b + 4 * nt, 4)}, {vr(b + 20 + 4 * i, 4)}, {"0" if k == 0 else d}')
        kn = k + DEPTH
        if 'p3fine' in ABL and k in (2, 12) and not (k == 2 and 'drainfirst' in ABL) and 'trfine' not in ABL:
            stamp(a, 4 if k == 2 else 5)
        if kn == NS - 1:
            ls = a.newlabel('P3_NL')
            a.e('s_cmp_ge_u32 s20, 2')
            a.e(f's_cbranch_scc1 {ls}')
            q1 = list(a.vmq)
            loadW(kn)
            loadF(kn)
            a.vmq = q1
            a.label(ls)
        elif kn < NS:
            if kn in (4, 5, 18):
                a.e(f's_cmp_eq_u32 s71, {kn}')
                a.e('s_cselect_b32 s25, s31, s25')
            loadW(kn)
            if kn in (4, 5, 18):
                ls = a.newlabel('P3_NS')
                a.e(f's_cmp_lg_u32 s71, {kn}')
                a.e(f's_cbranch_scc1 {ls}')
                a.e('s_mov_b32 s24, s30')
                q1 = list(a.vmq)
                poll(a, flags2, [9], 10)
                a.vmq = q1
                a.label(ls)
            loadF(kn)
    a.label(lskip)
    if 'trfine' not in ABL:
        stamp(a, 6)
    else:
        a.e('s_nop 7')
    for i in range(1, 4):
        a.e(f's_add_u32 s44, s20, {i}')
        a.e('s_and_b32 s44, s44, 3')
        a.e('s_mul_i32 s44, s44, 15360')
        a.e(f'v_add_u32 v{8 + i}, s44, v12')
        for nt in range(5):
            a.lg(f'ds_write_b128 v{8 + i}, {vr(ACC + 16 * nt + 4 * i, 4)} offset:{5120 * (i - 1) + 1024 * nt}', 'w')
    a.e('s_mul_i32 s26, s20, 15360')
    a.e('v_add_u32 v8, s26, v12')
    a.e('s_lshl_b32 s27, s66, 6')
    a.e('s_lshr_b32 s28, s20, 1')
    a.e('s_lshl_b32 s28, s28, 5')
    a.e('s_add_u32 s27, s27, s28')
    a.e('s_and_b32 s28, s20, 1')
    a.e('s_lshl_b32 s28, s28, 2')
    a.e('s_add_u32 s27, s27, s28')
    a.e('v_bfe_u32 v13, v1, 2, 2')
    a.e('v_lshlrev_b32 v13, 3, v13')
    a.e('v_and_b32 v14, 3, v1')
    a.e('v_add3_u32 v13, v13, v14, s27')
    a.e('v_mul_u32_u24 v13, 1152, v13')
    a.e('v_lshrrev_b32 v14, 4, v1')
    a.e('v_lshl_add_u32 v15, v14, 3, v13')
    a.e('v_lshl_add_u32 v13, v14, 4, v13')
    a.e('s_mul_i32 s27, s67, 144')
    a.wait_all()
    a.e('s_barrier')
    for nt in range(5):
        for i in range(3):
            a.lg(f'ds_read_b128 {vr(FR + 12 * nt + 4 * i, 4)}, v8 offset:{5120 * i + 1024 * nt}', ('r', nt))
    PKB = FR + 64
    for nt in range(5):
        a.wait_lg(('r', nt))
        b = FR + 12 * nt
        o = ACC + 16 * nt
        for h in range(2):
            a.e(f'v_pk_add_f32 {vr(b + 2 * h, 2)}, {vr(b + 2 * h, 2)}, {vr(b + 4 + 2 * h, 2)}')
            a.e(f'v_pk_add_f32 {vr(o + 2 * h, 2)}, {vr(o + 2 * h, 2)}, {vr(b + 8 + 2 * h, 2)}')
        for h in range(2):
            a.e(f'v_pk_add_f32 {vr(b + 2 * h, 2)}, {vr(b + 2 * h, 2)}, {vr(o + 2 * h, 2)}')
        for h in range(2):
            a.e(f'v_cvt_pk_bf16_f32 v{PKB + 2 * nt + h}, v{b + 2 * h}, v{b + 2 * h + 1}')
        if nt in (1, 3):
            a.e(f'buffer_store_dwordx4 {vr(PKB + 2 * nt - 2, 4)}, v13, s[8:11], s27 offen offset:{64 * (nt // 2)}')
        if nt == 4:
            a.e('s_mov_b32 exec_hi, 0')
            a.e(f'buffer_store_dwordx2 {vr(PKB + 8, 2)}, v15, s[8:11], s27 offen offset:128')
            a.e('s_mov_b64 exec, -1')


def kernel_text(name, a, vgpr=256, sgpr=96):
    a.fix_hazards()
    mv, ms, ma = a.max_regs()
    assert mv <= vgpr and ms <= sgpr and ma == 0, (mv, ms, ma)
    body = f'.globl {name}\n.p2align 8\n.type {name},@function\n{name}:\n' + a.text()
    desc = f""".p2align 6
.amdhsa_kernel {name}
  .amdhsa_next_free_vgpr {vgpr}
  .amdhsa_next_free_sgpr {sgpr}
  .amdhsa_accum_offset {(vgpr + 3) // 4 * 4}
  .amdhsa_group_segment_fixed_size 0
  .amdhsa_kernarg_size 112
  .amdhsa_user_sgpr_count 2
  .amdhsa_user_sgpr_kernarg_segment_ptr 1
  .amdhsa_system_sgpr_workgroup_id_x 1
.end_amdhsa_kernel
"""
    return body, desc


def build_file(kernels):
    hdr = open('cdna_kernels/' + NAME + '.s.ref').read().split('\n')
    head = [l for l in hdr if l.startswith(';') and '@launch' not in l and 'Override' not in l and 'grid=ceil' not in l]
    head = head[:15]
    out = '\n'.join(head) + '\n'
    for name, a, grid, block, lds, vgpr in kernels:
        kn = f'kernel={name} ' if (len(kernels) > 1 or LIST) else ''
        out += f'; @launch {kn}grid=({grid},1,1) block=({block},1,1) lds={lds}\n'
    out += '.amdgcn_target "amdgcn-amd-amdhsa--gfx950"\n.text\n'
    out += f'.set CODE_LINES, (K_END - {NAME}_kernel) / 128 - 4\n'
    descs = ''
    for name, a, grid, block, lds, vgpr in kernels:
        b, d = kernel_text(name, a, vgpr)
        out += b
        descs += d
    out += '.section .rodata,"a"\n' + descs
    return out


NG1, NG2 = 1, 3


def mega():
    a = Asm()
    a.e('s_cmp_ge_u32 s2, 512')
    a.e('s_cbranch_scc1 K_END')
    stamp(a, 0)
    a.e('s_cmp_lt_u32 s2, 256')
    a.e('s_cbranch_scc1 K_GEMM')
    a.e('s_sub_u32 s3, s2, 256')
    if 'g1only' in ABL:
        a.e('s_branch K_DONE')
    P = opt('pa', [0, 0])
    t = ATT(a)
    t.setup(3)
    write_nonce(a)
    t.retile_setup()
    if 'ptouch' in ABL:
        t.page_touch()
    stamp(a, 1)
    a.e(f's_setprio {P[0]}')
    t.q_phase()
    stamp(a, 2)
    a.e(f's_setprio {P[1]}')
    if 'noattmain' in ABL:
        for p in range(3):
            a.wait_all()
            t.side(p)
        t.gate_load()
        a.wait_all()
    else:
        t.main(flags=SCL)
    stamp(a, 3)
    a.e('s_setprio 3')
    t.epilogue(flags=SC)
    a.e('s_branch K_DONE')
    a.label('K_GEMM')
    a.vmq = []
    a.lgq = []
    g = GW(a)
    UB, UP = g.UB, g.UP
    g.limitA = UB
    g.setup()
    g.prologue_issue()
    g.setup2()

    def nonce_ld():
        a.e('v_mov_b32 v23, 0')
        a.vm(f'global_load_dword v24, v23, s[16:17] {SC}', 'nonce')
    g.hooks[21] = nonce_ld
    g.run_segment(0, UB)
    stamp(a, 1)
    n1, n2 = opt('ng', [NG1, NG2])
    nb1 = opt('nb1', [8])[0]
    a.wait_vm('nonce')
    get_nonce(a, 23, 24)
    g.proj_store()
    g.limitA = UP
    a.vmq.append('pst')
    a.vmq.append('pst')
    a.e('s_barrier')
    for _ in range(g.R - 1):
        for f in g.issueA():
            f()
    g.z2_gelu_publish()

    LF = 'lnfine' in ABL
    if LF:
        stamp(a, 2)
    g.run_segment(UB, nb1)
    if LF:
        stamp(a, 3)
    g.z2_gather_norm_store()
    stamp(a, 4 if LF else 2)
    a.e('s_lshl_b32 s49, s22, 9')
    a.e(f's_add_u32 s49, s49, {FZ_OFF}')
    a.e('s_lshl_b32 s48, s32, 7')
    a.e('s_add_u32 s48, s48, s49')
    a.e('s_and_b32 s50, s23, 15')
    a.e('s_lshl_b32 s50, s50, 2')
    a.e('s_add_u32 s48, s48, s50')
    a.e('s_and_b32 s50, s32, 2')
    a.e('s_lshl_b32 s50, s50, 7')
    a.e('s_add_u32 s50, s50, s49')
    a.e('v_and_b32 v29, 15, v1')
    a.e('v_lshlrev_b32 v29, 2, v29')
    a.e('v_lshrrev_b32 v23, 4, v1')
    a.e('v_lshl_add_u32 v23, v23, 7, v29')
    a.e('v_and_b32 v29, 0xff, v23')

    def zflag():
        a.wait_vm('st')
        set_flag(a, 48, 27)
    g.hooks[UB + nb1 + opt('zf', [4])[0]] = zflag
    g.run_segment(UB + nb1, 18 - nb1)
    if LF:
        stamp(a, 5)
    g.own_write()
    g.z1_gelu(range(0, n1))
    g.nextA = UP + 4
    g.run_segment(UP, 4, own=True)
    g.z1_gelu(range(n1, n2))
    if LF:
        stamp(a, 6)
    poll(a, lambda: a.e(f'buffer_load_dword v26, v29, s[12:15], s50 offen {SC}'), [26], 27)
    if LF:
        a.e('s_branch K_DONE')
    stamp(a, 3)
    g.limitA = len(g.units)
    a.e('s_barrier')
    for _ in range(g.R - 1):
        for f in g.issueA():
            f()
    g.z1_gelu(range(n2, 9))
    g.hooks[UP + 58] = g.sp_pre

    def zall():
        a.e(f'buffer_load_dword v26, v23, s[12:15], s49 offen {SC}')

    def zall0():
        zall()
        a.vmq.append('zf')

    def zall1():
        a.wait_vm('zf')
        poll(a, zall, [26], 27, first_done=True)
    g.hooks[UP + 22] = zall0
    g.hooks[UP + 27] = zall1
    g.hooks[UP + 61] = lambda: p3_pre(a)

    if opt('gate'):
        def prog():
            a.e('s_lshl_b32 s44, s2, 7')
            a.e(f's_add_u32 s44, s44, {PROG_OFF}')
            set_flag(a, 44, 27)
        g.hooks[UP + opt('gate')[1]] = prog
    g.run_segment(UP + 4, 60)
    if 'p2fine' in ABL:
        stamp(a, 6)
        a.e('s_branch K_DONE')
    stamp(a, 4)
    if 'p3fine' in ABL:
        stamp(a, 1)
    g.sp_epilogue()
    if 'p3fine' in ABL:
        stamp(a, 2)
    p3(a)
    a.label('K_DONE')
    stamp_flush(a, 0)
    a.label('K_END')
    a.e('s_endpgm')
    return (NAME + '_kernel', a, 512, 256, 81920, 256)


LIST = False
if __name__ == '__main__':
    if '--stamp' in sys.argv:
        STAMP = True
        sys.argv.remove('--stamp')
    if '--list' in sys.argv:
        LIST = True
        sys.argv.remove('--list')
    for x in list(sys.argv):
        if x.startswith('--abl='):
            ABL.update(x[6:].split(','))
            sys.argv.remove(x)
    out = sys.argv[1] if len(sys.argv) > 1 else 'out.s'
    open(out, 'w').write(build_file([mega()]))
    print('wrote', out)
```

```python
import sys, struct
from asmlib import Asm

NAME = 'gated_mix__grouped_kv_mqa__mixer_gmlp__prompt'

Z2_OFF = 0x10000
UF_OFF = Z2_OFF + 9437184
W3_OFF = UF_OFF + 11796480
KV_OFF = W3_OFF + 3317760
KV_TILE = 2496
GATE_OFF = KV_OFF + 160 * 1024
STATS_OFF = GATE_OFF + 16384
FLAG_OFF = STATS_OFF + 524288
FKV_OFF = FLAG_OFF
FW3_OFF = FLAG_OFF + 49152
FZ_OFF = FLAG_OFF + 4096
PZ_OFF = FLAG_OFF + 65536
PROG_OFF = FLAG_OFF + 16384
GO_OFF = FLAG_OFF + 98304
KVF_OFF = FLAG_OFF
QF_OFF = FLAG_OFF + 131072
SC = 'sc1' if 'sconly1' in ' '.join(sys.argv) else 'sc0 sc1'
SCL = '' if '--abl' in ' '.join(sys.argv) and 'noscl' in ' '.join(sys.argv) else 'sc1'
WS_SIZE = 0x1c00000
assert QF_OFF + 128 * 16 * 1152 <= 0x1b00000
STAMP_OFF = 0x1b00000

A_X, A_WQ, A_WK, A_WV, A_WO, A_BX, A_WIN, A_WSP, A_BSP, A_WOUT, A_GW, A_OUT, A_DBG, A_WS = [8 * i for i in range(14)]

STAMP = False
ABL = set()


def opt(name, default=None):
    for x in ABL:
        if x.startswith(name + ':'):
            return [int(v) for v in x.split(':')[1:]]
    return default


def f2u(f):
    return struct.unpack('<I', struct.pack('<f', f))[0]


def hx(f):
    return '0x%08x' % f2u(f)


def srd(a, d, size):
    a.e(f's_mov_b32 s{d + 2}, {size}')
    a.e(f's_mov_b32 s{d + 3}, 0x00020000')


def vr(b, n):
    return f'v[{b}:{b + n - 1}]'


def stamp(a, idx):
    if not STAMP:
        return
    a.wait_lg0()
    a.e('s_memrealtime s[78:79]')
    a.e('s_memtime s[76:77]')
    a.e('s_waitcnt lgkmcnt(0)')
    a.e(f's_mov_b32 s{80 + idx}, s78')
    a.e(f's_mov_b32 s{88 + idx}, s76')


def stamp_flush(a, kidx):
    if not STAMP:
        return
    a.e('s_waitcnt vmcnt(0) lgkmcnt(0)')
    stamp(a, 7)
    a.e(f's_load_dwordx2 s[74:75], s[0:1], {A_WS}')
    a.e('s_waitcnt lgkmcnt(0)')
    a.e('v_lshrrev_b32 v1, 6, v0')
    a.e('v_lshlrev_b32 v1, 6, v1')
    a.e('s_lshl_b32 s78, s2, 8')
    a.e(f's_add_u32 s78, s78, {STAMP_OFF + kidx * 131072}')
    a.e('v_add_u32 v1, s78, v1')
    for i in range(16):
        a.e(f'v_mov_b32 v{4 + i}, s{80 + i}')
    for i in range(4):
        a.e(f'global_store_dwordx4 v1, v[{4 + 4 * i}:{7 + 4 * i}], s[74:75] offset:{16 * i}')
    if 'dbgstamp' in ABL:
        a.e('s_cmp_lt_u32 s2, 256')
        a.e('s_cselect_b32 s78, 4, 36')
        a.e('v_mov_b32 v1, s78')
        a.e('s_mov_b64 exec, 1')
        for i in range(1, 8):
            a.e(f'v_subrev_u32 v{4 + i}, s62, v{4 + i}')
            a.e(f'global_atomic_umax v1, v{4 + i}, s[16:17] offset:{4 * (i - 1)} sc1')
        a.e('v_sub_u32 v4, s62, v4')
        a.e('v_add_u32 v4, 1000, v4')
        a.e('v_mov_b32 v1, 32')
        a.e('global_atomic_umax v1, v4, s[16:17] sc1')
        a.e('s_mov_b64 exec, -1')


QSCALE = 18 ** -0.5 * 1.4426950408889634
GELU_C0 = -2.0 * 1.4426950408889634 * 0.7978845608028654
GELU_C1 = GELU_C0 * 0.044715


def gelu_group(a, regs, T, sC1, vC0):
    n = len(regs)
    for i, r in enumerate(regs):
        a.e(f'v_pk_mul_f32 {vr(T + 2 * i, 2)}, {vr(r, 2)}, {vr(r, 2)}')
    for i, r in enumerate(regs):
        a.e(f'v_pk_fma_f32 {vr(T + 2 * i, 2)}, {vr(T + 2 * i, 2)}, s[{sC1}:{sC1 + 1}], {vr(vC0, 2)}')
    for i, r in enumerate(regs):
        a.e(f'v_pk_mul_f32 {vr(T + 2 * i, 2)}, {vr(T + 2 * i, 2)}, {vr(r, 2)}')
    for i in range(2 * n):
        a.e(f'v_exp_f32 v{T + i}, v{T + i}')
    for i, r in enumerate(regs):
        a.e(f'v_pk_add_f32 {vr(T + 2 * i, 2)}, {vr(T + 2 * i, 2)}, 1.0 op_sel_hi:[1,0]')
    for i in range(2 * n):
        a.e(f'v_rcp_f32 v{T + i}, v{T + i}')
    for i, r in enumerate(regs):
        a.e(f'v_pk_mul_f32 {vr(r, 2)}, {vr(T + 2 * i, 2)}, {vr(r, 2)}')


SPIN_MAX = 300000
PG = [0, 2, 0]


def poll(a, loads, regs, t0, first_done=False, sleep=1):
    lp = a.newlabel('POLL')
    lc = a.newlabel('POLLC')
    lg = a.newlabel('POLLOK')
    a.e(f's_mov_b32 s51, {SPIN_MAX}')
    if first_done:
        a.e(f's_branch {lc}')
    a.label(lp)
    loads()
    a.e('s_waitcnt vmcnt(0)')
    a.label(lc)
    a.e(f'v_xor_b32 v{t0}, s62, v{regs[0]}')
    for r in regs[1:]:
        a.e(f'v_xor_b32 v{t0 + 1}, s62, v{r}')
        a.e(f'v_or_b32 v{t0}, v{t0}, v{t0 + 1}')
    a.e(f'v_cmp_ne_u32 vcc, 0, v{t0}')
    a.e(f's_cbranch_vccz {lg}')
    a.e(f's_sleep {sleep}')
    a.e('s_sub_u32 s51, s51, 1')
    a.e('s_cmp_lg_u32 s51, 0')
    a.e(f's_cbranch_scc1 {lp}')
    a.label(lg)
    if not first_done:
        a.vmq = []


def get_nonce(a, vz, vn):
    lp = a.newlabel('NONCE')
    lg = a.newlabel('NONCE_OK')
    a.e(f's_mov_b32 s51, {SPIN_MAX}')
    a.label(lp)
    a.e(f'v_readfirstlane_b32 s62, v{vn}')
    a.e('s_cmp_lg_u32 s62, 0')
    a.e(f's_cbranch_scc1 {lg}')
    a.e('s_sleep 32')
    a.e(f'global_load_dword v{vn}, v{vz}, s[16:17] {SC}')
    a.e('s_waitcnt vmcnt(0)')
    a.e('s_sub_u32 s51, s51, 1')
    a.e('s_cmp_lg_u32 s51, 0')
    a.e(f's_cbranch_scc1 {lp}')
    a.label(lg)


def set_flag(a, soff, t0):
    a.e(f'v_mov_b32 v{t0}, 0')
    a.e(f'v_mov_b32 v{t0 + 1}, s62')
    a.e('s_mov_b64 exec, 1')
    a.vm(f'buffer_store_dword v{t0 + 1}, v{t0}, s[12:15], s{soff} offen {SC}', 'flag')
    a.e('s_mov_b64 exec, -1')


class GW:
    R = 5
    SLOT = 8192
    SGL = 40960
    BBASE = 49152
    AF = 32
    BF = 68
    ACC0 = 100
    ACC1 = 172
    UB = 27
    UP = 45

    def __init__(self, a):
        self.a = a
        self.units = []
        self.stages = []
        for st in range(9):
            self.stages.append(('x', st))
            self.units += [('z2', 2 * st, st, 0, 2 * st), ('z2', 2 * st + 1, st, 1, 2 * st + 1), ('E', st, st, 0, None)]
        for k in range(18):
            if k % 2 == 0:
                self.stages.append(('x', k // 2))
            self.units.append(('z1', k, 9 + k // 2, k % 2, 18 + k))
        for k in range(64):
            if k % 2 == 0:
                self.stages.append(('sp', k // 2))
            self.units.append(('sp', k, 18 + k // 2, k % 2, 36 + k))
        self.nextA = 0
        self.nextB = 0
        self.limitA = len(self.units)
        self.pendB = []
        self.hooks = {}

    def setup(self):
        a = self.a
        a.e(f's_load_dwordx4 s[4:7], s[0:1], {A_X}')
        a.e(f's_load_dwordx2 s[8:9], s[0:1], {A_WIN}')
        a.e(f's_load_dwordx4 s[16:19], s[0:1], {A_DBG}')
        a.e(f's_load_dwordx4 s[52:55], s[0:1], {A_WSP}')
        a.e(f's_load_dwordx2 s[64:65], s[0:1], {A_OUT}')
        a.e(f's_load_dwordx4 s[68:71], s[0:1], {A_WK}')
        a.e('v_lshrrev_b32 v1, 6, v0')
        a.e('v_readfirstlane_b32 s20, v1')
        a.e('v_and_b32 v1, 63, v0')
        a.e('s_lshr_b32 s31, s2, 3')
        a.e('s_and_b32 s32, s2, 3')
        a.e('s_and_b32 s34, s31, 3')
        a.e('s_lshl_b32 s21, s32, 2')
        a.e('s_add_u32 s21, s21, s34')
        a.e('s_lshr_b32 s35, s31, 2')
        a.e('s_and_b32 s22, s2, 4')
        a.e('s_lshl_b32 s22, s22, 1')
        a.e('s_add_u32 s22, s22, s35')
        a.e('s_lshl_b32 s23, s21, 2')
        a.e('s_add_u32 s23, s23, s20')
        a.e('s_lshl_b32 s39, s34, 1')
        a.e('s_add_u32 s39, s39, s35')
        a.e('s_cmp_ge_u32 s39, 9')
        a.e('s_cselect_b32 s40, 9, 0')
        a.e('s_sub_u32 s39, s39, s40')
        if 'norot' in ABL:
            a.e('s_mov_b32 s39, 0')
        a.e('s_mul_i32 s24, s39, %d' % (64 * 9216))
        a.e('s_add_u32 s24, s24, 4608')
        a.e('s_lshl_b32 s25, s39, 7')
        a.e('s_lshl_b32 s28, s39, 1')
        a.e('s_add_u32 s28, s28, s20')
        a.e('s_cmp_ge_u32 s28, 18')
        a.e('s_cselect_b32 s29, 18, 0')
        a.e('s_sub_u32 s28, s28, s29')
        a.e('s_lshl_b32 s26, s20, 11')
        a.e('s_lshl_b32 s27, s20, 12')
        a.e(f's_add_u32 s27, s27, {self.BBASE}')
        a.e('s_lshl_b32 s30, s20, 10')
        a.e(f's_add_u32 s30, s30, {self.SGL}')
        a.e('v_and_b32 v23, 7, v1')
        a.e('v_lshrrev_b32 v24, 5, v1')
        a.e('v_lshlrev_b32 v24, 3, v24')
        a.e('v_bfe_u32 v25, v1, 3, 2')
        a.e('s_lshl_b32 s44, s23, 5')
        a.e('v_add3_u32 v24, v24, v25, s44')
        a.e('v_lshrrev_b32 v25, 4, v1')
        a.e('v_xor_b32 v25, v25, v23')
        a.e('v_lshlrev_b32 v25, 4, v25')
        a.e('v_xor_b32 v26, 64, v25')
        a.e('v_mul_u32_u24 v27, 1152, v24')
        a.e('v_add_u32 v5, v27, v25')
        a.e('v_add_u32 v6, v27, v26')
        a.e(f'v_add_u32 v6, {16 * 1152 - 1024}, v6')
        a.e(f'v_add_u32 v7, {4 * 1152 - 2048}, v5')
        a.e(f'v_add_u32 v8, {4 * 1152 - 2048}, v6')
        a.e('s_lshl_b32 s42, s22, 8')
        a.e('s_mul_i32 s43, s20, %d' % (8 * 9216))
        a.e('s_add_u32 s42, s42, s43')
        a.e('v_bfe_u32 v2, v1, 2, 2')
        a.e('v_mul_u32_u24 v2, 9216, v2')
        a.e('v_lshrrev_b32 v3, 4, v1')
        a.e('v_lshl_add_u32 v2, v3, 6, v2')
        a.e('s_and_b32 s44, s20, 1')
        a.e('s_lshl_b32 s45, s44, 1')
        a.e('v_and_b32 v3, 3, v1')
        a.e('v_xor_b32 v3, s45, v3')
        a.e('v_lshl_add_u32 v2, v3, 4, v2')
        a.e('v_add_u32 v2, s42, v2')
        a.e(f'v_add_u32 v3, {4 * 9216 - 1024}, v2')
        a.e('v_lshrrev_b32 v29, 1, v1')
        a.e('v_and_b32 v27, 19, v29')
        a.e('v_bfe_u32 v28, v29, 2, 1')
        a.e('v_lshl_add_u32 v27, v28, 3, v27')
        a.e('v_bfe_u32 v28, v29, 3, 1')
        a.e('v_lshl_add_u32 v27, v28, 2, v27')
        a.e('v_mul_u32_u24 v4, 9216, v27')
        a.e('v_and_b32 v27, 1, v1')
        a.e('v_lshl_add_u32 v4, v27, 4, v4')
        a.e('s_lshl_b32 s45, s22, 5')
        a.e('s_add_u32 s45, s45, 4096')
        a.e('v_add_u32 v4, s45, v4')
        a.e('v_mul_u32_u24 v27, 36, v27')
        a.e('v_lshrrev_b32 v20, 2, v1')
        a.e('v_mul_u32_u24 v20, 1152, v20')
        a.e('v_bfe_u32 v28, v1, 1, 1')
        a.e('v_lshl_add_u32 v20, v28, 4, v20')
        a.e('v_add_u32 v20, v20, v27')
        a.e('v_mul_u32_u24 v28, 1152, v29')
        a.e('v_add3_u32 v28, v28, v27, 32')
        a.e('s_cmp_eq_u32 s20, 2')
        a.e('s_cselect_b64 vcc, -1, 0')
        a.e('v_cndmask_b32 v20, v20, v28, vcc')
        a.e('v_mul_u32_u24 v28, 36, v29')
        a.e('s_cmp_eq_u32 s20, 3')
        a.e('s_cselect_b64 vcc, -1, 0')
        a.e('v_cndmask_b32 v20, v20, v28, vcc')
        a.e('s_mul_i32 s44, s22, 72')
        a.e('s_cmp_eq_u32 s20, 1')
        a.e(f's_cselect_b32 s45, {16 * 1152}, 0')
        a.e('s_add_u32 s44, s44, s45')
        a.e('s_and_b32 s45, s22, 1')
        a.e('s_lshl_b32 s45, s45, 4')
        a.e('s_cmp_ge_u32 s22, 4')
        a.e('s_cselect_b32 s45, 32, s45')
        a.e('s_cmp_eq_u32 s20, 3')
        a.e('s_cselect_b32 s44, s45, s44')
        a.e(f's_movk_i32 s58, 1152')
        a.e('s_cselect_b32 s58, 36, s58')
        a.e('v_add_u32 v20, s44, v20')
        a.e('s_lshl_b32 s44, s58, 5')
        a.e('s_sub_u32 s44, s44, 1024')
        a.e('v_add_u32 v244, s44, v20')
        a.e('s_mul_i32 s42, s58, 576')
        a.e('s_lshl_b32 s58, s58, 6')
        a.e('s_mul_i32 s59, s58, s39')
        a.e('s_lshr_b32 s44, 0x2c, s22')
        a.e('s_and_b32 s44, s44, 1')
        a.e('s_waitcnt lgkmcnt(0)')
        a.e('s_cmp_eq_u32 s44, 1')
        a.e('s_cselect_b32 s40, s70, s68')
        a.e('s_cselect_b32 s41, s71, s69')
        a.e('s_cmp_eq_u32 s20, 3')
        a.e('s_cselect_b32 s40, s40, s6')
        a.e('s_cselect_b32 s41, s41, s7')
        a.e('s_mov_b32 s43, 0x00020000')
        srd(a, 4, 2359296)
        srd(a, 8, 576 * 9216)
        a.e('s_mov_b32 s12, s18')
        a.e('s_mov_b32 s13, s19')
        srd(a, 12, WS_SIZE)
        a.e('s_mov_b32 s56, s54')
        a.e('s_mov_b32 s57, s55')
        srd(a, 52, 2048 * 4096)

    def setup2(self):
        a = self.a
        a.e('v_lshlrev_b32 v27, 12, v24')
        a.e('v_add_u32 v12, v27, v25')
        a.e('v_add_u32 v13, v27, v26')
        a.e(f'v_add_u32 v13, {16 * 4096 - 1024}, v13')
        a.e(f'v_add_u32 v14, {4 * 4096 - 2048}, v12')
        a.e(f'v_add_u32 v15, {4 * 4096 - 2048}, v13')
        a.e('s_xor_b32 s37, s21, s35')
        a.e('s_lshl_b32 s45, s22, 13')
        a.e('s_add_u32 s45, s45, s26')
        a.e('v_lshlrev_b32 v19, 4, v1')
        a.e('v_add_u32 v9, s45, v19')
        a.e('s_lshl_b32 s45, s22, 10')
        a.e('s_mul_i32 s46, s20, 147456')
        a.e('s_add_u32 s45, s45, s46')
        a.e(f's_add_u32 s45, s45, {128 * 1024}')
        a.e('v_add_u32 v10, s45, v19')
        a.e('v_lshrrev_b32 v27, 4, v1')
        a.e('v_and_b32 v29, 3, v1')
        a.e('v_lshlrev_b32 v28, 3, v29')
        a.e('v_bfe_u32 v29, v1, 2, 3')
        a.e('v_lshl_add_u32 v18, v29, 5, v28')
        a.e('v_lshrrev_b32 v29, 5, v1')
        a.e('v_lshl_add_u32 v18, v29, 9, v18')
        a.e('v_lshl_add_u32 v28, v27, 11, v28')
        a.e('v_bfe_u32 v29, v1, 2, 2')
        a.e('v_lshl_add_u32 v28, v29, 6, v28')
        a.e('v_and_b32 v29, 1, v27')
        a.e('v_lshl_add_u32 v16, v29, 5, v28')
        a.e('v_xor_b32 v17, 32, v16')
        a.e('v_and_b32 v28, 15, v1')
        a.e('v_lshlrev_b32 v245, 4, v28')
        a.e('v_lshl_add_u32 v245, v29, 9, v245')
        a.e('v_lshrrev_b32 v29, 5, v1')
        a.e('v_lshl_add_u32 v245, v29, 11, v245')
        a.e('v_bfe_u32 v29, v1, 2, 2')
        a.e('v_lshl_add_u32 v29, v27, 3, v29')
        a.e('v_lshlrev_b32 v246, 5, v29')
        a.e('v_and_b32 v29, 1, v1')
        a.e('v_lshlrev_b32 v23, 4, v29')
        a.e('v_add_u32 v23, 4096, v23')
        a.e('v_lshlrev_b32 v29, 3, v29')
        a.e('v_add_u32 v29, 6144, v29')
        a.e('v_and_b32 v24, 2, v1')
        a.e('v_cmp_eq_u32 vcc, 0, v24')
        a.e('v_cndmask_b32 v29, v29, v23, vcc')
        a.e('v_add_u32 v246, v246, v29')
        a.e('v_bfe_u32 v29, v1, 1, 3')
        a.e('v_xor_b32 v29, v29, v27')
        a.e('v_lshlrev_b32 v28, 7, v28')
        a.e('v_lshl_add_u32 v28, v29, 4, v28')
        a.e('v_add_u32 v21, s27, v28')
        a.e('v_xor_b32 v28, 64, v28')
        a.e('v_add_u32 v22, s27, v28')
        self.gelu_consts()

    def grp(self, g, d):
        a = self.a
        L = opt('lead', [0])[0]
        if L == 0 and g > 0 and 'noperm' not in ABL:
            if g < 8:
                a.e(f's_add_u32 s{d}, s35, {g}')
                a.e(f's_cmp_ge_u32 s{d}, 8')
                a.e(f's_cselect_b32 s29, 7, 0')
                a.e(f's_sub_u32 s{d}, s{d}, s29')
                a.e(f's_xor_b32 s{d}, s{d}, s21')
            else:
                a.e(f's_xor_b32 s{d}, s37, {g}')
            return
        a.e(f's_xor_b32 s{d}, s21, {g}')
        if L == 0:
            return
        if L + 1 <= g + L <= 15:
            a.e(f's_xor_b32 s29, s21, {g + L}')
            a.e(f's_cmp_eq_u32 s35, {(g + L) % 8}')
            a.e(f's_cselect_b32 s{d}, s29, s{d}')
        xs = [x for x in range(g, g + L) if L + 1 <= x <= 15]
        if xs:
            a.e(f's_xor_b32 s29, s21, {g - 1}')
            mask = sum(1 << (x % 8) for x in xs)
            a.e(f's_bitcmp1_b32 {mask}, s35')
            a.e(f's_cselect_b32 s{d}, s29, s{d}')

    def issueA(self):
        a = self.a
        u = self.nextA
        if u >= self.limitA:
            return []
        self.nextA += 1
        seg, i, _, _, si = self.units[u]
        slot = (u % self.R) * self.SLOT
        tag = ('A', u)
        if seg == 'E':
            def e0():
                a.e(f's_add_u32 m0, s26, {slot}')
                a.vm('buffer_load_dwordx4 v20, s[40:43], s59 offen lds', tag)

            def e1():
                a.vm('buffer_load_dwordx4 v244, s[40:43], s59 offen offset:1024 lds', tag)
                a.e('s_add_u32 s59, s59, s58')
                a.e('s_cmp_eq_u32 s59, s42')
                a.e('s_cselect_b32 s59, 0, s59')
            return [e0, e1]
        sgl = ((si // 4) % 2) * 4096
        if seg == 'sp':
            def f0():
                if i % 4 == 0:
                    self.grp(i // 4, 24)
                    a.e('s_mul_i32 s24, s24, 589824')
                    a.e(f's_add_u32 s24, s24, {Z2_OFF}')
                a.e(f's_add_u32 m0, s26, {slot}')
                a.vm(f'buffer_load_dwordx4 v9, s[12:15], s24 offen {SCL} lds', tag)

            def f1():
                a.vm(f'buffer_load_dwordx4 v9, s[12:15], s24 offen offset:1024 {SCL} lds', tag)
                if i % 4 in (1, 2):
                    a.e('s_add_u32 s24, s24, 147456')

            def f2():
                a.e(f's_add_u32 m0, s30, {sgl}')
                a.vm(f'buffer_load_dwordx4 v10, s[12:15], s24 offen {SCL} lds', tag)
                a.e('s_add_u32 s24, s24, 147456')
        else:
            def f0():
                if seg == 'z1' and i == 0:
                    a.e('s_sub_u32 s24, s24, 4608')
                a.e(f's_add_u32 m0, s26, {slot}')
                a.vm('buffer_load_dwordx4 v2, s[8:11], s24 offen lds', tag)

            def f1():
                a.vm('buffer_load_dwordx4 v3, s[8:11], s24 offen offset:1024 lds', tag)
                a.e(f's_add_u32 s24, s24, {32 * 9216}')
                if i % 2 == 1:
                    a.e(f's_cmp_ge_u32 s24, {576 * 9216}')
                    a.e(f's_cselect_b32 s29, {576 * 9216}, 0')
                    a.e('s_sub_u32 s24, s24, s29')

            def f2():
                a.e(f's_mul_i32 s29, s28, {32 * 9216}')
                if si < 16:
                    a.e('s_add_u32 s29, s29, 4608')
                elif si == 16:
                    a.e('s_cmp_lt_u32 s20, 2')
                    a.e('s_cselect_b32 s44, 4608, 0')
                    a.e('s_add_u32 s29, s29, s44')
                a.e(f's_add_u32 m0, s30, {sgl}')
                a.e('s_add_u32 s28, s28, 4')
                a.vm('buffer_load_dwordx4 v4, s[8:11], s29 offen lds', tag)
                a.e('s_cmp_ge_u32 s28, 18')
                a.e('s_cselect_b32 s29, 18, 0')
                a.e('s_sub_u32 s28, s28, s29')
        return [f0, f1, f2] if si % 4 == 0 else [f0, f1]

    def issueB(self):
        a = self.a
        s = self.nextB
        if s >= len(self.stages):
            return []
        self.nextB += 1
        seg, i = self.stages[s]
        tag = ('B', s)
        sp = seg == 'sp'
        vb = 12 if sp else 5
        sr = 's[52:55]' if sp else 's[4:7]'

        def mk(j):
            def f():
                if j == 0 and sp:
                    if i % 2 == 0:
                        self.grp(i // 2, 25)
                        a.e('s_lshl_b32 s25, s25, 8')
                    else:
                        a.e('s_add_u32 s25, s25, 128')
                a.e(f's_add_u32 m0, s27, {(s % 2) * 16384}')
                a.vm(f'buffer_load_dwordx4 v{vb + j}, {sr}, s25 offen offset:{1024 * j} lds', tag)
                if j == 3 and not sp:
                    a.e('s_add_u32 s25, s25, 128')
                    a.e('s_cmp_eq_u32 s25, 1152')
                    a.e('s_cselect_b32 s25, 0, s25')
            return f
        return [mk(j) for j in range(4)]

    def nfr(self, u):
        return 6 if self.units[u][0] == 'E' else 9

    def readA(self, u, F, part):
        a = self.a
        seg, i, _, _, si = self.units[u]
        if F >= self.nfr(u):
            return
        slot = (u % self.R) * self.SLOT
        tag = ('AR', u, F)
        j = part
        d2 = vr(self.AF + 4 * F + 2 * j, 2)
        if seg == 'E':
            kk, t = F // 3, F % 3
            if t < 2:
                a.lg(f'ds_read_b64_tr_b16 {d2}, v245 offset:{slot + kk * 1024 + j * 256 + t * 8}', tag)
            else:
                a.lg(f'ds_read_b64_tr_b16 {d2}, v246 offset:{slot + kk * 1024 + j * 128}', tag)
            return
        sgl = self.SGL + ((si // 4) % 2) * 4096 + (si % 4) * 1024
        if seg == 'sp':
            if part == 0:
                a.lg(f'ds_read_b128 {vr(self.AF + 4 * F, 4)}, v19 offset:{slot + F * 1024 if F < 8 else sgl}', tag)
        elif F < 8:
            a.lg(f'ds_read_b64_tr_b16 {d2}, v{16 + F % 2} offset:{slot + j * 1024 + (F // 2) * 256}', tag)
        else:
            a.lg(f'ds_read_b64_tr_b16 {d2}, v18 offset:{sgl + j * 256}', tag)

    def readB(self, s, jj):
        a = self.a
        if jj == 0:
            a.wait_vm(('B', s))
        for e in range(2):
            a.lg(f'ds_read_b128 {vr(self.BF + 16 * (s % 2) + 8 * jj + 4 * e, 4)}, v{21 + jj} offset:{(s % 2) * 16384 + e * 2048}', ('BR', s))

    def prologue_issue(self):
        for f in self.issueB() + self.issueA() + self.issueA() + self.issueA() + self.issueB() + self.issueA():
            f()

    def run_segment(self, u0, n, own=False):
        a = self.a
        a.e(f's_setprio {opt("pg", PG)[0]}')
        s0 = self.units[u0][2]
        self.readB(s0, 0)
        self.readB(s0, 1)
        a.wait_vm(('A', u0))
        a.wait_lg('own')
        a.e('s_barrier')
        for F in range(9):
            self.readA(u0, F, 0)
            self.readA(u0, F, 1)
        for u in range(u0, u0 + n):
            last = u == u0 + n - 1
            seg, kk, s, jj, _ = self.units[u]
            sfirst = u == u0 or self.units[u - 1][2] != s
            slast = last or self.units[u + 1][2] != s
            nf = self.nfr(u)
            if 'p2fine' in ABL and u >= self.UP + 4 and (u - self.UP - 4) % 10 == 0:
                stamp(a, 1 + (u - self.UP - 4) // 10)
            will_issue = self.nextA <= u + self.R - 1 and self.nextA < self.limitA
            if not last:
                a.wait_vm(('A', u + 1))
            if will_issue or (not last and not own):
                a.e('s_barrier')
            if u in self.hooks:
                self.hooks[u]()
            fill = list(self.issueA()) if self.nextA <= u + self.R - 1 else []
            if sfirst and self.nextB <= s + 2:
                fb = self.issueB()
                if fb:
                    f0 = fb[0]

                    def g0(f0=f0, s=s):
                        a.wait_lg(('BR', s))
                        f0()
                    self.pendB = [g0] + fb[1:]
            nb_now = len(self.pendB) if slast else 2
            fill += self.pendB[:nb_now]
            self.pendB = self.pendB[nb_now:]
            if nf == 9:
                slots = {1: [4], 2: [2, 6], 3: [1, 4, 7], 4: [1, 3, 5, 7], 5: [0, 2, 4, 6, 8], 6: [0, 2, 3, 5, 6, 8], 7: [0, 1, 2, 4, 5, 7, 8]}.get(len(fill), [])
            else:
                slots = {1: [3], 2: [1, 4], 3: [1, 3, 5]}.get(len(fill), [0, 1, 2, 3, 4, 5])
            for F in range(nf):
                a.wait_lg(('AR', u, F))
                if F == 0 and sfirst:
                    a.wait_lg(('BR', s))
                for e in range(2):
                    af = vr(self.AF + 4 * F, 4)
                    if seg == 'E':
                        d = vr(self.ACC1 + 8 * (F % 3) + 4 * e, 4)
                        c = '0' if (kk == 0 and F < 3) else d
                        bf = vr(self.BF + 16 * (s % 2) + 8 * (F // 3) + 4 * e, 4)
                    else:
                        d = vr((self.ACC1 if seg == 'z1' else self.ACC0) + 8 * F + 4 * e, 4)
                        c = '0' if kk == 0 else d
                        bf = vr(self.BF + 16 * (s % 2) + 8 * jj + 4 * e, 4)
                    if seg == 'z2':
                        a.e(f'v_mfma_f32_16x16x32_bf16 {d}, {bf}, {af}, {c}')
                    else:
                        a.e(f'v_mfma_f32_16x16x32_bf16 {d}, {af}, {bf}, {c}')
                    if e == 0:
                        if not last and F > 0:
                            self.readA(u + 1, F - 1, 1)
                        if fill and F in slots:
                            fill.pop(0)()
                    elif not last:
                        self.readA(u + 1, F, 0)
                        if F == nf - 1:
                            self.readA(u + 1, F, 1)
                        if nf == 6:
                            self.readA(u + 1, 6 + F // 2, F % 2)
                if not last and slast and F in ((4, 6) if nf == 9 else (1, 3)):
                    self.readB(s + 1, 0 if F in (4, 1) else 1)
            for f in fill:
                f()
        a.e(f's_setprio {opt("pg", PG)[1]}')

    def proj_store(self):
        a = self.a
        E = self.ACC1
        P = self.AF
        a.e(f's_mov_b32 s44, {hx(QSCALE)}')
        a.e(f's_mov_b32 s45, {hx(QSCALE)}')
        a.e('v_mov_b32 v24, s44')
        a.e('v_cmp_gt_u32 vcc, 32, v1')
        a.e('v_cndmask_b32 v24, 1.0, v24, vcc')
        a.e('s_lshl_b32 s46, s23, 5')
        a.e('s_add_u32 s46, s46, s22')
        a.e('s_mul_i32 s46, s46, 1152')
        a.e(f's_add_u32 s46, s46, {QF_OFF}')
        a.e(f's_add_u32 s47, s46, {16 * 1152}')
        a.e('v_lshlrev_b32 v25, 2, v1')
        for e in range(2):
            for t in range(2):
                for h in range(2):
                    r = E + 8 * t + 4 * e + 2 * h
                    a.e(f'v_pk_mul_f32 {vr(r, 2)}, {vr(r, 2)}, s[44:45]')
            r = E + 16 + 4 * e
            a.e(f'v_pk_mul_f32 {vr(r, 2)}, {vr(r, 2)}, v[24:25] op_sel_hi:[1,0]')
            for t in range(3):
                for h in range(2):
                    r = E + 8 * t + 4 * e + 2 * h
                    a.e(f'v_cvt_pk_bf16_f32 v{P + 8 * e + 2 * t + h}, v{r}, v{r + 1}')
            a.vm(f'buffer_store_dwordx4 {vr(P + 8 * e, 4)}, v19, s[12:15], s{46 + e} offen {SC}', 'pst')
        a.e('s_mov_b32 exec_hi, 0')
        for e in range(2):
            a.vm(f'buffer_store_dword v{P + 8 * e + 4}, v25, s[12:15], s{46 + e} offen offset:1024 {SC}', 'pst')
        a.e('s_mov_b64 exec, -1')
        le = a.newlabel('PJ_E')
        lv = a.newlabel('PJ_V')
        lt = a.newlabel('PJ_T')
        ls = a.newlabel('PJ_S')
        a.e('s_cmp_ge_u32 s22, 6')
        a.e(f's_cbranch_scc1 {le}')
        a.e(f's_mul_i32 s44, s23, {KV_TILE}')
        a.e(f's_add_u32 s44, s44, {KV_OFF}')
        a.e('v_and_b32 v24, 15, v1')
        a.e('v_bfe_u32 v25, v1, 4, 1')
        a.e('v_lshrrev_b32 v26, 2, v24')
        a.e('v_mul_u32_u24 v26, 168, v26')
        a.e('v_add_u32 v26, 1152, v26')
        a.e('v_and_b32 v27, 3, v1')
        a.e('s_mov_b32 exec_lo, 0')
        a.e('s_cmp_ge_u32 s22, 4')
        a.e(f's_cbranch_scc1 {lt}')
        a.e('s_cmp_ge_u32 s22, 2')
        a.e(f's_cbranch_scc1 {lv}')
        a.e('v_lshlrev_b32 v28, 4, v24')
        a.e('v_lshl_add_u32 v28, v25, 3, v28')
        a.e('s_lshl_b32 s45, s22, 9')
        a.e('s_add_u32 s44, s44, s45')
        a.e('s_add_u32 s45, s44, 256')
        a.e(f's_branch {ls}')
        a.label(lv)
        a.e('v_lshl_add_u32 v28, v27, 5, v26')
        a.e('v_lshl_add_u32 v28, v25, 3, v28')
        a.e('s_and_b32 s45, s22, 1')
        a.e('s_lshl_b32 s45, s45, 4')
        a.e('s_add_u32 s44, s44, s45')
        a.e(f's_add_u32 s45, s44, {4 * 168}')
        a.e(f's_branch {ls}')
        a.label(lt)
        lvt = a.newlabel('PJ_VT')
        a.e('s_cmp_eq_u32 s22, 5')
        a.e(f's_cbranch_scc1 {lvt}')
        a.e('v_lshlrev_b32 v28, 2, v24')
        a.e('s_mov_b32 exec_hi, 0xffff')
        for e in range(2):
            a.e(f'buffer_store_dword v{P + 8 * e + 4}, v28, s[12:15], s44 offen offset:{1024 + 64 * e} {SC}')
        a.e(f's_branch {le}')
        a.label(lvt)
        a.e('v_lshl_add_u32 v28, v27, 3, v26')
        a.e('v_add_u32 v28, 128, v28')
        a.e('v_add_u32 v29, 160, v26')
        a.e('v_cmp_eq_u32 vcc, 0, v25')
        a.e('v_cndmask_b32 v28, v29, v28, vcc')
        a.e('v_mov_b32 v29, 0x3f80')
        for e in range(2):
            a.e(f'v_cndmask_b32 v{P + 8 * e + 4}, 0, v{P + 8 * e + 4}, vcc')
            a.e(f'v_cndmask_b32 v{P + 8 * e + 5}, 0, v29, vcc')
        a.e(f's_add_u32 s45, s44, {4 * 168}')
        a.label(ls)
        for e in range(2):
            a.e(f'buffer_store_dwordx2 {vr(P + 8 * e + 4, 2)}, v28, s[12:15], s{44 + e} offen {SC}')
        a.label(le)
        a.e('s_mov_b64 exec, -1')

    def proj_signal(self):
        a = self.a
        a.wait_vm('pst')
        a.e('s_bfe_u32 s44, s22, 0x20001')
        a.e('s_lshl_b32 s44, s44, 3')
        a.e('s_bfe_u32 s45, s23, 0x30001')
        a.e('s_add_u32 s44, s44, s45')
        a.e('s_lshl_b32 s44, s44, 3')
        a.e('s_and_b32 s45, s2, 7')
        a.e('s_add_u32 s44, s44, s45')
        a.e('s_lshl_b32 s44, s44, 5')
        a.e('s_and_b32 s45, s23, 1')
        a.e('s_lshl_b32 s45, s45, 1')
        a.e('s_add_u32 s44, s44, s45')
        a.e('s_and_b32 s45, s22, 1')
        a.e('s_add_u32 s44, s44, s45')
        a.e('s_lshl_b32 s44, s44, 2')
        a.e(f's_add_u32 s44, s44, {GO_OFF}')
        set_flag(a, 44, 27)
        a.e('s_barrier')
        l = a.newlabel('PS')
        a.e('s_cmp_ge_u32 s22, 6')
        a.e(f's_cbranch_scc1 {l}')
        a.e('s_cmp_lg_u32 s20, 0')
        a.e(f's_cbranch_scc1 {l}')
        a.e('s_mul_i32 s44, s21, 6')
        a.e('s_add_u32 s44, s44, s22')
        a.e('s_lshl_b32 s44, s44, 2')
        a.e(f's_add_u32 s44, s44, {KVF_OFF}')
        a.e('v_lshlrev_b32 v27, 9, v1')
        a.e('s_mov_b64 exec, 0xff')
        a.e(f'buffer_store_dword v28, v27, s[12:15], s44 offen {SC}')
        a.e('s_mov_b64 exec, -1')
        a.label(l)

    def gelu_consts(self):
        a = self.a
        a.e(f's_mov_b32 s60, {hx(GELU_C1)}')
        a.e(f's_mov_b32 s61, {hx(GELU_C1)}')
        a.e(f'v_mov_b32 v30, {hx(GELU_C0)}')
        a.e(f'v_mov_b32 v31, {hx(GELU_C0)}')

    def z1_gelu(self, Fs=range(9)):
        a = self.a
        T = self.BF + 16
        for F in Fs:
            base = self.ACC1 + 8 * F
            gelu_group(a, [base + 2 * i for i in range(4)], T + 8 * (F % 2), 60, 30)

    def z2_gelu_publish(self):
        a = self.a
        T = self.AF + 16
        S = self.BF
        for F in range(9):
            if F == opt('psig', [5])[0]:
                self.proj_signal()
            base = self.ACC0 + 8 * F
            gelu_group(a, [base + 2 * i for i in range(4)], T + 8 * (F % 2), 60, 30)
            for i in range(4):
                y = vr(base + 2 * i, 2)
                if F == 0:
                    a.e(f'v_pk_add_f32 {vr(S + 2 * i, 2)}, {y}, 0 op_sel_hi:[1,0]')
                    a.e(f'v_pk_mul_f32 {vr(S + 8 + 2 * i, 2)}, {y}, {y}')
                else:
                    a.e(f'v_pk_add_f32 {vr(S + 2 * i, 2)}, {vr(S + 2 * i, 2)}, {y}')
                    a.e(f'v_pk_fma_f32 {vr(S + 8 + 2 * i, 2)}, {y}, {y}, {vr(S + 8 + 2 * i, 2)}')
        for b in (S, S + 8):
            for r in range(4):
                a.e(f'v_add_f32_dpp v{b + r}, v{b + r}, v{b + r} row_ror:8 row_mask:0xf bank_mask:0x3')
            for r in range(4):
                a.e(f'v_add_f32_dpp v{b + r}, v{b + r + 4}, v{b + r + 4} row_ror:8 row_mask:0xf bank_mask:0xc')
        for b in (S, S + 8):
            for r in range(2):
                a.e(f'v_add_f32_dpp v{b + r}, v{b + r}, v{b + r} row_shl:4 row_mask:0xf bank_mask:0x5')
            for r in range(2):
                a.e(f'v_add_f32_dpp v{b + r}, v{b + r + 2}, v{b + r + 2} row_shr:4 row_mask:0xf bank_mask:0xa')
        for qp in ('[1,0,3,2]', '[2,3,0,1]'):
            for r in (S, S + 1, S + 8, S + 9):
                a.e(f'v_add_f32_dpp v{r}, v{r}, v{r} quad_perm:{qp} row_mask:0xf bank_mask:0xf')
        a.e('v_and_b32 v25, 1, v1')
        a.e('v_cmp_eq_u32 vcc, 1, v25')
        G0 = S + 12
        a.e(f'v_cndmask_b32 v{G0}, v{S}, v{S + 1}, vcc')
        a.e(f'v_cndmask_b32 v{G0 + 1}, v{S + 8}, v{S + 9}, vcc')
        a.e('v_lshrrev_b32 v27, 2, v1')
        a.e('v_lshl_add_u32 v27, v27, 1, v25')
        a.e('v_lshlrev_b32 v27, 4, v27')
        a.e('s_lshl_b32 s48, s23, 13')
        a.e(f's_add_u32 s48, s48, {STATS_OFF}')
        a.e('s_lshl_b32 s49, s22, 9')
        a.e('s_add_u32 s49, s49, s48')
        a.e(f'v_mov_b32 v{G0 + 2}, s62')
        a.e(f'v_mov_b32 v{G0 + 3}, s62')
        a.e('s_mov_b32 exec_lo, 0x33333333')
        a.e('s_mov_b32 exec_hi, 0x33333333')
        a.vm(f'buffer_store_dwordx4 {vr(G0, 4)}, v27, s[12:15], s49 offen {SC}', 'st')
        a.e('s_mov_b64 exec, -1')

    def z2_gather_norm_store(self):
        a = self.a
        G = self.AF
        a.e('s_add_u32 s49, s48, 4096')

        def ld():
            for i in range(8):
                a.e(f'buffer_load_dwordx4 {vr(G + 4 * i, 4)}, v19, s[12:15], {"s48" if i < 4 else "s49"} offen offset:{1024 * (i % 4)} {SC}')
        poll(a, ld, [G + 4 * i + 2 for i in range(8)], 27)
        for i in (0, 2, 4, 6):
            a.e(f'v_pk_add_f32 {vr(G + 4 * i, 2)}, {vr(G + 4 * i, 2)}, {vr(G + 4 * i + 4, 2)}')
        a.e(f'v_pk_add_f32 {vr(G, 2)}, {vr(G, 2)}, {vr(G + 8, 2)}')
        a.e(f'v_pk_add_f32 {vr(G + 16, 2)}, {vr(G + 16, 2)}, {vr(G + 24, 2)}')
        a.e(f'v_pk_add_f32 {vr(G, 2)}, {vr(G, 2)}, {vr(G + 16, 2)}')
        a.e(f'v_mov_b32 v{G + 2}, v{G}')
        a.e(f'v_mov_b32 v{G + 3}, v{G + 1}')
        a.e(f'v_permlane32_swap_b32 v{G}, v{G + 2}')
        a.e(f'v_permlane32_swap_b32 v{G + 1}, v{G + 3}')
        a.e(f'v_pk_add_f32 {vr(G, 2)}, {vr(G, 2)}, {vr(G + 2, 2)}')
        a.e(f'v_mul_f32 v{G}, {hx(1.0 / 2304)}, v{G}')
        a.e(f'v_mul_f32 v{G + 1}, {hx(1.0 / 2304)}, v{G + 1}')
        a.e(f'v_fma_f32 v{G + 1}, -v{G}, v{G}, v{G + 1}')
        a.e(f'v_max_f32 v{G + 1}, 0, v{G + 1}')
        a.e(f'v_add_f32 v{G + 1}, {hx(1e-5)}, v{G + 1}')
        a.e(f'v_rsq_f32 v{G + 1}, v{G + 1}')
        a.e(f'v_mul_f32 v{G}, v{G}, v{G + 1}')
        a.e(f'v_sub_f32 v{G}, 0, v{G}')
        a.e('v_lshrrev_b32 v28, 4, v1')
        a.e('v_lshlrev_b32 v28, 5, v28')
        RS = self.BF
        for i in range(8):
            a.lg(f'ds_bpermute_b32 v{RS + i}, v28, v{G + 1} offset:{4 * i}', 'r')
            a.lg(f'ds_bpermute_b32 v{RS + 8 + i}, v28, v{G} offset:{4 * i}', 'r')
        a.e('s_mul_i32 s44, s23, 147456')
        a.e(f's_add_u32 s44, s44, {Z2_OFF}')
        a.e('s_lshl_b32 s45, s22, 13')
        a.e('s_add_u32 s45, s45, s44')
        a.e('s_add_u32 s47, s45, 4096')
        a.e('s_lshl_b32 s46, s22, 10')
        a.e('s_add_u32 s46, s46, s44')
        a.e(f's_add_u32 s46, s46, {128 * 1024}')
        a.wait_lg0()
        for F in range(9):
            base = self.ACC0 + 8 * F
            pk = self.ACC0 + 4 * F
            for i in range(4):
                a.e(f'v_pk_fma_f32 {vr(base + 2 * i, 2)}, {vr(base + 2 * i, 2)}, {vr(RS + 2 * i, 2)}, {vr(RS + 8 + 2 * i, 2)}')
            for i in range(4):
                a.e(f'v_cvt_pk_bf16_f32 v{pk + i}, v{base + 2 * i}, v{base + 2 * i + 1}')
            so = 's46' if F == 8 else ('s45' if F < 4 else 's47')
            a.vm(f'buffer_store_dwordx4 {vr(pk, 4)}, v19, s[12:15], {so} offen offset:{1024 * (F % 4)} {SC}', 'st')

    def own_write(self):
        a = self.a
        a.e('s_lshl_b32 s44, s20, 13')
        a.e('v_add_u32 v27, s44, v19')
        a.e('v_add_u32 v28, s30, v19')
        a.e('s_barrier')
        for F in range(9):
            pk = self.ACC0 + 4 * F
            if F < 8:
                a.lg(f'ds_write_b128 v27, {vr(pk, 4)} offset:{1024 * F}', 'own')
            else:
                a.lg(f'ds_write_b128 v28, {vr(pk, 4)} offset:4096', 'own')

    def sp_pre(self):
        a = self.a
        a.e('v_bfe_u32 v27, v1, 2, 2')
        a.e('v_lshlrev_b32 v27, 3, v27')
        a.e('v_and_b32 v28, 3, v1')
        a.e('s_lshl_b32 s44, s23, 5')
        a.e('v_add3_u32 v27, v27, v28, s44')
        a.e('v_lshlrev_b32 v28, 1, v27')
        a.e('v_lshlrev_b32 v11, 3, v27')
        a.vm('global_load_ushort v244, v28, s[56:57]', 'pre')
        a.vm('global_load_ushort v245, v28, s[56:57] offset:8', 'pre')
        self.gate_loads(True)

    def gate_loads(self, track=False):
        a = self.a
        a.e(f's_mov_b32 s44, {GATE_OFF}')
        for e in range(2):
            t = f'buffer_load_dwordx2 {vr(246 + 2 * e, 2)}, v11, s[12:15], s44 offen offset:{32 * e} {SC}'
            a.vm(t, 'pre') if track else a.e(t)

    def sp_epilogue(self):
        a = self.a
        a.wait_vm('pre')
        poll(a, self.gate_loads, [247, 249], 27, first_done=True)
        poll(a, lambda: p3_flags(a), [2, 3, 4], 27, first_done=True)
        for e in range(2):
            a.e(f'v_sub_f32 v{246 + 2 * e}, 1.0, v{246 + 2 * e}')
            a.e(f'v_lshlrev_b32 v{244 + e}, 16, v{244 + e}')
            a.e(f'v_mul_f32 v{250 + 2 * e}, v{244 + e}, v{246 + 2 * e}')
        a.e('s_mul_i32 s44, s23, 180')
        a.e('s_lshr_b32 s45, s22, 2')
        a.e('s_mul_i32 s45, s45, 18')
        a.e('s_add_u32 s44, s44, s45')
        a.e('s_lshl_b32 s44, s44, 10')
        a.e(f's_add_u32 s44, s44, {UF_OFF + 18 * 1024}')
        a.e('s_and_b32 s45, s22, 3')
        a.e('s_lshl_b32 s46, s45, 12')
        a.e('s_add_u32 s46, s46, s44')
        a.e(f's_add_u32 s47, s46, {90 * 1024}')
        a.e('s_lshr_b32 s48, s45, 1')
        a.e('s_lshl_b32 s48, s48, 10')
        a.e('s_add_u32 s48, s48, s44')
        a.e('s_and_b32 s49, s45, 1')
        a.e('s_lshl_b32 s49, s49, 3')
        a.e('s_add_u32 s48, s48, s49')
        a.e(f's_add_u32 s48, s48, {16 * 1024}')
        a.e(f's_add_u32 s49, s48, {90 * 1024}')
        idx = 0
        for m in range(5):
            for e in range(2):
                pk = self.AF + 4 * idx
                idx += 1
                Fs = (2 * m, 2 * m + 1) if m < 4 else (8,)
                prs = [(self.ACC0 + 8 * F + 4 * e + 2 * i, self.ACC1 + 8 * F + 4 * e + 2 * i) for F in Fs for i in range(2)]
                for g, z in prs:
                    a.e(f'v_pk_fma_f32 {vr(g, 2)}, {vr(g, 2)}, {vr(246 + 2 * e, 2)}, {vr(250 + 2 * e, 2)} op_sel_hi:[1,0,0]')
                for g, z in prs:
                    a.e(f'v_pk_mul_f32 {vr(g, 2)}, {vr(g, 2)}, {vr(z, 2)}')
                for i, (g, z) in enumerate(prs):
                    a.e(f'v_cvt_pk_bf16_f32 v{pk + i}, v{g}, v{g + 1}')
                for i in range(len(prs)):
                    a.e(f'v_min_u32 v{pk + i}, -2, v{pk + i}')
                if m < 4:
                    a.vm(f'buffer_store_dwordx4 {vr(pk, 4)}, v19, s[12:15], s{46 + e} offen offset:{1024 * m} {SC}', 'st')
                else:
                    a.vm(f'buffer_store_dwordx2 {vr(pk, 2)}, v19, s[12:15], s{48 + e} offen {SC}', 'st')


def write_nonce(a):
    l = a.newlabel('NOW')
    a.e('s_or_b32 s44, s3, s20')
    a.e('s_cmp_lg_u32 s44, 0')
    a.e(f's_cbranch_scc1 {l}')
    a.e('s_memrealtime s[44:45]')
    a.e('v_mov_b32 v29, 0')
    a.e('s_waitcnt lgkmcnt(0)')
    a.e('s_or_b32 s44, s44, 1')
    a.e('v_mov_b32 v28, s44')
    a.e(f'global_store_dword v29, v28, s[16:17] {SC}')
    a.label(l)


KVBUF = 40960
M_OFFSET = 64.0


class ATT:
    SB = 16
    OB = 48
    QF = 80
    KF = 96
    VF = 112
    PF = 128
    XF = 136
    WF = 208
    WQS = 16

    def __init__(self, a):
        self.a = a

    def setup(self, sid):
        a = self.a
        a.e(f's_load_dwordx2 s[4:5], s[0:1], {A_X}')
        a.e(f's_load_dwordx4 s[16:19], s[0:1], {A_DBG}')
        a.e(f's_load_dwordx4 s[56:59], s[0:1], {A_WOUT}')
        a.e(f's_load_dwordx2 s[36:37], s[0:1], {A_WO}')
        a.e('v_lshrrev_b32 v1, 6, v0')
        a.e('v_readfirstlane_b32 s20, v1')
        a.e('v_and_b32 v1, 63, v0')
        a.e(f's_and_b32 s24, s{sid}, 3')
        a.e(f's_lshr_b32 s25, s{sid}, 3')
        a.e('s_lshl_b32 s21, s24, 3')
        a.e('s_and_b32 s23, s25, 7')
        a.e('s_add_u32 s21, s21, s23')
        a.e(f's_and_b32 s22, s{sid}, 4')
        a.e('s_lshr_b32 s23, s25, 3')
        a.e('s_add_u32 s22, s22, s23')
        a.e('s_lshl_b32 s23, s21, 2')
        a.e('s_add_u32 s23, s23, s20')
        a.e('s_lshr_b32 s44, s23, 1')
        a.e('s_lshl_b32 s44, s44, 5')
        a.e('s_and_b32 s45, s23, 1')
        a.e('s_lshl_b32 s45, s45, 2')
        a.e('s_add_u32 s44, s44, s45')
        a.e('v_bfe_u32 v3, v1, 2, 2')
        a.e('v_lshlrev_b32 v3, 3, v3')
        a.e('v_and_b32 v10, 3, v1')
        a.e('v_add3_u32 v3, v3, v10, s44')
        a.e('v_lshlrev_b32 v3, 3, v3')
        a.e('s_mul_i32 s26, s20, 10240')
        a.e('s_lshl_b32 s27, s25, 2')
        a.e('s_add_u32 s27, s27, s20')
        if 'nocodepf' not in ABL:
            a.e('s_getpc_b64 s[46:47]')
            a.e('s_and_b32 s46, s46, 0xffffff00')
            a.e('s_mul_i32 s45, s27, 5')
            a.e('v_min_u32 v10, 4, v1')
            a.e('v_add_u32 v10, s45, v10')
            a.e('v_min_u32 v10, CODE_LINES, v10')
            a.e('v_lshlrev_b32 v10, 7, v10')
            a.e('global_load_dword v255, v10, s[46:47]')
        a.e('v_lshlrev_b32 v10, 4, v1')
        a.e('s_waitcnt lgkmcnt(0)')
        a.e('s_mov_b32 s12, s18')
        a.e('s_mov_b32 s13, s19')
        srd(a, 12, WS_SIZE)

    def nonce(self):
        a = self.a
        a.e('s_waitcnt vmcnt(0)')
        a.e('v_mov_b32 v2, 0')
        a.e(f'global_load_dword v4, v2, s[16:17] {SC}')
        a.e('s_waitcnt vmcnt(0)')
        get_nonce(a, 2, 4)

    def page_touch(self):
        a = self.a
        l = a.newlabel('PT')
        a.e('s_cmp_lg_u32 s20, 1')
        a.e(f's_cbranch_scc1 {l}')
        a.e(f's_load_dwordx2 s[44:45], s[0:1], {A_WSP}')
        a.e(f's_load_dwordx2 s[46:47], s[0:1], {A_OUT}')
        a.e('v_lshlrev_b32 v2, 19, v1')
        a.e('buffer_load_dword v255, v2, s[12:15], 0 offen')
        a.e('v_min_u32 v4, 15, v1')
        a.e('v_lshlrev_b32 v4, 19, v4')
        a.e('v_min_u32 v5, 4, v1')
        a.e('v_lshlrev_b32 v5, 19, v5')
        a.e('s_waitcnt lgkmcnt(0)')
        a.e('global_load_dword v255, v4, s[44:45]')
        a.e('global_load_dword v255, v5, s[46:47]')
        a.e('global_load_dword v255, v5, s[56:57]')
        a.label(l)

    SV = 140

    def side(self, part):
        a = self.a
        lg = a.newlabel('SJ_G')
        le = a.newlabel('SJ_E')
        a.e('s_cmp_eq_u32 s20, 3')
        a.e(f's_cbranch_scc1 {lg}')
        a.e('s_cmp_ge_u32 s63, 720')
        a.e(f's_cbranch_scc1 {le}')
        self.retile(part)
        a.e(f's_branch {le}')
        a.label(lg)
        self.gate(part)
        a.label(le)
        if part == 2:
            self.mark_flag()

    def gate(self, part):
        a = self.a
        V = self.SV
        X, W = V + 8, V + 44
        if part == 0:
            a.e(f'v_lshrrev_b32 v{V}, 3, v1')
            a.e('s_lshl_b32 s44, s3, 3')
            a.e(f'v_add_u32 v{V}, s44, v{V}')
            a.e(f'v_and_b32 v{V + 1}, 7, v1')
            a.e(f'v_lshlrev_b32 v{V + 1}, 4, v{V + 1}')
            a.e(f'v_mul_u32_u24 v{V + 2}, 1152, v{V}')
            a.e(f'v_add_u32 v{V + 2}, v{V + 2}, v{V + 1}')
            for i in range(9):
                a.e(f'global_load_dwordx4 {vr(X + 4 * i, 4)}, v{V + 2}, s[4:5] offset:{128 * i}')
                a.e(f'global_load_dwordx4 {vr(W + 4 * i, 4)}, v{V + 1}, s[58:59] offset:{128 * i}')
        elif part == 1:
            A0, A1, T0, T1 = V + 4, V + 5, V + 6, V + 7
            a.e(f'v_mov_b32 v{A0}, 0')
            a.e(f'v_mov_b32 v{A1}, 0')
            for i in range(36):
                a.e(f'v_lshlrev_b32 v{T0}, 16, v{X + i}')
                a.e(f'v_lshlrev_b32 v{T1}, 16, v{W + i}')
                a.e(f'v_and_b32 v{X + i}, 0xffff0000, v{X + i}')
                a.e(f'v_and_b32 v{W + i}, 0xffff0000, v{W + i}')
                a.e(f'v_fmac_f32 v{A0}, v{T0}, v{T1}')
                a.e(f'v_fmac_f32 v{A1}, v{X + i}, v{W + i}')
            a.e(f'v_add_f32 v{A0}, v{A0}, v{A1}')
            for m in ('quad_perm:[1,0,3,2]', 'quad_perm:[2,3,0,1]', 'row_half_mirror'):
                a.e(f'v_add_f32_dpp v{A0}, v{A0}, v{A0} {m} row_mask:0xf bank_mask:0xf')
            a.e(f'v_mul_f32 v{A0}, {hx(-1.4426950408889634)}, v{A0}')
            a.e(f'v_exp_f32 v{A0}, v{A0}')
            a.e(f'v_add_f32 v{A0}, 1.0, v{A0}')
            a.e(f'v_rcp_f32 v{A0}, v{A0}')
            a.e(f'v_mov_b32 v{A1}, s62')
            a.e(f'v_lshlrev_b32 v{V}, 3, v{V}')
            a.e(f's_mov_b32 s44, {GATE_OFF}')
            a.e('s_mov_b32 exec_lo, 0x01010101')
            a.e('s_mov_b32 exec_hi, 0x01010101')
            a.e(f'buffer_store_dwordx2 {vr(A0, 2)}, v{V}, s[12:15], s44 offen {SC}')
            a.e('s_mov_b64 exec, -1')

    def retile_setup(self):
        a = self.a
        V = self.SV
        a.e('s_mul_i32 s63, s3, 3')
        a.e('s_add_u32 s63, s63, s20')
        a.e('s_and_b32 s64, s63, 7')
        a.e('s_lshr_b32 s65, s63, 3')
        a.e('s_cmp_lt_u32 s65, 18')
        a.e('s_cselect_b32 s40, s36, s56')
        a.e('s_cselect_b32 s41, s37, s57')
        a.e(f's_mov_b32 s42, {2304 * 1152}')
        a.e(f's_cselect_b32 s42, {576 * 1152}, s42')
        a.e('s_mov_b32 s43, 0x00020000')
        a.e('s_sub_u32 s44, s65, 18')
        a.e('s_mul_i32 s45, s44, 57')
        a.e('s_lshr_b32 s45, s45, 10')
        a.e('s_mul_i32 s46, s45, 18')
        a.e('s_sub_u32 s44, s44, s46')
        a.e('s_lshl_b32 s46, s45, 9')
        a.e('s_lshl_b32 s47, s45, 6')
        a.e(f's_add_u32 s47, s47, {2048 - 512}')
        a.e('s_cmp_lt_u32 s44, 16')
        a.e('s_cselect_b32 s46, s46, s47')
        a.e('s_lshl_b32 s44, s44, 5')
        a.e('s_add_u32 s44, s44, s46')
        a.e('s_mov_b32 s45, 4')
        a.e('s_mov_b32 s46, 8')
        a.e('s_mov_b32 s47, 16')
        a.e('s_mov_b32 s48, 2')
        a.e('s_sub_u32 s49, s65, 16')
        a.e('s_mul_i32 s49, s49, 288')
        a.e('s_add_u32 s49, s49, 16')
        a.e('s_cmp_lt_u32 s65, 18')
        a.e('s_cselect_b32 s44, s49, s44')
        a.e('s_cselect_b32 s45, 72, s45')
        a.e('s_cselect_b32 s46, 144, s46')
        a.e('s_cselect_b32 s47, 36, s47')
        a.e('s_cselect_b32 s48, 18, s48')
        a.e('s_mul_i32 s49, s65, 36')
        a.e('s_cmp_lt_u32 s65, 16')
        a.e('s_cselect_b32 s44, s49, s44')
        a.e('s_cselect_b32 s45, 18, s45')
        a.e('s_cselect_b32 s46, 4, s46')
        a.e('s_cselect_b32 s47, 8, s47')
        a.e('s_cselect_b32 s48, 2, s48')
        for r in (44, 45, 46, 47):
            a.e(f's_mul_i32 s{r}, s{r}, 1152')
        a.e('s_mul_i32 s49, s64, 144')
        a.e('s_add_u32 s66, s44, s49')
        a.e('s_add_u32 s67, s66, s47')
        for i in range(2):
            a.e(f's_add_u32 s{68 + i}, s{66 + i}, s45')
        for i in range(4):
            a.e(f's_add_u32 s{70 + i}, s{66 + i}, s46')
        a.e(f'v_lshrrev_b32 v{V}, 5, v1')
        a.e(f'v_mul_lo_u32 v{V}, v{V}, s48')
        a.e('v_bfe_u32 v5, v1, 4, 1')
        a.e(f'v_add_u32 v{V}, v{V}, v5')
        a.e(f'v_mul_u32_u24 v{V}, 1152, v{V}')
        a.e('v_and_b32 v5, 15, v1')
        a.e('v_min_u32 v5, 8, v5')
        a.e(f'v_lshl_add_u32 v{V}, v5, 4, v{V}')
        a.e('v_lshrrev_b32 v5, 4, v1')
        a.e('v_bfe_u32 v6, v1, 2, 2')
        a.e('v_lshlrev_b32 v7, 11, v5')
        a.e('v_lshl_add_u32 v7, v6, 8, v7')
        a.e(f's_add_u32 s44, s26, {KVBUF}')
        a.e('v_add_u32 v7, s44, v7')
        a.e('v_and_b32 v6, 3, v1')
        a.e(f'v_lshl_add_u32 v{V + 2}, v6, 3, v7')
        a.e(f'v_lshl_add_u32 v{V + 1}, v6, 4, v7')
        a.e('v_and_b32 v6, 7, v1')
        a.e('v_lshl_add_u32 v5, v5, 3, v6')
        a.e('v_lshlrev_b32 v5, 4, v5')
        a.e(f'v_add_u32 v{V + 3}, 4096, v5')

    def retile(self, part):
        a = self.a
        V = self.SV
        F = V + 8
        if part == 0:
            for i in range(8):
                a.e(f's_add_u32 m0, s26, {KVBUF + 1024 * i}')
                a.e(f'buffer_load_dwordx4 v{V}, s[40:43], s{66 + i} offen lds')
        elif part == 1:
            for nt in range(5):
                for j in range(2):
                    if nt < 4:
                        a.e(f'ds_read_b64_tr_b16 {vr(F + 4 * nt + 2 * j, 2)}, v{V + 1} offset:{64 * (nt // 2) + 8 * (nt % 2) + 1024 * j}')
                    else:
                        a.e(f'ds_read_b64_tr_b16 {vr(F + 4 * nt + 2 * j, 2)}, v{V + 2} offset:{128 + 1024 * j}')
            a.e('s_mul_i32 s44, s64, 90')
            a.e('s_add_u32 s44, s44, s65')
            a.e('s_mul_i32 s44, s44, 4608')
            a.e(f's_add_u32 s44, s44, {W3_OFF}')
            a.e('s_waitcnt lgkmcnt(0)')
            for nt in range(4):
                a.e(f'buffer_store_dwordx4 {vr(F + 4 * nt, 4)}, v10, s[12:15], s44 offen offset:{1024 * nt} {SC}')
            a.e('s_mov_b32 exec_lo, 0x00ff00ff')
            a.e('s_mov_b32 exec_hi, 0x00ff00ff')
            a.e(f'buffer_store_dwordx4 {vr(F + 16, 4)}, v{V + 3}, s[12:15], s44 offen {SC}')
            a.e('s_mov_b64 exec, -1')
        else:
            a.e('s_lshl_b32 s44, s64, 7')
            a.e('s_add_u32 s44, s44, s65')
            a.e('s_lshl_b32 s44, s44, 2')
            a.e(f's_add_u32 s44, s44, {FW3_OFF}')
            set_flag(a, 44, V + 4)

    def issue_kv(self, buf_s=None, buf=None, flags=''):
        a = self.a
        for g in range(3):
            if buf_s is not None:
                a.e(f's_add_u32 m0, s{buf_s}, {4096 * g}')
            else:
                a.e(f's_add_u32 m0, s31, {buf * KVBUF + 4096 * g}')
            for i in range(4 if g < 2 else 2):
                a.vm(f'buffer_load_dwordx4 v15, s[12:15], s30 offen offset:{1024 * i} {flags} lds', 'kv')
            a.e('s_add_u32 s30, s30, 4096')
        a.e(f's_add_u32 s30, s30, {16 * KV_TILE - 3 * 4096}')

    def q_phase(self):
        a = self.a
        a.e('s_mov_b32 s31, s26')
        a.e('v_add_u32 v15, s31, v10')
        a.e(f's_mov_b32 s30, {KV_OFF}')
        l = a.newlabel('KVR')
        a.e('s_cmp_lg_u32 s20, 0')
        a.e(f's_cbranch_scc1 {l}')
        self.nonce()
        a.e('v_mov_b32 v4, s62')
        a.e('ds_write_b32 v2, v4')
        a.e('s_lshl_b32 s44, s3, 7')
        a.e(f's_add_u32 s44, s44, {GO_OFF}')
        a.e('v_and_b32 v2, 3, v1')
        a.e('v_lshlrev_b32 v2, 2, v2')
        poll(a, lambda: a.e(f'buffer_load_dword v40, v2, s[12:15], s44 offen {SC}'), [40], 42, sleep=8)
        a.e('s_and_b32 s44, s3, 7')
        a.e('s_lshl_b32 s44, s44, 9')
        a.e(f's_add_u32 s44, s44, {KVF_OFF}')
        a.e('v_min_u32 v2, 47, v1')
        a.e('v_lshlrev_b32 v2, 3, v2')
        poll(a, lambda: a.e(f'buffer_load_dwordx2 v[40:41], v2, s[12:15], s44 offen {SC}'), [40, 41], 42, sleep=opt('ksl', [6])[0])
        a.e('s_waitcnt lgkmcnt(0)')
        a.label(l)
        a.e('s_barrier')
        a.e('v_mov_b32 v2, 0')
        a.e('ds_read_b32 v4, v2')
        a.e('s_waitcnt lgkmcnt(0)')
        a.e('v_readfirstlane_b32 s62, v4')
        a.e('s_barrier')
        stamp(a, 6)
        a.vmq = []
        a.e('s_lshl_b32 s44, s23, 3')
        a.e('s_add_u32 s44, s44, s22')
        a.e('s_mul_i32 s44, s44, 2304')
        a.e(f's_add_u32 s44, s44, {QF_OFF}')
        a.e('v_and_b32 v11, 31, v1')
        a.e('v_lshlrev_b32 v11, 2, v11')
        a.e('v_add_u32 v11, 1024, v11')
        for p in range(2):
            a.vm(f'buffer_load_dwordx4 {vr(self.QF + 8 * p, 4)}, v10, s[12:15], s44 offen offset:{1152 * p} {SCL}', 'q')
            a.vm(f'buffer_load_dword v{self.PF + p}, v11, s[12:15], s44 offen offset:{1152 * p} {SCL}', 'q')
        self.issue_kv(buf=1, flags=SCL)
        self.issue_kv(buf=0, flags=SCL)
        for p in range(2):
            for i in (5, 6, 7):
                a.e(f'v_mov_b32 v{self.QF + 8 * p + i}, 0')
            a.e(f'v_mov_b32 v{self.KF + 8 * p + 5}, 0x3f803f80')
            a.e(f'v_mov_b32 v{self.KF + 8 * p + 6}, 0x3f80')
            a.e(f'v_mov_b32 v{self.KF + 8 * p + 7}, 0')
        a.e('v_bfe_u32 v2, v1, 2, 2')
        a.e('v_and_b32 v4, 3, v1')
        a.e('v_lshlrev_b32 v12, 5, v2')
        a.e('v_lshl_add_u32 v12, v4, 3, v12')
        a.e('v_lshlrev_b32 v2, 3, v2')
        a.e('v_add_u32 v2, 128, v2')
        a.e('v_mov_b32 v13, 160')
        a.e('v_cmp_eq_u32 vcc, 0, v4')
        a.e('v_cndmask_b32 v2, v13, v2, vcc')
        a.e('v_and_b32 v4, 16, v1')
        a.e('v_cmp_eq_u32 vcc, 0, v4')
        a.e('v_cndmask_b32 v12, v2, v12, vcc')
        a.e('v_lshrrev_b32 v2, 5, v1')
        a.e('v_mul_u32_u24 v2, 168, v2')
        a.e('v_add_u32 v12, v12, v2')
        a.e('v_add_u32 v12, 1152, v12')
        a.wait_vm('q')
        a.e('v_cmp_gt_u32 vcc, 32, v1')
        for p in range(2):
            a.e(f'v_cndmask_b32 v{self.QF + 8 * p + 4}, 0, v{self.PF + p}, vcc')

    def readK(self, j):
        a = self.a
        b = self.KF + 8 * (j % 2)
        off = (j % 16) * KV_TILE
        a.lg(f'ds_read_b128 {vr(b, 4)}, v5 offset:{off}', ('K', j))
        a.lg(f'ds_read_b32 v{b + 4}, v6 offset:{off}', ('K', j))

    def readV(self, j, m):
        a = self.a
        b = self.VF + 8 * (j % 2)
        off = (j % 16) * KV_TILE
        for jj in range(2):
            a.lg(f'ds_read_b64_tr_b16 {vr(b + 4 * m + 2 * jj, 2)}, v7 offset:{off + (4 * m + 2 * jj) * 168}', ('V', j))

    def S(self, n, part):
        j, qt = n // 2, n % 2
        d = vr(self.SB + 16 * (n % 2), 16)
        k = self.KF + 8 * (j % 2) + 4 * part
        q = self.QF + 8 * qt + 4 * part
        self.a.e(f'v_mfma_f32_32x32x16_bf16 {d}, {vr(k, 4)}, {vr(q, 4)}, {"0" if part == 0 else d}')

    def PV(self, n, m):
        j, qt = n // 2, n % 2
        d = vr(self.OB + 16 * qt, 16)
        self.a.e(f'v_mfma_f32_32x32x16_bf16 {d}, {vr(self.VF + 8 * (j % 2) + 4 * m, 4)}, {vr(self.PF + 4 * m, 4)}, {d}')

    def set_m(self, qt, vm, add):
        a = self.a
        q = self.QF + 8 * qt
        a.e(f'v_sub_f32 v2, {hx(-add)}, v{vm}')
        a.e('v_and_b32 v4, 0xffff0000, v2')
        a.e('v_sub_f32 v2, v2, v4')
        a.e('v_and_b32 v13, 0xffff0000, v2')
        a.e('v_sub_f32 v2, v2, v13')
        a.e('v_lshrrev_b32 v4, 16, v4')
        a.e('v_or_b32 v4, v4, v13')
        a.e('v_lshrrev_b32 v2, 16, v2')
        a.e('v_cmp_gt_u32 vcc, 32, v1')
        a.e(f'v_cndmask_b32 v{q + 5}, 0, v4, vcc')
        a.e(f'v_cndmask_b32 v{q + 6}, 0, v2, vcc')

    def max16(self, b, dst, first):
        a = self.a
        if first:
            a.e(f'v_max3_f32 v{dst}, v{b}, v{b + 1}, v{b + 2}')
            a.e(f'v_max_f32 v{dst}, v{dst}, v{b + 3}')
            r = range(4, 16, 2)
        else:
            r = range(0, 16, 2)
        for i in r:
            a.e(f'v_max3_f32 v{dst}, v{b + i}, v{b + i + 1}, v{dst}')

    def halves_max(self, r):
        a = self.a
        a.e(f'v_mov_b32 v2, v{r}')
        a.e(f'v_permlane32_swap_b32 v{r}, v2')
        a.e(f'v_max_f32 v{r}, v{r}, v2')

    def main(self, flags=''):
        a = self.a
        L_PASS = a.newlabel('ATT_PASS')
        L_LOOP = a.newlabel('ATT_LOOP')
        L_NOKV = a.newlabel('ATT_NOKV')
        L_FIN = a.newlabel('ATT_FIN')
        a.e('s_mov_b32 s33, 0')
        a.e('s_mov_b32 s39, 0')
        for i in range(3):
            a.e(f'v_add_u32 v{5 + i}, {KVBUF}, v{10 + i}')
        a.e('s_waitcnt vmcnt(10)')
        a.vmq = a.vmq[-10:]
        a.e('s_barrier')
        self.readK(0)
        a.wait_lg0()
        for qt in range(2):
            self.S(qt, 0)
            self.S(qt, 1)
        for qt in range(2):
            self.max16(self.SB + 16 * qt, 8 + qt, True)
            self.halves_max(8 + qt)
            self.set_m(qt, 8 + qt, M_OFFSET)
        a.label(L_PASS)
        self.readK(0)
        self.readK(1)
        self.readV(0, 0)
        self.readV(0, 1)
        for i in range(32):
            a.e(f'v_mov_b32 v{self.OB + i}, 0')
        for i in range(4):
            a.e(f'v_mov_b32 v{self.PF + 4 + i}, 0')
            a.e(f'v_mov_b32 v{self.VF + 12 + i}, 0')
        a.e('s_mov_b32 s34, 0')
        a.e(f's_add_u32 s35, s31, {KVBUF}')
        a.e(f's_mov_b32 s37, {-KVBUF & 0xffffffff}')
        a.wait_lg0()
        self.S(0, 0)
        self.S(0, 1)
        a.e('s_nop 7')
        a.label(L_LOOP)
        a.wait_lg0()
        if opt('gate'):
            lng = a.newlabel('ATT_NG')
            a.e(f's_cmp_lg_u32 s34, {opt("gate")[0]}')
            a.e(f's_cbranch_scc1 {lng}')
            a.e('s_lshl_b32 s44, s3, 7')
            a.e(f's_add_u32 s44, s44, {PROG_OFF}')
            a.e('v_mov_b32 v2, 0')
            poll(a, lambda: a.e(f'buffer_load_dword v4, v2, s[12:15], s44 offen {SC}'), [4], 8, sleep=8)
            if 'gateprio' in ABL:
                a.e('s_setprio 1')
            a.label(lng)
        if opt('aprio'):
            lp = a.newlabel('ATT_P')
            a.e(f's_cmp_lg_u32 s34, {opt("aprio")[0]}')
            a.e(f's_cbranch_scc1 {lp}')
            a.e('s_setprio 1')
            a.label(lp)
        for n in range(32):
            j, qt = n // 2, n % 2
            sb = self.SB + 16 * (n % 2)
            if n == 29:
                a.e('s_waitcnt vmcnt(0) lgkmcnt(0)')
                a.vmq = []
                a.lgq = []
                a.e('s_barrier')
                for i in range(3):
                    a.e(f'v_add_u32 v{5 + i}, s37, v{5 + i}')
                a.e('s_cmp_ge_u32 s34, 2')
                a.e(f's_cbranch_scc1 {L_NOKV}')
                ls0 = a.newlabel('ATT_S0')
                ls2 = a.newlabel('ATT_S2')
                a.e('s_cmp_eq_u32 s39, 0')
                a.e(f's_cbranch_scc1 {ls0}')
                self.issue_kv(buf_s=35, flags=flags)
                a.e('s_cmp_lg_u32 s39, 2')
                a.e(f's_cbranch_scc1 {L_NOKV}')
                self.side(2)
                a.e('s_mov_b32 s39, 3')
                a.e(f's_branch {L_NOKV}')
                a.label(ls0)
                self.side(0)
                a.e('s_mov_b32 s39, 1')
                a.label(L_NOKV)
                self.gate_load()
                a.e('s_add_u32 s35, s35, s37')
                a.e('s_sub_u32 s37, 0, s37')
            if n in (12, 16, 20, 24):
                lm = a.newlabel('ATT_M')
                a.e('s_cmp_lg_u32 s39, 2')
                a.e(f's_cbranch_scc1 {lm}')
                self.mark_part(3 * (n - 12) // 4, 3 * (n - 12) // 4 + 3)
                a.label(lm)
            if n == 8:
                ls1 = a.newlabel('ATT_S1')
                a.e('s_cmp_lg_u32 s39, 1')
                a.e(f's_cbranch_scc1 {ls1}')
                a.e('s_waitcnt vmcnt(0)')
                self.side(1)
                self.issue_kv(buf=1, flags=flags)
                a.e('s_mov_b32 s39, 2')
                a.label(ls1)
            if qt == 1:
                a.wait_lg(('K', j + 1))
            self.S(n + 1, 0)
            for i in range(0, 4):
                a.e(f'v_exp_f32 v{sb + i}, v{sb + i}')
            self.PV(n - 1, 1)
            if qt == 0:
                self.readV(j + 1, 0)
            else:
                self.readK(j + 2)
            for i in range(4, 8):
                a.e(f'v_exp_f32 v{sb + i}, v{sb + i}')
            self.S(n + 1, 1)
            for i in range(4):
                a.e(f'v_cvt_pk_bf16_f32 v{self.PF + i}, v{sb + 2 * i}, v{sb + 2 * i + 1}')
            for i in range(8, 12):
                a.e(f'v_exp_f32 v{sb + i}, v{sb + i}')
            if qt == 0:
                a.wait_lg(('V', j))
            self.PV(n, 0)
            if qt == 0:
                self.readV(j + 1, 1)
            for i in range(12, 16):
                a.e(f'v_exp_f32 v{sb + i}, v{sb + i}')
            for i in range(4, 8):
                a.e(f'v_cvt_pk_bf16_f32 v{self.PF + i}, v{sb + 2 * i}, v{sb + 2 * i + 1}')
        a.e('s_add_u32 s34, s34, 1')
        a.e('s_cmp_lt_u32 s34, 4')
        a.e(f's_cbranch_scc1 {L_LOOP}')
        self.PV(31, 1)
        a.wait_all()
        a.e('s_cmp_lg_u32 s33, 0')
        a.e(f's_cbranch_scc1 {L_FIN}')
        a.e(f'v_max3_f32 v2, |v{self.OB}|, |v{self.OB + 1}|, |v{self.OB + 2}|')
        regs = [self.OB + i for i in range(3, 11)] + [self.OB + 16 + i for i in range(11)] + [self.OB + 16]
        for i in range(0, len(regs), 2):
            a.e(f'v_max3_f32 v2, |v{regs[i]}|, |v{regs[i + 1]}|, v2')
        a.e(f's_mov_b32 s44, {hx(2.0 ** 110)}')
        a.e('v_cmp_nlt_f32 vcc, v2, s44') if False else a.e('v_cmp_ngt_f32 vcc, s44, v2')
        a.e(f'v_add_f32 v4, v{self.OB + 10}, v{self.OB + 26}')
        a.e('v_cmp_u_f32 s[46:47], v4, v4')
        a.e('s_or_b64 vcc, vcc, s[46:47]')
        a.e('s_cmp_lg_u64 vcc, 0')
        a.e('s_cselect_b32 s44, 1, 0')
        a.e('v_mov_b32 v2, s44')
        a.e('s_lshl_b32 s45, s20, 2')
        a.e(f's_add_u32 s45, s45, {16 * KV_TILE}')
        a.e('v_mov_b32 v4, s45')
        a.e('ds_write_b32 v4, v2')
        a.e(f'v_mov_b32 v4, {16 * KV_TILE}')
        a.e('s_waitcnt lgkmcnt(0)')
        a.e('s_barrier')
        a.e(f'ds_read_b128 {vr(self.PF, 4)}, v4')
        a.e('s_waitcnt lgkmcnt(0)')
        a.e(f'v_or3_b32 v2, v{self.PF}, v{self.PF + 1}, v{self.PF + 2}')
        a.e(f'v_or_b32 v2, v2, v{self.PF + 3}')
        a.e('v_readfirstlane_b32 s44, v2')
        a.e('s_cmp_eq_u32 s44, 0')
        a.e(f's_cbranch_scc1 {L_FIN}')
        L_MC = a.newlabel('ATT_MC')
        L_MT = a.newlabel('ATT_MT')
        a.e('s_mov_b32 s33, 1')
        for p in range(2):
            a.e(f'v_mov_b32 v{self.QF + 8 * p + 5}, 0')
            a.e(f'v_mov_b32 v{self.QF + 8 * p + 6}, 0')
            a.e(f'v_mov_b32 v{8 + p}, 0xff7fffff')
        a.e(f's_mov_b32 s30, {KV_OFF}')
        a.e('s_mov_b32 s34, 0')
        a.label(L_MC)
        a.e('s_barrier')
        self.issue_kv(buf=0, flags=flags)
        a.e('v_mov_b32 v5, v10')
        a.e('v_mov_b32 v6, v11')
        a.e('s_mov_b32 s36, 0')
        a.wait_vm0()
        a.e('s_barrier')
        a.label(L_MT)
        self.readK(0)
        a.wait_lg0()
        for qt in range(2):
            self.S(qt, 0)
            self.S(qt, 1)
        a.e(f'v_add_u32 v5, {KV_TILE}, v5')
        a.e(f'v_add_u32 v6, {KV_TILE}, v6')
        for qt in range(2):
            self.max16(self.SB + 16 * qt, 8 + qt, False)
        a.e('s_add_u32 s36, s36, 1')
        a.e('s_cmp_lt_u32 s36, 16')
        a.e(f's_cbranch_scc1 {L_MT}')
        a.e('s_add_u32 s34, s34, 1')
        a.e('s_cmp_lt_u32 s34, 4')
        a.e(f's_cbranch_scc1 {L_MC}')
        for qt in range(2):
            self.halves_max(8 + qt)
            self.set_m(qt, 8 + qt, 0.0)
        a.e('s_barrier')
        a.e(f's_mov_b32 s30, {KV_OFF}')
        self.issue_kv(buf=1, flags=flags)
        self.issue_kv(buf=0, flags=flags)
        for i in range(3):
            a.e(f'v_add_u32 v{5 + i}, {KVBUF}, v{10 + i}')
        a.e('s_waitcnt vmcnt(10)')
        a.e('s_barrier')
        a.e(f's_branch {L_PASS}')
        a.label(L_FIN)
        a.vmq = []
        a.lgq = []

    def mark(self):
        a = self.a
        a.e('s_mul_i32 s44, s23, 90')
        a.e('s_lshl_b32 s52, s22, 1')
        a.e('s_add_u32 s52, s52, s44')
        a.e('s_lshl_b32 s52, s52, 10')
        a.e(f's_add_u32 s52, s52, {UF_OFF}')
        a.e('s_lshr_b32 s53, s22, 2')
        a.e('s_add_u32 s53, s53, s44')
        a.e('s_lshl_b32 s53, s53, 10')
        a.e('s_and_b32 s47, s22, 3')
        a.e('s_lshl_b32 s47, s47, 8')
        a.e('s_add_u32 s53, s53, s47')
        a.e(f's_add_u32 s53, s53, {UF_OFF + 16 * 1024}')
        a.e('s_mul_i32 s54, s22, 9')
        a.e('s_add_u32 s54, s54, s44')
        a.e('s_lshl_b32 s54, s54, 10')
        a.e(f's_add_u32 s54, s54, {UF_OFF + 18 * 1024}')
        for i in range(4):
            a.e(f'v_mov_b32 v{224 + i}, -1')
        a.e('v_lshlrev_b32 v228, 2, v1')

    def mark_part(self, lo, hi):
        a = self.a
        for i in range(lo, hi):
            if i < 2:
                a.e(f'buffer_store_dwordx4 v[224:227], v10, s[12:15], s52 offen offset:{1024 * i} {SC}')
            elif i == 2:
                a.e(f'buffer_store_dword v224, v228, s[12:15], s53 offen {SC}')
            else:
                a.e(f'buffer_store_dwordx4 v[224:227], v10, s[12:15], s54 offen {SC}')
                a.e('s_add_u32 s54, s54, 1024')

    def mark_flag(self):
        a = self.a
        a.e('s_lshl_b32 s44, s23, 3')
        a.e('s_add_u32 s44, s44, s22')
        a.e('s_lshl_b32 s44, s44, 2')
        a.e(f's_add_u32 s44, s44, {PZ_OFF}')
        set_flag(a, 44, 230)

    def epilogue(self, flags=''):
        a = self.a
        a.e('v_and_b32 v4, 15, v1')
        a.e('v_lshlrev_b32 v4, 4, v4')
        a.e('v_bfe_u32 v5, v1, 4, 1')
        a.e('v_lshl_add_u32 v4, v5, 2, v4')
        poll(a, self.gate_load, [self.XF + 1], 8, first_done=True)
        for qt in range(2):
            o = self.OB + 16 * qt
            a.e(f'v_mov_b32 v2, v{o + 10}')
            a.e(f'v_permlane32_swap_b32 v{o + 10}, v2')
            a.e(f'v_rcp_f32 v6, v{o + 10}')
            a.e(f'v_mul_f32 v6, v6, v{self.XF}')
            for i in range(5):
                a.e(f'v_pk_mul_f32 {vr(o + 2 * i, 2)}, {vr(o + 2 * i, 2)}, v[6:7] op_sel_hi:[1,0]')
            pk = self.SB + 8 * qt
            for i in range(5):
                a.e(f'v_cvt_pk_bf16_f32 v{pk + i}, v{o + 2 * i}, v{o + 2 * i + 1}')
            for i in range(5):
                a.e(f'v_min_u32 v{pk + i}, -2, v{pk + i}')
            a.e(f'buffer_store_dwordx4 {vr(pk, 4)}, v10, s[12:15], s52 offen offset:{1024 * qt} {flags}')
            a.e('s_mov_b32 exec_hi, 0')
            a.e(f'buffer_store_dword v{pk + 4}, v4, s[12:15], s53 offen offset:{8 * qt} {flags}')
            a.e('s_mov_b64 exec, -1')

    def gate_load(self):
        a = self.a
        a.e(f's_mov_b32 s38, {GATE_OFF}')
        a.e(f'buffer_load_dwordx2 {vr(self.XF, 2)}, v3, s[12:15], s38 offen {SC}')


def p3_pre(a):
    a.e('s_and_b32 s44, s22, 1')
    a.e('s_lshl_b32 s66, s21, 1')
    a.e('s_add_u32 s66, s66, s44')
    a.e('s_lshr_b32 s67, s22, 1')
    a.e('s_lshl_b32 s68, s21, 8')
    a.e(f's_add_u32 s68, s68, {PZ_OFF}')
    a.e('s_lshl_b32 s69, s67, 9')
    a.e(f's_add_u32 s69, s69, {FW3_OFF}')
    a.e('v_lshlrev_b32 v7, 2, v1')
    a.e('v_min_u32 v8, 44, v1')
    a.e('v_lshlrev_b32 v8, 3, v8')
    p3_flags(a)
    a.vmq += ['pre', 'pre']


def p3_flags(a):
    a.e(f'buffer_load_dword v4, v7, s[12:15], s68 offen {SC}')
    a.e(f'buffer_load_dwordx2 v[2:3], v8, s[12:15], s69 offen {SC}')


def p3(a):
    ACC = 16
    FR = 112
    HF = 240
    DEPTH = 4
    NS = 23
    a.e('s_mul_i32 s44, s20, 18')
    a.e('s_add_u32 s44, s44, 18')
    a.e('s_mul_i32 s45, s20, 5')
    a.e('s_cmp_eq_u32 s20, 3')
    a.e('s_cselect_b32 s46, 1, 0')
    a.e('s_sub_u32 s45, s45, s46')
    a.e('s_mul_i32 s46, s67, 90')
    a.e('s_add_u32 s25, s44, s46')
    a.e('s_mul_i32 s25, s25, 4608')
    a.e(f's_add_u32 s25, s25, {W3_OFF}')
    a.e('s_add_u32 s31, s45, s46')
    a.e('s_mul_i32 s31, s31, 4608')
    a.e(f's_add_u32 s31, s31, {W3_OFF}')
    a.e('v_lshrrev_b32 v6, 4, v1')
    a.e('v_lshlrev_b32 v6, 3, v6')
    a.e('v_and_b32 v9, 7, v1')
    a.e('v_add_u32 v6, v6, v9')
    a.e('v_lshlrev_b32 v6, 4, v6')
    a.e('v_bfe_u32 v9, v1, 3, 1')
    a.e('v_mul_u32_u24 v9, 4608, v9')
    a.e('v_add_u32 v6, v6, v9')
    a.e('v_add_u32 v6, 4096, v6')
    a.e('v_mov_b32 v12, v19')

    def loadW(k):
        b = FR + 32 * (k % DEPTH)
        if k == 18:
            a.e('s_mov_b32 s25, s31')
        for nt in range(4):
            a.vm(f'buffer_load_dwordx4 {vr(b + 4 * nt, 4)}, v12, s[12:15], s25 offen offset:{1024 * nt} {SCL}', ('W', k))
        if k % 2 == 0:
            a.vm(f'buffer_load_dwordx4 {vr(HF + 4 * ((k // 2) % 3), 4)}, v6, s[12:15], s25 offen {SCL}', ('W', k))
        a.e('s_add_u32 s25, s25, 4608')

    def loadF(k, track=True):
        b = FR + 32 * (k % DEPTH)
        a.e(f's_add_u32 s24, s{28 if k < 18 else 30}, {1024 * (k if k < 18 else k - 18)}')
        for i in range(4):
            t = f'buffer_load_dwordx4 {vr(b + 16 + 4 * i, 4)}, v{2 + i}, s[12:15], s24 offen {SCL}'
            a.vm(t, ('F', k)) if track else a.e(t)
    for k in range(opt('wpre', [2])[0]):
        loadW(k)
    a.e('s_mul_i32 s46, s66, 360')
    a.e('s_add_u32 s28, s44, s46')
    a.e('s_lshl_b32 s28, s28, 10')
    a.e(f's_add_u32 s28, s28, {UF_OFF}')
    a.e('s_add_u32 s30, s45, s46')
    a.e('s_lshl_b32 s30, s30, 10')
    a.e(f's_add_u32 s30, s30, {UF_OFF}')
    for i in range(4):
        a.e(f's_add_u32 s44, s20, {i}')
        a.e('s_and_b32 s44, s44, 3')
        a.e('s_mul_i32 s44, s44, 92160')
        a.e(f'v_add_u32 v{2 + i}, s44, v12')
    a.e('s_mov_b32 s8, s64')
    a.e('s_mov_b32 s9, s65')
    srd(a, 8, 2048 * 1152)
    a.e(f's_mov_b32 s51, {SPIN_MAX}')
    a.wait_vm('st')
    for k in range(DEPTH):
        if k >= opt('wpre', [2])[0]:
            loadW(k)
        loadF(k)
    stamp(a, 5)
    a.e(f's_setprio {opt("pg", PG)[2]}')
    lskip = a.newlabel('P3_SKIP')
    for k in range(NS):
        b = FR + 32 * (k % DEPTH)
        if k == NS - 1:
            a.e('s_cmp_ge_u32 s20, 2')
            a.e(f's_cbranch_scc1 {lskip}')
            a.wait_vm0()
        a.wait_vm(('F', k))
        lc = a.newlabel('P3_C')
        lok = a.newlabel('P3_OK')
        a.label(lc)
        a.e(f'v_max3_u32 v9, v{b + 16}, v{b + 17}, v{b + 18}')
        a.e(f'v_max3_u32 v10, v{b + 19}, v{b + 20}, v{b + 21}')
        for i in range(22, 32, 4):
            a.e(f'v_max3_u32 v9, v{b + i}, v{b + i + 1}, v9')
            if i + 2 < 32:
                a.e(f'v_max3_u32 v10, v{b + i + 2}, v{b + i + 3}, v10')
        a.e('v_max_u32 v9, v9, v10')
        a.e('v_cmp_eq_u32 vcc, -1, v9')
        a.e(f's_cbranch_vccz {lok}')
        a.e(f's_sleep {opt("psl", [4])[0]}')
        loadF(k, False)
        a.e('s_waitcnt vmcnt(0)')
        a.e('s_sub_u32 s51, s51, 1')
        a.e('s_cmp_lt_i32 s51, 1')
        a.e(f's_cbranch_scc0 {lc}')
        a.label(lok)
        hf = HF + 4 * ((k // 2) % 3)
        for i in range(4):
            for nt in range(5):
                n2 = nt if nt < 4 else 4 + k % 2
                d = vr(ACC + 16 * n2 + 4 * i, 4)
                first = k == 0 or (nt == 4 and k == 1)
                a.e(f'v_mfma_f32_16x16x32_bf16 {d}, {vr(b + 4 * nt, 4) if nt < 4 else vr(hf, 4)}, {vr(b + 16 + 4 * i, 4)}, {"0" if first else d}')
        kn = k + DEPTH
        if kn == NS - 1:
            ls = a.newlabel('P3_NL')
            a.e('s_cmp_ge_u32 s20, 2')
            a.e(f's_cbranch_scc1 {ls}')
            q1 = list(a.vmq)
            loadW(kn)
            loadF(kn)
            a.vmq = q1
            a.label(ls)
        elif kn < NS:
            loadW(kn)
            loadF(kn)
    a.label(lskip)
    a.e('s_nop 7')
    stamp(a, 6)
    a.e('s_mov_b32 exec_lo, 0')
    for i in range(16):
        a.e(f'v_mov_b32 v{ACC + 64 + i}, v{ACC + 80 + i}')
    a.e('s_mov_b64 exec, -1')
    for i in range(1, 4):
        a.e(f's_add_u32 s44, s20, {i}')
        a.e('s_and_b32 s44, s44, 3')
        a.e('s_mul_i32 s44, s44, 15360')
        a.e(f'v_add_u32 v{8 + i}, s44, v12')
        for nt in range(5):
            a.lg(f'ds_write_b128 v{8 + i}, {vr(ACC + 16 * nt + 4 * i, 4)} offset:{5120 * (i - 1) + 1024 * nt}', 'w')
    a.e('s_mul_i32 s26, s20, 15360')
    a.e('v_add_u32 v8, s26, v12')
    a.e('s_lshl_b32 s27, s66, 6')
    a.e('s_lshr_b32 s28, s20, 1')
    a.e('s_lshl_b32 s28, s28, 5')
    a.e('s_add_u32 s27, s27, s28')
    a.e('s_and_b32 s28, s20, 1')
    a.e('s_lshl_b32 s28, s28, 2')
    a.e('s_add_u32 s27, s27, s28')
    a.e('v_bfe_u32 v13, v1, 2, 2')
    a.e('v_lshlrev_b32 v13, 3, v13')
    a.e('v_and_b32 v14, 3, v1')
    a.e('v_add3_u32 v13, v13, v14, s27')
    a.e('v_mul_u32_u24 v13, 1152, v13')
    a.e('v_lshrrev_b32 v14, 4, v1')
    a.e('v_lshl_add_u32 v15, v14, 3, v13')
    a.e('v_lshl_add_u32 v13, v14, 4, v13')
    a.e('s_mul_i32 s27, s67, 144')
    a.wait_all()
    a.e('s_barrier')
    for nt in range(5):
        for i in range(3):
            a.lg(f'ds_read_b128 {vr(FR + 12 * nt + 4 * i, 4)}, v8 offset:{5120 * i + 1024 * nt}', ('r', nt))
    PKB = FR + 64
    OSC = 'sc1' if 'osc1' in ABL else 'nt' if 'ont' in ABL else ''
    for nt in range(5):
        a.wait_lg(('r', nt))
        b = FR + 12 * nt
        o = ACC + 16 * nt
        for h in range(2):
            a.e(f'v_pk_add_f32 {vr(b + 2 * h, 2)}, {vr(b + 2 * h, 2)}, {vr(b + 4 + 2 * h, 2)}')
            a.e(f'v_pk_add_f32 {vr(o + 2 * h, 2)}, {vr(o + 2 * h, 2)}, {vr(b + 8 + 2 * h, 2)}')
        for h in range(2):
            a.e(f'v_pk_add_f32 {vr(b + 2 * h, 2)}, {vr(b + 2 * h, 2)}, {vr(o + 2 * h, 2)}')
        if nt == 4:
            for r in range(4):
                a.e(f'v_mov_b32 v{o + r}, v{b + r}')
            for r in range(4):
                a.e(f'v_permlane32_swap_b32 v{b + r}, v{o + r}')
            for h in range(2):
                a.e(f'v_pk_add_f32 {vr(b + 2 * h, 2)}, {vr(b + 2 * h, 2)}, {vr(o + 2 * h, 2)}')
        for h in range(2):
            a.e(f'v_cvt_pk_bf16_f32 v{PKB + 2 * nt + h}, v{b + 2 * h}, v{b + 2 * h + 1}')
        if nt in (1, 3):
            a.e(f'buffer_store_dwordx4 {vr(PKB + 2 * nt - 2, 4)}, v13, s[8:11], s27 offen offset:{64 * (nt // 2)} {OSC}')
        if nt == 4:
            a.e('s_mov_b32 exec_hi, 0')
            a.e(f'buffer_store_dwordx2 {vr(PKB + 8, 2)}, v15, s[8:11], s27 offen offset:128 {OSC}')
            a.e('s_mov_b64 exec, -1')


def kernel_text(name, a, vgpr=256, sgpr=96):
    a.fix_hazards()
    mv, ms, ma = a.max_regs()
    assert mv <= vgpr and ms <= sgpr and ma == 0, (mv, ms, ma)
    body = f'.globl {name}\n.p2align 8\n.type {name},@function\n{name}:\n' + a.text()
    desc = f""".p2align 6
.amdhsa_kernel {name}
  .amdhsa_next_free_vgpr {vgpr}
  .amdhsa_next_free_sgpr {sgpr}
  .amdhsa_accum_offset {(vgpr + 3) // 4 * 4}
  .amdhsa_group_segment_fixed_size 0
  .amdhsa_kernarg_size 112
  .amdhsa_user_sgpr_count 2
  .amdhsa_user_sgpr_kernarg_segment_ptr 1
  .amdhsa_system_sgpr_workgroup_id_x 1
.end_amdhsa_kernel
"""
    return body, desc


def build_file(kernels):
    hdr = open('cdna_kernels/' + NAME + '.s.ref').read().split('\n')
    head = [l for l in hdr if l.startswith(';') and '@launch' not in l and 'Override' not in l and 'grid=ceil' not in l]
    head = head[:15]
    out = '\n'.join(head) + '\n'
    for name, a, grid, block, lds, vgpr in kernels:
        kn = f'kernel={name} ' if (len(kernels) > 1 or LIST) else ''
        out += f'; @launch {kn}grid=({grid},1,1) block=({block},1,1) lds={lds}\n'
    out += '.amdgcn_target "amdgcn-amd-amdhsa--gfx950"\n.text\n'
    out += f'.set CODE_LINES, (K_END - {NAME}_kernel) / 128 - 4\n'
    descs = ''
    for name, a, grid, block, lds, vgpr in kernels:
        b, d = kernel_text(name, a, vgpr)
        out += b
        descs += d
    out += '.section .rodata,"a"\n' + descs
    return out


NG1, NG2 = 1, 3


def mega():
    a = Asm()
    a.e('s_cmp_ge_u32 s2, 512')
    a.e('s_cbranch_scc1 K_END')
    stamp(a, 0)
    a.e('s_cmp_lt_u32 s2, 256')
    a.e('s_cbranch_scc1 K_GEMM')
    a.e('s_sub_u32 s3, s2, 256')
    P = opt('pa', [0, 0])
    t = ATT(a)
    t.setup(3)
    write_nonce(a)
    if 'afine' in ABL:
        a.e('s_branch K_DONE')
    t.retile_setup()
    t.mark()
    stamp(a, 1)
    a.e(f's_setprio {P[0]}')
    t.q_phase()
    stamp(a, 2)
    a.e(f's_setprio {P[1]}')
    if 'noattmain' in ABL:
        for p in range(3):
            if p == 2:
                t.mark_part(0, 12)
            a.wait_all()
            t.side(p)
        t.gate_load()
        a.wait_all()
    else:
        t.main(flags=SCL)
    stamp(a, 3)
    a.e('s_setprio 3')
    t.epilogue(flags=SC)
    a.e('s_branch K_DONE')
    a.label('K_GEMM')
    a.vmq = []
    a.lgq = []
    g = GW(a)
    UB, UP = g.UB, g.UP
    g.limitA = UB
    g.setup()
    if 'afine' in ABL:
        stamp(a, 1)
    g.prologue_issue()
    if 'afine' in ABL:
        stamp(a, 2)
    g.setup2()
    if 'afine' in ABL:
        stamp(a, 3)
        g.hooks[0] = lambda: stamp(a, 4)
        g.hooks[6] = lambda: stamp(a, 5)
        g.hooks[12] = lambda: stamp(a, 6)

    def nonce_ld():
        a.e('v_mov_b32 v23, 0')
        a.vm(f'global_load_dword v24, v23, s[16:17] {SC}', 'nonce')
    g.hooks[21] = nonce_ld
    g.run_segment(0, UB)
    if 'afine' in ABL:
        a.e('s_branch K_DONE')
    stamp(a, 1)
    n1, n2 = opt('ng', [NG1, NG2])
    nb1 = opt('nb1', [8])[0]
    a.wait_vm('nonce')
    get_nonce(a, 23, 24)
    g.proj_store()
    g.limitA = UP
    a.vmq.append('pst')
    a.vmq.append('pst')
    a.e('s_barrier')
    for _ in range(g.R - 1):
        for f in g.issueA():
            f()
    g.z2_gelu_publish()

    LF = 'lnfine' in ABL
    if LF:
        stamp(a, 2)
    g.run_segment(UB, nb1)
    if LF:
        stamp(a, 3)
    g.z2_gather_norm_store()
    stamp(a, 4 if LF else 2)
    a.e('s_lshl_b32 s49, s22, 9')
    a.e(f's_add_u32 s49, s49, {FZ_OFF}')
    a.e('s_lshl_b32 s48, s32, 7')
    a.e('s_add_u32 s48, s48, s49')
    a.e('s_and_b32 s50, s23, 15')
    a.e('s_lshl_b32 s50, s50, 2')
    a.e('s_add_u32 s48, s48, s50')
    a.e('s_and_b32 s50, s32, 2')
    a.e('s_lshl_b32 s50, s50, 7')
    a.e('s_add_u32 s50, s50, s49')
    a.e('v_and_b32 v29, 15, v1')
    a.e('v_lshlrev_b32 v29, 2, v29')
    a.e('v_lshrrev_b32 v23, 4, v1')
    a.e('v_lshl_add_u32 v23, v23, 7, v29')
    a.e('v_and_b32 v29, 0xff, v23')

    def zflag():
        a.wait_vm('st')
        set_flag(a, 48, 27)
    g.hooks[UB + nb1 + opt('zf', [4])[0]] = zflag
    g.run_segment(UB + nb1, 18 - nb1)
    if LF:
        stamp(a, 5)
    g.own_write()
    g.z1_gelu(range(0, n1))
    g.nextA = UP + 4
    g.run_segment(UP, 4, own=True)
    g.z1_gelu(range(n1, n2))
    if LF:
        stamp(a, 6)
    poll(a, lambda: a.e(f'buffer_load_dword v26, v29, s[12:15], s50 offen {SC}'), [26], 27)
    if LF:
        a.e('s_branch K_DONE')
    stamp(a, 3)
    g.limitA = len(g.units)
    a.e('s_barrier')
    for _ in range(g.R - 1):
        for f in g.issueA():
            f()
    g.z1_gelu(range(n2, 9))
    g.hooks[UP + 58] = g.sp_pre

    def zall():
        a.e(f'buffer_load_dword v26, v23, s[12:15], s49 offen {SC}')

    def zall0():
        zall()
        a.vmq.append('zf')

    def zall1():
        a.wait_vm('zf')
        poll(a, zall, [26], 27, first_done=True)
    g.hooks[UP + 10] = zall0
    g.hooks[UP + 15] = zall1
    g.hooks[UP + 61] = lambda: p3_pre(a)

    if opt('gate'):
        def prog():
            a.e('s_lshl_b32 s44, s2, 7')
            a.e(f's_add_u32 s44, s44, {PROG_OFF}')
            set_flag(a, 44, 27)
        g.hooks[UP + opt('gate')[1]] = prog
    g.run_segment(UP + 4, 60)
    if 'p2fine' in ABL:
        a.e('s_branch K_DONE')
    stamp(a, 4)
    g.sp_epilogue()
    p3(a)
    a.label('K_DONE')
    stamp_flush(a, 0)
    a.label('K_END')
    a.e('s_endpgm')
    return (NAME + '_kernel', a, 512, 256, 81920, 256)


LIST = False
if __name__ == '__main__':
    if '--stamp' in sys.argv:
        STAMP = True
        sys.argv.remove('--stamp')
    if '--list' in sys.argv:
        LIST = True
        sys.argv.remove('--list')
    for x in list(sys.argv):
        if x.startswith('--abl='):
            ABL.update(x[6:].split(','))
            sys.argv.remove(x)
    out = sys.argv[1] if len(sys.argv) > 1 else 'out.s'
    open(out, 'w').write(build_file([mega()]))
    print('wrote', out)
```

```python
import re

TRANS = ('v_exp_f32', 'v_log_f32', 'v_rcp_f32', 'v_rsq_f32', 'v_sqrt_f32', 'v_sin_f32', 'v_cos_f32')


def parse_regs(tok):
    tok = tok.strip()
    tok = tok.lstrip('-')
    m = re.match(r'^abs\((.*)\)$', tok)
    if m:
        tok = m.group(1)
    tok = tok.strip('|')
    m = re.match(r'^([vsa])(\d+)$', tok)
    if m:
        return {(m.group(1), int(m.group(2)))}
    m = re.match(r'^([vsa])\[(\d+):(\d+)\]$', tok)
    if m:
        return {(m.group(1), i) for i in range(int(m.group(2)), int(m.group(3)) + 1)}
    if tok in ('vcc', 'vcc_lo', 'vcc_hi'):
        return {('vcc', 0)}
    if tok == 'm0':
        return {('m0', 0)}
    if tok in ('exec', 'exec_lo', 'exec_hi'):
        return {('exec', 0)}
    return set()


class Ins:
    __slots__ = ('text', 'op', 'ops', 'kind', 'wr', 'rd', 'passes', 'srcc', 'dpp', 'data')

    def __init__(self, text):
        self.text = text
        t = text.split(';')[0].strip()
        self.op = ''
        self.ops = []
        self.kind = 'other'
        self.wr = set()
        self.rd = set()
        self.passes = 0
        self.srcc = set()
        self.dpp = False
        self.data = set()
        if not t or t.endswith(':') or t.startswith('.'):
            self.kind = 'label' if t.endswith(':') else 'none'
            return
        parts = t.split(None, 1)
        op = parts[0]
        self.op = op
        rest = parts[1] if len(parts) > 1 else ''
        rest_main = re.split(r'\s+(?=(?:offen|idxen|offset|offset0|offset1|lds|sc0|sc1|nt|op_sel|op_sel_hi|neg_lo|neg_hi|quad_perm|row_shr|row_shl|row_ror|row_bcast|row_mirror|row_half_mirror|row_mask|bank_mask|bound_ctrl|clamp|mul|div|dst_sel|dst_unused|src0_sel|src1_sel|bitop3|cbsz|abid|blgp)\b)', rest, maxsplit=1)
        mods = rest_main[1] if len(rest_main) > 1 else ''
        ops = [o.strip() for o in rest_main[0].split(',')] if rest_main[0].strip() else []
        self.ops = ops
        R = [parse_regs(o) for o in ops]
        if op.startswith('v_mfma'):
            self.kind = 'mfma'
            self.passes = 8 if '32x32' in op else 4
            self.wr = R[0]
            self.rd = R[1] | R[2] | R[3]
            self.srcc = R[3]
        elif op.startswith('v_smfmac'):
            self.kind = 'mfma'
            self.passes = 8 if '32x32' in op else 4
            self.wr = R[0]
            self.rd = R[0] | R[1] | R[2] | R[3]
            self.srcc = R[0]
        elif op.startswith('v_'):
            self.kind = 'valu'
            if 'dpp' in op or 'quad_perm' in mods or 'row_' in mods:
                self.dpp = True
            if op.startswith('v_cmp'):
                self.wr = R[0]
                for r in R[1:]:
                    self.rd |= r
            elif op.startswith('v_permlane') and 'swap' in op:
                self.wr = R[0] | R[1]
                self.rd = R[0] | R[1]
            elif op.startswith(('v_add_co', 'v_sub_co', 'v_addc_co', 'v_subb_co', 'v_subrev_co')):
                self.wr = R[0] | R[1]
                for r in R[2:]:
                    self.rd |= r
            else:
                self.wr = R[0] if R else set()
                for r in R[1:]:
                    self.rd |= r
                if op.startswith(('v_fmac', 'v_pk_fmac', 'v_dot2c', 'v_writelane')) or self.dpp:
                    self.rd |= R[0]
        elif op.startswith('s_'):
            self.kind = 'salu'
            if op.startswith(('s_load', 's_buffer_load', 's_memtime', 's_memrealtime')):
                self.kind = 'smem'
                self.wr = R[0]
                for r in R[1:]:
                    self.rd |= r
            elif op.startswith(('s_cmp', 's_waitcnt', 's_nop', 's_barrier', 's_branch', 's_cbranch', 's_endpgm', 's_sleep', 's_setprio', 's_bitcmp')):
                for r in R:
                    self.rd |= r
            else:
                self.wr = R[0] if R else set()
                for r in R[1:]:
                    self.rd |= r
                if 'saveexec' in op:
                    self.wr |= {('exec', 0)}
        elif op.startswith(('buffer_', 'global_', 'flat_')):
            self.kind = 'vmem'
            is_lds = bool(re.search(r'\blds\b', mods)) or '_lds_' in op
            if is_lds:
                self.kind = 'dma'
                for r in R:
                    self.rd |= r
                self.rd |= {('m0', 0)}
            elif op in ('buffer_wbl2', 'buffer_inv'):
                pass
            elif '_load' in op:
                self.wr = R[0]
                for r in R[1:]:
                    self.rd |= r
            elif '_store' in op:
                for r in R:
                    self.rd |= r
                d = R[0] if op.startswith('buffer_') else R[1]
                if 'x4' in op or 'x3' in op:
                    self.data = d
            elif 'atomic' in op:
                for r in R:
                    self.rd |= r
                if 'sc0' in mods:
                    self.wr = R[0]
        elif op.startswith('ds_'):
            self.kind = 'ds'
            if op.startswith(('ds_read', 'ds_bpermute', 'ds_permute', 'ds_swizzle')):
                self.wr = R[0]
                for r in R[1:]:
                    self.rd |= r
            else:
                for r in R:
                    self.rd |= r

    def states(self):
        if self.kind in ('label', 'none'):
            return 0
        if self.op == 's_nop':
            return int(self.ops[0], 0) + 1
        return 1


def isv(regs):
    return {r for r in regs if r[0] in 'va' and r[0] != 'vcc'}


def iss(regs):
    return {r for r in regs if r[0] == 's' or r[0] == 'vcc'}


def need_states(p, c):
    n = 0
    if p.kind == 'valu':
        pw = isv(p.wr)
        if c.kind == 'mfma' and pw & c.rd:
            n = max(n, 2)
        if c.kind == 'valu':
            if p.op.replace('_e32', '').replace('_e64', '') in TRANS and (pw & c.rd) and c.op.replace('_e32', '').replace('_e64', '') not in TRANS:
                n = max(n, 1)
            if c.op.startswith(('v_readlane', 'v_readfirstlane')) and pw & c.rd:
                n = max(n, 1)
            if c.op.startswith('v_permlane') and pw & c.rd:
                n = max(n, 2)
            if c.dpp and pw & c.rd:
                n = max(n, 2)
            if ('sdwa' in p.op or 'op_sel' in p.text) and not p.op.startswith('v_pk_') and pw & c.rd:
                n = max(n, 1)
        ps = iss(p.wr)
        if ps:
            if c.kind == 'valu' and ps & c.rd:
                n = max(n, 4 if c.op.startswith(('v_readlane', 'v_writelane')) else 2)
            if c.kind in ('vmem', 'dma') and ps & c.rd:
                n = max(n, 5)
            if c.kind in ('salu', 'smem') and ps & c.rd:
                n = max(n, 2)
            if c.op in ('s_cbranch_vccz', 's_cbranch_vccnz') and ('vcc', 0) in ps:
                n = max(n, 5)
    if p.kind == 'salu':
        if ('m0', 0) in p.wr and c.kind == 'dma':
            n = max(n, 1)
    if p.kind == 'mfma':
        big = p.passes == 8
        if c.kind == 'mfma':
            ab = c.rd - c.srcc
            if p.wr & ab:
                n = max(n, 12 if big else 8)
            if p.wr & c.srcc and not (p.wr == c.srcc and p.passes == c.passes):
                n = max(n, 10 if big else 6)
            if p.wr & c.wr and not (p.wr == c.wr and p.passes == c.passes) and not (p.wr & c.srcc):
                n = max(n, 12 if big else 8)
        elif c.kind in ('valu', 'vmem', 'dma', 'ds'):
            if p.wr & (c.rd | c.wr):
                n = max(n, 12 if big else 8)
            if c.kind == 'valu' and p.srcc & c.wr:
                n = max(n, 7 if big else 3)
    if p.kind == 'vmem' and p.data:
        if p.data & c.wr:
            n = max(n, 2 if c.kind in ('valu', 'mfma') else 1)
    return n


class Asm:
    def __init__(self):
        self.ins = []
        self.vmq = []
        self.lgq = []
        self.nlabel = 0

    def e(self, text):
        for line in text.split('\n'):
            line = line.strip()
            if line:
                self.ins.append(Ins(line))

    def label(self, name):
        self.ins.append(Ins(name + ':'))

    def newlabel(self, base='L'):
        self.nlabel += 1
        return f'{base}_{self.nlabel}'

    def vm(self, text, tag=None):
        self.e(text)
        self.vmq.append(tag)

    def lg(self, text, tag=None):
        self.e(text)
        self.lgq.append(tag)

    def _cnt(self, q, tag):
        idx = [i for i, t in enumerate(q) if t == tag]
        if not idx:
            return None
        return len(q) - 1 - idx[-1]

    def wait_vm(self, tag):
        n = self._cnt(self.vmq, tag)
        if n is None:
            return
        n = min(n, 63)
        self.e(f's_waitcnt vmcnt({n})')
        self.vmq = self.vmq[len(self.vmq) - n:] if n else []

    def wait_lg(self, tag):
        n = self._cnt(self.lgq, tag)
        if n is None:
            return
        n = min(n, 15)
        self.e(f's_waitcnt lgkmcnt({n})')
        self.lgq = self.lgq[len(self.lgq) - n:] if n else []

    def wait_vm0(self):
        self.e('s_waitcnt vmcnt(0)')
        self.vmq = []

    def wait_lg0(self):
        self.e('s_waitcnt lgkmcnt(0)')
        self.lgq = []

    def wait_all(self):
        self.e('s_waitcnt vmcnt(0) lgkmcnt(0)')
        self.vmq = []
        self.lgq = []

    def fix_hazards(self, window=24):
        out = []
        for c in self.ins:
            if c.kind in ('label', 'none'):
                out.append(c)
                continue
            need = 0
            dist = 0
            for p in reversed(out):
                if dist >= window:
                    break
                if p.op in ('s_branch', 's_endpgm'):
                    break
                n = need_states(p, c)
                if n > dist:
                    need = max(need, n - dist)
                dist += p.states()
            while need > 0:
                k = min(need, 16)
                out.append(Ins(f's_nop {k - 1}'))
                need -= k
            out.append(c)
        self.ins = out
        self.check_branches(window)

    def check_branches(self, window=24):
        labels = {}
        for i, c in enumerate(self.ins):
            if c.kind == 'label':
                labels[c.text.split(':')[0].strip()] = i
        for i, b in enumerate(self.ins):
            if b.op.startswith(('s_cbranch', 's_branch')):
                tgt = b.ops[0]
                if tgt not in labels:
                    continue
                tail = []
                d = 0
                j = i
                while j >= 0 and d < window:
                    if j != i and self.ins[j].op in ('s_branch', 's_endpgm'):
                        break
                    tail.append(self.ins[j])
                    d += self.ins[j].states()
                    j -= 1
                d0 = 0
                j = labels[tgt]
                while j < len(self.ins) and d0 < window:
                    c = self.ins[j]
                    if c.kind not in ('label', 'none'):
                        dist = d0
                        for p in tail:
                            n = need_states(p, c)
                            if n > dist:
                                raise RuntimeError(f'hazard across branch {b.text}: {p.text} -> {c.text} needs {n} has {dist}')
                            dist += p.states()
                        d0 += c.states()
                        if c.op in ('s_branch', 's_endpgm'):
                            break
                    j += 1

    def text(self):
        o = []
        for c in self.ins:
            o.append(c.text if c.kind == 'label' else '  ' + c.text)
        return '\n'.join(o) + '\n'

    def max_regs(self):
        mv = ms = ma = -1
        for c in self.ins:
            for k, n in c.wr | c.rd:
                if k == 'v':
                    mv = max(mv, n)
                elif k == 's':
                    ms = max(ms, n)
                elif k == 'a':
                    ma = max(ma, n)
        return mv + 1, ms + 1, ma + 1
```

```python
import sys, struct
from asmlib import Asm

NAME = 'gated_mix__grouped_kv_mqa__mixer_gmlp__prompt'

Z2_OFF = 0x10000
UF_OFF = Z2_OFF + 9437184
W3_OFF = UF_OFF + 11796480
KV_OFF = W3_OFF + 3317760
KV_TILE = 2496
GATE_OFF = KV_OFF + 160 * 1024
STATS_OFF = GATE_OFF + 16384
FLAG_OFF = STATS_OFF + 524288
FKV_OFF = FLAG_OFF
FW3_OFF = FLAG_OFF + 49152
FZ_OFF = FLAG_OFF + 4096
PZ_OFF = FLAG_OFF + 65536
PROG_OFF = FLAG_OFF + 16384
GO_OFF = FLAG_OFF + 98304
KVF_OFF = FLAG_OFF
QF_OFF = FLAG_OFF + 131072
SC = 'sc1' if 'sconly1' in ' '.join(sys.argv) else 'sc0 sc1'
SCL = '' if '--abl' in ' '.join(sys.argv) and 'noscl' in ' '.join(sys.argv) else 'sc1'
WS_SIZE = 0x1c00000
assert QF_OFF + 128 * 16 * 1152 <= 0x1b00000
STAMP_OFF = 0x1b00000

A_X, A_WQ, A_WK, A_WV, A_WO, A_BX, A_WIN, A_WSP, A_BSP, A_WOUT, A_GW, A_OUT, A_DBG, A_WS = [8 * i for i in range(14)]

STAMP = False
ABL = set()


def opt(name, default=None):
    for x in ABL:
        if x.startswith(name + ':'):
            return [int(v) for v in x.split(':')[1:]]
    return default


def f2u(f):
    return struct.unpack('<I', struct.pack('<f', f))[0]


def hx(f):
    return '0x%08x' % f2u(f)


def srd(a, d, size):
    a.e(f's_mov_b32 s{d + 2}, {size}')
    a.e(f's_mov_b32 s{d + 3}, 0x00020000')


def vr(b, n):
    return f'v[{b}:{b + n - 1}]'


def stamp(a, idx):
    if not STAMP:
        return
    a.wait_lg0()
    a.e('s_memrealtime s[78:79]')
    a.e('s_memtime s[76:77]')
    a.e('s_waitcnt lgkmcnt(0)')
    a.e(f's_mov_b32 s{80 + idx}, s78')
    a.e(f's_mov_b32 s{88 + idx}, s76')


def stamp_flush(a, kidx):
    if not STAMP:
        return
    a.e('s_waitcnt vmcnt(0) lgkmcnt(0)')
    stamp(a, 7)
    a.e(f's_load_dwordx2 s[74:75], s[0:1], {A_WS}')
    a.e('s_waitcnt lgkmcnt(0)')
    a.e('v_lshrrev_b32 v1, 6, v0')
    a.e('v_lshlrev_b32 v1, 6, v1')
    a.e('s_lshl_b32 s78, s2, 8')
    a.e(f's_add_u32 s78, s78, {STAMP_OFF + kidx * 131072}')
    a.e('v_add_u32 v1, s78, v1')
    for i in range(16):
        a.e(f'v_mov_b32 v{4 + i}, s{80 + i}')
    for i in range(4):
        a.e(f'global_store_dwordx4 v1, v[{4 + 4 * i}:{7 + 4 * i}], s[74:75] offset:{16 * i}')
    if 'dbgstamp' in ABL:
        a.e('s_cmp_lt_u32 s2, 256')
        a.e('s_cselect_b32 s78, 4, 36')
        a.e('v_mov_b32 v1, s78')
        a.e('s_mov_b64 exec, 1')
        for i in range(1, 8):
            a.e(f'v_subrev_u32 v{4 + i}, s62, v{4 + i}')
            a.e(f'global_atomic_umax v1, v{4 + i}, s[16:17] offset:{4 * (i - 1)} sc1')
        a.e('v_sub_u32 v4, s62, v4')
        a.e('v_add_u32 v4, 1000, v4')
        a.e('v_mov_b32 v1, 32')
        a.e('global_atomic_umax v1, v4, s[16:17] sc1')
        a.e('s_mov_b64 exec, -1')


QSCALE = 18 ** -0.5 * 1.4426950408889634
GELU_C0 = -2.0 * 1.4426950408889634 * 0.7978845608028654
GELU_C1 = GELU_C0 * 0.044715


def gelu_group(a, regs, T, sC1, vC0):
    n = len(regs)
    for i, r in enumerate(regs):
        a.e(f'v_pk_mul_f32 {vr(T + 2 * i, 2)}, {vr(r, 2)}, {vr(r, 2)}')
    for i, r in enumerate(regs):
        a.e(f'v_pk_fma_f32 {vr(T + 2 * i, 2)}, {vr(T + 2 * i, 2)}, s[{sC1}:{sC1 + 1}], {vr(vC0, 2)}')
    for i, r in enumerate(regs):
        a.e(f'v_pk_mul_f32 {vr(T + 2 * i, 2)}, {vr(T + 2 * i, 2)}, {vr(r, 2)}')
    for i in range(2 * n):
        a.e(f'v_exp_f32 v{T + i}, v{T + i}')
    for i, r in enumerate(regs):
        a.e(f'v_pk_add_f32 {vr(T + 2 * i, 2)}, {vr(T + 2 * i, 2)}, 1.0 op_sel_hi:[1,0]')
    for i in range(2 * n):
        a.e(f'v_rcp_f32 v{T + i}, v{T + i}')
    for i, r in enumerate(regs):
        a.e(f'v_pk_mul_f32 {vr(r, 2)}, {vr(T + 2 * i, 2)}, {vr(r, 2)}')


SPIN_MAX = 300000
PG = [0, 2, 0]


def poll(a, loads, regs, t0, first_done=False, sleep=1):
    lp = a.newlabel('POLL')
    lc = a.newlabel('POLLC')
    lg = a.newlabel('POLLOK')
    a.e(f's_mov_b32 s51, {SPIN_MAX}')
    if first_done:
        a.e(f's_branch {lc}')
    a.label(lp)
    loads()
    a.e('s_waitcnt vmcnt(0)')
    a.label(lc)
    a.e(f'v_xor_b32 v{t0}, s62, v{regs[0]}')
    for r in regs[1:]:
        a.e(f'v_xor_b32 v{t0 + 1}, s62, v{r}')
        a.e(f'v_or_b32 v{t0}, v{t0}, v{t0 + 1}')
    a.e(f'v_cmp_ne_u32 vcc, 0, v{t0}')
    a.e(f's_cbranch_vccz {lg}')
    a.e(f's_sleep {sleep}')
    a.e('s_sub_u32 s51, s51, 1')
    a.e('s_cmp_lg_u32 s51, 0')
    a.e(f's_cbranch_scc1 {lp}')
    a.label(lg)
    if not first_done:
        a.vmq = []


def get_nonce(a, vz, vn):
    lp = a.newlabel('NONCE')
    lg = a.newlabel('NONCE_OK')
    a.e(f's_mov_b32 s51, {SPIN_MAX}')
    a.label(lp)
    a.e(f'v_readfirstlane_b32 s62, v{vn}')
    a.e('s_cmp_lg_u32 s62, 0')
    a.e(f's_cbranch_scc1 {lg}')
    a.e('s_sleep 32')
    a.e(f'global_load_dword v{vn}, v{vz}, s[16:17] {SC}')
    a.e('s_waitcnt vmcnt(0)')
    a.e('s_sub_u32 s51, s51, 1')
    a.e('s_cmp_lg_u32 s51, 0')
    a.e(f's_cbranch_scc1 {lp}')
    a.label(lg)


def set_flag(a, soff, t0):
    a.e(f'v_mov_b32 v{t0}, 0')
    a.e(f'v_mov_b32 v{t0 + 1}, s62')
    a.e('s_mov_b64 exec, 1')
    a.vm(f'buffer_store_dword v{t0 + 1}, v{t0}, s[12:15], s{soff} offen {SC}', 'flag')
    a.e('s_mov_b64 exec, -1')


class GW:
    R = 5
    SLOT = 8192
    SGL = 40960
    BBASE = 49152
    AF = 32
    BF = 68
    ACC0 = 100
    ACC1 = 172
    UB = 27
    UP = 45

    def __init__(self, a):
        self.a = a
        self.units = []
        self.stages = []
        for st in range(9):
            self.stages.append(('x', st))
            self.units += [('z2', 2 * st, st, 0, 2 * st), ('z2', 2 * st + 1, st, 1, 2 * st + 1), ('E', st, st, 0, None)]
        for k in range(18):
            if k % 2 == 0:
                self.stages.append(('x', k // 2))
            self.units.append(('z1', k, 9 + k // 2, k % 2, 18 + k))
        for k in range(64):
            if k % 2 == 0:
                self.stages.append(('sp', k // 2))
            self.units.append(('sp', k, 18 + k // 2, k % 2, 36 + k))
        self.nextA = 0
        self.nextB = 0
        self.limitA = len(self.units)
        self.pendB = []
        self.hooks = {}

    def setup(self):
        a = self.a
        a.e(f's_load_dwordx4 s[4:7], s[0:1], {A_X}')
        a.e(f's_load_dwordx2 s[8:9], s[0:1], {A_WIN}')
        a.e(f's_load_dwordx4 s[16:19], s[0:1], {A_DBG}')
        a.e(f's_load_dwordx4 s[52:55], s[0:1], {A_WSP}')
        a.e(f's_load_dwordx2 s[64:65], s[0:1], {A_OUT}')
        a.e(f's_load_dwordx4 s[68:71], s[0:1], {A_WK}')
        a.e('v_lshrrev_b32 v1, 6, v0')
        a.e('v_readfirstlane_b32 s20, v1')
        a.e('v_and_b32 v1, 63, v0')
        a.e('s_lshr_b32 s31, s2, 3')
        a.e('s_and_b32 s32, s2, 3')
        a.e('s_and_b32 s34, s31, 3')
        a.e('s_lshl_b32 s21, s32, 2')
        a.e('s_add_u32 s21, s21, s34')
        a.e('s_lshr_b32 s35, s31, 2')
        a.e('s_and_b32 s22, s2, 4')
        a.e('s_lshl_b32 s22, s22, 1')
        a.e('s_add_u32 s22, s22, s35')
        a.e('s_lshl_b32 s23, s21, 2')
        a.e('s_add_u32 s23, s23, s20')
        a.e('s_lshl_b32 s39, s34, 1')
        a.e('s_add_u32 s39, s39, s35')
        a.e('s_cmp_ge_u32 s39, 9')
        a.e('s_cselect_b32 s40, 9, 0')
        a.e('s_sub_u32 s39, s39, s40')
        if 'norot' in ABL:
            a.e('s_mov_b32 s39, 0')
        a.e('s_mul_i32 s24, s39, %d' % (64 * 9216))
        a.e('s_add_u32 s24, s24, 4608')
        a.e('s_lshl_b32 s25, s39, 7')
        a.e('s_lshl_b32 s28, s39, 1')
        a.e('s_add_u32 s28, s28, s20')
        a.e('s_cmp_ge_u32 s28, 18')
        a.e('s_cselect_b32 s29, 18, 0')
        a.e('s_sub_u32 s28, s28, s29')
        a.e('s_lshl_b32 s26, s20, 11')
        a.e('s_lshl_b32 s27, s20, 12')
        a.e(f's_add_u32 s27, s27, {self.BBASE}')
        a.e('s_lshl_b32 s30, s20, 10')
        a.e(f's_add_u32 s30, s30, {self.SGL}')
        a.e('v_and_b32 v23, 7, v1')
        a.e('v_lshrrev_b32 v24, 5, v1')
        a.e('v_lshlrev_b32 v24, 3, v24')
        a.e('v_bfe_u32 v25, v1, 3, 2')
        a.e('s_lshl_b32 s44, s23, 5')
        a.e('v_add3_u32 v24, v24, v25, s44')
        a.e('v_lshrrev_b32 v25, 4, v1')
        a.e('v_xor_b32 v25, v25, v23')
        a.e('v_lshlrev_b32 v25, 4, v25')
        a.e('v_xor_b32 v26, 64, v25')
        a.e('v_mul_u32_u24 v27, 1152, v24')
        a.e('v_add_u32 v5, v27, v25')
        a.e('v_add_u32 v6, v27, v26')
        a.e(f'v_add_u32 v6, {16 * 1152 - 1024}, v6')
        a.e(f'v_add_u32 v7, {4 * 1152 - 2048}, v5')
        a.e(f'v_add_u32 v8, {4 * 1152 - 2048}, v6')
        a.e('s_lshl_b32 s42, s22, 8')
        a.e('s_mul_i32 s43, s20, %d' % (8 * 9216))
        a.e('s_add_u32 s42, s42, s43')
        a.e('v_bfe_u32 v2, v1, 2, 2')
        a.e('v_mul_u32_u24 v2, 9216, v2')
        a.e('v_lshrrev_b32 v3, 4, v1')
        a.e('v_lshl_add_u32 v2, v3, 6, v2')
        a.e('s_and_b32 s44, s20, 1')
        a.e('s_lshl_b32 s45, s44, 1')
        a.e('v_and_b32 v3, 3, v1')
        a.e('v_xor_b32 v3, s45, v3')
        a.e('v_lshl_add_u32 v2, v3, 4, v2')
        a.e('v_add_u32 v2, s42, v2')
        a.e(f'v_add_u32 v3, {4 * 9216 - 1024}, v2')
        a.e('v_lshrrev_b32 v29, 1, v1')
        a.e('v_and_b32 v27, 19, v29')
        a.e('v_bfe_u32 v28, v29, 2, 1')
        a.e('v_lshl_add_u32 v27, v28, 3, v27')
        a.e('v_bfe_u32 v28, v29, 3, 1')
        a.e('v_lshl_add_u32 v27, v28, 2, v27')
        a.e('v_mul_u32_u24 v4, 9216, v27')
        a.e('v_and_b32 v27, 1, v1')
        a.e('v_lshl_add_u32 v4, v27, 4, v4')
        a.e('s_lshl_b32 s45, s22, 5')
        a.e('s_add_u32 s45, s45, 4096')
        a.e('v_add_u32 v4, s45, v4')
        a.e('v_mul_u32_u24 v27, 36, v27')
        a.e('v_lshrrev_b32 v20, 2, v1')
        a.e('v_mul_u32_u24 v20, 1152, v20')
        a.e('v_bfe_u32 v28, v1, 1, 1')
        a.e('v_lshl_add_u32 v20, v28, 4, v20')
        a.e('v_add_u32 v20, v20, v27')
        a.e('v_mul_u32_u24 v28, 1152, v29')
        a.e('v_add3_u32 v28, v28, v27, 32')
        a.e('s_cmp_eq_u32 s20, 2')
        a.e('s_cselect_b64 vcc, -1, 0')
        a.e('v_cndmask_b32 v20, v20, v28, vcc')
        a.e('v_mul_u32_u24 v28, 36, v29')
        a.e('s_cmp_eq_u32 s20, 3')
        a.e('s_cselect_b64 vcc, -1, 0')
        a.e('v_cndmask_b32 v20, v20, v28, vcc')
        a.e('s_mul_i32 s44, s22, 72')
        a.e('s_cmp_eq_u32 s20, 1')
        a.e(f's_cselect_b32 s45, {16 * 1152}, 0')
        a.e('s_add_u32 s44, s44, s45')
        a.e('s_and_b32 s45, s22, 1')
        a.e('s_lshl_b32 s45, s45, 4')
        a.e('s_cmp_ge_u32 s22, 4')
        a.e('s_cselect_b32 s45, 32, s45')
        a.e('s_cmp_eq_u32 s20, 3')
        a.e('s_cselect_b32 s44, s45, s44')
        a.e(f's_movk_i32 s58, 1152')
        a.e('s_cselect_b32 s58, 36, s58')
        a.e('v_add_u32 v20, s44, v20')
        a.e('s_lshl_b32 s44, s58, 5')
        a.e('s_sub_u32 s44, s44, 1024')
        a.e('v_add_u32 v244, s44, v20')
        a.e('s_mul_i32 s42, s58, 576')
        a.e('s_lshl_b32 s58, s58, 6')
        a.e('s_mul_i32 s59, s58, s39')
        a.e('s_lshr_b32 s44, 0x2c, s22')
        a.e('s_and_b32 s44, s44, 1')
        a.e('s_waitcnt lgkmcnt(0)')
        a.e('s_cmp_eq_u32 s44, 1')
        a.e('s_cselect_b32 s40, s70, s68')
        a.e('s_cselect_b32 s41, s71, s69')
        a.e('s_cmp_eq_u32 s20, 3')
        a.e('s_cselect_b32 s40, s40, s6')
        a.e('s_cselect_b32 s41, s41, s7')
        a.e('s_mov_b32 s43, 0x00020000')
        srd(a, 4, 2359296)
        srd(a, 8, 576 * 9216)
        a.e('s_mov_b32 s12, s18')
        a.e('s_mov_b32 s13, s19')
        srd(a, 12, WS_SIZE)
        a.e('s_mov_b32 s56, s54')
        a.e('s_mov_b32 s57, s55')
        srd(a, 52, 2048 * 4096)

    def setup2(self):
        a = self.a
        a.e('v_lshlrev_b32 v27, 12, v24')
        a.e('v_add_u32 v12, v27, v25')
        a.e('v_add_u32 v13, v27, v26')
        a.e(f'v_add_u32 v13, {16 * 4096 - 1024}, v13')
        a.e(f'v_add_u32 v14, {4 * 4096 - 2048}, v12')
        a.e(f'v_add_u32 v15, {4 * 4096 - 2048}, v13')
        a.e('s_xor_b32 s37, s21, s35')
        a.e('s_lshl_b32 s45, s22, 13')
        a.e('s_add_u32 s45, s45, s26')
        a.e('v_lshlrev_b32 v19, 4, v1')
        a.e('v_add_u32 v9, s45, v19')
        a.e('s_lshl_b32 s45, s22, 10')
        a.e('s_mul_i32 s46, s20, 147456')
        a.e('s_add_u32 s45, s45, s46')
        a.e(f's_add_u32 s45, s45, {128 * 1024}')
        a.e('v_add_u32 v10, s45, v19')
        a.e('v_lshrrev_b32 v27, 4, v1')
        a.e('v_and_b32 v29, 3, v1')
        a.e('v_lshlrev_b32 v28, 3, v29')
        a.e('v_bfe_u32 v29, v1, 2, 3')
        a.e('v_lshl_add_u32 v18, v29, 5, v28')
        a.e('v_lshrrev_b32 v29, 5, v1')
        a.e('v_lshl_add_u32 v18, v29, 9, v18')
        a.e('v_lshl_add_u32 v28, v27, 11, v28')
        a.e('v_bfe_u32 v29, v1, 2, 2')
        a.e('v_lshl_add_u32 v28, v29, 6, v28')
        a.e('v_and_b32 v29, 1, v27')
        a.e('v_lshl_add_u32 v16, v29, 5, v28')
        a.e('v_xor_b32 v17, 32, v16')
        a.e('v_and_b32 v28, 15, v1')
        a.e('v_lshlrev_b32 v245, 4, v28')
        a.e('v_lshl_add_u32 v245, v29, 9, v245')
        a.e('v_lshrrev_b32 v29, 5, v1')
        a.e('v_lshl_add_u32 v245, v29, 11, v245')
        a.e('v_bfe_u32 v29, v1, 2, 2')
        a.e('v_lshl_add_u32 v29, v27, 3, v29')
        a.e('v_lshlrev_b32 v246, 5, v29')
        a.e('v_and_b32 v29, 1, v1')
        a.e('v_lshlrev_b32 v23, 4, v29')
        a.e('v_add_u32 v23, 4096, v23')
        a.e('v_lshlrev_b32 v29, 3, v29')
        a.e('v_add_u32 v29, 6144, v29')
        a.e('v_and_b32 v24, 2, v1')
        a.e('v_cmp_eq_u32 vcc, 0, v24')
        a.e('v_cndmask_b32 v29, v29, v23, vcc')
        a.e('v_add_u32 v246, v246, v29')
        a.e('v_bfe_u32 v29, v1, 1, 3')
        a.e('v_xor_b32 v29, v29, v27')
        a.e('v_lshlrev_b32 v28, 7, v28')
        a.e('v_lshl_add_u32 v28, v29, 4, v28')
        a.e('v_add_u32 v21, s27, v28')
        a.e('v_xor_b32 v28, 64, v28')
        a.e('v_add_u32 v22, s27, v28')
        self.gelu_consts()

    def grp(self, g, d):
        a = self.a
        L = opt('lead', [0])[0]
        if L == 0 and g > 0 and 'noperm' not in ABL:
            if g < 8:
                a.e(f's_add_u32 s{d}, s35, {g}')
                a.e(f's_cmp_ge_u32 s{d}, 8')
                a.e(f's_cselect_b32 s29, 7, 0')
                a.e(f's_sub_u32 s{d}, s{d}, s29')
                a.e(f's_xor_b32 s{d}, s{d}, s21')
            else:
                a.e(f's_xor_b32 s{d}, s37, {g}')
            return
        a.e(f's_xor_b32 s{d}, s21, {g}')
        if L == 0:
            return
        if L + 1 <= g + L <= 15:
            a.e(f's_xor_b32 s29, s21, {g + L}')
            a.e(f's_cmp_eq_u32 s35, {(g + L) % 8}')
            a.e(f's_cselect_b32 s{d}, s29, s{d}')
        xs = [x for x in range(g, g + L) if L + 1 <= x <= 15]
        if xs:
            a.e(f's_xor_b32 s29, s21, {g - 1}')
            mask = sum(1 << (x % 8) for x in xs)
            a.e(f's_bitcmp1_b32 {mask}, s35')
            a.e(f's_cselect_b32 s{d}, s29, s{d}')

    def issueA(self):
        a = self.a
        u = self.nextA
        if u >= self.limitA:
            return []
        self.nextA += 1
        seg, i, _, _, si = self.units[u]
        slot = (u % self.R) * self.SLOT
        tag = ('A', u)
        if seg == 'E':
            def e0():
                a.e(f's_add_u32 m0, s26, {slot}')
                a.vm('buffer_load_dwordx4 v20, s[40:43], s59 offen lds', tag)

            def e1():
                a.vm('buffer_load_dwordx4 v244, s[40:43], s59 offen offset:1024 lds', tag)
                a.e('s_add_u32 s59, s59, s58')
                a.e('s_cmp_eq_u32 s59, s42')
                a.e('s_cselect_b32 s59, 0, s59')
            return [e0, e1]
        sgl = ((si // 4) % 2) * 4096
        if seg == 'sp':
            def f0():
                if i % 4 == 0:
                    self.grp(i // 4, 24)
                    a.e('s_mul_i32 s24, s24, 589824')
                    a.e(f's_add_u32 s24, s24, {Z2_OFF}')
                a.e(f's_add_u32 m0, s26, {slot}')
                a.vm(f'buffer_load_dwordx4 v9, s[12:15], s24 offen {SCL} lds', tag)

            def f1():
                a.vm(f'buffer_load_dwordx4 v9, s[12:15], s24 offen offset:1024 {SCL} lds', tag)
                if i % 4 in (1, 2):
                    a.e('s_add_u32 s24, s24, 147456')

            def f2():
                a.e(f's_add_u32 m0, s30, {sgl}')
                a.vm(f'buffer_load_dwordx4 v10, s[12:15], s24 offen {SCL} lds', tag)
                a.e('s_add_u32 s24, s24, 147456')
        else:
            def f0():
                if seg == 'z1' and i == 0:
                    a.e('s_sub_u32 s24, s24, 4608')
                a.e(f's_add_u32 m0, s26, {slot}')
                a.vm('buffer_load_dwordx4 v2, s[8:11], s24 offen lds', tag)

            def f1():
                a.vm('buffer_load_dwordx4 v3, s[8:11], s24 offen offset:1024 lds', tag)
                a.e(f's_add_u32 s24, s24, {32 * 9216}')
                if i % 2 == 1:
                    a.e(f's_cmp_ge_u32 s24, {576 * 9216}')
                    a.e(f's_cselect_b32 s29, {576 * 9216}, 0')
                    a.e('s_sub_u32 s24, s24, s29')

            def f2():
                a.e(f's_mul_i32 s29, s28, {32 * 9216}')
                if si < 16:
                    a.e('s_add_u32 s29, s29, 4608')
                elif si == 16:
                    a.e('s_cmp_lt_u32 s20, 2')
                    a.e('s_cselect_b32 s44, 4608, 0')
                    a.e('s_add_u32 s29, s29, s44')
                a.e(f's_add_u32 m0, s30, {sgl}')
                a.e('s_add_u32 s28, s28, 4')
                a.vm('buffer_load_dwordx4 v4, s[8:11], s29 offen lds', tag)
                a.e('s_cmp_ge_u32 s28, 18')
                a.e('s_cselect_b32 s29, 18, 0')
                a.e('s_sub_u32 s28, s28, s29')
        return [f0, f1, f2] if si % 4 == 0 else [f0, f1]

    def issueB(self):
        a = self.a
        s = self.nextB
        if s >= len(self.stages):
            return []
        self.nextB += 1
        seg, i = self.stages[s]
        tag = ('B', s)
        sp = seg == 'sp'
        vb = 12 if sp else 5
        sr = 's[52:55]' if sp else 's[4:7]'

        def mk(j):
            def f():
                if j == 0 and sp:
                    if i % 2 == 0:
                        self.grp(i // 2, 25)
                        a.e('s_lshl_b32 s25, s25, 8')
                    else:
                        a.e('s_add_u32 s25, s25, 128')
                a.e(f's_add_u32 m0, s27, {(s % 2) * 16384}')
                a.vm(f'buffer_load_dwordx4 v{vb + j}, {sr}, s25 offen offset:{1024 * j} lds', tag)
                if j == 3 and not sp:
                    a.e('s_add_u32 s25, s25, 128')
                    a.e('s_cmp_eq_u32 s25, 1152')
                    a.e('s_cselect_b32 s25, 0, s25')
            return f
        return [mk(j) for j in range(4)]

    def nfr(self, u):
        return 6 if self.units[u][0] == 'E' else 9

    def readA(self, u, F, part):
        a = self.a
        seg, i, _, _, si = self.units[u]
        if F >= self.nfr(u):
            return
        slot = (u % self.R) * self.SLOT
        tag = ('AR', u, F)
        j = part
        d2 = vr(self.AF + 4 * F + 2 * j, 2)
        if seg == 'E':
            kk, t = F // 3, F % 3
            if t < 2:
                a.lg(f'ds_read_b64_tr_b16 {d2}, v245 offset:{slot + kk * 1024 + j * 256 + t * 8}', tag)
            else:
                a.lg(f'ds_read_b64_tr_b16 {d2}, v246 offset:{slot + kk * 1024 + j * 128}', tag)
            return
        sgl = self.SGL + ((si // 4) % 2) * 4096 + (si % 4) * 1024
        if seg == 'sp':
            if part == 0:
                a.lg(f'ds_read_b128 {vr(self.AF + 4 * F, 4)}, v19 offset:{slot + F * 1024 if F < 8 else sgl}', tag)
        elif F < 8:
            a.lg(f'ds_read_b64_tr_b16 {d2}, v{16 + F % 2} offset:{slot + j * 1024 + (F // 2) * 256}', tag)
        else:
            a.lg(f'ds_read_b64_tr_b16 {d2}, v18 offset:{sgl + j * 256}', tag)

    def readB(self, s, jj):
        a = self.a
        if jj == 0:
            a.wait_vm(('B', s))
        for e in range(2):
            a.lg(f'ds_read_b128 {vr(self.BF + 16 * (s % 2) + 8 * jj + 4 * e, 4)}, v{21 + jj} offset:{(s % 2) * 16384 + e * 2048}', ('BR', s))

    def prologue_issue(self):
        for f in self.issueB() + self.issueA() + self.issueA() + self.issueA() + self.issueB() + self.issueA():
            f()

    def run_segment(self, u0, n, own=False):
        a = self.a
        a.e(f's_setprio {opt("pg", PG)[0]}')
        s0 = self.units[u0][2]
        self.readB(s0, 0)
        self.readB(s0, 1)
        a.wait_vm(('A', u0))
        a.wait_lg('own')
        a.e('s_barrier')
        for F in range(9):
            self.readA(u0, F, 0)
            self.readA(u0, F, 1)
        for u in range(u0, u0 + n):
            last = u == u0 + n - 1
            seg, kk, s, jj, _ = self.units[u]
            sfirst = u == u0 or self.units[u - 1][2] != s
            slast = last or self.units[u + 1][2] != s
            nf = self.nfr(u)
            if 'p2fine' in ABL and u >= self.UP + 4 and (u - self.UP - 4) % 10 == 0:
                stamp(a, 1 + (u - self.UP - 4) // 10)
            will_issue = self.nextA <= u + self.R - 1 and self.nextA < self.limitA
            if not last:
                a.wait_vm(('A', u + 1))
            if will_issue or (not last and not own):
                a.e('s_barrier')
            if u in self.hooks:
                self.hooks[u]()
            fill = list(self.issueA()) if self.nextA <= u + self.R - 1 else []
            if sfirst and self.nextB <= s + 2:
                fb = self.issueB()
                if fb:
                    f0 = fb[0]

                    def g0(f0=f0, s=s):
                        a.wait_lg(('BR', s))
                        f0()
                    self.pendB = [g0] + fb[1:]
            nb_now = len(self.pendB) if slast else 2
            fill += self.pendB[:nb_now]
            self.pendB = self.pendB[nb_now:]
            if nf == 9:
                slots = {1: [4], 2: [2, 6], 3: [1, 4, 7], 4: [1, 3, 5, 7], 5: [0, 2, 4, 6, 8], 6: [0, 2, 3, 5, 6, 8], 7: [0, 1, 2, 4, 5, 7, 8]}.get(len(fill), [])
            else:
                slots = {1: [3], 2: [1, 4], 3: [1, 3, 5]}.get(len(fill), [0, 1, 2, 3, 4, 5])
            for F in range(nf):
                a.wait_lg(('AR', u, F))
                if F == 0 and sfirst:
                    a.wait_lg(('BR', s))
                for e in range(2):
                    af = vr(self.AF + 4 * F, 4)
                    if seg == 'E':
                        d = vr(self.ACC1 + 8 * (F % 3) + 4 * e, 4)
                        c = '0' if (kk == 0 and F < 3) else d
                        bf = vr(self.BF + 16 * (s % 2) + 8 * (F // 3) + 4 * e, 4)
                    else:
                        d = vr((self.ACC1 if seg == 'z1' else self.ACC0) + 8 * F + 4 * e, 4)
                        c = '0' if kk == 0 else d
                        bf = vr(self.BF + 16 * (s % 2) + 8 * jj + 4 * e, 4)
                    if seg == 'z2':
                        a.e(f'v_mfma_f32_16x16x32_bf16 {d}, {bf}, {af}, {c}')
                    else:
                        a.e(f'v_mfma_f32_16x16x32_bf16 {d}, {af}, {bf}, {c}')
                    if e == 0:
                        if not last and F > 0:
                            self.readA(u + 1, F - 1, 1)
                        if fill and F in slots:
                            fill.pop(0)()
                    elif not last:
                        self.readA(u + 1, F, 0)
                        if F == nf - 1:
                            self.readA(u + 1, F, 1)
                        if nf == 6:
                            self.readA(u + 1, 6 + F // 2, F % 2)
                if not last and slast and F in ((4, 6) if nf == 9 else (1, 3)):
                    self.readB(s + 1, 0 if F in (4, 1) else 1)
            for f in fill:
                f()
        a.e(f's_setprio {opt("pg", PG)[1]}')

    def proj_store(self):
        a = self.a
        E = self.ACC1
        P = self.AF
        a.e(f's_mov_b32 s44, {hx(QSCALE)}')
        a.e(f's_mov_b32 s45, {hx(QSCALE)}')
        a.e('v_mov_b32 v24, s44')
        a.e('s_bitcmp1_b32 0x2c, s22')
        a.e(f's_cselect_b32 s46, {hx(2.0 ** VSH)}, 1.0')
        a.e('v_mov_b32 v25, s46')
        a.e('v_cmp_gt_u32 vcc, 32, v1')
        a.e('v_cndmask_b32 v24, v25, v24, vcc')
        a.e('s_lshl_b32 s46, s23, 5')
        a.e('s_add_u32 s46, s46, s22')
        a.e('s_mul_i32 s46, s46, 1152')
        a.e(f's_add_u32 s46, s46, {QF_OFF}')
        a.e(f's_add_u32 s47, s46, {16 * 1152}')
        a.e('v_lshlrev_b32 v25, 2, v1')
        for e in range(2):
            for t in range(2):
                for h in range(2):
                    r = E + 8 * t + 4 * e + 2 * h
                    a.e(f'v_pk_mul_f32 {vr(r, 2)}, {vr(r, 2)}, s[44:45]')
            for r in (E + 16 + 4 * e, E + 18 + 4 * e):
                a.e(f'v_pk_mul_f32 {vr(r, 2)}, {vr(r, 2)}, v[24:25] op_sel_hi:[1,0]')
            for t in range(3):
                for h in range(2):
                    r = E + 8 * t + 4 * e + 2 * h
                    a.e(f'v_cvt_pk_bf16_f32 v{P + 8 * e + 2 * t + h}, v{r}, v{r + 1}')
            a.vm(f'buffer_store_dwordx4 {vr(P + 8 * e, 4)}, v19, s[12:15], s{46 + e} offen {SC}', 'pst')
        a.e('s_mov_b32 exec_hi, 0')
        for e in range(2):
            a.vm(f'buffer_store_dword v{P + 8 * e + 4}, v25, s[12:15], s{46 + e} offen offset:1024 {SC}', 'pst')
        a.e('s_mov_b64 exec, -1')
        le = a.newlabel('PJ_E')
        lv = a.newlabel('PJ_V')
        lt = a.newlabel('PJ_T')
        ls = a.newlabel('PJ_S')
        a.e('s_cmp_ge_u32 s22, 6')
        a.e(f's_cbranch_scc1 {le}')
        a.e(f's_mul_i32 s44, s23, {KV_TILE}')
        a.e(f's_add_u32 s44, s44, {KV_OFF}')
        a.e('v_and_b32 v24, 15, v1')
        a.e('v_bfe_u32 v25, v1, 4, 1')
        a.e('v_lshrrev_b32 v26, 2, v24')
        a.e('v_mul_u32_u24 v26, 168, v26')
        a.e('v_add_u32 v26, 1152, v26')
        a.e('v_and_b32 v27, 3, v1')
        a.e('s_mov_b32 exec_lo, 0')
        a.e('s_cmp_ge_u32 s22, 4')
        a.e(f's_cbranch_scc1 {lt}')
        a.e('s_cmp_ge_u32 s22, 2')
        a.e(f's_cbranch_scc1 {lv}')
        a.e('v_lshlrev_b32 v28, 4, v24')
        a.e('v_lshl_add_u32 v28, v25, 3, v28')
        a.e('s_lshl_b32 s45, s22, 9')
        a.e('s_add_u32 s44, s44, s45')
        a.e('s_add_u32 s45, s44, 256')
        a.e(f's_branch {ls}')
        a.label(lv)
        a.e('v_lshl_add_u32 v28, v27, 5, v26')
        a.e('v_lshl_add_u32 v28, v25, 3, v28')
        a.e('s_and_b32 s45, s22, 1')
        a.e('s_lshl_b32 s45, s45, 4')
        a.e('s_add_u32 s44, s44, s45')
        a.e(f's_add_u32 s45, s44, {4 * 168}')
        a.e(f's_branch {ls}')
        a.label(lt)
        lvt = a.newlabel('PJ_VT')
        a.e('s_cmp_eq_u32 s22, 5')
        a.e(f's_cbranch_scc1 {lvt}')
        a.e('v_lshlrev_b32 v28, 2, v24')
        a.e('s_mov_b32 exec_hi, 0xffff')
        for e in range(2):
            a.e(f'buffer_store_dword v{P + 8 * e + 4}, v28, s[12:15], s44 offen offset:{1024 + 64 * e} {SC}')
        a.e(f's_branch {le}')
        a.label(lvt)
        a.e('v_lshl_add_u32 v28, v27, 3, v26')
        a.e('v_add_u32 v28, 128, v28')
        a.e('v_add_u32 v29, 160, v26')
        a.e('v_cmp_eq_u32 vcc, 0, v25')
        a.e('v_cndmask_b32 v28, v29, v28, vcc')
        a.e(f'v_mov_b32 v29, {f2u(2.0 ** VSH) >> 16}')
        for e in range(2):
            a.e(f'v_cndmask_b32 v{P + 8 * e + 4}, 0, v{P + 8 * e + 4}, vcc')
            a.e(f'v_cndmask_b32 v{P + 8 * e + 5}, 0, v29, vcc')
        a.e(f's_add_u32 s45, s44, {4 * 168}')
        a.label(ls)
        for e in range(2):
            a.e(f'buffer_store_dwordx2 {vr(P + 8 * e + 4, 2)}, v28, s[12:15], s{44 + e} offen {SC}')
        a.label(le)
        a.e('s_mov_b64 exec, -1')

    def proj_signal(self):
        a = self.a
        a.wait_vm('pst')
        a.e('s_bfe_u32 s44, s22, 0x20001')
        a.e('s_lshl_b32 s44, s44, 3')
        a.e('s_bfe_u32 s45, s23, 0x30001')
        a.e('s_add_u32 s44, s44, s45')
        a.e('s_lshl_b32 s44, s44, 3')
        a.e('s_and_b32 s45, s2, 7')
        a.e('s_add_u32 s44, s44, s45')
        a.e('s_lshl_b32 s44, s44, 5')
        a.e('s_and_b32 s45, s23, 1')
        a.e('s_lshl_b32 s45, s45, 1')
        a.e('s_add_u32 s44, s44, s45')
        a.e('s_and_b32 s45, s22, 1')
        a.e('s_add_u32 s44, s44, s45')
        a.e('s_lshl_b32 s44, s44, 2')
        a.e(f's_add_u32 s44, s44, {GO_OFF}')
        set_flag(a, 44, 27)
        a.e('s_barrier')
        l = a.newlabel('PS')
        a.e('s_cmp_ge_u32 s22, 6')
        a.e(f's_cbranch_scc1 {l}')
        a.e('s_cmp_lg_u32 s20, 0')
        a.e(f's_cbranch_scc1 {l}')
        a.e('s_mul_i32 s44, s21, 6')
        a.e('s_add_u32 s44, s44, s22')
        a.e('s_lshl_b32 s44, s44, 2')
        a.e(f's_add_u32 s44, s44, {KVF_OFF}')
        a.e('v_lshlrev_b32 v27, 9, v1')
        a.e('s_mov_b64 exec, 0xff')
        a.e(f'buffer_store_dword v28, v27, s[12:15], s44 offen {SC}')
        a.e('s_mov_b64 exec, -1')
        a.label(l)

    def gelu_consts(self):
        a = self.a
        a.e(f's_mov_b32 s60, {hx(GELU_C1)}')
        a.e(f's_mov_b32 s61, {hx(GELU_C1)}')
        a.e(f'v_mov_b32 v30, {hx(GELU_C0)}')
        a.e(f'v_mov_b32 v31, {hx(GELU_C0)}')

    def z1_gelu(self, Fs=range(9)):
        a = self.a
        T = self.BF + 16
        for F in Fs:
            base = self.ACC1 + 8 * F
            gelu_group(a, [base + 2 * i for i in range(4)], T + 8 * (F % 2), 60, 30)

    def z2_gelu_publish(self):
        a = self.a
        T = self.AF + 16
        S = self.BF
        for F in range(9):
            if F == opt('psig', [5])[0]:
                self.proj_signal()
            base = self.ACC0 + 8 * F
            gelu_group(a, [base + 2 * i for i in range(4)], T + 8 * (F % 2), 60, 30)
            for i in range(4):
                y = vr(base + 2 * i, 2)
                if F == 0:
                    a.e(f'v_pk_add_f32 {vr(S + 2 * i, 2)}, {y}, 0 op_sel_hi:[1,0]')
                    a.e(f'v_pk_mul_f32 {vr(S + 8 + 2 * i, 2)}, {y}, {y}')
                else:
                    a.e(f'v_pk_add_f32 {vr(S + 2 * i, 2)}, {vr(S + 2 * i, 2)}, {y}')
                    a.e(f'v_pk_fma_f32 {vr(S + 8 + 2 * i, 2)}, {y}, {y}, {vr(S + 8 + 2 * i, 2)}')
        for b in (S, S + 8):
            for r in range(4):
                a.e(f'v_add_f32_dpp v{b + r}, v{b + r}, v{b + r} row_ror:8 row_mask:0xf bank_mask:0x3')
            for r in range(4):
                a.e(f'v_add_f32_dpp v{b + r}, v{b + r + 4}, v{b + r + 4} row_ror:8 row_mask:0xf bank_mask:0xc')
        for b in (S, S + 8):
            for r in range(2):
                a.e(f'v_add_f32_dpp v{b + r}, v{b + r}, v{b + r} row_shl:4 row_mask:0xf bank_mask:0x5')
            for r in range(2):
                a.e(f'v_add_f32_dpp v{b + r}, v{b + r + 2}, v{b + r + 2} row_shr:4 row_mask:0xf bank_mask:0xa')
        for qp in ('[1,0,3,2]', '[2,3,0,1]'):
            for r in (S, S + 1, S + 8, S + 9):
                a.e(f'v_add_f32_dpp v{r}, v{r}, v{r} quad_perm:{qp} row_mask:0xf bank_mask:0xf')
        a.e('v_and_b32 v25, 1, v1')
        a.e('v_cmp_eq_u32 vcc, 1, v25')
        G0 = S + 12
        a.e(f'v_cndmask_b32 v{G0}, v{S}, v{S + 1}, vcc')
        a.e(f'v_cndmask_b32 v{G0 + 1}, v{S + 8}, v{S + 9}, vcc')
        a.e('v_lshrrev_b32 v27, 2, v1')
        a.e('v_lshl_add_u32 v27, v27, 1, v25')
        a.e('v_lshlrev_b32 v27, 4, v27')
        a.e('s_lshl_b32 s48, s23, 13')
        a.e(f's_add_u32 s48, s48, {STATS_OFF}')
        a.e('s_lshl_b32 s49, s22, 9')
        a.e('s_add_u32 s49, s49, s48')
        a.e(f'v_mov_b32 v{G0 + 2}, s62')
        a.e(f'v_mov_b32 v{G0 + 3}, s62')
        a.e('s_mov_b32 exec_lo, 0x33333333')
        a.e('s_mov_b32 exec_hi, 0x33333333')
        a.vm(f'buffer_store_dwordx4 {vr(G0, 4)}, v27, s[12:15], s49 offen {SC}', 'st')
        a.e('s_mov_b64 exec, -1')

    def z2_gather_norm_store(self):
        a = self.a
        G = self.AF
        a.e('s_add_u32 s49, s48, 4096')

        def ld():
            for i in range(8):
                a.e(f'buffer_load_dwordx4 {vr(G + 4 * i, 4)}, v19, s[12:15], {"s48" if i < 4 else "s49"} offen offset:{1024 * (i % 4)} {SC}')
        poll(a, ld, [G + 4 * i + 2 for i in range(8)], 27)
        for i in (0, 2, 4, 6):
            a.e(f'v_pk_add_f32 {vr(G + 4 * i, 2)}, {vr(G + 4 * i, 2)}, {vr(G + 4 * i + 4, 2)}')
        a.e(f'v_pk_add_f32 {vr(G, 2)}, {vr(G, 2)}, {vr(G + 8, 2)}')
        a.e(f'v_pk_add_f32 {vr(G + 16, 2)}, {vr(G + 16, 2)}, {vr(G + 24, 2)}')
        a.e(f'v_pk_add_f32 {vr(G, 2)}, {vr(G, 2)}, {vr(G + 16, 2)}')
        a.e(f'v_mov_b32 v{G + 2}, v{G}')
        a.e(f'v_mov_b32 v{G + 3}, v{G + 1}')
        a.e(f'v_permlane32_swap_b32 v{G}, v{G + 2}')
        a.e(f'v_permlane32_swap_b32 v{G + 1}, v{G + 3}')
        a.e(f'v_pk_add_f32 {vr(G, 2)}, {vr(G, 2)}, {vr(G + 2, 2)}')
        a.e(f'v_mul_f32 v{G}, {hx(1.0 / 2304)}, v{G}')
        a.e(f'v_mul_f32 v{G + 1}, {hx(1.0 / 2304)}, v{G + 1}')
        a.e(f'v_fma_f32 v{G + 1}, -v{G}, v{G}, v{G + 1}')
        a.e(f'v_max_f32 v{G + 1}, 0, v{G + 1}')
        a.e(f'v_add_f32 v{G + 1}, {hx(1e-5)}, v{G + 1}')
        a.e(f'v_rsq_f32 v{G + 1}, v{G + 1}')
        a.e(f'v_mul_f32 v{G}, v{G}, v{G + 1}')
        a.e(f'v_sub_f32 v{G}, 0, v{G}')
        a.e('v_lshrrev_b32 v28, 4, v1')
        a.e('v_lshlrev_b32 v28, 5, v28')
        RS = self.BF
        for i in range(8):
            a.lg(f'ds_bpermute_b32 v{RS + i}, v28, v{G + 1} offset:{4 * i}', 'r')
            a.lg(f'ds_bpermute_b32 v{RS + 8 + i}, v28, v{G} offset:{4 * i}', 'r')
        a.e('s_mul_i32 s44, s23, 147456')
        a.e(f's_add_u32 s44, s44, {Z2_OFF}')
        a.e('s_lshl_b32 s45, s22, 13')
        a.e('s_add_u32 s45, s45, s44')
        a.e('s_add_u32 s47, s45, 4096')
        a.e('s_lshl_b32 s46, s22, 10')
        a.e('s_add_u32 s46, s46, s44')
        a.e(f's_add_u32 s46, s46, {128 * 1024}')
        a.wait_lg0()
        for F in range(9):
            base = self.ACC0 + 8 * F
            pk = self.ACC0 + 4 * F
            for i in range(4):
                a.e(f'v_pk_fma_f32 {vr(base + 2 * i, 2)}, {vr(base + 2 * i, 2)}, {vr(RS + 2 * i, 2)}, {vr(RS + 8 + 2 * i, 2)}')
            for i in range(4):
                a.e(f'v_cvt_pk_bf16_f32 v{pk + i}, v{base + 2 * i}, v{base + 2 * i + 1}')
            so = 's46' if F == 8 else ('s45' if F < 4 else 's47')
            a.vm(f'buffer_store_dwordx4 {vr(pk, 4)}, v19, s[12:15], {so} offen offset:{1024 * (F % 4)} {SC}', 'st')

    def own_write(self):
        a = self.a
        a.e('s_lshl_b32 s44, s20, 13')
        a.e('v_add_u32 v27, s44, v19')
        a.e('v_add_u32 v28, s30, v19')
        a.e('s_barrier')
        for F in range(9):
            pk = self.ACC0 + 4 * F
            if F < 8:
                a.lg(f'ds_write_b128 v27, {vr(pk, 4)} offset:{1024 * F}', 'own')
            else:
                a.lg(f'ds_write_b128 v28, {vr(pk, 4)} offset:4096', 'own')

    def sp_pre(self):
        a = self.a
        a.e('v_bfe_u32 v27, v1, 2, 2')
        a.e('v_lshlrev_b32 v27, 3, v27')
        a.e('v_and_b32 v28, 3, v1')
        a.e('s_lshl_b32 s44, s23, 5')
        a.e('v_add3_u32 v27, v27, v28, s44')
        a.e('v_lshlrev_b32 v28, 1, v27')
        a.e('v_lshlrev_b32 v11, 3, v27')
        a.vm('global_load_ushort v244, v28, s[56:57]', 'pre')
        a.vm('global_load_ushort v245, v28, s[56:57] offset:8', 'pre')
        self.gate_loads(True)

    def gate_loads(self, track=False):
        a = self.a
        a.e(f's_mov_b32 s44, {GATE_OFF}')
        for e in range(2):
            t = f'buffer_load_dwordx2 {vr(246 + 2 * e, 2)}, v11, s[12:15], s44 offen offset:{32 * e} {SC}'
            a.vm(t, 'pre') if track else a.e(t)

    def sp_epilogue(self):
        a = self.a
        a.wait_vm('pre')
        poll(a, self.gate_loads, [247, 249], 27, first_done=True)
        poll(a, lambda: p3_flags(a), [2, 3, 4], 27, first_done=True)
        for e in range(2):
            a.e(f'v_sub_f32 v{246 + 2 * e}, 1.0, v{246 + 2 * e}')
            a.e(f'v_lshlrev_b32 v{244 + e}, 16, v{244 + e}')
            a.e(f'v_mul_f32 v{250 + 2 * e}, v{244 + e}, v{246 + 2 * e}')
        a.e('s_mul_i32 s44, s23, 180')
        a.e('s_lshr_b32 s45, s22, 2')
        a.e('s_mul_i32 s45, s45, 18')
        a.e('s_add_u32 s44, s44, s45')
        a.e('s_lshl_b32 s44, s44, 10')
        a.e(f's_add_u32 s44, s44, {UF_OFF + 18 * 1024}')
        a.e('s_and_b32 s45, s22, 3')
        a.e('s_lshl_b32 s46, s45, 12')
        a.e('s_add_u32 s46, s46, s44')
        a.e(f's_add_u32 s47, s46, {90 * 1024}')
        a.e('s_lshr_b32 s48, s45, 1')
        a.e('s_lshl_b32 s48, s48, 10')
        a.e('s_add_u32 s48, s48, s44')
        a.e('s_and_b32 s49, s45, 1')
        a.e('s_lshl_b32 s49, s49, 3')
        a.e('s_add_u32 s48, s48, s49')
        a.e(f's_add_u32 s48, s48, {16 * 1024}')
        a.e(f's_add_u32 s49, s48, {90 * 1024}')
        idx = 0
        for m in range(5):
            for e in range(2):
                pk = self.AF + 4 * idx
                idx += 1
                Fs = (2 * m, 2 * m + 1) if m < 4 else (8,)
                prs = [(self.ACC0 + 8 * F + 4 * e + 2 * i, self.ACC1 + 8 * F + 4 * e + 2 * i) for F in Fs for i in range(2)]
                for g, z in prs:
                    a.e(f'v_pk_fma_f32 {vr(g, 2)}, {vr(g, 2)}, {vr(246 + 2 * e, 2)}, {vr(250 + 2 * e, 2)} op_sel_hi:[1,0,0]')
                for g, z in prs:
                    a.e(f'v_pk_mul_f32 {vr(g, 2)}, {vr(g, 2)}, {vr(z, 2)}')
                for i, (g, z) in enumerate(prs):
                    a.e(f'v_cvt_pk_bf16_f32 v{pk + i}, v{g}, v{g + 1}')
                for i in range(len(prs)):
                    a.e(f'v_min_u32 v{pk + i}, -2, v{pk + i}')
                if m < 4:
                    a.vm(f'buffer_store_dwordx4 {vr(pk, 4)}, v19, s[12:15], s{46 + e} offen offset:{1024 * m} {SC}', 'st')
                else:
                    a.vm(f'buffer_store_dwordx2 {vr(pk, 2)}, v19, s[12:15], s{48 + e} offen {SC}', 'st')


def write_nonce(a):
    l = a.newlabel('NOW')
    a.e('s_or_b32 s44, s3, s20')
    a.e('s_cmp_lg_u32 s44, 0')
    a.e(f's_cbranch_scc1 {l}')
    a.e('s_memrealtime s[44:45]')
    a.e('v_mov_b32 v29, 0')
    a.e('s_waitcnt lgkmcnt(0)')
    a.e('s_or_b32 s44, s44, 1')
    a.e('v_mov_b32 v28, s44')
    a.e(f'global_store_dword v29, v28, s[16:17] {SC}')
    a.label(l)


KVBUF = 40960
M_OFFSET = 96.0
VSH = 32


class ATT:
    SB = 16
    OB = 48
    QF = 80
    KF = 96
    VF = 112
    PF = 128
    XF = 136
    WF = 208
    WQS = 16

    def __init__(self, a):
        self.a = a

    def setup(self, sid):
        a = self.a
        a.e(f's_load_dwordx2 s[4:5], s[0:1], {A_X}')
        a.e(f's_load_dwordx4 s[16:19], s[0:1], {A_DBG}')
        a.e(f's_load_dwordx4 s[56:59], s[0:1], {A_WOUT}')
        a.e(f's_load_dwordx2 s[36:37], s[0:1], {A_WO}')
        a.e('v_lshrrev_b32 v1, 6, v0')
        a.e('v_readfirstlane_b32 s20, v1')
        a.e('v_and_b32 v1, 63, v0')
        a.e(f's_and_b32 s24, s{sid}, 3')
        a.e(f's_lshr_b32 s25, s{sid}, 3')
        a.e('s_lshl_b32 s21, s24, 3')
        a.e('s_and_b32 s23, s25, 7')
        a.e('s_add_u32 s21, s21, s23')
        a.e(f's_and_b32 s22, s{sid}, 4')
        a.e('s_lshr_b32 s23, s25, 3')
        a.e('s_add_u32 s22, s22, s23')
        a.e('s_lshl_b32 s23, s21, 2')
        a.e('s_add_u32 s23, s23, s20')
        a.e('s_lshr_b32 s44, s23, 1')
        a.e('s_lshl_b32 s44, s44, 5')
        a.e('s_and_b32 s45, s23, 1')
        a.e('s_lshl_b32 s45, s45, 2')
        a.e('s_add_u32 s44, s44, s45')
        a.e('v_bfe_u32 v3, v1, 2, 2')
        a.e('v_lshlrev_b32 v3, 3, v3')
        a.e('v_and_b32 v10, 3, v1')
        a.e('v_add3_u32 v3, v3, v10, s44')
        a.e('v_lshlrev_b32 v3, 3, v3')
        a.e('s_mul_i32 s26, s20, 10240')
        a.e('s_lshl_b32 s27, s25, 2')
        a.e('s_add_u32 s27, s27, s20')
        if 'nocodepf' not in ABL:
            a.e('s_getpc_b64 s[46:47]')
            a.e('s_and_b32 s46, s46, 0xffffff00')
            a.e('s_mul_i32 s45, s27, 5')
            a.e('v_min_u32 v10, 4, v1')
            a.e('v_add_u32 v10, s45, v10')
            a.e('v_min_u32 v10, CODE_LINES, v10')
            a.e('v_lshlrev_b32 v10, 7, v10')
            a.e('global_load_dword v239, v10, s[46:47]')
        a.e('v_lshlrev_b32 v10, 4, v1')
        a.e('s_waitcnt lgkmcnt(0)')
        a.e('s_mov_b32 s12, s18')
        a.e('s_mov_b32 s13, s19')
        srd(a, 12, WS_SIZE)

    def nonce(self):
        a = self.a
        a.e('s_waitcnt vmcnt(0)')
        a.e('v_mov_b32 v2, 0')
        a.e(f'global_load_dword v4, v2, s[16:17] {SC}')
        a.e('s_waitcnt vmcnt(0)')
        get_nonce(a, 2, 4)

    def page_touch(self):
        a = self.a
        l = a.newlabel('PT')
        a.e('s_cmp_lg_u32 s20, 1')
        a.e(f's_cbranch_scc1 {l}')
        a.e(f's_load_dwordx2 s[44:45], s[0:1], {A_WSP}')
        a.e(f's_load_dwordx2 s[46:47], s[0:1], {A_OUT}')
        a.e('v_lshlrev_b32 v2, 19, v1')
        a.e('buffer_load_dword v255, v2, s[12:15], 0 offen')
        a.e('v_min_u32 v4, 15, v1')
        a.e('v_lshlrev_b32 v4, 19, v4')
        a.e('v_min_u32 v5, 4, v1')
        a.e('v_lshlrev_b32 v5, 19, v5')
        a.e('s_waitcnt lgkmcnt(0)')
        a.e('global_load_dword v255, v4, s[44:45]')
        a.e('global_load_dword v255, v5, s[46:47]')
        a.e('global_load_dword v255, v5, s[56:57]')
        a.label(l)

    SV = 140

    def side(self, part):
        a = self.a
        lg = a.newlabel('SJ_G')
        le = a.newlabel('SJ_E')
        a.e('s_cmp_eq_u32 s20, 3')
        a.e(f's_cbranch_scc1 {lg}')
        a.e('s_cmp_ge_u32 s63, 720')
        a.e(f's_cbranch_scc1 {le}')
        self.retile(part)
        a.e(f's_branch {le}')
        a.label(lg)
        self.gate(part)
        a.label(le)
        if part == 2:
            self.mark_flag()

    def gate(self, part):
        a = self.a
        V = self.SV
        X, W = V + 8, V + 44
        if part == 0:
            a.e(f'v_lshrrev_b32 v{V}, 3, v1')
            a.e('s_lshl_b32 s44, s3, 3')
            a.e(f'v_add_u32 v{V}, s44, v{V}')
            a.e(f'v_and_b32 v{V + 1}, 7, v1')
            a.e(f'v_lshlrev_b32 v{V + 1}, 4, v{V + 1}')
            a.e(f'v_mul_u32_u24 v{V + 2}, 1152, v{V}')
            a.e(f'v_add_u32 v{V + 2}, v{V + 2}, v{V + 1}')
            for i in range(9):
                a.e(f'global_load_dwordx4 {vr(X + 4 * i, 4)}, v{V + 2}, s[4:5] offset:{128 * i}')
                a.e(f'global_load_dwordx4 {vr(W + 4 * i, 4)}, v{V + 1}, s[58:59] offset:{128 * i}')
        elif part == 1:
            A0, A1, T0, T1 = V + 4, V + 5, V + 6, V + 7
            a.e(f'v_mov_b32 v{A0}, 0')
            a.e(f'v_mov_b32 v{A1}, 0')
            for i in range(36):
                a.e(f'v_lshlrev_b32 v{T0}, 16, v{X + i}')
                a.e(f'v_lshlrev_b32 v{T1}, 16, v{W + i}')
                a.e(f'v_and_b32 v{X + i}, 0xffff0000, v{X + i}')
                a.e(f'v_and_b32 v{W + i}, 0xffff0000, v{W + i}')
                a.e(f'v_fmac_f32 v{A0}, v{T0}, v{T1}')
                a.e(f'v_fmac_f32 v{A1}, v{X + i}, v{W + i}')
            a.e(f'v_add_f32 v{A0}, v{A0}, v{A1}')
            for m in ('quad_perm:[1,0,3,2]', 'quad_perm:[2,3,0,1]', 'row_half_mirror'):
                a.e(f'v_add_f32_dpp v{A0}, v{A0}, v{A0} {m} row_mask:0xf bank_mask:0xf')
            a.e(f'v_mul_f32 v{A0}, {hx(-1.4426950408889634)}, v{A0}')
            a.e(f'v_exp_f32 v{A0}, v{A0}')
            a.e(f'v_add_f32 v{A0}, 1.0, v{A0}')
            a.e(f'v_rcp_f32 v{A0}, v{A0}')
            a.e(f'v_mov_b32 v{A1}, s62')
            a.e(f'v_lshlrev_b32 v{V}, 3, v{V}')
            a.e(f's_mov_b32 s44, {GATE_OFF}')
            a.e('s_mov_b32 exec_lo, 0x01010101')
            a.e('s_mov_b32 exec_hi, 0x01010101')
            a.e(f'buffer_store_dwordx2 {vr(A0, 2)}, v{V}, s[12:15], s44 offen {SC}')
            a.e('s_mov_b64 exec, -1')

    def retile_setup(self):
        a = self.a
        V = self.SV
        a.e('s_mul_i32 s63, s3, 3')
        a.e('s_add_u32 s63, s63, s20')
        a.e('s_and_b32 s64, s63, 7')
        a.e('s_lshr_b32 s65, s63, 3')
        a.e('s_cmp_lt_u32 s65, 18')
        a.e('s_cselect_b32 s40, s36, s56')
        a.e('s_cselect_b32 s41, s37, s57')
        a.e(f's_mov_b32 s42, {2304 * 1152}')
        a.e(f's_cselect_b32 s42, {576 * 1152}, s42')
        a.e('s_mov_b32 s43, 0x00020000')
        a.e('s_sub_u32 s44, s65, 18')
        a.e('s_mul_i32 s45, s44, 57')
        a.e('s_lshr_b32 s45, s45, 10')
        a.e('s_mul_i32 s46, s45, 18')
        a.e('s_sub_u32 s44, s44, s46')
        a.e('s_lshl_b32 s46, s45, 9')
        a.e('s_lshl_b32 s47, s45, 6')
        a.e(f's_add_u32 s47, s47, {2048 - 512}')
        a.e('s_cmp_lt_u32 s44, 16')
        a.e('s_cselect_b32 s46, s46, s47')
        a.e('s_lshl_b32 s44, s44, 5')
        a.e('s_add_u32 s44, s44, s46')
        a.e('s_mov_b32 s45, 4')
        a.e('s_mov_b32 s46, 8')
        a.e('s_mov_b32 s47, 16')
        a.e('s_mov_b32 s48, 2')
        a.e('s_sub_u32 s49, s65, 16')
        a.e('s_mul_i32 s49, s49, 288')
        a.e('s_add_u32 s49, s49, 16')
        a.e('s_cmp_lt_u32 s65, 18')
        a.e('s_cselect_b32 s44, s49, s44')
        a.e('s_cselect_b32 s45, 72, s45')
        a.e('s_cselect_b32 s46, 144, s46')
        a.e('s_cselect_b32 s47, 36, s47')
        a.e('s_cselect_b32 s48, 18, s48')
        a.e('s_mul_i32 s49, s65, 36')
        a.e('s_cmp_lt_u32 s65, 16')
        a.e('s_cselect_b32 s44, s49, s44')
        a.e('s_cselect_b32 s45, 18, s45')
        a.e('s_cselect_b32 s46, 4, s46')
        a.e('s_cselect_b32 s47, 8, s47')
        a.e('s_cselect_b32 s48, 2, s48')
        for r in (44, 45, 46, 47):
            a.e(f's_mul_i32 s{r}, s{r}, 1152')
        a.e('s_mul_i32 s49, s64, 144')
        a.e('s_add_u32 s66, s44, s49')
        a.e('s_add_u32 s67, s66, s47')
        for i in range(2):
            a.e(f's_add_u32 s{68 + i}, s{66 + i}, s45')
        for i in range(4):
            a.e(f's_add_u32 s{70 + i}, s{66 + i}, s46')
        a.e(f'v_lshrrev_b32 v{V}, 5, v1')
        a.e(f'v_mul_lo_u32 v{V}, v{V}, s48')
        a.e('v_bfe_u32 v5, v1, 4, 1')
        a.e(f'v_add_u32 v{V}, v{V}, v5')
        a.e(f'v_mul_u32_u24 v{V}, 1152, v{V}')
        a.e('v_and_b32 v5, 15, v1')
        a.e('v_min_u32 v5, 8, v5')
        a.e(f'v_lshl_add_u32 v{V}, v5, 4, v{V}')
        a.e('v_lshrrev_b32 v5, 4, v1')
        a.e('v_bfe_u32 v6, v1, 2, 2')
        a.e('v_lshlrev_b32 v7, 11, v5')
        a.e('v_lshl_add_u32 v7, v6, 8, v7')
        a.e(f's_add_u32 s44, s26, {KVBUF}')
        a.e('v_add_u32 v7, s44, v7')
        a.e('v_and_b32 v6, 3, v1')
        a.e(f'v_lshl_add_u32 v{V + 2}, v6, 3, v7')
        a.e(f'v_lshl_add_u32 v{V + 1}, v6, 4, v7')
        a.e('v_and_b32 v6, 7, v1')
        a.e('v_lshl_add_u32 v5, v5, 3, v6')
        a.e('v_lshlrev_b32 v5, 4, v5')
        a.e(f'v_add_u32 v{V + 3}, 4096, v5')

    def retile(self, part):
        a = self.a
        V = self.SV
        F = V + 8
        if part == 0:
            for i in range(8):
                a.e(f's_add_u32 m0, s26, {KVBUF + 1024 * i}')
                a.e(f'buffer_load_dwordx4 v{V}, s[40:43], s{66 + i} offen lds')
        elif part == 1:
            for nt in range(5):
                for j in range(2):
                    if nt < 4:
                        a.e(f'ds_read_b64_tr_b16 {vr(F + 4 * nt + 2 * j, 2)}, v{V + 1} offset:{64 * (nt // 2) + 8 * (nt % 2) + 1024 * j}')
                    else:
                        a.e(f'ds_read_b64_tr_b16 {vr(F + 4 * nt + 2 * j, 2)}, v{V + 2} offset:{128 + 1024 * j}')
            a.e('s_mul_i32 s44, s64, 90')
            a.e('s_add_u32 s44, s44, s65')
            a.e('s_mul_i32 s44, s44, 4608')
            a.e(f's_add_u32 s44, s44, {W3_OFF}')
            a.e('s_waitcnt lgkmcnt(0)')
            for nt in range(4):
                a.e(f'buffer_store_dwordx4 {vr(F + 4 * nt, 4)}, v10, s[12:15], s44 offen offset:{1024 * nt} {SC}')
            a.e('s_mov_b32 exec_lo, 0x00ff00ff')
            a.e('s_mov_b32 exec_hi, 0x00ff00ff')
            a.e(f'buffer_store_dwordx4 {vr(F + 16, 4)}, v{V + 3}, s[12:15], s44 offen {SC}')
            a.e('s_mov_b64 exec, -1')
        else:
            a.e('s_lshl_b32 s44, s64, 7')
            a.e('s_add_u32 s44, s44, s65')
            a.e('s_lshl_b32 s44, s44, 2')
            a.e(f's_add_u32 s44, s44, {FW3_OFF}')
            set_flag(a, 44, V + 4)

    def issue_kv(self, buf_s=None, buf=None, flags=''):
        a = self.a
        for g in range(3):
            if buf_s is not None:
                a.e(f's_add_u32 m0, s{buf_s}, {4096 * g}')
            else:
                a.e(f's_add_u32 m0, s31, {buf * KVBUF + 4096 * g}')
            for i in range(4 if g < 2 else 2):
                a.vm(f'buffer_load_dwordx4 v15, s[12:15], s30 offen offset:{1024 * i} {flags} lds', 'kv')
            a.e('s_add_u32 s30, s30, 4096')
        a.e(f's_add_u32 s30, s30, {16 * KV_TILE - 3 * 4096}')

    def q_phase(self):
        a = self.a
        a.e('s_mov_b32 s31, s26')
        a.e('v_add_u32 v15, s31, v10')
        a.e(f's_mov_b32 s30, {KV_OFF}')
        l = a.newlabel('KVR')
        a.e('s_cmp_lg_u32 s20, 0')
        a.e(f's_cbranch_scc1 {l}')
        self.nonce()
        a.e('v_mov_b32 v4, s62')
        a.e('ds_write_b32 v2, v4')
        a.e('s_lshl_b32 s44, s3, 7')
        a.e(f's_add_u32 s44, s44, {GO_OFF}')
        a.e('v_and_b32 v2, 3, v1')
        a.e('v_lshlrev_b32 v2, 2, v2')
        poll(a, lambda: a.e(f'buffer_load_dword v40, v2, s[12:15], s44 offen {SC}'), [40], 42, sleep=8)
        a.e('s_and_b32 s44, s3, 7')
        a.e('s_lshl_b32 s44, s44, 9')
        a.e(f's_add_u32 s44, s44, {KVF_OFF}')
        a.e('v_min_u32 v2, 47, v1')
        a.e('v_lshlrev_b32 v2, 3, v2')
        poll(a, lambda: a.e(f'buffer_load_dwordx2 v[40:41], v2, s[12:15], s44 offen {SC}'), [40, 41], 42, sleep=opt('ksl', [6])[0])
        a.e('s_waitcnt lgkmcnt(0)')
        a.label(l)
        a.e('s_barrier')
        a.e('v_mov_b32 v2, 0')
        a.e('ds_read_b32 v4, v2')
        a.e('s_waitcnt lgkmcnt(0)')
        a.e('v_readfirstlane_b32 s62, v4')
        a.e('s_barrier')
        stamp(a, 6)
        a.vmq = []
        a.e('s_lshl_b32 s44, s23, 3')
        a.e('s_add_u32 s44, s44, s22')
        a.e('s_mul_i32 s44, s44, 2304')
        a.e(f's_add_u32 s44, s44, {QF_OFF}')
        a.e('v_and_b32 v11, 31, v1')
        a.e('v_lshlrev_b32 v11, 2, v11')
        a.e('v_add_u32 v11, 1024, v11')
        for p in range(2):
            a.vm(f'buffer_load_dwordx4 {vr(self.QF + 8 * p, 4)}, v10, s[12:15], s44 offen offset:{1152 * p} {SCL}', 'q')
            a.vm(f'buffer_load_dword v{self.PF + p}, v11, s[12:15], s44 offen offset:{1152 * p} {SCL}', 'q')
        self.issue_kv(buf=1, flags=SCL)
        self.issue_kv(buf=0, flags=SCL)
        for p in range(2):
            for i in (5, 6, 7):
                a.e(f'v_mov_b32 v{self.QF + 8 * p + i}, 0')
            a.e(f'v_mov_b32 v{self.KF + 8 * p + 5}, 0x3f803f80')
            a.e(f'v_mov_b32 v{self.KF + 8 * p + 6}, 0x3f803f80')
            a.e(f'v_mov_b32 v{self.KF + 8 * p + 7}, 0')
        a.e('v_lshrrev_b32 v2, 5, v1')
        a.e('v_lshlrev_b32 v2, 2, v2')
        a.e('v_bfe_u32 v4, v1, 3, 1')
        a.e('v_lshl_add_u32 v2, v4, 1, v2')
        a.e('v_mul_u32_u24 v12, 168, v2')
        a.e('v_add_u32 v12, 1152, v12')
        a.e('v_bfe_u32 v4, v1, 4, 1')
        a.e('v_bfe_u32 v13, v1, 2, 1')
        a.e('v_mul_u32_u24 v14, 168, v4')
        a.e('v_add_u32 v14, v14, v12')
        a.e('v_and_b32 v8, 1, v1')
        a.e('v_lshl_add_u32 v8, v8, 1, v13')
        a.e('v_lshl_add_u32 v8, v8, 3, v14')
        a.e('v_add_u32 v8, 128, v8')
        a.e('v_add_u32 v9, 160, v14')
        a.e('v_and_b32 v2, 2, v1')
        a.e('v_cmp_eq_u32 vcc, 0, v2')
        a.e(f'v_cndmask_b32 v{self.TB}, v9, v8, vcc')
        a.e(f'v_cndmask_b32 v{self.TB + 1}, v8, v9, vcc')
        a.e('v_lshl_add_u32 v2, v4, 1, v13')
        a.e('v_lshl_add_u32 v12, v2, 5, v12')
        a.e('v_and_b32 v2, 3, v1')
        a.e('v_lshl_add_u32 v12, v2, 3, v12')
        a.e('v_mul_u32_u24 v14, 0xaaaa, v13')
        a.e('v_add_u32 v14, 0x4444, v14')
        a.e('v_mul_u32_u24 v13, 0xaaaa, v4')
        a.e('v_add_u32 v13, 0x4444, v13')
        a.wait_vm('q')
        a.e('v_cmp_gt_u32 vcc, 32, v1')
        for p in range(2):
            a.e(f'v_cndmask_b32 v{self.QF + 8 * p + 4}, 0, v{self.PF + p}, vcc')

    def readK(self, j):
        a = self.a
        b = self.KF + 8 * (j % 2)
        off = (j % 16) * KV_TILE
        a.lg(f'ds_read_b128 {vr(b, 4)}, v5 offset:{off}', ('K', j))
        a.lg(f'ds_read_b32 v{b + 4}, v6 offset:{off}', ('K', j))

    def readV(self, j, m):
        a = self.a
        b = self.VF + 8 * (j % 2)
        off = (j % 16) * KV_TILE
        for jj in range(2):
            if m == 0:
                a.lg(f'ds_read_b64_tr_b16 {vr(b + 2 * jj, 2)}, v7 offset:{off + jj * 168}', ('V', j))
            else:
                a.lg(f'ds_read_b64_tr_b16 {vr(b + 4 + 2 * jj, 2)}, v{self.TB + 2 + jj} offset:{off}', ('V', j))

    def S(self, n, part):
        j, qt = n // 2, n % 2
        d = vr(self.SB + 16 * (n % 2), 16)
        k = self.KF + 8 * (j % 2) + 4 * part
        q = self.QF + 8 * qt + 4 * part
        self.a.e(f'v_mfma_f32_32x32x16_bf16 {d}, {vr(k, 4)}, {vr(q, 4)}, {"0" if part == 0 else d}')

    def PV(self, n, m):
        j, qt = n // 2, n % 2
        p = vr(self.P2 + 8 * qt, 8)
        v = vr(self.VF + 8 * (j % 2) + 4 * m, 4)
        if m == 0:
            self.a.e(f'v_smfmac_f32_32x32x32_bf16 {vr(self.OB + 16 * qt, 16)}, {v}, {p}, v13')
        else:
            self.a.e(f'v_smfmac_f32_16x16x64_bf16 {vr(self.PF + 4 * qt, 4)}, {v}, {p}, v14')

    def set_m(self, qt, vm, add):
        a = self.a
        q = self.QF + 8 * qt
        a.e(f'v_sub_f32 v2, {hx(-add)}, v{vm}')
        a.e('v_and_b32 v4, 0xffff0000, v2')
        a.e('v_sub_f32 v2, v2, v4')
        a.e(f'v_and_b32 v{self.TB + 4}, 0xffff0000, v2')
        a.e(f'v_sub_f32 v2, v2, v{self.TB + 4}')
        a.e('v_lshrrev_b32 v4, 16, v4')
        a.e(f'v_or_b32 v4, v4, v{self.TB + 4}')
        a.e('v_lshrrev_b32 v2, 16, v2')
        a.e('v_cmp_gt_u32 vcc, 32, v1')
        a.e(f'v_cndmask_b32 v{q + 5}, 0, v4, vcc')
        a.e(f'v_cndmask_b32 v{q + 6}, 0, v2, vcc')

    TB = 232
    P2 = 240

    def point(self, off):
        a = self.a
        for i in range(3):
            a.e(f'v_add_u32 v{5 + i}, {off}, v{10 + i}')
        for i in range(2):
            a.e(f'v_add_u32 v{self.TB + 2 + i}, {off}, v{self.TB + i}')

    def max16(self, b, dst, first):
        a = self.a
        if first:
            a.e(f'v_max3_f32 v{dst}, v{b}, v{b + 1}, v{b + 2}')
            a.e(f'v_max_f32 v{dst}, v{dst}, v{b + 3}')
            r = range(4, 16, 2)
        else:
            r = range(0, 16, 2)
        for i in r:
            a.e(f'v_max3_f32 v{dst}, v{b + i}, v{b + i + 1}, v{dst}')

    def halves_max(self, r):
        a = self.a
        a.e(f'v_mov_b32 v2, v{r}')
        a.e(f'v_permlane32_swap_b32 v{r}, v2')
        a.e(f'v_max_f32 v{r}, v{r}, v2')

    def main(self, flags=''):
        a = self.a
        L_PASS = a.newlabel('ATT_PASS')
        L_LOOP = a.newlabel('ATT_LOOP')
        L_NOKV = a.newlabel('ATT_NOKV')
        L_FIN = a.newlabel('ATT_FIN')
        a.e('s_mov_b32 s33, 0')
        a.e('s_mov_b32 s39, 0')
        self.point(KVBUF)
        a.e('s_waitcnt vmcnt(10)')
        a.vmq = a.vmq[-10:]
        a.e('s_barrier')
        self.readK(0)
        a.wait_lg0()
        for qt in range(2):
            self.S(qt, 0)
            self.S(qt, 1)
        for qt in range(2):
            self.max16(self.SB + 16 * qt, 8 + qt, True)
            self.halves_max(8 + qt)
            self.set_m(qt, 8 + qt, float(opt('moff', [M_OFFSET])[0]))
        a.label(L_PASS)
        self.readK(0)
        self.readK(1)
        self.readV(0, 0)
        self.readV(0, 1)
        for i in range(32):
            a.e(f'v_mov_b32 v{self.OB + i}, 0')
        for i in range(8):
            a.e(f'v_mov_b32 v{self.PF + i}, 0')
            a.e(f'v_mov_b32 v{self.P2 + 8 + i}, 0')
            a.e(f'v_mov_b32 v{self.VF + 8 + i}, 0')
        a.e('s_mov_b32 s34, 0')
        a.e(f's_add_u32 s35, s31, {KVBUF}')
        a.e(f's_mov_b32 s37, {-KVBUF & 0xffffffff}')
        a.wait_lg0()
        self.S(0, 0)
        self.S(0, 1)
        a.e('s_nop 7')
        a.label(L_LOOP)
        a.wait_lg0()
        if opt('gate'):
            lng = a.newlabel('ATT_NG')
            a.e(f's_cmp_lg_u32 s34, {opt("gate")[0]}')
            a.e(f's_cbranch_scc1 {lng}')
            a.e('s_lshl_b32 s44, s3, 7')
            a.e(f's_add_u32 s44, s44, {PROG_OFF}')
            a.e('v_mov_b32 v2, 0')
            poll(a, lambda: a.e(f'buffer_load_dword v4, v2, s[12:15], s44 offen {SC}'), [4], 8, sleep=8)
            if 'gateprio' in ABL:
                a.e('s_setprio 1')
            a.label(lng)
        if opt('aprio'):
            lp = a.newlabel('ATT_P')
            a.e(f's_cmp_lg_u32 s34, {opt("aprio")[0]}')
            a.e(f's_cbranch_scc1 {lp}')
            a.e('s_setprio 1')
            a.label(lp)
        for n in range(32):
            j, qt = n // 2, n % 2
            sb = self.SB + 16 * (n % 2)
            if n == 29:
                a.e('s_waitcnt vmcnt(0) lgkmcnt(0)')
                a.vmq = []
                a.lgq = []
                a.e('s_barrier')
                for r in (5, 6, 7, self.TB + 2, self.TB + 3):
                    a.e(f'v_add_u32 v{r}, s37, v{r}')
                a.e('s_cmp_ge_u32 s34, 2')
                a.e(f's_cbranch_scc1 {L_NOKV}')
                ls0 = a.newlabel('ATT_S0')
                ls2 = a.newlabel('ATT_S2')
                a.e('s_cmp_eq_u32 s39, 0')
                a.e(f's_cbranch_scc1 {ls0}')
                self.issue_kv(buf_s=35, flags=flags)
                a.e('s_cmp_lg_u32 s39, 2')
                a.e(f's_cbranch_scc1 {L_NOKV}')
                self.side(2)
                a.e('s_mov_b32 s39, 3')
                a.e(f's_branch {L_NOKV}')
                a.label(ls0)
                self.side(0)
                a.e('s_mov_b32 s39, 1')
                a.label(L_NOKV)
                self.gate_load()
                a.e('s_add_u32 s35, s35, s37')
                a.e('s_sub_u32 s37, 0, s37')
            if n in (12, 16, 20, 24):
                lm = a.newlabel('ATT_M')
                a.e('s_cmp_lg_u32 s39, 2')
                a.e(f's_cbranch_scc1 {lm}')
                self.mark_part(3 * (n - 12) // 4, 3 * (n - 12) // 4 + 3)
                a.label(lm)
            if n == 8:
                ls1 = a.newlabel('ATT_S1')
                a.e('s_cmp_lg_u32 s39, 1')
                a.e(f's_cbranch_scc1 {ls1}')
                a.e('s_waitcnt vmcnt(0)')
                self.side(1)
                self.issue_kv(buf=1, flags=flags)
                a.e('s_mov_b32 s39, 2')
                a.label(ls1)
            if qt == 1:
                a.wait_lg(('K', j + 1))
            self.S(n + 1, 0)
            pf = self.P2 + 8 * qt
            for i in range(0, 4):
                a.e(f'v_exp_f32 v{sb + i}, v{sb + i}')
            if qt == 1:
                a.wait_lg(('V', j))
            self.PV(n - 1, 0)
            if qt == 0:
                self.readV(j + 1, 0)
            else:
                self.readK(j + 2)
            for i in range(4, 8):
                a.e(f'v_exp_f32 v{sb + i}, v{sb + i}')
            self.S(n + 1, 1)
            for i in range(4):
                a.e(f'v_cvt_pk_bf16_f32 v{pf + i}, v{sb + 2 * i}, v{sb + 2 * i + 1}')
            for i in range(8, 12):
                a.e(f'v_exp_f32 v{sb + i}, v{sb + i}')
            self.PV(n - 1, 1)
            if qt == 0:
                self.readV(j + 1, 1)
            for i in range(12, 16):
                a.e(f'v_exp_f32 v{sb + i}, v{sb + i}')
            for i in range(4, 8):
                a.e(f'v_cvt_pk_bf16_f32 v{pf + i}, v{sb + 2 * i}, v{sb + 2 * i + 1}')
        a.e('s_add_u32 s34, s34, 1')
        a.e('s_cmp_lt_u32 s34, 4')
        a.e(f's_cbranch_scc1 {L_LOOP}')
        self.PV(31, 0)
        self.PV(31, 1)
        a.wait_all()
        a.e('s_cmp_lg_u32 s33, 0')
        a.e(f's_cbranch_scc1 {L_FIN}')
        regs = [self.OB + i for i in range(32)] + [self.PF + i for i in (0, 1, 2, 4, 5, 6)]
        a.e(f'v_max_f32_e64 v2, |v{regs[0]}|, |v{regs[1]}|')
        for i in range(2, len(regs), 2):
            a.e(f'v_max3_f32 v2, |v{regs[i]}|, |v{regs[i + 1]}|, v2')
        a.e(f's_mov_b32 s44, {hx(2.0 ** 110)}')
        a.e('v_cmp_ngt_f32 vcc, s44, v2')
        a.e(f'v_add_f32 v4, v{self.PF + 2}, v{self.PF + 6}')
        a.e('v_cmp_u_f32 s[46:47], v4, v4')
        a.e('s_or_b64 vcc, vcc, s[46:47]')
        a.e('s_cmp_lg_u64 vcc, 0')
        a.e('s_cselect_b32 s44, 1, 0')
        a.e('v_mov_b32 v2, s44')
        a.e('s_lshl_b32 s45, s20, 2')
        a.e(f's_add_u32 s45, s45, {16 * KV_TILE}')
        a.e('v_mov_b32 v4, s45')
        a.e('ds_write_b32 v4, v2')
        a.e(f'v_mov_b32 v4, {16 * KV_TILE}')
        a.e('s_waitcnt lgkmcnt(0)')
        a.e('s_barrier')
        a.e(f'ds_read_b128 {vr(self.P2, 4)}, v4')
        a.e('s_waitcnt lgkmcnt(0)')
        a.e(f'v_or3_b32 v2, v{self.P2}, v{self.P2 + 1}, v{self.P2 + 2}')
        a.e(f'v_or_b32 v2, v2, v{self.P2 + 3}')
        a.e('v_readfirstlane_b32 s44, v2')
        a.e('s_cmp_eq_u32 s44, 0')
        a.e(f's_cbranch_scc1 {L_FIN}')
        L_MC = a.newlabel('ATT_MC')
        L_MT = a.newlabel('ATT_MT')
        a.e('s_mov_b32 s33, 1')
        for p in range(2):
            a.e(f'v_mov_b32 v{self.QF + 8 * p + 5}, 0')
            a.e(f'v_mov_b32 v{self.QF + 8 * p + 6}, 0')
            a.e(f'v_mov_b32 v{8 + p}, 0xff7fffff')
        a.e(f's_mov_b32 s30, {KV_OFF}')
        a.e('s_mov_b32 s34, 0')
        a.label(L_MC)
        a.e('s_barrier')
        self.issue_kv(buf=0, flags=flags)
        a.e('v_mov_b32 v5, v10')
        a.e('v_mov_b32 v6, v11')
        a.e('s_mov_b32 s36, 0')
        a.wait_vm0()
        a.e('s_barrier')
        a.label(L_MT)
        self.readK(0)
        a.wait_lg0()
        for qt in range(2):
            self.S(qt, 0)
            self.S(qt, 1)
        a.e(f'v_add_u32 v5, {KV_TILE}, v5')
        a.e(f'v_add_u32 v6, {KV_TILE}, v6')
        for qt in range(2):
            self.max16(self.SB + 16 * qt, 8 + qt, False)
        a.e('s_add_u32 s36, s36, 1')
        a.e('s_cmp_lt_u32 s36, 16')
        a.e(f's_cbranch_scc1 {L_MT}')
        a.e('s_add_u32 s34, s34, 1')
        a.e('s_cmp_lt_u32 s34, 4')
        a.e(f's_cbranch_scc1 {L_MC}')
        for qt in range(2):
            self.halves_max(8 + qt)
            self.set_m(qt, 8 + qt, M_OFFSET)
        a.e('s_barrier')
        a.e(f's_mov_b32 s30, {KV_OFF}')
        self.issue_kv(buf=1, flags=flags)
        self.issue_kv(buf=0, flags=flags)
        self.point(KVBUF)
        a.e('s_waitcnt vmcnt(10)')
        a.e('s_barrier')
        a.e(f's_branch {L_PASS}')
        a.label(L_FIN)
        a.vmq = []
        a.lgq = []

    def mark(self):
        a = self.a
        a.e('s_mul_i32 s44, s23, 90')
        a.e('s_lshl_b32 s52, s22, 1')
        a.e('s_add_u32 s52, s52, s44')
        a.e('s_lshl_b32 s52, s52, 10')
        a.e(f's_add_u32 s52, s52, {UF_OFF}')
        a.e('s_lshr_b32 s53, s22, 2')
        a.e('s_add_u32 s53, s53, s44')
        a.e('s_lshl_b32 s53, s53, 10')
        a.e('s_and_b32 s47, s22, 3')
        a.e('s_lshl_b32 s47, s47, 8')
        a.e('s_add_u32 s53, s53, s47')
        a.e(f's_add_u32 s53, s53, {UF_OFF + 16 * 1024}')
        a.e('s_mul_i32 s54, s22, 9')
        a.e('s_add_u32 s54, s54, s44')
        a.e('s_lshl_b32 s54, s54, 10')
        a.e(f's_add_u32 s54, s54, {UF_OFF + 18 * 1024}')
        for i in range(4):
            a.e(f'v_mov_b32 v{224 + i}, -1')
        a.e('v_lshlrev_b32 v228, 2, v1')

    def mark_part(self, lo, hi):
        a = self.a
        for i in range(lo, hi):
            if i < 2:
                a.e(f'buffer_store_dwordx4 v[224:227], v10, s[12:15], s52 offen offset:{1024 * i} {SC}')
            elif i == 2:
                a.e(f'buffer_store_dword v224, v228, s[12:15], s53 offen {SC}')
            else:
                a.e(f'buffer_store_dwordx4 v[224:227], v10, s[12:15], s54 offen {SC}')
                a.e('s_add_u32 s54, s54, 1024')

    def mark_flag(self):
        a = self.a
        a.e('s_lshl_b32 s44, s23, 3')
        a.e('s_add_u32 s44, s44, s22')
        a.e('s_lshl_b32 s44, s44, 2')
        a.e(f's_add_u32 s44, s44, {PZ_OFF}')
        set_flag(a, 44, 230)

    def epilogue(self, flags=''):
        a = self.a
        a.e('v_and_b32 v4, 15, v1')
        a.e('v_lshlrev_b32 v4, 4, v4')
        a.e('v_lshrrev_b32 v5, 5, v1')
        a.e('v_lshl_add_u32 v4, v5, 2, v4')
        poll(a, self.gate_load, [self.XF + 1], 8, first_done=True)
        a.e('v_and_b32 v5, 16, v1')
        a.e('v_cmp_eq_u32 vcc, 0, v5')
        for qt in range(2):
            o = self.OB + 16 * qt
            t = self.PF + 4 * qt
            c = self.P2
            for i in range(3):
                a.e(f'v_mov_b32 v{c + i}, v{t + i}')
            for i in range(3):
                a.e(f'v_permlane16_swap_b32 v{t + i}, v{c + i}')
            for i in range(3):
                a.e(f'v_add_f32 v{t + i}, v{t + i}, v{c + i}')
            a.e(f'v_rcp_f32 v6, v{t + 2}')
            a.e(f'v_mul_f32 v6, v6, v{self.XF}')
            a.e(f'v_pk_mul_f32 {vr(t, 2)}, {vr(t, 2)}, v[6:7] op_sel_hi:[1,0]')
            a.e('v_mov_b32 v7, v6')
            a.e('v_permlane32_swap_b32 v6, v7')
            a.e('v_cndmask_b32 v6, v7, v6, vcc')
            for i in range(4):
                a.e(f'v_pk_add_f32 {vr(o + 2 * i, 2)}, {vr(o + 2 * i, 2)}, {vr(o + 8 + 2 * i, 2)}')
            for i in range(4):
                a.e(f'v_pk_mul_f32 {vr(o + 2 * i, 2)}, {vr(o + 2 * i, 2)}, v[6:7] op_sel_hi:[1,0]')
            pk = self.SB + 8 * qt
            for i in range(4):
                a.e(f'v_cvt_pk_bf16_f32 v{pk + i}, v{o + 2 * i}, v{o + 2 * i + 1}')
            a.e(f'v_cvt_pk_bf16_f32 v{pk + 4}, v{t}, v{t + 1}')
            for i in range(5):
                a.e(f'v_min_u32 v{pk + i}, -2, v{pk + i}')
            a.e(f'buffer_store_dwordx4 {vr(pk, 4)}, v10, s[12:15], s52 offen offset:{1024 * qt} {flags}')
            a.e('s_mov_b32 exec_lo, 0xffff')
            a.e('s_mov_b32 exec_hi, 0xffff')
            a.e(f'buffer_store_dword v{pk + 4}, v4, s[12:15], s53 offen offset:{8 * qt} {flags}')
            a.e('s_mov_b64 exec, -1')

    def gate_load(self):
        a = self.a
        a.e(f's_mov_b32 s38, {GATE_OFF}')
        a.e(f'buffer_load_dwordx2 {vr(self.XF, 2)}, v3, s[12:15], s38 offen {SC}')


def p3_pre(a):
    a.e('s_and_b32 s44, s22, 1')
    a.e('s_lshl_b32 s66, s21, 1')
    a.e('s_add_u32 s66, s66, s44')
    a.e('s_lshr_b32 s67, s22, 1')
    a.e('s_lshl_b32 s68, s21, 8')
    a.e(f's_add_u32 s68, s68, {PZ_OFF}')
    a.e('s_lshl_b32 s69, s67, 9')
    a.e(f's_add_u32 s69, s69, {FW3_OFF}')
    a.e('v_lshlrev_b32 v7, 2, v1')
    a.e('v_min_u32 v8, 44, v1')
    a.e('v_lshlrev_b32 v8, 3, v8')
    p3_flags(a)
    a.vmq += ['pre', 'pre']


def p3_flags(a):
    a.e(f'buffer_load_dword v4, v7, s[12:15], s68 offen {SC}')
    a.e(f'buffer_load_dwordx2 v[2:3], v8, s[12:15], s69 offen {SC}')


def p3(a):
    ACC = 16
    FR = 112
    HF = 240
    DEPTH = 4
    NS = 23
    a.e('s_mul_i32 s44, s20, 18')
    a.e('s_add_u32 s44, s44, 18')
    a.e('s_mul_i32 s45, s20, 5')
    a.e('s_cmp_eq_u32 s20, 3')
    a.e('s_cselect_b32 s46, 1, 0')
    a.e('s_sub_u32 s45, s45, s46')
    a.e('s_mul_i32 s46, s67, 90')
    a.e('s_add_u32 s25, s44, s46')
    a.e('s_mul_i32 s25, s25, 4608')
    a.e(f's_add_u32 s25, s25, {W3_OFF}')
    a.e('s_add_u32 s31, s45, s46')
    a.e('s_mul_i32 s31, s31, 4608')
    a.e(f's_add_u32 s31, s31, {W3_OFF}')
    a.e('v_lshrrev_b32 v6, 4, v1')
    a.e('v_lshlrev_b32 v6, 3, v6')
    a.e('v_and_b32 v9, 7, v1')
    a.e('v_add_u32 v6, v6, v9')
    a.e('v_lshlrev_b32 v6, 4, v6')
    a.e('v_bfe_u32 v9, v1, 3, 1')
    a.e('v_mul_u32_u24 v9, 4608, v9')
    a.e('v_add_u32 v6, v6, v9')
    a.e('v_add_u32 v6, 4096, v6')
    a.e('v_mov_b32 v12, v19')

    def loadW(k):
        b = FR + 32 * (k % DEPTH)
        if k == 18:
            a.e('s_mov_b32 s25, s31')
        for nt in range(4):
            a.vm(f'buffer_load_dwordx4 {vr(b + 4 * nt, 4)}, v12, s[12:15], s25 offen offset:{1024 * nt} {SCL}', ('W', k))
        if k % 2 == 0:
            a.vm(f'buffer_load_dwordx4 {vr(HF + 4 * ((k // 2) % 3), 4)}, v6, s[12:15], s25 offen {SCL}', ('W', k))
        a.e('s_add_u32 s25, s25, 4608')

    def loadF(k, track=True):
        b = FR + 32 * (k % DEPTH)
        a.e(f's_add_u32 s24, s{28 if k < 18 else 30}, {1024 * (k if k < 18 else k - 18)}')
        for i in range(4):
            t = f'buffer_load_dwordx4 {vr(b + 16 + 4 * i, 4)}, v{2 + i}, s[12:15], s24 offen {SCL}'
            a.vm(t, ('F', k)) if track else a.e(t)
    for k in range(opt('wpre', [2])[0]):
        loadW(k)
    a.e('s_mul_i32 s46, s66, 360')
    a.e('s_add_u32 s28, s44, s46')
    a.e('s_lshl_b32 s28, s28, 10')
    a.e(f's_add_u32 s28, s28, {UF_OFF}')
    a.e('s_add_u32 s30, s45, s46')
    a.e('s_lshl_b32 s30, s30, 10')
    a.e(f's_add_u32 s30, s30, {UF_OFF}')
    for i in range(4):
        a.e(f's_add_u32 s44, s20, {i}')
        a.e('s_and_b32 s44, s44, 3')
        a.e('s_mul_i32 s44, s44, 92160')
        a.e(f'v_add_u32 v{2 + i}, s44, v12')
    a.e('s_mov_b32 s8, s64')
    a.e('s_mov_b32 s9, s65')
    srd(a, 8, 2048 * 1152)
    a.e(f's_mov_b32 s51, {SPIN_MAX}')
    a.wait_vm('st')
    for k in range(DEPTH):
        if k >= opt('wpre', [2])[0]:
            loadW(k)
        loadF(k)
    stamp(a, 5)
    a.e(f's_setprio {opt("pg", PG)[2]}')
    lskip = a.newlabel('P3_SKIP')
    for k in range(NS):
        b = FR + 32 * (k % DEPTH)
        if k == NS - 1:
            a.e('s_cmp_ge_u32 s20, 2')
            a.e(f's_cbranch_scc1 {lskip}')
            a.wait_vm0()
        a.wait_vm(('F', k))
        lc = a.newlabel('P3_C')
        lok = a.newlabel('P3_OK')
        a.label(lc)
        a.e(f'v_max3_u32 v9, v{b + 16}, v{b + 17}, v{b + 18}')
        a.e(f'v_max3_u32 v10, v{b + 19}, v{b + 20}, v{b + 21}')
        for i in range(22, 32, 4):
            a.e(f'v_max3_u32 v9, v{b + i}, v{b + i + 1}, v9')
            if i + 2 < 32:
                a.e(f'v_max3_u32 v10, v{b + i + 2}, v{b + i + 3}, v10')
        a.e('v_max_u32 v9, v9, v10')
        a.e('v_cmp_eq_u32 vcc, -1, v9')
        a.e(f's_cbranch_vccz {lok}')
        a.e(f's_sleep {opt("psl", [4])[0]}')
        loadF(k, False)
        a.e('s_waitcnt vmcnt(0)')
        a.e('s_sub_u32 s51, s51, 1')
        a.e('s_cmp_lt_i32 s51, 1')
        a.e(f's_cbranch_scc0 {lc}')
        a.label(lok)
        hf = HF + 4 * ((k // 2) % 3)
        for i in range(4):
            for nt in range(5):
                n2 = nt if nt < 4 else 4 + k % 2
                d = vr(ACC + 16 * n2 + 4 * i, 4)
                first = k == 0 or (nt == 4 and k == 1)
                a.e(f'v_mfma_f32_16x16x32_bf16 {d}, {vr(b + 4 * nt, 4) if nt < 4 else vr(hf, 4)}, {vr(b + 16 + 4 * i, 4)}, {"0" if first else d}')
        kn = k + DEPTH
        if kn == NS - 1:
            ls = a.newlabel('P3_NL')
            a.e('s_cmp_ge_u32 s20, 2')
            a.e(f's_cbranch_scc1 {ls}')
            q1 = list(a.vmq)
            loadW(kn)
            loadF(kn)
            a.vmq = q1
            a.label(ls)
        elif kn < NS:
            loadW(kn)
            loadF(kn)
    a.label(lskip)
    a.e('s_nop 7')
    stamp(a, 6)
    a.e('s_mov_b32 exec_lo, 0')
    for i in range(16):
        a.e(f'v_mov_b32 v{ACC + 64 + i}, v{ACC + 80 + i}')
    a.e('s_mov_b64 exec, -1')
    for i in range(1, 4):
        a.e(f's_add_u32 s44, s20, {i}')
        a.e('s_and_b32 s44, s44, 3')
        a.e('s_mul_i32 s44, s44, 15360')
        a.e(f'v_add_u32 v{8 + i}, s44, v12')
        for nt in range(5):
            a.lg(f'ds_write_b128 v{8 + i}, {vr(ACC + 16 * nt + 4 * i, 4)} offset:{5120 * (i - 1) + 1024 * nt}', 'w')
    a.e('s_mul_i32 s26, s20, 15360')
    a.e('v_add_u32 v8, s26, v12')
    a.e('s_lshl_b32 s27, s66, 6')
    a.e('s_lshr_b32 s28, s20, 1')
    a.e('s_lshl_b32 s28, s28, 5')
    a.e('s_add_u32 s27, s27, s28')
    a.e('s_and_b32 s28, s20, 1')
    a.e('s_lshl_b32 s28, s28, 2')
    a.e('s_add_u32 s27, s27, s28')
    a.e('v_bfe_u32 v13, v1, 2, 2')
    a.e('v_lshlrev_b32 v13, 3, v13')
    a.e('v_and_b32 v14, 3, v1')
    a.e('v_add3_u32 v13, v13, v14, s27')
    a.e('v_mul_u32_u24 v13, 1152, v13')
    a.e('v_lshrrev_b32 v14, 4, v1')
    a.e('v_lshl_add_u32 v15, v14, 3, v13')
    a.e('v_lshl_add_u32 v13, v14, 4, v13')
    a.e('s_mul_i32 s27, s67, 144')
    a.wait_all()
    a.e('s_barrier')
    for nt in range(5):
        for i in range(3):
            a.lg(f'ds_read_b128 {vr(FR + 12 * nt + 4 * i, 4)}, v8 offset:{5120 * i + 1024 * nt}', ('r', nt))
    PKB = FR + 64
    OSC = 'sc1' if 'osc1' in ABL else 'nt' if 'ont' in ABL else ''
    for nt in range(5):
        a.wait_lg(('r', nt))
        b = FR + 12 * nt
        o = ACC + 16 * nt
        for h in range(2):
            a.e(f'v_pk_add_f32 {vr(b + 2 * h, 2)}, {vr(b + 2 * h, 2)}, {vr(b + 4 + 2 * h, 2)}')
            a.e(f'v_pk_add_f32 {vr(o + 2 * h, 2)}, {vr(o + 2 * h, 2)}, {vr(b + 8 + 2 * h, 2)}')
        for h in range(2):
            a.e(f'v_pk_add_f32 {vr(b + 2 * h, 2)}, {vr(b + 2 * h, 2)}, {vr(o + 2 * h, 2)}')
        if nt == 4:
            for r in range(4):
                a.e(f'v_mov_b32 v{o + r}, v{b + r}')
            for r in range(4):
                a.e(f'v_permlane32_swap_b32 v{b + r}, v{o + r}')
            for h in range(2):
                a.e(f'v_pk_add_f32 {vr(b + 2 * h, 2)}, {vr(b + 2 * h, 2)}, {vr(o + 2 * h, 2)}')
        for h in range(2):
            a.e(f'v_cvt_pk_bf16_f32 v{PKB + 2 * nt + h}, v{b + 2 * h}, v{b + 2 * h + 1}')
        if nt in (1, 3):
            a.e(f'buffer_store_dwordx4 {vr(PKB + 2 * nt - 2, 4)}, v13, s[8:11], s27 offen offset:{64 * (nt // 2)} {OSC}')
        if nt == 4:
            a.e('s_mov_b32 exec_hi, 0')
            a.e(f'buffer_store_dwordx2 {vr(PKB + 8, 2)}, v15, s[8:11], s27 offen offset:128 {OSC}')
            a.e('s_mov_b64 exec, -1')


def kernel_text(name, a, vgpr=256, sgpr=96):
    a.fix_hazards()
    mv, ms, ma = a.max_regs()
    assert mv <= vgpr and ms <= sgpr and ma == 0, (mv, ms, ma)
    body = f'.globl {name}\n.p2align 8\n.type {name},@function\n{name}:\n' + a.text()
    desc = f""".p2align 6
.amdhsa_kernel {name}
  .amdhsa_next_free_vgpr {vgpr}
  .amdhsa_next_free_sgpr {sgpr}
  .amdhsa_accum_offset {(vgpr + 3) // 4 * 4}
  .amdhsa_group_segment_fixed_size 0
  .amdhsa_kernarg_size 112
  .amdhsa_user_sgpr_count 2
  .amdhsa_user_sgpr_kernarg_segment_ptr 1
  .amdhsa_system_sgpr_workgroup_id_x 1
.end_amdhsa_kernel
"""
    return body, desc


def build_file(kernels):
    hdr = open('cdna_kernels/' + NAME + '.s.ref').read().split('\n')
    head = [l for l in hdr if l.startswith(';') and '@launch' not in l and 'Override' not in l and 'grid=ceil' not in l]
    head = head[:15]
    out = '\n'.join(head) + '\n'
    for name, a, grid, block, lds, vgpr in kernels:
        kn = f'kernel={name} ' if (len(kernels) > 1 or LIST) else ''
        out += f'; @launch {kn}grid=({grid},1,1) block=({block},1,1) lds={lds}\n'
    out += '.amdgcn_target "amdgcn-amd-amdhsa--gfx950"\n.text\n'
    out += f'.set CODE_LINES, (K_END - {NAME}_kernel) / 128 - 4\n'
    descs = ''
    for name, a, grid, block, lds, vgpr in kernels:
        b, d = kernel_text(name, a, vgpr)
        out += b
        descs += d
    out += '.section .rodata,"a"\n' + descs
    return out


NG1, NG2 = 1, 3


def mega():
    a = Asm()
    a.e('s_cmp_ge_u32 s2, 512')
    a.e('s_cbranch_scc1 K_END')
    stamp(a, 0)
    a.e('s_cmp_lt_u32 s2, 256')
    a.e('s_cbranch_scc1 K_GEMM')
    a.e('s_sub_u32 s3, s2, 256')
    P = opt('pa', [0, 0])
    t = ATT(a)
    t.setup(3)
    write_nonce(a)
    if 'afine' in ABL:
        a.e('s_branch K_DONE')
    t.retile_setup()
    t.mark()
    stamp(a, 1)
    a.e(f's_setprio {P[0]}')
    t.q_phase()
    stamp(a, 2)
    a.e(f's_setprio {P[1]}')
    if 'noattmain' in ABL:
        for p in range(3):
            if p == 2:
                t.mark_part(0, 12)
            a.wait_all()
            t.side(p)
        t.gate_load()
        a.wait_all()
    else:
        t.main(flags=SCL)
    stamp(a, 3)
    a.e('s_setprio 3')
    t.epilogue(flags=SC)
    a.e('s_branch K_DONE')
    a.label('K_GEMM')
    a.vmq = []
    a.lgq = []
    g = GW(a)
    UB, UP = g.UB, g.UP
    g.limitA = UB
    g.setup()
    if 'afine' in ABL:
        stamp(a, 1)
    g.prologue_issue()
    if 'afine' in ABL:
        stamp(a, 2)
    g.setup2()
    if 'afine' in ABL:
        stamp(a, 3)
        g.hooks[0] = lambda: stamp(a, 4)
        g.hooks[6] = lambda: stamp(a, 5)
        g.hooks[12] = lambda: stamp(a, 6)

    def nonce_ld():
        a.e('v_mov_b32 v23, 0')
        a.vm(f'global_load_dword v24, v23, s[16:17] {SC}', 'nonce')
    g.hooks[21] = nonce_ld
    g.run_segment(0, UB)
    if 'afine' in ABL:
        a.e('s_branch K_DONE')
    stamp(a, 1)
    n1, n2 = opt('ng', [NG1, NG2])
    nb1 = opt('nb1', [8])[0]
    a.wait_vm('nonce')
    get_nonce(a, 23, 24)
    g.proj_store()
    g.limitA = UP
    a.vmq.append('pst')
    a.vmq.append('pst')
    a.e('s_barrier')
    for _ in range(g.R - 1):
        for f in g.issueA():
            f()
    g.z2_gelu_publish()

    LF = 'lnfine' in ABL
    if LF:
        stamp(a, 2)
    g.run_segment(UB, nb1)
    if LF:
        stamp(a, 3)
    g.z2_gather_norm_store()
    stamp(a, 4 if LF else 2)
    a.e('s_lshl_b32 s49, s22, 9')
    a.e(f's_add_u32 s49, s49, {FZ_OFF}')
    a.e('s_lshl_b32 s48, s32, 7')
    a.e('s_add_u32 s48, s48, s49')
    a.e('s_and_b32 s50, s23, 15')
    a.e('s_lshl_b32 s50, s50, 2')
    a.e('s_add_u32 s48, s48, s50')
    a.e('s_and_b32 s50, s32, 2')
    a.e('s_lshl_b32 s50, s50, 7')
    a.e('s_add_u32 s50, s50, s49')
    a.e('v_and_b32 v29, 15, v1')
    a.e('v_lshlrev_b32 v29, 2, v29')
    a.e('v_lshrrev_b32 v23, 4, v1')
    a.e('v_lshl_add_u32 v23, v23, 7, v29')
    a.e('v_and_b32 v29, 0xff, v23')

    def zflag():
        a.wait_vm('st')
        set_flag(a, 48, 27)
    g.hooks[UB + nb1 + opt('zf', [4])[0]] = zflag
    g.run_segment(UB + nb1, 18 - nb1)
    if LF:
        stamp(a, 5)
    g.own_write()
    g.z1_gelu(range(0, n1))
    g.nextA = UP + 4
    g.run_segment(UP, 4, own=True)
    g.z1_gelu(range(n1, n2))
    if LF:
        stamp(a, 6)
    poll(a, lambda: a.e(f'buffer_load_dword v26, v29, s[12:15], s50 offen {SC}'), [26], 27)
    if LF:
        a.e('s_branch K_DONE')
    stamp(a, 3)
    g.limitA = len(g.units)
    a.e('s_barrier')
    for _ in range(g.R - 1):
        for f in g.issueA():
            f()
    g.z1_gelu(range(n2, 9))
    g.hooks[UP + 58] = g.sp_pre

    def zall():
        a.e(f'buffer_load_dword v26, v23, s[12:15], s49 offen {SC}')

    def zall0():
        zall()
        a.vmq.append('zf')

    def zall1():
        a.wait_vm('zf')
        poll(a, zall, [26], 27, first_done=True)
    g.hooks[UP + 10] = zall0
    g.hooks[UP + 15] = zall1
    g.hooks[UP + 61] = lambda: p3_pre(a)

    if opt('gate'):
        def prog():
            a.e('s_lshl_b32 s44, s2, 7')
            a.e(f's_add_u32 s44, s44, {PROG_OFF}')
            set_flag(a, 44, 27)
        g.hooks[UP + opt('gate')[1]] = prog
    g.run_segment(UP + 4, 60)
    if 'p2fine' in ABL:
        a.e('s_branch K_DONE')
    stamp(a, 4)
    g.sp_epilogue()
    p3(a)
    a.label('K_DONE')
    stamp_flush(a, 0)
    a.label('K_END')
    a.e('s_endpgm')
    return (NAME + '_kernel', a, 512, 256, 81920, 256)


LIST = False
if __name__ == '__main__':
    if '--stamp' in sys.argv:
        STAMP = True
        sys.argv.remove('--stamp')
    if '--list' in sys.argv:
        LIST = True
        sys.argv.remove('--list')
    for x in list(sys.argv):
        if x.startswith('--abl='):
            ABL.update(x[6:].split(','))
            sys.argv.remove(x)
    out = sys.argv[1] if len(sys.argv) > 1 else 'out.s'
    open(out, 'w').write(build_file([mega()]))
    print('wrote', out)
```

```python
import sys, struct
from asmlib import Asm

NAME = 'gated_mix__grouped_kv_mqa__mixer_gmlp__prompt'

Z2_OFF = 0x10000
UF_OFF = Z2_OFF + 9437184
W3_OFF = UF_OFF + 11796480
KV_OFF = W3_OFF + 3317760
KV_TILE = 2496
GATE_OFF = KV_OFF + 160 * 1024
STATS_OFF = GATE_OFF + 16384
FLAG_OFF = STATS_OFF + 524288
FKV_OFF = FLAG_OFF
FW3_OFF = FLAG_OFF + 49152
FZ_OFF = FLAG_OFF + 4096
PZ_OFF = FLAG_OFF + 65536
PROG_OFF = FLAG_OFF + 16384
GO_OFF = FLAG_OFF + 98304
KVF_OFF = FLAG_OFF
QF_OFF = FLAG_OFF + 131072
SC = 'sc1' if 'sconly1' in ' '.join(sys.argv) else 'sc0 sc1'
SCL = '' if '--abl' in ' '.join(sys.argv) and 'noscl' in ' '.join(sys.argv) else 'sc1'
WS_SIZE = 0x1c00000
assert QF_OFF + 128 * 16 * 1152 <= 0x1b00000
STAMP_OFF = 0x1b00000

A_X, A_WQ, A_WK, A_WV, A_WO, A_BX, A_WIN, A_WSP, A_BSP, A_WOUT, A_GW, A_OUT, A_DBG, A_WS = [8 * i for i in range(14)]

STAMP = False
ABL = set()


def opt(name, default=None):
    for x in ABL:
        if x.startswith(name + ':'):
            return [int(v) for v in x.split(':')[1:]]
    return default


def f2u(f):
    return struct.unpack('<I', struct.pack('<f', f))[0]


def hx(f):
    return '0x%08x' % f2u(f)


def srd(a, d, size):
    a.e(f's_mov_b32 s{d + 2}, {size}')
    a.e(f's_mov_b32 s{d + 3}, 0x00020000')


def vr(b, n):
    return f'v[{b}:{b + n - 1}]'


def stamp(a, idx):
    if not STAMP:
        return
    a.wait_lg0()
    a.e('s_memrealtime s[78:79]')
    a.e('s_memtime s[76:77]')
    a.e('s_waitcnt lgkmcnt(0)')
    a.e(f's_mov_b32 s{80 + idx}, s78')
    a.e(f's_mov_b32 s{88 + idx}, s76')


def stamp_flush(a, kidx):
    if not STAMP:
        return
    a.e('s_waitcnt vmcnt(0) lgkmcnt(0)')
    stamp(a, 7)
    a.e(f's_load_dwordx2 s[74:75], s[0:1], {A_WS}')
    a.e('s_waitcnt lgkmcnt(0)')
    a.e('v_lshrrev_b32 v1, 6, v0')
    a.e('v_lshlrev_b32 v1, 6, v1')
    a.e('s_lshl_b32 s78, s2, 8')
    a.e(f's_add_u32 s78, s78, {STAMP_OFF + kidx * 131072}')
    a.e('v_add_u32 v1, s78, v1')
    for i in range(16):
        a.e(f'v_mov_b32 v{4 + i}, s{80 + i}')
    for i in range(4):
        a.e(f'global_store_dwordx4 v1, v[{4 + 4 * i}:{7 + 4 * i}], s[74:75] offset:{16 * i}')
    if 'dbgstamp' in ABL:
        a.e('s_cmp_lt_u32 s2, 256')
        a.e('s_cselect_b32 s78, 4, 36')
        a.e('v_mov_b32 v1, s78')
        a.e('s_mov_b64 exec, 1')
        for i in range(1, 8):
            a.e(f'v_subrev_u32 v{4 + i}, s62, v{4 + i}')
            a.e(f'global_atomic_umax v1, v{4 + i}, s[16:17] offset:{4 * (i - 1)} sc1')
        a.e('v_sub_u32 v4, s62, v4')
        a.e('v_add_u32 v4, 1000, v4')
        a.e('v_mov_b32 v1, 32')
        a.e('global_atomic_umax v1, v4, s[16:17] sc1')
        a.e('s_mov_b64 exec, -1')


QSCALE = 18 ** -0.5 * 1.4426950408889634
GELU_C0 = -2.0 * 1.4426950408889634 * 0.7978845608028654
GELU_C1 = GELU_C0 * 0.044715


def gelu_group(a, regs, T, sC1, vC0):
    n = len(regs)
    for i, r in enumerate(regs):
        a.e(f'v_pk_mul_f32 {vr(T + 2 * i, 2)}, {vr(r, 2)}, {vr(r, 2)}')
    for i, r in enumerate(regs):
        a.e(f'v_pk_fma_f32 {vr(T + 2 * i, 2)}, {vr(T + 2 * i, 2)}, s[{sC1}:{sC1 + 1}], {vr(vC0, 2)}')
    for i, r in enumerate(regs):
        a.e(f'v_pk_mul_f32 {vr(T + 2 * i, 2)}, {vr(T + 2 * i, 2)}, {vr(r, 2)}')
    for i in range(2 * n):
        a.e(f'v_exp_f32 v{T + i}, v{T + i}')
    for i, r in enumerate(regs):
        a.e(f'v_pk_add_f32 {vr(T + 2 * i, 2)}, {vr(T + 2 * i, 2)}, 1.0 op_sel_hi:[1,0]')
    for i in range(2 * n):
        a.e(f'v_rcp_f32 v{T + i}, v{T + i}')
    for i, r in enumerate(regs):
        a.e(f'v_pk_mul_f32 {vr(r, 2)}, {vr(T + 2 * i, 2)}, {vr(r, 2)}')


SPIN_MAX = 300000
PG = [0, 2, 0]


def poll(a, loads, regs, t0, first_done=False, sleep=1):
    lp = a.newlabel('POLL')
    lc = a.newlabel('POLLC')
    lg = a.newlabel('POLLOK')
    a.e(f's_mov_b32 s51, {SPIN_MAX}')
    if first_done:
        a.e(f's_branch {lc}')
    a.label(lp)
    loads()
    a.e('s_waitcnt vmcnt(0)')
    a.label(lc)
    a.e(f'v_xor_b32 v{t0}, s62, v{regs[0]}')
    for r in regs[1:]:
        a.e(f'v_xor_b32 v{t0 + 1}, s62, v{r}')
        a.e(f'v_or_b32 v{t0}, v{t0}, v{t0 + 1}')
    a.e(f'v_cmp_ne_u32 vcc, 0, v{t0}')
    a.e(f's_cbranch_vccz {lg}')
    a.e(f's_sleep {sleep}')
    a.e('s_sub_u32 s51, s51, 1')
    a.e('s_cmp_lg_u32 s51, 0')
    a.e(f's_cbranch_scc1 {lp}')
    a.label(lg)
    if not first_done:
        a.vmq = []


def get_nonce(a, vz, vn):
    lp = a.newlabel('NONCE')
    lg = a.newlabel('NONCE_OK')
    a.e(f's_mov_b32 s51, {SPIN_MAX}')
    a.label(lp)
    a.e(f'v_readfirstlane_b32 s62, v{vn}')
    a.e('s_cmp_lg_u32 s62, 0')
    a.e(f's_cbranch_scc1 {lg}')
    a.e('s_sleep 32')
    a.e(f'global_load_dword v{vn}, v{vz}, s[16:17] {SC}')
    a.e('s_waitcnt vmcnt(0)')
    a.e('s_sub_u32 s51, s51, 1')
    a.e('s_cmp_lg_u32 s51, 0')
    a.e(f's_cbranch_scc1 {lp}')
    a.label(lg)


def set_flag(a, soff, t0):
    a.e(f'v_mov_b32 v{t0}, 0')
    a.e(f'v_mov_b32 v{t0 + 1}, s62')
    a.e('s_mov_b64 exec, 1')
    a.vm(f'buffer_store_dword v{t0 + 1}, v{t0}, s[12:15], s{soff} offen {SC}', 'flag')
    a.e('s_mov_b64 exec, -1')


class GW:
    R = 5
    SLOT = 8192
    SGL = 40960
    BBASE = 49152
    AF = 32
    BF = 68
    ACC0 = 100
    ACC1 = 172
    UB = 27
    UP = 45

    def __init__(self, a):
        self.a = a
        self.units = []
        self.stages = []
        for st in range(9):
            self.stages.append(('x', st))
            self.units += [('z2', 2 * st, st, 0, 2 * st), ('z2', 2 * st + 1, st, 1, 2 * st + 1), ('E', st, st, 0, None)]
        for k in range(18):
            if k % 2 == 0:
                self.stages.append(('x', k // 2))
            self.units.append(('z1', k, 9 + k // 2, k % 2, 18 + k))
        for k in range(64):
            if k % 2 == 0:
                self.stages.append(('sp', k // 2))
            self.units.append(('sp', k, 18 + k // 2, k % 2, 36 + k))
        self.nextA = 0
        self.nextB = 0
        self.limitA = len(self.units)
        self.pendB = []
        self.hooks = {}

    def setup(self):
        a = self.a
        a.e(f's_load_dwordx4 s[4:7], s[0:1], {A_X}')
        a.e(f's_load_dwordx2 s[8:9], s[0:1], {A_WIN}')
        a.e(f's_load_dwordx4 s[16:19], s[0:1], {A_DBG}')
        a.e(f's_load_dwordx4 s[52:55], s[0:1], {A_WSP}')
        a.e(f's_load_dwordx2 s[64:65], s[0:1], {A_OUT}')
        a.e(f's_load_dwordx4 s[68:71], s[0:1], {A_WK}')
        a.e('v_lshrrev_b32 v1, 6, v0')
        a.e('v_readfirstlane_b32 s20, v1')
        a.e('v_and_b32 v1, 63, v0')
        a.e('s_lshr_b32 s31, s2, 3')
        a.e('s_and_b32 s32, s2, 3')
        a.e('s_and_b32 s34, s31, 3')
        a.e('s_lshl_b32 s21, s32, 2')
        a.e('s_add_u32 s21, s21, s34')
        a.e('s_lshr_b32 s35, s31, 2')
        a.e('s_and_b32 s22, s2, 4')
        a.e('s_lshl_b32 s22, s22, 1')
        a.e('s_add_u32 s22, s22, s35')
        a.e('s_lshl_b32 s23, s21, 2')
        a.e('s_add_u32 s23, s23, s20')
        a.e('s_lshl_b32 s39, s34, 1')
        a.e('s_add_u32 s39, s39, s35')
        a.e('s_cmp_ge_u32 s39, 9')
        a.e('s_cselect_b32 s40, 9, 0')
        a.e('s_sub_u32 s39, s39, s40')
        if 'norot' in ABL:
            a.e('s_mov_b32 s39, 0')
        a.e('s_mul_i32 s24, s39, %d' % (64 * 9216))
        a.e('s_lshl_b32 s25, s39, 7')
        a.e('s_lshl_b32 s28, s39, 1')
        a.e('s_add_u32 s28, s28, s20')
        a.e('s_cmp_ge_u32 s28, 18')
        a.e('s_cselect_b32 s29, 18, 0')
        a.e('s_sub_u32 s28, s28, s29')
        a.e(f's_mul_i32 s28, s28, {32 * 9216}')
        a.e('s_lshl_b32 s26, s20, 11')
        a.e('s_lshl_b32 s27, s20, 12')
        a.e(f's_add_u32 s27, s27, {self.BBASE}')
        a.e('s_lshl_b32 s30, s20, 10')
        a.e(f's_add_u32 s30, s30, {self.SGL}')
        a.e('v_and_b32 v23, 7, v1')
        a.e('v_lshrrev_b32 v24, 5, v1')
        a.e('v_lshlrev_b32 v24, 3, v24')
        a.e('v_bfe_u32 v25, v1, 3, 2')
        a.e('s_lshl_b32 s44, s23, 5')
        a.e('v_add3_u32 v24, v24, v25, s44')
        a.e('v_lshrrev_b32 v25, 4, v1')
        a.e('v_xor_b32 v25, v25, v23')
        a.e('v_lshlrev_b32 v25, 4, v25')
        a.e('v_xor_b32 v26, 64, v25')
        a.e('v_mul_u32_u24 v27, 1152, v24')
        a.e('v_add_u32 v5, v27, v25')
        a.e('v_add_u32 v6, v27, v26')
        a.e(f'v_add_u32 v6, {16 * 1152 - 1024}, v6')
        a.e(f'v_add_u32 v7, {4 * 1152 - 2048}, v5')
        a.e(f'v_add_u32 v8, {4 * 1152 - 2048}, v6')
        a.e('s_lshl_b32 s42, s22, 8')
        a.e('s_mul_i32 s43, s20, %d' % (8 * 9216))
        a.e('s_add_u32 s42, s42, s43')
        a.e('s_add_u32 s42, s42, 4608')
        a.e('v_bfe_u32 v2, v1, 2, 2')
        a.e('v_mul_u32_u24 v2, 9216, v2')
        a.e('v_lshrrev_b32 v3, 4, v1')
        a.e('v_lshl_add_u32 v2, v3, 6, v2')
        a.e('s_and_b32 s44, s20, 1')
        a.e('s_lshl_b32 s45, s44, 1')
        a.e('v_and_b32 v3, 3, v1')
        a.e('v_xor_b32 v3, s45, v3')
        a.e('v_lshl_add_u32 v2, v3, 4, v2')
        a.e('v_add_u32 v2, s42, v2')
        a.e(f'v_add_u32 v3, {4 * 9216 - 1024}, v2')
        a.e('v_lshrrev_b32 v29, 1, v1')
        a.e('v_and_b32 v27, 19, v29')
        a.e('v_bfe_u32 v28, v29, 2, 1')
        a.e('v_lshl_add_u32 v27, v28, 3, v27')
        a.e('v_bfe_u32 v28, v29, 3, 1')
        a.e('v_lshl_add_u32 v27, v28, 2, v27')
        a.e('v_mul_u32_u24 v4, 9216, v27')
        a.e('v_and_b32 v27, 1, v1')
        a.e('v_lshl_add_u32 v4, v27, 4, v4')
        a.e('s_lshl_b32 s45, s22, 5')
        a.e(f's_add_u32 s45, s45, {4096 + 4608}')
        a.e('v_add_u32 v4, s45, v4')
        a.e('v_mul_u32_u24 v27, 36, v27')
        a.e('v_lshrrev_b32 v20, 2, v1')
        a.e('v_mul_u32_u24 v20, 1152, v20')
        a.e('v_bfe_u32 v28, v1, 1, 1')
        a.e('v_lshl_add_u32 v20, v28, 4, v20')
        a.e('v_add_u32 v20, v20, v27')
        a.e('v_mul_u32_u24 v28, 1152, v29')
        a.e('v_add3_u32 v28, v28, v27, 32')
        a.e('s_cmp_eq_u32 s20, 2')
        a.e('s_cselect_b64 vcc, -1, 0')
        a.e('v_cndmask_b32 v20, v20, v28, vcc')
        a.e('v_mul_u32_u24 v28, 36, v29')
        a.e('s_cmp_eq_u32 s20, 3')
        a.e('s_cselect_b64 vcc, -1, 0')
        a.e('v_cndmask_b32 v20, v20, v28, vcc')
        a.e('s_mul_i32 s44, s22, 72')
        a.e('s_cmp_eq_u32 s20, 1')
        a.e(f's_cselect_b32 s45, {16 * 1152}, 0')
        a.e('s_add_u32 s44, s44, s45')
        a.e('s_and_b32 s45, s22, 1')
        a.e('s_lshl_b32 s45, s45, 4')
        a.e('s_cmp_ge_u32 s22, 4')
        a.e('s_cselect_b32 s45, 32, s45')
        a.e('s_cmp_eq_u32 s20, 3')
        a.e('s_cselect_b32 s44, s45, s44')
        a.e(f's_movk_i32 s58, 1152')
        a.e('s_cselect_b32 s58, 36, s58')
        a.e('v_add_u32 v20, s44, v20')
        a.e('s_lshl_b32 s44, s58, 5')
        a.e('s_sub_u32 s44, s44, 1024')
        a.e('v_add_u32 v244, s44, v20')
        a.e('s_mul_i32 s42, s58, 576')
        a.e('s_lshl_b32 s58, s58, 6')
        a.e('s_mul_i32 s59, s58, s39')
        a.e('s_lshr_b32 s44, 0x2c, s22')
        a.e('s_and_b32 s44, s44, 1')
        a.e('s_waitcnt lgkmcnt(0)')
        a.e('s_cmp_eq_u32 s44, 1')
        a.e('s_cselect_b32 s40, s70, s68')
        a.e('s_cselect_b32 s41, s71, s69')
        a.e('s_cmp_eq_u32 s20, 3')
        a.e('s_cselect_b32 s40, s40, s6')
        a.e('s_cselect_b32 s41, s41, s7')
        a.e('s_mov_b32 s43, 0x00020000')
        srd(a, 4, 2359296)
        srd(a, 8, 576 * 9216)
        a.e('s_mov_b32 s12, s18')
        a.e('s_mov_b32 s13, s19')
        srd(a, 12, WS_SIZE)
        a.e('s_mov_b32 s56, s54')
        a.e('s_mov_b32 s57, s55')
        srd(a, 52, 2048 * 4096)
        self.consts()

    def setup2(self):
        a = self.a
        a.e('v_lshlrev_b32 v27, 12, v24')
        a.e('v_add_u32 v12, v27, v25')
        a.e('v_add_u32 v13, v27, v26')
        a.e(f'v_add_u32 v13, {16 * 4096 - 1024}, v13')
        a.e(f'v_add_u32 v14, {4 * 4096 - 2048}, v12')
        a.e(f'v_add_u32 v15, {4 * 4096 - 2048}, v13')
        a.e('s_xor_b32 s37, s21, s35')
        a.e('s_lshl_b32 s45, s22, 13')
        a.e('s_add_u32 s45, s45, s26')
        a.e(f's_add_u32 s45, s45, {Z2_OFF}')
        a.e('v_lshlrev_b32 v19, 4, v1')
        a.e('v_add_u32 v9, s45, v19')
        a.e('s_lshl_b32 s45, s22, 10')
        a.e('s_mul_i32 s46, s20, 147456')
        a.e('s_add_u32 s45, s45, s46')
        a.e(f's_add_u32 s45, s45, {128 * 1024 + Z2_OFF}')
        a.e('v_add_u32 v10, s45, v19')
        a.e('v_lshrrev_b32 v27, 4, v1')
        a.e('v_and_b32 v29, 3, v1')
        a.e('v_lshlrev_b32 v28, 3, v29')
        a.e('v_bfe_u32 v29, v1, 2, 3')
        a.e('v_lshl_add_u32 v18, v29, 5, v28')
        a.e('v_lshrrev_b32 v29, 5, v1')
        a.e('v_lshl_add_u32 v18, v29, 9, v18')
        a.e('v_lshl_add_u32 v28, v27, 11, v28')
        a.e('v_bfe_u32 v29, v1, 2, 2')
        a.e('v_lshl_add_u32 v28, v29, 6, v28')
        a.e('v_and_b32 v29, 1, v27')
        a.e('v_lshl_add_u32 v16, v29, 5, v28')
        a.e('v_xor_b32 v17, 32, v16')
        a.e('v_and_b32 v28, 15, v1')
        a.e('v_lshlrev_b32 v245, 4, v28')
        a.e('v_lshl_add_u32 v245, v29, 9, v245')
        a.e('v_lshrrev_b32 v29, 5, v1')
        a.e('v_lshl_add_u32 v245, v29, 11, v245')
        a.e('v_bfe_u32 v29, v1, 2, 2')
        a.e('v_lshl_add_u32 v29, v27, 3, v29')
        a.e('v_lshlrev_b32 v246, 5, v29')
        a.e('v_and_b32 v29, 1, v1')
        a.e('v_lshlrev_b32 v23, 4, v29')
        a.e('v_add_u32 v23, 4096, v23')
        a.e('v_lshlrev_b32 v29, 3, v29')
        a.e('v_add_u32 v29, 6144, v29')
        a.e('v_and_b32 v24, 2, v1')
        a.e('v_cmp_eq_u32 vcc, 0, v24')
        a.e('v_cndmask_b32 v29, v29, v23, vcc')
        a.e('v_add_u32 v246, v246, v29')
        a.e('v_bfe_u32 v29, v1, 1, 3')
        a.e('v_xor_b32 v29, v29, v27')
        a.e('v_lshlrev_b32 v28, 7, v28')
        a.e('v_lshl_add_u32 v28, v29, 4, v28')
        a.e('v_add_u32 v21, s27, v28')
        a.e('v_xor_b32 v28, 64, v28')
        a.e('v_add_u32 v22, s27, v28')
        self.gelu_consts()

    def consts(self):
        a = self.a
        for i in range(5):
            a.e(f's_add_u32 s{66 + i}, s26, {i * self.SLOT}')
        a.e('s_mov_b32 s71, s30')
        a.e('s_add_u32 s72, s30, 4096')
        a.e('s_mov_b32 s73, s27')
        a.e('s_add_u32 s63, s27, 16384')
        a.e(f's_mov_b32 s33, {32 * 9216}')
        a.e(f's_mov_b32 s36, {576 * 9216}')
        a.e('s_mov_b32 s38, 147456')
        a.e('s_movk_i32 s3, 1152')

    def S(self, text, cost=4):
        return (cost, lambda: self.a.e(text))

    def D(self, text, tag):
        return (12, lambda: self.a.vm(text, tag))

    def grp(self, g, d, t):
        S = self.S
        if g == 0:
            return [S(f's_mov_b32 s{d}, s21')]
        if g < 8:
            return [S(f's_add_u32 s{d}, s35, {g}'), S(f's_cmp_ge_u32 s{d}, 8\ns_cselect_b32 s{t}, 7, 0', 8),
                    S(f's_sub_u32 s{d}, s{d}, s{t}'), S(f's_xor_b32 s{d}, s{d}, s21')]
        return [S(f's_xor_b32 s{d}, s37, {g}')]

    def issueA(self):
        u = self.nextA
        if u >= self.limitA:
            return []
        self.nextA += 1
        S, D = self.S, self.D
        seg, i, _, _, si = self.units[u]
        tag = ('A', u)
        m0 = S(f's_mov_b32 m0, s{66 + u % self.R}')
        if seg == 'E':
            return [m0, D('buffer_load_dwordx4 v20, s[40:43], s59 offen lds', tag),
                    D('buffer_load_dwordx4 v244, s[40:43], s59 offen offset:1024 lds', tag),
                    S('s_add_u32 s59, s59, s58'), S('s_cmp_eq_u32 s59, s42\ns_cselect_b32 s59, 0, s59', 8)]
        m1 = S(f's_mov_b32 m0, s{71 + (si // 4) % 2}')
        out = []
        if seg == 'sp':
            if i % 4 == 0:
                out += self.grp(i // 4, 24, 29) + [S('s_mul_i32 s24, s24, 589824', 6)]
            out += [m0, D(f'buffer_load_dwordx4 v9, s[12:15], s24 offen {SCL} lds', tag),
                    D(f'buffer_load_dwordx4 v9, s[12:15], s24 offen offset:1024 {SCL} lds', tag)]
            if i % 4 == 0:
                out += [m1, D(f'buffer_load_dwordx4 v10, s[12:15], s24 offen {SCL} lds', tag)]
            if i % 4 != 3:
                out.append(S('s_add_u32 s24, s24, s38'))
            return out
        if seg == 'z1' and i == 0:
            out += [S('v_subrev_u32 v2, 4608, v2', 8), S('v_subrev_u32 v3, 4608, v3', 8)]
        out += [m0, D('buffer_load_dwordx4 v2, s[8:11], s24 offen lds', tag),
                D('buffer_load_dwordx4 v3, s[8:11], s24 offen offset:1024 lds', tag), S('s_add_u32 s24, s24, s33')]
        if i % 2 == 1:
            out.append(S('s_cmp_eq_u32 s24, s36\ns_cselect_b32 s24, 0, s24', 8))
        if si % 4 == 0:
            if si == 16:
                out += [S('s_cmp_lt_u32 s20, 2\ns_cselect_b32 s29, 0, 4608', 10), S('v_subrev_u32 v4, s29, v4')]
            if si == 20:
                out += [S('s_cmp_lt_u32 s20, 2\ns_cselect_b32 s29, 4608, 0', 10), S('v_subrev_u32 v4, s29, v4')]
            out += [m1, D('buffer_load_dwordx4 v4, s[8:11], s28 offen lds', tag), S(f's_add_u32 s28, s28, {128 * 9216}', 6),
                    S('s_cmp_ge_u32 s28, s36\ns_cselect_b32 s29, s36, 0', 8), S('s_sub_u32 s28, s28, s29')]
        return out

    def issueB(self):
        s = self.nextB
        if s >= len(self.stages):
            return [[], []]
        self.nextB += 1
        S, D = self.S, self.D
        seg, i = self.stages[s]
        tag = ('B', s)
        sp = seg == 'sp'
        vb = 12 if sp else 5
        sr = 's[52:55]' if sp else 's[4:7]'
        m0 = S(f's_mov_b32 m0, s{(73, 63)[s % 2]}')
        ld = [D(f'buffer_load_dwordx4 v{vb + j}, {sr}, s25 offen offset:{1024 * j} lds', tag) for j in range(4)]
        pre = []
        if sp:
            pre = self.grp(i // 2, 25, 46) + [S('s_lshl_b32 s25, s25, 8')] if i % 2 == 0 else [S('s_addk_i32 s25, 128')]
        post = [] if sp else [S('s_addk_i32 s25, 128'), S('s_cmp_eq_u32 s25, s3\ns_cselect_b32 s25, 0, s25', 8)]
        return [pre + [m0] + ld[:2], [m0] + ld[2:] + post]

    def nfr(self, u):
        return 6 if self.units[u][0] == 'E' else 9

    def freg(self, u, F):
        return (self.ACC1 + 24 if self.units[u][0] == 'E' else self.AF) + 4 * F

    def readA(self, u, F):
        a = self.a
        seg, i, _, _, si = self.units[u]
        slot = (u % self.R) * self.SLOT
        tag = ('AR', u, F)
        r = self.freg(u, F)

        def L(t):
            return (8, lambda: a.lg(t, tag))
        if seg == 'E':
            kk, t = F // 3, F % 3
            if t < 2:
                return [L(f'ds_read_b64_tr_b16 {vr(r + 2 * j, 2)}, v245 offset:{slot + kk * 1024 + j * 256 + t * 8}') for j in range(2)]
            return [L(f'ds_read_b64_tr_b16 {vr(r + 2 * j, 2)}, v246 offset:{slot + kk * 1024 + j * 128}') for j in range(2)]
        sgl = self.SGL + ((si // 4) % 2) * 4096 + (si % 4) * 1024
        if seg == 'sp':
            return [L(f'ds_read_b128 {vr(r, 4)}, v19 offset:{slot + F * 1024 if F < 8 else sgl}')]
        if F < 8:
            return [L(f'ds_read_b64_tr_b16 {vr(r + 2 * j, 2)}, v{16 + F % 2} offset:{slot + j * 1024 + (F // 2) * 256}') for j in range(2)]
        return [L(f'ds_read_b64_tr_b16 {vr(r + 2 * j, 2)}, v18 offset:{sgl + j * 256}') for j in range(2)]

    def readB(self, s):
        a = self.a
        out = [(4, lambda: a.wait_vm(('B', s)))]
        for jj in range(2):
            for e in range(2):
                t = f'ds_read_b128 {vr(self.BF + 16 * (s % 2) + 8 * jj + 4 * e, 4)}, v{21 + jj} offset:{(s % 2) * 16384 + e * 2048}'
                out.append((8, lambda t=t: a.lg(t, ('BR', s))))
        return out

    def run(self, items):
        for _, f in items:
            f()

    def prologue_issue(self):
        b0 = self.issueB()
        self.run(b0[0] + b0[1][1:] + self.issueA() + self.issueA() + self.issueA())
        b1 = self.issueB()
        self.run(b1[0] + b1[1][1:] + self.issueA())

    def run_segment(self, u0, n, own=False):
        a = self.a
        a.e(f's_setprio {opt("pg", PG)[0]}')
        self.run(self.readB(self.units[u0][2]))
        a.wait_vm(('A', u0))
        a.wait_lg('own')
        a.e('s_barrier')
        for F in range(9):
            self.run(self.readA(u0, F))
        carry = []
        for u in range(u0, u0 + n):
            last = u == u0 + n - 1
            seg, kk, s, jj, _ = self.units[u]
            sfirst = u == u0 or self.units[u - 1][2] != s
            pos = u - min(v for v in range(u0, u + 1) if self.units[v][2] == s)
            nf = self.nfr(u)
            if 'p2fine' in ABL and u >= self.UP + 4 and (u - self.UP - 4) % 10 == 0:
                stamp(a, 1 + (u - self.UP - 4) // 10)
            will_issue = self.nextA <= u + self.R - 1 and self.nextA < self.limitA
            if not last:
                a.wait_vm(('A', u + 1))
            if will_issue or (not last and not own):
                a.e('s_barrier')
            if u in self.hooks:
                self.hooks[u]()
            misc = self.issueA() if self.nextA <= u + self.R - 1 else []
            if sfirst and self.nextB <= s + 2:
                self.pendB = self.issueB()
            pb = self.pendB.pop(0) if self.pendB else []
            reads = [(0, it) for it in carry]
            carry = []
            if not last:
                same = self.freg(u, 0) == self.freg(u + 1, 0)
                for F in range(self.nfr(u + 1)):
                    its = self.readA(u + 1, F)
                    if nf == 6 and F >= 7:
                        carry += its
                    else:
                        reads += [(2 * F + 1 if same else 0, it) for it in its]
            stage_end = max(v for v in range(u, u0 + n) if self.units[v][2] == s)
            if pos == 1 and stage_end < u0 + n - 1:
                misc += self.readB(s + 1)
            misc += pb
            ng = 2 * nf
            nwait = (nf + 1) // 2
            total = sum(c for _, (c, _) in reads) + sum(c for c, _ in misc) + 4 * nwait + 8
            done = 0
            for g in range(ng):
                F, e = g // 2, g % 2
                if g == 0:
                    a.wait_lg(('AR', u, 0))
                    if sfirst:
                        a.wait_lg(('BR', s))
                af = vr(self.freg(u, F), 4)
                if seg == 'E':
                    d = vr(self.ACC1 + 8 * (F % 3) + 4 * e, 4)
                    c = '0' if (kk == 0 and F < 3) else d
                    bf = vr(self.BF + 16 * (s % 2) + 8 * (F // 3) + 4 * e, 4)
                else:
                    d = vr((self.ACC1 if seg == 'z1' else self.ACC0) + 8 * F + 4 * e, 4)
                    c = '0' if kk == 0 else d
                    bf = vr(self.BF + 16 * (s % 2) + 8 * jj + 4 * e, 4)
                if seg == 'z2':
                    a.e(f'v_mfma_f32_16x16x32_bf16 {d}, {bf}, {af}, {c}')
                else:
                    a.e(f'v_mfma_f32_16x16x32_bf16 {d}, {af}, {bf}, {c}')
                used = 0
                needw = e == 1 and F % 2 == 0 and F + 1 < nf
                if needw:
                    used += 4
                if g == ng - 1:
                    used += 8
                target = max(12 * (g + 1), total * (g + 1) / ng)
                while True:
                    cand = None
                    if reads and reads[0][0] <= g and (not misc or len(reads) * 1.0 >= (ng - g) * 0.55 or misc[0][0] + used > 12):
                        cand = 'r'
                    elif misc:
                        cand = 'm'
                    elif reads and reads[0][0] <= g:
                        cand = 'r'
                    if cand is None:
                        break
                    cost = reads[0][1][0] if cand == 'r' else misc[0][0]
                    if g < ng - 1 and used + cost > 12 and done + used + cost > total * (g + 1) / ng:
                        break
                    (reads.pop(0)[1] if cand == 'r' else misc.pop(0))[1]()
                    used += cost
                done += used
                if needw:
                    a.wait_lg(('AR', u, F + 1))
                    a.wait_lg(('AR', u, min(F + 2, nf - 1)))
                    self.merge_waits()
            assert not reads and not misc
        a.e(f's_setprio {opt("pg", PG)[1]}')

    def merge_waits(self):
        ins = self.a.ins
        if len(ins) >= 2 and ins[-1].text.startswith('s_waitcnt lgkmcnt') and ins[-2].text.startswith('s_waitcnt lgkmcnt'):
            del ins[-2]

    def proj_store(self):
        a = self.a
        E = self.ACC1
        P = self.AF
        a.e(f's_mov_b32 s44, {hx(QSCALE)}')
        a.e(f's_mov_b32 s45, {hx(QSCALE)}')
        a.e('v_mov_b32 v24, s44')
        a.e('s_bitcmp1_b32 0x2c, s22')
        a.e(f's_cselect_b32 s46, {hx(2.0 ** VSH)}, 1.0')
        a.e('v_mov_b32 v25, s46')
        a.e('v_cmp_gt_u32 vcc, 32, v1')
        a.e('v_cndmask_b32 v24, v25, v24, vcc')
        a.e('s_lshl_b32 s46, s23, 5')
        a.e('s_add_u32 s46, s46, s22')
        a.e('s_mul_i32 s46, s46, 1152')
        a.e(f's_add_u32 s46, s46, {QF_OFF}')
        a.e(f's_add_u32 s47, s46, {16 * 1152}')
        a.e('v_lshlrev_b32 v25, 2, v1')
        for e in range(2):
            for t in range(2):
                for h in range(2):
                    r = E + 8 * t + 4 * e + 2 * h
                    a.e(f'v_pk_mul_f32 {vr(r, 2)}, {vr(r, 2)}, s[44:45]')
            for r in (E + 16 + 4 * e, E + 18 + 4 * e):
                a.e(f'v_pk_mul_f32 {vr(r, 2)}, {vr(r, 2)}, v[24:25] op_sel_hi:[1,0]')
            for t in range(3):
                for h in range(2):
                    r = E + 8 * t + 4 * e + 2 * h
                    a.e(f'v_cvt_pk_bf16_f32 v{P + 8 * e + 2 * t + h}, v{r}, v{r + 1}')
            a.vm(f'buffer_store_dwordx4 {vr(P + 8 * e, 4)}, v19, s[12:15], s{46 + e} offen {SC}', 'pst')
        a.e('s_mov_b32 exec_hi, 0')
        for e in range(2):
            a.vm(f'buffer_store_dword v{P + 8 * e + 4}, v25, s[12:15], s{46 + e} offen offset:1024 {SC}', 'pst')
        a.e('s_mov_b64 exec, -1')
        le = a.newlabel('PJ_E')
        lv = a.newlabel('PJ_V')
        lt = a.newlabel('PJ_T')
        ls = a.newlabel('PJ_S')
        a.e('s_cmp_ge_u32 s22, 6')
        a.e(f's_cbranch_scc1 {le}')
        a.e(f's_mul_i32 s44, s23, {KV_TILE}')
        a.e(f's_add_u32 s44, s44, {KV_OFF}')
        a.e('v_and_b32 v24, 15, v1')
        a.e('v_bfe_u32 v25, v1, 4, 1')
        a.e('v_lshrrev_b32 v26, 2, v24')
        a.e('v_mul_u32_u24 v26, 168, v26')
        a.e('v_add_u32 v26, 1152, v26')
        a.e('v_and_b32 v27, 3, v1')
        a.e('s_mov_b32 exec_lo, 0')
        a.e('s_cmp_ge_u32 s22, 4')
        a.e(f's_cbranch_scc1 {lt}')
        a.e('s_cmp_ge_u32 s22, 2')
        a.e(f's_cbranch_scc1 {lv}')
        a.e('v_lshlrev_b32 v28, 4, v24')
        a.e('v_lshl_add_u32 v28, v25, 3, v28')
        a.e('s_lshl_b32 s45, s22, 9')
        a.e('s_add_u32 s44, s44, s45')
        a.e('s_add_u32 s45, s44, 256')
        a.e(f's_branch {ls}')
        a.label(lv)
        a.e('v_lshl_add_u32 v28, v27, 5, v26')
        a.e('v_lshl_add_u32 v28, v25, 3, v28')
        a.e('s_and_b32 s45, s22, 1')
        a.e('s_lshl_b32 s45, s45, 4')
        a.e('s_add_u32 s44, s44, s45')
        a.e(f's_add_u32 s45, s44, {4 * 168}')
        a.e(f's_branch {ls}')
        a.label(lt)
        lvt = a.newlabel('PJ_VT')
        a.e('s_cmp_eq_u32 s22, 5')
        a.e(f's_cbranch_scc1 {lvt}')
        a.e('v_lshlrev_b32 v28, 2, v24')
        a.e('s_mov_b32 exec_hi, 0xffff')
        for e in range(2):
            a.e(f'buffer_store_dword v{P + 8 * e + 4}, v28, s[12:15], s44 offen offset:{1024 + 64 * e} {SC}')
        a.e(f's_branch {le}')
        a.label(lvt)
        a.e('v_lshl_add_u32 v28, v27, 3, v26')
        a.e('v_add_u32 v28, 128, v28')
        a.e('v_add_u32 v29, 160, v26')
        a.e('v_cmp_eq_u32 vcc, 0, v25')
        a.e('v_cndmask_b32 v28, v29, v28, vcc')
        a.e(f'v_mov_b32 v29, {f2u(2.0 ** VSH) >> 16}')
        for e in range(2):
            a.e(f'v_cndmask_b32 v{P + 8 * e + 4}, 0, v{P + 8 * e + 4}, vcc')
            a.e(f'v_cndmask_b32 v{P + 8 * e + 5}, 0, v29, vcc')
        a.e(f's_add_u32 s45, s44, {4 * 168}')
        a.label(ls)
        for e in range(2):
            a.e(f'buffer_store_dwordx2 {vr(P + 8 * e + 4, 2)}, v28, s[12:15], s{44 + e} offen {SC}')
        a.label(le)
        a.e('s_mov_b64 exec, -1')

    def proj_signal(self):
        a = self.a
        a.wait_vm('pst')
        a.e('s_bfe_u32 s44, s22, 0x20001')
        a.e('s_lshl_b32 s44, s44, 3')
        a.e('s_bfe_u32 s45, s23, 0x30001')
        a.e('s_add_u32 s44, s44, s45')
        a.e('s_lshl_b32 s44, s44, 3')
        a.e('s_and_b32 s45, s2, 7')
        a.e('s_add_u32 s44, s44, s45')
        a.e('s_lshl_b32 s44, s44, 5')
        a.e('s_and_b32 s45, s23, 1')
        a.e('s_lshl_b32 s45, s45, 1')
        a.e('s_add_u32 s44, s44, s45')
        a.e('s_and_b32 s45, s22, 1')
        a.e('s_add_u32 s44, s44, s45')
        a.e('s_lshl_b32 s44, s44, 2')
        a.e(f's_add_u32 s44, s44, {GO_OFF}')
        set_flag(a, 44, 27)
        a.e('s_barrier')
        l = a.newlabel('PS')
        a.e('s_cmp_ge_u32 s22, 6')
        a.e(f's_cbranch_scc1 {l}')
        a.e('s_cmp_lg_u32 s20, 0')
        a.e(f's_cbranch_scc1 {l}')
        a.e('s_mul_i32 s44, s21, 6')
        a.e('s_add_u32 s44, s44, s22')
        a.e('s_lshl_b32 s44, s44, 2')
        a.e(f's_add_u32 s44, s44, {KVF_OFF}')
        a.e('v_lshlrev_b32 v27, 9, v1')
        a.e('s_mov_b64 exec, 0xff')
        a.e(f'buffer_store_dword v28, v27, s[12:15], s44 offen {SC}')
        a.e('s_mov_b64 exec, -1')
        a.label(l)

    def gelu_consts(self):
        a = self.a
        a.e(f's_mov_b32 s60, {hx(GELU_C1)}')
        a.e(f's_mov_b32 s61, {hx(GELU_C1)}')
        a.e(f'v_mov_b32 v30, {hx(GELU_C0)}')
        a.e(f'v_mov_b32 v31, {hx(GELU_C0)}')

    def z1_gelu(self, Fs=range(9)):
        a = self.a
        T = self.BF + 16
        for F in Fs:
            base = self.ACC1 + 8 * F
            gelu_group(a, [base + 2 * i for i in range(4)], T + 8 * (F % 2), 60, 30)

    def z2_gelu_publish(self):
        a = self.a
        T = self.AF + 16
        S = self.BF
        for F in range(9):
            if F == opt('psig', [5])[0]:
                self.proj_signal()
            base = self.ACC0 + 8 * F
            gelu_group(a, [base + 2 * i for i in range(4)], T + 8 * (F % 2), 60, 30)
            for i in range(4):
                y = vr(base + 2 * i, 2)
                if F == 0:
                    a.e(f'v_pk_add_f32 {vr(S + 2 * i, 2)}, {y}, 0 op_sel_hi:[1,0]')
                    a.e(f'v_pk_mul_f32 {vr(S + 8 + 2 * i, 2)}, {y}, {y}')
                else:
                    a.e(f'v_pk_add_f32 {vr(S + 2 * i, 2)}, {vr(S + 2 * i, 2)}, {y}')
                    a.e(f'v_pk_fma_f32 {vr(S + 8 + 2 * i, 2)}, {y}, {y}, {vr(S + 8 + 2 * i, 2)}')
        for b in (S, S + 8):
            for r in range(4):
                a.e(f'v_add_f32_dpp v{b + r}, v{b + r}, v{b + r} row_ror:8 row_mask:0xf bank_mask:0x3')
            for r in range(4):
                a.e(f'v_add_f32_dpp v{b + r}, v{b + r + 4}, v{b + r + 4} row_ror:8 row_mask:0xf bank_mask:0xc')
        for b in (S, S + 8):
            for r in range(2):
                a.e(f'v_add_f32_dpp v{b + r}, v{b + r}, v{b + r} row_shl:4 row_mask:0xf bank_mask:0x5')
            for r in range(2):
                a.e(f'v_add_f32_dpp v{b + r}, v{b + r + 2}, v{b + r + 2} row_shr:4 row_mask:0xf bank_mask:0xa')
        for qp in ('[1,0,3,2]', '[2,3,0,1]'):
            for r in (S, S + 1, S + 8, S + 9):
                a.e(f'v_add_f32_dpp v{r}, v{r}, v{r} quad_perm:{qp} row_mask:0xf bank_mask:0xf')
        a.e('v_and_b32 v25, 1, v1')
        a.e('v_cmp_eq_u32 vcc, 1, v25')
        G0 = S + 12
        a.e(f'v_cndmask_b32 v{G0}, v{S}, v{S + 1}, vcc')
        a.e(f'v_cndmask_b32 v{G0 + 1}, v{S + 8}, v{S + 9}, vcc')
        a.e('v_lshrrev_b32 v27, 2, v1')
        a.e('v_lshl_add_u32 v27, v27, 1, v25')
        a.e('v_lshlrev_b32 v27, 4, v27')
        a.e('s_lshl_b32 s48, s23, 13')
        a.e(f's_add_u32 s48, s48, {STATS_OFF}')
        a.e('s_lshl_b32 s49, s22, 9')
        a.e('s_add_u32 s49, s49, s48')
        a.e(f'v_mov_b32 v{G0 + 2}, s62')
        a.e(f'v_mov_b32 v{G0 + 3}, s62')
        a.e('s_mov_b32 exec_lo, 0x33333333')
        a.e('s_mov_b32 exec_hi, 0x33333333')
        a.vm(f'buffer_store_dwordx4 {vr(G0, 4)}, v27, s[12:15], s49 offen {SC}', 'st')
        a.e('s_mov_b64 exec, -1')

    def z2_gather_norm_store(self):
        a = self.a
        G = self.AF
        a.e('s_add_u32 s49, s48, 4096')

        def ld():
            for i in range(8):
                a.e(f'buffer_load_dwordx4 {vr(G + 4 * i, 4)}, v19, s[12:15], {"s48" if i < 4 else "s49"} offen offset:{1024 * (i % 4)} {SC}')
        poll(a, ld, [G + 4 * i + 2 for i in range(8)], 27)
        for i in (0, 2, 4, 6):
            a.e(f'v_pk_add_f32 {vr(G + 4 * i, 2)}, {vr(G + 4 * i, 2)}, {vr(G + 4 * i + 4, 2)}')
        a.e(f'v_pk_add_f32 {vr(G, 2)}, {vr(G, 2)}, {vr(G + 8, 2)}')
        a.e(f'v_pk_add_f32 {vr(G + 16, 2)}, {vr(G + 16, 2)}, {vr(G + 24, 2)}')
        a.e(f'v_pk_add_f32 {vr(G, 2)}, {vr(G, 2)}, {vr(G + 16, 2)}')
        a.e(f'v_mov_b32 v{G + 2}, v{G}')
        a.e(f'v_mov_b32 v{G + 3}, v{G + 1}')
        a.e(f'v_permlane32_swap_b32 v{G}, v{G + 2}')
        a.e(f'v_permlane32_swap_b32 v{G + 1}, v{G + 3}')
        a.e(f'v_pk_add_f32 {vr(G, 2)}, {vr(G, 2)}, {vr(G + 2, 2)}')
        a.e(f'v_mul_f32 v{G}, {hx(1.0 / 2304)}, v{G}')
        a.e(f'v_mul_f32 v{G + 1}, {hx(1.0 / 2304)}, v{G + 1}')
        a.e(f'v_fma_f32 v{G + 1}, -v{G}, v{G}, v{G + 1}')
        a.e(f'v_max_f32 v{G + 1}, 0, v{G + 1}')
        a.e(f'v_add_f32 v{G + 1}, {hx(1e-5)}, v{G + 1}')
        a.e(f'v_rsq_f32 v{G + 1}, v{G + 1}')
        a.e(f'v_mul_f32 v{G}, v{G}, v{G + 1}')
        a.e(f'v_sub_f32 v{G}, 0, v{G}')
        a.e('v_lshrrev_b32 v28, 4, v1')
        a.e('v_lshlrev_b32 v28, 5, v28')
        RS = self.BF
        for i in range(8):
            a.lg(f'ds_bpermute_b32 v{RS + i}, v28, v{G + 1} offset:{4 * i}', 'r')
            a.lg(f'ds_bpermute_b32 v{RS + 8 + i}, v28, v{G} offset:{4 * i}', 'r')
        a.e('s_mul_i32 s44, s23, 147456')
        a.e(f's_add_u32 s44, s44, {Z2_OFF}')
        a.e('s_lshl_b32 s45, s22, 13')
        a.e('s_add_u32 s45, s45, s44')
        a.e('s_add_u32 s47, s45, 4096')
        a.e('s_lshl_b32 s46, s22, 10')
        a.e('s_add_u32 s46, s46, s44')
        a.e(f's_add_u32 s46, s46, {128 * 1024}')
        a.wait_lg0()
        for F in range(9):
            base = self.ACC0 + 8 * F
            pk = self.ACC0 + 4 * F
            for i in range(4):
                a.e(f'v_pk_fma_f32 {vr(base + 2 * i, 2)}, {vr(base + 2 * i, 2)}, {vr(RS + 2 * i, 2)}, {vr(RS + 8 + 2 * i, 2)}')
            for i in range(4):
                a.e(f'v_cvt_pk_bf16_f32 v{pk + i}, v{base + 2 * i}, v{base + 2 * i + 1}')
            so = 's46' if F == 8 else ('s45' if F < 4 else 's47')
            a.vm(f'buffer_store_dwordx4 {vr(pk, 4)}, v19, s[12:15], {so} offen offset:{1024 * (F % 4)} {SC}', 'st')

    def own_write(self):
        a = self.a
        a.e('s_lshl_b32 s44, s20, 13')
        a.e('v_add_u32 v27, s44, v19')
        a.e('v_add_u32 v28, s30, v19')
        a.e('s_barrier')
        for F in range(9):
            pk = self.ACC0 + 4 * F
            if F < 8:
                a.lg(f'ds_write_b128 v27, {vr(pk, 4)} offset:{1024 * F}', 'own')
            else:
                a.lg(f'ds_write_b128 v28, {vr(pk, 4)} offset:4096', 'own')

    def sp_pre(self):
        a = self.a
        a.e('v_bfe_u32 v27, v1, 2, 2')
        a.e('v_lshlrev_b32 v27, 3, v27')
        a.e('v_and_b32 v28, 3, v1')
        a.e('s_lshl_b32 s44, s23, 5')
        a.e('v_add3_u32 v27, v27, v28, s44')
        a.e('v_lshlrev_b32 v28, 1, v27')
        a.e('v_lshlrev_b32 v11, 3, v27')
        a.vm('global_load_ushort v244, v28, s[56:57]', 'pre')
        a.vm('global_load_ushort v245, v28, s[56:57] offset:8', 'pre')
        self.gate_loads(True)

    def gate_loads(self, track=False):
        a = self.a
        a.e(f's_mov_b32 s44, {GATE_OFF}')
        for e in range(2):
            t = f'buffer_load_dwordx2 {vr(246 + 2 * e, 2)}, v11, s[12:15], s44 offen offset:{32 * e} {SC}'
            a.vm(t, 'pre') if track else a.e(t)

    def sp_epilogue(self):
        a = self.a
        a.wait_vm('pre')
        poll(a, self.gate_loads, [247, 249], 27, first_done=True)
        poll(a, lambda: p3_flags(a), [2, 3, 4], 27, first_done=True)
        for e in range(2):
            a.e(f'v_sub_f32 v{246 + 2 * e}, 1.0, v{246 + 2 * e}')
            a.e(f'v_lshlrev_b32 v{244 + e}, 16, v{244 + e}')
            a.e(f'v_mul_f32 v{250 + 2 * e}, v{244 + e}, v{246 + 2 * e}')
        a.e('s_mul_i32 s44, s23, 180')
        a.e('s_lshr_b32 s45, s22, 2')
        a.e('s_mul_i32 s45, s45, 18')
        a.e('s_add_u32 s44, s44, s45')
        a.e('s_lshl_b32 s44, s44, 10')
        a.e(f's_add_u32 s44, s44, {UF_OFF + 18 * 1024}')
        a.e('s_and_b32 s45, s22, 3')
        a.e('s_lshl_b32 s46, s45, 12')
        a.e('s_add_u32 s46, s46, s44')
        a.e(f's_add_u32 s47, s46, {90 * 1024}')
        a.e('s_lshr_b32 s48, s45, 1')
        a.e('s_lshl_b32 s48, s48, 10')
        a.e('s_add_u32 s48, s48, s44')
        a.e('s_and_b32 s49, s45, 1')
        a.e('s_lshl_b32 s49, s49, 3')
        a.e('s_add_u32 s48, s48, s49')
        a.e(f's_add_u32 s48, s48, {16 * 1024}')
        a.e(f's_add_u32 s49, s48, {90 * 1024}')
        idx = 0
        for m in range(5):
            for e in range(2):
                pk = self.AF + 4 * idx
                idx += 1
                Fs = (2 * m, 2 * m + 1) if m < 4 else (8,)
                prs = [(self.ACC0 + 8 * F + 4 * e + 2 * i, self.ACC1 + 8 * F + 4 * e + 2 * i) for F in Fs for i in range(2)]
                for g, z in prs:
                    a.e(f'v_pk_fma_f32 {vr(g, 2)}, {vr(g, 2)}, {vr(246 + 2 * e, 2)}, {vr(250 + 2 * e, 2)} op_sel_hi:[1,0,0]')
                for g, z in prs:
                    a.e(f'v_pk_mul_f32 {vr(g, 2)}, {vr(g, 2)}, {vr(z, 2)}')
                for i, (g, z) in enumerate(prs):
                    a.e(f'v_cvt_pk_bf16_f32 v{pk + i}, v{g}, v{g + 1}')
                for i in range(len(prs)):
                    a.e(f'v_min_u32 v{pk + i}, -2, v{pk + i}')
                if m < 4:
                    a.vm(f'buffer_store_dwordx4 {vr(pk, 4)}, v19, s[12:15], s{46 + e} offen offset:{1024 * m} {SC}', 'st')
                else:
                    a.vm(f'buffer_store_dwordx2 {vr(pk, 2)}, v19, s[12:15], s{48 + e} offen {SC}', 'st')


def write_nonce(a):
    l = a.newlabel('NOW')
    a.e('s_or_b32 s44, s3, s20')
    a.e('s_cmp_lg_u32 s44, 0')
    a.e(f's_cbranch_scc1 {l}')
    a.e('s_memrealtime s[44:45]')
    a.e('v_mov_b32 v29, 0')
    a.e('s_waitcnt lgkmcnt(0)')
    a.e('s_or_b32 s44, s44, 1')
    a.e('v_mov_b32 v28, s44')
    a.e(f'global_store_dword v29, v28, s[16:17] {SC}')
    a.label(l)


KVBUF = 40960
M_OFFSET = 96.0
VSH = 32


class ATT:
    SB = 16
    OB = 48
    QF = 80
    KF = 96
    VF = 112
    PF = 128
    XF = 136
    WF = 208
    WQS = 16

    def __init__(self, a):
        self.a = a

    def setup(self, sid):
        a = self.a
        a.e(f's_load_dwordx2 s[4:5], s[0:1], {A_X}')
        a.e(f's_load_dwordx4 s[16:19], s[0:1], {A_DBG}')
        a.e(f's_load_dwordx4 s[56:59], s[0:1], {A_WOUT}')
        a.e(f's_load_dwordx2 s[36:37], s[0:1], {A_WO}')
        a.e(f's_load_dwordx2 s[60:61], s[0:1], {A_WSP}')
        a.e('v_lshrrev_b32 v1, 6, v0')
        a.e('v_readfirstlane_b32 s20, v1')
        a.e('v_and_b32 v1, 63, v0')
        a.e(f's_and_b32 s24, s{sid}, 3')
        a.e(f's_lshr_b32 s25, s{sid}, 3')
        a.e('s_lshl_b32 s21, s24, 3')
        a.e('s_and_b32 s23, s25, 7')
        a.e('s_add_u32 s21, s21, s23')
        a.e(f's_and_b32 s22, s{sid}, 4')
        a.e('s_lshr_b32 s23, s25, 3')
        a.e('s_add_u32 s22, s22, s23')
        a.e('s_lshl_b32 s23, s21, 2')
        a.e('s_add_u32 s23, s23, s20')
        a.e('s_lshr_b32 s44, s23, 1')
        a.e('s_lshl_b32 s44, s44, 5')
        a.e('s_and_b32 s45, s23, 1')
        a.e('s_lshl_b32 s45, s45, 2')
        a.e('s_add_u32 s44, s44, s45')
        a.e('v_bfe_u32 v3, v1, 2, 2')
        a.e('v_lshlrev_b32 v3, 3, v3')
        a.e('v_and_b32 v10, 3, v1')
        a.e('v_add3_u32 v3, v3, v10, s44')
        a.e('v_lshlrev_b32 v3, 3, v3')
        a.e('s_mul_i32 s26, s20, 10240')
        a.e('s_lshl_b32 s27, s25, 2')
        a.e('s_add_u32 s27, s27, s20')
        if 'nocodepf' not in ABL:
            a.e('s_getpc_b64 s[46:47]')
            a.e('s_and_b32 s46, s46, 0xffffff00')
            a.e('s_mul_i32 s45, s27, 5')
            a.e('v_min_u32 v10, 4, v1')
            a.e('v_add_u32 v10, s45, v10')
            a.e('v_min_u32 v10, CODE_LINES, v10')
            a.e('v_lshlrev_b32 v10, 7, v10')
            a.e('global_load_dword v239, v10, s[46:47]')
        a.e('v_lshlrev_b32 v10, 4, v1')
        a.e('s_waitcnt lgkmcnt(0)')
        a.e('s_mov_b32 s12, s18')
        a.e('s_mov_b32 s13, s19')
        srd(a, 12, WS_SIZE)

    def nonce(self):
        a = self.a
        a.e('s_waitcnt vmcnt(0)')
        a.e('v_mov_b32 v2, 0')
        a.e(f'global_load_dword v4, v2, s[16:17] {SC}')
        a.e('s_waitcnt vmcnt(0)')
        get_nonce(a, 2, 4)

    def page_touch(self):
        a = self.a
        l = a.newlabel('PT')
        a.e('s_cmp_lg_u32 s20, 1')
        a.e(f's_cbranch_scc1 {l}')
        a.e(f's_load_dwordx2 s[44:45], s[0:1], {A_WSP}')
        a.e(f's_load_dwordx2 s[46:47], s[0:1], {A_OUT}')
        a.e('v_lshlrev_b32 v2, 19, v1')
        a.e('buffer_load_dword v255, v2, s[12:15], 0 offen')
        a.e('v_min_u32 v4, 15, v1')
        a.e('v_lshlrev_b32 v4, 19, v4')
        a.e('v_min_u32 v5, 4, v1')
        a.e('v_lshlrev_b32 v5, 19, v5')
        a.e('s_waitcnt lgkmcnt(0)')
        a.e('global_load_dword v255, v4, s[44:45]')
        a.e('global_load_dword v255, v5, s[46:47]')
        a.e('global_load_dword v255, v5, s[56:57]')
        a.label(l)

    SV = 140

    def side(self, part):
        a = self.a
        lg = a.newlabel('SJ_G')
        le = a.newlabel('SJ_E')
        a.e('s_cmp_eq_u32 s20, 3')
        a.e(f's_cbranch_scc1 {lg}')
        a.e(f's_cmp_ge_u32 s63, {0 if "nort" in ABL else 720}')
        a.e(f's_cbranch_scc1 {le}')
        self.retile(part)
        a.e(f's_branch {le}')
        a.label(lg)
        self.gate(part)
        a.label(le)
        if part == 2:
            self.mark_flag()

    def gate(self, part):
        a = self.a
        V = self.SV
        X, W = V + 8, V + 44
        if part == 0:
            a.e(f'v_lshrrev_b32 v{V}, 3, v1')
            a.e('s_lshl_b32 s44, s3, 3')
            a.e(f'v_add_u32 v{V}, s44, v{V}')
            a.e(f'v_and_b32 v{V + 1}, 7, v1')
            a.e(f'v_lshlrev_b32 v{V + 1}, 4, v{V + 1}')
            a.e(f'v_mul_u32_u24 v{V + 2}, 1152, v{V}')
            a.e(f'v_add_u32 v{V + 2}, v{V + 2}, v{V + 1}')
            for i in range(9):
                a.e(f'global_load_dwordx4 {vr(X + 4 * i, 4)}, v{V + 2}, s[4:5] offset:{128 * i}')
                a.e(f'global_load_dwordx4 {vr(W + 4 * i, 4)}, v{V + 1}, s[58:59] offset:{128 * i}')
        elif part == 1:
            A0, A1, T0, T1 = V + 4, V + 5, V + 6, V + 7
            a.e(f'v_mov_b32 v{A0}, 0')
            a.e(f'v_mov_b32 v{A1}, 0')
            for i in range(36):
                a.e(f'v_dot2c_f32_bf16 v{A0 + i % 2}, v{X + i}, v{W + i}')
            a.e('s_nop 3')
            a.e(f'v_add_f32 v{A0}, v{A0}, v{A1}')
            for m in ('quad_perm:[1,0,3,2]', 'quad_perm:[2,3,0,1]', 'row_half_mirror'):
                a.e(f'v_add_f32_dpp v{A0}, v{A0}, v{A0} {m} row_mask:0xf bank_mask:0xf')
            a.e(f'v_mul_f32 v{A0}, {hx(-1.4426950408889634)}, v{A0}')
            a.e(f'v_exp_f32 v{A0}, v{A0}')
            a.e(f'v_add_f32 v{A0}, 1.0, v{A0}')
            a.e(f'v_rcp_f32 v{A0}, v{A0}')
            a.e(f'v_mov_b32 v{A1}, s62')
            a.e(f'v_lshlrev_b32 v{V}, 3, v{V}')
            a.e(f's_mov_b32 s44, {GATE_OFF}')
            a.e('s_mov_b32 exec_lo, 0x01010101')
            a.e('s_mov_b32 exec_hi, 0x01010101')
            a.e(f'buffer_store_dwordx2 {vr(A0, 2)}, v{V}, s[12:15], s44 offen {SC}')
            a.e('s_mov_b64 exec, -1')

    def retile_setup(self):
        a = self.a
        V = self.SV
        a.e('s_mul_i32 s63, s3, 3')
        a.e('s_add_u32 s63, s63, s20')
        a.e('s_and_b32 s64, s63, 7')
        a.e('s_lshr_b32 s65, s63, 3')
        a.e('s_cmp_lt_u32 s65, 18')
        a.e('s_cselect_b32 s40, s36, s56')
        a.e('s_cselect_b32 s41, s37, s57')
        a.e(f's_mov_b32 s42, {2304 * 1152}')
        a.e(f's_cselect_b32 s42, {576 * 1152}, s42')
        a.e('s_mov_b32 s43, 0x00020000')
        a.e('s_sub_u32 s44, s65, 18')
        a.e('s_mul_i32 s45, s44, 57')
        a.e('s_lshr_b32 s45, s45, 10')
        a.e('s_mul_i32 s46, s45, 18')
        a.e('s_sub_u32 s44, s44, s46')
        a.e('s_lshl_b32 s46, s45, 9')
        a.e('s_lshl_b32 s47, s45, 6')
        a.e(f's_add_u32 s47, s47, {2048 - 512}')
        a.e('s_cmp_lt_u32 s44, 16')
        a.e('s_cselect_b32 s46, s46, s47')
        a.e('s_lshl_b32 s44, s44, 5')
        a.e('s_add_u32 s44, s44, s46')
        a.e('s_mov_b32 s45, 4')
        a.e('s_mov_b32 s46, 8')
        a.e('s_mov_b32 s47, 16')
        a.e('s_mov_b32 s48, 2')
        a.e('s_sub_u32 s49, s65, 16')
        a.e('s_mul_i32 s49, s49, 288')
        a.e('s_add_u32 s49, s49, 16')
        a.e('s_cmp_lt_u32 s65, 18')
        a.e('s_cselect_b32 s44, s49, s44')
        a.e('s_cselect_b32 s45, 72, s45')
        a.e('s_cselect_b32 s46, 144, s46')
        a.e('s_cselect_b32 s47, 36, s47')
        a.e('s_cselect_b32 s48, 18, s48')
        a.e('s_mul_i32 s49, s65, 36')
        a.e('s_cmp_lt_u32 s65, 16')
        a.e('s_cselect_b32 s44, s49, s44')
        a.e('s_cselect_b32 s45, 18, s45')
        a.e('s_cselect_b32 s46, 4, s46')
        a.e('s_cselect_b32 s47, 8, s47')
        a.e('s_cselect_b32 s48, 2, s48')
        for r in (44, 45, 46, 47):
            a.e(f's_mul_i32 s{r}, s{r}, 1152')
        a.e('s_mul_i32 s49, s64, 144')
        a.e('s_add_u32 s66, s44, s49')
        a.e('s_add_u32 s67, s66, s47')
        for i in range(2):
            a.e(f's_add_u32 s{68 + i}, s{66 + i}, s45')
        for i in range(4):
            a.e(f's_add_u32 s{70 + i}, s{66 + i}, s46')
        a.e(f'v_lshrrev_b32 v{V}, 5, v1')
        a.e(f'v_mul_lo_u32 v{V}, v{V}, s48')
        a.e('v_bfe_u32 v5, v1, 4, 1')
        a.e(f'v_add_u32 v{V}, v{V}, v5')
        a.e(f'v_mul_u32_u24 v{V}, 1152, v{V}')
        a.e('v_and_b32 v5, 15, v1')
        a.e('v_min_u32 v5, 8, v5')
        a.e(f'v_lshl_add_u32 v{V}, v5, 4, v{V}')
        a.e('v_lshrrev_b32 v5, 4, v1')
        a.e('v_bfe_u32 v6, v1, 2, 2')
        a.e('v_lshlrev_b32 v7, 11, v5')
        a.e('v_lshl_add_u32 v7, v6, 8, v7')
        a.e(f's_add_u32 s44, s26, {KVBUF}')
        a.e('v_add_u32 v7, s44, v7')
        a.e('v_and_b32 v6, 3, v1')
        a.e(f'v_lshl_add_u32 v{V + 2}, v6, 3, v7')
        a.e(f'v_lshl_add_u32 v{V + 1}, v6, 4, v7')
        a.e('v_and_b32 v6, 7, v1')
        a.e('v_lshl_add_u32 v5, v5, 3, v6')
        a.e('v_lshlrev_b32 v5, 4, v5')
        a.e(f'v_add_u32 v{V + 3}, 4096, v5')

    def retile(self, part):
        a = self.a
        V = self.SV
        F = V + 8
        if part == 0:
            for i in range(8):
                a.e(f's_add_u32 m0, s26, {KVBUF + 1024 * i}')
                a.e(f'buffer_load_dwordx4 v{V}, s[40:43], s{66 + i} offen lds')
        elif part == 1:
            for nt in range(5):
                for j in range(2):
                    if nt < 4:
                        a.e(f'ds_read_b64_tr_b16 {vr(F + 4 * nt + 2 * j, 2)}, v{V + 1} offset:{64 * (nt // 2) + 8 * (nt % 2) + 1024 * j}')
                    else:
                        a.e(f'ds_read_b64_tr_b16 {vr(F + 4 * nt + 2 * j, 2)}, v{V + 2} offset:{128 + 1024 * j}')
            a.e('s_mul_i32 s44, s64, 90')
            a.e('s_add_u32 s44, s44, s65')
            a.e('s_mul_i32 s44, s44, 4608')
            a.e(f's_add_u32 s44, s44, {W3_OFF}')
            a.e('s_waitcnt lgkmcnt(0)')
            for nt in range(4):
                a.e(f'buffer_store_dwordx4 {vr(F + 4 * nt, 4)}, v10, s[12:15], s44 offen offset:{1024 * nt} {SC}')
            a.e('s_mov_b32 exec_lo, 0x00ff00ff')
            a.e('s_mov_b32 exec_hi, 0x00ff00ff')
            a.e(f'buffer_store_dwordx4 {vr(F + 16, 4)}, v{V + 3}, s[12:15], s44 offen {SC}')
            a.e('s_mov_b64 exec, -1')
        else:
            a.e('s_lshl_b32 s44, s64, 7')
            a.e('s_add_u32 s44, s44, s65')
            a.e('s_lshl_b32 s44, s44, 2')
            a.e(f's_add_u32 s44, s44, {FW3_OFF}')
            set_flag(a, 44, V + 4)

    def issue_kv(self, buf_s=None, buf=None, flags=''):
        a = self.a
        for g in range(3):
            if buf_s is not None:
                a.e(f's_add_u32 m0, s{buf_s}, {4096 * g}')
            else:
                a.e(f's_add_u32 m0, s31, {buf * KVBUF + 4096 * g}')
            for i in range(4 if g < 2 else 2):
                a.vm(f'buffer_load_dwordx4 v15, s[12:15], s30 offen offset:{1024 * i} {flags} lds', 'kv')
            a.e('s_add_u32 s30, s30, 4096')
        a.e(f's_add_u32 s30, s30, {16 * KV_TILE - 3 * 4096}')

    def q_phase(self):
        a = self.a
        a.e('s_mov_b32 s31, s26')
        a.e('v_add_u32 v15, s31, v10')
        a.e(f's_mov_b32 s30, {KV_OFF}')
        l = a.newlabel('KVR')
        a.e('s_cmp_lg_u32 s20, 0')
        a.e(f's_cbranch_scc1 {l}')
        self.nonce()
        a.e('v_mov_b32 v4, s62')
        a.e('ds_write_b32 v2, v4')
        a.e('s_lshl_b32 s44, s3, 7')
        a.e(f's_add_u32 s44, s44, {GO_OFF}')
        a.e('v_and_b32 v2, 3, v1')
        a.e('v_lshlrev_b32 v2, 2, v2')
        poll(a, lambda: a.e(f'buffer_load_dword v40, v2, s[12:15], s44 offen {SC}'), [40], 42, sleep=8)
        a.e('s_and_b32 s44, s3, 7')
        a.e('s_lshl_b32 s44, s44, 9')
        a.e(f's_add_u32 s44, s44, {KVF_OFF}')
        a.e('v_min_u32 v2, 47, v1')
        a.e('v_lshlrev_b32 v2, 3, v2')
        poll(a, lambda: a.e(f'buffer_load_dwordx2 v[40:41], v2, s[12:15], s44 offen {SC}'), [40, 41], 42, sleep=opt('ksl', [6])[0])
        a.e('s_waitcnt lgkmcnt(0)')
        a.label(l)
        a.e('s_barrier')
        a.e('v_mov_b32 v2, 0')
        a.e('ds_read_b32 v40, v2')
        stamp(a, 6)
        a.vmq = []
        a.e('s_lshl_b32 s44, s23, 3')
        a.e('s_add_u32 s44, s44, s22')
        a.e('s_mul_i32 s44, s44, 2304')
        a.e(f's_add_u32 s44, s44, {QF_OFF}')
        a.e('v_and_b32 v11, 31, v1')
        a.e('v_lshlrev_b32 v11, 2, v11')
        a.e('v_add_u32 v11, 1024, v11')
        for p in range(2):
            a.vm(f'buffer_load_dwordx4 {vr(self.QF + 8 * p, 4)}, v10, s[12:15], s44 offen offset:{1152 * p} {SCL}', 'q')
            a.vm(f'buffer_load_dword v{self.PF + p}, v11, s[12:15], s44 offen offset:{1152 * p} {SCL}', 'q')
        self.issue_kv(buf=1, flags=SCL)
        a.e('s_waitcnt lgkmcnt(0)')
        a.e('s_barrier')
        self.issue_kv(buf=0, flags=SCL)
        for p in range(2):
            for i in (5, 6, 7):
                a.e(f'v_mov_b32 v{self.QF + 8 * p + i}, 0')
            a.e(f'v_mov_b32 v{self.KF + 8 * p + 5}, 0x3f803f80')
            a.e(f'v_mov_b32 v{self.KF + 8 * p + 6}, 0x3f803f80')
            a.e(f'v_mov_b32 v{self.KF + 8 * p + 7}, 0')
        a.e('v_lshrrev_b32 v2, 5, v1')
        a.e('v_lshlrev_b32 v2, 2, v2')
        a.e('v_bfe_u32 v4, v1, 3, 1')
        a.e('v_lshl_add_u32 v2, v4, 1, v2')
        a.e('v_mul_u32_u24 v12, 168, v2')
        a.e('v_add_u32 v12, 1152, v12')
        a.e('v_bfe_u32 v4, v1, 4, 1')
        a.e('v_bfe_u32 v13, v1, 2, 1')
        a.e('v_mul_u32_u24 v14, 168, v4')
        a.e('v_add_u32 v14, v14, v12')
        a.e('v_and_b32 v8, 1, v1')
        a.e('v_lshl_add_u32 v8, v8, 1, v13')
        a.e('v_lshl_add_u32 v8, v8, 3, v14')
        a.e('v_add_u32 v8, 128, v8')
        a.e('v_add_u32 v9, 160, v14')
        a.e('v_and_b32 v2, 2, v1')
        a.e('v_cmp_eq_u32 vcc, 0, v2')
        a.e(f'v_cndmask_b32 v{self.TB}, v9, v8, vcc')
        a.e(f'v_cndmask_b32 v{self.TB + 1}, v8, v9, vcc')
        a.e('v_lshl_add_u32 v2, v4, 1, v13')
        a.e('v_lshl_add_u32 v12, v2, 5, v12')
        a.e('v_and_b32 v2, 3, v1')
        a.e('v_lshl_add_u32 v12, v2, 3, v12')
        a.e('v_mul_u32_u24 v14, 0xaaaa, v13')
        a.e('v_add_u32 v14, 0x4444, v14')
        a.e('v_mul_u32_u24 v13, 0xaaaa, v4')
        a.e('v_add_u32 v13, 0x4444, v13')
        a.e('s_waitcnt lgkmcnt(0)')
        a.e('v_readfirstlane_b32 s62, v40')
        a.wait_vm('q')
        a.e('v_cmp_gt_u32 vcc, 32, v1')
        for p in range(2):
            a.e(f'v_cndmask_b32 v{self.QF + 8 * p + 4}, 0, v{self.PF + p}, vcc')

    def readK(self, j):
        a = self.a
        b = self.KF + 8 * (j % 2)
        off = (j % 16) * KV_TILE
        a.lg(f'ds_read_b128 {vr(b, 4)}, v5 offset:{off}', ('K', j))
        a.lg(f'ds_read_b32 v{b + 4}, v6 offset:{off}', ('K', j))

    def readV(self, j, m):
        a = self.a
        b = self.VF + 8 * (j % 2)
        off = (j % 16) * KV_TILE
        for jj in range(2):
            if m == 0:
                a.lg(f'ds_read_b64_tr_b16 {vr(b + 2 * jj, 2)}, v7 offset:{off + jj * 168}', ('V', j))
            else:
                a.lg(f'ds_read_b64_tr_b16 {vr(b + 4 + 2 * jj, 2)}, v{self.TB + 2 + jj} offset:{off}', ('V', j))

    def S(self, n, part):
        j, qt = n // 2, n % 2
        d = vr(self.SB + 16 * (n % 2), 16)
        k = self.KF + 8 * (j % 2) + 4 * part
        q = self.QF + 8 * qt + 4 * part
        self.a.e(f'v_mfma_f32_32x32x16_bf16 {d}, {vr(k, 4)}, {vr(q, 4)}, {"0" if part == 0 else d}')

    def PV(self, n, m):
        j, qt = n // 2, n % 2
        p = vr(self.P2 + 8 * qt, 8)
        v = vr(self.VF + 8 * (j % 2) + 4 * m, 4)
        if m == 0:
            self.a.e(f'v_smfmac_f32_32x32x32_bf16 {vr(self.OB + 16 * qt, 16)}, {v}, {p}, v13')
        else:
            self.a.e(f'v_smfmac_f32_16x16x64_bf16 {vr(self.PF + 4 * qt, 4)}, {v}, {p}, v14')

    def set_m(self, qt, vm, add):
        a = self.a
        q = self.QF + 8 * qt
        a.e(f'v_sub_f32 v2, {hx(-add)}, v{vm}')
        a.e('v_and_b32 v4, 0xffff0000, v2')
        a.e('v_sub_f32 v2, v2, v4')
        a.e(f'v_and_b32 v{self.TB + 4}, 0xffff0000, v2')
        a.e(f'v_sub_f32 v2, v2, v{self.TB + 4}')
        a.e('v_lshrrev_b32 v4, 16, v4')
        a.e(f'v_or_b32 v4, v4, v{self.TB + 4}')
        a.e('v_lshrrev_b32 v2, 16, v2')
        a.e('v_cmp_gt_u32 vcc, 32, v1')
        a.e(f'v_cndmask_b32 v{q + 5}, 0, v4, vcc')
        a.e(f'v_cndmask_b32 v{q + 6}, 0, v2, vcc')

    TB = 232
    P2 = 240

    def point(self, off):
        a = self.a
        for i in range(3):
            a.e(f'v_add_u32 v{5 + i}, {off}, v{10 + i}')
        for i in range(2):
            a.e(f'v_add_u32 v{self.TB + 2 + i}, {off}, v{self.TB + i}')

    def max16(self, b, dst, first):
        a = self.a
        if first:
            a.e(f'v_max3_f32 v{dst}, v{b}, v{b + 1}, v{b + 2}')
            a.e(f'v_max_f32 v{dst}, v{dst}, v{b + 3}')
            r = range(4, 16, 2)
        else:
            r = range(0, 16, 2)
        for i in r:
            a.e(f'v_max3_f32 v{dst}, v{b + i}, v{b + i + 1}, v{dst}')

    def halves_max(self, r):
        a = self.a
        a.e(f'v_mov_b32 v2, v{r}')
        a.e(f'v_permlane32_swap_b32 v{r}, v2')
        a.e(f'v_max_f32 v{r}, v{r}, v2')

    def main(self, flags=''):
        a = self.a
        L_PASS = a.newlabel('ATT_PASS')
        L_LOOP = a.newlabel('ATT_LOOP')
        L_NOKV = a.newlabel('ATT_NOKV')
        L_FIN = a.newlabel('ATT_FIN')
        a.e('s_mov_b32 s33, 0')
        a.e('s_mov_b32 s39, 0')
        self.point(KVBUF)
        a.e('s_waitcnt vmcnt(10)')
        a.vmq = a.vmq[-10:]
        a.e('s_barrier')
        self.mark_part(0, 3)
        self.readK(0)
        a.wait_lg0()
        for qt in range(2):
            self.S(qt, 0)
            self.S(qt, 1)
        for qt in range(2):
            self.max16(self.SB + 16 * qt, 8 + qt, True)
            self.halves_max(8 + qt)
            self.set_m(qt, 8 + qt, float(opt('moff', [M_OFFSET])[0]))
        a.label(L_PASS)
        self.readK(0)
        self.readK(1)
        self.readV(0, 0)
        self.readV(0, 1)
        for i in range(32):
            a.e(f'v_mov_b32 v{self.OB + i}, 0')
        for i in range(8):
            a.e(f'v_mov_b32 v{self.PF + i}, 0')
            a.e(f'v_mov_b32 v{self.P2 + 8 + i}, 0')
            a.e(f'v_mov_b32 v{self.VF + 8 + i}, 0')
        a.e('s_mov_b32 s34, 0')
        a.e(f's_add_u32 s35, s31, {KVBUF}')
        a.e(f's_mov_b32 s37, {-KVBUF & 0xffffffff}')
        a.wait_lg0()
        self.S(0, 0)
        self.S(0, 1)
        a.e('s_nop 7')
        a.label(L_LOOP)
        a.wait_lg0()
        if opt('gate'):
            lng = a.newlabel('ATT_NG')
            a.e(f's_cmp_lg_u32 s34, {opt("gate")[0]}')
            a.e(f's_cbranch_scc1 {lng}')
            a.e('s_lshl_b32 s44, s3, 7')
            a.e(f's_add_u32 s44, s44, {PROG_OFF}')
            a.e('v_mov_b32 v2, 0')
            poll(a, lambda: a.e(f'buffer_load_dword v4, v2, s[12:15], s44 offen {SC}'), [4], 8, sleep=8)
            if 'gateprio' in ABL:
                a.e('s_setprio 1')
            a.label(lng)
        if 'attfine' in ABL:
            for c, idx in ((1, 4), (2, 5), (3, 1)):
                lq = a.newlabel('ATT_Q')
                a.e(f's_cmp_lg_u32 s34, {c}')
                a.e(f's_cbranch_scc1 {lq}')
                stamp(a, idx)
                a.label(lq)
        if True:
            lp = a.newlabel('ATT_P')
            a.e(f's_cmp_lg_u32 s34, {opt("aprio", [3])[0]}')
            a.e(f's_cbranch_scc1 {lp}')
            a.e('s_setprio 1')
            a.label(lp)
        for n in range(32):
            j, qt = n // 2, n % 2
            sb = self.SB + 16 * (n % 2)
            if n == 29:
                a.e('s_waitcnt vmcnt(0) lgkmcnt(0)')
                a.vmq = []
                a.lgq = []
                a.e('s_barrier')
                for r in (5, 6, 7, self.TB + 2, self.TB + 3):
                    a.e(f'v_add_u32 v{r}, s37, v{r}')
                a.e('s_cmp_ge_u32 s34, 2')
                a.e(f's_cbranch_scc1 {L_NOKV}')
                ls0 = a.newlabel('ATT_S0')
                a.e('s_cmp_eq_u32 s39, 0')
                a.e(f's_cbranch_scc1 {ls0}')
                self.issue_kv(buf_s=35, flags=flags)
                a.e(f's_branch {L_NOKV}')
                a.label(ls0)
                self.side(0)
                a.e('s_mov_b32 s39, 1')
                a.label(L_NOKV)
                self.gate_load()
                a.e('s_add_u32 s35, s35, s37')
                a.e('s_sub_u32 s37, 0, s37')
            SJ = opt('sj', [8, 1, 12, 16, 20, 26])
            if n in opt('mp', [3, 9, 15, 21, 27]):
                lm = a.newlabel('ATT_M')
                a.e('s_cmp_ge_u32 s54, s55')
                a.e(f's_cbranch_scc1 {lm}')
                self.mark_part(3, 4)
                a.label(lm)
            if n == SJ[0]:
                ls1 = a.newlabel('ATT_S1')
                a.e('s_cmp_lg_u32 s39, 1')
                a.e(f's_cbranch_scc1 {ls1}')
                a.e('s_waitcnt vmcnt(0)')
                self.side(1)
                self.issue_kv(buf=1, flags=flags)
                a.e('s_mov_b32 s39, 2')
                a.label(ls1)
            if n == SJ[5]:
                ls2 = a.newlabel('ATT_S2')
                a.e('s_cmp_lg_u32 s39, 2')
                a.e(f's_cbranch_scc1 {ls2}')
                a.e('s_waitcnt vmcnt(0)')
                self.side(2)
                a.e('s_mov_b32 s39, 3')
                a.label(ls2)
            if qt == 1:
                a.wait_lg(('K', j + 1))
            self.S(n + 1, 0)
            pf = self.P2 + 8 * qt
            for i in range(0, 4):
                a.e(f'v_exp_f32 v{sb + i}, v{sb + i}')
            if qt == 1:
                a.wait_lg(('V', j))
            self.PV(n - 1, 0)
            if qt == 0:
                self.readV(j + 1, 0)
            else:
                self.readK(j + 2)
            for i in range(4, 8):
                a.e(f'v_exp_f32 v{sb + i}, v{sb + i}')
            self.S(n + 1, 1)
            for i in range(4):
                a.e(f'v_cvt_pk_bf16_f32 v{pf + i}, v{sb + 2 * i}, v{sb + 2 * i + 1}')
            for i in range(8, 12):
                a.e(f'v_exp_f32 v{sb + i}, v{sb + i}')
            self.PV(n - 1, 1)
            if qt == 0:
                self.readV(j + 1, 1)
            for i in range(12, 16):
                a.e(f'v_exp_f32 v{sb + i}, v{sb + i}')
            for i in range(4, 8):
                a.e(f'v_cvt_pk_bf16_f32 v{pf + i}, v{sb + 2 * i}, v{sb + 2 * i + 1}')
        a.e('s_add_u32 s34, s34, 1')
        a.e('s_cmp_lt_u32 s34, 4')
        a.e(f's_cbranch_scc1 {L_LOOP}')
        self.PV(31, 0)
        self.PV(31, 1)
        a.wait_all()
        a.e('s_cmp_lg_u32 s33, 0')
        a.e(f's_cbranch_scc1 {L_FIN}')
        regs = [self.OB + i for i in range(32)] + [self.PF + i for i in (0, 1, 2, 4, 5, 6)]
        a.e(f'v_max_f32_e64 v2, |v{regs[0]}|, |v{regs[1]}|')
        for i in range(2, len(regs), 2):
            a.e(f'v_max3_f32 v2, |v{regs[i]}|, |v{regs[i + 1]}|, v2')
        a.e(f's_mov_b32 s44, {hx(2.0 ** 110)}')
        a.e('v_cmp_ngt_f32 vcc, s44, v2')
        a.e(f'v_add_f32 v4, v{self.PF + 2}, v{self.PF + 6}')
        a.e('v_cmp_u_f32 s[46:47], v4, v4')
        a.e('s_or_b64 vcc, vcc, s[46:47]')
        a.e('s_cmp_lg_u64 vcc, 0')
        a.e('s_cselect_b32 s44, 1, 0')
        a.e('v_mov_b32 v2, s44')
        a.e('s_lshl_b32 s45, s20, 2')
        a.e(f's_add_u32 s45, s45, {16 * KV_TILE}')
        a.e('v_mov_b32 v4, s45')
        a.e('ds_write_b32 v4, v2')
        a.e(f'v_mov_b32 v4, {16 * KV_TILE}')
        a.e('s_waitcnt lgkmcnt(0)')
        a.e('s_barrier')
        a.e(f'ds_read_b128 {vr(self.P2, 4)}, v4')
        a.e('s_waitcnt lgkmcnt(0)')
        a.e(f'v_or3_b32 v2, v{self.P2}, v{self.P2 + 1}, v{self.P2 + 2}')
        a.e(f'v_or_b32 v2, v2, v{self.P2 + 3}')
        a.e('v_readfirstlane_b32 s44, v2')
        a.e('s_cmp_eq_u32 s44, 0')
        a.e(f's_cbranch_scc1 {L_FIN}')
        L_MC = a.newlabel('ATT_MC')
        L_MT = a.newlabel('ATT_MT')
        a.e('s_mov_b32 s33, 1')
        for p in range(2):
            a.e(f'v_mov_b32 v{self.QF + 8 * p + 5}, 0')
            a.e(f'v_mov_b32 v{self.QF + 8 * p + 6}, 0')
            a.e(f'v_mov_b32 v{8 + p}, 0xff7fffff')
        a.e(f's_mov_b32 s30, {KV_OFF}')
        a.e('s_mov_b32 s34, 0')
        a.label(L_MC)
        a.e('s_barrier')
        self.issue_kv(buf=0, flags=flags)
        a.e('v_mov_b32 v5, v10')
        a.e('v_mov_b32 v6, v11')
        a.e('s_mov_b32 s36, 0')
        a.wait_vm0()
        a.e('s_barrier')
        a.label(L_MT)
        self.readK(0)
        a.wait_lg0()
        for qt in range(2):
            self.S(qt, 0)
            self.S(qt, 1)
        a.e(f'v_add_u32 v5, {KV_TILE}, v5')
        a.e(f'v_add_u32 v6, {KV_TILE}, v6')
        for qt in range(2):
            self.max16(self.SB + 16 * qt, 8 + qt, False)
        a.e('s_add_u32 s36, s36, 1')
        a.e('s_cmp_lt_u32 s36, 16')
        a.e(f's_cbranch_scc1 {L_MT}')
        a.e('s_add_u32 s34, s34, 1')
        a.e('s_cmp_lt_u32 s34, 4')
        a.e(f's_cbranch_scc1 {L_MC}')
        for qt in range(2):
            self.halves_max(8 + qt)
            self.set_m(qt, 8 + qt, M_OFFSET)
        a.e('s_barrier')
        a.e(f's_mov_b32 s30, {KV_OFF}')
        self.issue_kv(buf=1, flags=flags)
        self.issue_kv(buf=0, flags=flags)
        self.point(KVBUF)
        a.e('s_waitcnt vmcnt(10)')
        a.e('s_barrier')
        a.e(f's_branch {L_PASS}')
        a.label(L_FIN)
        a.vmq = []
        a.lgq = []

    def mark(self):
        a = self.a
        a.e('s_mul_i32 s44, s23, 90')
        a.e('s_lshl_b32 s52, s22, 1')
        a.e('s_add_u32 s52, s52, s44')
        a.e('s_lshl_b32 s52, s52, 10')
        a.e(f's_add_u32 s52, s52, {UF_OFF}')
        a.e('s_lshr_b32 s53, s22, 2')
        a.e('s_add_u32 s53, s53, s44')
        a.e('s_lshl_b32 s53, s53, 10')
        a.e('s_and_b32 s47, s22, 3')
        a.e('s_lshl_b32 s47, s47, 8')
        a.e('s_add_u32 s53, s53, s47')
        a.e(f's_add_u32 s53, s53, {UF_OFF + 16 * 1024}')
        a.e('s_mul_i32 s54, s22, 9')
        a.e('s_add_u32 s54, s54, s44')
        a.e('s_lshl_b32 s54, s54, 10')
        a.e(f's_add_u32 s54, s54, {UF_OFF + 18 * 1024}')
        a.e(f's_add_u32 s55, s54, {9 * 1024}')
        for i in range(4):
            a.e(f'v_mov_b32 v{224 + i}, -1')
        a.e('v_lshlrev_b32 v228, 2, v1')
        if opt('tp'):
            a.e('s_lshl_b32 s44, s24, 8')
            a.e('s_and_b32 s45, s22, 4')
            a.e('s_lshl_b32 s45, s45, 5')
            a.e('s_add_u32 s44, s44, s45')
            a.e('s_add_u32 s44, s44, s27')
            a.e('s_lshl_b32 s44, s44, 13')
            a.e(f'v_min_u32 v229, {64 // len(opt("tp")) - 1}, v1')
            a.e('v_lshlrev_b32 v229, 7, v229')
            a.e('v_add_u32 v229, s44, v229')

    def mark_part(self, lo, hi):
        a = self.a
        if 'nomark' in ABL:
            return
        for i in range(lo, hi):
            if i < 2:
                a.e(f'buffer_store_dwordx4 v[224:227], v10, s[12:15], s52 offen offset:{1024 * i} {SC}')
            elif i == 2:
                a.e(f'buffer_store_dword v224, v228, s[12:15], s53 offen {SC}')
            else:
                a.e(f'buffer_store_dwordx4 v[224:227], v10, s[12:15], s54 offen {SC}')
                a.e('s_add_u32 s54, s54, 1024')

    def mark_flag(self):
        a = self.a
        a.e('s_lshl_b32 s44, s23, 3')
        a.e('s_add_u32 s44, s44, s22')
        a.e('s_lshl_b32 s44, s44, 2')
        a.e(f's_add_u32 s44, s44, {PZ_OFF}')
        set_flag(a, 44, 230)

    def epilogue(self, flags=''):
        a = self.a
        a.e('v_and_b32 v4, 15, v1')
        a.e('v_lshlrev_b32 v4, 4, v4')
        a.e('v_lshrrev_b32 v5, 5, v1')
        a.e('v_lshl_add_u32 v4, v5, 2, v4')
        poll(a, self.gate_load, [self.XF + 1], 8, first_done=True)
        a.e('v_and_b32 v5, 16, v1')
        a.e('v_cmp_eq_u32 vcc, 0, v5')
        for qt in range(2):
            o = self.OB + 16 * qt
            t = self.PF + 4 * qt
            c = self.P2
            for i in range(3):
                a.e(f'v_mov_b32 v{c + i}, v{t + i}')
            for i in range(3):
                a.e(f'v_permlane16_swap_b32 v{t + i}, v{c + i}')
            for i in range(3):
                a.e(f'v_add_f32 v{t + i}, v{t + i}, v{c + i}')
            a.e(f'v_rcp_f32 v6, v{t + 2}')
            a.e(f'v_mul_f32 v6, v6, v{self.XF}')
            a.e(f'v_pk_mul_f32 {vr(t, 2)}, {vr(t, 2)}, v[6:7] op_sel_hi:[1,0]')
            a.e('v_mov_b32 v7, v6')
            a.e('v_permlane32_swap_b32 v6, v7')
            a.e('v_cndmask_b32 v6, v7, v6, vcc')
            for i in range(4):
                a.e(f'v_pk_add_f32 {vr(o + 2 * i, 2)}, {vr(o + 2 * i, 2)}, {vr(o + 8 + 2 * i, 2)}')
            for i in range(4):
                a.e(f'v_pk_mul_f32 {vr(o + 2 * i, 2)}, {vr(o + 2 * i, 2)}, v[6:7] op_sel_hi:[1,0]')
            pk = self.SB + 8 * qt
            for i in range(4):
                a.e(f'v_cvt_pk_bf16_f32 v{pk + i}, v{o + 2 * i}, v{o + 2 * i + 1}')
            a.e(f'v_cvt_pk_bf16_f32 v{pk + 4}, v{t}, v{t + 1}')
            for i in range(5):
                a.e(f'v_min_u32 v{pk + i}, -2, v{pk + i}')
            a.e(f'buffer_store_dwordx4 {vr(pk, 4)}, v10, s[12:15], s52 offen offset:{1024 * qt} {flags}')
            a.e('s_mov_b32 exec_lo, 0xffff')
            a.e('s_mov_b32 exec_hi, 0xffff')
            a.e(f'buffer_store_dword v{pk + 4}, v4, s[12:15], s53 offen offset:{8 * qt} {flags}')
            a.e('s_mov_b64 exec, -1')

    def gate_load(self):
        a = self.a
        a.e(f's_mov_b32 s38, {GATE_OFF}')
        a.e(f'buffer_load_dwordx2 {vr(self.XF, 2)}, v3, s[12:15], s38 offen {SC}')


def p3_pre(a):
    a.e('s_and_b32 s44, s22, 1')
    a.e('s_lshl_b32 s66, s21, 1')
    a.e('s_add_u32 s66, s66, s44')
    a.e('s_lshr_b32 s67, s22, 1')
    a.e('s_lshl_b32 s68, s21, 8')
    a.e(f's_add_u32 s68, s68, {PZ_OFF}')
    a.e('s_lshl_b32 s69, s67, 9')
    a.e(f's_add_u32 s69, s69, {FW3_OFF}')
    a.e('v_lshlrev_b32 v7, 2, v1')
    a.e('v_min_u32 v8, 44, v1')
    a.e('v_lshlrev_b32 v8, 3, v8')
    p3_flags(a)
    a.vmq += ['pre', 'pre']


def p3_flags(a):
    a.e(f'buffer_load_dword v4, v7, s[12:15], s68 offen {SC}')
    a.e(f'buffer_load_dwordx2 v[2:3], v8, s[12:15], s69 offen {SC}')


def p3(a):
    ACC = 16
    FR = 112
    HF = 240
    DEPTH = 4
    NS = 23
    a.e('s_mul_i32 s44, s20, 18')
    a.e('s_add_u32 s44, s44, 18')
    a.e('s_mul_i32 s45, s20, 5')
    a.e('s_cmp_eq_u32 s20, 3')
    a.e('s_cselect_b32 s46, 1, 0')
    a.e('s_sub_u32 s45, s45, s46')
    a.e('s_mul_i32 s46, s67, 90')
    a.e('s_add_u32 s25, s44, s46')
    a.e('s_mul_i32 s25, s25, 4608')
    a.e(f's_add_u32 s25, s25, {W3_OFF}')
    a.e('s_add_u32 s31, s45, s46')
    a.e('s_mul_i32 s31, s31, 4608')
    a.e(f's_add_u32 s31, s31, {W3_OFF}')
    a.e('v_lshrrev_b32 v6, 4, v1')
    a.e('v_lshlrev_b32 v6, 3, v6')
    a.e('v_and_b32 v9, 7, v1')
    a.e('v_add_u32 v6, v6, v9')
    a.e('v_lshlrev_b32 v6, 4, v6')
    a.e('v_bfe_u32 v9, v1, 3, 1')
    a.e('v_mul_u32_u24 v9, 4608, v9')
    a.e('v_add_u32 v6, v6, v9')
    a.e('v_add_u32 v6, 4096, v6')
    a.e('v_mov_b32 v12, v19')

    def loadW(k):
        b = FR + 32 * (k % DEPTH)
        if k == 18:
            a.e('s_mov_b32 s25, s31')
        for nt in range(4):
            a.vm(f'buffer_load_dwordx4 {vr(b + 4 * nt, 4)}, v12, s[12:15], s25 offen offset:{1024 * nt} {SCL}', ('W', k))
        if k % 2 == 0:
            a.vm(f'buffer_load_dwordx4 {vr(HF + 4 * ((k // 2) % 3), 4)}, v6, s[12:15], s25 offen {SCL}', ('W', k))
        a.e('s_add_u32 s25, s25, 4608')

    def loadF(k, track=True):
        b = FR + 32 * (k % DEPTH)
        a.e(f's_add_u32 s24, s{28 if k < 18 else 30}, {1024 * (k if k < 18 else k - 18)}')
        for i in range(4):
            t = f'buffer_load_dwordx4 {vr(b + 16 + 4 * i, 4)}, v{2 + i}, s[12:15], s24 offen {SCL}'
            a.vm(t, ('F', k)) if track else a.e(t)
    for k in range(opt('wpre', [2])[0]):
        loadW(k)
    a.e('s_mul_i32 s46, s66, 360')
    a.e('s_add_u32 s28, s44, s46')
    a.e('s_lshl_b32 s28, s28, 10')
    a.e(f's_add_u32 s28, s28, {UF_OFF}')
    a.e('s_add_u32 s30, s45, s46')
    a.e('s_lshl_b32 s30, s30, 10')
    a.e(f's_add_u32 s30, s30, {UF_OFF}')
    for i in range(4):
        a.e(f's_add_u32 s44, s20, {i}')
        a.e('s_and_b32 s44, s44, 3')
        a.e('s_mul_i32 s44, s44, 92160')
        a.e(f'v_add_u32 v{2 + i}, s44, v12')
    a.e('s_mov_b32 s8, s64')
    a.e('s_mov_b32 s9, s65')
    srd(a, 8, 2048 * 1152)
    a.e(f's_mov_b32 s51, {SPIN_MAX}')
    a.wait_vm('st')
    for k in range(DEPTH):
        if k >= opt('wpre', [2])[0]:
            loadW(k)
        loadF(k)
    stamp(a, 5)
    a.e(f's_setprio {opt("pg", PG)[2]}')
    lskip = a.newlabel('P3_SKIP')
    for k in range(NS):
        b = FR + 32 * (k % DEPTH)
        if k == NS - 1:
            a.e('s_cmp_ge_u32 s20, 2')
            a.e(f's_cbranch_scc1 {lskip}')
            a.wait_vm0()
        a.wait_vm(('F', k))
        lc = a.newlabel('P3_C')
        lok = a.newlabel('P3_OK')
        a.label(lc)
        a.e(f'v_max3_u32 v9, v{b + 16}, v{b + 17}, v{b + 18}')
        a.e(f'v_max3_u32 v10, v{b + 19}, v{b + 20}, v{b + 21}')
        for i in range(22, 32, 4):
            a.e(f'v_max3_u32 v9, v{b + i}, v{b + i + 1}, v9')
            if i + 2 < 32:
                a.e(f'v_max3_u32 v10, v{b + i + 2}, v{b + i + 3}, v10')
        a.e('v_max_u32 v9, v9, v10')
        a.e('v_cmp_eq_u32 vcc, -1, v9')
        a.e(f's_cbranch_vccz {lok}')
        a.e(f's_sleep {opt("psl", [4])[0]}')
        loadF(k, False)
        a.e('s_waitcnt vmcnt(0)')
        a.e('s_sub_u32 s51, s51, 1')
        a.e('s_cmp_lt_i32 s51, 1')
        a.e(f's_cbranch_scc0 {lc}')
        a.label(lok)
        hf = HF + 4 * ((k // 2) % 3)
        for i in range(4):
            for nt in range(5):
                n2 = nt if nt < 4 else 4 + k % 2
                d = vr(ACC + 16 * n2 + 4 * i, 4)
                first = k == 0 or (nt == 4 and k == 1)
                a.e(f'v_mfma_f32_16x16x32_bf16 {d}, {vr(b + 4 * nt, 4) if nt < 4 else vr(hf, 4)}, {vr(b + 16 + 4 * i, 4)}, {"0" if first else d}')
        kn = k + DEPTH
        if kn == NS - 1:
            ls = a.newlabel('P3_NL')
            a.e('s_cmp_ge_u32 s20, 2')
            a.e(f's_cbranch_scc1 {ls}')
            q1 = list(a.vmq)
            loadW(kn)
            loadF(kn)
            a.vmq = q1
            a.label(ls)
        elif kn < NS:
            loadW(kn)
            loadF(kn)
    a.label(lskip)
    a.e('s_nop 7')
    stamp(a, 6)
    a.e('s_mov_b32 exec_lo, 0')
    for i in range(16):
        a.e(f'v_mov_b32 v{ACC + 64 + i}, v{ACC + 80 + i}')
    a.e('s_mov_b64 exec, -1')
    for i in range(1, 4):
        a.e(f's_add_u32 s44, s20, {i}')
        a.e('s_and_b32 s44, s44, 3')
        a.e('s_mul_i32 s44, s44, 15360')
        a.e(f'v_add_u32 v{8 + i}, s44, v12')
        for nt in range(5):
            a.lg(f'ds_write_b128 v{8 + i}, {vr(ACC + 16 * nt + 4 * i, 4)} offset:{5120 * (i - 1) + 1024 * nt}', 'w')
    a.e('s_mul_i32 s26, s20, 15360')
    a.e('v_add_u32 v8, s26, v12')
    a.e('s_lshl_b32 s27, s66, 6')
    a.e('s_lshr_b32 s28, s20, 1')
    a.e('s_lshl_b32 s28, s28, 5')
    a.e('s_add_u32 s27, s27, s28')
    a.e('s_and_b32 s28, s20, 1')
    a.e('s_lshl_b32 s28, s28, 2')
    a.e('s_add_u32 s27, s27, s28')
    a.e('v_bfe_u32 v13, v1, 2, 2')
    a.e('v_lshlrev_b32 v13, 3, v13')
    a.e('v_and_b32 v14, 3, v1')
    a.e('v_add3_u32 v13, v13, v14, s27')
    a.e('v_mul_u32_u24 v13, 1152, v13')
    a.e('v_lshrrev_b32 v14, 4, v1')
    a.e('v_lshl_add_u32 v15, v14, 3, v13')
    a.e('v_lshl_add_u32 v13, v14, 4, v13')
    a.e('s_mul_i32 s27, s67, 144')
    a.wait_all()
    a.e('s_barrier')
    for nt in range(5):
        for i in range(3):
            a.lg(f'ds_read_b128 {vr(FR + 12 * nt + 4 * i, 4)}, v8 offset:{5120 * i + 1024 * nt}', ('r', nt))
    PKB = FR + 64
    OSC = 'sc1' if 'osc1' in ABL else 'nt' if 'ont' in ABL else ''
    for nt in range(5):
        a.wait_lg(('r', nt))
        b = FR + 12 * nt
        o = ACC + 16 * nt
        for h in range(2):
            a.e(f'v_pk_add_f32 {vr(b + 2 * h, 2)}, {vr(b + 2 * h, 2)}, {vr(b + 4 + 2 * h, 2)}')
            a.e(f'v_pk_add_f32 {vr(o + 2 * h, 2)}, {vr(o + 2 * h, 2)}, {vr(b + 8 + 2 * h, 2)}')
        for h in range(2):
            a.e(f'v_pk_add_f32 {vr(b + 2 * h, 2)}, {vr(b + 2 * h, 2)}, {vr(o + 2 * h, 2)}')
        if nt == 4:
            for r in range(4):
                a.e(f'v_mov_b32 v{o + r}, v{b + r}')
            for r in range(4):
                a.e(f'v_permlane32_swap_b32 v{b + r}, v{o + r}')
            for h in range(2):
                a.e(f'v_pk_add_f32 {vr(b + 2 * h, 2)}, {vr(b + 2 * h, 2)}, {vr(o + 2 * h, 2)}')
        for h in range(2):
            a.e(f'v_cvt_pk_bf16_f32 v{PKB + 2 * nt + h}, v{b + 2 * h}, v{b + 2 * h + 1}')
        if nt in (1, 3):
            a.e(f'buffer_store_dwordx4 {vr(PKB + 2 * nt - 2, 4)}, v13, s[8:11], s27 offen offset:{64 * (nt // 2)} {OSC}')
        if nt == 4:
            a.e('s_mov_b32 exec_hi, 0')
            a.e(f'buffer_store_dwordx2 {vr(PKB + 8, 2)}, v15, s[8:11], s27 offen offset:128 {OSC}')
            a.e('s_mov_b64 exec, -1')


def kernel_text(name, a, vgpr=256, sgpr=96):
    a.fix_hazards()
    mv, ms, ma = a.max_regs()
    assert mv <= vgpr and ms <= sgpr and ma == 0, (mv, ms, ma)
    body = f'.globl {name}\n.p2align 8\n.type {name},@function\n{name}:\n' + a.text()
    desc = f""".p2align 6
.amdhsa_kernel {name}
  .amdhsa_next_free_vgpr {vgpr}
  .amdhsa_next_free_sgpr {sgpr}
  .amdhsa_accum_offset {(vgpr + 3) // 4 * 4}
  .amdhsa_group_segment_fixed_size 0
  .amdhsa_kernarg_size 112
  .amdhsa_user_sgpr_count 2
  .amdhsa_user_sgpr_kernarg_segment_ptr 1
  .amdhsa_system_sgpr_workgroup_id_x 1
.end_amdhsa_kernel
"""
    return body, desc


def build_file(kernels):
    hdr = open('cdna_kernels/' + NAME + '.s.ref').read().split('\n')
    head = [l for l in hdr if l.startswith(';') and '@launch' not in l and 'Override' not in l and 'grid=ceil' not in l]
    head = head[:15]
    out = '\n'.join(head) + '\n'
    for name, a, grid, block, lds, vgpr in kernels:
        kn = f'kernel={name} ' if (len(kernels) > 1 or LIST) else ''
        out += f'; @launch {kn}grid=({grid},1,1) block=({block},1,1) lds={lds}\n'
    out += '.amdgcn_target "amdgcn-amd-amdhsa--gfx950"\n.text\n'
    out += f'.set CODE_LINES, (K_END - {NAME}_kernel) / 128 - 4\n'
    descs = ''
    for name, a, grid, block, lds, vgpr in kernels:
        b, d = kernel_text(name, a, vgpr)
        out += b
        descs += d
    out += '.section .rodata,"a"\n' + descs
    return out


NG1, NG2 = 1, 3


def mega():
    a = Asm()
    a.e('s_cmp_ge_u32 s2, 512')
    a.e('s_cbranch_scc1 K_END')
    stamp(a, 0)
    a.e('s_cmp_lt_u32 s2, 256')
    a.e('s_cbranch_scc1 K_GEMM')
    a.e('s_sub_u32 s3, s2, 256')
    P = opt('pa', [0, 0])
    t = ATT(a)
    t.setup(3)
    write_nonce(a)
    if 'afine' in ABL:
        a.e('s_branch K_DONE')
    t.retile_setup()
    t.mark()
    stamp(a, 1)
    a.e(f's_setprio {P[0]}')
    t.q_phase()
    stamp(a, 2)
    a.e(f's_setprio {P[1]}')
    if 'noattmain' in ABL:
        for p in range(3):
            if p == 2:
                t.mark_part(0, 12)
            a.wait_all()
            t.side(p)
        t.gate_load()
        a.wait_all()
    else:
        t.main(flags=SCL)
    stamp(a, 3)
    a.e('s_setprio 3')
    t.epilogue(flags=SC)
    a.e('s_branch K_DONE')
    a.label('K_GEMM')
    a.vmq = []
    a.lgq = []
    g = GW(a)
    UB, UP = g.UB, g.UP
    g.limitA = UB
    g.setup()
    if 'afine' in ABL:
        stamp(a, 1)
    g.prologue_issue()
    if 'afine' in ABL:
        stamp(a, 2)
    g.setup2()
    if 'afine' in ABL:
        stamp(a, 3)
        g.hooks[0] = lambda: stamp(a, 4)
        g.hooks[6] = lambda: stamp(a, 5)
        g.hooks[12] = lambda: stamp(a, 6)

    def nonce_ld():
        a.e('v_mov_b32 v23, 0')
        a.vm(f'global_load_dword v24, v23, s[16:17] {SC}', 'nonce')
    g.hooks[21] = nonce_ld
    g.run_segment(0, UB)
    if 'afine' in ABL:
        a.e('s_branch K_DONE')
    stamp(a, 1)
    n1, n2 = opt('ng', [NG1, NG2])
    nb1 = opt('nb1', [8])[0]
    a.wait_vm('nonce')
    get_nonce(a, 23, 24)
    g.proj_store()
    g.limitA = UP
    a.vmq.append('pst')
    a.vmq.append('pst')
    a.e('s_barrier')
    for _ in range(g.R - 1):
        g.run(g.issueA())
    g.z2_gelu_publish()

    LF = 'lnfine' in ABL
    if LF:
        stamp(a, 2)
    g.run_segment(UB, nb1)
    if LF:
        stamp(a, 3)
    g.z2_gather_norm_store()
    stamp(a, 4 if LF else 2)
    a.e('s_lshl_b32 s49, s22, 9')
    a.e(f's_add_u32 s49, s49, {FZ_OFF}')
    a.e('s_lshl_b32 s48, s32, 7')
    a.e('s_add_u32 s48, s48, s49')
    a.e('s_and_b32 s50, s23, 15')
    a.e('s_lshl_b32 s50, s50, 2')
    a.e('s_add_u32 s48, s48, s50')
    a.e('s_and_b32 s50, s32, 2')
    a.e('s_lshl_b32 s50, s50, 7')
    a.e('s_add_u32 s50, s50, s49')
    a.e('v_and_b32 v29, 15, v1')
    a.e('v_lshlrev_b32 v29, 2, v29')
    a.e('v_lshrrev_b32 v23, 4, v1')
    a.e('v_lshl_add_u32 v23, v23, 7, v29')
    a.e('v_and_b32 v29, 0xff, v23')

    def zflag():
        a.wait_vm('st')
        set_flag(a, 48, 27)
    g.hooks[UB + nb1 + opt('zf', [4])[0]] = zflag
    g.run_segment(UB + nb1, 18 - nb1)
    if LF:
        stamp(a, 5)
    g.own_write()
    g.z1_gelu(range(0, n1))
    g.nextA = UP + 4
    g.run_segment(UP, 4, own=True)
    g.z1_gelu(range(n1, n2))
    if LF:
        stamp(a, 6)
    poll(a, lambda: a.e(f'buffer_load_dword v26, v29, s[12:15], s50 offen {SC}'), [26], 27)
    if LF:
        a.e('s_branch K_DONE')
    stamp(a, 3)
    g.limitA = len(g.units)
    a.e('s_barrier')
    for _ in range(g.R - 1):
        g.run(g.issueA())
    g.z1_gelu(range(n2, 9))
    g.hooks[UP + 58] = g.sp_pre

    def zall():
        a.e(f'buffer_load_dword v26, v23, s[12:15], s49 offen {SC}')

    def zall0():
        zall()
        a.vmq.append('zf')

    def zall1():
        a.wait_vm('zf')
        poll(a, zall, [26], 27, first_done=True)
    g.hooks[UP + 10] = zall0
    g.hooks[UP + 15] = zall1
    g.hooks[UP + 61] = lambda: p3_pre(a)
    if opt('gsw'):
        g.hooks[UP + opt('gsw')[0]] = lambda: a.e('s_setprio 0')

    if opt('gate'):
        def prog():
            a.e('s_lshl_b32 s44, s2, 7')
            a.e(f's_add_u32 s44, s44, {PROG_OFF}')
            set_flag(a, 44, 27)
        g.hooks[UP + opt('gate')[1]] = prog
    g.run_segment(UP + 4, 60)
    if 'p2fine' in ABL:
        a.e('s_branch K_DONE')
    stamp(a, 4)
    g.sp_epilogue()
    p3(a)
    a.label('K_DONE')
    stamp_flush(a, 0)
    a.label('K_END')
    a.e('s_endpgm')
    return (NAME + '_kernel', a, 512, 256, 81920, 256)


LIST = False
if __name__ == '__main__':
    if '--stamp' in sys.argv:
        STAMP = True
        sys.argv.remove('--stamp')
    if '--list' in sys.argv:
        LIST = True
        sys.argv.remove('--list')
    for x in list(sys.argv):
        if x.startswith('--abl='):
            ABL.update(x[6:].split(','))
            sys.argv.remove(x)
    out = sys.argv[1] if len(sys.argv) > 1 else 'out.s'
    open(out, 'w').write(build_file([mega()]))
    print('wrote', out)
```

```python
import sys, struct
from asmlib import Asm

NAME = 'gated_mix__grouped_kv_mqa__mixer_gmlp__prompt'

Z2_OFF = 0x10000
UF_OFF = Z2_OFF + 9437184
W3_OFF = UF_OFF + 11796480
KV_OFF = W3_OFF + 3317760
KV_TILE = 2496
GATE_OFF = KV_OFF + 160 * 1024
STATS_OFF = GATE_OFF + 16384
FLAG_OFF = STATS_OFF + 524288
FKV_OFF = FLAG_OFF
FW3_OFF = FLAG_OFF + 49152
FZ_OFF = FLAG_OFF + 4096
PZ_OFF = FLAG_OFF + 65536
PROG_OFF = FLAG_OFF + 16384
GO_OFF = FLAG_OFF + 98304
KVF_OFF = FLAG_OFF
QF_OFF = FLAG_OFF + 131072
SC = 'sc1' if 'sconly1' in ' '.join(sys.argv) else 'sc0 sc1'
SCL = '' if '--abl' in ' '.join(sys.argv) and 'noscl' in ' '.join(sys.argv) else 'sc1'
WS_SIZE = 0x1c00000
assert QF_OFF + 128 * 16 * 1152 <= 0x1b00000
STAMP_OFF = 0x1b00000

A_X, A_WQ, A_WK, A_WV, A_WO, A_BX, A_WIN, A_WSP, A_BSP, A_WOUT, A_GW, A_OUT, A_DBG, A_WS = [8 * i for i in range(14)]

STAMP = False
ABL = set()


def opt(name, default=None):
    for x in ABL:
        if x.startswith(name + ':'):
            return [int(v) for v in x.split(':')[1:]]
    return default


def f2u(f):
    return struct.unpack('<I', struct.pack('<f', f))[0]


def hx(f):
    return '0x%08x' % f2u(f)


def srd(a, d, size):
    a.e(f's_mov_b32 s{d + 2}, {size}')
    a.e(f's_mov_b32 s{d + 3}, 0x00020000')


def vr(b, n):
    return f'v[{b}:{b + n - 1}]'


def stamp(a, idx):
    if not STAMP:
        return
    a.wait_lg0()
    a.e('s_memrealtime s[78:79]')
    a.e('s_memtime s[76:77]')
    a.e('s_waitcnt lgkmcnt(0)')
    a.e(f's_mov_b32 s{80 + idx}, s78')
    a.e(f's_mov_b32 s{88 + idx}, s76')


def stamp_flush(a, kidx):
    if not STAMP:
        return
    a.e('s_waitcnt vmcnt(0) lgkmcnt(0)')
    stamp(a, 7)
    a.e(f's_load_dwordx2 s[74:75], s[0:1], {A_WS}')
    a.e('s_waitcnt lgkmcnt(0)')
    a.e('v_lshrrev_b32 v1, 6, v0')
    a.e('v_lshlrev_b32 v1, 6, v1')
    a.e('s_lshl_b32 s78, s2, 8')
    a.e(f's_add_u32 s78, s78, {STAMP_OFF + kidx * 131072}')
    a.e('v_add_u32 v1, s78, v1')
    for i in range(16):
        a.e(f'v_mov_b32 v{4 + i}, s{80 + i}')
    for i in range(4):
        a.e(f'global_store_dwordx4 v1, v[{4 + 4 * i}:{7 + 4 * i}], s[74:75] offset:{16 * i}')
    if 'dbgstamp' in ABL:
        a.e('s_cmp_lt_u32 s2, 256')
        a.e('s_cselect_b32 s78, 4, 36')
        a.e('v_mov_b32 v1, s78')
        a.e('s_mov_b64 exec, 1')
        for i in range(1, 8):
            a.e(f'v_subrev_u32 v{4 + i}, s62, v{4 + i}')
            a.e(f'global_atomic_umax v1, v{4 + i}, s[16:17] offset:{4 * (i - 1)} sc1')
        a.e('v_sub_u32 v4, s62, v4')
        a.e('v_add_u32 v4, 1000, v4')
        a.e('v_mov_b32 v1, 32')
        a.e('global_atomic_umax v1, v4, s[16:17] sc1')
        a.e('s_mov_b64 exec, -1')


QSCALE = 18 ** -0.5 * 1.4426950408889634
GELU_C0 = -2.0 * 1.4426950408889634 * 0.7978845608028654
GELU_C1 = GELU_C0 * 0.044715


def gelu_group(a, regs, T, sC1, vC0):
    n = len(regs)
    for i, r in enumerate(regs):
        a.e(f'v_pk_mul_f32 {vr(T + 2 * i, 2)}, {vr(r, 2)}, {vr(r, 2)}')
    for i, r in enumerate(regs):
        a.e(f'v_pk_fma_f32 {vr(T + 2 * i, 2)}, {vr(T + 2 * i, 2)}, s[{sC1}:{sC1 + 1}], {vr(vC0, 2)}')
    for i, r in enumerate(regs):
        a.e(f'v_pk_mul_f32 {vr(T + 2 * i, 2)}, {vr(T + 2 * i, 2)}, {vr(r, 2)}')
    for i in range(2 * n):
        a.e(f'v_exp_f32 v{T + i}, v{T + i}')
    for i, r in enumerate(regs):
        a.e(f'v_pk_add_f32 {vr(T + 2 * i, 2)}, {vr(T + 2 * i, 2)}, 1.0 op_sel_hi:[1,0]')
    for i in range(2 * n):
        a.e(f'v_rcp_f32 v{T + i}, v{T + i}')
    for i, r in enumerate(regs):
        a.e(f'v_pk_mul_f32 {vr(r, 2)}, {vr(T + 2 * i, 2)}, {vr(r, 2)}')


SPIN_MAX = 300000
PG = [2, 2, 0]


def poll(a, loads, regs, t0, first_done=False, sleep=1):
    lp = a.newlabel('POLL')
    lc = a.newlabel('POLLC')
    lg = a.newlabel('POLLOK')
    a.e(f's_mov_b32 s51, {SPIN_MAX}')
    if first_done:
        a.e(f's_branch {lc}')
    a.label(lp)
    loads()
    a.e('s_waitcnt vmcnt(0)')
    a.label(lc)
    a.e(f'v_xor_b32 v{t0}, s62, v{regs[0]}')
    for r in regs[1:]:
        a.e(f'v_xor_b32 v{t0 + 1}, s62, v{r}')
        a.e(f'v_or_b32 v{t0}, v{t0}, v{t0 + 1}')
    a.e(f'v_cmp_ne_u32 vcc, 0, v{t0}')
    a.e(f's_cbranch_vccz {lg}')
    a.e(f's_sleep {sleep}')
    a.e('s_sub_u32 s51, s51, 1')
    a.e('s_cmp_lg_u32 s51, 0')
    a.e(f's_cbranch_scc1 {lp}')
    a.label(lg)
    if not first_done:
        a.vmq = []


def get_nonce(a, vz, vn):
    lp = a.newlabel('NONCE')
    lg = a.newlabel('NONCE_OK')
    a.e(f's_mov_b32 s51, {SPIN_MAX}')
    a.label(lp)
    a.e(f'v_readfirstlane_b32 s62, v{vn}')
    a.e('s_cmp_lg_u32 s62, 0')
    a.e(f's_cbranch_scc1 {lg}')
    a.e('s_sleep 32')
    a.e(f'global_load_dword v{vn}, v{vz}, s[16:17] {SC}')
    a.e('s_waitcnt vmcnt(0)')
    a.e('s_sub_u32 s51, s51, 1')
    a.e('s_cmp_lg_u32 s51, 0')
    a.e(f's_cbranch_scc1 {lp}')
    a.label(lg)


def set_flag(a, soff, t0):
    a.e(f'v_mov_b32 v{t0}, 0')
    a.e(f'v_mov_b32 v{t0 + 1}, s62')
    a.e('s_mov_b64 exec, 1')
    a.vm(f'buffer_store_dword v{t0 + 1}, v{t0}, s[12:15], s{soff} offen {SC}', 'flag')
    a.e('s_mov_b64 exec, -1')


class GW:
    R = 5
    SLOT = 8192
    SGL = 40960
    BBASE = 49152
    AF = 32
    BF = 68
    ACC0 = 100
    ACC1 = 172
    UB = 27
    UP = 45

    def __init__(self, a):
        self.a = a
        self.units = []
        self.stages = []
        for st in range(9):
            self.stages.append(('x', st))
            self.units += [('z2', 2 * st, st, 0, 2 * st), ('z2', 2 * st + 1, st, 1, 2 * st + 1), ('E', st, st, 0, None)]
        for k in range(18):
            if k % 2 == 0:
                self.stages.append(('x', k // 2))
            self.units.append(('z1', k, 9 + k // 2, k % 2, 18 + k))
        for k in range(64):
            if k % 2 == 0:
                self.stages.append(('sp', k // 2))
            self.units.append(('sp', k, 18 + k // 2, k % 2, 36 + k))
        self.nextA = 0
        self.nextB = 0
        self.limitA = len(self.units)
        self.pendB = []
        self.hooks = {}

    def setup(self):
        a = self.a
        a.e(f's_load_dwordx4 s[4:7], s[0:1], {A_X}')
        a.e(f's_load_dwordx2 s[8:9], s[0:1], {A_WIN}')
        a.e(f's_load_dwordx4 s[16:19], s[0:1], {A_DBG}')
        a.e(f's_load_dwordx4 s[52:55], s[0:1], {A_WSP}')
        a.e(f's_load_dwordx2 s[64:65], s[0:1], {A_OUT}')
        a.e(f's_load_dwordx4 s[68:71], s[0:1], {A_WK}')
        a.e('v_lshrrev_b32 v1, 6, v0')
        a.e('v_readfirstlane_b32 s20, v1')
        a.e('v_and_b32 v1, 63, v0')
        a.e('s_lshr_b32 s31, s2, 3')
        a.e('s_and_b32 s32, s2, 3')
        a.e('s_and_b32 s34, s31, 3')
        a.e('s_lshl_b32 s21, s32, 2')
        a.e('s_add_u32 s21, s21, s34')
        a.e('s_lshr_b32 s35, s31, 2')
        a.e('s_and_b32 s22, s2, 4')
        a.e('s_lshl_b32 s22, s22, 1')
        a.e('s_add_u32 s22, s22, s35')
        a.e('s_lshl_b32 s23, s21, 2')
        a.e('s_add_u32 s23, s23, s20')
        a.e('s_lshl_b32 s39, s34, 1')
        a.e('s_add_u32 s39, s39, s35')
        a.e('s_cmp_ge_u32 s39, 9')
        a.e('s_cselect_b32 s40, 9, 0')
        a.e('s_sub_u32 s39, s39, s40')
        if 'norot' in ABL:
            a.e('s_mov_b32 s39, 0')
        a.e('s_mul_i32 s24, s39, %d' % (64 * 9216))
        a.e('s_lshl_b32 s25, s39, 7')
        a.e('s_lshl_b32 s28, s39, 1')
        a.e('s_add_u32 s28, s28, s20')
        a.e('s_cmp_ge_u32 s28, 18')
        a.e('s_cselect_b32 s29, 18, 0')
        a.e('s_sub_u32 s28, s28, s29')
        a.e(f's_mul_i32 s28, s28, {32 * 9216}')
        a.e('s_lshl_b32 s26, s20, 11')
        a.e('s_lshl_b32 s27, s20, 12')
        a.e(f's_add_u32 s27, s27, {self.BBASE}')
        a.e('s_lshl_b32 s30, s20, 10')
        a.e(f's_add_u32 s30, s30, {self.SGL}')
        a.e('v_and_b32 v23, 7, v1')
        a.e('v_lshrrev_b32 v24, 5, v1')
        a.e('v_lshlrev_b32 v24, 3, v24')
        a.e('v_bfe_u32 v25, v1, 3, 2')
        a.e('s_lshl_b32 s44, s23, 5')
        a.e('v_add3_u32 v24, v24, v25, s44')
        a.e('v_lshrrev_b32 v25, 4, v1')
        a.e('v_xor_b32 v25, v25, v23')
        a.e('v_lshlrev_b32 v25, 4, v25')
        a.e('v_xor_b32 v26, 64, v25')
        a.e('v_mul_u32_u24 v27, 1152, v24')
        a.e('v_add_u32 v5, v27, v25')
        a.e('v_add_u32 v6, v27, v26')
        a.e(f'v_add_u32 v6, {16 * 1152 - 1024}, v6')
        a.e(f'v_add_u32 v7, {4 * 1152 - 2048}, v5')
        a.e(f'v_add_u32 v8, {4 * 1152 - 2048}, v6')
        a.e('s_lshl_b32 s42, s22, 8')
        a.e('s_mul_i32 s43, s20, %d' % (8 * 9216))
        a.e('s_add_u32 s42, s42, s43')
        a.e('s_add_u32 s42, s42, 4608')
        a.e('v_bfe_u32 v2, v1, 2, 2')
        a.e('v_mul_u32_u24 v2, 9216, v2')
        a.e('v_lshrrev_b32 v3, 4, v1')
        a.e('v_lshl_add_u32 v2, v3, 6, v2')
        a.e('s_and_b32 s44, s20, 1')
        a.e('s_lshl_b32 s45, s44, 1')
        a.e('v_and_b32 v3, 3, v1')
        a.e('v_xor_b32 v3, s45, v3')
        a.e('v_lshl_add_u32 v2, v3, 4, v2')
        a.e('v_add_u32 v2, s42, v2')
        a.e(f'v_add_u32 v3, {4 * 9216 - 1024}, v2')
        a.e('v_lshrrev_b32 v29, 1, v1')
        a.e('v_and_b32 v27, 19, v29')
        a.e('v_bfe_u32 v28, v29, 2, 1')
        a.e('v_lshl_add_u32 v27, v28, 3, v27')
        a.e('v_bfe_u32 v28, v29, 3, 1')
        a.e('v_lshl_add_u32 v27, v28, 2, v27')
        a.e('v_mul_u32_u24 v4, 9216, v27')
        a.e('v_and_b32 v27, 1, v1')
        a.e('v_lshl_add_u32 v4, v27, 4, v4')
        a.e('s_lshl_b32 s45, s22, 5')
        a.e(f's_add_u32 s45, s45, {4096 + 4608}')
        a.e('v_add_u32 v4, s45, v4')
        a.e('v_mul_u32_u24 v27, 36, v27')
        a.e('v_lshrrev_b32 v20, 2, v1')
        a.e('v_mul_u32_u24 v20, 1152, v20')
        a.e('v_bfe_u32 v28, v1, 1, 1')
        a.e('v_lshl_add_u32 v20, v28, 4, v20')
        a.e('v_add_u32 v20, v20, v27')
        a.e('v_mul_u32_u24 v28, 1152, v29')
        a.e('v_add3_u32 v28, v28, v27, 32')
        a.e('s_cmp_eq_u32 s20, 2')
        a.e('s_cselect_b64 vcc, -1, 0')
        a.e('v_cndmask_b32 v20, v20, v28, vcc')
        a.e('v_mul_u32_u24 v28, 36, v29')
        a.e('s_cmp_eq_u32 s20, 3')
        a.e('s_cselect_b64 vcc, -1, 0')
        a.e('v_cndmask_b32 v20, v20, v28, vcc')
        a.e('s_mul_i32 s44, s22, 72')
        a.e('s_cmp_eq_u32 s20, 1')
        a.e(f's_cselect_b32 s45, {16 * 1152}, 0')
        a.e('s_add_u32 s44, s44, s45')
        a.e('s_and_b32 s45, s22, 1')
        a.e('s_lshl_b32 s45, s45, 4')
        a.e('s_cmp_ge_u32 s22, 4')
        a.e('s_cselect_b32 s45, 32, s45')
        a.e('s_cmp_eq_u32 s20, 3')
        a.e('s_cselect_b32 s44, s45, s44')
        a.e(f's_movk_i32 s58, 1152')
        a.e('s_cselect_b32 s58, 36, s58')
        a.e('v_add_u32 v20, s44, v20')
        a.e('s_lshl_b32 s44, s58, 5')
        a.e('s_sub_u32 s44, s44, 1024')
        a.e('v_add_u32 v244, s44, v20')
        a.e('s_mul_i32 s42, s58, 576')
        a.e('s_lshl_b32 s58, s58, 6')
        a.e('s_mul_i32 s59, s58, s39')
        a.e('s_lshr_b32 s44, 0x2c, s22')
        a.e('s_and_b32 s44, s44, 1')
        a.e('s_waitcnt lgkmcnt(0)')
        a.e('s_cmp_eq_u32 s44, 1')
        a.e('s_cselect_b32 s40, s70, s68')
        a.e('s_cselect_b32 s41, s71, s69')
        a.e('s_cmp_eq_u32 s20, 3')
        a.e('s_cselect_b32 s40, s40, s6')
        a.e('s_cselect_b32 s41, s41, s7')
        a.e('s_mov_b32 s43, 0x00020000')
        srd(a, 4, 2359296)
        srd(a, 8, 576 * 9216)
        a.e('s_mov_b32 s12, s18')
        a.e('s_mov_b32 s13, s19')
        srd(a, 12, WS_SIZE)
        a.e('s_mov_b32 s56, s54')
        a.e('s_mov_b32 s57, s55')
        srd(a, 52, 2048 * 4096)
        self.consts()

    def setup2(self):
        a = self.a
        a.e('v_lshlrev_b32 v27, 12, v24')
        a.e('v_add_u32 v12, v27, v25')
        a.e('v_add_u32 v13, v27, v26')
        a.e(f'v_add_u32 v13, {16 * 4096 - 1024}, v13')
        a.e(f'v_add_u32 v14, {4 * 4096 - 2048}, v12')
        a.e(f'v_add_u32 v15, {4 * 4096 - 2048}, v13')
        a.e('s_xor_b32 s37, s21, s35')
        a.e('s_lshl_b32 s45, s22, 13')
        a.e('s_add_u32 s45, s45, s26')
        a.e(f's_add_u32 s45, s45, {Z2_OFF}')
        a.e('v_lshlrev_b32 v19, 4, v1')
        a.e('v_add_u32 v9, s45, v19')
        a.e('s_lshl_b32 s45, s22, 10')
        a.e('s_mul_i32 s46, s20, 147456')
        a.e('s_add_u32 s45, s45, s46')
        a.e(f's_add_u32 s45, s45, {128 * 1024 + Z2_OFF}')
        a.e('v_add_u32 v10, s45, v19')
        a.e('v_lshrrev_b32 v27, 4, v1')
        a.e('v_and_b32 v29, 3, v1')
        a.e('v_lshlrev_b32 v28, 3, v29')
        a.e('v_bfe_u32 v29, v1, 2, 3')
        a.e('v_lshl_add_u32 v18, v29, 5, v28')
        a.e('v_lshrrev_b32 v29, 5, v1')
        a.e('v_lshl_add_u32 v18, v29, 9, v18')
        a.e('v_lshl_add_u32 v28, v27, 11, v28')
        a.e('v_bfe_u32 v29, v1, 2, 2')
        a.e('v_lshl_add_u32 v28, v29, 6, v28')
        a.e('v_and_b32 v29, 1, v27')
        a.e('v_lshl_add_u32 v16, v29, 5, v28')
        a.e('v_xor_b32 v17, 32, v16')
        a.e('v_and_b32 v28, 15, v1')
        a.e('v_lshlrev_b32 v245, 4, v28')
        a.e('v_lshl_add_u32 v245, v29, 9, v245')
        a.e('v_lshrrev_b32 v29, 5, v1')
        a.e('v_lshl_add_u32 v245, v29, 11, v245')
        a.e('v_bfe_u32 v29, v1, 2, 2')
        a.e('v_lshl_add_u32 v29, v27, 3, v29')
        a.e('v_lshlrev_b32 v246, 5, v29')
        a.e('v_and_b32 v29, 1, v1')
        a.e('v_lshlrev_b32 v23, 4, v29')
        a.e('v_add_u32 v23, 4096, v23')
        a.e('v_lshlrev_b32 v29, 3, v29')
        a.e('v_add_u32 v29, 6144, v29')
        a.e('v_and_b32 v24, 2, v1')
        a.e('v_cmp_eq_u32 vcc, 0, v24')
        a.e('v_cndmask_b32 v29, v29, v23, vcc')
        a.e('v_add_u32 v246, v246, v29')
        a.e('v_bfe_u32 v29, v1, 1, 3')
        a.e('v_xor_b32 v29, v29, v27')
        a.e('v_lshlrev_b32 v28, 7, v28')
        a.e('v_lshl_add_u32 v28, v29, 4, v28')
        a.e('v_add_u32 v21, s27, v28')
        a.e('v_xor_b32 v28, 64, v28')
        a.e('v_add_u32 v22, s27, v28')
        self.gelu_consts()

    def consts(self):
        a = self.a
        for i in range(5):
            a.e(f's_add_u32 s{66 + i}, s26, {i * self.SLOT}')
        a.e('s_mov_b32 s71, s30')
        a.e('s_add_u32 s72, s30, 4096')
        a.e('s_mov_b32 s73, s27')
        a.e('s_add_u32 s63, s27, 16384')
        a.e(f's_mov_b32 s33, {32 * 9216}')
        a.e(f's_mov_b32 s36, {576 * 9216}')
        a.e('s_mov_b32 s38, 147456')
        a.e('s_movk_i32 s3, 1152')

    def S(self, text, cost=4):
        return (cost, lambda: self.a.e(text))

    def D(self, text, tag):
        return (12, lambda: self.a.vm(text, tag))

    def grp(self, g, d, t):
        S = self.S
        if g == 0:
            return [S(f's_mov_b32 s{d}, s21')]
        if g < 8:
            return [S(f's_add_u32 s{d}, s35, {g}'), S(f's_cmp_ge_u32 s{d}, 8\ns_cselect_b32 s{t}, 7, 0', 8),
                    S(f's_sub_u32 s{d}, s{d}, s{t}'), S(f's_xor_b32 s{d}, s{d}, s21')]
        return [S(f's_xor_b32 s{d}, s37, {g}')]

    def issueA(self):
        u = self.nextA
        if u >= self.limitA:
            return []
        self.nextA += 1
        S, D = self.S, self.D
        seg, i, _, _, si = self.units[u]
        tag = ('A', u)
        m0 = S(f's_mov_b32 m0, s{66 + u % self.R}')
        if seg == 'E':
            return [m0, D('buffer_load_dwordx4 v20, s[40:43], s59 offen lds', tag),
                    D('buffer_load_dwordx4 v244, s[40:43], s59 offen offset:1024 lds', tag),
                    S('s_add_u32 s59, s59, s58'), S('s_cmp_eq_u32 s59, s42\ns_cselect_b32 s59, 0, s59', 8)]
        m1 = S(f's_mov_b32 m0, s{71 + (si // 4) % 2}')
        out = []
        if seg == 'sp':
            if i % 4 == 0:
                out += self.grp(i // 4, 24, 29) + [S('s_mul_i32 s24, s24, 589824', 6)]
            out += [m0, D(f'buffer_load_dwordx4 v9, s[12:15], s24 offen {SCL} lds', tag),
                    D(f'buffer_load_dwordx4 v9, s[12:15], s24 offen offset:1024 {SCL} lds', tag)]
            if i % 4 == 0:
                out += [m1, D(f'buffer_load_dwordx4 v10, s[12:15], s24 offen {SCL} lds', tag)]
            if i % 4 != 3:
                out.append(S('s_add_u32 s24, s24, s38'))
            return out
        if seg == 'z1' and i == 0:
            out += [S('v_subrev_u32 v2, 4608, v2', 8), S('v_subrev_u32 v3, 4608, v3', 8)]
        out += [m0, D('buffer_load_dwordx4 v2, s[8:11], s24 offen lds', tag),
                D('buffer_load_dwordx4 v3, s[8:11], s24 offen offset:1024 lds', tag), S('s_add_u32 s24, s24, s33')]
        if i % 2 == 1:
            out.append(S('s_cmp_eq_u32 s24, s36\ns_cselect_b32 s24, 0, s24', 8))
        if si % 4 == 0:
            if si == 16:
                out += [S('s_cmp_lt_u32 s20, 2\ns_cselect_b32 s29, 0, 4608', 10), S('v_subrev_u32 v4, s29, v4')]
            if si == 20:
                out += [S('s_cmp_lt_u32 s20, 2\ns_cselect_b32 s29, 4608, 0', 10), S('v_subrev_u32 v4, s29, v4')]
            out += [m1, D('buffer_load_dwordx4 v4, s[8:11], s28 offen lds', tag), S(f's_add_u32 s28, s28, {128 * 9216}', 6),
                    S('s_cmp_ge_u32 s28, s36\ns_cselect_b32 s29, s36, 0', 8), S('s_sub_u32 s28, s28, s29')]
        return out

    def issueB(self):
        s = self.nextB
        if s >= len(self.stages):
            return [[], []]
        self.nextB += 1
        S, D = self.S, self.D
        seg, i = self.stages[s]
        tag = ('B', s)
        sp = seg == 'sp'
        vb = 12 if sp else 5
        sr = 's[52:55]' if sp else 's[4:7]'
        m0 = S(f's_mov_b32 m0, s{(73, 63)[s % 2]}')
        ld = [D(f'buffer_load_dwordx4 v{vb + j}, {sr}, s25 offen offset:{1024 * j} lds', tag) for j in range(4)]
        pre = []
        if sp:
            pre = self.grp(i // 2, 25, 46) + [S('s_lshl_b32 s25, s25, 8')] if i % 2 == 0 else [S('s_addk_i32 s25, 128')]
        post = [] if sp else [S('s_addk_i32 s25, 128'), S('s_cmp_eq_u32 s25, s3\ns_cselect_b32 s25, 0, s25', 8)]
        return [pre + [m0] + ld[:2], [m0] + ld[2:] + post]

    def nfr(self, u):
        return 6 if self.units[u][0] == 'E' else 9

    def freg(self, u, F):
        return (self.ACC1 + 24 if self.units[u][0] == 'E' else self.AF) + 4 * F

    def readA(self, u, F):
        a = self.a
        seg, i, _, _, si = self.units[u]
        slot = (u % self.R) * self.SLOT
        tag = ('AR', u, F)
        r = self.freg(u, F)

        def L(t):
            return (8, lambda: a.lg(t, tag))
        if seg == 'E':
            kk, t = F // 3, F % 3
            if t < 2:
                return [L(f'ds_read_b64_tr_b16 {vr(r + 2 * j, 2)}, v245 offset:{slot + kk * 1024 + j * 256 + t * 8}') for j in range(2)]
            return [L(f'ds_read_b64_tr_b16 {vr(r + 2 * j, 2)}, v246 offset:{slot + kk * 1024 + j * 128}') for j in range(2)]
        sgl = self.SGL + ((si // 4) % 2) * 4096 + (si % 4) * 1024
        if seg == 'sp':
            return [L(f'ds_read_b128 {vr(r, 4)}, v19 offset:{slot + F * 1024 if F < 8 else sgl}')]
        if F < 8:
            return [L(f'ds_read_b64_tr_b16 {vr(r + 2 * j, 2)}, v{16 + F % 2} offset:{slot + j * 1024 + (F // 2) * 256}') for j in range(2)]
        return [L(f'ds_read_b64_tr_b16 {vr(r + 2 * j, 2)}, v18 offset:{sgl + j * 256}') for j in range(2)]

    def readB(self, s):
        a = self.a
        out = [(4, lambda: a.wait_vm(('B', s)))]
        for jj in range(2):
            for e in range(2):
                t = f'ds_read_b128 {vr(self.BF + 16 * (s % 2) + 8 * jj + 4 * e, 4)}, v{21 + jj} offset:{(s % 2) * 16384 + e * 2048}'
                out.append((8, lambda t=t: a.lg(t, ('BR', s))))
        return out

    def run(self, items):
        for _, f in items:
            f()

    def prologue_issue(self):
        b0 = self.issueB()
        self.run(b0[0] + b0[1][1:] + self.issueA() + self.issueA() + self.issueA())
        b1 = self.issueB()
        self.run(b1[0] + b1[1][1:] + self.issueA())

    def run_segment(self, u0, n, own=False):
        a = self.a
        a.e(f's_setprio {opt("pg", PG)[0]}')
        self.run(self.readB(self.units[u0][2]))
        a.wait_vm(('A', u0))
        a.wait_lg('own')
        a.e('s_barrier')
        for F in range(9):
            self.run(self.readA(u0, F))
        carry = []
        for u in range(u0, u0 + n):
            last = u == u0 + n - 1
            seg, kk, s, jj, _ = self.units[u]
            sfirst = u == u0 or self.units[u - 1][2] != s
            pos = u - min(v for v in range(u0, u + 1) if self.units[v][2] == s)
            nf = self.nfr(u)
            if 'p2fine' in ABL and u >= self.UP + 4 and (u - self.UP - 4) % 10 == 0:
                stamp(a, 1 + (u - self.UP - 4) // 10)
            will_issue = self.nextA <= u + self.R - 1 and self.nextA < self.limitA
            if not last:
                a.wait_vm(('A', u + 1))
            if will_issue or (not last and not own):
                a.e('s_barrier')
            if u in self.hooks:
                self.hooks[u]()
            misc = self.issueA() if self.nextA <= u + self.R - 1 else []
            if sfirst and self.nextB <= s + 2:
                self.pendB = self.issueB()
            pb = self.pendB.pop(0) if self.pendB else []
            reads = [(0, it) for it in carry]
            carry = []
            if not last:
                same = self.freg(u, 0) == self.freg(u + 1, 0)
                for F in range(self.nfr(u + 1)):
                    its = self.readA(u + 1, F)
                    if nf == 6 and F >= 7:
                        carry += its
                    else:
                        reads += [(2 * F + 1 if same else 0, it) for it in its]
            stage_end = max(v for v in range(u, u0 + n) if self.units[v][2] == s)
            if pos == 1 and stage_end < u0 + n - 1:
                misc += self.readB(s + 1)
            misc += pb
            ng = 2 * nf
            nwait = (nf + 1) // 2
            total = sum(c for _, (c, _) in reads) + sum(c for c, _ in misc) + 4 * nwait + 8
            done = 0
            for g in range(ng):
                F, e = g // 2, g % 2
                if g == 0:
                    a.wait_lg(('AR', u, 0))
                    if sfirst:
                        a.wait_lg(('BR', s))
                af = vr(self.freg(u, F), 4)
                if seg == 'E':
                    d = vr(self.ACC1 + 8 * (F % 3) + 4 * e, 4)
                    c = '0' if (kk == 0 and F < 3) else d
                    bf = vr(self.BF + 16 * (s % 2) + 8 * (F // 3) + 4 * e, 4)
                else:
                    d = vr((self.ACC1 if seg == 'z1' else self.ACC0) + 8 * F + 4 * e, 4)
                    c = '0' if kk == 0 else d
                    bf = vr(self.BF + 16 * (s % 2) + 8 * jj + 4 * e, 4)
                if seg == 'z2':
                    a.e(f'v_mfma_f32_16x16x32_bf16 {d}, {bf}, {af}, {c}')
                else:
                    a.e(f'v_mfma_f32_16x16x32_bf16 {d}, {af}, {bf}, {c}')
                used = 0
                needw = e == 1 and F % 2 == 0 and F + 1 < nf
                if needw:
                    used += 4
                if g == ng - 1:
                    used += 8
                target = max(12 * (g + 1), total * (g + 1) / ng)
                while True:
                    cand = None
                    if reads and reads[0][0] <= g and (not misc or len(reads) * 1.0 >= (ng - g) * 0.55 or misc[0][0] + used > 12):
                        cand = 'r'
                    elif misc:
                        cand = 'm'
                    elif reads and reads[0][0] <= g:
                        cand = 'r'
                    if cand is None:
                        break
                    cost = reads[0][1][0] if cand == 'r' else misc[0][0]
                    if g < ng - 1 and used + cost > 12 and done + used + cost > total * (g + 1) / ng:
                        break
                    (reads.pop(0)[1] if cand == 'r' else misc.pop(0))[1]()
                    used += cost
                done += used
                if needw:
                    a.wait_lg(('AR', u, F + 1))
                    a.wait_lg(('AR', u, min(F + 2, nf - 1)))
                    self.merge_waits()
            assert not reads and not misc
        a.e(f's_setprio {opt("pg", PG)[1]}')

    def merge_waits(self):
        ins = self.a.ins
        if len(ins) >= 2 and ins[-1].text.startswith('s_waitcnt lgkmcnt') and ins[-2].text.startswith('s_waitcnt lgkmcnt'):
            del ins[-2]

    def proj_store(self):
        a = self.a
        E = self.ACC1
        P = self.AF
        a.e(f's_mov_b32 s44, {hx(QSCALE)}')
        a.e(f's_mov_b32 s45, {hx(QSCALE)}')
        a.e('v_mov_b32 v24, s44')
        a.e('s_bitcmp1_b32 0x2c, s22')
        a.e(f's_cselect_b32 s46, {hx(2.0 ** VSH)}, 1.0')
        a.e('v_mov_b32 v25, s46')
        a.e('v_cmp_gt_u32 vcc, 32, v1')
        a.e('v_cndmask_b32 v24, v25, v24, vcc')
        a.e('s_lshl_b32 s46, s23, 5')
        a.e('s_add_u32 s46, s46, s22')
        a.e('s_mul_i32 s46, s46, 1152')
        a.e(f's_add_u32 s46, s46, {QF_OFF}')
        a.e(f's_add_u32 s47, s46, {16 * 1152}')
        a.e('v_lshlrev_b32 v25, 2, v1')
        for e in range(2):
            for t in range(2):
                for h in range(2):
                    r = E + 8 * t + 4 * e + 2 * h
                    a.e(f'v_pk_mul_f32 {vr(r, 2)}, {vr(r, 2)}, s[44:45]')
            for r in (E + 16 + 4 * e, E + 18 + 4 * e):
                a.e(f'v_pk_mul_f32 {vr(r, 2)}, {vr(r, 2)}, v[24:25] op_sel_hi:[1,0]')
            for t in range(3):
                for h in range(2):
                    r = E + 8 * t + 4 * e + 2 * h
                    a.e(f'v_cvt_pk_bf16_f32 v{P + 8 * e + 2 * t + h}, v{r}, v{r + 1}')
            a.vm(f'buffer_store_dwordx4 {vr(P + 8 * e, 4)}, v19, s[12:15], s{46 + e} offen {SC}', 'pst')
        a.e('s_mov_b32 exec_hi, 0')
        for e in range(2):
            a.vm(f'buffer_store_dword v{P + 8 * e + 4}, v25, s[12:15], s{46 + e} offen offset:1024 {SC}', 'pst')
        a.e('s_mov_b64 exec, -1')
        le = a.newlabel('PJ_E')
        lv = a.newlabel('PJ_V')
        lt = a.newlabel('PJ_T')
        ls = a.newlabel('PJ_S')
        a.e('s_cmp_ge_u32 s22, 6')
        a.e(f's_cbranch_scc1 {le}')
        a.e(f's_mul_i32 s44, s23, {KV_TILE}')
        a.e(f's_add_u32 s44, s44, {KV_OFF}')
        a.e('v_and_b32 v24, 15, v1')
        a.e('v_bfe_u32 v25, v1, 4, 1')
        a.e('v_lshrrev_b32 v26, 2, v24')
        a.e('v_mul_u32_u24 v26, 168, v26')
        a.e('v_add_u32 v26, 1152, v26')
        a.e('v_and_b32 v27, 3, v1')
        a.e('s_mov_b32 exec_lo, 0')
        a.e('s_cmp_ge_u32 s22, 4')
        a.e(f's_cbranch_scc1 {lt}')
        a.e('s_cmp_ge_u32 s22, 2')
        a.e(f's_cbranch_scc1 {lv}')
        a.e('v_lshlrev_b32 v28, 4, v24')
        a.e('v_lshl_add_u32 v28, v25, 3, v28')
        a.e('s_lshl_b32 s45, s22, 9')
        a.e('s_add_u32 s44, s44, s45')
        a.e('s_add_u32 s45, s44, 256')
        a.e(f's_branch {ls}')
        a.label(lv)
        a.e('v_lshl_add_u32 v28, v27, 5, v26')
        a.e('v_lshl_add_u32 v28, v25, 3, v28')
        a.e('s_and_b32 s45, s22, 1')
        a.e('s_lshl_b32 s45, s45, 4')
        a.e('s_add_u32 s44, s44, s45')
        a.e(f's_add_u32 s45, s44, {4 * 168}')
        a.e(f's_branch {ls}')
        a.label(lt)
        lvt = a.newlabel('PJ_VT')
        a.e('s_cmp_eq_u32 s22, 5')
        a.e(f's_cbranch_scc1 {lvt}')
        a.e('v_lshlrev_b32 v28, 2, v24')
        a.e('s_mov_b32 exec_hi, 0xffff')
        for e in range(2):
            a.e(f'buffer_store_dword v{P + 8 * e + 4}, v28, s[12:15], s44 offen offset:{1024 + 64 * e} {SC}')
        a.e(f's_branch {le}')
        a.label(lvt)
        a.e('v_lshl_add_u32 v28, v27, 3, v26')
        a.e('v_add_u32 v28, 128, v28')
        a.e('v_add_u32 v29, 160, v26')
        a.e('v_cmp_eq_u32 vcc, 0, v25')
        a.e('v_cndmask_b32 v28, v29, v28, vcc')
        a.e(f'v_mov_b32 v29, {f2u(2.0 ** VSH) >> 16}')
        for e in range(2):
            a.e(f'v_cndmask_b32 v{P + 8 * e + 4}, 0, v{P + 8 * e + 4}, vcc')
            a.e(f'v_cndmask_b32 v{P + 8 * e + 5}, 0, v29, vcc')
        a.e(f's_add_u32 s45, s44, {4 * 168}')
        a.label(ls)
        for e in range(2):
            a.e(f'buffer_store_dwordx2 {vr(P + 8 * e + 4, 2)}, v28, s[12:15], s{44 + e} offen {SC}')
        a.label(le)
        a.e('s_mov_b64 exec, -1')

    def proj_signal(self):
        a = self.a
        a.wait_vm('pst')
        a.e('s_bfe_u32 s44, s22, 0x20001')
        a.e('s_lshl_b32 s44, s44, 3')
        a.e('s_bfe_u32 s45, s23, 0x30001')
        a.e('s_add_u32 s44, s44, s45')
        a.e('s_lshl_b32 s44, s44, 3')
        a.e('s_and_b32 s45, s2, 7')
        a.e('s_add_u32 s44, s44, s45')
        a.e('s_lshl_b32 s44, s44, 5')
        a.e('s_and_b32 s45, s23, 1')
        a.e('s_lshl_b32 s45, s45, 1')
        a.e('s_add_u32 s44, s44, s45')
        a.e('s_and_b32 s45, s22, 1')
        a.e('s_add_u32 s44, s44, s45')
        a.e('s_lshl_b32 s44, s44, 2')
        a.e(f's_add_u32 s44, s44, {GO_OFF}')
        set_flag(a, 44, 27)
        a.e('s_barrier')
        l = a.newlabel('PS')
        a.e('s_cmp_ge_u32 s22, 6')
        a.e(f's_cbranch_scc1 {l}')
        a.e('s_cmp_lg_u32 s20, 0')
        a.e(f's_cbranch_scc1 {l}')
        a.e('s_mul_i32 s44, s21, 6')
        a.e('s_add_u32 s44, s44, s22')
        a.e('s_lshl_b32 s44, s44, 2')
        a.e(f's_add_u32 s44, s44, {KVF_OFF}')
        a.e('v_lshlrev_b32 v27, 9, v1')
        a.e('s_mov_b64 exec, 0xff')
        a.e(f'buffer_store_dword v28, v27, s[12:15], s44 offen {SC}')
        a.e('s_mov_b64 exec, -1')
        a.label(l)

    def gelu_consts(self):
        a = self.a
        a.e(f's_mov_b32 s60, {hx(GELU_C1)}')
        a.e(f's_mov_b32 s61, {hx(GELU_C1)}')
        a.e(f'v_mov_b32 v30, {hx(GELU_C0)}')
        a.e(f'v_mov_b32 v31, {hx(GELU_C0)}')

    def z1_gelu(self, Fs=range(9)):
        a = self.a
        T = self.BF + 16
        for F in Fs:
            base = self.ACC1 + 8 * F
            gelu_group(a, [base + 2 * i for i in range(4)], T + 8 * (F % 2), 60, 30)

    def z2_gelu_publish(self):
        a = self.a
        T = self.AF + 16
        S = self.BF
        for F in range(9):
            if F == opt('psig', [5])[0]:
                self.proj_signal()
            base = self.ACC0 + 8 * F
            gelu_group(a, [base + 2 * i for i in range(4)], T + 8 * (F % 2), 60, 30)
            for i in range(4):
                y = vr(base + 2 * i, 2)
                if F == 0:
                    a.e(f'v_pk_add_f32 {vr(S + 2 * i, 2)}, {y}, 0 op_sel_hi:[1,0]')
                    a.e(f'v_pk_mul_f32 {vr(S + 8 + 2 * i, 2)}, {y}, {y}')
                else:
                    a.e(f'v_pk_add_f32 {vr(S + 2 * i, 2)}, {vr(S + 2 * i, 2)}, {y}')
                    a.e(f'v_pk_fma_f32 {vr(S + 8 + 2 * i, 2)}, {y}, {y}, {vr(S + 8 + 2 * i, 2)}')
        for b in (S, S + 8):
            for r in range(4):
                a.e(f'v_add_f32_dpp v{b + r}, v{b + r}, v{b + r} row_ror:8 row_mask:0xf bank_mask:0x3')
            for r in range(4):
                a.e(f'v_add_f32_dpp v{b + r}, v{b + r + 4}, v{b + r + 4} row_ror:8 row_mask:0xf bank_mask:0xc')
        for b in (S, S + 8):
            for r in range(2):
                a.e(f'v_add_f32_dpp v{b + r}, v{b + r}, v{b + r} row_shl:4 row_mask:0xf bank_mask:0x5')
            for r in range(2):
                a.e(f'v_add_f32_dpp v{b + r}, v{b + r + 2}, v{b + r + 2} row_shr:4 row_mask:0xf bank_mask:0xa')
        for qp in ('[1,0,3,2]', '[2,3,0,1]'):
            for r in (S, S + 1, S + 8, S + 9):
                a.e(f'v_add_f32_dpp v{r}, v{r}, v{r} quad_perm:{qp} row_mask:0xf bank_mask:0xf')
        a.e('v_and_b32 v25, 1, v1')
        a.e('v_cmp_eq_u32 vcc, 1, v25')
        G0 = S + 12
        a.e(f'v_cndmask_b32 v{G0}, v{S}, v{S + 1}, vcc')
        a.e(f'v_cndmask_b32 v{G0 + 1}, v{S + 8}, v{S + 9}, vcc')
        a.e('v_lshrrev_b32 v27, 2, v1')
        a.e('v_lshl_add_u32 v27, v27, 1, v25')
        a.e('v_lshlrev_b32 v27, 4, v27')
        a.e('s_lshl_b32 s48, s23, 13')
        a.e(f's_add_u32 s48, s48, {STATS_OFF}')
        a.e('s_lshl_b32 s49, s22, 9')
        a.e('s_add_u32 s49, s49, s48')
        a.e(f'v_mov_b32 v{G0 + 2}, s62')
        a.e(f'v_mov_b32 v{G0 + 3}, s62')
        a.e('s_mov_b32 exec_lo, 0x33333333')
        a.e('s_mov_b32 exec_hi, 0x33333333')
        a.vm(f'buffer_store_dwordx4 {vr(G0, 4)}, v27, s[12:15], s49 offen {SC}', 'st')
        a.e('s_mov_b64 exec, -1')

    def z2_gather_norm_store(self):
        a = self.a
        G = self.AF
        a.e('s_add_u32 s49, s48, 4096')

        def ld():
            for i in range(8):
                a.e(f'buffer_load_dwordx4 {vr(G + 4 * i, 4)}, v19, s[12:15], {"s48" if i < 4 else "s49"} offen offset:{1024 * (i % 4)} {SC}')
        poll(a, ld, [G + 4 * i + 2 for i in range(8)], 27)
        for i in (0, 2, 4, 6):
            a.e(f'v_pk_add_f32 {vr(G + 4 * i, 2)}, {vr(G + 4 * i, 2)}, {vr(G + 4 * i + 4, 2)}')
        a.e(f'v_pk_add_f32 {vr(G, 2)}, {vr(G, 2)}, {vr(G + 8, 2)}')
        a.e(f'v_pk_add_f32 {vr(G + 16, 2)}, {vr(G + 16, 2)}, {vr(G + 24, 2)}')
        a.e(f'v_pk_add_f32 {vr(G, 2)}, {vr(G, 2)}, {vr(G + 16, 2)}')
        a.e(f'v_mov_b32 v{G + 2}, v{G}')
        a.e(f'v_mov_b32 v{G + 3}, v{G + 1}')
        a.e(f'v_permlane32_swap_b32 v{G}, v{G + 2}')
        a.e(f'v_permlane32_swap_b32 v{G + 1}, v{G + 3}')
        a.e(f'v_pk_add_f32 {vr(G, 2)}, {vr(G, 2)}, {vr(G + 2, 2)}')
        a.e(f'v_mul_f32 v{G}, {hx(1.0 / 2304)}, v{G}')
        a.e(f'v_mul_f32 v{G + 1}, {hx(1.0 / 2304)}, v{G + 1}')
        a.e(f'v_fma_f32 v{G + 1}, -v{G}, v{G}, v{G + 1}')
        a.e(f'v_max_f32 v{G + 1}, 0, v{G + 1}')
        a.e(f'v_add_f32 v{G + 1}, {hx(1e-5)}, v{G + 1}')
        a.e(f'v_rsq_f32 v{G + 1}, v{G + 1}')
        a.e(f'v_mul_f32 v{G}, v{G}, v{G + 1}')
        a.e(f'v_sub_f32 v{G}, 0, v{G}')
        a.e('v_lshrrev_b32 v28, 4, v1')
        a.e('v_lshlrev_b32 v28, 5, v28')
        RS = self.BF
        for i in range(8):
            a.lg(f'ds_bpermute_b32 v{RS + i}, v28, v{G + 1} offset:{4 * i}', 'r')
            a.lg(f'ds_bpermute_b32 v{RS + 8 + i}, v28, v{G} offset:{4 * i}', 'r')
        a.e('s_mul_i32 s44, s23, 147456')
        a.e(f's_add_u32 s44, s44, {Z2_OFF}')
        a.e('s_lshl_b32 s45, s22, 13')
        a.e('s_add_u32 s45, s45, s44')
        a.e('s_add_u32 s47, s45, 4096')
        a.e('s_lshl_b32 s46, s22, 10')
        a.e('s_add_u32 s46, s46, s44')
        a.e(f's_add_u32 s46, s46, {128 * 1024}')
        a.wait_lg0()
        for F in range(9):
            base = self.ACC0 + 8 * F
            pk = self.ACC0 + 4 * F
            for i in range(4):
                a.e(f'v_pk_fma_f32 {vr(base + 2 * i, 2)}, {vr(base + 2 * i, 2)}, {vr(RS + 2 * i, 2)}, {vr(RS + 8 + 2 * i, 2)}')
            for i in range(4):
                a.e(f'v_cvt_pk_bf16_f32 v{pk + i}, v{base + 2 * i}, v{base + 2 * i + 1}')
            so = 's46' if F == 8 else ('s45' if F < 4 else 's47')
            a.vm(f'buffer_store_dwordx4 {vr(pk, 4)}, v19, s[12:15], {so} offen offset:{1024 * (F % 4)} {SC}', 'st')

    def own_write(self):
        a = self.a
        a.e('s_lshl_b32 s44, s20, 13')
        a.e('v_add_u32 v27, s44, v19')
        a.e('v_add_u32 v28, s30, v19')
        a.e('s_barrier')
        for F in range(9):
            pk = self.ACC0 + 4 * F
            if F < 8:
                a.lg(f'ds_write_b128 v27, {vr(pk, 4)} offset:{1024 * F}', 'own')
            else:
                a.lg(f'ds_write_b128 v28, {vr(pk, 4)} offset:4096', 'own')

    def sp_pre(self):
        a = self.a
        a.e('v_bfe_u32 v27, v1, 2, 2')
        a.e('v_lshlrev_b32 v27, 3, v27')
        a.e('v_and_b32 v28, 3, v1')
        a.e('s_lshl_b32 s44, s23, 5')
        a.e('v_add3_u32 v27, v27, v28, s44')
        a.e('v_lshlrev_b32 v28, 1, v27')
        a.e('v_lshlrev_b32 v11, 3, v27')
        a.vm('global_load_ushort v244, v28, s[56:57]', 'pre')
        a.vm('global_load_ushort v245, v28, s[56:57] offset:8', 'pre')
        self.gate_loads(True)

    def gate_loads(self, track=False):
        a = self.a
        a.e(f's_mov_b32 s44, {GATE_OFF}')
        for e in range(2):
            t = f'buffer_load_dwordx2 {vr(246 + 2 * e, 2)}, v11, s[12:15], s44 offen offset:{32 * e} {SC}'
            a.vm(t, 'pre') if track else a.e(t)

    def sp_epilogue(self):
        a = self.a
        a.wait_vm('pre')
        poll(a, self.gate_loads, [247, 249], 27, first_done=True)
        poll(a, lambda: p3_flags(a), [2, 3, 4], 27, first_done=True)
        for e in range(2):
            a.e(f'v_sub_f32 v{246 + 2 * e}, 1.0, v{246 + 2 * e}')
            a.e(f'v_lshlrev_b32 v{244 + e}, 16, v{244 + e}')
            a.e(f'v_mul_f32 v{250 + 2 * e}, v{244 + e}, v{246 + 2 * e}')
        a.e('s_mul_i32 s44, s23, 180')
        a.e('s_lshr_b32 s45, s22, 2')
        a.e('s_mul_i32 s45, s45, 18')
        a.e('s_add_u32 s44, s44, s45')
        a.e('s_lshl_b32 s44, s44, 10')
        a.e(f's_add_u32 s44, s44, {UF_OFF + 18 * 1024}')
        a.e('s_and_b32 s45, s22, 3')
        a.e('s_lshl_b32 s46, s45, 12')
        a.e('s_add_u32 s46, s46, s44')
        a.e(f's_add_u32 s47, s46, {90 * 1024}')
        a.e('s_lshr_b32 s48, s45, 1')
        a.e('s_lshl_b32 s48, s48, 10')
        a.e('s_add_u32 s48, s48, s44')
        a.e('s_and_b32 s49, s45, 1')
        a.e('s_lshl_b32 s49, s49, 3')
        a.e('s_add_u32 s48, s48, s49')
        a.e(f's_add_u32 s48, s48, {16 * 1024}')
        a.e(f's_add_u32 s49, s48, {90 * 1024}')
        idx = 0
        for m in range(5):
            for e in range(2):
                pk = self.AF + 4 * idx
                idx += 1
                Fs = (2 * m, 2 * m + 1) if m < 4 else (8,)
                prs = [(self.ACC0 + 8 * F + 4 * e + 2 * i, self.ACC1 + 8 * F + 4 * e + 2 * i) for F in Fs for i in range(2)]
                for g, z in prs:
                    a.e(f'v_pk_fma_f32 {vr(g, 2)}, {vr(g, 2)}, {vr(246 + 2 * e, 2)}, {vr(250 + 2 * e, 2)} op_sel_hi:[1,0,0]')
                for g, z in prs:
                    a.e(f'v_pk_mul_f32 {vr(g, 2)}, {vr(g, 2)}, {vr(z, 2)}')
                for i, (g, z) in enumerate(prs):
                    a.e(f'v_cvt_pk_bf16_f32 v{pk + i}, v{g}, v{g + 1}')
                for i in range(len(prs)):
                    a.e(f'v_min_u32 v{pk + i}, -2, v{pk + i}')
                if m < 4:
                    a.vm(f'buffer_store_dwordx4 {vr(pk, 4)}, v19, s[12:15], s{46 + e} offen offset:{1024 * m} {SC}', 'st')
                else:
                    a.vm(f'buffer_store_dwordx2 {vr(pk, 2)}, v19, s[12:15], s{48 + e} offen {SC}', 'st')


def write_nonce(a):
    l = a.newlabel('NOW')
    a.e('s_or_b32 s44, s3, s20')
    a.e('s_cmp_lg_u32 s44, 0')
    a.e(f's_cbranch_scc1 {l}')
    a.e('s_memrealtime s[44:45]')
    a.e('v_mov_b32 v29, 0')
    a.e('s_waitcnt lgkmcnt(0)')
    a.e('s_or_b32 s44, s44, 1')
    a.e('v_mov_b32 v28, s44')
    a.e(f'global_store_dword v29, v28, s[16:17] {SC}')
    a.label(l)


KVBUF = 40960
M_OFFSET = 96.0
VSH = 32


class ATT:
    SB = 16
    OB = 48
    QF = 80
    KF = 96
    VF = 112
    PF = 128
    XF = 136
    WF = 208
    WQS = 16

    def __init__(self, a):
        self.a = a

    def setup(self, sid):
        a = self.a
        a.e(f's_load_dwordx2 s[4:5], s[0:1], {A_X}')
        a.e(f's_load_dwordx4 s[16:19], s[0:1], {A_DBG}')
        a.e(f's_load_dwordx4 s[56:59], s[0:1], {A_WOUT}')
        a.e(f's_load_dwordx2 s[36:37], s[0:1], {A_WO}')
        a.e(f's_load_dwordx2 s[60:61], s[0:1], {A_WSP}')
        a.e('v_lshrrev_b32 v1, 6, v0')
        a.e('v_readfirstlane_b32 s20, v1')
        a.e('v_and_b32 v1, 63, v0')
        a.e(f's_and_b32 s24, s{sid}, 3')
        a.e(f's_lshr_b32 s25, s{sid}, 3')
        a.e('s_lshl_b32 s21, s24, 3')
        a.e('s_and_b32 s23, s25, 7')
        a.e('s_add_u32 s21, s21, s23')
        a.e(f's_and_b32 s22, s{sid}, 4')
        a.e('s_lshr_b32 s23, s25, 3')
        a.e('s_add_u32 s22, s22, s23')
        a.e('s_lshl_b32 s23, s21, 2')
        a.e('s_add_u32 s23, s23, s20')
        a.e('s_lshr_b32 s44, s23, 1')
        a.e('s_lshl_b32 s44, s44, 5')
        a.e('s_and_b32 s45, s23, 1')
        a.e('s_lshl_b32 s45, s45, 2')
        a.e('s_add_u32 s44, s44, s45')
        a.e('v_bfe_u32 v3, v1, 2, 2')
        a.e('v_lshlrev_b32 v3, 3, v3')
        a.e('v_and_b32 v10, 3, v1')
        a.e('v_add3_u32 v3, v3, v10, s44')
        a.e('v_lshlrev_b32 v3, 3, v3')
        a.e('s_mul_i32 s26, s20, 10240')
        a.e('s_lshl_b32 s27, s25, 2')
        a.e('s_add_u32 s27, s27, s20')
        if 'nocodepf' not in ABL:
            a.e('s_getpc_b64 s[8:9]')
            a.e('s_and_b32 s8, s8, 0xffffff00')
            a.e('s_mul_i32 s45, s27, 5')
            a.e('v_min_u32 v10, 4, v1')
            a.e('v_add_u32 v10, s45, v10')
            a.e('v_min_u32 v10, CODE_LINES, v10')
            a.e('v_lshlrev_b32 v238, 7, v10')
            a.e('global_load_dword v239, v238, s[8:9]')
        a.e('v_lshlrev_b32 v10, 4, v1')
        a.e('s_waitcnt lgkmcnt(0)')
        a.e('s_mov_b32 s12, s18')
        a.e('s_mov_b32 s13, s19')
        srd(a, 12, WS_SIZE)

    def nonce(self):
        a = self.a
        a.e('s_waitcnt vmcnt(0)')
        a.e('v_mov_b32 v2, 0')
        a.e(f'global_load_dword v4, v2, s[16:17] {SC}')
        a.e('s_waitcnt vmcnt(0)')
        get_nonce(a, 2, 4)

    def page_touch(self):
        a = self.a
        l = a.newlabel('PT')
        a.e('s_cmp_lg_u32 s20, 1')
        a.e(f's_cbranch_scc1 {l}')
        a.e(f's_load_dwordx2 s[44:45], s[0:1], {A_WSP}')
        a.e(f's_load_dwordx2 s[46:47], s[0:1], {A_OUT}')
        a.e('v_lshlrev_b32 v2, 19, v1')
        a.e('buffer_load_dword v255, v2, s[12:15], 0 offen')
        a.e('v_min_u32 v4, 15, v1')
        a.e('v_lshlrev_b32 v4, 19, v4')
        a.e('v_min_u32 v5, 4, v1')
        a.e('v_lshlrev_b32 v5, 19, v5')
        a.e('s_waitcnt lgkmcnt(0)')
        a.e('global_load_dword v255, v4, s[44:45]')
        a.e('global_load_dword v255, v5, s[46:47]')
        a.e('global_load_dword v255, v5, s[56:57]')
        a.label(l)

    SV = 140

    def side(self, part):
        a = self.a
        lg = a.newlabel('SJ_G')
        le = a.newlabel('SJ_E')
        a.e('s_cmp_eq_u32 s20, 3')
        a.e(f's_cbranch_scc1 {lg}')
        a.e(f's_cmp_ge_u32 s63, {0 if "nort" in ABL else 720}')
        a.e(f's_cbranch_scc1 {le}')
        self.retile(part)
        a.e(f's_branch {le}')
        a.label(lg)
        self.gate(part)
        a.label(le)
        if part == 2:
            self.mark_flag()

    def gate(self, part):
        a = self.a
        V = self.SV
        X, W = V + 8, V + 44
        if part == 0:
            a.e(f'v_lshrrev_b32 v{V}, 3, v1')
            a.e('s_lshl_b32 s44, s3, 3')
            a.e(f'v_add_u32 v{V}, s44, v{V}')
            a.e(f'v_and_b32 v{V + 1}, 7, v1')
            a.e(f'v_lshlrev_b32 v{V + 1}, 4, v{V + 1}')
            a.e(f'v_mul_u32_u24 v{V + 2}, 1152, v{V}')
            a.e(f'v_add_u32 v{V + 2}, v{V + 2}, v{V + 1}')
            for i in range(9):
                a.e(f'global_load_dwordx4 {vr(X + 4 * i, 4)}, v{V + 2}, s[4:5] offset:{128 * i}')
                a.e(f'global_load_dwordx4 {vr(W + 4 * i, 4)}, v{V + 1}, s[58:59] offset:{128 * i}')
        elif part == 1:
            A0, A1, T0, T1 = V + 4, V + 5, V + 6, V + 7
            a.e(f'v_mov_b32 v{A0}, 0')
            a.e(f'v_mov_b32 v{A1}, 0')
            for i in range(36):
                a.e(f'v_dot2c_f32_bf16 v{A0 + i % 2}, v{X + i}, v{W + i}')
            a.e('s_nop 3')
            a.e(f'v_add_f32 v{A0}, v{A0}, v{A1}')
            for m in ('quad_perm:[1,0,3,2]', 'quad_perm:[2,3,0,1]', 'row_half_mirror'):
                a.e(f'v_add_f32_dpp v{A0}, v{A0}, v{A0} {m} row_mask:0xf bank_mask:0xf')
            a.e(f'v_mul_f32 v{A0}, {hx(-1.4426950408889634)}, v{A0}')
            a.e(f'v_exp_f32 v{A0}, v{A0}')
            a.e(f'v_add_f32 v{A0}, 1.0, v{A0}')
            a.e(f'v_rcp_f32 v{A0}, v{A0}')
            a.e(f'v_mov_b32 v{A1}, s62')
            a.e(f'v_lshlrev_b32 v{V}, 3, v{V}')
            a.e(f's_mov_b32 s44, {GATE_OFF}')
            a.e('s_mov_b32 exec_lo, 0x01010101')
            a.e('s_mov_b32 exec_hi, 0x01010101')
            a.e(f'buffer_store_dwordx2 {vr(A0, 2)}, v{V}, s[12:15], s44 offen {SC}')
            a.e('s_mov_b64 exec, -1')

    def retile_setup(self):
        a = self.a
        V = self.SV
        a.e('s_mul_i32 s63, s3, 3')
        a.e('s_add_u32 s63, s63, s20')
        a.e('s_and_b32 s64, s63, 7')
        a.e('s_lshr_b32 s65, s63, 3')
        a.e('s_cmp_lt_u32 s65, 18')
        a.e('s_cselect_b32 s40, s36, s56')
        a.e('s_cselect_b32 s41, s37, s57')
        a.e(f's_mov_b32 s42, {2304 * 1152}')
        a.e(f's_cselect_b32 s42, {576 * 1152}, s42')
        a.e('s_mov_b32 s43, 0x00020000')
        a.e('s_sub_u32 s44, s65, 18')
        a.e('s_mul_i32 s45, s44, 57')
        a.e('s_lshr_b32 s45, s45, 10')
        a.e('s_mul_i32 s46, s45, 18')
        a.e('s_sub_u32 s44, s44, s46')
        a.e('s_lshl_b32 s46, s45, 9')
        a.e('s_lshl_b32 s47, s45, 6')
        a.e(f's_add_u32 s47, s47, {2048 - 512}')
        a.e('s_cmp_lt_u32 s44, 16')
        a.e('s_cselect_b32 s46, s46, s47')
        a.e('s_lshl_b32 s44, s44, 5')
        a.e('s_add_u32 s44, s44, s46')
        a.e('s_mov_b32 s45, 4')
        a.e('s_mov_b32 s46, 8')
        a.e('s_mov_b32 s47, 16')
        a.e('s_mov_b32 s48, 2')
        a.e('s_sub_u32 s49, s65, 16')
        a.e('s_mul_i32 s49, s49, 288')
        a.e('s_add_u32 s49, s49, 16')
        a.e('s_cmp_lt_u32 s65, 18')
        a.e('s_cselect_b32 s44, s49, s44')
        a.e('s_cselect_b32 s45, 72, s45')
        a.e('s_cselect_b32 s46, 144, s46')
        a.e('s_cselect_b32 s47, 36, s47')
        a.e('s_cselect_b32 s48, 18, s48')
        a.e('s_mul_i32 s49, s65, 36')
        a.e('s_cmp_lt_u32 s65, 16')
        a.e('s_cselect_b32 s44, s49, s44')
        a.e('s_cselect_b32 s45, 18, s45')
        a.e('s_cselect_b32 s46, 4, s46')
        a.e('s_cselect_b32 s47, 8, s47')
        a.e('s_cselect_b32 s48, 2, s48')
        for r in (44, 45, 46, 47):
            a.e(f's_mul_i32 s{r}, s{r}, 1152')
        a.e('s_mul_i32 s49, s64, 144')
        a.e('s_add_u32 s66, s44, s49')
        a.e('s_add_u32 s67, s66, s47')
        for i in range(2):
            a.e(f's_add_u32 s{68 + i}, s{66 + i}, s45')
        for i in range(4):
            a.e(f's_add_u32 s{70 + i}, s{66 + i}, s46')
        a.e(f'v_lshrrev_b32 v{V}, 5, v1')
        a.e(f'v_mul_lo_u32 v{V}, v{V}, s48')
        a.e('v_bfe_u32 v5, v1, 4, 1')
        a.e(f'v_add_u32 v{V}, v{V}, v5')
        a.e(f'v_mul_u32_u24 v{V}, 1152, v{V}')
        a.e('v_and_b32 v5, 15, v1')
        a.e('v_min_u32 v5, 8, v5')
        a.e(f'v_lshl_add_u32 v{V}, v5, 4, v{V}')
        a.e('v_lshrrev_b32 v5, 4, v1')
        a.e('v_bfe_u32 v6, v1, 2, 2')
        a.e('v_lshlrev_b32 v7, 11, v5')
        a.e('v_lshl_add_u32 v7, v6, 8, v7')
        a.e(f's_add_u32 s44, s26, {KVBUF}')
        a.e('v_add_u32 v7, s44, v7')
        a.e('v_and_b32 v6, 3, v1')
        a.e(f'v_lshl_add_u32 v{V + 2}, v6, 3, v7')
        a.e(f'v_lshl_add_u32 v{V + 1}, v6, 4, v7')
        a.e('v_and_b32 v6, 7, v1')
        a.e('v_lshl_add_u32 v5, v5, 3, v6')
        a.e('v_lshlrev_b32 v5, 4, v5')
        a.e(f'v_add_u32 v{V + 3}, 4096, v5')

    def retile(self, part):
        a = self.a
        V = self.SV
        F = V + 8
        if part == 0:
            for i in range(8):
                a.e(f's_add_u32 m0, s26, {KVBUF + 1024 * i}')
                a.e(f'buffer_load_dwordx4 v{V}, s[40:43], s{66 + i} offen lds')
        elif part == 1:
            for nt in range(5):
                for j in range(2):
                    if nt < 4:
                        a.e(f'ds_read_b64_tr_b16 {vr(F + 4 * nt + 2 * j, 2)}, v{V + 1} offset:{64 * (nt // 2) + 8 * (nt % 2) + 1024 * j}')
                    else:
                        a.e(f'ds_read_b64_tr_b16 {vr(F + 4 * nt + 2 * j, 2)}, v{V + 2} offset:{128 + 1024 * j}')
            a.e('s_mul_i32 s44, s64, 90')
            a.e('s_add_u32 s44, s44, s65')
            a.e('s_mul_i32 s44, s44, 4608')
            a.e(f's_add_u32 s44, s44, {W3_OFF}')
            a.e('s_waitcnt lgkmcnt(0)')
            for nt in range(4):
                a.e(f'buffer_store_dwordx4 {vr(F + 4 * nt, 4)}, v10, s[12:15], s44 offen offset:{1024 * nt} {SC}')
            a.e('s_mov_b32 exec_lo, 0x00ff00ff')
            a.e('s_mov_b32 exec_hi, 0x00ff00ff')
            a.e(f'buffer_store_dwordx4 {vr(F + 16, 4)}, v{V + 3}, s[12:15], s44 offen {SC}')
            a.e('s_mov_b64 exec, -1')
        else:
            a.e('s_lshl_b32 s44, s64, 7')
            a.e('s_add_u32 s44, s44, s65')
            a.e('s_lshl_b32 s44, s44, 2')
            a.e(f's_add_u32 s44, s44, {FW3_OFF}')
            set_flag(a, 44, V + 4)

    def issue_kv(self, buf_s=None, buf=None, flags=''):
        a = self.a
        for g in range(3):
            if buf_s is not None:
                a.e(f's_add_u32 m0, s{buf_s}, {4096 * g}')
            else:
                a.e(f's_add_u32 m0, s31, {buf * KVBUF + 4096 * g}')
            for i in range(4 if g < 2 else 2):
                a.vm(f'buffer_load_dwordx4 v15, s[12:15], s30 offen offset:{1024 * i} {flags} lds', 'kv')
            a.e('s_add_u32 s30, s30, 4096')
        a.e(f's_add_u32 s30, s30, {16 * KV_TILE - 3 * 4096}')

    def q_phase(self):
        a = self.a
        a.e('s_mov_b32 s31, s26')
        a.e('v_add_u32 v15, s31, v10')
        a.e(f's_mov_b32 s30, {KV_OFF}')
        l = a.newlabel('KVR')
        a.e('s_cmp_lg_u32 s20, 0')
        a.e(f's_cbranch_scc1 {l}')
        self.nonce()
        a.e('v_mov_b32 v4, s62')
        a.e('ds_write_b32 v2, v4')
        a.e('s_lshl_b32 s44, s3, 7')
        a.e(f's_add_u32 s44, s44, {GO_OFF}')
        a.e('v_and_b32 v2, 3, v1')
        a.e('v_lshlrev_b32 v2, 2, v2')
        poll(a, lambda: a.e(f'buffer_load_dword v40, v2, s[12:15], s44 offen {SC}'), [40], 42, sleep=8)
        a.e('s_and_b32 s44, s3, 7')
        a.e('s_lshl_b32 s44, s44, 9')
        a.e(f's_add_u32 s44, s44, {KVF_OFF}')
        a.e('v_min_u32 v2, 47, v1')
        a.e('v_lshlrev_b32 v2, 3, v2')
        poll(a, lambda: a.e(f'buffer_load_dwordx2 v[40:41], v2, s[12:15], s44 offen {SC}'), [40, 41], 42, sleep=opt('ksl', [6])[0])
        a.e('s_waitcnt lgkmcnt(0)')
        a.label(l)
        a.e('s_barrier')
        a.e('v_mov_b32 v2, 0')
        a.e('ds_read_b32 v40, v2')
        stamp(a, 6)
        a.vmq = []
        a.e('s_lshl_b32 s44, s23, 3')
        a.e('s_add_u32 s44, s44, s22')
        a.e('s_mul_i32 s44, s44, 2304')
        a.e(f's_add_u32 s44, s44, {QF_OFF}')
        a.e('v_and_b32 v11, 31, v1')
        a.e('v_lshlrev_b32 v11, 2, v11')
        a.e('v_add_u32 v11, 1024, v11')
        for p in range(2):
            a.vm(f'buffer_load_dwordx4 {vr(self.QF + 8 * p, 4)}, v10, s[12:15], s44 offen offset:{1152 * p} {SCL}', 'q')
            a.vm(f'buffer_load_dword v{self.PF + p}, v11, s[12:15], s44 offen offset:{1152 * p} {SCL}', 'q')
        self.issue_kv(buf=1, flags=SCL)
        a.e('s_waitcnt lgkmcnt(0)')
        a.e('s_barrier')
        self.issue_kv(buf=0, flags=SCL)
        for p in range(2):
            for i in (5, 6, 7):
                a.e(f'v_mov_b32 v{self.QF + 8 * p + i}, 0')
            a.e(f'v_mov_b32 v{self.KF + 8 * p + 5}, 0x3f803f80')
            a.e(f'v_mov_b32 v{self.KF + 8 * p + 6}, 0x3f803f80')
            a.e(f'v_mov_b32 v{self.KF + 8 * p + 7}, 0')
        a.e('v_lshrrev_b32 v2, 5, v1')
        a.e('v_lshlrev_b32 v2, 2, v2')
        a.e('v_bfe_u32 v4, v1, 3, 1')
        a.e('v_lshl_add_u32 v2, v4, 1, v2')
        a.e('v_mul_u32_u24 v12, 168, v2')
        a.e('v_add_u32 v12, 1152, v12')
        a.e('v_bfe_u32 v4, v1, 4, 1')
        a.e('v_bfe_u32 v13, v1, 2, 1')
        a.e('v_mul_u32_u24 v14, 168, v4')
        a.e('v_add_u32 v14, v14, v12')
        a.e('v_and_b32 v8, 1, v1')
        a.e('v_lshl_add_u32 v8, v8, 1, v13')
        a.e('v_lshl_add_u32 v8, v8, 3, v14')
        a.e('v_add_u32 v8, 128, v8')
        a.e('v_add_u32 v9, 160, v14')
        a.e('v_and_b32 v2, 2, v1')
        a.e('v_cmp_eq_u32 vcc, 0, v2')
        a.e(f'v_cndmask_b32 v{self.TB}, v9, v8, vcc')
        a.e(f'v_cndmask_b32 v{self.TB + 1}, v8, v9, vcc')
        a.e('v_lshl_add_u32 v2, v4, 1, v13')
        a.e('v_lshl_add_u32 v12, v2, 5, v12')
        a.e('v_and_b32 v2, 3, v1')
        a.e('v_lshl_add_u32 v12, v2, 3, v12')
        a.e('v_mul_u32_u24 v14, 0xaaaa, v13')
        a.e('v_add_u32 v14, 0x4444, v14')
        a.e('v_mul_u32_u24 v13, 0xaaaa, v4')
        a.e('v_add_u32 v13, 0x4444, v13')
        a.e('s_waitcnt lgkmcnt(0)')
        a.e('v_readfirstlane_b32 s62, v40')
        a.wait_vm('q')
        a.e('v_cmp_gt_u32 vcc, 32, v1')
        for p in range(2):
            a.e(f'v_cndmask_b32 v{self.QF + 8 * p + 4}, 0, v{self.PF + p}, vcc')

    def readK(self, j):
        a = self.a
        b = self.KF + 8 * (j % 2)
        off = (j % 16) * KV_TILE
        a.lg(f'ds_read_b128 {vr(b, 4)}, v5 offset:{off}', ('K', j))
        a.lg(f'ds_read_b32 v{b + 4}, v6 offset:{off}', ('K', j))

    def readV(self, j, m):
        a = self.a
        b = self.VF + 8 * (j % 2)
        off = (j % 16) * KV_TILE
        for jj in range(2):
            if m == 0:
                a.lg(f'ds_read_b64_tr_b16 {vr(b + 2 * jj, 2)}, v7 offset:{off + jj * 168}', ('V', j))
            else:
                a.lg(f'ds_read_b64_tr_b16 {vr(b + 4 + 2 * jj, 2)}, v{self.TB + 2 + jj} offset:{off}', ('V', j))

    def S(self, n, part):
        j, qt = n // 2, n % 2
        d = vr(self.SB + 16 * (n % 2), 16)
        k = self.KF + 8 * (j % 2) + 4 * part
        q = self.QF + 8 * qt + 4 * part
        self.a.e(f'v_mfma_f32_32x32x16_bf16 {d}, {vr(k, 4)}, {vr(q, 4)}, {"0" if part == 0 else d}')

    def PV(self, n, m):
        j, qt = n // 2, n % 2
        p = vr(self.P2 + 8 * qt, 8)
        v = vr(self.VF + 8 * (j % 2) + 4 * m, 4)
        if m == 0:
            self.a.e(f'v_smfmac_f32_32x32x32_bf16 {vr(self.OB + 16 * qt, 16)}, {v}, {p}, v13')
        else:
            self.a.e(f'v_smfmac_f32_16x16x64_bf16 {vr(self.PF + 4 * qt, 4)}, {v}, {p}, v14')

    def set_m(self, qt, vm, add):
        a = self.a
        q = self.QF + 8 * qt
        a.e(f'v_sub_f32 v2, {hx(-add)}, v{vm}')
        a.e('v_and_b32 v4, 0xffff0000, v2')
        a.e('v_sub_f32 v2, v2, v4')
        a.e(f'v_and_b32 v{self.TB + 4}, 0xffff0000, v2')
        a.e(f'v_sub_f32 v2, v2, v{self.TB + 4}')
        a.e('v_lshrrev_b32 v4, 16, v4')
        a.e(f'v_or_b32 v4, v4, v{self.TB + 4}')
        a.e('v_lshrrev_b32 v2, 16, v2')
        a.e('v_cmp_gt_u32 vcc, 32, v1')
        a.e(f'v_cndmask_b32 v{q + 5}, 0, v4, vcc')
        a.e(f'v_cndmask_b32 v{q + 6}, 0, v2, vcc')

    TB = 232
    P2 = 240

    def point(self, off):
        a = self.a
        for i in range(3):
            a.e(f'v_add_u32 v{5 + i}, {off}, v{10 + i}')
        for i in range(2):
            a.e(f'v_add_u32 v{self.TB + 2 + i}, {off}, v{self.TB + i}')

    def max16(self, b, dst, first):
        a = self.a
        if first:
            a.e(f'v_max3_f32 v{dst}, v{b}, v{b + 1}, v{b + 2}')
            a.e(f'v_max_f32 v{dst}, v{dst}, v{b + 3}')
            r = range(4, 16, 2)
        else:
            r = range(0, 16, 2)
        for i in r:
            a.e(f'v_max3_f32 v{dst}, v{b + i}, v{b + i + 1}, v{dst}')

    def halves_max(self, r):
        a = self.a
        a.e(f'v_mov_b32 v2, v{r}')
        a.e(f'v_permlane32_swap_b32 v{r}, v2')
        a.e(f'v_max_f32 v{r}, v{r}, v2')

    def main(self, flags=''):
        a = self.a
        L_PASS = a.newlabel('ATT_PASS')
        L_LOOP = a.newlabel('ATT_LOOP')
        L_NOKV = a.newlabel('ATT_NOKV')
        L_FIN = a.newlabel('ATT_FIN')
        a.e('s_mov_b32 s33, 0')
        a.e('s_mov_b32 s39, 0')
        self.point(KVBUF)
        a.e('s_waitcnt vmcnt(10)')
        a.vmq = a.vmq[-10:]
        a.e('s_barrier')
        self.mark_part(0, 3)
        if 'retouch' in ABL:
            a.e('global_load_dword v239, v238, s[8:9]')
        self.readK(0)
        a.wait_lg0()
        for qt in range(2):
            self.S(qt, 0)
            self.S(qt, 1)
        for qt in range(2):
            self.max16(self.SB + 16 * qt, 8 + qt, True)
            self.halves_max(8 + qt)
            self.set_m(qt, 8 + qt, float(opt('moff', [M_OFFSET])[0]))
        a.label(L_PASS)
        self.readK(0)
        self.readK(1)
        self.readV(0, 0)
        self.readV(0, 1)
        for i in range(32):
            a.e(f'v_mov_b32 v{self.OB + i}, 0')
        for i in range(8):
            a.e(f'v_mov_b32 v{self.PF + i}, 0')
            a.e(f'v_mov_b32 v{self.P2 + 8 + i}, 0')
            a.e(f'v_mov_b32 v{self.VF + 8 + i}, 0')
        a.e('s_mov_b32 s34, 0')
        a.e(f's_add_u32 s35, s31, {KVBUF}')
        a.e(f's_mov_b32 s37, {-KVBUF & 0xffffffff}')
        a.wait_lg0()
        self.S(0, 0)
        self.S(0, 1)
        a.e('s_nop 7')
        a.label(L_LOOP)
        a.wait_lg0()
        if opt('gate'):
            lng = a.newlabel('ATT_NG')
            a.e(f's_cmp_lg_u32 s34, {opt("gate")[0]}')
            a.e(f's_cbranch_scc1 {lng}')
            a.e('s_lshl_b32 s44, s3, 7')
            a.e(f's_add_u32 s44, s44, {PROG_OFF}')
            a.e('v_mov_b32 v2, 0')
            poll(a, lambda: a.e(f'buffer_load_dword v4, v2, s[12:15], s44 offen {SC}'), [4], 8, sleep=8)
            if 'gateprio' in ABL:
                a.e('s_setprio 1')
            a.label(lng)
        if 'attfine' in ABL:
            for c, idx in ((1, 4), (2, 5), (3, 1)):
                lq = a.newlabel('ATT_Q')
                a.e(f's_cmp_lg_u32 s34, {c}')
                a.e(f's_cbranch_scc1 {lq}')
                stamp(a, idx)
                a.label(lq)
        if True:
            lp = a.newlabel('ATT_P')
            a.e(f's_cmp_lg_u32 s34, {opt("aprio", [0])[0]}')
            a.e(f's_cbranch_scc1 {lp}')
            a.e('s_setprio 1')
            a.label(lp)
        for n in range(32):
            j, qt = n // 2, n % 2
            sb = self.SB + 16 * (n % 2)
            if n == 29:
                a.e('s_waitcnt vmcnt(0) lgkmcnt(0)')
                a.vmq = []
                a.lgq = []
                a.e('s_barrier')
                for r in (5, 6, 7, self.TB + 2, self.TB + 3):
                    a.e(f'v_add_u32 v{r}, s37, v{r}')
                if 'novp' not in ABL:
                    a.e('s_setprio 3')
                a.e('s_cmp_ge_u32 s34, 2')
                a.e(f's_cbranch_scc1 {L_NOKV}')
                ls0 = a.newlabel('ATT_S0')
                a.e('s_cmp_eq_u32 s39, 0')
                a.e(f's_cbranch_scc1 {ls0}')
                self.issue_kv(buf_s=35, flags=flags)
                a.e(f's_branch {L_NOKV}')
                a.label(ls0)
                self.side(0)
                a.e('s_mov_b32 s39, 1')
                a.label(L_NOKV)
                self.gate_load()
                if 'retouch' in ABL:
                    a.e('global_load_dword v239, v238, s[8:9]')
                if 'novp' not in ABL:
                    a.e('s_setprio 1')
                a.e('s_add_u32 s35, s35, s37')
                a.e('s_sub_u32 s37, 0, s37')
            SJ = opt('sj', [8, 1, 12, 16, 20, 26])
            if n in opt('mp', [3, 9, 15, 21, 27]):
                lm = a.newlabel('ATT_M')
                a.e('s_cmp_ge_u32 s54, s55')
                a.e(f's_cbranch_scc1 {lm}')
                if 'novp' not in ABL:
                    a.e('s_setprio 3')
                self.mark_part(3, 4)
                if 'novp' not in ABL:
                    a.e('s_setprio 1')
                a.label(lm)
            if n == SJ[0]:
                ls1 = a.newlabel('ATT_S1')
                a.e('s_cmp_lg_u32 s39, 1')
                a.e(f's_cbranch_scc1 {ls1}')
                a.e('s_waitcnt vmcnt(0)')
                if 'novp' not in ABL:
                    a.e('s_setprio 3')
                self.side(1)
                self.issue_kv(buf=1, flags=flags)
                a.e('s_mov_b32 s39, 2')
                if 'novp' not in ABL:
                    a.e('s_setprio 1')
                a.label(ls1)
            if n == SJ[5]:
                ls2 = a.newlabel('ATT_S2')
                a.e('s_cmp_lg_u32 s39, 2')
                a.e(f's_cbranch_scc1 {ls2}')
                a.e('s_waitcnt vmcnt(0)')
                if 'novp' not in ABL:
                    a.e('s_setprio 3')
                self.side(2)
                a.e('s_mov_b32 s39, 3')
                if 'novp' not in ABL:
                    a.e('s_setprio 1')
                a.label(ls2)
            if qt == 1:
                a.wait_lg(('K', j + 1))
            self.S(n + 1, 0)
            pf = self.P2 + 8 * qt
            for i in range(0, 4):
                a.e(f'v_exp_f32 v{sb + i}, v{sb + i}')
            if qt == 1:
                a.wait_lg(('V', j))
            self.PV(n - 1, 0)
            if qt == 0:
                self.readV(j + 1, 0)
            else:
                self.readK(j + 2)
            for i in range(4, 8):
                a.e(f'v_exp_f32 v{sb + i}, v{sb + i}')
            self.S(n + 1, 1)
            for i in range(4):
                a.e(f'v_cvt_pk_bf16_f32 v{pf + i}, v{sb + 2 * i}, v{sb + 2 * i + 1}')
            for i in range(8, 12):
                a.e(f'v_exp_f32 v{sb + i}, v{sb + i}')
            self.PV(n - 1, 1)
            if qt == 0:
                self.readV(j + 1, 1)
            for i in range(12, 16):
                a.e(f'v_exp_f32 v{sb + i}, v{sb + i}')
            for i in range(4, 8):
                a.e(f'v_cvt_pk_bf16_f32 v{pf + i}, v{sb + 2 * i}, v{sb + 2 * i + 1}')
        a.e('s_add_u32 s34, s34, 1')
        a.e('s_cmp_lt_u32 s34, 4')
        a.e(f's_cbranch_scc1 {L_LOOP}')
        self.PV(31, 0)
        self.PV(31, 1)
        a.wait_all()
        a.e('s_cmp_lg_u32 s33, 0')
        a.e(f's_cbranch_scc1 {L_FIN}')
        regs = [self.OB + i for i in range(32)] + [self.PF + i for i in (0, 1, 2, 4, 5, 6)]
        a.e(f'v_max_f32_e64 v2, |v{regs[0]}|, |v{regs[1]}|')
        for i in range(2, len(regs), 2):
            a.e(f'v_max3_f32 v2, |v{regs[i]}|, |v{regs[i + 1]}|, v2')
        a.e(f's_mov_b32 s44, {hx(2.0 ** 110)}')
        a.e('v_cmp_ngt_f32 vcc, s44, v2')
        a.e(f'v_add_f32 v4, v{self.PF + 2}, v{self.PF + 6}')
        a.e('v_cmp_u_f32 s[46:47], v4, v4')
        a.e('s_or_b64 vcc, vcc, s[46:47]')
        a.e('s_cmp_lg_u64 vcc, 0')
        a.e('s_cselect_b32 s44, 1, 0')
        a.e('v_mov_b32 v2, s44')
        a.e('s_lshl_b32 s45, s20, 2')
        a.e(f's_add_u32 s45, s45, {16 * KV_TILE}')
        a.e('v_mov_b32 v4, s45')
        a.e('ds_write_b32 v4, v2')
        a.e(f'v_mov_b32 v4, {16 * KV_TILE}')
        a.e('s_waitcnt lgkmcnt(0)')
        a.e('s_barrier')
        a.e(f'ds_read_b128 {vr(self.P2, 4)}, v4')
        a.e('s_waitcnt lgkmcnt(0)')
        a.e(f'v_or3_b32 v2, v{self.P2}, v{self.P2 + 1}, v{self.P2 + 2}')
        a.e(f'v_or_b32 v2, v2, v{self.P2 + 3}')
        a.e('v_readfirstlane_b32 s44, v2')
        a.e('s_cmp_eq_u32 s44, 0')
        a.e(f's_cbranch_scc1 {L_FIN}')
        L_MC = a.newlabel('ATT_MC')
        L_MT = a.newlabel('ATT_MT')
        a.e('s_mov_b32 s33, 1')
        for p in range(2):
            a.e(f'v_mov_b32 v{self.QF + 8 * p + 5}, 0')
            a.e(f'v_mov_b32 v{self.QF + 8 * p + 6}, 0')
            a.e(f'v_mov_b32 v{8 + p}, 0xff7fffff')
        a.e(f's_mov_b32 s30, {KV_OFF}')
        a.e('s_mov_b32 s34, 0')
        a.label(L_MC)
        a.e('s_barrier')
        self.issue_kv(buf=0, flags=flags)
        a.e('v_mov_b32 v5, v10')
        a.e('v_mov_b32 v6, v11')
        a.e('s_mov_b32 s36, 0')
        a.wait_vm0()
        a.e('s_barrier')
        a.label(L_MT)
        self.readK(0)
        a.wait_lg0()
        for qt in range(2):
            self.S(qt, 0)
            self.S(qt, 1)
        a.e(f'v_add_u32 v5, {KV_TILE}, v5')
        a.e(f'v_add_u32 v6, {KV_TILE}, v6')
        for qt in range(2):
            self.max16(self.SB + 16 * qt, 8 + qt, False)
        a.e('s_add_u32 s36, s36, 1')
        a.e('s_cmp_lt_u32 s36, 16')
        a.e(f's_cbranch_scc1 {L_MT}')
        a.e('s_add_u32 s34, s34, 1')
        a.e('s_cmp_lt_u32 s34, 4')
        a.e(f's_cbranch_scc1 {L_MC}')
        for qt in range(2):
            self.halves_max(8 + qt)
            self.set_m(qt, 8 + qt, M_OFFSET)
        a.e('s_barrier')
        a.e(f's_mov_b32 s30, {KV_OFF}')
        self.issue_kv(buf=1, flags=flags)
        self.issue_kv(buf=0, flags=flags)
        self.point(KVBUF)
        a.e('s_waitcnt vmcnt(10)')
        a.e('s_barrier')
        a.e(f's_branch {L_PASS}')
        a.label(L_FIN)
        a.vmq = []
        a.lgq = []

    def mark(self):
        a = self.a
        a.e('s_mul_i32 s44, s23, 90')
        a.e('s_lshl_b32 s52, s22, 1')
        a.e('s_add_u32 s52, s52, s44')
        a.e('s_lshl_b32 s52, s52, 10')
        a.e(f's_add_u32 s52, s52, {UF_OFF}')
        a.e('s_lshr_b32 s53, s22, 2')
        a.e('s_add_u32 s53, s53, s44')
        a.e('s_lshl_b32 s53, s53, 10')
        a.e('s_and_b32 s47, s22, 3')
        a.e('s_lshl_b32 s47, s47, 8')
        a.e('s_add_u32 s53, s53, s47')
        a.e(f's_add_u32 s53, s53, {UF_OFF + 16 * 1024}')
        a.e('s_mul_i32 s54, s22, 9')
        a.e('s_add_u32 s54, s54, s44')
        a.e('s_lshl_b32 s54, s54, 10')
        a.e(f's_add_u32 s54, s54, {UF_OFF + 18 * 1024}')
        a.e(f's_add_u32 s55, s54, {9 * 1024}')
        for i in range(4):
            a.e(f'v_mov_b32 v{224 + i}, -1')
        a.e('v_lshlrev_b32 v228, 2, v1')
        if opt('tp'):
            a.e('s_lshl_b32 s44, s24, 8')
            a.e('s_and_b32 s45, s22, 4')
            a.e('s_lshl_b32 s45, s45, 5')
            a.e('s_add_u32 s44, s44, s45')
            a.e('s_add_u32 s44, s44, s27')
            a.e('s_lshl_b32 s44, s44, 13')
            a.e(f'v_min_u32 v229, {64 // len(opt("tp")) - 1}, v1')
            a.e('v_lshlrev_b32 v229, 7, v229')
            a.e('v_add_u32 v229, s44, v229')

    def mark_part(self, lo, hi):
        a = self.a
        if 'nomark' in ABL:
            return
        for i in range(lo, hi):
            if i < 2:
                a.e(f'buffer_store_dwordx4 v[224:227], v10, s[12:15], s52 offen offset:{1024 * i} {SC}')
            elif i == 2:
                a.e(f'buffer_store_dword v224, v228, s[12:15], s53 offen {SC}')
            else:
                a.e(f'buffer_store_dwordx4 v[224:227], v10, s[12:15], s54 offen {SC}')
                a.e('s_add_u32 s54, s54, 1024')

    def mark_flag(self):
        a = self.a
        a.e('s_lshl_b32 s44, s23, 3')
        a.e('s_add_u32 s44, s44, s22')
        a.e('s_lshl_b32 s44, s44, 2')
        a.e(f's_add_u32 s44, s44, {PZ_OFF}')
        set_flag(a, 44, 230)

    def epilogue(self, flags=''):
        a = self.a
        a.e('v_and_b32 v4, 15, v1')
        a.e('v_lshlrev_b32 v4, 4, v4')
        a.e('v_lshrrev_b32 v5, 5, v1')
        a.e('v_lshl_add_u32 v4, v5, 2, v4')
        poll(a, self.gate_load, [self.XF + 1], 8, first_done=True)
        a.e('v_and_b32 v5, 16, v1')
        a.e('v_cmp_eq_u32 vcc, 0, v5')
        for qt in range(2):
            o = self.OB + 16 * qt
            t = self.PF + 4 * qt
            c = self.P2
            for i in range(3):
                a.e(f'v_mov_b32 v{c + i}, v{t + i}')
            for i in range(3):
                a.e(f'v_permlane16_swap_b32 v{t + i}, v{c + i}')
            for i in range(3):
                a.e(f'v_add_f32 v{t + i}, v{t + i}, v{c + i}')
            a.e(f'v_rcp_f32 v6, v{t + 2}')
            a.e(f'v_mul_f32 v6, v6, v{self.XF}')
            a.e(f'v_pk_mul_f32 {vr(t, 2)}, {vr(t, 2)}, v[6:7] op_sel_hi:[1,0]')
            a.e('v_mov_b32 v7, v6')
            a.e('v_permlane32_swap_b32 v6, v7')
            a.e('v_cndmask_b32 v6, v7, v6, vcc')
            for i in range(4):
                a.e(f'v_pk_add_f32 {vr(o + 2 * i, 2)}, {vr(o + 2 * i, 2)}, {vr(o + 8 + 2 * i, 2)}')
            for i in range(4):
                a.e(f'v_pk_mul_f32 {vr(o + 2 * i, 2)}, {vr(o + 2 * i, 2)}, v[6:7] op_sel_hi:[1,0]')
            pk = self.SB + 8 * qt
            for i in range(4):
                a.e(f'v_cvt_pk_bf16_f32 v{pk + i}, v{o + 2 * i}, v{o + 2 * i + 1}')
            a.e(f'v_cvt_pk_bf16_f32 v{pk + 4}, v{t}, v{t + 1}')
            for i in range(5):
                a.e(f'v_min_u32 v{pk + i}, -2, v{pk + i}')
            a.e(f'buffer_store_dwordx4 {vr(pk, 4)}, v10, s[12:15], s52 offen offset:{1024 * qt} {flags}')
            a.e('s_mov_b32 exec_lo, 0xffff')
            a.e('s_mov_b32 exec_hi, 0xffff')
            a.e(f'buffer_store_dword v{pk + 4}, v4, s[12:15], s53 offen offset:{8 * qt} {flags}')
            a.e('s_mov_b64 exec, -1')

    def gate_load(self):
        a = self.a
        a.e(f's_mov_b32 s38, {GATE_OFF}')
        a.e(f'buffer_load_dwordx2 {vr(self.XF, 2)}, v3, s[12:15], s38 offen {SC}')


def p3_pre(a):
    a.e('s_and_b32 s44, s22, 1')
    a.e('s_lshl_b32 s66, s21, 1')
    a.e('s_add_u32 s66, s66, s44')
    a.e('s_lshr_b32 s67, s22, 1')
    a.e('s_lshl_b32 s68, s21, 8')
    a.e(f's_add_u32 s68, s68, {PZ_OFF}')
    a.e('s_lshl_b32 s69, s67, 9')
    a.e(f's_add_u32 s69, s69, {FW3_OFF}')
    a.e('v_lshlrev_b32 v7, 2, v1')
    a.e('v_min_u32 v8, 44, v1')
    a.e('v_lshlrev_b32 v8, 3, v8')
    p3_flags(a)
    a.vmq += ['pre', 'pre']


def p3_flags(a):
    a.e(f'buffer_load_dword v4, v7, s[12:15], s68 offen {SC}')
    a.e(f'buffer_load_dwordx2 v[2:3], v8, s[12:15], s69 offen {SC}')


def p3(a):
    ACC = 16
    FR = 112
    HF = 240
    DEPTH = 4
    NS = 23
    a.e('s_mul_i32 s44, s20, 18')
    a.e('s_add_u32 s44, s44, 18')
    a.e('s_mul_i32 s45, s20, 5')
    a.e('s_cmp_eq_u32 s20, 3')
    a.e('s_cselect_b32 s46, 1, 0')
    a.e('s_sub_u32 s45, s45, s46')
    a.e('s_mul_i32 s46, s67, 90')
    a.e('s_add_u32 s25, s44, s46')
    a.e('s_mul_i32 s25, s25, 4608')
    a.e(f's_add_u32 s25, s25, {W3_OFF}')
    a.e('s_add_u32 s31, s45, s46')
    a.e('s_mul_i32 s31, s31, 4608')
    a.e(f's_add_u32 s31, s31, {W3_OFF}')
    a.e('v_lshrrev_b32 v6, 4, v1')
    a.e('v_lshlrev_b32 v6, 3, v6')
    a.e('v_and_b32 v9, 7, v1')
    a.e('v_add_u32 v6, v6, v9')
    a.e('v_lshlrev_b32 v6, 4, v6')
    a.e('v_bfe_u32 v9, v1, 3, 1')
    a.e('v_mul_u32_u24 v9, 4608, v9')
    a.e('v_add_u32 v6, v6, v9')
    a.e('v_add_u32 v6, 4096, v6')
    a.e('v_mov_b32 v12, v19')

    def loadW(k):
        b = FR + 32 * (k % DEPTH)
        if k == 18:
            a.e('s_mov_b32 s25, s31')
        for nt in range(4):
            a.vm(f'buffer_load_dwordx4 {vr(b + 4 * nt, 4)}, v12, s[12:15], s25 offen offset:{1024 * nt} {SCL}', ('W', k))
        if k % 2 == 0:
            a.vm(f'buffer_load_dwordx4 {vr(HF + 4 * ((k // 2) % 3), 4)}, v6, s[12:15], s25 offen {SCL}', ('W', k))
        a.e('s_add_u32 s25, s25, 4608')

    def loadF(k, track=True):
        b = FR + 32 * (k % DEPTH)
        a.e(f's_add_u32 s24, s{28 if k < 18 else 30}, {1024 * (k if k < 18 else k - 18)}')
        for i in range(4):
            t = f'buffer_load_dwordx4 {vr(b + 16 + 4 * i, 4)}, v{2 + i}, s[12:15], s24 offen {SCL}'
            a.vm(t, ('F', k)) if track else a.e(t)
    for k in range(opt('wpre', [2])[0]):
        loadW(k)
    a.e('s_mul_i32 s46, s66, 360')
    a.e('s_add_u32 s28, s44, s46')
    a.e('s_lshl_b32 s28, s28, 10')
    a.e(f's_add_u32 s28, s28, {UF_OFF}')
    a.e('s_add_u32 s30, s45, s46')
    a.e('s_lshl_b32 s30, s30, 10')
    a.e(f's_add_u32 s30, s30, {UF_OFF}')
    for i in range(4):
        a.e(f's_add_u32 s44, s20, {i}')
        a.e('s_and_b32 s44, s44, 3')
        a.e('s_mul_i32 s44, s44, 92160')
        a.e(f'v_add_u32 v{2 + i}, s44, v12')
    a.e('s_mov_b32 s8, s64')
    a.e('s_mov_b32 s9, s65')
    srd(a, 8, 2048 * 1152)
    a.e(f's_mov_b32 s51, {SPIN_MAX}')
    a.wait_vm('st')
    for k in range(DEPTH):
        if k >= opt('wpre', [2])[0]:
            loadW(k)
        loadF(k)
    stamp(a, 5)
    a.e(f's_setprio {opt("pg", PG)[2]}')
    lskip = a.newlabel('P3_SKIP')
    for k in range(NS):
        b = FR + 32 * (k % DEPTH)
        if k == NS - 1:
            a.e('s_cmp_ge_u32 s20, 2')
            a.e(f's_cbranch_scc1 {lskip}')
            a.wait_vm0()
        a.wait_vm(('F', k))
        lc = a.newlabel('P3_C')
        lok = a.newlabel('P3_OK')
        a.label(lc)
        a.e(f'v_max3_u32 v9, v{b + 16}, v{b + 17}, v{b + 18}')
        a.e(f'v_max3_u32 v10, v{b + 19}, v{b + 20}, v{b + 21}')
        for i in range(22, 32, 4):
            a.e(f'v_max3_u32 v9, v{b + i}, v{b + i + 1}, v9')
            if i + 2 < 32:
                a.e(f'v_max3_u32 v10, v{b + i + 2}, v{b + i + 3}, v10')
        a.e('v_max_u32 v9, v9, v10')
        a.e('v_cmp_eq_u32 vcc, -1, v9')
        a.e(f's_cbranch_vccz {lok}')
        a.e(f's_sleep {opt("psl", [4])[0]}')
        loadF(k, False)
        a.e('s_waitcnt vmcnt(0)')
        a.e('s_sub_u32 s51, s51, 1')
        a.e('s_cmp_lt_i32 s51, 1')
        a.e(f's_cbranch_scc0 {lc}')
        a.label(lok)
        hf = HF + 4 * ((k // 2) % 3)
        for i in range(4):
            for nt in range(5):
                n2 = nt if nt < 4 else 4 + k % 2
                d = vr(ACC + 16 * n2 + 4 * i, 4)
                first = k == 0 or (nt == 4 and k == 1)
                a.e(f'v_mfma_f32_16x16x32_bf16 {d}, {vr(b + 4 * nt, 4) if nt < 4 else vr(hf, 4)}, {vr(b + 16 + 4 * i, 4)}, {"0" if first else d}')
        kn = k + DEPTH
        if kn == NS - 1:
            ls = a.newlabel('P3_NL')
            a.e('s_cmp_ge_u32 s20, 2')
            a.e(f's_cbranch_scc1 {ls}')
            q1 = list(a.vmq)
            loadW(kn)
            loadF(kn)
            a.vmq = q1
            a.label(ls)
        elif kn < NS:
            loadW(kn)
            loadF(kn)
    a.label(lskip)
    a.e('s_nop 7')
    stamp(a, 6)
    a.e('s_mov_b32 exec_lo, 0')
    for i in range(16):
        a.e(f'v_mov_b32 v{ACC + 64 + i}, v{ACC + 80 + i}')
    a.e('s_mov_b64 exec, -1')
    for i in range(1, 4):
        a.e(f's_add_u32 s44, s20, {i}')
        a.e('s_and_b32 s44, s44, 3')
        a.e('s_mul_i32 s44, s44, 15360')
        a.e(f'v_add_u32 v{8 + i}, s44, v12')
        for nt in range(5):
            a.lg(f'ds_write_b128 v{8 + i}, {vr(ACC + 16 * nt + 4 * i, 4)} offset:{5120 * (i - 1) + 1024 * nt}', 'w')
    a.e('s_mul_i32 s26, s20, 15360')
    a.e('v_add_u32 v8, s26, v12')
    a.e('s_lshl_b32 s27, s66, 6')
    a.e('s_lshr_b32 s28, s20, 1')
    a.e('s_lshl_b32 s28, s28, 5')
    a.e('s_add_u32 s27, s27, s28')
    a.e('s_and_b32 s28, s20, 1')
    a.e('s_lshl_b32 s28, s28, 2')
    a.e('s_add_u32 s27, s27, s28')
    a.e('v_bfe_u32 v13, v1, 2, 2')
    a.e('v_lshlrev_b32 v13, 3, v13')
    a.e('v_and_b32 v14, 3, v1')
    a.e('v_add3_u32 v13, v13, v14, s27')
    a.e('v_mul_u32_u24 v13, 1152, v13')
    a.e('v_lshrrev_b32 v14, 4, v1')
    a.e('v_lshl_add_u32 v15, v14, 3, v13')
    a.e('v_lshl_add_u32 v13, v14, 4, v13')
    a.e('s_mul_i32 s27, s67, 144')
    a.wait_all()
    a.e('s_barrier')
    for nt in range(5):
        for i in range(3):
            a.lg(f'ds_read_b128 {vr(FR + 12 * nt + 4 * i, 4)}, v8 offset:{5120 * i + 1024 * nt}', ('r', nt))
    PKB = FR + 64
    OSC = 'sc1' if 'osc1' in ABL else 'nt' if 'ont' in ABL else ''
    for nt in range(5):
        a.wait_lg(('r', nt))
        b = FR + 12 * nt
        o = ACC + 16 * nt
        for h in range(2):
            a.e(f'v_pk_add_f32 {vr(b + 2 * h, 2)}, {vr(b + 2 * h, 2)}, {vr(b + 4 + 2 * h, 2)}')
            a.e(f'v_pk_add_f32 {vr(o + 2 * h, 2)}, {vr(o + 2 * h, 2)}, {vr(b + 8 + 2 * h, 2)}')
        for h in range(2):
            a.e(f'v_pk_add_f32 {vr(b + 2 * h, 2)}, {vr(b + 2 * h, 2)}, {vr(o + 2 * h, 2)}')
        if nt == 4:
            for r in range(4):
                a.e(f'v_mov_b32 v{o + r}, v{b + r}')
            for r in range(4):
                a.e(f'v_permlane32_swap_b32 v{b + r}, v{o + r}')
            for h in range(2):
                a.e(f'v_pk_add_f32 {vr(b + 2 * h, 2)}, {vr(b + 2 * h, 2)}, {vr(o + 2 * h, 2)}')
        for h in range(2):
            a.e(f'v_cvt_pk_bf16_f32 v{PKB + 2 * nt + h}, v{b + 2 * h}, v{b + 2 * h + 1}')
        if nt in (1, 3):
            a.e(f'buffer_store_dwordx4 {vr(PKB + 2 * nt - 2, 4)}, v13, s[8:11], s27 offen offset:{64 * (nt // 2)} {OSC}')
        if nt == 4:
            a.e('s_mov_b32 exec_hi, 0')
            a.e(f'buffer_store_dwordx2 {vr(PKB + 8, 2)}, v15, s[8:11], s27 offen offset:128 {OSC}')
            a.e('s_mov_b64 exec, -1')


def kernel_text(name, a, vgpr=256, sgpr=96):
    a.fix_hazards()
    mv, ms, ma = a.max_regs()
    assert mv <= vgpr and ms <= sgpr and ma == 0, (mv, ms, ma)
    body = f'.globl {name}\n.p2align 8\n.type {name},@function\n{name}:\n' + a.text()
    desc = f""".p2align 6
.amdhsa_kernel {name}
  .amdhsa_next_free_vgpr {vgpr}
  .amdhsa_next_free_sgpr {sgpr}
  .amdhsa_accum_offset {(vgpr + 3) // 4 * 4}
  .amdhsa_group_segment_fixed_size 0
  .amdhsa_kernarg_size 112
  .amdhsa_user_sgpr_count 2
  .amdhsa_user_sgpr_kernarg_segment_ptr 1
  .amdhsa_system_sgpr_workgroup_id_x 1
.end_amdhsa_kernel
"""
    return body, desc


def build_file(kernels):
    hdr = open('cdna_kernels/' + NAME + '.s.ref').read().split('\n')
    head = [l for l in hdr if l.startswith(';') and '@launch' not in l and 'Override' not in l and 'grid=ceil' not in l]
    head = head[:15]
    out = '\n'.join(head) + '\n'
    for name, a, grid, block, lds, vgpr in kernels:
        kn = f'kernel={name} ' if (len(kernels) > 1 or LIST) else ''
        out += f'; @launch {kn}grid=({grid},1,1) block=({block},1,1) lds={lds}\n'
    out += '.amdgcn_target "amdgcn-amd-amdhsa--gfx950"\n.text\n'
    out += f'.set CODE_LINES, (K_END - {NAME}_kernel) / 128 - 4\n'
    descs = ''
    for name, a, grid, block, lds, vgpr in kernels:
        b, d = kernel_text(name, a, vgpr)
        out += b
        descs += d
    out += '.section .rodata,"a"\n' + descs
    return out


NG1, NG2 = 1, 3


def mega():
    a = Asm()
    a.e('s_cmp_ge_u32 s2, 512')
    a.e('s_cbranch_scc1 K_END')
    stamp(a, 0)
    a.e('s_cmp_lt_u32 s2, 256')
    a.e('s_cbranch_scc1 K_GEMM')
    a.e('s_sub_u32 s3, s2, 256')
    P = opt('pa', [3, 1])
    t = ATT(a)
    t.setup(3)
    write_nonce(a)
    if 'afine' in ABL:
        a.e('s_branch K_DONE')
    t.retile_setup()
    t.mark()
    stamp(a, 1)
    a.e(f's_setprio {P[0]}')
    t.q_phase()
    stamp(a, 2)
    a.e(f's_setprio {P[1]}')
    if 'noattmain' in ABL:
        for p in range(3):
            if p == 2:
                t.mark_part(0, 12)
            a.wait_all()
            t.side(p)
        t.gate_load()
        a.wait_all()
    else:
        t.main(flags=SCL)
    stamp(a, 3)
    a.e('s_setprio 3')
    t.epilogue(flags=SC)
    a.e('s_branch K_DONE')
    a.label('K_GEMM')
    a.vmq = []
    a.lgq = []
    g = GW(a)
    UB, UP = g.UB, g.UP
    g.limitA = UB
    g.setup()
    if 'afine' in ABL:
        stamp(a, 1)
    g.prologue_issue()
    if 'afine' in ABL:
        stamp(a, 2)
    g.setup2()
    if 'afine' in ABL:
        stamp(a, 3)
        g.hooks[0] = lambda: stamp(a, 4)
        g.hooks[6] = lambda: stamp(a, 5)
        g.hooks[12] = lambda: stamp(a, 6)

    def nonce_ld():
        a.e('v_mov_b32 v23, 0')
        a.vm(f'global_load_dword v24, v23, s[16:17] {SC}', 'nonce')
    g.hooks[21] = nonce_ld
    g.run_segment(0, UB)
    if 'afine' in ABL:
        a.e('s_branch K_DONE')
    stamp(a, 1)
    n1, n2 = opt('ng', [NG1, NG2])
    nb1 = opt('nb1', [8])[0]
    a.wait_vm('nonce')
    get_nonce(a, 23, 24)
    g.proj_store()
    g.limitA = UP
    a.vmq.append('pst')
    a.vmq.append('pst')
    a.e('s_barrier')
    for _ in range(g.R - 1):
        g.run(g.issueA())
    g.z2_gelu_publish()

    LF = 'lnfine' in ABL
    if LF:
        stamp(a, 2)
    g.run_segment(UB, nb1)
    if LF:
        stamp(a, 3)
    g.z2_gather_norm_store()
    stamp(a, 4 if LF else 2)
    a.e('s_lshl_b32 s49, s22, 9')
    a.e(f's_add_u32 s49, s49, {FZ_OFF}')
    a.e('s_lshl_b32 s48, s32, 7')
    a.e('s_add_u32 s48, s48, s49')
    a.e('s_and_b32 s50, s23, 15')
    a.e('s_lshl_b32 s50, s50, 2')
    a.e('s_add_u32 s48, s48, s50')
    a.e('s_and_b32 s50, s32, 2')
    a.e('s_lshl_b32 s50, s50, 7')
    a.e('s_add_u32 s50, s50, s49')
    a.e('v_and_b32 v29, 15, v1')
    a.e('v_lshlrev_b32 v29, 2, v29')
    a.e('v_lshrrev_b32 v23, 4, v1')
    a.e('v_lshl_add_u32 v23, v23, 7, v29')
    a.e('v_and_b32 v29, 0xff, v23')

    def zflag():
        a.wait_vm('st')
        set_flag(a, 48, 27)
    g.hooks[UB + nb1 + opt('zf', [4])[0]] = zflag
    g.run_segment(UB + nb1, 18 - nb1)
    if LF:
        stamp(a, 5)
    g.own_write()
    g.z1_gelu(range(0, n1))
    g.nextA = UP + 4
    g.run_segment(UP, 4, own=True)
    g.z1_gelu(range(n1, n2))
    if LF:
        stamp(a, 6)
    poll(a, lambda: a.e(f'buffer_load_dword v26, v29, s[12:15], s50 offen {SC}'), [26], 27)
    if LF:
        a.e('s_branch K_DONE')
    stamp(a, 3)
    g.limitA = len(g.units)
    a.e('s_barrier')
    for _ in range(g.R - 1):
        g.run(g.issueA())
    g.z1_gelu(range(n2, 9))
    g.hooks[UP + 58] = g.sp_pre

    def zall():
        a.e(f'buffer_load_dword v26, v23, s[12:15], s49 offen {SC}')

    def zall0():
        zall()
        a.vmq.append('zf')

    def zall1():
        a.wait_vm('zf')
        poll(a, zall, [26], 27, first_done=True)
    g.hooks[UP + 10] = zall0
    g.hooks[UP + 15] = zall1
    g.hooks[UP + 61] = lambda: p3_pre(a)
    g.hooks[UP + opt('gsw', [62])[0]] = lambda: a.e('s_setprio 0')

    if opt('gate'):
        def prog():
            a.e('s_lshl_b32 s44, s2, 7')
            a.e(f's_add_u32 s44, s44, {PROG_OFF}')
            set_flag(a, 44, 27)
        g.hooks[UP + opt('gate')[1]] = prog
    g.run_segment(UP + 4, 60)
    if 'p2fine' in ABL:
        a.e('s_branch K_DONE')
    stamp(a, 4)
    g.sp_epilogue()
    p3(a)
    a.label('K_DONE')
    stamp_flush(a, 0)
    a.label('K_END')
    a.e('s_endpgm')
    return (NAME + '_kernel', a, 512, 256, 81920, 256)


LIST = False
if __name__ == '__main__':
    if '--stamp' in sys.argv:
        STAMP = True
        sys.argv.remove('--stamp')
    if '--list' in sys.argv:
        LIST = True
        sys.argv.remove('--list')
    for x in list(sys.argv):
        if x.startswith('--abl='):
            ABL.update(x[6:].split(','))
            sys.argv.remove(x)
    out = sys.argv[1] if len(sys.argv) > 1 else 'out.s'
    open(out, 'w').write(build_file([mega()]))
    print('wrote', out)
```

```python
import sys, struct
from asmlib import Asm

NAME = 'gated_mix__grouped_kv_mqa__mixer_gmlp__prompt'

Z2_OFF = 0x10000
UF_OFF = Z2_OFF + 9437184
W3_OFF = UF_OFF + 11796480
KV_OFF = W3_OFF + 3317760
KV_TILE = 2496
GATE_OFF = KV_OFF + 160 * 1024
STATS_OFF = GATE_OFF + 16384
FLAG_OFF = STATS_OFF + 524288
FKV_OFF = FLAG_OFF
FW3_OFF = FLAG_OFF + 49152
FZ_OFF = FLAG_OFF + 4096
PZ_OFF = FLAG_OFF + 65536
PROG_OFF = FLAG_OFF + 16384
GO_OFF = FLAG_OFF + 98304
KVF_OFF = FLAG_OFF
QF_OFF = FLAG_OFF + 131072
SC = 'sc1' if 'sconly1' in ' '.join(sys.argv) else 'sc0 sc1'
SCL = '' if '--abl' in ' '.join(sys.argv) and 'noscl' in ' '.join(sys.argv) else 'sc1'
WS_SIZE = 0x1c00000
assert QF_OFF + 128 * 16 * 1152 <= 0x1b00000
STAMP_OFF = 0x1b00000

A_X, A_WQ, A_WK, A_WV, A_WO, A_BX, A_WIN, A_WSP, A_BSP, A_WOUT, A_GW, A_OUT, A_DBG, A_WS = [8 * i for i in range(14)]

STAMP = False
ABL = set()


def opt(name, default=None):
    for x in ABL:
        if x.startswith(name + ':'):
            return [int(v) for v in x.split(':')[1:]]
    return default


def f2u(f):
    return struct.unpack('<I', struct.pack('<f', f))[0]


def hx(f):
    return '0x%08x' % f2u(f)


def srd(a, d, size):
    a.e(f's_mov_b32 s{d + 2}, {size}')
    a.e(f's_mov_b32 s{d + 3}, 0x00020000')


def vr(b, n):
    return f'v[{b}:{b + n - 1}]'


def stamp(a, idx):
    if not STAMP:
        return
    a.wait_lg0()
    a.e('s_memrealtime s[78:79]')
    a.e('s_memtime s[76:77]')
    a.e('s_waitcnt lgkmcnt(0)')
    a.e(f's_mov_b32 s{80 + idx}, s78')
    a.e(f's_mov_b32 s{88 + idx}, s76')


def stamp_flush(a, kidx):
    if not STAMP:
        return
    a.e('s_waitcnt vmcnt(0) lgkmcnt(0)')
    stamp(a, 7)
    a.e(f's_load_dwordx2 s[74:75], s[0:1], {A_WS}')
    a.e('s_waitcnt lgkmcnt(0)')
    a.e('v_lshrrev_b32 v1, 6, v0')
    a.e('v_lshlrev_b32 v1, 6, v1')
    a.e('s_lshl_b32 s78, s2, 8')
    a.e(f's_add_u32 s78, s78, {STAMP_OFF + kidx * 131072}')
    a.e('v_add_u32 v1, s78, v1')
    for i in range(16):
        a.e(f'v_mov_b32 v{4 + i}, s{80 + i}')
    for i in range(4):
        a.e(f'global_store_dwordx4 v1, v[{4 + 4 * i}:{7 + 4 * i}], s[74:75] offset:{16 * i}')
    if 'dbgstamp' in ABL:
        a.e('s_cmp_lt_u32 s2, 256')
        a.e('s_cselect_b32 s78, 4, 36')
        a.e('v_mov_b32 v1, s78')
        a.e('s_mov_b64 exec, 1')
        for i in range(1, 8):
            a.e(f'v_subrev_u32 v{4 + i}, s62, v{4 + i}')
            a.e(f'global_atomic_umax v1, v{4 + i}, s[16:17] offset:{4 * (i - 1)} sc1')
        a.e('v_sub_u32 v4, s62, v4')
        a.e('v_add_u32 v4, 1000, v4')
        a.e('v_mov_b32 v1, 32')
        a.e('global_atomic_umax v1, v4, s[16:17] sc1')
        a.e('s_mov_b64 exec, -1')


QSCALE = 18 ** -0.5 * 1.4426950408889634
GELU_C0 = -2.0 * 1.4426950408889634 * 0.7978845608028654
GELU_C1 = GELU_C0 * 0.044715


def gelu_group(a, regs, T, sC1, vC0):
    n = len(regs)
    for i, r in enumerate(regs):
        a.e(f'v_pk_mul_f32 {vr(T + 2 * i, 2)}, {vr(r, 2)}, {vr(r, 2)}')
    for i, r in enumerate(regs):
        a.e(f'v_pk_fma_f32 {vr(T + 2 * i, 2)}, {vr(T + 2 * i, 2)}, s[{sC1}:{sC1 + 1}], {vr(vC0, 2)}')
    for i, r in enumerate(regs):
        a.e(f'v_pk_mul_f32 {vr(T + 2 * i, 2)}, {vr(T + 2 * i, 2)}, {vr(r, 2)}')
    for i in range(2 * n):
        a.e(f'v_exp_f32 v{T + i}, v{T + i}')
    for i, r in enumerate(regs):
        a.e(f'v_pk_add_f32 {vr(T + 2 * i, 2)}, {vr(T + 2 * i, 2)}, 1.0 op_sel_hi:[1,0]')
    for i in range(2 * n):
        a.e(f'v_rcp_f32 v{T + i}, v{T + i}')
    for i, r in enumerate(regs):
        a.e(f'v_pk_mul_f32 {vr(r, 2)}, {vr(T + 2 * i, 2)}, {vr(r, 2)}')


SPIN_MAX = 300000
PG = [2, 2, 0]


def poll(a, loads, regs, t0, first_done=False, sleep=1):
    lp = a.newlabel('POLL')
    lc = a.newlabel('POLLC')
    lg = a.newlabel('POLLOK')
    a.e(f's_mov_b32 s51, {SPIN_MAX}')
    if first_done:
        a.e(f's_branch {lc}')
    a.label(lp)
    loads()
    a.e('s_waitcnt vmcnt(0)')
    a.label(lc)
    a.e(f'v_xor_b32 v{t0}, s62, v{regs[0]}')
    for r in regs[1:]:
        a.e(f'v_xor_b32 v{t0 + 1}, s62, v{r}')
        a.e(f'v_or_b32 v{t0}, v{t0}, v{t0 + 1}')
    a.e(f'v_cmp_ne_u32 vcc, 0, v{t0}')
    a.e(f's_cbranch_vccz {lg}')
    a.e(f's_sleep {sleep}')
    a.e('s_sub_u32 s51, s51, 1')
    a.e('s_cmp_lg_u32 s51, 0')
    a.e(f's_cbranch_scc1 {lp}')
    a.label(lg)
    if not first_done:
        a.vmq = []


def get_nonce(a, vz, vn):
    lp = a.newlabel('NONCE')
    lg = a.newlabel('NONCE_OK')
    a.e(f's_mov_b32 s51, {SPIN_MAX}')
    a.label(lp)
    a.e(f'v_readfirstlane_b32 s62, v{vn}')
    a.e('s_cmp_lg_u32 s62, 0')
    a.e(f's_cbranch_scc1 {lg}')
    a.e('s_sleep 32')
    a.e(f'global_load_dword v{vn}, v{vz}, s[16:17] {SC}')
    a.e('s_waitcnt vmcnt(0)')
    a.e('s_sub_u32 s51, s51, 1')
    a.e('s_cmp_lg_u32 s51, 0')
    a.e(f's_cbranch_scc1 {lp}')
    a.label(lg)


def set_flag(a, soff, t0):
    a.e(f'v_mov_b32 v{t0}, 0')
    a.e(f'v_mov_b32 v{t0 + 1}, s62')
    a.e('s_mov_b64 exec, 1')
    a.vm(f'buffer_store_dword v{t0 + 1}, v{t0}, s[12:15], s{soff} offen {SC}', 'flag')
    a.e('s_mov_b64 exec, -1')


class GW:
    R = 5
    SLOT = 8192
    SGL = 40960
    BBASE = 49152
    AF = 32
    BF = 68
    ACC0 = 100
    ACC1 = 172
    UB = 27
    UP = 45

    def __init__(self, a):
        self.a = a
        self.units = []
        self.stages = []
        for st in range(9):
            self.stages.append(('x', st))
            self.units += [('z2', 2 * st, st, 0, 2 * st), ('z2', 2 * st + 1, st, 1, 2 * st + 1), ('E', st, st, 0, None)]
        for k in range(18):
            if k % 2 == 0:
                self.stages.append(('x', k // 2))
            self.units.append(('z1', k, 9 + k // 2, k % 2, 18 + k))
        for k in range(64):
            if k % 2 == 0:
                self.stages.append(('sp', k // 2))
            self.units.append(('sp', k, 18 + k // 2, k % 2, 36 + k))
        self.nextA = 0
        self.nextB = 0
        self.limitA = len(self.units)
        self.pendB = []
        self.hooks = {}

    def setup(self):
        a = self.a
        a.e(f's_load_dwordx4 s[4:7], s[0:1], {A_X}')
        a.e(f's_load_dwordx2 s[8:9], s[0:1], {A_WIN}')
        a.e(f's_load_dwordx4 s[16:19], s[0:1], {A_DBG}')
        a.e(f's_load_dwordx4 s[52:55], s[0:1], {A_WSP}')
        a.e(f's_load_dwordx2 s[64:65], s[0:1], {A_OUT}')
        a.e(f's_load_dwordx4 s[68:71], s[0:1], {A_WK}')
        a.e('v_lshrrev_b32 v1, 6, v0')
        a.e('v_readfirstlane_b32 s20, v1')
        a.e('v_and_b32 v1, 63, v0')
        a.e('s_lshr_b32 s31, s2, 3')
        a.e('s_and_b32 s32, s2, 3')
        a.e('s_and_b32 s34, s31, 3')
        a.e('s_lshl_b32 s21, s32, 2')
        a.e('s_add_u32 s21, s21, s34')
        a.e('s_lshr_b32 s35, s31, 2')
        a.e('s_and_b32 s22, s2, 4')
        a.e('s_lshl_b32 s22, s22, 1')
        a.e('s_add_u32 s22, s22, s35')
        a.e('s_lshl_b32 s23, s21, 2')
        a.e('s_add_u32 s23, s23, s20')
        a.e('s_lshl_b32 s39, s34, 1')
        a.e('s_add_u32 s39, s39, s35')
        a.e('s_cmp_ge_u32 s39, 9')
        a.e('s_cselect_b32 s40, 9, 0')
        a.e('s_sub_u32 s39, s39, s40')
        if 'norot' in ABL:
            a.e('s_mov_b32 s39, 0')
        a.e('s_mul_i32 s24, s39, %d' % (64 * 9216))
        a.e('s_lshl_b32 s25, s39, 7')
        a.e('s_lshl_b32 s28, s39, 1')
        a.e('s_add_u32 s28, s28, s20')
        a.e('s_cmp_ge_u32 s28, 18')
        a.e('s_cselect_b32 s29, 18, 0')
        a.e('s_sub_u32 s28, s28, s29')
        a.e(f's_mul_i32 s28, s28, {32 * 9216}')
        a.e('s_lshl_b32 s26, s20, 11')
        a.e('s_lshl_b32 s27, s20, 12')
        a.e(f's_add_u32 s27, s27, {self.BBASE}')
        a.e('s_lshl_b32 s30, s20, 10')
        a.e(f's_add_u32 s30, s30, {self.SGL}')
        a.e('v_and_b32 v23, 7, v1')
        a.e('v_lshrrev_b32 v24, 5, v1')
        a.e('v_lshlrev_b32 v24, 3, v24')
        a.e('v_bfe_u32 v25, v1, 3, 2')
        a.e('s_lshl_b32 s44, s23, 5')
        a.e('v_add3_u32 v24, v24, v25, s44')
        a.e('v_lshrrev_b32 v25, 4, v1')
        a.e('v_xor_b32 v25, v25, v23')
        a.e('v_lshlrev_b32 v25, 4, v25')
        a.e('v_xor_b32 v26, 64, v25')
        a.e('v_mul_u32_u24 v27, 1152, v24')
        a.e('v_add_u32 v5, v27, v25')
        a.e('v_add_u32 v6, v27, v26')
        a.e(f'v_add_u32 v6, {16 * 1152 - 1024}, v6')
        a.e(f'v_add_u32 v7, {4 * 1152 - 2048}, v5')
        a.e(f'v_add_u32 v8, {4 * 1152 - 2048}, v6')
        a.e('s_lshl_b32 s42, s22, 8')
        a.e('s_mul_i32 s43, s20, %d' % (8 * 9216))
        a.e('s_add_u32 s42, s42, s43')
        a.e('s_add_u32 s42, s42, 4608')
        a.e('v_bfe_u32 v2, v1, 2, 2')
        a.e('v_mul_u32_u24 v2, 9216, v2')
        a.e('v_lshrrev_b32 v3, 4, v1')
        a.e('v_lshl_add_u32 v2, v3, 6, v2')
        a.e('s_and_b32 s44, s20, 1')
        a.e('s_lshl_b32 s45, s44, 1')
        a.e('v_and_b32 v3, 3, v1')
        a.e('v_xor_b32 v3, s45, v3')
        a.e('v_lshl_add_u32 v2, v3, 4, v2')
        a.e('v_add_u32 v2, s42, v2')
        a.e(f'v_add_u32 v3, {4 * 9216 - 1024}, v2')
        a.e('v_lshrrev_b32 v29, 1, v1')
        a.e('v_and_b32 v27, 19, v29')
        a.e('v_bfe_u32 v28, v29, 2, 1')
        a.e('v_lshl_add_u32 v27, v28, 3, v27')
        a.e('v_bfe_u32 v28, v29, 3, 1')
        a.e('v_lshl_add_u32 v27, v28, 2, v27')
        a.e('v_mul_u32_u24 v4, 9216, v27')
        a.e('v_and_b32 v27, 1, v1')
        a.e('v_lshl_add_u32 v4, v27, 4, v4')
        a.e('s_lshl_b32 s45, s22, 5')
        a.e(f's_add_u32 s45, s45, {4096 + 4608}')
        a.e('v_add_u32 v4, s45, v4')
        a.e('v_mul_u32_u24 v27, 36, v27')
        a.e('v_lshrrev_b32 v20, 2, v1')
        a.e('v_mul_u32_u24 v20, 1152, v20')
        a.e('v_bfe_u32 v28, v1, 1, 1')
        a.e('v_lshl_add_u32 v20, v28, 4, v20')
        a.e('v_add_u32 v20, v20, v27')
        a.e('v_mul_u32_u24 v28, 1152, v29')
        a.e('v_add3_u32 v28, v28, v27, 32')
        a.e('s_cmp_eq_u32 s20, 2')
        a.e('s_cselect_b64 vcc, -1, 0')
        a.e('v_cndmask_b32 v20, v20, v28, vcc')
        a.e('v_mul_u32_u24 v28, 36, v29')
        a.e('s_cmp_eq_u32 s20, 3')
        a.e('s_cselect_b64 vcc, -1, 0')
        a.e('v_cndmask_b32 v20, v20, v28, vcc')
        a.e('s_mul_i32 s44, s22, 72')
        a.e('s_cmp_eq_u32 s20, 1')
        a.e(f's_cselect_b32 s45, {16 * 1152}, 0')
        a.e('s_add_u32 s44, s44, s45')
        a.e('s_and_b32 s45, s22, 1')
        a.e('s_lshl_b32 s45, s45, 4')
        a.e('s_cmp_ge_u32 s22, 4')
        a.e('s_cselect_b32 s45, 32, s45')
        a.e('s_cmp_eq_u32 s20, 3')
        a.e('s_cselect_b32 s44, s45, s44')
        a.e(f's_movk_i32 s58, 1152')
        a.e('s_cselect_b32 s58, 36, s58')
        a.e('v_add_u32 v20, s44, v20')
        a.e('s_lshl_b32 s44, s58, 5')
        a.e('s_sub_u32 s44, s44, 1024')
        a.e('v_add_u32 v244, s44, v20')
        a.e('s_mul_i32 s42, s58, 576')
        a.e('s_lshl_b32 s58, s58, 6')
        a.e('s_mul_i32 s59, s58, s39')
        a.e('s_lshr_b32 s44, 0x2c, s22')
        a.e('s_and_b32 s44, s44, 1')
        a.e('s_waitcnt lgkmcnt(0)')
        a.e('s_cmp_eq_u32 s44, 1')
        a.e('s_cselect_b32 s40, s70, s68')
        a.e('s_cselect_b32 s41, s71, s69')
        a.e('s_cmp_eq_u32 s20, 3')
        a.e('s_cselect_b32 s40, s40, s6')
        a.e('s_cselect_b32 s41, s41, s7')
        a.e('s_mov_b32 s43, 0x00020000')
        srd(a, 4, 2359296)
        srd(a, 8, 576 * 9216)
        a.e('s_mov_b32 s12, s18')
        a.e('s_mov_b32 s13, s19')
        srd(a, 12, WS_SIZE)
        a.e('s_mov_b32 s56, s54')
        a.e('s_mov_b32 s57, s55')
        srd(a, 52, 2048 * 4096)
        self.consts()

    def setup2(self):
        a = self.a
        a.e('v_lshlrev_b32 v27, 12, v24')
        a.e('v_add_u32 v12, v27, v25')
        a.e('v_add_u32 v13, v27, v26')
        a.e(f'v_add_u32 v13, {16 * 4096 - 1024}, v13')
        a.e(f'v_add_u32 v14, {4 * 4096 - 2048}, v12')
        a.e(f'v_add_u32 v15, {4 * 4096 - 2048}, v13')
        a.e('s_xor_b32 s37, s21, s35')
        a.e('s_lshl_b32 s45, s22, 13')
        a.e('s_add_u32 s45, s45, s26')
        a.e(f's_add_u32 s45, s45, {Z2_OFF}')
        a.e('v_lshlrev_b32 v19, 4, v1')
        a.e('v_add_u32 v9, s45, v19')
        a.e('s_lshl_b32 s45, s22, 10')
        a.e('s_mul_i32 s46, s20, 147456')
        a.e('s_add_u32 s45, s45, s46')
        a.e(f's_add_u32 s45, s45, {128 * 1024 + Z2_OFF}')
        a.e('v_add_u32 v10, s45, v19')
        a.e('v_lshrrev_b32 v27, 4, v1')
        a.e('v_and_b32 v29, 3, v1')
        a.e('v_lshlrev_b32 v28, 3, v29')
        a.e('v_bfe_u32 v29, v1, 2, 3')
        a.e('v_lshl_add_u32 v18, v29, 5, v28')
        a.e('v_lshrrev_b32 v29, 5, v1')
        a.e('v_lshl_add_u32 v18, v29, 9, v18')
        a.e('v_lshl_add_u32 v28, v27, 11, v28')
        a.e('v_bfe_u32 v29, v1, 2, 2')
        a.e('v_lshl_add_u32 v28, v29, 6, v28')
        a.e('v_and_b32 v29, 1, v27')
        a.e('v_lshl_add_u32 v16, v29, 5, v28')
        a.e('v_xor_b32 v17, 32, v16')
        a.e('v_and_b32 v28, 15, v1')
        a.e('v_lshlrev_b32 v245, 4, v28')
        a.e('v_lshl_add_u32 v245, v29, 9, v245')
        a.e('v_lshrrev_b32 v29, 5, v1')
        a.e('v_lshl_add_u32 v245, v29, 11, v245')
        a.e('v_bfe_u32 v29, v1, 2, 2')
        a.e('v_lshl_add_u32 v29, v27, 3, v29')
        a.e('v_lshlrev_b32 v246, 5, v29')
        a.e('v_and_b32 v29, 1, v1')
        a.e('v_lshlrev_b32 v23, 4, v29')
        a.e('v_add_u32 v23, 4096, v23')
        a.e('v_lshlrev_b32 v29, 3, v29')
        a.e('v_add_u32 v29, 6144, v29')
        a.e('v_and_b32 v24, 2, v1')
        a.e('v_cmp_eq_u32 vcc, 0, v24')
        a.e('v_cndmask_b32 v29, v29, v23, vcc')
        a.e('v_add_u32 v246, v246, v29')
        a.e('v_bfe_u32 v29, v1, 1, 3')
        a.e('v_xor_b32 v29, v29, v27')
        a.e('v_lshlrev_b32 v28, 7, v28')
        a.e('v_lshl_add_u32 v28, v29, 4, v28')
        a.e('v_add_u32 v21, s27, v28')
        a.e('v_xor_b32 v28, 64, v28')
        a.e('v_add_u32 v22, s27, v28')
        self.gelu_consts()

    def consts(self):
        a = self.a
        for i in range(5):
            a.e(f's_add_u32 s{66 + i}, s26, {i * self.SLOT}')
        a.e('s_mov_b32 s71, s30')
        a.e('s_add_u32 s72, s30, 4096')
        a.e('s_mov_b32 s73, s27')
        a.e('s_add_u32 s63, s27, 16384')
        a.e(f's_mov_b32 s33, {32 * 9216}')
        a.e(f's_mov_b32 s36, {576 * 9216}')
        a.e('s_mov_b32 s38, 147456')
        a.e('s_movk_i32 s3, 1152')

    def S(self, text, cost=4):
        return (cost, lambda: self.a.e(text))

    def D(self, text, tag):
        return (12, lambda: self.a.vm(text, tag))

    def grp(self, g, d, t):
        S = self.S
        if g == 0:
            return [S(f's_mov_b32 s{d}, s21')]
        if g < 8:
            return [S(f's_add_u32 s{d}, s35, {g}'), S(f's_cmp_ge_u32 s{d}, 8\ns_cselect_b32 s{t}, 7, 0', 8),
                    S(f's_sub_u32 s{d}, s{d}, s{t}'), S(f's_xor_b32 s{d}, s{d}, s21')]
        return [S(f's_xor_b32 s{d}, s37, {g}')]

    def issueA(self):
        u = self.nextA
        if u >= self.limitA:
            return []
        self.nextA += 1
        S, D = self.S, self.D
        seg, i, _, _, si = self.units[u]
        tag = ('A', u)
        m0 = S(f's_mov_b32 m0, s{66 + u % self.R}')
        if seg == 'E':
            return [m0, D('buffer_load_dwordx4 v20, s[40:43], s59 offen lds', tag),
                    D('buffer_load_dwordx4 v244, s[40:43], s59 offen offset:1024 lds', tag),
                    S('s_add_u32 s59, s59, s58'), S('s_cmp_eq_u32 s59, s42\ns_cselect_b32 s59, 0, s59', 8)]
        m1 = S(f's_mov_b32 m0, s{71 + (si // 4) % 2}')
        out = []
        if seg == 'sp':
            if i % 4 == 0:
                out += self.grp(i // 4, 24, 29) + [S('s_mul_i32 s24, s24, 589824', 6)]
            out += [m0, D(f'buffer_load_dwordx4 v9, s[12:15], s24 offen {SCL} lds', tag),
                    D(f'buffer_load_dwordx4 v9, s[12:15], s24 offen offset:1024 {SCL} lds', tag)]
            if i % 4 == 0:
                out += [m1, D(f'buffer_load_dwordx4 v10, s[12:15], s24 offen {SCL} lds', tag)]
            if i % 4 != 3:
                out.append(S('s_add_u32 s24, s24, s38'))
            return out
        if seg == 'z1' and i == 0:
            out += [S('v_subrev_u32 v2, 4608, v2', 8), S('v_subrev_u32 v3, 4608, v3', 8)]
        out += [m0, D('buffer_load_dwordx4 v2, s[8:11], s24 offen lds', tag),
                D('buffer_load_dwordx4 v3, s[8:11], s24 offen offset:1024 lds', tag), S('s_add_u32 s24, s24, s33')]
        if i % 2 == 1:
            out.append(S('s_cmp_eq_u32 s24, s36\ns_cselect_b32 s24, 0, s24', 8))
        if si % 4 == 0:
            if si == 16:
                out += [S('s_cmp_lt_u32 s20, 2\ns_cselect_b32 s29, 0, 4608', 10), S('v_subrev_u32 v4, s29, v4')]
            if si == 20:
                out += [S('s_cmp_lt_u32 s20, 2\ns_cselect_b32 s29, 4608, 0', 10), S('v_subrev_u32 v4, s29, v4')]
            out += [m1, D('buffer_load_dwordx4 v4, s[8:11], s28 offen lds', tag), S(f's_add_u32 s28, s28, {128 * 9216}', 6),
                    S('s_cmp_ge_u32 s28, s36\ns_cselect_b32 s29, s36, 0', 8), S('s_sub_u32 s28, s28, s29')]
        return out

    def issueB(self):
        s = self.nextB
        if s >= len(self.stages):
            return [[], []]
        self.nextB += 1
        S, D = self.S, self.D
        seg, i = self.stages[s]
        tag = ('B', s)
        sp = seg == 'sp'
        vb = 12 if sp else 5
        sr = 's[52:55]' if sp else 's[4:7]'
        m0 = S(f's_mov_b32 m0, s{(73, 63)[s % 2]}')
        ld = [D(f'buffer_load_dwordx4 v{vb + j}, {sr}, s25 offen offset:{1024 * j} lds', tag) for j in range(4)]
        pre = []
        if sp:
            pre = self.grp(i // 2, 25, 46) + [S('s_lshl_b32 s25, s25, 8')] if i % 2 == 0 else [S('s_addk_i32 s25, 128')]
        post = [] if sp else [S('s_addk_i32 s25, 128'), S('s_cmp_eq_u32 s25, s3\ns_cselect_b32 s25, 0, s25', 8)]
        return [pre + [m0] + ld[:2], [m0] + ld[2:] + post]

    def nfr(self, u):
        return 6 if self.units[u][0] == 'E' else 9

    def freg(self, u, F):
        return (self.ACC1 + 24 if self.units[u][0] == 'E' else self.AF) + 4 * F

    def readA(self, u, F):
        a = self.a
        seg, i, _, _, si = self.units[u]
        slot = (u % self.R) * self.SLOT
        tag = ('AR', u, F)
        r = self.freg(u, F)

        def L(t):
            return (8, lambda: a.lg(t, tag))
        if seg == 'E':
            kk, t = F // 3, F % 3
            if t < 2:
                return [L(f'ds_read_b64_tr_b16 {vr(r + 2 * j, 2)}, v245 offset:{slot + kk * 1024 + j * 256 + t * 8}') for j in range(2)]
            return [L(f'ds_read_b64_tr_b16 {vr(r + 2 * j, 2)}, v246 offset:{slot + kk * 1024 + j * 128}') for j in range(2)]
        sgl = self.SGL + ((si // 4) % 2) * 4096 + (si % 4) * 1024
        if seg == 'sp':
            return [L(f'ds_read_b128 {vr(r, 4)}, v19 offset:{slot + F * 1024 if F < 8 else sgl}')]
        if F < 8:
            return [L(f'ds_read_b64_tr_b16 {vr(r + 2 * j, 2)}, v{16 + F % 2} offset:{slot + j * 1024 + (F // 2) * 256}') for j in range(2)]
        return [L(f'ds_read_b64_tr_b16 {vr(r + 2 * j, 2)}, v18 offset:{sgl + j * 256}') for j in range(2)]

    def readB(self, s):
        a = self.a
        out = [(4, lambda: a.wait_vm(('B', s)))]
        for jj in range(2):
            for e in range(2):
                t = f'ds_read_b128 {vr(self.BF + 16 * (s % 2) + 8 * jj + 4 * e, 4)}, v{21 + jj} offset:{(s % 2) * 16384 + e * 2048}'
                out.append((8, lambda t=t: a.lg(t, ('BR', s))))
        return out

    def run(self, items):
        for _, f in items:
            f()

    def prologue_issue(self):
        b0 = self.issueB()
        self.run(b0[0] + b0[1][1:] + self.issueA() + self.issueA() + self.issueA())
        b1 = self.issueB()
        self.run(b1[0] + b1[1][1:] + self.issueA())

    def run_segment(self, u0, n, own=False):
        a = self.a
        a.e(f's_setprio {opt("pg", PG)[0]}')
        self.run(self.readB(self.units[u0][2]))
        a.wait_vm(('A', u0))
        a.wait_lg('own')
        a.e('s_barrier')
        for F in range(9):
            self.run(self.readA(u0, F))
        carry = []
        for u in range(u0, u0 + n):
            last = u == u0 + n - 1
            seg, kk, s, jj, _ = self.units[u]
            sfirst = u == u0 or self.units[u - 1][2] != s
            pos = u - min(v for v in range(u0, u + 1) if self.units[v][2] == s)
            nf = self.nfr(u)
            if 'p2fine' in ABL and u >= self.UP + 4 and (u - self.UP - 4) % 10 == 0:
                stamp(a, 1 + (u - self.UP - 4) // 10)
            will_issue = self.nextA <= u + self.R - 1 and self.nextA < self.limitA
            if not last:
                a.wait_vm(('A', u + 1))
            if will_issue or (not last and not own):
                a.e('s_barrier')
            if u in self.hooks:
                self.hooks[u]()
            misc = self.issueA() if self.nextA <= u + self.R - 1 else []
            if sfirst and self.nextB <= s + 2:
                self.pendB = self.issueB()
            pb = self.pendB.pop(0) if self.pendB else []
            reads = [(0, it) for it in carry]
            carry = []
            if not last:
                same = self.freg(u, 0) == self.freg(u + 1, 0)
                for F in range(self.nfr(u + 1)):
                    its = self.readA(u + 1, F)
                    if nf == 6 and F >= 7:
                        carry += its
                    else:
                        reads += [(2 * F + 1 if same else 0, it) for it in its]
            stage_end = max(v for v in range(u, u0 + n) if self.units[v][2] == s)
            if pos == 1 and stage_end < u0 + n - 1:
                misc += self.readB(s + 1)
            misc += pb
            ng = 2 * nf
            nwait = (nf + 1) // 2
            total = sum(c for _, (c, _) in reads) + sum(c for c, _ in misc) + 4 * nwait + 8
            done = 0
            for g in range(ng):
                F, e = g // 2, g % 2
                if g == 0:
                    a.wait_lg(('AR', u, 0))
                    if sfirst:
                        a.wait_lg(('BR', s))
                af = vr(self.freg(u, F), 4)
                if seg == 'E':
                    d = vr(self.ACC1 + 8 * (F % 3) + 4 * e, 4)
                    c = '0' if (kk == 0 and F < 3) else d
                    bf = vr(self.BF + 16 * (s % 2) + 8 * (F // 3) + 4 * e, 4)
                else:
                    d = vr((self.ACC1 if seg == 'z1' else self.ACC0) + 8 * F + 4 * e, 4)
                    c = '0' if kk == 0 else d
                    bf = vr(self.BF + 16 * (s % 2) + 8 * jj + 4 * e, 4)
                if seg == 'z2':
                    a.e(f'v_mfma_f32_16x16x32_bf16 {d}, {bf}, {af}, {c}')
                else:
                    a.e(f'v_mfma_f32_16x16x32_bf16 {d}, {af}, {bf}, {c}')
                used = 0
                needw = e == 1 and F % 2 == 0 and F + 1 < nf
                if needw:
                    used += 4
                if g == ng - 1:
                    used += 8
                target = max(12 * (g + 1), total * (g + 1) / ng)
                while True:
                    cand = None
                    if reads and reads[0][0] <= g and (not misc or len(reads) * 1.0 >= (ng - g) * 0.55 or misc[0][0] + used > 12):
                        cand = 'r'
                    elif misc:
                        cand = 'm'
                    elif reads and reads[0][0] <= g:
                        cand = 'r'
                    if cand is None:
                        break
                    cost = reads[0][1][0] if cand == 'r' else misc[0][0]
                    if g < ng - 1 and used + cost > 12 and done + used + cost > total * (g + 1) / ng:
                        break
                    (reads.pop(0)[1] if cand == 'r' else misc.pop(0))[1]()
                    used += cost
                done += used
                if needw:
                    a.wait_lg(('AR', u, F + 1))
                    a.wait_lg(('AR', u, min(F + 2, nf - 1)))
                    self.merge_waits()
            assert not reads and not misc
        a.e(f's_setprio {opt("pg", PG)[1]}')

    def merge_waits(self):
        ins = self.a.ins
        if len(ins) >= 2 and ins[-1].text.startswith('s_waitcnt lgkmcnt') and ins[-2].text.startswith('s_waitcnt lgkmcnt'):
            del ins[-2]

    def proj_store(self):
        a = self.a
        E = self.ACC1
        P = self.AF
        a.e(f's_mov_b32 s44, {hx(QSCALE)}')
        a.e(f's_mov_b32 s45, {hx(QSCALE)}')
        a.e('v_mov_b32 v24, s44')
        a.e('s_bitcmp1_b32 0x2c, s22')
        a.e(f's_cselect_b32 s46, {hx(2.0 ** VSH)}, 1.0')
        a.e('v_mov_b32 v25, s46')
        a.e('v_cmp_gt_u32 vcc, 32, v1')
        a.e('v_cndmask_b32 v24, v25, v24, vcc')
        a.e('s_lshl_b32 s46, s23, 5')
        a.e('s_add_u32 s46, s46, s22')
        a.e('s_mul_i32 s46, s46, 1152')
        a.e(f's_add_u32 s46, s46, {QF_OFF}')
        a.e(f's_add_u32 s47, s46, {16 * 1152}')
        a.e('v_lshlrev_b32 v25, 2, v1')
        for e in range(2):
            for t in range(2):
                for h in range(2):
                    r = E + 8 * t + 4 * e + 2 * h
                    a.e(f'v_pk_mul_f32 {vr(r, 2)}, {vr(r, 2)}, s[44:45]')
            for r in (E + 16 + 4 * e, E + 18 + 4 * e):
                a.e(f'v_pk_mul_f32 {vr(r, 2)}, {vr(r, 2)}, v[24:25] op_sel_hi:[1,0]')
            for t in range(3):
                for h in range(2):
                    r = E + 8 * t + 4 * e + 2 * h
                    a.e(f'v_cvt_pk_bf16_f32 v{P + 8 * e + 2 * t + h}, v{r}, v{r + 1}')
            for i in range(6):
                a.e(f'v_min_u32 v{P + 8 * e + i}, -2, v{P + 8 * e + i}')
            a.vm(f'buffer_store_dwordx4 {vr(P + 8 * e, 4)}, v19, s[12:15], s{46 + e} offen {SC}', 'pst')
        a.e('s_mov_b32 exec_hi, 0')
        for e in range(2):
            a.vm(f'buffer_store_dword v{P + 8 * e + 4}, v25, s[12:15], s{46 + e} offen offset:1024 {SC}', 'pst')
        a.e('s_mov_b64 exec, -1')
        le = a.newlabel('PJ_E')
        lv = a.newlabel('PJ_V')
        lt = a.newlabel('PJ_T')
        ls = a.newlabel('PJ_S')
        a.e('s_cmp_ge_u32 s22, 6')
        a.e(f's_cbranch_scc1 {le}')
        a.e(f's_mul_i32 s44, s23, {KV_TILE}')
        a.e(f's_add_u32 s44, s44, {KV_OFF}')
        a.e('v_and_b32 v24, 15, v1')
        a.e('v_bfe_u32 v25, v1, 4, 1')
        a.e('v_lshrrev_b32 v26, 2, v24')
        a.e('v_mul_u32_u24 v26, 168, v26')
        a.e('v_add_u32 v26, 1152, v26')
        a.e('v_and_b32 v27, 3, v1')
        a.e('s_mov_b32 exec_lo, 0')
        a.e('s_cmp_ge_u32 s22, 4')
        a.e(f's_cbranch_scc1 {lt}')
        a.e('s_cmp_ge_u32 s22, 2')
        a.e(f's_cbranch_scc1 {lv}')
        a.e('v_lshlrev_b32 v28, 4, v24')
        a.e('v_lshl_add_u32 v28, v25, 3, v28')
        a.e('s_lshl_b32 s45, s22, 9')
        a.e('s_add_u32 s44, s44, s45')
        a.e('s_add_u32 s45, s44, 256')
        a.e(f's_branch {ls}')
        a.label(lv)
        a.e('v_lshl_add_u32 v28, v27, 5, v26')
        a.e('v_lshl_add_u32 v28, v25, 3, v28')
        a.e('s_and_b32 s45, s22, 1')
        a.e('s_lshl_b32 s45, s45, 4')
        a.e('s_add_u32 s44, s44, s45')
        a.e(f's_add_u32 s45, s44, {4 * 168}')
        a.e(f's_branch {ls}')
        a.label(lt)
        lvt = a.newlabel('PJ_VT')
        a.e('s_cmp_eq_u32 s22, 5')
        a.e(f's_cbranch_scc1 {lvt}')
        a.e('v_lshlrev_b32 v28, 2, v24')
        a.e('s_mov_b32 exec_hi, 0xffff')
        for e in range(2):
            a.e(f'buffer_store_dword v{P + 8 * e + 4}, v28, s[12:15], s44 offen offset:{1024 + 64 * e} {SC}')
        a.e(f's_branch {le}')
        a.label(lvt)
        a.e('v_lshl_add_u32 v28, v27, 3, v26')
        a.e('v_add_u32 v28, 128, v28')
        a.e('v_add_u32 v29, 160, v26')
        a.e('v_cmp_eq_u32 vcc, 0, v25')
        a.e('v_cndmask_b32 v28, v29, v28, vcc')
        a.e(f'v_mov_b32 v29, {f2u(2.0 ** VSH) >> 16}')
        for e in range(2):
            a.e(f'v_cndmask_b32 v{P + 8 * e + 4}, 0, v{P + 8 * e + 4}, vcc')
            a.e(f'v_cndmask_b32 v{P + 8 * e + 5}, 0, v29, vcc')
        a.e(f's_add_u32 s45, s44, {4 * 168}')
        a.label(ls)
        for e in range(2):
            a.e(f'buffer_store_dwordx2 {vr(P + 8 * e + 4, 2)}, v28, s[12:15], s{44 + e} offen {SC}')
        a.label(le)
        a.e('s_mov_b64 exec, -1')

    def mk_load(self):
        self.a.e(f'buffer_load_dwordx2 v[26:27], v23, s[12:15], s47 offen {SC}')

    def mk_addr(self):
        a = self.a
        a.e('s_bfe_u32 s47, s22, 0x20001')
        a.e('s_lshl_b32 s47, s47, 3')
        a.e('s_bfe_u32 s45, s23, 0x30001')
        a.e('s_add_u32 s47, s47, s45')
        a.e('s_lshl_b32 s47, s47, 3')
        a.e('s_and_b32 s45, s2, 7')
        a.e('s_add_u32 s47, s47, s45')
        a.e('s_lshl_b32 s47, s47, 7')
        a.e('s_and_b32 s45, s23, 1')
        a.e('s_lshl_b32 s45, s45, 3')
        a.e('s_add_u32 s47, s47, s45')
        a.e(f's_add_u32 s47, s47, {GO_OFF}')

    def proj_signal(self):
        a = self.a
        a.wait_vm('pst')
        a.e('v_mov_b32 v28, s62')
        a.e('s_barrier')
        l = a.newlabel('PS')
        a.e('s_cmp_ge_u32 s22, 6')
        a.e(f's_cbranch_scc1 {l}')
        a.e('s_cmp_lg_u32 s20, 0')
        a.e(f's_cbranch_scc1 {l}')
        a.e('s_mul_i32 s44, s21, 6')
        a.e('s_add_u32 s44, s44, s22')
        a.e('s_lshl_b32 s44, s44, 2')
        a.e(f's_add_u32 s44, s44, {KVF_OFF}')
        a.e('v_lshlrev_b32 v27, 9, v1')
        a.e('s_mov_b64 exec, 0xff')
        a.e(f'buffer_store_dword v28, v27, s[12:15], s44 offen {SC}')
        a.e('s_mov_b64 exec, -1')
        a.label(l)

    def gelu_consts(self):
        a = self.a
        a.e(f's_mov_b32 s60, {hx(GELU_C1)}')
        a.e(f's_mov_b32 s61, {hx(GELU_C1)}')
        a.e(f'v_mov_b32 v30, {hx(GELU_C0)}')
        a.e(f'v_mov_b32 v31, {hx(GELU_C0)}')

    def z1_gelu(self, Fs=range(9)):
        a = self.a
        T = self.BF + 16
        for F in Fs:
            base = self.ACC1 + 8 * F
            gelu_group(a, [base + 2 * i for i in range(4)], T + 8 * (F % 2), 60, 30)

    def z2_gelu_publish(self):
        a = self.a
        T = self.AF + 16
        S = self.BF
        for F in range(9):
            if F == opt('psig', [5])[0]:
                self.proj_signal()
            base = self.ACC0 + 8 * F
            gelu_group(a, [base + 2 * i for i in range(4)], T + 8 * (F % 2), 60, 30)
            for i in range(4):
                y = vr(base + 2 * i, 2)
                if F == 0:
                    a.e(f'v_pk_add_f32 {vr(S + 2 * i, 2)}, {y}, 0 op_sel_hi:[1,0]')
                    a.e(f'v_pk_mul_f32 {vr(S + 8 + 2 * i, 2)}, {y}, {y}')
                else:
                    a.e(f'v_pk_add_f32 {vr(S + 2 * i, 2)}, {vr(S + 2 * i, 2)}, {y}')
                    a.e(f'v_pk_fma_f32 {vr(S + 8 + 2 * i, 2)}, {y}, {y}, {vr(S + 8 + 2 * i, 2)}')
        for b in (S, S + 8):
            for r in range(4):
                a.e(f'v_add_f32_dpp v{b + r}, v{b + r}, v{b + r} row_ror:8 row_mask:0xf bank_mask:0x3')
            for r in range(4):
                a.e(f'v_add_f32_dpp v{b + r}, v{b + r + 4}, v{b + r + 4} row_ror:8 row_mask:0xf bank_mask:0xc')
        for b in (S, S + 8):
            for r in range(2):
                a.e(f'v_add_f32_dpp v{b + r}, v{b + r}, v{b + r} row_shl:4 row_mask:0xf bank_mask:0x5')
            for r in range(2):
                a.e(f'v_add_f32_dpp v{b + r}, v{b + r + 2}, v{b + r + 2} row_shr:4 row_mask:0xf bank_mask:0xa')
        for qp in ('[1,0,3,2]', '[2,3,0,1]'):
            for r in (S, S + 1, S + 8, S + 9):
                a.e(f'v_add_f32_dpp v{r}, v{r}, v{r} quad_perm:{qp} row_mask:0xf bank_mask:0xf')
        a.e('v_and_b32 v25, 1, v1')
        a.e('v_cmp_eq_u32 vcc, 1, v25')
        G0 = S + 12
        a.e(f'v_cndmask_b32 v{G0}, v{S}, v{S + 1}, vcc')
        a.e(f'v_cndmask_b32 v{G0 + 1}, v{S + 8}, v{S + 9}, vcc')
        a.e('v_lshrrev_b32 v27, 2, v1')
        a.e('v_lshl_add_u32 v27, v27, 1, v25')
        a.e('v_lshlrev_b32 v27, 4, v27')
        a.e('s_lshl_b32 s48, s23, 13')
        a.e(f's_add_u32 s48, s48, {STATS_OFF}')
        a.e('s_lshl_b32 s49, s22, 9')
        a.e('s_add_u32 s49, s49, s48')
        a.e(f'v_mov_b32 v{G0 + 2}, s62')
        a.e(f'v_mov_b32 v{G0 + 3}, s62')
        a.e('s_mov_b32 exec_lo, 0x33333333')
        a.e('s_mov_b32 exec_hi, 0x33333333')
        a.vm(f'buffer_store_dwordx4 {vr(G0, 4)}, v27, s[12:15], s49 offen {SC}', 'st')
        a.e('s_mov_b64 exec, -1')

    def z2_gather_norm_store(self):
        a = self.a
        G = self.AF
        a.e('s_add_u32 s49, s48, 4096')

        def ld():
            for i in range(8):
                a.e(f'buffer_load_dwordx4 {vr(G + 4 * i, 4)}, v19, s[12:15], {"s48" if i < 4 else "s49"} offen offset:{1024 * (i % 4)} {SC}')
        poll(a, ld, [G + 4 * i + 2 for i in range(8)], 27)
        for i in (0, 2, 4, 6):
            a.e(f'v_pk_add_f32 {vr(G + 4 * i, 2)}, {vr(G + 4 * i, 2)}, {vr(G + 4 * i + 4, 2)}')
        a.e(f'v_pk_add_f32 {vr(G, 2)}, {vr(G, 2)}, {vr(G + 8, 2)}')
        a.e(f'v_pk_add_f32 {vr(G + 16, 2)}, {vr(G + 16, 2)}, {vr(G + 24, 2)}')
        a.e(f'v_pk_add_f32 {vr(G, 2)}, {vr(G, 2)}, {vr(G + 16, 2)}')
        a.e(f'v_mov_b32 v{G + 2}, v{G}')
        a.e(f'v_mov_b32 v{G + 3}, v{G + 1}')
        a.e(f'v_permlane32_swap_b32 v{G}, v{G + 2}')
        a.e(f'v_permlane32_swap_b32 v{G + 1}, v{G + 3}')
        a.e(f'v_pk_add_f32 {vr(G, 2)}, {vr(G, 2)}, {vr(G + 2, 2)}')
        a.e(f'v_mul_f32 v{G}, {hx(1.0 / 2304)}, v{G}')
        a.e(f'v_mul_f32 v{G + 1}, {hx(1.0 / 2304)}, v{G + 1}')
        a.e(f'v_fma_f32 v{G + 1}, -v{G}, v{G}, v{G + 1}')
        a.e(f'v_max_f32 v{G + 1}, 0, v{G + 1}')
        a.e(f'v_add_f32 v{G + 1}, {hx(1e-5)}, v{G + 1}')
        a.e(f'v_rsq_f32 v{G + 1}, v{G + 1}')
        a.e(f'v_mul_f32 v{G}, v{G}, v{G + 1}')
        a.e(f'v_sub_f32 v{G}, 0, v{G}')
        a.e('v_lshrrev_b32 v28, 4, v1')
        a.e('v_lshlrev_b32 v28, 5, v28')
        RS = self.BF
        for i in range(8):
            a.lg(f'ds_bpermute_b32 v{RS + i}, v28, v{G + 1} offset:{4 * i}', 'r')
            a.lg(f'ds_bpermute_b32 v{RS + 8 + i}, v28, v{G} offset:{4 * i}', 'r')
        a.e('s_mul_i32 s44, s23, 147456')
        a.e(f's_add_u32 s44, s44, {Z2_OFF}')
        a.e('s_lshl_b32 s45, s22, 13')
        a.e('s_add_u32 s45, s45, s44')
        a.e('s_add_u32 s47, s45, 4096')
        a.e('s_lshl_b32 s46, s22, 10')
        a.e('s_add_u32 s46, s46, s44')
        a.e(f's_add_u32 s46, s46, {128 * 1024}')
        a.wait_lg0()
        for F in range(9):
            base = self.ACC0 + 8 * F
            pk = self.ACC0 + 4 * F
            for i in range(4):
                a.e(f'v_pk_fma_f32 {vr(base + 2 * i, 2)}, {vr(base + 2 * i, 2)}, {vr(RS + 2 * i, 2)}, {vr(RS + 8 + 2 * i, 2)}')
            for i in range(4):
                a.e(f'v_cvt_pk_bf16_f32 v{pk + i}, v{base + 2 * i}, v{base + 2 * i + 1}')
            so = 's46' if F == 8 else ('s45' if F < 4 else 's47')
            a.vm(f'buffer_store_dwordx4 {vr(pk, 4)}, v19, s[12:15], {so} offen offset:{1024 * (F % 4)} {SC}', 'st')

    def own_write(self):
        a = self.a
        a.e('s_lshl_b32 s44, s20, 13')
        a.e('v_add_u32 v27, s44, v19')
        a.e('v_add_u32 v28, s30, v19')
        a.e('s_barrier')
        for F in range(9):
            pk = self.ACC0 + 4 * F
            if F < 8:
                a.lg(f'ds_write_b128 v27, {vr(pk, 4)} offset:{1024 * F}', 'own')
            else:
                a.lg(f'ds_write_b128 v28, {vr(pk, 4)} offset:4096', 'own')

    def sp_pre(self):
        a = self.a
        a.e('v_bfe_u32 v27, v1, 2, 2')
        a.e('v_lshlrev_b32 v27, 3, v27')
        a.e('v_and_b32 v28, 3, v1')
        a.e('s_lshl_b32 s44, s23, 5')
        a.e('v_add3_u32 v27, v27, v28, s44')
        a.e('v_lshlrev_b32 v28, 1, v27')
        a.e('v_lshlrev_b32 v11, 3, v27')
        a.vm('global_load_ushort v244, v28, s[56:57]', 'pre')
        a.vm('global_load_ushort v245, v28, s[56:57] offset:8', 'pre')
        self.gate_loads(True)

    def gate_loads(self, track=False):
        a = self.a
        a.e(f's_mov_b32 s44, {GATE_OFF}')
        for e in range(2):
            t = f'buffer_load_dwordx2 {vr(246 + 2 * e, 2)}, v11, s[12:15], s44 offen offset:{32 * e} {SC}'
            a.vm(t, 'pre') if track else a.e(t)

    def sp_epilogue(self):
        a = self.a
        a.wait_vm('pre')
        poll(a, self.gate_loads, [247, 249], 27, first_done=True)
        poll(a, lambda: p3_flags(a), [2, 3, 4], 27, first_done=True)
        for e in range(2):
            a.e(f'v_sub_f32 v{246 + 2 * e}, 1.0, v{246 + 2 * e}')
            a.e(f'v_lshlrev_b32 v{244 + e}, 16, v{244 + e}')
            a.e(f'v_mul_f32 v{250 + 2 * e}, v{244 + e}, v{246 + 2 * e}')
        a.e('s_mul_i32 s44, s23, 180')
        a.e('s_lshr_b32 s45, s22, 2')
        a.e('s_mul_i32 s45, s45, 18')
        a.e('s_add_u32 s44, s44, s45')
        a.e('s_lshl_b32 s44, s44, 10')
        a.e(f's_add_u32 s44, s44, {UF_OFF + 18 * 1024}')
        a.e('s_and_b32 s45, s22, 3')
        a.e('s_lshl_b32 s46, s45, 12')
        a.e('s_add_u32 s46, s46, s44')
        a.e(f's_add_u32 s47, s46, {90 * 1024}')
        a.e('s_lshr_b32 s48, s45, 1')
        a.e('s_lshl_b32 s48, s48, 10')
        a.e('s_add_u32 s48, s48, s44')
        a.e('s_and_b32 s49, s45, 1')
        a.e('s_lshl_b32 s49, s49, 3')
        a.e('s_add_u32 s48, s48, s49')
        a.e(f's_add_u32 s48, s48, {16 * 1024}')
        a.e(f's_add_u32 s49, s48, {90 * 1024}')
        idx = 0
        for m in range(5):
            for e in range(2):
                pk = self.AF + 4 * idx
                idx += 1
                Fs = (2 * m, 2 * m + 1) if m < 4 else (8,)
                prs = [(self.ACC0 + 8 * F + 4 * e + 2 * i, self.ACC1 + 8 * F + 4 * e + 2 * i) for F in Fs for i in range(2)]
                for g, z in prs:
                    a.e(f'v_pk_fma_f32 {vr(g, 2)}, {vr(g, 2)}, {vr(246 + 2 * e, 2)}, {vr(250 + 2 * e, 2)} op_sel_hi:[1,0,0]')
                for g, z in prs:
                    a.e(f'v_pk_mul_f32 {vr(g, 2)}, {vr(g, 2)}, {vr(z, 2)}')
                for i, (g, z) in enumerate(prs):
                    a.e(f'v_cvt_pk_bf16_f32 v{pk + i}, v{g}, v{g + 1}')
                for i in range(len(prs)):
                    a.e(f'v_min_u32 v{pk + i}, -2, v{pk + i}')
                if m < 4:
                    a.vm(f'buffer_store_dwordx4 {vr(pk, 4)}, v19, s[12:15], s{46 + e} offen offset:{1024 * m} {SC}', 'st')
                else:
                    a.vm(f'buffer_store_dwordx2 {vr(pk, 2)}, v19, s[12:15], s{48 + e} offen {SC}', 'st')


def write_nonce(a):
    l = a.newlabel('NOW')
    a.e('s_cmp_lg_u32 s3, 0')
    a.e(f's_cbranch_scc1 {l}')
    a.e(f's_add_u32 s44, s26, {KV_OFF}')
    for i in range(10):
        a.e(f'buffer_store_dwordx4 v[224:227], v10, s[12:15], s44 offen {SC}')
        a.e('s_add_u32 s44, s44, 1024')
    a.e('s_memrealtime s[44:45]')
    a.e('s_waitcnt vmcnt(0) lgkmcnt(0)')
    a.e('s_barrier')
    a.e('s_cmp_lg_u32 s20, 0')
    a.e(f's_cbranch_scc1 {l}')
    a.e('v_mov_b32 v29, 0')
    a.e('s_or_b32 s44, s44, 1')
    a.e('v_mov_b32 v28, s44')
    a.e(f'global_store_dword v29, v28, s[16:17] {SC}')
    a.label(l)


KVBUF = 40960
M_OFFSET = 96.0
VSH = 32


class ATT:
    SB = 16
    OB = 48
    QF = 80
    KF = 96
    VF = 112
    PF = 128
    XF = 136
    WF = 208
    WQS = 16

    def __init__(self, a):
        self.a = a

    def setup(self, sid):
        a = self.a
        a.e(f's_load_dwordx2 s[4:5], s[0:1], {A_X}')
        a.e(f's_load_dwordx4 s[16:19], s[0:1], {A_DBG}')
        a.e(f's_load_dwordx4 s[56:59], s[0:1], {A_WOUT}')
        a.e(f's_load_dwordx2 s[36:37], s[0:1], {A_WO}')
        a.e(f's_load_dwordx2 s[60:61], s[0:1], {A_WSP}')
        a.e('v_lshrrev_b32 v1, 6, v0')
        a.e('v_readfirstlane_b32 s20, v1')
        a.e('v_and_b32 v1, 63, v0')
        a.e(f's_and_b32 s24, s{sid}, 3')
        a.e(f's_lshr_b32 s25, s{sid}, 3')
        a.e('s_lshl_b32 s21, s24, 3')
        a.e('s_and_b32 s23, s25, 7')
        a.e('s_add_u32 s21, s21, s23')
        a.e(f's_and_b32 s22, s{sid}, 4')
        a.e('s_lshr_b32 s23, s25, 3')
        a.e('s_add_u32 s22, s22, s23')
        a.e('s_lshl_b32 s23, s21, 2')
        a.e('s_add_u32 s23, s23, s20')
        a.e('s_lshr_b32 s44, s23, 1')
        a.e('s_lshl_b32 s44, s44, 5')
        a.e('s_and_b32 s45, s23, 1')
        a.e('s_lshl_b32 s45, s45, 2')
        a.e('s_add_u32 s44, s44, s45')
        a.e('v_bfe_u32 v3, v1, 2, 2')
        a.e('v_lshlrev_b32 v3, 3, v3')
        a.e('v_and_b32 v10, 3, v1')
        a.e('v_add3_u32 v3, v3, v10, s44')
        a.e('v_lshlrev_b32 v3, 3, v3')
        a.e('s_mul_i32 s26, s20, 10240')
        a.e('s_lshl_b32 s27, s25, 2')
        a.e('s_add_u32 s27, s27, s20')
        if 'nocodepf' not in ABL:
            a.e('s_getpc_b64 s[8:9]')
            a.e('s_and_b32 s8, s8, 0xffffff00')
            a.e('s_mul_i32 s45, s27, 5')
            a.e('v_min_u32 v10, 4, v1')
            a.e('v_add_u32 v10, s45, v10')
            a.e('v_min_u32 v10, CODE_LINES, v10')
            a.e('v_lshlrev_b32 v238, 7, v10')
            a.e('global_load_dword v239, v238, s[8:9]')
        a.e('v_lshlrev_b32 v10, 4, v1')
        a.e('s_waitcnt lgkmcnt(0)')
        a.e('s_mov_b32 s12, s18')
        a.e('s_mov_b32 s13, s19')
        srd(a, 12, WS_SIZE)

    def nonce(self):
        a = self.a
        a.e('s_waitcnt vmcnt(0)')
        a.e('v_mov_b32 v2, 0')
        a.e(f'global_load_dword v4, v2, s[16:17] {SC}')
        a.e('s_waitcnt vmcnt(0)')
        get_nonce(a, 2, 4)

    def page_touch(self):
        a = self.a
        l = a.newlabel('PT')
        a.e('s_cmp_lg_u32 s20, 1')
        a.e(f's_cbranch_scc1 {l}')
        a.e(f's_load_dwordx2 s[44:45], s[0:1], {A_WSP}')
        a.e(f's_load_dwordx2 s[46:47], s[0:1], {A_OUT}')
        a.e('v_lshlrev_b32 v2, 19, v1')
        a.e('buffer_load_dword v255, v2, s[12:15], 0 offen')
        a.e('v_min_u32 v4, 15, v1')
        a.e('v_lshlrev_b32 v4, 19, v4')
        a.e('v_min_u32 v5, 4, v1')
        a.e('v_lshlrev_b32 v5, 19, v5')
        a.e('s_waitcnt lgkmcnt(0)')
        a.e('global_load_dword v255, v4, s[44:45]')
        a.e('global_load_dword v255, v5, s[46:47]')
        a.e('global_load_dword v255, v5, s[56:57]')
        a.label(l)

    SV = 140

    def side(self, part):
        a = self.a
        lg = a.newlabel('SJ_G')
        le = a.newlabel('SJ_E')
        a.e('s_cmp_eq_u32 s20, 3')
        a.e(f's_cbranch_scc1 {lg}')
        a.e(f's_cmp_ge_u32 s63, {0 if "nort" in ABL else 720}')
        a.e(f's_cbranch_scc1 {le}')
        self.retile(part)
        a.e(f's_branch {le}')
        a.label(lg)
        self.gate(part)
        a.label(le)
        if part == 2:
            self.mark_flag()

    def gate(self, part):
        a = self.a
        V = self.SV
        X, W = V + 8, V + 44
        if part == 0:
            a.e(f'v_lshrrev_b32 v{V}, 3, v1')
            a.e('s_lshl_b32 s44, s3, 3')
            a.e(f'v_add_u32 v{V}, s44, v{V}')
            a.e(f'v_and_b32 v{V + 1}, 7, v1')
            a.e(f'v_lshlrev_b32 v{V + 1}, 4, v{V + 1}')
            a.e(f'v_mul_u32_u24 v{V + 2}, 1152, v{V}')
            a.e(f'v_add_u32 v{V + 2}, v{V + 2}, v{V + 1}')
            for i in range(9):
                a.e(f'global_load_dwordx4 {vr(X + 4 * i, 4)}, v{V + 2}, s[4:5] offset:{128 * i}')
                a.e(f'global_load_dwordx4 {vr(W + 4 * i, 4)}, v{V + 1}, s[58:59] offset:{128 * i}')
        elif part == 1:
            A0, A1, T0, T1 = V + 4, V + 5, V + 6, V + 7
            a.e(f'v_mov_b32 v{A0}, 0')
            a.e(f'v_mov_b32 v{A1}, 0')
            for i in range(36):
                a.e(f'v_dot2c_f32_bf16 v{A0 + i % 2}, v{X + i}, v{W + i}')
            a.e('s_nop 3')
            a.e(f'v_add_f32 v{A0}, v{A0}, v{A1}')
            for m in ('quad_perm:[1,0,3,2]', 'quad_perm:[2,3,0,1]', 'row_half_mirror'):
                a.e(f'v_add_f32_dpp v{A0}, v{A0}, v{A0} {m} row_mask:0xf bank_mask:0xf')
            a.e(f'v_mul_f32 v{A0}, {hx(-1.4426950408889634)}, v{A0}')
            a.e(f'v_exp_f32 v{A0}, v{A0}')
            a.e(f'v_add_f32 v{A0}, 1.0, v{A0}')
            a.e(f'v_rcp_f32 v{A0}, v{A0}')
            a.e(f'v_mov_b32 v{A1}, s62')
            a.e(f'v_lshlrev_b32 v{V}, 3, v{V}')
            a.e(f's_mov_b32 s44, {GATE_OFF}')
            a.e('s_mov_b32 exec_lo, 0x01010101')
            a.e('s_mov_b32 exec_hi, 0x01010101')
            a.e(f'buffer_store_dwordx2 {vr(A0, 2)}, v{V}, s[12:15], s44 offen {SC}')
            a.e('s_mov_b64 exec, -1')

    def retile_setup(self):
        a = self.a
        V = self.SV
        a.e('s_mul_i32 s63, s3, 3')
        a.e('s_add_u32 s63, s63, s20')
        a.e('s_and_b32 s64, s63, 7')
        a.e('s_lshr_b32 s65, s63, 3')
        a.e('s_cmp_lt_u32 s65, 18')
        a.e('s_cselect_b32 s40, s36, s56')
        a.e('s_cselect_b32 s41, s37, s57')
        a.e(f's_mov_b32 s42, {2304 * 1152}')
        a.e(f's_cselect_b32 s42, {576 * 1152}, s42')
        a.e('s_mov_b32 s43, 0x00020000')
        a.e('s_sub_u32 s44, s65, 18')
        a.e('s_mul_i32 s45, s44, 57')
        a.e('s_lshr_b32 s45, s45, 10')
        a.e('s_mul_i32 s46, s45, 18')
        a.e('s_sub_u32 s44, s44, s46')
        a.e('s_lshl_b32 s46, s45, 9')
        a.e('s_lshl_b32 s47, s45, 6')
        a.e(f's_add_u32 s47, s47, {2048 - 512}')
        a.e('s_cmp_lt_u32 s44, 16')
        a.e('s_cselect_b32 s46, s46, s47')
        a.e('s_lshl_b32 s44, s44, 5')
        a.e('s_add_u32 s44, s44, s46')
        a.e('s_mov_b32 s45, 4')
        a.e('s_mov_b32 s46, 8')
        a.e('s_mov_b32 s47, 16')
        a.e('s_mov_b32 s48, 2')
        a.e('s_sub_u32 s49, s65, 16')
        a.e('s_mul_i32 s49, s49, 288')
        a.e('s_add_u32 s49, s49, 16')
        a.e('s_cmp_lt_u32 s65, 18')
        a.e('s_cselect_b32 s44, s49, s44')
        a.e('s_cselect_b32 s45, 72, s45')
        a.e('s_cselect_b32 s46, 144, s46')
        a.e('s_cselect_b32 s47, 36, s47')
        a.e('s_cselect_b32 s48, 18, s48')
        a.e('s_mul_i32 s49, s65, 36')
        a.e('s_cmp_lt_u32 s65, 16')
        a.e('s_cselect_b32 s44, s49, s44')
        a.e('s_cselect_b32 s45, 18, s45')
        a.e('s_cselect_b32 s46, 4, s46')
        a.e('s_cselect_b32 s47, 8, s47')
        a.e('s_cselect_b32 s48, 2, s48')
        for r in (44, 45, 46, 47):
            a.e(f's_mul_i32 s{r}, s{r}, 1152')
        a.e('s_mul_i32 s49, s64, 144')
        a.e('s_add_u32 s66, s44, s49')
        a.e('s_add_u32 s67, s66, s47')
        for i in range(2):
            a.e(f's_add_u32 s{68 + i}, s{66 + i}, s45')
        for i in range(4):
            a.e(f's_add_u32 s{70 + i}, s{66 + i}, s46')
        a.e(f'v_lshrrev_b32 v{V}, 5, v1')
        a.e(f'v_mul_lo_u32 v{V}, v{V}, s48')
        a.e('v_bfe_u32 v5, v1, 4, 1')
        a.e(f'v_add_u32 v{V}, v{V}, v5')
        a.e(f'v_mul_u32_u24 v{V}, 1152, v{V}')
        a.e('v_and_b32 v5, 15, v1')
        a.e('v_min_u32 v5, 8, v5')
        a.e(f'v_lshl_add_u32 v{V}, v5, 4, v{V}')
        a.e('v_lshrrev_b32 v5, 4, v1')
        a.e('v_bfe_u32 v6, v1, 2, 2')
        a.e('v_lshlrev_b32 v7, 11, v5')
        a.e('v_lshl_add_u32 v7, v6, 8, v7')
        a.e(f's_add_u32 s44, s26, {KVBUF}')
        a.e('v_add_u32 v7, s44, v7')
        a.e('v_and_b32 v6, 3, v1')
        a.e(f'v_lshl_add_u32 v{V + 2}, v6, 3, v7')
        a.e(f'v_lshl_add_u32 v{V + 1}, v6, 4, v7')
        a.e('v_and_b32 v6, 7, v1')
        a.e('v_lshl_add_u32 v5, v5, 3, v6')
        a.e('v_lshlrev_b32 v5, 4, v5')
        a.e(f'v_add_u32 v{V + 3}, 4096, v5')

    def retile(self, part):
        a = self.a
        V = self.SV
        F = V + 8
        if part == 0:
            for i in range(8):
                a.e(f's_add_u32 m0, s26, {KVBUF + 1024 * i}')
                a.e(f'buffer_load_dwordx4 v{V}, s[40:43], s{66 + i} offen lds')
        elif part == 1:
            for nt in range(5):
                for j in range(2):
                    if nt < 4:
                        a.e(f'ds_read_b64_tr_b16 {vr(F + 4 * nt + 2 * j, 2)}, v{V + 1} offset:{64 * (nt // 2) + 8 * (nt % 2) + 1024 * j}')
                    else:
                        a.e(f'ds_read_b64_tr_b16 {vr(F + 4 * nt + 2 * j, 2)}, v{V + 2} offset:{128 + 1024 * j}')
            a.e('s_mul_i32 s44, s64, 90')
            a.e('s_add_u32 s44, s44, s65')
            a.e('s_mul_i32 s44, s44, 4608')
            a.e(f's_add_u32 s44, s44, {W3_OFF}')
            a.e('s_waitcnt lgkmcnt(0)')
            for nt in range(4):
                a.e(f'buffer_store_dwordx4 {vr(F + 4 * nt, 4)}, v10, s[12:15], s44 offen offset:{1024 * nt} {SC}')
            a.e('s_mov_b32 exec_lo, 0x00ff00ff')
            a.e('s_mov_b32 exec_hi, 0x00ff00ff')
            a.e(f'buffer_store_dwordx4 {vr(F + 16, 4)}, v{V + 3}, s[12:15], s44 offen {SC}')
            a.e('s_mov_b64 exec, -1')
        else:
            a.e('s_lshl_b32 s44, s64, 7')
            a.e('s_add_u32 s44, s44, s65')
            a.e('s_lshl_b32 s44, s44, 2')
            a.e(f's_add_u32 s44, s44, {FW3_OFF}')
            set_flag(a, 44, V + 4)

    def issue_kv(self, buf_s=None, buf=None, flags=''):
        a = self.a
        for g in range(3):
            if buf_s is not None:
                a.e(f's_add_u32 m0, s{buf_s}, {4096 * g}')
            else:
                a.e(f's_add_u32 m0, s31, {buf * KVBUF + 4096 * g}')
            for i in range(4 if g < 2 else 2):
                a.vm(f'buffer_load_dwordx4 v15, s[12:15], s30 offen offset:{1024 * i} {flags} lds', 'kv')
            a.e('s_add_u32 s30, s30, 4096')
        a.e(f's_add_u32 s30, s30, {16 * KV_TILE - 3 * 4096}')

    def q_phase(self):
        a = self.a
        a.e('s_mov_b32 s31, s26')
        a.e('v_add_u32 v15, s31, v10')
        a.e(f's_mov_b32 s30, {KV_OFF}')
        l = a.newlabel('KVR')
        a.e('s_cmp_lg_u32 s20, 0')
        a.e(f's_cbranch_scc1 {l}')
        self.nonce()
        a.e('v_mov_b32 v4, s62')
        a.e('ds_write_b32 v2, v4')
        a.e('s_waitcnt lgkmcnt(0)')
        a.label(l)
        a.e('s_barrier')
        a.e('v_mov_b32 v2, 0')
        a.e('ds_read_b32 v40, v2')
        a.e('s_lshl_b32 s48, s23, 3')
        a.e('s_add_u32 s48, s48, s22')
        a.e('s_mul_i32 s48, s48, 2304')
        a.e(f's_add_u32 s48, s48, {QF_OFF}')
        for i in range(2):
            a.e(f'buffer_store_dwordx4 v[224:227], v10, s[12:15], s48 offen offset:{1024 * i} {SC}')
        a.e(f'buffer_store_dword v224, v228, s[12:15], s48 offen offset:2048 {SC}')
        a.e('s_lshl_b32 s44, s3, 5')
        a.e('s_add_u32 s44, s44, s20')
        a.e('s_lshl_b32 s44, s44, 2')
        a.e(f's_add_u32 s44, s44, {GO_OFF}')
        a.e('v_and_b32 v11, 31, v1')
        a.e('v_lshlrev_b32 v11, 2, v11')
        a.e('v_add_u32 v11, 1024, v11')
        a.e('s_waitcnt vmcnt(0) lgkmcnt(0)')
        a.e('v_readfirstlane_b32 s62, v40')
        set_flag(a, 44, 42)
        for p in range(2):
            for i in (5, 6, 7):
                a.e(f'v_mov_b32 v{self.QF + 8 * p + i}, 0')
            a.e(f'v_mov_b32 v{self.KF + 8 * p + 5}, 0x3f803f80')
            a.e(f'v_mov_b32 v{self.KF + 8 * p + 6}, 0x3f803f80')
            a.e(f'v_mov_b32 v{self.KF + 8 * p + 7}, 0')
        a.e('v_lshrrev_b32 v2, 5, v1')
        a.e('v_lshlrev_b32 v2, 2, v2')
        a.e('v_bfe_u32 v4, v1, 3, 1')
        a.e('v_lshl_add_u32 v2, v4, 1, v2')
        a.e('v_mul_u32_u24 v12, 168, v2')
        a.e('v_add_u32 v12, 1152, v12')
        a.e('v_bfe_u32 v4, v1, 4, 1')
        a.e('v_bfe_u32 v13, v1, 2, 1')
        a.e('v_mul_u32_u24 v14, 168, v4')
        a.e('v_add_u32 v14, v14, v12')
        a.e('v_and_b32 v8, 1, v1')
        a.e('v_lshl_add_u32 v8, v8, 1, v13')
        a.e('v_lshl_add_u32 v8, v8, 3, v14')
        a.e('v_add_u32 v8, 128, v8')
        a.e('v_add_u32 v9, 160, v14')
        a.e('v_and_b32 v2, 2, v1')
        a.e('v_cmp_eq_u32 vcc, 0, v2')
        a.e(f'v_cndmask_b32 v{self.TB}, v9, v8, vcc')
        a.e(f'v_cndmask_b32 v{self.TB + 1}, v8, v9, vcc')
        a.e('v_lshl_add_u32 v2, v4, 1, v13')
        a.e('v_lshl_add_u32 v12, v2, 5, v12')
        a.e('v_and_b32 v2, 3, v1')
        a.e('v_lshl_add_u32 v12, v2, 3, v12')
        a.e('v_mul_u32_u24 v14, 0xaaaa, v13')
        a.e('v_add_u32 v14, 0x4444, v14')
        a.e('v_mul_u32_u24 v13, 0xaaaa, v4')
        a.e('v_add_u32 v13, 0x4444, v13')
        self.point(KVBUF)
        a.e('s_and_b32 s49, s3, 7')
        a.e('s_lshl_b32 s49, s49, 9')
        a.e(f's_add_u32 s49, s49, {KVF_OFF}')
        a.e('v_min_u32 v230, 47, v1')
        a.e('v_lshlrev_b32 v230, 3, v230')
        lq = a.newlabel('QW')
        lo = a.newlabel('QOK')
        lh = a.newlabel('QH')
        a.e(f's_mov_b32 s51, {SPIN_MAX}')
        a.label(lh)
        a.e(f's_sleep {opt("qsl", [6])[0]}')
        a.e(f'buffer_load_dword v2, v11, s[12:15], s48 offen offset:1152 {SCL}')
        a.e('s_sub_u32 s51, s51, 1')
        a.e('s_waitcnt vmcnt(0)')
        a.e('v_cmp_eq_u32 vcc, -1, v2')
        a.e('s_cmp_eq_u32 s51, 1')
        a.e(f's_cbranch_scc1 {lq}')
        a.e(f's_cbranch_vccnz {lh}')
        a.e('s_setprio 3')
        a.label(lq)
        for p in range(2):
            a.e(f'buffer_load_dwordx4 {vr(self.QF + 8 * p, 4)}, v10, s[12:15], s48 offen offset:{1152 * p} {SCL}')
            a.e(f'buffer_load_dword v{self.PF + p}, v11, s[12:15], s48 offen offset:{1152 * p} {SCL}')
        a.e('s_waitcnt vmcnt(0)')
        a.e(f'v_max_u32 v2, v{self.PF}, v{self.PF + 1}')
        for r in (0, 2, 8, 10):
            a.e(f'v_max3_u32 v2, v{self.QF + r}, v{self.QF + r + 1}, v2')
        a.e('v_cmp_eq_u32 vcc, -1, v2')
        a.e(f's_cbranch_vccz {lo}')
        a.e('s_sleep 2')
        a.e('s_sub_u32 s51, s51, 1')
        a.e('s_cmp_lg_u32 s51, 0')
        a.e(f's_cbranch_scc1 {lq}')
        a.label(lo)
        stamp(a, 6)
        lk = a.newlabel('KW')
        lo = a.newlabel('KOK')
        a.e(f'v_add_u32 v4, {KVBUF}, v15')
        a.e(f's_mov_b32 s51, {SPIN_MAX}')
        a.label(lk)
        a.e(f's_mov_b32 s30, {KV_OFF}')
        self.issue_kv(buf=1, flags=SCL)
        a.e('s_waitcnt vmcnt(0)')
        for i in range(10):
            a.e(f'ds_read_b128 {vr(16 + 4 * i, 4)}, v4 offset:{1024 * i}')
        a.e('s_waitcnt lgkmcnt(0)')
        a.e('v_max_u32 v2, v16, v17')
        a.e('v_max_u32 v8, v18, v19')
        for i in range(20, 56, 4):
            a.e(f'v_max3_u32 v2, v{i}, v{i + 1}, v2')
            a.e(f'v_max3_u32 v8, v{i + 2}, v{i + 3}, v8')
        a.e('v_max_u32 v2, v2, v8')
        a.e('v_cmp_eq_u32 vcc, -1, v2')
        a.e(f's_cbranch_vccz {lo}')
        a.e('s_sleep 8')
        a.e('s_sub_u32 s51, s51, 1')
        a.e('s_cmp_lg_u32 s51, 0')
        a.e(f's_cbranch_scc1 {lk}')
        a.label(lo)
        a.vmq = []
        a.e('v_cmp_gt_u32 vcc, 32, v1')
        for p in range(2):
            a.e(f'v_cndmask_b32 v{self.QF + 8 * p + 4}, 0, v{self.PF + p}, vcc')

    def kvf_load(self):
        self.a.e(f'buffer_load_dwordx2 {vr(self.XF + 2, 2)}, v230, s[12:15], s49 offen {SC}')

    def readK(self, j):
        a = self.a
        b = self.KF + 8 * (j % 2)
        off = (j % 16) * KV_TILE
        a.lg(f'ds_read_b128 {vr(b, 4)}, v5 offset:{off}', ('K', j))
        a.lg(f'ds_read_b32 v{b + 4}, v6 offset:{off}', ('K', j))

    def readV(self, j, m):
        a = self.a
        b = self.VF + 8 * (j % 2)
        off = (j % 16) * KV_TILE
        for jj in range(2):
            if m == 0:
                a.lg(f'ds_read_b64_tr_b16 {vr(b + 2 * jj, 2)}, v7 offset:{off + jj * 168}', ('V', j))
            else:
                a.lg(f'ds_read_b64_tr_b16 {vr(b + 4 + 2 * jj, 2)}, v{self.TB + 2 + jj} offset:{off}', ('V', j))

    def S(self, n, part):
        j, qt = n // 2, n % 2
        d = vr(self.SB + 16 * (n % 2), 16)
        k = self.KF + 8 * (j % 2) + 4 * part
        q = self.QF + 8 * qt + 4 * part
        self.a.e(f'v_mfma_f32_32x32x16_bf16 {d}, {vr(k, 4)}, {vr(q, 4)}, {"0" if part == 0 else d}')

    def PV(self, n, m):
        j, qt = n // 2, n % 2
        p = vr(self.P2 + 8 * qt, 8)
        v = vr(self.VF + 8 * (j % 2) + 4 * m, 4)
        if m == 0:
            self.a.e(f'v_smfmac_f32_32x32x32_bf16 {vr(self.OB + 16 * qt, 16)}, {v}, {p}, v13')
        else:
            self.a.e(f'v_smfmac_f32_16x16x64_bf16 {vr(self.PF + 4 * qt, 4)}, {v}, {p}, v14')

    def set_m(self, qt, vm, add):
        a = self.a
        q = self.QF + 8 * qt
        a.e(f'v_sub_f32 v2, {hx(-add)}, v{vm}')
        a.e('v_and_b32 v4, 0xffff0000, v2')
        a.e('v_sub_f32 v2, v2, v4')
        a.e(f'v_and_b32 v{self.TB + 4}, 0xffff0000, v2')
        a.e(f'v_sub_f32 v2, v2, v{self.TB + 4}')
        a.e('v_lshrrev_b32 v4, 16, v4')
        a.e(f'v_or_b32 v4, v4, v{self.TB + 4}')
        a.e('v_lshrrev_b32 v2, 16, v2')
        a.e('v_cmp_gt_u32 vcc, 32, v1')
        a.e(f'v_cndmask_b32 v{q + 5}, 0, v4, vcc')
        a.e(f'v_cndmask_b32 v{q + 6}, 0, v2, vcc')

    TB = 232
    P2 = 240

    def point(self, off):
        a = self.a
        for i in range(3):
            a.e(f'v_add_u32 v{5 + i}, {off}, v{10 + i}')
        for i in range(2):
            a.e(f'v_add_u32 v{self.TB + 2 + i}, {off}, v{self.TB + i}')

    def max16(self, b, dst, first):
        a = self.a
        if first:
            a.e(f'v_max3_f32 v{dst}, v{b}, v{b + 1}, v{b + 2}')
            a.e(f'v_max_f32 v{dst}, v{dst}, v{b + 3}')
            r = range(4, 16, 2)
        else:
            r = range(0, 16, 2)
        for i in r:
            a.e(f'v_max3_f32 v{dst}, v{b + i}, v{b + i + 1}, v{dst}')

    def halves_max(self, r):
        a = self.a
        a.e(f'v_mov_b32 v2, v{r}')
        a.e(f'v_permlane32_swap_b32 v{r}, v2')
        a.e(f'v_max_f32 v{r}, v{r}, v2')

    def main(self, flags=''):
        a = self.a
        L_PASS = a.newlabel('ATT_PASS')
        L_LOOP = a.newlabel('ATT_LOOP')
        L_NOKV = a.newlabel('ATT_NOKV')
        L_FIN = a.newlabel('ATT_FIN')
        a.e('s_mov_b32 s33, 0')
        a.e('s_mov_b32 s39, 4')
        a.e('s_barrier')
        self.readK(0)
        a.wait_lg0()
        for qt in range(2):
            self.S(qt, 0)
            self.S(qt, 1)
        for qt in range(2):
            self.max16(self.SB + 16 * qt, 8 + qt, True)
            self.halves_max(8 + qt)
            self.set_m(qt, 8 + qt, float(opt('moff', [M_OFFSET])[0]))
        a.label(L_PASS)
        self.readK(0)
        self.readK(1)
        self.readV(0, 0)
        self.readV(0, 1)
        for i in range(32):
            a.e(f'v_mov_b32 v{self.OB + i}, 0')
        for i in range(8):
            a.e(f'v_mov_b32 v{self.PF + i}, 0')
            a.e(f'v_mov_b32 v{self.P2 + 8 + i}, 0')
            a.e(f'v_mov_b32 v{self.VF + 8 + i}, 0')
        a.e('s_mov_b32 s34, 0')
        a.e(f's_add_u32 s35, s31, {KVBUF}')
        a.e(f's_mov_b32 s37, {-KVBUF & 0xffffffff}')
        a.wait_lg0()
        self.S(0, 0)
        self.S(0, 1)
        a.e('s_nop 7')
        a.label(L_LOOP)
        a.wait_lg0()
        if opt('gate'):
            lng = a.newlabel('ATT_NG')
            a.e(f's_cmp_lg_u32 s34, {opt("gate")[0]}')
            a.e(f's_cbranch_scc1 {lng}')
            a.e('s_lshl_b32 s44, s3, 7')
            a.e(f's_add_u32 s44, s44, {PROG_OFF}')
            a.e('v_mov_b32 v2, 0')
            poll(a, lambda: a.e(f'buffer_load_dword v4, v2, s[12:15], s44 offen {SC}'), [4], 8, sleep=8)
            if 'gateprio' in ABL:
                a.e('s_setprio 1')
            a.label(lng)
        if 'attfine' in ABL:
            for c, idx in ((1, 4), (2, 5), (3, 1)):
                lq = a.newlabel('ATT_Q')
                a.e(f's_cmp_lg_u32 s34, {c}')
                a.e(f's_cbranch_scc1 {lq}')
                stamp(a, idx)
                a.label(lq)
        if True:
            lp = a.newlabel('ATT_P')
            a.e(f's_cmp_lg_u32 s34, {opt("aprio", [0])[0]}')
            a.e(f's_cbranch_scc1 {lp}')
            a.e('s_setprio 1')
            a.label(lp)
        for n in range(32):
            j, qt = n // 2, n % 2
            sb = self.SB + 16 * (n % 2)
            if n == 29:
                a.e('s_waitcnt vmcnt(0) lgkmcnt(0)')
                a.vmq = []
                a.lgq = []
                a.e('s_barrier')
                for r in (5, 6, 7, self.TB + 2, self.TB + 3):
                    a.e(f'v_add_u32 v{r}, s37, v{r}')
                if 'novp' not in ABL:
                    a.e('s_setprio 3')
                a.e('s_cmp_ge_u32 s34, 2')
                a.e(f's_cbranch_scc1 {L_NOKV}')
                ls0 = a.newlabel('ATT_S0')
                a.e('s_cmp_eq_u32 s39, 0')
                a.e(f's_cbranch_scc1 {ls0}')
                self.issue_kv(buf_s=35, flags=flags)
                a.e(f's_branch {L_NOKV}')
                a.label(ls0)
                self.side(0)
                a.e('s_mov_b32 s39, 1')
                a.label(L_NOKV)
                self.gate_load()
                if 'retouch' in ABL:
                    a.e('global_load_dword v239, v238, s[8:9]')
                if 'novp' not in ABL:
                    a.e('s_setprio 1')
                a.e('s_add_u32 s35, s35, s37')
                a.e('s_sub_u32 s37, 0, s37')
            SJ = opt('sj', [8, 1, 12, 16, 20, 26])
            if n in opt('mp', [9, 13, 17, 21, 25]):
                lm = a.newlabel('ATT_M')
                a.e('s_cmp_ge_u32 s54, s55')
                a.e(f's_cbranch_scc1 {lm}')
                if 'novp' not in ABL:
                    a.e('s_setprio 3')
                self.mark_part(3, 4)
                if 'novp' not in ABL:
                    a.e('s_setprio 1')
                a.label(lm)
            C1 = opt('c1', [2, 6])
            if n in C1:
                lc = a.newlabel('ATT_C1')
                a.e('s_cmp_lg_u32 s39, 4')
                a.e(f's_cbranch_scc1 {lc}')
                a.e('s_setprio 3')
                if n == C1[0]:
                    self.kvf_load()
                else:
                    a.e('s_waitcnt vmcnt(0)')
                    poll(a, self.kvf_load, [self.XF + 2, self.XF + 3], 236, first_done=True, sleep=6)
                    self.issue_kv(buf=0, flags=flags)
                    self.mark_part(0, 3)
                    a.e('s_mov_b32 s39, 0')
                a.e('s_setprio 1')
                a.label(lc)
            if n == SJ[0]:
                ls1 = a.newlabel('ATT_S1')
                a.e('s_cmp_lg_u32 s39, 1')
                a.e(f's_cbranch_scc1 {ls1}')
                a.e('s_waitcnt vmcnt(0)')
                if 'novp' not in ABL:
                    a.e('s_setprio 3')
                self.side(1)
                self.issue_kv(buf=1, flags=flags)
                a.e('s_mov_b32 s39, 2')
                if 'novp' not in ABL:
                    a.e('s_setprio 1')
                a.label(ls1)
            if n == SJ[5]:
                ls2 = a.newlabel('ATT_S2')
                a.e('s_cmp_lg_u32 s39, 2')
                a.e(f's_cbranch_scc1 {ls2}')
                a.e('s_waitcnt vmcnt(0)')
                if 'novp' not in ABL:
                    a.e('s_setprio 3')
                self.side(2)
                a.e('s_mov_b32 s39, 3')
                if 'novp' not in ABL:
                    a.e('s_setprio 1')
                a.label(ls2)
            if qt == 1:
                a.wait_lg(('K', j + 1))
            self.S(n + 1, 0)
            pf = self.P2 + 8 * qt
            for i in range(0, 4):
                a.e(f'v_exp_f32 v{sb + i}, v{sb + i}')
            if qt == 1:
                a.wait_lg(('V', j))
            self.PV(n - 1, 0)
            if qt == 0:
                self.readV(j + 1, 0)
            else:
                self.readK(j + 2)
            for i in range(4, 8):
                a.e(f'v_exp_f32 v{sb + i}, v{sb + i}')
            self.S(n + 1, 1)
            for i in range(4):
                a.e(f'v_cvt_pk_bf16_f32 v{pf + i}, v{sb + 2 * i}, v{sb + 2 * i + 1}')
            for i in range(8, 12):
                a.e(f'v_exp_f32 v{sb + i}, v{sb + i}')
            self.PV(n - 1, 1)
            if qt == 0:
                self.readV(j + 1, 1)
            for i in range(12, 16):
                a.e(f'v_exp_f32 v{sb + i}, v{sb + i}')
            for i in range(4, 8):
                a.e(f'v_cvt_pk_bf16_f32 v{pf + i}, v{sb + 2 * i}, v{sb + 2 * i + 1}')
        a.e('s_add_u32 s34, s34, 1')
        a.e('s_cmp_lt_u32 s34, 4')
        a.e(f's_cbranch_scc1 {L_LOOP}')
        self.PV(31, 0)
        self.PV(31, 1)
        a.wait_all()
        a.e('s_cmp_lg_u32 s33, 0')
        a.e(f's_cbranch_scc1 {L_FIN}')
        regs = [self.OB + i for i in range(32)] + [self.PF + i for i in (0, 1, 2, 4, 5, 6)]
        a.e(f'v_max_f32_e64 v2, |v{regs[0]}|, |v{regs[1]}|')
        for i in range(2, len(regs), 2):
            a.e(f'v_max3_f32 v2, |v{regs[i]}|, |v{regs[i + 1]}|, v2')
        a.e(f's_mov_b32 s44, {hx(2.0 ** 110)}')
        a.e('v_cmp_ngt_f32 vcc, s44, v2')
        a.e(f'v_add_f32 v4, v{self.PF + 2}, v{self.PF + 6}')
        a.e('v_cmp_u_f32 s[46:47], v4, v4')
        a.e('s_or_b64 vcc, vcc, s[46:47]')
        a.e('s_cmp_lg_u64 vcc, 0')
        a.e('s_cselect_b32 s44, 1, 0')
        a.e('v_mov_b32 v2, s44')
        a.e('s_lshl_b32 s45, s20, 2')
        a.e(f's_add_u32 s45, s45, {16 * KV_TILE}')
        a.e('v_mov_b32 v4, s45')
        a.e('ds_write_b32 v4, v2')
        a.e(f'v_mov_b32 v4, {16 * KV_TILE}')
        a.e('s_waitcnt lgkmcnt(0)')
        a.e('s_barrier')
        a.e(f'ds_read_b128 {vr(self.P2, 4)}, v4')
        a.e('s_waitcnt lgkmcnt(0)')
        a.e(f'v_or3_b32 v2, v{self.P2}, v{self.P2 + 1}, v{self.P2 + 2}')
        a.e(f'v_or_b32 v2, v2, v{self.P2 + 3}')
        a.e('v_readfirstlane_b32 s44, v2')
        a.e('s_cmp_eq_u32 s44, 0')
        a.e(f's_cbranch_scc1 {L_FIN}')
        L_MC = a.newlabel('ATT_MC')
        L_MT = a.newlabel('ATT_MT')
        a.e('s_mov_b32 s33, 1')
        for p in range(2):
            a.e(f'v_mov_b32 v{self.QF + 8 * p + 5}, 0')
            a.e(f'v_mov_b32 v{self.QF + 8 * p + 6}, 0')
            a.e(f'v_mov_b32 v{8 + p}, 0xff7fffff')
        a.e(f's_mov_b32 s30, {KV_OFF}')
        a.e('s_mov_b32 s34, 0')
        a.label(L_MC)
        a.e('s_barrier')
        self.issue_kv(buf=0, flags=flags)
        a.e('v_mov_b32 v5, v10')
        a.e('v_mov_b32 v6, v11')
        a.e('s_mov_b32 s36, 0')
        a.wait_vm0()
        a.e('s_barrier')
        a.label(L_MT)
        self.readK(0)
        a.wait_lg0()
        for qt in range(2):
            self.S(qt, 0)
            self.S(qt, 1)
        a.e(f'v_add_u32 v5, {KV_TILE}, v5')
        a.e(f'v_add_u32 v6, {KV_TILE}, v6')
        for qt in range(2):
            self.max16(self.SB + 16 * qt, 8 + qt, False)
        a.e('s_add_u32 s36, s36, 1')
        a.e('s_cmp_lt_u32 s36, 16')
        a.e(f's_cbranch_scc1 {L_MT}')
        a.e('s_add_u32 s34, s34, 1')
        a.e('s_cmp_lt_u32 s34, 4')
        a.e(f's_cbranch_scc1 {L_MC}')
        for qt in range(2):
            self.halves_max(8 + qt)
            self.set_m(qt, 8 + qt, M_OFFSET)
        a.e('s_barrier')
        a.e(f's_mov_b32 s30, {KV_OFF}')
        self.issue_kv(buf=1, flags=flags)
        self.issue_kv(buf=0, flags=flags)
        self.point(KVBUF)
        a.e('s_waitcnt vmcnt(10)')
        a.e('s_barrier')
        a.e(f's_branch {L_PASS}')
        a.label(L_FIN)
        a.vmq = []
        a.lgq = []

    def mark(self):
        a = self.a
        a.e('s_mul_i32 s44, s23, 90')
        a.e('s_lshl_b32 s52, s22, 1')
        a.e('s_add_u32 s52, s52, s44')
        a.e('s_lshl_b32 s52, s52, 10')
        a.e(f's_add_u32 s52, s52, {UF_OFF}')
        a.e('s_lshr_b32 s53, s22, 2')
        a.e('s_add_u32 s53, s53, s44')
        a.e('s_lshl_b32 s53, s53, 10')
        a.e('s_and_b32 s47, s22, 3')
        a.e('s_lshl_b32 s47, s47, 8')
        a.e('s_add_u32 s53, s53, s47')
        a.e(f's_add_u32 s53, s53, {UF_OFF + 16 * 1024}')
        a.e('s_mul_i32 s54, s22, 9')
        a.e('s_add_u32 s54, s54, s44')
        a.e('s_lshl_b32 s54, s54, 10')
        a.e(f's_add_u32 s54, s54, {UF_OFF + 18 * 1024}')
        a.e(f's_add_u32 s55, s54, {9 * 1024}')
        for i in range(4):
            a.e(f'v_mov_b32 v{224 + i}, -1')
        a.e('v_lshlrev_b32 v228, 2, v1')
        if opt('tp'):
            a.e('s_lshl_b32 s44, s24, 8')
            a.e('s_and_b32 s45, s22, 4')
            a.e('s_lshl_b32 s45, s45, 5')
            a.e('s_add_u32 s44, s44, s45')
            a.e('s_add_u32 s44, s44, s27')
            a.e('s_lshl_b32 s44, s44, 13')
            a.e(f'v_min_u32 v229, {64 // len(opt("tp")) - 1}, v1')
            a.e('v_lshlrev_b32 v229, 7, v229')
            a.e('v_add_u32 v229, s44, v229')

    def mark_part(self, lo, hi):
        a = self.a
        if 'nomark' in ABL:
            return
        for i in range(lo, hi):
            if i < 2:
                a.e(f'buffer_store_dwordx4 v[224:227], v10, s[12:15], s52 offen offset:{1024 * i} {SC}')
            elif i == 2:
                a.e(f'buffer_store_dword v224, v228, s[12:15], s53 offen {SC}')
            else:
                a.e(f'buffer_store_dwordx4 v[224:227], v10, s[12:15], s54 offen {SC}')
                a.e('s_add_u32 s54, s54, 1024')

    def mark_flag(self):
        a = self.a
        a.e('s_lshl_b32 s44, s23, 3')
        a.e('s_add_u32 s44, s44, s22')
        a.e('s_lshl_b32 s44, s44, 2')
        a.e(f's_add_u32 s44, s44, {PZ_OFF}')
        set_flag(a, 44, 236)

    def epilogue(self, flags=''):
        a = self.a
        a.e('v_and_b32 v4, 15, v1')
        a.e('v_lshlrev_b32 v4, 4, v4')
        a.e('v_lshrrev_b32 v5, 5, v1')
        a.e('v_lshl_add_u32 v4, v5, 2, v4')
        poll(a, self.gate_load, [self.XF + 1], 8, first_done=True)
        a.e('v_and_b32 v5, 16, v1')
        a.e('v_cmp_eq_u32 vcc, 0, v5')
        for qt in range(2):
            o = self.OB + 16 * qt
            t = self.PF + 4 * qt
            c = self.P2
            for i in range(3):
                a.e(f'v_mov_b32 v{c + i}, v{t + i}')
            for i in range(3):
                a.e(f'v_permlane16_swap_b32 v{t + i}, v{c + i}')
            for i in range(3):
                a.e(f'v_add_f32 v{t + i}, v{t + i}, v{c + i}')
            a.e(f'v_rcp_f32 v6, v{t + 2}')
            a.e(f'v_mul_f32 v6, v6, v{self.XF}')
            a.e(f'v_pk_mul_f32 {vr(t, 2)}, {vr(t, 2)}, v[6:7] op_sel_hi:[1,0]')
            a.e('v_mov_b32 v7, v6')
            a.e('v_permlane32_swap_b32 v6, v7')
            a.e('v_cndmask_b32 v6, v7, v6, vcc')
            for i in range(4):
                a.e(f'v_pk_add_f32 {vr(o + 2 * i, 2)}, {vr(o + 2 * i, 2)}, {vr(o + 8 + 2 * i, 2)}')
            for i in range(4):
                a.e(f'v_pk_mul_f32 {vr(o + 2 * i, 2)}, {vr(o + 2 * i, 2)}, v[6:7] op_sel_hi:[1,0]')
            pk = self.SB + 8 * qt
            for i in range(4):
                a.e(f'v_cvt_pk_bf16_f32 v{pk + i}, v{o + 2 * i}, v{o + 2 * i + 1}')
            a.e(f'v_cvt_pk_bf16_f32 v{pk + 4}, v{t}, v{t + 1}')
            for i in range(5):
                a.e(f'v_min_u32 v{pk + i}, -2, v{pk + i}')
            a.e(f'buffer_store_dwordx4 {vr(pk, 4)}, v10, s[12:15], s52 offen offset:{1024 * qt} {flags}')
            a.e('s_mov_b32 exec_lo, 0xffff')
            a.e('s_mov_b32 exec_hi, 0xffff')
            a.e(f'buffer_store_dword v{pk + 4}, v4, s[12:15], s53 offen offset:{8 * qt} {flags}')
            a.e('s_mov_b64 exec, -1')

    def gate_load(self):
        a = self.a
        a.e(f's_mov_b32 s38, {GATE_OFF}')
        a.e(f'buffer_load_dwordx2 {vr(self.XF, 2)}, v3, s[12:15], s38 offen {SC}')


def p3_pre(a):
    a.e('s_and_b32 s44, s22, 1')
    a.e('s_lshl_b32 s66, s21, 1')
    a.e('s_add_u32 s66, s66, s44')
    a.e('s_lshr_b32 s67, s22, 1')
    a.e('s_lshl_b32 s68, s21, 8')
    a.e(f's_add_u32 s68, s68, {PZ_OFF}')
    a.e('s_lshl_b32 s69, s67, 9')
    a.e(f's_add_u32 s69, s69, {FW3_OFF}')
    a.e('v_lshlrev_b32 v7, 2, v1')
    a.e('v_min_u32 v8, 44, v1')
    a.e('v_lshlrev_b32 v8, 3, v8')
    p3_flags(a)
    a.vmq += ['pre', 'pre']


def p3_flags(a):
    a.e(f'buffer_load_dword v4, v7, s[12:15], s68 offen {SC}')
    a.e(f'buffer_load_dwordx2 v[2:3], v8, s[12:15], s69 offen {SC}')


def p3(a):
    ACC = 16
    FR = 112
    HF = 240
    DEPTH = 4
    NS = 23
    a.e('s_mul_i32 s44, s20, 18')
    a.e('s_add_u32 s44, s44, 18')
    a.e('s_mul_i32 s45, s20, 5')
    a.e('s_cmp_eq_u32 s20, 3')
    a.e('s_cselect_b32 s46, 1, 0')
    a.e('s_sub_u32 s45, s45, s46')
    a.e('s_mul_i32 s46, s67, 90')
    a.e('s_add_u32 s25, s44, s46')
    a.e('s_mul_i32 s25, s25, 4608')
    a.e(f's_add_u32 s25, s25, {W3_OFF}')
    a.e('s_add_u32 s31, s45, s46')
    a.e('s_mul_i32 s31, s31, 4608')
    a.e(f's_add_u32 s31, s31, {W3_OFF}')
    a.e('v_lshrrev_b32 v6, 4, v1')
    a.e('v_lshlrev_b32 v6, 3, v6')
    a.e('v_and_b32 v9, 7, v1')
    a.e('v_add_u32 v6, v6, v9')
    a.e('v_lshlrev_b32 v6, 4, v6')
    a.e('v_bfe_u32 v9, v1, 3, 1')
    a.e('v_mul_u32_u24 v9, 4608, v9')
    a.e('v_add_u32 v6, v6, v9')
    a.e('v_add_u32 v6, 4096, v6')
    a.e('v_mov_b32 v12, v19')

    def loadW(k):
        b = FR + 32 * (k % DEPTH)
        if k == 18:
            a.e('s_mov_b32 s25, s31')
        for nt in range(4):
            a.vm(f'buffer_load_dwordx4 {vr(b + 4 * nt, 4)}, v12, s[12:15], s25 offen offset:{1024 * nt} {SCL}', ('W', k))
        if k % 2 == 0:
            a.vm(f'buffer_load_dwordx4 {vr(HF + 4 * ((k // 2) % 3), 4)}, v6, s[12:15], s25 offen {SCL}', ('W', k))
        a.e('s_add_u32 s25, s25, 4608')

    def loadF(k, track=True):
        b = FR + 32 * (k % DEPTH)
        a.e(f's_add_u32 s24, s{28 if k < 18 else 30}, {1024 * (k if k < 18 else k - 18)}')
        for i in range(4):
            t = f'buffer_load_dwordx4 {vr(b + 16 + 4 * i, 4)}, v{2 + i}, s[12:15], s24 offen {SCL}'
            a.vm(t, ('F', k)) if track else a.e(t)
    for k in range(opt('wpre', [2])[0]):
        loadW(k)
    a.e('s_mul_i32 s46, s66, 360')
    a.e('s_add_u32 s28, s44, s46')
    a.e('s_lshl_b32 s28, s28, 10')
    a.e(f's_add_u32 s28, s28, {UF_OFF}')
    a.e('s_add_u32 s30, s45, s46')
    a.e('s_lshl_b32 s30, s30, 10')
    a.e(f's_add_u32 s30, s30, {UF_OFF}')
    for i in range(4):
        a.e(f's_add_u32 s44, s20, {i}')
        a.e('s_and_b32 s44, s44, 3')
        a.e('s_mul_i32 s44, s44, 92160')
        a.e(f'v_add_u32 v{2 + i}, s44, v12')
    a.e('s_mov_b32 s8, s64')
    a.e('s_mov_b32 s9, s65')
    srd(a, 8, 2048 * 1152)
    a.e(f's_mov_b32 s51, {SPIN_MAX}')
    a.wait_vm('st')
    for k in range(DEPTH):
        if k >= opt('wpre', [2])[0]:
            loadW(k)
        loadF(k)
    stamp(a, 5)
    a.e(f's_setprio {opt("pg", PG)[2]}')
    lskip = a.newlabel('P3_SKIP')
    for k in range(NS):
        b = FR + 32 * (k % DEPTH)
        if k == NS - 1:
            a.e('s_cmp_ge_u32 s20, 2')
            a.e(f's_cbranch_scc1 {lskip}')
            a.wait_vm0()
        a.wait_vm(('F', k))
        lc = a.newlabel('P3_C')
        lok = a.newlabel('P3_OK')
        a.label(lc)
        a.e(f'v_max3_u32 v9, v{b + 16}, v{b + 17}, v{b + 18}')
        a.e(f'v_max3_u32 v10, v{b + 19}, v{b + 20}, v{b + 21}')
        for i in range(22, 32, 4):
            a.e(f'v_max3_u32 v9, v{b + i}, v{b + i + 1}, v9')
            if i + 2 < 32:
                a.e(f'v_max3_u32 v10, v{b + i + 2}, v{b + i + 3}, v10')
        a.e('v_max_u32 v9, v9, v10')
        a.e('v_cmp_eq_u32 vcc, -1, v9')
        a.e(f's_cbranch_vccz {lok}')
        a.e(f's_sleep {opt("psl", [4])[0]}')
        loadF(k, False)
        a.e('s_waitcnt vmcnt(0)')
        a.e('s_sub_u32 s51, s51, 1')
        a.e('s_cmp_lt_i32 s51, 1')
        a.e(f's_cbranch_scc0 {lc}')
        a.label(lok)
        hf = HF + 4 * ((k // 2) % 3)
        for i in range(4):
            for nt in range(5):
                n2 = nt if nt < 4 else 4 + k % 2
                d = vr(ACC + 16 * n2 + 4 * i, 4)
                first = k == 0 or (nt == 4 and k == 1)
                a.e(f'v_mfma_f32_16x16x32_bf16 {d}, {vr(b + 4 * nt, 4) if nt < 4 else vr(hf, 4)}, {vr(b + 16 + 4 * i, 4)}, {"0" if first else d}')
        kn = k + DEPTH
        if kn == NS - 1:
            ls = a.newlabel('P3_NL')
            a.e('s_cmp_ge_u32 s20, 2')
            a.e(f's_cbranch_scc1 {ls}')
            q1 = list(a.vmq)
            loadW(kn)
            loadF(kn)
            a.vmq = q1
            a.label(ls)
        elif kn < NS:
            loadW(kn)
            loadF(kn)
    a.label(lskip)
    a.e('s_nop 7')
    stamp(a, 6)
    a.e('s_mov_b32 exec_lo, 0')
    for i in range(16):
        a.e(f'v_mov_b32 v{ACC + 64 + i}, v{ACC + 80 + i}')
    a.e('s_mov_b64 exec, -1')
    for i in range(1, 4):
        a.e(f's_add_u32 s44, s20, {i}')
        a.e('s_and_b32 s44, s44, 3')
        a.e('s_mul_i32 s44, s44, 15360')
        a.e(f'v_add_u32 v{8 + i}, s44, v12')
        for nt in range(5):
            a.lg(f'ds_write_b128 v{8 + i}, {vr(ACC + 16 * nt + 4 * i, 4)} offset:{5120 * (i - 1) + 1024 * nt}', 'w')
    a.e('s_mul_i32 s26, s20, 15360')
    a.e('v_add_u32 v8, s26, v12')
    a.e('s_lshl_b32 s27, s66, 6')
    a.e('s_lshr_b32 s28, s20, 1')
    a.e('s_lshl_b32 s28, s28, 5')
    a.e('s_add_u32 s27, s27, s28')
    a.e('s_and_b32 s28, s20, 1')
    a.e('s_lshl_b32 s28, s28, 2')
    a.e('s_add_u32 s27, s27, s28')
    a.e('v_bfe_u32 v13, v1, 2, 2')
    a.e('v_lshlrev_b32 v13, 3, v13')
    a.e('v_and_b32 v14, 3, v1')
    a.e('v_add3_u32 v13, v13, v14, s27')
    a.e('v_mul_u32_u24 v13, 1152, v13')
    a.e('v_lshrrev_b32 v14, 4, v1')
    a.e('v_lshl_add_u32 v15, v14, 3, v13')
    a.e('v_lshl_add_u32 v13, v14, 4, v13')
    a.e('s_mul_i32 s27, s67, 144')
    a.wait_all()
    a.e('s_barrier')
    for nt in range(5):
        for i in range(3):
            a.lg(f'ds_read_b128 {vr(FR + 12 * nt + 4 * i, 4)}, v8 offset:{5120 * i + 1024 * nt}', ('r', nt))
    PKB = FR + 64
    OSC = 'sc1' if 'osc1' in ABL else 'nt' if 'ont' in ABL else ''
    for nt in range(5):
        a.wait_lg(('r', nt))
        b = FR + 12 * nt
        o = ACC + 16 * nt
        for h in range(2):
            a.e(f'v_pk_add_f32 {vr(b + 2 * h, 2)}, {vr(b + 2 * h, 2)}, {vr(b + 4 + 2 * h, 2)}')
            a.e(f'v_pk_add_f32 {vr(o + 2 * h, 2)}, {vr(o + 2 * h, 2)}, {vr(b + 8 + 2 * h, 2)}')
        for h in range(2):
            a.e(f'v_pk_add_f32 {vr(b + 2 * h, 2)}, {vr(b + 2 * h, 2)}, {vr(o + 2 * h, 2)}')
        if nt == 4:
            for r in range(4):
                a.e(f'v_mov_b32 v{o + r}, v{b + r}')
            for r in range(4):
                a.e(f'v_permlane32_swap_b32 v{b + r}, v{o + r}')
            for h in range(2):
                a.e(f'v_pk_add_f32 {vr(b + 2 * h, 2)}, {vr(b + 2 * h, 2)}, {vr(o + 2 * h, 2)}')
        for h in range(2):
            a.e(f'v_cvt_pk_bf16_f32 v{PKB + 2 * nt + h}, v{b + 2 * h}, v{b + 2 * h + 1}')
        if nt in (1, 3):
            a.e(f'buffer_store_dwordx4 {vr(PKB + 2 * nt - 2, 4)}, v13, s[8:11], s27 offen offset:{64 * (nt // 2)} {OSC}')
        if nt == 4:
            a.e('s_mov_b32 exec_hi, 0')
            a.e(f'buffer_store_dwordx2 {vr(PKB + 8, 2)}, v15, s[8:11], s27 offen offset:128 {OSC}')
            a.e('s_mov_b64 exec, -1')


def kernel_text(name, a, vgpr=256, sgpr=96):
    a.fix_hazards()
    mv, ms, ma = a.max_regs()
    assert mv <= vgpr and ms <= sgpr and ma == 0, (mv, ms, ma)
    body = f'.globl {name}\n.p2align 8\n.type {name},@function\n{name}:\n' + a.text()
    desc = f""".p2align 6
.amdhsa_kernel {name}
  .amdhsa_next_free_vgpr {vgpr}
  .amdhsa_next_free_sgpr {sgpr}
  .amdhsa_accum_offset {(vgpr + 3) // 4 * 4}
  .amdhsa_group_segment_fixed_size 0
  .amdhsa_kernarg_size 112
  .amdhsa_user_sgpr_count 2
  .amdhsa_user_sgpr_kernarg_segment_ptr 1
  .amdhsa_system_sgpr_workgroup_id_x 1
.end_amdhsa_kernel
"""
    return body, desc


def build_file(kernels):
    hdr = open('cdna_kernels/' + NAME + '.s.ref').read().split('\n')
    head = [l for l in hdr if l.startswith(';') and '@launch' not in l and 'Override' not in l and 'grid=ceil' not in l]
    head = head[:15]
    out = '\n'.join(head) + '\n'
    for name, a, grid, block, lds, vgpr in kernels:
        kn = f'kernel={name} ' if (len(kernels) > 1 or LIST) else ''
        out += f'; @launch {kn}grid=({grid},1,1) block=({block},1,1) lds={lds}\n'
    out += '.amdgcn_target "amdgcn-amd-amdhsa--gfx950"\n.text\n'
    out += f'.set CODE_LINES, (K_END - {NAME}_kernel) / 128 - 4\n'
    descs = ''
    for name, a, grid, block, lds, vgpr in kernels:
        b, d = kernel_text(name, a, vgpr)
        out += b
        descs += d
    out += '.section .rodata,"a"\n' + descs
    return out


NG1, NG2 = 1, 3


def mega():
    a = Asm()
    a.e('s_cmp_ge_u32 s2, 512')
    a.e('s_cbranch_scc1 K_END')
    stamp(a, 0)
    a.e('s_cmp_lt_u32 s2, 256')
    a.e('s_cbranch_scc1 K_GEMM')
    a.e('s_sub_u32 s3, s2, 256')
    P = opt('pa', [0, 1])
    t = ATT(a)
    t.setup(3)
    t.mark()
    write_nonce(a)
    if 'afine' in ABL:
        a.e('s_branch K_DONE')
    t.retile_setup()
    stamp(a, 1)
    a.e(f's_setprio {P[0]}')
    t.q_phase()
    stamp(a, 2)
    a.e(f's_setprio {P[1]}')
    if 'noattmain' in ABL:
        for p in range(3):
            if p == 2:
                t.mark_part(0, 12)
            a.wait_all()
            t.side(p)
        t.gate_load()
        a.wait_all()
    else:
        t.main(flags=SCL)
    stamp(a, 3)
    a.e('s_setprio 3')
    t.epilogue(flags=SC)
    a.e('s_branch K_DONE')
    a.label('K_GEMM')
    a.vmq = []
    a.lgq = []
    g = GW(a)
    UB, UP = g.UB, g.UP
    g.limitA = UB
    g.setup()
    if 'afine' in ABL:
        stamp(a, 1)
    g.prologue_issue()
    if 'afine' in ABL:
        stamp(a, 2)
    g.setup2()
    if 'afine' in ABL:
        stamp(a, 3)
        g.hooks[0] = lambda: stamp(a, 4)
        g.hooks[6] = lambda: stamp(a, 5)
        g.hooks[12] = lambda: stamp(a, 6)

    def nonce_ld():
        a.e('v_mov_b32 v23, 0')
        a.vm(f'global_load_dword v24, v23, s[16:17] {SC}', 'nonce')
        g.mk_load()
        a.vmq.append('nonce')
    g.mk_addr()
    g.hooks[22] = nonce_ld
    g.run_segment(0, UB)
    if 'afine' in ABL:
        a.e('s_branch K_DONE')
    stamp(a, 1)
    n1, n2 = opt('ng', [NG1, NG2])
    nb1 = opt('nb1', [8])[0]
    a.wait_vm('nonce')
    get_nonce(a, 23, 24)
    poll(a, g.mk_load, [26, 27], 28, first_done=True, sleep=4)
    g.proj_store()
    g.limitA = UP
    a.vmq.append('pst')
    a.vmq.append('pst')
    a.e('s_barrier')
    for _ in range(g.R - 1):
        g.run(g.issueA())
    if 'z1t' in ABL:
        a.e('s_lshl_b32 s44, s31, 2')
        a.e('s_add_u32 s44, s44, s20')
        a.e('s_mul_i32 s44, s44, 81')
        a.e('s_and_b32 s45, s2, 4')
        a.e('s_lshl_b32 s46, s45, 2')
        a.e('s_lshr_b32 s45, s45, 1')
        for i in range(2):
            a.e('v_min_u32 v24, 40, v1')
            a.e(f'v_add3_u32 v24, v24, s44, {40 * i}')
            a.e('v_mul_u32_u24 v25, 58255, v24')
            a.e('v_lshrrev_b32 v25, 20, v25')
            a.e('v_mul_u32_u24 v26, 18, v25')
            a.e('v_sub_u32 v24, v24, v26')
            a.e('v_add_u32 v26, s46, v24')
            a.e('v_add3_u32 v27, v24, s45, 16')
            a.e('v_cmp_gt_u32 vcc, 16, v24')
            a.e('v_cndmask_b32 v24, v27, v26, vcc')
            a.e('v_mul_u32_u24 v25, 9216, v25')
            a.e('v_lshl_add_u32 v24, v24, 7, v25')
            a.vm('buffer_load_dword v255, v24, s[8:11], 0 offen', 'tch')
    g.z2_gelu_publish()

    LF = 'lnfine' in ABL
    if LF:
        stamp(a, 2)
    g.run_segment(UB, nb1)
    if LF:
        stamp(a, 3)
    g.z2_gather_norm_store()
    stamp(a, 4 if LF else 2)
    a.e('s_lshl_b32 s49, s22, 9')
    a.e(f's_add_u32 s49, s49, {FZ_OFF}')
    a.e('s_lshl_b32 s48, s32, 7')
    a.e('s_add_u32 s48, s48, s49')
    a.e('s_and_b32 s50, s23, 15')
    a.e('s_lshl_b32 s50, s50, 2')
    a.e('s_add_u32 s48, s48, s50')
    a.e('s_and_b32 s50, s32, 2')
    a.e('s_lshl_b32 s50, s50, 7')
    a.e('s_add_u32 s50, s50, s49')
    a.e('v_and_b32 v29, 15, v1')
    a.e('v_lshlrev_b32 v29, 2, v29')
    a.e('v_lshrrev_b32 v23, 4, v1')
    a.e('v_lshl_add_u32 v23, v23, 7, v29')
    a.e('v_and_b32 v29, 0xff, v23')

    def zflag():
        a.wait_vm('st')
        set_flag(a, 48, 27)
    g.hooks[UB + nb1 + opt('zf', [4])[0]] = zflag
    g.run_segment(UB + nb1, 18 - nb1)
    if LF:
        stamp(a, 5)
    g.own_write()
    g.z1_gelu(range(0, n1))
    g.nextA = UP + 4
    g.run_segment(UP, 4, own=True)
    g.z1_gelu(range(n1, n2))
    if LF:
        stamp(a, 6)
    poll(a, lambda: a.e(f'buffer_load_dword v26, v29, s[12:15], s50 offen {SC}'), [26], 27)
    if LF:
        a.e('s_branch K_DONE')
    stamp(a, 3)
    g.limitA = len(g.units)
    a.e('s_barrier')
    for _ in range(g.R - 1):
        g.run(g.issueA())
    g.z1_gelu(range(n2, 9))
    g.hooks[UP + 58] = g.sp_pre

    def zall():
        a.e(f'buffer_load_dword v26, v23, s[12:15], s49 offen {SC}')

    def zall0():
        zall()
        a.vmq.append('zf')

    def zall1():
        a.wait_vm('zf')
        poll(a, zall, [26], 27, first_done=True)
    g.hooks[UP + 10] = zall0
    g.hooks[UP + 15] = zall1
    g.hooks[UP + 61] = lambda: p3_pre(a)
    g.hooks[UP + opt('gsw', [62])[0]] = lambda: a.e('s_setprio 0')

    if opt('gate'):
        def prog():
            a.e('s_lshl_b32 s44, s2, 7')
            a.e(f's_add_u32 s44, s44, {PROG_OFF}')
            set_flag(a, 44, 27)
        g.hooks[UP + opt('gate')[1]] = prog
    g.run_segment(UP + 4, 60)
    if 'p2fine' in ABL:
        a.e('s_branch K_DONE')
    stamp(a, 4)
    g.sp_epilogue()
    p3(a)
    a.label('K_DONE')
    stamp_flush(a, 0)
    a.label('K_END')
    a.e('s_endpgm')
    return (NAME + '_kernel', a, 512, 256, 81920, 256)


LIST = False
if __name__ == '__main__':
    if '--stamp' in sys.argv:
        STAMP = True
        sys.argv.remove('--stamp')
    if '--list' in sys.argv:
        LIST = True
        sys.argv.remove('--list')
    for x in list(sys.argv):
        if x.startswith('--abl='):
            ABL.update(x[6:].split(','))
            sys.argv.remove(x)
    out = sys.argv[1] if len(sys.argv) > 1 else 'out.s'
    open(out, 'w').write(build_file([mega()]))
    print('wrote', out)
```

```python
import sys, struct
from asmlib import Asm

NAME = 'gated_mix__grouped_kv_mqa__mixer_gmlp__prompt'

Z2_OFF = 0x10000
UF_OFF = Z2_OFF + 9437184
W3_OFF = UF_OFF + 11796480
KV_OFF = W3_OFF + 3317760
KV_TILE = 2496
GATE_OFF = KV_OFF + 160 * 1024
STATS_OFF = GATE_OFF + 16384
FLAG_OFF = STATS_OFF + 524288
FKV_OFF = FLAG_OFF
FW3_OFF = FLAG_OFF + 49152
FZ_OFF = FLAG_OFF + 4096
PZ_OFF = FLAG_OFF + 65536
PROG_OFF = FLAG_OFF + 16384
GO_OFF = FLAG_OFF + 98304
KVF_OFF = FLAG_OFF
QF_OFF = FLAG_OFF + 131072
SC = 'sc1' if 'sconly1' in ' '.join(sys.argv) else 'sc0 sc1'
SCL = '' if '--abl' in ' '.join(sys.argv) and 'noscl' in ' '.join(sys.argv) else 'sc1'
WS_SIZE = 0x1c00000
assert QF_OFF + 128 * 16 * 1152 <= 0x1b00000
STAMP_OFF = 0x1b00000

A_X, A_WQ, A_WK, A_WV, A_WO, A_BX, A_WIN, A_WSP, A_BSP, A_WOUT, A_GW, A_OUT, A_DBG, A_WS = [8 * i for i in range(14)]

STAMP = False
ABL = set()


def opt(name, default=None):
    for x in ABL:
        if x.startswith(name + ':'):
            return [int(v) for v in x.split(':')[1:]]
    return default


def f2u(f):
    return struct.unpack('<I', struct.pack('<f', f))[0]


def hx(f):
    return '0x%08x' % f2u(f)


def srd(a, d, size):
    a.e(f's_mov_b32 s{d + 2}, {size}')
    a.e(f's_mov_b32 s{d + 3}, 0x00020000')


def vr(b, n):
    return f'v[{b}:{b + n - 1}]'


def stamp(a, idx):
    if not STAMP:
        return
    a.wait_lg0()
    a.e('s_memrealtime s[78:79]')
    a.e('s_memtime s[76:77]')
    a.e('s_waitcnt lgkmcnt(0)')
    a.e(f's_mov_b32 s{80 + idx}, s78')
    a.e(f's_mov_b32 s{88 + idx}, s76')


def stamp_flush(a, kidx):
    if not STAMP:
        return
    a.e('s_waitcnt vmcnt(0) lgkmcnt(0)')
    stamp(a, 7)
    a.e(f's_load_dwordx2 s[74:75], s[0:1], {A_WS}')
    a.e('s_waitcnt lgkmcnt(0)')
    a.e('v_lshrrev_b32 v1, 6, v0')
    a.e('v_lshlrev_b32 v1, 6, v1')
    a.e('s_lshl_b32 s78, s2, 8')
    a.e(f's_add_u32 s78, s78, {STAMP_OFF + kidx * 131072}')
    a.e('v_add_u32 v1, s78, v1')
    for i in range(16):
        a.e(f'v_mov_b32 v{4 + i}, s{80 + i}')
    for i in range(4):
        a.e(f'global_store_dwordx4 v1, v[{4 + 4 * i}:{7 + 4 * i}], s[74:75] offset:{16 * i}')
    if 'dbgstamp' in ABL:
        a.e('s_cmp_lt_u32 s2, 256')
        a.e('s_cselect_b32 s78, 4, 36')
        a.e('v_mov_b32 v1, s78')
        a.e('s_mov_b64 exec, 1')
        for i in range(1, 8):
            a.e(f'v_subrev_u32 v{4 + i}, s62, v{4 + i}')
            a.e(f'global_atomic_umax v1, v{4 + i}, s[16:17] offset:{4 * (i - 1)} sc1')
        a.e('v_sub_u32 v4, s62, v4')
        a.e('v_add_u32 v4, 1000, v4')
        a.e('v_mov_b32 v1, 32')
        a.e('global_atomic_umax v1, v4, s[16:17] sc1')
        a.e('s_mov_b64 exec, -1')


QSCALE = 18 ** -0.5 * 1.4426950408889634
GELU_C0 = -2.0 * 1.4426950408889634 * 0.7978845608028654
GELU_C1 = GELU_C0 * 0.044715


def gelu_group(a, regs, T, sC1, vC0):
    n = len(regs)
    for i, r in enumerate(regs):
        a.e(f'v_pk_mul_f32 {vr(T + 2 * i, 2)}, {vr(r, 2)}, {vr(r, 2)}')
    for i, r in enumerate(regs):
        a.e(f'v_pk_fma_f32 {vr(T + 2 * i, 2)}, {vr(T + 2 * i, 2)}, s[{sC1}:{sC1 + 1}], {vr(vC0, 2)}')
    for i, r in enumerate(regs):
        a.e(f'v_pk_mul_f32 {vr(T + 2 * i, 2)}, {vr(T + 2 * i, 2)}, {vr(r, 2)}')
    for i in range(2 * n):
        a.e(f'v_exp_f32 v{T + i}, v{T + i}')
    for i, r in enumerate(regs):
        a.e(f'v_pk_add_f32 {vr(T + 2 * i, 2)}, {vr(T + 2 * i, 2)}, 1.0 op_sel_hi:[1,0]')
    for i in range(2 * n):
        a.e(f'v_rcp_f32 v{T + i}, v{T + i}')
    for i, r in enumerate(regs):
        a.e(f'v_pk_mul_f32 {vr(r, 2)}, {vr(T + 2 * i, 2)}, {vr(r, 2)}')


SPIN_MAX = 300000
PG = [2, 2, 0]


def poll(a, loads, regs, t0, first_done=False, sleep=1):
    lp = a.newlabel('POLL')
    lc = a.newlabel('POLLC')
    lg = a.newlabel('POLLOK')
    a.e(f's_mov_b32 s51, {SPIN_MAX}')
    if first_done:
        a.e(f's_branch {lc}')
    a.label(lp)
    loads()
    a.e('s_waitcnt vmcnt(0)')
    a.label(lc)
    a.e(f'v_xor_b32 v{t0}, s62, v{regs[0]}')
    for r in regs[1:]:
        a.e(f'v_xor_b32 v{t0 + 1}, s62, v{r}')
        a.e(f'v_or_b32 v{t0}, v{t0}, v{t0 + 1}')
    a.e(f'v_cmp_ne_u32 vcc, 0, v{t0}')
    a.e(f's_cbranch_vccz {lg}')
    a.e(f's_sleep {sleep}')
    a.e('s_sub_u32 s51, s51, 1')
    a.e('s_cmp_lg_u32 s51, 0')
    a.e(f's_cbranch_scc1 {lp}')
    a.label(lg)
    if not first_done:
        a.vmq = []


def get_nonce(a, vz, vn):
    lp = a.newlabel('NONCE')
    lg = a.newlabel('NONCE_OK')
    a.e(f's_mov_b32 s51, {SPIN_MAX}')
    a.label(lp)
    a.e(f'v_readfirstlane_b32 s62, v{vn}')
    a.e('s_cmp_lg_u32 s62, 0')
    a.e(f's_cbranch_scc1 {lg}')
    a.e('s_sleep 32')
    a.e(f'global_load_dword v{vn}, v{vz}, s[16:17] {SC}')
    a.e('s_waitcnt vmcnt(0)')
    a.e('s_sub_u32 s51, s51, 1')
    a.e('s_cmp_lg_u32 s51, 0')
    a.e(f's_cbranch_scc1 {lp}')
    a.label(lg)


def set_flag(a, soff, t0):
    a.e(f'v_mov_b32 v{t0}, 0')
    a.e(f'v_mov_b32 v{t0 + 1}, s62')
    a.e('s_mov_b64 exec, 1')
    a.vm(f'buffer_store_dword v{t0 + 1}, v{t0}, s[12:15], s{soff} offen {SC}', 'flag')
    a.e('s_mov_b64 exec, -1')


class GW:
    R = 5
    SLOT = 8192
    SGL = 40960
    BBASE = 49152
    AF = 32
    BF = 68
    ACC0 = 100
    ACC1 = 172
    UB = 27
    UP = 45

    def __init__(self, a):
        self.a = a
        self.units = []
        self.stages = []
        for st in range(9):
            self.stages.append(('x', st))
            self.units += [('z2', 2 * st, st, 0, 2 * st), ('z2', 2 * st + 1, st, 1, 2 * st + 1), ('E', st, st, 0, None)]
        for k in range(18):
            if k % 2 == 0:
                self.stages.append(('x', k // 2))
            self.units.append(('z1', k, 9 + k // 2, k % 2, 18 + k))
        for k in range(64):
            if k % 2 == 0:
                self.stages.append(('sp', k // 2))
            self.units.append(('sp', k, 18 + k // 2, k % 2, 36 + k))
        self.nextA = 0
        self.nextB = 0
        self.limitA = len(self.units)
        self.pendB = []
        self.hooks = {}

    def setup(self):
        a = self.a
        a.e(f's_load_dwordx4 s[4:7], s[0:1], {A_X}')
        a.e(f's_load_dwordx2 s[8:9], s[0:1], {A_WIN}')
        a.e(f's_load_dwordx4 s[16:19], s[0:1], {A_DBG}')
        a.e(f's_load_dwordx4 s[52:55], s[0:1], {A_WSP}')
        a.e(f's_load_dwordx2 s[64:65], s[0:1], {A_OUT}')
        a.e(f's_load_dwordx4 s[68:71], s[0:1], {A_WK}')
        a.e('v_lshrrev_b32 v1, 6, v0')
        a.e('v_readfirstlane_b32 s20, v1')
        a.e('v_and_b32 v1, 63, v0')
        a.e('s_lshr_b32 s31, s2, 3')
        a.e('s_and_b32 s32, s2, 3')
        a.e('s_and_b32 s34, s31, 3')
        a.e('s_lshl_b32 s21, s32, 2')
        a.e('s_add_u32 s21, s21, s34')
        a.e('s_lshr_b32 s35, s31, 2')
        a.e('s_and_b32 s22, s2, 4')
        a.e('s_lshl_b32 s22, s22, 1')
        a.e('s_add_u32 s22, s22, s35')
        a.e('s_lshl_b32 s23, s21, 2')
        a.e('s_add_u32 s23, s23, s20')
        a.e('s_lshl_b32 s39, s34, 1')
        a.e('s_add_u32 s39, s39, s35')
        a.e('s_cmp_ge_u32 s39, 9')
        a.e('s_cselect_b32 s40, 9, 0')
        a.e('s_sub_u32 s39, s39, s40')
        if 'norot' in ABL:
            a.e('s_mov_b32 s39, 0')
        if 'rot3' in ABL:
            a.e('s_lshl_b32 s39, s39, 2')
            a.e('s_mov_b32 s40, 0x30630630')
            a.e('s_mov_b32 s41, 6')
            a.e('s_lshr_b64 s[40:41], s[40:41], s39')
            a.e('s_and_b32 s39, s40, 15')
        if 'rot5' in ABL:
            a.e('s_and_b32 s39, s39, 14')
        a.e('s_mul_i32 s24, s39, %d' % (64 * 9216))
        a.e('s_lshl_b32 s25, s39, 7')
        a.e('s_lshl_b32 s28, s39, 1')
        a.e('s_add_u32 s28, s28, s20')
        a.e('s_cmp_ge_u32 s28, 18')
        a.e('s_cselect_b32 s29, 18, 0')
        a.e('s_sub_u32 s28, s28, s29')
        a.e(f's_mul_i32 s28, s28, {32 * 9216}')
        a.e('s_lshl_b32 s26, s20, 11')
        a.e('s_lshl_b32 s27, s20, 12')
        a.e(f's_add_u32 s27, s27, {self.BBASE}')
        a.e('s_lshl_b32 s30, s20, 10')
        a.e(f's_add_u32 s30, s30, {self.SGL}')
        a.e('v_and_b32 v23, 7, v1')
        a.e('v_lshrrev_b32 v24, 5, v1')
        a.e('v_lshlrev_b32 v24, 3, v24')
        a.e('v_bfe_u32 v25, v1, 3, 2')
        a.e('s_lshl_b32 s44, s23, 5')
        a.e('v_add3_u32 v24, v24, v25, s44')
        a.e('v_lshrrev_b32 v25, 4, v1')
        a.e('v_xor_b32 v25, v25, v23')
        a.e('v_lshlrev_b32 v25, 4, v25')
        a.e('v_xor_b32 v26, 64, v25')
        a.e('v_mul_u32_u24 v27, 1152, v24')
        a.e('v_add_u32 v5, v27, v25')
        a.e('v_add_u32 v6, v27, v26')
        a.e(f'v_add_u32 v6, {16 * 1152 - 1024}, v6')
        a.e(f'v_add_u32 v7, {4 * 1152 - 2048}, v5')
        a.e(f'v_add_u32 v8, {4 * 1152 - 2048}, v6')
        a.e('s_lshl_b32 s42, s22, 8')
        a.e('s_mul_i32 s43, s20, %d' % (8 * 9216))
        a.e('s_add_u32 s42, s42, s43')
        a.e('s_add_u32 s42, s42, 4608')
        a.e('v_bfe_u32 v2, v1, 2, 2')
        a.e('v_mul_u32_u24 v2, 9216, v2')
        a.e('v_lshrrev_b32 v3, 4, v1')
        a.e('v_lshl_add_u32 v2, v3, 6, v2')
        a.e('s_and_b32 s44, s20, 1')
        a.e('s_lshl_b32 s45, s44, 1')
        a.e('v_and_b32 v3, 3, v1')
        a.e('v_xor_b32 v3, s45, v3')
        a.e('v_lshl_add_u32 v2, v3, 4, v2')
        a.e('v_add_u32 v2, s42, v2')
        a.e(f'v_add_u32 v3, {4 * 9216 - 1024}, v2')
        a.e('v_lshrrev_b32 v29, 1, v1')
        a.e('v_and_b32 v27, 19, v29')
        a.e('v_bfe_u32 v28, v29, 2, 1')
        a.e('v_lshl_add_u32 v27, v28, 3, v27')
        a.e('v_bfe_u32 v28, v29, 3, 1')
        a.e('v_lshl_add_u32 v27, v28, 2, v27')
        a.e('v_mul_u32_u24 v4, 9216, v27')
        a.e('v_and_b32 v27, 1, v1')
        a.e('v_lshl_add_u32 v4, v27, 4, v4')
        a.e('s_lshl_b32 s45, s22, 5')
        a.e(f's_add_u32 s45, s45, {4096 + 4608}')
        a.e('v_add_u32 v4, s45, v4')
        a.e('s_waitcnt lgkmcnt(0)')
        a.e('s_mov_b64 s[48:49], s[6:7]')
        a.e('s_mov_b64 s[60:61], s[68:69]')
        a.e('s_mov_b64 s[50:51], s[70:71]')
        srd(a, 4, 2359296)
        srd(a, 8, 576 * 9216)
        self.consts()
        b0 = self.issueB()
        self.run(b0[0] + b0[1][1:] + self.issueA() + self.issueA())
        a.e('v_mul_u32_u24 v27, 36, v27')
        a.e('v_lshrrev_b32 v20, 2, v1')
        a.e('v_mul_u32_u24 v20, 1152, v20')
        a.e('v_bfe_u32 v28, v1, 1, 1')
        a.e('v_lshl_add_u32 v20, v28, 4, v20')
        a.e('v_add_u32 v20, v20, v27')
        a.e('v_mul_u32_u24 v28, 1152, v29')
        a.e('v_add3_u32 v28, v28, v27, 32')
        a.e('s_cmp_eq_u32 s20, 2')
        a.e('s_cselect_b64 vcc, -1, 0')
        a.e('v_cndmask_b32 v20, v20, v28, vcc')
        a.e('v_mul_u32_u24 v28, 36, v29')
        a.e('s_cmp_eq_u32 s20, 3')
        a.e('s_cselect_b64 vcc, -1, 0')
        a.e('v_cndmask_b32 v20, v20, v28, vcc')
        a.e('s_mul_i32 s44, s22, 72')
        a.e('s_cmp_eq_u32 s20, 1')
        a.e(f's_cselect_b32 s45, {16 * 1152}, 0')
        a.e('s_add_u32 s44, s44, s45')
        a.e('s_and_b32 s45, s22, 1')
        a.e('s_lshl_b32 s45, s45, 4')
        a.e('s_cmp_ge_u32 s22, 4')
        a.e('s_cselect_b32 s45, 32, s45')
        a.e('s_cmp_eq_u32 s20, 3')
        a.e('s_cselect_b32 s44, s45, s44')
        a.e(f's_movk_i32 s58, 1152')
        a.e('s_cselect_b32 s58, 36, s58')
        a.e('v_add_u32 v20, s44, v20')
        a.e('s_lshl_b32 s44, s58, 5')
        a.e('s_sub_u32 s44, s44, 1024')
        a.e('v_add_u32 v244, s44, v20')
        a.e('s_mul_i32 s42, s58, 576')
        a.e('s_lshl_b32 s58, s58, 6')
        a.e('s_mul_i32 s59, s58, s39')
        a.e('s_lshr_b32 s44, 0x2c, s22')
        a.e('s_and_b32 s44, s44, 1')
        a.e('s_cmp_eq_u32 s44, 1')
        a.e('s_cselect_b32 s40, s50, s60')
        a.e('s_cselect_b32 s41, s51, s61')
        a.e('s_cmp_eq_u32 s20, 3')
        a.e('s_cselect_b32 s40, s40, s48')
        a.e('s_cselect_b32 s41, s41, s49')
        a.e('s_mov_b32 s43, 0x00020000')
        a.e('s_mov_b32 s12, s18')
        a.e('s_mov_b32 s13, s19')
        srd(a, 12, WS_SIZE)
        a.e('s_mov_b32 s56, s54')
        a.e('s_mov_b32 s57, s55')
        srd(a, 52, 2048 * 4096)

    def setup2(self):
        a = self.a
        a.e('v_lshlrev_b32 v27, 12, v24')
        a.e('v_add_u32 v12, v27, v25')
        a.e('v_add_u32 v13, v27, v26')
        a.e(f'v_add_u32 v13, {16 * 4096 - 1024}, v13')
        a.e(f'v_add_u32 v14, {4 * 4096 - 2048}, v12')
        a.e(f'v_add_u32 v15, {4 * 4096 - 2048}, v13')
        a.e('s_xor_b32 s37, s21, s35')
        a.e('s_lshl_b32 s45, s22, 13')
        a.e('s_add_u32 s45, s45, s26')
        a.e(f's_add_u32 s45, s45, {Z2_OFF}')
        a.e('v_lshlrev_b32 v19, 4, v1')
        a.e('v_add_u32 v9, s45, v19')
        a.e('s_lshl_b32 s45, s22, 10')
        a.e('s_mul_i32 s46, s20, 147456')
        a.e('s_add_u32 s45, s45, s46')
        a.e(f's_add_u32 s45, s45, {128 * 1024 + Z2_OFF}')
        a.e('v_add_u32 v10, s45, v19')
        a.e('v_lshrrev_b32 v27, 4, v1')
        a.e('v_and_b32 v29, 3, v1')
        a.e('v_lshlrev_b32 v28, 3, v29')
        a.e('v_bfe_u32 v29, v1, 2, 3')
        a.e('v_lshl_add_u32 v18, v29, 5, v28')
        a.e('v_lshrrev_b32 v29, 5, v1')
        a.e('v_lshl_add_u32 v18, v29, 9, v18')
        a.e('v_lshl_add_u32 v28, v27, 11, v28')
        a.e('v_bfe_u32 v29, v1, 2, 2')
        a.e('v_lshl_add_u32 v28, v29, 6, v28')
        a.e('v_and_b32 v29, 1, v27')
        a.e('v_lshl_add_u32 v16, v29, 5, v28')
        a.e('v_xor_b32 v17, 32, v16')
        a.e('v_and_b32 v28, 15, v1')
        a.e('v_lshlrev_b32 v245, 4, v28')
        a.e('v_lshl_add_u32 v245, v29, 9, v245')
        a.e('v_lshrrev_b32 v29, 5, v1')
        a.e('v_lshl_add_u32 v245, v29, 11, v245')
        a.e('v_bfe_u32 v29, v1, 2, 2')
        a.e('v_lshl_add_u32 v29, v27, 3, v29')
        a.e('v_lshlrev_b32 v246, 5, v29')
        a.e('v_and_b32 v29, 1, v1')
        a.e('v_lshlrev_b32 v23, 4, v29')
        a.e('v_add_u32 v23, 4096, v23')
        a.e('v_lshlrev_b32 v29, 3, v29')
        a.e('v_add_u32 v29, 6144, v29')
        a.e('v_and_b32 v24, 2, v1')
        a.e('v_cmp_eq_u32 vcc, 0, v24')
        a.e('v_cndmask_b32 v29, v29, v23, vcc')
        a.e('v_add_u32 v246, v246, v29')
        a.e('v_bfe_u32 v29, v1, 1, 3')
        a.e('v_xor_b32 v29, v29, v27')
        a.e('v_lshlrev_b32 v28, 7, v28')
        a.e('v_lshl_add_u32 v28, v29, 4, v28')
        a.e('v_add_u32 v21, s27, v28')
        a.e('v_xor_b32 v28, 64, v28')
        a.e('v_add_u32 v22, s27, v28')
        self.gelu_consts()

    def consts(self):
        a = self.a
        for i in range(5):
            a.e(f's_add_u32 s{66 + i}, s26, {i * self.SLOT}')
        a.e('s_mov_b32 s71, s30')
        a.e('s_add_u32 s72, s30, 4096')
        a.e('s_mov_b32 s73, s27')
        a.e('s_add_u32 s63, s27, 16384')
        a.e(f's_mov_b32 s33, {32 * 9216}')
        a.e(f's_mov_b32 s36, {576 * 9216}')
        a.e('s_mov_b32 s38, 147456')
        a.e('s_movk_i32 s3, 1152')

    def S(self, text, cost=4):
        return (cost, lambda: self.a.e(text))

    def D(self, text, tag):
        return (12, lambda: self.a.vm(text, tag))

    def grp(self, g, d, t):
        S = self.S
        if g == 0:
            return [S(f's_mov_b32 s{d}, s21')]
        if g < 8:
            return [S(f's_add_u32 s{d}, s35, {g}'), S(f's_cmp_ge_u32 s{d}, 8\ns_cselect_b32 s{t}, 7, 0', 8),
                    S(f's_sub_u32 s{d}, s{d}, s{t}'), S(f's_xor_b32 s{d}, s{d}, s21')]
        return [S(f's_xor_b32 s{d}, s37, {g}')]

    def issueA(self):
        u = self.nextA
        if u >= self.limitA:
            return []
        self.nextA += 1
        S, D = self.S, self.D
        seg, i, _, _, si = self.units[u]
        tag = ('A', u)
        m0 = S(f's_mov_b32 m0, s{66 + u % self.R}')
        if seg == 'E':
            return [m0, D('buffer_load_dwordx4 v20, s[40:43], s59 offen lds', tag),
                    D('buffer_load_dwordx4 v244, s[40:43], s59 offen offset:1024 lds', tag),
                    S('s_add_u32 s59, s59, s58'), S('s_cmp_eq_u32 s59, s42\ns_cselect_b32 s59, 0, s59', 8)]
        m1 = S(f's_mov_b32 m0, s{71 + (si // 4) % 2}')
        out = []
        if seg == 'sp':
            if i % 4 == 0:
                out += self.grp(i // 4, 24, 29) + [S('s_mul_i32 s24, s24, 589824', 6)]
            out += [m0, D(f'buffer_load_dwordx4 v9, s[12:15], s24 offen {SCL} lds', tag),
                    D(f'buffer_load_dwordx4 v9, s[12:15], s24 offen offset:1024 {SCL} lds', tag)]
            if i % 4 == 0:
                out += [m1, D(f'buffer_load_dwordx4 v10, s[12:15], s24 offen {SCL} lds', tag)]
            if i % 4 != 3:
                out.append(S('s_add_u32 s24, s24, s38'))
            return out
        if seg == 'z1' and i == 0:
            out += [S('v_subrev_u32 v2, 4608, v2', 8), S('v_subrev_u32 v3, 4608, v3', 8)]
        out += [m0, D('buffer_load_dwordx4 v2, s[8:11], s24 offen lds', tag),
                D('buffer_load_dwordx4 v3, s[8:11], s24 offen offset:1024 lds', tag), S('s_add_u32 s24, s24, s33')]
        if i % 2 == 1:
            out.append(S('s_cmp_eq_u32 s24, s36\ns_cselect_b32 s24, 0, s24', 8))
        if si % 4 == 0:
            if si == 16:
                out += [S('s_cmp_lt_u32 s20, 2\ns_cselect_b32 s29, 0, 4608', 10), S('v_subrev_u32 v4, s29, v4')]
            if si == 20:
                out += [S('s_cmp_lt_u32 s20, 2\ns_cselect_b32 s29, 4608, 0', 10), S('v_subrev_u32 v4, s29, v4')]
            out += [m1, D('buffer_load_dwordx4 v4, s[8:11], s28 offen lds', tag), S(f's_add_u32 s28, s28, {128 * 9216}', 6),
                    S('s_cmp_ge_u32 s28, s36\ns_cselect_b32 s29, s36, 0', 8), S('s_sub_u32 s28, s28, s29')]
        return out

    def issueB(self):
        s = self.nextB
        if s >= len(self.stages):
            return [[], []]
        self.nextB += 1
        S, D = self.S, self.D
        seg, i = self.stages[s]
        tag = ('B', s)
        sp = seg == 'sp'
        vb = 12 if sp else 5
        sr = 's[52:55]' if sp else 's[4:7]'
        m0 = S(f's_mov_b32 m0, s{(73, 63)[s % 2]}')
        ld = [D(f'buffer_load_dwordx4 v{vb + j}, {sr}, s25 offen offset:{1024 * j} lds', tag) for j in range(4)]
        pre = []
        if sp:
            pre = self.grp(i // 2, 25, 46) + [S('s_lshl_b32 s25, s25, 8')] if i % 2 == 0 else [S('s_addk_i32 s25, 128')]
        post = [] if sp else [S('s_addk_i32 s25, 128'), S('s_cmp_eq_u32 s25, s3\ns_cselect_b32 s25, 0, s25', 8)]
        return [pre + [m0] + ld[:2], [m0] + ld[2:] + post]

    def nfr(self, u):
        return 6 if self.units[u][0] == 'E' else 9

    def freg(self, u, F):
        return (self.ACC1 + 24 if self.units[u][0] == 'E' else self.AF) + 4 * F

    def readA(self, u, F):
        a = self.a
        seg, i, _, _, si = self.units[u]
        slot = (u % self.R) * self.SLOT
        tag = ('AR', u, F)
        r = self.freg(u, F)

        def L(t):
            return (8, lambda: a.lg(t, tag))
        if seg == 'E':
            kk, t = F // 3, F % 3
            if t < 2:
                return [L(f'ds_read_b64_tr_b16 {vr(r + 2 * j, 2)}, v245 offset:{slot + kk * 1024 + j * 256 + t * 8}') for j in range(2)]
            return [L(f'ds_read_b64_tr_b16 {vr(r + 2 * j, 2)}, v246 offset:{slot + kk * 1024 + j * 128}') for j in range(2)]
        sgl = self.SGL + ((si // 4) % 2) * 4096 + (si % 4) * 1024
        if seg == 'sp':
            return [L(f'ds_read_b128 {vr(r, 4)}, v19 offset:{slot + F * 1024 if F < 8 else sgl}')]
        if F < 8:
            return [L(f'ds_read_b64_tr_b16 {vr(r + 2 * j, 2)}, v{16 + F % 2} offset:{slot + j * 1024 + (F // 2) * 256}') for j in range(2)]
        return [L(f'ds_read_b64_tr_b16 {vr(r + 2 * j, 2)}, v18 offset:{sgl + j * 256}') for j in range(2)]

    def readB(self, s):
        a = self.a
        out = [(4, lambda: a.wait_vm(('B', s)))]
        for jj in range(2):
            for e in range(2):
                t = f'ds_read_b128 {vr(self.BF + 16 * (s % 2) + 8 * jj + 4 * e, 4)}, v{21 + jj} offset:{(s % 2) * 16384 + e * 2048}'
                out.append((8, lambda t=t: a.lg(t, ('BR', s))))
        return out

    def run(self, items):
        for _, f in items:
            f()

    def prologue_issue(self):
        self.run(self.issueA())
        b1 = self.issueB()
        self.run(b1[0] + b1[1][1:] + self.issueA())

    def run_segment(self, u0, n, own=False):
        a = self.a
        a.e(f's_setprio {opt("pg", PG)[0]}')
        self.run(self.readB(self.units[u0][2]))
        a.wait_vm(('A', u0))
        a.wait_lg('own')
        a.e('s_barrier')
        for F in range(9):
            self.run(self.readA(u0, F))
        carry = []
        for u in range(u0, u0 + n):
            last = u == u0 + n - 1
            seg, kk, s, jj, _ = self.units[u]
            sfirst = u == u0 or self.units[u - 1][2] != s
            pos = u - min(v for v in range(u0, u + 1) if self.units[v][2] == s)
            nf = self.nfr(u)
            if 'p2fine' in ABL and u >= self.UP + 4 and (u - self.UP - 4) % 10 == 0:
                stamp(a, 1 + (u - self.UP - 4) // 10)
            will_issue = self.nextA <= u + self.R - 1 and self.nextA < self.limitA
            if not last:
                a.wait_vm(('A', u + 1))
            if will_issue or (not last and not own):
                a.e('s_barrier')
            if u in self.hooks:
                self.hooks[u]()
            misc = self.issueA() if self.nextA <= u + self.R - 1 else []
            if sfirst and self.nextB <= s + 2:
                self.pendB = self.issueB()
            pb = self.pendB.pop(0) if self.pendB else []
            reads = [(0, it) for it in carry]
            carry = []
            if not last:
                same = self.freg(u, 0) == self.freg(u + 1, 0)
                for F in range(self.nfr(u + 1)):
                    its = self.readA(u + 1, F)
                    if nf == 6 and F >= 7:
                        carry += its
                    else:
                        reads += [(2 * F + 1 if same else 0, it) for it in its]
            stage_end = max(v for v in range(u, u0 + n) if self.units[v][2] == s)
            if pos == 1 and stage_end < u0 + n - 1:
                misc += self.readB(s + 1)
            misc += pb
            ng = 2 * nf
            nwait = (nf + 1) // 2
            total = sum(c for _, (c, _) in reads) + sum(c for c, _ in misc) + 4 * nwait + 8
            done = 0
            for g in range(ng):
                F, e = g // 2, g % 2
                if g == 0:
                    a.wait_lg(('AR', u, 0))
                    if sfirst:
                        a.wait_lg(('BR', s))
                af = vr(self.freg(u, F), 4)
                if seg == 'E':
                    d = vr(self.ACC1 + 8 * (F % 3) + 4 * e, 4)
                    c = '0' if (kk == 0 and F < 3) else d
                    bf = vr(self.BF + 16 * (s % 2) + 8 * (F // 3) + 4 * e, 4)
                else:
                    d = vr((self.ACC1 if seg == 'z1' else self.ACC0) + 8 * F + 4 * e, 4)
                    c = '0' if kk == 0 else d
                    bf = vr(self.BF + 16 * (s % 2) + 8 * jj + 4 * e, 4)
                if seg == 'z2':
                    a.e(f'v_mfma_f32_16x16x32_bf16 {d}, {bf}, {af}, {c}')
                else:
                    a.e(f'v_mfma_f32_16x16x32_bf16 {d}, {af}, {bf}, {c}')
                used = 0
                needw = e == 1 and F % 2 == 0 and F + 1 < nf
                if needw:
                    used += 4
                if g == ng - 1:
                    used += 8
                target = max(12 * (g + 1), total * (g + 1) / ng)
                while True:
                    cand = None
                    if reads and reads[0][0] <= g and (not misc or len(reads) * 1.0 >= (ng - g) * 0.55 or misc[0][0] + used > 12):
                        cand = 'r'
                    elif misc:
                        cand = 'm'
                    elif reads and reads[0][0] <= g:
                        cand = 'r'
                    if cand is None:
                        break
                    cost = reads[0][1][0] if cand == 'r' else misc[0][0]
                    if g < ng - 1 and used + cost > 12 and done + used + cost > total * (g + 1) / ng:
                        break
                    (reads.pop(0)[1] if cand == 'r' else misc.pop(0))[1]()
                    used += cost
                done += used
                if needw:
                    a.wait_lg(('AR', u, F + 1))
                    a.wait_lg(('AR', u, min(F + 2, nf - 1)))
                    self.merge_waits()
            assert not reads and not misc
        a.e(f's_setprio {opt("pg", PG)[1]}')

    def merge_waits(self):
        ins = self.a.ins
        if len(ins) >= 2 and ins[-1].text.startswith('s_waitcnt lgkmcnt') and ins[-2].text.startswith('s_waitcnt lgkmcnt'):
            del ins[-2]

    def proj_store(self):
        a = self.a
        E = self.ACC1
        P = self.AF
        a.e(f's_mov_b32 s44, {hx(QSCALE)}')
        a.e(f's_mov_b32 s45, {hx(QSCALE)}')
        a.e('v_mov_b32 v24, s44')
        a.e('s_bitcmp1_b32 0x2c, s22')
        a.e(f's_cselect_b32 s46, {hx(2.0 ** VSH)}, 1.0')
        a.e('v_mov_b32 v25, s46')
        a.e('v_cmp_gt_u32 vcc, 32, v1')
        a.e('v_cndmask_b32 v24, v25, v24, vcc')
        a.e('s_lshl_b32 s46, s23, 5')
        a.e('s_add_u32 s46, s46, s22')
        a.e('s_mul_i32 s46, s46, 1152')
        a.e(f's_add_u32 s46, s46, {QF_OFF}')
        a.e(f's_add_u32 s47, s46, {16 * 1152}')
        a.e('v_lshlrev_b32 v25, 2, v1')
        for e in range(2):
            for t in range(2):
                for h in range(2):
                    r = E + 8 * t + 4 * e + 2 * h
                    a.e(f'v_pk_mul_f32 {vr(r, 2)}, {vr(r, 2)}, s[44:45]')
            for r in (E + 16 + 4 * e, E + 18 + 4 * e):
                a.e(f'v_pk_mul_f32 {vr(r, 2)}, {vr(r, 2)}, v[24:25] op_sel_hi:[1,0]')
            for t in range(3):
                for h in range(2):
                    r = E + 8 * t + 4 * e + 2 * h
                    a.e(f'v_cvt_pk_bf16_f32 v{P + 8 * e + 2 * t + h}, v{r}, v{r + 1}')
            for i in range(6):
                a.e(f'v_min_u32 v{P + 8 * e + i}, -2, v{P + 8 * e + i}')
            a.vm(f'buffer_store_dwordx4 {vr(P + 8 * e, 4)}, v19, s[12:15], s{46 + e} offen {SC}', 'pst')
        a.e('s_mov_b32 exec_hi, 0')
        for e in range(2):
            a.vm(f'buffer_store_dword v{P + 8 * e + 4}, v25, s[12:15], s{46 + e} offen offset:1024 {SC}', 'pst')
        a.e('s_mov_b64 exec, -1')
        le = a.newlabel('PJ_E')
        lv = a.newlabel('PJ_V')
        lt = a.newlabel('PJ_T')
        ls = a.newlabel('PJ_S')
        a.e('s_cmp_ge_u32 s22, 6')
        a.e(f's_cbranch_scc1 {le}')
        a.e(f's_mul_i32 s44, s23, {KV_TILE}')
        a.e(f's_add_u32 s44, s44, {KV_OFF}')
        a.e('v_and_b32 v24, 15, v1')
        a.e('v_bfe_u32 v25, v1, 4, 1')
        a.e('v_lshrrev_b32 v26, 2, v24')
        a.e('v_mul_u32_u24 v26, 168, v26')
        a.e('v_add_u32 v26, 1152, v26')
        a.e('v_and_b32 v27, 3, v1')
        a.e('s_mov_b32 exec_lo, 0')
        a.e('s_cmp_ge_u32 s22, 4')
        a.e(f's_cbranch_scc1 {lt}')
        a.e('s_cmp_ge_u32 s22, 2')
        a.e(f's_cbranch_scc1 {lv}')
        a.e('v_lshlrev_b32 v28, 4, v24')
        a.e('v_lshl_add_u32 v28, v25, 3, v28')
        a.e('s_lshl_b32 s45, s22, 9')
        a.e('s_add_u32 s44, s44, s45')
        a.e('s_add_u32 s45, s44, 256')
        a.e(f's_branch {ls}')
        a.label(lv)
        a.e('v_lshl_add_u32 v28, v27, 5, v26')
        a.e('v_lshl_add_u32 v28, v25, 3, v28')
        a.e('s_and_b32 s45, s22, 1')
        a.e('s_lshl_b32 s45, s45, 4')
        a.e('s_add_u32 s44, s44, s45')
        a.e(f's_add_u32 s45, s44, {4 * 168}')
        a.e(f's_branch {ls}')
        a.label(lt)
        lvt = a.newlabel('PJ_VT')
        a.e('s_cmp_eq_u32 s22, 5')
        a.e(f's_cbranch_scc1 {lvt}')
        a.e('v_lshlrev_b32 v28, 2, v24')
        a.e('s_mov_b32 exec_hi, 0xffff')
        for e in range(2):
            a.e(f'buffer_store_dword v{P + 8 * e + 4}, v28, s[12:15], s44 offen offset:{1024 + 64 * e} {SC}')
        a.e(f's_branch {le}')
        a.label(lvt)
        a.e('v_lshl_add_u32 v28, v27, 3, v26')
        a.e('v_add_u32 v28, 128, v28')
        a.e('v_add_u32 v29, 160, v26')
        a.e('v_cmp_eq_u32 vcc, 0, v25')
        a.e('v_cndmask_b32 v28, v29, v28, vcc')
        a.e(f'v_mov_b32 v29, {f2u(2.0 ** VSH) >> 16}')
        for e in range(2):
            a.e(f'v_cndmask_b32 v{P + 8 * e + 4}, 0, v{P + 8 * e + 4}, vcc')
            a.e(f'v_cndmask_b32 v{P + 8 * e + 5}, 0, v29, vcc')
        a.e(f's_add_u32 s45, s44, {4 * 168}')
        a.label(ls)
        for e in range(2):
            a.e(f'buffer_store_dwordx2 {vr(P + 8 * e + 4, 2)}, v28, s[12:15], s{44 + e} offen {SC}')
        a.label(le)
        a.e('s_mov_b64 exec, -1')

    def mk_load(self):
        self.a.e(f'buffer_load_dwordx2 v[26:27], v23, s[12:15], s47 offen {SC}')

    def mk_addr(self):
        a = self.a
        a.e('s_bfe_u32 s47, s22, 0x20001')
        a.e('s_lshl_b32 s47, s47, 3')
        a.e('s_bfe_u32 s45, s23, 0x30001')
        a.e('s_add_u32 s47, s47, s45')
        a.e('s_lshl_b32 s47, s47, 3')
        a.e('s_and_b32 s45, s2, 7')
        a.e('s_add_u32 s47, s47, s45')
        a.e('s_lshl_b32 s47, s47, 7')
        a.e('s_and_b32 s45, s23, 1')
        a.e('s_lshl_b32 s45, s45, 3')
        a.e('s_add_u32 s47, s47, s45')
        a.e(f's_add_u32 s47, s47, {GO_OFF}')

    def proj_signal(self):
        a = self.a
        a.wait_vm('pst')
        a.e('v_mov_b32 v28, s62')
        a.e('s_barrier')
        l = a.newlabel('PS')
        a.e('s_cmp_ge_u32 s22, 6')
        a.e(f's_cbranch_scc1 {l}')
        a.e('s_cmp_lg_u32 s20, 0')
        a.e(f's_cbranch_scc1 {l}')
        a.e('s_mul_i32 s44, s21, 6')
        a.e('s_add_u32 s44, s44, s22')
        a.e('s_lshl_b32 s44, s44, 2')
        a.e(f's_add_u32 s44, s44, {KVF_OFF}')
        a.e('v_lshlrev_b32 v27, 9, v1')
        a.e('s_mov_b64 exec, 0xff')
        a.e(f'buffer_store_dword v28, v27, s[12:15], s44 offen {SC}')
        a.e('s_mov_b64 exec, -1')
        a.label(l)

    def gelu_consts(self):
        a = self.a
        a.e(f's_mov_b32 s60, {hx(GELU_C1)}')
        a.e(f's_mov_b32 s61, {hx(GELU_C1)}')
        a.e(f'v_mov_b32 v30, {hx(GELU_C0)}')
        a.e(f'v_mov_b32 v31, {hx(GELU_C0)}')

    def z1_gelu(self, Fs=range(9)):
        a = self.a
        T = self.BF + 16
        for F in Fs:
            base = self.ACC1 + 8 * F
            gelu_group(a, [base + 2 * i for i in range(4)], T + 8 * (F % 2), 60, 30)

    def z2_gelu_publish(self):
        a = self.a
        T = self.AF + 16
        S = self.BF
        for F in range(9):
            if F == opt('psig', [5])[0]:
                self.proj_signal()
            base = self.ACC0 + 8 * F
            gelu_group(a, [base + 2 * i for i in range(4)], T + 8 * (F % 2), 60, 30)
            for i in range(4):
                y = vr(base + 2 * i, 2)
                if F == 0:
                    a.e(f'v_pk_add_f32 {vr(S + 2 * i, 2)}, {y}, 0 op_sel_hi:[1,0]')
                    a.e(f'v_pk_mul_f32 {vr(S + 8 + 2 * i, 2)}, {y}, {y}')
                else:
                    a.e(f'v_pk_add_f32 {vr(S + 2 * i, 2)}, {vr(S + 2 * i, 2)}, {y}')
                    a.e(f'v_pk_fma_f32 {vr(S + 8 + 2 * i, 2)}, {y}, {y}, {vr(S + 8 + 2 * i, 2)}')
        for b in (S, S + 8):
            for r in range(4):
                a.e(f'v_add_f32_dpp v{b + r}, v{b + r}, v{b + r} row_ror:8 row_mask:0xf bank_mask:0x3')
            for r in range(4):
                a.e(f'v_add_f32_dpp v{b + r}, v{b + r + 4}, v{b + r + 4} row_ror:8 row_mask:0xf bank_mask:0xc')
        for b in (S, S + 8):
            for r in range(2):
                a.e(f'v_add_f32_dpp v{b + r}, v{b + r}, v{b + r} row_shl:4 row_mask:0xf bank_mask:0x5')
            for r in range(2):
                a.e(f'v_add_f32_dpp v{b + r}, v{b + r + 2}, v{b + r + 2} row_shr:4 row_mask:0xf bank_mask:0xa')
        for qp in ('[1,0,3,2]', '[2,3,0,1]'):
            for r in (S, S + 1, S + 8, S + 9):
                a.e(f'v_add_f32_dpp v{r}, v{r}, v{r} quad_perm:{qp} row_mask:0xf bank_mask:0xf')
        a.e('v_and_b32 v25, 1, v1')
        a.e('v_cmp_eq_u32 vcc, 1, v25')
        G0 = S + 12
        a.e(f'v_cndmask_b32 v{G0}, v{S}, v{S + 1}, vcc')
        a.e(f'v_cndmask_b32 v{G0 + 1}, v{S + 8}, v{S + 9}, vcc')
        a.e('v_lshrrev_b32 v27, 2, v1')
        a.e('v_lshl_add_u32 v27, v27, 1, v25')
        a.e('v_lshlrev_b32 v27, 4, v27')
        a.e('s_lshl_b32 s48, s23, 13')
        a.e(f's_add_u32 s48, s48, {STATS_OFF}')
        a.e('s_lshl_b32 s49, s22, 9')
        a.e('s_add_u32 s49, s49, s48')
        a.e(f'v_mov_b32 v{G0 + 2}, s62')
        a.e(f'v_mov_b32 v{G0 + 3}, s62')
        a.e('s_mov_b32 exec_lo, 0x33333333')
        a.e('s_mov_b32 exec_hi, 0x33333333')
        a.vm(f'buffer_store_dwordx4 {vr(G0, 4)}, v27, s[12:15], s49 offen {SC}', 'st')
        a.e('s_mov_b64 exec, -1')

    def z2_gather_norm_store(self):
        a = self.a
        G = self.AF
        a.e('s_add_u32 s49, s48, 4096')

        def ld():
            for i in range(8):
                a.e(f'buffer_load_dwordx4 {vr(G + 4 * i, 4)}, v19, s[12:15], {"s48" if i < 4 else "s49"} offen offset:{1024 * (i % 4)} {SC}')
        poll(a, ld, [G + 4 * i + 2 for i in range(8)], 27)
        for i in (0, 2, 4, 6):
            a.e(f'v_pk_add_f32 {vr(G + 4 * i, 2)}, {vr(G + 4 * i, 2)}, {vr(G + 4 * i + 4, 2)}')
        a.e(f'v_pk_add_f32 {vr(G, 2)}, {vr(G, 2)}, {vr(G + 8, 2)}')
        a.e(f'v_pk_add_f32 {vr(G + 16, 2)}, {vr(G + 16, 2)}, {vr(G + 24, 2)}')
        a.e(f'v_pk_add_f32 {vr(G, 2)}, {vr(G, 2)}, {vr(G + 16, 2)}')
        a.e(f'v_mov_b32 v{G + 2}, v{G}')
        a.e(f'v_mov_b32 v{G + 3}, v{G + 1}')
        a.e(f'v_permlane32_swap_b32 v{G}, v{G + 2}')
        a.e(f'v_permlane32_swap_b32 v{G + 1}, v{G + 3}')
        a.e(f'v_pk_add_f32 {vr(G, 2)}, {vr(G, 2)}, {vr(G + 2, 2)}')
        a.e(f'v_mul_f32 v{G}, {hx(1.0 / 2304)}, v{G}')
        a.e(f'v_mul_f32 v{G + 1}, {hx(1.0 / 2304)}, v{G + 1}')
        a.e(f'v_fma_f32 v{G + 1}, -v{G}, v{G}, v{G + 1}')
        a.e(f'v_max_f32 v{G + 1}, 0, v{G + 1}')
        a.e(f'v_add_f32 v{G + 1}, {hx(1e-5)}, v{G + 1}')
        a.e(f'v_rsq_f32 v{G + 1}, v{G + 1}')
        a.e(f'v_mul_f32 v{G}, v{G}, v{G + 1}')
        a.e(f'v_sub_f32 v{G}, 0, v{G}')
        a.e('v_lshrrev_b32 v28, 4, v1')
        a.e('v_lshlrev_b32 v28, 5, v28')
        RS = self.BF
        for i in range(8):
            a.lg(f'ds_bpermute_b32 v{RS + i}, v28, v{G + 1} offset:{4 * i}', 'r')
            a.lg(f'ds_bpermute_b32 v{RS + 8 + i}, v28, v{G} offset:{4 * i}', 'r')
        a.e('s_mul_i32 s44, s23, 147456')
        a.e(f's_add_u32 s44, s44, {Z2_OFF}')
        a.e('s_lshl_b32 s45, s22, 13')
        a.e('s_add_u32 s45, s45, s44')
        a.e('s_add_u32 s47, s45, 4096')
        a.e('s_lshl_b32 s46, s22, 10')
        a.e('s_add_u32 s46, s46, s44')
        a.e(f's_add_u32 s46, s46, {128 * 1024}')
        a.wait_lg0()
        for F in range(9):
            base = self.ACC0 + 8 * F
            pk = self.ACC0 + 4 * F
            for i in range(4):
                a.e(f'v_pk_fma_f32 {vr(base + 2 * i, 2)}, {vr(base + 2 * i, 2)}, {vr(RS + 2 * i, 2)}, {vr(RS + 8 + 2 * i, 2)}')
            for i in range(4):
                a.e(f'v_cvt_pk_bf16_f32 v{pk + i}, v{base + 2 * i}, v{base + 2 * i + 1}')
            so = 's46' if F == 8 else ('s45' if F < 4 else 's47')
            a.vm(f'buffer_store_dwordx4 {vr(pk, 4)}, v19, s[12:15], {so} offen offset:{1024 * (F % 4)} {SC}', 'st')

    def own_write(self):
        a = self.a
        a.e('s_lshl_b32 s44, s20, 13')
        a.e('v_add_u32 v27, s44, v19')
        a.e('v_add_u32 v28, s30, v19')
        a.e('s_barrier')
        for F in range(9):
            pk = self.ACC0 + 4 * F
            if F < 8:
                a.lg(f'ds_write_b128 v27, {vr(pk, 4)} offset:{1024 * F}', 'own')
            else:
                a.lg(f'ds_write_b128 v28, {vr(pk, 4)} offset:4096', 'own')

    def sp_pre(self):
        a = self.a
        a.e('v_bfe_u32 v27, v1, 2, 2')
        a.e('v_lshlrev_b32 v27, 3, v27')
        a.e('v_and_b32 v28, 3, v1')
        a.e('s_lshl_b32 s44, s23, 5')
        a.e('v_add3_u32 v27, v27, v28, s44')
        a.e('v_lshlrev_b32 v28, 1, v27')
        a.e('v_lshlrev_b32 v11, 3, v27')
        a.vm('global_load_ushort v244, v28, s[56:57]', 'pre')
        a.vm('global_load_ushort v245, v28, s[56:57] offset:8', 'pre')
        self.gate_loads(True)

    def gate_loads(self, track=False):
        a = self.a
        a.e(f's_mov_b32 s44, {GATE_OFF}')
        for e in range(2):
            t = f'buffer_load_dwordx2 {vr(246 + 2 * e, 2)}, v11, s[12:15], s44 offen offset:{32 * e} {SC}'
            a.vm(t, 'pre') if track else a.e(t)

    def sp_epilogue(self):
        a = self.a
        a.wait_vm('pre')
        poll(a, self.gate_loads, [247, 249], 27, first_done=True)
        poll(a, lambda: p3_flags(a), [2, 3, 4], 27, first_done=True)
        for e in range(2):
            a.e(f'v_sub_f32 v{246 + 2 * e}, 1.0, v{246 + 2 * e}')
            a.e(f'v_lshlrev_b32 v{244 + e}, 16, v{244 + e}')
            a.e(f'v_mul_f32 v{250 + 2 * e}, v{244 + e}, v{246 + 2 * e}')
        a.e('s_mul_i32 s44, s23, 180')
        a.e('s_lshr_b32 s45, s22, 2')
        a.e('s_mul_i32 s45, s45, 18')
        a.e('s_add_u32 s44, s44, s45')
        a.e('s_lshl_b32 s44, s44, 10')
        a.e(f's_add_u32 s44, s44, {UF_OFF + 18 * 1024}')
        a.e('s_and_b32 s45, s22, 3')
        a.e('s_lshl_b32 s46, s45, 12')
        a.e('s_add_u32 s46, s46, s44')
        a.e(f's_add_u32 s47, s46, {90 * 1024}')
        a.e('s_lshr_b32 s48, s45, 1')
        a.e('s_lshl_b32 s48, s48, 10')
        a.e('s_add_u32 s48, s48, s44')
        a.e('s_and_b32 s49, s45, 1')
        a.e('s_lshl_b32 s49, s49, 3')
        a.e('s_add_u32 s48, s48, s49')
        a.e(f's_add_u32 s48, s48, {16 * 1024}')
        a.e(f's_add_u32 s49, s48, {90 * 1024}')
        idx = 0
        for m in range(5):
            for e in range(2):
                pk = self.AF + 4 * idx
                idx += 1
                Fs = (2 * m, 2 * m + 1) if m < 4 else (8,)
                prs = [(self.ACC0 + 8 * F + 4 * e + 2 * i, self.ACC1 + 8 * F + 4 * e + 2 * i) for F in Fs for i in range(2)]
                for g, z in prs:
                    a.e(f'v_pk_fma_f32 {vr(g, 2)}, {vr(g, 2)}, {vr(246 + 2 * e, 2)}, {vr(250 + 2 * e, 2)} op_sel_hi:[1,0,0]')
                for g, z in prs:
                    a.e(f'v_pk_mul_f32 {vr(g, 2)}, {vr(g, 2)}, {vr(z, 2)}')
                for i, (g, z) in enumerate(prs):
                    a.e(f'v_cvt_pk_bf16_f32 v{pk + i}, v{g}, v{g + 1}')
                for i in range(len(prs)):
                    a.e(f'v_min_u32 v{pk + i}, -2, v{pk + i}')
                if m < 4:
                    a.vm(f'buffer_store_dwordx4 {vr(pk, 4)}, v19, s[12:15], s{46 + e} offen offset:{1024 * m} {SC}', 'st')
                else:
                    a.vm(f'buffer_store_dwordx2 {vr(pk, 2)}, v19, s[12:15], s{48 + e} offen {SC}', 'st')


def write_nonce(a):
    l = a.newlabel('NOW')
    a.e('s_cmp_lg_u32 s3, 0')
    a.e(f's_cbranch_scc1 {l}')
    a.e(f's_add_u32 s44, s26, {KV_OFF}')
    for i in range(10):
        a.e(f'buffer_store_dwordx4 v[224:227], v10, s[12:15], s44 offen {SC}')
        a.e('s_add_u32 s44, s44, 1024')
    a.e('s_memrealtime s[44:45]')
    a.e('s_waitcnt vmcnt(0) lgkmcnt(0)')
    a.e('s_barrier')
    a.e('s_cmp_lg_u32 s20, 0')
    a.e(f's_cbranch_scc1 {l}')
    a.e('v_mov_b32 v29, 0')
    a.e('s_or_b32 s44, s44, 1')
    a.e('v_mov_b32 v28, s44')
    a.e(f'global_store_dword v29, v28, s[16:17] {SC}')
    a.label(l)


KVBUF = 40960
M_OFFSET = 96.0
VSH = 32


class ATT:
    SB = 16
    OB = 48
    QF = 80
    KF = 96
    VF = 112
    PF = 128
    XF = 136
    WF = 208
    WQS = 16

    def __init__(self, a):
        self.a = a

    def setup(self, sid):
        a = self.a
        a.e(f's_load_dwordx2 s[4:5], s[0:1], {A_X}')
        a.e(f's_load_dwordx4 s[16:19], s[0:1], {A_DBG}')
        a.e(f's_load_dwordx4 s[56:59], s[0:1], {A_WOUT}')
        a.e(f's_load_dwordx2 s[36:37], s[0:1], {A_WO}')
        a.e(f's_load_dwordx2 s[60:61], s[0:1], {A_WSP}')
        a.e('v_lshrrev_b32 v1, 6, v0')
        a.e('v_readfirstlane_b32 s20, v1')
        a.e('v_and_b32 v1, 63, v0')
        a.e(f's_and_b32 s24, s{sid}, 3')
        a.e(f's_lshr_b32 s25, s{sid}, 3')
        a.e('s_lshl_b32 s21, s24, 3')
        a.e('s_and_b32 s23, s25, 7')
        a.e('s_add_u32 s21, s21, s23')
        a.e(f's_and_b32 s22, s{sid}, 4')
        a.e('s_lshr_b32 s23, s25, 3')
        a.e('s_add_u32 s22, s22, s23')
        a.e('s_lshl_b32 s23, s21, 2')
        a.e('s_add_u32 s23, s23, s20')
        a.e('s_lshr_b32 s44, s23, 1')
        a.e('s_lshl_b32 s44, s44, 5')
        a.e('s_and_b32 s45, s23, 1')
        a.e('s_lshl_b32 s45, s45, 2')
        a.e('s_add_u32 s44, s44, s45')
        a.e('v_bfe_u32 v3, v1, 2, 2')
        a.e('v_lshlrev_b32 v3, 3, v3')
        a.e('v_and_b32 v10, 3, v1')
        a.e('v_add3_u32 v3, v3, v10, s44')
        a.e('v_lshlrev_b32 v3, 3, v3')
        a.e('s_mul_i32 s26, s20, 10240')
        a.e('s_lshl_b32 s27, s25, 2')
        a.e('s_add_u32 s27, s27, s20')
        if 'nocodepf' not in ABL:
            a.e('s_getpc_b64 s[8:9]')
            a.label('K_PC')
            a.e('s_sub_u32 s8, s8, K_PC-K_GEMM')
            a.e('s_subb_u32 s9, s9, 0')
            a.e('s_mul_i32 s45, s27, 5')
            a.e('v_min_u32 v10, 4, v1')
            a.e('v_add_u32 v10, s45, v10')
            a.e('v_min_u32 v10, CODE_LINES, v10')
            a.e('v_lshlrev_b32 v238, 7, v10')
            a.e('global_load_dword v239, v238, s[8:9]')
        a.e('v_lshlrev_b32 v10, 4, v1')
        a.e('s_waitcnt lgkmcnt(0)')
        a.e('s_mov_b32 s12, s18')
        a.e('s_mov_b32 s13, s19')
        srd(a, 12, WS_SIZE)

    def nonce(self):
        a = self.a
        a.e('s_waitcnt vmcnt(0)')
        a.e('v_mov_b32 v2, 0')
        a.e(f'global_load_dword v4, v2, s[16:17] {SC}')
        a.e('s_waitcnt vmcnt(0)')
        get_nonce(a, 2, 4)

    def page_touch(self):
        a = self.a
        l = a.newlabel('PT')
        a.e('s_cmp_lg_u32 s20, 1')
        a.e(f's_cbranch_scc1 {l}')
        a.e(f's_load_dwordx2 s[44:45], s[0:1], {A_WSP}')
        a.e(f's_load_dwordx2 s[46:47], s[0:1], {A_OUT}')
        a.e('v_lshlrev_b32 v2, 19, v1')
        a.e('buffer_load_dword v255, v2, s[12:15], 0 offen')
        a.e('v_min_u32 v4, 15, v1')
        a.e('v_lshlrev_b32 v4, 19, v4')
        a.e('v_min_u32 v5, 4, v1')
        a.e('v_lshlrev_b32 v5, 19, v5')
        a.e('s_waitcnt lgkmcnt(0)')
        a.e('global_load_dword v255, v4, s[44:45]')
        a.e('global_load_dword v255, v5, s[46:47]')
        a.e('global_load_dword v255, v5, s[56:57]')
        a.label(l)

    SV = 140

    def side(self, part):
        a = self.a
        lg = a.newlabel('SJ_G')
        le = a.newlabel('SJ_E')
        a.e('s_cmp_eq_u32 s20, 3')
        a.e(f's_cbranch_scc1 {lg}')
        a.e(f's_cmp_ge_u32 s63, {0 if "nort" in ABL else 720}')
        a.e(f's_cbranch_scc1 {le}')
        self.retile(part)
        a.e(f's_branch {le}')
        a.label(lg)
        self.gate(part)
        a.label(le)
        if part == 2:
            self.mark_flag()

    def gate(self, part):
        a = self.a
        V = self.SV
        X, W = V + 8, V + 44
        if part == 0:
            a.e(f'v_lshrrev_b32 v{V}, 3, v1')
            a.e('s_lshl_b32 s44, s3, 3')
            a.e(f'v_add_u32 v{V}, s44, v{V}')
            a.e(f'v_and_b32 v{V + 1}, 7, v1')
            a.e(f'v_lshlrev_b32 v{V + 1}, 4, v{V + 1}')
            a.e(f'v_mul_u32_u24 v{V + 2}, 1152, v{V}')
            a.e(f'v_add_u32 v{V + 2}, v{V + 2}, v{V + 1}')
            for i in range(9):
                a.e(f'global_load_dwordx4 {vr(X + 4 * i, 4)}, v{V + 2}, s[4:5] offset:{128 * i}')
                a.e(f'global_load_dwordx4 {vr(W + 4 * i, 4)}, v{V + 1}, s[58:59] offset:{128 * i}')
        elif part == 1:
            A0, A1, T0, T1 = V + 4, V + 5, V + 6, V + 7
            a.e(f'v_mov_b32 v{A0}, 0')
            a.e(f'v_mov_b32 v{A1}, 0')
            for i in range(36):
                a.e(f'v_dot2c_f32_bf16 v{A0 + i % 2}, v{X + i}, v{W + i}')
            a.e('s_nop 3')
            a.e(f'v_add_f32 v{A0}, v{A0}, v{A1}')
            for m in ('quad_perm:[1,0,3,2]', 'quad_perm:[2,3,0,1]', 'row_half_mirror'):
                a.e(f'v_add_f32_dpp v{A0}, v{A0}, v{A0} {m} row_mask:0xf bank_mask:0xf')
            a.e(f'v_mul_f32 v{A0}, {hx(-1.4426950408889634)}, v{A0}')
            a.e(f'v_exp_f32 v{A0}, v{A0}')
            a.e(f'v_add_f32 v{A0}, 1.0, v{A0}')
            a.e(f'v_rcp_f32 v{A0}, v{A0}')
            a.e(f'v_mov_b32 v{A1}, s62')
            a.e(f'v_lshlrev_b32 v{V}, 3, v{V}')
            a.e(f's_mov_b32 s44, {GATE_OFF}')
            a.e('s_mov_b32 exec_lo, 0x01010101')
            a.e('s_mov_b32 exec_hi, 0x01010101')
            a.e(f'buffer_store_dwordx2 {vr(A0, 2)}, v{V}, s[12:15], s44 offen {SC}')
            a.e('s_mov_b64 exec, -1')

    def retile_setup(self):
        a = self.a
        V = self.SV
        a.e('s_mul_i32 s63, s3, 3')
        a.e('s_add_u32 s63, s63, s20')
        a.e('s_and_b32 s64, s63, 7')
        a.e('s_lshr_b32 s65, s63, 3')
        a.e('s_cmp_lt_u32 s65, 18')
        a.e('s_cselect_b32 s40, s36, s56')
        a.e('s_cselect_b32 s41, s37, s57')
        a.e(f's_mov_b32 s42, {2304 * 1152}')
        a.e(f's_cselect_b32 s42, {576 * 1152}, s42')
        a.e('s_mov_b32 s43, 0x00020000')
        a.e('s_sub_u32 s44, s65, 18')
        a.e('s_mul_i32 s45, s44, 57')
        a.e('s_lshr_b32 s45, s45, 10')
        a.e('s_mul_i32 s46, s45, 18')
        a.e('s_sub_u32 s44, s44, s46')
        a.e('s_lshl_b32 s46, s45, 9')
        a.e('s_lshl_b32 s47, s45, 6')
        a.e(f's_add_u32 s47, s47, {2048 - 512}')
        a.e('s_cmp_lt_u32 s44, 16')
        a.e('s_cselect_b32 s46, s46, s47')
        a.e('s_lshl_b32 s44, s44, 5')
        a.e('s_add_u32 s44, s44, s46')
        a.e('s_mov_b32 s45, 4')
        a.e('s_mov_b32 s46, 8')
        a.e('s_mov_b32 s47, 16')
        a.e('s_mov_b32 s48, 2')
        a.e('s_sub_u32 s49, s65, 16')
        a.e('s_mul_i32 s49, s49, 288')
        a.e('s_add_u32 s49, s49, 16')
        a.e('s_cmp_lt_u32 s65, 18')
        a.e('s_cselect_b32 s44, s49, s44')
        a.e('s_cselect_b32 s45, 72, s45')
        a.e('s_cselect_b32 s46, 144, s46')
        a.e('s_cselect_b32 s47, 36, s47')
        a.e('s_cselect_b32 s48, 18, s48')
        a.e('s_mul_i32 s49, s65, 36')
        a.e('s_cmp_lt_u32 s65, 16')
        a.e('s_cselect_b32 s44, s49, s44')
        a.e('s_cselect_b32 s45, 18, s45')
        a.e('s_cselect_b32 s46, 4, s46')
        a.e('s_cselect_b32 s47, 8, s47')
        a.e('s_cselect_b32 s48, 2, s48')
        for r in (44, 45, 46, 47):
            a.e(f's_mul_i32 s{r}, s{r}, 1152')
        a.e('s_mul_i32 s49, s64, 144')
        a.e('s_add_u32 s66, s44, s49')
        a.e('s_add_u32 s67, s66, s47')
        for i in range(2):
            a.e(f's_add_u32 s{68 + i}, s{66 + i}, s45')
        for i in range(4):
            a.e(f's_add_u32 s{70 + i}, s{66 + i}, s46')
        a.e(f'v_lshrrev_b32 v{V}, 5, v1')
        a.e(f'v_mul_lo_u32 v{V}, v{V}, s48')
        a.e('v_bfe_u32 v5, v1, 4, 1')
        a.e(f'v_add_u32 v{V}, v{V}, v5')
        a.e(f'v_mul_u32_u24 v{V}, 1152, v{V}')
        a.e('v_and_b32 v5, 15, v1')
        a.e('v_min_u32 v5, 8, v5')
        a.e(f'v_lshl_add_u32 v{V}, v5, 4, v{V}')
        a.e('v_lshrrev_b32 v5, 4, v1')
        a.e('v_bfe_u32 v6, v1, 2, 2')
        a.e('v_lshlrev_b32 v7, 11, v5')
        a.e('v_lshl_add_u32 v7, v6, 8, v7')
        a.e(f's_add_u32 s44, s26, {KVBUF}')
        a.e('v_add_u32 v7, s44, v7')
        a.e('v_and_b32 v6, 3, v1')
        a.e(f'v_lshl_add_u32 v{V + 2}, v6, 3, v7')
        a.e(f'v_lshl_add_u32 v{V + 1}, v6, 4, v7')
        a.e('v_and_b32 v6, 7, v1')
        a.e('v_lshl_add_u32 v5, v5, 3, v6')
        a.e('v_lshlrev_b32 v5, 4, v5')
        a.e(f'v_add_u32 v{V + 3}, 4096, v5')

    def retile(self, part):
        a = self.a
        V = self.SV
        F = V + 8
        if part == 0:
            for i in range(8):
                a.e(f's_add_u32 m0, s26, {KVBUF + 1024 * i}')
                a.e(f'buffer_load_dwordx4 v{V}, s[40:43], s{66 + i} offen lds')
        elif part == 1:
            for nt in range(5):
                for j in range(2):
                    if nt < 4:
                        a.e(f'ds_read_b64_tr_b16 {vr(F + 4 * nt + 2 * j, 2)}, v{V + 1} offset:{64 * (nt // 2) + 8 * (nt % 2) + 1024 * j}')
                    else:
                        a.e(f'ds_read_b64_tr_b16 {vr(F + 4 * nt + 2 * j, 2)}, v{V + 2} offset:{128 + 1024 * j}')
            a.e('s_mul_i32 s44, s64, 90')
            a.e('s_add_u32 s44, s44, s65')
            a.e('s_mul_i32 s44, s44, 4608')
            a.e(f's_add_u32 s44, s44, {W3_OFF}')
            a.e('s_waitcnt lgkmcnt(0)')
            for nt in range(4):
                a.e(f'buffer_store_dwordx4 {vr(F + 4 * nt, 4)}, v10, s[12:15], s44 offen offset:{1024 * nt} {SC}')
            a.e('s_mov_b32 exec_lo, 0x00ff00ff')
            a.e('s_mov_b32 exec_hi, 0x00ff00ff')
            a.e(f'buffer_store_dwordx4 {vr(F + 16, 4)}, v{V + 3}, s[12:15], s44 offen {SC}')
            a.e('s_mov_b64 exec, -1')
        else:
            a.e('s_lshl_b32 s44, s64, 7')
            a.e('s_add_u32 s44, s44, s65')
            a.e('s_lshl_b32 s44, s44, 2')
            a.e(f's_add_u32 s44, s44, {FW3_OFF}')
            set_flag(a, 44, V + 4)

    def issue_kv(self, buf_s=None, buf=None, flags=''):
        a = self.a
        for g in range(3):
            if buf_s is not None:
                a.e(f's_add_u32 m0, s{buf_s}, {4096 * g}')
            else:
                a.e(f's_add_u32 m0, s31, {buf * KVBUF + 4096 * g}')
            for i in range(4 if g < 2 else 2):
                a.vm(f'buffer_load_dwordx4 v15, s[12:15], s30 offen offset:{1024 * i} {flags} lds', 'kv')
            a.e('s_add_u32 s30, s30, 4096')
        a.e(f's_add_u32 s30, s30, {16 * KV_TILE - 3 * 4096}')

    def q_phase(self):
        a = self.a
        a.e('s_mov_b32 s31, s26')
        a.e('v_add_u32 v15, s31, v10')
        a.e(f's_mov_b32 s30, {KV_OFF}')
        l = a.newlabel('KVR')
        a.e('s_cmp_lg_u32 s20, 0')
        a.e(f's_cbranch_scc1 {l}')
        self.nonce()
        a.e('v_mov_b32 v4, s62')
        a.e('ds_write_b32 v2, v4')
        a.e('s_waitcnt lgkmcnt(0)')
        a.label(l)
        a.e('s_barrier')
        a.e('v_mov_b32 v2, 0')
        a.e('ds_read_b32 v40, v2')
        a.e('s_lshl_b32 s48, s23, 3')
        a.e('s_add_u32 s48, s48, s22')
        a.e('s_mul_i32 s48, s48, 2304')
        a.e(f's_add_u32 s48, s48, {QF_OFF}')
        for i in range(2):
            a.e(f'buffer_store_dwordx4 v[224:227], v10, s[12:15], s48 offen offset:{1024 * i} {SC}')
        a.e(f'buffer_store_dword v224, v228, s[12:15], s48 offen offset:2048 {SC}')
        a.e('s_lshl_b32 s44, s3, 5')
        a.e('s_add_u32 s44, s44, s20')
        a.e('s_lshl_b32 s44, s44, 2')
        a.e(f's_add_u32 s44, s44, {GO_OFF}')
        a.e('v_and_b32 v11, 31, v1')
        a.e('v_lshlrev_b32 v11, 2, v11')
        a.e('v_add_u32 v11, 1024, v11')
        a.e('s_waitcnt vmcnt(0) lgkmcnt(0)')
        a.e('v_readfirstlane_b32 s62, v40')
        set_flag(a, 44, 42)
        for p in range(2):
            for i in (5, 6, 7):
                a.e(f'v_mov_b32 v{self.QF + 8 * p + i}, 0')
            a.e(f'v_mov_b32 v{self.KF + 8 * p + 5}, 0x3f803f80')
            a.e(f'v_mov_b32 v{self.KF + 8 * p + 6}, 0x3f803f80')
            a.e(f'v_mov_b32 v{self.KF + 8 * p + 7}, 0')
        a.e('v_lshrrev_b32 v2, 5, v1')
        a.e('v_lshlrev_b32 v2, 2, v2')
        a.e('v_bfe_u32 v4, v1, 3, 1')
        a.e('v_lshl_add_u32 v2, v4, 1, v2')
        a.e('v_mul_u32_u24 v12, 168, v2')
        a.e('v_add_u32 v12, 1152, v12')
        a.e('v_bfe_u32 v4, v1, 4, 1')
        a.e('v_bfe_u32 v13, v1, 2, 1')
        a.e('v_mul_u32_u24 v14, 168, v4')
        a.e('v_add_u32 v14, v14, v12')
        a.e('v_and_b32 v8, 1, v1')
        a.e('v_lshl_add_u32 v8, v8, 1, v13')
        a.e('v_lshl_add_u32 v8, v8, 3, v14')
        a.e('v_add_u32 v8, 128, v8')
        a.e('v_add_u32 v9, 160, v14')
        a.e('v_and_b32 v2, 2, v1')
        a.e('v_cmp_eq_u32 vcc, 0, v2')
        a.e(f'v_cndmask_b32 v{self.TB}, v9, v8, vcc')
        a.e(f'v_cndmask_b32 v{self.TB + 1}, v8, v9, vcc')
        a.e('v_lshl_add_u32 v2, v4, 1, v13')
        a.e('v_lshl_add_u32 v12, v2, 5, v12')
        a.e('v_and_b32 v2, 3, v1')
        a.e('v_lshl_add_u32 v12, v2, 3, v12')
        a.e('v_mul_u32_u24 v14, 0xaaaa, v13')
        a.e('v_add_u32 v14, 0x4444, v14')
        a.e('v_mul_u32_u24 v13, 0xaaaa, v4')
        a.e('v_add_u32 v13, 0x4444, v13')
        self.point(KVBUF)
        a.e('s_and_b32 s49, s3, 7')
        a.e('s_lshl_b32 s49, s49, 9')
        a.e(f's_add_u32 s49, s49, {KVF_OFF}')
        a.e('v_min_u32 v230, 47, v1')
        a.e('v_lshlrev_b32 v230, 3, v230')
        lq = a.newlabel('QW')
        lo = a.newlabel('QOK')
        lh = a.newlabel('QH')
        a.e(f's_mov_b32 s51, {SPIN_MAX}')
        a.label(lh)
        a.e(f's_sleep {opt("qsl", [12])[0]}')
        a.e(f'buffer_load_dword v2, v11, s[12:15], s48 offen offset:1152 {SCL}')
        a.e('s_sub_u32 s51, s51, 1')
        a.e('s_waitcnt vmcnt(0)')
        a.e('v_cmp_eq_u32 vcc, -1, v2')
        a.e('s_cmp_eq_u32 s51, 1')
        a.e(f's_cbranch_scc1 {lq}')
        a.e(f's_cbranch_vccnz {lh}')
        a.e('s_setprio 3')
        a.label(lq)
        for p in range(2):
            a.e(f'buffer_load_dwordx4 {vr(self.QF + 8 * p, 4)}, v10, s[12:15], s48 offen offset:{1152 * p} {SCL}')
            a.e(f'buffer_load_dword v{self.PF + p}, v11, s[12:15], s48 offen offset:{1152 * p} {SCL}')
        a.e('s_waitcnt vmcnt(0)')
        a.e(f'v_max_u32 v2, v{self.PF}, v{self.PF + 1}')
        for r in (0, 2, 8, 10):
            a.e(f'v_max3_u32 v2, v{self.QF + r}, v{self.QF + r + 1}, v2')
        a.e('v_cmp_eq_u32 vcc, -1, v2')
        a.e(f's_cbranch_vccz {lo}')
        a.e('s_sleep 2')
        a.e('s_sub_u32 s51, s51, 1')
        a.e('s_cmp_lg_u32 s51, 0')
        a.e(f's_cbranch_scc1 {lq}')
        a.label(lo)
        stamp(a, 6)
        lk = a.newlabel('KW')
        lo = a.newlabel('KOK')
        a.e(f'v_add_u32 v4, {KVBUF}, v15')
        a.e(f's_mov_b32 s51, {SPIN_MAX}')
        a.label(lk)
        a.e(f's_mov_b32 s30, {KV_OFF}')
        self.issue_kv(buf=1, flags=SCL)
        a.e('s_waitcnt vmcnt(0)')
        for i in range(10):
            a.e(f'ds_read_b128 {vr(16 + 4 * i, 4)}, v4 offset:{1024 * i}')
        a.e('s_waitcnt lgkmcnt(0)')
        a.e('v_max_u32 v2, v16, v17')
        a.e('v_max_u32 v8, v18, v19')
        for i in range(20, 56, 4):
            a.e(f'v_max3_u32 v2, v{i}, v{i + 1}, v2')
            a.e(f'v_max3_u32 v8, v{i + 2}, v{i + 3}, v8')
        a.e('v_max_u32 v2, v2, v8')
        a.e('v_cmp_eq_u32 vcc, -1, v2')
        a.e(f's_cbranch_vccz {lo}')
        a.e('s_sleep 8')
        a.e('s_sub_u32 s51, s51, 1')
        a.e('s_cmp_lg_u32 s51, 0')
        a.e(f's_cbranch_scc1 {lk}')
        a.label(lo)
        a.vmq = []
        a.e('v_cmp_gt_u32 vcc, 32, v1')
        for p in range(2):
            a.e(f'v_cndmask_b32 v{self.QF + 8 * p + 4}, 0, v{self.PF + p}, vcc')

    def kvf_load(self):
        self.a.e(f'buffer_load_dwordx2 {vr(self.XF + 2, 2)}, v230, s[12:15], s49 offen {SC}')

    def readK(self, j):
        a = self.a
        b = self.KF + 8 * (j % 2)
        off = (j % 16) * KV_TILE
        a.lg(f'ds_read_b128 {vr(b, 4)}, v5 offset:{off}', ('K', j))
        a.lg(f'ds_read_b32 v{b + 4}, v6 offset:{off}', ('K', j))

    def readV(self, j, m):
        a = self.a
        b = self.VF + 8 * (j % 2)
        off = (j % 16) * KV_TILE
        for jj in range(2):
            if m == 0:
                a.lg(f'ds_read_b64_tr_b16 {vr(b + 2 * jj, 2)}, v7 offset:{off + jj * 168}', ('V', j))
            else:
                a.lg(f'ds_read_b64_tr_b16 {vr(b + 4 + 2 * jj, 2)}, v{self.TB + 2 + jj} offset:{off}', ('V', j))

    def S(self, n, part):
        j, qt = n // 2, n % 2
        d = vr(self.SB + 16 * (n % 2), 16)
        k = self.KF + 8 * (j % 2) + 4 * part
        q = self.QF + 8 * qt + 4 * part
        self.a.e(f'v_mfma_f32_32x32x16_bf16 {d}, {vr(k, 4)}, {vr(q, 4)}, {"0" if part == 0 else d}')

    def PV(self, n, m):
        j, qt = n // 2, n % 2
        p = vr(self.P2 + 8 * qt, 8)
        v = vr(self.VF + 8 * (j % 2) + 4 * m, 4)
        if m == 0:
            self.a.e(f'v_smfmac_f32_32x32x32_bf16 {vr(self.OB + 16 * qt, 16)}, {v}, {p}, v13')
        else:
            self.a.e(f'v_smfmac_f32_16x16x64_bf16 {vr(self.PF + 4 * qt, 4)}, {v}, {p}, v14')

    def set_m(self, qt, vm, add):
        a = self.a
        q = self.QF + 8 * qt
        a.e(f'v_sub_f32 v2, {hx(-add)}, v{vm}')
        a.e('v_and_b32 v4, 0xffff0000, v2')
        a.e('v_sub_f32 v2, v2, v4')
        a.e(f'v_and_b32 v{self.TB + 4}, 0xffff0000, v2')
        a.e(f'v_sub_f32 v2, v2, v{self.TB + 4}')
        a.e('v_lshrrev_b32 v4, 16, v4')
        a.e(f'v_or_b32 v4, v4, v{self.TB + 4}')
        a.e('v_lshrrev_b32 v2, 16, v2')
        a.e('v_cmp_gt_u32 vcc, 32, v1')
        a.e(f'v_cndmask_b32 v{q + 5}, 0, v4, vcc')
        a.e(f'v_cndmask_b32 v{q + 6}, 0, v2, vcc')

    TB = 232
    P2 = 240

    def point(self, off):
        a = self.a
        for i in range(3):
            a.e(f'v_add_u32 v{5 + i}, {off}, v{10 + i}')
        for i in range(2):
            a.e(f'v_add_u32 v{self.TB + 2 + i}, {off}, v{self.TB + i}')

    def max16(self, b, dst, first):
        a = self.a
        if first:
            a.e(f'v_max3_f32 v{dst}, v{b}, v{b + 1}, v{b + 2}')
            a.e(f'v_max_f32 v{dst}, v{dst}, v{b + 3}')
            r = range(4, 16, 2)
        else:
            r = range(0, 16, 2)
        for i in r:
            a.e(f'v_max3_f32 v{dst}, v{b + i}, v{b + i + 1}, v{dst}')

    def halves_max(self, r):
        a = self.a
        a.e(f'v_mov_b32 v2, v{r}')
        a.e(f'v_permlane32_swap_b32 v{r}, v2')
        a.e(f'v_max_f32 v{r}, v{r}, v2')

    def main(self, flags=''):
        a = self.a
        L_PASS = a.newlabel('ATT_PASS')
        L_LOOP = a.newlabel('ATT_LOOP')
        L_NOKV = a.newlabel('ATT_NOKV')
        L_FIN = a.newlabel('ATT_FIN')
        a.e('s_mov_b32 s33, 0')
        a.e('s_mov_b32 s39, 4')
        a.e('s_barrier')
        self.readK(0)
        a.wait_lg0()
        for qt in range(2):
            self.S(qt, 0)
            self.S(qt, 1)
        for qt in range(2):
            self.max16(self.SB + 16 * qt, 8 + qt, True)
            self.halves_max(8 + qt)
            self.set_m(qt, 8 + qt, float(opt('moff', [M_OFFSET])[0]))
        a.label(L_PASS)
        self.readK(0)
        self.readK(1)
        self.readV(0, 0)
        self.readV(0, 1)
        for i in range(32):
            a.e(f'v_mov_b32 v{self.OB + i}, 0')
        for i in range(8):
            a.e(f'v_mov_b32 v{self.PF + i}, 0')
            a.e(f'v_mov_b32 v{self.P2 + 8 + i}, 0')
            a.e(f'v_mov_b32 v{self.VF + 8 + i}, 0')
        a.e('s_mov_b32 s34, 0')
        a.e(f's_add_u32 s35, s31, {KVBUF}')
        a.e(f's_mov_b32 s37, {-KVBUF & 0xffffffff}')
        a.wait_lg0()
        self.S(0, 0)
        self.S(0, 1)
        a.e('s_nop 7')
        a.label(L_LOOP)
        a.wait_lg0()
        if opt('gate'):
            lng = a.newlabel('ATT_NG')
            a.e(f's_cmp_lg_u32 s34, {opt("gate")[0]}')
            a.e(f's_cbranch_scc1 {lng}')
            a.e('s_lshl_b32 s44, s3, 7')
            a.e(f's_add_u32 s44, s44, {PROG_OFF}')
            a.e('v_mov_b32 v2, 0')
            poll(a, lambda: a.e(f'buffer_load_dword v4, v2, s[12:15], s44 offen {SC}'), [4], 8, sleep=8)
            if 'gateprio' in ABL:
                a.e('s_setprio 1')
            a.label(lng)
        if 'attfine' in ABL:
            for c, idx in ((1, 4), (2, 5), (3, 1)):
                lq = a.newlabel('ATT_Q')
                a.e(f's_cmp_lg_u32 s34, {c}')
                a.e(f's_cbranch_scc1 {lq}')
                stamp(a, idx)
                a.label(lq)
        if True:
            lp = a.newlabel('ATT_P')
            a.e(f's_cmp_lg_u32 s34, {opt("aprio", [0])[0]}')
            a.e(f's_cbranch_scc1 {lp}')
            a.e('s_setprio 1')
            a.label(lp)
        for n in range(32):
            j, qt = n // 2, n % 2
            sb = self.SB + 16 * (n % 2)
            if n == 29:
                a.e('s_waitcnt vmcnt(0) lgkmcnt(0)')
                a.vmq = []
                a.lgq = []
                a.e('s_barrier')
                for r in (5, 6, 7, self.TB + 2, self.TB + 3):
                    a.e(f'v_add_u32 v{r}, s37, v{r}')
                if 'novp' not in ABL:
                    a.e('s_setprio 3')
                a.e('s_cmp_ge_u32 s34, 2')
                a.e(f's_cbranch_scc1 {L_NOKV}')
                ls0 = a.newlabel('ATT_S0')
                a.e('s_cmp_eq_u32 s39, 0')
                a.e(f's_cbranch_scc1 {ls0}')
                self.issue_kv(buf_s=35, flags=flags)
                a.e(f's_branch {L_NOKV}')
                a.label(ls0)
                self.side(0)
                a.e('s_mov_b32 s39, 1')
                a.label(L_NOKV)
                self.gate_load()
                if 'retouch' in ABL:
                    a.e('global_load_dword v239, v238, s[8:9]')
                if 'novp' not in ABL:
                    a.e('s_setprio 1')
                a.e('s_add_u32 s35, s35, s37')
                a.e('s_sub_u32 s37, 0, s37')
            SJ = opt('sj', [8, 1, 12, 16, 20, 26])
            if n in opt('mp', [9, 13, 17, 21, 25]):
                lm = a.newlabel('ATT_M')
                a.e('s_cmp_ge_u32 s54, s55')
                a.e(f's_cbranch_scc1 {lm}')
                if 'novp' not in ABL:
                    a.e('s_setprio 3')
                self.mark_part(3, 4)
                if 'novp' not in ABL:
                    a.e('s_setprio 1')
                a.label(lm)
            C1 = opt('c1', [4, 10])
            if n in C1:
                lc = a.newlabel('ATT_C1')
                a.e('s_cmp_lg_u32 s39, 4')
                a.e(f's_cbranch_scc1 {lc}')
                a.e('s_setprio 3')
                if n == C1[0]:
                    self.kvf_load()
                else:
                    a.e('s_waitcnt vmcnt(0)')
                    poll(a, self.kvf_load, [self.XF + 2, self.XF + 3], 236, first_done=True, sleep=6)
                    self.issue_kv(buf=0, flags=flags)
                    self.mark_part(0, 3)
                    a.e('s_mov_b32 s39, 0')
                a.e('s_setprio 1')
                a.label(lc)
            if n == SJ[0]:
                ls1 = a.newlabel('ATT_S1')
                a.e('s_cmp_lg_u32 s39, 1')
                a.e(f's_cbranch_scc1 {ls1}')
                a.e('s_waitcnt vmcnt(0)')
                if 'novp' not in ABL:
                    a.e('s_setprio 3')
                self.side(1)
                self.issue_kv(buf=1, flags=flags)
                a.e('s_mov_b32 s39, 2')
                if 'novp' not in ABL:
                    a.e('s_setprio 1')
                a.label(ls1)
            if n == SJ[5]:
                ls2 = a.newlabel('ATT_S2')
                a.e('s_cmp_lg_u32 s39, 2')
                a.e(f's_cbranch_scc1 {ls2}')
                a.e('s_waitcnt vmcnt(0)')
                if 'novp' not in ABL:
                    a.e('s_setprio 3')
                self.side(2)
                a.e('s_mov_b32 s39, 3')
                if 'novp' not in ABL:
                    a.e('s_setprio 1')
                a.label(ls2)
            if qt == 1:
                a.wait_lg(('K', j + 1))
            self.S(n + 1, 0)
            pf = self.P2 + 8 * qt
            for i in range(0, 4):
                a.e(f'v_exp_f32 v{sb + i}, v{sb + i}')
            if qt == 1:
                a.wait_lg(('V', j))
            self.PV(n - 1, 0)
            if qt == 0:
                self.readV(j + 1, 0)
            else:
                self.readK(j + 2)
            for i in range(4, 8):
                a.e(f'v_exp_f32 v{sb + i}, v{sb + i}')
            self.S(n + 1, 1)
            for i in range(4):
                a.e(f'v_cvt_pk_bf16_f32 v{pf + i}, v{sb + 2 * i}, v{sb + 2 * i + 1}')
            for i in range(8, 12):
                a.e(f'v_exp_f32 v{sb + i}, v{sb + i}')
            self.PV(n - 1, 1)
            if qt == 0:
                self.readV(j + 1, 1)
            for i in range(12, 16):
                a.e(f'v_exp_f32 v{sb + i}, v{sb + i}')
            for i in range(4, 8):
                a.e(f'v_cvt_pk_bf16_f32 v{pf + i}, v{sb + 2 * i}, v{sb + 2 * i + 1}')
        a.e('s_add_u32 s34, s34, 1')
        a.e('s_cmp_lt_u32 s34, 4')
        a.e(f's_cbranch_scc1 {L_LOOP}')
        self.PV(31, 0)
        self.PV(31, 1)
        a.wait_all()
        a.e('s_cmp_lg_u32 s33, 0')
        a.e(f's_cbranch_scc1 {L_FIN}')
        regs = [self.OB + i for i in range(32)] + [self.PF + i for i in (0, 1, 2, 4, 5, 6)]
        a.e(f'v_max_f32_e64 v2, |v{regs[0]}|, |v{regs[1]}|')
        for i in range(2, len(regs), 2):
            a.e(f'v_max3_f32 v2, |v{regs[i]}|, |v{regs[i + 1]}|, v2')
        a.e(f's_mov_b32 s44, {hx(2.0 ** 110)}')
        a.e('v_cmp_ngt_f32 vcc, s44, v2')
        a.e(f'v_add_f32 v4, v{self.PF + 2}, v{self.PF + 6}')
        a.e('v_cmp_u_f32 s[46:47], v4, v4')
        a.e('s_or_b64 vcc, vcc, s[46:47]')
        a.e('s_cmp_lg_u64 vcc, 0')
        a.e('s_cselect_b32 s44, 1, 0')
        a.e('v_mov_b32 v2, s44')
        a.e('s_lshl_b32 s45, s20, 2')
        a.e(f's_add_u32 s45, s45, {16 * KV_TILE}')
        a.e('v_mov_b32 v4, s45')
        a.e('ds_write_b32 v4, v2')
        a.e(f'v_mov_b32 v4, {16 * KV_TILE}')
        a.e('s_waitcnt lgkmcnt(0)')
        a.e('s_barrier')
        a.e(f'ds_read_b128 {vr(self.P2, 4)}, v4')
        a.e('s_waitcnt lgkmcnt(0)')
        a.e(f'v_or3_b32 v2, v{self.P2}, v{self.P2 + 1}, v{self.P2 + 2}')
        a.e(f'v_or_b32 v2, v2, v{self.P2 + 3}')
        a.e('v_readfirstlane_b32 s44, v2')
        a.e('s_cmp_eq_u32 s44, 0')
        a.e(f's_cbranch_scc1 {L_FIN}')
        L_MC = a.newlabel('ATT_MC')
        L_MT = a.newlabel('ATT_MT')
        a.e('s_mov_b32 s33, 1')
        for p in range(2):
            a.e(f'v_mov_b32 v{self.QF + 8 * p + 5}, 0')
            a.e(f'v_mov_b32 v{self.QF + 8 * p + 6}, 0')
            a.e(f'v_mov_b32 v{8 + p}, 0xff7fffff')
        a.e(f's_mov_b32 s30, {KV_OFF}')
        a.e('s_mov_b32 s34, 0')
        a.label(L_MC)
        a.e('s_barrier')
        self.issue_kv(buf=0, flags=flags)
        a.e('v_mov_b32 v5, v10')
        a.e('v_mov_b32 v6, v11')
        a.e('s_mov_b32 s36, 0')
        a.wait_vm0()
        a.e('s_barrier')
        a.label(L_MT)
        self.readK(0)
        a.wait_lg0()
        for qt in range(2):
            self.S(qt, 0)
            self.S(qt, 1)
        a.e(f'v_add_u32 v5, {KV_TILE}, v5')
        a.e(f'v_add_u32 v6, {KV_TILE}, v6')
        for qt in range(2):
            self.max16(self.SB + 16 * qt, 8 + qt, False)
        a.e('s_add_u32 s36, s36, 1')
        a.e('s_cmp_lt_u32 s36, 16')
        a.e(f's_cbranch_scc1 {L_MT}')
        a.e('s_add_u32 s34, s34, 1')
        a.e('s_cmp_lt_u32 s34, 4')
        a.e(f's_cbranch_scc1 {L_MC}')
        for qt in range(2):
            self.halves_max(8 + qt)
            self.set_m(qt, 8 + qt, M_OFFSET)
        a.e('s_barrier')
        a.e(f's_mov_b32 s30, {KV_OFF}')
        self.issue_kv(buf=1, flags=flags)
        self.issue_kv(buf=0, flags=flags)
        self.point(KVBUF)
        a.e('s_waitcnt vmcnt(10)')
        a.e('s_barrier')
        a.e(f's_branch {L_PASS}')
        a.label(L_FIN)
        a.vmq = []
        a.lgq = []

    def mark(self):
        a = self.a
        a.e('s_mul_i32 s44, s23, 90')
        a.e('s_lshl_b32 s52, s22, 1')
        a.e('s_add_u32 s52, s52, s44')
        a.e('s_lshl_b32 s52, s52, 10')
        a.e(f's_add_u32 s52, s52, {UF_OFF}')
        a.e('s_lshr_b32 s53, s22, 2')
        a.e('s_add_u32 s53, s53, s44')
        a.e('s_lshl_b32 s53, s53, 10')
        a.e('s_and_b32 s47, s22, 3')
        a.e('s_lshl_b32 s47, s47, 8')
        a.e('s_add_u32 s53, s53, s47')
        a.e(f's_add_u32 s53, s53, {UF_OFF + 16 * 1024}')
        a.e('s_mul_i32 s54, s22, 9')
        a.e('s_add_u32 s54, s54, s44')
        a.e('s_lshl_b32 s54, s54, 10')
        a.e(f's_add_u32 s54, s54, {UF_OFF + 18 * 1024}')
        a.e(f's_add_u32 s55, s54, {9 * 1024}')
        for i in range(4):
            a.e(f'v_mov_b32 v{224 + i}, -1')
        a.e('v_lshlrev_b32 v228, 2, v1')
        if opt('tp'):
            a.e('s_lshl_b32 s44, s24, 8')
            a.e('s_and_b32 s45, s22, 4')
            a.e('s_lshl_b32 s45, s45, 5')
            a.e('s_add_u32 s44, s44, s45')
            a.e('s_add_u32 s44, s44, s27')
            a.e('s_lshl_b32 s44, s44, 13')
            a.e(f'v_min_u32 v229, {64 // len(opt("tp")) - 1}, v1')
            a.e('v_lshlrev_b32 v229, 7, v229')
            a.e('v_add_u32 v229, s44, v229')

    def mark_part(self, lo, hi):
        a = self.a
        if 'nomark' in ABL:
            return
        for i in range(lo, hi):
            if i < 2:
                a.e(f'buffer_store_dwordx4 v[224:227], v10, s[12:15], s52 offen offset:{1024 * i} {SC}')
            elif i == 2:
                a.e(f'buffer_store_dword v224, v228, s[12:15], s53 offen {SC}')
            else:
                a.e(f'buffer_store_dwordx4 v[224:227], v10, s[12:15], s54 offen {SC}')
                a.e('s_add_u32 s54, s54, 1024')

    def mark_flag(self):
        a = self.a
        a.e('s_lshl_b32 s44, s23, 3')
        a.e('s_add_u32 s44, s44, s22')
        a.e('s_lshl_b32 s44, s44, 2')
        a.e(f's_add_u32 s44, s44, {PZ_OFF}')
        set_flag(a, 44, 236)

    def epilogue(self, flags=''):
        a = self.a
        a.e('v_and_b32 v4, 15, v1')
        a.e('v_lshlrev_b32 v4, 4, v4')
        a.e('v_lshrrev_b32 v5, 5, v1')
        a.e('v_lshl_add_u32 v4, v5, 2, v4')
        poll(a, self.gate_load, [self.XF + 1], 8, first_done=True)
        a.e('v_and_b32 v5, 16, v1')
        a.e('v_cmp_eq_u32 vcc, 0, v5')
        for qt in range(2):
            o = self.OB + 16 * qt
            t = self.PF + 4 * qt
            c = self.P2
            for i in range(3):
                a.e(f'v_mov_b32 v{c + i}, v{t + i}')
            for i in range(3):
                a.e(f'v_permlane16_swap_b32 v{t + i}, v{c + i}')
            for i in range(3):
                a.e(f'v_add_f32 v{t + i}, v{t + i}, v{c + i}')
            a.e(f'v_rcp_f32 v6, v{t + 2}')
            a.e(f'v_mul_f32 v6, v6, v{self.XF}')
            a.e(f'v_pk_mul_f32 {vr(t, 2)}, {vr(t, 2)}, v[6:7] op_sel_hi:[1,0]')
            a.e('v_mov_b32 v7, v6')
            a.e('v_permlane32_swap_b32 v6, v7')
            a.e('v_cndmask_b32 v6, v7, v6, vcc')
            for i in range(4):
                a.e(f'v_pk_add_f32 {vr(o + 2 * i, 2)}, {vr(o + 2 * i, 2)}, {vr(o + 8 + 2 * i, 2)}')
            for i in range(4):
                a.e(f'v_pk_mul_f32 {vr(o + 2 * i, 2)}, {vr(o + 2 * i, 2)}, v[6:7] op_sel_hi:[1,0]')
            pk = self.SB + 8 * qt
            for i in range(4):
                a.e(f'v_cvt_pk_bf16_f32 v{pk + i}, v{o + 2 * i}, v{o + 2 * i + 1}')
            a.e(f'v_cvt_pk_bf16_f32 v{pk + 4}, v{t}, v{t + 1}')
            for i in range(5):
                a.e(f'v_min_u32 v{pk + i}, -2, v{pk + i}')
            a.e(f'buffer_store_dwordx4 {vr(pk, 4)}, v10, s[12:15], s52 offen offset:{1024 * qt} {flags}')
            a.e('s_mov_b32 exec_lo, 0xffff')
            a.e('s_mov_b32 exec_hi, 0xffff')
            a.e(f'buffer_store_dword v{pk + 4}, v4, s[12:15], s53 offen offset:{8 * qt} {flags}')
            a.e('s_mov_b64 exec, -1')

    def gate_load(self):
        a = self.a
        a.e(f's_mov_b32 s38, {GATE_OFF}')
        a.e(f'buffer_load_dwordx2 {vr(self.XF, 2)}, v3, s[12:15], s38 offen {SC}')


def p3_pre(a):
    a.e('s_and_b32 s44, s22, 1')
    a.e('s_lshl_b32 s66, s21, 1')
    a.e('s_add_u32 s66, s66, s44')
    a.e('s_lshr_b32 s67, s22, 1')
    a.e('s_lshl_b32 s68, s21, 8')
    a.e(f's_add_u32 s68, s68, {PZ_OFF}')
    a.e('s_lshl_b32 s69, s67, 9')
    a.e(f's_add_u32 s69, s69, {FW3_OFF}')
    a.e('v_lshlrev_b32 v7, 2, v1')
    a.e('v_min_u32 v8, 44, v1')
    a.e('v_lshlrev_b32 v8, 3, v8')
    p3_flags(a)
    a.vmq += ['pre', 'pre']


def p3_flags(a):
    a.e(f'buffer_load_dword v4, v7, s[12:15], s68 offen {SC}')
    a.e(f'buffer_load_dwordx2 v[2:3], v8, s[12:15], s69 offen {SC}')


def p3(a):
    ACC = 16
    FR = 112
    HF = 240
    DEPTH = 4
    NS = 23
    a.e('s_mul_i32 s44, s20, 18')
    a.e('s_add_u32 s44, s44, 18')
    a.e('s_mul_i32 s45, s20, 5')
    a.e('s_cmp_eq_u32 s20, 3')
    a.e('s_cselect_b32 s46, 1, 0')
    a.e('s_sub_u32 s45, s45, s46')
    a.e('s_mul_i32 s46, s67, 90')
    a.e('s_add_u32 s25, s44, s46')
    a.e('s_mul_i32 s25, s25, 4608')
    a.e(f's_add_u32 s25, s25, {W3_OFF}')
    a.e('s_add_u32 s31, s45, s46')
    a.e('s_mul_i32 s31, s31, 4608')
    a.e(f's_add_u32 s31, s31, {W3_OFF}')
    a.e('v_lshrrev_b32 v6, 4, v1')
    a.e('v_lshlrev_b32 v6, 3, v6')
    a.e('v_and_b32 v9, 7, v1')
    a.e('v_add_u32 v6, v6, v9')
    a.e('v_lshlrev_b32 v6, 4, v6')
    a.e('v_bfe_u32 v9, v1, 3, 1')
    a.e('v_mul_u32_u24 v9, 4608, v9')
    a.e('v_add_u32 v6, v6, v9')
    a.e('v_add_u32 v6, 4096, v6')
    a.e('v_mov_b32 v12, v19')

    def loadW(k):
        b = FR + 32 * (k % DEPTH)
        if k == 18:
            a.e('s_mov_b32 s25, s31')
        for nt in range(4):
            a.vm(f'buffer_load_dwordx4 {vr(b + 4 * nt, 4)}, v12, s[12:15], s25 offen offset:{1024 * nt} {SCL}', ('W', k))
        if k % 2 == 0:
            a.vm(f'buffer_load_dwordx4 {vr(HF + 4 * ((k // 2) % 3), 4)}, v6, s[12:15], s25 offen {SCL}', ('W', k))
        a.e('s_add_u32 s25, s25, 4608')

    def loadF(k, track=True):
        b = FR + 32 * (k % DEPTH)
        a.e(f's_add_u32 s24, s{28 if k < 18 else 30}, {1024 * (k if k < 18 else k - 18)}')
        for i in range(4):
            t = f'buffer_load_dwordx4 {vr(b + 16 + 4 * i, 4)}, v{2 + i}, s[12:15], s24 offen {SCL}'
            a.vm(t, ('F', k)) if track else a.e(t)
    for k in range(opt('wpre', [2])[0]):
        loadW(k)
    a.e('s_mul_i32 s46, s66, 360')
    a.e('s_add_u32 s28, s44, s46')
    a.e('s_lshl_b32 s28, s28, 10')
    a.e(f's_add_u32 s28, s28, {UF_OFF}')
    a.e('s_add_u32 s30, s45, s46')
    a.e('s_lshl_b32 s30, s30, 10')
    a.e(f's_add_u32 s30, s30, {UF_OFF}')
    for i in range(4):
        a.e(f's_add_u32 s44, s20, {i}')
        a.e('s_and_b32 s44, s44, 3')
        a.e('s_mul_i32 s44, s44, 92160')
        a.e(f'v_add_u32 v{2 + i}, s44, v12')
    a.e('s_mov_b32 s8, s64')
    a.e('s_mov_b32 s9, s65')
    srd(a, 8, 2048 * 1152)
    a.e(f's_mov_b32 s51, {SPIN_MAX}')
    a.wait_vm('st')
    for k in range(DEPTH):
        if k >= opt('wpre', [2])[0]:
            loadW(k)
        loadF(k)
    stamp(a, 5)
    a.e(f's_setprio {opt("pg", PG)[2]}')
    lskip = a.newlabel('P3_SKIP')
    for k in range(NS):
        b = FR + 32 * (k % DEPTH)
        if k == NS - 1:
            a.e('s_cmp_ge_u32 s20, 2')
            a.e(f's_cbranch_scc1 {lskip}')
            a.wait_vm0()
        a.wait_vm(('F', k))
        lc = a.newlabel('P3_C')
        lok = a.newlabel('P3_OK')
        a.label(lc)
        a.e(f'v_max3_u32 v9, v{b + 16}, v{b + 17}, v{b + 18}')
        a.e(f'v_max3_u32 v10, v{b + 19}, v{b + 20}, v{b + 21}')
        for i in range(22, 32, 4):
            a.e(f'v_max3_u32 v9, v{b + i}, v{b + i + 1}, v9')
            if i + 2 < 32:
                a.e(f'v_max3_u32 v10, v{b + i + 2}, v{b + i + 3}, v10')
        a.e('v_max_u32 v9, v9, v10')
        a.e('v_cmp_eq_u32 vcc, -1, v9')
        a.e(f's_cbranch_vccz {lok}')
        a.e(f's_sleep {opt("psl", [4])[0]}')
        loadF(k, False)
        a.e('s_waitcnt vmcnt(0)')
        a.e('s_sub_u32 s51, s51, 1')
        a.e('s_cmp_lt_i32 s51, 1')
        a.e(f's_cbranch_scc0 {lc}')
        a.label(lok)
        hf = HF + 4 * ((k // 2) % 3)
        for i in range(4):
            for nt in range(5):
                n2 = nt if nt < 4 else 4 + k % 2
                d = vr(ACC + 16 * n2 + 4 * i, 4)
                first = k == 0 or (nt == 4 and k == 1)
                a.e(f'v_mfma_f32_16x16x32_bf16 {d}, {vr(b + 4 * nt, 4) if nt < 4 else vr(hf, 4)}, {vr(b + 16 + 4 * i, 4)}, {"0" if first else d}')
        kn = k + DEPTH
        if kn == NS - 1:
            ls = a.newlabel('P3_NL')
            a.e('s_cmp_ge_u32 s20, 2')
            a.e(f's_cbranch_scc1 {ls}')
            q1 = list(a.vmq)
            loadW(kn)
            loadF(kn)
            a.vmq = q1
            a.label(ls)
        elif kn < NS:
            loadW(kn)
            loadF(kn)
    a.label(lskip)
    a.e('s_nop 7')
    stamp(a, 6)
    a.e('s_mov_b32 exec_lo, 0')
    for i in range(16):
        a.e(f'v_mov_b32 v{ACC + 64 + i}, v{ACC + 80 + i}')
    a.e('s_mov_b64 exec, -1')
    for i in range(1, 4):
        a.e(f's_add_u32 s44, s20, {i}')
        a.e('s_and_b32 s44, s44, 3')
        a.e('s_mul_i32 s44, s44, 15360')
        a.e(f'v_add_u32 v{8 + i}, s44, v12')
        for nt in range(5):
            a.lg(f'ds_write_b128 v{8 + i}, {vr(ACC + 16 * nt + 4 * i, 4)} offset:{5120 * (i - 1) + 1024 * nt}', 'w')
    a.e('s_mul_i32 s26, s20, 15360')
    a.e('v_add_u32 v8, s26, v12')
    a.e('s_lshl_b32 s27, s66, 6')
    a.e('s_lshr_b32 s28, s20, 1')
    a.e('s_lshl_b32 s28, s28, 5')
    a.e('s_add_u32 s27, s27, s28')
    a.e('s_and_b32 s28, s20, 1')
    a.e('s_lshl_b32 s28, s28, 2')
    a.e('s_add_u32 s27, s27, s28')
    a.e('v_bfe_u32 v13, v1, 2, 2')
    a.e('v_lshlrev_b32 v13, 3, v13')
    a.e('v_and_b32 v14, 3, v1')
    a.e('v_add3_u32 v13, v13, v14, s27')
    a.e('v_mul_u32_u24 v13, 1152, v13')
    a.e('v_lshrrev_b32 v14, 4, v1')
    a.e('v_lshl_add_u32 v15, v14, 3, v13')
    a.e('v_lshl_add_u32 v13, v14, 4, v13')
    a.e('s_mul_i32 s27, s67, 144')
    a.wait_all()
    a.e('s_barrier')
    for nt in range(5):
        for i in range(3):
            a.lg(f'ds_read_b128 {vr(FR + 12 * nt + 4 * i, 4)}, v8 offset:{5120 * i + 1024 * nt}', ('r', nt))
    PKB = FR + 64
    OSC = 'sc1' if 'osc1' in ABL else 'nt' if 'ont' in ABL else ''
    for nt in range(5):
        a.wait_lg(('r', nt))
        b = FR + 12 * nt
        o = ACC + 16 * nt
        for h in range(2):
            a.e(f'v_pk_add_f32 {vr(b + 2 * h, 2)}, {vr(b + 2 * h, 2)}, {vr(b + 4 + 2 * h, 2)}')
            a.e(f'v_pk_add_f32 {vr(o + 2 * h, 2)}, {vr(o + 2 * h, 2)}, {vr(b + 8 + 2 * h, 2)}')
        for h in range(2):
            a.e(f'v_pk_add_f32 {vr(b + 2 * h, 2)}, {vr(b + 2 * h, 2)}, {vr(o + 2 * h, 2)}')
        if nt == 4:
            for r in range(4):
                a.e(f'v_mov_b32 v{o + r}, v{b + r}')
            for r in range(4):
                a.e(f'v_permlane32_swap_b32 v{b + r}, v{o + r}')
            for h in range(2):
                a.e(f'v_pk_add_f32 {vr(b + 2 * h, 2)}, {vr(b + 2 * h, 2)}, {vr(o + 2 * h, 2)}')
        for h in range(2):
            a.e(f'v_cvt_pk_bf16_f32 v{PKB + 2 * nt + h}, v{b + 2 * h}, v{b + 2 * h + 1}')
        if nt in (1, 3):
            a.e(f'buffer_store_dwordx4 {vr(PKB + 2 * nt - 2, 4)}, v13, s[8:11], s27 offen offset:{64 * (nt // 2)} {OSC}')
        if nt == 4:
            a.e('s_mov_b32 exec_hi, 0')
            a.e(f'buffer_store_dwordx2 {vr(PKB + 8, 2)}, v15, s[8:11], s27 offen offset:128 {OSC}')
            a.e('s_mov_b64 exec, -1')


def kernel_text(name, a, vgpr=256, sgpr=96):
    a.fix_hazards()
    mv, ms, ma = a.max_regs()
    assert mv <= vgpr and ms <= sgpr and ma == 0, (mv, ms, ma)
    body = f'.globl {name}\n.p2align 8\n.type {name},@function\n{name}:\n' + a.text()
    desc = f""".p2align 6
.amdhsa_kernel {name}
  .amdhsa_next_free_vgpr {vgpr}
  .amdhsa_next_free_sgpr {sgpr}
  .amdhsa_accum_offset {(vgpr + 3) // 4 * 4}
  .amdhsa_group_segment_fixed_size 0
  .amdhsa_kernarg_size 112
  .amdhsa_user_sgpr_count 2
  .amdhsa_user_sgpr_kernarg_segment_ptr 1
  .amdhsa_system_sgpr_workgroup_id_x 1
.end_amdhsa_kernel
"""
    return body, desc


def build_file(kernels):
    hdr = open('cdna_kernels/' + NAME + '.s.ref').read().split('\n')
    head = [l for l in hdr if l.startswith(';') and '@launch' not in l and 'Override' not in l and 'grid=ceil' not in l]
    head = head[:15]
    out = '\n'.join(head) + '\n'
    for name, a, grid, block, lds, vgpr in kernels:
        kn = f'kernel={name} ' if (len(kernels) > 1 or LIST) else ''
        out += f'; @launch {kn}grid=({grid},1,1) block=({block},1,1) lds={lds}\n'
    out += '.amdgcn_target "amdgcn-amd-amdhsa--gfx950"\n.text\n'
    out += '.set CODE_LINES, (K_END - K_GEMM) / 128 - 1\n'
    descs = ''
    for name, a, grid, block, lds, vgpr in kernels:
        b, d = kernel_text(name, a, vgpr)
        out += b
        descs += d
    out += '.section .rodata,"a"\n' + descs
    return out


NG1, NG2 = 1, 3


def mega():
    a = Asm()
    a.e('s_cmp_ge_u32 s2, 512')
    a.e('s_cbranch_scc1 K_END')
    stamp(a, 0)
    a.e('s_cmp_ge_u32 s2, 256')
    a.e('s_cbranch_scc1 K_ATT')
    a.label('K_GEMM')
    a.vmq = []
    a.lgq = []
    g = GW(a)
    UB, UP = g.UB, g.UP
    g.limitA = UB
    g.setup()
    if 'afine' in ABL:
        stamp(a, 1)
    g.prologue_issue()
    if 'afine' in ABL:
        stamp(a, 2)
    g.setup2()
    if 'afine' in ABL:
        stamp(a, 3)
        g.hooks[0] = lambda: stamp(a, 4)
        g.hooks[6] = lambda: stamp(a, 5)
        g.hooks[12] = lambda: stamp(a, 6)

    def nonce_ld():
        a.e('v_mov_b32 v23, 0')
        a.vm(f'global_load_dword v24, v23, s[16:17] {SC}', 'nonce')
        g.mk_load()
        a.vmq.append('nonce')
    g.mk_addr()
    g.hooks[22] = nonce_ld
    g.run_segment(0, UB)
    if 'afine' in ABL:
        a.e('s_branch K_DONE')
    stamp(a, 1)
    n1, n2 = opt('ng', [NG1, NG2])
    nb1 = opt('nb1', [8])[0]
    a.wait_vm('nonce')
    get_nonce(a, 23, 24)
    poll(a, g.mk_load, [26, 27], 28, first_done=True, sleep=4)
    g.proj_store()
    g.limitA = UP
    a.vmq.append('pst')
    a.vmq.append('pst')
    a.e('s_barrier')
    for _ in range(g.R - 1):
        g.run(g.issueA())
    if 'z1t' in ABL:
        a.e('s_lshl_b32 s44, s31, 2')
        a.e('s_add_u32 s44, s44, s20')
        a.e('s_mul_i32 s44, s44, 81')
        a.e('s_and_b32 s45, s2, 4')
        a.e('s_lshl_b32 s46, s45, 2')
        a.e('s_lshr_b32 s45, s45, 1')
        for i in range(2):
            a.e('v_min_u32 v24, 40, v1')
            a.e(f'v_add3_u32 v24, v24, s44, {40 * i}')
            a.e('v_mul_u32_u24 v25, 58255, v24')
            a.e('v_lshrrev_b32 v25, 20, v25')
            a.e('v_mul_u32_u24 v26, 18, v25')
            a.e('v_sub_u32 v24, v24, v26')
            a.e('v_add_u32 v26, s46, v24')
            a.e('v_add3_u32 v27, v24, s45, 16')
            a.e('v_cmp_gt_u32 vcc, 16, v24')
            a.e('v_cndmask_b32 v24, v27, v26, vcc')
            a.e('v_mul_u32_u24 v25, 9216, v25')
            a.e('v_lshl_add_u32 v24, v24, 7, v25')
            a.vm('buffer_load_dword v255, v24, s[8:11], 0 offen', 'tch')
    g.z2_gelu_publish()

    LF = 'lnfine' in ABL
    if LF:
        stamp(a, 2)
    g.run_segment(UB, nb1)
    if LF:
        stamp(a, 3)
    g.z2_gather_norm_store()
    stamp(a, 4 if LF else 2)
    a.e('s_lshl_b32 s49, s22, 9')
    a.e(f's_add_u32 s49, s49, {FZ_OFF}')
    a.e('s_lshl_b32 s48, s32, 7')
    a.e('s_add_u32 s48, s48, s49')
    a.e('s_and_b32 s50, s23, 15')
    a.e('s_lshl_b32 s50, s50, 2')
    a.e('s_add_u32 s48, s48, s50')
    a.e('s_and_b32 s50, s32, 2')
    a.e('s_lshl_b32 s50, s50, 7')
    a.e('s_add_u32 s50, s50, s49')
    a.e('v_and_b32 v29, 15, v1')
    a.e('v_lshlrev_b32 v29, 2, v29')
    a.e('v_lshrrev_b32 v23, 4, v1')
    a.e('v_lshl_add_u32 v23, v23, 7, v29')
    a.e('v_and_b32 v29, 0xff, v23')

    def zflag():
        a.wait_vm('st')
        set_flag(a, 48, 27)
    g.hooks[UB + nb1 + opt('zf', [4])[0]] = zflag
    g.run_segment(UB + nb1, 18 - nb1)
    if LF:
        stamp(a, 5)
    g.own_write()
    g.z1_gelu(range(0, n1))
    g.nextA = UP + 4
    g.run_segment(UP, 4, own=True)
    g.z1_gelu(range(n1, n2))
    if LF:
        stamp(a, 6)
    poll(a, lambda: a.e(f'buffer_load_dword v26, v29, s[12:15], s50 offen {SC}'), [26], 27)
    if LF:
        a.e('s_branch K_DONE')
    stamp(a, 3)
    g.limitA = len(g.units)
    a.e('s_barrier')
    for _ in range(g.R - 1):
        g.run(g.issueA())
    g.z1_gelu(range(n2, 9))
    g.hooks[UP + 58] = g.sp_pre

    def zall():
        a.e(f'buffer_load_dword v26, v23, s[12:15], s49 offen {SC}')

    def zall0():
        zall()
        a.vmq.append('zf')

    def zall1():
        a.wait_vm('zf')
        poll(a, zall, [26], 27, first_done=True)
    g.hooks[UP + 10] = zall0
    g.hooks[UP + 15] = zall1
    g.hooks[UP + 61] = lambda: p3_pre(a)
    g.hooks[UP + opt('gsw', [62])[0]] = lambda: a.e('s_setprio 0')

    if opt('gate'):
        def prog():
            a.e('s_lshl_b32 s44, s2, 7')
            a.e(f's_add_u32 s44, s44, {PROG_OFF}')
            set_flag(a, 44, 27)
        g.hooks[UP + opt('gate')[1]] = prog
    g.run_segment(UP + 4, 60)
    if 'p2fine' in ABL:
        a.e('s_branch K_DONE')
    stamp(a, 4)
    g.sp_epilogue()
    p3(a)
    a.e('s_or_b32 s44, s2, s20')
    a.e('s_cmp_lg_u32 s44, 0')
    a.e('s_cbranch_scc1 K_DONE')
    a.e('v_mov_b32 v2, 0')
    a.e(f'global_store_dword v2, v2, s[16:17] {SC}')
    a.e('s_branch K_DONE')
    a.label('K_ATT')
    a.vmq = []
    a.lgq = []
    a.e('s_sub_u32 s3, s2, 256')
    P = opt('pa', [0, 1])
    t = ATT(a)
    t.setup(3)
    t.mark()
    write_nonce(a)
    if 'afine' in ABL:
        a.e('s_branch K_DONE')
    t.retile_setup()
    stamp(a, 1)
    a.e(f's_setprio {P[0]}')
    t.q_phase()
    stamp(a, 2)
    a.e(f's_setprio {P[1]}')
    if 'noattmain' in ABL:
        for p in range(3):
            if p == 2:
                t.mark_part(0, 12)
            a.wait_all()
            t.side(p)
        t.gate_load()
        a.wait_all()
    else:
        t.main(flags=SCL)
    stamp(a, 3)
    a.e('s_setprio 3')
    t.epilogue(flags=SC)
    a.label('K_DONE')
    stamp_flush(a, 0)
    a.label('K_END')
    a.e('s_endpgm')
    return (NAME + '_kernel', a, 512, 256, 81920, 256)


LIST = False
if __name__ == '__main__':
    if '--stamp' in sys.argv:
        STAMP = True
        sys.argv.remove('--stamp')
    if '--list' in sys.argv:
        LIST = True
        sys.argv.remove('--list')
    for x in list(sys.argv):
        if x.startswith('--abl='):
            ABL.update(x[6:].split(','))
            sys.argv.remove(x)
    out = sys.argv[1] if len(sys.argv) > 1 else 'out.s'
    open(out, 'w').write(build_file([mega()]))
    print('wrote', out)
```

```python
import sys, struct
from asmlib import Asm

NAME = 'gated_mix__grouped_kv_mqa__mixer_gmlp__prompt'

Z2_OFF = 0x10000
UF_OFF = Z2_OFF + 9437184
W3_OFF = UF_OFF + 11796480
KV_OFF = W3_OFF + 3317760
KV_TILE = 2496
GATE_OFF = KV_OFF + 160 * 1024
STATS_OFF = GATE_OFF + 16384
FLAG_OFF = STATS_OFF + 524288
FKV_OFF = FLAG_OFF
FW3_OFF = FLAG_OFF + 49152
FZ_OFF = FLAG_OFF + 4096
PZ_OFF = FLAG_OFF + 65536
PROG_OFF = FLAG_OFF + 16384
GO_OFF = FLAG_OFF + 98304
KVF_OFF = FLAG_OFF
QF_OFF = FLAG_OFF + 131072
SC = 'sc1' if 'sconly1' in ' '.join(sys.argv) else 'sc0 sc1'
SCL = '' if '--abl' in ' '.join(sys.argv) and 'noscl' in ' '.join(sys.argv) else 'sc1'
WS_SIZE = 0x1c00000
assert QF_OFF + 128 * 16 * 1152 <= 0x1b00000
STAMP_OFF = 0x1b00000

A_X, A_WQ, A_WK, A_WV, A_WO, A_BX, A_WIN, A_WSP, A_BSP, A_WOUT, A_GW, A_OUT, A_DBG, A_WS = [8 * i for i in range(14)]

STAMP = False
ABL = set()


def opt(name, default=None):
    for x in ABL:
        if x.startswith(name + ':'):
            return [int(v) for v in x.split(':')[1:]]
    return default


def f2u(f):
    return struct.unpack('<I', struct.pack('<f', f))[0]


def hx(f):
    return '0x%08x' % f2u(f)


def srd(a, d, size):
    a.e(f's_mov_b32 s{d + 2}, {size}')
    a.e(f's_mov_b32 s{d + 3}, 0x00020000')


def vr(b, n):
    return f'v[{b}:{b + n - 1}]'


def stamp(a, idx):
    if not STAMP:
        return
    a.wait_lg0()
    a.e('s_memrealtime s[78:79]')
    a.e('s_memtime s[76:77]')
    a.e('s_waitcnt lgkmcnt(0)')
    a.e(f's_mov_b32 s{80 + idx}, s78')
    a.e(f's_mov_b32 s{88 + idx}, s76')


def stamp_flush(a, kidx):
    if not STAMP:
        return
    a.e('s_waitcnt vmcnt(0) lgkmcnt(0)')
    stamp(a, 7)
    a.e(f's_load_dwordx2 s[74:75], s[0:1], {A_WS}')
    a.e('s_waitcnt lgkmcnt(0)')
    a.e('v_lshrrev_b32 v1, 6, v0')
    a.e('v_lshlrev_b32 v1, 6, v1')
    a.e('s_lshl_b32 s78, s2, 8')
    a.e(f's_add_u32 s78, s78, {STAMP_OFF + kidx * 131072}')
    a.e('v_add_u32 v1, s78, v1')
    for i in range(16):
        a.e(f'v_mov_b32 v{4 + i}, s{80 + i}')
    for i in range(4):
        a.e(f'global_store_dwordx4 v1, v[{4 + 4 * i}:{7 + 4 * i}], s[74:75] offset:{16 * i}')
    if 'dbgstamp' in ABL:
        a.e('s_cmp_lt_u32 s2, 256')
        a.e('s_cselect_b32 s78, 4, 36')
        a.e('v_mov_b32 v1, s78')
        a.e('s_mov_b64 exec, 1')
        for i in range(1, 8):
            a.e(f'v_subrev_u32 v{4 + i}, s62, v{4 + i}')
            a.e(f'global_atomic_umax v1, v{4 + i}, s[16:17] offset:{4 * (i - 1)} sc1')
        a.e('v_sub_u32 v4, s62, v4')
        a.e('v_add_u32 v4, 1000, v4')
        a.e('v_mov_b32 v1, 32')
        a.e('global_atomic_umax v1, v4, s[16:17] sc1')
        a.e('s_mov_b64 exec, -1')


QSCALE = 18 ** -0.5 * 1.4426950408889634
GELU_C0 = -2.0 * 1.4426950408889634 * 0.7978845608028654
GELU_C1 = GELU_C0 * 0.044715


def gelu_group(a, regs, T, sC1, vC0):
    n = len(regs)
    for i, r in enumerate(regs):
        a.e(f'v_pk_mul_f32 {vr(T + 2 * i, 2)}, {vr(r, 2)}, {vr(r, 2)}')
    for i, r in enumerate(regs):
        a.e(f'v_pk_fma_f32 {vr(T + 2 * i, 2)}, {vr(T + 2 * i, 2)}, s[{sC1}:{sC1 + 1}], {vr(vC0, 2)}')
    for i, r in enumerate(regs):
        a.e(f'v_pk_mul_f32 {vr(T + 2 * i, 2)}, {vr(T + 2 * i, 2)}, {vr(r, 2)}')
    for i in range(2 * n):
        a.e(f'v_exp_f32 v{T + i}, v{T + i}')
    for i, r in enumerate(regs):
        a.e(f'v_pk_add_f32 {vr(T + 2 * i, 2)}, {vr(T + 2 * i, 2)}, 1.0 op_sel_hi:[1,0]')
    for i in range(2 * n):
        a.e(f'v_rcp_f32 v{T + i}, v{T + i}')
    for i, r in enumerate(regs):
        a.e(f'v_pk_mul_f32 {vr(r, 2)}, {vr(T + 2 * i, 2)}, {vr(r, 2)}')


SPIN_MAX = 300000
PG = [2, 2, 0]


def poll(a, loads, regs, t0, first_done=False, sleep=1):
    lp = a.newlabel('POLL')
    lc = a.newlabel('POLLC')
    lg = a.newlabel('POLLOK')
    a.e(f's_mov_b32 s51, {SPIN_MAX}')
    if first_done:
        a.e(f's_branch {lc}')
    a.label(lp)
    loads()
    a.e('s_waitcnt vmcnt(0)')
    a.label(lc)
    a.e(f'v_xor_b32 v{t0}, s62, v{regs[0]}')
    for r in regs[1:]:
        a.e(f'v_xor_b32 v{t0 + 1}, s62, v{r}')
        a.e(f'v_or_b32 v{t0}, v{t0}, v{t0 + 1}')
    a.e(f'v_cmp_ne_u32 vcc, 0, v{t0}')
    a.e(f's_cbranch_vccz {lg}')
    a.e(f's_sleep {sleep}')
    a.e('s_sub_u32 s51, s51, 1')
    a.e('s_cmp_lg_u32 s51, 0')
    a.e(f's_cbranch_scc1 {lp}')
    a.label(lg)
    if not first_done:
        a.vmq = []


def get_nonce(a, vz, vn):
    lp = a.newlabel('NONCE')
    lg = a.newlabel('NONCE_OK')
    a.e(f's_mov_b32 s51, {SPIN_MAX}')
    a.label(lp)
    a.e(f'v_readfirstlane_b32 s62, v{vn}')
    a.e('s_cmp_lg_u32 s62, 0')
    a.e(f's_cbranch_scc1 {lg}')
    a.e('s_sleep 32')
    a.e(f'global_load_dword v{vn}, v{vz}, s[16:17] {SC}')
    a.e('s_waitcnt vmcnt(0)')
    a.e('s_sub_u32 s51, s51, 1')
    a.e('s_cmp_lg_u32 s51, 0')
    a.e(f's_cbranch_scc1 {lp}')
    a.label(lg)


def set_flag(a, soff, t0):
    a.e(f'v_mov_b32 v{t0}, 0')
    a.e(f'v_mov_b32 v{t0 + 1}, s62')
    a.e('s_mov_b64 exec, 1')
    a.vm(f'buffer_store_dword v{t0 + 1}, v{t0}, s[12:15], s{soff} offen {SC}', 'flag')
    a.e('s_mov_b64 exec, -1')


class GW:
    R = 5
    SLOT = 8192
    SGL = 40960
    BBASE = 49152
    AF = 32
    BF = 68
    ACC0 = 100
    ACC1 = 172
    UB = 27
    UP = 45

    def __init__(self, a):
        self.a = a
        self.units = []
        self.stages = []
        for st in range(9):
            self.stages.append(('x', st))
            self.units += [('z2', 2 * st, st, 0, 2 * st), ('z2', 2 * st + 1, st, 1, 2 * st + 1), ('E', st, st, 0, None)]
        for k in range(18):
            if k % 2 == 0:
                self.stages.append(('x', k // 2))
            self.units.append(('z1', k, 9 + k // 2, k % 2, 18 + k))
        for k in range(64):
            if k % 2 == 0:
                self.stages.append(('sp', k // 2))
            self.units.append(('sp', k, 18 + k // 2, k % 2, 36 + k))
        self.nextA = 0
        self.nextB = 0
        self.limitA = len(self.units)
        self.pendB = []
        self.hooks = {}

    def setup(self):
        a = self.a
        a.e(f's_load_dwordx4 s[4:7], s[0:1], {A_X}')
        a.e(f's_load_dwordx2 s[8:9], s[0:1], {A_WIN}')
        a.e(f's_load_dwordx4 s[16:19], s[0:1], {A_DBG}')
        a.e(f's_load_dwordx4 s[52:55], s[0:1], {A_WSP}')
        a.e(f's_load_dwordx2 s[64:65], s[0:1], {A_OUT}')
        a.e(f's_load_dwordx4 s[68:71], s[0:1], {A_WK}')
        a.e('v_lshrrev_b32 v1, 6, v0')
        a.e('v_readfirstlane_b32 s20, v1')
        a.e('v_and_b32 v1, 63, v0')
        a.e('s_lshr_b32 s31, s2, 3')
        a.e('s_and_b32 s32, s2, 3')
        a.e('s_and_b32 s34, s31, 3')
        a.e('s_lshl_b32 s21, s32, 2')
        a.e('s_add_u32 s21, s21, s34')
        a.e('s_lshr_b32 s35, s31, 2')
        a.e('s_and_b32 s22, s2, 4')
        a.e('s_lshl_b32 s22, s22, 1')
        a.e('s_add_u32 s22, s22, s35')
        a.e('s_lshl_b32 s23, s21, 2')
        a.e('s_add_u32 s23, s23, s20')
        a.e('s_lshl_b32 s39, s34, 1')
        a.e('s_add_u32 s39, s39, s35')
        a.e('s_cmp_ge_u32 s39, 9')
        a.e('s_cselect_b32 s40, 9, 0')
        a.e('s_sub_u32 s39, s39, s40')
        if 'norot' in ABL:
            a.e('s_mov_b32 s39, 0')
        if 'rot3' in ABL:
            a.e('s_lshl_b32 s39, s39, 2')
            a.e('s_mov_b32 s40, 0x30630630')
            a.e('s_mov_b32 s41, 6')
            a.e('s_lshr_b64 s[40:41], s[40:41], s39')
            a.e('s_and_b32 s39, s40, 15')
        if 'rot5' in ABL:
            a.e('s_and_b32 s39, s39, 14')
        a.e('s_mul_i32 s24, s39, %d' % (64 * 9216))
        a.e('s_lshl_b32 s25, s39, 7')
        a.e('s_lshl_b32 s28, s39, 1')
        a.e('s_add_u32 s28, s28, s20')
        a.e('s_cmp_ge_u32 s28, 18')
        a.e('s_cselect_b32 s29, 18, 0')
        a.e('s_sub_u32 s28, s28, s29')
        a.e(f's_mul_i32 s28, s28, {32 * 9216}')
        a.e('s_lshl_b32 s26, s20, 11')
        a.e('s_lshl_b32 s27, s20, 12')
        a.e(f's_add_u32 s27, s27, {self.BBASE}')
        a.e('s_lshl_b32 s30, s20, 10')
        a.e(f's_add_u32 s30, s30, {self.SGL}')
        a.e('v_and_b32 v23, 7, v1')
        a.e('v_lshrrev_b32 v24, 5, v1')
        a.e('v_lshlrev_b32 v24, 3, v24')
        a.e('v_bfe_u32 v25, v1, 3, 2')
        a.e('s_lshl_b32 s44, s23, 5')
        a.e('v_add3_u32 v24, v24, v25, s44')
        a.e('v_lshrrev_b32 v25, 4, v1')
        a.e('v_xor_b32 v25, v25, v23')
        a.e('v_lshlrev_b32 v25, 4, v25')
        a.e('v_xor_b32 v26, 64, v25')
        a.e('v_mul_u32_u24 v27, 1152, v24')
        a.e('v_add_u32 v5, v27, v25')
        a.e('v_add_u32 v6, v27, v26')
        a.e(f'v_add_u32 v6, {16 * 1152 - 1024}, v6')
        a.e(f'v_add_u32 v7, {4 * 1152 - 2048}, v5')
        a.e(f'v_add_u32 v8, {4 * 1152 - 2048}, v6')
        a.e('s_lshl_b32 s42, s22, 8')
        a.e('s_mul_i32 s43, s20, %d' % (8 * 9216))
        a.e('s_add_u32 s42, s42, s43')
        a.e('s_add_u32 s42, s42, 4608')
        a.e('v_bfe_u32 v2, v1, 2, 2')
        a.e('v_mul_u32_u24 v2, 9216, v2')
        a.e('v_lshrrev_b32 v3, 4, v1')
        a.e('v_lshl_add_u32 v2, v3, 6, v2')
        a.e('s_and_b32 s44, s20, 1')
        a.e('s_lshl_b32 s45, s44, 1')
        a.e('v_and_b32 v3, 3, v1')
        a.e('v_xor_b32 v3, s45, v3')
        a.e('v_lshl_add_u32 v2, v3, 4, v2')
        a.e('v_add_u32 v2, s42, v2')
        a.e(f'v_add_u32 v3, {4 * 9216 - 1024}, v2')
        a.e('v_lshrrev_b32 v29, 1, v1')
        a.e('v_and_b32 v27, 19, v29')
        a.e('v_bfe_u32 v28, v29, 2, 1')
        a.e('v_lshl_add_u32 v27, v28, 3, v27')
        a.e('v_bfe_u32 v28, v29, 3, 1')
        a.e('v_lshl_add_u32 v27, v28, 2, v27')
        a.e('v_mul_u32_u24 v4, 9216, v27')
        a.e('v_and_b32 v27, 1, v1')
        a.e('v_lshl_add_u32 v4, v27, 4, v4')
        a.e('s_lshl_b32 s45, s22, 5')
        a.e(f's_add_u32 s45, s45, {4096 + 4608}')
        a.e('v_add_u32 v4, s45, v4')
        a.e('s_waitcnt lgkmcnt(0)')
        a.e('s_mov_b64 s[48:49], s[6:7]')
        a.e('s_mov_b64 s[60:61], s[68:69]')
        a.e('s_mov_b64 s[50:51], s[70:71]')
        srd(a, 4, 2359296)
        srd(a, 8, 576 * 9216)
        self.consts()
        b0 = self.issueB()
        self.run(b0[0] + b0[1][1:] + self.issueA() + self.issueA())
        a.e('v_mul_u32_u24 v27, 36, v27')
        a.e('v_lshrrev_b32 v20, 2, v1')
        a.e('v_mul_u32_u24 v20, 1152, v20')
        a.e('v_bfe_u32 v28, v1, 1, 1')
        a.e('v_lshl_add_u32 v20, v28, 4, v20')
        a.e('v_add_u32 v20, v20, v27')
        a.e('v_mul_u32_u24 v28, 1152, v29')
        a.e('v_add3_u32 v28, v28, v27, 32')
        a.e('s_cmp_eq_u32 s20, 2')
        a.e('s_cselect_b64 vcc, -1, 0')
        a.e('v_cndmask_b32 v20, v20, v28, vcc')
        a.e('v_mul_u32_u24 v28, 36, v29')
        a.e('s_cmp_eq_u32 s20, 3')
        a.e('s_cselect_b64 vcc, -1, 0')
        a.e('v_cndmask_b32 v20, v20, v28, vcc')
        a.e('s_mul_i32 s44, s22, 72')
        a.e('s_cmp_eq_u32 s20, 1')
        a.e(f's_cselect_b32 s45, {16 * 1152}, 0')
        a.e('s_add_u32 s44, s44, s45')
        a.e('s_and_b32 s45, s22, 1')
        a.e('s_lshl_b32 s45, s45, 4')
        a.e('s_cmp_ge_u32 s22, 4')
        a.e('s_cselect_b32 s45, 32, s45')
        a.e('s_cmp_eq_u32 s20, 3')
        a.e('s_cselect_b32 s44, s45, s44')
        a.e(f's_movk_i32 s58, 1152')
        a.e('s_cselect_b32 s58, 36, s58')
        a.e('v_add_u32 v20, s44, v20')
        a.e('s_lshl_b32 s44, s58, 5')
        a.e('s_sub_u32 s44, s44, 1024')
        a.e('v_add_u32 v244, s44, v20')
        a.e('s_mul_i32 s42, s58, 576')
        a.e('s_lshl_b32 s58, s58, 6')
        a.e('s_mul_i32 s59, s58, s39')
        a.e('s_lshr_b32 s44, 0x2c, s22')
        a.e('s_and_b32 s44, s44, 1')
        a.e('s_cmp_eq_u32 s44, 1')
        a.e('s_cselect_b32 s40, s50, s60')
        a.e('s_cselect_b32 s41, s51, s61')
        a.e('s_cmp_eq_u32 s20, 3')
        a.e('s_cselect_b32 s40, s40, s48')
        a.e('s_cselect_b32 s41, s41, s49')
        a.e('s_mov_b32 s43, 0x00020000')
        a.e('s_mov_b32 s12, s18')
        a.e('s_mov_b32 s13, s19')
        srd(a, 12, WS_SIZE)
        a.e('s_mov_b32 s56, s54')
        a.e('s_mov_b32 s57, s55')
        srd(a, 52, 2048 * 4096)

    def setup2(self):
        a = self.a
        a.e('v_lshlrev_b32 v27, 12, v24')
        a.e('v_add_u32 v12, v27, v25')
        a.e('v_add_u32 v13, v27, v26')
        a.e(f'v_add_u32 v13, {16 * 4096 - 1024}, v13')
        a.e(f'v_add_u32 v14, {4 * 4096 - 2048}, v12')
        a.e(f'v_add_u32 v15, {4 * 4096 - 2048}, v13')
        a.e('s_xor_b32 s37, s21, s35')
        a.e('s_lshl_b32 s45, s22, 13')
        a.e('s_add_u32 s45, s45, s26')
        a.e(f's_add_u32 s45, s45, {Z2_OFF}')
        a.e('v_lshlrev_b32 v19, 4, v1')
        a.e('v_add_u32 v9, s45, v19')
        a.e('s_lshl_b32 s45, s22, 10')
        a.e('s_mul_i32 s46, s20, 147456')
        a.e('s_add_u32 s45, s45, s46')
        a.e(f's_add_u32 s45, s45, {128 * 1024 + Z2_OFF}')
        a.e('v_add_u32 v10, s45, v19')
        a.e('v_lshrrev_b32 v27, 4, v1')
        a.e('v_and_b32 v29, 3, v1')
        a.e('v_lshlrev_b32 v28, 3, v29')
        a.e('v_bfe_u32 v29, v1, 2, 3')
        a.e('v_lshl_add_u32 v18, v29, 5, v28')
        a.e('v_lshrrev_b32 v29, 5, v1')
        a.e('v_lshl_add_u32 v18, v29, 9, v18')
        a.e('v_lshl_add_u32 v28, v27, 11, v28')
        a.e('v_bfe_u32 v29, v1, 2, 2')
        a.e('v_lshl_add_u32 v28, v29, 6, v28')
        a.e('v_and_b32 v29, 1, v27')
        a.e('v_lshl_add_u32 v16, v29, 5, v28')
        a.e('v_xor_b32 v17, 32, v16')
        a.e('v_and_b32 v28, 15, v1')
        a.e('v_lshlrev_b32 v245, 4, v28')
        a.e('v_lshl_add_u32 v245, v29, 9, v245')
        a.e('v_lshrrev_b32 v29, 5, v1')
        a.e('v_lshl_add_u32 v245, v29, 11, v245')
        a.e('v_bfe_u32 v29, v1, 2, 2')
        a.e('v_lshl_add_u32 v29, v27, 3, v29')
        a.e('v_lshlrev_b32 v246, 5, v29')
        a.e('v_and_b32 v29, 1, v1')
        a.e('v_lshlrev_b32 v23, 4, v29')
        a.e('v_add_u32 v23, 4096, v23')
        a.e('v_lshlrev_b32 v29, 3, v29')
        a.e('v_add_u32 v29, 6144, v29')
        a.e('v_and_b32 v24, 2, v1')
        a.e('v_cmp_eq_u32 vcc, 0, v24')
        a.e('v_cndmask_b32 v29, v29, v23, vcc')
        a.e('v_add_u32 v246, v246, v29')
        a.e('v_bfe_u32 v29, v1, 1, 3')
        a.e('v_xor_b32 v29, v29, v27')
        a.e('v_lshlrev_b32 v28, 7, v28')
        a.e('v_lshl_add_u32 v28, v29, 4, v28')
        a.e('v_add_u32 v21, s27, v28')
        a.e('v_xor_b32 v28, 64, v28')
        a.e('v_add_u32 v22, s27, v28')
        self.gelu_consts()

    def consts(self):
        a = self.a
        for i in range(5):
            a.e(f's_add_u32 s{66 + i}, s26, {i * self.SLOT}')
        a.e('s_mov_b32 s71, s30')
        a.e('s_add_u32 s72, s30, 4096')
        a.e('s_mov_b32 s73, s27')
        a.e('s_add_u32 s63, s27, 16384')
        a.e(f's_mov_b32 s33, {32 * 9216}')
        a.e(f's_mov_b32 s36, {576 * 9216}')
        a.e('s_mov_b32 s38, 147456')
        a.e('s_movk_i32 s3, 1152')

    def S(self, text, cost=4):
        return (cost, lambda: self.a.e(text))

    def D(self, text, tag):
        return (12, lambda: self.a.vm(text, tag))

    def grp(self, g, d, t):
        S = self.S
        if g == 0:
            return [S(f's_mov_b32 s{d}, s21')]
        if g < 8:
            return [S(f's_add_u32 s{d}, s35, {g}'), S(f's_cmp_ge_u32 s{d}, 8\ns_cselect_b32 s{t}, 7, 0', 8),
                    S(f's_sub_u32 s{d}, s{d}, s{t}'), S(f's_xor_b32 s{d}, s{d}, s21')]
        return [S(f's_xor_b32 s{d}, s37, {g}')]

    def issueA(self):
        u = self.nextA
        if u >= self.limitA:
            return []
        self.nextA += 1
        S, D = self.S, self.D
        seg, i, _, _, si = self.units[u]
        tag = ('A', u)
        m0 = S(f's_mov_b32 m0, s{66 + u % self.R}')
        if seg == 'E':
            return [m0, D('buffer_load_dwordx4 v20, s[40:43], s59 offen lds', tag),
                    D('buffer_load_dwordx4 v244, s[40:43], s59 offen offset:1024 lds', tag),
                    S('s_add_u32 s59, s59, s58'), S('s_cmp_eq_u32 s59, s42\ns_cselect_b32 s59, 0, s59', 8)]
        m1 = S(f's_mov_b32 m0, s{71 + (si // 4) % 2}')
        out = []
        if seg == 'sp':
            if i % 4 == 0:
                out += self.grp(i // 4, 24, 29) + [S('s_mul_i32 s24, s24, 589824', 6)]
            out += [m0, D(f'buffer_load_dwordx4 v9, s[12:15], s24 offen {SCL} lds', tag),
                    D(f'buffer_load_dwordx4 v9, s[12:15], s24 offen offset:1024 {SCL} lds', tag)]
            if i % 4 == 0:
                out += [m1, D(f'buffer_load_dwordx4 v10, s[12:15], s24 offen {SCL} lds', tag)]
            if i % 4 != 3:
                out.append(S('s_add_u32 s24, s24, s38'))
            return out
        if seg == 'z1' and i == 0:
            out += [S('v_subrev_u32 v2, 4608, v2', 8), S('v_subrev_u32 v3, 4608, v3', 8)]
        out += [m0, D('buffer_load_dwordx4 v2, s[8:11], s24 offen lds', tag),
                D('buffer_load_dwordx4 v3, s[8:11], s24 offen offset:1024 lds', tag), S('s_add_u32 s24, s24, s33')]
        if i % 2 == 1:
            out.append(S('s_cmp_eq_u32 s24, s36\ns_cselect_b32 s24, 0, s24', 8))
        if si % 4 == 0:
            if si == 16:
                out += [S('s_cmp_lt_u32 s20, 2\ns_cselect_b32 s29, 0, 4608', 10), S('v_subrev_u32 v4, s29, v4')]
            if si == 20:
                out += [S('s_cmp_lt_u32 s20, 2\ns_cselect_b32 s29, 4608, 0', 10), S('v_subrev_u32 v4, s29, v4')]
            out += [m1, D('buffer_load_dwordx4 v4, s[8:11], s28 offen lds', tag), S(f's_add_u32 s28, s28, {128 * 9216}', 6),
                    S('s_cmp_ge_u32 s28, s36\ns_cselect_b32 s29, s36, 0', 8), S('s_sub_u32 s28, s28, s29')]
        return out

    def issueB(self):
        s = self.nextB
        if s >= len(self.stages):
            return [[], []]
        self.nextB += 1
        S, D = self.S, self.D
        seg, i = self.stages[s]
        tag = ('B', s)
        sp = seg == 'sp'
        vb = 12 if sp else 5
        sr = 's[52:55]' if sp else 's[4:7]'
        m0 = S(f's_mov_b32 m0, s{(73, 63)[s % 2]}')
        ld = [D(f'buffer_load_dwordx4 v{vb + j}, {sr}, s25 offen offset:{1024 * j} lds', tag) for j in range(4)]
        pre = []
        if sp:
            pre = self.grp(i // 2, 25, 46) + [S('s_lshl_b32 s25, s25, 8')] if i % 2 == 0 else [S('s_addk_i32 s25, 128')]
        post = [] if sp else [S('s_addk_i32 s25, 128'), S('s_cmp_eq_u32 s25, s3\ns_cselect_b32 s25, 0, s25', 8)]
        return [pre + [m0] + ld[:2], [m0] + ld[2:] + post]

    def nfr(self, u):
        return 6 if self.units[u][0] == 'E' else 9

    def freg(self, u, F):
        return (self.ACC1 + 24 if self.units[u][0] == 'E' else self.AF) + 4 * F

    def readA(self, u, F):
        a = self.a
        seg, i, _, _, si = self.units[u]
        slot = (u % self.R) * self.SLOT
        tag = ('AR', u, F)
        r = self.freg(u, F)

        def L(t):
            return (8, lambda: a.lg(t, tag))
        if seg == 'E':
            kk, t = F // 3, F % 3
            if t < 2:
                return [L(f'ds_read_b64_tr_b16 {vr(r + 2 * j, 2)}, v245 offset:{slot + kk * 1024 + j * 256 + t * 8}') for j in range(2)]
            return [L(f'ds_read_b64_tr_b16 {vr(r + 2 * j, 2)}, v246 offset:{slot + kk * 1024 + j * 128}') for j in range(2)]
        sgl = self.SGL + ((si // 4) % 2) * 4096 + (si % 4) * 1024
        if seg == 'sp':
            return [L(f'ds_read_b128 {vr(r, 4)}, v19 offset:{slot + F * 1024 if F < 8 else sgl}')]
        if F < 8:
            return [L(f'ds_read_b64_tr_b16 {vr(r + 2 * j, 2)}, v{16 + F % 2} offset:{slot + j * 1024 + (F // 2) * 256}') for j in range(2)]
        return [L(f'ds_read_b64_tr_b16 {vr(r + 2 * j, 2)}, v18 offset:{sgl + j * 256}') for j in range(2)]

    def readB(self, s):
        a = self.a
        out = [(4, lambda: a.wait_vm(('B', s)))]
        for jj in range(2):
            for e in range(2):
                t = f'ds_read_b128 {vr(self.BF + 16 * (s % 2) + 8 * jj + 4 * e, 4)}, v{21 + jj} offset:{(s % 2) * 16384 + e * 2048}'
                out.append((8, lambda t=t: a.lg(t, ('BR', s))))
        return out

    def run(self, items):
        for _, f in items:
            f()

    def prologue_issue(self):
        self.run(self.issueA())
        b1 = self.issueB()
        self.run(b1[0] + b1[1][1:] + self.issueA())

    def run_segment(self, u0, n, own=False):
        a = self.a
        a.e(f's_setprio {opt("pg", PG)[0]}')
        self.run(self.readB(self.units[u0][2]))
        a.wait_vm(('A', u0))
        a.wait_lg('own')
        a.e('s_barrier')
        for F in range(9):
            self.run(self.readA(u0, F))
        carry = []
        for u in range(u0, u0 + n):
            last = u == u0 + n - 1
            seg, kk, s, jj, _ = self.units[u]
            sfirst = u == u0 or self.units[u - 1][2] != s
            pos = u - min(v for v in range(u0, u + 1) if self.units[v][2] == s)
            nf = self.nfr(u)
            if 'p2fine' in ABL and u >= self.UP + 4 and (u - self.UP - 4) % 10 == 0:
                stamp(a, 1 + (u - self.UP - 4) // 10)
            will_issue = self.nextA <= u + self.R - 1 and self.nextA < self.limitA
            if not last:
                a.wait_vm(('A', u + 1))
            if will_issue or (not last and not own):
                a.e('s_barrier')
            if u in self.hooks:
                self.hooks[u]()
            misc = self.issueA() if self.nextA <= u + self.R - 1 else []
            if sfirst and self.nextB <= s + 2:
                self.pendB = self.issueB()
            pb = self.pendB.pop(0) if self.pendB else []
            reads = [(0, it) for it in carry]
            carry = []
            if not last:
                same = self.freg(u, 0) == self.freg(u + 1, 0)
                for F in range(self.nfr(u + 1)):
                    its = self.readA(u + 1, F)
                    if nf == 6 and F >= 7:
                        carry += its
                    else:
                        reads += [(2 * F + 1 if same else 0, it) for it in its]
            stage_end = max(v for v in range(u, u0 + n) if self.units[v][2] == s)
            if pos == 1 and stage_end < u0 + n - 1:
                misc += self.readB(s + 1)
            misc += pb
            ng = 2 * nf
            nwait = (nf + 1) // 2
            total = sum(c for _, (c, _) in reads) + sum(c for c, _ in misc) + 4 * nwait + 8
            done = 0
            for g in range(ng):
                F, e = g // 2, g % 2
                if g == 0:
                    a.wait_lg(('AR', u, 0))
                    if sfirst:
                        a.wait_lg(('BR', s))
                af = vr(self.freg(u, F), 4)
                if seg == 'E':
                    d = vr(self.ACC1 + 8 * (F % 3) + 4 * e, 4)
                    c = '0' if (kk == 0 and F < 3) else d
                    bf = vr(self.BF + 16 * (s % 2) + 8 * (F // 3) + 4 * e, 4)
                else:
                    d = vr((self.ACC1 if seg == 'z1' else self.ACC0) + 8 * F + 4 * e, 4)
                    c = '0' if kk == 0 else d
                    bf = vr(self.BF + 16 * (s % 2) + 8 * jj + 4 * e, 4)
                if seg == 'z2':
                    a.e(f'v_mfma_f32_16x16x32_bf16 {d}, {bf}, {af}, {c}')
                else:
                    a.e(f'v_mfma_f32_16x16x32_bf16 {d}, {af}, {bf}, {c}')
                used = 0
                needw = e == 1 and F % 2 == 0 and F + 1 < nf
                if needw:
                    used += 4
                if g == ng - 1:
                    used += 8
                target = max(12 * (g + 1), total * (g + 1) / ng)
                while True:
                    cand = None
                    if reads and reads[0][0] <= g and (not misc or len(reads) * 1.0 >= (ng - g) * 0.55 or misc[0][0] + used > 12):
                        cand = 'r'
                    elif misc:
                        cand = 'm'
                    elif reads and reads[0][0] <= g:
                        cand = 'r'
                    if cand is None:
                        break
                    cost = reads[0][1][0] if cand == 'r' else misc[0][0]
                    if g < ng - 1 and used + cost > 12 and done + used + cost > total * (g + 1) / ng:
                        break
                    (reads.pop(0)[1] if cand == 'r' else misc.pop(0))[1]()
                    used += cost
                done += used
                if needw:
                    a.wait_lg(('AR', u, F + 1))
                    a.wait_lg(('AR', u, min(F + 2, nf - 1)))
                    self.merge_waits()
            assert not reads and not misc
        a.e(f's_setprio {opt("pg", PG)[1]}')

    def merge_waits(self):
        ins = self.a.ins
        if len(ins) >= 2 and ins[-1].text.startswith('s_waitcnt lgkmcnt') and ins[-2].text.startswith('s_waitcnt lgkmcnt'):
            del ins[-2]

    def proj_store(self):
        a = self.a
        E = self.ACC1
        P = self.AF
        a.e(f's_mov_b32 s44, {hx(QSCALE)}')
        a.e(f's_mov_b32 s45, {hx(QSCALE)}')
        a.e('v_mov_b32 v24, s44')
        a.e('s_bitcmp1_b32 0x2c, s22')
        a.e(f's_cselect_b32 s46, {hx(2.0 ** VSH)}, 1.0')
        a.e('v_mov_b32 v25, s46')
        a.e('v_cmp_gt_u32 vcc, 32, v1')
        a.e('v_cndmask_b32 v24, v25, v24, vcc')
        a.e('s_lshl_b32 s46, s23, 5')
        a.e('s_add_u32 s46, s46, s22')
        a.e('s_mul_i32 s46, s46, 1152')
        a.e(f's_add_u32 s46, s46, {QF_OFF}')
        a.e(f's_add_u32 s47, s46, {16 * 1152}')
        a.e('v_lshlrev_b32 v25, 2, v1')
        for e in range(2):
            for t in range(2):
                for h in range(2):
                    r = E + 8 * t + 4 * e + 2 * h
                    a.e(f'v_pk_mul_f32 {vr(r, 2)}, {vr(r, 2)}, s[44:45]')
            for r in (E + 16 + 4 * e, E + 18 + 4 * e):
                a.e(f'v_pk_mul_f32 {vr(r, 2)}, {vr(r, 2)}, v[24:25] op_sel_hi:[1,0]')
            for t in range(3):
                for h in range(2):
                    r = E + 8 * t + 4 * e + 2 * h
                    a.e(f'v_cvt_pk_bf16_f32 v{P + 8 * e + 2 * t + h}, v{r}, v{r + 1}')
            for i in range(6):
                a.e(f'v_min_u32 v{P + 8 * e + i}, -2, v{P + 8 * e + i}')
            a.vm(f'buffer_store_dwordx4 {vr(P + 8 * e, 4)}, v19, s[12:15], s{46 + e} offen {SC}', 'pst')
        a.e('s_mov_b32 exec_hi, 0')
        for e in range(2):
            a.vm(f'buffer_store_dword v{P + 8 * e + 4}, v25, s[12:15], s{46 + e} offen offset:1024 {SC}', 'pst')
        a.e('s_mov_b64 exec, -1')
        le = a.newlabel('PJ_E')
        lv = a.newlabel('PJ_V')
        lt = a.newlabel('PJ_T')
        ls = a.newlabel('PJ_S')
        a.e('s_cmp_ge_u32 s22, 6')
        a.e(f's_cbranch_scc1 {le}')
        a.e(f's_mul_i32 s44, s23, {KV_TILE}')
        a.e(f's_add_u32 s44, s44, {KV_OFF}')
        a.e('v_and_b32 v24, 15, v1')
        a.e('v_bfe_u32 v25, v1, 4, 1')
        a.e('v_lshrrev_b32 v26, 2, v24')
        a.e('v_mul_u32_u24 v26, 168, v26')
        a.e('v_add_u32 v26, 1152, v26')
        a.e('v_and_b32 v27, 3, v1')
        a.e('s_mov_b32 exec_lo, 0')
        a.e('s_cmp_ge_u32 s22, 4')
        a.e(f's_cbranch_scc1 {lt}')
        a.e('s_cmp_ge_u32 s22, 2')
        a.e(f's_cbranch_scc1 {lv}')
        a.e('v_lshlrev_b32 v28, 4, v24')
        a.e('v_lshl_add_u32 v28, v25, 3, v28')
        a.e('s_lshl_b32 s45, s22, 9')
        a.e('s_add_u32 s44, s44, s45')
        a.e('s_add_u32 s45, s44, 256')
        a.e(f's_branch {ls}')
        a.label(lv)
        a.e('v_lshl_add_u32 v28, v27, 5, v26')
        a.e('v_lshl_add_u32 v28, v25, 3, v28')
        a.e('s_and_b32 s45, s22, 1')
        a.e('s_lshl_b32 s45, s45, 4')
        a.e('s_add_u32 s44, s44, s45')
        a.e(f's_add_u32 s45, s44, {4 * 168}')
        a.e(f's_branch {ls}')
        a.label(lt)
        lvt = a.newlabel('PJ_VT')
        a.e('s_cmp_eq_u32 s22, 5')
        a.e(f's_cbranch_scc1 {lvt}')
        a.e('v_lshlrev_b32 v28, 2, v24')
        a.e('s_mov_b32 exec_hi, 0xffff')
        for e in range(2):
            a.e(f'buffer_store_dword v{P + 8 * e + 4}, v28, s[12:15], s44 offen offset:{1024 + 64 * e} {SC}')
        a.e(f's_branch {le}')
        a.label(lvt)
        a.e('v_lshl_add_u32 v28, v27, 3, v26')
        a.e('v_add_u32 v28, 128, v28')
        a.e('v_add_u32 v29, 160, v26')
        a.e('v_cmp_eq_u32 vcc, 0, v25')
        a.e('v_cndmask_b32 v28, v29, v28, vcc')
        a.e(f'v_mov_b32 v29, {f2u(2.0 ** VSH) >> 16}')
        for e in range(2):
            a.e(f'v_cndmask_b32 v{P + 8 * e + 4}, 0, v{P + 8 * e + 4}, vcc')
            a.e(f'v_cndmask_b32 v{P + 8 * e + 5}, 0, v29, vcc')
        a.e(f's_add_u32 s45, s44, {4 * 168}')
        a.label(ls)
        for e in range(2):
            a.e(f'buffer_store_dwordx2 {vr(P + 8 * e + 4, 2)}, v28, s[12:15], s{44 + e} offen {SC}')
        a.label(le)
        a.e('s_mov_b64 exec, -1')

    def mk_load(self):
        self.a.e(f'buffer_load_dwordx2 v[26:27], v23, s[12:15], s47 offen {SC}')

    def mk_addr(self):
        a = self.a
        a.e('s_bfe_u32 s47, s22, 0x20001')
        a.e('s_lshl_b32 s47, s47, 3')
        a.e('s_bfe_u32 s45, s23, 0x30001')
        a.e('s_add_u32 s47, s47, s45')
        a.e('s_lshl_b32 s47, s47, 3')
        a.e('s_and_b32 s45, s2, 7')
        a.e('s_add_u32 s47, s47, s45')
        a.e('s_lshl_b32 s47, s47, 7')
        a.e('s_and_b32 s45, s23, 1')
        a.e('s_lshl_b32 s45, s45, 3')
        a.e('s_add_u32 s47, s47, s45')
        a.e(f's_add_u32 s47, s47, {GO_OFF}')

    def proj_signal(self):
        a = self.a
        a.wait_vm('pst')
        a.e('v_mov_b32 v28, s62')
        a.e('s_barrier')
        l = a.newlabel('PS')
        a.e('s_cmp_ge_u32 s22, 6')
        a.e(f's_cbranch_scc1 {l}')
        a.e('s_cmp_lg_u32 s20, 0')
        a.e(f's_cbranch_scc1 {l}')
        a.e('s_mul_i32 s44, s21, 6')
        a.e('s_add_u32 s44, s44, s22')
        a.e('s_lshl_b32 s44, s44, 2')
        a.e(f's_add_u32 s44, s44, {KVF_OFF}')
        a.e('v_lshlrev_b32 v27, 9, v1')
        a.e('s_mov_b64 exec, 0xff')
        a.e(f'buffer_store_dword v28, v27, s[12:15], s44 offen {SC}')
        a.e('s_mov_b64 exec, -1')
        a.label(l)

    def gelu_consts(self):
        a = self.a
        a.e(f's_mov_b32 s60, {hx(GELU_C1)}')
        a.e(f's_mov_b32 s61, {hx(GELU_C1)}')
        a.e(f'v_mov_b32 v30, {hx(GELU_C0)}')
        a.e(f'v_mov_b32 v31, {hx(GELU_C0)}')

    def z1_gelu(self, Fs=range(9)):
        a = self.a
        T = self.BF + 16
        for F in Fs:
            base = self.ACC1 + 8 * F
            gelu_group(a, [base + 2 * i for i in range(4)], T + 8 * (F % 2), 60, 30)

    def z2_gelu_publish(self):
        a = self.a
        T = self.AF + 16
        S = self.BF
        for F in range(9):
            if F == opt('psig', [5])[0]:
                self.proj_signal()
            base = self.ACC0 + 8 * F
            gelu_group(a, [base + 2 * i for i in range(4)], T + 8 * (F % 2), 60, 30)
            for i in range(4):
                y = vr(base + 2 * i, 2)
                if F == 0:
                    a.e(f'v_pk_add_f32 {vr(S + 2 * i, 2)}, {y}, 0 op_sel_hi:[1,0]')
                    a.e(f'v_pk_mul_f32 {vr(S + 8 + 2 * i, 2)}, {y}, {y}')
                else:
                    a.e(f'v_pk_add_f32 {vr(S + 2 * i, 2)}, {vr(S + 2 * i, 2)}, {y}')
                    a.e(f'v_pk_fma_f32 {vr(S + 8 + 2 * i, 2)}, {y}, {y}, {vr(S + 8 + 2 * i, 2)}')
        for b in (S, S + 8):
            for r in range(4):
                a.e(f'v_add_f32_dpp v{b + r}, v{b + r}, v{b + r} row_ror:8 row_mask:0xf bank_mask:0x3')
            for r in range(4):
                a.e(f'v_add_f32_dpp v{b + r}, v{b + r + 4}, v{b + r + 4} row_ror:8 row_mask:0xf bank_mask:0xc')
        for b in (S, S + 8):
            for r in range(2):
                a.e(f'v_add_f32_dpp v{b + r}, v{b + r}, v{b + r} row_shl:4 row_mask:0xf bank_mask:0x5')
            for r in range(2):
                a.e(f'v_add_f32_dpp v{b + r}, v{b + r + 2}, v{b + r + 2} row_shr:4 row_mask:0xf bank_mask:0xa')
        for qp in ('[1,0,3,2]', '[2,3,0,1]'):
            for r in (S, S + 1, S + 8, S + 9):
                a.e(f'v_add_f32_dpp v{r}, v{r}, v{r} quad_perm:{qp} row_mask:0xf bank_mask:0xf')
        a.e('v_and_b32 v25, 1, v1')
        a.e('v_cmp_eq_u32 vcc, 1, v25')
        G0 = S + 12
        a.e(f'v_cndmask_b32 v{G0}, v{S}, v{S + 1}, vcc')
        a.e(f'v_cndmask_b32 v{G0 + 1}, v{S + 8}, v{S + 9}, vcc')
        a.e('v_lshrrev_b32 v27, 2, v1')
        a.e('v_lshl_add_u32 v27, v27, 1, v25')
        a.e('v_lshlrev_b32 v27, 4, v27')
        a.e('s_lshl_b32 s48, s23, 13')
        a.e(f's_add_u32 s48, s48, {STATS_OFF}')
        a.e('s_lshl_b32 s49, s22, 9')
        a.e('s_add_u32 s49, s49, s48')
        a.e(f'v_mov_b32 v{G0 + 2}, s62')
        a.e(f'v_mov_b32 v{G0 + 3}, s62')
        a.e('s_mov_b32 exec_lo, 0x33333333')
        a.e('s_mov_b32 exec_hi, 0x33333333')
        a.vm(f'buffer_store_dwordx4 {vr(G0, 4)}, v27, s[12:15], s49 offen {SC}', 'st')
        a.e('s_mov_b64 exec, -1')

    def z2_gather_norm_store(self):
        a = self.a
        G = self.AF
        a.e('s_add_u32 s49, s48, 4096')

        def ld():
            for i in range(8):
                a.e(f'buffer_load_dwordx4 {vr(G + 4 * i, 4)}, v19, s[12:15], {"s48" if i < 4 else "s49"} offen offset:{1024 * (i % 4)} {SC}')
        poll(a, ld, [G + 4 * i + 2 for i in range(8)], 27)
        for i in (0, 2, 4, 6):
            a.e(f'v_pk_add_f32 {vr(G + 4 * i, 2)}, {vr(G + 4 * i, 2)}, {vr(G + 4 * i + 4, 2)}')
        a.e(f'v_pk_add_f32 {vr(G, 2)}, {vr(G, 2)}, {vr(G + 8, 2)}')
        a.e(f'v_pk_add_f32 {vr(G + 16, 2)}, {vr(G + 16, 2)}, {vr(G + 24, 2)}')
        a.e(f'v_pk_add_f32 {vr(G, 2)}, {vr(G, 2)}, {vr(G + 16, 2)}')
        a.e(f'v_mov_b32 v{G + 2}, v{G}')
        a.e(f'v_mov_b32 v{G + 3}, v{G + 1}')
        a.e(f'v_permlane32_swap_b32 v{G}, v{G + 2}')
        a.e(f'v_permlane32_swap_b32 v{G + 1}, v{G + 3}')
        a.e(f'v_pk_add_f32 {vr(G, 2)}, {vr(G, 2)}, {vr(G + 2, 2)}')
        a.e(f'v_mul_f32 v{G}, {hx(1.0 / 2304)}, v{G}')
        a.e(f'v_mul_f32 v{G + 1}, {hx(1.0 / 2304)}, v{G + 1}')
        a.e(f'v_fma_f32 v{G + 1}, -v{G}, v{G}, v{G + 1}')
        a.e(f'v_max_f32 v{G + 1}, 0, v{G + 1}')
        a.e(f'v_add_f32 v{G + 1}, {hx(1e-5)}, v{G + 1}')
        a.e(f'v_rsq_f32 v{G + 1}, v{G + 1}')
        a.e(f'v_mul_f32 v{G}, v{G}, v{G + 1}')
        a.e(f'v_sub_f32 v{G}, 0, v{G}')
        a.e('v_lshrrev_b32 v28, 4, v1')
        a.e('v_lshlrev_b32 v28, 5, v28')
        RS = self.BF
        for i in range(8):
            a.lg(f'ds_bpermute_b32 v{RS + i}, v28, v{G + 1} offset:{4 * i}', 'r')
            a.lg(f'ds_bpermute_b32 v{RS + 8 + i}, v28, v{G} offset:{4 * i}', 'r')
        a.e('s_mul_i32 s44, s23, 147456')
        a.e(f's_add_u32 s44, s44, {Z2_OFF}')
        a.e('s_lshl_b32 s45, s22, 13')
        a.e('s_add_u32 s45, s45, s44')
        a.e('s_add_u32 s47, s45, 4096')
        a.e('s_lshl_b32 s46, s22, 10')
        a.e('s_add_u32 s46, s46, s44')
        a.e(f's_add_u32 s46, s46, {128 * 1024}')
        a.wait_lg0()
        for F in range(9):
            base = self.ACC0 + 8 * F
            pk = self.ACC0 + 4 * F
            for i in range(4):
                a.e(f'v_pk_fma_f32 {vr(base + 2 * i, 2)}, {vr(base + 2 * i, 2)}, {vr(RS + 2 * i, 2)}, {vr(RS + 8 + 2 * i, 2)}')
            for i in range(4):
                a.e(f'v_cvt_pk_bf16_f32 v{pk + i}, v{base + 2 * i}, v{base + 2 * i + 1}')
            so = 's46' if F == 8 else ('s45' if F < 4 else 's47')
            a.vm(f'buffer_store_dwordx4 {vr(pk, 4)}, v19, s[12:15], {so} offen offset:{1024 * (F % 4)} {SC}', 'st')

    def own_write(self):
        a = self.a
        a.e('s_lshl_b32 s44, s20, 13')
        a.e('v_add_u32 v27, s44, v19')
        a.e('v_add_u32 v28, s30, v19')
        a.e('s_barrier')
        for F in range(9):
            pk = self.ACC0 + 4 * F
            if F < 8:
                a.lg(f'ds_write_b128 v27, {vr(pk, 4)} offset:{1024 * F}', 'own')
            else:
                a.lg(f'ds_write_b128 v28, {vr(pk, 4)} offset:4096', 'own')

    def sp_pre(self):
        a = self.a
        a.e('v_bfe_u32 v27, v1, 2, 2')
        a.e('v_lshlrev_b32 v27, 3, v27')
        a.e('v_and_b32 v28, 3, v1')
        a.e('s_lshl_b32 s44, s23, 5')
        a.e('v_add3_u32 v27, v27, v28, s44')
        a.e('v_lshlrev_b32 v28, 1, v27')
        a.e('v_lshlrev_b32 v11, 3, v27')
        a.vm('global_load_ushort v244, v28, s[56:57]', 'pre')
        a.vm('global_load_ushort v245, v28, s[56:57] offset:8', 'pre')
        self.gate_loads(True)

    def gate_loads(self, track=False):
        a = self.a
        a.e(f's_mov_b32 s44, {GATE_OFF}')
        for e in range(2):
            t = f'buffer_load_dwordx2 {vr(246 + 2 * e, 2)}, v11, s[12:15], s44 offen offset:{32 * e} {SC}'
            a.vm(t, 'pre') if track else a.e(t)

    def sp_epilogue(self):
        a = self.a
        a.wait_vm('pre')
        poll(a, self.gate_loads, [247, 249], 27, first_done=True)
        poll(a, lambda: p3_flags(a), [2, 3, 4], 27, first_done=True)
        for e in range(2):
            a.e(f'v_sub_f32 v{246 + 2 * e}, 1.0, v{246 + 2 * e}')
            a.e(f'v_lshlrev_b32 v{244 + e}, 16, v{244 + e}')
            a.e(f'v_mul_f32 v{250 + 2 * e}, v{244 + e}, v{246 + 2 * e}')
        a.e('s_mul_i32 s44, s23, 180')
        a.e('s_lshr_b32 s45, s22, 2')
        a.e('s_mul_i32 s45, s45, 18')
        a.e('s_add_u32 s44, s44, s45')
        a.e('s_lshl_b32 s44, s44, 10')
        a.e(f's_add_u32 s44, s44, {UF_OFF + 18 * 1024}')
        a.e('s_and_b32 s45, s22, 3')
        a.e('s_lshl_b32 s46, s45, 12')
        a.e('s_add_u32 s46, s46, s44')
        a.e(f's_add_u32 s47, s46, {90 * 1024}')
        a.e('s_lshr_b32 s48, s45, 1')
        a.e('s_lshl_b32 s48, s48, 10')
        a.e('s_add_u32 s48, s48, s44')
        a.e('s_and_b32 s49, s45, 1')
        a.e('s_lshl_b32 s49, s49, 3')
        a.e('s_add_u32 s48, s48, s49')
        a.e(f's_add_u32 s48, s48, {16 * 1024}')
        a.e(f's_add_u32 s49, s48, {90 * 1024}')
        idx = 0
        for m in range(5):
            for e in range(2):
                pk = self.AF + 4 * idx
                idx += 1
                Fs = (2 * m, 2 * m + 1) if m < 4 else (8,)
                prs = [(self.ACC0 + 8 * F + 4 * e + 2 * i, self.ACC1 + 8 * F + 4 * e + 2 * i) for F in Fs for i in range(2)]
                for g, z in prs:
                    a.e(f'v_pk_fma_f32 {vr(g, 2)}, {vr(g, 2)}, {vr(246 + 2 * e, 2)}, {vr(250 + 2 * e, 2)} op_sel_hi:[1,0,0]')
                for g, z in prs:
                    a.e(f'v_pk_mul_f32 {vr(g, 2)}, {vr(g, 2)}, {vr(z, 2)}')
                for i, (g, z) in enumerate(prs):
                    a.e(f'v_cvt_pk_bf16_f32 v{pk + i}, v{g}, v{g + 1}')
                for i in range(len(prs)):
                    a.e(f'v_min_u32 v{pk + i}, -2, v{pk + i}')
                if m < 4:
                    a.vm(f'buffer_store_dwordx4 {vr(pk, 4)}, v19, s[12:15], s{46 + e} offen offset:{1024 * m} {SC}', 'st')
                else:
                    a.vm(f'buffer_store_dwordx2 {vr(pk, 2)}, v19, s[12:15], s{48 + e} offen {SC}', 'st')


def write_nonce(a):
    l = a.newlabel('NOW')
    a.e('s_cmp_lg_u32 s3, 0')
    a.e(f's_cbranch_scc1 {l}')
    a.e(f's_add_u32 s44, s26, {KV_OFF}')
    for i in range(10):
        a.e(f'buffer_store_dwordx4 v[224:227], v10, s[12:15], s44 offen {SC}')
        a.e('s_add_u32 s44, s44, 1024')
    a.e('s_memrealtime s[44:45]')
    a.e('s_waitcnt vmcnt(0) lgkmcnt(0)')
    a.e('s_barrier')
    a.e('s_cmp_lg_u32 s20, 0')
    a.e(f's_cbranch_scc1 {l}')
    a.e('v_mov_b32 v29, 0')
    a.e('s_or_b32 s44, s44, 1')
    a.e('v_mov_b32 v28, s44')
    a.e(f'global_store_dword v29, v28, s[16:17] {SC}')
    a.label(l)


KVBUF = 40960
M_OFFSET = 96.0
VSH = 32


class ATT:
    SB = 16
    OB = 48
    QF = 80
    KF = 96
    VF = 112
    PF = 128
    XF = 136
    WF = 208
    WQS = 16

    def __init__(self, a):
        self.a = a

    def setup(self, sid):
        a = self.a
        a.e(f's_load_dwordx2 s[4:5], s[0:1], {A_X}')
        a.e(f's_load_dwordx4 s[16:19], s[0:1], {A_DBG}')
        a.e(f's_load_dwordx4 s[56:59], s[0:1], {A_WOUT}')
        a.e(f's_load_dwordx2 s[36:37], s[0:1], {A_WO}')
        a.e(f's_load_dwordx2 s[60:61], s[0:1], {A_WSP}')
        a.e('v_lshrrev_b32 v1, 6, v0')
        a.e('v_readfirstlane_b32 s20, v1')
        a.e('v_and_b32 v1, 63, v0')
        a.e(f's_and_b32 s24, s{sid}, 3')
        a.e(f's_lshr_b32 s25, s{sid}, 3')
        a.e('s_lshl_b32 s21, s24, 3')
        a.e('s_and_b32 s23, s25, 7')
        a.e('s_add_u32 s21, s21, s23')
        a.e(f's_and_b32 s22, s{sid}, 4')
        a.e('s_lshr_b32 s23, s25, 3')
        a.e('s_add_u32 s22, s22, s23')
        a.e('s_lshl_b32 s23, s21, 2')
        a.e('s_add_u32 s23, s23, s20')
        a.e('s_lshr_b32 s44, s23, 1')
        a.e('s_lshl_b32 s44, s44, 5')
        a.e('s_and_b32 s45, s23, 1')
        a.e('s_lshl_b32 s45, s45, 2')
        a.e('s_add_u32 s44, s44, s45')
        a.e('v_bfe_u32 v3, v1, 2, 2')
        a.e('v_lshlrev_b32 v3, 3, v3')
        a.e('v_and_b32 v10, 3, v1')
        a.e('v_add3_u32 v3, v3, v10, s44')
        a.e('v_lshlrev_b32 v3, 3, v3')
        a.e('s_mul_i32 s26, s20, 10240')
        a.e('s_lshl_b32 s27, s25, 2')
        a.e('s_add_u32 s27, s27, s20')
        if 'nocodepf' not in ABL:
            a.e('s_getpc_b64 s[8:9]')
            a.label('K_PC')
            a.e('s_sub_u32 s8, s8, K_PC-K_GEMM')
            a.e('s_subb_u32 s9, s9, 0')
            a.e('s_mul_i32 s45, s27, 5')
            a.e('v_min_u32 v10, 4, v1')
            a.e('v_add_u32 v10, s45, v10')
            a.e('v_min_u32 v10, CODE_LINES, v10')
            a.e('v_lshlrev_b32 v238, 7, v10')
            a.e('global_load_dword v239, v238, s[8:9]')
        a.e('v_lshlrev_b32 v10, 4, v1')
        a.e('s_waitcnt lgkmcnt(0)')
        a.e('s_mov_b32 s12, s18')
        a.e('s_mov_b32 s13, s19')
        srd(a, 12, WS_SIZE)

    def nonce(self):
        a = self.a
        a.e('s_waitcnt vmcnt(0)')
        a.e('v_mov_b32 v2, 0')
        a.e(f'global_load_dword v4, v2, s[16:17] {SC}')
        a.e('s_waitcnt vmcnt(0)')
        get_nonce(a, 2, 4)

    def page_touch(self):
        a = self.a
        l = a.newlabel('PT')
        a.e('s_cmp_lg_u32 s20, 1')
        a.e(f's_cbranch_scc1 {l}')
        a.e(f's_load_dwordx2 s[44:45], s[0:1], {A_WSP}')
        a.e(f's_load_dwordx2 s[46:47], s[0:1], {A_OUT}')
        a.e('v_lshlrev_b32 v2, 19, v1')
        a.e('buffer_load_dword v255, v2, s[12:15], 0 offen')
        a.e('v_min_u32 v4, 15, v1')
        a.e('v_lshlrev_b32 v4, 19, v4')
        a.e('v_min_u32 v5, 4, v1')
        a.e('v_lshlrev_b32 v5, 19, v5')
        a.e('s_waitcnt lgkmcnt(0)')
        a.e('global_load_dword v255, v4, s[44:45]')
        a.e('global_load_dword v255, v5, s[46:47]')
        a.e('global_load_dword v255, v5, s[56:57]')
        a.label(l)

    SV = 140

    def side(self, part):
        a = self.a
        lg = a.newlabel('SJ_G')
        le = a.newlabel('SJ_E')
        a.e('s_cmp_eq_u32 s20, 3')
        a.e(f's_cbranch_scc1 {lg}')
        a.e(f's_cmp_ge_u32 s63, {0 if "nort" in ABL else 720}')
        a.e(f's_cbranch_scc1 {le}')
        self.retile(part)
        a.e(f's_branch {le}')
        a.label(lg)
        self.gate(part)
        a.label(le)
        if part == 2:
            self.mark_flag()

    def gate(self, part):
        a = self.a
        V = self.SV
        X, W = V + 8, V + 44
        if part == 0:
            a.e(f'v_lshrrev_b32 v{V}, 3, v1')
            a.e('s_lshl_b32 s44, s3, 3')
            a.e(f'v_add_u32 v{V}, s44, v{V}')
            a.e(f'v_and_b32 v{V + 1}, 7, v1')
            a.e(f'v_lshlrev_b32 v{V + 1}, 4, v{V + 1}')
            a.e(f'v_mul_u32_u24 v{V + 2}, 1152, v{V}')
            a.e(f'v_add_u32 v{V + 2}, v{V + 2}, v{V + 1}')
            for i in range(9):
                a.e(f'global_load_dwordx4 {vr(X + 4 * i, 4)}, v{V + 2}, s[4:5] offset:{128 * i}')
                a.e(f'global_load_dwordx4 {vr(W + 4 * i, 4)}, v{V + 1}, s[58:59] offset:{128 * i}')
        elif part == 1:
            A0, A1, T0, T1 = V + 4, V + 5, V + 6, V + 7
            a.e(f'v_mov_b32 v{A0}, 0')
            a.e(f'v_mov_b32 v{A1}, 0')
            for i in range(36):
                a.e(f'v_dot2c_f32_bf16 v{A0 + i % 2}, v{X + i}, v{W + i}')
            a.e('s_nop 3')
            a.e(f'v_add_f32 v{A0}, v{A0}, v{A1}')
            for m in ('quad_perm:[1,0,3,2]', 'quad_perm:[2,3,0,1]', 'row_half_mirror'):
                a.e(f'v_add_f32_dpp v{A0}, v{A0}, v{A0} {m} row_mask:0xf bank_mask:0xf')
            a.e(f'v_mul_f32 v{A0}, {hx(-1.4426950408889634)}, v{A0}')
            a.e(f'v_exp_f32 v{A0}, v{A0}')
            a.e(f'v_add_f32 v{A0}, 1.0, v{A0}')
            a.e(f'v_rcp_f32 v{A0}, v{A0}')
            a.e(f'v_mov_b32 v{A1}, s62')
            a.e(f'v_lshlrev_b32 v{V}, 3, v{V}')
            a.e(f's_mov_b32 s44, {GATE_OFF}')
            a.e('s_mov_b32 exec_lo, 0x01010101')
            a.e('s_mov_b32 exec_hi, 0x01010101')
            a.e(f'buffer_store_dwordx2 {vr(A0, 2)}, v{V}, s[12:15], s44 offen {SC}')
            a.e('s_mov_b64 exec, -1')

    def retile_setup(self):
        a = self.a
        V = self.SV
        a.e('s_mul_i32 s63, s3, 3')
        a.e('s_add_u32 s63, s63, s20')
        a.e('s_and_b32 s64, s63, 7')
        a.e('s_lshr_b32 s65, s63, 3')
        a.e('s_cmp_lt_u32 s65, 18')
        a.e('s_cselect_b32 s40, s36, s56')
        a.e('s_cselect_b32 s41, s37, s57')
        a.e(f's_mov_b32 s42, {2304 * 1152}')
        a.e(f's_cselect_b32 s42, {576 * 1152}, s42')
        a.e('s_mov_b32 s43, 0x00020000')
        a.e('s_sub_u32 s44, s65, 18')
        a.e('s_mul_i32 s45, s44, 57')
        a.e('s_lshr_b32 s45, s45, 10')
        a.e('s_mul_i32 s46, s45, 18')
        a.e('s_sub_u32 s44, s44, s46')
        a.e('s_lshl_b32 s46, s45, 9')
        a.e('s_lshl_b32 s47, s45, 6')
        a.e(f's_add_u32 s47, s47, {2048 - 512}')
        a.e('s_cmp_lt_u32 s44, 16')
        a.e('s_cselect_b32 s46, s46, s47')
        a.e('s_lshl_b32 s44, s44, 5')
        a.e('s_add_u32 s44, s44, s46')
        a.e('s_mov_b32 s45, 4')
        a.e('s_mov_b32 s46, 8')
        a.e('s_mov_b32 s47, 16')
        a.e('s_mov_b32 s48, 2')
        a.e('s_sub_u32 s49, s65, 16')
        a.e('s_mul_i32 s49, s49, 288')
        a.e('s_add_u32 s49, s49, 16')
        a.e('s_cmp_lt_u32 s65, 18')
        a.e('s_cselect_b32 s44, s49, s44')
        a.e('s_cselect_b32 s45, 72, s45')
        a.e('s_cselect_b32 s46, 144, s46')
        a.e('s_cselect_b32 s47, 36, s47')
        a.e('s_cselect_b32 s48, 18, s48')
        a.e('s_mul_i32 s49, s65, 36')
        a.e('s_cmp_lt_u32 s65, 16')
        a.e('s_cselect_b32 s44, s49, s44')
        a.e('s_cselect_b32 s45, 18, s45')
        a.e('s_cselect_b32 s46, 4, s46')
        a.e('s_cselect_b32 s47, 8, s47')
        a.e('s_cselect_b32 s48, 2, s48')
        for r in (44, 45, 46, 47):
            a.e(f's_mul_i32 s{r}, s{r}, 1152')
        a.e('s_mul_i32 s49, s64, 144')
        a.e('s_add_u32 s66, s44, s49')
        a.e('s_add_u32 s67, s66, s47')
        for i in range(2):
            a.e(f's_add_u32 s{68 + i}, s{66 + i}, s45')
        for i in range(4):
            a.e(f's_add_u32 s{70 + i}, s{66 + i}, s46')
        a.e(f'v_lshrrev_b32 v{V}, 5, v1')
        a.e(f'v_mul_lo_u32 v{V}, v{V}, s48')
        a.e('v_bfe_u32 v5, v1, 4, 1')
        a.e(f'v_add_u32 v{V}, v{V}, v5')
        a.e(f'v_mul_u32_u24 v{V}, 1152, v{V}')
        a.e('v_and_b32 v5, 15, v1')
        a.e('v_min_u32 v5, 8, v5')
        a.e(f'v_lshl_add_u32 v{V}, v5, 4, v{V}')
        a.e('v_lshrrev_b32 v5, 4, v1')
        a.e('v_bfe_u32 v6, v1, 2, 2')
        a.e('v_lshlrev_b32 v7, 11, v5')
        a.e('v_lshl_add_u32 v7, v6, 8, v7')
        a.e(f's_add_u32 s44, s26, {KVBUF}')
        a.e('v_add_u32 v7, s44, v7')
        a.e('v_and_b32 v6, 3, v1')
        a.e(f'v_lshl_add_u32 v{V + 2}, v6, 3, v7')
        a.e(f'v_lshl_add_u32 v{V + 1}, v6, 4, v7')
        a.e('v_and_b32 v6, 7, v1')
        a.e('v_lshl_add_u32 v5, v5, 3, v6')
        a.e('v_lshlrev_b32 v5, 4, v5')
        a.e(f'v_add_u32 v{V + 3}, 4096, v5')

    def retile(self, part):
        a = self.a
        V = self.SV
        F = V + 8
        if part == 0:
            for i in range(8):
                a.e(f's_add_u32 m0, s26, {KVBUF + 1024 * i}')
                a.e(f'buffer_load_dwordx4 v{V}, s[40:43], s{66 + i} offen lds')
        elif part == 1:
            for nt in range(5):
                for j in range(2):
                    if nt < 4:
                        a.e(f'ds_read_b64_tr_b16 {vr(F + 4 * nt + 2 * j, 2)}, v{V + 1} offset:{64 * (nt // 2) + 8 * (nt % 2) + 1024 * j}')
                    else:
                        a.e(f'ds_read_b64_tr_b16 {vr(F + 4 * nt + 2 * j, 2)}, v{V + 2} offset:{128 + 1024 * j}')
            a.e('s_mul_i32 s44, s64, 90')
            a.e('s_add_u32 s44, s44, s65')
            a.e('s_mul_i32 s44, s44, 4608')
            a.e(f's_add_u32 s44, s44, {W3_OFF}')
            a.e('s_waitcnt lgkmcnt(0)')
            for nt in range(4):
                a.e(f'buffer_store_dwordx4 {vr(F + 4 * nt, 4)}, v10, s[12:15], s44 offen offset:{1024 * nt} {SC}')
            a.e('s_mov_b32 exec_lo, 0x00ff00ff')
            a.e('s_mov_b32 exec_hi, 0x00ff00ff')
            a.e(f'buffer_store_dwordx4 {vr(F + 16, 4)}, v{V + 3}, s[12:15], s44 offen {SC}')
            a.e('s_mov_b64 exec, -1')
        else:
            a.e('s_lshl_b32 s44, s64, 7')
            a.e('s_add_u32 s44, s44, s65')
            a.e('s_lshl_b32 s44, s44, 2')
            a.e(f's_add_u32 s44, s44, {FW3_OFF}')
            set_flag(a, 44, V + 4)

    def issue_kv(self, buf_s=None, buf=None, flags=''):
        a = self.a
        for g in range(3):
            if buf_s is not None:
                a.e(f's_add_u32 m0, s{buf_s}, {4096 * g}')
            else:
                a.e(f's_add_u32 m0, s31, {buf * KVBUF + 4096 * g}')
            for i in range(4 if g < 2 else 2):
                a.vm(f'buffer_load_dwordx4 v15, s[12:15], s30 offen offset:{1024 * i} {flags} lds', 'kv')
            a.e('s_add_u32 s30, s30, 4096')
        a.e(f's_add_u32 s30, s30, {16 * KV_TILE - 3 * 4096}')

    def q_phase(self):
        a = self.a
        a.e('s_mov_b32 s31, s26')
        a.e('v_add_u32 v15, s31, v10')
        a.e(f's_mov_b32 s30, {KV_OFF}')
        l = a.newlabel('KVR')
        a.e('s_cmp_lg_u32 s20, 0')
        a.e(f's_cbranch_scc1 {l}')
        self.nonce()
        a.e('v_mov_b32 v4, s62')
        a.e('ds_write_b32 v2, v4')
        a.e('s_waitcnt lgkmcnt(0)')
        a.label(l)
        a.e('s_barrier')
        a.e('v_mov_b32 v2, 0')
        a.e('ds_read_b32 v40, v2')
        a.e('s_lshl_b32 s48, s23, 3')
        a.e('s_add_u32 s48, s48, s22')
        a.e('s_mul_i32 s48, s48, 2304')
        a.e(f's_add_u32 s48, s48, {QF_OFF}')
        for i in range(2):
            a.e(f'buffer_store_dwordx4 v[224:227], v10, s[12:15], s48 offen offset:{1024 * i} {SC}')
        a.e(f'buffer_store_dword v224, v228, s[12:15], s48 offen offset:2048 {SC}')
        a.e('s_lshl_b32 s44, s3, 5')
        a.e('s_add_u32 s44, s44, s20')
        a.e('s_lshl_b32 s44, s44, 2')
        a.e(f's_add_u32 s44, s44, {GO_OFF}')
        a.e('v_and_b32 v11, 31, v1')
        a.e('v_lshlrev_b32 v11, 2, v11')
        a.e('v_add_u32 v11, 1024, v11')
        a.e('s_waitcnt vmcnt(0) lgkmcnt(0)')
        a.e('v_readfirstlane_b32 s62, v40')
        set_flag(a, 44, 42)
        for p in range(2):
            for i in (5, 6, 7):
                a.e(f'v_mov_b32 v{self.QF + 8 * p + i}, 0')
            a.e(f'v_mov_b32 v{self.KF + 8 * p + 5}, 0x3f803f80')
            a.e(f'v_mov_b32 v{self.KF + 8 * p + 6}, 0x3f803f80')
            a.e(f'v_mov_b32 v{self.KF + 8 * p + 7}, 0')
        a.e('v_lshrrev_b32 v2, 5, v1')
        a.e('v_lshlrev_b32 v2, 2, v2')
        a.e('v_bfe_u32 v4, v1, 3, 1')
        a.e('v_lshl_add_u32 v2, v4, 1, v2')
        a.e('v_mul_u32_u24 v12, 168, v2')
        a.e('v_add_u32 v12, 1152, v12')
        a.e('v_bfe_u32 v4, v1, 4, 1')
        a.e('v_bfe_u32 v13, v1, 2, 1')
        a.e('v_mul_u32_u24 v14, 168, v4')
        a.e('v_add_u32 v14, v14, v12')
        a.e('v_and_b32 v8, 1, v1')
        a.e('v_lshl_add_u32 v8, v8, 1, v13')
        a.e('v_lshl_add_u32 v8, v8, 3, v14')
        a.e('v_add_u32 v8, 128, v8')
        a.e('v_add_u32 v9, 160, v14')
        a.e('v_and_b32 v2, 2, v1')
        a.e('v_cmp_eq_u32 vcc, 0, v2')
        a.e(f'v_cndmask_b32 v{self.TB}, v9, v8, vcc')
        a.e(f'v_cndmask_b32 v{self.TB + 1}, v8, v9, vcc')
        a.e('v_lshl_add_u32 v2, v4, 1, v13')
        a.e('v_lshl_add_u32 v12, v2, 5, v12')
        a.e('v_and_b32 v2, 3, v1')
        a.e('v_lshl_add_u32 v12, v2, 3, v12')
        a.e('v_mul_u32_u24 v14, 0xaaaa, v13')
        a.e('v_add_u32 v14, 0x4444, v14')
        a.e('v_mul_u32_u24 v13, 0xaaaa, v4')
        a.e('v_add_u32 v13, 0x4444, v13')
        self.point(KVBUF)
        a.e('s_and_b32 s49, s3, 7')
        a.e('s_lshl_b32 s49, s49, 9')
        a.e(f's_add_u32 s49, s49, {KVF_OFF}')
        a.e('v_min_u32 v230, 47, v1')
        a.e('v_lshlrev_b32 v230, 3, v230')
        lq = a.newlabel('QW')
        lo = a.newlabel('QOK')
        lh = a.newlabel('QH')
        a.e(f's_mov_b32 s51, {SPIN_MAX}')
        a.label(lh)
        a.e(f's_sleep {opt("qsl", [12])[0]}')
        a.e(f'buffer_load_dword v2, v11, s[12:15], s48 offen offset:1152 {SCL}')
        a.e('s_sub_u32 s51, s51, 1')
        a.e('s_waitcnt vmcnt(0)')
        a.e('v_cmp_eq_u32 vcc, -1, v2')
        a.e('s_cmp_eq_u32 s51, 1')
        a.e(f's_cbranch_scc1 {lq}')
        a.e(f's_cbranch_vccnz {lh}')
        a.e('s_setprio 3')
        a.label(lq)
        for p in range(2):
            a.e(f'buffer_load_dwordx4 {vr(self.QF + 8 * p, 4)}, v10, s[12:15], s48 offen offset:{1152 * p} {SCL}')
            a.e(f'buffer_load_dword v{self.PF + p}, v11, s[12:15], s48 offen offset:{1152 * p} {SCL}')
        a.e('s_waitcnt vmcnt(0)')
        a.e(f'v_max_u32 v2, v{self.PF}, v{self.PF + 1}')
        for r in (0, 2, 8, 10):
            a.e(f'v_max3_u32 v2, v{self.QF + r}, v{self.QF + r + 1}, v2')
        a.e('v_cmp_eq_u32 vcc, -1, v2')
        a.e(f's_cbranch_vccz {lo}')
        a.e('s_sleep 2')
        a.e('s_sub_u32 s51, s51, 1')
        a.e('s_cmp_lg_u32 s51, 0')
        a.e(f's_cbranch_scc1 {lq}')
        a.label(lo)
        stamp(a, 6)
        lk = a.newlabel('KW')
        lo = a.newlabel('KOK')
        a.e(f'v_add_u32 v4, {KVBUF}, v15')
        a.e(f's_mov_b32 s51, {SPIN_MAX}')
        a.label(lk)
        a.e(f's_mov_b32 s30, {KV_OFF}')
        self.issue_kv(buf=1, flags=SCL)
        a.e('s_waitcnt vmcnt(0)')
        for i in range(10):
            a.e(f'ds_read_b128 {vr(16 + 4 * i, 4)}, v4 offset:{1024 * i}')
        a.e('s_waitcnt lgkmcnt(0)')
        a.e('v_max_u32 v2, v16, v17')
        a.e('v_max_u32 v8, v18, v19')
        for i in range(20, 56, 4):
            a.e(f'v_max3_u32 v2, v{i}, v{i + 1}, v2')
            a.e(f'v_max3_u32 v8, v{i + 2}, v{i + 3}, v8')
        a.e('v_max_u32 v2, v2, v8')
        a.e('v_cmp_eq_u32 vcc, -1, v2')
        a.e(f's_cbranch_vccz {lo}')
        a.e('s_sleep 8')
        a.e('s_sub_u32 s51, s51, 1')
        a.e('s_cmp_lg_u32 s51, 0')
        a.e(f's_cbranch_scc1 {lk}')
        a.label(lo)
        a.vmq = []
        a.e('v_cmp_gt_u32 vcc, 32, v1')
        for p in range(2):
            a.e(f'v_cndmask_b32 v{self.QF + 8 * p + 4}, 0, v{self.PF + p}, vcc')

    def kvf_load(self):
        self.a.e(f'buffer_load_dwordx2 {vr(self.XF + 2, 2)}, v230, s[12:15], s49 offen {SC}')

    def readK(self, j):
        a = self.a
        b = self.KF + 8 * (j % 2)
        off = (j % 16) * KV_TILE
        a.lg(f'ds_read_b128 {vr(b, 4)}, v5 offset:{off}', ('K', j))
        a.lg(f'ds_read_b32 v{b + 4}, v6 offset:{off}', ('K', j))

    def readV(self, j, m):
        a = self.a
        b = self.VF + 8 * (j % 2)
        off = (j % 16) * KV_TILE
        for jj in range(2):
            if m == 0:
                a.lg(f'ds_read_b64_tr_b16 {vr(b + 2 * jj, 2)}, v7 offset:{off + jj * 168}', ('V', j))
            else:
                a.lg(f'ds_read_b64_tr_b16 {vr(b + 4 + 2 * jj, 2)}, v{self.TB + 2 + jj} offset:{off}', ('V', j))

    def S(self, n, part):
        j, qt = n // 2, n % 2
        d = vr(self.SB + 16 * (n % 2), 16)
        k = self.KF + 8 * (j % 2) + 4 * part
        q = self.QF + 8 * qt + 4 * part
        self.a.e(f'v_mfma_f32_32x32x16_bf16 {d}, {vr(k, 4)}, {vr(q, 4)}, {"0" if part == 0 else d}')

    def PV(self, n, m):
        j, qt = n // 2, n % 2
        p = vr(self.P2 + 8 * qt, 8)
        v = vr(self.VF + 8 * (j % 2) + 4 * m, 4)
        if m == 0:
            self.a.e(f'v_smfmac_f32_32x32x32_bf16 {vr(self.OB + 16 * qt, 16)}, {v}, {p}, v13')
        else:
            self.a.e(f'v_smfmac_f32_16x16x64_bf16 {vr(self.PF + 4 * qt, 4)}, {v}, {p}, v14')

    def set_m(self, qt, vm, add):
        a = self.a
        q = self.QF + 8 * qt
        a.e(f'v_sub_f32 v2, {hx(-add)}, v{vm}')
        a.e('v_and_b32 v4, 0xffff0000, v2')
        a.e('v_sub_f32 v2, v2, v4')
        a.e(f'v_and_b32 v{self.TB + 4}, 0xffff0000, v2')
        a.e(f'v_sub_f32 v2, v2, v{self.TB + 4}')
        a.e('v_lshrrev_b32 v4, 16, v4')
        a.e(f'v_or_b32 v4, v4, v{self.TB + 4}')
        a.e('v_lshrrev_b32 v2, 16, v2')
        a.e('v_cmp_gt_u32 vcc, 32, v1')
        a.e(f'v_cndmask_b32 v{q + 5}, 0, v4, vcc')
        a.e(f'v_cndmask_b32 v{q + 6}, 0, v2, vcc')

    TB = 232
    P2 = 240

    def point(self, off):
        a = self.a
        for i in range(3):
            a.e(f'v_add_u32 v{5 + i}, {off}, v{10 + i}')
        for i in range(2):
            a.e(f'v_add_u32 v{self.TB + 2 + i}, {off}, v{self.TB + i}')

    def max16(self, b, dst, first):
        a = self.a
        if first:
            a.e(f'v_max3_f32 v{dst}, v{b}, v{b + 1}, v{b + 2}')
            a.e(f'v_max_f32 v{dst}, v{dst}, v{b + 3}')
            r = range(4, 16, 2)
        else:
            r = range(0, 16, 2)
        for i in r:
            a.e(f'v_max3_f32 v{dst}, v{b + i}, v{b + i + 1}, v{dst}')

    def halves_max(self, r):
        a = self.a
        a.e(f'v_mov_b32 v2, v{r}')
        a.e(f'v_permlane32_swap_b32 v{r}, v2')
        a.e(f'v_max_f32 v{r}, v{r}, v2')

    def main(self, flags=''):
        a = self.a
        L_PASS = a.newlabel('ATT_PASS')
        L_LOOP = a.newlabel('ATT_LOOP')
        L_NOKV = a.newlabel('ATT_NOKV')
        L_FIN = a.newlabel('ATT_FIN')
        a.e('s_mov_b32 s33, 0')
        a.e('s_mov_b32 s39, 4')
        a.e('s_barrier')
        self.readK(0)
        a.wait_lg0()
        for qt in range(2):
            self.S(qt, 0)
            self.S(qt, 1)
        for qt in range(2):
            self.max16(self.SB + 16 * qt, 8 + qt, True)
            self.halves_max(8 + qt)
            self.set_m(qt, 8 + qt, float(opt('moff', [M_OFFSET])[0]))
        a.label(L_PASS)
        self.readK(0)
        self.readK(1)
        self.readV(0, 0)
        self.readV(0, 1)
        for i in range(32):
            a.e(f'v_mov_b32 v{self.OB + i}, 0')
        for i in range(8):
            a.e(f'v_mov_b32 v{self.PF + i}, 0')
            a.e(f'v_mov_b32 v{self.P2 + 8 + i}, 0')
            a.e(f'v_mov_b32 v{self.VF + 8 + i}, 0')
        a.e('s_mov_b32 s34, 0')
        a.e(f's_add_u32 s35, s31, {KVBUF}')
        a.e(f's_mov_b32 s37, {-KVBUF & 0xffffffff}')
        a.wait_lg0()
        self.S(0, 0)
        self.S(0, 1)
        a.e('s_nop 7')
        a.label(L_LOOP)
        a.wait_lg0()
        if opt('gate'):
            lng = a.newlabel('ATT_NG')
            a.e(f's_cmp_lg_u32 s34, {opt("gate")[0]}')
            a.e(f's_cbranch_scc1 {lng}')
            a.e('s_lshl_b32 s44, s3, 7')
            a.e(f's_add_u32 s44, s44, {PROG_OFF}')
            a.e('v_mov_b32 v2, 0')
            poll(a, lambda: a.e(f'buffer_load_dword v4, v2, s[12:15], s44 offen {SC}'), [4], 8, sleep=8)
            if 'gateprio' in ABL:
                a.e('s_setprio 1')
            a.label(lng)
        if 'attfine' in ABL:
            for c, idx in ((1, 4), (2, 5), (3, 1)):
                lq = a.newlabel('ATT_Q')
                a.e(f's_cmp_lg_u32 s34, {c}')
                a.e(f's_cbranch_scc1 {lq}')
                stamp(a, idx)
                a.label(lq)
        if True:
            lp = a.newlabel('ATT_P')
            a.e(f's_cmp_lg_u32 s34, {opt("aprio", [0])[0]}')
            a.e(f's_cbranch_scc1 {lp}')
            a.e('s_setprio 1')
            a.label(lp)
        for n in range(32):
            j, qt = n // 2, n % 2
            sb = self.SB + 16 * (n % 2)
            if n == 29:
                a.e('s_waitcnt vmcnt(0) lgkmcnt(0)')
                a.vmq = []
                a.lgq = []
                a.e('s_barrier')
                for r in (5, 6, 7, self.TB + 2, self.TB + 3):
                    a.e(f'v_add_u32 v{r}, s37, v{r}')
                if 'novp' not in ABL:
                    a.e('s_setprio 3')
                a.e('s_cmp_ge_u32 s34, 2')
                a.e(f's_cbranch_scc1 {L_NOKV}')
                ls0 = a.newlabel('ATT_S0')
                a.e('s_cmp_eq_u32 s39, 0')
                a.e(f's_cbranch_scc1 {ls0}')
                self.issue_kv(buf_s=35, flags=flags)
                a.e(f's_branch {L_NOKV}')
                a.label(ls0)
                self.side(0)
                a.e('s_mov_b32 s39, 1')
                a.label(L_NOKV)
                self.gate_load()
                if 'retouch' in ABL:
                    a.e('global_load_dword v239, v238, s[8:9]')
                if 'novp' not in ABL:
                    a.e('s_setprio 1')
                a.e('s_add_u32 s35, s35, s37')
                a.e('s_sub_u32 s37, 0, s37')
            SJ = opt('sj', [8, 1, 12, 16, 20, 26])
            if n in opt('mp', [9, 13, 17, 21, 25]):
                lm = a.newlabel('ATT_M')
                a.e('s_cmp_ge_u32 s54, s55')
                a.e(f's_cbranch_scc1 {lm}')
                if 'novp' not in ABL:
                    a.e('s_setprio 3')
                self.mark_part(3, 4)
                if 'novp' not in ABL:
                    a.e('s_setprio 1')
                a.label(lm)
            C1 = opt('c1', [4, 10])
            if n in C1:
                lc = a.newlabel('ATT_C1')
                a.e('s_cmp_lg_u32 s39, 4')
                a.e(f's_cbranch_scc1 {lc}')
                a.e('s_setprio 3')
                if n == C1[0]:
                    self.kvf_load()
                else:
                    a.e('s_waitcnt vmcnt(0)')
                    poll(a, self.kvf_load, [self.XF + 2, self.XF + 3], 236, first_done=True, sleep=6)
                    self.issue_kv(buf=0, flags=flags)
                    self.mark_part(0, 3)
                    a.e('s_mov_b32 s39, 0')
                a.e('s_setprio 1')
                a.label(lc)
            if n == SJ[0]:
                ls1 = a.newlabel('ATT_S1')
                a.e('s_cmp_lg_u32 s39, 1')
                a.e(f's_cbranch_scc1 {ls1}')
                a.e('s_waitcnt vmcnt(0)')
                if 'novp' not in ABL:
                    a.e('s_setprio 3')
                self.side(1)
                self.issue_kv(buf=1, flags=flags)
                a.e('s_mov_b32 s39, 2')
                if 'novp' not in ABL:
                    a.e('s_setprio 1')
                a.label(ls1)
            if n == SJ[5]:
                ls2 = a.newlabel('ATT_S2')
                a.e('s_cmp_lg_u32 s39, 2')
                a.e(f's_cbranch_scc1 {ls2}')
                a.e('s_waitcnt vmcnt(0)')
                if 'novp' not in ABL:
                    a.e('s_setprio 3')
                self.side(2)
                a.e('s_mov_b32 s39, 3')
                if 'novp' not in ABL:
                    a.e('s_setprio 1')
                a.label(ls2)
            if qt == 1:
                a.wait_lg(('K', j + 1))
            self.S(n + 1, 0)
            pf = self.P2 + 8 * qt
            for i in range(0, 4):
                a.e(f'v_exp_f32 v{sb + i}, v{sb + i}')
            if qt == 1:
                a.wait_lg(('V', j))
            self.PV(n - 1, 0)
            if qt == 0:
                self.readV(j + 1, 0)
            else:
                self.readK(j + 2)
            for i in range(4, 8):
                a.e(f'v_exp_f32 v{sb + i}, v{sb + i}')
            self.S(n + 1, 1)
            for i in range(4):
                a.e(f'v_cvt_pk_bf16_f32 v{pf + i}, v{sb + 2 * i}, v{sb + 2 * i + 1}')
            for i in range(8, 12):
                a.e(f'v_exp_f32 v{sb + i}, v{sb + i}')
            self.PV(n - 1, 1)
            if qt == 0:
                self.readV(j + 1, 1)
            for i in range(12, 16):
                a.e(f'v_exp_f32 v{sb + i}, v{sb + i}')
            for i in range(4, 8):
                a.e(f'v_cvt_pk_bf16_f32 v{pf + i}, v{sb + 2 * i}, v{sb + 2 * i + 1}')
        a.e('s_add_u32 s34, s34, 1')
        a.e('s_cmp_lt_u32 s34, 4')
        a.e(f's_cbranch_scc1 {L_LOOP}')
        self.PV(31, 0)
        self.PV(31, 1)
        a.wait_all()
        a.e('s_cmp_lg_u32 s33, 0')
        a.e(f's_cbranch_scc1 {L_FIN}')
        regs = [self.OB + i for i in range(32)] + [self.PF + i for i in (0, 1, 2, 4, 5, 6)]
        a.e(f'v_max_f32_e64 v2, |v{regs[0]}|, |v{regs[1]}|')
        for i in range(2, len(regs), 2):
            a.e(f'v_max3_f32 v2, |v{regs[i]}|, |v{regs[i + 1]}|, v2')
        a.e(f's_mov_b32 s44, {hx(2.0 ** 110)}')
        a.e('v_cmp_ngt_f32 vcc, s44, v2')
        for qt in range(2):
            a.e(f'v_mov_b32 v{8 + qt}, v{self.PF + 4 * qt + 2}')
            a.e(f'v_mov_b32 v{self.TB + 4 + qt}, v{self.PF + 4 * qt + 2}')
        for qt in range(2):
            a.e(f'v_permlane16_swap_b32 v{8 + qt}, v{self.TB + 4 + qt}')
        for qt in range(2):
            a.e(f'v_add_f32 v{8 + qt}, v{8 + qt}, v{self.TB + 4 + qt}')
        a.e(f's_mov_b32 s44, {hx(2.0 ** (VSH - M_OFFSET - 4))}')
        a.e('v_cmp_nle_f32 s[46:47], s44, v8')
        a.e('s_or_b64 vcc, vcc, s[46:47]')
        a.e('v_cmp_nle_f32 s[46:47], s44, v9')
        a.e('s_or_b64 vcc, vcc, s[46:47]')
        a.e('s_cmp_lg_u64 vcc, 0')
        a.e('s_cselect_b32 s44, 1, 0')
        a.e('v_mov_b32 v2, s44')
        a.e('s_lshl_b32 s45, s20, 2')
        a.e(f's_add_u32 s45, s45, {16 * KV_TILE}')
        a.e('v_mov_b32 v4, s45')
        a.e('ds_write_b32 v4, v2')
        a.e(f'v_mov_b32 v4, {16 * KV_TILE}')
        a.e('s_waitcnt lgkmcnt(0)')
        a.e('s_barrier')
        a.e(f'ds_read_b128 {vr(self.P2, 4)}, v4')
        a.e('s_waitcnt lgkmcnt(0)')
        a.e(f'v_or3_b32 v2, v{self.P2}, v{self.P2 + 1}, v{self.P2 + 2}')
        a.e(f'v_or_b32 v2, v2, v{self.P2 + 3}')
        a.e('v_readfirstlane_b32 s44, v2')
        a.e('s_cmp_eq_u32 s44, 0')
        a.e(f's_cbranch_scc1 {L_FIN}')
        L_MC = a.newlabel('ATT_MC')
        L_MT = a.newlabel('ATT_MT')
        a.e('s_mov_b32 s33, 1')
        for p in range(2):
            a.e(f'v_mov_b32 v{self.QF + 8 * p + 5}, 0')
            a.e(f'v_mov_b32 v{self.QF + 8 * p + 6}, 0')
            a.e(f'v_mov_b32 v{8 + p}, 0xff7fffff')
        a.e(f's_mov_b32 s30, {KV_OFF}')
        a.e('s_mov_b32 s34, 0')
        a.label(L_MC)
        a.e('s_barrier')
        self.issue_kv(buf=0, flags=flags)
        a.e('v_mov_b32 v5, v10')
        a.e('v_mov_b32 v6, v11')
        a.e('s_mov_b32 s36, 0')
        a.wait_vm0()
        a.e('s_barrier')
        a.label(L_MT)
        self.readK(0)
        a.wait_lg0()
        for qt in range(2):
            self.S(qt, 0)
            self.S(qt, 1)
        a.e(f'v_add_u32 v5, {KV_TILE}, v5')
        a.e(f'v_add_u32 v6, {KV_TILE}, v6')
        for qt in range(2):
            self.max16(self.SB + 16 * qt, 8 + qt, False)
        a.e('s_add_u32 s36, s36, 1')
        a.e('s_cmp_lt_u32 s36, 16')
        a.e(f's_cbranch_scc1 {L_MT}')
        a.e('s_add_u32 s34, s34, 1')
        a.e('s_cmp_lt_u32 s34, 4')
        a.e(f's_cbranch_scc1 {L_MC}')
        for qt in range(2):
            self.halves_max(8 + qt)
            self.set_m(qt, 8 + qt, 0.0)
        a.e('s_barrier')
        a.e(f's_mov_b32 s30, {KV_OFF}')
        self.issue_kv(buf=1, flags=flags)
        self.issue_kv(buf=0, flags=flags)
        self.point(KVBUF)
        a.e('s_waitcnt vmcnt(10)')
        a.e('s_barrier')
        a.e(f's_branch {L_PASS}')
        a.label(L_FIN)
        a.vmq = []
        a.lgq = []

    def mark(self):
        a = self.a
        a.e('s_mul_i32 s44, s23, 90')
        a.e('s_lshl_b32 s52, s22, 1')
        a.e('s_add_u32 s52, s52, s44')
        a.e('s_lshl_b32 s52, s52, 10')
        a.e(f's_add_u32 s52, s52, {UF_OFF}')
        a.e('s_lshr_b32 s53, s22, 2')
        a.e('s_add_u32 s53, s53, s44')
        a.e('s_lshl_b32 s53, s53, 10')
        a.e('s_and_b32 s47, s22, 3')
        a.e('s_lshl_b32 s47, s47, 8')
        a.e('s_add_u32 s53, s53, s47')
        a.e(f's_add_u32 s53, s53, {UF_OFF + 16 * 1024}')
        a.e('s_mul_i32 s54, s22, 9')
        a.e('s_add_u32 s54, s54, s44')
        a.e('s_lshl_b32 s54, s54, 10')
        a.e(f's_add_u32 s54, s54, {UF_OFF + 18 * 1024}')
        a.e(f's_add_u32 s55, s54, {9 * 1024}')
        for i in range(4):
            a.e(f'v_mov_b32 v{224 + i}, -1')
        a.e('v_lshlrev_b32 v228, 2, v1')
        if opt('tp'):
            a.e('s_lshl_b32 s44, s24, 8')
            a.e('s_and_b32 s45, s22, 4')
            a.e('s_lshl_b32 s45, s45, 5')
            a.e('s_add_u32 s44, s44, s45')
            a.e('s_add_u32 s44, s44, s27')
            a.e('s_lshl_b32 s44, s44, 13')
            a.e(f'v_min_u32 v229, {64 // len(opt("tp")) - 1}, v1')
            a.e('v_lshlrev_b32 v229, 7, v229')
            a.e('v_add_u32 v229, s44, v229')

    def mark_part(self, lo, hi):
        a = self.a
        if 'nomark' in ABL:
            return
        for i in range(lo, hi):
            if i < 2:
                a.e(f'buffer_store_dwordx4 v[224:227], v10, s[12:15], s52 offen offset:{1024 * i} {SC}')
            elif i == 2:
                a.e(f'buffer_store_dword v224, v228, s[12:15], s53 offen {SC}')
            else:
                a.e(f'buffer_store_dwordx4 v[224:227], v10, s[12:15], s54 offen {SC}')
                a.e('s_add_u32 s54, s54, 1024')

    def mark_flag(self):
        a = self.a
        a.e('s_lshl_b32 s44, s23, 3')
        a.e('s_add_u32 s44, s44, s22')
        a.e('s_lshl_b32 s44, s44, 2')
        a.e(f's_add_u32 s44, s44, {PZ_OFF}')
        set_flag(a, 44, 236)

    def epilogue(self, flags=''):
        a = self.a
        a.e('v_and_b32 v4, 15, v1')
        a.e('v_lshlrev_b32 v4, 4, v4')
        a.e('v_lshrrev_b32 v5, 5, v1')
        a.e('v_lshl_add_u32 v4, v5, 2, v4')
        poll(a, self.gate_load, [self.XF + 1], 8, first_done=True)
        a.e('v_and_b32 v5, 16, v1')
        a.e('v_cmp_eq_u32 vcc, 0, v5')
        for qt in range(2):
            o = self.OB + 16 * qt
            t = self.PF + 4 * qt
            c = self.P2
            for i in range(3):
                a.e(f'v_mov_b32 v{c + i}, v{t + i}')
            for i in range(3):
                a.e(f'v_permlane16_swap_b32 v{t + i}, v{c + i}')
            for i in range(3):
                a.e(f'v_add_f32 v{t + i}, v{t + i}, v{c + i}')
            a.e(f'v_rcp_f32 v6, v{t + 2}')
            a.e(f'v_mul_f32 v6, v6, v{self.XF}')
            a.e(f'v_pk_mul_f32 {vr(t, 2)}, {vr(t, 2)}, v[6:7] op_sel_hi:[1,0]')
            a.e('v_mov_b32 v7, v6')
            a.e('v_permlane32_swap_b32 v6, v7')
            a.e('v_cndmask_b32 v6, v7, v6, vcc')
            for i in range(4):
                a.e(f'v_pk_add_f32 {vr(o + 2 * i, 2)}, {vr(o + 2 * i, 2)}, {vr(o + 8 + 2 * i, 2)}')
            for i in range(4):
                a.e(f'v_pk_mul_f32 {vr(o + 2 * i, 2)}, {vr(o + 2 * i, 2)}, v[6:7] op_sel_hi:[1,0]')
            pk = self.SB + 8 * qt
            for i in range(4):
                a.e(f'v_cvt_pk_bf16_f32 v{pk + i}, v{o + 2 * i}, v{o + 2 * i + 1}')
            a.e(f'v_cvt_pk_bf16_f32 v{pk + 4}, v{t}, v{t + 1}')
            for i in range(5):
                a.e(f'v_min_u32 v{pk + i}, -2, v{pk + i}')
            a.e(f'buffer_store_dwordx4 {vr(pk, 4)}, v10, s[12:15], s52 offen offset:{1024 * qt} {flags}')
            a.e('s_mov_b32 exec_lo, 0xffff')
            a.e('s_mov_b32 exec_hi, 0xffff')
            a.e(f'buffer_store_dword v{pk + 4}, v4, s[12:15], s53 offen offset:{8 * qt} {flags}')
            a.e('s_mov_b64 exec, -1')

    def gate_load(self):
        a = self.a
        a.e(f's_mov_b32 s38, {GATE_OFF}')
        a.e(f'buffer_load_dwordx2 {vr(self.XF, 2)}, v3, s[12:15], s38 offen {SC}')


def p3_pre(a):
    a.e('s_and_b32 s44, s22, 1')
    a.e('s_lshl_b32 s66, s21, 1')
    a.e('s_add_u32 s66, s66, s44')
    a.e('s_lshr_b32 s67, s22, 1')
    a.e('s_lshl_b32 s68, s21, 8')
    a.e(f's_add_u32 s68, s68, {PZ_OFF}')
    a.e('s_lshl_b32 s69, s67, 9')
    a.e(f's_add_u32 s69, s69, {FW3_OFF}')
    a.e('v_lshlrev_b32 v7, 2, v1')
    a.e('v_min_u32 v8, 44, v1')
    a.e('v_lshlrev_b32 v8, 3, v8')
    p3_flags(a)
    a.vmq += ['pre', 'pre']


def p3_flags(a):
    a.e(f'buffer_load_dword v4, v7, s[12:15], s68 offen {SC}')
    a.e(f'buffer_load_dwordx2 v[2:3], v8, s[12:15], s69 offen {SC}')


def p3(a):
    ACC = 16
    FR = 112
    HF = 240
    DEPTH = 4
    NS = 23
    a.e('s_mul_i32 s44, s20, 18')
    a.e('s_add_u32 s44, s44, 18')
    a.e('s_mul_i32 s45, s20, 5')
    a.e('s_cmp_eq_u32 s20, 3')
    a.e('s_cselect_b32 s46, 1, 0')
    a.e('s_sub_u32 s45, s45, s46')
    a.e('s_mul_i32 s46, s67, 90')
    a.e('s_add_u32 s25, s44, s46')
    a.e('s_mul_i32 s25, s25, 4608')
    a.e(f's_add_u32 s25, s25, {W3_OFF}')
    a.e('s_add_u32 s31, s45, s46')
    a.e('s_mul_i32 s31, s31, 4608')
    a.e(f's_add_u32 s31, s31, {W3_OFF}')
    a.e('v_lshrrev_b32 v6, 4, v1')
    a.e('v_lshlrev_b32 v6, 3, v6')
    a.e('v_and_b32 v9, 7, v1')
    a.e('v_add_u32 v6, v6, v9')
    a.e('v_lshlrev_b32 v6, 4, v6')
    a.e('v_bfe_u32 v9, v1, 3, 1')
    a.e('v_mul_u32_u24 v9, 4608, v9')
    a.e('v_add_u32 v6, v6, v9')
    a.e('v_add_u32 v6, 4096, v6')
    a.e('v_mov_b32 v12, v19')

    def loadW(k):
        b = FR + 32 * (k % DEPTH)
        if k == 18:
            a.e('s_mov_b32 s25, s31')
        for nt in range(4):
            a.vm(f'buffer_load_dwordx4 {vr(b + 4 * nt, 4)}, v12, s[12:15], s25 offen offset:{1024 * nt} {SCL}', ('W', k))
        if k % 2 == 0:
            a.vm(f'buffer_load_dwordx4 {vr(HF + 4 * ((k // 2) % 3), 4)}, v6, s[12:15], s25 offen {SCL}', ('W', k))
        a.e('s_add_u32 s25, s25, 4608')

    def loadF(k, track=True):
        b = FR + 32 * (k % DEPTH)
        a.e(f's_add_u32 s24, s{28 if k < 18 else 30}, {1024 * (k if k < 18 else k - 18)}')
        for i in range(4):
            t = f'buffer_load_dwordx4 {vr(b + 16 + 4 * i, 4)}, v{2 + i}, s[12:15], s24 offen {SCL}'
            a.vm(t, ('F', k)) if track else a.e(t)
    for k in range(opt('wpre', [2])[0]):
        loadW(k)
    a.e('s_mul_i32 s46, s66, 360')
    a.e('s_add_u32 s28, s44, s46')
    a.e('s_lshl_b32 s28, s28, 10')
    a.e(f's_add_u32 s28, s28, {UF_OFF}')
    a.e('s_add_u32 s30, s45, s46')
    a.e('s_lshl_b32 s30, s30, 10')
    a.e(f's_add_u32 s30, s30, {UF_OFF}')
    for i in range(4):
        a.e(f's_add_u32 s44, s20, {i}')
        a.e('s_and_b32 s44, s44, 3')
        a.e('s_mul_i32 s44, s44, 92160')
        a.e(f'v_add_u32 v{2 + i}, s44, v12')
    a.e('s_mov_b32 s8, s64')
    a.e('s_mov_b32 s9, s65')
    srd(a, 8, 2048 * 1152)
    a.e(f's_mov_b32 s51, {SPIN_MAX}')
    a.wait_vm('st')
    for k in range(DEPTH):
        if k >= opt('wpre', [2])[0]:
            loadW(k)
        loadF(k)
    stamp(a, 5)
    a.e(f's_setprio {opt("pg", PG)[2]}')
    lskip = a.newlabel('P3_SKIP')
    for k in range(NS):
        b = FR + 32 * (k % DEPTH)
        if k == NS - 1:
            a.e('s_cmp_ge_u32 s20, 2')
            a.e(f's_cbranch_scc1 {lskip}')
            a.wait_vm0()
        a.wait_vm(('F', k))
        lc = a.newlabel('P3_C')
        lok = a.newlabel('P3_OK')
        a.label(lc)
        a.e(f'v_max3_u32 v9, v{b + 16}, v{b + 17}, v{b + 18}')
        a.e(f'v_max3_u32 v10, v{b + 19}, v{b + 20}, v{b + 21}')
        for i in range(22, 32, 4):
            a.e(f'v_max3_u32 v9, v{b + i}, v{b + i + 1}, v9')
            if i + 2 < 32:
                a.e(f'v_max3_u32 v10, v{b + i + 2}, v{b + i + 3}, v10')
        a.e('v_max_u32 v9, v9, v10')
        a.e('v_cmp_eq_u32 vcc, -1, v9')
        a.e(f's_cbranch_vccz {lok}')
        a.e(f's_sleep {opt("psl", [4])[0]}')
        loadF(k, False)
        a.e('s_waitcnt vmcnt(0)')
        a.e('s_sub_u32 s51, s51, 1')
        a.e('s_cmp_lt_i32 s51, 1')
        a.e(f's_cbranch_scc0 {lc}')
        a.label(lok)
        hf = HF + 4 * ((k // 2) % 3)
        for i in range(4):
            for nt in range(5):
                n2 = nt if nt < 4 else 4 + k % 2
                d = vr(ACC + 16 * n2 + 4 * i, 4)
                first = k == 0 or (nt == 4 and k == 1)
                a.e(f'v_mfma_f32_16x16x32_bf16 {d}, {vr(b + 4 * nt, 4) if nt < 4 else vr(hf, 4)}, {vr(b + 16 + 4 * i, 4)}, {"0" if first else d}')
        kn = k + DEPTH
        if kn == NS - 1:
            ls = a.newlabel('P3_NL')
            a.e('s_cmp_ge_u32 s20, 2')
            a.e(f's_cbranch_scc1 {ls}')
            q1 = list(a.vmq)
            loadW(kn)
            loadF(kn)
            a.vmq = q1
            a.label(ls)
        elif kn < NS:
            loadW(kn)
            loadF(kn)
    a.label(lskip)
    a.e('s_nop 7')
    stamp(a, 6)
    a.e('s_mov_b32 exec_lo, 0')
    for i in range(16):
        a.e(f'v_mov_b32 v{ACC + 64 + i}, v{ACC + 80 + i}')
    a.e('s_mov_b64 exec, -1')
    for i in range(1, 4):
        a.e(f's_add_u32 s44, s20, {i}')
        a.e('s_and_b32 s44, s44, 3')
        a.e('s_mul_i32 s44, s44, 15360')
        a.e(f'v_add_u32 v{8 + i}, s44, v12')
        for nt in range(5):
            a.lg(f'ds_write_b128 v{8 + i}, {vr(ACC + 16 * nt + 4 * i, 4)} offset:{5120 * (i - 1) + 1024 * nt}', 'w')
    a.e('s_mul_i32 s26, s20, 15360')
    a.e('v_add_u32 v8, s26, v12')
    a.e('s_lshl_b32 s27, s66, 6')
    a.e('s_lshr_b32 s28, s20, 1')
    a.e('s_lshl_b32 s28, s28, 5')
    a.e('s_add_u32 s27, s27, s28')
    a.e('s_and_b32 s28, s20, 1')
    a.e('s_lshl_b32 s28, s28, 2')
    a.e('s_add_u32 s27, s27, s28')
    a.e('v_bfe_u32 v13, v1, 2, 2')
    a.e('v_lshlrev_b32 v13, 3, v13')
    a.e('v_and_b32 v14, 3, v1')
    a.e('v_add3_u32 v13, v13, v14, s27')
    a.e('v_mul_u32_u24 v13, 1152, v13')
    a.e('v_lshrrev_b32 v14, 4, v1')
    a.e('v_lshl_add_u32 v15, v14, 3, v13')
    a.e('v_lshl_add_u32 v13, v14, 4, v13')
    a.e('s_mul_i32 s27, s67, 144')
    a.wait_all()
    a.e('s_barrier')
    for nt in range(5):
        for i in range(3):
            a.lg(f'ds_read_b128 {vr(FR + 12 * nt + 4 * i, 4)}, v8 offset:{5120 * i + 1024 * nt}', ('r', nt))
    PKB = FR + 64
    OSC = 'sc1' if 'osc1' in ABL else 'nt' if 'ont' in ABL else ''
    for nt in range(5):
        a.wait_lg(('r', nt))
        b = FR + 12 * nt
        o = ACC + 16 * nt
        for h in range(2):
            a.e(f'v_pk_add_f32 {vr(b + 2 * h, 2)}, {vr(b + 2 * h, 2)}, {vr(b + 4 + 2 * h, 2)}')
            a.e(f'v_pk_add_f32 {vr(o + 2 * h, 2)}, {vr(o + 2 * h, 2)}, {vr(b + 8 + 2 * h, 2)}')
        for h in range(2):
            a.e(f'v_pk_add_f32 {vr(b + 2 * h, 2)}, {vr(b + 2 * h, 2)}, {vr(o + 2 * h, 2)}')
        if nt == 4:
            for r in range(4):
                a.e(f'v_mov_b32 v{o + r}, v{b + r}')
            for r in range(4):
                a.e(f'v_permlane32_swap_b32 v{b + r}, v{o + r}')
            for h in range(2):
                a.e(f'v_pk_add_f32 {vr(b + 2 * h, 2)}, {vr(b + 2 * h, 2)}, {vr(o + 2 * h, 2)}')
        for h in range(2):
            a.e(f'v_cvt_pk_bf16_f32 v{PKB + 2 * nt + h}, v{b + 2 * h}, v{b + 2 * h + 1}')
        if nt in (1, 3):
            a.e(f'buffer_store_dwordx4 {vr(PKB + 2 * nt - 2, 4)}, v13, s[8:11], s27 offen offset:{64 * (nt // 2)} {OSC}')
        if nt == 4:
            a.e('s_mov_b32 exec_hi, 0')
            a.e(f'buffer_store_dwordx2 {vr(PKB + 8, 2)}, v15, s[8:11], s27 offen offset:128 {OSC}')
            a.e('s_mov_b64 exec, -1')


def kernel_text(name, a, vgpr=256, sgpr=96):
    a.fix_hazards()
    mv, ms, ma = a.max_regs()
    assert mv <= vgpr and ms <= sgpr and ma == 0, (mv, ms, ma)
    body = f'.globl {name}\n.p2align 8\n.type {name},@function\n{name}:\n' + a.text()
    desc = f""".p2align 6
.amdhsa_kernel {name}
  .amdhsa_next_free_vgpr {vgpr}
  .amdhsa_next_free_sgpr {sgpr}
  .amdhsa_accum_offset {(vgpr + 3) // 4 * 4}
  .amdhsa_group_segment_fixed_size 0
  .amdhsa_kernarg_size 112
  .amdhsa_user_sgpr_count 2
  .amdhsa_user_sgpr_kernarg_segment_ptr 1
  .amdhsa_system_sgpr_workgroup_id_x 1
.end_amdhsa_kernel
"""
    return body, desc


def build_file(kernels):
    hdr = open('cdna_kernels/' + NAME + '.s.ref').read().split('\n')
    head = [l for l in hdr if l.startswith(';') and '@launch' not in l and 'Override' not in l and 'grid=ceil' not in l]
    head = head[:15]
    out = '\n'.join(head) + '\n'
    for name, a, grid, block, lds, vgpr in kernels:
        kn = f'kernel={name} ' if (len(kernels) > 1 or LIST) else ''
        out += f'; @launch {kn}grid=({grid},1,1) block=({block},1,1) lds={lds}\n'
    out += '.amdgcn_target "amdgcn-amd-amdhsa--gfx950"\n.text\n'
    descs = ''
    for name, a, grid, block, lds, vgpr in kernels:
        b, d = kernel_text(name, a, vgpr)
        out += b
        descs += d
    out += '.section .rodata,"a"\n' + descs
    import subprocess, tempfile, os, re
    with tempfile.TemporaryDirectory() as td:
        open(td + '/t.s', 'w').write(out.replace('CODE_LINES', '0x200'))
        subprocess.run(['clang', '-x', 'assembler', '-target', 'amdgcn-amd-amdhsa', '-mcpu=gfx950', '-c', td + '/t.s', '-o', td + '/t.o'], check=True)
        h = subprocess.run(['llvm-objdump', '-h', td + '/t.o'], capture_output=True, text=True).stdout
        size = int(re.search(r'\.text\s+([0-9a-f]+)', h).group(1), 16)
    assert size < 128 * 5 * 128
    return out.replace('CODE_LINES', str(size // 128 - 2))


NG1, NG2 = 1, 3


def mega():
    a = Asm()
    a.e('s_cmp_ge_u32 s2, 512')
    a.e('s_cbranch_scc1 K_END')
    stamp(a, 0)
    a.e('s_cmp_ge_u32 s2, 256')
    a.e('s_cbranch_scc1 K_ATT')
    a.label('K_GEMM')
    a.vmq = []
    a.lgq = []
    g = GW(a)
    UB, UP = g.UB, g.UP
    g.limitA = UB
    g.setup()
    if 'afine' in ABL:
        stamp(a, 1)
    g.prologue_issue()
    if 'afine' in ABL:
        stamp(a, 2)
    g.setup2()
    if 'afine' in ABL:
        stamp(a, 3)
        g.hooks[0] = lambda: stamp(a, 4)
        g.hooks[6] = lambda: stamp(a, 5)
        g.hooks[12] = lambda: stamp(a, 6)

    def nonce_ld():
        a.e('v_mov_b32 v23, 0')
        a.vm(f'global_load_dword v24, v23, s[16:17] {SC}', 'nonce')
        g.mk_load()
        a.vmq.append('nonce')
    g.mk_addr()
    g.hooks[22] = nonce_ld
    g.run_segment(0, UB)
    if 'afine' in ABL:
        a.e('s_branch K_DONE')
    stamp(a, 1)
    n1, n2 = opt('ng', [NG1, NG2])
    nb1 = opt('nb1', [8])[0]
    a.wait_vm('nonce')
    get_nonce(a, 23, 24)
    poll(a, g.mk_load, [26, 27], 28, first_done=True, sleep=4)
    g.proj_store()
    g.limitA = UP
    a.vmq.append('pst')
    a.vmq.append('pst')
    a.e('s_barrier')
    for _ in range(g.R - 1):
        g.run(g.issueA())
    if 'z1t' in ABL:
        a.e('s_lshl_b32 s44, s31, 2')
        a.e('s_add_u32 s44, s44, s20')
        a.e('s_mul_i32 s44, s44, 81')
        a.e('s_and_b32 s45, s2, 4')
        a.e('s_lshl_b32 s46, s45, 2')
        a.e('s_lshr_b32 s45, s45, 1')
        for i in range(2):
            a.e('v_min_u32 v24, 40, v1')
            a.e(f'v_add3_u32 v24, v24, s44, {40 * i}')
            a.e('v_mul_u32_u24 v25, 58255, v24')
            a.e('v_lshrrev_b32 v25, 20, v25')
            a.e('v_mul_u32_u24 v26, 18, v25')
            a.e('v_sub_u32 v24, v24, v26')
            a.e('v_add_u32 v26, s46, v24')
            a.e('v_add3_u32 v27, v24, s45, 16')
            a.e('v_cmp_gt_u32 vcc, 16, v24')
            a.e('v_cndmask_b32 v24, v27, v26, vcc')
            a.e('v_mul_u32_u24 v25, 9216, v25')
            a.e('v_lshl_add_u32 v24, v24, 7, v25')
            a.vm('buffer_load_dword v255, v24, s[8:11], 0 offen', 'tch')
    g.z2_gelu_publish()

    LF = 'lnfine' in ABL
    if LF:
        stamp(a, 2)
    g.run_segment(UB, nb1)
    if LF:
        stamp(a, 3)
    g.z2_gather_norm_store()
    stamp(a, 4 if LF else 2)
    a.e('s_lshl_b32 s49, s22, 9')
    a.e(f's_add_u32 s49, s49, {FZ_OFF}')
    a.e('s_lshl_b32 s48, s32, 7')
    a.e('s_add_u32 s48, s48, s49')
    a.e('s_and_b32 s50, s23, 15')
    a.e('s_lshl_b32 s50, s50, 2')
    a.e('s_add_u32 s48, s48, s50')
    a.e('s_and_b32 s50, s32, 2')
    a.e('s_lshl_b32 s50, s50, 7')
    a.e('s_add_u32 s50, s50, s49')
    a.e('v_and_b32 v29, 15, v1')
    a.e('v_lshlrev_b32 v29, 2, v29')
    a.e('v_lshrrev_b32 v23, 4, v1')
    a.e('v_lshl_add_u32 v23, v23, 7, v29')
    a.e('v_and_b32 v29, 0xff, v23')

    def zflag():
        a.wait_vm('st')
        set_flag(a, 48, 27)
    g.hooks[UB + nb1 + opt('zf', [4])[0]] = zflag
    g.run_segment(UB + nb1, 18 - nb1)
    if LF:
        stamp(a, 5)
    g.own_write()
    g.z1_gelu(range(0, n1))
    g.nextA = UP + 4
    g.run_segment(UP, 4, own=True)
    g.z1_gelu(range(n1, n2))
    if LF:
        stamp(a, 6)
    poll(a, lambda: a.e(f'buffer_load_dword v26, v29, s[12:15], s50 offen {SC}'), [26], 27)
    if LF:
        a.e('s_branch K_DONE')
    stamp(a, 3)
    g.limitA = len(g.units)
    a.e('s_barrier')
    for _ in range(g.R - 1):
        g.run(g.issueA())
    g.z1_gelu(range(n2, 9))
    g.hooks[UP + 58] = g.sp_pre

    def zall():
        a.e(f'buffer_load_dword v26, v23, s[12:15], s49 offen {SC}')

    def zall0():
        zall()
        a.vmq.append('zf')

    def zall1():
        a.wait_vm('zf')
        poll(a, zall, [26], 27, first_done=True)
    g.hooks[UP + 10] = zall0
    g.hooks[UP + 15] = zall1
    g.hooks[UP + 61] = lambda: p3_pre(a)
    g.hooks[UP + opt('gsw', [62])[0]] = lambda: a.e('s_setprio 0')

    if opt('gate'):
        def prog():
            a.e('s_lshl_b32 s44, s2, 7')
            a.e(f's_add_u32 s44, s44, {PROG_OFF}')
            set_flag(a, 44, 27)
        g.hooks[UP + opt('gate')[1]] = prog
    g.run_segment(UP + 4, 60)
    if 'p2fine' in ABL:
        a.e('s_branch K_DONE')
    stamp(a, 4)
    g.sp_epilogue()
    p3(a)
    a.e('s_or_b32 s44, s2, s20')
    a.e('s_cmp_lg_u32 s44, 0')
    a.e('s_cbranch_scc1 K_DONE')
    a.e('v_mov_b32 v2, 0')
    a.e(f'global_store_dword v2, v2, s[16:17] {SC}')
    a.e('s_branch K_DONE')
    a.label('K_ATT')
    a.vmq = []
    a.lgq = []
    a.e('s_sub_u32 s3, s2, 256')
    P = opt('pa', [0, 1])
    t = ATT(a)
    t.setup(3)
    t.mark()
    write_nonce(a)
    if 'afine' in ABL:
        a.e('s_branch K_DONE')
    t.retile_setup()
    stamp(a, 1)
    a.e(f's_setprio {P[0]}')
    t.q_phase()
    stamp(a, 2)
    a.e(f's_setprio {P[1]}')
    if 'noattmain' in ABL:
        for p in range(3):
            if p == 2:
                t.mark_part(0, 12)
            a.wait_all()
            t.side(p)
        t.gate_load()
        a.wait_all()
    else:
        t.main(flags=SCL)
    stamp(a, 3)
    a.e('s_setprio 3')
    t.epilogue(flags=SC)
    a.label('K_DONE')
    stamp_flush(a, 0)
    a.label('K_END')
    a.e('s_endpgm')
    return (NAME + '_kernel', a, 512, 256, 81920, 256)


LIST = False
if __name__ == '__main__':
    if '--stamp' in sys.argv:
        STAMP = True
        sys.argv.remove('--stamp')
    if '--list' in sys.argv:
        LIST = True
        sys.argv.remove('--list')
    for x in list(sys.argv):
        if x.startswith('--abl='):
            ABL.update(x[6:].split(','))
            sys.argv.remove(x)
    out = sys.argv[1] if len(sys.argv) > 1 else 'out.s'
    open(out, 'w').write(build_file([mega()]))
    print('wrote', out)
```

```python
import sys, struct
from asmlib import Asm

NAME = 'gated_mix__grouped_kv_mqa__mixer_gmlp__prompt'

Z2_OFF = 0x10000
UF_OFF = Z2_OFF + 9437184
W3_OFF = UF_OFF + 11796480
KV_OFF = W3_OFF + 3317760
KV_TILE = 2496
GATE_OFF = KV_OFF + 160 * 1024
STATS_OFF = GATE_OFF + 16384
FLAG_OFF = STATS_OFF + 524288
FKV_OFF = FLAG_OFF
FW3_OFF = FLAG_OFF + 49152
FZ_OFF = FLAG_OFF + 4096
PZ_OFF = FLAG_OFF + 65536
PROG_OFF = FLAG_OFF + 16384
GO_OFF = FLAG_OFF + 98304
KVF_OFF = FLAG_OFF
QF_OFF = FLAG_OFF + 131072
SC = 'sc1' if 'sconly1' in ' '.join(sys.argv) else 'sc0 sc1'
SCL = '' if '--abl' in ' '.join(sys.argv) and 'noscl' in ' '.join(sys.argv) else 'sc1'
WS_SIZE = 0x1c00000
assert QF_OFF + 128 * 16 * 1152 <= 0x1b00000
STAMP_OFF = 0x1b00000

A_X, A_WQ, A_WK, A_WV, A_WO, A_BX, A_WIN, A_WSP, A_BSP, A_WOUT, A_GW, A_OUT, A_DBG, A_WS = [8 * i for i in range(14)]

STAMP = False
ABL = set()


def opt(name, default=None):
    for x in ABL:
        if x.startswith(name + ':'):
            return [int(v) for v in x.split(':')[1:]]
    return default


def f2u(f):
    return struct.unpack('<I', struct.pack('<f', f))[0]


def hx(f):
    return '0x%08x' % f2u(f)


def srd(a, d, size):
    a.e(f's_mov_b32 s{d + 2}, {size}')
    a.e(f's_mov_b32 s{d + 3}, 0x00020000')


def vr(b, n):
    return f'v[{b}:{b + n - 1}]'


def stamp(a, idx):
    if not STAMP:
        return
    a.wait_lg0()
    a.e('s_memrealtime s[78:79]')
    a.e('s_memtime s[76:77]')
    a.e('s_waitcnt lgkmcnt(0)')
    a.e(f's_mov_b32 s{80 + idx}, s78')
    a.e(f's_mov_b32 s{88 + idx}, s76')


def stamp_flush(a, kidx):
    if not STAMP:
        return
    a.e('s_waitcnt vmcnt(0) lgkmcnt(0)')
    stamp(a, 7)
    a.e(f's_load_dwordx2 s[74:75], s[0:1], {A_WS}')
    a.e('s_waitcnt lgkmcnt(0)')
    a.e('v_lshrrev_b32 v1, 6, v0')
    a.e('v_lshlrev_b32 v1, 6, v1')
    a.e('s_lshl_b32 s78, s2, 8')
    a.e(f's_add_u32 s78, s78, {STAMP_OFF + kidx * 131072}')
    a.e('v_add_u32 v1, s78, v1')
    for i in range(16):
        a.e(f'v_mov_b32 v{4 + i}, s{80 + i}')
    for i in range(4):
        a.e(f'global_store_dwordx4 v1, v[{4 + 4 * i}:{7 + 4 * i}], s[74:75] offset:{16 * i}')
    if 'dbgstamp' in ABL:
        a.e('s_cmp_lt_u32 s2, 256')
        a.e('s_cselect_b32 s78, 4, 36')
        a.e('v_mov_b32 v1, s78')
        a.e('s_mov_b64 exec, 1')
        for i in range(1, 8):
            a.e(f'v_subrev_u32 v{4 + i}, s62, v{4 + i}')
            a.e(f'global_atomic_umax v1, v{4 + i}, s[16:17] offset:{4 * (i - 1)} sc1')
        a.e('v_sub_u32 v4, s62, v4')
        a.e('v_add_u32 v4, 1000, v4')
        a.e('v_mov_b32 v1, 32')
        a.e('global_atomic_umax v1, v4, s[16:17] sc1')
        a.e('s_mov_b64 exec, -1')


QSCALE = 18 ** -0.5 * 1.4426950408889634
GELU_C0 = -2.0 * 1.4426950408889634 * 0.7978845608028654
GELU_C1 = GELU_C0 * 0.044715


def gelu_group(a, regs, T, sC1, vC0):
    n = len(regs)
    for i, r in enumerate(regs):
        a.e(f'v_pk_mul_f32 {vr(T + 2 * i, 2)}, {vr(r, 2)}, {vr(r, 2)}')
    for i, r in enumerate(regs):
        a.e(f'v_pk_fma_f32 {vr(T + 2 * i, 2)}, {vr(T + 2 * i, 2)}, s[{sC1}:{sC1 + 1}], {vr(vC0, 2)}')
    for i, r in enumerate(regs):
        a.e(f'v_pk_mul_f32 {vr(T + 2 * i, 2)}, {vr(T + 2 * i, 2)}, {vr(r, 2)}')
    for i in range(2 * n):
        a.e(f'v_exp_f32 v{T + i}, v{T + i}')
    for i, r in enumerate(regs):
        a.e(f'v_pk_add_f32 {vr(T + 2 * i, 2)}, {vr(T + 2 * i, 2)}, 1.0 op_sel_hi:[1,0]')
    for i in range(2 * n):
        a.e(f'v_rcp_f32 v{T + i}, v{T + i}')
    for i, r in enumerate(regs):
        a.e(f'v_pk_mul_f32 {vr(r, 2)}, {vr(T + 2 * i, 2)}, {vr(r, 2)}')


SPIN_MAX = 300000
PG = [2, 2, 0]


def poll(a, loads, regs, t0, first_done=False, sleep=1):
    lp = a.newlabel('POLL')
    lc = a.newlabel('POLLC')
    lg = a.newlabel('POLLOK')
    a.e(f's_mov_b32 s51, {SPIN_MAX}')
    if first_done:
        a.e(f's_branch {lc}')
    a.label(lp)
    loads()
    a.e('s_waitcnt vmcnt(0)')
    a.label(lc)
    if len(regs) >= 8:
        a.e(f'v_max3_u32 v{t0}, v{regs[0]}, v{regs[1]}, s62')
        a.e(f'v_min3_u32 v{t0 + 1}, v{regs[0]}, v{regs[1]}, s62')
        for i in range(2, len(regs), 2):
            a.e(f'v_max3_u32 v{t0}, v{regs[i]}, v{regs[i + 1]}, v{t0}')
            a.e(f'v_min3_u32 v{t0 + 1}, v{regs[i]}, v{regs[i + 1]}, v{t0 + 1}')
        a.e(f'v_xor_b32 v{t0}, v{t0}, v{t0 + 1}')
    else:
        a.e(f'v_xor_b32 v{t0}, s62, v{regs[0]}')
        for r in regs[1:]:
            a.e(f'v_xor_b32 v{t0 + 1}, s62, v{r}')
            a.e(f'v_or_b32 v{t0}, v{t0}, v{t0 + 1}')
    a.e(f'v_cmp_ne_u32 vcc, 0, v{t0}')
    a.e(f's_cbranch_vccz {lg}')
    a.e(f's_sleep {sleep}')
    a.e('s_sub_u32 s51, s51, 1')
    a.e('s_cmp_lg_u32 s51, 0')
    a.e(f's_cbranch_scc1 {lp}')
    a.label(lg)
    if not first_done:
        a.vmq = []


def get_nonce(a, vz, vn):
    lp = a.newlabel('NONCE')
    lg = a.newlabel('NONCE_OK')
    a.e(f's_mov_b32 s51, {SPIN_MAX}')
    a.label(lp)
    a.e(f'v_readfirstlane_b32 s62, v{vn}')
    a.e('s_cmp_lg_u32 s62, 0')
    a.e(f's_cbranch_scc1 {lg}')
    a.e('s_sleep 32')
    a.e(f'global_load_dword v{vn}, v{vz}, s[16:17] {SC}')
    a.e('s_waitcnt vmcnt(0)')
    a.e('s_sub_u32 s51, s51, 1')
    a.e('s_cmp_lg_u32 s51, 0')
    a.e(f's_cbranch_scc1 {lp}')
    a.label(lg)


def set_flag(a, soff, t0):
    a.e(f'v_mov_b32 v{t0}, 0')
    a.e(f'v_mov_b32 v{t0 + 1}, s62')
    a.e('s_mov_b64 exec, 1')
    a.vm(f'buffer_store_dword v{t0 + 1}, v{t0}, s[12:15], s{soff} offen {SC}', 'flag')
    a.e('s_mov_b64 exec, -1')


class GW:
    R = 5
    SLOT = 8192
    SGL = 40960
    BBASE = 49152
    AF = 32
    BF = 68
    ACC0 = 100
    ACC1 = 172
    UB = 27
    UP = 45

    def __init__(self, a):
        self.a = a
        self.units = []
        self.stages = []
        for st in range(9):
            self.stages.append(('x', st))
            self.units += [('z2', 2 * st, st, 0, 2 * st), ('z2', 2 * st + 1, st, 1, 2 * st + 1), ('E', st, st, 0, None)]
        for k in range(18):
            if k % 2 == 0:
                self.stages.append(('x', k // 2))
            self.units.append(('z1', k, 9 + k // 2, k % 2, 18 + k))
        for k in range(64):
            if k % 2 == 0:
                self.stages.append(('sp', k // 2))
            self.units.append(('sp', k, 18 + k // 2, k % 2, 36 + k))
        self.nextA = 0
        self.nextB = 0
        self.limitA = len(self.units)
        self.pendB = []
        self.extra = []
        self.hooks = {}

    def setup(self):
        a = self.a
        a.e(f's_load_dwordx4 s[4:7], s[0:1], {A_X}')
        a.e(f's_load_dwordx2 s[8:9], s[0:1], {A_WIN}')
        a.e(f's_load_dwordx4 s[16:19], s[0:1], {A_DBG}')
        a.e(f's_load_dwordx4 s[52:55], s[0:1], {A_WSP}')
        a.e(f's_load_dwordx2 s[64:65], s[0:1], {A_OUT}')
        a.e(f's_load_dwordx4 s[68:71], s[0:1], {A_WK}')
        a.e('v_lshrrev_b32 v1, 6, v0')
        a.e('v_readfirstlane_b32 s20, v1')
        a.e('v_and_b32 v1, 63, v0')
        a.e('s_lshr_b32 s31, s2, 3')
        a.e('s_and_b32 s32, s2, 3')
        a.e('s_and_b32 s34, s31, 3')
        a.e('s_lshl_b32 s21, s32, 2')
        a.e('s_add_u32 s21, s21, s34')
        a.e('s_lshr_b32 s35, s31, 2')
        a.e('s_and_b32 s22, s2, 4')
        a.e('s_lshl_b32 s22, s22, 1')
        a.e('s_add_u32 s22, s22, s35')
        a.e('s_lshl_b32 s23, s21, 2')
        a.e('s_add_u32 s23, s23, s20')
        a.e('s_lshl_b32 s39, s34, 1')
        a.e('s_add_u32 s39, s39, s35')
        a.e('s_cmp_ge_u32 s39, 9')
        a.e('s_cselect_b32 s40, 9, 0')
        a.e('s_sub_u32 s39, s39, s40')
        if 'norot' in ABL:
            a.e('s_mov_b32 s39, 0')
        if 'rot3' in ABL:
            a.e('s_lshl_b32 s39, s39, 2')
            a.e('s_mov_b32 s40, 0x30630630')
            a.e('s_mov_b32 s41, 6')
            a.e('s_lshr_b64 s[40:41], s[40:41], s39')
            a.e('s_and_b32 s39, s40, 15')
        if 'rot5' in ABL:
            a.e('s_and_b32 s39, s39, 14')
        a.e('s_mul_i32 s24, s39, %d' % (64 * 9216))
        a.e('s_lshl_b32 s25, s39, 7')
        a.e('s_lshl_b32 s28, s39, 1')
        a.e('s_add_u32 s28, s28, s20')
        a.e('s_cmp_ge_u32 s28, 18')
        a.e('s_cselect_b32 s29, 18, 0')
        a.e('s_sub_u32 s28, s28, s29')
        a.e(f's_mul_i32 s28, s28, {32 * 9216}')
        a.e('s_lshl_b32 s26, s20, 11')
        a.e('s_lshl_b32 s27, s20, 12')
        a.e(f's_add_u32 s27, s27, {self.BBASE}')
        a.e('s_lshl_b32 s30, s20, 10')
        a.e(f's_add_u32 s30, s30, {self.SGL}')
        a.e('v_and_b32 v23, 7, v1')
        a.e('v_lshrrev_b32 v24, 5, v1')
        a.e('v_lshlrev_b32 v24, 3, v24')
        a.e('v_bfe_u32 v25, v1, 3, 2')
        a.e('s_lshl_b32 s44, s23, 5')
        a.e('v_add3_u32 v24, v24, v25, s44')
        a.e('v_lshrrev_b32 v25, 4, v1')
        a.e('v_xor_b32 v25, v25, v23')
        a.e('v_lshlrev_b32 v25, 4, v25')
        a.e('v_xor_b32 v26, 64, v25')
        a.e('v_mul_u32_u24 v27, 1152, v24')
        a.e('v_add_u32 v5, v27, v25')
        a.e('v_add_u32 v6, v27, v26')
        a.e(f'v_add_u32 v6, {16 * 1152 - 1024}, v6')
        a.e(f'v_add_u32 v7, {4 * 1152 - 2048}, v5')
        a.e(f'v_add_u32 v8, {4 * 1152 - 2048}, v6')
        a.e('s_lshl_b32 s42, s22, 8')
        a.e('s_mul_i32 s43, s20, %d' % (8 * 9216))
        a.e('s_add_u32 s42, s42, s43')
        a.e('s_add_u32 s42, s42, 4608')
        a.e('v_bfe_u32 v2, v1, 2, 2')
        a.e('v_mul_u32_u24 v2, 9216, v2')
        a.e('v_lshrrev_b32 v3, 4, v1')
        a.e('v_lshl_add_u32 v2, v3, 6, v2')
        a.e('s_and_b32 s44, s20, 1')
        a.e('s_lshl_b32 s45, s44, 1')
        a.e('v_and_b32 v3, 3, v1')
        a.e('v_xor_b32 v3, s45, v3')
        a.e('v_lshl_add_u32 v2, v3, 4, v2')
        a.e('v_add_u32 v2, s42, v2')
        a.e(f'v_add_u32 v3, {4 * 9216 - 1024}, v2')
        a.e('v_lshrrev_b32 v29, 1, v1')
        a.e('v_and_b32 v27, 19, v29')
        a.e('v_bfe_u32 v28, v29, 2, 1')
        a.e('v_lshl_add_u32 v27, v28, 3, v27')
        a.e('v_bfe_u32 v28, v29, 3, 1')
        a.e('v_lshl_add_u32 v27, v28, 2, v27')
        a.e('v_mul_u32_u24 v4, 9216, v27')
        a.e('v_and_b32 v27, 1, v1')
        a.e('v_lshl_add_u32 v4, v27, 4, v4')
        a.e('s_lshl_b32 s45, s22, 5')
        a.e(f's_add_u32 s45, s45, {4096 + 4608}')
        a.e('v_add_u32 v4, s45, v4')
        a.e('s_waitcnt lgkmcnt(0)')
        a.e('s_mov_b64 s[48:49], s[6:7]')
        a.e('s_mov_b64 s[60:61], s[68:69]')
        a.e('s_mov_b64 s[50:51], s[70:71]')
        srd(a, 4, 2359296)
        srd(a, 8, 576 * 9216)
        self.consts()
        b0 = self.issueB()
        self.run(b0[0] + b0[1][1:] + self.issueA() + self.issueA())
        a.e('v_mul_u32_u24 v27, 36, v27')
        a.e('v_lshrrev_b32 v20, 2, v1')
        a.e('v_mul_u32_u24 v20, 1152, v20')
        a.e('v_bfe_u32 v28, v1, 1, 1')
        a.e('v_lshl_add_u32 v20, v28, 4, v20')
        a.e('v_add_u32 v20, v20, v27')
        a.e('v_mul_u32_u24 v28, 1152, v29')
        a.e('v_add3_u32 v28, v28, v27, 32')
        a.e('s_cmp_eq_u32 s20, 2')
        a.e('s_cselect_b64 vcc, -1, 0')
        a.e('v_cndmask_b32 v20, v20, v28, vcc')
        a.e('v_mul_u32_u24 v28, 36, v29')
        a.e('s_cmp_eq_u32 s20, 3')
        a.e('s_cselect_b64 vcc, -1, 0')
        a.e('v_cndmask_b32 v20, v20, v28, vcc')
        a.e('s_mul_i32 s44, s22, 72')
        a.e('s_cmp_eq_u32 s20, 1')
        a.e(f's_cselect_b32 s45, {16 * 1152}, 0')
        a.e('s_add_u32 s44, s44, s45')
        a.e('s_and_b32 s45, s22, 1')
        a.e('s_lshl_b32 s45, s45, 4')
        a.e('s_cmp_ge_u32 s22, 4')
        a.e('s_cselect_b32 s45, 32, s45')
        a.e('s_cmp_eq_u32 s20, 3')
        a.e('s_cselect_b32 s44, s45, s44')
        a.e(f's_movk_i32 s58, 1152')
        a.e('s_cselect_b32 s58, 36, s58')
        a.e('v_add_u32 v20, s44, v20')
        a.e('s_lshl_b32 s44, s58, 5')
        a.e('s_sub_u32 s44, s44, 1024')
        a.e('v_add_u32 v244, s44, v20')
        a.e('s_mul_i32 s42, s58, 576')
        a.e('s_lshl_b32 s58, s58, 6')
        a.e('s_mul_i32 s59, s58, s39')
        a.e('s_lshr_b32 s44, 0x2c, s22')
        a.e('s_and_b32 s44, s44, 1')
        a.e('s_cmp_eq_u32 s44, 1')
        a.e('s_cselect_b32 s40, s50, s60')
        a.e('s_cselect_b32 s41, s51, s61')
        a.e('s_cmp_eq_u32 s20, 3')
        a.e('s_cselect_b32 s40, s40, s48')
        a.e('s_cselect_b32 s41, s41, s49')
        a.e('s_mov_b32 s43, 0x00020000')
        a.e('s_mov_b32 s12, s18')
        a.e('s_mov_b32 s13, s19')
        srd(a, 12, WS_SIZE)
        a.e('s_mov_b32 s56, s54')
        a.e('s_mov_b32 s57, s55')
        srd(a, 52, 2048 * 4096)

    def setup2(self):
        a = self.a
        a.e('v_lshlrev_b32 v27, 12, v24')
        a.e('v_add_u32 v12, v27, v25')
        a.e('v_add_u32 v13, v27, v26')
        a.e(f'v_add_u32 v13, {16 * 4096 - 1024}, v13')
        a.e(f'v_add_u32 v14, {4 * 4096 - 2048}, v12')
        a.e(f'v_add_u32 v15, {4 * 4096 - 2048}, v13')
        a.e('s_xor_b32 s37, s21, s35')
        a.e('s_lshl_b32 s45, s22, 13')
        a.e('s_add_u32 s45, s45, s26')
        a.e(f's_add_u32 s45, s45, {Z2_OFF}')
        a.e('v_lshlrev_b32 v19, 4, v1')
        a.e('v_add_u32 v9, s45, v19')
        a.e('s_lshl_b32 s45, s22, 10')
        a.e('s_mul_i32 s46, s20, 147456')
        a.e('s_add_u32 s45, s45, s46')
        a.e(f's_add_u32 s45, s45, {128 * 1024 + Z2_OFF}')
        a.e('v_add_u32 v10, s45, v19')
        a.e('v_lshrrev_b32 v27, 4, v1')
        a.e('v_and_b32 v29, 3, v1')
        a.e('v_lshlrev_b32 v28, 3, v29')
        a.e('v_bfe_u32 v29, v1, 2, 3')
        a.e('v_lshl_add_u32 v18, v29, 5, v28')
        a.e('v_lshrrev_b32 v29, 5, v1')
        a.e('v_lshl_add_u32 v18, v29, 9, v18')
        a.e('v_lshl_add_u32 v28, v27, 11, v28')
        a.e('v_bfe_u32 v29, v1, 2, 2')
        a.e('v_lshl_add_u32 v28, v29, 6, v28')
        a.e('v_and_b32 v29, 1, v27')
        a.e('v_lshl_add_u32 v16, v29, 5, v28')
        a.e('v_xor_b32 v17, 32, v16')
        a.e('v_and_b32 v28, 15, v1')
        a.e('v_lshlrev_b32 v245, 4, v28')
        a.e('v_lshl_add_u32 v245, v29, 9, v245')
        a.e('v_lshrrev_b32 v29, 5, v1')
        a.e('v_lshl_add_u32 v245, v29, 11, v245')
        a.e('v_bfe_u32 v29, v1, 2, 2')
        a.e('v_lshl_add_u32 v29, v27, 3, v29')
        a.e('v_lshlrev_b32 v246, 5, v29')
        a.e('v_and_b32 v29, 1, v1')
        a.e('v_lshlrev_b32 v23, 4, v29')
        a.e('v_add_u32 v23, 4096, v23')
        a.e('v_lshlrev_b32 v29, 3, v29')
        a.e('v_add_u32 v29, 6144, v29')
        a.e('v_and_b32 v24, 2, v1')
        a.e('v_cmp_eq_u32 vcc, 0, v24')
        a.e('v_cndmask_b32 v29, v29, v23, vcc')
        a.e('v_add_u32 v246, v246, v29')
        a.e('v_bfe_u32 v29, v1, 1, 3')
        a.e('v_xor_b32 v29, v29, v27')
        a.e('v_lshlrev_b32 v28, 7, v28')
        a.e('v_lshl_add_u32 v28, v29, 4, v28')
        a.e('v_add_u32 v21, s27, v28')
        a.e('v_xor_b32 v28, 64, v28')
        a.e('v_add_u32 v22, s27, v28')
        self.gelu_consts()

    def consts(self):
        a = self.a
        for i in range(5):
            a.e(f's_add_u32 s{66 + i}, s26, {i * self.SLOT}')
        a.e('s_mov_b32 s71, s30')
        a.e('s_add_u32 s72, s30, 4096')
        a.e('s_mov_b32 s73, s27')
        a.e('s_add_u32 s63, s27, 16384')
        a.e(f's_mov_b32 s33, {32 * 9216}')
        a.e(f's_mov_b32 s36, {576 * 9216}')
        a.e('s_mov_b32 s38, 147456')
        a.e('s_movk_i32 s3, 1152')

    def S(self, text, cost=4):
        return (cost, lambda: self.a.e(text))

    def D(self, text, tag):
        return (12, lambda: self.a.vm(text, tag))

    def grp(self, g, d, t):
        S = self.S
        if g == 0:
            return [S(f's_mov_b32 s{d}, s21')]
        if g < 8:
            return [S(f's_add_u32 s{d}, s35, {g}'), S(f's_cmp_ge_u32 s{d}, 8\ns_cselect_b32 s{t}, 7, 0', 8),
                    S(f's_sub_u32 s{d}, s{d}, s{t}'), S(f's_xor_b32 s{d}, s{d}, s21')]
        return [S(f's_xor_b32 s{d}, s37, {g}')]

    def issueA(self):
        u = self.nextA
        if u >= self.limitA:
            return []
        self.nextA += 1
        S, D = self.S, self.D
        seg, i, _, _, si = self.units[u]
        tag = ('A', u)
        m0 = S(f's_mov_b32 m0, s{66 + u % self.R}')
        if seg == 'E':
            return [m0, D('buffer_load_dwordx4 v20, s[40:43], s59 offen lds', tag),
                    D('buffer_load_dwordx4 v244, s[40:43], s59 offen offset:1024 lds', tag),
                    S('s_add_u32 s59, s59, s58'), S('s_cmp_eq_u32 s59, s42\ns_cselect_b32 s59, 0, s59', 8)]
        m1 = S(f's_mov_b32 m0, s{71 + (si // 4) % 2}')
        out = []
        if seg == 'sp':
            if i % 4 == 0:
                out += self.grp(i // 4, 24, 29) + [S('s_mul_i32 s24, s24, 589824', 6)]
            out += [m0, D(f'buffer_load_dwordx4 v9, s[12:15], s24 offen {SCL} lds', tag),
                    D(f'buffer_load_dwordx4 v9, s[12:15], s24 offen offset:1024 {SCL} lds', tag)]
            if i % 4 == 0:
                out += [m1, D(f'buffer_load_dwordx4 v10, s[12:15], s24 offen {SCL} lds', tag)]
            if i % 4 != 3:
                out.append(S('s_add_u32 s24, s24, s38'))
            return out
        if seg == 'z1' and i == 0:
            out += [S('v_subrev_u32 v2, 4608, v2', 8), S('v_subrev_u32 v3, 4608, v3', 8)]
        out += [m0, D('buffer_load_dwordx4 v2, s[8:11], s24 offen lds', tag),
                D('buffer_load_dwordx4 v3, s[8:11], s24 offen offset:1024 lds', tag), S('s_add_u32 s24, s24, s33')]
        if i % 2 == 1:
            out.append(S('s_cmp_eq_u32 s24, s36\ns_cselect_b32 s24, 0, s24', 8))
        if si % 4 == 0:
            if si == 16:
                out += [S('s_cmp_lt_u32 s20, 2\ns_cselect_b32 s29, 0, 4608', 10), S('v_subrev_u32 v4, s29, v4')]
            if si == 20:
                out += [S('s_cmp_lt_u32 s20, 2\ns_cselect_b32 s29, 4608, 0', 10), S('v_subrev_u32 v4, s29, v4')]
            out += [m1, D('buffer_load_dwordx4 v4, s[8:11], s28 offen lds', tag), S(f's_add_u32 s28, s28, {128 * 9216}', 6),
                    S('s_cmp_ge_u32 s28, s36\ns_cselect_b32 s29, s36, 0', 8), S('s_sub_u32 s28, s28, s29')]
        return out

    def issueB(self):
        s = self.nextB
        if s >= len(self.stages):
            return [[], []]
        self.nextB += 1
        S, D = self.S, self.D
        seg, i = self.stages[s]
        tag = ('B', s)
        sp = seg == 'sp'
        vb = 12 if sp else 5
        sr = 's[52:55]' if sp else 's[4:7]'
        m0 = S(f's_mov_b32 m0, s{(73, 63)[s % 2]}')
        ld = [D(f'buffer_load_dwordx4 v{vb + j}, {sr}, s25 offen offset:{1024 * j} lds', tag) for j in range(4)]
        pre = []
        if sp:
            pre = self.grp(i // 2, 25, 44) + [S('s_lshl_b32 s25, s25, 8')] if i % 2 == 0 else [S('s_addk_i32 s25, 128')]
        post = [] if sp else [S('s_addk_i32 s25, 128'), S('s_cmp_eq_u32 s25, s3\ns_cselect_b32 s25, 0, s25', 8)]
        return [pre + [m0] + ld[:2], [m0] + ld[2:] + post]

    def nfr(self, u):
        return 6 if self.units[u][0] == 'E' else 9

    def freg(self, u, F):
        return (self.ACC1 + 24 if self.units[u][0] == 'E' else self.AF) + 4 * F

    def readA(self, u, F):
        a = self.a
        seg, i, _, _, si = self.units[u]
        slot = (u % self.R) * self.SLOT
        tag = ('AR', u, F)
        r = self.freg(u, F)

        def L(t):
            return (8, lambda: a.lg(t, tag))
        if seg == 'E':
            kk, t = F // 3, F % 3
            if t < 2:
                return [L(f'ds_read_b64_tr_b16 {vr(r + 2 * j, 2)}, v245 offset:{slot + kk * 1024 + j * 256 + t * 8}') for j in range(2)]
            return [L(f'ds_read_b64_tr_b16 {vr(r + 2 * j, 2)}, v246 offset:{slot + kk * 1024 + j * 128}') for j in range(2)]
        sgl = self.SGL + ((si // 4) % 2) * 4096 + (si % 4) * 1024
        if seg == 'sp':
            return [L(f'ds_read_b128 {vr(r, 4)}, v19 offset:{slot + F * 1024 if F < 8 else sgl}')]
        if F < 8:
            return [L(f'ds_read_b64_tr_b16 {vr(r + 2 * j, 2)}, v{16 + F % 2} offset:{slot + j * 1024 + (F // 2) * 256}') for j in range(2)]
        return [L(f'ds_read_b64_tr_b16 {vr(r + 2 * j, 2)}, v18 offset:{sgl + j * 256}') for j in range(2)]

    def readB(self, s):
        a = self.a
        out = [(4, lambda: a.wait_vm(('B', s)))]
        for jj in range(2):
            for e in range(2):
                t = f'ds_read_b128 {vr(self.BF + 16 * (s % 2) + 8 * jj + 4 * e, 4)}, v{21 + jj} offset:{(s % 2) * 16384 + e * 2048}'
                out.append((8, lambda t=t: a.lg(t, ('BR', s))))
        return out

    def run(self, items):
        for _, f in items:
            f()

    def prologue_issue(self):
        self.run(self.issueA())
        b1 = self.issueB()
        self.run(b1[0] + b1[1][1:] + self.issueA())

    def run_segment(self, u0, n, own=False):
        a = self.a
        a.e(f's_setprio {opt("pg", PG)[0]}')
        self.run(self.readB(self.units[u0][2]))
        a.wait_vm(('A', u0))
        a.wait_lg('own')
        a.e('s_barrier')
        for F in range(9):
            self.run(self.readA(u0, F))
        carry = []
        for u in range(u0, u0 + n):
            last = u == u0 + n - 1
            seg, kk, s, jj, _ = self.units[u]
            sfirst = u == u0 or self.units[u - 1][2] != s
            pos = u - min(v for v in range(u0, u + 1) if self.units[v][2] == s)
            nf = self.nfr(u)
            if 'p2fine' in ABL and u >= self.UP + 4 and (u - self.UP - 4) % 10 == 0:
                stamp(a, 1 + (u - self.UP - 4) // 10)
            will_issue = self.nextA <= u + self.R - 1 and self.nextA < self.limitA
            if not last:
                a.wait_vm(('A', u + 1))
            if will_issue or (not last and not own):
                a.e('s_barrier')
            if u in self.hooks:
                self.hooks[u]()
            misc = self.issueA() if self.nextA <= u + self.R - 1 else []
            if sfirst and self.nextB <= s + 2:
                self.pendB = self.issueB()
            pb = self.pendB.pop(0) if self.pendB else []
            reads = [(0, it) for it in carry]
            carry = []
            if not last:
                same = self.freg(u, 0) == self.freg(u + 1, 0)
                for F in range(self.nfr(u + 1)):
                    its = self.readA(u + 1, F)
                    if nf == 6 and F >= 7:
                        carry += its
                    else:
                        reads += [(2 * F + 1 if same else 0, it) for it in its]
            stage_end = max(v for v in range(u, u0 + n) if self.units[v][2] == s)
            if pos == 1 and stage_end < u0 + n - 1:
                misc += self.readB(s + 1)
            misc += pb
            n_ex = opt('spr', [9, 2])[1]
            misc = self.extra[:n_ex] + misc
            self.extra = self.extra[n_ex:]
            ng = 2 * nf
            nwait = (nf + 1) // 2
            total = sum(c for _, (c, _) in reads) + sum(c for c, _ in misc) + 4 * nwait + 8
            done = 0
            for g in range(ng):
                F, e = g // 2, g % 2
                if g == 0:
                    a.wait_lg(('AR', u, 0))
                    if sfirst:
                        a.wait_lg(('BR', s))
                af = vr(self.freg(u, F), 4)
                if seg == 'E':
                    d = vr(self.ACC1 + 8 * (F % 3) + 4 * e, 4)
                    c = '0' if (kk == 0 and F < 3) else d
                    bf = vr(self.BF + 16 * (s % 2) + 8 * (F // 3) + 4 * e, 4)
                else:
                    d = vr((self.ACC1 if seg == 'z1' else self.ACC0) + 8 * F + 4 * e, 4)
                    c = '0' if kk == 0 else d
                    bf = vr(self.BF + 16 * (s % 2) + 8 * jj + 4 * e, 4)
                if seg == 'z2':
                    a.e(f'v_mfma_f32_16x16x32_bf16 {d}, {bf}, {af}, {c}')
                else:
                    a.e(f'v_mfma_f32_16x16x32_bf16 {d}, {af}, {bf}, {c}')
                used = 0
                needw = e == 1 and F % 2 == 0 and F + 1 < nf
                if needw:
                    used += 4
                if g == ng - 1:
                    used += 8
                target = max(12 * (g + 1), total * (g + 1) / ng)
                while True:
                    cand = None
                    if reads and reads[0][0] <= g and (not misc or len(reads) * 1.0 >= (ng - g) * 0.55 or misc[0][0] + used > 12):
                        cand = 'r'
                    elif misc:
                        cand = 'm'
                    elif reads and reads[0][0] <= g:
                        cand = 'r'
                    if cand is None:
                        break
                    cost = reads[0][1][0] if cand == 'r' else misc[0][0]
                    if g < ng - 1 and used + cost > 12 and done + used + cost > total * (g + 1) / ng:
                        break
                    (reads.pop(0)[1] if cand == 'r' else misc.pop(0))[1]()
                    used += cost
                done += used
                if needw:
                    a.wait_lg(('AR', u, F + 1))
                    a.wait_lg(('AR', u, min(F + 2, nf - 1)))
                    self.merge_waits()
            assert not reads and not misc
        a.e(f's_setprio {opt("pg", PG)[1]}')

    def merge_waits(self):
        ins = self.a.ins
        if len(ins) >= 2 and ins[-1].text.startswith('s_waitcnt lgkmcnt') and ins[-2].text.startswith('s_waitcnt lgkmcnt'):
            del ins[-2]

    def proj_store(self):
        a = self.a
        E = self.ACC1
        P = self.AF
        a.e(f's_mov_b32 s44, {hx(QSCALE)}')
        a.e(f's_mov_b32 s45, {hx(QSCALE)}')
        a.e('v_mov_b32 v24, s44')
        a.e('s_bitcmp1_b32 0x2c, s22')
        a.e(f's_cselect_b32 s46, {hx(2.0 ** VSH)}, 1.0')
        a.e('v_mov_b32 v25, s46')
        a.e('v_cmp_gt_u32 vcc, 32, v1')
        a.e('v_cndmask_b32 v24, v25, v24, vcc')
        a.e('s_lshl_b32 s46, s23, 5')
        a.e('s_add_u32 s46, s46, s22')
        a.e('s_mul_i32 s46, s46, 1152')
        a.e(f's_add_u32 s46, s46, {QF_OFF}')
        a.e(f's_add_u32 s47, s46, {16 * 1152}')
        a.e('v_lshlrev_b32 v25, 2, v1')
        for e in range(2):
            for t in range(2):
                for h in range(2):
                    r = E + 8 * t + 4 * e + 2 * h
                    a.e(f'v_pk_mul_f32 {vr(r, 2)}, {vr(r, 2)}, s[44:45]')
            for r in (E + 16 + 4 * e, E + 18 + 4 * e):
                a.e(f'v_pk_mul_f32 {vr(r, 2)}, {vr(r, 2)}, v[24:25] op_sel_hi:[1,0]')
            for t in range(3):
                for h in range(2):
                    r = E + 8 * t + 4 * e + 2 * h
                    a.e(f'v_cvt_pk_bf16_f32 v{P + 8 * e + 2 * t + h}, v{r}, v{r + 1}')
            for i in range(6):
                a.e(f'v_min_u32 v{P + 8 * e + i}, -2, v{P + 8 * e + i}')
            a.vm(f'buffer_store_dwordx4 {vr(P + 8 * e, 4)}, v19, s[12:15], s{46 + e} offen {SC}', 'pst')
        a.e('s_mov_b32 exec_hi, 0')
        for e in range(2):
            a.vm(f'buffer_store_dword v{P + 8 * e + 4}, v25, s[12:15], s{46 + e} offen offset:1024 {SC}', 'pst')
        a.e('s_mov_b64 exec, -1')
        le = a.newlabel('PJ_E')
        lv = a.newlabel('PJ_V')
        lt = a.newlabel('PJ_T')
        ls = a.newlabel('PJ_S')
        a.e('s_cmp_ge_u32 s22, 6')
        a.e(f's_cbranch_scc1 {le}')
        a.e(f's_mul_i32 s44, s23, {KV_TILE}')
        a.e(f's_add_u32 s44, s44, {KV_OFF}')
        a.e('v_and_b32 v24, 15, v1')
        a.e('v_bfe_u32 v25, v1, 4, 1')
        a.e('v_lshrrev_b32 v26, 2, v24')
        a.e('v_mul_u32_u24 v26, 168, v26')
        a.e('v_add_u32 v26, 1152, v26')
        a.e('v_and_b32 v27, 3, v1')
        a.e('s_mov_b32 exec_lo, 0')
        a.e('s_cmp_ge_u32 s22, 4')
        a.e(f's_cbranch_scc1 {lt}')
        a.e('s_cmp_ge_u32 s22, 2')
        a.e(f's_cbranch_scc1 {lv}')
        a.e('v_lshlrev_b32 v28, 4, v24')
        a.e('v_lshl_add_u32 v28, v25, 3, v28')
        a.e('s_lshl_b32 s45, s22, 9')
        a.e('s_add_u32 s44, s44, s45')
        a.e('s_add_u32 s45, s44, 256')
        a.e(f's_branch {ls}')
        a.label(lv)
        a.e('v_lshl_add_u32 v28, v27, 5, v26')
        a.e('v_lshl_add_u32 v28, v25, 3, v28')
        a.e('s_and_b32 s45, s22, 1')
        a.e('s_lshl_b32 s45, s45, 4')
        a.e('s_add_u32 s44, s44, s45')
        a.e(f's_add_u32 s45, s44, {4 * 168}')
        a.e(f's_branch {ls}')
        a.label(lt)
        lvt = a.newlabel('PJ_VT')
        a.e('s_cmp_eq_u32 s22, 5')
        a.e(f's_cbranch_scc1 {lvt}')
        a.e('v_lshlrev_b32 v28, 2, v24')
        a.e('s_mov_b32 exec_hi, 0xffff')
        for e in range(2):
            a.e(f'buffer_store_dword v{P + 8 * e + 4}, v28, s[12:15], s44 offen offset:{1024 + 64 * e} {SC}')
        a.e(f's_branch {le}')
        a.label(lvt)
        a.e('v_lshl_add_u32 v28, v27, 3, v26')
        a.e('v_add_u32 v28, 128, v28')
        a.e('v_add_u32 v29, 160, v26')
        a.e('v_cmp_eq_u32 vcc, 0, v25')
        a.e('v_cndmask_b32 v28, v29, v28, vcc')
        a.e(f'v_mov_b32 v29, {f2u(2.0 ** VSH) >> 16}')
        for e in range(2):
            a.e(f'v_cndmask_b32 v{P + 8 * e + 4}, 0, v{P + 8 * e + 4}, vcc')
            a.e(f'v_cndmask_b32 v{P + 8 * e + 5}, 0, v29, vcc')
        a.e(f's_add_u32 s45, s44, {4 * 168}')
        a.label(ls)
        for e in range(2):
            a.e(f'buffer_store_dwordx2 {vr(P + 8 * e + 4, 2)}, v28, s[12:15], s{44 + e} offen {SC}')
        a.label(le)
        a.e('s_mov_b64 exec, -1')

    def mk_load(self):
        self.a.e(f'buffer_load_dwordx2 v[26:27], v23, s[12:15], s47 offen {SC}')

    def mk_addr(self):
        a = self.a
        a.e('s_bfe_u32 s47, s22, 0x20001')
        a.e('s_lshl_b32 s47, s47, 3')
        a.e('s_bfe_u32 s45, s23, 0x30001')
        a.e('s_add_u32 s47, s47, s45')
        a.e('s_lshl_b32 s47, s47, 3')
        a.e('s_and_b32 s45, s2, 7')
        a.e('s_add_u32 s47, s47, s45')
        a.e('s_lshl_b32 s47, s47, 7')
        a.e('s_and_b32 s45, s23, 1')
        a.e('s_lshl_b32 s45, s45, 3')
        a.e('s_add_u32 s47, s47, s45')
        a.e(f's_add_u32 s47, s47, {GO_OFF}')

    def proj_signal(self):
        a = self.a
        a.wait_vm('pst')
        a.e('v_mov_b32 v28, s62')
        a.e('s_barrier')
        l = a.newlabel('PS')
        a.e('s_cmp_ge_u32 s22, 6')
        a.e(f's_cbranch_scc1 {l}')
        a.e('s_cmp_lg_u32 s20, 0')
        a.e(f's_cbranch_scc1 {l}')
        a.e('s_mul_i32 s44, s21, 6')
        a.e('s_add_u32 s44, s44, s22')
        a.e('s_lshl_b32 s44, s44, 2')
        a.e(f's_add_u32 s44, s44, {KVF_OFF}')
        a.e('v_lshlrev_b32 v27, 9, v1')
        a.e('s_mov_b64 exec, 0xff')
        a.e(f'buffer_store_dword v28, v27, s[12:15], s44 offen {SC}')
        a.e('s_mov_b64 exec, -1')
        a.label(l)

    def gelu_consts(self):
        a = self.a
        a.e(f's_mov_b32 s60, {hx(GELU_C1)}')
        a.e(f's_mov_b32 s61, {hx(GELU_C1)}')
        a.e(f'v_mov_b32 v30, {hx(GELU_C0)}')
        a.e(f'v_mov_b32 v31, {hx(GELU_C0)}')

    def z1_gelu(self, Fs=range(9)):
        a = self.a
        T = self.BF + 16
        for F in Fs:
            base = self.ACC1 + 8 * F
            gelu_group(a, [base + 2 * i for i in range(4)], T + 8 * (F % 2), 60, 30)

    def z2_gelu_publish(self):
        a = self.a
        T = self.AF + 16
        S = self.BF
        for F in range(9):
            if F == opt('psig', [5])[0]:
                self.proj_signal()
            base = self.ACC0 + 8 * F
            gelu_group(a, [base + 2 * i for i in range(4)], T + 8 * (F % 2), 60, 30)
            for i in range(4):
                y = vr(base + 2 * i, 2)
                if F == 0:
                    a.e(f'v_pk_add_f32 {vr(S + 2 * i, 2)}, {y}, 0 op_sel_hi:[1,0]')
                    a.e(f'v_pk_mul_f32 {vr(S + 8 + 2 * i, 2)}, {y}, {y}')
                else:
                    a.e(f'v_pk_add_f32 {vr(S + 2 * i, 2)}, {vr(S + 2 * i, 2)}, {y}')
                    a.e(f'v_pk_fma_f32 {vr(S + 8 + 2 * i, 2)}, {y}, {y}, {vr(S + 8 + 2 * i, 2)}')
        for b in (S, S + 8):
            for r in range(4):
                a.e(f'v_add_f32_dpp v{b + r}, v{b + r}, v{b + r} row_ror:8 row_mask:0xf bank_mask:0x3')
            for r in range(4):
                a.e(f'v_add_f32_dpp v{b + r}, v{b + r + 4}, v{b + r + 4} row_ror:8 row_mask:0xf bank_mask:0xc')
        for b in (S, S + 8):
            for r in range(2):
                a.e(f'v_add_f32_dpp v{b + r}, v{b + r}, v{b + r} row_shl:4 row_mask:0xf bank_mask:0x5')
            for r in range(2):
                a.e(f'v_add_f32_dpp v{b + r}, v{b + r + 2}, v{b + r + 2} row_shr:4 row_mask:0xf bank_mask:0xa')
        for qp in ('[1,0,3,2]', '[2,3,0,1]'):
            for r in (S, S + 1, S + 8, S + 9):
                a.e(f'v_add_f32_dpp v{r}, v{r}, v{r} quad_perm:{qp} row_mask:0xf bank_mask:0xf')
        a.e('v_and_b32 v25, 1, v1')
        a.e('v_cmp_eq_u32 vcc, 1, v25')
        G0 = S + 12
        a.e(f'v_cndmask_b32 v{G0}, v{S}, v{S + 1}, vcc')
        a.e(f'v_cndmask_b32 v{G0 + 2}, v{S + 8}, v{S + 9}, vcc')
        a.e('v_lshrrev_b32 v27, 2, v1')
        a.e('v_lshl_add_u32 v27, v27, 1, v25')
        a.e('v_lshlrev_b32 v27, 4, v27')
        a.e('s_lshl_b32 s48, s23, 13')
        a.e(f's_add_u32 s48, s48, {STATS_OFF}')
        a.e('s_lshl_b32 s49, s22, 9')
        a.e('s_add_u32 s49, s49, s48')
        a.e(f'v_mov_b32 v{G0 + 1}, s62')
        a.e(f'v_mov_b32 v{G0 + 3}, s62')
        a.e('s_mov_b32 exec_lo, 0x33333333')
        a.e('s_mov_b32 exec_hi, 0x33333333')
        a.vm(f'buffer_store_dwordx4 {vr(G0, 4)}, v27, s[12:15], s49 offen {SC}', 'st')
        a.e('s_mov_b64 exec, -1')

    def z2_gather_norm_store(self):
        a = self.a
        G = self.AF
        a.e('s_add_u32 s49, s48, 4096')

        def ld():
            for i in range(8):
                a.e(f'buffer_load_dwordx4 {vr(G + 4 * i, 4)}, v19, s[12:15], {"s48" if i < 4 else "s49"} offen offset:{1024 * (i % 4)} {SC}')
        poll(a, ld, [G + 2 * i + 1 for i in range(16)], 27)
        for o in (0, 2):
            a.e(f'v_add_f32 v{G + o}, v{G + o}, v{G + 4 + o}')
            a.e(f'v_add_f32 v{G + 8 + o}, v{G + 8 + o}, v{G + 12 + o}')
            a.e(f'v_add_f32 v{G + 16 + o}, v{G + 16 + o}, v{G + 20 + o}')
            a.e(f'v_add_f32 v{G + 24 + o}, v{G + 24 + o}, v{G + 28 + o}')
        for o in (0, 2):
            a.e(f'v_add_f32 v{G + o}, v{G + o}, v{G + 8 + o}')
            a.e(f'v_add_f32 v{G + 16 + o}, v{G + 16 + o}, v{G + 24 + o}')
        a.e(f'v_add_f32 v{G}, v{G}, v{G + 16}')
        a.e(f'v_add_f32 v{G + 1}, v{G + 2}, v{G + 18}')
        a.e(f'v_mov_b32 v{G + 2}, v{G}')
        a.e(f'v_mov_b32 v{G + 3}, v{G + 1}')
        a.e(f'v_permlane32_swap_b32 v{G}, v{G + 2}')
        a.e(f'v_permlane32_swap_b32 v{G + 1}, v{G + 3}')
        a.e(f'v_pk_add_f32 {vr(G, 2)}, {vr(G, 2)}, {vr(G + 2, 2)}')
        a.e(f'v_mul_f32 v{G}, {hx(1.0 / 2304)}, v{G}')
        a.e(f'v_mul_f32 v{G + 1}, {hx(1.0 / 2304)}, v{G + 1}')
        a.e(f'v_fma_f32 v{G + 1}, -v{G}, v{G}, v{G + 1}')
        a.e(f'v_max_f32 v{G + 1}, 0, v{G + 1}')
        a.e(f'v_add_f32 v{G + 1}, {hx(1e-5)}, v{G + 1}')
        a.e(f'v_rsq_f32 v{G + 1}, v{G + 1}')
        a.e(f'v_mul_f32 v{G}, v{G}, v{G + 1}')
        a.e(f'v_sub_f32 v{G}, 0, v{G}')
        a.e('v_lshrrev_b32 v28, 4, v1')
        a.e('v_lshlrev_b32 v28, 5, v28')
        RS = self.BF
        for i in range(8):
            a.lg(f'ds_bpermute_b32 v{RS + i}, v28, v{G + 1} offset:{4 * i}', 'r')
            a.lg(f'ds_bpermute_b32 v{RS + 8 + i}, v28, v{G} offset:{4 * i}', 'r')
        a.e('s_mul_i32 s44, s23, 147456')
        a.e(f's_add_u32 s44, s44, {Z2_OFF}')
        a.e('s_lshl_b32 s45, s22, 13')
        a.e('s_add_u32 s45, s45, s44')
        a.e('s_add_u32 s47, s45, 4096')
        a.e('s_lshl_b32 s46, s22, 10')
        a.e('s_add_u32 s46, s46, s44')
        a.e(f's_add_u32 s46, s46, {128 * 1024}')
        a.wait_lg0()
        for F in range(9):
            base = self.ACC0 + 8 * F
            pk = self.ACC0 + 4 * F
            for i in range(4):
                a.e(f'v_pk_fma_f32 {vr(base + 2 * i, 2)}, {vr(base + 2 * i, 2)}, {vr(RS + 2 * i, 2)}, {vr(RS + 8 + 2 * i, 2)}')
            for i in range(4):
                a.e(f'v_cvt_pk_bf16_f32 v{pk + i}, v{base + 2 * i}, v{base + 2 * i + 1}')
            so = 's46' if F == 8 else ('s45' if F < 4 else 's47')
            it = self.D(f'buffer_store_dwordx4 {vr(pk, 4)}, v19, s[12:15], {so} offen offset:{1024 * (F % 4)} {SC}', 'st')
            if F < opt('spr', [9, 2])[0]:
                it[1]()
            else:
                self.extra.append(it)

    def own_write(self):
        a = self.a
        a.e('s_lshl_b32 s44, s20, 13')
        a.e('v_add_u32 v27, s44, v19')
        a.e('v_add_u32 v28, s30, v19')
        a.e('s_barrier')
        for F in range(9):
            pk = self.ACC0 + 4 * F
            if F < 8:
                a.lg(f'ds_write_b128 v27, {vr(pk, 4)} offset:{1024 * F}', 'own')
            else:
                a.lg(f'ds_write_b128 v28, {vr(pk, 4)} offset:4096', 'own')

    def sp_pre(self):
        a = self.a
        a.e('v_bfe_u32 v27, v1, 2, 2')
        a.e('v_lshlrev_b32 v27, 3, v27')
        a.e('v_and_b32 v28, 3, v1')
        a.e('s_lshl_b32 s44, s23, 5')
        a.e('v_add3_u32 v27, v27, v28, s44')
        a.e('v_lshlrev_b32 v28, 1, v27')
        a.e('v_lshlrev_b32 v11, 3, v27')
        a.vm('global_load_ushort v244, v28, s[56:57]', 'pre')
        a.vm('global_load_ushort v245, v28, s[56:57] offset:8', 'pre')
        self.gate_loads(True)

    def gate_loads(self, track=False):
        a = self.a
        a.e(f's_mov_b32 s44, {GATE_OFF}')
        for e in range(2):
            t = f'buffer_load_dwordx2 {vr(246 + 2 * e, 2)}, v11, s[12:15], s44 offen offset:{32 * e} {SC}'
            a.vm(t, 'pre') if track else a.e(t)

    def sp_epilogue(self):
        a = self.a
        a.wait_vm('pre')
        poll(a, self.gate_loads, [247, 249], 27, first_done=True)
        poll(a, lambda: p3_flags(a), [2, 3, 4], 27, first_done=True)
        for e in range(2):
            a.e(f'v_sub_f32 v{246 + 2 * e}, 1.0, v{246 + 2 * e}')
            a.e(f'v_lshlrev_b32 v{244 + e}, 16, v{244 + e}')
            a.e(f'v_mul_f32 v{250 + 2 * e}, v{244 + e}, v{246 + 2 * e}')
        a.e('s_mul_i32 s44, s23, 180')
        a.e('s_lshr_b32 s45, s22, 2')
        a.e('s_mul_i32 s45, s45, 18')
        a.e('s_add_u32 s44, s44, s45')
        a.e('s_lshl_b32 s44, s44, 10')
        a.e(f's_add_u32 s44, s44, {UF_OFF + 18 * 1024}')
        a.e('s_and_b32 s45, s22, 3')
        a.e('s_lshl_b32 s46, s45, 12')
        a.e('s_add_u32 s46, s46, s44')
        a.e(f's_add_u32 s47, s46, {90 * 1024}')
        a.e('s_lshr_b32 s48, s45, 1')
        a.e('s_lshl_b32 s48, s48, 10')
        a.e('s_add_u32 s48, s48, s44')
        a.e('s_and_b32 s49, s45, 1')
        a.e('s_lshl_b32 s49, s49, 3')
        a.e('s_add_u32 s48, s48, s49')
        a.e(f's_add_u32 s48, s48, {16 * 1024}')
        a.e(f's_add_u32 s49, s48, {90 * 1024}')
        idx = 0
        for m in range(5):
            for e in range(2):
                pk = self.AF + 4 * idx
                idx += 1
                Fs = (2 * m, 2 * m + 1) if m < 4 else (8,)
                prs = [(self.ACC0 + 8 * F + 4 * e + 2 * i, self.ACC1 + 8 * F + 4 * e + 2 * i) for F in Fs for i in range(2)]
                for g, z in prs:
                    a.e(f'v_pk_fma_f32 {vr(g, 2)}, {vr(g, 2)}, {vr(246 + 2 * e, 2)}, {vr(250 + 2 * e, 2)} op_sel_hi:[1,0,0]')
                for g, z in prs:
                    a.e(f'v_pk_mul_f32 {vr(g, 2)}, {vr(g, 2)}, {vr(z, 2)}')
                for i, (g, z) in enumerate(prs):
                    a.e(f'v_cvt_pk_bf16_f32 v{pk + i}, v{g}, v{g + 1}')
                for i in range(len(prs)):
                    a.e(f'v_min_u32 v{pk + i}, -2, v{pk + i}')
                if m < 4:
                    a.vm(f'buffer_store_dwordx4 {vr(pk, 4)}, v19, s[12:15], s{46 + e} offen offset:{1024 * m} {SC}', 'st')
                else:
                    a.vm(f'buffer_store_dwordx2 {vr(pk, 2)}, v19, s[12:15], s{48 + e} offen {SC}', 'st')


def write_nonce(a):
    l = a.newlabel('NOW')
    a.e('s_cmp_lg_u32 s3, 0')
    a.e(f's_cbranch_scc1 {l}')
    a.e(f's_add_u32 s44, s26, {KV_OFF}')
    for i in range(10):
        a.e(f'buffer_store_dwordx4 v[224:227], v10, s[12:15], s44 offen {SC}')
        a.e('s_add_u32 s44, s44, 1024')
    a.e('s_memrealtime s[44:45]')
    a.e('s_waitcnt vmcnt(0) lgkmcnt(0)')
    a.e('s_barrier')
    a.e('s_cmp_lg_u32 s20, 0')
    a.e(f's_cbranch_scc1 {l}')
    a.e('v_mov_b32 v29, 0')
    a.e('s_or_b32 s44, s44, 1')
    a.e('v_mov_b32 v28, s44')
    a.e(f'global_store_dword v29, v28, s[16:17] {SC}')
    a.label(l)


KVBUF = 40960
M_OFFSET = 96.0
VSH = 32


class ATT:
    SB = 16
    OB = 48
    QF = 80
    KF = 96
    VF = 112
    PF = 128
    XF = 136
    WF = 208
    WQS = 16

    def __init__(self, a):
        self.a = a

    def setup(self, sid):
        a = self.a
        a.e(f's_load_dwordx2 s[4:5], s[0:1], {A_X}')
        a.e(f's_load_dwordx4 s[16:19], s[0:1], {A_DBG}')
        a.e(f's_load_dwordx4 s[56:59], s[0:1], {A_WOUT}')
        a.e(f's_load_dwordx2 s[36:37], s[0:1], {A_WO}')
        a.e(f's_load_dwordx2 s[60:61], s[0:1], {A_WSP}')
        a.e('v_lshrrev_b32 v1, 6, v0')
        a.e('v_readfirstlane_b32 s20, v1')
        a.e('v_and_b32 v1, 63, v0')
        a.e(f's_and_b32 s24, s{sid}, 3')
        a.e(f's_lshr_b32 s25, s{sid}, 3')
        a.e('s_lshl_b32 s21, s24, 3')
        a.e('s_and_b32 s23, s25, 7')
        a.e('s_add_u32 s21, s21, s23')
        a.e(f's_and_b32 s22, s{sid}, 4')
        a.e('s_lshr_b32 s23, s25, 3')
        a.e('s_add_u32 s22, s22, s23')
        a.e('s_lshl_b32 s23, s21, 2')
        a.e('s_add_u32 s23, s23, s20')
        a.e('s_lshr_b32 s44, s23, 1')
        a.e('s_lshl_b32 s44, s44, 5')
        a.e('s_and_b32 s45, s23, 1')
        a.e('s_lshl_b32 s45, s45, 2')
        a.e('s_add_u32 s44, s44, s45')
        a.e('v_bfe_u32 v3, v1, 2, 2')
        a.e('v_lshlrev_b32 v3, 3, v3')
        a.e('v_and_b32 v10, 3, v1')
        a.e('v_add3_u32 v3, v3, v10, s44')
        a.e('v_lshlrev_b32 v3, 3, v3')
        a.e('s_mul_i32 s26, s20, 10240')
        a.e('s_lshl_b32 s27, s25, 2')
        a.e('s_add_u32 s27, s27, s20')
        if 'nocodepf' not in ABL:
            a.e('s_getpc_b64 s[8:9]')
            a.label('K_PC')
            a.e('s_sub_u32 s8, s8, K_PC-K_GEMM')
            a.e('s_subb_u32 s9, s9, 0')
            a.e('s_mul_i32 s45, s27, 5')
            a.e('v_min_u32 v10, 4, v1')
            a.e('v_add_u32 v10, s45, v10')
            a.e('v_min_u32 v10, CODE_LINES, v10')
            a.e('v_lshlrev_b32 v238, 7, v10')
            a.e('global_load_dword v239, v238, s[8:9]')
        a.e('v_lshlrev_b32 v10, 4, v1')
        a.e('s_waitcnt lgkmcnt(0)')
        a.e('s_mov_b32 s12, s18')
        a.e('s_mov_b32 s13, s19')
        srd(a, 12, WS_SIZE)

    def nonce(self):
        a = self.a
        a.e('s_waitcnt vmcnt(0)')
        a.e('v_mov_b32 v2, 0')
        a.e(f'global_load_dword v4, v2, s[16:17] {SC}')
        a.e('s_waitcnt vmcnt(0)')
        get_nonce(a, 2, 4)

    def page_touch(self):
        a = self.a
        l = a.newlabel('PT')
        a.e('s_cmp_lg_u32 s20, 1')
        a.e(f's_cbranch_scc1 {l}')
        a.e(f's_load_dwordx2 s[44:45], s[0:1], {A_WSP}')
        a.e(f's_load_dwordx2 s[46:47], s[0:1], {A_OUT}')
        a.e('v_lshlrev_b32 v2, 19, v1')
        a.e('buffer_load_dword v255, v2, s[12:15], 0 offen')
        a.e('v_min_u32 v4, 15, v1')
        a.e('v_lshlrev_b32 v4, 19, v4')
        a.e('v_min_u32 v5, 4, v1')
        a.e('v_lshlrev_b32 v5, 19, v5')
        a.e('s_waitcnt lgkmcnt(0)')
        a.e('global_load_dword v255, v4, s[44:45]')
        a.e('global_load_dword v255, v5, s[46:47]')
        a.e('global_load_dword v255, v5, s[56:57]')
        a.label(l)

    SV = 140

    def side(self, part):
        a = self.a
        lg = a.newlabel('SJ_G')
        le = a.newlabel('SJ_E')
        a.e('s_cmp_eq_u32 s20, 3')
        a.e(f's_cbranch_scc1 {lg}')
        a.e(f's_cmp_ge_u32 s63, {0 if "nort" in ABL else 720}')
        a.e(f's_cbranch_scc1 {le}')
        self.retile(part)
        a.e(f's_branch {le}')
        a.label(lg)
        self.gate(part)
        a.label(le)
        if part == 2:
            self.mark_flag()

    def gate(self, part):
        a = self.a
        V = self.SV
        X, W = V + 8, V + 44
        if part == 0:
            a.e(f'v_lshrrev_b32 v{V}, 3, v1')
            a.e('s_lshl_b32 s44, s3, 3')
            a.e(f'v_add_u32 v{V}, s44, v{V}')
            a.e(f'v_and_b32 v{V + 1}, 7, v1')
            a.e(f'v_lshlrev_b32 v{V + 1}, 4, v{V + 1}')
            a.e(f'v_mul_u32_u24 v{V + 2}, 1152, v{V}')
            a.e(f'v_add_u32 v{V + 2}, v{V + 2}, v{V + 1}')
            for i in range(9):
                a.e(f'global_load_dwordx4 {vr(X + 4 * i, 4)}, v{V + 2}, s[4:5] offset:{128 * i}')
                a.e(f'global_load_dwordx4 {vr(W + 4 * i, 4)}, v{V + 1}, s[58:59] offset:{128 * i}')
        elif part == 1:
            A0, A1, T0, T1 = V + 4, V + 5, V + 6, V + 7
            a.e(f'v_mov_b32 v{A0}, 0')
            a.e(f'v_mov_b32 v{A1}, 0')
            for i in range(36):
                a.e(f'v_dot2c_f32_bf16 v{A0 + i % 2}, v{X + i}, v{W + i}')
            a.e('s_nop 3')
            a.e(f'v_add_f32 v{A0}, v{A0}, v{A1}')
            for m in ('quad_perm:[1,0,3,2]', 'quad_perm:[2,3,0,1]', 'row_half_mirror'):
                a.e(f'v_add_f32_dpp v{A0}, v{A0}, v{A0} {m} row_mask:0xf bank_mask:0xf')
            a.e(f'v_mul_f32 v{A0}, {hx(-1.4426950408889634)}, v{A0}')
            a.e(f'v_exp_f32 v{A0}, v{A0}')
            a.e(f'v_add_f32 v{A0}, 1.0, v{A0}')
            a.e(f'v_rcp_f32 v{A0}, v{A0}')
            a.e(f'v_mov_b32 v{A1}, s62')
            a.e(f'v_lshlrev_b32 v{V}, 3, v{V}')
            a.e(f's_mov_b32 s44, {GATE_OFF}')
            a.e('s_mov_b32 exec_lo, 0x01010101')
            a.e('s_mov_b32 exec_hi, 0x01010101')
            a.e(f'buffer_store_dwordx2 {vr(A0, 2)}, v{V}, s[12:15], s44 offen {SC}')
            a.e('s_mov_b64 exec, -1')

    def retile_setup(self):
        a = self.a
        V = self.SV
        a.e('s_mul_i32 s63, s3, 3')
        a.e('s_add_u32 s63, s63, s20')
        a.e('s_and_b32 s64, s63, 7')
        a.e('s_lshr_b32 s65, s63, 3')
        a.e('s_cmp_lt_u32 s65, 18')
        a.e('s_cselect_b32 s40, s36, s56')
        a.e('s_cselect_b32 s41, s37, s57')
        a.e(f's_mov_b32 s42, {2304 * 1152}')
        a.e(f's_cselect_b32 s42, {576 * 1152}, s42')
        a.e('s_mov_b32 s43, 0x00020000')
        a.e('s_sub_u32 s44, s65, 18')
        a.e('s_mul_i32 s45, s44, 57')
        a.e('s_lshr_b32 s45, s45, 10')
        a.e('s_mul_i32 s46, s45, 18')
        a.e('s_sub_u32 s44, s44, s46')
        a.e('s_lshl_b32 s46, s45, 9')
        a.e('s_lshl_b32 s47, s45, 6')
        a.e(f's_add_u32 s47, s47, {2048 - 512}')
        a.e('s_cmp_lt_u32 s44, 16')
        a.e('s_cselect_b32 s46, s46, s47')
        a.e('s_lshl_b32 s44, s44, 5')
        a.e('s_add_u32 s44, s44, s46')
        a.e('s_mov_b32 s45, 4')
        a.e('s_mov_b32 s46, 8')
        a.e('s_mov_b32 s47, 16')
        a.e('s_mov_b32 s48, 2')
        a.e('s_sub_u32 s49, s65, 16')
        a.e('s_mul_i32 s49, s49, 288')
        a.e('s_add_u32 s49, s49, 16')
        a.e('s_cmp_lt_u32 s65, 18')
        a.e('s_cselect_b32 s44, s49, s44')
        a.e('s_cselect_b32 s45, 72, s45')
        a.e('s_cselect_b32 s46, 144, s46')
        a.e('s_cselect_b32 s47, 36, s47')
        a.e('s_cselect_b32 s48, 18, s48')
        a.e('s_mul_i32 s49, s65, 36')
        a.e('s_cmp_lt_u32 s65, 16')
        a.e('s_cselect_b32 s44, s49, s44')
        a.e('s_cselect_b32 s45, 18, s45')
        a.e('s_cselect_b32 s46, 4, s46')
        a.e('s_cselect_b32 s47, 8, s47')
        a.e('s_cselect_b32 s48, 2, s48')
        for r in (44, 45, 46, 47):
            a.e(f's_mul_i32 s{r}, s{r}, 1152')
        a.e('s_mul_i32 s49, s64, 144')
        a.e('s_add_u32 s66, s44, s49')
        a.e('s_add_u32 s67, s66, s47')
        for i in range(2):
            a.e(f's_add_u32 s{68 + i}, s{66 + i}, s45')
        for i in range(4):
            a.e(f's_add_u32 s{70 + i}, s{66 + i}, s46')
        a.e(f'v_lshrrev_b32 v{V}, 5, v1')
        a.e(f'v_mul_lo_u32 v{V}, v{V}, s48')
        a.e('v_bfe_u32 v5, v1, 4, 1')
        a.e(f'v_add_u32 v{V}, v{V}, v5')
        a.e(f'v_mul_u32_u24 v{V}, 1152, v{V}')
        a.e('v_and_b32 v5, 15, v1')
        a.e('v_min_u32 v5, 8, v5')
        a.e(f'v_lshl_add_u32 v{V}, v5, 4, v{V}')
        a.e('v_lshrrev_b32 v5, 4, v1')
        a.e('v_bfe_u32 v6, v1, 2, 2')
        a.e('v_lshlrev_b32 v7, 11, v5')
        a.e('v_lshl_add_u32 v7, v6, 8, v7')
        a.e(f's_add_u32 s44, s26, {KVBUF}')
        a.e('v_add_u32 v7, s44, v7')
        a.e('v_and_b32 v6, 3, v1')
        a.e(f'v_lshl_add_u32 v{V + 2}, v6, 3, v7')
        a.e(f'v_lshl_add_u32 v{V + 1}, v6, 4, v7')
        a.e('v_and_b32 v6, 7, v1')
        a.e('v_lshl_add_u32 v5, v5, 3, v6')
        a.e('v_lshlrev_b32 v5, 4, v5')
        a.e(f'v_add_u32 v{V + 3}, 4096, v5')

    def retile(self, part):
        a = self.a
        V = self.SV
        F = V + 8
        if part == 0:
            for i in range(8):
                a.e(f's_add_u32 m0, s26, {KVBUF + 1024 * i}')
                a.e(f'buffer_load_dwordx4 v{V}, s[40:43], s{66 + i} offen lds')
        elif part == 1:
            for nt in range(5):
                for j in range(2):
                    if nt < 4:
                        a.e(f'ds_read_b64_tr_b16 {vr(F + 4 * nt + 2 * j, 2)}, v{V + 1} offset:{64 * (nt // 2) + 8 * (nt % 2) + 1024 * j}')
                    else:
                        a.e(f'ds_read_b64_tr_b16 {vr(F + 4 * nt + 2 * j, 2)}, v{V + 2} offset:{128 + 1024 * j}')
            a.e('s_mul_i32 s44, s64, 90')
            a.e('s_add_u32 s44, s44, s65')
            a.e('s_mul_i32 s44, s44, 4608')
            a.e(f's_add_u32 s44, s44, {W3_OFF}')
            a.e('s_waitcnt lgkmcnt(0)')
            for nt in range(4):
                a.e(f'buffer_store_dwordx4 {vr(F + 4 * nt, 4)}, v10, s[12:15], s44 offen offset:{1024 * nt} {SC}')
            a.e('s_mov_b32 exec_lo, 0x00ff00ff')
            a.e('s_mov_b32 exec_hi, 0x00ff00ff')
            a.e(f'buffer_store_dwordx4 {vr(F + 16, 4)}, v{V + 3}, s[12:15], s44 offen {SC}')
            a.e('s_mov_b64 exec, -1')
        else:
            a.e('s_lshl_b32 s44, s64, 7')
            a.e('s_add_u32 s44, s44, s65')
            a.e('s_lshl_b32 s44, s44, 2')
            a.e(f's_add_u32 s44, s44, {FW3_OFF}')
            set_flag(a, 44, V + 4)

    def issue_kv(self, buf_s=None, buf=None, flags=''):
        a = self.a
        for g in range(3):
            if buf_s is not None:
                a.e(f's_add_u32 m0, s{buf_s}, {4096 * g}')
            else:
                a.e(f's_add_u32 m0, s31, {buf * KVBUF + 4096 * g}')
            for i in range(4 if g < 2 else 2):
                a.vm(f'buffer_load_dwordx4 v15, s[12:15], s30 offen offset:{1024 * i} {flags} lds', 'kv')
            a.e('s_add_u32 s30, s30, 4096')
        a.e(f's_add_u32 s30, s30, {16 * KV_TILE - 3 * 4096}')

    def q_phase(self):
        a = self.a
        a.e('s_mov_b32 s31, s26')
        a.e('v_add_u32 v15, s31, v10')
        a.e(f's_mov_b32 s30, {KV_OFF}')
        l = a.newlabel('KVR')
        a.e('s_cmp_lg_u32 s20, 0')
        a.e(f's_cbranch_scc1 {l}')
        self.nonce()
        a.e('v_mov_b32 v4, s62')
        a.e('ds_write_b32 v2, v4')
        a.e('s_waitcnt lgkmcnt(0)')
        a.label(l)
        a.e('s_barrier')
        a.e('v_mov_b32 v2, 0')
        a.e('ds_read_b32 v40, v2')
        a.e('s_lshl_b32 s48, s23, 3')
        a.e('s_add_u32 s48, s48, s22')
        a.e('s_mul_i32 s48, s48, 2304')
        a.e(f's_add_u32 s48, s48, {QF_OFF}')
        for i in range(2):
            a.e(f'buffer_store_dwordx4 v[224:227], v10, s[12:15], s48 offen offset:{1024 * i} {SC}')
        a.e(f'buffer_store_dword v224, v228, s[12:15], s48 offen offset:2048 {SC}')
        a.e('s_lshl_b32 s44, s3, 5')
        a.e('s_add_u32 s44, s44, s20')
        a.e('s_lshl_b32 s44, s44, 2')
        a.e(f's_add_u32 s44, s44, {GO_OFF}')
        a.e('v_and_b32 v11, 31, v1')
        a.e('v_lshlrev_b32 v11, 2, v11')
        a.e('v_add_u32 v11, 1024, v11')
        a.e('s_waitcnt vmcnt(0) lgkmcnt(0)')
        a.e('v_readfirstlane_b32 s62, v40')
        set_flag(a, 44, 42)
        for p in range(2):
            for i in (5, 6, 7):
                a.e(f'v_mov_b32 v{self.QF + 8 * p + i}, 0')
            a.e(f'v_mov_b32 v{self.KF + 8 * p + 5}, 0x3f803f80')
            a.e(f'v_mov_b32 v{self.KF + 8 * p + 6}, 0x3f803f80')
            a.e(f'v_mov_b32 v{self.KF + 8 * p + 7}, 0')
        a.e('v_lshrrev_b32 v2, 5, v1')
        a.e('v_lshlrev_b32 v2, 2, v2')
        a.e('v_bfe_u32 v4, v1, 3, 1')
        a.e('v_lshl_add_u32 v2, v4, 1, v2')
        a.e('v_mul_u32_u24 v12, 168, v2')
        a.e('v_add_u32 v12, 1152, v12')
        a.e('v_bfe_u32 v4, v1, 4, 1')
        a.e('v_bfe_u32 v13, v1, 2, 1')
        a.e('v_mul_u32_u24 v14, 168, v4')
        a.e('v_add_u32 v14, v14, v12')
        a.e('v_and_b32 v8, 1, v1')
        a.e('v_lshl_add_u32 v8, v8, 1, v13')
        a.e('v_lshl_add_u32 v8, v8, 3, v14')
        a.e('v_add_u32 v8, 128, v8')
        a.e('v_add_u32 v9, 160, v14')
        a.e('v_and_b32 v2, 2, v1')
        a.e('v_cmp_eq_u32 vcc, 0, v2')
        a.e(f'v_cndmask_b32 v{self.TB}, v9, v8, vcc')
        a.e(f'v_cndmask_b32 v{self.TB + 1}, v8, v9, vcc')
        a.e('v_lshl_add_u32 v2, v4, 1, v13')
        a.e('v_lshl_add_u32 v12, v2, 5, v12')
        a.e('v_and_b32 v2, 3, v1')
        a.e('v_lshl_add_u32 v12, v2, 3, v12')
        a.e('v_mul_u32_u24 v14, 0xaaaa, v13')
        a.e('v_add_u32 v14, 0x4444, v14')
        a.e('v_mul_u32_u24 v13, 0xaaaa, v4')
        a.e('v_add_u32 v13, 0x4444, v13')
        self.point(KVBUF)
        a.e('s_and_b32 s49, s3, 7')
        a.e('s_lshl_b32 s49, s49, 9')
        a.e(f's_add_u32 s49, s49, {KVF_OFF}')
        a.e('v_min_u32 v230, 47, v1')
        a.e('v_lshlrev_b32 v230, 3, v230')
        lq = a.newlabel('QW')
        lo = a.newlabel('QOK')
        lh = a.newlabel('QH')
        a.e(f's_mov_b32 s51, {SPIN_MAX}')
        a.label(lh)
        a.e(f's_sleep {opt("qsl", [12])[0]}')
        a.e(f'buffer_load_dword v2, v11, s[12:15], s48 offen offset:1152 {SCL}')
        a.e('s_sub_u32 s51, s51, 1')
        a.e('s_waitcnt vmcnt(0)')
        a.e('v_cmp_eq_u32 vcc, -1, v2')
        a.e('s_cmp_eq_u32 s51, 1')
        a.e(f's_cbranch_scc1 {lq}')
        a.e(f's_cbranch_vccnz {lh}')
        a.e('s_setprio 3')
        a.label(lq)
        for p in range(2):
            a.e(f'buffer_load_dwordx4 {vr(self.QF + 8 * p, 4)}, v10, s[12:15], s48 offen offset:{1152 * p} {SCL}')
            a.e(f'buffer_load_dword v{self.PF + p}, v11, s[12:15], s48 offen offset:{1152 * p} {SCL}')
        a.e('s_waitcnt vmcnt(0)')
        a.e(f'v_max_u32 v2, v{self.PF}, v{self.PF + 1}')
        for r in (0, 2, 8, 10):
            a.e(f'v_max3_u32 v2, v{self.QF + r}, v{self.QF + r + 1}, v2')
        a.e('v_cmp_eq_u32 vcc, -1, v2')
        a.e(f's_cbranch_vccz {lo}')
        a.e('s_sleep 2')
        a.e('s_sub_u32 s51, s51, 1')
        a.e('s_cmp_lg_u32 s51, 0')
        a.e(f's_cbranch_scc1 {lq}')
        a.label(lo)
        stamp(a, 6)
        lk = a.newlabel('KW')
        lo = a.newlabel('KOK')
        a.e(f'v_add_u32 v4, {KVBUF}, v15')
        a.e(f's_mov_b32 s51, {SPIN_MAX}')
        a.label(lk)
        a.e(f's_mov_b32 s30, {KV_OFF}')
        self.issue_kv(buf=1, flags=SCL)
        a.e('s_waitcnt vmcnt(0)')
        for i in range(10):
            a.e(f'ds_read_b128 {vr(16 + 4 * i, 4)}, v4 offset:{1024 * i}')
        a.e('s_waitcnt lgkmcnt(0)')
        a.e('v_max_u32 v2, v16, v17')
        a.e('v_max_u32 v8, v18, v19')
        for i in range(20, 56, 4):
            a.e(f'v_max3_u32 v2, v{i}, v{i + 1}, v2')
            a.e(f'v_max3_u32 v8, v{i + 2}, v{i + 3}, v8')
        a.e('v_max_u32 v2, v2, v8')
        a.e('v_cmp_eq_u32 vcc, -1, v2')
        a.e(f's_cbranch_vccz {lo}')
        a.e('s_sleep 8')
        a.e('s_sub_u32 s51, s51, 1')
        a.e('s_cmp_lg_u32 s51, 0')
        a.e(f's_cbranch_scc1 {lk}')
        a.label(lo)
        a.vmq = []
        a.e('v_cmp_gt_u32 vcc, 32, v1')
        for p in range(2):
            a.e(f'v_cndmask_b32 v{self.QF + 8 * p + 4}, 0, v{self.PF + p}, vcc')

    def kvf_load(self):
        self.a.e(f'buffer_load_dwordx2 {vr(self.XF + 2, 2)}, v230, s[12:15], s49 offen {SC}')

    def readK(self, j):
        a = self.a
        b = self.KF + 8 * (j % 2)
        off = (j % 16) * KV_TILE
        a.lg(f'ds_read_b128 {vr(b, 4)}, v5 offset:{off}', ('K', j))
        a.lg(f'ds_read_b32 v{b + 4}, v6 offset:{off}', ('K', j))

    def readV(self, j, m):
        a = self.a
        b = self.VF + 8 * (j % 2)
        off = (j % 16) * KV_TILE
        for jj in range(2):
            if m == 0:
                a.lg(f'ds_read_b64_tr_b16 {vr(b + 2 * jj, 2)}, v7 offset:{off + jj * 168}', ('V', j))
            else:
                a.lg(f'ds_read_b64_tr_b16 {vr(b + 4 + 2 * jj, 2)}, v{self.TB + 2 + jj} offset:{off}', ('V', j))

    def S(self, n, part):
        j, qt = n // 2, n % 2
        d = vr(self.SB + 16 * (n % 2), 16)
        k = self.KF + 8 * (j % 2) + 4 * part
        q = self.QF + 8 * qt + 4 * part
        self.a.e(f'v_mfma_f32_32x32x16_bf16 {d}, {vr(k, 4)}, {vr(q, 4)}, {"0" if part == 0 else d}')

    def PV(self, n, m):
        j, qt = n // 2, n % 2
        p = vr(self.P2 + 8 * qt, 8)
        v = vr(self.VF + 8 * (j % 2) + 4 * m, 4)
        if m == 0:
            self.a.e(f'v_smfmac_f32_32x32x32_bf16 {vr(self.OB + 16 * qt, 16)}, {v}, {p}, v13')
        else:
            self.a.e(f'v_smfmac_f32_16x16x64_bf16 {vr(self.PF + 4 * qt, 4)}, {v}, {p}, v14')

    def set_m(self, qt, vm, add):
        a = self.a
        q = self.QF + 8 * qt
        a.e(f'v_sub_f32 v2, {hx(-add)}, v{vm}')
        a.e('v_and_b32 v4, 0xffff0000, v2')
        a.e('v_sub_f32 v2, v2, v4')
        a.e(f'v_and_b32 v{self.TB + 4}, 0xffff0000, v2')
        a.e(f'v_sub_f32 v2, v2, v{self.TB + 4}')
        a.e('v_lshrrev_b32 v4, 16, v4')
        a.e(f'v_or_b32 v4, v4, v{self.TB + 4}')
        a.e('v_lshrrev_b32 v2, 16, v2')
        a.e('v_cmp_gt_u32 vcc, 32, v1')
        a.e(f'v_cndmask_b32 v{q + 5}, 0, v4, vcc')
        a.e(f'v_cndmask_b32 v{q + 6}, 0, v2, vcc')

    TB = 232
    P2 = 240

    def point(self, off):
        a = self.a
        for i in range(3):
            a.e(f'v_add_u32 v{5 + i}, {off}, v{10 + i}')
        for i in range(2):
            a.e(f'v_add_u32 v{self.TB + 2 + i}, {off}, v{self.TB + i}')

    def max16(self, b, dst, first):
        a = self.a
        if first:
            a.e(f'v_max3_f32 v{dst}, v{b}, v{b + 1}, v{b + 2}')
            a.e(f'v_max_f32 v{dst}, v{dst}, v{b + 3}')
            r = range(4, 16, 2)
        else:
            r = range(0, 16, 2)
        for i in r:
            a.e(f'v_max3_f32 v{dst}, v{b + i}, v{b + i + 1}, v{dst}')

    def halves_max(self, r):
        a = self.a
        a.e(f'v_mov_b32 v2, v{r}')
        a.e(f'v_permlane32_swap_b32 v{r}, v2')
        a.e(f'v_max_f32 v{r}, v{r}, v2')

    def main(self, flags=''):
        a = self.a
        L_PASS = a.newlabel('ATT_PASS')
        L_LOOP = a.newlabel('ATT_LOOP')
        L_NOKV = a.newlabel('ATT_NOKV')
        L_FIN = a.newlabel('ATT_FIN')
        a.e('s_mov_b32 s33, 0')
        a.e('s_mov_b32 s39, 4')
        a.e('s_barrier')
        self.readK(0)
        a.wait_lg0()
        for qt in range(2):
            self.S(qt, 0)
            self.S(qt, 1)
        for qt in range(2):
            self.max16(self.SB + 16 * qt, 8 + qt, True)
            self.halves_max(8 + qt)
            self.set_m(qt, 8 + qt, float(opt('moff', [M_OFFSET])[0]))
        a.label(L_PASS)
        self.readK(0)
        self.readK(1)
        self.readV(0, 0)
        self.readV(0, 1)
        for i in range(32):
            a.e(f'v_mov_b32 v{self.OB + i}, 0')
        for i in range(8):
            a.e(f'v_mov_b32 v{self.PF + i}, 0')
            a.e(f'v_mov_b32 v{self.P2 + 8 + i}, 0')
            a.e(f'v_mov_b32 v{self.VF + 8 + i}, 0')
        a.e('s_mov_b32 s34, 0')
        a.e(f's_add_u32 s35, s31, {KVBUF}')
        a.e(f's_mov_b32 s37, {-KVBUF & 0xffffffff}')
        a.wait_lg0()
        self.S(0, 0)
        self.S(0, 1)
        a.e('s_nop 7')
        a.label(L_LOOP)
        a.wait_lg0()
        if opt('gate'):
            lng = a.newlabel('ATT_NG')
            a.e(f's_cmp_lg_u32 s34, {opt("gate")[0]}')
            a.e(f's_cbranch_scc1 {lng}')
            a.e('s_lshl_b32 s44, s3, 7')
            a.e(f's_add_u32 s44, s44, {PROG_OFF}')
            a.e('v_mov_b32 v2, 0')
            poll(a, lambda: a.e(f'buffer_load_dword v4, v2, s[12:15], s44 offen {SC}'), [4], 8, sleep=8)
            if 'gateprio' in ABL:
                a.e('s_setprio 1')
            a.label(lng)
        if 'attfine' in ABL:
            for c, idx in ((1, 4), (2, 5), (3, 1)):
                lq = a.newlabel('ATT_Q')
                a.e(f's_cmp_lg_u32 s34, {c}')
                a.e(f's_cbranch_scc1 {lq}')
                stamp(a, idx)
                a.label(lq)
        if True:
            lp = a.newlabel('ATT_P')
            a.e(f's_cmp_lg_u32 s34, {opt("aprio", [0])[0]}')
            a.e(f's_cbranch_scc1 {lp}')
            a.e('s_setprio 1')
            a.label(lp)
        for n in range(32):
            j, qt = n // 2, n % 2
            sb = self.SB + 16 * (n % 2)
            if n == 29:
                a.e('s_waitcnt vmcnt(0) lgkmcnt(0)')
                a.vmq = []
                a.lgq = []
                a.e('s_barrier')
                for r in (5, 6, 7, self.TB + 2, self.TB + 3):
                    a.e(f'v_add_u32 v{r}, s37, v{r}')
                if 'novp' not in ABL:
                    a.e('s_setprio 3')
                a.e('s_cmp_ge_u32 s34, 2')
                a.e(f's_cbranch_scc1 {L_NOKV}')
                ls0 = a.newlabel('ATT_S0')
                a.e('s_cmp_eq_u32 s39, 0')
                a.e(f's_cbranch_scc1 {ls0}')
                self.issue_kv(buf_s=35, flags=flags)
                a.e(f's_branch {L_NOKV}')
                a.label(ls0)
                self.side(0)
                a.e('s_mov_b32 s39, 1')
                a.label(L_NOKV)
                self.gate_load()
                if 'retouch' in ABL:
                    a.e('global_load_dword v239, v238, s[8:9]')
                if 'novp' not in ABL:
                    a.e('s_setprio 1')
                a.e('s_add_u32 s35, s35, s37')
                a.e('s_sub_u32 s37, 0, s37')
            SJ = opt('sj', [8, 1, 12, 16, 20, 26])
            if n in opt('mp', [9, 13, 17, 21, 25]):
                lm = a.newlabel('ATT_M')
                a.e('s_cmp_ge_u32 s54, s55')
                a.e(f's_cbranch_scc1 {lm}')
                if 'novp' not in ABL:
                    a.e('s_setprio 3')
                self.mark_part(3, 4)
                if 'novp' not in ABL:
                    a.e('s_setprio 1')
                a.label(lm)
            C1 = opt('c1', [4, 10])
            if n in C1:
                lc = a.newlabel('ATT_C1')
                a.e('s_cmp_lg_u32 s39, 4')
                a.e(f's_cbranch_scc1 {lc}')
                a.e('s_setprio 3')
                if n == C1[0]:
                    self.kvf_load()
                else:
                    a.e('s_waitcnt vmcnt(0)')
                    poll(a, self.kvf_load, [self.XF + 2, self.XF + 3], 236, first_done=True, sleep=6)
                    self.issue_kv(buf=0, flags=flags)
                    self.mark_part(0, 3)
                    a.e('s_mov_b32 s39, 0')
                a.e('s_setprio 1')
                a.label(lc)
            if n == SJ[0]:
                ls1 = a.newlabel('ATT_S1')
                a.e('s_cmp_lg_u32 s39, 1')
                a.e(f's_cbranch_scc1 {ls1}')
                a.e('s_waitcnt vmcnt(0)')
                if 'novp' not in ABL:
                    a.e('s_setprio 3')
                self.side(1)
                self.issue_kv(buf=1, flags=flags)
                a.e('s_mov_b32 s39, 2')
                if 'novp' not in ABL:
                    a.e('s_setprio 1')
                a.label(ls1)
            if n == SJ[5]:
                ls2 = a.newlabel('ATT_S2')
                a.e('s_cmp_lg_u32 s39, 2')
                a.e(f's_cbranch_scc1 {ls2}')
                a.e('s_waitcnt vmcnt(0)')
                if 'novp' not in ABL:
                    a.e('s_setprio 3')
                self.side(2)
                a.e('s_mov_b32 s39, 3')
                if 'novp' not in ABL:
                    a.e('s_setprio 1')
                a.label(ls2)
            if qt == 1:
                a.wait_lg(('K', j + 1))
            self.S(n + 1, 0)
            pf = self.P2 + 8 * qt
            for i in range(0, 4):
                a.e(f'v_exp_f32 v{sb + i}, v{sb + i}')
            if qt == 1:
                a.wait_lg(('V', j))
            self.PV(n - 1, 0)
            if qt == 0:
                self.readV(j + 1, 0)
            else:
                self.readK(j + 2)
            for i in range(4, 8):
                a.e(f'v_exp_f32 v{sb + i}, v{sb + i}')
            self.S(n + 1, 1)
            for i in range(4):
                a.e(f'v_cvt_pk_bf16_f32 v{pf + i}, v{sb + 2 * i}, v{sb + 2 * i + 1}')
            for i in range(8, 12):
                a.e(f'v_exp_f32 v{sb + i}, v{sb + i}')
            self.PV(n - 1, 1)
            if qt == 0:
                self.readV(j + 1, 1)
            for i in range(12, 16):
                a.e(f'v_exp_f32 v{sb + i}, v{sb + i}')
            for i in range(4, 8):
                a.e(f'v_cvt_pk_bf16_f32 v{pf + i}, v{sb + 2 * i}, v{sb + 2 * i + 1}')
        a.e('s_add_u32 s34, s34, 1')
        a.e('s_cmp_lt_u32 s34, 4')
        a.e(f's_cbranch_scc1 {L_LOOP}')
        self.PV(31, 0)
        self.PV(31, 1)
        a.wait_all()
        a.e('s_cmp_lg_u32 s33, 0')
        a.e(f's_cbranch_scc1 {L_FIN}')
        regs = [self.OB + i for i in range(32)] + [self.PF + i for i in (0, 1, 2, 4, 5, 6)]
        a.e(f'v_max_f32_e64 v2, |v{regs[0]}|, |v{regs[1]}|')
        for i in range(2, len(regs), 2):
            a.e(f'v_max3_f32 v2, |v{regs[i]}|, |v{regs[i + 1]}|, v2')
        a.e(f's_mov_b32 s44, {hx(2.0 ** 110)}')
        a.e('v_cmp_ngt_f32 vcc, s44, v2')
        for qt in range(2):
            a.e(f'v_mov_b32 v{8 + qt}, v{self.PF + 4 * qt + 2}')
            a.e(f'v_mov_b32 v{self.TB + 4 + qt}, v{self.PF + 4 * qt + 2}')
        for qt in range(2):
            a.e(f'v_permlane16_swap_b32 v{8 + qt}, v{self.TB + 4 + qt}')
        for qt in range(2):
            a.e(f'v_add_f32 v{8 + qt}, v{8 + qt}, v{self.TB + 4 + qt}')
        a.e(f's_mov_b32 s44, {hx(2.0 ** (VSH - M_OFFSET - 4))}')
        a.e('v_cmp_nle_f32 s[46:47], s44, v8')
        a.e('s_or_b64 vcc, vcc, s[46:47]')
        a.e('v_cmp_nle_f32 s[46:47], s44, v9')
        a.e('s_or_b64 vcc, vcc, s[46:47]')
        a.e('s_cmp_lg_u64 vcc, 0')
        a.e('s_cselect_b32 s44, 1, 0')
        a.e('v_mov_b32 v2, s44')
        a.e('s_lshl_b32 s45, s20, 2')
        a.e(f's_add_u32 s45, s45, {16 * KV_TILE}')
        a.e('v_mov_b32 v4, s45')
        a.e('ds_write_b32 v4, v2')
        a.e(f'v_mov_b32 v4, {16 * KV_TILE}')
        a.e('s_waitcnt lgkmcnt(0)')
        a.e('s_barrier')
        a.e(f'ds_read_b128 {vr(self.P2, 4)}, v4')
        a.e('s_waitcnt lgkmcnt(0)')
        a.e(f'v_or3_b32 v2, v{self.P2}, v{self.P2 + 1}, v{self.P2 + 2}')
        a.e(f'v_or_b32 v2, v2, v{self.P2 + 3}')
        a.e('v_readfirstlane_b32 s44, v2')
        a.e('s_cmp_eq_u32 s44, 0')
        a.e(f's_cbranch_scc1 {L_FIN}')
        L_MC = a.newlabel('ATT_MC')
        L_MT = a.newlabel('ATT_MT')
        a.e('s_mov_b32 s33, 1')
        for p in range(2):
            a.e(f'v_mov_b32 v{self.QF + 8 * p + 5}, 0')
            a.e(f'v_mov_b32 v{self.QF + 8 * p + 6}, 0')
            a.e(f'v_mov_b32 v{8 + p}, 0xff7fffff')
        a.e(f's_mov_b32 s30, {KV_OFF}')
        a.e('s_mov_b32 s34, 0')
        a.label(L_MC)
        a.e('s_barrier')
        self.issue_kv(buf=0, flags=flags)
        a.e('v_mov_b32 v5, v10')
        a.e('v_mov_b32 v6, v11')
        a.e('s_mov_b32 s36, 0')
        a.wait_vm0()
        a.e('s_barrier')
        a.label(L_MT)
        self.readK(0)
        a.wait_lg0()
        for qt in range(2):
            self.S(qt, 0)
            self.S(qt, 1)
        a.e(f'v_add_u32 v5, {KV_TILE}, v5')
        a.e(f'v_add_u32 v6, {KV_TILE}, v6')
        for qt in range(2):
            self.max16(self.SB + 16 * qt, 8 + qt, False)
        a.e('s_add_u32 s36, s36, 1')
        a.e('s_cmp_lt_u32 s36, 16')
        a.e(f's_cbranch_scc1 {L_MT}')
        a.e('s_add_u32 s34, s34, 1')
        a.e('s_cmp_lt_u32 s34, 4')
        a.e(f's_cbranch_scc1 {L_MC}')
        for qt in range(2):
            self.halves_max(8 + qt)
            self.set_m(qt, 8 + qt, 0.0)
        a.e('s_barrier')
        a.e(f's_mov_b32 s30, {KV_OFF}')
        self.issue_kv(buf=1, flags=flags)
        self.issue_kv(buf=0, flags=flags)
        self.point(KVBUF)
        a.e('s_waitcnt vmcnt(10)')
        a.e('s_barrier')
        a.e(f's_branch {L_PASS}')
        a.label(L_FIN)
        a.vmq = []
        a.lgq = []

    def mark(self):
        a = self.a
        a.e('s_mul_i32 s44, s23, 90')
        a.e('s_lshl_b32 s52, s22, 1')
        a.e('s_add_u32 s52, s52, s44')
        a.e('s_lshl_b32 s52, s52, 10')
        a.e(f's_add_u32 s52, s52, {UF_OFF}')
        a.e('s_lshr_b32 s53, s22, 2')
        a.e('s_add_u32 s53, s53, s44')
        a.e('s_lshl_b32 s53, s53, 10')
        a.e('s_and_b32 s47, s22, 3')
        a.e('s_lshl_b32 s47, s47, 8')
        a.e('s_add_u32 s53, s53, s47')
        a.e(f's_add_u32 s53, s53, {UF_OFF + 16 * 1024}')
        a.e('s_mul_i32 s54, s22, 9')
        a.e('s_add_u32 s54, s54, s44')
        a.e('s_lshl_b32 s54, s54, 10')
        a.e(f's_add_u32 s54, s54, {UF_OFF + 18 * 1024}')
        a.e(f's_add_u32 s55, s54, {9 * 1024}')
        for i in range(4):
            a.e(f'v_mov_b32 v{224 + i}, -1')
        a.e('v_lshlrev_b32 v228, 2, v1')
        if opt('tp'):
            a.e('s_lshl_b32 s44, s24, 8')
            a.e('s_and_b32 s45, s22, 4')
            a.e('s_lshl_b32 s45, s45, 5')
            a.e('s_add_u32 s44, s44, s45')
            a.e('s_add_u32 s44, s44, s27')
            a.e('s_lshl_b32 s44, s44, 13')
            a.e(f'v_min_u32 v229, {64 // len(opt("tp")) - 1}, v1')
            a.e('v_lshlrev_b32 v229, 7, v229')
            a.e('v_add_u32 v229, s44, v229')

    def mark_part(self, lo, hi):
        a = self.a
        if 'nomark' in ABL:
            return
        for i in range(lo, hi):
            if i < 2:
                a.e(f'buffer_store_dwordx4 v[224:227], v10, s[12:15], s52 offen offset:{1024 * i} {SC}')
            elif i == 2:
                a.e(f'buffer_store_dword v224, v228, s[12:15], s53 offen {SC}')
            else:
                a.e(f'buffer_store_dwordx4 v[224:227], v10, s[12:15], s54 offen {SC}')
                a.e('s_add_u32 s54, s54, 1024')

    def mark_flag(self):
        a = self.a
        a.e('s_lshl_b32 s44, s23, 3')
        a.e('s_add_u32 s44, s44, s22')
        a.e('s_lshl_b32 s44, s44, 2')
        a.e(f's_add_u32 s44, s44, {PZ_OFF}')
        set_flag(a, 44, 236)

    def epilogue(self, flags=''):
        a = self.a
        a.e('v_and_b32 v4, 15, v1')
        a.e('v_lshlrev_b32 v4, 4, v4')
        a.e('v_lshrrev_b32 v5, 5, v1')
        a.e('v_lshl_add_u32 v4, v5, 2, v4')
        poll(a, self.gate_load, [self.XF + 1], 8, first_done=True)
        a.e('v_and_b32 v5, 16, v1')
        a.e('v_cmp_eq_u32 vcc, 0, v5')
        for qt in range(2):
            o = self.OB + 16 * qt
            t = self.PF + 4 * qt
            c = self.P2
            for i in range(3):
                a.e(f'v_mov_b32 v{c + i}, v{t + i}')
            for i in range(3):
                a.e(f'v_permlane16_swap_b32 v{t + i}, v{c + i}')
            for i in range(3):
                a.e(f'v_add_f32 v{t + i}, v{t + i}, v{c + i}')
            a.e(f'v_rcp_f32 v6, v{t + 2}')
            a.e(f'v_mul_f32 v6, v6, v{self.XF}')
            a.e(f'v_pk_mul_f32 {vr(t, 2)}, {vr(t, 2)}, v[6:7] op_sel_hi:[1,0]')
            a.e('v_mov_b32 v7, v6')
            a.e('v_permlane32_swap_b32 v6, v7')
            a.e('v_cndmask_b32 v6, v7, v6, vcc')
            for i in range(4):
                a.e(f'v_pk_add_f32 {vr(o + 2 * i, 2)}, {vr(o + 2 * i, 2)}, {vr(o + 8 + 2 * i, 2)}')
            for i in range(4):
                a.e(f'v_pk_mul_f32 {vr(o + 2 * i, 2)}, {vr(o + 2 * i, 2)}, v[6:7] op_sel_hi:[1,0]')
            pk = self.SB + 8 * qt
            for i in range(4):
                a.e(f'v_cvt_pk_bf16_f32 v{pk + i}, v{o + 2 * i}, v{o + 2 * i + 1}')
            a.e(f'v_cvt_pk_bf16_f32 v{pk + 4}, v{t}, v{t + 1}')
            for i in range(5):
                a.e(f'v_min_u32 v{pk + i}, -2, v{pk + i}')
            a.e(f'buffer_store_dwordx4 {vr(pk, 4)}, v10, s[12:15], s52 offen offset:{1024 * qt} {flags}')
            a.e('s_mov_b32 exec_lo, 0xffff')
            a.e('s_mov_b32 exec_hi, 0xffff')
            a.e(f'buffer_store_dword v{pk + 4}, v4, s[12:15], s53 offen offset:{8 * qt} {flags}')
            a.e('s_mov_b64 exec, -1')

    def gate_load(self):
        a = self.a
        a.e(f's_mov_b32 s38, {GATE_OFF}')
        a.e(f'buffer_load_dwordx2 {vr(self.XF, 2)}, v3, s[12:15], s38 offen {SC}')


def p3_pre(a):
    a.e('s_and_b32 s44, s22, 1')
    a.e('s_lshl_b32 s66, s21, 1')
    a.e('s_add_u32 s66, s66, s44')
    a.e('s_lshr_b32 s67, s22, 1')
    a.e('s_lshl_b32 s68, s21, 8')
    a.e(f's_add_u32 s68, s68, {PZ_OFF}')
    a.e('s_lshl_b32 s69, s67, 9')
    a.e(f's_add_u32 s69, s69, {FW3_OFF}')
    a.e('v_lshlrev_b32 v7, 2, v1')
    a.e('v_min_u32 v8, 44, v1')
    a.e('v_lshlrev_b32 v8, 3, v8')
    p3_flags(a)
    a.vmq += ['pre', 'pre']


def p3_flags(a):
    a.e(f'buffer_load_dword v4, v7, s[12:15], s68 offen {SC}')
    a.e(f'buffer_load_dwordx2 v[2:3], v8, s[12:15], s69 offen {SC}')


def p3(a):
    ACC = 16
    FR = 112
    HF = 240
    DEPTH = 4
    NS = 23
    a.e('s_mul_i32 s44, s20, 18')
    a.e('s_add_u32 s44, s44, 18')
    a.e('s_mul_i32 s45, s20, 5')
    a.e('s_cmp_eq_u32 s20, 3')
    a.e('s_cselect_b32 s46, 1, 0')
    a.e('s_sub_u32 s45, s45, s46')
    a.e('s_mul_i32 s46, s67, 90')
    a.e('s_add_u32 s25, s44, s46')
    a.e('s_mul_i32 s25, s25, 4608')
    a.e(f's_add_u32 s25, s25, {W3_OFF}')
    a.e('s_add_u32 s31, s45, s46')
    a.e('s_mul_i32 s31, s31, 4608')
    a.e(f's_add_u32 s31, s31, {W3_OFF}')
    a.e('v_lshrrev_b32 v6, 4, v1')
    a.e('v_lshlrev_b32 v6, 3, v6')
    a.e('v_and_b32 v9, 7, v1')
    a.e('v_add_u32 v6, v6, v9')
    a.e('v_lshlrev_b32 v6, 4, v6')
    a.e('v_bfe_u32 v9, v1, 3, 1')
    a.e('v_mul_u32_u24 v9, 4608, v9')
    a.e('v_add_u32 v6, v6, v9')
    a.e('v_add_u32 v6, 4096, v6')
    a.e('v_mov_b32 v12, v19')

    def loadW(k):
        b = FR + 32 * (k % DEPTH)
        if k == 18:
            a.e('s_mov_b32 s25, s31')
        for nt in range(4):
            a.vm(f'buffer_load_dwordx4 {vr(b + 4 * nt, 4)}, v12, s[12:15], s25 offen offset:{1024 * nt} {SCL}', ('W', k))
        if k % 2 == 0:
            a.vm(f'buffer_load_dwordx4 {vr(HF + 4 * ((k // 2) % 3), 4)}, v6, s[12:15], s25 offen {SCL}', ('W', k))
        a.e('s_add_u32 s25, s25, 4608')

    def loadF(k, track=True):
        b = FR + 32 * (k % DEPTH)
        a.e(f's_add_u32 s24, s{28 if k < 18 else 30}, {1024 * (k if k < 18 else k - 18)}')
        for i in range(4):
            t = f'buffer_load_dwordx4 {vr(b + 16 + 4 * i, 4)}, v{2 + i}, s[12:15], s24 offen {SCL}'
            a.vm(t, ('F', k)) if track else a.e(t)
    for k in range(opt('wpre', [2])[0]):
        loadW(k)
    a.e('s_mul_i32 s46, s66, 360')
    a.e('s_add_u32 s28, s44, s46')
    a.e('s_lshl_b32 s28, s28, 10')
    a.e(f's_add_u32 s28, s28, {UF_OFF}')
    a.e('s_add_u32 s30, s45, s46')
    a.e('s_lshl_b32 s30, s30, 10')
    a.e(f's_add_u32 s30, s30, {UF_OFF}')
    for i in range(4):
        a.e(f's_add_u32 s44, s20, {i}')
        a.e('s_and_b32 s44, s44, 3')
        a.e('s_mul_i32 s44, s44, 92160')
        a.e(f'v_add_u32 v{2 + i}, s44, v12')
    a.e('s_mov_b32 s8, s64')
    a.e('s_mov_b32 s9, s65')
    srd(a, 8, 2048 * 1152)
    a.e(f's_mov_b32 s51, {SPIN_MAX}')
    if 'nodrain' not in ABL:
        a.wait_vm('st')
    for k in range(DEPTH):
        if k >= opt('wpre', [2])[0]:
            loadW(k)
        loadF(k)
    stamp(a, 5)
    a.e(f's_setprio {opt("pg", PG)[2]}')
    lskip = a.newlabel('P3_SKIP')
    for k in range(NS):
        b = FR + 32 * (k % DEPTH)
        if k == NS - 1:
            a.e('s_cmp_ge_u32 s20, 2')
            a.e(f's_cbranch_scc1 {lskip}')
            a.wait_vm0()
        a.wait_vm(('F', k))
        lc = a.newlabel('P3_C')
        lok = a.newlabel('P3_OK')
        a.label(lc)
        a.e(f'v_max3_u32 v9, v{b + 16}, v{b + 17}, v{b + 18}')
        a.e(f'v_max3_u32 v10, v{b + 19}, v{b + 20}, v{b + 21}')
        for i in range(22, 32, 4):
            a.e(f'v_max3_u32 v9, v{b + i}, v{b + i + 1}, v9')
            if i + 2 < 32:
                a.e(f'v_max3_u32 v10, v{b + i + 2}, v{b + i + 3}, v10')
        a.e('v_max_u32 v9, v9, v10')
        a.e('v_cmp_eq_u32 vcc, -1, v9')
        a.e(f's_cbranch_vccz {lok}')
        a.e(f's_sleep {opt("psl", [4])[0]}')
        loadF(k, False)
        a.e('s_waitcnt vmcnt(0)')
        a.e('s_sub_u32 s51, s51, 1')
        a.e('s_cmp_lt_i32 s51, 1')
        a.e(f's_cbranch_scc0 {lc}')
        a.label(lok)
        hf = HF + 4 * ((k // 2) % 3)
        for i in range(4):
            for nt in range(5):
                n2 = nt if nt < 4 else 4 + k % 2
                d = vr(ACC + 16 * n2 + 4 * i, 4)
                first = k == 0 or (nt == 4 and k == 1)
                a.e(f'v_mfma_f32_16x16x32_bf16 {d}, {vr(b + 4 * nt, 4) if nt < 4 else vr(hf, 4)}, {vr(b + 16 + 4 * i, 4)}, {"0" if first else d}')
        kn = k + DEPTH
        if kn == NS - 1:
            ls = a.newlabel('P3_NL')
            a.e('s_cmp_ge_u32 s20, 2')
            a.e(f's_cbranch_scc1 {ls}')
            q1 = list(a.vmq)
            loadW(kn)
            loadF(kn)
            a.vmq = q1
            a.label(ls)
        elif kn < NS:
            loadW(kn)
            loadF(kn)
    a.label(lskip)
    a.e('s_nop 7')
    stamp(a, 6)
    a.e('s_mov_b32 exec_lo, 0')
    for i in range(16):
        a.e(f'v_mov_b32 v{ACC + 64 + i}, v{ACC + 80 + i}')
    a.e('s_mov_b64 exec, -1')
    for i in range(1, 4):
        a.e(f's_add_u32 s44, s20, {i}')
        a.e('s_and_b32 s44, s44, 3')
        a.e('s_mul_i32 s44, s44, 15360')
        a.e(f'v_add_u32 v{8 + i}, s44, v12')
        for nt in range(5):
            a.lg(f'ds_write_b128 v{8 + i}, {vr(ACC + 16 * nt + 4 * i, 4)} offset:{5120 * (i - 1) + 1024 * nt}', 'w')
    a.e('s_mul_i32 s26, s20, 15360')
    a.e('v_add_u32 v8, s26, v12')
    a.e('s_lshl_b32 s27, s66, 6')
    a.e('s_lshr_b32 s28, s20, 1')
    a.e('s_lshl_b32 s28, s28, 5')
    a.e('s_add_u32 s27, s27, s28')
    a.e('s_and_b32 s28, s20, 1')
    a.e('s_lshl_b32 s28, s28, 2')
    a.e('s_add_u32 s27, s27, s28')
    a.e('v_bfe_u32 v13, v1, 2, 2')
    a.e('v_lshlrev_b32 v13, 3, v13')
    a.e('v_and_b32 v14, 3, v1')
    a.e('v_add3_u32 v13, v13, v14, s27')
    a.e('v_mul_u32_u24 v13, 1152, v13')
    a.e('v_lshrrev_b32 v14, 4, v1')
    a.e('v_lshl_add_u32 v15, v14, 3, v13')
    a.e('v_lshl_add_u32 v13, v14, 4, v13')
    a.e('s_mul_i32 s27, s67, 144')
    a.wait_all()
    a.e('s_barrier')
    for nt in range(5):
        for i in range(3):
            a.lg(f'ds_read_b128 {vr(FR + 12 * nt + 4 * i, 4)}, v8 offset:{5120 * i + 1024 * nt}', ('r', nt))
    PKB = FR + 64
    OSC = 'sc1' if 'osc1' in ABL else 'nt' if 'ont' in ABL else ''
    for nt in range(5):
        a.wait_lg(('r', nt))
        b = FR + 12 * nt
        o = ACC + 16 * nt
        for h in range(2):
            a.e(f'v_pk_add_f32 {vr(b + 2 * h, 2)}, {vr(b + 2 * h, 2)}, {vr(b + 4 + 2 * h, 2)}')
            a.e(f'v_pk_add_f32 {vr(o + 2 * h, 2)}, {vr(o + 2 * h, 2)}, {vr(b + 8 + 2 * h, 2)}')
        for h in range(2):
            a.e(f'v_pk_add_f32 {vr(b + 2 * h, 2)}, {vr(b + 2 * h, 2)}, {vr(o + 2 * h, 2)}')
        if nt == 4:
            for r in range(4):
                a.e(f'v_mov_b32 v{o + r}, v{b + r}')
            for r in range(4):
                a.e(f'v_permlane32_swap_b32 v{b + r}, v{o + r}')
            for h in range(2):
                a.e(f'v_pk_add_f32 {vr(b + 2 * h, 2)}, {vr(b + 2 * h, 2)}, {vr(o + 2 * h, 2)}')
        for h in range(2):
            a.e(f'v_cvt_pk_bf16_f32 v{PKB + 2 * nt + h}, v{b + 2 * h}, v{b + 2 * h + 1}')
        if nt in (1, 3):
            a.e(f'buffer_store_dwordx4 {vr(PKB + 2 * nt - 2, 4)}, v13, s[8:11], s27 offen offset:{64 * (nt // 2)} {OSC}')
        if nt == 4:
            a.e('s_mov_b32 exec_hi, 0')
            a.e(f'buffer_store_dwordx2 {vr(PKB + 8, 2)}, v15, s[8:11], s27 offen offset:128 {OSC}')
            a.e('s_mov_b64 exec, -1')


def kernel_text(name, a, vgpr=256, sgpr=96):
    a.fix_hazards()
    mv, ms, ma = a.max_regs()
    assert mv <= vgpr and ms <= sgpr and ma == 0, (mv, ms, ma)
    body = f'.globl {name}\n.p2align 8\n.type {name},@function\n{name}:\n' + a.text()
    desc = f""".p2align 6
.amdhsa_kernel {name}
  .amdhsa_next_free_vgpr {vgpr}
  .amdhsa_next_free_sgpr {sgpr}
  .amdhsa_accum_offset {(vgpr + 3) // 4 * 4}
  .amdhsa_group_segment_fixed_size 0
  .amdhsa_kernarg_size 112
  .amdhsa_user_sgpr_count 2
  .amdhsa_user_sgpr_kernarg_segment_ptr 1
  .amdhsa_system_sgpr_workgroup_id_x 1
.end_amdhsa_kernel
"""
    return body, desc


DOC = '''
; ---------------------------------------------------------------------------------------------
;      pass A: z2 = gelu(x @ w_in[:, half 2]) and q/k/v column pieces; row sums exchanged as tagged
;              16-byte records; z1 GEMM runs while they travel; layer norm; z2n handed over in MFMA
;              fragment order; g = w_sp @ z2n; u = (1-gate) * z1 * (g + b); out tile = [o|u] @ [wo;w_out]
;  ids 256..511  "attention" role, 64 rows x 4 heads: S^T = K Q^T - m (m rides in spare k slots),
; Generated by a script (register allocation, wait counts and wait states are computed there).
; ---------------------------------------------------------------------------------------------
'''


def build_file(kernels):
    hdr = open('cdna_kernels/' + NAME + '.s.ref').read().split('\n')
    head = [l for l in hdr if l.startswith(';') and '@launch' not in l and 'Override' not in l and 'grid=ceil' not in l]
    head = head[:15]
    out = '\n'.join(head) + '\n'
    for name, a, grid, block, lds, vgpr in kernels:
        kn = f'kernel={name} ' if (len(kernels) > 1 or LIST) else ''
        out += f'; @launch {kn}grid=({grid},1,1) block=({block},1,1) lds={lds}\n'
    out += DOC.lstrip('\n')
    out += '.amdgcn_target "amdgcn-amd-amdhsa--gfx950"\n.text\n'
    descs = ''
    for name, a, grid, block, lds, vgpr in kernels:
        b, d = kernel_text(name, a, vgpr)
        out += b
        descs += d
    out += '.section .rodata,"a"\n' + descs
    import subprocess, tempfile, os, re
    with tempfile.TemporaryDirectory() as td:
        open(td + '/t.s', 'w').write(out.replace('CODE_LINES', '0x200'))
        subprocess.run(['clang', '-x', 'assembler', '-target', 'amdgcn-amd-amdhsa', '-mcpu=gfx950', '-c', td + '/t.s', '-o', td + '/t.o'], check=True)
        h = subprocess.run(['llvm-objdump', '-h', td + '/t.o'], capture_output=True, text=True).stdout
        size = int(re.search(r'\.text\s+([0-9a-f]+)', h).group(1), 16)
    assert size < 128 * 5 * 128
    return out.replace('CODE_LINES', str(size // 128 - 2))


NG1, NG2 = 1, 3


def mega():
    a = Asm()
    a.e('s_cmp_ge_u32 s2, 512')
    a.e('s_cbranch_scc1 K_END')
    stamp(a, 0)
    a.e('s_cmp_ge_u32 s2, 256')
    a.e('s_cbranch_scc1 K_ATT')
    a.label('K_GEMM')
    a.vmq = []
    a.lgq = []
    g = GW(a)
    UB, UP = g.UB, g.UP
    g.limitA = UB
    g.setup()
    if 'afine' in ABL:
        stamp(a, 1)
    g.prologue_issue()
    if 'afine' in ABL:
        stamp(a, 2)
    g.setup2()
    if 'afine' in ABL:
        stamp(a, 3)
        g.hooks[0] = lambda: stamp(a, 4)
        g.hooks[6] = lambda: stamp(a, 5)
        g.hooks[12] = lambda: stamp(a, 6)

    def nonce_ld():
        a.e('v_mov_b32 v23, 0')
        a.vm(f'global_load_dword v24, v23, s[16:17] {SC}', 'nonce')
        g.mk_load()
        a.vmq.append('nonce')
    g.mk_addr()
    g.hooks[22] = nonce_ld
    g.run_segment(0, UB)
    if 'afine' in ABL:
        a.e('s_branch K_DONE')
    stamp(a, 1)
    n1, n2 = opt('ng', [NG1, NG2])
    nb1 = opt('nb1', [8])[0]
    a.wait_vm('nonce')
    get_nonce(a, 23, 24)
    poll(a, g.mk_load, [26, 27], 28, first_done=True, sleep=4)
    g.proj_store()
    g.limitA = UP
    a.vmq.append('pst')
    a.vmq.append('pst')
    a.e('s_barrier')
    for _ in range(g.R - 1):
        g.run(g.issueA())
    if 'z1t' in ABL:
        a.e('s_lshl_b32 s44, s31, 2')
        a.e('s_add_u32 s44, s44, s20')
        a.e('s_mul_i32 s44, s44, 81')
        a.e('s_and_b32 s45, s2, 4')
        a.e('s_lshl_b32 s46, s45, 2')
        a.e('s_lshr_b32 s45, s45, 1')
        for i in range(2):
            a.e('v_min_u32 v24, 40, v1')
            a.e(f'v_add3_u32 v24, v24, s44, {40 * i}')
            a.e('v_mul_u32_u24 v25, 58255, v24')
            a.e('v_lshrrev_b32 v25, 20, v25')
            a.e('v_mul_u32_u24 v26, 18, v25')
            a.e('v_sub_u32 v24, v24, v26')
            a.e('v_add_u32 v26, s46, v24')
            a.e('v_add3_u32 v27, v24, s45, 16')
            a.e('v_cmp_gt_u32 vcc, 16, v24')
            a.e('v_cndmask_b32 v24, v27, v26, vcc')
            a.e('v_mul_u32_u24 v25, 9216, v25')
            a.e('v_lshl_add_u32 v24, v24, 7, v25')
            a.vm('buffer_load_dword v255, v24, s[8:11], 0 offen', 'tch')
    g.z2_gelu_publish()

    LF = 'lnfine' in ABL
    if LF:
        stamp(a, 2)
    g.run_segment(UB, nb1)
    if LF:
        stamp(a, 3)
    g.z2_gather_norm_store()
    stamp(a, 4 if LF else 2)
    a.e('s_lshl_b32 s49, s22, 9')
    a.e(f's_add_u32 s49, s49, {FZ_OFF}')
    a.e('s_lshl_b32 s48, s32, 7')
    a.e('s_add_u32 s48, s48, s49')
    a.e('s_and_b32 s50, s23, 15')
    a.e('s_lshl_b32 s50, s50, 2')
    a.e('s_add_u32 s48, s48, s50')
    a.e('s_and_b32 s50, s32, 2')
    a.e('s_lshl_b32 s50, s50, 7')
    a.e('s_add_u32 s50, s50, s49')
    a.e('v_and_b32 v29, 15, v1')
    a.e('v_lshlrev_b32 v29, 2, v29')
    a.e('v_lshrrev_b32 v23, 4, v1')
    a.e('v_lshl_add_u32 v23, v23, 7, v29')
    a.e('v_and_b32 v29, 0xff, v23')

    def zflag():
        a.wait_vm('st')
        set_flag(a, 48, 27)
    g.hooks[UB + nb1 + opt('zf', [4])[0]] = zflag
    g.run_segment(UB + nb1, 18 - nb1)
    if LF:
        stamp(a, 5)
    g.own_write()
    g.z1_gelu(range(0, n1))
    g.nextA = UP + 4
    g.run_segment(UP, 4, own=True)
    g.z1_gelu(range(n1, n2))
    if LF:
        stamp(a, 6)
    poll(a, lambda: a.e(f'buffer_load_dword v26, v29, s[12:15], s50 offen {SC}'), [26], 27)
    if LF:
        a.e('s_branch K_DONE')
    stamp(a, 3)
    g.limitA = len(g.units)
    a.e('s_barrier')
    for _ in range(g.R - 1):
        g.run(g.issueA())
    g.z1_gelu(range(n2, 9))
    g.hooks[UP + 58] = g.sp_pre

    def zall():
        a.e(f'buffer_load_dword v26, v23, s[12:15], s49 offen {SC}')

    def zall0():
        zall()
        a.vmq.append('zf')

    def zall1():
        a.wait_vm('zf')
        poll(a, zall, [26], 27, first_done=True)
    g.hooks[UP + 10] = zall0
    g.hooks[UP + 15] = zall1
    g.hooks[UP + 61] = lambda: p3_pre(a)
    g.hooks[UP + opt('gsw', [62])[0]] = lambda: a.e('s_setprio 0')

    if opt('gate'):
        def prog():
            a.e('s_lshl_b32 s44, s2, 7')
            a.e(f's_add_u32 s44, s44, {PROG_OFF}')
            set_flag(a, 44, 27)
        g.hooks[UP + opt('gate')[1]] = prog
    g.run_segment(UP + 4, 60)
    if 'p2fine' in ABL:
        a.e('s_branch K_DONE')
    stamp(a, 4)
    g.sp_epilogue()
    p3(a)
    a.e('s_or_b32 s44, s2, s20')
    a.e('s_cmp_lg_u32 s44, 0')
    a.e('s_cbranch_scc1 K_DONE')
    a.e('v_mov_b32 v2, 0')
    a.e(f'global_store_dword v2, v2, s[16:17] {SC}')
    a.e('s_branch K_DONE')
    a.label('K_ATT')
    a.vmq = []
    a.lgq = []
    a.e('s_sub_u32 s3, s2, 256')
    P = opt('pa', [0, 1])
    t = ATT(a)
    t.setup(3)
    t.mark()
    write_nonce(a)
    if 'afine' in ABL:
        a.e('s_branch K_DONE')
    t.retile_setup()
    stamp(a, 1)
    a.e(f's_setprio {P[0]}')
    t.q_phase()
    stamp(a, 2)
    a.e(f's_setprio {P[1]}')
    if 'noattmain' in ABL:
        for p in range(3):
            if p == 2:
                t.mark_part(0, 12)
            a.wait_all()
            t.side(p)
        t.gate_load()
        a.wait_all()
    else:
        t.main(flags=SCL)
    stamp(a, 3)
    a.e('s_setprio 3')
    t.epilogue(flags=SC)
    a.label('K_DONE')
    stamp_flush(a, 0)
    a.label('K_END')
    a.e('s_endpgm')
    return (NAME + '_kernel', a, 512, 256, 81920, 256)


LIST = False
if __name__ == '__main__':
    if '--stamp' in sys.argv:
        STAMP = True
        sys.argv.remove('--stamp')
    if '--list' in sys.argv:
        LIST = True
        sys.argv.remove('--list')
    for x in list(sys.argv):
        if x.startswith('--abl='):
            ABL.update(x[6:].split(','))
            sys.argv.remove(x)
    out = sys.argv[1] if len(sys.argv) > 1 else 'out.s'
    open(out, 'w').write(build_file([mega()]))
    print('wrote', out)
```

```python
import sys, struct
from asmlib import Asm

NAME = 'gated_mix__grouped_kv_mqa__mixer_gmlp__prompt'

Z2_OFF = 0x10000
UF_OFF = Z2_OFF + 9437184
W3_OFF = UF_OFF + 11796480
KV_OFF = W3_OFF + 3317760
KV_TILE = 2496
GATE_OFF = KV_OFF + 160 * 1024
STATS_OFF = GATE_OFF + 16384
FLAG_OFF = STATS_OFF + 524288
FKV_OFF = FLAG_OFF
FW3_OFF = FLAG_OFF + 49152
FZ_OFF = FLAG_OFF + 4096
PZ_OFF = FLAG_OFF + 65536
PROG_OFF = FLAG_OFF + 16384
GO_OFF = FLAG_OFF + 98304
KVF_OFF = FLAG_OFF
QF_OFF = FLAG_OFF + 131072
SC = 'sc1' if 'sconly1' in ' '.join(sys.argv) else 'sc0 sc1'
SCL = '' if '--abl' in ' '.join(sys.argv) and 'noscl' in ' '.join(sys.argv) else 'sc1'
WS_SIZE = 0x1c00000
assert QF_OFF + 128 * 16 * 1152 <= 0x1b00000
STAMP_OFF = 0x1b00000

A_X, A_WQ, A_WK, A_WV, A_WO, A_BX, A_WIN, A_WSP, A_BSP, A_WOUT, A_GW, A_OUT, A_DBG, A_WS = [8 * i for i in range(14)]

STAMP = False
ABL = set()


def opt(name, default=None):
    for x in ABL:
        if x.startswith(name + ':'):
            return [int(v) for v in x.split(':')[1:]]
    return default


def f2u(f):
    return struct.unpack('<I', struct.pack('<f', f))[0]


def hx(f):
    return '0x%08x' % f2u(f)


def srd(a, d, size):
    a.e(f's_mov_b32 s{d + 2}, {size}')
    a.e(f's_mov_b32 s{d + 3}, 0x00020000')


def vr(b, n):
    return f'v[{b}:{b + n - 1}]'


def stamp(a, idx):
    if not STAMP:
        return
    a.wait_lg0()
    a.e('s_memrealtime s[78:79]')
    a.e('s_memtime s[76:77]')
    a.e('s_waitcnt lgkmcnt(0)')
    a.e(f's_mov_b32 s{80 + idx}, s78')
    a.e(f's_mov_b32 s{88 + idx}, s76')


def stamp_flush(a, kidx):
    if not STAMP:
        return
    a.e('s_waitcnt vmcnt(0) lgkmcnt(0)')
    stamp(a, 7)
    a.e(f's_load_dwordx2 s[74:75], s[0:1], {A_WS}')
    a.e('s_waitcnt lgkmcnt(0)')
    a.e('v_lshrrev_b32 v1, 6, v0')
    a.e('v_lshlrev_b32 v1, 6, v1')
    a.e('s_lshl_b32 s78, s2, 8')
    a.e(f's_add_u32 s78, s78, {STAMP_OFF + kidx * 131072}')
    a.e('v_add_u32 v1, s78, v1')
    for i in range(16):
        a.e(f'v_mov_b32 v{4 + i}, s{80 + i}')
    for i in range(4):
        a.e(f'global_store_dwordx4 v1, v[{4 + 4 * i}:{7 + 4 * i}], s[74:75] offset:{16 * i}')
    if 'dbgstamp' in ABL:
        a.e('s_cmp_lt_u32 s2, 256')
        a.e('s_cselect_b32 s78, 4, 36')
        a.e('v_mov_b32 v1, s78')
        a.e('s_mov_b64 exec, 1')
        for i in range(1, 8):
            a.e(f'v_subrev_u32 v{4 + i}, s62, v{4 + i}')
            a.e(f'global_atomic_umax v1, v{4 + i}, s[16:17] offset:{4 * (i - 1)} sc1')
        a.e('v_sub_u32 v4, s62, v4')
        a.e('v_add_u32 v4, 1000, v4')
        a.e('v_mov_b32 v1, 32')
        a.e('global_atomic_umax v1, v4, s[16:17] sc1')
        a.e('s_mov_b64 exec, -1')


QSCALE = 18 ** -0.5 * 1.4426950408889634
GELU_C0 = -2.0 * 1.4426950408889634 * 0.7978845608028654
GELU_C1 = GELU_C0 * 0.044715


def gelu_group(a, regs, T, sC1, vC0):
    n = len(regs)
    for i, r in enumerate(regs):
        a.e(f'v_pk_mul_f32 {vr(T + 2 * i, 2)}, {vr(r, 2)}, {vr(r, 2)}')
    for i, r in enumerate(regs):
        a.e(f'v_pk_fma_f32 {vr(T + 2 * i, 2)}, {vr(T + 2 * i, 2)}, s[{sC1}:{sC1 + 1}], {vr(vC0, 2)}')
    for i, r in enumerate(regs):
        a.e(f'v_pk_mul_f32 {vr(T + 2 * i, 2)}, {vr(T + 2 * i, 2)}, {vr(r, 2)}')
    for i in range(2 * n):
        a.e(f'v_exp_f32 v{T + i}, v{T + i}')
    for i, r in enumerate(regs):
        a.e(f'v_pk_add_f32 {vr(T + 2 * i, 2)}, {vr(T + 2 * i, 2)}, 1.0 op_sel_hi:[1,0]')
    for i in range(2 * n):
        a.e(f'v_rcp_f32 v{T + i}, v{T + i}')
    for i, r in enumerate(regs):
        a.e(f'v_pk_mul_f32 {vr(r, 2)}, {vr(T + 2 * i, 2)}, {vr(r, 2)}')


SPIN_MAX = 300000
PG = [2, 2, 0]


def poll(a, loads, regs, t0, first_done=False, sleep=1):
    lp = a.newlabel('POLL')
    lc = a.newlabel('POLLC')
    lg = a.newlabel('POLLOK')
    a.e(f's_mov_b32 s51, {SPIN_MAX}')
    if first_done:
        a.e(f's_branch {lc}')
    a.label(lp)
    loads()
    a.e('s_waitcnt vmcnt(0)')
    a.label(lc)
    if len(regs) >= 8:
        a.e(f'v_max3_u32 v{t0}, v{regs[0]}, v{regs[1]}, s62')
        a.e(f'v_min3_u32 v{t0 + 1}, v{regs[0]}, v{regs[1]}, s62')
        for i in range(2, len(regs), 2):
            a.e(f'v_max3_u32 v{t0}, v{regs[i]}, v{regs[i + 1]}, v{t0}')
            a.e(f'v_min3_u32 v{t0 + 1}, v{regs[i]}, v{regs[i + 1]}, v{t0 + 1}')
        a.e(f'v_xor_b32 v{t0}, v{t0}, v{t0 + 1}')
    else:
        a.e(f'v_xor_b32 v{t0}, s62, v{regs[0]}')
        for r in regs[1:]:
            a.e(f'v_xor_b32 v{t0 + 1}, s62, v{r}')
            a.e(f'v_or_b32 v{t0}, v{t0}, v{t0 + 1}')
    a.e(f'v_cmp_ne_u32 vcc, 0, v{t0}')
    a.e(f's_cbranch_vccz {lg}')
    a.e(f's_sleep {sleep}')
    a.e('s_sub_u32 s51, s51, 1')
    a.e('s_cmp_lg_u32 s51, 0')
    a.e(f's_cbranch_scc1 {lp}')
    a.label(lg)
    if not first_done:
        a.vmq = []


def get_nonce(a, vz, vn):
    lp = a.newlabel('NONCE')
    lg = a.newlabel('NONCE_OK')
    a.e(f's_mov_b32 s51, {SPIN_MAX}')
    a.label(lp)
    a.e(f'v_readfirstlane_b32 s62, v{vn}')
    a.e('s_cmp_lg_u32 s62, 0')
    a.e(f's_cbranch_scc1 {lg}')
    a.e('s_sleep 32')
    a.e(f'global_load_dword v{vn}, v{vz}, s[16:17] {SC}')
    a.e('s_waitcnt vmcnt(0)')
    a.e('s_sub_u32 s51, s51, 1')
    a.e('s_cmp_lg_u32 s51, 0')
    a.e(f's_cbranch_scc1 {lp}')
    a.label(lg)


def set_flag(a, soff, t0):
    a.e(f'v_mov_b32 v{t0}, 0')
    a.e(f'v_mov_b32 v{t0 + 1}, s62')
    a.e('s_mov_b64 exec, 1')
    a.vm(f'buffer_store_dword v{t0 + 1}, v{t0}, s[12:15], s{soff} offen {SC}', 'flag')
    a.e('s_mov_b64 exec, -1')


class GW:
    R = 5
    SLOT = 8192
    SGL = 40960
    BBASE = 49152
    AF = 32
    BF = 68
    ACC0 = 100
    ACC1 = 172
    UB = 27
    UP = 45

    def __init__(self, a):
        self.a = a
        self.units = []
        self.stages = []
        for st in range(9):
            self.stages.append(('x', st))
            self.units += [('z2', 2 * st, st, 0, 2 * st), ('z2', 2 * st + 1, st, 1, 2 * st + 1), ('E', st, st, 0, None)]
        for k in range(18):
            if k % 2 == 0:
                self.stages.append(('x', k // 2))
            self.units.append(('z1', k, 9 + k // 2, k % 2, 18 + k))
        for k in range(64):
            if k % 2 == 0:
                self.stages.append(('sp', k // 2))
            self.units.append(('sp', k, 18 + k // 2, k % 2, 36 + k))
        self.nextA = 0
        self.nextB = 0
        self.limitA = len(self.units)
        self.pendB = []
        self.extra = []
        self.hooks = {}

    def setup(self):
        a = self.a
        a.e(f's_load_dwordx4 s[4:7], s[0:1], {A_X}')
        a.e(f's_load_dwordx2 s[8:9], s[0:1], {A_WIN}')
        a.e(f's_load_dwordx4 s[16:19], s[0:1], {A_DBG}')
        a.e(f's_load_dwordx4 s[52:55], s[0:1], {A_WSP}')
        a.e(f's_load_dwordx2 s[64:65], s[0:1], {A_OUT}')
        a.e(f's_load_dwordx4 s[68:71], s[0:1], {A_WK}')
        a.e('v_lshrrev_b32 v1, 6, v0')
        a.e('v_readfirstlane_b32 s20, v1')
        a.e('v_and_b32 v1, 63, v0')
        a.e('s_lshr_b32 s31, s2, 3')
        a.e('s_and_b32 s32, s2, 3')
        a.e('s_and_b32 s34, s31, 3')
        a.e('s_lshl_b32 s21, s32, 2')
        a.e('s_add_u32 s21, s21, s34')
        a.e('s_lshr_b32 s35, s31, 2')
        a.e('s_and_b32 s22, s2, 4')
        a.e('s_lshl_b32 s22, s22, 1')
        a.e('s_add_u32 s22, s22, s35')
        a.e('s_lshl_b32 s23, s21, 2')
        a.e('s_add_u32 s23, s23, s20')
        a.e('s_lshl_b32 s39, s34, 1')
        a.e('s_add_u32 s39, s39, s35')
        a.e('s_cmp_ge_u32 s39, 9')
        a.e('s_cselect_b32 s40, 9, 0')
        a.e('s_sub_u32 s39, s39, s40')
        if 'norot' in ABL:
            a.e('s_mov_b32 s39, 0')
        if 'rot3' in ABL:
            a.e('s_lshl_b32 s39, s39, 2')
            a.e('s_mov_b32 s40, 0x30630630')
            a.e('s_mov_b32 s41, 6')
            a.e('s_lshr_b64 s[40:41], s[40:41], s39')
            a.e('s_and_b32 s39, s40, 15')
        if 'rot5' in ABL:
            a.e('s_and_b32 s39, s39, 14')
        a.e('s_mul_i32 s24, s39, %d' % (64 * 9216))
        a.e('s_lshl_b32 s25, s39, 7')
        a.e('s_lshl_b32 s28, s39, 1')
        a.e('s_add_u32 s28, s28, s20')
        a.e('s_cmp_ge_u32 s28, 18')
        a.e('s_cselect_b32 s29, 18, 0')
        a.e('s_sub_u32 s28, s28, s29')
        a.e(f's_mul_i32 s28, s28, {32 * 9216}')
        a.e('s_lshl_b32 s26, s20, 11')
        a.e('s_lshl_b32 s27, s20, 12')
        a.e(f's_add_u32 s27, s27, {self.BBASE}')
        a.e('s_lshl_b32 s30, s20, 10')
        a.e(f's_add_u32 s30, s30, {self.SGL}')
        a.e('v_and_b32 v23, 7, v1')
        a.e('v_lshrrev_b32 v24, 5, v1')
        a.e('v_lshlrev_b32 v24, 3, v24')
        a.e('v_bfe_u32 v25, v1, 3, 2')
        a.e('s_lshl_b32 s44, s23, 5')
        a.e('v_add3_u32 v24, v24, v25, s44')
        a.e('v_lshrrev_b32 v25, 4, v1')
        a.e('v_xor_b32 v25, v25, v23')
        a.e('v_lshlrev_b32 v25, 4, v25')
        a.e('v_xor_b32 v26, 64, v25')
        a.e('v_mul_u32_u24 v27, 1152, v24')
        a.e('v_add_u32 v5, v27, v25')
        a.e('v_add_u32 v6, v27, v26')
        a.e(f'v_add_u32 v6, {16 * 1152 - 1024}, v6')
        a.e(f'v_add_u32 v7, {4 * 1152 - 2048}, v5')
        a.e(f'v_add_u32 v8, {4 * 1152 - 2048}, v6')
        a.e('s_lshl_b32 s42, s22, 8')
        a.e('s_mul_i32 s43, s20, %d' % (8 * 9216))
        a.e('s_add_u32 s42, s42, s43')
        a.e('s_add_u32 s42, s42, 4608')
        a.e('v_bfe_u32 v2, v1, 2, 2')
        a.e('v_mul_u32_u24 v2, 9216, v2')
        a.e('v_lshrrev_b32 v3, 4, v1')
        a.e('v_lshl_add_u32 v2, v3, 6, v2')
        a.e('s_and_b32 s44, s20, 1')
        a.e('s_lshl_b32 s45, s44, 1')
        a.e('v_and_b32 v3, 3, v1')
        a.e('v_xor_b32 v3, s45, v3')
        a.e('v_lshl_add_u32 v2, v3, 4, v2')
        a.e('v_add_u32 v2, s42, v2')
        a.e(f'v_add_u32 v3, {4 * 9216 - 1024}, v2')
        a.e('v_lshrrev_b32 v29, 1, v1')
        a.e('v_and_b32 v27, 19, v29')
        a.e('v_bfe_u32 v28, v29, 2, 1')
        a.e('v_lshl_add_u32 v27, v28, 3, v27')
        a.e('v_bfe_u32 v28, v29, 3, 1')
        a.e('v_lshl_add_u32 v27, v28, 2, v27')
        a.e('v_mul_u32_u24 v4, 9216, v27')
        a.e('v_and_b32 v27, 1, v1')
        a.e('v_lshl_add_u32 v4, v27, 4, v4')
        a.e('s_lshl_b32 s45, s22, 5')
        a.e(f's_add_u32 s45, s45, {4096 + 4608}')
        a.e('v_add_u32 v4, s45, v4')
        a.e('s_waitcnt lgkmcnt(0)')
        a.e('s_mov_b64 s[48:49], s[6:7]')
        a.e('s_mov_b64 s[60:61], s[68:69]')
        a.e('s_mov_b64 s[50:51], s[70:71]')
        srd(a, 4, 2359296)
        srd(a, 8, 576 * 9216)
        self.consts()
        b0 = self.issueB()
        self.run(b0[0] + b0[1][1:] + self.issueA() + self.issueA())
        a.e('v_mul_u32_u24 v27, 36, v27')
        a.e('v_lshrrev_b32 v20, 2, v1')
        a.e('v_mul_u32_u24 v20, 1152, v20')
        a.e('v_bfe_u32 v28, v1, 1, 1')
        a.e('v_lshl_add_u32 v20, v28, 4, v20')
        a.e('v_add_u32 v20, v20, v27')
        a.e('v_mul_u32_u24 v28, 1152, v29')
        a.e('v_add3_u32 v28, v28, v27, 32')
        a.e('s_cmp_eq_u32 s20, 2')
        a.e('s_cselect_b64 vcc, -1, 0')
        a.e('v_cndmask_b32 v20, v20, v28, vcc')
        a.e('v_mul_u32_u24 v28, 36, v29')
        a.e('s_cmp_eq_u32 s20, 3')
        a.e('s_cselect_b64 vcc, -1, 0')
        a.e('v_cndmask_b32 v20, v20, v28, vcc')
        a.e('s_mul_i32 s44, s22, 72')
        a.e('s_cmp_eq_u32 s20, 1')
        a.e(f's_cselect_b32 s45, {16 * 1152}, 0')
        a.e('s_add_u32 s44, s44, s45')
        a.e('s_and_b32 s45, s22, 1')
        a.e('s_lshl_b32 s45, s45, 4')
        a.e('s_cmp_ge_u32 s22, 4')
        a.e('s_cselect_b32 s45, 32, s45')
        a.e('s_cmp_eq_u32 s20, 3')
        a.e('s_cselect_b32 s44, s45, s44')
        a.e(f's_movk_i32 s58, 1152')
        a.e('s_cselect_b32 s58, 36, s58')
        a.e('v_add_u32 v20, s44, v20')
        a.e('s_lshl_b32 s44, s58, 5')
        a.e('s_sub_u32 s44, s44, 1024')
        a.e('v_add_u32 v244, s44, v20')
        a.e('s_mul_i32 s42, s58, 576')
        a.e('s_lshl_b32 s58, s58, 6')
        a.e('s_mul_i32 s59, s58, s39')
        a.e('s_lshr_b32 s44, 0x2c, s22')
        a.e('s_and_b32 s44, s44, 1')
        a.e('s_cmp_eq_u32 s44, 1')
        a.e('s_cselect_b32 s40, s50, s60')
        a.e('s_cselect_b32 s41, s51, s61')
        a.e('s_cmp_eq_u32 s20, 3')
        a.e('s_cselect_b32 s40, s40, s48')
        a.e('s_cselect_b32 s41, s41, s49')
        a.e('s_mov_b32 s43, 0x00020000')
        a.e('s_mov_b32 s12, s18')
        a.e('s_mov_b32 s13, s19')
        srd(a, 12, WS_SIZE)
        a.e('s_mov_b32 s56, s54')
        a.e('s_mov_b32 s57, s55')
        srd(a, 52, 2048 * 4096)

    def setup2(self):
        a = self.a
        a.e('v_lshlrev_b32 v27, 12, v24')
        a.e('v_add_u32 v12, v27, v25')
        a.e('v_add_u32 v13, v27, v26')
        a.e(f'v_add_u32 v13, {16 * 4096 - 1024}, v13')
        a.e(f'v_add_u32 v14, {4 * 4096 - 2048}, v12')
        a.e(f'v_add_u32 v15, {4 * 4096 - 2048}, v13')
        a.e('s_xor_b32 s37, s21, s35')
        a.e('s_lshl_b32 s45, s22, 13')
        a.e('s_add_u32 s45, s45, s26')
        a.e(f's_add_u32 s45, s45, {Z2_OFF}')
        a.e('v_lshlrev_b32 v19, 4, v1')
        a.e('v_add_u32 v9, s45, v19')
        a.e('s_lshl_b32 s45, s22, 10')
        a.e('s_mul_i32 s46, s20, 147456')
        a.e('s_add_u32 s45, s45, s46')
        a.e(f's_add_u32 s45, s45, {128 * 1024 + Z2_OFF}')
        a.e('v_add_u32 v10, s45, v19')
        a.e('v_lshrrev_b32 v27, 4, v1')
        a.e('v_and_b32 v29, 3, v1')
        a.e('v_lshlrev_b32 v28, 3, v29')
        a.e('v_bfe_u32 v29, v1, 2, 3')
        a.e('v_lshl_add_u32 v18, v29, 5, v28')
        a.e('v_lshrrev_b32 v29, 5, v1')
        a.e('v_lshl_add_u32 v18, v29, 9, v18')
        a.e('v_lshl_add_u32 v28, v27, 11, v28')
        a.e('v_bfe_u32 v29, v1, 2, 2')
        a.e('v_lshl_add_u32 v28, v29, 6, v28')
        a.e('v_and_b32 v29, 1, v27')
        a.e('v_lshl_add_u32 v16, v29, 5, v28')
        a.e('v_xor_b32 v17, 32, v16')
        a.e('v_and_b32 v28, 15, v1')
        a.e('v_lshlrev_b32 v245, 4, v28')
        a.e('v_lshl_add_u32 v245, v29, 9, v245')
        a.e('v_lshrrev_b32 v29, 5, v1')
        a.e('v_lshl_add_u32 v245, v29, 11, v245')
        a.e('v_bfe_u32 v29, v1, 2, 2')
        a.e('v_lshl_add_u32 v29, v27, 3, v29')
        a.e('v_lshlrev_b32 v246, 5, v29')
        a.e('v_and_b32 v29, 1, v1')
        a.e('v_lshlrev_b32 v23, 4, v29')
        a.e('v_add_u32 v23, 4096, v23')
        a.e('v_lshlrev_b32 v29, 3, v29')
        a.e('v_add_u32 v29, 6144, v29')
        a.e('v_and_b32 v24, 2, v1')
        a.e('v_cmp_eq_u32 vcc, 0, v24')
        a.e('v_cndmask_b32 v29, v29, v23, vcc')
        a.e('v_add_u32 v246, v246, v29')
        a.e('v_bfe_u32 v29, v1, 1, 3')
        a.e('v_xor_b32 v29, v29, v27')
        a.e('v_lshlrev_b32 v28, 7, v28')
        a.e('v_lshl_add_u32 v28, v29, 4, v28')
        a.e('v_add_u32 v21, s27, v28')
        a.e('v_xor_b32 v28, 64, v28')
        a.e('v_add_u32 v22, s27, v28')
        self.gelu_consts()

    def consts(self):
        a = self.a
        for i in range(5):
            a.e(f's_add_u32 s{66 + i}, s26, {i * self.SLOT}')
        a.e('s_mov_b32 s71, s30')
        a.e('s_add_u32 s72, s30, 4096')
        a.e('s_mov_b32 s73, s27')
        a.e('s_add_u32 s63, s27, 16384')
        a.e(f's_mov_b32 s33, {32 * 9216}')
        a.e(f's_mov_b32 s36, {576 * 9216}')
        a.e('s_mov_b32 s38, 147456')
        a.e('s_movk_i32 s3, 1152')

    def S(self, text, cost=4):
        return (cost, lambda: self.a.e(text))

    def D(self, text, tag):
        return (12, lambda: self.a.vm(text, tag))

    def grp(self, g, d, t):
        S = self.S
        if g == 0:
            return [S(f's_mov_b32 s{d}, s21')]
        if g < 8:
            return [S(f's_add_u32 s{d}, s35, {g}'), S(f's_cmp_ge_u32 s{d}, 8\ns_cselect_b32 s{t}, 7, 0', 8),
                    S(f's_sub_u32 s{d}, s{d}, s{t}'), S(f's_xor_b32 s{d}, s{d}, s21')]
        return [S(f's_xor_b32 s{d}, s37, {g}')]

    def issueA(self):
        u = self.nextA
        if u >= self.limitA:
            return []
        self.nextA += 1
        S, D = self.S, self.D
        seg, i, _, _, si = self.units[u]
        tag = ('A', u)
        m0 = S(f's_mov_b32 m0, s{66 + u % self.R}')
        if seg == 'E':
            return [m0, D('buffer_load_dwordx4 v20, s[40:43], s59 offen lds', tag),
                    D('buffer_load_dwordx4 v244, s[40:43], s59 offen offset:1024 lds', tag),
                    S('s_add_u32 s59, s59, s58'), S('s_cmp_eq_u32 s59, s42\ns_cselect_b32 s59, 0, s59', 8)]
        m1 = S(f's_mov_b32 m0, s{71 + (si // 4) % 2}')
        out = []
        if seg == 'sp':
            if i % 4 == 0:
                out += self.grp(i // 4, 24, 29) + [S('s_mul_i32 s24, s24, 589824', 6)]
            out += [m0, D(f'buffer_load_dwordx4 v9, s[12:15], s24 offen {SCL} lds', tag),
                    D(f'buffer_load_dwordx4 v9, s[12:15], s24 offen offset:1024 {SCL} lds', tag)]
            if i % 4 == 0:
                out += [m1, D(f'buffer_load_dwordx4 v10, s[12:15], s24 offen {SCL} lds', tag)]
            if i % 4 != 3:
                out.append(S('s_add_u32 s24, s24, s38'))
            return out
        if seg == 'z1' and i == 0:
            out += [S('v_subrev_u32 v2, 4608, v2', 8), S('v_subrev_u32 v3, 4608, v3', 8)]
        out += [m0, D('buffer_load_dwordx4 v2, s[8:11], s24 offen lds', tag),
                D('buffer_load_dwordx4 v3, s[8:11], s24 offen offset:1024 lds', tag), S('s_add_u32 s24, s24, s33')]
        if i % 2 == 1:
            out.append(S('s_cmp_eq_u32 s24, s36\ns_cselect_b32 s24, 0, s24', 8))
        if si % 4 == 0:
            if si == 16:
                out += [S('s_cmp_lt_u32 s20, 2\ns_cselect_b32 s29, 0, 4608', 10), S('v_subrev_u32 v4, s29, v4')]
            if si == 20:
                out += [S('s_cmp_lt_u32 s20, 2\ns_cselect_b32 s29, 4608, 0', 10), S('v_subrev_u32 v4, s29, v4')]
            out += [m1, D('buffer_load_dwordx4 v4, s[8:11], s28 offen lds', tag), S(f's_add_u32 s28, s28, {128 * 9216}', 6),
                    S('s_cmp_ge_u32 s28, s36\ns_cselect_b32 s29, s36, 0', 8), S('s_sub_u32 s28, s28, s29')]
        return out

    def issueB(self):
        s = self.nextB
        if s >= len(self.stages):
            return [[], []]
        self.nextB += 1
        S, D = self.S, self.D
        seg, i = self.stages[s]
        tag = ('B', s)
        sp = seg == 'sp'
        vb = 12 if sp else 5
        sr = 's[52:55]' if sp else 's[4:7]'
        m0 = S(f's_mov_b32 m0, s{(73, 63)[s % 2]}')
        ld = [D(f'buffer_load_dwordx4 v{vb + j}, {sr}, s25 offen offset:{1024 * j} lds', tag) for j in range(4)]
        pre = []
        if sp:
            pre = self.grp(i // 2, 25, 44) + [S('s_lshl_b32 s25, s25, 8')] if i % 2 == 0 else [S('s_addk_i32 s25, 128')]
        post = [] if sp else [S('s_addk_i32 s25, 128'), S('s_cmp_eq_u32 s25, s3\ns_cselect_b32 s25, 0, s25', 8)]
        return [pre + [m0] + ld[:2], [m0] + ld[2:] + post]

    def nfr(self, u):
        return 6 if self.units[u][0] == 'E' else 9

    def freg(self, u, F):
        return (self.ACC1 + 24 if self.units[u][0] == 'E' else self.AF) + 4 * F

    def readA(self, u, F):
        a = self.a
        seg, i, _, _, si = self.units[u]
        slot = (u % self.R) * self.SLOT
        tag = ('AR', u, F)
        r = self.freg(u, F)

        def L(t):
            return (8, lambda: a.lg(t, tag))
        if seg == 'E':
            kk, t = F // 3, F % 3
            if t < 2:
                return [L(f'ds_read_b64_tr_b16 {vr(r + 2 * j, 2)}, v245 offset:{slot + kk * 1024 + j * 256 + t * 8}') for j in range(2)]
            return [L(f'ds_read_b64_tr_b16 {vr(r + 2 * j, 2)}, v246 offset:{slot + kk * 1024 + j * 128}') for j in range(2)]
        sgl = self.SGL + ((si // 4) % 2) * 4096 + (si % 4) * 1024
        if seg == 'sp':
            return [L(f'ds_read_b128 {vr(r, 4)}, v19 offset:{slot + F * 1024 if F < 8 else sgl}')]
        if F < 8:
            return [L(f'ds_read_b64_tr_b16 {vr(r + 2 * j, 2)}, v{16 + F % 2} offset:{slot + j * 1024 + (F // 2) * 256}') for j in range(2)]
        return [L(f'ds_read_b64_tr_b16 {vr(r + 2 * j, 2)}, v18 offset:{sgl + j * 256}') for j in range(2)]

    def readB(self, s):
        a = self.a
        out = [(4, lambda: a.wait_vm(('B', s)))]
        for jj in range(2):
            for e in range(2):
                t = f'ds_read_b128 {vr(self.BF + 16 * (s % 2) + 8 * jj + 4 * e, 4)}, v{21 + jj} offset:{(s % 2) * 16384 + e * 2048}'
                out.append((8, lambda t=t: a.lg(t, ('BR', s))))
        return out

    def run(self, items):
        for _, f in items:
            f()

    def prologue_issue(self):
        self.run(self.issueA())
        b1 = self.issueB()
        self.run(b1[0] + b1[1][1:] + self.issueA())

    def run_segment(self, u0, n, own=False):
        a = self.a
        a.e(f's_setprio {opt("pg", PG)[0]}')
        self.run(self.readB(self.units[u0][2]))
        a.wait_vm(('A', u0))
        a.wait_lg('own')
        a.e('s_barrier')
        for F in range(9):
            self.run(self.readA(u0, F))
        carry = []
        for u in range(u0, u0 + n):
            last = u == u0 + n - 1
            seg, kk, s, jj, _ = self.units[u]
            sfirst = u == u0 or self.units[u - 1][2] != s
            pos = u - min(v for v in range(u0, u + 1) if self.units[v][2] == s)
            nf = self.nfr(u)
            if 'p2fine' in ABL and u >= self.UP + 4 and (u - self.UP - 4) % 10 == 0:
                stamp(a, 1 + (u - self.UP - 4) // 10)
            will_issue = self.nextA <= u + self.R - 1 and self.nextA < self.limitA
            if not last:
                a.wait_vm(('A', u + 1))
            if will_issue or (not last and not own):
                a.e('s_barrier')
            if u in self.hooks:
                self.hooks[u]()
            misc = self.issueA() if self.nextA <= u + self.R - 1 else []
            if sfirst and self.nextB <= s + 2:
                self.pendB = self.issueB()
            pb = self.pendB.pop(0) if self.pendB else []
            reads = [(0, it) for it in carry]
            carry = []
            if not last:
                same = self.freg(u, 0) == self.freg(u + 1, 0)
                for F in range(self.nfr(u + 1)):
                    its = self.readA(u + 1, F)
                    if nf == 6 and F >= 7:
                        carry += its
                    else:
                        reads += [(2 * F + 1 if same else 0, it) for it in its]
            stage_end = max(v for v in range(u, u0 + n) if self.units[v][2] == s)
            if pos == 1 and stage_end < u0 + n - 1:
                misc += self.readB(s + 1)
            misc += pb
            n_ex = opt('spr', [9, 2])[1]
            misc = self.extra[:n_ex] + misc
            self.extra = self.extra[n_ex:]
            ng = 2 * nf
            nwait = (nf + 1) // 2
            total = sum(c for _, (c, _) in reads) + sum(c for c, _ in misc) + 4 * nwait + 8
            done = 0
            for g in range(ng):
                F, e = g // 2, g % 2
                if g == 0:
                    a.wait_lg(('AR', u, 0))
                    if sfirst:
                        a.wait_lg(('BR', s))
                af = vr(self.freg(u, F), 4)
                if seg == 'E':
                    d = vr(self.ACC1 + 8 * (F % 3) + 4 * e, 4)
                    c = '0' if (kk == 0 and F < 3) else d
                    bf = vr(self.BF + 16 * (s % 2) + 8 * (F // 3) + 4 * e, 4)
                else:
                    d = vr((self.ACC1 if seg == 'z1' else self.ACC0) + 8 * F + 4 * e, 4)
                    c = '0' if kk == 0 else d
                    bf = vr(self.BF + 16 * (s % 2) + 8 * jj + 4 * e, 4)
                if seg == 'z2':
                    a.e(f'v_mfma_f32_16x16x32_bf16 {d}, {bf}, {af}, {c}')
                else:
                    a.e(f'v_mfma_f32_16x16x32_bf16 {d}, {af}, {bf}, {c}')
                used = 0
                needw = e == 1 and F % 2 == 0 and F + 1 < nf
                if needw:
                    used += 4
                if g == ng - 1:
                    used += 8
                target = max(12 * (g + 1), total * (g + 1) / ng)
                while True:
                    cand = None
                    if reads and reads[0][0] <= g and (not misc or len(reads) * 1.0 >= (ng - g) * 0.55 or misc[0][0] + used > 12):
                        cand = 'r'
                    elif misc:
                        cand = 'm'
                    elif reads and reads[0][0] <= g:
                        cand = 'r'
                    if cand is None:
                        break
                    cost = reads[0][1][0] if cand == 'r' else misc[0][0]
                    if g < ng - 1 and used + cost > 12 and done + used + cost > total * (g + 1) / ng:
                        break
                    (reads.pop(0)[1] if cand == 'r' else misc.pop(0))[1]()
                    used += cost
                done += used
                if needw:
                    a.wait_lg(('AR', u, F + 1))
                    a.wait_lg(('AR', u, min(F + 2, nf - 1)))
                    self.merge_waits()
            assert not reads and not misc
        a.e(f's_setprio {opt("pg", PG)[1]}')

    def merge_waits(self):
        ins = self.a.ins
        if len(ins) >= 2 and ins[-1].text.startswith('s_waitcnt lgkmcnt') and ins[-2].text.startswith('s_waitcnt lgkmcnt'):
            del ins[-2]

    def proj_store(self):
        a = self.a
        E = self.ACC1
        P = self.AF
        a.e(f's_mov_b32 s44, {hx(QSCALE)}')
        a.e(f's_mov_b32 s45, {hx(QSCALE)}')
        a.e('v_mov_b32 v24, s44')
        a.e('s_bitcmp1_b32 0x2c, s22')
        a.e(f's_cselect_b32 s46, {hx(2.0 ** VSH)}, 1.0')
        a.e('v_mov_b32 v25, s46')
        a.e('v_cmp_gt_u32 vcc, 32, v1')
        a.e('v_cndmask_b32 v24, v25, v24, vcc')
        a.e('s_lshl_b32 s46, s23, 5')
        a.e('s_add_u32 s46, s46, s22')
        a.e('s_mul_i32 s46, s46, 1152')
        a.e(f's_add_u32 s46, s46, {QF_OFF}')
        a.e(f's_add_u32 s47, s46, {16 * 1152}')
        a.e('v_lshlrev_b32 v25, 2, v1')
        for e in range(2):
            for t in range(2):
                for h in range(2):
                    r = E + 8 * t + 4 * e + 2 * h
                    a.e(f'v_pk_mul_f32 {vr(r, 2)}, {vr(r, 2)}, s[44:45]')
            for r in (E + 16 + 4 * e, E + 18 + 4 * e):
                a.e(f'v_pk_mul_f32 {vr(r, 2)}, {vr(r, 2)}, v[24:25] op_sel_hi:[1,0]')
            for t in range(3):
                for h in range(2):
                    r = E + 8 * t + 4 * e + 2 * h
                    a.e(f'v_cvt_pk_bf16_f32 v{P + 8 * e + 2 * t + h}, v{r}, v{r + 1}')
            for i in range(6):
                a.e(f'v_min_u32 v{P + 8 * e + i}, -2, v{P + 8 * e + i}')
            a.vm(f'buffer_store_dwordx4 {vr(P + 8 * e, 4)}, v19, s[12:15], s{46 + e} offen {SC}', 'pst')
        a.e('s_mov_b32 exec_hi, 0')
        for e in range(2):
            a.vm(f'buffer_store_dword v{P + 8 * e + 4}, v25, s[12:15], s{46 + e} offen offset:1024 {SC}', 'pst')
        a.e('s_mov_b64 exec, -1')
        le = a.newlabel('PJ_E')
        lv = a.newlabel('PJ_V')
        lt = a.newlabel('PJ_T')
        ls = a.newlabel('PJ_S')
        a.e('s_cmp_ge_u32 s22, 6')
        a.e(f's_cbranch_scc1 {le}')
        a.e(f's_mul_i32 s44, s23, {KV_TILE}')
        a.e(f's_add_u32 s44, s44, {KV_OFF}')
        a.e('v_and_b32 v24, 15, v1')
        a.e('v_bfe_u32 v25, v1, 4, 1')
        a.e('v_lshrrev_b32 v26, 2, v24')
        a.e('v_mul_u32_u24 v26, 168, v26')
        a.e('v_add_u32 v26, 1152, v26')
        a.e('v_and_b32 v27, 3, v1')
        a.e('s_mov_b32 exec_lo, 0')
        a.e('s_cmp_ge_u32 s22, 4')
        a.e(f's_cbranch_scc1 {lt}')
        a.e('s_cmp_ge_u32 s22, 2')
        a.e(f's_cbranch_scc1 {lv}')
        a.e('v_lshlrev_b32 v28, 4, v24')
        a.e('v_lshl_add_u32 v28, v25, 3, v28')
        a.e('s_lshl_b32 s45, s22, 9')
        a.e('s_add_u32 s44, s44, s45')
        a.e('s_add_u32 s45, s44, 256')
        a.e(f's_branch {ls}')
        a.label(lv)
        a.e('v_lshl_add_u32 v28, v27, 5, v26')
        a.e('v_lshl_add_u32 v28, v25, 3, v28')
        a.e('s_and_b32 s45, s22, 1')
        a.e('s_lshl_b32 s45, s45, 4')
        a.e('s_add_u32 s44, s44, s45')
        a.e(f's_add_u32 s45, s44, {4 * 168}')
        a.e(f's_branch {ls}')
        a.label(lt)
        lvt = a.newlabel('PJ_VT')
        a.e('s_cmp_eq_u32 s22, 5')
        a.e(f's_cbranch_scc1 {lvt}')
        a.e('v_lshlrev_b32 v28, 2, v24')
        a.e('s_mov_b32 exec_hi, 0xffff')
        for e in range(2):
            a.e(f'buffer_store_dword v{P + 8 * e + 4}, v28, s[12:15], s44 offen offset:{1024 + 64 * e} {SC}')
        a.e(f's_branch {le}')
        a.label(lvt)
        a.e('v_lshl_add_u32 v28, v27, 3, v26')
        a.e('v_add_u32 v28, 128, v28')
        a.e('v_add_u32 v29, 160, v26')
        a.e('v_cmp_eq_u32 vcc, 0, v25')
        a.e('v_cndmask_b32 v28, v29, v28, vcc')
        a.e(f'v_mov_b32 v29, {f2u(2.0 ** VSH) >> 16}')
        for e in range(2):
            a.e(f'v_cndmask_b32 v{P + 8 * e + 4}, 0, v{P + 8 * e + 4}, vcc')
            a.e(f'v_cndmask_b32 v{P + 8 * e + 5}, 0, v29, vcc')
        a.e(f's_add_u32 s45, s44, {4 * 168}')
        a.label(ls)
        for e in range(2):
            a.e(f'buffer_store_dwordx2 {vr(P + 8 * e + 4, 2)}, v28, s[12:15], s{44 + e} offen {SC}')
        a.label(le)
        a.e('s_mov_b64 exec, -1')

    def mk_load(self):
        self.a.e(f'buffer_load_dwordx2 v[26:27], v23, s[12:15], s47 offen {SC}')

    def mk_addr(self):
        a = self.a
        a.e('s_bfe_u32 s47, s22, 0x20001')
        a.e('s_lshl_b32 s47, s47, 3')
        a.e('s_bfe_u32 s45, s23, 0x30001')
        a.e('s_add_u32 s47, s47, s45')
        a.e('s_lshl_b32 s47, s47, 3')
        a.e('s_and_b32 s45, s2, 7')
        a.e('s_add_u32 s47, s47, s45')
        a.e('s_lshl_b32 s47, s47, 7')
        a.e('s_and_b32 s45, s23, 1')
        a.e('s_lshl_b32 s45, s45, 3')
        a.e('s_add_u32 s47, s47, s45')
        a.e(f's_add_u32 s47, s47, {GO_OFF}')

    def proj_signal(self):
        a = self.a
        a.wait_vm('pst')
        a.e('v_mov_b32 v28, s62')
        a.e('s_barrier')
        l = a.newlabel('PS')
        a.e('s_cmp_ge_u32 s22, 6')
        a.e(f's_cbranch_scc1 {l}')
        a.e('s_cmp_lg_u32 s20, 0')
        a.e(f's_cbranch_scc1 {l}')
        a.e('s_mul_i32 s44, s21, 6')
        a.e('s_add_u32 s44, s44, s22')
        a.e('s_lshl_b32 s44, s44, 2')
        a.e(f's_add_u32 s44, s44, {KVF_OFF}')
        a.e('v_lshlrev_b32 v27, 9, v1')
        a.e('s_mov_b64 exec, 0xff')
        a.e(f'buffer_store_dword v28, v27, s[12:15], s44 offen {SC}')
        a.e('s_mov_b64 exec, -1')
        a.label(l)

    def gelu_consts(self):
        a = self.a
        a.e(f's_mov_b32 s60, {hx(GELU_C1)}')
        a.e(f's_mov_b32 s61, {hx(GELU_C1)}')
        a.e(f'v_mov_b32 v30, {hx(GELU_C0)}')
        a.e(f'v_mov_b32 v31, {hx(GELU_C0)}')

    def z1_gelu(self, Fs=range(9)):
        a = self.a
        T = self.BF + 16
        for F in Fs:
            base = self.ACC1 + 8 * F
            gelu_group(a, [base + 2 * i for i in range(4)], T + 8 * (F % 2), 60, 30)

    def z2_gelu_publish(self):
        a = self.a
        T = self.AF + 16
        S = self.BF
        for F in range(9):
            if F == opt('psig', [5])[0]:
                self.proj_signal()
            base = self.ACC0 + 8 * F
            gelu_group(a, [base + 2 * i for i in range(4)], T + 8 * (F % 2), 60, 30)
            for i in range(4):
                y = vr(base + 2 * i, 2)
                if F == 0:
                    a.e(f'v_pk_add_f32 {vr(S + 2 * i, 2)}, {y}, 0 op_sel_hi:[1,0]')
                    a.e(f'v_pk_mul_f32 {vr(S + 8 + 2 * i, 2)}, {y}, {y}')
                else:
                    a.e(f'v_pk_add_f32 {vr(S + 2 * i, 2)}, {vr(S + 2 * i, 2)}, {y}')
                    a.e(f'v_pk_fma_f32 {vr(S + 8 + 2 * i, 2)}, {y}, {y}, {vr(S + 8 + 2 * i, 2)}')
        for b in (S, S + 8):
            for r in range(4):
                a.e(f'v_add_f32_dpp v{b + r}, v{b + r}, v{b + r} row_ror:8 row_mask:0xf bank_mask:0x3')
            for r in range(4):
                a.e(f'v_add_f32_dpp v{b + r}, v{b + r + 4}, v{b + r + 4} row_ror:8 row_mask:0xf bank_mask:0xc')
        for b in (S, S + 8):
            for r in range(2):
                a.e(f'v_add_f32_dpp v{b + r}, v{b + r}, v{b + r} row_shl:4 row_mask:0xf bank_mask:0x5')
            for r in range(2):
                a.e(f'v_add_f32_dpp v{b + r}, v{b + r + 2}, v{b + r + 2} row_shr:4 row_mask:0xf bank_mask:0xa')
        for qp in ('[1,0,3,2]', '[2,3,0,1]'):
            for r in (S, S + 1, S + 8, S + 9):
                a.e(f'v_add_f32_dpp v{r}, v{r}, v{r} quad_perm:{qp} row_mask:0xf bank_mask:0xf')
        a.e('v_and_b32 v25, 1, v1')
        a.e('v_cmp_eq_u32 vcc, 1, v25')
        G0 = S + 12
        a.e(f'v_cndmask_b32 v{G0}, v{S}, v{S + 1}, vcc')
        a.e(f'v_cndmask_b32 v{G0 + 2}, v{S + 8}, v{S + 9}, vcc')
        a.e('v_lshrrev_b32 v27, 2, v1')
        a.e('v_lshl_add_u32 v27, v27, 1, v25')
        a.e('v_lshlrev_b32 v27, 4, v27')
        a.e('s_lshl_b32 s48, s23, 13')
        a.e(f's_add_u32 s48, s48, {STATS_OFF}')
        a.e('s_lshl_b32 s49, s22, 9')
        a.e('s_add_u32 s49, s49, s48')
        a.e(f'v_mov_b32 v{G0 + 1}, s62')
        a.e(f'v_mov_b32 v{G0 + 3}, s62')
        a.e('s_mov_b32 exec_lo, 0x33333333')
        a.e('s_mov_b32 exec_hi, 0x33333333')
        a.vm(f'buffer_store_dwordx4 {vr(G0, 4)}, v27, s[12:15], s49 offen {SC}', 'st')
        a.e('s_mov_b64 exec, -1')

    def z2_gather_norm_store(self):
        a = self.a
        G = self.AF
        a.e('s_add_u32 s49, s48, 4096')

        def ld():
            for i in range(8):
                a.e(f'buffer_load_dwordx4 {vr(G + 4 * i, 4)}, v19, s[12:15], {"s48" if i < 4 else "s49"} offen offset:{1024 * (i % 4)} {SC}')
        poll(a, ld, [G + 2 * i + 1 for i in range(16)], 27)
        for o in (0, 2):
            a.e(f'v_add_f32 v{G + o}, v{G + o}, v{G + 4 + o}')
            a.e(f'v_add_f32 v{G + 8 + o}, v{G + 8 + o}, v{G + 12 + o}')
            a.e(f'v_add_f32 v{G + 16 + o}, v{G + 16 + o}, v{G + 20 + o}')
            a.e(f'v_add_f32 v{G + 24 + o}, v{G + 24 + o}, v{G + 28 + o}')
        for o in (0, 2):
            a.e(f'v_add_f32 v{G + o}, v{G + o}, v{G + 8 + o}')
            a.e(f'v_add_f32 v{G + 16 + o}, v{G + 16 + o}, v{G + 24 + o}')
        a.e(f'v_add_f32 v{G}, v{G}, v{G + 16}')
        a.e(f'v_add_f32 v{G + 1}, v{G + 2}, v{G + 18}')
        a.e(f'v_mov_b32 v{G + 2}, v{G}')
        a.e(f'v_mov_b32 v{G + 3}, v{G + 1}')
        a.e(f'v_permlane32_swap_b32 v{G}, v{G + 2}')
        a.e(f'v_permlane32_swap_b32 v{G + 1}, v{G + 3}')
        a.e(f'v_pk_add_f32 {vr(G, 2)}, {vr(G, 2)}, {vr(G + 2, 2)}')
        a.e(f'v_mul_f32 v{G}, {hx(1.0 / 2304)}, v{G}')
        a.e(f'v_mul_f32 v{G + 1}, {hx(1.0 / 2304)}, v{G + 1}')
        a.e(f'v_fma_f32 v{G + 1}, -v{G}, v{G}, v{G + 1}')
        a.e(f'v_max_f32 v{G + 1}, 0, v{G + 1}')
        a.e(f'v_add_f32 v{G + 1}, {hx(1e-5)}, v{G + 1}')
        a.e(f'v_rsq_f32 v{G + 1}, v{G + 1}')
        a.e(f'v_mul_f32 v{G}, v{G}, v{G + 1}')
        a.e(f'v_sub_f32 v{G}, 0, v{G}')
        a.e('v_lshrrev_b32 v28, 4, v1')
        a.e('v_lshlrev_b32 v28, 5, v28')
        RS = self.BF
        for i in range(8):
            a.lg(f'ds_bpermute_b32 v{RS + i}, v28, v{G + 1} offset:{4 * i}', 'r')
            a.lg(f'ds_bpermute_b32 v{RS + 8 + i}, v28, v{G} offset:{4 * i}', 'r')
        a.e('s_mul_i32 s44, s23, 147456')
        a.e(f's_add_u32 s44, s44, {Z2_OFF}')
        a.e('s_lshl_b32 s45, s22, 13')
        a.e('s_add_u32 s45, s45, s44')
        a.e('s_add_u32 s47, s45, 4096')
        a.e('s_lshl_b32 s46, s22, 10')
        a.e('s_add_u32 s46, s46, s44')
        a.e(f's_add_u32 s46, s46, {128 * 1024}')
        a.wait_lg0()
        for F in range(9):
            base = self.ACC0 + 8 * F
            pk = self.ACC0 + 4 * F
            for i in range(4):
                a.e(f'v_pk_fma_f32 {vr(base + 2 * i, 2)}, {vr(base + 2 * i, 2)}, {vr(RS + 2 * i, 2)}, {vr(RS + 8 + 2 * i, 2)}')
            for i in range(4):
                a.e(f'v_cvt_pk_bf16_f32 v{pk + i}, v{base + 2 * i}, v{base + 2 * i + 1}')
            so = 's46' if F == 8 else ('s45' if F < 4 else 's47')
            it = self.D(f'buffer_store_dwordx4 {vr(pk, 4)}, v19, s[12:15], {so} offen offset:{1024 * (F % 4)} {SC}', 'st')
            if F < opt('spr', [9, 2])[0]:
                it[1]()
            else:
                self.extra.append(it)

    def own_write(self):
        a = self.a
        a.e('s_lshl_b32 s44, s20, 13')
        a.e('v_add_u32 v27, s44, v19')
        a.e('v_add_u32 v28, s30, v19')
        a.e('s_barrier')
        for F in range(9):
            pk = self.ACC0 + 4 * F
            if F < 8:
                a.lg(f'ds_write_b128 v27, {vr(pk, 4)} offset:{1024 * F}', 'own')
            else:
                a.lg(f'ds_write_b128 v28, {vr(pk, 4)} offset:4096', 'own')

    def sp_pre(self):
        a = self.a
        a.e('v_bfe_u32 v27, v1, 2, 2')
        a.e('v_lshlrev_b32 v27, 3, v27')
        a.e('v_and_b32 v28, 3, v1')
        a.e('s_lshl_b32 s44, s23, 5')
        a.e('v_add3_u32 v27, v27, v28, s44')
        a.e('v_lshlrev_b32 v28, 1, v27')
        a.e('v_lshlrev_b32 v11, 3, v27')
        a.vm('global_load_ushort v244, v28, s[56:57]', 'pre')
        a.vm('global_load_ushort v245, v28, s[56:57] offset:8', 'pre')
        self.gate_loads(True)

    def gate_loads(self, track=False):
        a = self.a
        a.e(f's_mov_b32 s44, {GATE_OFF}')
        for e in range(2):
            t = f'buffer_load_dwordx2 {vr(246 + 2 * e, 2)}, v11, s[12:15], s44 offen offset:{32 * e} {SC}'
            a.vm(t, 'pre') if track else a.e(t)

    def sp_epilogue(self):
        a = self.a
        a.wait_vm('pre')
        poll(a, self.gate_loads, [247, 249], 27, first_done=True)
        poll(a, lambda: p3_flags(a), [2, 3, 4], 27, first_done=True)
        for e in range(2):
            a.e(f'v_sub_f32 v{246 + 2 * e}, 1.0, v{246 + 2 * e}')
            a.e(f'v_lshlrev_b32 v{244 + e}, 16, v{244 + e}')
            a.e(f'v_mul_f32 v{250 + 2 * e}, v{244 + e}, v{246 + 2 * e}')
        a.e('s_mul_i32 s44, s23, 180')
        a.e('s_lshr_b32 s45, s22, 2')
        a.e('s_mul_i32 s45, s45, 18')
        a.e('s_add_u32 s44, s44, s45')
        a.e('s_lshl_b32 s44, s44, 10')
        a.e(f's_add_u32 s44, s44, {UF_OFF + 18 * 1024}')
        a.e('s_and_b32 s45, s22, 3')
        a.e('s_lshl_b32 s46, s45, 12')
        a.e('s_add_u32 s46, s46, s44')
        a.e(f's_add_u32 s47, s46, {90 * 1024}')
        a.e('s_lshr_b32 s48, s45, 1')
        a.e('s_lshl_b32 s48, s48, 10')
        a.e('s_add_u32 s48, s48, s44')
        a.e('s_and_b32 s49, s45, 1')
        a.e('s_lshl_b32 s49, s49, 3')
        a.e('s_add_u32 s48, s48, s49')
        a.e(f's_add_u32 s48, s48, {16 * 1024}')
        a.e(f's_add_u32 s49, s48, {90 * 1024}')
        idx = 0
        for m in range(5):
            for e in range(2):
                pk = self.AF + 4 * idx
                idx += 1
                Fs = (2 * m, 2 * m + 1) if m < 4 else (8,)
                prs = [(self.ACC0 + 8 * F + 4 * e + 2 * i, self.ACC1 + 8 * F + 4 * e + 2 * i) for F in Fs for i in range(2)]
                for g, z in prs:
                    a.e(f'v_pk_fma_f32 {vr(g, 2)}, {vr(g, 2)}, {vr(246 + 2 * e, 2)}, {vr(250 + 2 * e, 2)} op_sel_hi:[1,0,0]')
                for g, z in prs:
                    a.e(f'v_pk_mul_f32 {vr(g, 2)}, {vr(g, 2)}, {vr(z, 2)}')
                for i, (g, z) in enumerate(prs):
                    a.e(f'v_cvt_pk_bf16_f32 v{pk + i}, v{g}, v{g + 1}')
                for i in range(len(prs)):
                    a.e(f'v_min_u32 v{pk + i}, -2, v{pk + i}')
                if m < 4:
                    a.vm(f'buffer_store_dwordx4 {vr(pk, 4)}, v19, s[12:15], s{46 + e} offen offset:{1024 * m} {SC}', 'st')
                else:
                    a.vm(f'buffer_store_dwordx2 {vr(pk, 2)}, v19, s[12:15], s{48 + e} offen {SC}', 'st')


def write_nonce(a):
    l = a.newlabel('NOW')
    a.e('s_cmp_lg_u32 s3, 0')
    a.e(f's_cbranch_scc1 {l}')
    a.e(f's_add_u32 s44, s26, {KV_OFF}')
    for i in range(10):
        a.e(f'buffer_store_dwordx4 v[224:227], v10, s[12:15], s44 offen {SC}')
        a.e('s_add_u32 s44, s44, 1024')
    a.e('s_memrealtime s[44:45]')
    a.e('s_waitcnt vmcnt(0) lgkmcnt(0)')
    a.e('s_barrier')
    a.e('s_cmp_lg_u32 s20, 0')
    a.e(f's_cbranch_scc1 {l}')
    a.e('v_mov_b32 v29, 0')
    a.e('s_or_b32 s44, s44, 1')
    a.e('v_mov_b32 v28, s44')
    a.e(f'global_store_dword v29, v28, s[16:17] {SC}')
    a.label(l)


KVBUF = 40960
M_OFFSET = 96.0
VSH = 32


class ATT:
    SB = 16
    OB = 48
    QF = 80
    KF = 96
    VF = 112
    PF = 128
    XF = 136
    WF = 208
    WQS = 16

    def __init__(self, a):
        self.a = a

    def setup(self, sid):
        a = self.a
        a.e(f's_load_dwordx2 s[4:5], s[0:1], {A_X}')
        a.e(f's_load_dwordx4 s[16:19], s[0:1], {A_DBG}')
        a.e(f's_load_dwordx4 s[56:59], s[0:1], {A_WOUT}')
        a.e(f's_load_dwordx2 s[36:37], s[0:1], {A_WO}')
        a.e(f's_load_dwordx2 s[60:61], s[0:1], {A_WSP}')
        a.e('v_lshrrev_b32 v1, 6, v0')
        a.e('v_readfirstlane_b32 s20, v1')
        a.e('v_and_b32 v1, 63, v0')
        a.e(f's_and_b32 s24, s{sid}, 3')
        a.e(f's_lshr_b32 s25, s{sid}, 3')
        a.e('s_lshl_b32 s21, s24, 3')
        a.e('s_and_b32 s23, s25, 7')
        a.e('s_add_u32 s21, s21, s23')
        a.e(f's_and_b32 s22, s{sid}, 4')
        a.e('s_lshr_b32 s23, s25, 3')
        a.e('s_add_u32 s22, s22, s23')
        a.e('s_lshl_b32 s23, s21, 2')
        a.e('s_add_u32 s23, s23, s20')
        a.e('s_lshr_b32 s44, s23, 1')
        a.e('s_lshl_b32 s44, s44, 5')
        a.e('s_and_b32 s45, s23, 1')
        a.e('s_lshl_b32 s45, s45, 2')
        a.e('s_add_u32 s44, s44, s45')
        a.e('v_bfe_u32 v3, v1, 2, 2')
        a.e('v_lshlrev_b32 v3, 3, v3')
        a.e('v_and_b32 v10, 3, v1')
        a.e('v_add3_u32 v3, v3, v10, s44')
        a.e('v_lshlrev_b32 v3, 3, v3')
        a.e('s_mul_i32 s26, s20, 10240')
        a.e('s_lshl_b32 s27, s25, 2')
        a.e('s_add_u32 s27, s27, s20')
        if 'nocodepf' not in ABL:
            a.e('s_getpc_b64 s[8:9]')
            a.label('K_PC')
            a.e('s_sub_u32 s8, s8, K_PC-K_GEMM')
            a.e('s_subb_u32 s9, s9, 0')
            a.e('s_mul_i32 s45, s27, 5')
            a.e('v_min_u32 v10, 4, v1')
            a.e('v_add_u32 v10, s45, v10')
            a.e('v_min_u32 v10, CODE_LINES, v10')
            a.e('v_lshlrev_b32 v238, 7, v10')
            a.e('global_load_dword v239, v238, s[8:9]')
        a.e('v_lshlrev_b32 v10, 4, v1')
        a.e('s_waitcnt lgkmcnt(0)')
        a.e('s_mov_b32 s12, s18')
        a.e('s_mov_b32 s13, s19')
        srd(a, 12, WS_SIZE)

    def nonce(self):
        a = self.a
        a.e('s_waitcnt vmcnt(0)')
        a.e('v_mov_b32 v2, 0')
        a.e(f'global_load_dword v4, v2, s[16:17] {SC}')
        a.e('s_waitcnt vmcnt(0)')
        get_nonce(a, 2, 4)

    def page_touch(self):
        a = self.a
        l = a.newlabel('PT')
        a.e('s_cmp_lg_u32 s20, 1')
        a.e(f's_cbranch_scc1 {l}')
        a.e(f's_load_dwordx2 s[44:45], s[0:1], {A_WSP}')
        a.e(f's_load_dwordx2 s[46:47], s[0:1], {A_OUT}')
        a.e('v_lshlrev_b32 v2, 19, v1')
        a.e('buffer_load_dword v255, v2, s[12:15], 0 offen')
        a.e('v_min_u32 v4, 15, v1')
        a.e('v_lshlrev_b32 v4, 19, v4')
        a.e('v_min_u32 v5, 4, v1')
        a.e('v_lshlrev_b32 v5, 19, v5')
        a.e('s_waitcnt lgkmcnt(0)')
        a.e('global_load_dword v255, v4, s[44:45]')
        a.e('global_load_dword v255, v5, s[46:47]')
        a.e('global_load_dword v255, v5, s[56:57]')
        a.label(l)

    SV = 140

    def side(self, part):
        a = self.a
        lg = a.newlabel('SJ_G')
        le = a.newlabel('SJ_E')
        a.e('s_cmp_eq_u32 s20, 3')
        a.e(f's_cbranch_scc1 {lg}')
        a.e(f's_cmp_ge_u32 s63, {0 if "nort" in ABL else 720}')
        a.e(f's_cbranch_scc1 {le}')
        self.retile(part)
        a.e(f's_branch {le}')
        a.label(lg)
        self.gate(part)
        a.label(le)
        if part == 2:
            self.mark_flag()

    def gate(self, part):
        a = self.a
        V = self.SV
        X, W = V + 8, V + 44
        if part == 0:
            a.e(f'v_lshrrev_b32 v{V}, 3, v1')
            a.e('s_lshl_b32 s44, s3, 3')
            a.e(f'v_add_u32 v{V}, s44, v{V}')
            a.e(f'v_and_b32 v{V + 1}, 7, v1')
            a.e(f'v_lshlrev_b32 v{V + 1}, 4, v{V + 1}')
            a.e(f'v_mul_u32_u24 v{V + 2}, 1152, v{V}')
            a.e(f'v_add_u32 v{V + 2}, v{V + 2}, v{V + 1}')
            for i in range(9):
                a.e(f'global_load_dwordx4 {vr(X + 4 * i, 4)}, v{V + 2}, s[4:5] offset:{128 * i}')
                a.e(f'global_load_dwordx4 {vr(W + 4 * i, 4)}, v{V + 1}, s[58:59] offset:{128 * i}')
        elif part == 1:
            A0, A1, T0, T1 = V + 4, V + 5, V + 6, V + 7
            a.e(f'v_mov_b32 v{A0}, 0')
            a.e(f'v_mov_b32 v{A1}, 0')
            for i in range(36):
                a.e(f'v_dot2c_f32_bf16 v{A0 + i % 2}, v{X + i}, v{W + i}')
            a.e('s_nop 3')
            a.e(f'v_add_f32 v{A0}, v{A0}, v{A1}')
            for m in ('quad_perm:[1,0,3,2]', 'quad_perm:[2,3,0,1]', 'row_half_mirror'):
                a.e(f'v_add_f32_dpp v{A0}, v{A0}, v{A0} {m} row_mask:0xf bank_mask:0xf')
            a.e(f'v_mul_f32 v{A0}, {hx(-1.4426950408889634)}, v{A0}')
            a.e(f'v_exp_f32 v{A0}, v{A0}')
            a.e(f'v_add_f32 v{A0}, 1.0, v{A0}')
            a.e(f'v_rcp_f32 v{A0}, v{A0}')
            a.e(f'v_mov_b32 v{A1}, s62')
            a.e(f'v_lshlrev_b32 v{V}, 3, v{V}')
            a.e(f's_mov_b32 s44, {GATE_OFF}')
            a.e('s_mov_b32 exec_lo, 0x01010101')
            a.e('s_mov_b32 exec_hi, 0x01010101')
            a.e(f'buffer_store_dwordx2 {vr(A0, 2)}, v{V}, s[12:15], s44 offen {SC}')
            a.e('s_mov_b64 exec, -1')

    def retile_setup(self):
        a = self.a
        V = self.SV
        a.e('s_mul_i32 s63, s3, 3')
        a.e('s_add_u32 s63, s63, s20')
        a.e('s_and_b32 s64, s63, 7')
        a.e('s_lshr_b32 s65, s63, 3')
        a.e('s_cmp_lt_u32 s65, 18')
        a.e('s_cselect_b32 s40, s36, s56')
        a.e('s_cselect_b32 s41, s37, s57')
        a.e(f's_mov_b32 s42, {2304 * 1152}')
        a.e(f's_cselect_b32 s42, {576 * 1152}, s42')
        a.e('s_mov_b32 s43, 0x00020000')
        a.e('s_sub_u32 s44, s65, 18')
        a.e('s_mul_i32 s45, s44, 57')
        a.e('s_lshr_b32 s45, s45, 10')
        a.e('s_mul_i32 s46, s45, 18')
        a.e('s_sub_u32 s44, s44, s46')
        a.e('s_lshl_b32 s46, s45, 9')
        a.e('s_lshl_b32 s47, s45, 6')
        a.e(f's_add_u32 s47, s47, {2048 - 512}')
        a.e('s_cmp_lt_u32 s44, 16')
        a.e('s_cselect_b32 s46, s46, s47')
        a.e('s_lshl_b32 s44, s44, 5')
        a.e('s_add_u32 s44, s44, s46')
        a.e('s_mov_b32 s45, 4')
        a.e('s_mov_b32 s46, 8')
        a.e('s_mov_b32 s47, 16')
        a.e('s_mov_b32 s48, 2')
        a.e('s_sub_u32 s49, s65, 16')
        a.e('s_mul_i32 s49, s49, 288')
        a.e('s_add_u32 s49, s49, 16')
        a.e('s_cmp_lt_u32 s65, 18')
        a.e('s_cselect_b32 s44, s49, s44')
        a.e('s_cselect_b32 s45, 72, s45')
        a.e('s_cselect_b32 s46, 144, s46')
        a.e('s_cselect_b32 s47, 36, s47')
        a.e('s_cselect_b32 s48, 18, s48')
        a.e('s_mul_i32 s49, s65, 36')
        a.e('s_cmp_lt_u32 s65, 16')
        a.e('s_cselect_b32 s44, s49, s44')
        a.e('s_cselect_b32 s45, 18, s45')
        a.e('s_cselect_b32 s46, 4, s46')
        a.e('s_cselect_b32 s47, 8, s47')
        a.e('s_cselect_b32 s48, 2, s48')
        for r in (44, 45, 46, 47):
            a.e(f's_mul_i32 s{r}, s{r}, 1152')
        a.e('s_mul_i32 s49, s64, 144')
        a.e('s_add_u32 s66, s44, s49')
        a.e('s_add_u32 s67, s66, s47')
        for i in range(2):
            a.e(f's_add_u32 s{68 + i}, s{66 + i}, s45')
        for i in range(4):
            a.e(f's_add_u32 s{70 + i}, s{66 + i}, s46')
        a.e(f'v_lshrrev_b32 v{V}, 5, v1')
        a.e(f'v_mul_lo_u32 v{V}, v{V}, s48')
        a.e('v_bfe_u32 v5, v1, 4, 1')
        a.e(f'v_add_u32 v{V}, v{V}, v5')
        a.e(f'v_mul_u32_u24 v{V}, 1152, v{V}')
        a.e('v_and_b32 v5, 15, v1')
        a.e('v_min_u32 v5, 8, v5')
        a.e(f'v_lshl_add_u32 v{V}, v5, 4, v{V}')
        a.e('v_lshrrev_b32 v5, 4, v1')
        a.e('v_bfe_u32 v6, v1, 2, 2')
        a.e('v_lshlrev_b32 v7, 11, v5')
        a.e('v_lshl_add_u32 v7, v6, 8, v7')
        a.e(f's_add_u32 s44, s26, {KVBUF}')
        a.e('v_add_u32 v7, s44, v7')
        a.e('v_and_b32 v6, 3, v1')
        a.e(f'v_lshl_add_u32 v{V + 2}, v6, 3, v7')
        a.e(f'v_lshl_add_u32 v{V + 1}, v6, 4, v7')
        a.e('v_and_b32 v6, 7, v1')
        a.e('v_lshl_add_u32 v5, v5, 3, v6')
        a.e('v_lshlrev_b32 v5, 4, v5')
        a.e(f'v_add_u32 v{V + 3}, 4096, v5')

    def retile(self, part):
        a = self.a
        V = self.SV
        F = V + 8
        if part == 0:
            for i in range(8):
                a.e(f's_add_u32 m0, s26, {KVBUF + 1024 * i}')
                a.e(f'buffer_load_dwordx4 v{V}, s[40:43], s{66 + i} offen lds')
        elif part == 1:
            for nt in range(5):
                for j in range(2):
                    if nt < 4:
                        a.e(f'ds_read_b64_tr_b16 {vr(F + 4 * nt + 2 * j, 2)}, v{V + 1} offset:{64 * (nt // 2) + 8 * (nt % 2) + 1024 * j}')
                    else:
                        a.e(f'ds_read_b64_tr_b16 {vr(F + 4 * nt + 2 * j, 2)}, v{V + 2} offset:{128 + 1024 * j}')
            a.e('s_mul_i32 s44, s64, 90')
            a.e('s_add_u32 s44, s44, s65')
            a.e('s_mul_i32 s44, s44, 4608')
            a.e(f's_add_u32 s44, s44, {W3_OFF}')
            a.e('s_waitcnt lgkmcnt(0)')
            for nt in range(4):
                a.e(f'buffer_store_dwordx4 {vr(F + 4 * nt, 4)}, v10, s[12:15], s44 offen offset:{1024 * nt} {SC}')
            a.e('s_mov_b32 exec_lo, 0x00ff00ff')
            a.e('s_mov_b32 exec_hi, 0x00ff00ff')
            a.e(f'buffer_store_dwordx4 {vr(F + 16, 4)}, v{V + 3}, s[12:15], s44 offen {SC}')
            a.e('s_mov_b64 exec, -1')
        else:
            a.e('s_lshl_b32 s44, s64, 7')
            a.e('s_add_u32 s44, s44, s65')
            a.e('s_lshl_b32 s44, s44, 2')
            a.e(f's_add_u32 s44, s44, {FW3_OFF}')
            set_flag(a, 44, V + 4)

    def issue_kv(self, buf_s=None, buf=None, flags=''):
        a = self.a
        for g in range(3):
            if buf_s is not None:
                a.e(f's_add_u32 m0, s{buf_s}, {4096 * g}')
            else:
                a.e(f's_add_u32 m0, s31, {buf * KVBUF + 4096 * g}')
            for i in range(4 if g < 2 else 2):
                a.vm(f'buffer_load_dwordx4 v15, s[12:15], s30 offen offset:{1024 * i} {flags} lds', 'kv')
            a.e('s_add_u32 s30, s30, 4096')
        a.e(f's_add_u32 s30, s30, {16 * KV_TILE - 3 * 4096}')

    def q_phase(self):
        a = self.a
        a.e('s_mov_b32 s31, s26')
        a.e('v_add_u32 v15, s31, v10')
        a.e(f's_mov_b32 s30, {KV_OFF}')
        l = a.newlabel('KVR')
        a.e('s_cmp_lg_u32 s20, 0')
        a.e(f's_cbranch_scc1 {l}')
        self.nonce()
        a.e('v_mov_b32 v4, s62')
        a.e('ds_write_b32 v2, v4')
        a.e('s_waitcnt lgkmcnt(0)')
        a.label(l)
        a.e('s_barrier')
        a.e('v_mov_b32 v2, 0')
        a.e('ds_read_b32 v40, v2')
        a.e('s_lshl_b32 s48, s23, 3')
        a.e('s_add_u32 s48, s48, s22')
        a.e('s_mul_i32 s48, s48, 2304')
        a.e(f's_add_u32 s48, s48, {QF_OFF}')
        for i in range(2):
            a.e(f'buffer_store_dwordx4 v[224:227], v10, s[12:15], s48 offen offset:{1024 * i} {SC}')
        a.e(f'buffer_store_dword v224, v228, s[12:15], s48 offen offset:2048 {SC}')
        a.e('s_lshl_b32 s44, s3, 5')
        a.e('s_add_u32 s44, s44, s20')
        a.e('s_lshl_b32 s44, s44, 2')
        a.e(f's_add_u32 s44, s44, {GO_OFF}')
        a.e('v_and_b32 v11, 31, v1')
        a.e('v_lshlrev_b32 v11, 2, v11')
        a.e('v_add_u32 v11, 1024, v11')
        a.e('s_waitcnt vmcnt(0) lgkmcnt(0)')
        a.e('v_readfirstlane_b32 s62, v40')
        set_flag(a, 44, 42)
        for p in range(2):
            for i in (5, 6, 7):
                a.e(f'v_mov_b32 v{self.QF + 8 * p + i}, 0')
            a.e(f'v_mov_b32 v{self.KF + 8 * p + 5}, 0x3f803f80')
            a.e(f'v_mov_b32 v{self.KF + 8 * p + 6}, 0x3f803f80')
            a.e(f'v_mov_b32 v{self.KF + 8 * p + 7}, 0')
        a.e('v_lshrrev_b32 v2, 5, v1')
        a.e('v_lshlrev_b32 v2, 2, v2')
        a.e('v_bfe_u32 v4, v1, 3, 1')
        a.e('v_lshl_add_u32 v2, v4, 1, v2')
        a.e('v_mul_u32_u24 v12, 168, v2')
        a.e('v_add_u32 v12, 1152, v12')
        a.e('v_bfe_u32 v4, v1, 4, 1')
        a.e('v_bfe_u32 v13, v1, 2, 1')
        a.e('v_mul_u32_u24 v14, 168, v4')
        a.e('v_add_u32 v14, v14, v12')
        a.e('v_and_b32 v8, 1, v1')
        a.e('v_lshl_add_u32 v8, v8, 1, v13')
        a.e('v_lshl_add_u32 v8, v8, 3, v14')
        a.e('v_add_u32 v8, 128, v8')
        a.e('v_add_u32 v9, 160, v14')
        a.e('v_and_b32 v2, 2, v1')
        a.e('v_cmp_eq_u32 vcc, 0, v2')
        a.e(f'v_cndmask_b32 v{self.TB}, v9, v8, vcc')
        a.e(f'v_cndmask_b32 v{self.TB + 1}, v8, v9, vcc')
        a.e('v_lshl_add_u32 v2, v4, 1, v13')
        a.e('v_lshl_add_u32 v12, v2, 5, v12')
        a.e('v_and_b32 v2, 3, v1')
        a.e('v_lshl_add_u32 v12, v2, 3, v12')
        a.e('v_mul_u32_u24 v14, 0xaaaa, v13')
        a.e('v_add_u32 v14, 0x4444, v14')
        a.e('v_mul_u32_u24 v13, 0xaaaa, v4')
        a.e('v_add_u32 v13, 0x4444, v13')
        self.point(KVBUF)
        a.e('s_and_b32 s49, s3, 7')
        a.e('s_lshl_b32 s49, s49, 9')
        a.e(f's_add_u32 s49, s49, {KVF_OFF}')
        a.e('v_min_u32 v230, 47, v1')
        a.e('v_lshlrev_b32 v230, 3, v230')
        lq = a.newlabel('QW')
        lo = a.newlabel('QOK')
        lh = a.newlabel('QH')
        a.e(f's_mov_b32 s51, {SPIN_MAX}')
        a.label(lh)
        a.e(f's_sleep {opt("qsl", [12])[0]}')
        a.e(f'buffer_load_dword v2, v11, s[12:15], s48 offen offset:1152 {SCL}')
        a.e('s_sub_u32 s51, s51, 1')
        a.e('s_waitcnt vmcnt(0)')
        a.e('v_cmp_eq_u32 vcc, -1, v2')
        a.e('s_cmp_eq_u32 s51, 1')
        a.e(f's_cbranch_scc1 {lq}')
        a.e(f's_cbranch_vccnz {lh}')
        a.e('s_setprio 3')
        a.label(lq)
        for p in range(2):
            a.e(f'buffer_load_dwordx4 {vr(self.QF + 8 * p, 4)}, v10, s[12:15], s48 offen offset:{1152 * p} {SCL}')
            a.e(f'buffer_load_dword v{self.PF + p}, v11, s[12:15], s48 offen offset:{1152 * p} {SCL}')
        a.e('s_waitcnt vmcnt(0)')
        a.e(f'v_max_u32 v2, v{self.PF}, v{self.PF + 1}')
        for r in (0, 2, 8, 10):
            a.e(f'v_max3_u32 v2, v{self.QF + r}, v{self.QF + r + 1}, v2')
        a.e('v_cmp_eq_u32 vcc, -1, v2')
        a.e(f's_cbranch_vccz {lo}')
        a.e('s_sleep 2')
        a.e('s_sub_u32 s51, s51, 1')
        a.e('s_cmp_lg_u32 s51, 0')
        a.e(f's_cbranch_scc1 {lq}')
        a.label(lo)
        stamp(a, 6)
        lk = a.newlabel('KW')
        lo = a.newlabel('KOK')
        a.e(f'v_add_u32 v4, {KVBUF}, v15')
        a.e(f's_mov_b32 s51, {SPIN_MAX}')
        a.label(lk)
        a.e(f's_mov_b32 s30, {KV_OFF}')
        self.issue_kv(buf=1, flags=SCL)
        a.e('s_waitcnt vmcnt(0)')
        for i in range(10):
            a.e(f'ds_read_b128 {vr(16 + 4 * i, 4)}, v4 offset:{1024 * i}')
        a.e('s_waitcnt lgkmcnt(0)')
        a.e('v_max_u32 v2, v16, v17')
        a.e('v_max_u32 v8, v18, v19')
        for i in range(20, 56, 4):
            a.e(f'v_max3_u32 v2, v{i}, v{i + 1}, v2')
            a.e(f'v_max3_u32 v8, v{i + 2}, v{i + 3}, v8')
        a.e('v_max_u32 v2, v2, v8')
        a.e('v_cmp_eq_u32 vcc, -1, v2')
        a.e(f's_cbranch_vccz {lo}')
        a.e('s_sleep 8')
        a.e('s_sub_u32 s51, s51, 1')
        a.e('s_cmp_lg_u32 s51, 0')
        a.e(f's_cbranch_scc1 {lk}')
        a.label(lo)
        a.vmq = []
        a.e('v_cmp_gt_u32 vcc, 32, v1')
        for p in range(2):
            a.e(f'v_cndmask_b32 v{self.QF + 8 * p + 4}, 0, v{self.PF + p}, vcc')

    def kvf_load(self):
        self.a.e(f'buffer_load_dwordx2 {vr(self.XF + 2, 2)}, v230, s[12:15], s49 offen {SC}')

    def readK(self, j):
        a = self.a
        b = self.KF + 8 * (j % 2)
        off = (j % 16) * KV_TILE
        a.lg(f'ds_read_b128 {vr(b, 4)}, v5 offset:{off}', ('K', j))
        a.lg(f'ds_read_b32 v{b + 4}, v6 offset:{off}', ('K', j))

    def readV(self, j, m):
        a = self.a
        b = self.VF + 8 * (j % 2)
        off = (j % 16) * KV_TILE
        for jj in range(2):
            if m == 0:
                a.lg(f'ds_read_b64_tr_b16 {vr(b + 2 * jj, 2)}, v7 offset:{off + jj * 168}', ('V', j))
            else:
                a.lg(f'ds_read_b64_tr_b16 {vr(b + 4 + 2 * jj, 2)}, v{self.TB + 2 + jj} offset:{off}', ('V', j))

    def S(self, n, part):
        j, qt = n // 2, n % 2
        d = vr(self.SB + 16 * (n % 2), 16)
        k = self.KF + 8 * (j % 2) + 4 * part
        q = self.QF + 8 * qt + 4 * part
        self.a.e(f'v_mfma_f32_32x32x16_bf16 {d}, {vr(k, 4)}, {vr(q, 4)}, {"0" if part == 0 else d}')

    def PV(self, n, m):
        j, qt = n // 2, n % 2
        p = vr(self.P2 + 8 * qt, 8)
        v = vr(self.VF + 8 * (j % 2) + 4 * m, 4)
        if m == 0:
            self.a.e(f'v_smfmac_f32_32x32x32_bf16 {vr(self.OB + 16 * qt, 16)}, {v}, {p}, v13')
        else:
            self.a.e(f'v_smfmac_f32_16x16x64_bf16 {vr(self.PF + 4 * qt, 4)}, {v}, {p}, v14')

    def set_m(self, qt, vm, add):
        a = self.a
        q = self.QF + 8 * qt
        a.e(f'v_sub_f32 v2, {hx(-add)}, v{vm}')
        a.e('v_and_b32 v4, 0xffff0000, v2')
        a.e('v_sub_f32 v2, v2, v4')
        a.e(f'v_and_b32 v{self.TB + 4}, 0xffff0000, v2')
        a.e(f'v_sub_f32 v2, v2, v{self.TB + 4}')
        a.e('v_lshrrev_b32 v4, 16, v4')
        a.e(f'v_or_b32 v4, v4, v{self.TB + 4}')
        a.e('v_lshrrev_b32 v2, 16, v2')
        a.e('v_cmp_gt_u32 vcc, 32, v1')
        a.e(f'v_cndmask_b32 v{q + 5}, 0, v4, vcc')
        a.e(f'v_cndmask_b32 v{q + 6}, 0, v2, vcc')

    TB = 232
    P2 = 240

    def point(self, off):
        a = self.a
        for i in range(3):
            a.e(f'v_add_u32 v{5 + i}, {off}, v{10 + i}')
        for i in range(2):
            a.e(f'v_add_u32 v{self.TB + 2 + i}, {off}, v{self.TB + i}')

    def max16(self, b, dst, first):
        a = self.a
        if first:
            a.e(f'v_max3_f32 v{dst}, v{b}, v{b + 1}, v{b + 2}')
            a.e(f'v_max_f32 v{dst}, v{dst}, v{b + 3}')
            r = range(4, 16, 2)
        else:
            r = range(0, 16, 2)
        for i in r:
            a.e(f'v_max3_f32 v{dst}, v{b + i}, v{b + i + 1}, v{dst}')

    def halves_max(self, r):
        a = self.a
        a.e(f'v_mov_b32 v2, v{r}')
        a.e(f'v_permlane32_swap_b32 v{r}, v2')
        a.e(f'v_max_f32 v{r}, v{r}, v2')

    def main(self, flags=''):
        a = self.a
        L_PASS = a.newlabel('ATT_PASS')
        L_LOOP = a.newlabel('ATT_LOOP')
        L_NOKV = a.newlabel('ATT_NOKV')
        L_FIN = a.newlabel('ATT_FIN')
        a.e('s_mov_b32 s33, 0')
        a.e('s_mov_b32 s39, 4')
        a.e('s_barrier')
        self.readK(0)
        a.wait_lg0()
        for qt in range(2):
            self.S(qt, 0)
            self.S(qt, 1)
        for qt in range(2):
            self.max16(self.SB + 16 * qt, 8 + qt, True)
            self.halves_max(8 + qt)
            self.set_m(qt, 8 + qt, float(opt('moff', [M_OFFSET])[0]))
        a.label(L_PASS)
        self.readK(0)
        self.readK(1)
        self.readV(0, 0)
        self.readV(0, 1)
        for i in range(32):
            a.e(f'v_mov_b32 v{self.OB + i}, 0')
        for i in range(8):
            a.e(f'v_mov_b32 v{self.PF + i}, 0')
            a.e(f'v_mov_b32 v{self.P2 + 8 + i}, 0')
            a.e(f'v_mov_b32 v{self.VF + 8 + i}, 0')
        a.e('s_mov_b32 s34, 0')
        a.e(f's_add_u32 s35, s31, {KVBUF}')
        a.e(f's_mov_b32 s37, {-KVBUF & 0xffffffff}')
        a.wait_lg0()
        self.S(0, 0)
        self.S(0, 1)
        a.e('s_nop 7')
        a.label(L_LOOP)
        a.wait_lg0()
        if opt('gate'):
            lng = a.newlabel('ATT_NG')
            a.e(f's_cmp_lg_u32 s34, {opt("gate")[0]}')
            a.e(f's_cbranch_scc1 {lng}')
            a.e('s_lshl_b32 s44, s3, 7')
            a.e(f's_add_u32 s44, s44, {PROG_OFF}')
            a.e('v_mov_b32 v2, 0')
            poll(a, lambda: a.e(f'buffer_load_dword v4, v2, s[12:15], s44 offen {SC}'), [4], 8, sleep=8)
            if 'gateprio' in ABL:
                a.e('s_setprio 1')
            a.label(lng)
        if 'attfine' in ABL:
            for c, idx in ((1, 4), (2, 5), (3, 1)):
                lq = a.newlabel('ATT_Q')
                a.e(f's_cmp_lg_u32 s34, {c}')
                a.e(f's_cbranch_scc1 {lq}')
                stamp(a, idx)
                a.label(lq)
        if True:
            lp = a.newlabel('ATT_P')
            a.e(f's_cmp_lg_u32 s34, {opt("aprio", [0])[0]}')
            a.e(f's_cbranch_scc1 {lp}')
            a.e('s_setprio 1')
            a.label(lp)
        for n in range(32):
            j, qt = n // 2, n % 2
            sb = self.SB + 16 * (n % 2)
            if n == 29:
                a.e('s_waitcnt vmcnt(0) lgkmcnt(0)')
                a.vmq = []
                a.lgq = []
                a.e('s_barrier')
                for r in (5, 6, 7, self.TB + 2, self.TB + 3):
                    a.e(f'v_add_u32 v{r}, s37, v{r}')
                if 'novp' not in ABL:
                    a.e('s_setprio 3')
                a.e('s_cmp_ge_u32 s34, 2')
                a.e(f's_cbranch_scc1 {L_NOKV}')
                ls0 = a.newlabel('ATT_S0')
                a.e('s_cmp_eq_u32 s39, 0')
                a.e(f's_cbranch_scc1 {ls0}')
                self.issue_kv(buf_s=35, flags=flags)
                a.e(f's_branch {L_NOKV}')
                a.label(ls0)
                self.side(0)
                a.e('s_mov_b32 s39, 1')
                a.label(L_NOKV)
                self.gate_load()
                if 'retouch' in ABL:
                    a.e('global_load_dword v239, v238, s[8:9]')
                if 'novp' not in ABL:
                    a.e('s_setprio 1')
                a.e('s_add_u32 s35, s35, s37')
                a.e('s_sub_u32 s37, 0, s37')
            SJ = opt('sj', [8, 1, 12, 16, 20, 26])
            if n in opt('mp', [9, 13, 17, 21, 25]):
                lm = a.newlabel('ATT_M')
                a.e('s_cmp_ge_u32 s54, s55')
                a.e(f's_cbranch_scc1 {lm}')
                if 'novp' not in ABL:
                    a.e('s_setprio 3')
                self.mark_part(3, 4)
                if 'novp' not in ABL:
                    a.e('s_setprio 1')
                a.label(lm)
            C1 = opt('c1', [4, 10])
            if n in C1:
                lc = a.newlabel('ATT_C1')
                a.e('s_cmp_lg_u32 s39, 4')
                a.e(f's_cbranch_scc1 {lc}')
                a.e('s_setprio 3')
                if n == C1[0]:
                    self.kvf_load()
                else:
                    a.e('s_waitcnt vmcnt(0)')
                    poll(a, self.kvf_load, [self.XF + 2, self.XF + 3], 236, first_done=True, sleep=6)
                    self.issue_kv(buf=0, flags=flags)
                    self.mark_part(0, 3)
                    a.e('s_mov_b32 s39, 0')
                a.e('s_setprio 1')
                a.label(lc)
            if n == SJ[0]:
                ls1 = a.newlabel('ATT_S1')
                a.e('s_cmp_lg_u32 s39, 1')
                a.e(f's_cbranch_scc1 {ls1}')
                a.e('s_waitcnt vmcnt(0)')
                if 'novp' not in ABL:
                    a.e('s_setprio 3')
                self.side(1)
                self.issue_kv(buf=1, flags=flags)
                a.e('s_mov_b32 s39, 2')
                if 'novp' not in ABL:
                    a.e('s_setprio 1')
                a.label(ls1)
            if n == SJ[5]:
                ls2 = a.newlabel('ATT_S2')
                a.e('s_cmp_lg_u32 s39, 2')
                a.e(f's_cbranch_scc1 {ls2}')
                a.e('s_waitcnt vmcnt(0)')
                if 'novp' not in ABL:
                    a.e('s_setprio 3')
                self.side(2)
                a.e('s_mov_b32 s39, 3')
                if 'novp' not in ABL:
                    a.e('s_setprio 1')
                a.label(ls2)
            if qt == 1:
                a.wait_lg(('K', j + 1))
            self.S(n + 1, 0)
            pf = self.P2 + 8 * qt
            for i in range(0, 4):
                a.e(f'v_exp_f32 v{sb + i}, v{sb + i}')
            if qt == 1:
                a.wait_lg(('V', j))
            self.PV(n - 1, 0)
            if qt == 0:
                self.readV(j + 1, 0)
            else:
                self.readK(j + 2)
            for i in range(4, 8):
                a.e(f'v_exp_f32 v{sb + i}, v{sb + i}')
            self.S(n + 1, 1)
            for i in range(4):
                a.e(f'v_cvt_pk_bf16_f32 v{pf + i}, v{sb + 2 * i}, v{sb + 2 * i + 1}')
            for i in range(8, 12):
                a.e(f'v_exp_f32 v{sb + i}, v{sb + i}')
            self.PV(n - 1, 1)
            if qt == 0:
                self.readV(j + 1, 1)
            for i in range(12, 16):
                a.e(f'v_exp_f32 v{sb + i}, v{sb + i}')
            for i in range(4, 8):
                a.e(f'v_cvt_pk_bf16_f32 v{pf + i}, v{sb + 2 * i}, v{sb + 2 * i + 1}')
        a.e('s_add_u32 s34, s34, 1')
        a.e('s_cmp_lt_u32 s34, 4')
        a.e(f's_cbranch_scc1 {L_LOOP}')
        self.PV(31, 0)
        self.PV(31, 1)
        a.wait_all()
        a.e('s_cmp_lg_u32 s33, 0')
        a.e(f's_cbranch_scc1 {L_FIN}')
        regs = [self.OB + i for i in range(32)] + [self.PF + i for i in (0, 1, 2, 4, 5, 6)]
        a.e(f'v_max_f32_e64 v2, |v{regs[0]}|, |v{regs[1]}|')
        for i in range(2, len(regs), 2):
            a.e(f'v_max3_f32 v2, |v{regs[i]}|, |v{regs[i + 1]}|, v2')
        a.e(f's_mov_b32 s44, {hx(2.0 ** 110)}')
        a.e('v_cmp_ngt_f32 vcc, s44, v2')
        for qt in range(2):
            a.e(f'v_mov_b32 v{8 + qt}, v{self.PF + 4 * qt + 2}')
            a.e(f'v_mov_b32 v{self.TB + 4 + qt}, v{self.PF + 4 * qt + 2}')
        for qt in range(2):
            a.e(f'v_permlane16_swap_b32 v{8 + qt}, v{self.TB + 4 + qt}')
        for qt in range(2):
            a.e(f'v_add_f32 v{8 + qt}, v{8 + qt}, v{self.TB + 4 + qt}')
        a.e(f's_mov_b32 s44, {hx(2.0 ** (VSH - M_OFFSET - 4))}')
        a.e('v_cmp_nle_f32 s[46:47], s44, v8')
        a.e('s_or_b64 vcc, vcc, s[46:47]')
        a.e('v_cmp_nle_f32 s[46:47], s44, v9')
        a.e('s_or_b64 vcc, vcc, s[46:47]')
        a.e('s_cmp_lg_u64 vcc, 0')
        a.e('s_cselect_b32 s44, 1, 0')
        a.e('v_mov_b32 v2, s44')
        a.e('s_lshl_b32 s45, s20, 2')
        a.e(f's_add_u32 s45, s45, {16 * KV_TILE}')
        a.e('v_mov_b32 v4, s45')
        a.e('ds_write_b32 v4, v2')
        a.e(f'v_mov_b32 v4, {16 * KV_TILE}')
        a.e('s_waitcnt lgkmcnt(0)')
        a.e('s_barrier')
        a.e(f'ds_read_b128 {vr(self.P2, 4)}, v4')
        a.e('s_waitcnt lgkmcnt(0)')
        a.e(f'v_or3_b32 v2, v{self.P2}, v{self.P2 + 1}, v{self.P2 + 2}')
        a.e(f'v_or_b32 v2, v2, v{self.P2 + 3}')
        a.e('v_readfirstlane_b32 s44, v2')
        a.e('s_cmp_eq_u32 s44, 0')
        a.e(f's_cbranch_scc1 {L_FIN}')
        L_MC = a.newlabel('ATT_MC')
        L_MT = a.newlabel('ATT_MT')
        a.e('s_mov_b32 s33, 1')
        for p in range(2):
            a.e(f'v_mov_b32 v{self.QF + 8 * p + 5}, 0')
            a.e(f'v_mov_b32 v{self.QF + 8 * p + 6}, 0')
            a.e(f'v_mov_b32 v{8 + p}, 0xff7fffff')
        a.e(f's_mov_b32 s30, {KV_OFF}')
        a.e('s_mov_b32 s34, 0')
        a.label(L_MC)
        a.e('s_barrier')
        self.issue_kv(buf=0, flags=flags)
        a.e('v_mov_b32 v5, v10')
        a.e('v_mov_b32 v6, v11')
        a.e('s_mov_b32 s36, 0')
        a.wait_vm0()
        a.e('s_barrier')
        a.label(L_MT)
        self.readK(0)
        a.wait_lg0()
        for qt in range(2):
            self.S(qt, 0)
            self.S(qt, 1)
        a.e(f'v_add_u32 v5, {KV_TILE}, v5')
        a.e(f'v_add_u32 v6, {KV_TILE}, v6')
        for qt in range(2):
            self.max16(self.SB + 16 * qt, 8 + qt, False)
        a.e('s_add_u32 s36, s36, 1')
        a.e('s_cmp_lt_u32 s36, 16')
        a.e(f's_cbranch_scc1 {L_MT}')
        a.e('s_add_u32 s34, s34, 1')
        a.e('s_cmp_lt_u32 s34, 4')
        a.e(f's_cbranch_scc1 {L_MC}')
        for qt in range(2):
            self.halves_max(8 + qt)
            self.set_m(qt, 8 + qt, 0.0)
        a.e('s_barrier')
        a.e(f's_mov_b32 s30, {KV_OFF}')
        self.issue_kv(buf=1, flags=flags)
        self.issue_kv(buf=0, flags=flags)
        self.point(KVBUF)
        a.e('s_waitcnt vmcnt(10)')
        a.e('s_barrier')
        a.e(f's_branch {L_PASS}')
        a.label(L_FIN)
        a.vmq = []
        a.lgq = []

    def mark(self):
        a = self.a
        a.e('s_mul_i32 s44, s23, 90')
        a.e('s_lshl_b32 s52, s22, 1')
        a.e('s_add_u32 s52, s52, s44')
        a.e('s_lshl_b32 s52, s52, 10')
        a.e(f's_add_u32 s52, s52, {UF_OFF}')
        a.e('s_lshr_b32 s53, s22, 2')
        a.e('s_add_u32 s53, s53, s44')
        a.e('s_lshl_b32 s53, s53, 10')
        a.e('s_and_b32 s47, s22, 3')
        a.e('s_lshl_b32 s47, s47, 8')
        a.e('s_add_u32 s53, s53, s47')
        a.e(f's_add_u32 s53, s53, {UF_OFF + 16 * 1024}')
        a.e('s_mul_i32 s54, s22, 9')
        a.e('s_add_u32 s54, s54, s44')
        a.e('s_lshl_b32 s54, s54, 10')
        a.e(f's_add_u32 s54, s54, {UF_OFF + 18 * 1024}')
        a.e(f's_add_u32 s55, s54, {9 * 1024}')
        for i in range(4):
            a.e(f'v_mov_b32 v{224 + i}, -1')
        a.e('v_lshlrev_b32 v228, 2, v1')
        if opt('tp'):
            a.e('s_lshl_b32 s44, s24, 8')
            a.e('s_and_b32 s45, s22, 4')
            a.e('s_lshl_b32 s45, s45, 5')
            a.e('s_add_u32 s44, s44, s45')
            a.e('s_add_u32 s44, s44, s27')
            a.e('s_lshl_b32 s44, s44, 13')
            a.e(f'v_min_u32 v229, {64 // len(opt("tp")) - 1}, v1')
            a.e('v_lshlrev_b32 v229, 7, v229')
            a.e('v_add_u32 v229, s44, v229')

    def mark_part(self, lo, hi):
        a = self.a
        if 'nomark' in ABL:
            return
        for i in range(lo, hi):
            if i < 2:
                a.e(f'buffer_store_dwordx4 v[224:227], v10, s[12:15], s52 offen offset:{1024 * i} {SC}')
            elif i == 2:
                a.e(f'buffer_store_dword v224, v228, s[12:15], s53 offen {SC}')
            else:
                a.e(f'buffer_store_dwordx4 v[224:227], v10, s[12:15], s54 offen {SC}')
                a.e('s_add_u32 s54, s54, 1024')

    def mark_flag(self):
        a = self.a
        a.e('s_lshl_b32 s44, s23, 3')
        a.e('s_add_u32 s44, s44, s22')
        a.e('s_lshl_b32 s44, s44, 2')
        a.e(f's_add_u32 s44, s44, {PZ_OFF}')
        set_flag(a, 44, 236)

    def epilogue(self, flags=''):
        a = self.a
        a.e('v_and_b32 v4, 15, v1')
        a.e('v_lshlrev_b32 v4, 4, v4')
        a.e('v_lshrrev_b32 v5, 5, v1')
        a.e('v_lshl_add_u32 v4, v5, 2, v4')
        poll(a, self.gate_load, [self.XF + 1], 8, first_done=True)
        a.e('v_and_b32 v5, 16, v1')
        a.e('v_cmp_eq_u32 vcc, 0, v5')
        for qt in range(2):
            o = self.OB + 16 * qt
            t = self.PF + 4 * qt
            c = self.P2
            for i in range(3):
                a.e(f'v_mov_b32 v{c + i}, v{t + i}')
            for i in range(3):
                a.e(f'v_permlane16_swap_b32 v{t + i}, v{c + i}')
            for i in range(3):
                a.e(f'v_add_f32 v{t + i}, v{t + i}, v{c + i}')
            a.e(f'v_rcp_f32 v6, v{t + 2}')
            a.e(f'v_mul_f32 v6, v6, v{self.XF}')
            a.e(f'v_pk_mul_f32 {vr(t, 2)}, {vr(t, 2)}, v[6:7] op_sel_hi:[1,0]')
            a.e('v_mov_b32 v7, v6')
            a.e('v_permlane32_swap_b32 v6, v7')
            a.e('v_cndmask_b32 v6, v7, v6, vcc')
            for i in range(4):
                a.e(f'v_pk_add_f32 {vr(o + 2 * i, 2)}, {vr(o + 2 * i, 2)}, {vr(o + 8 + 2 * i, 2)}')
            for i in range(4):
                a.e(f'v_pk_mul_f32 {vr(o + 2 * i, 2)}, {vr(o + 2 * i, 2)}, v[6:7] op_sel_hi:[1,0]')
            pk = self.SB + 8 * qt
            for i in range(4):
                a.e(f'v_cvt_pk_bf16_f32 v{pk + i}, v{o + 2 * i}, v{o + 2 * i + 1}')
            a.e(f'v_cvt_pk_bf16_f32 v{pk + 4}, v{t}, v{t + 1}')
            for i in range(5):
                a.e(f'v_min_u32 v{pk + i}, -2, v{pk + i}')
            a.e(f'buffer_store_dwordx4 {vr(pk, 4)}, v10, s[12:15], s52 offen offset:{1024 * qt} {flags}')
            a.e('s_mov_b32 exec_lo, 0xffff')
            a.e('s_mov_b32 exec_hi, 0xffff')
            a.e(f'buffer_store_dword v{pk + 4}, v4, s[12:15], s53 offen offset:{8 * qt} {flags}')
            a.e('s_mov_b64 exec, -1')

    def gate_load(self):
        a = self.a
        a.e(f's_mov_b32 s38, {GATE_OFF}')
        a.e(f'buffer_load_dwordx2 {vr(self.XF, 2)}, v3, s[12:15], s38 offen {SC}')


def p3_pre(a):
    a.e('s_and_b32 s44, s22, 1')
    a.e('s_lshl_b32 s66, s21, 1')
    a.e('s_add_u32 s66, s66, s44')
    a.e('s_lshr_b32 s67, s22, 1')
    a.e('s_lshl_b32 s68, s21, 8')
    a.e(f's_add_u32 s68, s68, {PZ_OFF}')
    a.e('s_lshl_b32 s69, s67, 9')
    a.e(f's_add_u32 s69, s69, {FW3_OFF}')
    a.e('v_lshlrev_b32 v7, 2, v1')
    a.e('v_min_u32 v8, 44, v1')
    a.e('v_lshlrev_b32 v8, 3, v8')
    p3_flags(a)
    a.vmq += ['pre', 'pre']


def p3_flags(a):
    a.e(f'buffer_load_dword v4, v7, s[12:15], s68 offen {SC}')
    a.e(f'buffer_load_dwordx2 v[2:3], v8, s[12:15], s69 offen {SC}')


def p3(a):
    ACC = 16
    FR = 112
    HF = 240
    DEPTH = 4
    NS = 23
    a.e('s_mul_i32 s44, s20, 18')
    a.e('s_add_u32 s44, s44, 18')
    a.e('s_mul_i32 s45, s20, 5')
    a.e('s_cmp_eq_u32 s20, 3')
    a.e('s_cselect_b32 s46, 1, 0')
    a.e('s_sub_u32 s45, s45, s46')
    a.e('s_mul_i32 s46, s67, 90')
    a.e('s_add_u32 s25, s44, s46')
    a.e('s_mul_i32 s25, s25, 4608')
    a.e(f's_add_u32 s25, s25, {W3_OFF}')
    a.e('s_add_u32 s31, s45, s46')
    a.e('s_mul_i32 s31, s31, 4608')
    a.e(f's_add_u32 s31, s31, {W3_OFF}')
    a.e('v_lshrrev_b32 v6, 4, v1')
    a.e('v_lshlrev_b32 v6, 3, v6')
    a.e('v_and_b32 v9, 7, v1')
    a.e('v_add_u32 v6, v6, v9')
    a.e('v_lshlrev_b32 v6, 4, v6')
    a.e('v_bfe_u32 v9, v1, 3, 1')
    a.e('v_mul_u32_u24 v9, 4608, v9')
    a.e('v_add_u32 v6, v6, v9')
    a.e('v_add_u32 v6, 4096, v6')
    a.e('v_mov_b32 v12, v19')

    def loadW(k):
        b = FR + 32 * (k % DEPTH)
        if k == 18:
            a.e('s_mov_b32 s25, s31')
        for nt in range(4):
            a.vm(f'buffer_load_dwordx4 {vr(b + 4 * nt, 4)}, v12, s[12:15], s25 offen offset:{1024 * nt} {SCL}', ('W', k))
        if k % 2 == 0:
            a.vm(f'buffer_load_dwordx4 {vr(HF + 4 * ((k // 2) % 3), 4)}, v6, s[12:15], s25 offen {SCL}', ('W', k))
        a.e('s_add_u32 s25, s25, 4608')

    def loadF(k, track=True):
        b = FR + 32 * (k % DEPTH)
        a.e(f's_add_u32 s24, s{28 if k < 18 else 30}, {1024 * (k if k < 18 else k - 18)}')
        for i in range(4):
            t = f'buffer_load_dwordx4 {vr(b + 16 + 4 * i, 4)}, v{2 + i}, s[12:15], s24 offen {SCL}'
            a.vm(t, ('F', k)) if track else a.e(t)
    for k in range(opt('wpre', [2])[0]):
        loadW(k)
    a.e('s_mul_i32 s46, s66, 360')
    a.e('s_add_u32 s28, s44, s46')
    a.e('s_lshl_b32 s28, s28, 10')
    a.e(f's_add_u32 s28, s28, {UF_OFF}')
    a.e('s_add_u32 s30, s45, s46')
    a.e('s_lshl_b32 s30, s30, 10')
    a.e(f's_add_u32 s30, s30, {UF_OFF}')
    for i in range(4):
        a.e(f's_add_u32 s44, s20, {i}')
        a.e('s_and_b32 s44, s44, 3')
        a.e('s_mul_i32 s44, s44, 92160')
        a.e(f'v_add_u32 v{2 + i}, s44, v12')
    a.e('s_mov_b32 s8, s64')
    a.e('s_mov_b32 s9, s65')
    srd(a, 8, 2048 * 1152)
    a.e(f's_mov_b32 s51, {SPIN_MAX}')
    if 'nodrain' not in ABL:
        a.wait_vm('st')
    for k in range(DEPTH):
        if k >= opt('wpre', [2])[0]:
            loadW(k)
        loadF(k)
    stamp(a, 5)
    a.e(f's_setprio {opt("pg", PG)[2]}')
    lskip = a.newlabel('P3_SKIP')
    for k in range(NS):
        b = FR + 32 * (k % DEPTH)
        if k == NS - 1:
            a.e('s_cmp_ge_u32 s20, 2')
            a.e(f's_cbranch_scc1 {lskip}')
            a.wait_vm0()
        a.wait_vm(('F', k))
        lc = a.newlabel('P3_C')
        lok = a.newlabel('P3_OK')
        a.label(lc)
        a.e(f'v_max3_u32 v9, v{b + 16}, v{b + 17}, v{b + 18}')
        a.e(f'v_max3_u32 v10, v{b + 19}, v{b + 20}, v{b + 21}')
        for i in range(22, 32, 4):
            a.e(f'v_max3_u32 v9, v{b + i}, v{b + i + 1}, v9')
            if i + 2 < 32:
                a.e(f'v_max3_u32 v10, v{b + i + 2}, v{b + i + 3}, v10')
        a.e('v_max_u32 v9, v9, v10')
        a.e('v_cmp_eq_u32 vcc, -1, v9')
        a.e(f's_cbranch_vccz {lok}')
        a.e(f's_sleep {opt("psl", [4])[0]}')
        loadF(k, False)
        a.e('s_waitcnt vmcnt(0)')
        a.e('s_sub_u32 s51, s51, 1')
        a.e('s_cmp_lt_i32 s51, 1')
        a.e(f's_cbranch_scc0 {lc}')
        a.label(lok)
        hf = HF + 4 * ((k // 2) % 3)
        for i in range(4):
            for nt in range(5):
                n2 = nt if nt < 4 else 4 + k % 2
                d = vr(ACC + 16 * n2 + 4 * i, 4)
                first = k == 0 or (nt == 4 and k == 1)
                a.e(f'v_mfma_f32_16x16x32_bf16 {d}, {vr(b + 4 * nt, 4) if nt < 4 else vr(hf, 4)}, {vr(b + 16 + 4 * i, 4)}, {"0" if first else d}')
        kn = k + DEPTH
        if kn == NS - 1:
            ls = a.newlabel('P3_NL')
            a.e('s_cmp_ge_u32 s20, 2')
            a.e(f's_cbranch_scc1 {ls}')
            q1 = list(a.vmq)
            loadW(kn)
            loadF(kn)
            a.vmq = q1
            a.label(ls)
        elif kn < NS:
            loadW(kn)
            loadF(kn)
    a.label(lskip)
    a.e('s_nop 7')
    stamp(a, 6)
    a.e('s_mov_b32 exec_lo, 0')
    for i in range(16):
        a.e(f'v_mov_b32 v{ACC + 64 + i}, v{ACC + 80 + i}')
    a.e('s_mov_b64 exec, -1')
    for i in range(1, 4):
        a.e(f's_add_u32 s44, s20, {i}')
        a.e('s_and_b32 s44, s44, 3')
        a.e('s_mul_i32 s44, s44, 15360')
        a.e(f'v_add_u32 v{8 + i}, s44, v12')
        for nt in range(5):
            a.lg(f'ds_write_b128 v{8 + i}, {vr(ACC + 16 * nt + 4 * i, 4)} offset:{5120 * (i - 1) + 1024 * nt}', 'w')
    a.e('s_mul_i32 s26, s20, 15360')
    a.e('v_add_u32 v8, s26, v12')
    a.e('s_lshl_b32 s27, s66, 6')
    a.e('s_lshr_b32 s28, s20, 1')
    a.e('s_lshl_b32 s28, s28, 5')
    a.e('s_add_u32 s27, s27, s28')
    a.e('s_and_b32 s28, s20, 1')
    a.e('s_lshl_b32 s28, s28, 2')
    a.e('s_add_u32 s27, s27, s28')
    a.e('v_bfe_u32 v13, v1, 2, 2')
    a.e('v_lshlrev_b32 v13, 3, v13')
    a.e('v_and_b32 v14, 3, v1')
    a.e('v_add3_u32 v13, v13, v14, s27')
    a.e('v_mul_u32_u24 v13, 1152, v13')
    a.e('v_lshrrev_b32 v14, 4, v1')
    a.e('v_lshl_add_u32 v15, v14, 3, v13')
    a.e('v_lshl_add_u32 v13, v14, 4, v13')
    a.e('s_mul_i32 s27, s67, 144')
    a.wait_all()
    a.e('s_barrier')
    for nt in range(5):
        for i in range(3):
            a.lg(f'ds_read_b128 {vr(FR + 12 * nt + 4 * i, 4)}, v8 offset:{5120 * i + 1024 * nt}', ('r', nt))
    PKB = FR + 64
    OSC = 'sc1' if 'osc1' in ABL else 'nt' if 'ont' in ABL else ''
    for nt in range(5):
        a.wait_lg(('r', nt))
        b = FR + 12 * nt
        o = ACC + 16 * nt
        for h in range(2):
            a.e(f'v_pk_add_f32 {vr(b + 2 * h, 2)}, {vr(b + 2 * h, 2)}, {vr(b + 4 + 2 * h, 2)}')
            a.e(f'v_pk_add_f32 {vr(o + 2 * h, 2)}, {vr(o + 2 * h, 2)}, {vr(b + 8 + 2 * h, 2)}')
        for h in range(2):
            a.e(f'v_pk_add_f32 {vr(b + 2 * h, 2)}, {vr(b + 2 * h, 2)}, {vr(o + 2 * h, 2)}')
        if nt == 4:
            for r in range(4):
                a.e(f'v_mov_b32 v{o + r}, v{b + r}')
            for r in range(4):
                a.e(f'v_permlane32_swap_b32 v{b + r}, v{o + r}')
            for h in range(2):
                a.e(f'v_pk_add_f32 {vr(b + 2 * h, 2)}, {vr(b + 2 * h, 2)}, {vr(o + 2 * h, 2)}')
        for h in range(2):
            a.e(f'v_cvt_pk_bf16_f32 v{PKB + 2 * nt + h}, v{b + 2 * h}, v{b + 2 * h + 1}')
        if nt in (1, 3):
            a.e(f'buffer_store_dwordx4 {vr(PKB + 2 * nt - 2, 4)}, v13, s[8:11], s27 offen offset:{64 * (nt // 2)} {OSC}')
        if nt == 4:
            a.e('s_mov_b32 exec_hi, 0')
            a.e(f'buffer_store_dwordx2 {vr(PKB + 8, 2)}, v15, s[8:11], s27 offen offset:128 {OSC}')
            a.e('s_mov_b64 exec, -1')


def kernel_text(name, a, vgpr=256, sgpr=96):
    a.fix_hazards()
    mv, ms, ma = a.max_regs()
    assert mv <= vgpr and ms <= sgpr and ma == 0, (mv, ms, ma)
    body = f'.globl {name}\n.p2align 8\n.type {name},@function\n{name}:\n' + a.text()
    desc = f""".p2align 6
.amdhsa_kernel {name}
  .amdhsa_next_free_vgpr {vgpr}
  .amdhsa_next_free_sgpr {sgpr}
  .amdhsa_accum_offset {(vgpr + 3) // 4 * 4}
  .amdhsa_group_segment_fixed_size 0
  .amdhsa_kernarg_size 112
  .amdhsa_user_sgpr_count 2
  .amdhsa_user_sgpr_kernarg_segment_ptr 1
  .amdhsa_system_sgpr_workgroup_id_x 1
.end_amdhsa_kernel
"""
    return body, desc


DOC = '''
; ---------------------------------------------------------------------------------------------
;      pass A: z2 = gelu(x @ w_in[:, half 2]) and q/k/v column pieces; row sums exchanged as tagged
;              16-byte records; z1 GEMM runs while they travel; layer norm; z2n handed over in MFMA
;              fragment order; g = w_sp @ z2n; u = (1-gate) * z1 * (g + b); out tile = [o|u] @ [wo;w_out]
;  ids 256..511  "attention" role, 64 rows x 4 heads: S^T = K Q^T - m (m rides in spare k slots),
; Generated by a script (register allocation, wait counts and wait states are computed there).
; ---------------------------------------------------------------------------------------------
'''


def build_file(kernels):
    hdr = open('cdna_kernels/' + NAME + '.s.ref').read().split('\n')
    head = [l for l in hdr if l.startswith(';') and '@launch' not in l and 'Override' not in l and 'grid=ceil' not in l]
    head = head[:15]
    out = '\n'.join(head) + '\n'
    for name, a, grid, block, lds, vgpr in kernels:
        kn = f'kernel={name} ' if (len(kernels) > 1 or LIST) else ''
        out += f'; @launch {kn}grid=({grid},1,1) block=({block},1,1) lds={lds}\n'
    out += DOC.lstrip('\n')
    out += '.amdgcn_target "amdgcn-amd-amdhsa--gfx950"\n.text\n'
    descs = ''
    for name, a, grid, block, lds, vgpr in kernels:
        b, d = kernel_text(name, a, vgpr)
        out += b
        descs += d
    out += '.section .rodata,"a"\n' + descs
    import subprocess, tempfile, os, re
    with tempfile.TemporaryDirectory() as td:
        open(td + '/t.s', 'w').write(out.replace('CODE_LINES', '0x200'))
        subprocess.run(['clang', '-x', 'assembler', '-target', 'amdgcn-amd-amdhsa', '-mcpu=gfx950', '-c', td + '/t.s', '-o', td + '/t.o'], check=True)
        h = subprocess.run(['llvm-objdump', '-h', td + '/t.o'], capture_output=True, text=True).stdout
        size = int(re.search(r'\.text\s+([0-9a-f]+)', h).group(1), 16)
    assert size < 128 * 5 * 128
    return out.replace('CODE_LINES', str(size // 128 - 2))


NG1, NG2 = 1, 3


def mega():
    a = Asm()
    a.e('s_cmp_ge_u32 s2, 512')
    a.e('s_cbranch_scc1 K_END')
    stamp(a, 0)
    a.e('s_cmp_ge_u32 s2, 256')
    a.e('s_cbranch_scc1 K_ATT')
    a.label('K_GEMM')
    if 'diag200' in ABL:
        a.e('s_memrealtime s[90:91]')
    a.vmq = []
    a.lgq = []
    g = GW(a)
    UB, UP = g.UB, g.UP
    g.limitA = UB
    g.setup()
    if 'afine' in ABL:
        stamp(a, 1)
    g.prologue_issue()
    if 'afine' in ABL:
        stamp(a, 2)
    g.setup2()
    if 'afine' in ABL:
        stamp(a, 3)
        g.hooks[0] = lambda: stamp(a, 4)
        g.hooks[6] = lambda: stamp(a, 5)
        g.hooks[12] = lambda: stamp(a, 6)

    def nonce_ld():
        a.e('v_mov_b32 v23, 0')
        a.vm(f'global_load_dword v24, v23, s[16:17] {SC}', 'nonce')
        g.mk_load()
        a.vmq.append('nonce')
    g.mk_addr()
    g.hooks[22] = nonce_ld
    g.run_segment(0, UB)
    if 'afine' in ABL:
        a.e('s_branch K_DONE')
    stamp(a, 1)
    n1, n2 = opt('ng', [NG1, NG2])
    nb1 = opt('nb1', [8])[0]
    a.wait_vm('nonce')
    get_nonce(a, 23, 24)
    poll(a, g.mk_load, [26, 27], 28, first_done=True, sleep=4)
    g.proj_store()
    g.limitA = UP
    a.vmq.append('pst')
    a.vmq.append('pst')
    a.e('s_barrier')
    for _ in range(g.R - 1):
        g.run(g.issueA())
    if 'z1t' in ABL:
        a.e('s_lshl_b32 s44, s31, 2')
        a.e('s_add_u32 s44, s44, s20')
        a.e('s_mul_i32 s44, s44, 81')
        a.e('s_and_b32 s45, s2, 4')
        a.e('s_lshl_b32 s46, s45, 2')
        a.e('s_lshr_b32 s45, s45, 1')
        for i in range(2):
            a.e('v_min_u32 v24, 40, v1')
            a.e(f'v_add3_u32 v24, v24, s44, {40 * i}')
            a.e('v_mul_u32_u24 v25, 58255, v24')
            a.e('v_lshrrev_b32 v25, 20, v25')
            a.e('v_mul_u32_u24 v26, 18, v25')
            a.e('v_sub_u32 v24, v24, v26')
            a.e('v_add_u32 v26, s46, v24')
            a.e('v_add3_u32 v27, v24, s45, 16')
            a.e('v_cmp_gt_u32 vcc, 16, v24')
            a.e('v_cndmask_b32 v24, v27, v26, vcc')
            a.e('v_mul_u32_u24 v25, 9216, v25')
            a.e('v_lshl_add_u32 v24, v24, 7, v25')
            a.vm('buffer_load_dword v255, v24, s[8:11], 0 offen', 'tch')
    g.z2_gelu_publish()

    LF = 'lnfine' in ABL
    if LF:
        stamp(a, 2)
    g.run_segment(UB, nb1)
    if LF:
        stamp(a, 3)
    g.z2_gather_norm_store()
    stamp(a, 4 if LF else 2)
    a.e('s_lshl_b32 s49, s22, 9')
    a.e(f's_add_u32 s49, s49, {FZ_OFF}')
    a.e('s_lshl_b32 s48, s32, 7')
    a.e('s_add_u32 s48, s48, s49')
    a.e('s_and_b32 s50, s23, 15')
    a.e('s_lshl_b32 s50, s50, 2')
    a.e('s_add_u32 s48, s48, s50')
    a.e('s_and_b32 s50, s32, 2')
    a.e('s_lshl_b32 s50, s50, 7')
    a.e('s_add_u32 s50, s50, s49')
    a.e('v_and_b32 v29, 15, v1')
    a.e('v_lshlrev_b32 v29, 2, v29')
    a.e('v_lshrrev_b32 v23, 4, v1')
    a.e('v_lshl_add_u32 v23, v23, 7, v29')
    a.e('v_and_b32 v29, 0xff, v23')

    def zflag():
        a.wait_vm('st')
        set_flag(a, 48, 27)
    g.hooks[UB + nb1 + opt('zf', [4])[0]] = zflag
    g.run_segment(UB + nb1, 18 - nb1)
    if LF:
        stamp(a, 5)
    g.own_write()
    g.z1_gelu(range(0, n1))
    g.nextA = UP + 4
    g.run_segment(UP, 4, own=True)
    g.z1_gelu(range(n1, n2))
    if LF:
        stamp(a, 6)
    poll(a, lambda: a.e(f'buffer_load_dword v26, v29, s[12:15], s50 offen {SC}'), [26], 27)
    if LF:
        a.e('s_branch K_DONE')
    stamp(a, 3)
    g.limitA = len(g.units)
    a.e('s_barrier')
    for _ in range(g.R - 1):
        g.run(g.issueA())
    g.z1_gelu(range(n2, 9))
    g.hooks[UP + 58] = g.sp_pre

    def zall():
        a.e(f'buffer_load_dword v26, v23, s[12:15], s49 offen {SC}')

    def zall0():
        zall()
        a.vmq.append('zf')

    def zall1():
        a.wait_vm('zf')
        poll(a, zall, [26], 27, first_done=True)
    g.hooks[UP + 10] = zall0
    g.hooks[UP + 15] = zall1
    g.hooks[UP + 61] = lambda: p3_pre(a)
    g.hooks[UP + opt('gsw', [62])[0]] = lambda: a.e('s_setprio 0')

    if opt('gate'):
        def prog():
            a.e('s_lshl_b32 s44, s2, 7')
            a.e(f's_add_u32 s44, s44, {PROG_OFF}')
            set_flag(a, 44, 27)
        g.hooks[UP + opt('gate')[1]] = prog
    g.run_segment(UP + 4, 60)
    if 'p2fine' in ABL:
        a.e('s_branch K_DONE')
    stamp(a, 4)
    g.sp_epilogue()
    p3(a)
    a.e('s_or_b32 s44, s2, s20')
    a.e('s_cmp_lg_u32 s44, 0')
    a.e('s_cbranch_scc1 K_DONE')
    a.e('v_mov_b32 v2, 0')
    a.e(f'global_store_dword v2, v2, s[16:17] {SC}')
    if 'diag200' in ABL:
        a.label('DIAG')
        a.e('s_memrealtime s[92:93]')
        a.e('s_waitcnt lgkmcnt(0)')
        a.e('s_sub_u32 s92, s92, s90')
        a.e('s_cmp_lt_u32 s92, 10000')
        a.e('s_cbranch_scc1 DIAG')
    a.e('s_branch K_DONE')
    a.label('K_ATT')
    a.vmq = []
    a.lgq = []
    a.e('s_sub_u32 s3, s2, 256')
    P = opt('pa', [0, 1])
    t = ATT(a)
    t.setup(3)
    t.mark()
    write_nonce(a)
    if 'afine' in ABL:
        a.e('s_branch K_DONE')
    t.retile_setup()
    stamp(a, 1)
    a.e(f's_setprio {P[0]}')
    t.q_phase()
    stamp(a, 2)
    a.e(f's_setprio {P[1]}')
    if 'noattmain' in ABL:
        for p in range(3):
            if p == 2:
                t.mark_part(0, 12)
            a.wait_all()
            t.side(p)
        t.gate_load()
        a.wait_all()
    else:
        t.main(flags=SCL)
    stamp(a, 3)
    a.e('s_setprio 3')
    t.epilogue(flags=SC)
    a.label('K_DONE')
    stamp_flush(a, 0)
    a.label('K_END')
    a.e('s_endpgm')
    return (NAME + '_kernel', a, 512, 256, 81920, 256)


LIST = False
if __name__ == '__main__':
    if '--stamp' in sys.argv:
        STAMP = True
        sys.argv.remove('--stamp')
    if '--list' in sys.argv:
        LIST = True
        sys.argv.remove('--list')
    for x in list(sys.argv):
        if x.startswith('--abl='):
            ABL.update(x[6:].split(','))
            sys.argv.remove(x)
    out = sys.argv[1] if len(sys.argv) > 1 else 'out.s'
    open(out, 'w').write(build_file([mega()]))
    print('wrote', out)
```

```python
import sys, struct
from asmlib import Asm

NAME = 'gated_mix__grouped_kv_mqa__mixer_gmlp__prompt'

Z2_OFF = 0x10000
UF_OFF = Z2_OFF + 9437184
W3_OFF = UF_OFF + 11796480
KV_OFF = W3_OFF + 3317760
KV_TILE = 2496
GATE_OFF = KV_OFF + 160 * 1024
STATS_OFF = GATE_OFF + 16384
FLAG_OFF = STATS_OFF + 524288
FKV_OFF = FLAG_OFF
FW3_OFF = FLAG_OFF + 49152
FZ_OFF = FLAG_OFF + 4096
PZ_OFF = FLAG_OFF + 65536
PROG_OFF = FLAG_OFF + 16384
GO_OFF = FLAG_OFF + 98304
KVF_OFF = FLAG_OFF
QF_OFF = FLAG_OFF + 131072
SC = 'sc1' if 'sconly1' in ' '.join(sys.argv) else 'sc0 sc1'
SCL = '' if '--abl' in ' '.join(sys.argv) and 'noscl' in ' '.join(sys.argv) else 'sc1'
WS_SIZE = 0x1c00000
assert QF_OFF + 128 * 16 * 1152 <= 0x1b00000
STAMP_OFF = 0x1b00000

A_X, A_WQ, A_WK, A_WV, A_WO, A_BX, A_WIN, A_WSP, A_BSP, A_WOUT, A_GW, A_OUT, A_DBG, A_WS = [8 * i for i in range(14)]

STAMP = False
ABL = set()


def opt(name, default=None):
    for x in ABL:
        if x.startswith(name + ':'):
            return [int(v) for v in x.split(':')[1:]]
    return default


def f2u(f):
    return struct.unpack('<I', struct.pack('<f', f))[0]


def hx(f):
    return '0x%08x' % f2u(f)


def srd(a, d, size):
    a.e(f's_mov_b32 s{d + 2}, {size}')
    a.e(f's_mov_b32 s{d + 3}, 0x00020000')


def vr(b, n):
    return f'v[{b}:{b + n - 1}]'


def stamp(a, idx):
    if not STAMP:
        return
    a.wait_lg0()
    a.e('s_memrealtime s[78:79]')
    a.e('s_memtime s[76:77]')
    a.e('s_waitcnt lgkmcnt(0)')
    a.e(f's_mov_b32 s{80 + idx}, s78')
    a.e(f's_mov_b32 s{88 + idx}, s76')


def stamp_flush(a, kidx):
    if not STAMP:
        return
    a.e('s_waitcnt vmcnt(0) lgkmcnt(0)')
    stamp(a, 7)
    a.e(f's_load_dwordx2 s[74:75], s[0:1], {A_WS}')
    a.e('s_waitcnt lgkmcnt(0)')
    a.e('v_lshrrev_b32 v1, 6, v0')
    a.e('v_lshlrev_b32 v1, 6, v1')
    a.e('s_lshl_b32 s78, s2, 8')
    a.e(f's_add_u32 s78, s78, {STAMP_OFF + kidx * 131072}')
    a.e('v_add_u32 v1, s78, v1')
    for i in range(16):
        a.e(f'v_mov_b32 v{4 + i}, s{80 + i}')
    for i in range(4):
        a.e(f'global_store_dwordx4 v1, v[{4 + 4 * i}:{7 + 4 * i}], s[74:75] offset:{16 * i}')
    if 'dbgstamp' in ABL:
        a.e('s_cmp_lt_u32 s2, 256')
        a.e('s_cselect_b32 s78, 4, 36')
        a.e('v_mov_b32 v1, s78')
        a.e('s_mov_b64 exec, 1')
        for i in range(1, 8):
            a.e(f'v_subrev_u32 v{4 + i}, s62, v{4 + i}')
            a.e(f'global_atomic_umax v1, v{4 + i}, s[16:17] offset:{4 * (i - 1)} sc1')
        a.e('v_sub_u32 v4, s62, v4')
        a.e('v_add_u32 v4, 1000, v4')
        a.e('v_mov_b32 v1, 32')
        a.e('global_atomic_umax v1, v4, s[16:17] sc1')
        a.e('s_mov_b64 exec, -1')


QSCALE = 18 ** -0.5 * 1.4426950408889634
GELU_C0 = -2.0 * 1.4426950408889634 * 0.7978845608028654
GELU_C1 = GELU_C0 * 0.044715


def gelu_group(a, regs, T, sC1, vC0):
    n = len(regs)
    for i, r in enumerate(regs):
        a.e(f'v_pk_mul_f32 {vr(T + 2 * i, 2)}, {vr(r, 2)}, {vr(r, 2)}')
    for i, r in enumerate(regs):
        a.e(f'v_pk_fma_f32 {vr(T + 2 * i, 2)}, {vr(T + 2 * i, 2)}, s[{sC1}:{sC1 + 1}], {vr(vC0, 2)}')
    for i, r in enumerate(regs):
        a.e(f'v_pk_mul_f32 {vr(T + 2 * i, 2)}, {vr(T + 2 * i, 2)}, {vr(r, 2)}')
    for i in range(2 * n):
        a.e(f'v_exp_f32 v{T + i}, v{T + i}')
    for i, r in enumerate(regs):
        a.e(f'v_pk_add_f32 {vr(T + 2 * i, 2)}, {vr(T + 2 * i, 2)}, 1.0 op_sel_hi:[1,0]')
    for i in range(2 * n):
        a.e(f'v_rcp_f32 v{T + i}, v{T + i}')
    for i, r in enumerate(regs):
        a.e(f'v_pk_mul_f32 {vr(r, 2)}, {vr(T + 2 * i, 2)}, {vr(r, 2)}')


SPIN_MAX = 300000
PG = [2, 2, 0]


def poll(a, loads, regs, t0, first_done=False, sleep=1):
    lp = a.newlabel('POLL')
    lc = a.newlabel('POLLC')
    lg = a.newlabel('POLLOK')
    a.e(f's_mov_b32 s51, {SPIN_MAX}')
    if first_done:
        a.e(f's_branch {lc}')
    a.label(lp)
    loads()
    a.e('s_waitcnt vmcnt(0)')
    a.label(lc)
    if len(regs) >= 8:
        a.e(f'v_max3_u32 v{t0}, v{regs[0]}, v{regs[1]}, s62')
        a.e(f'v_min3_u32 v{t0 + 1}, v{regs[0]}, v{regs[1]}, s62')
        for i in range(2, len(regs), 2):
            a.e(f'v_max3_u32 v{t0}, v{regs[i]}, v{regs[i + 1]}, v{t0}')
            a.e(f'v_min3_u32 v{t0 + 1}, v{regs[i]}, v{regs[i + 1]}, v{t0 + 1}')
        a.e(f'v_xor_b32 v{t0}, v{t0}, v{t0 + 1}')
    else:
        a.e(f'v_xor_b32 v{t0}, s62, v{regs[0]}')
        for r in regs[1:]:
            a.e(f'v_xor_b32 v{t0 + 1}, s62, v{r}')
            a.e(f'v_or_b32 v{t0}, v{t0}, v{t0 + 1}')
    a.e(f'v_cmp_ne_u32 vcc, 0, v{t0}')
    a.e(f's_cbranch_vccz {lg}')
    a.e(f's_sleep {sleep}')
    a.e('s_sub_u32 s51, s51, 1')
    a.e('s_cmp_lg_u32 s51, 0')
    a.e(f's_cbranch_scc1 {lp}')
    a.label(lg)
    if not first_done:
        a.vmq = []


def get_nonce(a, vz, vn):
    lp = a.newlabel('NONCE')
    lg = a.newlabel('NONCE_OK')
    a.e(f's_mov_b32 s51, {SPIN_MAX}')
    a.label(lp)
    a.e(f'v_readfirstlane_b32 s62, v{vn}')
    a.e('s_cmp_lg_u32 s62, 0')
    a.e(f's_cbranch_scc1 {lg}')
    a.e('s_sleep 32')
    a.e(f'global_load_dword v{vn}, v{vz}, s[16:17] {SC}')
    a.e('s_waitcnt vmcnt(0)')
    a.e('s_sub_u32 s51, s51, 1')
    a.e('s_cmp_lg_u32 s51, 0')
    a.e(f's_cbranch_scc1 {lp}')
    a.label(lg)


def set_flag(a, soff, t0):
    a.e(f'v_mov_b32 v{t0}, 0')
    a.e(f'v_mov_b32 v{t0 + 1}, s62')
    a.e('s_mov_b64 exec, 1')
    a.vm(f'buffer_store_dword v{t0 + 1}, v{t0}, s[12:15], s{soff} offen {SC}', 'flag')
    a.e('s_mov_b64 exec, -1')


class GW:
    R = 5
    SLOT = 8192
    SGL = 40960
    BBASE = 49152
    AF = 32
    BF = 68
    ACC0 = 100
    ACC1 = 172
    UB = 27
    UP = 45

    def __init__(self, a):
        self.a = a
        self.units = []
        self.stages = []
        for st in range(9):
            self.stages.append(('x', st))
            self.units += [('z2', 2 * st, st, 0, 2 * st), ('z2', 2 * st + 1, st, 1, 2 * st + 1), ('E', st, st, 0, None)]
        for k in range(18):
            if k % 2 == 0:
                self.stages.append(('x', k // 2))
            self.units.append(('z1', k, 9 + k // 2, k % 2, 18 + k))
        for k in range(64):
            if k % 2 == 0:
                self.stages.append(('sp', k // 2))
            self.units.append(('sp', k, 18 + k // 2, k % 2, 36 + k))
        self.nextA = 0
        self.nextB = 0
        self.limitA = len(self.units)
        self.pendB = []
        self.extra = []
        self.hooks = {}

    def setup(self):
        a = self.a
        a.e(f's_load_dwordx4 s[4:7], s[0:1], {A_X}')
        a.e(f's_load_dwordx2 s[8:9], s[0:1], {A_WIN}')
        a.e(f's_load_dwordx4 s[16:19], s[0:1], {A_DBG}')
        a.e(f's_load_dwordx4 s[52:55], s[0:1], {A_WSP}')
        a.e(f's_load_dwordx2 s[64:65], s[0:1], {A_OUT}')
        a.e(f's_load_dwordx4 s[68:71], s[0:1], {A_WK}')
        a.e('v_lshrrev_b32 v1, 6, v0')
        a.e('v_readfirstlane_b32 s20, v1')
        a.e('v_and_b32 v1, 63, v0')
        a.e('s_lshr_b32 s31, s2, 3')
        a.e('s_and_b32 s32, s2, 3')
        a.e('s_and_b32 s34, s31, 3')
        a.e('s_lshl_b32 s21, s32, 2')
        a.e('s_add_u32 s21, s21, s34')
        a.e('s_lshr_b32 s35, s31, 2')
        a.e('s_and_b32 s22, s2, 4')
        a.e('s_lshl_b32 s22, s22, 1')
        a.e('s_add_u32 s22, s22, s35')
        a.e('s_lshl_b32 s23, s21, 2')
        a.e('s_add_u32 s23, s23, s20')
        a.e('s_lshl_b32 s39, s34, 1')
        a.e('s_add_u32 s39, s39, s35')
        a.e('s_cmp_ge_u32 s39, 9')
        a.e('s_cselect_b32 s40, 9, 0')
        a.e('s_sub_u32 s39, s39, s40')
        if 'norot' in ABL:
            a.e('s_mov_b32 s39, 0')
        if 'rot3' in ABL:
            a.e('s_lshl_b32 s39, s39, 2')
            a.e('s_mov_b32 s40, 0x30630630')
            a.e('s_mov_b32 s41, 6')
            a.e('s_lshr_b64 s[40:41], s[40:41], s39')
            a.e('s_and_b32 s39, s40, 15')
        if 'rot9' not in ABL:
            a.e('s_and_b32 s39, s39, 14')
        a.e('s_mul_i32 s24, s39, %d' % (64 * 9216))
        a.e('s_lshl_b32 s25, s39, 7')
        a.e('s_lshl_b32 s28, s39, 1')
        a.e('s_add_u32 s28, s28, s20')
        a.e('s_cmp_ge_u32 s28, 18')
        a.e('s_cselect_b32 s29, 18, 0')
        a.e('s_sub_u32 s28, s28, s29')
        a.e(f's_mul_i32 s28, s28, {32 * 9216}')
        a.e('s_lshl_b32 s26, s20, 11')
        a.e('s_lshl_b32 s27, s20, 12')
        a.e(f's_add_u32 s27, s27, {self.BBASE}')
        a.e('s_lshl_b32 s30, s20, 10')
        a.e(f's_add_u32 s30, s30, {self.SGL}')
        a.e('v_and_b32 v23, 7, v1')
        a.e('v_lshrrev_b32 v24, 5, v1')
        a.e('v_lshlrev_b32 v24, 3, v24')
        a.e('v_bfe_u32 v25, v1, 3, 2')
        a.e('s_lshl_b32 s44, s23, 5')
        a.e('v_add3_u32 v24, v24, v25, s44')
        a.e('v_lshrrev_b32 v25, 4, v1')
        a.e('v_xor_b32 v25, v25, v23')
        a.e('v_lshlrev_b32 v25, 4, v25')
        a.e('v_xor_b32 v26, 64, v25')
        a.e('v_mul_u32_u24 v27, 1152, v24')
        a.e('v_add_u32 v5, v27, v25')
        a.e('v_add_u32 v6, v27, v26')
        a.e(f'v_add_u32 v6, {16 * 1152 - 1024}, v6')
        a.e(f'v_add_u32 v7, {4 * 1152 - 2048}, v5')
        a.e(f'v_add_u32 v8, {4 * 1152 - 2048}, v6')
        a.e('s_lshl_b32 s42, s22, 8')
        a.e('s_mul_i32 s43, s20, %d' % (8 * 9216))
        a.e('s_add_u32 s42, s42, s43')
        a.e('s_add_u32 s42, s42, 4608')
        a.e('v_bfe_u32 v2, v1, 2, 2')
        a.e('v_mul_u32_u24 v2, 9216, v2')
        a.e('v_lshrrev_b32 v3, 4, v1')
        a.e('v_lshl_add_u32 v2, v3, 6, v2')
        a.e('s_and_b32 s44, s20, 1')
        a.e('s_lshl_b32 s45, s44, 1')
        a.e('v_and_b32 v3, 3, v1')
        a.e('v_xor_b32 v3, s45, v3')
        a.e('v_lshl_add_u32 v2, v3, 4, v2')
        a.e('v_add_u32 v2, s42, v2')
        a.e(f'v_add_u32 v3, {4 * 9216 - 1024}, v2')
        a.e('v_lshrrev_b32 v29, 1, v1')
        a.e('v_and_b32 v27, 19, v29')
        a.e('v_bfe_u32 v28, v29, 2, 1')
        a.e('v_lshl_add_u32 v27, v28, 3, v27')
        a.e('v_bfe_u32 v28, v29, 3, 1')
        a.e('v_lshl_add_u32 v27, v28, 2, v27')
        a.e('v_mul_u32_u24 v4, 9216, v27')
        a.e('v_and_b32 v27, 1, v1')
        a.e('v_lshl_add_u32 v4, v27, 4, v4')
        a.e('s_lshl_b32 s45, s22, 5')
        a.e(f's_add_u32 s45, s45, {4096 + 4608}')
        a.e('v_add_u32 v4, s45, v4')
        a.e('s_waitcnt lgkmcnt(0)')
        a.e('s_mov_b64 s[48:49], s[6:7]')
        a.e('s_mov_b64 s[60:61], s[68:69]')
        a.e('s_mov_b64 s[50:51], s[70:71]')
        srd(a, 4, 2359296)
        srd(a, 8, 576 * 9216)
        self.consts()
        b0 = self.issueB()
        self.run(b0[0] + b0[1][1:] + self.issueA() + self.issueA())
        a.e('v_mul_u32_u24 v27, 36, v27')
        a.e('v_lshrrev_b32 v20, 2, v1')
        a.e('v_mul_u32_u24 v20, 1152, v20')
        a.e('v_bfe_u32 v28, v1, 1, 1')
        a.e('v_lshl_add_u32 v20, v28, 4, v20')
        a.e('v_add_u32 v20, v20, v27')
        a.e('v_mul_u32_u24 v28, 1152, v29')
        a.e('v_add3_u32 v28, v28, v27, 32')
        a.e('s_cmp_eq_u32 s20, 2')
        a.e('s_cselect_b64 vcc, -1, 0')
        a.e('v_cndmask_b32 v20, v20, v28, vcc')
        a.e('v_mul_u32_u24 v28, 36, v29')
        a.e('s_cmp_eq_u32 s20, 3')
        a.e('s_cselect_b64 vcc, -1, 0')
        a.e('v_cndmask_b32 v20, v20, v28, vcc')
        a.e('s_mul_i32 s44, s22, 72')
        a.e('s_cmp_eq_u32 s20, 1')
        a.e(f's_cselect_b32 s45, {16 * 1152}, 0')
        a.e('s_add_u32 s44, s44, s45')
        a.e('s_and_b32 s45, s22, 1')
        a.e('s_lshl_b32 s45, s45, 4')
        a.e('s_cmp_ge_u32 s22, 4')
        a.e('s_cselect_b32 s45, 32, s45')
        a.e('s_cmp_eq_u32 s20, 3')
        a.e('s_cselect_b32 s44, s45, s44')
        a.e(f's_movk_i32 s58, 1152')
        a.e('s_cselect_b32 s58, 36, s58')
        a.e('v_add_u32 v20, s44, v20')
        a.e('s_lshl_b32 s44, s58, 5')
        a.e('s_sub_u32 s44, s44, 1024')
        a.e('v_add_u32 v244, s44, v20')
        a.e('s_mul_i32 s42, s58, 576')
        a.e('s_lshl_b32 s58, s58, 6')
        a.e('s_mul_i32 s59, s58, s39')
        a.e('s_lshr_b32 s44, 0x2c, s22')
        a.e('s_and_b32 s44, s44, 1')
        a.e('s_cmp_eq_u32 s44, 1')
        a.e('s_cselect_b32 s40, s50, s60')
        a.e('s_cselect_b32 s41, s51, s61')
        a.e('s_cmp_eq_u32 s20, 3')
        a.e('s_cselect_b32 s40, s40, s48')
        a.e('s_cselect_b32 s41, s41, s49')
        a.e('s_mov_b32 s43, 0x00020000')
        a.e('s_mov_b32 s12, s18')
        a.e('s_mov_b32 s13, s19')
        srd(a, 12, WS_SIZE)
        a.e('s_mov_b32 s56, s54')
        a.e('s_mov_b32 s57, s55')
        srd(a, 52, 2048 * 4096)

    def setup2(self):
        a = self.a
        a.e('v_lshlrev_b32 v27, 12, v24')
        a.e('v_add_u32 v12, v27, v25')
        a.e('v_add_u32 v13, v27, v26')
        a.e(f'v_add_u32 v13, {16 * 4096 - 1024}, v13')
        a.e(f'v_add_u32 v14, {4 * 4096 - 2048}, v12')
        a.e(f'v_add_u32 v15, {4 * 4096 - 2048}, v13')
        a.e('s_xor_b32 s37, s21, s35')
        a.e('s_lshl_b32 s45, s22, 13')
        a.e('s_add_u32 s45, s45, s26')
        a.e(f's_add_u32 s45, s45, {Z2_OFF}')
        a.e('v_lshlrev_b32 v19, 4, v1')
        a.e('v_add_u32 v9, s45, v19')
        a.e('s_lshl_b32 s45, s22, 10')
        a.e('s_mul_i32 s46, s20, 147456')
        a.e('s_add_u32 s45, s45, s46')
        a.e(f's_add_u32 s45, s45, {128 * 1024 + Z2_OFF}')
        a.e('v_add_u32 v10, s45, v19')
        a.e('v_lshrrev_b32 v27, 4, v1')
        a.e('v_and_b32 v29, 3, v1')
        a.e('v_lshlrev_b32 v28, 3, v29')
        a.e('v_bfe_u32 v29, v1, 2, 3')
        a.e('v_lshl_add_u32 v18, v29, 5, v28')
        a.e('v_lshrrev_b32 v29, 5, v1')
        a.e('v_lshl_add_u32 v18, v29, 9, v18')
        a.e('v_lshl_add_u32 v28, v27, 11, v28')
        a.e('v_bfe_u32 v29, v1, 2, 2')
        a.e('v_lshl_add_u32 v28, v29, 6, v28')
        a.e('v_and_b32 v29, 1, v27')
        a.e('v_lshl_add_u32 v16, v29, 5, v28')
        a.e('v_xor_b32 v17, 32, v16')
        a.e('v_and_b32 v28, 15, v1')
        a.e('v_lshlrev_b32 v245, 4, v28')
        a.e('v_lshl_add_u32 v245, v29, 9, v245')
        a.e('v_lshrrev_b32 v29, 5, v1')
        a.e('v_lshl_add_u32 v245, v29, 11, v245')
        a.e('v_bfe_u32 v29, v1, 2, 2')
        a.e('v_lshl_add_u32 v29, v27, 3, v29')
        a.e('v_lshlrev_b32 v246, 5, v29')
        a.e('v_and_b32 v29, 1, v1')
        a.e('v_lshlrev_b32 v23, 4, v29')
        a.e('v_add_u32 v23, 4096, v23')
        a.e('v_lshlrev_b32 v29, 3, v29')
        a.e('v_add_u32 v29, 6144, v29')
        a.e('v_and_b32 v24, 2, v1')
        a.e('v_cmp_eq_u32 vcc, 0, v24')
        a.e('v_cndmask_b32 v29, v29, v23, vcc')
        a.e('v_add_u32 v246, v246, v29')
        a.e('v_bfe_u32 v29, v1, 1, 3')
        a.e('v_xor_b32 v29, v29, v27')
        a.e('v_lshlrev_b32 v28, 7, v28')
        a.e('v_lshl_add_u32 v28, v29, 4, v28')
        a.e('v_add_u32 v21, s27, v28')
        a.e('v_xor_b32 v28, 64, v28')
        a.e('v_add_u32 v22, s27, v28')
        self.gelu_consts()

    def consts(self):
        a = self.a
        for i in range(5):
            a.e(f's_add_u32 s{66 + i}, s26, {i * self.SLOT}')
        a.e('s_mov_b32 s71, s30')
        a.e('s_add_u32 s72, s30, 4096')
        a.e('s_mov_b32 s73, s27')
        a.e('s_add_u32 s63, s27, 16384')
        a.e(f's_mov_b32 s33, {32 * 9216}')
        a.e(f's_mov_b32 s36, {576 * 9216}')
        a.e('s_mov_b32 s38, 147456')
        a.e('s_movk_i32 s3, 1152')

    def S(self, text, cost=4):
        return (cost, lambda: self.a.e(text))

    def D(self, text, tag):
        return (12, lambda: self.a.vm(text, tag))

    def grp(self, g, d, t):
        S = self.S
        if g == 0:
            return [S(f's_mov_b32 s{d}, s21')]
        if g < 8:
            return [S(f's_add_u32 s{d}, s35, {g}'), S(f's_cmp_ge_u32 s{d}, 8\ns_cselect_b32 s{t}, 7, 0', 8),
                    S(f's_sub_u32 s{d}, s{d}, s{t}'), S(f's_xor_b32 s{d}, s{d}, s21')]
        return [S(f's_xor_b32 s{d}, s37, {g}')]

    def issueA(self):
        u = self.nextA
        if u >= self.limitA:
            return []
        self.nextA += 1
        S, D = self.S, self.D
        seg, i, _, _, si = self.units[u]
        tag = ('A', u)
        m0 = S(f's_mov_b32 m0, s{66 + u % self.R}')
        if seg == 'E':
            return [m0, D('buffer_load_dwordx4 v20, s[40:43], s59 offen lds', tag),
                    D('buffer_load_dwordx4 v244, s[40:43], s59 offen offset:1024 lds', tag),
                    S('s_add_u32 s59, s59, s58'), S('s_cmp_eq_u32 s59, s42\ns_cselect_b32 s59, 0, s59', 8)]
        m1 = S(f's_mov_b32 m0, s{71 + (si // 4) % 2}')
        out = []
        if seg == 'sp':
            if i % 4 == 0:
                out += self.grp(i // 4, 24, 29) + [S('s_mul_i32 s24, s24, 589824', 6)]
            out += [m0, D(f'buffer_load_dwordx4 v9, s[12:15], s24 offen {SCL} lds', tag),
                    D(f'buffer_load_dwordx4 v9, s[12:15], s24 offen offset:1024 {SCL} lds', tag)]
            if i % 4 == 0:
                out += [m1, D(f'buffer_load_dwordx4 v10, s[12:15], s24 offen {SCL} lds', tag)]
            if i % 4 != 3:
                out.append(S('s_add_u32 s24, s24, s38'))
            return out
        if seg == 'z1' and i == 0:
            out += [S('v_subrev_u32 v2, 4608, v2', 8), S('v_subrev_u32 v3, 4608, v3', 8)]
        out += [m0, D('buffer_load_dwordx4 v2, s[8:11], s24 offen lds', tag),
                D('buffer_load_dwordx4 v3, s[8:11], s24 offen offset:1024 lds', tag), S('s_add_u32 s24, s24, s33')]
        if i % 2 == 1:
            out.append(S('s_cmp_eq_u32 s24, s36\ns_cselect_b32 s24, 0, s24', 8))
        if si % 4 == 0:
            if si == 16:
                out += [S('s_cmp_lt_u32 s20, 2\ns_cselect_b32 s29, 0, 4608', 10), S('v_subrev_u32 v4, s29, v4')]
            if si == 20:
                out += [S('s_cmp_lt_u32 s20, 2\ns_cselect_b32 s29, 4608, 0', 10), S('v_subrev_u32 v4, s29, v4')]
            out += [m1, D('buffer_load_dwordx4 v4, s[8:11], s28 offen lds', tag), S(f's_add_u32 s28, s28, {128 * 9216}', 6),
                    S('s_cmp_ge_u32 s28, s36\ns_cselect_b32 s29, s36, 0', 8), S('s_sub_u32 s28, s28, s29')]
        return out

    def issueB(self):
        s = self.nextB
        if s >= len(self.stages):
            return [[], []]
        self.nextB += 1
        S, D = self.S, self.D
        seg, i = self.stages[s]
        tag = ('B', s)
        sp = seg == 'sp'
        vb = 12 if sp else 5
        sr = 's[52:55]' if sp else 's[4:7]'
        m0 = S(f's_mov_b32 m0, s{(73, 63)[s % 2]}')
        ld = [D(f'buffer_load_dwordx4 v{vb + j}, {sr}, s25 offen offset:{1024 * j} lds', tag) for j in range(4)]
        pre = []
        if sp:
            pre = self.grp(i // 2, 25, 44) + [S('s_lshl_b32 s25, s25, 8')] if i % 2 == 0 else [S('s_addk_i32 s25, 128')]
        post = [] if sp else [S('s_addk_i32 s25, 128'), S('s_cmp_eq_u32 s25, s3\ns_cselect_b32 s25, 0, s25', 8)]
        return [pre + [m0] + ld[:2], [m0] + ld[2:] + post]

    def nfr(self, u):
        return 6 if self.units[u][0] == 'E' else 9

    def freg(self, u, F):
        return (self.ACC1 + 24 if self.units[u][0] == 'E' else self.AF) + 4 * F

    def readA(self, u, F):
        a = self.a
        seg, i, _, _, si = self.units[u]
        slot = (u % self.R) * self.SLOT
        tag = ('AR', u, F)
        r = self.freg(u, F)

        def L(t):
            return (8, lambda: a.lg(t, tag))
        if seg == 'E':
            kk, t = F // 3, F % 3
            if t < 2:
                return [L(f'ds_read_b64_tr_b16 {vr(r + 2 * j, 2)}, v245 offset:{slot + kk * 1024 + j * 256 + t * 8}') for j in range(2)]
            return [L(f'ds_read_b64_tr_b16 {vr(r + 2 * j, 2)}, v246 offset:{slot + kk * 1024 + j * 128}') for j in range(2)]
        sgl = self.SGL + ((si // 4) % 2) * 4096 + (si % 4) * 1024
        if seg == 'sp':
            return [L(f'ds_read_b128 {vr(r, 4)}, v19 offset:{slot + F * 1024 if F < 8 else sgl}')]
        if F < 8:
            return [L(f'ds_read_b64_tr_b16 {vr(r + 2 * j, 2)}, v{16 + F % 2} offset:{slot + j * 1024 + (F // 2) * 256}') for j in range(2)]
        return [L(f'ds_read_b64_tr_b16 {vr(r + 2 * j, 2)}, v18 offset:{sgl + j * 256}') for j in range(2)]

    def readB(self, s):
        a = self.a
        out = [(4, lambda: a.wait_vm(('B', s)))]
        for jj in range(2):
            for e in range(2):
                t = f'ds_read_b128 {vr(self.BF + 16 * (s % 2) + 8 * jj + 4 * e, 4)}, v{21 + jj} offset:{(s % 2) * 16384 + e * 2048}'
                out.append((8, lambda t=t: a.lg(t, ('BR', s))))
        return out

    def run(self, items):
        for _, f in items:
            f()

    def prologue_issue(self):
        self.run(self.issueA())
        b1 = self.issueB()
        self.run(b1[0] + b1[1][1:] + self.issueA())

    def run_segment(self, u0, n, own=False):
        a = self.a
        a.e(f's_setprio {opt("pg", PG)[0]}')
        self.run(self.readB(self.units[u0][2]))
        a.wait_vm(('A', u0))
        a.wait_lg('own')
        a.e('s_barrier')
        for F in range(9):
            self.run(self.readA(u0, F))
        carry = []
        for u in range(u0, u0 + n):
            last = u == u0 + n - 1
            seg, kk, s, jj, _ = self.units[u]
            sfirst = u == u0 or self.units[u - 1][2] != s
            pos = u - min(v for v in range(u0, u + 1) if self.units[v][2] == s)
            nf = self.nfr(u)
            if 'p2fine' in ABL and u >= self.UP + 4 and (u - self.UP - 4) % 10 == 0:
                stamp(a, 1 + (u - self.UP - 4) // 10)
            will_issue = self.nextA <= u + self.R - 1 and self.nextA < self.limitA
            if not last:
                a.wait_vm(('A', u + 1))
            if will_issue or (not last and not own):
                a.e('s_barrier')
            if u in self.hooks:
                self.hooks[u]()
            misc = self.issueA() if self.nextA <= u + self.R - 1 else []
            if sfirst and self.nextB <= s + 2:
                self.pendB = self.issueB()
            pb = self.pendB.pop(0) if self.pendB else []
            reads = [(0, it) for it in carry]
            carry = []
            if not last:
                same = self.freg(u, 0) == self.freg(u + 1, 0)
                for F in range(self.nfr(u + 1)):
                    its = self.readA(u + 1, F)
                    if nf == 6 and F >= 7:
                        carry += its
                    else:
                        reads += [(2 * F + 1 if same else 0, it) for it in its]
            stage_end = max(v for v in range(u, u0 + n) if self.units[v][2] == s)
            if pos == 1 and stage_end < u0 + n - 1:
                misc += self.readB(s + 1)
            misc += pb
            n_ex = opt('spr', [9, 2])[1]
            misc = self.extra[:n_ex] + misc
            self.extra = self.extra[n_ex:]
            ng = 2 * nf
            nwait = (nf + 1) // 2
            total = sum(c for _, (c, _) in reads) + sum(c for c, _ in misc) + 4 * nwait + 8
            done = 0
            for g in range(ng):
                F, e = g // 2, g % 2
                if g == 0:
                    a.wait_lg(('AR', u, 0))
                    if sfirst:
                        a.wait_lg(('BR', s))
                af = vr(self.freg(u, F), 4)
                if seg == 'E':
                    d = vr(self.ACC1 + 8 * (F % 3) + 4 * e, 4)
                    c = '0' if (kk == 0 and F < 3) else d
                    bf = vr(self.BF + 16 * (s % 2) + 8 * (F // 3) + 4 * e, 4)
                else:
                    d = vr((self.ACC1 if seg == 'z1' else self.ACC0) + 8 * F + 4 * e, 4)
                    c = '0' if kk == 0 else d
                    bf = vr(self.BF + 16 * (s % 2) + 8 * jj + 4 * e, 4)
                if seg == 'z2':
                    a.e(f'v_mfma_f32_16x16x32_bf16 {d}, {bf}, {af}, {c}')
                else:
                    a.e(f'v_mfma_f32_16x16x32_bf16 {d}, {af}, {bf}, {c}')
                used = 0
                needw = e == 1 and F % 2 == 0 and F + 1 < nf
                if needw:
                    used += 4
                if g == ng - 1:
                    used += 8
                target = max(12 * (g + 1), total * (g + 1) / ng)
                while True:
                    cand = None
                    if reads and reads[0][0] <= g and (not misc or len(reads) * 1.0 >= (ng - g) * 0.55 or misc[0][0] + used > 12):
                        cand = 'r'
                    elif misc:
                        cand = 'm'
                    elif reads and reads[0][0] <= g:
                        cand = 'r'
                    if cand is None:
                        break
                    cost = reads[0][1][0] if cand == 'r' else misc[0][0]
                    if g < ng - 1 and used + cost > 12 and done + used + cost > total * (g + 1) / ng:
                        break
                    (reads.pop(0)[1] if cand == 'r' else misc.pop(0))[1]()
                    used += cost
                done += used
                if needw:
                    a.wait_lg(('AR', u, F + 1))
                    a.wait_lg(('AR', u, min(F + 2, nf - 1)))
                    self.merge_waits()
            assert not reads and not misc
        a.e(f's_setprio {opt("pg", PG)[1]}')

    def merge_waits(self):
        ins = self.a.ins
        if len(ins) >= 2 and ins[-1].text.startswith('s_waitcnt lgkmcnt') and ins[-2].text.startswith('s_waitcnt lgkmcnt'):
            del ins[-2]

    def proj_store(self):
        a = self.a
        E = self.ACC1
        P = self.AF
        a.e(f's_mov_b32 s44, {hx(QSCALE)}')
        a.e(f's_mov_b32 s45, {hx(QSCALE)}')
        a.e('v_mov_b32 v24, s44')
        a.e('s_bitcmp1_b32 0x2c, s22')
        a.e(f's_cselect_b32 s46, {hx(2.0 ** VSH)}, 1.0')
        a.e('v_mov_b32 v25, s46')
        a.e('v_cmp_gt_u32 vcc, 32, v1')
        a.e('v_cndmask_b32 v24, v25, v24, vcc')
        a.e('s_lshl_b32 s46, s23, 5')
        a.e('s_add_u32 s46, s46, s22')
        a.e('s_mul_i32 s46, s46, 1152')
        a.e(f's_add_u32 s46, s46, {QF_OFF}')
        a.e(f's_add_u32 s47, s46, {16 * 1152}')
        a.e('v_lshlrev_b32 v25, 2, v1')
        for e in range(2):
            for t in range(2):
                for h in range(2):
                    r = E + 8 * t + 4 * e + 2 * h
                    a.e(f'v_pk_mul_f32 {vr(r, 2)}, {vr(r, 2)}, s[44:45]')
            for r in (E + 16 + 4 * e, E + 18 + 4 * e):
                a.e(f'v_pk_mul_f32 {vr(r, 2)}, {vr(r, 2)}, v[24:25] op_sel_hi:[1,0]')
            for t in range(3):
                for h in range(2):
                    r = E + 8 * t + 4 * e + 2 * h
                    a.e(f'v_cvt_pk_bf16_f32 v{P + 8 * e + 2 * t + h}, v{r}, v{r + 1}')
            for i in range(6):
                a.e(f'v_min_u32 v{P + 8 * e + i}, -2, v{P + 8 * e + i}')
            a.vm(f'buffer_store_dwordx4 {vr(P + 8 * e, 4)}, v19, s[12:15], s{46 + e} offen {SC}', 'pst')
        a.e('s_mov_b32 exec_hi, 0')
        for e in range(2):
            a.vm(f'buffer_store_dword v{P + 8 * e + 4}, v25, s[12:15], s{46 + e} offen offset:1024 {SC}', 'pst')
        a.e('s_mov_b64 exec, -1')
        le = a.newlabel('PJ_E')
        lv = a.newlabel('PJ_V')
        lt = a.newlabel('PJ_T')
        ls = a.newlabel('PJ_S')
        a.e('s_cmp_ge_u32 s22, 6')
        a.e(f's_cbranch_scc1 {le}')
        a.e(f's_mul_i32 s44, s23, {KV_TILE}')
        a.e(f's_add_u32 s44, s44, {KV_OFF}')
        a.e('v_and_b32 v24, 15, v1')
        a.e('v_bfe_u32 v25, v1, 4, 1')
        a.e('v_lshrrev_b32 v26, 2, v24')
        a.e('v_mul_u32_u24 v26, 168, v26')
        a.e('v_add_u32 v26, 1152, v26')
        a.e('v_and_b32 v27, 3, v1')
        a.e('s_mov_b32 exec_lo, 0')
        a.e('s_cmp_ge_u32 s22, 4')
        a.e(f's_cbranch_scc1 {lt}')
        a.e('s_cmp_ge_u32 s22, 2')
        a.e(f's_cbranch_scc1 {lv}')
        a.e('v_lshlrev_b32 v28, 4, v24')
        a.e('v_lshl_add_u32 v28, v25, 3, v28')
        a.e('s_lshl_b32 s45, s22, 9')
        a.e('s_add_u32 s44, s44, s45')
        a.e('s_add_u32 s45, s44, 256')
        a.e(f's_branch {ls}')
        a.label(lv)
        a.e('v_lshl_add_u32 v28, v27, 5, v26')
        a.e('v_lshl_add_u32 v28, v25, 3, v28')
        a.e('s_and_b32 s45, s22, 1')
        a.e('s_lshl_b32 s45, s45, 4')
        a.e('s_add_u32 s44, s44, s45')
        a.e(f's_add_u32 s45, s44, {4 * 168}')
        a.e(f's_branch {ls}')
        a.label(lt)
        lvt = a.newlabel('PJ_VT')
        a.e('s_cmp_eq_u32 s22, 5')
        a.e(f's_cbranch_scc1 {lvt}')
        a.e('v_lshlrev_b32 v28, 2, v24')
        a.e('s_mov_b32 exec_hi, 0xffff')
        for e in range(2):
            a.e(f'buffer_store_dword v{P + 8 * e + 4}, v28, s[12:15], s44 offen offset:{1024 + 64 * e} {SC}')
        a.e(f's_branch {le}')
        a.label(lvt)
        a.e('v_lshl_add_u32 v28, v27, 3, v26')
        a.e('v_add_u32 v28, 128, v28')
        a.e('v_add_u32 v29, 160, v26')
        a.e('v_cmp_eq_u32 vcc, 0, v25')
        a.e('v_cndmask_b32 v28, v29, v28, vcc')
        a.e(f'v_mov_b32 v29, {f2u(2.0 ** VSH) >> 16}')
        for e in range(2):
            a.e(f'v_cndmask_b32 v{P + 8 * e + 4}, 0, v{P + 8 * e + 4}, vcc')
            a.e(f'v_cndmask_b32 v{P + 8 * e + 5}, 0, v29, vcc')
        a.e(f's_add_u32 s45, s44, {4 * 168}')
        a.label(ls)
        for e in range(2):
            a.e(f'buffer_store_dwordx2 {vr(P + 8 * e + 4, 2)}, v28, s[12:15], s{44 + e} offen {SC}')
        a.label(le)
        a.e('s_mov_b64 exec, -1')

    def mk_load(self):
        self.a.e(f'buffer_load_dwordx2 v[26:27], v23, s[12:15], s47 offen {SC}')

    def mk_addr(self):
        a = self.a
        a.e('s_bfe_u32 s47, s22, 0x20001')
        a.e('s_lshl_b32 s47, s47, 3')
        a.e('s_bfe_u32 s45, s23, 0x30001')
        a.e('s_add_u32 s47, s47, s45')
        a.e('s_lshl_b32 s47, s47, 3')
        a.e('s_and_b32 s45, s2, 7')
        a.e('s_add_u32 s47, s47, s45')
        a.e('s_lshl_b32 s47, s47, 7')
        a.e('s_and_b32 s45, s23, 1')
        a.e('s_lshl_b32 s45, s45, 3')
        a.e('s_add_u32 s47, s47, s45')
        a.e(f's_add_u32 s47, s47, {GO_OFF}')

    def proj_signal(self):
        a = self.a
        a.wait_vm('pst')
        a.e('v_mov_b32 v28, s62')
        a.e('s_barrier')
        l = a.newlabel('PS')
        a.e('s_cmp_ge_u32 s22, 6')
        a.e(f's_cbranch_scc1 {l}')
        a.e('s_cmp_lg_u32 s20, 0')
        a.e(f's_cbranch_scc1 {l}')
        a.e('s_mul_i32 s44, s21, 6')
        a.e('s_add_u32 s44, s44, s22')
        a.e('s_lshl_b32 s44, s44, 2')
        a.e(f's_add_u32 s44, s44, {KVF_OFF}')
        a.e('v_lshlrev_b32 v27, 9, v1')
        a.e('s_mov_b64 exec, 0xff')
        a.e(f'buffer_store_dword v28, v27, s[12:15], s44 offen {SC}')
        a.e('s_mov_b64 exec, -1')
        a.label(l)

    def gelu_consts(self):
        a = self.a
        a.e(f's_mov_b32 s60, {hx(GELU_C1)}')
        a.e(f's_mov_b32 s61, {hx(GELU_C1)}')
        a.e(f'v_mov_b32 v30, {hx(GELU_C0)}')
        a.e(f'v_mov_b32 v31, {hx(GELU_C0)}')

    def z1_gelu(self, Fs=range(9)):
        a = self.a
        T = self.BF + 16
        for F in Fs:
            base = self.ACC1 + 8 * F
            gelu_group(a, [base + 2 * i for i in range(4)], T + 8 * (F % 2), 60, 30)

    def z2_gelu_publish(self):
        a = self.a
        T = self.AF + 16
        S = self.BF
        for F in range(9):
            if F == opt('psig', [5])[0]:
                self.proj_signal()
            base = self.ACC0 + 8 * F
            gelu_group(a, [base + 2 * i for i in range(4)], T + 8 * (F % 2), 60, 30)
            for i in range(4):
                y = vr(base + 2 * i, 2)
                if F == 0:
                    a.e(f'v_pk_add_f32 {vr(S + 2 * i, 2)}, {y}, 0 op_sel_hi:[1,0]')
                    a.e(f'v_pk_mul_f32 {vr(S + 8 + 2 * i, 2)}, {y}, {y}')
                else:
                    a.e(f'v_pk_add_f32 {vr(S + 2 * i, 2)}, {vr(S + 2 * i, 2)}, {y}')
                    a.e(f'v_pk_fma_f32 {vr(S + 8 + 2 * i, 2)}, {y}, {y}, {vr(S + 8 + 2 * i, 2)}')
        for b in (S, S + 8):
            for r in range(4):
                a.e(f'v_add_f32_dpp v{b + r}, v{b + r}, v{b + r} row_ror:8 row_mask:0xf bank_mask:0x3')
            for r in range(4):
                a.e(f'v_add_f32_dpp v{b + r}, v{b + r + 4}, v{b + r + 4} row_ror:8 row_mask:0xf bank_mask:0xc')
        for b in (S, S + 8):
            for r in range(2):
                a.e(f'v_add_f32_dpp v{b + r}, v{b + r}, v{b + r} row_shl:4 row_mask:0xf bank_mask:0x5')
            for r in range(2):
                a.e(f'v_add_f32_dpp v{b + r}, v{b + r + 2}, v{b + r + 2} row_shr:4 row_mask:0xf bank_mask:0xa')
        for qp in ('[1,0,3,2]', '[2,3,0,1]'):
            for r in (S, S + 1, S + 8, S + 9):
                a.e(f'v_add_f32_dpp v{r}, v{r}, v{r} quad_perm:{qp} row_mask:0xf bank_mask:0xf')
        a.e('v_and_b32 v25, 1, v1')
        a.e('v_cmp_eq_u32 vcc, 1, v25')
        G0 = S + 12
        a.e(f'v_cndmask_b32 v{G0}, v{S}, v{S + 1}, vcc')
        a.e(f'v_cndmask_b32 v{G0 + 2}, v{S + 8}, v{S + 9}, vcc')
        a.e('v_lshrrev_b32 v27, 2, v1')
        a.e('v_lshl_add_u32 v27, v27, 1, v25')
        a.e('v_lshlrev_b32 v27, 4, v27')
        a.e('s_lshl_b32 s48, s23, 13')
        a.e(f's_add_u32 s48, s48, {STATS_OFF}')
        a.e('s_lshl_b32 s49, s22, 9')
        a.e('s_add_u32 s49, s49, s48')
        a.e(f'v_mov_b32 v{G0 + 1}, s62')
        a.e(f'v_mov_b32 v{G0 + 3}, s62')
        a.e('s_mov_b32 exec_lo, 0x33333333')
        a.e('s_mov_b32 exec_hi, 0x33333333')
        a.vm(f'buffer_store_dwordx4 {vr(G0, 4)}, v27, s[12:15], s49 offen {SC}', 'st')
        a.e('s_mov_b64 exec, -1')

    def z2_gather_norm_store(self):
        a = self.a
        G = self.AF
        a.e('s_add_u32 s49, s48, 4096')

        def ld():
            for i in range(8):
                a.e(f'buffer_load_dwordx4 {vr(G + 4 * i, 4)}, v19, s[12:15], {"s48" if i < 4 else "s49"} offen offset:{1024 * (i % 4)} {SC}')
        poll(a, ld, [G + 2 * i + 1 for i in range(16)], 27)
        for o in (0, 2):
            a.e(f'v_add_f32 v{G + o}, v{G + o}, v{G + 4 + o}')
            a.e(f'v_add_f32 v{G + 8 + o}, v{G + 8 + o}, v{G + 12 + o}')
            a.e(f'v_add_f32 v{G + 16 + o}, v{G + 16 + o}, v{G + 20 + o}')
            a.e(f'v_add_f32 v{G + 24 + o}, v{G + 24 + o}, v{G + 28 + o}')
        for o in (0, 2):
            a.e(f'v_add_f32 v{G + o}, v{G + o}, v{G + 8 + o}')
            a.e(f'v_add_f32 v{G + 16 + o}, v{G + 16 + o}, v{G + 24 + o}')
        a.e(f'v_add_f32 v{G}, v{G}, v{G + 16}')
        a.e(f'v_add_f32 v{G + 1}, v{G + 2}, v{G + 18}')
        a.e(f'v_mov_b32 v{G + 2}, v{G}')
        a.e(f'v_mov_b32 v{G + 3}, v{G + 1}')
        a.e(f'v_permlane32_swap_b32 v{G}, v{G + 2}')
        a.e(f'v_permlane32_swap_b32 v{G + 1}, v{G + 3}')
        a.e(f'v_pk_add_f32 {vr(G, 2)}, {vr(G, 2)}, {vr(G + 2, 2)}')
        a.e(f'v_mul_f32 v{G}, {hx(1.0 / 2304)}, v{G}')
        a.e(f'v_mul_f32 v{G + 1}, {hx(1.0 / 2304)}, v{G + 1}')
        a.e(f'v_fma_f32 v{G + 1}, -v{G}, v{G}, v{G + 1}')
        a.e(f'v_max_f32 v{G + 1}, 0, v{G + 1}')
        a.e(f'v_add_f32 v{G + 1}, {hx(1e-5)}, v{G + 1}')
        a.e(f'v_rsq_f32 v{G + 1}, v{G + 1}')
        a.e(f'v_mul_f32 v{G}, v{G}, v{G + 1}')
        a.e(f'v_sub_f32 v{G}, 0, v{G}')
        a.e('v_lshrrev_b32 v28, 4, v1')
        a.e('v_lshlrev_b32 v28, 5, v28')
        RS = self.BF
        for i in range(8):
            a.lg(f'ds_bpermute_b32 v{RS + i}, v28, v{G + 1} offset:{4 * i}', 'r')
            a.lg(f'ds_bpermute_b32 v{RS + 8 + i}, v28, v{G} offset:{4 * i}', 'r')
        a.e('s_mul_i32 s44, s23, 147456')
        a.e(f's_add_u32 s44, s44, {Z2_OFF}')
        a.e('s_lshl_b32 s45, s22, 13')
        a.e('s_add_u32 s45, s45, s44')
        a.e('s_add_u32 s47, s45, 4096')
        a.e('s_lshl_b32 s46, s22, 10')
        a.e('s_add_u32 s46, s46, s44')
        a.e(f's_add_u32 s46, s46, {128 * 1024}')
        a.wait_lg0()
        for F in range(9):
            base = self.ACC0 + 8 * F
            pk = self.ACC0 + 4 * F
            for i in range(4):
                a.e(f'v_pk_fma_f32 {vr(base + 2 * i, 2)}, {vr(base + 2 * i, 2)}, {vr(RS + 2 * i, 2)}, {vr(RS + 8 + 2 * i, 2)}')
            for i in range(4):
                a.e(f'v_cvt_pk_bf16_f32 v{pk + i}, v{base + 2 * i}, v{base + 2 * i + 1}')
            so = 's46' if F == 8 else ('s45' if F < 4 else 's47')
            it = self.D(f'buffer_store_dwordx4 {vr(pk, 4)}, v19, s[12:15], {so} offen offset:{1024 * (F % 4)} {SC}', 'st')
            if F < opt('spr', [9, 2])[0]:
                it[1]()
            else:
                self.extra.append(it)

    def own_write(self):
        a = self.a
        a.e('s_lshl_b32 s44, s20, 13')
        a.e('v_add_u32 v27, s44, v19')
        a.e('v_add_u32 v28, s30, v19')
        a.e('s_barrier')
        for F in range(9):
            pk = self.ACC0 + 4 * F
            if F < 8:
                a.lg(f'ds_write_b128 v27, {vr(pk, 4)} offset:{1024 * F}', 'own')
            else:
                a.lg(f'ds_write_b128 v28, {vr(pk, 4)} offset:4096', 'own')

    def sp_pre(self):
        a = self.a
        a.e('v_bfe_u32 v27, v1, 2, 2')
        a.e('v_lshlrev_b32 v27, 3, v27')
        a.e('v_and_b32 v28, 3, v1')
        a.e('s_lshl_b32 s44, s23, 5')
        a.e('v_add3_u32 v27, v27, v28, s44')
        a.e('v_lshlrev_b32 v28, 1, v27')
        a.e('v_lshlrev_b32 v11, 3, v27')
        a.vm('global_load_ushort v244, v28, s[56:57]', 'pre')
        a.vm('global_load_ushort v245, v28, s[56:57] offset:8', 'pre')
        self.gate_loads(True)

    def gate_loads(self, track=False):
        a = self.a
        a.e(f's_mov_b32 s44, {GATE_OFF}')
        for e in range(2):
            t = f'buffer_load_dwordx2 {vr(246 + 2 * e, 2)}, v11, s[12:15], s44 offen offset:{32 * e} {SC}'
            a.vm(t, 'pre') if track else a.e(t)

    def sp_epilogue(self):
        a = self.a
        a.wait_vm('pre')
        poll(a, self.gate_loads, [247, 249], 27, first_done=True)
        poll(a, lambda: p3_flags(a), [2, 3, 4], 27, first_done=True)
        for e in range(2):
            a.e(f'v_sub_f32 v{246 + 2 * e}, 1.0, v{246 + 2 * e}')
            a.e(f'v_lshlrev_b32 v{244 + e}, 16, v{244 + e}')
            a.e(f'v_mul_f32 v{250 + 2 * e}, v{244 + e}, v{246 + 2 * e}')
        a.e('s_mul_i32 s44, s23, 180')
        a.e('s_lshr_b32 s45, s22, 2')
        a.e('s_mul_i32 s45, s45, 18')
        a.e('s_add_u32 s44, s44, s45')
        a.e('s_lshl_b32 s44, s44, 10')
        a.e(f's_add_u32 s44, s44, {UF_OFF + 18 * 1024}')
        a.e('s_and_b32 s45, s22, 3')
        a.e('s_lshl_b32 s46, s45, 12')
        a.e('s_add_u32 s46, s46, s44')
        a.e(f's_add_u32 s47, s46, {90 * 1024}')
        a.e('s_lshr_b32 s48, s45, 1')
        a.e('s_lshl_b32 s48, s48, 10')
        a.e('s_add_u32 s48, s48, s44')
        a.e('s_and_b32 s49, s45, 1')
        a.e('s_lshl_b32 s49, s49, 3')
        a.e('s_add_u32 s48, s48, s49')
        a.e(f's_add_u32 s48, s48, {16 * 1024}')
        a.e(f's_add_u32 s49, s48, {90 * 1024}')
        idx = 0
        for m in range(5):
            for e in range(2):
                pk = self.AF + 4 * idx
                idx += 1
                Fs = (2 * m, 2 * m + 1) if m < 4 else (8,)
                prs = [(self.ACC0 + 8 * F + 4 * e + 2 * i, self.ACC1 + 8 * F + 4 * e + 2 * i) for F in Fs for i in range(2)]
                for g, z in prs:
                    a.e(f'v_pk_fma_f32 {vr(g, 2)}, {vr(g, 2)}, {vr(246 + 2 * e, 2)}, {vr(250 + 2 * e, 2)} op_sel_hi:[1,0,0]')
                for g, z in prs:
                    a.e(f'v_pk_mul_f32 {vr(g, 2)}, {vr(g, 2)}, {vr(z, 2)}')
                for i, (g, z) in enumerate(prs):
                    a.e(f'v_cvt_pk_bf16_f32 v{pk + i}, v{g}, v{g + 1}')
                for i in range(len(prs)):
                    a.e(f'v_min_u32 v{pk + i}, -2, v{pk + i}')
                if m < 4:
                    a.vm(f'buffer_store_dwordx4 {vr(pk, 4)}, v19, s[12:15], s{46 + e} offen offset:{1024 * m} {SC}', 'st')
                else:
                    a.vm(f'buffer_store_dwordx2 {vr(pk, 2)}, v19, s[12:15], s{48 + e} offen {SC}', 'st')


def write_nonce(a):
    l = a.newlabel('NOW')
    a.e('s_cmp_lg_u32 s3, 0')
    a.e(f's_cbranch_scc1 {l}')
    a.e(f's_add_u32 s44, s26, {KV_OFF}')
    for i in range(10):
        a.e(f'buffer_store_dwordx4 v[224:227], v10, s[12:15], s44 offen {SC}')
        a.e('s_add_u32 s44, s44, 1024')
    a.e('s_memrealtime s[44:45]')
    a.e('s_waitcnt vmcnt(0) lgkmcnt(0)')
    a.e('s_barrier')
    a.e('s_cmp_lg_u32 s20, 0')
    a.e(f's_cbranch_scc1 {l}')
    a.e('v_mov_b32 v29, 0')
    a.e('s_or_b32 s44, s44, 1')
    a.e('v_mov_b32 v28, s44')
    a.e(f'global_store_dword v29, v28, s[16:17] {SC}')
    a.label(l)


KVBUF = 40960
M_OFFSET = 96.0
VSH = 32


class ATT:
    SB = 16
    OB = 48
    QF = 80
    KF = 96
    VF = 112
    PF = 128
    XF = 136
    WF = 208
    WQS = 16

    def __init__(self, a):
        self.a = a

    def setup(self, sid):
        a = self.a
        a.e(f's_load_dwordx2 s[4:5], s[0:1], {A_X}')
        a.e(f's_load_dwordx4 s[16:19], s[0:1], {A_DBG}')
        a.e(f's_load_dwordx4 s[56:59], s[0:1], {A_WOUT}')
        a.e(f's_load_dwordx2 s[36:37], s[0:1], {A_WO}')
        a.e(f's_load_dwordx2 s[60:61], s[0:1], {A_WSP}')
        a.e('v_lshrrev_b32 v1, 6, v0')
        a.e('v_readfirstlane_b32 s20, v1')
        a.e('v_and_b32 v1, 63, v0')
        a.e(f's_and_b32 s24, s{sid}, 3')
        a.e(f's_lshr_b32 s25, s{sid}, 3')
        a.e('s_lshl_b32 s21, s24, 3')
        a.e('s_and_b32 s23, s25, 7')
        a.e('s_add_u32 s21, s21, s23')
        a.e(f's_and_b32 s22, s{sid}, 4')
        a.e('s_lshr_b32 s23, s25, 3')
        a.e('s_add_u32 s22, s22, s23')
        a.e('s_lshl_b32 s23, s21, 2')
        a.e('s_add_u32 s23, s23, s20')
        a.e('s_lshr_b32 s44, s23, 1')
        a.e('s_lshl_b32 s44, s44, 5')
        a.e('s_and_b32 s45, s23, 1')
        a.e('s_lshl_b32 s45, s45, 2')
        a.e('s_add_u32 s44, s44, s45')
        a.e('v_bfe_u32 v3, v1, 2, 2')
        a.e('v_lshlrev_b32 v3, 3, v3')
        a.e('v_and_b32 v10, 3, v1')
        a.e('v_add3_u32 v3, v3, v10, s44')
        a.e('v_lshlrev_b32 v3, 3, v3')
        a.e('s_mul_i32 s26, s20, 10240')
        a.e('s_lshl_b32 s27, s25, 2')
        a.e('s_add_u32 s27, s27, s20')
        if 'nocodepf' not in ABL:
            a.e('s_getpc_b64 s[8:9]')
            a.label('K_PC')
            a.e('s_sub_u32 s8, s8, K_PC-K_GEMM')
            a.e('s_subb_u32 s9, s9, 0')
            a.e('s_mul_i32 s45, s27, 5')
            a.e('v_min_u32 v10, 4, v1')
            a.e('v_add_u32 v10, s45, v10')
            a.e('v_min_u32 v10, CODE_LINES, v10')
            a.e('v_lshlrev_b32 v238, 7, v10')
            a.e('global_load_dword v239, v238, s[8:9]')
        a.e('v_lshlrev_b32 v10, 4, v1')
        a.e('s_waitcnt lgkmcnt(0)')
        a.e('s_mov_b32 s12, s18')
        a.e('s_mov_b32 s13, s19')
        srd(a, 12, WS_SIZE)

    def nonce(self):
        a = self.a
        a.e('s_waitcnt vmcnt(0)')
        a.e('v_mov_b32 v2, 0')
        a.e(f'global_load_dword v4, v2, s[16:17] {SC}')
        a.e('s_waitcnt vmcnt(0)')
        get_nonce(a, 2, 4)

    def page_touch(self):
        a = self.a
        l = a.newlabel('PT')
        a.e('s_cmp_lg_u32 s20, 1')
        a.e(f's_cbranch_scc1 {l}')
        a.e(f's_load_dwordx2 s[44:45], s[0:1], {A_WSP}')
        a.e(f's_load_dwordx2 s[46:47], s[0:1], {A_OUT}')
        a.e('v_lshlrev_b32 v2, 19, v1')
        a.e('buffer_load_dword v255, v2, s[12:15], 0 offen')
        a.e('v_min_u32 v4, 15, v1')
        a.e('v_lshlrev_b32 v4, 19, v4')
        a.e('v_min_u32 v5, 4, v1')
        a.e('v_lshlrev_b32 v5, 19, v5')
        a.e('s_waitcnt lgkmcnt(0)')
        a.e('global_load_dword v255, v4, s[44:45]')
        a.e('global_load_dword v255, v5, s[46:47]')
        a.e('global_load_dword v255, v5, s[56:57]')
        a.label(l)

    SV = 140

    def side(self, part):
        a = self.a
        lg = a.newlabel('SJ_G')
        le = a.newlabel('SJ_E')
        a.e('s_cmp_eq_u32 s20, 3')
        a.e(f's_cbranch_scc1 {lg}')
        a.e(f's_cmp_ge_u32 s63, {0 if "nort" in ABL else 720}')
        a.e(f's_cbranch_scc1 {le}')
        self.retile(part)
        a.e(f's_branch {le}')
        a.label(lg)
        self.gate(part)
        a.label(le)
        if part == 2:
            self.mark_flag()

    def gate(self, part):
        a = self.a
        V = self.SV
        X, W = V + 8, V + 44
        if part == 0:
            a.e(f'v_lshrrev_b32 v{V}, 3, v1')
            a.e('s_lshl_b32 s44, s3, 3')
            a.e(f'v_add_u32 v{V}, s44, v{V}')
            a.e(f'v_and_b32 v{V + 1}, 7, v1')
            a.e(f'v_lshlrev_b32 v{V + 1}, 4, v{V + 1}')
            a.e(f'v_mul_u32_u24 v{V + 2}, 1152, v{V}')
            a.e(f'v_add_u32 v{V + 2}, v{V + 2}, v{V + 1}')
            for i in range(9):
                a.e(f'global_load_dwordx4 {vr(X + 4 * i, 4)}, v{V + 2}, s[4:5] offset:{128 * i}')
                a.e(f'global_load_dwordx4 {vr(W + 4 * i, 4)}, v{V + 1}, s[58:59] offset:{128 * i}')
        elif part == 1:
            A0, A1, T0, T1 = V + 4, V + 5, V + 6, V + 7
            a.e(f'v_mov_b32 v{A0}, 0')
            a.e(f'v_mov_b32 v{A1}, 0')
            for i in range(36):
                a.e(f'v_dot2c_f32_bf16 v{A0 + i % 2}, v{X + i}, v{W + i}')
            a.e('s_nop 3')
            a.e(f'v_add_f32 v{A0}, v{A0}, v{A1}')
            for m in ('quad_perm:[1,0,3,2]', 'quad_perm:[2,3,0,1]', 'row_half_mirror'):
                a.e(f'v_add_f32_dpp v{A0}, v{A0}, v{A0} {m} row_mask:0xf bank_mask:0xf')
            a.e(f'v_mul_f32 v{A0}, {hx(-1.4426950408889634)}, v{A0}')
            a.e(f'v_exp_f32 v{A0}, v{A0}')
            a.e(f'v_add_f32 v{A0}, 1.0, v{A0}')
            a.e(f'v_rcp_f32 v{A0}, v{A0}')
            a.e(f'v_mov_b32 v{A1}, s62')
            a.e(f'v_lshlrev_b32 v{V}, 3, v{V}')
            a.e(f's_mov_b32 s44, {GATE_OFF}')
            a.e('s_mov_b32 exec_lo, 0x01010101')
            a.e('s_mov_b32 exec_hi, 0x01010101')
            a.e(f'buffer_store_dwordx2 {vr(A0, 2)}, v{V}, s[12:15], s44 offen {SC}')
            a.e('s_mov_b64 exec, -1')

    def retile_setup(self):
        a = self.a
        V = self.SV
        a.e('s_mul_i32 s63, s3, 3')
        a.e('s_add_u32 s63, s63, s20')
        a.e('s_and_b32 s64, s63, 7')
        a.e('s_lshr_b32 s65, s63, 3')
        a.e('s_cmp_lt_u32 s65, 18')
        a.e('s_cselect_b32 s40, s36, s56')
        a.e('s_cselect_b32 s41, s37, s57')
        a.e(f's_mov_b32 s42, {2304 * 1152}')
        a.e(f's_cselect_b32 s42, {576 * 1152}, s42')
        a.e('s_mov_b32 s43, 0x00020000')
        a.e('s_sub_u32 s44, s65, 18')
        a.e('s_mul_i32 s45, s44, 57')
        a.e('s_lshr_b32 s45, s45, 10')
        a.e('s_mul_i32 s46, s45, 18')
        a.e('s_sub_u32 s44, s44, s46')
        a.e('s_lshl_b32 s46, s45, 9')
        a.e('s_lshl_b32 s47, s45, 6')
        a.e(f's_add_u32 s47, s47, {2048 - 512}')
        a.e('s_cmp_lt_u32 s44, 16')
        a.e('s_cselect_b32 s46, s46, s47')
        a.e('s_lshl_b32 s44, s44, 5')
        a.e('s_add_u32 s44, s44, s46')
        a.e('s_mov_b32 s45, 4')
        a.e('s_mov_b32 s46, 8')
        a.e('s_mov_b32 s47, 16')
        a.e('s_mov_b32 s48, 2')
        a.e('s_sub_u32 s49, s65, 16')
        a.e('s_mul_i32 s49, s49, 288')
        a.e('s_add_u32 s49, s49, 16')
        a.e('s_cmp_lt_u32 s65, 18')
        a.e('s_cselect_b32 s44, s49, s44')
        a.e('s_cselect_b32 s45, 72, s45')
        a.e('s_cselect_b32 s46, 144, s46')
        a.e('s_cselect_b32 s47, 36, s47')
        a.e('s_cselect_b32 s48, 18, s48')
        a.e('s_mul_i32 s49, s65, 36')
        a.e('s_cmp_lt_u32 s65, 16')
        a.e('s_cselect_b32 s44, s49, s44')
        a.e('s_cselect_b32 s45, 18, s45')
        a.e('s_cselect_b32 s46, 4, s46')
        a.e('s_cselect_b32 s47, 8, s47')
        a.e('s_cselect_b32 s48, 2, s48')
        for r in (44, 45, 46, 47):
            a.e(f's_mul_i32 s{r}, s{r}, 1152')
        a.e('s_mul_i32 s49, s64, 144')
        a.e('s_add_u32 s66, s44, s49')
        a.e('s_add_u32 s67, s66, s47')
        for i in range(2):
            a.e(f's_add_u32 s{68 + i}, s{66 + i}, s45')
        for i in range(4):
            a.e(f's_add_u32 s{70 + i}, s{66 + i}, s46')
        a.e(f'v_lshrrev_b32 v{V}, 5, v1')
        a.e(f'v_mul_lo_u32 v{V}, v{V}, s48')
        a.e('v_bfe_u32 v5, v1, 4, 1')
        a.e(f'v_add_u32 v{V}, v{V}, v5')
        a.e(f'v_mul_u32_u24 v{V}, 1152, v{V}')
        a.e('v_and_b32 v5, 15, v1')
        a.e('v_min_u32 v5, 8, v5')
        a.e(f'v_lshl_add_u32 v{V}, v5, 4, v{V}')
        a.e('v_lshrrev_b32 v5, 4, v1')
        a.e('v_bfe_u32 v6, v1, 2, 2')
        a.e('v_lshlrev_b32 v7, 11, v5')
        a.e('v_lshl_add_u32 v7, v6, 8, v7')
        a.e(f's_add_u32 s44, s26, {KVBUF}')
        a.e('v_add_u32 v7, s44, v7')
        a.e('v_and_b32 v6, 3, v1')
        a.e(f'v_lshl_add_u32 v{V + 2}, v6, 3, v7')
        a.e(f'v_lshl_add_u32 v{V + 1}, v6, 4, v7')
        a.e('v_and_b32 v6, 7, v1')
        a.e('v_lshl_add_u32 v5, v5, 3, v6')
        a.e('v_lshlrev_b32 v5, 4, v5')
        a.e(f'v_add_u32 v{V + 3}, 4096, v5')

    def retile(self, part):
        a = self.a
        V = self.SV
        F = V + 8
        if part == 0:
            for i in range(8):
                a.e(f's_add_u32 m0, s26, {KVBUF + 1024 * i}')
                a.e(f'buffer_load_dwordx4 v{V}, s[40:43], s{66 + i} offen lds')
        elif part == 1:
            for nt in range(5):
                for j in range(2):
                    if nt < 4:
                        a.e(f'ds_read_b64_tr_b16 {vr(F + 4 * nt + 2 * j, 2)}, v{V + 1} offset:{64 * (nt // 2) + 8 * (nt % 2) + 1024 * j}')
                    else:
                        a.e(f'ds_read_b64_tr_b16 {vr(F + 4 * nt + 2 * j, 2)}, v{V + 2} offset:{128 + 1024 * j}')
            a.e('s_mul_i32 s44, s64, 90')
            a.e('s_add_u32 s44, s44, s65')
            a.e('s_mul_i32 s44, s44, 4608')
            a.e(f's_add_u32 s44, s44, {W3_OFF}')
            a.e('s_waitcnt lgkmcnt(0)')
            for nt in range(4):
                a.e(f'buffer_store_dwordx4 {vr(F + 4 * nt, 4)}, v10, s[12:15], s44 offen offset:{1024 * nt} {SC}')
            a.e('s_mov_b32 exec_lo, 0x00ff00ff')
            a.e('s_mov_b32 exec_hi, 0x00ff00ff')
            a.e(f'buffer_store_dwordx4 {vr(F + 16, 4)}, v{V + 3}, s[12:15], s44 offen {SC}')
            a.e('s_mov_b64 exec, -1')
        else:
            a.e('s_lshl_b32 s44, s64, 7')
            a.e('s_add_u32 s44, s44, s65')
            a.e('s_lshl_b32 s44, s44, 2')
            a.e(f's_add_u32 s44, s44, {FW3_OFF}')
            set_flag(a, 44, V + 4)

    def issue_kv(self, buf_s=None, buf=None, flags=''):
        a = self.a
        for g in range(3):
            if buf_s is not None:
                a.e(f's_add_u32 m0, s{buf_s}, {4096 * g}')
            else:
                a.e(f's_add_u32 m0, s31, {buf * KVBUF + 4096 * g}')
            for i in range(4 if g < 2 else 2):
                a.vm(f'buffer_load_dwordx4 v15, s[12:15], s30 offen offset:{1024 * i} {flags} lds', 'kv')
            a.e('s_add_u32 s30, s30, 4096')
        a.e(f's_add_u32 s30, s30, {16 * KV_TILE - 3 * 4096}')

    def q_phase(self):
        a = self.a
        a.e('s_mov_b32 s31, s26')
        a.e('v_add_u32 v15, s31, v10')
        a.e(f's_mov_b32 s30, {KV_OFF}')
        l = a.newlabel('KVR')
        a.e('s_cmp_lg_u32 s20, 0')
        a.e(f's_cbranch_scc1 {l}')
        self.nonce()
        a.e('v_mov_b32 v4, s62')
        a.e('ds_write_b32 v2, v4')
        a.e('s_waitcnt lgkmcnt(0)')
        a.label(l)
        a.e('s_barrier')
        a.e('v_mov_b32 v2, 0')
        a.e('ds_read_b32 v40, v2')
        a.e('s_lshl_b32 s48, s23, 3')
        a.e('s_add_u32 s48, s48, s22')
        a.e('s_mul_i32 s48, s48, 2304')
        a.e(f's_add_u32 s48, s48, {QF_OFF}')
        for i in range(2):
            a.e(f'buffer_store_dwordx4 v[224:227], v10, s[12:15], s48 offen offset:{1024 * i} {SC}')
        a.e(f'buffer_store_dword v224, v228, s[12:15], s48 offen offset:2048 {SC}')
        a.e('s_lshl_b32 s44, s3, 5')
        a.e('s_add_u32 s44, s44, s20')
        a.e('s_lshl_b32 s44, s44, 2')
        a.e(f's_add_u32 s44, s44, {GO_OFF}')
        a.e('v_and_b32 v11, 31, v1')
        a.e('v_lshlrev_b32 v11, 2, v11')
        a.e('v_add_u32 v11, 1024, v11')
        a.e('s_waitcnt vmcnt(0) lgkmcnt(0)')
        a.e('v_readfirstlane_b32 s62, v40')
        set_flag(a, 44, 42)
        for p in range(2):
            for i in (5, 6, 7):
                a.e(f'v_mov_b32 v{self.QF + 8 * p + i}, 0')
            a.e(f'v_mov_b32 v{self.KF + 8 * p + 5}, 0x3f803f80')
            a.e(f'v_mov_b32 v{self.KF + 8 * p + 6}, 0x3f803f80')
            a.e(f'v_mov_b32 v{self.KF + 8 * p + 7}, 0')
        a.e('v_lshrrev_b32 v2, 5, v1')
        a.e('v_lshlrev_b32 v2, 2, v2')
        a.e('v_bfe_u32 v4, v1, 3, 1')
        a.e('v_lshl_add_u32 v2, v4, 1, v2')
        a.e('v_mul_u32_u24 v12, 168, v2')
        a.e('v_add_u32 v12, 1152, v12')
        a.e('v_bfe_u32 v4, v1, 4, 1')
        a.e('v_bfe_u32 v13, v1, 2, 1')
        a.e('v_mul_u32_u24 v14, 168, v4')
        a.e('v_add_u32 v14, v14, v12')
        a.e('v_and_b32 v8, 1, v1')
        a.e('v_lshl_add_u32 v8, v8, 1, v13')
        a.e('v_lshl_add_u32 v8, v8, 3, v14')
        a.e('v_add_u32 v8, 128, v8')
        a.e('v_add_u32 v9, 160, v14')
        a.e('v_and_b32 v2, 2, v1')
        a.e('v_cmp_eq_u32 vcc, 0, v2')
        a.e(f'v_cndmask_b32 v{self.TB}, v9, v8, vcc')
        a.e(f'v_cndmask_b32 v{self.TB + 1}, v8, v9, vcc')
        a.e('v_lshl_add_u32 v2, v4, 1, v13')
        a.e('v_lshl_add_u32 v12, v2, 5, v12')
        a.e('v_and_b32 v2, 3, v1')
        a.e('v_lshl_add_u32 v12, v2, 3, v12')
        a.e('v_mul_u32_u24 v14, 0xaaaa, v13')
        a.e('v_add_u32 v14, 0x4444, v14')
        a.e('v_mul_u32_u24 v13, 0xaaaa, v4')
        a.e('v_add_u32 v13, 0x4444, v13')
        self.point(KVBUF)
        a.e('s_and_b32 s49, s3, 7')
        a.e('s_lshl_b32 s49, s49, 9')
        a.e(f's_add_u32 s49, s49, {KVF_OFF}')
        a.e('v_min_u32 v230, 47, v1')
        a.e('v_lshlrev_b32 v230, 3, v230')
        lq = a.newlabel('QW')
        lo = a.newlabel('QOK')
        lh = a.newlabel('QH')
        a.e(f's_mov_b32 s51, {SPIN_MAX}')
        a.label(lh)
        a.e(f's_sleep {opt("qsl", [12])[0]}')
        a.e(f'buffer_load_dword v2, v11, s[12:15], s48 offen offset:1152 {SCL}')
        a.e('s_sub_u32 s51, s51, 1')
        a.e('s_waitcnt vmcnt(0)')
        a.e('v_cmp_eq_u32 vcc, -1, v2')
        a.e('s_cmp_eq_u32 s51, 1')
        a.e(f's_cbranch_scc1 {lq}')
        a.e(f's_cbranch_vccnz {lh}')
        a.e('s_setprio 3')
        a.label(lq)
        for p in range(2):
            a.e(f'buffer_load_dwordx4 {vr(self.QF + 8 * p, 4)}, v10, s[12:15], s48 offen offset:{1152 * p} {SCL}')
            a.e(f'buffer_load_dword v{self.PF + p}, v11, s[12:15], s48 offen offset:{1152 * p} {SCL}')
        a.e('s_waitcnt vmcnt(0)')
        a.e(f'v_max_u32 v2, v{self.PF}, v{self.PF + 1}')
        for r in (0, 2, 8, 10):
            a.e(f'v_max3_u32 v2, v{self.QF + r}, v{self.QF + r + 1}, v2')
        a.e('v_cmp_eq_u32 vcc, -1, v2')
        a.e(f's_cbranch_vccz {lo}')
        a.e('s_sleep 2')
        a.e('s_sub_u32 s51, s51, 1')
        a.e('s_cmp_lg_u32 s51, 0')
        a.e(f's_cbranch_scc1 {lq}')
        a.label(lo)
        stamp(a, 6)
        lk = a.newlabel('KW')
        lo = a.newlabel('KOK')
        a.e(f'v_add_u32 v4, {KVBUF}, v15')
        a.e(f's_mov_b32 s51, {SPIN_MAX}')
        a.label(lk)
        a.e(f's_mov_b32 s30, {KV_OFF}')
        self.issue_kv(buf=1, flags=SCL)
        a.e('s_waitcnt vmcnt(0)')
        for i in range(10):
            a.e(f'ds_read_b128 {vr(16 + 4 * i, 4)}, v4 offset:{1024 * i}')
        a.e('s_waitcnt lgkmcnt(0)')
        a.e('v_max_u32 v2, v16, v17')
        a.e('v_max_u32 v8, v18, v19')
        for i in range(20, 56, 4):
            a.e(f'v_max3_u32 v2, v{i}, v{i + 1}, v2')
            a.e(f'v_max3_u32 v8, v{i + 2}, v{i + 3}, v8')
        a.e('v_max_u32 v2, v2, v8')
        a.e('v_cmp_eq_u32 vcc, -1, v2')
        a.e(f's_cbranch_vccz {lo}')
        a.e('s_sleep 8')
        a.e('s_sub_u32 s51, s51, 1')
        a.e('s_cmp_lg_u32 s51, 0')
        a.e(f's_cbranch_scc1 {lk}')
        a.label(lo)
        a.vmq = []
        a.e('v_cmp_gt_u32 vcc, 32, v1')
        for p in range(2):
            a.e(f'v_cndmask_b32 v{self.QF + 8 * p + 4}, 0, v{self.PF + p}, vcc')

    def kvf_load(self):
        self.a.e(f'buffer_load_dwordx2 {vr(self.XF + 2, 2)}, v230, s[12:15], s49 offen {SC}')

    def readK(self, j):
        a = self.a
        b = self.KF + 8 * (j % 2)
        off = (j % 16) * KV_TILE
        a.lg(f'ds_read_b128 {vr(b, 4)}, v5 offset:{off}', ('K', j))
        a.lg(f'ds_read_b32 v{b + 4}, v6 offset:{off}', ('K', j))

    def readV(self, j, m):
        a = self.a
        b = self.VF + 8 * (j % 2)
        off = (j % 16) * KV_TILE
        for jj in range(2):
            if m == 0:
                a.lg(f'ds_read_b64_tr_b16 {vr(b + 2 * jj, 2)}, v7 offset:{off + jj * 168}', ('V', j))
            else:
                a.lg(f'ds_read_b64_tr_b16 {vr(b + 4 + 2 * jj, 2)}, v{self.TB + 2 + jj} offset:{off}', ('V', j))

    def S(self, n, part):
        j, qt = n // 2, n % 2
        d = vr(self.SB + 16 * (n % 2), 16)
        k = self.KF + 8 * (j % 2) + 4 * part
        q = self.QF + 8 * qt + 4 * part
        self.a.e(f'v_mfma_f32_32x32x16_bf16 {d}, {vr(k, 4)}, {vr(q, 4)}, {"0" if part == 0 else d}')

    def PV(self, n, m):
        j, qt = n // 2, n % 2
        p = vr(self.P2 + 8 * qt, 8)
        v = vr(self.VF + 8 * (j % 2) + 4 * m, 4)
        if m == 0:
            self.a.e(f'v_smfmac_f32_32x32x32_bf16 {vr(self.OB + 16 * qt, 16)}, {v}, {p}, v13')
        else:
            self.a.e(f'v_smfmac_f32_16x16x64_bf16 {vr(self.PF + 4 * qt, 4)}, {v}, {p}, v14')

    def set_m(self, qt, vm, add):
        a = self.a
        q = self.QF + 8 * qt
        a.e(f'v_sub_f32 v2, {hx(-add)}, v{vm}')
        a.e('v_and_b32 v4, 0xffff0000, v2')
        a.e('v_sub_f32 v2, v2, v4')
        a.e(f'v_and_b32 v{self.TB + 4}, 0xffff0000, v2')
        a.e(f'v_sub_f32 v2, v2, v{self.TB + 4}')
        a.e('v_lshrrev_b32 v4, 16, v4')
        a.e(f'v_or_b32 v4, v4, v{self.TB + 4}')
        a.e('v_lshrrev_b32 v2, 16, v2')
        a.e('v_cmp_gt_u32 vcc, 32, v1')
        a.e(f'v_cndmask_b32 v{q + 5}, 0, v4, vcc')
        a.e(f'v_cndmask_b32 v{q + 6}, 0, v2, vcc')

    TB = 232
    P2 = 240

    def point(self, off):
        a = self.a
        for i in range(3):
            a.e(f'v_add_u32 v{5 + i}, {off}, v{10 + i}')
        for i in range(2):
            a.e(f'v_add_u32 v{self.TB + 2 + i}, {off}, v{self.TB + i}')

    def max16(self, b, dst, first):
        a = self.a
        if first:
            a.e(f'v_max3_f32 v{dst}, v{b}, v{b + 1}, v{b + 2}')
            a.e(f'v_max_f32 v{dst}, v{dst}, v{b + 3}')
            r = range(4, 16, 2)
        else:
            r = range(0, 16, 2)
        for i in r:
            a.e(f'v_max3_f32 v{dst}, v{b + i}, v{b + i + 1}, v{dst}')

    def halves_max(self, r):
        a = self.a
        a.e(f'v_mov_b32 v2, v{r}')
        a.e(f'v_permlane32_swap_b32 v{r}, v2')
        a.e(f'v_max_f32 v{r}, v{r}, v2')

    def main(self, flags=''):
        a = self.a
        L_PASS = a.newlabel('ATT_PASS')
        L_LOOP = a.newlabel('ATT_LOOP')
        L_NOKV = a.newlabel('ATT_NOKV')
        L_FIN = a.newlabel('ATT_FIN')
        a.e('s_mov_b32 s33, 0')
        a.e('s_mov_b32 s39, 4')
        a.e('s_barrier')
        self.readK(0)
        a.wait_lg0()
        for qt in range(2):
            self.S(qt, 0)
            self.S(qt, 1)
        for qt in range(2):
            self.max16(self.SB + 16 * qt, 8 + qt, True)
            self.halves_max(8 + qt)
            self.set_m(qt, 8 + qt, float(opt('moff', [M_OFFSET])[0]))
        a.label(L_PASS)
        self.readK(0)
        self.readK(1)
        self.readV(0, 0)
        self.readV(0, 1)
        for i in range(32):
            a.e(f'v_mov_b32 v{self.OB + i}, 0')
        for i in range(8):
            a.e(f'v_mov_b32 v{self.PF + i}, 0')
            a.e(f'v_mov_b32 v{self.P2 + 8 + i}, 0')
            a.e(f'v_mov_b32 v{self.VF + 8 + i}, 0')
        a.e('s_mov_b32 s34, 0')
        a.e(f's_add_u32 s35, s31, {KVBUF}')
        a.e(f's_mov_b32 s37, {-KVBUF & 0xffffffff}')
        a.wait_lg0()
        self.S(0, 0)
        self.S(0, 1)
        a.e('s_nop 7')
        a.label(L_LOOP)
        a.wait_lg0()
        if opt('gate'):
            lng = a.newlabel('ATT_NG')
            a.e(f's_cmp_lg_u32 s34, {opt("gate")[0]}')
            a.e(f's_cbranch_scc1 {lng}')
            a.e('s_lshl_b32 s44, s3, 7')
            a.e(f's_add_u32 s44, s44, {PROG_OFF}')
            a.e('v_mov_b32 v2, 0')
            poll(a, lambda: a.e(f'buffer_load_dword v4, v2, s[12:15], s44 offen {SC}'), [4], 8, sleep=8)
            if 'gateprio' in ABL:
                a.e('s_setprio 1')
            a.label(lng)
        if 'attfine' in ABL:
            for c, idx in ((1, 4), (2, 5), (3, 1)):
                lq = a.newlabel('ATT_Q')
                a.e(f's_cmp_lg_u32 s34, {c}')
                a.e(f's_cbranch_scc1 {lq}')
                stamp(a, idx)
                a.label(lq)
        if True:
            lp = a.newlabel('ATT_P')
            a.e(f's_cmp_lg_u32 s34, {opt("aprio", [0])[0]}')
            a.e(f's_cbranch_scc1 {lp}')
            a.e('s_setprio 1')
            a.label(lp)
        for n in range(32):
            j, qt = n // 2, n % 2
            sb = self.SB + 16 * (n % 2)
            if n == 29:
                a.e('s_waitcnt vmcnt(0) lgkmcnt(0)')
                a.vmq = []
                a.lgq = []
                a.e('s_barrier')
                for r in (5, 6, 7, self.TB + 2, self.TB + 3):
                    a.e(f'v_add_u32 v{r}, s37, v{r}')
                if 'novp' not in ABL:
                    a.e('s_setprio 3')
                a.e('s_cmp_ge_u32 s34, 2')
                a.e(f's_cbranch_scc1 {L_NOKV}')
                ls0 = a.newlabel('ATT_S0')
                a.e('s_cmp_eq_u32 s39, 0')
                a.e(f's_cbranch_scc1 {ls0}')
                self.issue_kv(buf_s=35, flags=flags)
                a.e(f's_branch {L_NOKV}')
                a.label(ls0)
                self.side(0)
                a.e('s_mov_b32 s39, 1')
                a.label(L_NOKV)
                self.gate_load()
                if 'retouch' in ABL:
                    a.e('global_load_dword v239, v238, s[8:9]')
                if 'novp' not in ABL:
                    a.e('s_setprio 1')
                a.e('s_add_u32 s35, s35, s37')
                a.e('s_sub_u32 s37, 0, s37')
            SJ = opt('sj', [8, 1, 12, 16, 20, 26])
            if n in opt('mp', [9, 13, 17, 21, 25]):
                lm = a.newlabel('ATT_M')
                a.e('s_cmp_ge_u32 s54, s55')
                a.e(f's_cbranch_scc1 {lm}')
                if 'novp' not in ABL:
                    a.e('s_setprio 3')
                self.mark_part(3, 4)
                if 'novp' not in ABL:
                    a.e('s_setprio 1')
                a.label(lm)
            C1 = opt('c1', [4, 10])
            if n in C1:
                lc = a.newlabel('ATT_C1')
                a.e('s_cmp_lg_u32 s39, 4')
                a.e(f's_cbranch_scc1 {lc}')
                a.e('s_setprio 3')
                if n == C1[0]:
                    self.kvf_load()
                else:
                    a.e('s_waitcnt vmcnt(0)')
                    poll(a, self.kvf_load, [self.XF + 2, self.XF + 3], 236, first_done=True, sleep=6)
                    self.issue_kv(buf=0, flags=flags)
                    self.mark_part(0, 3)
                    a.e('s_mov_b32 s39, 0')
                a.e('s_setprio 1')
                a.label(lc)
            if n == SJ[0]:
                ls1 = a.newlabel('ATT_S1')
                a.e('s_cmp_lg_u32 s39, 1')
                a.e(f's_cbranch_scc1 {ls1}')
                a.e('s_waitcnt vmcnt(0)')
                if 'novp' not in ABL:
                    a.e('s_setprio 3')
                self.side(1)
                self.issue_kv(buf=1, flags=flags)
                a.e('s_mov_b32 s39, 2')
                if 'novp' not in ABL:
                    a.e('s_setprio 1')
                a.label(ls1)
            if n == SJ[5]:
                ls2 = a.newlabel('ATT_S2')
                a.e('s_cmp_lg_u32 s39, 2')
                a.e(f's_cbranch_scc1 {ls2}')
                a.e('s_waitcnt vmcnt(0)')
                if 'novp' not in ABL:
                    a.e('s_setprio 3')
                self.side(2)
                a.e('s_mov_b32 s39, 3')
                if 'novp' not in ABL:
                    a.e('s_setprio 1')
                a.label(ls2)
            if qt == 1:
                a.wait_lg(('K', j + 1))
            self.S(n + 1, 0)
            pf = self.P2 + 8 * qt
            for i in range(0, 4):
                a.e(f'v_exp_f32 v{sb + i}, v{sb + i}')
            if qt == 1:
                a.wait_lg(('V', j))
            self.PV(n - 1, 0)
            if qt == 0:
                self.readV(j + 1, 0)
            else:
                self.readK(j + 2)
            for i in range(4, 8):
                a.e(f'v_exp_f32 v{sb + i}, v{sb + i}')
            self.S(n + 1, 1)
            for i in range(4):
                a.e(f'v_cvt_pk_bf16_f32 v{pf + i}, v{sb + 2 * i}, v{sb + 2 * i + 1}')
            for i in range(8, 12):
                a.e(f'v_exp_f32 v{sb + i}, v{sb + i}')
            self.PV(n - 1, 1)
            if qt == 0:
                self.readV(j + 1, 1)
            for i in range(12, 16):
                a.e(f'v_exp_f32 v{sb + i}, v{sb + i}')
            for i in range(4, 8):
                a.e(f'v_cvt_pk_bf16_f32 v{pf + i}, v{sb + 2 * i}, v{sb + 2 * i + 1}')
        a.e('s_add_u32 s34, s34, 1')
        a.e('s_cmp_lt_u32 s34, 4')
        a.e(f's_cbranch_scc1 {L_LOOP}')
        self.PV(31, 0)
        self.PV(31, 1)
        a.e('s_setprio 3')
        a.wait_all()
        a.e('s_cmp_lg_u32 s33, 0')
        a.e(f's_cbranch_scc1 {L_FIN}')
        regs = [self.OB + i for i in range(32)] + [self.PF + i for i in (0, 1, 2, 4, 5, 6)]
        a.e(f'v_max_f32_e64 v2, |v{regs[0]}|, |v{regs[1]}|')
        for i in range(2, len(regs), 2):
            a.e(f'v_max3_f32 v2, |v{regs[i]}|, |v{regs[i + 1]}|, v2')
        a.e(f's_mov_b32 s44, {hx(2.0 ** 110)}')
        a.e('v_cmp_ngt_f32 vcc, s44, v2')
        for qt in range(2):
            a.e(f'v_mov_b32 v{8 + qt}, v{self.PF + 4 * qt + 2}')
            a.e(f'v_mov_b32 v{self.TB + 4 + qt}, v{self.PF + 4 * qt + 2}')
        for qt in range(2):
            a.e(f'v_permlane16_swap_b32 v{8 + qt}, v{self.TB + 4 + qt}')
        for qt in range(2):
            a.e(f'v_add_f32 v{8 + qt}, v{8 + qt}, v{self.TB + 4 + qt}')
        a.e(f's_mov_b32 s44, {hx(2.0 ** (VSH - M_OFFSET - 4))}')
        a.e('v_cmp_nle_f32 s[46:47], s44, v8')
        a.e('s_or_b64 vcc, vcc, s[46:47]')
        a.e('v_cmp_nle_f32 s[46:47], s44, v9')
        a.e('s_or_b64 vcc, vcc, s[46:47]')
        a.e('s_cmp_lg_u64 vcc, 0')
        a.e('s_cselect_b32 s44, 1, 0')
        a.e('v_mov_b32 v2, s44')
        a.e('s_lshl_b32 s45, s20, 2')
        a.e(f's_add_u32 s45, s45, {16 * KV_TILE}')
        a.e('v_mov_b32 v4, s45')
        a.e('ds_write_b32 v4, v2')
        a.e(f'v_mov_b32 v4, {16 * KV_TILE}')
        a.e('s_waitcnt lgkmcnt(0)')
        a.e('s_barrier')
        a.e(f'ds_read_b128 {vr(self.P2, 4)}, v4')
        a.e('s_waitcnt lgkmcnt(0)')
        a.e(f'v_or3_b32 v2, v{self.P2}, v{self.P2 + 1}, v{self.P2 + 2}')
        a.e(f'v_or_b32 v2, v2, v{self.P2 + 3}')
        a.e('v_readfirstlane_b32 s44, v2')
        a.e('s_cmp_eq_u32 s44, 0')
        a.e(f's_cbranch_scc1 {L_FIN}')
        L_MC = a.newlabel('ATT_MC')
        L_MT = a.newlabel('ATT_MT')
        a.e('s_mov_b32 s33, 1')
        a.e('s_setprio 1')
        for p in range(2):
            a.e(f'v_mov_b32 v{self.QF + 8 * p + 5}, 0')
            a.e(f'v_mov_b32 v{self.QF + 8 * p + 6}, 0')
            a.e(f'v_mov_b32 v{8 + p}, 0xff7fffff')
        a.e(f's_mov_b32 s30, {KV_OFF}')
        a.e('s_mov_b32 s34, 0')
        a.label(L_MC)
        a.e('s_barrier')
        self.issue_kv(buf=0, flags=flags)
        a.e('v_mov_b32 v5, v10')
        a.e('v_mov_b32 v6, v11')
        a.e('s_mov_b32 s36, 0')
        a.wait_vm0()
        a.e('s_barrier')
        a.label(L_MT)
        self.readK(0)
        a.wait_lg0()
        for qt in range(2):
            self.S(qt, 0)
            self.S(qt, 1)
        a.e(f'v_add_u32 v5, {KV_TILE}, v5')
        a.e(f'v_add_u32 v6, {KV_TILE}, v6')
        for qt in range(2):
            self.max16(self.SB + 16 * qt, 8 + qt, False)
        a.e('s_add_u32 s36, s36, 1')
        a.e('s_cmp_lt_u32 s36, 16')
        a.e(f's_cbranch_scc1 {L_MT}')
        a.e('s_add_u32 s34, s34, 1')
        a.e('s_cmp_lt_u32 s34, 4')
        a.e(f's_cbranch_scc1 {L_MC}')
        for qt in range(2):
            self.halves_max(8 + qt)
            self.set_m(qt, 8 + qt, 0.0)
        a.e('s_barrier')
        a.e(f's_mov_b32 s30, {KV_OFF}')
        self.issue_kv(buf=1, flags=flags)
        self.issue_kv(buf=0, flags=flags)
        self.point(KVBUF)
        a.e('s_waitcnt vmcnt(10)')
        a.e('s_barrier')
        a.e(f's_branch {L_PASS}')
        a.label(L_FIN)
        a.vmq = []
        a.lgq = []

    def mark(self):
        a = self.a
        a.e('s_mul_i32 s44, s23, 90')
        a.e('s_lshl_b32 s52, s22, 1')
        a.e('s_add_u32 s52, s52, s44')
        a.e('s_lshl_b32 s52, s52, 10')
        a.e(f's_add_u32 s52, s52, {UF_OFF}')
        a.e('s_lshr_b32 s53, s22, 2')
        a.e('s_add_u32 s53, s53, s44')
        a.e('s_lshl_b32 s53, s53, 10')
        a.e('s_and_b32 s47, s22, 3')
        a.e('s_lshl_b32 s47, s47, 8')
        a.e('s_add_u32 s53, s53, s47')
        a.e(f's_add_u32 s53, s53, {UF_OFF + 16 * 1024}')
        a.e('s_mul_i32 s54, s22, 9')
        a.e('s_add_u32 s54, s54, s44')
        a.e('s_lshl_b32 s54, s54, 10')
        a.e(f's_add_u32 s54, s54, {UF_OFF + 18 * 1024}')
        a.e(f's_add_u32 s55, s54, {9 * 1024}')
        for i in range(4):
            a.e(f'v_mov_b32 v{224 + i}, -1')
        a.e('v_lshlrev_b32 v228, 2, v1')
        if opt('tp'):
            a.e('s_lshl_b32 s44, s24, 8')
            a.e('s_and_b32 s45, s22, 4')
            a.e('s_lshl_b32 s45, s45, 5')
            a.e('s_add_u32 s44, s44, s45')
            a.e('s_add_u32 s44, s44, s27')
            a.e('s_lshl_b32 s44, s44, 13')
            a.e(f'v_min_u32 v229, {64 // len(opt("tp")) - 1}, v1')
            a.e('v_lshlrev_b32 v229, 7, v229')
            a.e('v_add_u32 v229, s44, v229')

    def mark_part(self, lo, hi):
        a = self.a
        if 'nomark' in ABL:
            return
        for i in range(lo, hi):
            if i < 2:
                a.e(f'buffer_store_dwordx4 v[224:227], v10, s[12:15], s52 offen offset:{1024 * i} {SC}')
            elif i == 2:
                a.e(f'buffer_store_dword v224, v228, s[12:15], s53 offen {SC}')
            else:
                a.e(f'buffer_store_dwordx4 v[224:227], v10, s[12:15], s54 offen {SC}')
                a.e('s_add_u32 s54, s54, 1024')

    def mark_flag(self):
        a = self.a
        a.e('s_lshl_b32 s44, s23, 3')
        a.e('s_add_u32 s44, s44, s22')
        a.e('s_lshl_b32 s44, s44, 2')
        a.e(f's_add_u32 s44, s44, {PZ_OFF}')
        set_flag(a, 44, 236)

    def epilogue(self, flags=''):
        a = self.a
        a.e('v_and_b32 v4, 15, v1')
        a.e('v_lshlrev_b32 v4, 4, v4')
        a.e('v_lshrrev_b32 v5, 5, v1')
        a.e('v_lshl_add_u32 v4, v5, 2, v4')
        poll(a, self.gate_load, [self.XF + 1], 8, first_done=True)
        a.e('v_and_b32 v5, 16, v1')
        a.e('v_cmp_eq_u32 vcc, 0, v5')
        for qt in range(2):
            o = self.OB + 16 * qt
            t = self.PF + 4 * qt
            c = self.P2
            for i in range(3):
                a.e(f'v_mov_b32 v{c + i}, v{t + i}')
            for i in range(3):
                a.e(f'v_permlane16_swap_b32 v{t + i}, v{c + i}')
            for i in range(3):
                a.e(f'v_add_f32 v{t + i}, v{t + i}, v{c + i}')
            a.e(f'v_rcp_f32 v6, v{t + 2}')
            a.e(f'v_mul_f32 v6, v6, v{self.XF}')
            a.e(f'v_pk_mul_f32 {vr(t, 2)}, {vr(t, 2)}, v[6:7] op_sel_hi:[1,0]')
            a.e('v_mov_b32 v7, v6')
            a.e('v_permlane32_swap_b32 v6, v7')
            a.e('v_cndmask_b32 v6, v7, v6, vcc')
            for i in range(4):
                a.e(f'v_pk_add_f32 {vr(o + 2 * i, 2)}, {vr(o + 2 * i, 2)}, {vr(o + 8 + 2 * i, 2)}')
            for i in range(4):
                a.e(f'v_pk_mul_f32 {vr(o + 2 * i, 2)}, {vr(o + 2 * i, 2)}, v[6:7] op_sel_hi:[1,0]')
            pk = self.SB + 8 * qt
            for i in range(4):
                a.e(f'v_cvt_pk_bf16_f32 v{pk + i}, v{o + 2 * i}, v{o + 2 * i + 1}')
            a.e(f'v_cvt_pk_bf16_f32 v{pk + 4}, v{t}, v{t + 1}')
            for i in range(5):
                a.e(f'v_min_u32 v{pk + i}, -2, v{pk + i}')
            a.e(f'buffer_store_dwordx4 {vr(pk, 4)}, v10, s[12:15], s52 offen offset:{1024 * qt} {flags}')
            a.e('s_mov_b32 exec_lo, 0xffff')
            a.e('s_mov_b32 exec_hi, 0xffff')
            a.e(f'buffer_store_dword v{pk + 4}, v4, s[12:15], s53 offen offset:{8 * qt} {flags}')
            a.e('s_mov_b64 exec, -1')

    def gate_load(self):
        a = self.a
        a.e(f's_mov_b32 s38, {GATE_OFF}')
        a.e(f'buffer_load_dwordx2 {vr(self.XF, 2)}, v3, s[12:15], s38 offen {SC}')


def p3_pre(a):
    a.e('s_and_b32 s44, s22, 1')
    a.e('s_lshl_b32 s66, s21, 1')
    a.e('s_add_u32 s66, s66, s44')
    a.e('s_lshr_b32 s67, s22, 1')
    a.e('s_lshl_b32 s68, s21, 8')
    a.e(f's_add_u32 s68, s68, {PZ_OFF}')
    a.e('s_lshl_b32 s69, s67, 9')
    a.e(f's_add_u32 s69, s69, {FW3_OFF}')
    a.e('v_lshlrev_b32 v7, 2, v1')
    a.e('v_min_u32 v8, 44, v1')
    a.e('v_lshlrev_b32 v8, 3, v8')
    p3_flags(a)
    a.vmq += ['pre', 'pre']


def p3_flags(a):
    a.e(f'buffer_load_dword v4, v7, s[12:15], s68 offen {SC}')
    a.e(f'buffer_load_dwordx2 v[2:3], v8, s[12:15], s69 offen {SC}')


def p3(a):
    ACC = 16
    FR = 112
    HF = 240
    DEPTH = 4
    NS = 23
    a.e('s_mul_i32 s44, s20, 18')
    a.e('s_add_u32 s44, s44, 18')
    a.e('s_mul_i32 s45, s20, 5')
    a.e('s_cmp_eq_u32 s20, 3')
    a.e('s_cselect_b32 s46, 1, 0')
    a.e('s_sub_u32 s45, s45, s46')
    a.e('s_mul_i32 s46, s67, 90')
    a.e('s_add_u32 s25, s44, s46')
    a.e('s_mul_i32 s25, s25, 4608')
    a.e(f's_add_u32 s25, s25, {W3_OFF}')
    a.e('s_add_u32 s31, s45, s46')
    a.e('s_mul_i32 s31, s31, 4608')
    a.e(f's_add_u32 s31, s31, {W3_OFF}')
    a.e('v_lshrrev_b32 v6, 4, v1')
    a.e('v_lshlrev_b32 v6, 3, v6')
    a.e('v_and_b32 v9, 7, v1')
    a.e('v_add_u32 v6, v6, v9')
    a.e('v_lshlrev_b32 v6, 4, v6')
    a.e('v_bfe_u32 v9, v1, 3, 1')
    a.e('v_mul_u32_u24 v9, 4608, v9')
    a.e('v_add_u32 v6, v6, v9')
    a.e('v_add_u32 v6, 4096, v6')
    a.e('v_mov_b32 v12, v19')

    def loadW(k):
        b = FR + 32 * (k % DEPTH)
        if k == 18:
            a.e('s_mov_b32 s25, s31')
        for nt in range(4):
            a.vm(f'buffer_load_dwordx4 {vr(b + 4 * nt, 4)}, v12, s[12:15], s25 offen offset:{1024 * nt} {SCL}', ('W', k))
        if k % 2 == 0:
            a.vm(f'buffer_load_dwordx4 {vr(HF + 4 * ((k // 2) % 3), 4)}, v6, s[12:15], s25 offen {SCL}', ('W', k))
        a.e('s_add_u32 s25, s25, 4608')

    def loadF(k, track=True):
        b = FR + 32 * (k % DEPTH)
        a.e(f's_add_u32 s24, s{28 if k < 18 else 30}, {1024 * (k if k < 18 else k - 18)}')
        for i in range(4):
            t = f'buffer_load_dwordx4 {vr(b + 16 + 4 * i, 4)}, v{2 + i}, s[12:15], s24 offen {SCL}'
            a.vm(t, ('F', k)) if track else a.e(t)
    for k in range(opt('wpre', [2])[0]):
        loadW(k)
    a.e('s_mul_i32 s46, s66, 360')
    a.e('s_add_u32 s28, s44, s46')
    a.e('s_lshl_b32 s28, s28, 10')
    a.e(f's_add_u32 s28, s28, {UF_OFF}')
    a.e('s_add_u32 s30, s45, s46')
    a.e('s_lshl_b32 s30, s30, 10')
    a.e(f's_add_u32 s30, s30, {UF_OFF}')
    for i in range(4):
        a.e(f's_add_u32 s44, s20, {i}')
        a.e('s_and_b32 s44, s44, 3')
        a.e('s_mul_i32 s44, s44, 92160')
        a.e(f'v_add_u32 v{2 + i}, s44, v12')
    a.e('s_mov_b32 s8, s64')
    a.e('s_mov_b32 s9, s65')
    srd(a, 8, 2048 * 1152)
    a.e(f's_mov_b32 s51, {SPIN_MAX}')
    if 'nodrain' not in ABL:
        a.wait_vm('st')
    for k in range(DEPTH):
        if k >= opt('wpre', [2])[0]:
            loadW(k)
        loadF(k)
    for i in range(1, 4):
        a.e(f's_add_u32 s44, s20, {i}')
        a.e('s_and_b32 s44, s44, 3')
        a.e('s_mul_i32 s44, s44, 15360')
        a.e(f'v_add_u32 v{251 + i}, s44, v12')
    a.e('s_mul_i32 s26, s20, 15360')
    a.e('v_add_u32 v8, s26, v12')
    a.e('s_lshl_b32 s27, s66, 6')
    a.e('s_lshr_b32 s44, s20, 1')
    a.e('s_lshl_b32 s44, s44, 5')
    a.e('s_add_u32 s27, s27, s44')
    a.e('s_and_b32 s44, s20, 1')
    a.e('s_lshl_b32 s44, s44, 2')
    a.e('s_add_u32 s27, s27, s44')
    a.e('v_bfe_u32 v13, v1, 2, 2')
    a.e('v_lshlrev_b32 v13, 3, v13')
    a.e('v_and_b32 v14, 3, v1')
    a.e('v_add3_u32 v13, v13, v14, s27')
    a.e('v_mul_u32_u24 v13, 1152, v13')
    a.e('v_lshrrev_b32 v14, 4, v1')
    a.e('v_lshl_add_u32 v15, v14, 3, v13')
    a.e('v_lshl_add_u32 v13, v14, 4, v13')
    a.e('s_mul_i32 s27, s67, 144')
    stamp(a, 5)
    a.e(f's_setprio {opt("pg", PG)[2]}')
    lskip = a.newlabel('P3_SKIP')
    for k in range(NS):
        b = FR + 32 * (k % DEPTH)
        if k == NS - 1:
            a.e('s_cmp_ge_u32 s20, 2')
            a.e(f's_cbranch_scc1 {lskip}')
            a.wait_vm0()
        a.wait_vm(('F', k))
        lc = a.newlabel('P3_C')
        lok = a.newlabel('P3_OK')
        a.label(lc)
        a.e(f'v_max3_u32 v9, v{b + 16}, v{b + 17}, v{b + 18}')
        a.e(f'v_max3_u32 v10, v{b + 19}, v{b + 20}, v{b + 21}')
        for i in range(22, 32, 4):
            a.e(f'v_max3_u32 v9, v{b + i}, v{b + i + 1}, v9')
            if i + 2 < 32:
                a.e(f'v_max3_u32 v10, v{b + i + 2}, v{b + i + 3}, v10')
        a.e('v_max_u32 v9, v9, v10')
        a.e('v_cmp_eq_u32 vcc, -1, v9')
        a.e(f's_cbranch_vccz {lok}')
        a.e(f's_sleep {opt("psl", [4])[0]}')
        loadF(k, False)
        a.e('s_waitcnt vmcnt(0)')
        a.e('s_sub_u32 s51, s51, 1')
        a.e('s_cmp_lt_i32 s51, 1')
        a.e(f's_cbranch_scc0 {lc}')
        a.label(lok)
        hf = HF + 4 * ((k // 2) % 3)
        for i in (1, 2, 3, 0):
            for nt in range(5):
                n2 = nt if nt < 4 else 4 + k % 2
                d = vr(ACC + 16 * n2 + 4 * i, 4)
                first = k == 0 or (nt == 4 and k == 1)
                a.e(f'v_mfma_f32_16x16x32_bf16 {d}, {vr(b + 4 * nt, 4) if nt < 4 else vr(hf, 4)}, {vr(b + 16 + 4 * i, 4)}, {"0" if first else d}')
        kn = k + DEPTH
        if kn == NS - 1:
            ls = a.newlabel('P3_NL')
            a.e('s_cmp_ge_u32 s20, 2')
            a.e(f's_cbranch_scc1 {ls}')
            q1 = list(a.vmq)
            loadW(kn)
            loadF(kn)
            a.vmq = q1
            a.label(ls)
        elif kn < NS:
            loadW(kn)
            loadF(kn)
    a.label(lskip)
    a.e('s_setprio 3')
    stamp(a, 6)
    for i in range(1, 4):
        for nt in range(4):
            a.lg(f'ds_write_b128 v{251 + i}, {vr(ACC + 16 * nt + 4 * i, 4)} offset:{5120 * (i - 1) + 1024 * nt}', 'w')
    a.e('s_mov_b32 exec_lo, 0')
    for i in range(16):
        a.e(f'v_mov_b32 v{ACC + 64 + i}, v{ACC + 80 + i}')
    a.e('s_mov_b64 exec, -1')
    for i in range(1, 4):
        a.lg(f'ds_write_b128 v{251 + i}, {vr(ACC + 64 + 4 * i, 4)} offset:{5120 * (i - 1) + 4096}', 'w')
    a.wait_all()
    a.e('s_barrier')
    for nt in range(5):
        for i in range(3):
            a.lg(f'ds_read_b128 {vr(FR + 12 * nt + 4 * i, 4)}, v8 offset:{5120 * i + 1024 * nt}', ('r', nt))
    PKB = FR + 64
    OSC = 'sc1' if 'osc1' in ABL else 'nt' if 'ont' in ABL else ''
    for nt in range(5):
        a.wait_lg(('r', nt))
        b = FR + 12 * nt
        o = ACC + 16 * nt
        for h in range(2):
            a.e(f'v_pk_add_f32 {vr(b + 2 * h, 2)}, {vr(b + 2 * h, 2)}, {vr(b + 4 + 2 * h, 2)}')
            a.e(f'v_pk_add_f32 {vr(o + 2 * h, 2)}, {vr(o + 2 * h, 2)}, {vr(b + 8 + 2 * h, 2)}')
        for h in range(2):
            a.e(f'v_pk_add_f32 {vr(b + 2 * h, 2)}, {vr(b + 2 * h, 2)}, {vr(o + 2 * h, 2)}')
        if nt == 4:
            for r in range(4):
                a.e(f'v_mov_b32 v{o + r}, v{b + r}')
            for r in range(4):
                a.e(f'v_permlane32_swap_b32 v{b + r}, v{o + r}')
            for h in range(2):
                a.e(f'v_pk_add_f32 {vr(b + 2 * h, 2)}, {vr(b + 2 * h, 2)}, {vr(o + 2 * h, 2)}')
        for h in range(2):
            a.e(f'v_cvt_pk_bf16_f32 v{PKB + 2 * nt + h}, v{b + 2 * h}, v{b + 2 * h + 1}')
        if nt in (1, 3):
            a.e(f'buffer_store_dwordx4 {vr(PKB + 2 * nt - 2, 4)}, v13, s[8:11], s27 offen offset:{64 * (nt // 2)} {OSC}')
        if nt == 4:
            a.e('s_mov_b32 exec_hi, 0')
            a.e(f'buffer_store_dwordx2 {vr(PKB + 8, 2)}, v15, s[8:11], s27 offen offset:128 {OSC}')
            a.e('s_mov_b64 exec, -1')


def kernel_text(name, a, vgpr=256, sgpr=96):
    a.fix_hazards()
    mv, ms, ma = a.max_regs()
    assert mv <= vgpr and ms <= sgpr and ma == 0, (mv, ms, ma)
    body = f'.globl {name}\n.p2align 8\n.type {name},@function\n{name}:\n' + a.text()
    desc = f""".p2align 6
.amdhsa_kernel {name}
  .amdhsa_next_free_vgpr {vgpr}
  .amdhsa_next_free_sgpr {sgpr}
  .amdhsa_accum_offset {(vgpr + 3) // 4 * 4}
  .amdhsa_group_segment_fixed_size 0
  .amdhsa_kernarg_size 112
  .amdhsa_user_sgpr_count 2
  .amdhsa_user_sgpr_kernarg_segment_ptr 1
  .amdhsa_system_sgpr_workgroup_id_x 1
.end_amdhsa_kernel
"""
    return body, desc


DOC = '''
; ---------------------------------------------------------------------------------------------
;      pass A: z2 = gelu(x @ w_in[:, half 2]) and q/k/v column pieces; row sums exchanged as tagged
;              16-byte records; z1 GEMM runs while they travel; layer norm; z2n handed over in MFMA
;              fragment order; g = w_sp @ z2n; u = (1-gate) * z1 * (g + b); out tile = [o|u] @ [wo;w_out]
;  ids 256..511  "attention" role, 64 rows x 4 heads: S^T = K Q^T - m (m rides in spare k slots),
; Generated by a script (register allocation, wait counts and wait states are computed there).
; ---------------------------------------------------------------------------------------------
'''


def build_file(kernels):
    hdr = open('cdna_kernels/' + NAME + '.s.ref').read().split('\n')
    head = [l for l in hdr if l.startswith(';') and '@launch' not in l and 'Override' not in l and 'grid=ceil' not in l]
    head = head[:15]
    out = '\n'.join(head) + '\n'
    for name, a, grid, block, lds, vgpr in kernels:
        kn = f'kernel={name} ' if (len(kernels) > 1 or LIST) else ''
        out += f'; @launch {kn}grid=({grid},1,1) block=({block},1,1) lds={lds}\n'
    out += DOC.lstrip('\n')
    out += '.amdgcn_target "amdgcn-amd-amdhsa--gfx950"\n.text\n'
    descs = ''
    for name, a, grid, block, lds, vgpr in kernels:
        b, d = kernel_text(name, a, vgpr)
        out += b
        descs += d
    out += '.section .rodata,"a"\n' + descs
    import subprocess, tempfile, os, re
    with tempfile.TemporaryDirectory() as td:
        open(td + '/t.s', 'w').write(out.replace('CODE_LINES', '0x200'))
        subprocess.run(['clang', '-x', 'assembler', '-target', 'amdgcn-amd-amdhsa', '-mcpu=gfx950', '-c', td + '/t.s', '-o', td + '/t.o'], check=True)
        h = subprocess.run(['llvm-objdump', '-h', td + '/t.o'], capture_output=True, text=True).stdout
        size = int(re.search(r'\.text\s+([0-9a-f]+)', h).group(1), 16)
    assert size < 128 * 5 * 128
    return out.replace('CODE_LINES', str(size // 128 - 2))


NG1, NG2 = 1, 3


def mega():
    a = Asm()
    a.e('s_cmp_ge_u32 s2, 512')
    a.e('s_cbranch_scc1 K_END')
    stamp(a, 0)
    a.e('s_cmp_ge_u32 s2, 256')
    a.e('s_cbranch_scc1 K_ATT')
    a.label('K_GEMM')
    if 'diag200' in ABL:
        a.e('s_memrealtime s[90:91]')
    a.vmq = []
    a.lgq = []
    g = GW(a)
    UB, UP = g.UB, g.UP
    g.limitA = UB
    g.setup()
    if 'afine' in ABL:
        stamp(a, 1)
    g.prologue_issue()
    if 'afine' in ABL:
        stamp(a, 2)
    g.setup2()
    if 'afine' in ABL:
        stamp(a, 3)
        g.hooks[0] = lambda: stamp(a, 4)
        g.hooks[6] = lambda: stamp(a, 5)
        g.hooks[12] = lambda: stamp(a, 6)

    def nonce_ld():
        a.e('v_mov_b32 v23, 0')
        a.vm(f'global_load_dword v24, v23, s[16:17] {SC}', 'nonce')
        g.mk_load()
        a.vmq.append('nonce')
    g.mk_addr()
    g.hooks[22] = nonce_ld
    g.run_segment(0, UB)
    if 'afine' in ABL:
        a.e('s_branch K_DONE')
    stamp(a, 1)
    n1, n2 = opt('ng', [NG1, NG2])
    nb1 = opt('nb1', [8])[0]
    a.wait_vm('nonce')
    get_nonce(a, 23, 24)
    poll(a, g.mk_load, [26, 27], 28, first_done=True, sleep=4)
    g.proj_store()
    g.limitA = UP
    a.vmq.append('pst')
    a.vmq.append('pst')
    a.e('s_barrier')
    for _ in range(g.R - 1):
        g.run(g.issueA())
    if 'z1t' in ABL:
        a.e('s_lshl_b32 s44, s31, 2')
        a.e('s_add_u32 s44, s44, s20')
        a.e('s_mul_i32 s44, s44, 81')
        a.e('s_and_b32 s45, s2, 4')
        a.e('s_lshl_b32 s46, s45, 2')
        a.e('s_lshr_b32 s45, s45, 1')
        for i in range(2):
            a.e('v_min_u32 v24, 40, v1')
            a.e(f'v_add3_u32 v24, v24, s44, {40 * i}')
            a.e('v_mul_u32_u24 v25, 58255, v24')
            a.e('v_lshrrev_b32 v25, 20, v25')
            a.e('v_mul_u32_u24 v26, 18, v25')
            a.e('v_sub_u32 v24, v24, v26')
            a.e('v_add_u32 v26, s46, v24')
            a.e('v_add3_u32 v27, v24, s45, 16')
            a.e('v_cmp_gt_u32 vcc, 16, v24')
            a.e('v_cndmask_b32 v24, v27, v26, vcc')
            a.e('v_mul_u32_u24 v25, 9216, v25')
            a.e('v_lshl_add_u32 v24, v24, 7, v25')
            a.vm('buffer_load_dword v255, v24, s[8:11], 0 offen', 'tch')
    g.z2_gelu_publish()

    LF = 'lnfine' in ABL
    if LF:
        stamp(a, 2)
    g.run_segment(UB, nb1)
    if LF:
        stamp(a, 3)
    g.z2_gather_norm_store()
    stamp(a, 4 if LF else 2)
    a.e('s_lshl_b32 s49, s22, 9')
    a.e(f's_add_u32 s49, s49, {FZ_OFF}')
    a.e('s_lshl_b32 s48, s32, 7')
    a.e('s_add_u32 s48, s48, s49')
    a.e('s_and_b32 s50, s23, 15')
    a.e('s_lshl_b32 s50, s50, 2')
    a.e('s_add_u32 s48, s48, s50')
    a.e('s_and_b32 s50, s32, 2')
    a.e('s_lshl_b32 s50, s50, 7')
    a.e('s_add_u32 s50, s50, s49')
    a.e('v_and_b32 v29, 15, v1')
    a.e('v_lshlrev_b32 v29, 2, v29')
    a.e('v_lshrrev_b32 v23, 4, v1')
    a.e('v_lshl_add_u32 v23, v23, 7, v29')
    a.e('v_and_b32 v29, 0xff, v23')

    def zflag():
        a.wait_vm('st')
        set_flag(a, 48, 27)
    g.hooks[UB + nb1 + opt('zf', [4])[0]] = zflag
    g.run_segment(UB + nb1, 18 - nb1)
    if LF:
        stamp(a, 5)
    g.own_write()
    g.z1_gelu(range(0, n1))
    g.nextA = UP + 4
    g.run_segment(UP, 4, own=True)
    g.z1_gelu(range(n1, n2))
    if LF:
        stamp(a, 6)
    poll(a, lambda: a.e(f'buffer_load_dword v26, v29, s[12:15], s50 offen {SC}'), [26], 27)
    if LF:
        a.e('s_branch K_DONE')
    stamp(a, 3)
    g.limitA = len(g.units)
    a.e('s_barrier')
    for _ in range(g.R - 1):
        g.run(g.issueA())
    g.z1_gelu(range(n2, 9))
    g.hooks[UP + 58] = g.sp_pre

    def zall():
        a.e(f'buffer_load_dword v26, v23, s[12:15], s49 offen {SC}')

    def zall0():
        zall()
        a.vmq.append('zf')

    def zall1():
        a.wait_vm('zf')
        poll(a, zall, [26], 27, first_done=True)
    g.hooks[UP + 10] = zall0
    g.hooks[UP + 15] = zall1
    g.hooks[UP + 61] = lambda: p3_pre(a)
    g.hooks[UP + opt('gsw', [62])[0]] = lambda: a.e('s_setprio 0')

    if opt('gate'):
        def prog():
            a.e('s_lshl_b32 s44, s2, 7')
            a.e(f's_add_u32 s44, s44, {PROG_OFF}')
            set_flag(a, 44, 27)
        g.hooks[UP + opt('gate')[1]] = prog
    g.run_segment(UP + 4, 60)
    if 'p2fine' in ABL:
        a.e('s_branch K_DONE')
    stamp(a, 4)
    g.sp_epilogue()
    p3(a)
    a.e('s_or_b32 s44, s2, s20')
    a.e('s_cmp_lg_u32 s44, 0')
    a.e('s_cbranch_scc1 K_DONE')
    a.e('v_mov_b32 v2, 0')
    a.e(f'global_store_dword v2, v2, s[16:17] {SC}')
    if 'diag200' in ABL:
        a.label('DIAG')
        a.e('s_memrealtime s[92:93]')
        a.e('s_waitcnt lgkmcnt(0)')
        a.e('s_sub_u32 s92, s92, s90')
        a.e('s_cmp_lt_u32 s92, 10000')
        a.e('s_cbranch_scc1 DIAG')
    a.e('s_branch K_DONE')
    a.label('K_ATT')
    a.vmq = []
    a.lgq = []
    a.e('s_sub_u32 s3, s2, 256')
    P = opt('pa', [0, 1])
    t = ATT(a)
    t.setup(3)
    t.mark()
    write_nonce(a)
    if 'afine' in ABL:
        a.e('s_branch K_DONE')
    t.retile_setup()
    stamp(a, 1)
    a.e(f's_setprio {P[0]}')
    t.q_phase()
    stamp(a, 2)
    a.e(f's_setprio {P[1]}')
    if 'noattmain' in ABL:
        for p in range(3):
            if p == 2:
                t.mark_part(0, 12)
            a.wait_all()
            t.side(p)
        t.gate_load()
        a.wait_all()
    else:
        t.main(flags=SCL)
    stamp(a, 3)
    a.e('s_setprio 3')
    t.epilogue(flags=SC)
    a.label('K_DONE')
    stamp_flush(a, 0)
    a.label('K_END')
    a.e('s_endpgm')
    return (NAME + '_kernel', a, 512, 256, 81920, 256)


LIST = False
if __name__ == '__main__':
    if '--stamp' in sys.argv:
        STAMP = True
        sys.argv.remove('--stamp')
    if '--list' in sys.argv:
        LIST = True
        sys.argv.remove('--list')
    for x in list(sys.argv):
        if x.startswith('--abl='):
            ABL.update(x[6:].split(','))
            sys.argv.remove(x)
    out = sys.argv[1] if len(sys.argv) > 1 else 'out.s'
    open(out, 'w').write(build_file([mega()]))
    print('wrote', out)
```
